```python
import torch

def _softmax(x, axis=-1):
    return torch.softmax(x, dim=axis)
def _gelu(x):
    return torch.nn.functional.gelu(x, approximate="tanh")
def _silu(x):
    return torch.nn.functional.silu(x)
def _sigmoid(x):
    return torch.sigmoid(x)
def _layernorm(x, axis=-1, eps=1e-5):
    m = x.mean(dim=axis, keepdim=True)
    v = x.var(dim=axis, keepdim=True, unbiased=False)
    return (x - m) / torch.sqrt(v + eps)
def _scatter_add(tgt, idx, src, axis=0):
    return tgt.clone().index_add_(axis, idx, src)
def _segment_sum(src, seg, n):
    out = torch.zeros((n,) + src.shape[1:], dtype=src.dtype)
    return out.index_add_(0, seg, src)
def _pad(x, pw):
    flat = tuple(v for pair in reversed(pw) for v in pair)
    return torch.nn.functional.pad(x, flat)

kernel_name = 'interleave_layers__linear_attn_block__glu_gated_glu__prompt'

def setup_inputs():

    _w = (lambda a: (lambda t: t.to(torch.bfloat16) if t.is_floating_point() else t)(torch.as_tensor(a)))
    def _A_setup():
        B, S, D = 1, 2048, 448
        return {
            "x": _w((lambda *s: torch.randn(*s, dtype=torch.bfloat16) * 0.05)(B, S, D)),
            "wqkv": _w((lambda *s: torch.randn(*s, dtype=torch.bfloat16) * 0.1)(D, 3 * D)),
            "wo": _w((lambda *s: torch.randn(*s, dtype=torch.bfloat16) * 0.05)(D, D)),
        }
    _A_in = _A_setup()

    def _B_setup():
        B, S, D, F = 1, 2048, 448, 1792
        return {
            "x": _w((lambda *s: torch.randn(*s, dtype=torch.bfloat16) * 0.05)(B, S, D)),
            "w_gate": _w((lambda *s: torch.randn(*s, dtype=torch.bfloat16) * 0.05)(D, F)),
            "w_up": _w((lambda *s: torch.randn(*s, dtype=torch.bfloat16) * 0.05)(D, F)),
            "w_down": _w((lambda *s: torch.randn(*s, dtype=torch.bfloat16) * 0.05)(F, D)),
        }
    _B_in = _B_setup()

    return {
        "A_x": _A_in["x"],
        "A_wqkv": _A_in["wqkv"],
        "A_wo": _A_in["wo"],
        "B_x": _B_in["x"],
        "B_w_gate": _B_in["w_gate"],
        "B_w_up": _B_in["w_up"],
        "B_w_down": _B_in["w_down"],
    }

def reference(A_x, A_wqkv, A_wo, B_x, B_w_gate, B_w_up, B_w_down):
    def _A_ref(x, wqkv, wo):
        B, S, D = x.shape
        H = 16; Dh = D // H
        qkv = (lambda x, *d: x.permute(*d))((x @ wqkv).reshape(B, S, 3, H, Dh), 2, 0, 3, 1, 4)
        q, k, v = qkv[0], qkv[1], qkv[2]
        phi = lambda t: torch.where(t > 0, t + 1, torch.exp(t)) + 1e-6
        pq, pk = phi(q), phi(k)
        kv = torch.einsum("bhsd,bhse->bhde", pk, v)
        z = torch.einsum("bhsd->bhd", pk)
        num = torch.einsum("bhqd,bhde->bhqe", pq, kv)
        den = torch.einsum("bhqd,bhd->bhq", pq, z)[..., None] + 1e-6
        o = num / den
        return (lambda x, *d: x.permute(*d))(o, 0, 2, 1, 3).reshape(B, S, D) @ wo

    def _B_ref(x, w_gate, w_up, w_down):
        g = torch.einsum("bsd,df->bsf", x, w_gate)
        u = torch.einsum("bsd,df->bsf", x, w_up)
        h = _sigmoid(g) * u
        return torch.einsum("bsf,fd->bsd", h, w_down)

    x = A_x
    x = x + _A_ref(_layernorm(x, axis=-1), A_wqkv, A_wo)
    x = x + _B_ref(_layernorm(x, axis=-1), B_w_gate, B_w_up, B_w_down)
    x = x + _A_ref(_layernorm(x, axis=-1), A_wqkv, A_wo)
    x = x + _B_ref(_layernorm(x, axis=-1), B_w_gate, B_w_up, B_w_down)
    return x
```

```python
import re

_RANGE = re.compile(r'\b([vas])\[(\d+):(\d+)\]')
_SINGLE = re.compile(r'\b([vas])(\d+)\b')
TRANS = ('v_exp_f32', 'v_log_f32', 'v_rcp_f32', 'v_rsq_f32', 'v_sqrt_f32', 'v_sin_f32', 'v_cos_f32', 'v_rcp_iflag_f32')


def regs_of(op):
    out = set()
    s = op
    for m in _RANGE.finditer(s):
        for i in range(int(m.group(2)), int(m.group(3)) + 1):
            out.add((m.group(1), i))
    s = _RANGE.sub(' ', s)
    for m in _SINGLE.finditer(s):
        out.add((m.group(1), int(m.group(2))))
    if re.search(r'\bvcc\b', s):
        out.add(('s', 'vcc'))
    if re.search(r'\bexec\b', s):
        out.add(('s', 'exec'))
    if re.search(r'\bm0\b', s):
        out.add(('s', 'm0'))
    return out


def split_ops(rest):
    ops, depth, cur = [], 0, ''
    for ch in rest:
        if ch == '[':
            depth += 1
        if ch == ']':
            depth -= 1
        if ch == ',' and depth == 0:
            ops.append(cur.strip())
            cur = ''
        else:
            cur += ch
    if cur.strip():
        ops.append(cur.strip())
    return ops


class Ins:
    def __init__(self, text):
        self.text = text
        t = text.split(';')[0].strip()
        self.label = t.endswith(':')
        self.directive = t.startswith('.')
        self.rd, self.wr = set(), set()
        self.kind = 'other'
        self.A = self.B = self.C = self.D = set()
        self.ws = 1
        self.wide_store = set()
        if self.label or self.directive or not t:
            self.ws = 0
            self.op = ''
            return
        parts = t.split(None, 1)
        op = parts[0]
        for suf in ('_e32', '_e64', '_dpp', '_sdwa'):
            if op.endswith(suf):
                op = op[:-len(suf)]
        self.op = op
        rest = parts[1] if len(parts) > 1 else ''
        ops = split_ops(rest)
        R = [regs_of(o) for o in ops]
        allr = set().union(*R) if R else set()
        if op.startswith('v_mfma'):
            self.kind = 'mfma'
            self.D, self.A, self.B = R[0], R[1], R[2]
            self.C = R[3] if len(R) > 3 else set()
            self.wr = set(self.D)
            self.rd = self.A | self.B | self.C
        elif op.startswith('v_'):
            self.kind = 'valu'
            self.trans = op in TRANS
            self.dpp = ('quad_perm' in rest or 'row_' in rest or 'wave_' in rest)
            if op.startswith('v_permlane') or op == 'v_swap_b32':
                self.wr = R[0] | R[1]
                self.rd = R[0] | R[1]
            elif op in ('v_add_co_u32', 'v_sub_co_u32', 'v_addc_co_u32', 'v_subb_co_u32', 'v_mad_u64_u32'):
                self.wr = R[0] | R[1]
                self.rd = set().union(*R[2:])
            elif op == 'v_nop':
                pass
            else:
                self.wr = set(R[0])
                self.rd = set().union(*R[1:]) if len(R) > 1 else set()
                if op in ('v_fmac_f32', 'v_dot2c_f32_bf16', 'v_pk_fmac_f16', 'v_writelane_b32') or self.dpp:
                    self.rd |= R[0]
                if op.startswith('v_cmpx'):
                    self.wr.add(('s', 'exec'))
        elif op.startswith('ds_'):
            self.kind = 'ds'
            if op.startswith('ds_read') or op.startswith('ds_bpermute') or op.startswith('ds_permute') or op.startswith('ds_swizzle'):
                self.wr = set(R[0])
                self.rd = set().union(*R[1:])
            else:
                self.rd = allr
        elif op.startswith('buffer_') or op.startswith('global_'):
            self.kind = 'vmem'
            self.lds = bool(re.search(r'\blds\b', rest)) or '_lds_' in op
            if 'load' in op and not self.lds:
                self.wr = set(R[0])
                self.rd = set().union(*R[1:])
            else:
                self.rd = allr
                if self.lds:
                    self.rd.add(('s', 'm0'))
                if 'store' in op and (op.endswith('x4') or op.endswith('x3')):
                    self.wide_store = set(R[0]) if op.startswith('buffer_') else set(R[1])
        elif op.startswith('s_'):
            if op == 's_nop':
                self.ws = int(ops[0], 0) + 1
                self.kind = 'nop'
            elif op in ('s_waitcnt', 's_barrier', 's_sleep', 's_setprio', 's_endpgm') or op.startswith('s_cbranch') or op == 's_branch':
                self.kind = 'ctl'
            elif op.startswith('s_load') or op.startswith('s_memtime') or op.startswith('s_memrealtime'):
                self.kind = 'smem'
                self.wr = set(R[0])
                self.rd = set().union(*R[1:]) if len(R) > 1 else set()
            elif op.startswith('s_cmp') or op.startswith('s_bitcmp'):
                self.kind = 'salu'
                self.rd = allr
            else:
                self.kind = 'salu'
                self.wr = set(R[0])
                self.rd = set().union(*R[1:]) if len(R) > 1 else set()
                if 'saveexec' in op:
                    self.wr.add(('s', 'exec'))


def need_ws(p, c):
    n = 0
    vec = lambda s: {r for r in s if r[0] in 'va'}
    sca = lambda s: {r for r in s if r[0] == 's'}
    if p.kind == 'valu':
        pw = vec(p.wr)
        ps = sca(p.wr)
        isdot = p.op.startswith('v_dot')
        if c.kind == 'mfma' and pw & c.rd:
            n = max(n, 3 if isdot else 2)
        if c.kind == 'valu':
            if p.trans and pw & (c.rd | c.wr) and not c.trans:
                n = max(n, 1)
            if p.trans and pw & c.rd:
                n = max(n, 1)
            if c.op.startswith('v_permlane') and pw & c.rd:
                n = max(n, 2)
            if c.dpp and pw & c.rd:
                n = max(n, 2)
            if c.op in ('v_readlane_b32', 'v_readfirstlane_b32') and pw & c.rd:
                n = max(n, 1)
            if ps & c.rd:
                n = max(n, 4 if c.op in ('v_readlane_b32', 'v_writelane_b32') else 2)
            if isdot and pw & (c.rd | c.wr):
                if c.op == p.op:
                    ops = split_ops(c.text.split(';')[0].strip().split(None, 1)[1])
                    ab = regs_of(ops[1]) | regs_of(ops[2])
                    if pw & ab:
                        n = max(n, 3)
                else:
                    n = max(n, 3)
            if ('s', 'exec') in p.wr:
                n = max(n, 5)
        if isdot and c.kind in ('vmem', 'ds') and pw & c.rd:
            n = max(n, 3)
        if p.trans and c.kind in ('vmem', 'ds') and pw & c.rd:
            n = max(n, 1)
        if c.kind == 'vmem' and ps & c.rd:
            n = max(n, 5)
        if c.kind == 'mfma' and ('s', 'exec') in p.wr:
            n = max(n, 4)
        if c.kind in ('salu', 'smem') and ps & c.rd:
            n = max(n, 1)
    if p.kind == 'mfma':
        if c.kind == 'mfma':
            if p.D & (c.A | c.B):
                n = max(n, 12)
            if p.D & c.C and not (p.D == c.C):
                n = max(n, 10)
            if p.D & c.D and not (p.D == c.C):
                n = max(n, 10)
        elif c.kind == 'valu':
            if p.D & (c.rd | c.wr):
                n = max(n, 12)
            if p.C & c.wr:
                n = max(n, 7)
        elif c.kind in ('vmem', 'ds'):
            if p.D & (c.rd | c.wr):
                n = max(n, 12)
            if p.C & c.wr:
                n = max(n, 7)
    if p.kind == 'vmem' and p.wide_store:
        if p.wide_store & c.wr:
            n = max(n, 2)
    if p.kind == 'salu' and ('s', 'm0') in p.wr and c.kind == 'vmem' and getattr(c, 'lds', False):
        n = max(n, 1)
    return n


class Asm:
    def __init__(self):
        self.ins = []
        self.vm_issued = 0
        self.vm_done = 0
        self.lg_issued = 0
        self.lg_done = 0
        self.nops_added = 0
        self._uid = 0

    def uid(self, p='L'):
        self._uid += 1
        return f'{p}_{self._uid}'

    def raw(self, text):
        self.ins.append(Ins(text))

    def __call__(self, text):
        tok = None
        for line in text.strip().split('\n'):
            line = line.strip()
            if not line or line.startswith(';'):
                continue
            i = Ins(line)
            self._hazard(i)
            self.ins.append(i)
            if i.kind == 'vmem':
                tok = ('vm', self.vm_issued)
                self.vm_issued += 1
            elif i.kind == 'ds':
                tok = ('lg', self.lg_issued)
                self.lg_issued += 1
        return tok

    def _hazard(self, c):
        if c.kind in ('nop', 'ctl', 'other'):
            return
        dist = 0
        need = 0
        for p in reversed(self.ins):
            if dist >= 20:
                break
            if p.kind in ('valu', 'mfma', 'vmem', 'salu'):
                n = need_ws(p, c)
                if n - dist > need:
                    need = n - dist
            dist += p.ws
        while need > 0:
            k = min(need, 16)
            self.ins.append(Ins(f's_nop {k-1}'))
            self.nops_added += k
            need -= k

    def label(self, name):
        self.ins.append(Ins(f'{name}:'))

    def wait(self, *toks, force=False):
        vm = [t[1] for t in toks if t is not None and t[0] == 'vm']
        lg = [t[1] for t in toks if t is not None and t[0] == 'lg']
        parts = []
        if vm:
            t = max(vm)
            if t >= self.vm_done or force:
                n = min(self.vm_issued - 1 - t, 63)
                parts.append(f'vmcnt({n})')
                self.vm_done = max(self.vm_done, self.vm_issued - n)
        if lg:
            t = max(lg)
            if t >= self.lg_done or force:
                n = min(self.lg_issued - 1 - t, 15)
                parts.append(f'lgkmcnt({n})')
                self.lg_done = max(self.lg_done, self.lg_issued - n)
        if parts:
            self('s_waitcnt ' + ' '.join(parts))

    def wait_vm0(self):
        self('s_waitcnt vmcnt(0)')
        self.vm_done = self.vm_issued

    def wait_lg0(self):
        self('s_waitcnt lgkmcnt(0)')
        self.lg_done = self.lg_issued

    def wait_all(self):
        self('s_waitcnt vmcnt(0) lgkmcnt(0)')
        self.vm_done = self.vm_issued
        self.lg_done = self.lg_issued

    def wait_vm_n(self, n):
        self(f's_waitcnt vmcnt({n})')

    def forget(self):
        pass

    def barrier(self):
        self('s_barrier')

    def text(self):
        out = []
        for i in self.ins:
            out.append(i.text if (i.label or i.directive) else '  ' + i.text)
        return '\n'.join(out)


def vr(b, n=1):
    return f'v{b}' if n == 1 else f'v[{b}:{b+n-1}]'


def ar(b, n=1):
    return f'a{b}' if n == 1 else f'a[{b}:{b+n-1}]'


def sr(b, n=1):
    return f's{b}' if n == 1 else f's[{b}:{b+n-1}]'
```

```python
import sys
import contextlib
from asmlib import Asm, vr, ar, sr

NAME = "interleave_layers__linear_attn_block__glu_gated_glu__prompt"
PROFILE = '--prof' in sys.argv
STOP = None
for x in sys.argv:
    if x.startswith('--stop='):
        STOP = x.split('=')[1]

KV = 0x0
F1 = 0x20000
F2 = 0x22000
F4 = 0x24000
F3 = 0x28000
W1R = 0x100000; W1S = 87 * 1024
WOR = 0x280000; WOS = 64 * 1024
W3R = 0x300000; W3S = 203 * 1024
WDR = 0x680000; WDS = 224 * 1024
PQ = 0x900000
X1 = 0xD00000
X2 = 0x1100000
ST = 0x1300000
HB = 0x1400000
PROF = 0x3000000
WS_BYTES = 256 << 20
OOB = 0x40000000

LA = 0
LB = 114688
LDS_BYTES = 163840

S_WS, S_X, S_WQKV, S_WO, S_WG, S_WU, S_WD, S_OUT, S_DBG = 4, 8, 12, 16, 20, 24, 28, 32, 36
S_T0, S_T1 = 40, 44
sW, sXCD, sJ, sRB, sHC, sTB, sFB, sL, sTMO = 48, 49, 50, 51, 52, 53, 54, 55, 56
sPI = 57
sTILE1 = 58
sTILE2 = 59
sOWN = 60
sOFT = 61
sLN2, sEPS6, sONES = 62, 63, 84
sA, sB, sC, sD, sE, sF = 86, 87, 88, 89, 90, 91
sP0 = 92

vLANE, vL16, vL16b, vL16c, vROW, vAUG, vL4, vPROF = 0, 1, 2, 3, 4, 5, 6, 7
vXRES = 8
LOG2E = 0x3FB8AA3B
LN2 = 0x3F317218
EPS6 = 0x358637BD
EPS5 = 0x3727C5AC
INV448 = 0x3B124925

a = Asm()


@contextlib.contextmanager
def cond():
    st = (a.vm_issued, a.vm_done, a.lg_issued, a.lg_done)
    yield
    a.vm_issued, a.vm_done, a.lg_issued, a.lg_done = st
    a('s_nop 0')


def lds_addr(addr):
    if addr < 65536:
        return vL16, addr
    if addr < 131072:
        return vL16b, addr - 65536
    return vL16c, addr - 131072


def stamp():
    if not PROFILE:
        return
    a('s_waitcnt lgkmcnt(0)')
    a(f's_memrealtime {sr(sP0,2)}')
    a.wait_lg0()
    a(f'v_cmp_eq_u32 vcc, s{sPI}, v{vLANE}')
    a(f'v_mov_b32 v255, s{sP0}')
    a(f'v_cndmask_b32 v{vPROF}, v{vPROF}, v255, vcc')
    a(f's_add_u32 s{sPI}, s{sPI}, 1')


def srd(base, lo, nbytes):
    a(f's_mov_b32 s{base}, s{lo}')
    a(f's_and_b32 s{base+1}, s{lo+1}, 0xffff')
    a(f's_mov_b32 s{base+2}, {nbytes}')
    a(f's_mov_b32 s{base+3}, 0x00020000')


def poll(srdreg, vaddr, soff, width, expect=1, t=244):
    L = a.uid('Lpoll'); D = a.uid('Lpd')
    a.label(L)
    suf = {1: 'dword', 2: 'dwordx2', 4: 'dwordx4'}[width]
    a(f'buffer_load_{suf} {vr(t,width)}, v{vaddr}, {sr(srdreg,4)}, {soff} offen sc1')
    a.wait_vm0()
    if width == 4:
        a(f'v_and_b32 v{t}, v{t}, v{t+1}')
        a(f'v_and_b32 v{t+2}, v{t+2}, v{t+3}')
        a(f'v_and_b32 v{t}, v{t}, v{t+2}')
    elif width == 2:
        a(f'v_and_b32 v{t}, v{t}, v{t+1}')
    a(f'v_cmp_ne_u32 vcc, {expect:#x}, v{t}')
    a('s_cmp_eq_u64 vcc, 0')
    a(f's_cbranch_scc1 {D}')
    a(f's_sub_u32 s{sTMO}, s{sTMO}, 1')
    a(f's_cbranch_scc0 {L}')
    a(f's_mov_b32 s{sTMO}, 0')
    a.label(D)


def publish(soff, imm=0, t=244):
    a(f'v_mov_b32 v{t}, 1')
    a.wait_vm0()
    a('s_mov_b64 exec, 1')
    a(f'buffer_store_dword v{t}, off, {sr(S_WS,4)}, {soff} offset:{imm} sc1')
    a('s_mov_b64 exec, -1')


def dma(src_soff_reg, src_const, lds_base, nfrag, first=0):
    nchunk = (nfrag + 3) // 4
    rounds = (nchunk + 3) // 4
    a(f's_lshl_b32 s{sB}, s{sW}, 12')
    a(f's_add_u32 s{sA}, s{src_soff_reg}, {src_const}')
    a(f's_add_u32 s{sA}, s{sA}, s{sB}')
    a(f's_add_u32 m0, s{sB}, {lds_base}')
    for r in range(rounds):
        left = nchunk - 4 * r
        full = left >= 4 and (16 * r + 16 <= nfrag)

        def body(n):
            for i in range(n):
                a(f'buffer_load_dwordx4 v{vL16}, {sr(S_WS,4)}, s{sA} offen offset:{i*1024} sc1 lds')
        if full:
            body(4)
        else:
            rem = nfrag - 16 * r
            for i in range(4):
                nw = (rem - i + 3) // 4
                if nw >= 4:
                    a(f'buffer_load_dwordx4 v{vL16}, {sr(S_WS,4)}, s{sA} offen offset:{i*1024} sc1 lds')
                elif nw > 0:
                    S = a.uid('Ldm')
                    a(f's_cmp_ge_u32 s{sW}, {nw}')
                    a(f's_cbranch_scc1 {S}')
                    with cond():
                        a(f'buffer_load_dwordx4 v{vL16}, {sr(S_WS,4)}, s{sA} offen offset:{i*1024} sc1 lds')
                    a.label(S)
        if r + 1 < rounds:
            a(f's_add_u32 s{sA}, s{sA}, 16384')
            a('s_add_u32 m0, m0, 16384')


def frag_loads(dst_fn, n, soff_reg, tmp, stride=1024, cachebits='sc1', order=None):
    toks = []
    cur = None
    for i in range(n):
        off = i * stride
        blk = off // 4096
        if blk == 0:
            s = soff_reg
        else:
            if cur != blk:
                a(f's_add_u32 s{tmp}, s{soff_reg}, {blk*4096}')
                cur = blk
            s = tmp
        toks.append(a(f'buffer_load_dwordx4 {dst_fn(i)}, v{vL16}, {sr(S_WS,4)}, s{s} offen offset:{off%4096} {cachebits}'))
    return toks


def prologue():
    a('s_cmp_ge_u32 s2, 256')
    a('s_cbranch_scc1 L_end')
    a('s_load_dwordx16 s[64:79], s[0:1], 0')
    a('s_load_dwordx4 s[80:83], s[0:1], 64')
    a(f's_getpc_b64 {sr(sA,2)}')
    a.label('L_pc')
    a('v_lshlrev_b32 v16, 7, v0')
    a('v_min_u32 v16, (L_codeend - L_pc - 4), v16')
    a(f'global_load_dword v17, v16, {sr(sA,2)}')
    a(f'v_lshrrev_b32 v18, 6, v0')
    a(f'v_and_b32 v{vLANE}, 63, v0')
    a(f'v_readfirstlane_b32 s{sW}, v18')
    a(f'v_lshlrev_b32 v{vL16}, 4, v{vLANE}')
    a(f'v_add_u32 v{vL16b}, 0x10000, v{vL16}')
    a(f'v_add_u32 v{vL16c}, 0x20000, v{vL16}')
    a(f'v_lshlrev_b32 v{vL4}, 2, v{vLANE}')
    a(f'v_and_b32 v18, 31, v{vLANE}')
    a(f'v_lshrrev_b32 v19, 5, v{vLANE}')
    a(f'v_mul_u32_u24 v{vROW}, 896, v18')
    a(f'v_lshl_add_u32 v{vROW}, v19, 4, v{vROW}')
    a(f'v_lshlrev_b32 v{vAUG}, 2, v18')
    a(f'v_lshl_add_u32 v{vAUG}, v19, 9, v{vAUG}')
    a(f'v_mov_b32 v{vPROF}, 0')
    a(f's_mov_b32 s{sPI}, 0')
    a(f's_and_b32 s{sXCD}, s2, 7')
    a(f's_lshr_b32 s{sJ}, s2, 3')
    a(f's_lshr_b32 s{sRB}, s{sJ}, 4')
    a(f's_and_b32 s{sHC}, s{sJ}, 15')
    a(f's_mul_i32 s{sTB}, s{sJ}, 37')
    a(f's_lshr_b32 s{sTB}, s{sTB}, 8')
    a(f's_mul_i32 s{sFB}, s{sTB}, 7')
    a(f's_sub_u32 s{sFB}, s{sJ}, s{sFB}')
    a(f's_mov_b32 s{sL}, 0')
    a(f's_mov_b32 s{sTMO}, 100000')
    a(f's_lshl_b32 s{sTILE1}, s{sXCD}, 3')
    a(f's_lshl_b32 s{sA}, s{sTB}, 1')
    a(f's_add_u32 s{sTILE2}, s{sTILE1}, s{sA}')
    a(f's_lshl_b32 s{sA}, s{sRB}, 2')
    a(f's_add_u32 s{sTILE1}, s{sTILE1}, s{sA}')
    a(f's_add_u32 s{sTILE1}, s{sTILE1}, s{sW}')
    a(f's_lshr_b32 s{sA}, s{sW}, 1')
    a(f's_add_u32 s{sOWN}, s{sTILE2}, s{sA}')
    a(f's_and_b32 s{sA}, s{sW}, 1')
    a(f's_lshl_b32 s{sOFT}, s{sFB}, 1')
    a(f's_add_u32 s{sOFT}, s{sOFT}, s{sA}')
    a(f's_mov_b32 s{sLN2}, {LN2:#x}')
    a(f's_mov_b32 s{sEPS6}, {EPS6:#x}')
    a(f's_mov_b32 s{sONES}, 0x3f803f80')
    a('s_waitcnt lgkmcnt(0)')
    srd(S_X, 64, 2048 * 448 * 2)
    srd(S_WQKV, 66, 448 * 1344 * 2)
    srd(S_WO, 68, 448 * 448 * 2)
    srd(S_WG, 72, 448 * 1792 * 2)
    srd(S_WU, 74, 448 * 1792 * 2)
    srd(S_WD, 76, 1792 * 448 * 2)
    srd(S_OUT, 78, 2048 * 448 * 2)
    srd(S_DBG, 80, 256)
    srd(S_WS, 82, WS_BYTES)
    stamp()


UD = 128
UC = 192
vRHO, vHI, vSIG = 204, 205, 206
vt0, vt1, vt2, vt3 = 208, 209, 210, 211


def unit_loads(r, srdreg, pitch, srow0, srow1):
    col = UC + 3 * r
    per = 4095 // pitch + 1
    for g, s in enumerate((srow0, srow1)):
        for e in range(8):
            if e and e % per == 0:
                a(f's_add_u32 s{s}, s{s}, {per*pitch}')
            a(f'buffer_load_ushort v{UD+16*r+8*g+e}, v{col}, {sr(srdreg,4)}, s{s} offen offset:{(e%per)*pitch}')


def setup_w1(r, su):
    col, dst, aug = UC + 3 * r, UC + 3 * r + 1, UC + 3 * r + 2
    a(f's_mul_i32 s{sA}, s{su}, 9363')
    a(f's_lshr_b32 s{sA}, s{sA}, 16')
    a(f's_mul_i32 s{sB}, s{sA}, 7')
    a(f's_sub_u32 s{sB}, s{su}, s{sB}')
    a(f's_lshr_b32 s{sC}, s{sA}, 3')
    a(f's_and_b32 s{sA}, s{sA}, 7')
    a(f'v_cmp_le_u32 vcc, 24, v{vSIG}')
    a(f'v_subrev_u32 v{vt0}, 2, v{vSIG}')
    a(f'v_cndmask_b32 v{vt0}, v{vSIG}, v{vt0}, vcc')
    a(f'v_mad_u32_u24 v{vt0}, v{vHI}, 28, v{vt0}')
    a(f's_mul_i32 s{sD}, s{sC}, 448')
    a(f's_mul_i32 s{sE}, s{sA}, 56')
    a(f's_add_u32 s{sD}, s{sD}, s{sE}')
    a(f'v_add_lshl_u32 v{col}, v{vt0}, s{sD}, 1')
    a(f'v_and_b32 v{vt1}, 0x16, v{vSIG}')
    a(f'v_cmp_eq_u32 vcc, 0x16, v{vt1}')
    a(f'v_mov_b32 v{vt1}, {OOB:#x}')
    a(f'v_cndmask_b32 v{col}, v{col}, v{vt1}, vcc')
    a(f's_add_u32 s{sC}, s{sC}, 2')
    a(f's_cmp_ge_u32 s{sC}, 3')
    a(f's_cselect_b32 s{sD}, 3, 0')
    a(f's_sub_u32 s{sC}, s{sC}, s{sD}')
    a(f's_mul_i32 s{sA}, s{sA}, {2*W1S}')
    a(f's_lshl_b32 s{sC}, s{sC}, 10')
    a(f's_add_u32 s{sA}, s{sA}, s{sC}')
    a(f's_add_u32 s{sA}, s{sA}, {W1R}')
    a(f's_mov_b32 s{sC}, {W1S}')
    a(f'v_mul_lo_u32 v{vt0}, v{vHI}, s{sC}')
    a(f'v_add_u32 v{vt0}, s{sA}, v{vt0}')
    a(f's_lshl_b32 s{sD}, s{sB}, 2')
    a(f's_add_u32 s{sD}, s{sD}, s{sW}')
    a(f's_mul_i32 s{sE}, s{sD}, 3072')
    a(f'v_lshl_add_u32 v{dst}, v{vRHO}, 4, v{vt0}')
    a(f'v_add_u32 v{dst}, s{sE}, v{dst}')
    a(f's_lshl_b32 s{sE}, s{sB}, 7')
    a(f's_add_u32 s{sE}, s{sE}, {84*1024}')
    a(f'v_lshl_add_u32 v{aug}, v{vRHO}, 2, v{vt0}')
    a(f'v_add_u32 v{aug}, s{sE}, v{aug}')
    a(f's_mul_i32 s{sA}, s{sD}, {16*2688}')
    a(f's_add_u32 s{sB}, s{sA}, {8*2688}')
    unit_loads(r, S_WQKV, 2688, sA, sB)


def setup_w3(r, su, tsrd):
    col, dst, aug = UC + 3 * r, UC + 3 * r + 1, UC + 3 * r + 2
    a(f's_mul_i32 s{sA}, s{su}, 9363')
    a(f's_lshr_b32 s{sA}, s{sA}, 16')
    a(f's_mul_i32 s{sB}, s{sA}, 7')
    a(f's_sub_u32 s{sB}, s{su}, s{sB}')
    a(f's_cmp_ge_u32 s{sA}, 28')
    a(f's_cselect_b32 s{tsrd}, s{S_WU}, s{S_WG}')
    a(f's_cselect_b32 s{tsrd+1}, s{S_WU+1}, s{S_WG+1}')
    a(f's_cselect_b32 s{sC}, 28, 0')
    a(f's_cselect_b32 s{sD}, 16, 0')
    a(f's_mov_b32 s{tsrd+2}, {448*1792*2}')
    a(f's_mov_b32 s{tsrd+3}, 0x00020000')
    a(f's_sub_u32 s{sA}, s{sA}, s{sC}')
    a(f'v_and_b32 v{vt0}, 48, v{vLANE}')
    a(f'v_and_or_b32 v{vt0}, v{vSIG}, 15, v{vt0}')
    a(f's_lshl_b32 s{sE}, s{sA}, 6')
    a(f'v_add_lshl_u32 v{col}, v{vt0}, s{sE}, 1')
    a(f'v_lshrrev_b32 v{vt0}, 4, v{vLANE}')
    a(f's_lshl_b32 s{sE}, s{sA}, 2')
    a(f'v_add_u32 v{vt0}, s{sE}, v{vt0}')
    a(f'v_mul_u32_u24 v{vt1}, 9363, v{vt0}')
    a(f'v_lshrrev_b32 v{vt1}, 16, v{vt1}')
    a(f'v_mul_u32_u24 v{vt2}, 7, v{vt1}')
    a(f'v_sub_u32 v{vt0}, v{vt0}, v{vt2}')
    a(f's_lshl_b32 s{sE}, s{sB}, 2')
    a(f's_add_u32 s{sE}, s{sE}, s{sW}')
    a(f's_mul_i32 s{sF}, s{sE}, 3')
    a(f'v_mul_u32_u24 v{vt2}, 29, v{vt0}')
    a(f'v_add_u32 v{aug}, 28, v{vt2}')
    a(f'v_add_u32 v{vt3}, 112, v{vt0}')
    a(f'v_cmp_gt_u32 vcc, 4, v{vt0}')
    a(f'v_cndmask_b32 v{aug}, v{aug}, v{vt3}, vcc')
    a(f'v_mov_b32 v{vt3}, 84')
    a(f'v_cndmask_b32 v{vt2}, v{vt2}, v{vt3}, vcc')
    a(f'v_add_u32 v{vt2}, s{sE}, v{vt2}')
    a(f'v_add_u32 v{vt3}, s{sF}, v{vt0}')
    a(f'v_cmp_gt_u32 vcc, 3, v{vt0}')
    a(f'v_cndmask_b32 v{vt2}, v{vt2}, v{vt3}, vcc')
    a(f'v_mul_u32_u24 v{vt1}, 203, v{vt1}')
    a(f'v_add_lshl_u32 v{vt2}, v{vt2}, v{vt1}, 10')
    a(f'v_add_lshl_u32 v{aug}, v{aug}, v{vt1}, 10')
    a(f'v_and_b32 v{vt0}, 15, v{vLANE}')
    a(f'v_add_u32 v{vt0}, s{sD}, v{vt0}')
    a(f'v_lshl_add_u32 v{dst}, v{vt0}, 4, v{vt2}')
    a(f'v_add_u32 v{dst}, {W3R:#x}, v{dst}')
    a(f'v_lshl_add_u32 v{aug}, v{vt0}, 2, v{aug}')
    a(f's_lshl_b32 s{sB}, s{sB}, 7')
    a(f's_add_u32 s{sB}, s{sB}, {W3R}')
    a(f'v_add_u32 v{aug}, s{sB}, v{aug}')
    a(f's_mul_i32 s{sA}, s{sE}, {16*3584}')
    a(f's_add_u32 s{sB}, s{sA}, {8*3584}')
    unit_loads(r, tsrd, 3584, sA, sB)


def setup_colsT(r, sfb):
    col, dst, aug = UC + 3 * r, UC + 3 * r + 1, UC + 3 * r + 2
    a(f'v_lshl_add_u32 v{vt0}, v{vHI}, 5, v{vSIG}')
    a(f's_lshl_b32 s{sF}, s{sfb}, 6')
    a(f'v_add_lshl_u32 v{col}, v{vt0}, s{sF}, 1')
    a(f'v_lshlrev_b32 v{dst}, 10, v{vHI}')
    a(f'v_lshl_add_u32 v{dst}, v{vRHO}, 4, v{dst}')
    a(f'v_mov_b32 v{aug}, {OOB:#x}')


def setup_wd(r, su):
    dst = UC + 3 * r + 1
    a(f's_mul_i32 s{sA}, s{su}, 9363')
    a(f's_lshr_b32 s{sA}, s{sA}, 16')
    a(f's_mul_i32 s{sB}, s{sA}, 7')
    a(f's_sub_u32 s{sB}, s{su}, s{sB}')
    setup_colsT(r, sB)
    a(f's_lshl_b32 s{sA}, s{sA}, 2')
    a(f's_add_u32 s{sA}, s{sA}, s{sW}')
    a(f's_mul_i32 s{sC}, s{sA}, 9363')
    a(f's_lshr_b32 s{sC}, s{sC}, 16')
    a(f's_mul_i32 s{sD}, s{sC}, 7')
    a(f's_sub_u32 s{sD}, s{sA}, s{sD}')
    a(f's_mul_i32 s{sB}, s{sB}, {WDS}')
    a(f's_lshr_b32 s{sE}, s{sC}, 2')
    a(f's_mul_i32 s{sE}, s{sE}, 57344')
    a(f's_add_u32 s{sB}, s{sB}, s{sE}')
    a(f's_lshl_b32 s{sD}, s{sD}, 2')
    a(f's_and_b32 s{sC}, s{sC}, 3')
    a(f's_add_u32 s{sD}, s{sD}, s{sC}')
    a(f's_lshl_b32 s{sD}, s{sD}, 11')
    a(f's_add_u32 s{sB}, s{sB}, s{sD}')
    a(f's_add_u32 s{sB}, s{sB}, {WDR}')
    a(f'v_add_u32 v{dst}, s{sB}, v{dst}')
    a(f's_mul_i32 s{sA}, s{sA}, {16*896}')
    a(f's_add_u32 s{sB}, s{sA}, {8*896}')
    unit_loads(r, S_WD, 896, sA, sB)


def setup_wo(r, su):
    dst = UC + 3 * r + 1
    a(f's_mul_i32 s{sA}, s{su}, 9363')
    a(f's_lshr_b32 s{sA}, s{sA}, 16')
    a(f's_mul_i32 s{sB}, s{sA}, 7')
    a(f's_sub_u32 s{sB}, s{su}, s{sB}')
    setup_colsT(r, sB)
    a(f's_lshl_b32 s{sA}, s{sA}, 2')
    a(f's_add_u32 s{sA}, s{sA}, s{sW}')
    a(f's_lshl_b32 s{sB}, s{sB}, 16')
    a(f's_lshl_b32 s{sC}, s{sA}, 11')
    a(f's_add_u32 s{sB}, s{sB}, s{sC}')
    a(f's_add_u32 s{sB}, s{sB}, {WOR}')
    a(f'v_add_u32 v{dst}, s{sB}, v{dst}')
    a(f's_lshr_b32 s{sC}, s{sA}, 1')
    a(f's_mul_i32 s{sC}, s{sC}, {28*896}')
    a(f's_and_b32 s{sA}, s{sA}, 1')
    a(f's_cselect_b32 s{sA}, {16*896}, 0')
    a(f's_cselect_b32 s{sB}, {14*896}, 0')
    a(f's_add_u32 s{sA}, s{sA}, s{sC}')
    a(f's_add_u32 s{sB}, s{sB}, s{sC}')
    a(f's_add_u32 s{sB}, s{sB}, {8*896}')
    unit_loads(r, S_WO, 896, sA, sB)


def setup_none(r):
    col, dst, aug = UC + 3 * r, UC + 3 * r + 1, UC + 3 * r + 2
    a(f'v_mov_b32 v{dst}, {OOB:#x}')
    a(f'v_mov_b32 v{aug}, {OOB:#x}')


def init_phase():
    sU = 94
    a(f'v_and_b32 v{vRHO}, 31, v{vLANE}')
    a(f'v_lshrrev_b32 v{vHI}, 5, v{vLANE}')
    a(f'v_and_b32 v{vSIG}, 0x13, v{vRHO}')
    a(f'v_and_b32 v{vt0}, 4, v{vRHO}')
    a(f'v_lshl_or_b32 v{vSIG}, v{vt0}, 1, v{vSIG}')
    a(f'v_lshrrev_b32 v{vt0}, 1, v{vRHO}')
    a(f'v_and_or_b32 v{vSIG}, v{vt0}, 4, v{vSIG}')
    a('s_cmp_ge_u32 s2, 168')
    a('s_cbranch_scc1 L_r0b')
    with cond():
        setup_w1(0, 2)
    a('s_branch L_r0e')
    a.label('L_r0b')
    a('s_cmp_ge_u32 s2, 224')
    a('s_cbranch_scc1 L_r0c')
    with cond():
        a(f's_sub_u32 s{sU}, s2, 168')
        setup_wo(0, sU)
    a('s_branch L_r0e')
    a.label('L_r0c')
    with cond():
        a(f's_sub_u32 s{sU}, s2, 224')
        setup_wd(0, sU)
    a.label('L_r0e')
    a(f's_mul_i32 s{sA}, s{sTILE1}, 28672')
    for ks in range(28):
        a(f'buffer_load_dwordx4 {vr(16+4*ks,4)}, v{vROW}, {sr(S_X,4)}, s{sA} offen offset:{ks*32}')
    a(f's_mul_i32 s{sA}, s{sOWN}, 28672')
    a(f's_lshl_b32 s{sB}, s{sOFT}, 6')
    a(f's_add_u32 s{sA}, s{sA}, s{sB}')
    a(f'buffer_load_dwordx4 {vr(vXRES,4)}, v{vROW}, {sr(S_X,4)}, s{sA} offen')
    a(f'buffer_load_dwordx4 {vr(vXRES+4,4)}, v{vROW}, {sr(S_X,4)}, s{sA} offen offset:32')
    setup_w3(1, 2, S_T0)
    a('s_cmp_ge_u32 s2, 136')
    a('s_cbranch_scc1 L_r2b')
    with cond():
        a(f's_add_u32 s{sU}, s2, 256')
        setup_w3(2, sU, S_T1)
    a('s_branch L_r2e')
    a.label('L_r2b')
    with cond():
        a(f's_sub_u32 s{sU}, s2, 104')
        setup_wd(2, sU)
    a.label('L_r2e')
    a('s_cmp_ge_u32 s2, 212')
    a('s_cbranch_scc1 L_r3b')
    setup_none(3)
    a('s_branch L_r3e')
    a.label('L_r3b')
    with cond():
        a(f's_sub_u32 s{sU}, s2, 60')
        setup_wd(3, sU)
    a.label('L_r3e')
    for i in range(4):
        a(f'v_mov_b32 v{212+i}, 0')
    a(f's_cmp_lg_u32 s{sW}, 0')
    a('s_cbranch_scc1 L_z0')
    with cond():
        a(f's_lshl_b32 s{sA}, s2, 10')
        a(f'buffer_store_dwordx4 {vr(212,4)}, v{vL16}, {sr(S_WS,4)}, s{sA} offen sc1')
    a.label('L_z0')
    a.wait_vm0()
    stamp()
    a(f's_lshl_b32 s{sA}, s{sW}, 8')
    a(f'v_add_u32 v{vt1}, s{sA}, v{vL4}')
    for r in range(4):
        R = UD + 16 * r
        for m in range(8):
            a(f'v_lshl_or_b32 v{R+m}, v{R+2*m+1}, 16, v{R+2*m}')
        dst = UC + 3 * r + 1
        a(f'buffer_store_dwordx4 {vr(R,4)}, v{dst}, {sr(S_WS,4)}, 0 offen sc1')
        a(f'buffer_store_dwordx4 {vr(R+4,4)}, v{dst}, {sr(S_WS,4)}, 0 offen offset:512 sc1')
        if r < 3:
            a(f'v_mov_b32 v{R+8}, 0')
            for m in range(8):
                a(f'v_dot2c_f32_bf16 v{R+8}, s{sONES}, v{R+m}')
            a(f'ds_write_b32 v{vt1}, v{R+8} offset:{r*1024}')
    a.wait_lg0()
    a.barrier()
    a(f's_cmp_lg_u32 s{sW}, 0')
    a('s_cbranch_scc1 L_aug_e')
    with cond():
        toks = []
        for r in range(3):
            R = UD + 16 * r + 8
            a(f'ds_read2st64_b32 {vr(R,2)}, v{vL4} offset0:{4*r} offset1:{4*r+1}')
            toks.append(a(f'ds_read2st64_b32 {vr(R+2,2)}, v{vL4} offset0:{4*r+2} offset1:{4*r+3}'))
        for r in range(3):
            R = UD + 16 * r + 8
            aug = UC + 3 * r + 2
            a.wait(toks[r])
            a(f'v_add_f32 v{R}, v{R}, v{R+1}')
            a(f'v_add_f32 v{R+2}, v{R+2}, v{R+3}')
            a(f'v_add_f32 v{R}, v{R}, v{R+2}')
            a(f'v_cvt_pk_bf16_f32 v{R+1}, v{R}, v{R}')
            a(f'v_and_b32 v{R+1}, 0xffff0000, v{R+1}')
            a(f'v_sub_f32 v{R+1}, v{R}, v{R+1}')
            a(f'v_cvt_pk_bf16_f32 v{R+1}, v{R}, v{R+1}')
            a(f'buffer_store_dword v{R+1}, v{aug}, {sr(S_WS,4)}, 0 offen sc1')
            a(f'v_bfe_u32 v{R+2}, v{aug}, 7, 3')
            a(f'v_cmp_eq_u32 vcc, 6, v{R+2}')
            a(f'v_mov_b32 v{R+3}, {OOB:#x}')
            a(f'v_cndmask_b32 v{R+2}, v{R+3}, v{aug}, vcc')
            a(f'buffer_store_dword v212, v{R+2}, {sr(S_WS,4)}, 0 offen offset:128 sc1')
    a.label('L_aug_e')
    a.wait_vm0()
    a.barrier()
    a(f's_cmp_lg_u32 s{sW}, 0')
    a('s_cbranch_scc1 L_ib')
    with cond():
        a('v_mov_b32 v212, 1')
        a('s_mov_b64 exec, 1')
        a(f'buffer_store_byte v212, off, {sr(S_DBG,4)}, s2 sc1')
        a('s_mov_b64 exec, -1')
    a.label('L_ib')
    stamp()
    S0, S1, Q0, Q1 = 216, 217, 218, 219
    for v in (S0, S1, Q0, Q1):
        a(f'v_mov_b32 v{v}, 0')
    for i in range(0, 112, 2):
        a(f'v_dot2c_f32_bf16 v{S0}, s{sONES}, v{16+i}')
        a(f'v_dot2c_f32_bf16 v{Q0}, v{16+i}, v{16+i}')
        a(f'v_dot2c_f32_bf16 v{S1}, s{sONES}, v{17+i}')
        a(f'v_dot2c_f32_bf16 v{Q1}, v{17+i}, v{17+i}')
    a(f'v_add_f32 v{S0}, v{S0}, v{S1}')
    a(f'v_add_f32 v{S1}, v{Q0}, v{Q1}')
    stamp()
    poll(S_DBG, vL4, 0, 1, expect=0x01010101)
    stamp()


vRSTD, vC2, vISTD = 248, 249, 250


def stats_finish(xaug):
    S, Q = 216, 217
    t0, t1 = 218, 219
    a(f'v_mov_b32 v{t0}, v{S}')
    a(f'v_mov_b32 v{t1}, v{Q}')
    a(f'v_permlane32_swap_b32 v{S}, v{t0}')
    a(f'v_permlane32_swap_b32 v{Q}, v{t1}')
    a(f'v_add_f32 v{S}, v{S}, v{t0}')
    a(f'v_add_f32 v{Q}, v{Q}, v{t1}')
    a(f'v_mul_f32 v{S}, {INV448:#x}, v{S}')
    a(f'v_mul_f32 v{Q}, {INV448:#x}, v{Q}')
    a(f'v_fma_f32 v{Q}, -v{S}, v{S}, v{Q}')
    a(f'v_max_f32 v{Q}, 0, v{Q}')
    a(f'v_add_f32 v{Q}, {EPS5:#x}, v{Q}')
    a(f'v_rsq_f32 v{vRSTD}, v{Q}')
    a(f'v_cvt_pk_bf16_f32 v{xaug}, -v{S}, -v{S}')
    a(f'v_mul_f32 v{vISTD}, v{Q}, v{vRSTD}')
    a(f'v_mul_f32 v{vC2}, {LOG2E:#x}, v{vRSTD}')
    for i in range(1, 4):
        a(f'v_mov_b32 v{xaug+i}, v{xaug}')


def load_x_frags(fl_base, x_base, st_base, lsh_f, lsh_x, lsh_s):
    a(f'v_and_b32 v240, 15, v{vLANE}')
    a(f'v_min_u32 v240, 13, v240')
    a(f'v_lshlrev_b32 v240, 2, v240')
    a(f's_lshl_b32 s{sC}, s{sTILE1}, 6')
    a(f's_add_u32 s{sC}, s{sC}, {fl_base}')
    a(f's_mul_i32 s{sD}, s{sTILE1}, {14*256}')
    a(f's_add_u32 s{sD}, s{sD}, {st_base}')
    a(f's_mul_i32 s{sE}, s{sTILE1}, {28*1024}')
    a(f's_add_u32 s{sE}, s{sE}, {x_base}')
    if lsh_f is not None:
        a(f's_lshl_b32 s{sA}, s{sL}, {lsh_f}')
        a(f's_add_u32 s{sC}, s{sC}, s{sA}')
        a(f's_lshl_b32 s{sA}, s{sL}, {lsh_s}')
        a(f's_add_u32 s{sD}, s{sD}, s{sA}')
        a(f's_lshl_b32 s{sA}, s{sL}, {lsh_x}')
        a(f's_add_u32 s{sE}, s{sE}, s{sA}')
    a(f'v_and_b32 v241, 31, v{vLANE}')
    a(f'v_lshlrev_b32 v241, 3, v241')
    a(f'v_lshrrev_b32 v242, 5, v{vLANE}')
    a(f'v_mul_u32_u24 v242, {7*256}, v242')
    a(f'v_add_u32 v241, v241, v242')
    poll(S_WS, 240, f's{sC}', 1)
    stamp()
    st = []
    for i in range(7):
        st.append(a(f'buffer_load_dwordx2 {vr(216+2*i,2)}, v241, {sr(S_WS,4)}, s{sD} offen offset:{i*256} sc1'))
    xt = frag_loads(lambda i: vr(16 + 4 * i, 4), 28, sE, sF)
    return st, xt


def stats_sum(st):
    a.wait(st[-1])
    for i in range(1, 7):
        a(f'v_add_f32 v216, v216, v{216+2*i}')
        a(f'v_add_f32 v217, v217, v{217+2*i}')


def read_aug(dst, addr, tmp):
    a(f'v_add_u32 v{tmp}, {addr:#x}, v{vAUG}')
    a(f'ds_read2_b32 {vr(dst,2)}, v{tmp} offset0:0 offset1:32')
    return a(f'ds_read2_b32 {vr(dst+2,2)}, v{tmp} offset0:64 offset1:96')


def read_frag(dst, addr):
    v, off = lds_addr(addr)
    return a(f'ds_read_b128 {vr(dst,4)}, v{v} offset:{off}')


def phase1(first):
    ACK, ACV, ACQ = 128, 144, 160
    WR = 176
    XAUG = 212
    RR, RR2 = 80, 96
    LRS = LB + 16384
    if first:
        a(f's_mul_i32 s{sC}, s{sHC}, {W1S}')
        dma(sC, W1R, LA, 87)
        wd_loads(0, 14, False)
        xt = [None] * 28
        stats_finish(XAUG)
    else:
        st, xt = load_x_frags(F4, X2, ST + 2 * 0x40000, None, None, None)
        a.barrier()
        stats_sum(st)
        stats_finish(XAUG)
    a(f's_lshl_b32 s{sA}, s{sW}, 8')
    a(f's_add_u32 s{sA}, s{sA}, {LRS}')
    a(f'v_and_b32 v240, 31, v{vLANE}')
    a(f'v_lshl_add_u32 v240, v240, 2, s{sA}')
    a(f'ds_write2_b32 v240, v{vRSTD}, v{vC2} offset0:0 offset1:32')
    a(f'v_lshrrev_b32 v241, 5, v{vLANE}')
    a(f'v_lshl_add_u32 v241, v241, 4, s{sA}')

    def rd(ks):
        t = None
        for tl in range(3):
            d = WR + 12 * (ks % 3) + 4 * tl
            addr = LA + (3 * ks + tl) * 1024
            t = read_frag(d, addr) if ks < 28 else read_aug(d, addr, 252 + tl)
        return t
    stage = {0: 40, 10: 32, 21: 28} if first else {}
    rt = {}

    def issue_rd(ks):
        if ks > 28:
            return
        if ks in stage:
            a.wait_vm_n(stage[ks])
            a.barrier()
        rt[ks] = rd(ks)
    issue_rd(0)
    issue_rd(1)
    for ks in range(29):
        issue_rd(ks + 2)
        a.wait(rt[ks], xt[ks] if ks < 28 else None)
        X = vr(16 + 4 * ks, 4) if ks < 28 else vr(XAUG, 4)
        W = [vr(WR + 12 * (ks % 3) + 4 * tl, 4) for tl in range(3)]
        c = (lambda r: '0' if ks == 0 else vr(r, 16))
        a(f'v_mfma_f32_32x32x16_bf16 {vr(ACK,16)}, {X}, {W[0]}, {c(ACK)}')
        a(f'v_mfma_f32_32x32x16_bf16 {vr(ACV,16)}, {X}, {W[1]}, {c(ACV)}')
        a(f'v_mfma_f32_32x32x16_bf16 {vr(ACQ,16)}, {W[2]}, {X}, {c(ACQ)}')
    stamp()
    for j in range(4):
        a(f'ds_read_b128 {vr(RR+4*j,4)}, v241 offset:{32*j}')
        rrt = a(f'ds_read_b128 {vr(RR2+4*j,4)}, v241 offset:{128+32*j}')
    a.barrier()
    a(f's_lshl_b32 s{sC}, s{sFB}, 16')
    a(f's_lshl_b32 s{sD}, s{sW}, 14')
    a(f's_add_u32 s{sC}, s{sC}, s{sD}')
    a(f's_add_u32 s{sC}, s{sC}, {WOR}')
    a(f's_and_b32 s{sD}, s{sW}, 1')
    a(f's_lshl_b32 s{sD}, s{sD}, 10')
    a(f'v_add_u32 v240, s{sD}, v{vL16}')
    a(f'v_xor_b32 v241, 0x400, v240')
    for i in range(8):
        if i % 2 == 0 and i:
            a(f's_add_u32 s{sC}, s{sC}, 4096')
        for b in range(2):
            a(f'buffer_load_dwordx4 {vr(16+8*i+4*b,4)}, v{240+b}, {sr(S_WS,4)}, s{sC} offen offset:{(i%2)*2048} sc1')
    a(f's_mul_i32 s{sC}, s{sHC}, {W3S}')
    dma(sC, W3R, LA, 112)
    T = 176
    PK, PV = 192, 200
    a(f'v_and_b32 v242, 27, v{vLANE}')
    a(f'v_cmp_eq_u32 vcc, 26, v242')
    a(f'v_mov_b32 v243, 0')
    a(f'v_cndmask_b32 v242, v243, 1.0, vcc')
    a.wait(rrt)
    for r in range(16):
        a(f'v_mul_f32 v{ACK+r}, v{ACK+r}, v{RR2+r}')
    for r in range(16):
        a(f'v_exp_f32_e64 v{T+r}, v{ACK+r} clamp')
        a(f'v_fma_f32 v{ACV+r}, v{ACV+r}, v{RR+r}, v242')
        a(f'v_max_f32 v{ACK+r}, 0, v{ACK+r}')
    for r in range(16):
        a(f'v_fma_f32 v{T+r}, v{ACK+r}, s{sLN2}, v{T+r}')
        a(f'v_add_f32 v{T+r}, s{sEPS6}, v{T+r}')
    for m in range(8):
        a(f'v_cvt_pk_bf16_f32 v{PK+m}, v{T+2*m}, v{T+2*m+1}')
        a(f'v_cvt_pk_bf16_f32 v{PV+m}, v{ACV+2*m}, v{ACV+2*m+1}')
    KVD = 112
    a(f'v_mfma_f32_32x32x16_bf16 {vr(KVD,16)}, {vr(PK,4)}, {vr(PV,4)}, 0')
    a(f'v_mfma_f32_32x32x16_bf16 {vr(KVD,16)}, {vr(PK+4,4)}, {vr(PV+4,4)}, {vr(KVD,16)}')
    for r in range(14):
        a(f'v_mul_f32 v{ACQ+r}, v{ACQ+r}, v{vC2}')
    a(f's_lshl_b32 s{sA}, s{sW}, 12')
    a(f'v_add_u32 v240, s{sA}, v{vL16b}')
    for q in range(4):
        a(f'ds_write_b128 v240, {vr(KVD+4*q,4)} offset:{LB-65536+q*1024}')
    for r in range(14):
        a(f'v_exp_f32_e64 v{T+r}, v{ACQ+r} clamp')
        a(f'v_max_f32 v{ACQ+r}, 0, v{ACQ+r}')
    a(f's_lshl_b32 s{sA}, s{sW}, 10')
    a(f's_add_u32 s{sA}, s{sA}, {LB}')
    a(f'v_add_u32 v240, s{sA}, v{vL4}')
    a.wait_lg0()
    a.barrier()
    RED = 128
    for wp in range(4):
        a(f'ds_read2st64_b32 {vr(RED+4*wp,2)}, v240 offset0:{16*wp} offset1:{16*wp+1}')
        t = a(f'ds_read2st64_b32 {vr(RED+4*wp+2,2)}, v240 offset0:{16*wp+2} offset1:{16*wp+3}')
    for r in range(14):
        a(f'v_fma_f32 v{T+r}, v{ACQ+r}, s{sLN2}, v{T+r}')
        a(f'v_add_f32 v{T+r}, s{sEPS6}, v{T+r}')
    a(f's_lshl_b32 s{sA}, s{sHC}, 12')
    a(f's_lshl_b32 s{sB}, s{sW}, 10')
    a(f's_add_u32 s{sA}, s{sA}, s{sB}')
    a(f's_add_u32 s{sA}, s{sA}, {KV + (0 if first else 0x10000)}')
    a.wait(t)
    for i in range(4):
        a(f'v_add_f32 v{RED+i}, v{RED+i}, v{RED+4+i}')
        a(f'v_add_f32 v{RED+8+i}, v{RED+8+i}, v{RED+12+i}')
    for i in range(4):
        a(f'v_add_f32 v{RED+i}, v{RED+i}, v{RED+8+i}')
        a(f'buffer_atomic_add_f32 v{RED+i}, v{vL4}, {sr(S_WS,4)}, s{sA} offen offset:{i*256}')
    for m in range(7):
        a(f'v_cvt_pk_bf16_f32 v{PK+m}, v{T+2*m}, v{T+2*m+1}')
    a(f'v_mov_b32 v{PK+7}, 0')
    a(f's_lshl_b32 s{sA}, s{sTILE1}, 15')
    a(f's_lshl_b32 s{sB}, s{sHC}, 11')
    a(f's_add_u32 s{sA}, s{sA}, s{sB}')
    a(f's_add_u32 s{sA}, s{sA}, {PQ + (0 if first else 0x200000)}')
    a(f'buffer_store_dwordx4 {vr(PK,4)}, v{vL16}, {sr(S_WS,4)}, s{sA} offen sc1')
    a(f'buffer_store_dwordx4 {vr(PK+4,4)}, v{vL16}, {sr(S_WS,4)}, s{sA} offen offset:1024 sc1')
    a(f's_lshl_b32 s{sA}, s{sHC}, 8')
    a(f's_lshl_b32 s{sB}, s{sTILE1}, 2')
    a(f's_add_u32 s{sA}, s{sA}, s{sB}')
    a(f's_add_u32 s{sA}, s{sA}, {F1 + (0 if first else 0x1000)}')
    stamp()
    publish(f's{sA}')
    stamp()


ACC0, ACC1 = 208, 224
AAC2, AAC3 = 224, 240


def accs(s):
    return [vr(ACC0, 16), vr(ACC1, 16), ar(AAC2, 16), ar(AAC3, 16)][s]


def red_write(s):
    a(f's_xor_b32 s{sA}, s{sW}, {s}')
    a(f's_mul_i32 s{sA}, s{sA}, 12288')
    a(f's_add_u32 s{sA}, s{sA}, {LB + (s-1)*4096}')
    a(f'v_add_u32 v{240+s}, s{sA}, v{vL16}')
    for q in range(4):
        d = [None, vr(ACC1 + 4 * q, 4), ar(AAC2 + 4 * q, 4), ar(AAC3 + 4 * q, 4)][s]
        a(f'ds_write_b128 v{240+s}, {d} offset:{q*1024}')


def red_finish(final_branch, xbase, stbase, flbase, lsh):
    RB = 80
    a(f's_mul_i32 s{sA}, s{sW}, 12288')
    a(f's_add_u32 s{sA}, s{sA}, {LB}')
    a(f'v_add_u32 v240, s{sA}, v{vL16}')
    a.wait_lg0()
    a.barrier()
    toks = []
    for i in range(12):
        toks.append(a(f'ds_read_b128 {vr(RB+4*i,4)}, v240 offset:{i*1024}'))
    for m in range(8):
        a(f'v_lshlrev_b32 v241, 16, v{vXRES+m}')
        a(f'v_and_b32 v242, 0xffff0000, v{vXRES+m}')
        a(f'v_add_f32 v{ACC0+2*m}, v{ACC0+2*m}, v241')
        a(f'v_add_f32 v{ACC0+2*m+1}, v{ACC0+2*m+1}, v242')
    for s in range(3):
        a.wait(toks[4 * s + 3])
        for r in range(16):
            a(f'v_add_f32 v{ACC0+r}, v{ACC0+r}, v{RB+16*s+r}')
    for m in range(8):
        a(f'v_cvt_pk_bf16_f32 v{vXRES+m}, v{ACC0+2*m}, v{ACC0+2*m+1}')
    if final_branch:
        a(f's_cmp_lg_u32 s{sL}, 0')
        a('s_cbranch_scc1 L_final')
    a(f's_mul_i32 s{sA}, s{sOWN}, {28*1024}')
    a(f's_lshl_b32 s{sB}, s{sOFT}, 11')
    a(f's_add_u32 s{sA}, s{sA}, s{sB}')
    a(f's_add_u32 s{sA}, s{sA}, {xbase}')
    a(f's_mul_i32 s{sC}, s{sOWN}, {14*256}')
    a(f's_lshl_b32 s{sB}, s{sOFT}, 8')
    a(f's_add_u32 s{sC}, s{sC}, s{sB}')
    a(f's_add_u32 s{sC}, s{sC}, {stbase}')
    a(f's_lshl_b32 s{sD}, s{sOWN}, 6')
    a(f's_lshl_b32 s{sB}, s{sOFT}, 2')
    a(f's_add_u32 s{sD}, s{sD}, s{sB}')
    a(f's_add_u32 s{sD}, s{sD}, {flbase}')
    if lsh:
        a(f's_lshl_b32 s{sB}, s{sL}, 21')
        a(f's_add_u32 s{sA}, s{sA}, s{sB}')
        a(f's_lshl_b32 s{sB}, s{sL}, 18')
        a(f's_add_u32 s{sC}, s{sC}, s{sB}')
        a(f's_lshl_b32 s{sB}, s{sL}, 12')
        a(f's_add_u32 s{sD}, s{sD}, s{sB}')
    a(f'buffer_store_dwordx4 {vr(vXRES,4)}, v{vL16}, {sr(S_WS,4)}, s{sA} offen sc1')
    a(f'buffer_store_dwordx4 {vr(vXRES+4,4)}, v{vL16}, {sr(S_WS,4)}, s{sA} offen offset:1024 sc1')
    S, Q, t0, t1 = 240, 241, 242, 243
    a(f'v_mov_b32 v{S}, 0')
    a(f'v_mov_b32 v{Q}, 0')
    for m in range(8):
        a(f'v_dot2c_f32_bf16 v{S}, s{sONES}, v{vXRES+m}')
        a(f'v_dot2c_f32_bf16 v{Q}, v{vXRES+m}, v{vXRES+m}')
    a(f'v_mov_b32 v{t0}, v{S}')
    a(f'v_mov_b32 v{t1}, v{Q}')
    a(f'v_permlane32_swap_b32 v{S}, v{t0}')
    a(f'v_permlane32_swap_b32 v{Q}, v{t1}')
    a(f'v_add_f32 v{S}, v{S}, v{t0}')
    a(f'v_add_f32 v{Q}, v{Q}, v{t1}')
    a(f'v_lshlrev_b32 v{t0}, 3, v{vLANE}')
    a('s_mov_b32 exec_hi, 0')
    a(f'buffer_store_dwordx2 {vr(S,2)}, v{t0}, {sr(S_WS,4)}, s{sC} offen sc1')
    a('s_mov_b64 exec, -1')
    stamp()
    publish(f's{sD}')


def wd_loads(lo, hi, conditional=True):
    S = a.uid('Lwd')
    if conditional:
        a(f's_cmp_lg_u32 s{sL}, 0')
        a(f's_cbranch_scc1 {S}')
    with (cond() if conditional else contextlib.nullcontext()):
        a(f's_mul_i32 s{sC}, s{sFB}, {WDS}')
        a(f's_mul_i32 s{sD}, s{sW}, 57344')
        a(f's_add_u32 s{sC}, s{sC}, s{sD}')
        a(f's_add_u32 s{sC}, s{sC}, {WDR + lo*2048}')
        a(f's_and_b32 s{sD}, s{sW}, 1')
        a(f's_lshl_b32 s{sD}, s{sD}, 10')
        a(f'v_add_u32 v252, s{sD}, v{vL16}')
        a(f'v_xor_b32 v253, 0x400, v252')
        for i, n in enumerate(range(lo, hi)):
            if i % 2 == 0 and i:
                a(f's_add_u32 s{sC}, s{sC}, 4096')
            for b in range(2):
                a(f'buffer_load_dwordx4 {ar(8*n+4*b,4)}, v{252+b}, {sr(S_WS,4)}, s{sC} offen offset:{(i%2)*2048} sc1')
    a.label(S)


def phase2():
    WO, PQR, KVR = 16, 80, 144
    OD = 176
    a(f's_cmp_ge_u32 s{sJ}, 28')
    a('s_cbranch_scc1 L_p2skip')
    with cond():
        a(f's_lshl_b32 s{sC}, s{sW}, 10')
        a(f's_lshl_b32 s{sA}, s{sL}, 12')
        a(f's_add_u32 s{sC}, s{sC}, s{sA}')
        a(f's_add_u32 s{sC}, s{sC}, {F1}')
        a(f's_lshl_b32 s{sD}, s{sW}, 14')
        a(f's_lshl_b32 s{sA}, s{sL}, 16')
        a(f's_add_u32 s{sD}, s{sD}, s{sA}')
        a(f's_add_u32 s{sD}, s{sD}, {KV}')
        a(f's_lshl_b32 s{sE}, s{sOWN}, 15')
        a(f's_lshl_b32 s{sA}, s{sW}, 13')
        a(f's_add_u32 s{sE}, s{sE}, s{sA}')
        a(f's_lshl_b32 s{sA}, s{sL}, 21')
        a(f's_add_u32 s{sE}, s{sE}, s{sA}')
        a(f's_add_u32 s{sE}, s{sE}, {PQ}')
        poll(S_WS, vL16, f's{sC}', 4)
        stamp()
        kt, pt = {}, {}
        a(f's_xor_b32 s{sF}, s{sE}, 0x8000')
        for hl in range(4):
            for q in range(4):
                kt[hl] = a(f'buffer_load_dwordx4 {vr(KVR+16*hl+4*q,4)}, v{vL16}, {sr(S_WS,4)}, s{sD} offen offset:{q*1024} sc1')
            for aa, s in ((0, sE), (1, sF)):
                for ks in range(2):
                    pt[hl, aa] = a(f'buffer_load_dwordx4 {vr(PQR+16*hl+8*aa+4*ks,4)}, v{vL16}, {sr(S_WS,4)}, s{s} offen offset:{(hl%2)*2048+ks*1024} sc1')
            if hl < 3:
                a(f's_add_u32 s{sD}, s{sD}, 4096')
            if hl == 1:
                a(f's_add_u32 s{sE}, s{sE}, 4096')
                a(f's_add_u32 s{sF}, s{sF}, 4096')
        for hl in range(4):
            a.wait(kt[hl])
            for m in range(8):
                a(f'v_cvt_pk_bf16_f32 v{KVR+8*hl+m}, v{KVR+16*hl+2*m}, v{KVR+16*hl+2*m+1}')
        units = [(hl, aa) for hl in range(4) for aa in range(2)]

        def oM(u):
            hl, aa = units[u]
            a.wait(pt[hl, aa])
            D = vr(OD + 16 * (u % 2), 16)
            P = PQR + 16 * hl + 8 * aa
            return [f'v_mfma_f32_32x32x16_bf16 {D}, {vr(KVR+8*hl,4)}, {vr(P,4)}, 0',
                    f'v_mfma_f32_32x32x16_bf16 {D}, {vr(KVR+8*hl+4,4)}, {vr(P+4,4)}, {D}']

        def scale(u):
            hl, aa = units[u]
            D = OD + 16 * (u % 2)
            P = PQR + 16 * hl + 8 * aa
            o = [f'v_add_f32 v{D+14}, s{sEPS6}, v{D+14}',
                 f'v_rcp_f32 v{D+14}, v{D+14}',
                 f'v_mov_b32 v{P+7}, 0']
            for m in range(7):
                o.append(f'v_mul_f32 v{D+2*m}, v{D+2*m}, v{D+14}')
                o.append(f'v_mul_f32 v{D+2*m+1}, v{D+2*m+1}, v{D+14}')
                o.append(f'v_cvt_pk_bf16_f32 v{P+m}, v{D+2*m}, v{D+2*m+1}')
            return o

        def woM(u):
            hl, aa = units[u]
            P = PQR + 16 * hl + 8 * aa
            o = []
            for ks in range(2):
                for b in range(2):
                    D = accs(2 * aa + b)
                    c = '0' if (hl == 0 and ks == 0) else D
                    o.append(f'v_mfma_f32_32x32x16_bf16 {D}, {vr(WO+16*hl+8*ks+4*b,4)}, {vr(P+4*ks,4)}, {c}')
            return o
        for m in oM(0) + oM(1):
            a(m)
        for v in scale(0):
            a(v)
        for u in range(8):
            ms = (oM(u + 2) if u + 2 < 8 else []) + woM(u)
            vs = scale(u + 1) if u + 1 < 8 else []
            per = (len(vs) + len(ms) - 1) // len(ms)
            for m in ms:
                a(m)
                for v in vs[:per]:
                    a(v)
                vs = vs[per:]
        stamp()
        for s in (1, 2, 3):
            red_write(s)
        red_finish(False, X1, ST, F2, True)
    a.label('L_p2skip')
    stamp()


def phase3():
    ACC = 128
    WR, NW = 192, 6
    XAUG = 232
    T = 236
    HP = 244
    a.wait_lg0()
    a.barrier()
    a(f's_mul_i32 s{sC}, s{sHC}, {W3S}')
    dma(sC, W3R + 112 * 1024, LB, 33)
    st, xt = load_x_frags(F2, X1, ST, 12, 21, 18)
    a.barrier()
    a(f's_mul_i32 s{sE}, s{sTILE1}, {112*1024}')
    a(f's_mul_i32 s{sA}, s{sHC}, {7*1024}')
    a(f's_add_u32 s{sE}, s{sE}, s{sA}')
    a(f's_lshl_b32 s{sA}, s{sL}, 23')
    a(f's_add_u32 s{sE}, s{sE}, s{sA}')
    a(f's_add_u32 s{sE}, s{sE}, {HB}')
    a(f's_add_u32 s{sF}, s{sE}, 4096')

    steps = []
    for ks in range(28):
        for t in range(3):
            steps.append((t, ks, LA + (3 * ks + t) * 1024))
    for t in range(3):
        steps.append((t, 28, LB + t * 1024))
    for ks in range(28):
        steps.append((3, ks, LA + (84 + ks) * 1024))
    steps.append((3, 28, LB + 3 * 1024))
    for ks in range(29):
        steps.append((4, ks, LB + (4 + ks) * 1024))
    for t in (5, 6):
        for ks in range(29):
            steps.append((t, ks, LA + ((t - 5) * 29 + ks) * 1024))
    n = len(steps)
    accof = {0: 0, 1: 1, 2: 2, 3: 3, 4: 0, 5: 1, 6: 2}

    def epi(t):
        D = ACC + 16 * accof[t]
        o = []
        for r in range(8):
            o.append((f'v_mul_f32 v{D+r}, v{D+r}, v{vC2}', 1))
        for r in range(8):
            o.append((f'v_exp_f32_e64 v{D+r}, -v{D+r}', 2))
        for r in range(8):
            o.append((f'v_fma_f32 v{D+r}, v{D+r}, v{vISTD}, v{vISTD}', 1))
        for r in range(8):
            o.append((f'v_rcp_f32 v{D+r}, v{D+r}', 2))
        for r in range(8):
            o.append((f'v_mul_f32 v{D+r}, v{D+r}, v{D+8+r}', 1))
        for m in range(4):
            o.append((f'v_cvt_pk_bf16_f32 v{D+8+m}, v{D+2*m}, v{D+2*m+1}', 1))
        s = sE if t < 4 else sF
        o.append((f'buffer_store_dwordx4 {vr(D+8,4)}, v{vL16}, {sr(S_WS,4)}, s{s} offen offset:{(t%4)*1024} sc1', 1))
        return o

    rt = {}

    def issue_rd(i):
        if i >= n:
            return
        t, ks, addr = steps[i]
        if t == 5 and ks == 0:
            a.barrier()
        d = WR + 4 * (i % NW)
        rt[i] = read_frag(d, addr) if ks < 28 else read_aug(d, addr, 252 + (i % 3))
    LOOK = 4
    for i in range(LOOK):
        issue_rd(i)
    fill = []
    done_at = {}
    for i, (t, ks, addr) in enumerate(steps):
        issue_rd(i + LOOK)
        if i == 6:
            stats_sum(st)
            stats_finish(XAUG)
        if i == 63:
            a.barrier()
            a(f's_mul_i32 s{sC}, s{sHC}, {W3S}')
            dma(sC, W3R + 145 * 1024, LA, 58)
            r3mark = ('vm', a.vm_issued - 1)
        if i == 110:
            a.wait(r3mark, force=True)
            wd_loads(14, 28)
        a.wait(rt[i], xt[ks] if ks < 28 else None)
        D = vr(ACC + 16 * accof[t], 16)
        if ks == 0 and t >= 4:
            prev = t - 4
            while any(f[2] == prev for f in fill):
                a(fill.pop(0)[0])
        X = vr(16 + 4 * ks, 4) if ks < 28 else vr(XAUG, 4)
        a(f'v_mfma_f32_32x32x16_bf16 {D}, {vr(WR+4*(i%NW),4)}, {X}, {"0" if ks == 0 else D}')
        if ks == 28:
            done_at[t] = i
        for tt, di in list(done_at.items()):
            if i >= di + 3:
                fill += [(x, c, tt) for x, c in epi(tt)]
                del done_at[tt]
        budget = 4
        while fill and budget >= fill[0][1]:
            x, c, _ = fill.pop(0)
            a(x)
            budget -= c
    stamp()
    for tt in list(done_at):
        fill += [(x, c, tt) for x, c in epi(tt)]
    for x, c, _ in fill:
        a(x)
    a(f's_lshl_b32 s{sA}, s{sTILE1}, 8')
    a(f's_lshl_b32 s{sB}, s{sHC}, 4')
    a(f's_add_u32 s{sA}, s{sA}, s{sB}')
    a(f's_lshl_b32 s{sB}, s{sL}, 14')
    a(f's_add_u32 s{sA}, s{sA}, s{sB}')
    a(f's_add_u32 s{sA}, s{sA}, {F3}')
    stamp()
    publish(f's{sA}')
    stamp()


def phase4():
    HR, NH = 16, 48
    a.barrier()
    S = a.uid('Lw1')
    a(f's_cmp_lg_u32 s{sL}, 0')
    a(f's_cbranch_scc1 {S}')
    with cond():
        a(f's_mul_i32 s{sC}, s{sHC}, {W1S}')
        dma(sC, W1R, LA, 87)
    a.label(S)
    a(f's_cmp_ge_u32 s{sJ}, 28')
    a('s_cbranch_scc1 L_p4skip')
    with cond():
        a(f'v_and_b32 v240, 3, v{vLANE}')
        a(f'v_lshlrev_b32 v240, 4, v240')
        a(f'v_bfe_u32 v241, v{vLANE}, 2, 1')
        a(f'v_lshl_add_u32 v240, v241, 8, v240')
        a(f's_lshl_b32 s{sC}, s{sTILE2}, 8')
        a(f's_lshl_b32 s{sA}, s{sW}, 6')
        a(f's_add_u32 s{sC}, s{sC}, s{sA}')
        a(f's_lshl_b32 s{sA}, s{sL}, 14')
        a(f's_add_u32 s{sC}, s{sC}, s{sA}')
        a(f's_add_u32 s{sC}, s{sC}, {F3}')
        a(f's_mul_i32 s{sD}, s{sW}, {28*1024}')
        a(f's_lshl_b32 s{sA}, s{sL}, 23')
        a(f's_add_u32 s{sD}, s{sD}, s{sA}')
        a(f's_add_u32 s{sD}, s{sD}, {HB}')
        a(f's_mul_i32 s{sA}, s{sOWN}, {112*1024}')
        a(f'v_add_u32 v242, s{sA}, v{vL16}')
        a(f's_xor_b32 s{sA}, s{sOWN}, 1')
        a(f's_mul_i32 s{sA}, s{sA}, {112*1024}')
        a(f'v_add_u32 v243, s{sA}, v{vL16}')
        poll(S_WS, 240, f's{sC}', 1)
        stamp()
        ht = {}

        def ld(idx):
            n_, aa = idx // 2, idx % 2
            t, cc = n_ // 4, n_ % 4
            off = (cc * 7 + t) * 1024
            if aa == 0:
                a(f's_add_u32 s{sE}, s{sD}, {off}')
            ht[idx] = a(f'buffer_load_dwordx4 {vr(HR+4*(idx%NH),4)}, v{242+aa}, {sr(S_WS,4)}, s{sE} offen sc1')
        for idx in range(NH):
            ld(idx)
        TAIL = 4

        def mf(n_, s):
            aa, b = s >> 1, s & 1
            D = accs(s)
            a(f'v_mfma_f32_32x32x16_bf16 {D}, {ar(8*n_+4*b,4)}, {vr(HR+4*((2*n_+aa)%NH),4)}, {"0" if n_ == 0 else D}')
        for n_ in range(28 - TAIL):
            a.wait(ht[2 * n_ + 1])
            for s in range(4):
                mf(n_, s)
            if 2 * n_ + NH < 56:
                ld(2 * n_ + NH)
                ld(2 * n_ + NH + 1)
        for s in (3, 2, 1, 0):
            for n_ in range(28 - TAIL, 28):
                a.wait(ht[2 * n_ + 1])
                mf(n_, s)
            if s < 3:
                red_write(s + 1)
        stamp()
        red_finish(True, X2, ST + 2 * 0x40000, F4, False)
    a.label('L_p4skip')
    stamp()


def final_store():
    a.label('L_final')
    a(f's_mul_i32 s{sA}, s{sOWN}, 28672')
    a(f's_lshl_b32 s{sB}, s{sOFT}, 6')
    a(f's_add_u32 s{sA}, s{sA}, s{sB}')
    a(f'buffer_store_dwordx4 {vr(vXRES,4)}, v{vROW}, {sr(S_OUT,4)}, s{sA} offen')
    a(f'buffer_store_dwordx4 {vr(vXRES+4,4)}, v{vROW}, {sr(S_OUT,4)}, s{sA} offen offset:32')


def build():
    prologue()
    init_phase()
    if STOP != 'init':
        phase1(True)
    if STOP not in ('init', 'p1'):
        a.label('L_layer')
        a('s_nop 7')
        phase2()
        if STOP != 'p2':
            phase3()
        if STOP not in ('p2', 'p3'):
            phase4()
            a(f's_cmp_lg_u32 s{sL}, 0')
            a('s_cbranch_scc1 L_done')
            if STOP != 'p4':
                phase1(False)
                a(f's_mov_b32 s{sL}, 1')
                a('s_branch L_layer')
            else:
                a('s_branch L_done')
            final_store()
    a.label('L_done')
    if PROFILE:
        stamp()
        a(f's_lshl_b32 s{sA}, s2, 2')
        a(f's_add_u32 s{sA}, s{sA}, s{sW}')
        a(f's_lshl_b32 s{sA}, s{sA}, 8')
        a(f's_add_u32 s{sA}, s{sA}, {PROF}')
        a(f'buffer_store_dword v{vPROF}, v{vL4}, {sr(S_WS,4)}, s{sA} offen')
    a.label('L_end')
    a('s_endpgm')
    a.label('L_codeend')


build()
hdr = open('cdna_kernels/' + NAME + '.s.ref').read().split('; Override launch')[0]
out = hdr + f"""; @launch grid=(256,1,1) block=(256,1,1) lds={LDS_BYTES}
.amdgcn_target "amdgcn-amd-amdhsa--gfx950"
.text
.globl {NAME}_kernel
.p2align 8
.type {NAME}_kernel,@function
{NAME}_kernel:
{a.text()}
.section .rodata,"a"
.p2align 6
.amdhsa_kernel {NAME}_kernel
  .amdhsa_next_free_vgpr 512
  .amdhsa_next_free_sgpr 102
  .amdhsa_accum_offset 256
  .amdhsa_group_segment_fixed_size 0
  .amdhsa_kernarg_size 80
  .amdhsa_user_sgpr_count 2
  .amdhsa_user_sgpr_kernarg_segment_ptr 1
  .amdhsa_system_sgpr_workgroup_id_x 1
  .amdhsa_float_denorm_mode_32 3
.end_amdhsa_kernel
"""
outfn = [x for x in sys.argv[1:] if not x.startswith('--')][0]
open(outfn, 'w').write(out)
print('instructions', len(a.ins), 'nops added', a.nops_added)
```

```python
import re

_RANGE = re.compile(r'\b([vas])\[(\d+):(\d+)\]')
_SINGLE = re.compile(r'\b([vas])(\d+)\b')
TRANS = ('v_exp_f32', 'v_log_f32', 'v_rcp_f32', 'v_rsq_f32', 'v_sqrt_f32', 'v_sin_f32', 'v_cos_f32', 'v_rcp_iflag_f32')


def regs_of(op):
    out = set()
    s = op
    for m in _RANGE.finditer(s):
        for i in range(int(m.group(2)), int(m.group(3)) + 1):
            out.add((m.group(1), i))
    s = _RANGE.sub(' ', s)
    for m in _SINGLE.finditer(s):
        out.add((m.group(1), int(m.group(2))))
    if re.search(r'\bvcc\b', s):
        out.add(('s', 'vcc'))
    if re.search(r'\bexec\b', s):
        out.add(('s', 'exec'))
    if re.search(r'\bm0\b', s):
        out.add(('s', 'm0'))
    return out


def split_ops(rest):
    ops, depth, cur = [], 0, ''
    for ch in rest:
        if ch == '[':
            depth += 1
        if ch == ']':
            depth -= 1
        if ch == ',' and depth == 0:
            ops.append(cur.strip())
            cur = ''
        else:
            cur += ch
    if cur.strip():
        ops.append(cur.strip())
    return ops


class Ins:
    def __init__(self, text):
        self.text = text
        t = text.split(';')[0].strip()
        self.label = t.endswith(':')
        self.directive = t.startswith('.')
        self.rd, self.wr = set(), set()
        self.kind = 'other'
        self.A = self.B = self.C = self.D = set()
        self.ws = 1
        self.wide_store = set()
        if self.label or self.directive or not t:
            self.ws = 0
            self.op = ''
            return
        parts = t.split(None, 1)
        op = parts[0]
        for suf in ('_e32', '_e64', '_dpp', '_sdwa'):
            if op.endswith(suf):
                op = op[:-len(suf)]
        self.op = op
        rest = parts[1] if len(parts) > 1 else ''
        ops = split_ops(rest)
        R = [regs_of(o) for o in ops]
        allr = set().union(*R) if R else set()
        if op.startswith('v_mfma'):
            self.kind = 'mfma'
            self.D, self.A, self.B = R[0], R[1], R[2]
            self.C = R[3] if len(R) > 3 else set()
            self.wr = set(self.D)
            self.rd = self.A | self.B | self.C
        elif op.startswith('v_'):
            self.kind = 'valu'
            self.trans = op in TRANS
            self.dpp = ('quad_perm' in rest or 'row_' in rest or 'wave_' in rest)
            if op.startswith('v_permlane') or op == 'v_swap_b32':
                self.wr = R[0] | R[1]
                self.rd = R[0] | R[1]
            elif op in ('v_add_co_u32', 'v_sub_co_u32', 'v_addc_co_u32', 'v_subb_co_u32', 'v_mad_u64_u32'):
                self.wr = R[0] | R[1]
                self.rd = set().union(*R[2:])
            elif op == 'v_nop':
                pass
            else:
                self.wr = set(R[0])
                self.rd = set().union(*R[1:]) if len(R) > 1 else set()
                if op in ('v_fmac_f32', 'v_dot2c_f32_bf16', 'v_pk_fmac_f16', 'v_writelane_b32') or self.dpp:
                    self.rd |= R[0]
                if op.startswith('v_cmpx'):
                    self.wr.add(('s', 'exec'))
        elif op.startswith('ds_'):
            self.kind = 'ds'
            if op.startswith('ds_read') or op.startswith('ds_bpermute') or op.startswith('ds_permute') or op.startswith('ds_swizzle'):
                self.wr = set(R[0])
                self.rd = set().union(*R[1:])
            else:
                self.rd = allr
        elif op.startswith('buffer_') or op.startswith('global_'):
            self.kind = 'vmem'
            self.lds = bool(re.search(r'\blds\b', rest)) or '_lds_' in op
            if 'load' in op and not self.lds:
                self.wr = set(R[0])
                self.rd = set().union(*R[1:])
            else:
                self.rd = allr
                if self.lds:
                    self.rd.add(('s', 'm0'))
                if 'store' in op and (op.endswith('x4') or op.endswith('x3')):
                    self.wide_store = set(R[0]) if op.startswith('buffer_') else set(R[1])
        elif op.startswith('s_'):
            if op == 's_nop':
                self.ws = int(ops[0], 0) + 1
                self.kind = 'nop'
            elif op in ('s_waitcnt', 's_barrier', 's_sleep', 's_setprio', 's_endpgm') or op.startswith('s_cbranch') or op == 's_branch':
                self.kind = 'ctl'
            elif op.startswith('s_load') or op.startswith('s_memtime') or op.startswith('s_memrealtime'):
                self.kind = 'smem'
                self.wr = set(R[0])
                self.rd = set().union(*R[1:]) if len(R) > 1 else set()
            elif op.startswith('s_cmp') or op.startswith('s_bitcmp'):
                self.kind = 'salu'
                self.rd = allr
            else:
                self.kind = 'salu'
                self.wr = set(R[0])
                self.rd = set().union(*R[1:]) if len(R) > 1 else set()
                if 'saveexec' in op:
                    self.wr.add(('s', 'exec'))


def need_ws(p, c):
    n = 0
    vec = lambda s: {r for r in s if r[0] in 'va'}
    sca = lambda s: {r for r in s if r[0] == 's'}
    if p.kind == 'valu':
        pw = vec(p.wr)
        ps = sca(p.wr)
        isdot = p.op.startswith('v_dot')
        if c.kind == 'mfma' and pw & c.rd:
            n = max(n, 3 if isdot else 2)
        if c.kind == 'valu':
            if p.trans and pw & (c.rd | c.wr) and not c.trans:
                n = max(n, 1)
            if p.trans and pw & c.rd:
                n = max(n, 1)
            if c.op.startswith('v_permlane') and pw & c.rd:
                n = max(n, 2)
            if c.dpp and pw & c.rd:
                n = max(n, 2)
            if c.op in ('v_readlane_b32', 'v_readfirstlane_b32') and pw & c.rd:
                n = max(n, 1)
            if ps & c.rd:
                n = max(n, 4 if c.op in ('v_readlane_b32', 'v_writelane_b32') else 2)
            if isdot and pw & (c.rd | c.wr):
                if c.op == p.op:
                    ops = split_ops(c.text.split(';')[0].strip().split(None, 1)[1])
                    ab = regs_of(ops[1]) | regs_of(ops[2])
                    if pw & ab:
                        n = max(n, 3)
                else:
                    n = max(n, 3)
            if ('s', 'exec') in p.wr:
                n = max(n, 5)
        if isdot and c.kind in ('vmem', 'ds') and pw & c.rd:
            n = max(n, 3)
        if p.trans and c.kind in ('vmem', 'ds') and pw & c.rd:
            n = max(n, 1)
        if c.kind == 'vmem' and ps & c.rd:
            n = max(n, 5)
        if c.kind == 'mfma' and ('s', 'exec') in p.wr:
            n = max(n, 4)
        if c.kind in ('salu', 'smem') and ps & c.rd:
            n = max(n, 1)
    if p.kind == 'mfma':
        if c.kind == 'mfma':
            if p.D & (c.A | c.B):
                n = max(n, 12)
            if p.D & c.C and not (p.D == c.C):
                n = max(n, 10)
            if p.D & c.D and not (p.D == c.C):
                n = max(n, 10)
        elif c.kind == 'valu':
            if p.D & (c.rd | c.wr):
                n = max(n, 12)
            if p.C & c.wr:
                n = max(n, 7)
        elif c.kind in ('vmem', 'ds'):
            if p.D & (c.rd | c.wr):
                n = max(n, 12)
            if p.C & c.wr:
                n = max(n, 7)
    if p.kind == 'vmem' and p.wide_store:
        if p.wide_store & c.wr:
            n = max(n, 2)
    if p.kind == 'salu' and ('s', 'm0') in p.wr and c.kind == 'vmem' and getattr(c, 'lds', False):
        n = max(n, 1)
    return n


class Asm:
    def __init__(self):
        self.ins = []
        self.vm_issued = 0
        self.vm_done = 0
        self.lg_issued = 0
        self.lg_done = 0
        self.nops_added = 0
        self._uid = 0

    def uid(self, p='L'):
        self._uid += 1
        return f'{p}_{self._uid}'

    def raw(self, text):
        self.ins.append(Ins(text))

    def __call__(self, text):
        tok = None
        for line in text.strip().split('\n'):
            line = line.strip()
            if not line or line.startswith(';'):
                continue
            i = Ins(line)
            self._hazard(i)
            self.ins.append(i)
            if i.kind == 'vmem':
                tok = ('vm', self.vm_issued)
                self.vm_issued += 1
            elif i.kind == 'ds':
                tok = ('lg', self.lg_issued)
                self.lg_issued += 1
        return tok

    def _hazard(self, c):
        if c.kind in ('nop', 'ctl', 'other'):
            return
        dist = 0
        need = 0
        nmf = 0
        after = 0
        for p in reversed(self.ins):
            if dist >= 20:
                break
            if p.kind in ('valu', 'mfma', 'vmem', 'salu'):
                n = need_ws(p, c)
                d = dist
                if p.kind == 'mfma' and nmf:
                    d = max(d, 8 * nmf + after)
                if n - d > need:
                    need = n - d
            if p.kind == 'mfma':
                if nmf == 0:
                    after = dist
                nmf += 1
            dist += p.ws
        while need > 0:
            k = min(need, 16)
            self.ins.append(Ins(f's_nop {k-1}'))
            self.nops_added += k
            need -= k

    def label(self, name):
        self.ins.append(Ins(f'{name}:'))

    def wait(self, *toks, force=False):
        vm = [t[1] for t in toks if t is not None and t[0] == 'vm']
        lg = [t[1] for t in toks if t is not None and t[0] == 'lg']
        parts = []
        if vm:
            t = max(vm)
            if t >= self.vm_done or force:
                n = min(self.vm_issued - 1 - t, 63)
                parts.append(f'vmcnt({n})')
                self.vm_done = max(self.vm_done, self.vm_issued - n)
        if lg:
            t = max(lg)
            if t >= self.lg_done or force:
                n = min(self.lg_issued - 1 - t, 15)
                parts.append(f'lgkmcnt({n})')
                self.lg_done = max(self.lg_done, self.lg_issued - n)
        if parts:
            self('s_waitcnt ' + ' '.join(parts))

    def wait_vm0(self):
        self('s_waitcnt vmcnt(0)')
        self.vm_done = self.vm_issued

    def wait_lg0(self):
        self('s_waitcnt lgkmcnt(0)')
        self.lg_done = self.lg_issued

    def wait_all(self):
        self('s_waitcnt vmcnt(0) lgkmcnt(0)')
        self.vm_done = self.vm_issued
        self.lg_done = self.lg_issued

    def wait_vm_n(self, n):
        self(f's_waitcnt vmcnt({n})')

    def forget(self):
        pass

    def barrier(self):
        self('s_barrier')

    def text(self):
        out = []
        for i in self.ins:
            out.append(i.text if (i.label or i.directive) else '  ' + i.text)
        return '\n'.join(out)


def vr(b, n=1):
    return f'v{b}' if n == 1 else f'v[{b}:{b+n-1}]'


def ar(b, n=1):
    return f'a{b}' if n == 1 else f'a[{b}:{b+n-1}]'


def sr(b, n=1):
    return f's{b}' if n == 1 else f's[{b}:{b+n-1}]'
```

```python
import sys
import contextlib
from asmlib import Asm, vr, ar, sr

NAME = "interleave_layers__linear_attn_block__glu_gated_glu__prompt"
OPT = {}
for x in sys.argv[1:]:
    if x.startswith('--'):
        k, _, v = x[2:].partition('=')
        OPT[k] = v if v else True
PROFILE = 'prof' in OPT
FINE = 'fine' in OPT
CLK = 'clk' in OPT
STOP = OPT.get('stop')
FA = 1
SLEEP = int(OPT.get('sleep', 1))
TOUCH = int(OPT.get('touch', 0))
BUD = int(OPT.get('bud', 3))
XPRE = int(OPT.get('xpre', 16))
HPRE = int(OPT.get('hpre', 16))
HSC = int(OPT.get('hsc', 0))
XSC = int(OPT.get('xsc', 0))
WSC = '' if 'nowsc' in OPT else 'sc1'
STAMPS = []

IB = 0x0
W1R = 0x100000; W1S = 87 * 1024
WOR = 0x280000
W3R = 0x300000; W3S = 203 * 1024
WDR = 0x680000; WDS = 224 * 1024
LYB = 0x1000000
KV = 0x0
F1 = 0x10000
F1Q = 0x18000
F3 = 0x30000
F2 = 0x20000
F0 = 0x28000
ST1 = 0x40000
ST0 = 0x80000
PQ = 0x100000
X1 = 0x300000
X0 = 0x500000
HB = 0x700000
PROF = 0x3000000
WS_BYTES = 256 << 20
OOB = 0x40000000

K = 1024
LBETA, LB, LALPHA = 0, 56 * K, 104 * K
LRS = 87 * K
LKVS = 88 * K
LDS_BYTES = 160 * K

S_WS, S_X, S_WQKV, S_WO, S_WG, S_WU, S_WD, S_OUT, S_DBG = 4, 8, 12, 16, 20, 24, 28, 32, 36
S_T0, S_T1 = 40, 44
S_LY = 40
S_DT = 44
sW, sJ, sHC, sTB, sFB, sL, sTMO, sPI = 48, 49, 50, 51, 52, 53, 54, 55
sTILE1, sTILE2, sOWN, sOFT = 56, 57, 58, 59
sLN2, sEPS6 = 60, 62
sONES = 84
sW1K, sW2K, sW4K = 64, 65, 66
sW1SRC, sW3SRC, sWOSRC, sWDSRC = 67, 68, 69, 70
sRBG, sREP = 71, 72
sG, sH, sI = 73, 74, 75
sA, sB, sC, sD, sE, sF = 86, 87, 88, 89, 90, 91
sP0 = 92
sU = 94
sXID = 95

vLANE, vL16, vL16b, vL16c, vROW, vAUG, vL4, vPROF = 0, 1, 2, 3, 4, 5, 6, 7
vXRES = 8
LOG2E = 0x3FB8AA3B
LN2 = 0x3F317218
EPS6 = 0x358637BD
EPS5 = 0x3727C5AC
INV448 = 0x3B124925
MF = 'v_mfma_f32_32x32x16_bf16'

a = Asm()
MODE = {'sc': 'sc1', 'sfx': ''}


def LS():
    return MODE['sc']


def LL():
    return OPT.get('ll', 'sc1').replace('none', '') if MODE['sc'] == '' else 'sc1'


def ALIAS():
    return MODE['sfx'] == '' and 'noalias' not in OPT


def XS():
    return 'sc1' if XSC else LS()


def HS():
    return 'sc1' if HSC else LS()


def LB_(n):
    return n + MODE['sfx']


@contextlib.contextmanager
def cond():
    st = (a.vm_issued, a.vm_done, a.lg_issued, a.lg_done)
    yield
    a.vm_issued, a.vm_done, a.lg_issued, a.lg_done = st


def mark():
    return ('vm', a.vm_issued - 1)


def lds_addr(addr):
    if addr < 65536:
        return vL16, addr
    if addr < 131072:
        return vL16b, addr - 65536
    return vL16c, addr - 131072


def stamp(name, fine=False):
    if not PROFILE or (fine and not FINE):
        return
    STAMPS.append(name)
    a('s_waitcnt lgkmcnt(0)')
    a(f"{'s_memtime' if CLK else 's_memrealtime'} {sr(sP0,2)}")
    a.wait_lg0()
    a(f'v_cmp_eq_u32 vcc, s{sPI}, v{vLANE}')
    a(f'v_mov_b32 v255, s{sP0}')
    a(f'v_cndmask_b32 v{vPROF}, v{vPROF}, v255, vcc')
    a(f's_add_u32 s{sPI}, s{sPI}, 1')


def srd(base, lo, nbytes):
    a(f's_mov_b32 s{base}, s{lo}')
    a(f's_and_b32 s{base+1}, s{lo+1}, 0xffff')
    a(f's_mov_b32 s{base+2}, {nbytes}')
    a(f's_mov_b32 s{base+3}, 0x00020000')


def poll(srdreg, vaddr, soff, imm=0, t=254, sleep=None, nonzero=False):
    L = a.uid('Lpoll'); D = a.uid('Lpd')
    sleep = SLEEP if sleep is None else sleep
    a.label(L)
    a(f'buffer_load_dword v{t}, v{vaddr}, {sr(srdreg,4)}, {soff} offen offset:{imm} sc1')
    a.wait_vm0()
    a(f'v_cmp_eq_u32 vcc, 0, v{t}' if nonzero else f'v_cmp_ne_u32 vcc, 1, v{t}')
    a('s_and_b64 exec, exec, vcc')
    a(f's_cbranch_scc0 {D}')
    if sleep:
        a(f's_sleep {sleep}')
    a(f's_sub_u32 s{sTMO}, s{sTMO}, 1')
    a(f's_cbranch_scc0 {L}')
    a(f's_mov_b32 s{sTMO}, 0')
    a.label(D)
    a('s_mov_b64 exec, -1')


def flag_store(srdreg, soff, imm=0, t=254, sc=None):
    sc = LS() if sc is None else sc
    return [f'v_mov_b32 v{t}, 1',
            's_mov_b64 exec, 1',
            f'buffer_store_dword v{t}, off, {sr(srdreg,4)}, {soff} offset:{imm} {sc}',
            's_mov_b64 exec, -1']


def emit(lst):
    t = None
    for x in lst:
        r = a(x)
        t = r if r is not None else t
    return t


def dma_items(vD, lds_base, nfrag, c):
    assert nfrag % (4 * c) == 0
    sWc = {1: sW1K, 2: sW2K, 4: sW4K}[c]
    items = []
    for r in range(nfrag // (4 * c)):
        for i in range(c):
            it = []
            if i == 0:
                it.append(f's_add_u32 m0, s{sWc}, {lds_base + r*4*c*K}')
            it.append(f'buffer_load_dwordx4 v{vD}, {sr(S_WS,4)}, m0 offen offset:{i*K} {WSC} lds')
            items.append(it)
    return items


def dma_setup(vD, ssrc, src_const, lds_base):
    a(f's_add_u32 s{sA}, s{ssrc}, {src_const - lds_base & 0xffffffff:#x}')
    a(f'v_add_u32 v{vD}, s{sA}, v{vL16}')


def prologue():
    a('s_cmp_ge_u32 s2, 256')
    a('s_cbranch_scc1 L_end')
    a('s_load_dwordx16 s[64:79], s[0:1], 0')
    a('s_load_dwordx4 s[80:83], s[0:1], 64')
    a(f's_getpc_b64 {sr(sA,2)}')
    a.label('L_pc')
    a('v_lshlrev_b32 v16, 7, v0')
    a('v_min_u32 v16, (L_codeend - L_pc - 4), v16')
    a(f'global_load_dword v17, v16, {sr(sA,2)}')
    a(f'v_lshrrev_b32 v18, 6, v0')
    a(f'v_and_b32 v{vLANE}, 63, v0')
    a(f'v_readfirstlane_b32 s{sW}, v18')
    a(f'v_lshlrev_b32 v{vL16}, 4, v{vLANE}')
    a(f'v_add_u32 v{vL16b}, 0x10000, v{vL16}')
    a(f'v_add_u32 v{vL16c}, 0x20000, v{vL16}')
    a(f'v_lshlrev_b32 v{vL4}, 2, v{vLANE}')
    a(f'v_and_b32 v18, 31, v{vLANE}')
    a(f'v_lshrrev_b32 v19, 5, v{vLANE}')
    a(f'v_mul_u32_u24 v{vROW}, 896, v18')
    a(f'v_lshl_add_u32 v{vROW}, v19, 4, v{vROW}')
    a(f'v_lshlrev_b32 v{vAUG}, 2, v18')
    a(f'v_lshl_add_u32 v{vAUG}, v19, 9, v{vAUG}')
    a(f'v_mov_b32 v{vPROF}, 0')
    a(f's_mov_b32 s{sPI}, 0')
    a(f's_and_b32 s{sC}, s2, 7')
    a(f's_lshr_b32 s{sJ}, s2, 3')
    a(f's_mul_i32 s{sTB}, s{sJ}, 37')
    a(f's_lshr_b32 s{sTB}, s{sTB}, 8')
    a(f's_mul_i32 s{sFB}, s{sTB}, 7')
    a(f's_sub_u32 s{sFB}, s{sJ}, s{sFB}')
    a(f's_cmp_ge_u32 s{sJ}, 28')
    a(f's_cselect_b32 s{sTB}, s{sFB}, s{sTB}')
    a(f's_mov_b32 s{sL}, 0')
    a(f's_mov_b32 s{sTMO}, 100000')
    a(f's_lshl_b32 s{sTILE2}, s{sC}, 3')
    a(f's_lshl_b32 s{sD}, s{sTB}, 1')
    a(f's_add_u32 s{sTILE2}, s{sTILE2}, s{sD}')
    a(f's_lshr_b32 s{sD}, s{sW}, 1')
    a(f's_add_u32 s{sOWN}, s{sTILE2}, s{sD}')
    a(f's_and_b32 s{sD}, s{sW}, 1')
    a(f's_lshl_b32 s{sOFT}, s{sFB}, 1')
    a(f's_add_u32 s{sOFT}, s{sOFT}, s{sD}')
    lf = {1: 0, 2: 1, 4: 2, 8: 3}[FA]
    nh = 16 // FA
    a(f's_and_b32 s{sD}, s{sC}, {FA-1}')
    a(f's_mul_i32 s{sHC}, s{sD}, {nh}')
    a(f's_and_b32 s{sD}, s{sJ}, {nh-1}')
    a(f's_add_u32 s{sHC}, s{sHC}, s{sD}')
    a(f's_lshr_b32 s{sD}, s{sC}, {lf}')
    a(f's_lshl_b32 s{sE}, s{sD}, {lf+1}')
    a(f's_lshr_b32 s{sD}, s{sJ}, {4-lf}')
    a(f's_add_u32 s{sE}, s{sE}, s{sD}')
    a(f's_lshl_b32 s{sTILE1}, s{sE}, 2')
    a(f's_add_u32 s{sTILE1}, s{sTILE1}, s{sW}')
    a(f's_mov_b32 s{sLN2}, {LN2:#x}')
    a(f's_mov_b32 s{sLN2+1}, {LN2:#x}')
    a(f's_mov_b32 s{sEPS6}, {EPS6:#x}')
    a(f's_mov_b32 s{sEPS6+1}, {EPS6:#x}')
    a(f's_mov_b32 s{sONES}, 0x3f803f80')
    a('s_waitcnt lgkmcnt(0)')
    srd(S_X, 64, 2048 * 448 * 2)
    srd(S_WQKV, 66, 448 * 1344 * 2)
    srd(S_WO, 68, 448 * 448 * 2)
    srd(S_WG, 72, 448 * 1792 * 2)
    srd(S_WU, 74, 448 * 1792 * 2)
    srd(S_WD, 76, 1792 * 448 * 2)
    srd(S_OUT, 78, 2048 * 448 * 2)
    srd(S_DBG, 80, 256)
    srd(S_WS, 82, WS_BYTES)
    a(f's_mov_b32 s{sRBG}, s{sE}')
    a(f's_and_b32 s{sREP}, s2, 3')
    a(f's_lshl_b32 s{sREP}, s{sREP}, 12')
    a(f's_lshl_b32 s{sW1K}, s{sW}, 10')
    a(f's_lshl_b32 s{sW2K}, s{sW}, 11')
    a(f's_lshl_b32 s{sW4K}, s{sW}, 12')
    a(f's_getreg_b32 s{sXID}, hwreg(HW_REG_XCC_ID)')
    a(f's_and_b32 s{sXID}, s{sXID}, 15')
    a(f's_add_u32 s{sXID}, s{sXID}, 1')
    stamp('start')


def late_consts():
    a(f's_mul_i32 s{sW1SRC}, s{sHC}, {W1S}')
    a(f's_add_u32 s{sW1SRC}, s{sW1SRC}, {W1R}')
    a(f's_mul_i32 s{sW3SRC}, s{sHC}, {W3S}')
    a(f's_add_u32 s{sW3SRC}, s{sW3SRC}, {W3R}')
    a(f's_lshl_b32 s{sWOSRC}, s{sFB}, 16')
    a(f's_lshl_b32 s{sA}, s{sW}, 14')
    a(f's_add_u32 s{sWOSRC}, s{sWOSRC}, s{sA}')
    a(f's_add_u32 s{sWOSRC}, s{sWOSRC}, {WOR}')
    a(f's_mul_i32 s{sWDSRC}, s{sFB}, {WDS}')
    a(f's_mul_i32 s{sA}, s{sW}, 57344')
    a(f's_add_u32 s{sWDSRC}, s{sWDSRC}, s{sA}')
    a(f's_add_u32 s{sWDSRC}, s{sWDSRC}, {WDR}')
    a(f's_add_u32 s{S_LY}, s{S_WS}, {LYB}')
    a(f's_addc_u32 s{S_LY+1}, s{S_WS+1}, 0')
    a(f's_mov_b32 s{S_LY+2}, {2*LYB}')
    a(f's_mov_b32 s{S_LY+3}, 0x00020000')
    a(f's_mov_b32 s{S_DT}, s{S_LY}')
    a(f's_mov_b32 s{S_DT+1}, s{S_LY+1}')
    a(f's_mov_b32 s{S_DT+2}, {2*LYB}')
    a(f's_mov_b32 s{S_DT+3}, 0x00020000')


UD = 128
UC = 192
vRHO, vHI, vSIG, vR8, vC8 = 204, 205, 206, 207, 212
vt0, vt1, vt2, vt3 = 208, 209, 210, 211
vXS = 214
LSTG = 4 * K
LXS = 40 * K


def unit_dma(r, srdreg, vsrc, srow0, srow1):
    a(f's_add_u32 m0, s{sG}, {r*2048}')
    a('s_nop 0')
    a(f'buffer_load_dwordx4 v{vsrc}, {sr(srdreg,4)}, s{srow0} offen lds')
    a(f's_add_u32 m0, s{sG}, {r*2048+1024}')
    a('s_nop 0')
    a(f'buffer_load_dwordx4 v{vsrc}, {sr(srdreg,4)}, s{srow1} offen lds')


def div7(q, rem, su):
    a(f's_mul_i32 s{q}, s{su}, 9363')
    a(f's_lshr_b32 s{q}, s{q}, 16')
    a(f's_mul_i32 s{rem}, s{q}, 7')
    a(f's_sub_u32 s{rem}, s{su}, s{rem}')


def setup_w1(r, su):
    col, dst, aug = UC + 3 * r, UC + 3 * r + 1, UC + 3 * r + 2
    div7(sA, sB, su)
    a(f's_lshr_b32 s{sC}, s{sA}, 3')
    a(f's_and_b32 s{sA}, s{sA}, 7')
    a(f's_mul_i32 s{sD}, s{sC}, 896')
    a(f's_mul_i32 s{sE}, s{sA}, 112')
    a(f's_add_u32 s{sD}, s{sD}, s{sE}')
    a(f's_lshl_b32 s{sF}, s{sB}, 2')
    a(f's_add_u32 s{sF}, s{sF}, s{sW}')
    a(f's_mul_i32 s{sE}, s{sF}, {16*2688}')
    a(f's_add_u32 s{sD}, s{sD}, s{sE}')
    a(f's_add_u32 s{sE}, s{sD}, {8*2688}')
    a(f'v_mul_u32_u24 v{vt0}, 2688, v{vR8}')
    a(f'v_add_u32 v{vt0}, v{vt0}, v{vC8}')
    a(f'v_cmp_eq_u32 vcc, 112, v{vC8}')
    a(f'v_mov_b32 v{vt1}, {OOB:#x}')
    a(f'v_cndmask_b32 v{vt0}, v{vt0}, v{vt1}, vcc')
    unit_dma(r, S_WQKV, vt0, sD, sE)
    a(f'v_cmp_le_u32 vcc, 24, v{vSIG}')
    a(f'v_subrev_u32 v{vt0}, 2, v{vSIG}')
    a(f'v_cndmask_b32 v{vt0}, v{vSIG}, v{vt0}, vcc')
    a(f'v_mad_u32_u24 v{vt0}, v{vHI}, 28, v{vt0}')
    a(f'v_and_b32 v{vt1}, 0x16, v{vSIG}')
    a(f'v_cmp_eq_u32 vcc, 0x16, v{vt1}')
    a(f'v_cndmask_b32 v{vt0}, v{vt0}, 56, vcc')
    a(f'v_lshl_add_u32 v{col}, v{vt0}, 1, s{sG}')
    a(f's_lshl_b32 s{sD}, s{sF}, 1')
    a(f's_add_u32 s{sD}, s{sD}, s{sC}')
    a(f's_sub_u32 s{sD}, s{sD}, 1')
    a(f's_add_u32 s{sE}, s{sC}, 55')
    a(f's_add_u32 s{sF}, s{sF}, 58')
    a(f's_cmp_eq_u32 s{sC}, 0')
    a(f's_cselect_b32 s{sD}, s{sF}, s{sD}')
    a(f's_cselect_b32 s{sE}, 86, s{sE}')
    a(f's_mul_i32 s{sA}, s{sA}, {2*W1S}')
    a(f's_add_u32 s{sA}, s{sA}, {W1R}')
    a(f's_lshl_b32 s{sD}, s{sD}, 10')
    a(f's_add_u32 s{sD}, s{sD}, s{sA}')
    a(f's_lshl_b32 s{sE}, s{sE}, 10')
    a(f's_add_u32 s{sE}, s{sE}, s{sA}')
    a(f's_lshl_b32 s{sB}, s{sB}, 7')
    a(f's_add_u32 s{sE}, s{sE}, s{sB}')
    a(f'v_mul_u32_u24 v{vt0}, {W1S}, v{vHI}')
    a(f'v_lshl_add_u32 v{dst}, v{vRHO}, 4, v{vt0}')
    a(f'v_add_u32 v{dst}, s{sD}, v{dst}')
    a(f'v_lshl_add_u32 v{aug}, v{vRHO}, 2, v{vt0}')
    a(f'v_add_u32 v{aug}, s{sE}, v{aug}')


def setup_w3(r, su, tsrd):
    col, dst, aug = UC + 3 * r, UC + 3 * r + 1, UC + 3 * r + 2
    div7(sA, sB, su)
    a(f's_cmp_ge_u32 s{sA}, 28')
    a(f's_cselect_b32 s{tsrd}, s{S_WU}, s{S_WG}')
    a(f's_cselect_b32 s{tsrd+1}, s{S_WU+1}, s{S_WG+1}')
    a(f's_cselect_b32 s{sC}, 28, 0')
    a(f's_cselect_b32 s{sD}, 16, 0')
    a(f's_mov_b32 s{tsrd+2}, {448*1792*2}')
    a(f's_mov_b32 s{tsrd+3}, 0x00020000')
    a(f's_sub_u32 s{sA}, s{sA}, s{sC}')
    a(f's_lshl_b32 s{sE}, s{sB}, 2')
    a(f's_add_u32 s{sE}, s{sE}, s{sW}')
    a(f's_mul_i32 s{sC}, s{sE}, {16*3584}')
    a(f's_lshl_b32 s{sF}, s{sA}, 7')
    a(f's_add_u32 s{sC}, s{sC}, s{sF}')
    a(f's_add_u32 s{sF}, s{sC}, {8*3584}')
    a(f'v_mul_u32_u24 v{vt0}, 3584, v{vR8}')
    a(f'v_add_u32 v{vt0}, v{vt0}, v{vC8}')
    unit_dma(r, tsrd, vt0, sC, sF)
    a(f'v_and_b32 v{vt0}, 48, v{vLANE}')
    a(f'v_and_or_b32 v{vt0}, v{vSIG}, 15, v{vt0}')
    a(f'v_lshl_add_u32 v{col}, v{vt0}, 1, s{sG}')
    a(f'v_lshrrev_b32 v{vt0}, 4, v{vLANE}')
    a(f's_lshl_b32 s{sC}, s{sA}, 2')
    a(f'v_add_u32 v{vt0}, s{sC}, v{vt0}')
    a(f'v_mul_u32_u24 v{vt1}, 9363, v{vt0}')
    a(f'v_lshrrev_b32 v{vt1}, 16, v{vt1}')
    a(f'v_mul_u32_u24 v{vt2}, 7, v{vt1}')
    a(f'v_sub_u32 v{vt0}, v{vt0}, v{vt2}')
    a(f's_mul_i32 s{sF}, s{sE}, 2')
    a(f'v_add_u32 v{vt2}, s{sF}, v{vt0}')
    a(f'v_add_u32 v{aug}, 112, v{vt0}')
    a(f's_cmp_ge_u32 s{sE}, 27')
    a(f's_cselect_b32 s{sC}, 58, 0')
    a(f's_sub_u32 s{sC}, s{sE}, s{sC}')
    a(f's_add_u32 s{sC}, s{sC}, 176')
    for t, base, ag in ((2, 56, None), (3, 84, None), (4, 116, 144), (5, 147, 175), (6, None, 146)):
        a(f'v_cmp_eq_u32 vcc, {t}, v{vt0}')
        if base is not None:
            a(f's_add_u32 s{sF}, s{sE}, {base}')
            a(f'v_mov_b32 v{vt3}, s{sF}')
        else:
            a(f'v_mov_b32 v{vt3}, s{sC}')
        a(f'v_cndmask_b32 v{vt2}, v{vt2}, v{vt3}, vcc')
        if ag is not None:
            a(f'v_mov_b32 v{vt3}, {ag}')
            a(f'v_cndmask_b32 v{aug}, v{aug}, v{vt3}, vcc')
    a(f'v_mul_u32_u24 v{vt1}, 203, v{vt1}')
    a(f'v_add_lshl_u32 v{vt2}, v{vt2}, v{vt1}, 10')
    a(f'v_add_lshl_u32 v{aug}, v{aug}, v{vt1}, 10')
    a(f'v_and_b32 v{vt0}, 15, v{vLANE}')
    a(f'v_add_u32 v{vt0}, s{sD}, v{vt0}')
    a(f'v_lshl_add_u32 v{dst}, v{vt0}, 4, v{vt2}')
    a(f'v_add_u32 v{dst}, {W3R:#x}, v{dst}')
    a(f'v_lshl_add_u32 v{aug}, v{vt0}, 2, v{aug}')
    a(f's_lshl_b32 s{sB}, s{sB}, 7')
    a(f's_add_u32 s{sB}, s{sB}, {W3R}')
    a(f'v_add_u32 v{aug}, s{sB}, v{aug}')


def setup_colsT(r):
    col, dst, aug = UC + 3 * r, UC + 3 * r + 1, UC + 3 * r + 2
    a(f'v_lshl_add_u32 v{vt0}, v{vHI}, 5, v{vSIG}')
    a(f'v_lshl_add_u32 v{col}, v{vt0}, 1, s{sG}')
    a(f'v_lshlrev_b32 v{dst}, 10, v{vHI}')
    a(f'v_lshl_add_u32 v{dst}, v{vRHO}, 4, v{dst}')
    a(f'v_mov_b32 v{aug}, {OOB:#x}')


def setup_wd(r, su):
    dst = UC + 3 * r + 1
    div7(sA, sB, su)
    a(f's_lshl_b32 s{sA}, s{sA}, 2')
    a(f's_add_u32 s{sA}, s{sA}, s{sW}')
    a(f's_mul_i32 s{sC}, s{sA}, {16*896}')
    a(f's_lshl_b32 s{sD}, s{sB}, 7')
    a(f's_add_u32 s{sC}, s{sC}, s{sD}')
    a(f's_add_u32 s{sD}, s{sC}, {8*896}')
    a(f'v_mul_u32_u24 v{vt0}, 896, v{vR8}')
    a(f'v_add_u32 v{vt0}, v{vt0}, v{vC8}')
    unit_dma(r, S_WD, vt0, sC, sD)
    setup_colsT(r)
    div7(sC, sD, sA)
    a(f's_mul_i32 s{sB}, s{sB}, {WDS}')
    a(f's_lshr_b32 s{sE}, s{sC}, 2')
    a(f's_mul_i32 s{sE}, s{sE}, 57344')
    a(f's_add_u32 s{sB}, s{sB}, s{sE}')
    a(f's_lshl_b32 s{sD}, s{sD}, 2')
    a(f's_and_b32 s{sC}, s{sC}, 3')
    a(f's_add_u32 s{sD}, s{sD}, s{sC}')
    a(f's_lshl_b32 s{sD}, s{sD}, 11')
    a(f's_add_u32 s{sB}, s{sB}, s{sD}')
    a(f's_add_u32 s{sB}, s{sB}, {WDR}')
    a(f'v_add_u32 v{dst}, s{sB}, v{dst}')


def setup_wo(r, su):
    dst = UC + 3 * r + 1
    div7(sA, sB, su)
    a(f's_lshl_b32 s{sA}, s{sA}, 2')
    a(f's_add_u32 s{sA}, s{sA}, s{sW}')
    a(f's_lshr_b32 s{sC}, s{sA}, 1')
    a(f's_mul_i32 s{sC}, s{sC}, {28*896}')
    a(f's_lshl_b32 s{sD}, s{sB}, 7')
    a(f's_add_u32 s{sC}, s{sC}, s{sD}')
    a(f's_and_b32 s{sD}, s{sA}, 1')
    a(f's_cselect_b32 s{sD}, {16*896}, 0')
    a(f's_cselect_b32 s{sE}, {14*896}, 0')
    a(f's_add_u32 s{sD}, s{sD}, s{sC}')
    a(f's_add_u32 s{sE}, s{sE}, s{sC}')
    a(f's_add_u32 s{sE}, s{sE}, {8*896}')
    a(f'v_mul_u32_u24 v{vt0}, 896, v{vR8}')
    a(f'v_add_u32 v{vt0}, v{vt0}, v{vC8}')
    unit_dma(r, S_WO, vt0, sD, sE)
    setup_colsT(r)
    a(f's_lshl_b32 s{sB}, s{sB}, 16')
    a(f's_lshl_b32 s{sC}, s{sA}, 11')
    a(f's_add_u32 s{sB}, s{sB}, s{sC}')
    a(f's_add_u32 s{sB}, s{sB}, {WOR}')
    a(f'v_add_u32 v{dst}, s{sB}, v{dst}')


def setup_none(r):
    col, dst, aug = UC + 3 * r, UC + 3 * r + 1, UC + 3 * r + 2
    a(f'v_mov_b32 v{col}, 0')
    a(f'v_mov_b32 v{dst}, {OOB:#x}')
    a(f'v_mov_b32 v{aug}, {OOB:#x}')


def init_phase():
    Z = 216
    for i in range(4):
        a(f'v_mov_b32 v{Z+i}, 0')
    a('s_cmp_ge_u32 s2, 8')
    a('s_cbranch_scc1 L_z1')
    a(f's_cmp_ge_u32 s{sW}, 1')
    a('s_cbranch_scc1 L_z1')
    with cond():
        a(f's_lshl_b32 s{sA}, s2, 11')
        a(f'buffer_store_dwordx4 {vr(Z,4)}, v{vL16}, {sr(S_WS,4)}, s{sA} offen sc1')
        a(f'buffer_store_dwordx4 {vr(Z,4)}, v{vL16}, {sr(S_WS,4)}, s{sA} offen offset:1024 sc1')
    a.label('L_z1')
    a(f'v_and_b32 v{vRHO}, 31, v{vLANE}')
    a(f'v_lshrrev_b32 v{vHI}, 5, v{vLANE}')
    a(f'v_and_b32 v{vSIG}, 0x13, v{vRHO}')
    a(f'v_and_b32 v{vt0}, 4, v{vRHO}')
    a(f'v_lshl_or_b32 v{vSIG}, v{vt0}, 1, v{vSIG}')
    a(f'v_lshrrev_b32 v{vt0}, 1, v{vRHO}')
    a(f'v_and_or_b32 v{vSIG}, v{vt0}, 4, v{vSIG}')
    a(f'v_lshrrev_b32 v{vR8}, 3, v{vLANE}')
    a(f'v_and_b32 v{vC8}, 7, v{vLANE}')
    a(f'v_lshlrev_b32 v{vC8}, 4, v{vC8}')
    a(f's_lshl_b32 s{sG}, s{sW}, 13')
    a(f's_add_u32 s{sG}, s{sG}, {LSTG}')
    a('s_cmp_ge_u32 s2, 168')
    a('s_cbranch_scc1 L_r0b')
    with cond():
        setup_w1(0, 2)
    a('s_branch L_r0e')
    a.label('L_r0b')
    a('s_cmp_ge_u32 s2, 224')
    a('s_cbranch_scc1 L_r0c')
    with cond():
        a(f's_sub_u32 s{sU}, s2, 168')
        setup_wo(0, sU)
    a('s_branch L_r0e')
    a.label('L_r0c')
    with cond():
        a(f's_sub_u32 s{sU}, s2, 224')
        setup_wd(0, sU)
    a.label('L_r0e')
    setup_w3(1, 2, S_T0)
    a('s_cmp_ge_u32 s2, 136')
    a('s_cbranch_scc1 L_r2b')
    with cond():
        a(f's_add_u32 s{sU}, s2, 256')
        setup_w3(2, sU, S_T1)
    a('s_branch L_r2e')
    a.label('L_r2b')
    with cond():
        a(f's_sub_u32 s{sU}, s2, 104')
        setup_wd(2, sU)
    a.label('L_r2e')
    a('s_cmp_ge_u32 s2, 212')
    a('s_cbranch_scc1 L_r3b')
    setup_none(3)
    a('s_branch L_r3e')
    a.label('L_r3b')
    with cond():
        a(f's_sub_u32 s{sU}, s2, 60')
        setup_wd(3, sU)
    a.label('L_r3e')
    um = mark()
    a(f's_lshl_b32 s{sA}, s2, 10')
    a(f's_add_u32 s{sB}, s{sW}, 1')
    a(f's_lshl_b32 s{sB}, s{sB}, 24')
    a(f's_add_u32 s{sA}, s{sA}, s{sB}')
    a(f's_cmp_ge_u32 s{sW}, 2')
    a(f's_cselect_b32 s{sA}, {OOB:#x}, s{sA}')
    a(f'buffer_store_dwordx4 {vr(Z,4)}, v{vL16}, {sr(S_WS,4)}, s{sA} offen sc1')
    a(f'v_lshrrev_b32 v{vt0}, 4, v{vLANE}')
    a(f'v_lshlrev_b32 v{vt0}, 4, v{vt0}')
    a(f'v_xor_b32 v{vt0}, v{vt0}, v{vC8}')
    a(f'v_mul_u32_u24 v{vt1}, 896, v{vR8}')
    a(f'v_add_u32 v{vt2}, v{vt1}, v{vt0}')
    a(f'v_xor_b32 v{vt0}, 64, v{vt0}')
    a(f'v_add_u32 v{vt3}, v{vt1}, v{vt0}')
    a(f's_mul_i32 s{sA}, s{sTILE1}, 28672')
    a(f's_mul_i32 s{sH}, s{sW}, {28*K}')
    a(f's_add_u32 s{sH}, s{sH}, {LXS}')
    a(f's_mov_b32 s{sI}, s{sA}')
    a(f'v_mov_b32 v{vXS}, v{vt2}')
    a(f'v_mov_b32 v{vXS+1}, v{vt3}')

    def xdma(g):
        for c in range(7):
            a(f's_add_u32 m0, s{sH}, {(4*c+g)*K - c*128}')
            a(f'buffer_load_dwordx4 v{vXS + (g & 1)}, {sr(S_X,4)}, s{sI} offen offset:{c*128} lds')
        a(f's_add_u32 s{sI}, s{sI}, {8*896}')
    xdma(0)
    stamp('issued')
    a.wait(um, force=True)
    stamp('ldone')
    a('s_cmp_ge_u32 s2, 8')
    a('s_cbranch_scc1 L_z2')
    a(f's_cmp_ge_u32 s{sW}, 1')
    a('s_cbranch_scc1 L_z2')
    with cond():
        a(f's_lshl_b32 s{sA}, s2, 5')
        emit(flag_store(S_DBG, f's{sA}'))
    a.label('L_z2')
    a(f's_lshl_b32 s{sA}, s{sW}, 8')
    a(f'v_add_u32 v{vt1}, s{sA}, v{vL4}')
    rtok = {}

    def gat(r, half):
        for e in range(8):
            rtok[r, half] = a(f'ds_read_u16 v{UD+16*r+8*half+e}, v{UC+3*r} offset:{r*2048+(8*half+e)*128}')
    gat(0, 0)
    for r in range(4):
        R = UD + 16 * r
        dst = UC + 3 * r + 1
        for half in range(2):
            nxt = 2 * r + half + 1
            if nxt < 8:
                gat(nxt // 2, nxt % 2)
            a.wait(rtok[r, half])
            for m in range(4):
                a(f'v_lshl_or_b32 v{R+8*half+m}, v{R+8*half+2*m+1}, 16, v{R+8*half+2*m}')
            a(f'buffer_store_dwordx4 {vr(R+8*half,4)}, v{dst}, {sr(S_WS,4)}, 0 offen offset:{512*half} sc1')
    for r in range(3):
        R = UD + 16 * r
        a(f'v_mov_b32 v{R+4}, 0')
        for m in range(4):
            a(f'v_dot2c_f32_bf16 v{R+4}, s{sONES}, v{R+m}')
            a(f'v_dot2c_f32_bf16 v{R+4}, s{sONES}, v{R+8+m}')
        a(f'ds_write_b32 v{vt1}, v{R+4} offset:{r*1024}')
    stamp('packed') if 'initprof' in OPT else None
    a.wait_lg0()
    a.barrier()
    stamp('bar1') if 'initprof' in OPT else None
    a(f's_cmp_eq_u32 s{sW}, 3')
    a('s_cbranch_scc1 L_aug_e')
    with cond():
        R = 220
        a(f'v_add_u32 v{vt0}, s{sW1K}, v{vL4}')
        a(f'ds_read2st64_b32 {vr(R,2)}, v{vt0} offset0:0 offset1:1')
        t = a(f'ds_read2st64_b32 {vr(R+2,2)}, v{vt0} offset0:2 offset1:3')
        a(f's_cmp_eq_u32 s{sW}, 1')
        a('s_cselect_b64 vcc, -1, 0')
        a(f'v_cndmask_b32 v{vt2}, v{UC+2}, v{UC+5}, vcc')
        a(f's_cmp_eq_u32 s{sW}, 2')
        a('s_cselect_b64 vcc, -1, 0')
        a(f'v_cndmask_b32 v{vt2}, v{vt2}, v{UC+8}, vcc')
        a.wait(t)
        a(f'v_add_f32 v{R}, v{R}, v{R+1}')
        a(f'v_add_f32 v{R+2}, v{R+2}, v{R+3}')
        a(f'v_add_f32 v{R}, v{R}, v{R+2}')
        a(f'v_cvt_pk_bf16_f32 v{R+1}, v{R}, v{R}')
        a(f'v_and_b32 v{R+1}, 0xffff0000, v{R+1}')
        a(f'v_sub_f32 v{R+1}, v{R}, v{R+1}')
        a(f'v_cvt_pk_bf16_f32 v{R+1}, v{R}, v{R+1}')
        a(f'buffer_store_dword v{R+1}, v{vt2}, {sr(S_WS,4)}, 0 offen sc1')
        a(f'v_bfe_u32 v{R+2}, v{vt2}, 7, 3')
        a(f'v_cmp_eq_u32 vcc, 6, v{R+2}')
        a(f'v_mov_b32 v{R+3}, {OOB:#x}')
        a(f'v_cndmask_b32 v{R+2}, v{R+3}, v{vt2}, vcc')
        a(f'buffer_store_dword v{Z}, v{R+2}, {sr(S_WS,4)}, 0 offen offset:128 sc1')
    a.label('L_aug_e')
    a(f's_cmp_lg_u32 s{sW}, 3')
    a('s_cbranch_scc1 L_go_e')
    with cond():
        a(f'v_and_b32 v{vt0}, 7, v{vLANE}')
        a(f'v_lshlrev_b32 v{vt0}, 5, v{vt0}')
        poll(S_DBG, vt0, 0, sleep=2)
    a.label('L_go_e')
    stamp('aug_go') if 'initprof' in OPT else None
    sm = mark()
    for g in range(1, 3):
        xdma(g)
    late_consts()
    stamp('xiss') if 'initprof' in OPT else None
    a.wait(sm, force=True)
    stamp('acked') if 'initprof' in OPT else None
    a.barrier()
    a(f's_cmp_lg_u32 s{sW}, 0')
    a('s_cbranch_scc1 L_ib')
    with cond():
        a(f'v_lshlrev_b32 v{vt0}, 12, v{vLANE}')
        a(f'v_mov_b32 v{vt1}, s{sXID}')
        a(f's_lshl_b32 s{sA}, s2, 4')
        a('s_mov_b64 exec, 15')
        a(f'buffer_store_dword v{vt1}, v{vt0}, {sr(S_WS,4)}, s{sA} offen sc1')
        a('s_mov_b64 exec, -1')
    a.label('L_ib')
    stamp('ibpub')
    xdma(3)
    a(f's_mul_i32 s{sA}, s{sOWN}, 28672')
    a(f's_lshl_b32 s{sB}, s{sOFT}, 6')
    a(f's_add_u32 s{sA}, s{sA}, s{sB}')
    a(f'buffer_load_dwordx4 {vr(vXRES,4)}, v{vROW}, {sr(S_X,4)}, s{sA} offen')
    a(f'buffer_load_dwordx4 {vr(vXRES+4,4)}, v{vROW}, {sr(S_X,4)}, s{sA} offen offset:32')
    a(f'v_lshrrev_b32 v{vt0}, 3, v{vRHO}')
    a(f'v_lshlrev_b32 v{vt0}, 10, v{vt0}')
    a(f'v_and_b32 v{vt1}, 7, v{vRHO}')
    a(f'v_lshl_add_u32 v{vt0}, v{vt1}, 7, v{vt0}')
    a(f'v_add_u32 v{vt0}, s{sH}, v{vt0}')
    a(f'v_bfe_u32 v{vt1}, v{vRHO}, 1, 3')
    a(f'v_xor_b32 v{vt1}, v{vt1}, v{vHI}')
    for q in range(4):
        a(f'v_xor_b32 v{220+q}, {2*q}, v{vt1}')
        a(f'v_lshl_add_u32 v{220+q}, v{220+q}, 4, v{vt0}')
    xr = {}
    a.wait_vm_n(2)
    for ks in range(28):
        xr[ks] = a(f'ds_read_b128 {vr(16+4*ks,4)}, v{220+(ks&3)} offset:{(ks>>2)*4096}')
    S0, S1, Q0, Q1 = 216, 217, 218, 219
    for v in (S0, S1, Q0, Q1):
        a(f'v_mov_b32 v{v}, 0')
    for i in range(0, 112, 2):
        a.wait(xr[i // 4])
        a(f'v_dot2c_f32_bf16 v{S0}, s{sONES}, v{16+i}')
        a(f'v_dot2c_f32_bf16 v{Q0}, v{16+i}, v{16+i}')
        a(f'v_dot2c_f32_bf16 v{S1}, s{sONES}, v{17+i}')
        a(f'v_dot2c_f32_bf16 v{Q1}, v{17+i}, v{17+i}')
    a(f'v_add_f32 v{S0}, v{S0}, v{S1}')
    a(f'v_add_f32 v{S1}, v{Q0}, v{Q1}')
    emit(stats_finish(P1_XAUG))
    stamp('stats')
    a(f's_add_u32 s{sA}, s{sREP}, s{sW1K}')
    poll(S_WS, vL16, f's{sA}', nonzero=True)
    a(f's_and_b32 s{sA}, s2, 7')
    a(f'v_and_b32 v{vt0}, 7, v{vLANE}')
    a(f'v_cmp_eq_u32 {sr(sC,2)}, s{sA}, v{vt0}')
    a(f'v_cmp_ne_u32 vcc, s{sXID}, v254')
    a(f's_and_b64 vcc, vcc, {sr(sC,2)}')
    a(f's_cselect_b32 s{sA}, 1, 0')
    a(f'v_mov_b32 v{vt0}, s{sA}')
    a(f's_lshl_b32 s{sB}, s{sW}, 2')
    a(f's_add_u32 s{sB}, s{sB}, {LDS_BYTES - 16}')
    a(f'v_mov_b32 v{vt1}, s{sB}')
    a(f'ds_write_b32 v{vt1}, v{vt0}')
    a(f'v_mov_b32 v{vt1}, {LDS_BYTES - 16}')
    a.wait_lg0()
    a.barrier()
    a(f'ds_read_b128 {vr(220,4)}, v{vt1}')
    a.wait_lg0()
    a('v_or_b32 v220, v220, v221')
    a('v_or3_b32 v220, v220, v222, v223')
    a(f'v_readfirstlane_b32 s{sA}, v220')
    stamp('ibdone')
    a(f's_cmp_lg_u32 s{sA}, 0')
    a('s_cbranch_scc1 L_slow')


vRSTD, vC2, vISTD = 248, 249, 250
P1_XAUG = 200


def stats_finish(xaug, SB=216):
    S, Q, t0, t1 = SB, SB + 1, SB + 2, SB + 3
    o = [f'v_mov_b32 v{t0}, v{S}',
         f'v_mov_b32 v{t1}, v{Q}',
         f'v_permlane32_swap_b32 v{S}, v{t0}',
         f'v_permlane32_swap_b32 v{Q}, v{t1}',
         f'v_add_f32 v{S}, v{S}, v{t0}',
         f'v_add_f32 v{Q}, v{Q}, v{t1}',
         f'v_mul_f32 v{S}, {INV448:#x}, v{S}',
         f'v_mul_f32 v{Q}, {INV448:#x}, v{Q}',
         f'v_fma_f32 v{Q}, -v{S}, v{S}, v{Q}',
         f'v_max_f32 v{Q}, 0, v{Q}',
         f'v_add_f32 v{Q}, {EPS5:#x}, v{Q}',
         f'v_rsq_f32 v{vRSTD}, v{Q}',
         f'v_cvt_pk_bf16_f32 v{xaug}, -v{S}, -v{S}',
         f'v_mul_f32 v{vISTD}, v{Q}, v{vRSTD}',
         f'v_mul_f32 v{vC2}, {LOG2E:#x}, v{vRSTD}']
    o += [f'v_mov_b32 v{xaug+i}, v{xaug}' for i in range(1, 4)]
    return o


def stats_sum(SB=216):
    o = []
    for i in range(1, 7):
        o.append(f'v_add_f32 v{SB}, v{SB}, v{SB+2*i}')
        o.append(f'v_add_f32 v{SB+1}, v{SB+1}, v{SB+2*i+1}')
    return o


def x_prep(fl, xb, stb):
    a(f'v_and_b32 v240, 15, v{vLANE}')
    a(f'v_min_u32 v240, 13, v240')
    a(f'v_lshlrev_b32 v240, 5, v240')
    a(f's_lshl_b32 s{sC}, s{sTILE1}, 9')
    a(f's_add_u32 s{sC}, s{sC}, {fl}')
    a(f's_mul_i32 s{sD}, s{sTILE1}, {14*256}')
    a(f's_add_u32 s{sD}, s{sD}, {stb}')
    a(f's_mul_i32 s{sE}, s{sTILE1}, {28*K}')
    a(f's_add_u32 s{sE}, s{sE}, {xb}')
    a(f'v_and_b32 v241, 31, v{vLANE}')
    a(f'v_lshlrev_b32 v241, 3, v241')
    a(f'v_lshrrev_b32 v242, 5, v{vLANE}')
    a(f'v_mul_u32_u24 v242, {7*256}, v242')
    a(f'v_add_u32 v241, v241, v242')


def x_load(ks):
    if ks % 4 == 0 and ks:
        a(f's_add_u32 s{sE}, s{sE}, 4096')
    return a(f'buffer_load_dwordx4 {vr(16+4*ks,4)}, v{vL16}, {sr(S_DT,4)}, s{sE} offen offset:{(ks%4)*K} {LL()}')


def st_loads(SB=216):
    t = None
    for i in range(7):
        t = a(f'buffer_load_dwordx2 {vr(SB+2*i,2)}, v241, {sr(S_DT,4)}, s{sD} offen offset:{i*256} sc1')
    return t


def read_aug(dst, addr, tmp):
    a(f'v_add_u32 v{tmp}, {addr:#x}, v{vAUG}')
    a(f'ds_read2_b32 {vr(dst,2)}, v{tmp} offset0:0 offset1:32')
    return a(f'ds_read2_b32 {vr(dst+2,2)}, v{tmp} offset0:64 offset1:96')


def read_frag(dst, addr):
    v, off = lds_addr(addr)
    return a(f'ds_read_b128 {vr(dst,4)}, v{v} offset:{off}')


def wfrag_items(regfn, ssrc, lo, hi, va, vb, stmp):
    items = []
    for i, n in enumerate(range(lo, hi)):
        for b in range(2):
            it = []
            if i % 2 == 0 and b == 0:
                it.append(f's_add_u32 s{stmp}, s{ssrc}, {n*2048}')
            it.append(f'buffer_load_dwordx4 {regfn(n,b)}, v{(va,vb)[b]}, {sr(S_WS,4)}, s{stmp} offen offset:{(i%2)*2048} {WSC}')
            items.append(it)
    return items


def slot_addr_setup(va, vb):
    a(f's_and_b32 s{sA}, s{sW1K}, 0x400')
    a(f'v_add_u32 v{va}, s{sA}, v{vL16}')
    a(f'v_xor_b32 v{vb}, 0x400, v{va}')


def cost(x):
    op = x.split()[0]
    return 2 if op.startswith(('v_exp', 'v_rcp', 'v_rsq')) else 1


def drip(q, budget):
    while q and budget >= cost(q[0]):
        x = q.pop(0)
        budget -= cost(x)
        a(x)


CAP = int(OPT.get('cap', 6))
PRET = int(OPT.get('pret', 1))
PUBD = int(OPT.get('pubd', 24))
S0T = int(OPT.get('s0t', 2))


def shadow(mem, vq, cap=None, pop=None):
    n0 = len(a.ins)
    for f in mem:
        if f is None:
            continue
        if callable(f):
            f()
        else:
            emit(f)
    budget = (CAP if cap is None else cap) - (len(a.ins) - n0)
    while vq and budget >= cost(vq[0]):
        budget -= cost(vq[0])
        if pop:
            pop()
        else:
            a(vq.pop(0))


def split_item(it):
    if it is None:
        return None, None
    return it[:-1], it[-1:]


def phase1(first):
    ACK, ACV, ACQ = 128, 144, 160
    WR = 176
    XAUG = P1_XAUG
    RR, RR2 = ACQ, 216
    KVD = 232
    vD1, vSA, vSB = 204, 206, 207
    vRSW, vRSR, vOH = 208, 209, 210
    PRE = XPRE
    xt = {}
    vq = []
    if first:
        dma_setup(vD1, sW1SRC, 0, 0)
        for it in dma_items(vD1, 0, 88, 2):
            emit(it)
        w1m = mark()
        slot_addr_setup(vSA, vSB)
        bg = wfrag_items(lambda n, b: ar(8 * n + 4 * b, 4), sWDSRC, 0, 4, vSA, vSB, sF)
    else:
        x_prep(F0, *((X1, ST1) if ALIAS() else (X0, ST0)))
        slot_addr_setup(vSA, vSB)
        bg = []
    a(f's_lshl_b32 s{sA}, s{sW}, 8')
    a(f's_add_u32 s{sA}, s{sA}, {LRS}')
    a(f'v_and_b32 v{vRSW}, 31, v{vLANE}')
    a(f'v_lshl_add_u32 v{vRSW}, v{vRSW}, 2, s{sA}')
    a(f'v_lshrrev_b32 v{vRSR}, 5, v{vLANE}')
    a(f'v_lshl_add_u32 v{vRSR}, v{vRSR}, 4, s{sA}')
    a(f'v_and_b32 v{vOH}, 27, v{vLANE}')
    a(f'v_cmp_eq_u32 vcc, 26, v{vOH}')
    a(f'v_cndmask_b32 v{vOH}, 0, 1.0, vcc')
    a(f'v_mov_b32 v{vOH+1}, v{vOH}')
    dma_setup(vD1, sW3SRC, 0, LALPHA)
    bg += dma_items(vD1, LALPHA, 56, 2)
    if ALIAS() and PRET and first:
        a(f's_lshl_b32 s{sA}, s{sTILE1}, 15')
        a(f's_lshl_b32 s{sB}, s{sHC}, 11')
        a(f's_add_u32 s{sA}, s{sA}, s{sB}')
        a(f's_add_u32 s{sA}, s{sA}, {PQ}')
        out_addr(X1, ST1, F2)
        a(f'v_and_b32 v213, 15, v{vLANE}')
        a(f'v_lshlrev_b32 v213, 7, v213')
        a(f'v_mov_b32 v212, s{sA}')
        a(f'v_mov_b32 v214, s{sG}')
        a(f'v_cmp_lt_u32 vcc, 15, v{vLANE}')
        a(f'v_cndmask_b32 v212, v212, v214, vcc')
        a(f'v_add_u32 v212, v212, v213')
        a(f'v_and_b32 v213, 128, v213')
        a(f'v_add_u32 v213, s{sH}, v213')
        a(f'v_cmp_lt_u32 vcc, 31, v{vLANE}')
        a(f'v_cndmask_b32 v212, v212, v213, vcc')
        a(f's_mul_i32 s{sA}, s{sTILE1}, {112*K}')
        a(f's_mul_i32 s{sB}, s{sHC}, {7*K}')
        a(f's_add_u32 s{sA}, s{sA}, s{sB}')
        a(f's_add_u32 s{sA}, s{sA}, {HB}')
        a(f'v_min_u32 v213, 55, v{vLANE}')
        a(f'v_lshl_add_u32 v213, v213, 7, s{sA}')
        bg = [[f'buffer_load_dword v205, v212, {sr(S_DT,4)}, 0 offen sc1'],
              [f'buffer_load_dword v205, v213, {sr(S_DT,4)}, 0 offen sc1']][:(1 if HSC else 2)] + bg
    if not first:
        poll(S_LY, 240, f's{sC}')
        stamp('p1poll')
        for ks in range(2):
            xt[ks] = x_load(ks)
        stt = st_loads()
        a.barrier()
    rt = {}
    stage = (0, 8, 16, 24) if first else ()

    def rd(ks, tl):
        if ks > 28:
            return
        if ks in stage and tl == 0:
            need_ops = 22 if ks == 24 else 2 * ((2 * (ks + 8) + 7) // 8)
            a.wait(('vm', w1m[1] - 22 + need_ops))
            a.barrier()
        d = WR + 8 * (ks % 3) + 4 * tl
        addr = (2 * ks + tl) * K
        rt[ks] = read_frag(d, addr) if ks < 28 else read_aug(d, addr, 252 + tl)
    for ks in range(2):
        rd(ks, 0); rd(ks, 1)
    if not first:
        for ks in range(2, PRE):
            xt[ks] = x_load(ks)
    rr = {}

    def xl(ks):
        xt[ks] = x_load(ks)

    def rs_write():
        a(f'ds_write2_b32 v{vRSW}, v{vRSTD}, v{vC2} offset0:0 offset1:32')

    def rs_read(j):
        a(f'ds_read_b128 {vr(RR+4*j,4)}, v{vRSR} offset:{32*j}')
        rr[0] = a(f'ds_read_b128 {vr(RR2+4*j,4)}, v{vRSR} offset:{128+32*j}')
    for ks in range(29):
        if not first and ks == 3:
            a.wait(stt)
            vq += stats_sum() + stats_finish(XAUG)
        a.wait(rt[ks], xt.get(ks))
        X = vr(16 + 4 * ks, 4) if ks < 28 else vr(XAUG, 4)
        c = (lambda r: '0' if ks == 0 else vr(r, 16))
        it = None
        if not first and ks + PRE < 28:
            pre, main = None, (lambda k_=ks + PRE: xl(k_))
        else:
            pre, main = split_item(bg.pop(0) if bg and (ks >= 4 or not first) else None)
        a(f'{MF} {vr(ACK,16)}, {X}, {vr(WR+8*(ks%3),4)}, {c(ACK)}')
        shadow([pre, lambda: rd(ks + 2, 0), main], vq)
        a(f'{MF} {vr(ACV,16)}, {X}, {vr(WR+8*(ks%3)+4,4)}, {c(ACV)}')
        extra = None
        if ks == 23:
            assert not vq
            extra = rs_write
        if 24 <= ks <= 27:
            extra = (lambda j=ks - 24: rs_read(j))
        shadow([lambda: rd(ks + 2, 1), extra], vq)
    assert not bg
    stamp('p1kv')
    qt = {}

    def rq(ks):
        if ks > 28:
            return
        d = WR + 4 * (ks % 6)
        addr = (58 + ks) * K
        qt[ks] = read_frag(d, addr) if ks < 28 else read_aug(d, addr, 252)
    for ks in range(4):
        rq(ks)
    a(f's_lshl_b32 s{sB}, s{sHC}, 12')
    a(f's_add_u32 s{sB}, s{sB}, s{sW1K}')
    a(f's_add_u32 s{sA}, s{sW4K}, {LKVS}')
    a(f'v_add_u32 v{vRSW}, s{sA}, v{vL16}')
    a(f's_add_u32 s{sA}, s{sW1K}, {LKVS}')
    a(f'v_add_u32 v{vRSR}, s{sA}, v{vL4}')
    a.wait(rr[0])
    for r in range(0, 16, 2):
        a(f'v_pk_mul_f32 {vr(ACK+r,2)}, {vr(ACK+r,2)}, {vr(RR2+r,2)}')
    for r in range(16):
        a(f'v_exp_f32_e64 v{RR2+r}, v{ACK+r} clamp')
        a(f'v_max_f32 v{ACK+r}, 0, v{ACK+r}')
    for r in range(0, 16, 2):
        a(f'v_pk_fma_f32 {vr(ACV+r,2)}, {vr(ACV+r,2)}, {vr(RR+r,2)}, {vr(vOH,2)}')
        a(f'v_pk_fma_f32 {vr(RR2+r,2)}, {vr(ACK+r,2)}, {sr(sLN2,2)}, {vr(RR2+r,2)}')
    for r in range(0, 16, 2):
        a(f'v_pk_add_f32 {vr(RR2+r,2)}, {vr(RR2+r,2)}, {sr(sEPS6,2)}')
        a(f'v_cvt_pk_bf16_f32 v{ACV+r//2}, v{ACV+r}, v{ACV+r+1}')
    for m in range(8):
        a(f'v_cvt_pk_bf16_f32 v{ACK+m}, v{RR2+2*m}, v{RR2+2*m+1}')
    a(f'{MF} {vr(KVD,16)}, {vr(ACK,4)}, {vr(ACV,4)}, 0')
    a(f'{MF} {vr(KVD,16)}, {vr(ACK+4,4)}, {vr(ACV+4,4)}, {vr(KVD,16)}')
    wo = wfrag_items(lambda n, b: vr(16 + 8 * n + 4 * b, 4), sWOSRC, 0, 8, vSA, vSB, sF)

    def qstep(ks, mem=(), vq_=None):
        a.wait(qt[ks])
        X = vr(16 + 4 * ks, 4) if ks < 28 else vr(XAUG, 4)
        a(f'{MF} {vr(ACQ,16)}, {vr(WR+4*(ks%6),4)}, {X}, {"0" if ks == 0 else vr(ACQ,16)}')
        shadow([lambda: rq(ks + 4)] + list(mem), vq_ if vq_ is not None else [])
    qstep(0)
    qstep(1)
    for q in range(4):
        kw = a(f'ds_write_b128 v{vRSW}, {vr(KVD+4*q,4)} offset:{q*K}')
    qstep(2)
    a.wait(kw)
    a.barrier()
    RED = RR2
    for wp in range(4):
        a(f'ds_read2st64_b32 {vr(RED+4*wp,2)}, v{vRSR} offset0:{16*wp} offset1:{16*wp+1}')
        t = a(f'ds_read2st64_b32 {vr(RED+4*wp+2,2)}, v{vRSR} offset0:{16*wp+2} offset1:{16*wp+3}')
    qstep(3)
    a.wait(t)
    for i in range(4):
        a(f'v_add_f32 v{RED+i}, v{RED+i}, v{RED+4+i}')
        a(f'v_add_f32 v{RED+8+i}, v{RED+8+i}, v{RED+12+i}')
    for i in range(4):
        a(f'v_add_f32 v{RED+i}, v{RED+i}, v{RED+8+i}')
    for i in range(4):
        at = a(f'buffer_atomic_add_f32 v{RED+i}, v{vL4}, {sr(S_LY,4)}, s{sB} offen offset:{i*256}')
    stamp('p1atom')
    vq = [f's_lshl_b32 s{sG}, s{sHC}, 8',
          f's_lshl_b32 s{sB}, s{sRBG}, 4',
          f's_add_u32 s{sG}, s{sG}, s{sB}',
          f's_add_u32 s{sG}, s{sG}, {F1}',
          f's_lshl_b32 s{sA}, s{sTILE1}, 15',
          f's_lshl_b32 s{sB}, s{sHC}, 11',
          f's_add_u32 s{sA}, s{sA}, s{sB}',
          f's_add_u32 s{sA}, s{sA}, {PQ}',
          f's_lshl_b32 s{sH}, s{sTILE1}, 9',
          f's_lshl_b32 s{sB}, s{sHC}, 5',
          f's_add_u32 s{sH}, s{sH}, s{sB}',
          f's_add_u32 s{sH}, s{sH}, {F1Q}',
          f'v_lshlrev_b32 v{vRSW}, 12, v{vLANE}',
          f'v_mov_b32 v{vRSR}, 1',
          f'v_mov_b32 v{vC2+2}, v{vC2}',
          f'v_mov_b32 v{ACK+7}, 0']
    for ks in range(4, 29):
        qstep(ks, [wo.pop(0)] if ks % 2 == 0 else [], vq)
    stamp('p1q')
    a.wait(at)
    a.barrier()
    S = a.uid('Lf1')
    a(f's_cmp_lg_u32 s{sW}, 3')
    a(f's_cbranch_scc1 {S}')
    with cond():
        a('s_mov_b64 exec, 15')
        a(f'buffer_store_dword v{vRSR}, v{vRSW}, {sr(S_LY,4)}, s{sG} offen sc1')
        a('s_mov_b64 exec, -1')
    a.label(S)
    a('s_nop 4')
    stamp('p1pub')
    T = RR2
    for r in range(0, 14, 2):
        a(f'v_pk_mul_f32 {vr(ACQ+r,2)}, {vr(ACQ+r,2)}, {vr(vC2+1,2)} op_sel:[0,1] op_sel_hi:[1,1]')
    for r in range(14):
        a(f'v_exp_f32_e64 v{T+r}, v{ACQ+r} clamp')
        a(f'v_max_f32 v{ACQ+r}, 0, v{ACQ+r}')
    for r in range(0, 14, 2):
        a(f'v_pk_fma_f32 {vr(T+r,2)}, {vr(ACQ+r,2)}, {sr(sLN2,2)}, {vr(T+r,2)}')
    for r in range(0, 14, 2):
        a(f'v_pk_add_f32 {vr(T+r,2)}, {vr(T+r,2)}, {sr(sEPS6,2)}')
    for m in range(7):
        a(f'v_cvt_pk_bf16_f32 v{ACK+m}, v{T+2*m}, v{T+2*m+1}')
    a(f'buffer_store_dwordx4 {vr(ACK,4)}, v{vL16}, {sr(S_DT,4)}, s{sA} offen {XS()}')
    pst = a(f'buffer_store_dwordx4 {vr(ACK+4,4)}, v{vL16}, {sr(S_DT,4)}, s{sA} offen offset:1024 {XS()}')
    for it in wo:
        emit(it)
    a.wait(pst)
    emit(flag_store(S_LY, f's{sH}'))
    stamp('p1end')


ACC0, ACC1 = 208, 224
AAC2, AAC3 = 224, 240


def accs(s):
    return [vr(ACC0, 16), vr(ACC1, 16), ar(AAC2, 16), ar(AAC3, 16)][s]


def red_setup(base, RA):
    o = []
    for s in (1, 2, 3):
        o += [f's_xor_b32 s{sA}, s{sW}, {s}',
              f's_mul_i32 s{sA}, s{sA}, 12288',
              f'v_add_u32 v{RA+s}, s{sA}, v{vL16b}']
    o += [f's_mul_i32 s{sA}, s{sW}, 12288',
          f's_add_u32 s{sA}, s{sA}, {base}',
          f'v_add_u32 v{RA}, s{sA}, v{vL16}']
    for s in (1, 2, 3):
        o.append(f'v_add_u32 v{RA+s}, {(base + (s-1)*4096 - 65536) & 0xffffffff:#x}, v{RA+s}')
    return o


def red_write(s, RA):
    o = []
    for q in range(4):
        d = [None, vr(ACC1 + 4 * q, 4), ar(AAC2 + 4 * q, 4), ar(AAC3 + 4 * q, 4)][s]
        o.append(f'ds_write_b128 v{RA+s}, {d} offset:{q*K}')
    return o


def out_addr(xbase, stbase, flbase):
    a(f's_mul_i32 s{sG}, s{sOWN}, {28*K}')
    a(f's_lshl_b32 s{sB}, s{sOFT}, 11')
    a(f's_add_u32 s{sG}, s{sG}, s{sB}')
    a(f's_add_u32 s{sG}, s{sG}, {xbase}')
    a(f's_mul_i32 s{sH}, s{sOWN}, {14*256}')
    a(f's_lshl_b32 s{sB}, s{sOFT}, 8')
    a(f's_add_u32 s{sH}, s{sH}, s{sB}')
    a(f's_add_u32 s{sH}, s{sH}, {stbase}')
    a(f's_lshl_b32 s{sI}, s{sOWN}, 9')
    a(f's_lshl_b32 s{sB}, s{sOFT}, 5')
    a(f's_add_u32 s{sI}, s{sI}, s{sB}')
    a(f's_add_u32 s{sI}, s{sI}, {flbase}')


def res_unpack(RU):
    o = []
    for m in range(8):
        o.append(f'v_lshlrev_b32 v{RU+2*m}, 16, v{vXRES+m}')
        o.append(f'v_and_b32 v{RU+2*m+1}, 0xffff0000, v{vXRES+m}')
    return o


def red_finish(final_branch, RB, RU, RA, nm):
    a.wait_lg0()
    a.barrier()
    toks = []
    for i in range(12):
        toks.append(a(f'ds_read_b128 {vr(RB+4*i,4)}, v{RA} offset:{i*K}'))
    for r in range(0, 16, 2):
        a(f'v_pk_add_f32 {vr(ACC0+r,2)}, {vr(ACC0+r,2)}, {vr(RU+r,2)}')
    for s in range(3):
        a.wait(toks[4 * s + 3])
        for r in range(0, 16, 2):
            a(f'v_pk_add_f32 {vr(ACC0+r,2)}, {vr(ACC0+r,2)}, {vr(RB+16*s+r,2)}')
    for m in range(8):
        a(f'v_cvt_pk_bf16_f32 v{vXRES+m}, v{ACC0+2*m}, v{ACC0+2*m+1}')
    if final_branch:
        a(f's_cmp_lg_u32 s{sL}, 0')
        a('s_cbranch_scc1 ' + LB_('L_final'))
    a(f'buffer_store_dwordx4 {vr(vXRES,4)}, v{vL16}, {sr(S_DT,4)}, s{sG} offen {XS()}')
    a(f'buffer_store_dwordx4 {vr(vXRES+4,4)}, v{vL16}, {sr(S_DT,4)}, s{sG} offen offset:1024 {XS()}')
    S, Q, t0, t1, tl = RU, RU + 1, RU + 2, RU + 3, RU + 4
    a(f'v_mov_b32 v{S}, 0')
    a(f'v_mov_b32 v{Q}, 0')
    for m in range(8):
        a(f'v_dot2c_f32_bf16 v{S}, s{sONES}, v{vXRES+m}')
        a(f'v_dot2c_f32_bf16 v{Q}, v{vXRES+m}, v{vXRES+m}')
    a(f'v_lshlrev_b32 v{tl}, 3, v{vLANE}')
    a(f'v_mov_b32 v{t0}, v{S}')
    a(f'v_mov_b32 v{t1}, v{Q}')
    a(f'v_permlane32_swap_b32 v{S}, v{t0}')
    a(f'v_permlane32_swap_b32 v{Q}, v{t1}')
    a(f'v_pk_add_f32 {vr(S,2)}, {vr(S,2)}, {vr(t0,2)}')
    a('s_mov_b32 exec_hi, 0')
    a(f'buffer_store_dwordx2 {vr(S,2)}, v{tl}, {sr(S_DT,4)}, s{sH} offen {XS()}')
    a('s_mov_b64 exec, -1')
    if TOUCH:
        a(f'v_and_b32 v246, 15, v{vLANE}')
        a(f'v_lshlrev_b32 v246, 7, v246')
    stamp(nm + 'st')
    a.wait_vm0()
    emit(flag_store(S_LY, f's{sI}'))
    if TOUCH:
        a(f'buffer_load_dword v247, v246, {sr(S_LY,4)}, s{sG} offen sc1')


def phase2():
    WO, PQR, KVR = 16, 80, 144
    ODS = (240, 160)
    KB = (144, 152, 176, 192)
    vD2 = 7 if not PROFILE else 5
    vD2 = vROW
    dma_setup(vD2, sW3SRC, 56 * K, LBETA)
    beta = dma_items(vD2, LBETA, 56, 2)
    a(f's_cmp_ge_u32 s{sJ}, 28')
    a('s_cbranch_scc0 ' + LB_('L_p2go'))
    with cond():
        for it in beta:
            emit(it)
    a('s_branch ' + LB_('L_p2skip'))
    a.label(LB_('L_p2go'))
    with cond():
        a(f'v_and_b32 v240, 3, v{vLANE}')
        a(f'v_lshlrev_b32 v240, 5, v240')
        a(f'v_bfe_u32 v241, v{vLANE}, 2, 1')
        a(f'v_lshl_add_u32 v240, v241, 9, v240')
        a(f's_lshl_b32 s{sC}, s{sTILE2}, 9')
        a(f's_lshl_b32 s{sA}, s{sW}, 7')
        a(f's_add_u32 s{sC}, s{sC}, s{sA}')
        a(f's_add_u32 s{sC}, s{sC}, {F1Q}')
        a(f's_lshl_b32 s{sE}, s{sOWN}, 15')
        a(f's_lshl_b32 s{sA}, s{sW}, 13')
        a(f's_add_u32 s{sE}, s{sE}, s{sA}')
        a(f's_add_u32 s{sE}, s{sE}, {PQ}')
        a(f's_xor_b32 s{sF}, s{sE}, 0x8000')
        out_addr(X1, ST1, F2)
        poll(S_LY, 240, f's{sC}')
        stamp('p2pq')
        a(f's_add_u32 s{sC}, s{sREP}, s{sW1K}')
        a(f's_add_u32 s{sC}, s{sC}, {F1}')
        a(f's_lshl_b32 s{sD}, s{sW}, 14')
        for hl in range(4):
            for aa, s in ((0, sE), (1, sF)):
                for ks in range(2):
                    a(f'buffer_load_dwordx4 {vr(PQR+16*hl+8*aa+4*ks,4)}, v{vL16}, {sr(S_DT,4)}, s{s} offen offset:{(hl%2)*2048+ks*K} {LL()}')
            if hl == 1:
                a(f's_add_u32 s{sE}, s{sE}, 4096')
                a(f's_add_u32 s{sF}, s{sF}, 4096')
                fchk = a(f'buffer_load_dword v253, v{vL16}, {sr(S_LY,4)}, s{sC} offen sc1')
        a.wait(fchk)
        OKL = a.uid('Lok')
        a(f'v_cmp_ne_u32 vcc, 1, v253')
        a('s_cmp_eq_u64 vcc, 0')
        a(f's_cbranch_scc1 {OKL}')
        with cond():
            poll(S_LY, vL16, f's{sC}')
        a.label(OKL)
        stamp('p2poll')
        kt = {}
        for hl in range(4):
            for q in range(4):
                kt[hl] = a(f'buffer_load_dwordx4 {vr(KVR+16*hl+4*q,4)}, v{vL16}, {sr(S_LY,4)}, s{sD} offen offset:{q*K} sc1')
            if hl < 3:
                a(f's_add_u32 s{sD}, s{sD}, 4096')

        def cvt(hl):
            return [f'v_cvt_pk_bf16_f32 v{KB[hl]+m}, v{KVR+16*hl+2*m}, v{KVR+16*hl+2*m+1}' for m in range(8)]
        units = [(hl, aa) for hl in range(4) for aa in (1, 0)]

        def oM(u):
            hl, aa = units[u]
            D = vr(ODS[u % 2], 16)
            P = PQR + 16 * hl + 8 * aa
            return [f'{MF} {D}, {vr(KB[hl],4)}, {vr(P,4)}, 0',
                    f'{MF} {D}, {vr(KB[hl]+4,4)}, {vr(P+4,4)}, {D}']

        def scale(u):
            hl, aa = units[u]
            D = ODS[u % 2]
            P = PQR + 16 * hl + 8 * aa
            o = [f'v_add_f32 v{D+14}, s{sEPS6}, v{D+14}',
                 f'v_rcp_f32 v{D+14}, v{D+14}',
                 f'v_mov_b32 v{P+7}, 0']
            for m in range(7):
                o.append(f'v_mul_f32 v{D+2*m}, v{D+2*m}, v{D+14}')
                o.append(f'v_mul_f32 v{D+2*m+1}, v{D+2*m+1}, v{D+14}')
                o.append(f'v_cvt_pk_bf16_f32 v{P+m}, v{D+2*m}, v{D+2*m+1}')
            return o

        def woM(u):
            hl, aa = units[u]
            P = PQR + 16 * hl + 8 * aa
            o = []
            for b in ((1, 0) if u == 7 else (0, 1)):
                for ks in range(2):
                    D = accs(2 * aa + b)
                    c = '0' if (hl == 0 and ks == 0) else D
                    o.append(f'{MF} {D}, {vr(WO+16*hl+8*ks+4*b,4)}, {vr(P+4*ks,4)}, {c}')
            return o
        a.wait(kt[0])
        emit(cvt(0))
        emit(oM(0))
        a.wait(kt[1])
        emit(cvt(1))
        m1 = oM(1)
        vs = scale(0)
        a(m1[0]); shadow([], vs)
        a(m1[1]); emit(vs)
        RU = KVR
        RA = 184
        for u in range(8):
            ms = (oM(u + 2) if u + 2 < 8 else []) + woM(u)
            vs = scale(u + 1) if u + 1 < 8 else []
            wr = red_write(2, RA) + red_write(3, RA) if u == 7 else []
            if u == 1:
                a.wait(kt[2])
                vs = vs + cvt(2)
            if u == 3:
                a.wait(kt[3])
                vs = vs + cvt(3)
            if u == 0:
                pass
            if u == 2:
                vs = vs + red_setup(LB, RA)[:9]
            if u == 4:
                vs = vs + red_setup(LB, RA)[9:] + res_unpack(RU)[:4]
            if u == 5:
                vs = vs + res_unpack(RU)[4:12]
            if u == 7:
                vs = res_unpack(RU)[12:]
            for k_, m in enumerate(ms):
                a(m)
                mem = []
                if beta and k_ % 2 == 0 and u < 6:
                    mem.append(beta.pop(0))
                if wr and k_ >= 1:
                    mem.append(wr[:3]); wr = wr[3:]
                shadow(mem, vs)
            emit(vs)
        assert not beta
        stamp('p2mfma')
        emit(red_write(1, RA))
        red_finish(False, 80, RU, RA, 'p2')
    a.label(LB_('L_p2skip'))
    stamp('p2end')


def phase34():
    ACC = 128
    WR, NW = 192, 8
    SB = 176
    XAUG = 224
    vD1, vD3, vSA, vSB = 228, 229, 230, 231
    vD2 = 243
    vFL, vHA, vHB, vFV = 244, 245, 246, 247
    PRE = XPRE
    HR, NH = 16, 28
    x_prep(F2, X1, ST1)
    dma_setup(vD3, sW3SRC, 112 * K, LB)
    dma_setup(vD1, sW3SRC, 147 * K, LALPHA)
    a(f's_cmp_lg_u32 s{sL}, 0')
    a(f's_cselect_b32 s{sA}, {OOB:#x}, s{sW1SRC}')
    a(f'v_add_u32 v{vD2}, s{sA}, v{vL16}')
    slot_addr_setup(vSA, vSB)
    a(f's_mul_i32 s{sG}, s{sTILE1}, {112*K}')
    a(f's_mul_i32 s{sA}, s{sHC}, {7*K}')
    a(f's_add_u32 s{sG}, s{sG}, s{sA}')
    a(f's_add_u32 s{sG}, s{sG}, {HB}')
    a(f's_add_u32 s{sH}, s{sG}, 4096')
    a(f's_lshl_b32 s{sU}, s{sTILE1}, 9')
    a(f's_lshl_b32 s{sA}, s{sHC}, 5')
    a(f's_add_u32 s{sU}, s{sU}, s{sA}')
    a(f's_add_u32 s{sU}, s{sU}, {F3}')
    a(f'v_and_b32 v{vFL}, 3, v{vLANE}')
    a(f'v_lshlrev_b32 v{vFL}, 5, v{vFL}')
    a(f'v_bfe_u32 v{vHA}, v{vLANE}, 2, 1')
    a(f'v_lshl_add_u32 v{vFL}, v{vHA}, 9, v{vFL}')
    a(f's_lshl_b32 s{sA}, s{sTILE2}, 9')
    a(f's_lshl_b32 s{sB}, s{sW}, 7')
    a(f's_add_u32 s{sA}, s{sA}, s{sB}')
    a(f's_add_u32 s{sA}, s{sA}, {F3}')
    a(f'v_add_u32 v{vFL}, s{sA}, v{vFL}')
    a(f's_mul_i32 s{sB}, s{sW}, {28*K}')
    a(f's_add_u32 s{sB}, s{sB}, {HB}')
    a(f's_mul_i32 s{sA}, s{sOWN}, {112*K}')
    a(f's_add_u32 s{sA}, s{sA}, s{sB}')
    a(f'v_add_u32 v{vHA}, s{sA}, v{vL16}')
    a(f's_xor_b32 s{sA}, s{sOWN}, 1')
    a(f's_mul_i32 s{sA}, s{sA}, {112*K}')
    a(f's_add_u32 s{sA}, s{sA}, s{sB}')
    a(f'v_add_u32 v{vHB}, s{sA}, v{vL16}')
    LOOK = 6
    steps = [(t, ks) for ks in range(28) for t in range(2)]
    steps += [(2, ks) for ks in range(LOOK)] + [(0, 28), (1, 28)] + [(2, ks) for ks in range(LOOK, 29)]
    for t in range(3, 7):
        steps += [(t, ks) for ks in range(29)]

    def addr(t, ks):
        if ks == 28 and t < 4:
            return LB + t * K
        if t < 2:
            return LALPHA + (2 * ks + t) * K
        if t < 4:
            return LBETA + ((t - 2) * 28 + ks) * K
        if t == 4:
            return LB + (4 + ks) * K
        if t == 5:
            return LALPHA + ks * K
        return LALPHA + (29 + ks) * K if ks < 27 else LB + (33 + ks - 27) * K
    n = len(steps)
    accof = {0: 0, 1: 1, 2: 2, 3: 3, 4: 0, 5: 1, 6: 2}
    rt, xt, hst, ht, chk = {}, {}, {}, {}, {}

    def epi(t):
        D = ACC + 16 * accof[t]
        o = []
        for r in range(8):
            o.append(f'v_mul_f32 v{D+r}, v{D+r}, v{vC2}')
        for r in range(8):
            o.append(f'v_exp_f32_e64 v{D+r}, -v{D+r}')
            if r >= 2:
                o.append(f'v_fma_f32 v{D+r-2}, v{D+r-2}, v{vISTD}, v{vISTD}')
        for r in (6, 7):
            o.append(f'v_fma_f32 v{D+r}, v{D+r}, v{vISTD}, v{vISTD}')
        for r in range(8):
            o.append(f'v_rcp_f32 v{D+r}, v{D+r}')
            if r >= 2:
                o.append(f'v_mul_f32 v{D+r-2}, v{D+r-2}, v{D+8+r-2}')
        for r in (6, 7):
            o.append(f'v_mul_f32 v{D+r}, v{D+r}, v{D+8+r}')
        for m in range(4):
            o.append(f'v_cvt_pk_bf16_f32 v{D+8+m}, v{D+2*m}, v{D+2*m+1}')
        s = sG if t < 4 else sH
        o.append(f'buffer_store_dwordx4 {vr(D+8,4)}, v{vL16}, {sr(S_DT,4)}, s{s} offen offset:{(t%4)*K} {HS()} ; H{t}')
        return o

    def issue_rd(i):
        if i >= n:
            return
        t, ks = steps[i]
        d = WR + 4 * (i % NW)
        rt[i] = read_frag(d, addr(t, ks)) if ks < 28 else read_aug(d, addr(t, ks), 251 + (i % 3))

    def flag_ld(stg):
        chk[stg] = a(f'buffer_load_dword v{vFV}, v{vFL}, {sr(S_LY,4)}, 0 offen offset:{4*stg} sc1')

    def flag_chk(stg):
        a.wait(chk[stg])
        OKL = a.uid('Lok')
        a(f'v_cmp_ne_u32 vcc, 1, v{vFV}')
        a('s_cmp_eq_u64 vcc, 0')
        a(f's_cbranch_scc1 {OKL}')
        with cond():
            poll(S_LY, vFL, 0, imm=4 * stg)
        a.label(OKL)

    def hld(idx, chkflags=True):
        if idx >= 56:
            return
        B1 = 8 * (S0T + 1)
        if chkflags and idx in (max(B1 - 6, int(OPT.get('npre', 18))), 48 - 6):
            flag_ld(1 if idx < B1 else 2)
        if chkflags and idx in (B1, 48):
            flag_chk(1 if idx == B1 else 2)
        n_, aa = idx // 2, idx % 2
        t, cc = n_ // 4, n_ % 4
        if aa == 0:
            a(f's_mov_b32 s{sE}, {(cc*7+t)*K}')
        ht[idx] = a(f'buffer_load_dwordx4 {vr(HR+4*(idx%NH),4)}, v{(vHA,vHB)[aa]}, {sr(S_DT,4)}, s{sE} offen {LL()}')

    a.wait_lg0()
    poll(S_LY, 240, f's{sC}')
    stamp('p3poll')
    for ks in range(2):
        xt[ks] = x_load(ks)
    stt = st_loads(SB)
    a.barrier()
    for i in range(LOOK):
        issue_rd(i)
    for ks in range(2, PRE):
        xt[ks] = x_load(ks)
    fill, owner = [], []
    done_at = {}
    bg = dma_items(vD3, LB, 36, 1) + ['M3'] + \
        ([] if 'nowd' in OPT else wfrag_items(lambda n_, b: ar(8 * n_ + 4 * b, 4), sWDSRC, 4, 28, vSA, vSB, sF))
    marks = {}
    cur = [0]

    def pop():
        x = fill.pop(0); o = owner.pop(0)
        t = a(x)
        if '; H' in x:
            hst[o] = (t, cur[0])

    def pub(stg, last_tile):
        a.wait(hst[last_tile][0])
        emit(flag_store(S_LY, f's{sU}', imm=4 * stg))

    def xl(ks):
        xt[ks] = x_load(ks)

    def next_bg():
        while bg and isinstance(bg[0], str):
            marks[bg.pop(0)] = mark()
        return bg.pop(0) if bg else None
    pub0 = False
    for i, (t, ks) in enumerate(steps):
        cur[0] = i
        if i == 8:
            a.wait(stt)
            s_ = stats_sum(SB) + stats_finish(XAUG, SB)
            fill += s_; owner += [-1] * len(s_)
        stamp(f'i{i}', fine=True) if i in (1, 30, 57, 87, 116, 145, 174) else None
        if i % 2 == 0:
            a.wait(rt[min(i + 1, n - 1)], xt.get(ks))
        if i == 56:
            a.wait(marks['M3'])
            a.barrier()
            bg = dma_items(vD1, LALPHA, 56, 2) + ['M4'] + bg
        if i + LOOK == 145:
            a.wait(marks['M4'])
            a.barrier()
        D = vr(ACC + 16 * accof[t], 16)
        if ks == 0 and t >= 4:
            assert (t - 4) not in owner
        if ks == 28:
            assert -1 not in owner
        X = vr(16 + 4 * ks, 4) if ks < 28 else vr(XAUG, 4)
        a(f'{MF} {D}, {vr(WR+4*(i%NW),4)}, {X}, {"0" if ks == 0 else D}')
        if ks == 28:
            done_at[t] = i
        for tt, di in list(done_at.items()):
            if i >= di + 2:
                e = epi(tt)
                fill += e; owner += [tt] * len(e)
                del done_at[tt]
        pre = main = None
        if t == 0 and ks + PRE < 28:
            main = (lambda k_=ks + PRE: xl(k_))
        elif t == 6:
            if ks % 2 == 1:
                main = (lambda k_=ks // 2: hld(k_))
        elif i == 173:
            main = lambda: flag_ld(0)
        elif i % 2 == 0 and i >= 2 * (28 - PRE):
            pre, main = split_item(next_bg())
        extra = None
        if fill and '; H' in fill[0]:
            extra = pop
        elif not pub0 and S0T in hst and i >= hst[S0T][1] + PUBD and i % 2 == 1:
            extra = lambda: pub(0, S0T)
            pub0 = True
        k_ = next((j for j, x in enumerate(fill) if '; H' in x and j > 0), None)
        n0 = len(a.ins)
        for f in (pre, lambda: issue_rd(i + LOOK), main, extra):
            if f is None:
                continue
            f() if callable(f) else emit(f)
        budget = CAP - (len(a.ins) - n0) - (i % 2)
        while fill and '; H' not in fill[0] and budget >= cost(fill[0]):
            budget -= cost(fill[0])
            pop()
    assert pub0 and next_bg() is None, len(bg)
    print('P3: h stores at steps', {t: v[1] for t, v in hst.items()}, 'left', len(fill))
    stamp('p3mfma')
    tail = list(fill) + epi(6)
    assert 5 in hst

    RU = 192
    RA = 128
    w1 = dma_items(vD2, 0, 88, 2)
    a(f's_cmp_ge_u32 s{sJ}, 28')
    a('s_cbranch_scc0 ' + LB_('L_p4go'))
    with cond():
        emit(tail)
        pub(1, 5)
        a.barrier()
        a.wait_vm0()
        emit(flag_store(S_LY, f's{sU}', imm=8))
        for it in w1:
            emit(it)
    a('s_branch ' + LB_('L_p4skip'))
    a.label(LB_('L_p4go'))
    with cond():
        a('s_nop 7')
        fill = list(tail)
        owner = [6] * len(fill)
        pub(1, 5)
        NPRE = int(OPT.get('npre', 18))
        nl = 14
        cur[0] = 0
        k_ = 0
        while fill:
            if k_ % 4 == 2 and nl < NPRE:
                hld(nl, False); nl += 1
            pop(); k_ += 1
        assert nl == NPRE
        a.wait(chk[0])
        OKL = a.uid('Lok')
        a(f'v_cmp_ne_u32 vcc, 1, v{vFV}')
        a('s_cmp_eq_u64 vcc, 0')
        a(f's_cbranch_scc1 {OKL}')
        saved = dict(ht)
        with cond():
            pub(2, 6)
            poll(S_LY, vFL, 0, imm=0)
            for idx in range(NPRE):
                hld(idx, False)
            a.wait_vm0()
        ht.update(saved)
        a.label(OKL)
        stamp('p3epi')
        later = red_setup(LALPHA, RA) + res_unpack(RU)
        TAIL = 4
        nld = [NPRE]
        state = {'pub1': True, 'pub2': False}

        def mf(n_, s):
            aa, b = s >> 1, s & 1
            D = accs(s)
            a(f'{MF} {D}, {ar(8*n_+4*b,4)}, {vr(HR+4*((2*n_+aa)%NH),4)}, {"0" if n_ == 0 else D}')

        def sh(step, load):
            cur[0] = step
            n0 = len(a.ins)
            if load:
                if nld[0] < 56:
                    hld(nld[0]); nld[0] += 1
                elif w1:
                    emit(w1.pop(0))
            elif hst_open():
                pass
            if step >= 2:
                if fill and '; H' in fill[0]:
                    pop()
                budget = CAP - (len(a.ins) - n0)
                while fill and '; H' not in fill[0] and budget >= cost(fill[0]):
                    budget -= cost(fill[0])
                    pop()

        def hst_open():
            if not state['pub1'] and cur[0] >= 3:
                pub(1, 5); state['pub1'] = True
                return True
            if not state['pub2'] and 6 in hst and cur[0] >= 9:
                pub(2, 6); state['pub2'] = True
                out_addr(*((X1, ST1) if ALIAS() else (X0 + LYB, ST0 + LYB)), F0 + LYB)
                fill.extend(later); owner.extend([-2] * len(later))
                return True
            return False
        for n_ in range(28 - TAIL):
            if n_ == 14:
                a.barrier()
            stamp(f'n{n_}') if ('p4prof' in OPT and n_ in (2, 4, 8, 13, 15, 17, 20)) else None
            a.wait(ht[2 * n_])
            mf(n_, 0); sh(4 * n_, True)
            mf(n_, 1); sh(4 * n_ + 1, False)
            a.wait(ht[2 * n_ + 1])
            mf(n_, 2); sh(4 * n_ + 2, True)
            mf(n_, 3); sh(4 * n_ + 3, False)
        assert nld[0] == 56 and not fill and state['pub2']
        pend = []
        for s in (3, 2, 1, 0):
            for n_ in range(28 - TAIL, 28):
                a.wait(ht[2 * n_ + 1])
                mf(n_, s)
                if n_ > 28 - TAIL:
                    emit(pend[:2]); pend = pend[2:]
                if w1 and n_ % 2 == 0:
                    emit(w1.pop(0))
            if s > 0:
                pend = red_write(s, RA)
        stamp('p4mfma')
        red_finish(True, 16, RU, RA, 'p4')
        for it in w1:
            emit(it)
    a.label(LB_('L_p4skip'))
    stamp('p4end')


def final_store():
    a.label(LB_('L_final'))
    a(f'v_and_b32 v18, 31, v{vLANE}')
    a(f'v_lshrrev_b32 v19, 5, v{vLANE}')
    a(f'v_mul_u32_u24 v{vROW}, 896, v18')
    a(f'v_lshl_add_u32 v{vROW}, v19, 4, v{vROW}')
    a(f's_mul_i32 s{sA}, s{sOWN}, 28672')
    a(f's_lshl_b32 s{sB}, s{sOFT}, 6')
    a(f's_add_u32 s{sA}, s{sA}, s{sB}')
    a(f'buffer_store_dwordx4 {vr(vXRES,4)}, v{vROW}, {sr(S_OUT,4)}, s{sA} offen')
    a(f'buffer_store_dwordx4 {vr(vXRES+4,4)}, v{vROW}, {sr(S_OUT,4)}, s{sA} offen offset:32')


def body():
    phase1(True)
    a.label(LB_('L_layer'))
    a('s_nop 7')
    n0 = len(STAMPS)
    phase2()
    phase34()
    n1 = len(STAMPS)
    a(f's_cmp_lg_u32 s{sL}, 0')
    a('s_cbranch_scc1 L_done')
    a(f's_mov_b32 s{sL}, 1')
    a(f's_add_u32 s{S_LY}, s{S_LY}, {LYB}')
    a(f's_addc_u32 s{S_LY+1}, s{S_LY+1}, 0')
    if not ALIAS():
        a(f's_mov_b32 s{S_DT}, s{S_LY}')
        a(f's_mov_b32 s{S_DT+1}, s{S_LY+1}')
    phase1(False)
    a('s_branch ' + LB_('L_layer'))
    STAMPS.extend(STAMPS[n0:n1 - 2])
    final_store()


def build():
    prologue()
    init_phase()
    MODE.update(sc=OPT.get('fsc', ''), sfx='')
    body()
    a.label('L_done')
    if PROFILE:
        stamp('end')
        a(f's_lshl_b32 s{sA}, s2, 2')
        a(f's_add_u32 s{sA}, s{sA}, s{sW}')
        a(f's_lshl_b32 s{sA}, s{sA}, 8')
        a(f's_add_u32 s{sA}, s{sA}, {PROF}')
        a(f'buffer_store_dword v{vPROF}, v{vL4}, {sr(S_WS,4)}, s{sA} offen')
    a.label('L_end')
    a('s_endpgm')
    a.label('L_codeend')
    keep = list(STAMPS)
    a.label('L_slow')
    a.wait_all()
    MODE.update(sc='sc1', sfx='_s')
    body()
    a('s_branch L_done')
    STAMPS[:] = keep


build()
hdr = open('cdna_kernels/' + NAME + '.s.ref').read().split('; Override launch')[0]
out = hdr + f"""; @launch grid=(256,1,1) block=(256,1,1) lds={LDS_BYTES}
.amdgcn_target "amdgcn-amd-amdhsa--gfx950"
.text
.globl {NAME}_kernel
.p2align 8
.type {NAME}_kernel,@function
{NAME}_kernel:
{a.text()}
.section .rodata,"a"
.p2align 6
.amdhsa_kernel {NAME}_kernel
  .amdhsa_next_free_vgpr 512
  .amdhsa_next_free_sgpr 102
  .amdhsa_accum_offset 256
  .amdhsa_group_segment_fixed_size 0
  .amdhsa_kernarg_size 80
  .amdhsa_user_sgpr_count 2
  .amdhsa_user_sgpr_kernarg_segment_ptr 1
  .amdhsa_system_sgpr_workgroup_id_x 1
  .amdhsa_float_denorm_mode_32 3
.end_amdhsa_kernel
"""
outfn = [x for x in sys.argv[1:] if not x.startswith('--')][0]
open(outfn, 'w').write(out)
open(outfn + '.names', 'w').write(','.join(STAMPS))
print('instructions', len(a.ins), 'nops added', a.nops_added)
```

```python
import re

_RANGE = re.compile(r'\b([vas])\[(\d+):(\d+)\]')
_SINGLE = re.compile(r'\b([vas])(\d+)\b')
TRANS = ('v_exp_f32', 'v_log_f32', 'v_rcp_f32', 'v_rsq_f32', 'v_sqrt_f32', 'v_sin_f32', 'v_cos_f32', 'v_rcp_iflag_f32')


def regs_of(op):
    out = set()
    s = op
    for m in _RANGE.finditer(s):
        for i in range(int(m.group(2)), int(m.group(3)) + 1):
            out.add((m.group(1), i))
    s = _RANGE.sub(' ', s)
    for m in _SINGLE.finditer(s):
        out.add((m.group(1), int(m.group(2))))
    if re.search(r'\bvcc\b', s):
        out.add(('s', 'vcc'))
    if re.search(r'\bexec\b', s):
        out.add(('s', 'exec'))
    if re.search(r'\bm0\b', s):
        out.add(('s', 'm0'))
    return out


def split_ops(rest):
    ops, depth, cur = [], 0, ''
    for ch in rest:
        if ch == '[':
            depth += 1
        if ch == ']':
            depth -= 1
        if ch == ',' and depth == 0:
            ops.append(cur.strip())
            cur = ''
        else:
            cur += ch
    if cur.strip():
        ops.append(cur.strip())
    return ops


class Ins:
    def __init__(self, text):
        self.text = text
        t = text.split(';')[0].strip()
        self.label = t.endswith(':')
        self.directive = t.startswith('.')
        self.rd, self.wr = set(), set()
        self.kind = 'other'
        self.A = self.B = self.C = self.D = set()
        self.ws = 1
        self.wide_store = set()
        if self.label or self.directive or not t:
            self.ws = 0
            self.op = ''
            return
        parts = t.split(None, 1)
        op = parts[0]
        for suf in ('_e32', '_e64', '_dpp', '_sdwa'):
            if op.endswith(suf):
                op = op[:-len(suf)]
        self.op = op
        rest = parts[1] if len(parts) > 1 else ''
        ops = split_ops(rest)
        R = [regs_of(o) for o in ops]
        allr = set().union(*R) if R else set()
        if op.startswith('v_mfma'):
            self.kind = 'mfma'
            self.D, self.A, self.B = R[0], R[1], R[2]
            self.C = R[3] if len(R) > 3 else set()
            self.wr = set(self.D)
            self.rd = self.A | self.B | self.C
        elif op.startswith('v_'):
            self.kind = 'valu'
            self.trans = op in TRANS
            self.dpp = ('quad_perm' in rest or 'row_' in rest or 'wave_' in rest)
            if op.startswith('v_permlane') or op == 'v_swap_b32':
                self.wr = R[0] | R[1]
                self.rd = R[0] | R[1]
            elif op in ('v_add_co_u32', 'v_sub_co_u32', 'v_addc_co_u32', 'v_subb_co_u32', 'v_mad_u64_u32'):
                self.wr = R[0] | R[1]
                self.rd = set().union(*R[2:])
            elif op == 'v_nop':
                pass
            else:
                self.wr = set(R[0])
                self.rd = set().union(*R[1:]) if len(R) > 1 else set()
                if op in ('v_fmac_f32', 'v_dot2c_f32_bf16', 'v_pk_fmac_f16', 'v_writelane_b32') or self.dpp:
                    self.rd |= R[0]
                if op.startswith('v_cmpx'):
                    self.wr.add(('s', 'exec'))
        elif op.startswith('ds_'):
            self.kind = 'ds'
            if op.startswith('ds_read') or op.startswith('ds_bpermute') or op.startswith('ds_permute') or op.startswith('ds_swizzle'):
                self.wr = set(R[0])
                self.rd = set().union(*R[1:])
            else:
                self.rd = allr
        elif op.startswith('buffer_') or op.startswith('global_'):
            self.kind = 'vmem'
            self.lds = bool(re.search(r'\blds\b', rest)) or '_lds_' in op
            if 'load' in op and not self.lds:
                self.wr = set(R[0])
                self.rd = set().union(*R[1:])
            else:
                self.rd = allr
                if self.lds:
                    self.rd.add(('s', 'm0'))
                if 'store' in op and (op.endswith('x4') or op.endswith('x3')):
                    self.wide_store = set(R[0]) if op.startswith('buffer_') else set(R[1])
        elif op.startswith('s_'):
            if op == 's_nop':
                self.ws = int(ops[0], 0) + 1
                self.kind = 'nop'
            elif op in ('s_waitcnt', 's_barrier', 's_sleep', 's_setprio', 's_endpgm') or op.startswith('s_cbranch') or op == 's_branch':
                self.kind = 'ctl'
            elif op.startswith('s_load') or op.startswith('s_buffer_load') or op.startswith('s_memtime') or op.startswith('s_memrealtime'):
                self.kind = 'smem'
                self.wr = set(R[0])
                self.rd = set().union(*R[1:]) if len(R) > 1 else set()
            elif op.startswith('s_cmp') or op.startswith('s_bitcmp'):
                self.kind = 'salu'
                self.rd = allr
            else:
                self.kind = 'salu'
                self.wr = set(R[0])
                self.rd = set().union(*R[1:]) if len(R) > 1 else set()
                if 'saveexec' in op:
                    self.wr.add(('s', 'exec'))


def need_ws(p, c):
    n = 0
    vec = lambda s: {r for r in s if r[0] in 'va'}
    sca = lambda s: {r for r in s if r[0] == 's'}
    if p.kind == 'valu':
        pw = vec(p.wr)
        ps = sca(p.wr)
        isdot = p.op.startswith('v_dot')
        if c.kind == 'mfma' and pw & c.rd:
            n = max(n, 3 if isdot else 2)
        if c.kind == 'valu':
            if p.trans and pw & (c.rd | c.wr) and not c.trans:
                n = max(n, 1)
            if p.trans and pw & c.rd:
                n = max(n, 1)
            if c.op.startswith('v_permlane') and pw & c.rd:
                n = max(n, 2)
            if c.dpp and pw & c.rd:
                n = max(n, 2)
            if c.op in ('v_readlane_b32', 'v_readfirstlane_b32') and pw & c.rd:
                n = max(n, 1)
            if ps & c.rd:
                n = max(n, 4 if c.op in ('v_readlane_b32', 'v_writelane_b32') else 2)
            if isdot and pw & (c.rd | c.wr):
                if c.op == p.op:
                    ops = split_ops(c.text.split(';')[0].strip().split(None, 1)[1])
                    ab = regs_of(ops[1]) | regs_of(ops[2])
                    if pw & ab:
                        n = max(n, 3)
                else:
                    n = max(n, 3)
            if ('s', 'exec') in p.wr:
                n = max(n, 5)
        if isdot and c.kind in ('vmem', 'ds') and pw & c.rd:
            n = max(n, 3)
        if p.trans and c.kind in ('vmem', 'ds') and pw & c.rd:
            n = max(n, 1)
        if c.kind == 'vmem' and ps & c.rd:
            n = max(n, 5)
        if c.kind == 'mfma' and ('s', 'exec') in p.wr:
            n = max(n, 4)
        if c.kind in ('salu', 'smem') and ps & c.rd:
            n = max(n, 1)
    if p.kind == 'mfma':
        if c.kind == 'mfma':
            if p.D & (c.A | c.B):
                n = max(n, 12)
            if p.D & c.C and not (p.D == c.C):
                n = max(n, 10)
            if p.D & c.D and not (p.D == c.C):
                n = max(n, 10)
        elif c.kind == 'valu':
            if p.D & (c.rd | c.wr):
                n = max(n, 12)
            if p.C & c.wr:
                n = max(n, 7)
        elif c.kind in ('vmem', 'ds'):
            if p.D & (c.rd | c.wr):
                n = max(n, 12)
            if p.C & c.wr:
                n = max(n, 7)
    if p.kind == 'vmem' and p.wide_store:
        if p.wide_store & c.wr:
            n = max(n, 2)
    if p.kind == 'salu' and ('s', 'm0') in p.wr and c.kind == 'vmem' and getattr(c, 'lds', False):
        n = max(n, 1)
    return n


class Asm:
    def __init__(self):
        self.ins = []
        self.vm_issued = 0
        self.vm_done = 0
        self.lg_issued = 0
        self.lg_done = 0
        self.nops_added = 0
        self._uid = 0

    def begin_cold(self):
        self._stack = getattr(self, '_stack', [])
        self._stack.append(self.ins)
        self.ins = []

    def end_cold(self):
        self.coldl = getattr(self, 'coldl', [])
        self.coldl.extend(self.ins)
        self.ins = self._stack.pop()

    def flush_cold(self):
        self.ins.extend(getattr(self, 'coldl', []))
        self.coldl = []

    def uid(self, p='L'):
        self._uid += 1
        return f'{p}_{self._uid}'

    def raw(self, text):
        self.ins.append(Ins(text))

    def __call__(self, text):
        tok = None
        for line in text.strip().split('\n'):
            line = line.strip()
            if not line or line.startswith(';'):
                continue
            i = Ins(line)
            self._hazard(i)
            self.ins.append(i)
            if i.kind == 'vmem':
                tok = ('vm', self.vm_issued)
                self.vm_issued += 1
            elif i.kind == 'ds':
                tok = ('lg', self.lg_issued)
                self.lg_issued += 1
        return tok

    def _hazard(self, c):
        if c.kind in ('nop', 'ctl', 'other'):
            return
        dist = 0
        need = 0
        nmf = 0
        after = 0
        for p in reversed(self.ins):
            if dist >= 20:
                break
            if p.kind in ('valu', 'mfma', 'vmem', 'salu'):
                n = need_ws(p, c)
                d = dist
                if p.kind == 'mfma' and nmf:
                    d = max(d, 8 * nmf + after)
                if n - d > need:
                    need = n - d
            if p.kind == 'mfma':
                if nmf == 0:
                    after = dist
                nmf += 1
            dist += p.ws
        while need > 0:
            k = min(need, 16)
            self.ins.append(Ins(f's_nop {k-1}'))
            self.nops_added += k
            need -= k

    def label(self, name):
        self.ins.append(Ins(f'{name}:'))

    def wait(self, *toks, force=False):
        vm = [t[1] for t in toks if t is not None and t[0] == 'vm']
        lg = [t[1] for t in toks if t is not None and t[0] == 'lg']
        parts = []
        if vm:
            t = max(vm)
            if t >= self.vm_done or force:
                n = min(self.vm_issued - 1 - t, 63)
                parts.append(f'vmcnt({n})')
                self.vm_done = max(self.vm_done, self.vm_issued - n)
        if lg:
            t = max(lg)
            if t >= self.lg_done or force:
                n = min(self.lg_issued - 1 - t, 15)
                parts.append(f'lgkmcnt({n})')
                self.lg_done = max(self.lg_done, self.lg_issued - n)
        if parts:
            self('s_waitcnt ' + ' '.join(parts))

    def wait_vm0(self):
        self('s_waitcnt vmcnt(0)')
        self.vm_done = self.vm_issued

    def wait_lg0(self):
        self('s_waitcnt lgkmcnt(0)')
        self.lg_done = self.lg_issued

    def wait_all(self):
        self('s_waitcnt vmcnt(0) lgkmcnt(0)')
        self.vm_done = self.vm_issued
        self.lg_done = self.lg_issued

    def wait_vm_n(self, n):
        self(f's_waitcnt vmcnt({n})')

    def forget(self):
        pass

    def barrier(self):
        self('s_barrier')

    def text(self):
        out = []
        for i in self.ins:
            out.append(i.text if (i.label or i.directive) else '  ' + i.text)
        return '\n'.join(out)


def vr(b, n=1):
    return f'v{b}' if n == 1 else f'v[{b}:{b+n-1}]'


def ar(b, n=1):
    return f'a{b}' if n == 1 else f'a[{b}:{b+n-1}]'


def sr(b, n=1):
    return f's{b}' if n == 1 else f's[{b}:{b+n-1}]'
```

```python
import sys
import contextlib
from asmlib import Asm, vr, ar, sr

NAME = "interleave_layers__linear_attn_block__glu_gated_glu__prompt"
OPT = {}
for x in sys.argv[1:]:
    if x.startswith('--'):
        k, _, v = x[2:].partition('=')
        OPT[k] = v if v else True
PROFILE = 'prof' in OPT
FINE = 'fine' in OPT
CLK = 'clk' in OPT
STOP = OPT.get('stop')
FA = 1
SLEEP = int(OPT.get('sleep', 1))
TOUCH = int(OPT.get('touch', 0))
BUD = int(OPT.get('bud', 3))
XPRE = int(OPT.get('xpre', 8))
HPRE = int(OPT.get('hpre', 16))
HSC = int(OPT.get('hsc', 0))
XSC = int(OPT.get('xsc', 0))
TLBW = int(OPT.get('tlbw', 0))
XI = int(OPT.get('xi', 0))
XA = int(OPT.get('xa', 16))
CT = int(OPT.get('ct', 1))
FT = int(OPT.get('ft', 0))
HT = int(OPT.get('ht', 0))
WSC = '' if 'nowsc' in OPT else 'sc1'
STAMPS = []

IB = 0x0
W1R = 0x100000; W1S = 87 * 1024
WOR = 0x280000
W3R = 0x300000; W3S = 203 * 1024
WDR = 0x680000; WDS = 224 * 1024
LYB = 0x1000000
KV = 0x0
F1 = 0x10000
F1Q = 0x18000
F3 = 0x30000
F2 = 0x20000
F0 = 0x28000
ST1 = 0x40000
ST0 = 0x80000
PQ = 0x100000
X1 = 0x300000
X0 = 0x500000
HB = 0x700000
PROF = 0x3000000
WS_BYTES = 256 << 20
OOB = 0x40000000

K = 1024
LBETA, LB, LALPHA = 0, 56 * K, 104 * K
LRS = 87 * K
LKVS = 88 * K
LDS_BYTES = 160 * K

S_WS, S_X, S_WQKV, S_WO, S_WG, S_WU, S_WD, S_OUT, S_DBG = 4, 8, 12, 16, 20, 24, 28, 32, 36
S_T0, S_T1 = 40, 44
S_LY = 40
S_DT = 44
sW, sJ, sHC, sTB, sFB, sL, sTMO, sPI = 48, 49, 50, 51, 52, 53, 54, 55
sTILE1, sTILE2, sOWN, sOFT = 56, 57, 58, 59
sLN2, sEPS6 = 60, 62
sONES = 84
sW1K, sW2K, sW4K = 64, 65, 66
sW1SRC, sW3SRC, sWOSRC, sWDSRC = 67, 68, 69, 70
sRBG, sREP = 71, 72
sG, sH, sI = 73, 74, 75
sA, sB, sC, sD, sE, sF = 86, 87, 88, 89, 90, 91
sP0 = 92
sU = 94
sXID = 95
sZW = 96
sPC = 100

vLANE, vL16, vL16b, vL16c, vROW, vAUG, vL4, vPROF = 0, 1, 2, 3, 4, 5, 6, 7
vXRES = 8
LOG2E = 0x3FB8AA3B
LN2 = 0x3F317218
EPS6 = 0x358637BD
EPS5 = 0x3727C5AC
INV448 = 0x3B124925
MF = 'v_mfma_f32_32x32x16_bf16'

a = Asm()
MODE = {'sc': 'sc1', 'sfx': ''}


def LS():
    return MODE['sc']


def LL():
    return OPT.get('ll', 'sc1').replace('none', '') if MODE['sc'] == '' else 'sc1'


def ALIAS():
    return MODE['sfx'] == '' and 'noalias' not in OPT


def XS():
    return 'sc1' if XSC else LS()


def HS():
    return 'sc1' if HSC else LS()


def LB_(n):
    return n + MODE['sfx']


@contextlib.contextmanager
def cond():
    st = (a.vm_issued, a.vm_done, a.lg_issued, a.lg_done)
    yield
    a.vm_issued, a.vm_done, a.lg_issued, a.lg_done = st


@contextlib.contextmanager
def cold(branch, back=None):
    C = a.uid('Lc'); R = back or a.uid('Lr')
    a(f'{branch} {C}')
    st = (a.vm_issued, a.vm_done, a.lg_issued, a.lg_done)
    a.begin_cold()
    a.label(C)
    a('s_nop 7')
    a('s_nop 3')
    yield
    a('s_nop 4')
    a(f's_branch {R}')
    a.end_cold()
    a.vm_issued, a.vm_done, a.lg_issued, a.lg_done = st
    if back is None:
        a.label(R)


def mark():
    return ('vm', a.vm_issued - 1)


def lds_addr(addr):
    if addr < 65536:
        return vL16, addr
    if addr < 131072:
        return vL16b, addr - 65536
    return vL16c, addr - 131072


def stamp(name, fine=False):
    if not PROFILE or (fine and not FINE):
        return
    STAMPS.append(name)
    a('s_waitcnt lgkmcnt(0)')
    a(f"{'s_memtime' if CLK else 's_memrealtime'} {sr(sP0,2)}")
    a.wait_lg0()
    a(f'v_cmp_eq_u32 vcc, s{sPI}, v{vLANE}')
    a(f'v_mov_b32 v255, s{sP0}')
    a(f'v_cndmask_b32 v{vPROF}, v{vPROF}, v255, vcc')
    a(f's_add_u32 s{sPI}, s{sPI}, 1')


def srd(base, lo, nbytes):
    a(f's_mov_b32 s{base}, s{lo}')
    a(f's_and_b32 s{base+1}, s{lo+1}, 0xffff')
    a(f's_mov_b32 s{base+2}, {nbytes}')
    a(f's_mov_b32 s{base+3}, 0x00020000')


def poll(srdreg, vaddr, soff, imm=0, t=254, sleep=0, nonzero=False):
    L = a.uid('Lpoll'); D = a.uid('Lpd')
    a.label(L)
    if sleep:
        a(f's_sleep {sleep}')
    a(f'buffer_load_dword v{t}, v{vaddr}, {sr(srdreg,4)}, {soff} offen offset:{imm} sc1')
    a(f's_sub_u32 s{sTMO}, s{sTMO}, 1')
    a(f's_max_i32 s{sTMO}, s{sTMO}, 0')
    a(f's_cselect_b64 {sr(sP0,2)}, exec, 0')
    a.wait_vm0()
    a(f'v_cmp_eq_u32 vcc, 0, v{t}' if nonzero else f'v_cmp_ne_u32 vcc, 1, v{t}')
    a(f's_and_b64 exec, {sr(sP0,2)}, vcc')
    a(f's_cbranch_scc1 {L}')
    a('s_mov_b64 exec, -1')


def check_or_poll(v, srdreg, vaddr, soff, imm=0, nonzero=False, sleep=1, t=254):
    a(f'v_cmp_eq_u32 vcc, 0, v{v}' if nonzero else f'v_cmp_ne_u32 vcc, 1, v{v}')
    a('s_cmp_eq_u64 vcc, 0')
    with cold('s_cbranch_scc0'):
        poll(srdreg, vaddr, soff, imm=imm, nonzero=nonzero, sleep=sleep, t=t)


def code_touch(t):
    if not CT:
        return []
    return [[f'v_and_b32 v{t}, 3, v{vLANE}',
             f'v_lshlrev_b32 v{t}, 7, v{t}',
             f'global_load_dword v{t}, v{t}, {sr(sPC,2)}']]


def flag_store(srdreg, soff, imm=0, t=254, sc=None):
    sc = LS() if sc is None else sc
    return [f'v_mov_b32 v{t}, 1',
            's_mov_b64 exec, 1',
            f'buffer_store_dword v{t}, off, {sr(srdreg,4)}, {soff} offset:{imm} {sc}',
            's_mov_b64 exec, -1']


def emit(lst):
    t = None
    for x in lst:
        r = a(x)
        t = r if r is not None else t
    return t


def dma_items(vD, lds_base, nfrag, c):
    assert nfrag % (4 * c) == 0
    sWc = {1: sW1K, 2: sW2K, 4: sW4K}[c]
    items = []
    for r in range(nfrag // (4 * c)):
        for i in range(c):
            it = []
            if i == 0:
                it.append(f's_add_u32 m0, s{sWc}, {lds_base + r*4*c*K}')
            it.append(f'buffer_load_dwordx4 v{vD}, {sr(S_WS,4)}, m0 offen offset:{i*K} {WSC} lds')
            items.append(it)
    return items


def dma_setup(vD, ssrc, src_const, lds_base):
    a(f's_add_u32 s{sA}, s{ssrc}, {src_const - lds_base & 0xffffffff:#x}')
    a(f'v_add_u32 v{vD}, s{sA}, v{vL16}')


def prologue():
    a('s_cmp_ge_u32 s2, 256')
    a('s_cbranch_scc1 L_end')
    a('s_load_dwordx16 s[64:79], s[0:1], 0')
    a('s_load_dwordx4 s[80:83], s[0:1], 64')
    a(f's_getpc_b64 {sr(sPC,2)}')
    a.label('L_pc')
    a('s_lshr_b32 s3, s2, 3')
    a('s_lshl_b32 s3, s3, 11')
    a('s_min_u32 s3, s3, (L_codeend - L_pc - 2048)')
    a(f's_add_u32 s{sPC}, s{sPC}, s3')
    a(f's_addc_u32 s{sPC+1}, s{sPC+1}, 0')
    a('v_min_u32 v16, 15, v0')
    a('v_lshlrev_b32 v16, 7, v16')
    a(f'global_load_dword v17, v16, {sr(sPC,2)}')
    a(f'v_lshrrev_b32 v18, 6, v0')
    a(f'v_and_b32 v{vLANE}, 63, v0')
    a(f'v_readfirstlane_b32 s{sW}, v18')
    a(f'v_lshlrev_b32 v{vL16}, 4, v{vLANE}')
    a(f'v_add_u32 v{vL16b}, 0x10000, v{vL16}')
    a(f'v_add_u32 v{vL16c}, 0x20000, v{vL16}')
    a(f'v_lshlrev_b32 v{vL4}, 2, v{vLANE}')
    a(f'v_and_b32 v18, 31, v{vLANE}')
    a(f'v_lshrrev_b32 v19, 5, v{vLANE}')
    a(f'v_mul_u32_u24 v{vROW}, 896, v18')
    a(f'v_lshl_add_u32 v{vROW}, v19, 4, v{vROW}')
    a(f'v_lshlrev_b32 v{vAUG}, 2, v18')
    a(f'v_lshl_add_u32 v{vAUG}, v19, 9, v{vAUG}')
    a(f'v_mov_b32 v{vPROF}, 0')
    a(f's_mov_b32 s{sPI}, 0')
    a(f's_and_b32 s{sC}, s2, 7')
    a(f's_lshr_b32 s{sJ}, s2, 3')
    a(f's_mul_i32 s{sTB}, s{sJ}, 37')
    a(f's_lshr_b32 s{sTB}, s{sTB}, 8')
    a(f's_mul_i32 s{sFB}, s{sTB}, 7')
    a(f's_sub_u32 s{sFB}, s{sJ}, s{sFB}')
    a(f's_cmp_ge_u32 s{sJ}, 28')
    a(f's_cselect_b32 s{sTB}, s{sFB}, s{sTB}')
    a(f's_mov_b32 s{sL}, 0')
    a(f's_mov_b32 s{sTMO}, 100000')
    a(f's_lshl_b32 s{sTILE2}, s{sC}, 3')
    a(f's_lshl_b32 s{sD}, s{sTB}, 1')
    a(f's_add_u32 s{sTILE2}, s{sTILE2}, s{sD}')
    a(f's_lshr_b32 s{sD}, s{sW}, 1')
    a(f's_add_u32 s{sOWN}, s{sTILE2}, s{sD}')
    a(f's_and_b32 s{sD}, s{sW}, 1')
    a(f's_lshl_b32 s{sOFT}, s{sFB}, 1')
    a(f's_add_u32 s{sOFT}, s{sOFT}, s{sD}')
    lf = {1: 0, 2: 1, 4: 2, 8: 3}[FA]
    nh = 16 // FA
    a(f's_and_b32 s{sD}, s{sC}, {FA-1}')
    a(f's_mul_i32 s{sHC}, s{sD}, {nh}')
    a(f's_and_b32 s{sD}, s{sJ}, {nh-1}')
    a(f's_add_u32 s{sHC}, s{sHC}, s{sD}')
    a(f's_lshr_b32 s{sD}, s{sC}, {lf}')
    a(f's_lshl_b32 s{sE}, s{sD}, {lf+1}')
    a(f's_lshr_b32 s{sD}, s{sJ}, {4-lf}')
    a(f's_add_u32 s{sE}, s{sE}, s{sD}')
    a(f's_lshl_b32 s{sTILE1}, s{sE}, 2')
    a(f's_add_u32 s{sTILE1}, s{sTILE1}, s{sW}')
    a(f's_mov_b32 s{sLN2}, {LN2:#x}')
    a(f's_mov_b32 s{sLN2+1}, {LN2:#x}')
    a(f's_mov_b32 s{sEPS6}, {EPS6:#x}')
    a(f's_mov_b32 s{sEPS6+1}, {EPS6:#x}')
    a(f's_mov_b32 s{sONES}, 0x3f803f80')
    for i in range(4):
        a(f'v_mov_b32 v{216+i}, 0')
    a(f'v_and_b32 v{vRHO}, 31, v{vLANE}')
    a(f'v_lshrrev_b32 v{vHI}, 5, v{vLANE}')
    a(f'v_and_b32 v{vSIG}, 0x13, v{vRHO}')
    a(f'v_and_b32 v{vt0}, 4, v{vRHO}')
    a(f'v_lshl_or_b32 v{vSIG}, v{vt0}, 1, v{vSIG}')
    a(f'v_lshrrev_b32 v{vt0}, 1, v{vRHO}')
    a(f'v_and_or_b32 v{vSIG}, v{vt0}, 4, v{vSIG}')
    a(f'v_lshrrev_b32 v{vR8}, 3, v{vLANE}')
    a(f'v_and_b32 v{vC8}, 7, v{vLANE}')
    a(f'v_lshlrev_b32 v{vC8}, 4, v{vC8}')
    a(f'v_lshrrev_b32 v{vt0}, 4, v{vLANE}')
    a(f'v_lshlrev_b32 v{vt0}, 4, v{vt0}')
    a(f'v_xor_b32 v{vt0}, v{vt0}, v{vC8}')
    a(f'v_mul_u32_u24 v{vt1}, 896, v{vR8}')
    a(f'v_add_u32 v{vXS}, v{vt1}, v{vt0}')
    a(f'v_xor_b32 v{vt0}, 64, v{vt0}')
    a(f'v_add_u32 v{vXS+1}, v{vt1}, v{vt0}')
    a('s_waitcnt lgkmcnt(0)')
    if TLBW:
        a(f'v_lshlrev_b32 v20, 20, v{vLANE}')
        a('v_subrev_u32 v20, 0xa00000, v20')
        a('v_min_u32 v20, 0x2100000, v20')
        a('v_mov_b32 v21, s83')
        a('v_add_co_u32 v20, vcc, s82, v20')
        a('v_addc_co_u32 v21, vcc, 0, v21, vcc')
        for ln, p in enumerate((64, 66, 68, 72, 74, 76, 78, 80)):
            a(f'v_writelane_b32 v20, s{p}, {ln}')
            a(f'v_writelane_b32 v21, s{p+1}, {ln}')
        a('global_load_dword v22, v[20:21], off')
    srd(S_X, 64, 2048 * 448 * 2)
    srd(S_WQKV, 66, 448 * 1344 * 2)
    srd(S_WO, 68, 448 * 448 * 2)
    srd(S_WG, 72, 448 * 1792 * 2)
    srd(S_WU, 74, 448 * 1792 * 2)
    srd(S_WD, 76, 1792 * 448 * 2)
    srd(S_OUT, 78, 2048 * 448 * 2)
    srd(S_DBG, 80, 256)
    srd(S_WS, 82, WS_BYTES)
    a(f's_mov_b32 s{sRBG}, s{sE}')
    a(f's_and_b32 s{sREP}, s2, 3')
    a(f's_lshl_b32 s{sREP}, s{sREP}, 12')
    a(f's_lshl_b32 s{sW1K}, s{sW}, 10')
    a(f's_lshl_b32 s{sW2K}, s{sW}, 11')
    a(f's_lshl_b32 s{sW4K}, s{sW}, 12')
    a(f's_lshl_b32 s{sG}, s{sW}, 9')
    a(f's_add_u32 s{sPC}, s{sPC}, s{sG}')
    a(f's_addc_u32 s{sPC+1}, s{sPC+1}, 0')
    a(f's_lshl_b32 s{sG}, s{sW}, 13')
    a(f's_add_u32 s{sG}, s{sG}, {LSTG}')
    a(f's_getreg_b32 s{sXID}, hwreg(HW_REG_XCC_ID)')
    a(f's_and_b32 s{sXID}, s{sXID}, 15')
    a(f's_add_u32 s{sXID}, s{sXID}, 1')
    stamp('start')


def late_consts():
    a(f's_mul_i32 s{sW1SRC}, s{sHC}, {W1S}')
    a(f's_add_u32 s{sW1SRC}, s{sW1SRC}, {W1R}')
    a(f's_mul_i32 s{sW3SRC}, s{sHC}, {W3S}')
    a(f's_add_u32 s{sW3SRC}, s{sW3SRC}, {W3R}')
    a(f's_lshl_b32 s{sWOSRC}, s{sFB}, 16')
    a(f's_lshl_b32 s{sA}, s{sW}, 14')
    a(f's_add_u32 s{sWOSRC}, s{sWOSRC}, s{sA}')
    a(f's_add_u32 s{sWOSRC}, s{sWOSRC}, {WOR}')
    a(f's_mul_i32 s{sWDSRC}, s{sFB}, {WDS}')
    a(f's_mul_i32 s{sA}, s{sW}, 57344')
    a(f's_add_u32 s{sWDSRC}, s{sWDSRC}, s{sA}')
    a(f's_add_u32 s{sWDSRC}, s{sWDSRC}, {WDR}')
    a(f's_add_u32 s{S_LY}, s{S_WS}, {LYB}')
    a(f's_addc_u32 s{S_LY+1}, s{S_WS+1}, 0')
    a(f's_mov_b32 s{S_LY+2}, {2*LYB}')
    a(f's_mov_b32 s{S_LY+3}, 0x00020000')
    a(f's_mov_b32 s{S_DT}, s{S_LY}')
    a(f's_mov_b32 s{S_DT+1}, s{S_LY+1}')
    a(f's_mov_b32 s{S_DT+2}, {2*LYB}')
    a(f's_mov_b32 s{S_DT+3}, 0x00020000')


UD = 128
UC = 192
vRHO, vHI, vSIG, vR8, vC8 = 204, 205, 206, 207, 212
vt0, vt1, vt2, vt3 = 208, 209, 210, 211
vXS = 214
LSTG = 4 * K
LXS = 40 * K


PASS = {'p': 'src'}


class Done(Exception):
    pass


def run_setup(fn, *args):
    try:
        fn(*args)
    except Done:
        pass


def unit_dma(r, srdreg, vsrc, srow0, srow1):
    if PASS['p'] == 'dst':
        return
    _unit_dma(r, srdreg, vsrc, srow0, srow1)
    raise Done()


def _unit_dma(r, srdreg, vsrc, srow0, srow1):
    a(f's_add_u32 m0, s{sG}, {r*2048}')
    a('s_nop 0')
    a(f'buffer_load_dwordx4 v{vsrc}, {sr(srdreg,4)}, s{srow0} offen lds')
    a(f's_add_u32 m0, s{sG}, {r*2048+1024}')
    a('s_nop 0')
    a(f'buffer_load_dwordx4 v{vsrc}, {sr(srdreg,4)}, s{srow1} offen lds')


def div7(q, rem, su):
    a(f's_mul_i32 s{q}, s{su}, 9363')
    a(f's_lshr_b32 s{q}, s{q}, 16')
    a(f's_mul_i32 s{rem}, s{q}, 7')
    a(f's_sub_u32 s{rem}, s{su}, s{rem}')


def setup_w1(r, su):
    col, dst, aug = UC + 3 * r, UC + 3 * r + 1, UC + 3 * r + 2
    div7(sA, sB, su)
    a(f's_lshr_b32 s{sC}, s{sA}, 3')
    a(f's_and_b32 s{sA}, s{sA}, 7')
    a(f's_mul_i32 s{sD}, s{sC}, 896')
    a(f's_mul_i32 s{sE}, s{sA}, 112')
    a(f's_add_u32 s{sD}, s{sD}, s{sE}')
    a(f's_lshl_b32 s{sF}, s{sB}, 2')
    a(f's_add_u32 s{sF}, s{sF}, s{sW}')
    a(f's_mul_i32 s{sE}, s{sF}, {16*2688}')
    a(f's_add_u32 s{sD}, s{sD}, s{sE}')
    a(f's_add_u32 s{sE}, s{sD}, {8*2688}')
    a(f'v_mul_u32_u24 v{vt0}, 2688, v{vR8}')
    a(f'v_add_u32 v{vt0}, v{vt0}, v{vC8}')
    a(f'v_cmp_eq_u32 vcc, 112, v{vC8}')
    a(f'v_mov_b32 v{vt1}, {OOB:#x}')
    a(f'v_cndmask_b32 v{vt0}, v{vt0}, v{vt1}, vcc')
    unit_dma(r, S_WQKV, vt0, sD, sE)
    a(f'v_cmp_le_u32 vcc, 24, v{vSIG}')
    a(f'v_subrev_u32 v{vt0}, 2, v{vSIG}')
    a(f'v_cndmask_b32 v{vt0}, v{vSIG}, v{vt0}, vcc')
    a(f'v_mad_u32_u24 v{vt0}, v{vHI}, 28, v{vt0}')
    a(f'v_and_b32 v{vt1}, 0x16, v{vSIG}')
    a(f'v_cmp_eq_u32 vcc, 0x16, v{vt1}')
    a(f'v_cndmask_b32 v{vt0}, v{vt0}, 56, vcc')
    a(f'v_lshl_add_u32 v{col}, v{vt0}, 1, s{sG}')
    a(f's_lshl_b32 s{sD}, s{sF}, 1')
    a(f's_add_u32 s{sD}, s{sD}, s{sC}')
    a(f's_sub_u32 s{sD}, s{sD}, 1')
    a(f's_add_u32 s{sE}, s{sC}, 55')
    a(f's_add_u32 s{sF}, s{sF}, 58')
    a(f's_cmp_eq_u32 s{sC}, 0')
    a(f's_cselect_b32 s{sD}, s{sF}, s{sD}')
    a(f's_cselect_b32 s{sE}, 86, s{sE}')
    a(f's_mul_i32 s{sA}, s{sA}, {2*W1S}')
    a(f's_add_u32 s{sA}, s{sA}, {W1R}')
    a(f's_lshl_b32 s{sD}, s{sD}, 10')
    a(f's_add_u32 s{sD}, s{sD}, s{sA}')
    a(f's_lshl_b32 s{sE}, s{sE}, 10')
    a(f's_add_u32 s{sE}, s{sE}, s{sA}')
    a(f's_lshl_b32 s{sB}, s{sB}, 7')
    a(f's_add_u32 s{sE}, s{sE}, s{sB}')
    a(f'v_mul_u32_u24 v{vt0}, {W1S}, v{vHI}')
    a(f'v_lshl_add_u32 v{dst}, v{vRHO}, 4, v{vt0}')
    a(f'v_add_u32 v{dst}, s{sD}, v{dst}')
    a(f'v_lshl_add_u32 v{aug}, v{vRHO}, 2, v{vt0}')
    a(f'v_add_u32 v{aug}, s{sE}, v{aug}')


def setup_w3(r, su, tsrd):
    col, dst, aug = UC + 3 * r, UC + 3 * r + 1, UC + 3 * r + 2
    div7(sA, sB, su)
    a(f's_cmp_ge_u32 s{sA}, 28')
    a(f's_cselect_b32 s{tsrd}, s{S_WU}, s{S_WG}')
    a(f's_cselect_b32 s{tsrd+1}, s{S_WU+1}, s{S_WG+1}')
    a(f's_cselect_b32 s{sC}, 28, 0')
    a(f's_cselect_b32 s{sD}, 16, 0')
    a(f's_mov_b32 s{tsrd+2}, {448*1792*2}')
    a(f's_mov_b32 s{tsrd+3}, 0x00020000')
    a(f's_sub_u32 s{sA}, s{sA}, s{sC}')
    a(f's_lshl_b32 s{sE}, s{sB}, 2')
    a(f's_add_u32 s{sE}, s{sE}, s{sW}')
    a(f's_mul_i32 s{sC}, s{sE}, {16*3584}')
    a(f's_lshl_b32 s{sF}, s{sA}, 7')
    a(f's_add_u32 s{sC}, s{sC}, s{sF}')
    a(f's_add_u32 s{sF}, s{sC}, {8*3584}')
    a(f'v_mul_u32_u24 v{vt0}, 3584, v{vR8}')
    a(f'v_add_u32 v{vt0}, v{vt0}, v{vC8}')
    unit_dma(r, tsrd, vt0, sC, sF)
    a(f'v_and_b32 v{vt0}, 48, v{vLANE}')
    a(f'v_and_or_b32 v{vt0}, v{vSIG}, 15, v{vt0}')
    a(f'v_lshl_add_u32 v{col}, v{vt0}, 1, s{sG}')
    a(f'v_lshrrev_b32 v{vt0}, 4, v{vLANE}')
    a(f's_lshl_b32 s{sC}, s{sA}, 2')
    a(f'v_add_u32 v{vt0}, s{sC}, v{vt0}')
    a(f'v_mul_u32_u24 v{vt1}, 9363, v{vt0}')
    a(f'v_lshrrev_b32 v{vt1}, 16, v{vt1}')
    a(f'v_mul_u32_u24 v{vt2}, 7, v{vt1}')
    a(f'v_sub_u32 v{vt0}, v{vt0}, v{vt2}')
    a(f's_mul_i32 s{sF}, s{sE}, 2')
    a(f'v_add_u32 v{vt2}, s{sF}, v{vt0}')
    a(f'v_add_u32 v{aug}, 56, v{vt0}')
    a(f's_cmp_ge_u32 s{sE}, 27')
    a(f's_cselect_b32 s{sC}, 58, 0')
    a(f's_sub_u32 s{sC}, s{sE}, s{sC}')
    a(f's_add_u32 s{sC}, s{sC}, 176')
    for t, base, ag in ((2, 59, None), (3, 87, 115), (4, 116, 144), (5, 147, 175), (6, None, 146)):
        a(f'v_cmp_eq_u32 vcc, {t}, v{vt0}')
        if base is not None:
            a(f's_add_u32 s{sF}, s{sE}, {base}')
            a(f'v_mov_b32 v{vt3}, s{sF}')
        else:
            a(f'v_mov_b32 v{vt3}, s{sC}')
        a(f'v_cndmask_b32 v{vt2}, v{vt2}, v{vt3}, vcc')
        if ag is not None:
            a(f'v_mov_b32 v{vt3}, {ag}')
            a(f'v_cndmask_b32 v{aug}, v{aug}, v{vt3}, vcc')
    a(f'v_mul_u32_u24 v{vt1}, 203, v{vt1}')
    a(f'v_add_lshl_u32 v{vt2}, v{vt2}, v{vt1}, 10')
    a(f'v_add_lshl_u32 v{aug}, v{aug}, v{vt1}, 10')
    a(f'v_and_b32 v{vt0}, 15, v{vLANE}')
    a(f'v_add_u32 v{vt0}, s{sD}, v{vt0}')
    a(f'v_lshl_add_u32 v{dst}, v{vt0}, 4, v{vt2}')
    a(f'v_add_u32 v{dst}, {W3R:#x}, v{dst}')
    a(f'v_lshl_add_u32 v{aug}, v{vt0}, 2, v{aug}')
    a(f's_lshl_b32 s{sB}, s{sB}, 7')
    a(f's_add_u32 s{sB}, s{sB}, {W3R}')
    a(f'v_add_u32 v{aug}, s{sB}, v{aug}')


def setup_colsT(r):
    col, dst, aug = UC + 3 * r, UC + 3 * r + 1, UC + 3 * r + 2
    a(f'v_lshl_add_u32 v{vt0}, v{vHI}, 5, v{vSIG}')
    a(f'v_lshl_add_u32 v{col}, v{vt0}, 1, s{sG}')
    a(f'v_lshlrev_b32 v{dst}, 10, v{vHI}')
    a(f'v_lshl_add_u32 v{dst}, v{vRHO}, 4, v{dst}')
    a(f'v_mov_b32 v{aug}, {OOB:#x}')


def setup_wd(r, su):
    dst = UC + 3 * r + 1
    div7(sA, sB, su)
    a(f's_lshl_b32 s{sA}, s{sA}, 2')
    a(f's_add_u32 s{sA}, s{sA}, s{sW}')
    a(f's_mul_i32 s{sC}, s{sA}, {16*896}')
    a(f's_lshl_b32 s{sD}, s{sB}, 7')
    a(f's_add_u32 s{sC}, s{sC}, s{sD}')
    a(f's_add_u32 s{sD}, s{sC}, {8*896}')
    a(f'v_mul_u32_u24 v{vt0}, 896, v{vR8}')
    a(f'v_add_u32 v{vt0}, v{vt0}, v{vC8}')
    unit_dma(r, S_WD, vt0, sC, sD)
    setup_colsT(r)
    div7(sC, sD, sA)
    a(f's_mul_i32 s{sB}, s{sB}, {WDS}')
    a(f's_lshr_b32 s{sE}, s{sC}, 2')
    a(f's_mul_i32 s{sE}, s{sE}, 57344')
    a(f's_add_u32 s{sB}, s{sB}, s{sE}')
    a(f's_lshl_b32 s{sD}, s{sD}, 2')
    a(f's_and_b32 s{sC}, s{sC}, 3')
    a(f's_add_u32 s{sD}, s{sD}, s{sC}')
    a(f's_lshl_b32 s{sD}, s{sD}, 11')
    a(f's_add_u32 s{sB}, s{sB}, s{sD}')
    a(f's_add_u32 s{sB}, s{sB}, {WDR}')
    a(f'v_add_u32 v{dst}, s{sB}, v{dst}')


def setup_wo(r, su):
    dst = UC + 3 * r + 1
    div7(sA, sB, su)
    a(f's_lshl_b32 s{sA}, s{sA}, 2')
    a(f's_add_u32 s{sA}, s{sA}, s{sW}')
    a(f's_lshr_b32 s{sC}, s{sA}, 1')
    a(f's_mul_i32 s{sC}, s{sC}, {28*896}')
    a(f's_lshl_b32 s{sD}, s{sB}, 7')
    a(f's_add_u32 s{sC}, s{sC}, s{sD}')
    a(f's_and_b32 s{sD}, s{sA}, 1')
    a(f's_cselect_b32 s{sD}, {16*896}, 0')
    a(f's_cselect_b32 s{sE}, {14*896}, 0')
    a(f's_add_u32 s{sD}, s{sD}, s{sC}')
    a(f's_add_u32 s{sE}, s{sE}, s{sC}')
    a(f's_add_u32 s{sE}, s{sE}, {8*896}')
    a(f'v_mul_u32_u24 v{vt0}, 896, v{vR8}')
    a(f'v_add_u32 v{vt0}, v{vt0}, v{vC8}')
    unit_dma(r, S_WO, vt0, sD, sE)
    setup_colsT(r)
    a(f's_lshl_b32 s{sB}, s{sB}, 16')
    a(f's_lshl_b32 s{sC}, s{sA}, 11')
    a(f's_add_u32 s{sB}, s{sB}, s{sC}')
    a(f's_add_u32 s{sB}, s{sB}, {WOR}')
    a(f'v_add_u32 v{dst}, s{sB}, v{dst}')


def setup_none(r):
    col, dst, aug = UC + 3 * r, UC + 3 * r + 1, UC + 3 * r + 2
    a(f'v_mov_b32 v{col}, 0')
    a(f'v_mov_b32 v{dst}, {OOB:#x}')
    a(f'v_mov_b32 v{aug}, {OOB:#x}')


def rounds(tag):
    a('s_cmp_ge_u32 s2, 168')
    a(f's_cbranch_scc1 L_r0b{tag}')
    with cond():
        run_setup(setup_w1, 0, 2)
    a(f's_branch L_r0e{tag}')
    a.label(f'L_r0b{tag}')
    a('s_cmp_ge_u32 s2, 224')
    a(f's_cbranch_scc1 L_r0c{tag}')
    with cond():
        a(f's_sub_u32 s{sU}, s2, 168')
        run_setup(setup_wo, 0, sU)
    a(f's_branch L_r0e{tag}')
    a.label(f'L_r0c{tag}')
    with cond():
        a(f's_sub_u32 s{sU}, s2, 224')
        run_setup(setup_wd, 0, sU)
    a.label(f'L_r0e{tag}')
    run_setup(setup_w3, 1, 2, S_T0)
    a('s_cmp_ge_u32 s2, 136')
    a(f's_cbranch_scc1 L_r2b{tag}')
    with cond():
        a(f's_add_u32 s{sU}, s2, 256')
        run_setup(setup_w3, 2, sU, S_T1)
    a(f's_branch L_r2e{tag}')
    a.label(f'L_r2b{tag}')
    with cond():
        a(f's_sub_u32 s{sU}, s2, 104')
        run_setup(setup_wd, 2, sU)
    a.label(f'L_r2e{tag}')
    a('s_cmp_ge_u32 s2, 212')
    a(f's_cbranch_scc1 L_r3b{tag}')
    if PASS['p'] == 'dst':
        setup_none(3)
    a(f's_branch L_r3e{tag}')
    a.label(f'L_r3b{tag}')
    with cond():
        a(f's_sub_u32 s{sU}, s2, 60')
        run_setup(setup_wd, 3, sU)
    a.label(f'L_r3e{tag}')


def init_phase():
    Z = 216
    vGO = 215 + 9
    a(f's_lshl_b32 s{sA}, s{sW}, 3')
    a(f's_add_u32 s{sB}, s{sA}, s2')
    a(f's_mov_b32 s{sZW}, s{sB}')
    a(f's_cmp_ge_u32 s{sZW}, 8')
    a('s_cbranch_scc1 L_z1')
    with cond():
        a(f's_lshl_b32 s{sA}, s2, 11')
        a(f'buffer_store_dwordx4 {vr(Z,4)}, v{vL16}, {sr(S_WS,4)}, s{sA} offen sc1')
        a(f'buffer_store_dwordx4 {vr(Z,4)}, v{vL16}, {sr(S_WS,4)}, s{sA} offen offset:1024 sc1')
    a.label('L_z1')
    PASS['p'] = 'src'
    rounds('s')
    um = mark()
    a(f's_mul_i32 s{sI}, s{sTILE1}, 28672')
    a(f's_mul_i32 s{sH}, s{sW}, {28*K}')
    a(f's_add_u32 s{sH}, s{sH}, {LXS}')
    xq = []
    for g in range(4):
        for c in range(7):
            it = [f's_add_u32 m0, s{sH}, {(4*c+g)*K - c*128}',
                  f'buffer_load_dwordx4 v{vXS + (g & 1)}, {sr(S_X,4)}, s{sI} offen offset:{c*128} lds']
            if c == 6:
                it.append(f's_add_u32 s{sI}, s{sI}, {8*896}')
            xq.append(it)
    a(f's_mul_i32 s{sA}, s{sHC}, {14*128}')
    a(f's_add_u32 s{sA}, s{sA}, s{sI}')
    a(f'v_min_u32 v{vt0}, 13, v{vLANE}')
    a(f'v_lshlrev_b32 v{vt0}, 7, v{vt0}')
    a(f'buffer_load_dword v17, v{vt0}, {sr(S_X,4)}, s{sA} offen')
    stamp('issued')
    a(f's_cmp_ge_u32 s{sZW}, 8')
    a('s_cbranch_scc1 L_z2')
    with cond():
        a('s_waitcnt vmcnt(7)')
        a(f's_lshl_b32 s{sA}, s2, 5')
        emit(flag_store(S_DBG, f's{sA}', sc='sc1'))
    a.label('L_z2')
    PASS['p'] = 'dst'
    rounds('d')
    a(f's_lshl_b32 s{sA}, s{sW}, 8')
    a(f'v_add_u32 v{vt1}, s{sA}, v{vL4}')
    a(f'v_and_b32 v{vt3}, 7, v{vLANE}')
    a(f'v_lshlrev_b32 v{vt3}, 5, v{vt3}')
    a(f's_lshl_b32 s{sA}, s2, 10')
    a(f's_add_u32 s{sB}, s{sW}, 1')
    a(f's_lshl_b32 s{sB}, s{sB}, 24')
    a(f's_add_u32 s{sA}, s{sA}, s{sB}')
    a(f's_sub_u32 s{sB}, s{sA}, {2*LYB - ST1}')
    a(f's_cmp_eq_u32 s{sW}, 2')
    a(f's_cselect_b32 s{sA}, s{sB}, s{sA}')
    a(f's_cmp_ge_u32 s{sW}, 3')
    a(f's_cselect_b32 s{sA}, {OOB:#x}, s{sA}')
    a.wait(um, force=True)
    stamp('ldone')
    a(f'buffer_store_dwordx4 {vr(Z,4)}, v{vL16}, {sr(S_WS,4)}, s{sA} offen sc1')
    rtok = {}

    def gat(r, half):
        for e in range(8):
            rtok[r, half] = a(f'ds_read_u16 v{UD+16*r+8*half+e}, v{UC+3*r} offset:{r*2048+(8*half+e)*128}')
    gat(0, 0)
    for r in range(4):
        R = UD + 16 * r
        dst = UC + 3 * r + 1
        for half in range(2):
            nxt = 2 * r + half + 1
            if nxt < 8:
                gat(nxt // 2, nxt % 2)
            a.wait(rtok[r, half])
            for m in range(4):
                a(f'v_lshl_or_b32 v{R+8*half+m}, v{R+8*half+2*m+1}, 16, v{R+8*half+2*m}')
            a(f'buffer_store_dwordx4 {vr(R+8*half,4)}, v{dst}, {sr(S_WS,4)}, 0 offen offset:{512*half} sc1')
            for _ in range(XI):
                emit(xq.pop(0))
    for r in range(3):
        R = UD + 16 * r
        a(f'v_mov_b32 v{R+4}, 0')
        for m in range(4):
            a(f'v_dot2c_f32_bf16 v{R+4}, s{sONES}, v{R+m}')
            a(f'v_dot2c_f32_bf16 v{R+4}, s{sONES}, v{R+8+m}')
        a(f'ds_write_b32 v{vt1}, v{R+4} offset:{r*1024}')
    a(f'buffer_load_dword v{vGO}, v{vt3}, {sr(S_DBG,4)}, 0 offen sc1')
    stamp('packed') if 'initprof' in OPT else None
    a.wait_lg0()
    a.barrier()
    a(f's_cmp_eq_u32 s{sW}, 3')
    a('s_cbranch_scc1 L_aug_e')
    with cond():
        R = 220
        a(f'v_add_u32 v{vt0}, s{sW1K}, v{vL4}')
        a(f'ds_read2st64_b32 {vr(R,2)}, v{vt0} offset0:0 offset1:1')
        t = a(f'ds_read2st64_b32 {vr(R+2,2)}, v{vt0} offset0:2 offset1:3')
        a(f's_cmp_eq_u32 s{sW}, 1')
        a('s_cselect_b64 vcc, -1, 0')
        a(f'v_cndmask_b32 v{vt2}, v{UC+2}, v{UC+5}, vcc')
        a(f's_cmp_eq_u32 s{sW}, 2')
        a('s_cselect_b64 vcc, -1, 0')
        a(f'v_cndmask_b32 v{vt2}, v{vt2}, v{UC+8}, vcc')
        a(f'v_bfe_u32 v{vt0}, v{vt2}, 7, 3')
        a(f'v_cmp_eq_u32 vcc, 6, v{vt0}')
        a(f'v_mov_b32 v{vt1}, {OOB:#x}')
        a(f'v_cndmask_b32 v{vt0}, v{vt1}, v{vt2}, vcc')
        a(f'buffer_store_dword v{Z}, v{vt0}, {sr(S_WS,4)}, 0 offen offset:128 sc1')
        a.wait(t)
        a(f'v_add_f32 v{R}, v{R}, v{R+1}')
        a(f'v_add_f32 v{R+2}, v{R+2}, v{R+3}')
        a(f'v_add_f32 v{R}, v{R}, v{R+2}')
        a(f'v_cvt_pk_bf16_f32 v{R+1}, v{R}, v{R}')
        a(f'v_and_b32 v{R+1}, 0xffff0000, v{R+1}')
        a(f'v_sub_f32 v{R+1}, v{R}, v{R+1}')
        a(f'v_cvt_pk_bf16_f32 v{R+1}, v{R}, v{R+1}')
        a(f'buffer_store_dword v{R+1}, v{vt2}, {sr(S_WS,4)}, 0 offen sc1')
    a.label('L_aug_e')
    sm = mark()
    for _ in range(min(XA, len(xq))):
        emit(xq.pop(0))
    a.wait(sm, force=True)
    stamp('acked') if 'initprof' in OPT else None
    a.barrier()
    a(f's_cmp_lg_u32 s{sW}, 3')
    a('s_cbranch_scc1 L_ib')
    with cond():
        a(f'v_cmp_ne_u32 vcc, 1, v{vGO}')
        a('s_cmp_eq_u64 vcc, 0')
        a('s_cbranch_scc1 L_go_ok')
        with cond():
            poll(S_DBG, vt3, 0, sleep=2)
        a.label('L_go_ok')
        a(f'v_lshlrev_b32 v{vt0}, 12, v{vLANE}')
        a(f'v_mov_b32 v{vt1}, s{sXID}')
        a(f's_lshl_b32 s{sA}, s2, 4')
        a('s_mov_b64 exec, 15')
        a(f'buffer_store_dword v{vt1}, v{vt0}, {sr(S_WS,4)}, s{sA} offen sc1')
        a('s_mov_b64 exec, -1')
    a.label('L_ib')
    stamp('ibpub')
    while xq:
        emit(xq.pop(0))
    a(f's_mul_i32 s{sA}, s{sOWN}, 28672')
    a(f's_lshl_b32 s{sB}, s{sOFT}, 6')
    a(f's_add_u32 s{sA}, s{sA}, s{sB}')
    a(f'buffer_load_dwordx4 {vr(vXRES,4)}, v{vROW}, {sr(S_X,4)}, s{sA} offen')
    a(f'buffer_load_dwordx4 {vr(vXRES+4,4)}, v{vROW}, {sr(S_X,4)}, s{sA} offen offset:32')
    late_consts()
    a(f'v_lshrrev_b32 v{vt0}, 3, v{vRHO}')
    a(f'v_lshlrev_b32 v{vt0}, 10, v{vt0}')
    a(f'v_and_b32 v{vt1}, 7, v{vRHO}')
    a(f'v_lshl_add_u32 v{vt0}, v{vt1}, 7, v{vt0}')
    a(f'v_add_u32 v{vt0}, s{sH}, v{vt0}')
    a(f'v_bfe_u32 v{vt1}, v{vRHO}, 1, 3')
    a(f'v_xor_b32 v{vt1}, v{vt1}, v{vHI}')
    for q in range(4):
        a(f'v_xor_b32 v{220+q}, {2*q}, v{vt1}')
        a(f'v_lshl_add_u32 v{220+q}, v{220+q}, 4, v{vt0}')
    a(f'v_min_u32 v{vt0}, 20, v{vLANE}')
    a(f'v_mul_u32_u24 v{vt1}, 37, v{vt0}')
    a(f'v_lshrrev_b32 v{vt1}, 8, v{vt1}')
    a(f'v_mad_u32_u24 v{vt0}, v{vt1}, 49, v{vt0}')
    a(f's_lshr_b32 s{sA}, s{sHC}, 1')
    a(f's_mul_i32 s{sA}, s{sA}, 7')
    a(f'v_add_lshl_u32 v{vt2}, v{vt0}, s{sA}, 4')
    a.wait_vm_n(2)
    stamp('xland') if 'initprof' in OPT else None
    for ks in range(28):
        a(f'ds_read_b128 {vr(16+4*ks,4)}, v{220+(ks&3)} offset:{(ks>>2)*4096}')
    a.wait_lg0()
    a.barrier()
    a(f'v_mov_b32 v240, v{vt2}')
    x0_stats()
    stamp('stats')
    poll(S_WS, 240, f's{sREP}', nonzero=True)
    stamp('w1rdy')


def x0_stats():
    S0, S1, Q0, Q1 = 216, 217, 218, 219
    for v in (S0, S1, Q0, Q1):
        a(f'v_mov_b32 v{v}, 0')
    for i in range(0, 112, 2):
        a(f'v_dot2c_f32_bf16 v{S0}, s{sONES}, v{16+i}')
        a(f'v_dot2c_f32_bf16 v{Q0}, v{16+i}, v{16+i}')
        a(f'v_dot2c_f32_bf16 v{S1}, s{sONES}, v{17+i}')
        a(f'v_dot2c_f32_bf16 v{Q1}, v{17+i}, v{17+i}')
    a(f'v_add_f32 v{S0}, v{S0}, v{S1}')
    a(f'v_add_f32 v{S1}, v{Q0}, v{Q1}')
    emit(stats_finish(P1_XAUG))


vRSTD, vC2, vISTD = 248, 249, 250
P1_XAUG = 200


def stats_finish(xaug, SB=216):
    S, Q, t0, t1 = SB, SB + 1, SB + 2, SB + 3
    o = [f'v_mov_b32 v{t0}, v{S}',
         f'v_mov_b32 v{t1}, v{Q}',
         f'v_permlane32_swap_b32 v{S}, v{t0}',
         f'v_permlane32_swap_b32 v{Q}, v{t1}',
         f'v_add_f32 v{S}, v{S}, v{t0}',
         f'v_add_f32 v{Q}, v{Q}, v{t1}',
         f'v_mul_f32 v{S}, {INV448:#x}, v{S}',
         f'v_mul_f32 v{Q}, {INV448:#x}, v{Q}',
         f'v_fma_f32 v{Q}, -v{S}, v{S}, v{Q}',
         f'v_max_f32 v{Q}, 0, v{Q}',
         f'v_add_f32 v{Q}, {EPS5:#x}, v{Q}',
         f'v_rsq_f32 v{vRSTD}, v{Q}',
         f'v_cvt_pk_bf16_f32 v{xaug}, -v{S}, -v{S}',
         f'v_mul_f32 v{vISTD}, v{Q}, v{vRSTD}',
         f'v_mul_f32 v{vC2}, {LOG2E:#x}, v{vRSTD}']
    o += [f'v_mov_b32 v{xaug+i}, v{xaug}' for i in range(1, 4)]
    return o


def stats_sum(SB=216):
    o = []
    for i in range(1, 7):
        o.append(f'v_add_f32 v{SB}, v{SB}, v{SB+2*i}')
        o.append(f'v_add_f32 v{SB+1}, v{SB+1}, v{SB+2*i+1}')
    return o


def x_prep(fl, xb, stb):
    a(f'v_and_b32 v240, 15, v{vLANE}')
    a(f'v_min_u32 v240, 13, v240')
    a(f'v_lshlrev_b32 v240, 5, v240')
    a(f's_lshl_b32 s{sC}, s{sTILE1}, 9')
    a(f's_add_u32 s{sC}, s{sC}, {fl}')
    a(f's_lshl_b32 s{sD}, s{sTILE1}, 12')
    a(f's_add_u32 s{sD}, s{sD}, {stb}')
    a(f's_mul_i32 s{sE}, s{sTILE1}, {28*K}')
    a(f's_add_u32 s{sE}, s{sE}, {xb}')


def x_load(ks):
    if ks % 4 == 0 and ks:
        a(f's_add_u32 s{sE}, s{sE}, 4096')
    return a(f'buffer_load_dwordx4 {vr(16+4*ks,4)}, v{vL16}, {sr(S_DT,4)}, s{sE} offen offset:{(ks%4)*K} sc1')


def st_load(i, SB=216):
    return a(f'buffer_load_dwordx4 {vr(SB+4*i,4)}, v{vL16}, {sr(S_DT,4)}, s{sD} offen offset:{i*K} sc1')


def st_loads(SB=216):
    t = None
    for i in range(7):
        t = a(f'buffer_load_dwordx2 {vr(SB+2*i,2)}, v241, {sr(S_DT,4)}, s{sD} offen offset:{i*256} sc1')
    return t


def read_aug(dst, addr, tmp):
    a(f'v_add_u32 v{tmp}, {addr:#x}, v{vAUG}')
    a(f'ds_read2_b32 {vr(dst,2)}, v{tmp} offset0:0 offset1:32')
    return a(f'ds_read2_b32 {vr(dst+2,2)}, v{tmp} offset0:64 offset1:96')


def read_frag(dst, addr):
    v, off = lds_addr(addr)
    return a(f'ds_read_b128 {vr(dst,4)}, v{v} offset:{off}')


def wfrag_items(regfn, ssrc, lo, hi, va, vb, stmp):
    items = []
    for i, n in enumerate(range(lo, hi)):
        for b in range(2):
            it = []
            if i % 2 == 0 and b == 0:
                it.append(f's_add_u32 s{stmp}, s{ssrc}, {n*2048}')
            it.append(f'buffer_load_dwordx4 {regfn(n,b)}, v{(va,vb)[b]}, {sr(S_WS,4)}, s{stmp} offen offset:{(i%2)*2048} {WSC}')
            items.append(it)
    return items


def slot_addr_setup(va, vb):
    a(f's_and_b32 s{sA}, s{sW1K}, 0x400')
    a(f'v_add_u32 v{va}, s{sA}, v{vL16}')
    a(f'v_xor_b32 v{vb}, 0x400, v{va}')


def cost(x):
    op = x.split()[0]
    return 2 if op.startswith(('v_exp', 'v_rcp', 'v_rsq')) else 1


def drip(q, budget):
    while q and budget >= cost(q[0]):
        x = q.pop(0)
        budget -= cost(x)
        a(x)


CAP = int(OPT.get('cap', 6))
F1AT = int(OPT.get('f1at', 22))
PQSPLIT = int(OPT.get('pqsplit', 1))
WDP3 = int(OPT.get('wdp3', 40))
WDP1 = 8
PUBD2 = int(OPT.get('pubd2', 22))
PRET = int(OPT.get('pret', 1))
PUBD = int(OPT.get('pubd', 24))
S0T = int(OPT.get('s0t', 2))


def shadow(mem, vq, cap=None, pop=None):
    n0 = len(a.ins)
    for f in mem:
        if f is None:
            continue
        if callable(f):
            f()
        else:
            emit(f)
    budget = (CAP if cap is None else cap) - (len(a.ins) - n0)
    while vq and budget >= cost(vq[0]):
        budget -= cost(vq[0])
        if pop:
            pop()
        else:
            a(vq.pop(0))


def split_item(it):
    if it is None:
        return None, None
    return it[:-1], it[-1:]


ACK, ACV, ACQ = 128, 144, 160
P1WR = 176
P1RR2 = 216
p1D1, p1SA, p1SB = 204, 206, 207
p1RSW, p1RSR, p1OH = 208, 209, 210
LMODE = LRS + 1008


def FAST():
    return MODE['sfx'] != '_s'


def p1_setup(first):
    if not first:
        x_prep(F0 + LYB, *((X1, ST1) if FAST() else (X0 + LYB, ST0 + LYB)))
    slot_addr_setup(p1SA, p1SB)
    a(f'v_and_b32 v{p1OH}, 27, v{vLANE}')
    a(f'v_cmp_eq_u32 vcc, 26, v{p1OH}')
    a(f'v_cndmask_b32 v{p1OH}, 0, 1.0, vcc')
    a(f'v_mov_b32 v{p1OH+1}, v{p1OH}')
    a(f's_add_u32 s{sA}, s{sW4K}, {LKVS}')
    a(f'v_and_b32 v{p1RSW}, 31, v{vLANE}')
    a(f'v_lshl_add_u32 v{p1RSW}, v{p1RSW}, 2, s{sA}')
    a(f'v_lshrrev_b32 v{p1RSR}, 5, v{vLANE}')
    a(f'v_lshl_add_u32 v{p1RSR}, v{p1RSR}, 4, s{sA}')
    dma_setup(p1D1, sW3SRC, 0, LALPHA)


def phase1_kv(first):
    WR, XAUG, RR, RR2, KVD = P1WR, P1_XAUG, ACQ, P1RR2, 232
    vRSW, vRSR, vOH = p1RSW, p1RSR, p1OH
    PRE = XPRE
    xt, vq, st = {}, [], {}
    if first:
        dma_setup(205, sW1SRC, 0, 0)
        for it in dma_items(205, 0, 88, 2):
            emit(it)
        w1m = mark()
        p1_setup(True)
    else:
        poll(S_LY, 240, f's{sC}')
        stamp('p1poll')
        for ks in range(4):
            xt[ks] = x_load(ks)
        a(f's_add_u32 s{S_LY}, s{S_LY}, {LYB}')
        a(f's_addc_u32 s{S_LY+1}, s{S_LY+1}, 0')
        a.barrier()
    bg = ([] if first else code_touch(205)) + dma_items(p1D1, LALPHA, 56, 2)
    rt = {}
    stage = (0, 8, 16, 24) if first else ()

    def ib_check():
        a.wait(st['ib'])
        check_or_poll(254, S_WS, vL16, f's{sH}', nonzero=True)
        a(f's_and_b32 s{sA}, s2, 7')
        a(f'v_and_b32 v252, 7, v{vLANE}')
        a(f'v_cmp_eq_u32 {sr(sC,2)}, s{sA}, v252')
        a(f'v_cmp_ne_u32 vcc, s{sXID}, v254')
        a(f's_and_b64 vcc, vcc, {sr(sC,2)}')
        a(f's_cselect_b32 s{sZW}, 1, 0')

    def rd(ks, tl):
        if ks > 28:
            return
        if ks in stage and tl == 0:
            need_ops = 22 if ks == 24 else 2 * ((2 * (ks + 8) + 7) // 8)
            a.wait(('vm', w1m[1] - 22 + need_ops))
            if ks == 16:
                ib_check()
            a.barrier()
        d = WR + 8 * (ks % 3) + 4 * tl
        addr = (2 * ks + tl) * K
        rt[ks] = read_frag(d, addr) if ks < 28 else read_aug(d, addr, 252 + tl)
    for ks in range(2):
        rd(ks, 0); rd(ks, 1)
    if not first:
        for ks in range(4, PRE):
            xt[ks] = x_load(ks)
    rr = {}

    def stl(i):
        st['s'] = st_load(i)

    def xl(ks):
        xt[ks] = x_load(ks)

    def ibl():
        a(f's_add_u32 s{sH}, s{sREP}, s{sW1K}')
        st['ib'] = a(f'buffer_load_dword v254, v{vL16}, {sr(S_WS,4)}, s{sH} offen sc1')

    def rs_write():
        a(f'ds_write2_b32 v{vRSW}, v{vRSTD}, v{vC2} offset0:0 offset1:32')

    def rs_read(j):
        a(f'ds_read_b128 {vr(RR+4*j,4)}, v{vRSR} offset:{32*j}')
        rr[0] = a(f'ds_read_b128 {vr(RR2+4*j,4)}, v{vRSR} offset:{128+32*j}')
    for ks in range(29):
        if not first and ks == 15:
            a.wait(st['s'])
            vq += stats_sum() + stats_finish(XAUG)
        a.wait(rt[ks], xt.get(ks))
        X = vr(16 + 4 * ks, 4) if ks < 28 else vr(XAUG, 4)
        c = (lambda r: '0' if ks == 0 else vr(r, 16))
        if not first and ks + PRE < 28:
            pre, main = None, (lambda k_=ks + PRE: xl(k_))
        elif first and ks == 5:
            pre, main = None, ibl
        else:
            pre, main = split_item(bg.pop(0) if bg and (ks >= 15 or not first) else None)
        a(f'{MF} {vr(ACK,16)}, {X}, {vr(WR+8*(ks%3),4)}, {c(ACK)}')
        shadow([pre, lambda: rd(ks + 2, 0), main], vq)
        a(f'{MF} {vr(ACV,16)}, {X}, {vr(WR+8*(ks%3)+4,4)}, {c(ACV)}')
        extra = None
        if not first and ks < 8 and ks % 2 == 0:
            extra = (lambda i=ks // 2: stl(i))
        if ks == 23:
            assert not vq
            extra = rs_write
        if 24 <= ks <= 27:
            extra = (lambda j=ks - 24: rs_read(j))
        shadow([lambda: rd(ks + 2, 1), extra], vq)
    stamp('p1kv')
    qt = {}

    def rq(ks):
        if ks > 28:
            return
        d = WR + 4 * (ks % 6)
        addr = (58 + ks) * K
        qt[ks] = read_frag(d, addr) if ks < 28 else read_aug(d, addr, 252)
    for ks in range(4):
        rq(ks)
    KS = LRS
    a(f's_lshl_b32 s{sB}, s{sHC}, 12')
    a(f's_add_u32 s{sB}, s{sB}, s{sW1K}')
    a.wait(rr[0])
    for r in range(0, 16, 2):
        a(f'v_pk_mul_f32 {vr(ACK+r,2)}, {vr(ACK+r,2)}, {vr(RR2+r,2)}')
    if first:
        bg += wfrag_items(lambda n_, b: ar(8 * n_ + 4 * b, 4), sWDSRC, 0, WDP1 // 2, p1SA, p1SB, sF)

    def bgp():
        if bg:
            emit(bg.pop(0))
    for r in range(16):
        a(f'v_exp_f32_e64 v{RR2+r}, v{ACK+r} clamp')
        a(f'v_max_f32 v{ACK+r}, 0, v{ACK+r}')
        if r % 5 == 0:
            bgp()
    for r in range(0, 16, 2):
        a(f'v_pk_fma_f32 {vr(ACV+r,2)}, {vr(ACV+r,2)}, {vr(RR+r,2)}, {vr(vOH,2)}')
        a(f'v_pk_fma_f32 {vr(RR2+r,2)}, {vr(ACK+r,2)}, {sr(sLN2,2)}, {vr(RR2+r,2)}')
    bgp()
    for r in range(0, 16, 2):
        a(f'v_pk_add_f32 {vr(RR2+r,2)}, {vr(RR2+r,2)}, {sr(sEPS6,2)}')
        a(f'v_cvt_pk_bf16_f32 v{ACV+r//2}, v{ACV+r}, v{ACV+r+1}')
    bgp()
    for m in range(4):
        a(f'v_cvt_pk_bf16_f32 v{ACK+m}, v{RR2+2*m}, v{RR2+2*m+1}')
    a(f'{MF} {vr(KVD,16)}, {vr(ACK,4)}, {vr(ACV,4)}, 0')
    for m in range(4, 8):
        a(f'v_cvt_pk_bf16_f32 v{ACK+m}, v{RR2+2*m}, v{RR2+2*m+1}')
    a(f's_add_u32 s{sA}, s{sW4K}, {LKVS}')
    a(f'v_add_u32 v{vRSW}, s{sA}, v{vL16}')
    a(f'{MF} {vr(KVD,16)}, {vr(ACK+4,4)}, {vr(ACV+4,4)}, {vr(KVD,16)}')
    a(f's_add_u32 s{sA}, s{sW1K}, {LKVS}')
    a(f'v_add_u32 v{vRSR}, s{sA}, v{vL4}')
    if first:
        a(f's_lshl_b32 s{sA}, s{sW}, 2')
        a(f's_add_u32 s{sA}, s{sA}, {LRS}')
        a(f'v_mov_b32 v252, s{sA}')
        a(f'v_mov_b32 v253, s{sZW}')
        a('ds_write_b32 v252, v253')
        a(f'v_mov_b32 v252, {LRS}')

    def qstep(ks, mem=(), vq_=None):
        a.wait(qt[ks])
        X = vr(16 + 4 * ks, 4) if ks < 28 else vr(XAUG, 4)
        a(f'{MF} {vr(ACQ,16)}, {vr(WR+4*(ks%6),4)}, {X}, {"0" if ks == 0 else vr(ACQ,16)}')
        shadow([lambda: rq(ks + 4)] + list(mem), vq_ if vq_ is not None else [])
    qstep(0, [bgp])
    for q in range(4):
        kw = a(f'ds_write_b128 v{vRSW}, {vr(KVD+4*q,4)} offset:{q*K}')
    qstep(1, [bgp])
    a.wait(kw)
    a.barrier()
    RED = RR2
    for wp in range(4):
        a(f'ds_read2st64_b32 {vr(RED+4*wp,2)}, v{vRSR} offset0:{16*wp} offset1:{16*wp+1}')
        t = a(f'ds_read2st64_b32 {vr(RED+4*wp+2,2)}, v{vRSR} offset0:{16*wp+2} offset1:{16*wp+3}')
    if first:
        mt = a(f'ds_read_b128 {vr(KVD,4)}, v252')
    qstep(2)
    a.wait(t)
    for i in range(4):
        a(f'v_add_f32 v{RED+i}, v{RED+i}, v{RED+4+i}')
        a(f'v_add_f32 v{RED+8+i}, v{RED+8+i}, v{RED+12+i}')
    for i in range(4):
        a(f'v_add_f32 v{RED+i}, v{RED+i}, v{RED+8+i}')
    for i in range(4):
        at = a(f'buffer_atomic_add_f32 v{RED+i}, v{vL4}, {sr(S_LY,4)}, s{sB} offen offset:{i*256}')
    stamp('p1atom')
    if first:
        a.wait(mt)
        a(f'v_or_b32 v{KVD}, v{KVD}, v{KVD+1}')
        a(f'v_or3_b32 v{KVD}, v{KVD}, v{KVD+2}, v{KVD+3}')
        a(f'v_readfirstlane_b32 s{sA}, v{KVD}')
        a(f's_cmp_lg_u32 s{sA}, 0')
        a('s_cbranch_scc1 L_slow')
    return dict(qstep=qstep, at=at, qt=qt, bg=bg, state=(a.vm_issued, a.vm_done, a.lg_issued, a.lg_done), qt0=dict(qt))


def phase1_q(ctx, first):
    qstep, at = ctx['qstep'], ctx['at']
    vRSW, vRSR, RR2 = p1RSW, p1RSR, P1RR2
    wo = wfrag_items(lambda n, b: vr(16 + 8 * n + 4 * b, 4), sWOSRC, 0, 8, p1SA, p1SB, sF)
    wo = list(ctx['bg']) + wo
    if first and FAST():
        wo = [[f's_cmp_ge_u32 s{sJ}, 28', f's_cselect_b32 s{sI}, {OOB:#x}, s{sOX}', f's_add_u32 s{sI}, s{sI}, {X1}',
               f'buffer_store_dwordx4 {vr(vXRES,4)}, v{vL16}, {sr(S_DT,4)}, s{sI} offen sc1'],
              [f'buffer_store_dwordx4 {vr(vXRES+4,4)}, v{vL16}, {sr(S_DT,4)}, s{sI} offen offset:1024 sc1']] + wo
    pqoff = PQ if (FAST() or first) else PQ + LYB
    vq = [f's_lshl_b32 s{sG}, s{sHC}, 8',
          f's_lshl_b32 s{sB}, s{sRBG}, 4',
          f's_add_u32 s{sG}, s{sG}, s{sB}',
          f's_add_u32 s{sG}, s{sG}, {F1}',
          f's_cmp_lg_u32 s{sW}, 3\ns_cselect_b32 s{sG}, {OOB:#x}, s{sG}',
          f's_lshl_b32 s{sA}, s{sTILE1}, 15',
          f's_lshl_b32 s{sB}, s{sHC}, 11',
          f's_add_u32 s{sA}, s{sA}, s{sB}',
          f's_add_u32 s{sA}, s{sA}, {pqoff}',
          f's_lshl_b32 s{sU}, s{sTILE1}, 9',
          f's_lshl_b32 s{sB}, s{sHC}, 5',
          f's_add_u32 s{sU}, s{sU}, s{sB}',
          f's_add_u32 s{sU}, s{sU}, {F1Q}',
          f'v_lshlrev_b32 v{vRSW}, 12, v{vLANE}',
          f'v_mov_b32 v{vRSR}, 1',
          f'v_mov_b32 v{vC2+2}, v{vC2}',
          f'v_mov_b32 v{ACK+7}, 0']
    for ks in range(3, 29):
        qstep(ks, [wo.pop(0)] if ks % 2 == 1 else [], vq)
        if ks == F1AT:
            a.wait(at)
            a.barrier()
            a('s_mov_b64 exec, 15')
            a(f'buffer_store_dword v{vRSR}, v{vRSW}, {sr(S_LY,4)}, s{sG} offen sc1')
            a('s_mov_b64 exec, -1')
            stamp('p1pub')
    a('s_nop 4')
    stamp('p1q')
    T = RR2
    for r in range(0, 14, 2):
        a(f'v_pk_mul_f32 {vr(ACQ+r,2)}, {vr(ACQ+r,2)}, {vr(vC2+1,2)} op_sel:[0,1] op_sel_hi:[1,1]')
    for r in range(14):
        a(f'v_exp_f32_e64 v{T+r}, v{ACQ+r} clamp')
        a(f'v_max_f32 v{ACQ+r}, 0, v{ACQ+r}')
    for r in range(0, 14, 2):
        a(f'v_pk_fma_f32 {vr(T+r,2)}, {vr(ACQ+r,2)}, {sr(sLN2,2)}, {vr(T+r,2)}')
    for r in range(0, 14, 2):
        a(f'v_pk_add_f32 {vr(T+r,2)}, {vr(T+r,2)}, {sr(sEPS6,2)}')
    for m in range(7):
        a(f'v_cvt_pk_bf16_f32 v{ACK+m}, v{T+2*m}, v{T+2*m+1}')
    sc = 'sc1' if first else LS()
    a(f'buffer_store_dwordx4 {vr(ACK,4)}, v{vL16}, {sr(S_DT,4)}, s{sA} offen {sc}')
    pst = a(f'buffer_store_dwordx4 {vr(ACK+4,4)}, v{vL16}, {sr(S_DT,4)}, s{sA} offen offset:1024 {sc}')
    if not FAST() and not first:
        a(f's_mov_b32 s{S_DT}, s{S_LY}')
        a(f's_mov_b32 s{S_DT+1}, s{S_LY+1}')
    for it in wo:
        emit(it)
    p2_setup()
    a.barrier()
    a.wait(pst)
    emit(flag_store(S_LY, f's{sU}'))
    stamp('p1end')


ACC0, ACC1 = 208, 224
AAC2, AAC3 = 224, 240


def accs(s):
    return [vr(ACC0, 16), vr(ACC1, 16), ar(AAC2, 16), ar(AAC3, 16)][s]


def red_setup(base, RA):
    o = []
    for s in (1, 2, 3):
        o += [f's_xor_b32 s{sA}, s{sW}, {s}',
              f's_mul_i32 s{sA}, s{sA}, 12288',
              f's_add_u32 s{sA}, s{sA}, {base + (s-1)*4096}',
              f'v_add_u32 v{RA+s}, s{sA}, v{vL16}']
    o += [f's_mul_i32 s{sA}, s{sW}, 12288',
          f's_add_u32 s{sA}, s{sA}, {base}',
          f'v_add_u32 v{RA}, s{sA}, v{vL16}']
    return o


def red_write(s, RA):
    o = []
    for q in range(4):
        d = [None, vr(ACC1 + 4 * q, 4), ar(AAC2 + 4 * q, 4), ar(AAC3 + 4 * q, 4)][s]
        o.append(f'ds_write_b128 v{RA+s}, {d} offset:{q*K}')
    return o


sOX, sOS, sOF = 97, 98, 99


def own_consts():
    a(f's_mul_i32 s{sOX}, s{sOWN}, {28*K}')
    a(f's_lshl_b32 s{sB}, s{sOFT}, 11')
    a(f's_add_u32 s{sOX}, s{sOX}, s{sB}')
    a(f's_lshl_b32 s{sOS}, s{sOWN}, 12')
    a(f's_cmp_ge_u32 s{sOFT}, 7')
    a(f's_cselect_b32 s{sA}, 7, 0')
    a(f's_cselect_b32 s{sB}, 512, 0')
    a(f's_add_u32 s{sOS}, s{sOS}, s{sB}')
    a(f's_sub_u32 s{sA}, s{sOFT}, s{sA}')
    a(f's_lshr_b32 s{sB}, s{sA}, 1')
    a(f's_lshl_b32 s{sB}, s{sB}, 10')
    a(f's_add_u32 s{sOS}, s{sOS}, s{sB}')
    a(f's_and_b32 s{sA}, s{sA}, 1')
    a(f's_lshl_b32 s{sA}, s{sA}, 3')
    a(f's_add_u32 s{sOS}, s{sOS}, s{sA}')
    a(f's_lshl_b32 s{sOF}, s{sOWN}, 9')
    a(f's_lshl_b32 s{sB}, s{sOFT}, 5')
    a(f's_add_u32 s{sOF}, s{sOF}, s{sB}')


def res_unpack(RU):
    o = []
    for m in range(8):
        o.append(f'v_lshlrev_b32 v{RU+2*m}, 16, v{vXRES+m}')
        o.append(f'v_and_b32 v{RU+2*m+1}, 0xffff0000, v{vXRES+m}')
    return o


def red_finish(final, RB, RU, RA, nm, xb, stb, flb, sc, mid):
    a.wait_lg0()
    a.barrier()
    toks = []
    for i in range(12):
        toks.append(a(f'ds_read_b128 {vr(RB+4*i,4)}, v{RA} offset:{i*K}'))
    if final is not True:
        a(f's_add_u32 s{sA}, s{sOX}, {xb}')
        a(f's_add_u32 s{sB}, s{sOS}, {stb}')
        a(f's_add_u32 s{sZW}, s{sOF}, {flb}')
    for r in range(0, 16, 2):
        a(f'v_pk_add_f32 {vr(ACC0+r,2)}, {vr(ACC0+r,2)}, {vr(RU+r,2)}')
    S, Q, t0, t1, tl = RU, RU + 1, RU + 2, RU + 3, RU + 4
    if final is not True:
        a(f'v_mov_b32 v{S}, 0')
        a(f'v_mov_b32 v{Q}, 0')
    for s in range(3):
        a.wait(toks[4 * s + 3])
        for r in range(0, 16, 2):
            a(f'v_pk_add_f32 {vr(ACC0+r,2)}, {vr(ACC0+r,2)}, {vr(RB+16*s+r,2)}')
    for m in range(8):
        a(f'v_cvt_pk_bf16_f32 v{vXRES+m}, v{ACC0+2*m}, v{ACC0+2*m+1}')
    if final is True:
        final_store()
        return
    if final == 'dyn':
        a(f's_cmp_lg_u32 s{sL}, 0')
        a('s_cbranch_scc1 ' + LB_('L_final'))
    a(f'buffer_store_dwordx4 {vr(vXRES,4)}, v{vL16}, {sr(S_DT,4)}, s{sA} offen {sc}')
    a(f'buffer_store_dwordx4 {vr(vXRES+4,4)}, v{vL16}, {sr(S_DT,4)}, s{sA} offen offset:1024 {sc}')
    for m in range(8):
        a(f'v_dot2c_f32_bf16 v{S}, s{sONES}, v{vXRES+m}')
        a(f'v_dot2c_f32_bf16 v{Q}, v{vXRES+m}, v{vXRES+m}')
    a(f'v_mov_b32 v{t0}, v{S}')
    a(f'v_mov_b32 v{t1}, v{Q}')
    a(f'v_permlane32_swap_b32 v{S}, v{t0}')
    a(f'v_permlane32_swap_b32 v{Q}, v{t1}')
    a(f'v_pk_add_f32 {vr(S,2)}, {vr(S,2)}, {vr(t0,2)}')
    a('s_mov_b32 exec_hi, 0')
    lt = a(f'buffer_store_dwordx2 {vr(S,2)}, v{vL16}, {sr(S_DT,4)}, s{sB} offen {sc}')
    a('s_mov_b64 exec, -1')
    stamp(nm + 'st')
    mid()
    a.wait(lt)
    emit(flag_store(S_LY, f's{sZW}'))


def final_store():
    a(f'v_and_b32 v18, 31, v{vLANE}')
    a(f'v_lshrrev_b32 v19, 5, v{vLANE}')
    a(f'v_mul_u32_u24 v{vROW}, 896, v18')
    a(f'v_lshl_add_u32 v{vROW}, v19, 4, v{vROW}')
    a(f's_mul_i32 s{sA}, s{sOWN}, 28672')
    a(f's_lshl_b32 s{sB}, s{sOFT}, 6')
    a(f's_add_u32 s{sA}, s{sA}, s{sB}')
    a(f'buffer_store_dwordx4 {vr(vXRES,4)}, v{vROW}, {sr(S_OUT,4)}, s{sA} offen')
    a(f'buffer_store_dwordx4 {vr(vXRES+4,4)}, v{vROW}, {sr(S_OUT,4)}, s{sA} offen offset:32')


def p2_setup():
    dma_setup(vROW, sW3SRC, 56 * K, LBETA)
    a(f'v_and_b32 v240, 3, v{vLANE}')
    a(f'v_lshlrev_b32 v240, 5, v240')
    a(f'v_bfe_u32 v241, v{vLANE}, 2, 1')
    a(f'v_lshl_add_u32 v240, v241, 9, v240')
    a(f's_lshl_b32 s{sC}, s{sTILE2}, 9')
    a(f's_lshl_b32 s{sA}, s{sW}, 7')
    a(f's_add_u32 s{sC}, s{sC}, s{sA}')
    a(f's_add_u32 s{sC}, s{sC}, {F1Q}')
    a(f's_lshl_b32 s{sE}, s{sOWN}, 15')
    a(f's_lshl_b32 s{sA}, s{sW}, 13')
    a(f's_add_u32 s{sE}, s{sE}, s{sA}')
    a(f's_add_u32 s{sE}, s{sE}, {PQ}')
    a(f's_xor_b32 s{sF}, s{sE}, 0x8000')
    a(f's_add_u32 s{sH}, s{sREP}, s{sW1K}')
    a(f's_add_u32 s{sH}, s{sH}, {F1}')
    a(f's_lshl_b32 s{sD}, s{sW}, 14')


def phase2(L):
    WO, PQR, KVR = 16, 80, 144
    ODS = (240, 160)
    KB = (144, 152, 176, 192)
    tag = f'{L}'
    beta = dma_items(vROW, LBETA, 56, 2)
    for it in code_touch(205):
        emit(it)
    a(f's_cmp_ge_u32 s{sJ}, 28')
    with cold('s_cbranch_scc1', back=LB_('L_p2skip' + tag)):
        for it in beta:
            emit(it)
        p3_setup(L)
    with cond():
        poll(S_LY, 240, f's{sC}')
        stamp('p2pq')
        pt = {}
        for aa, s in ((1, sF), (0, sE)):
            for hl in range(4):
                for ks in range(2):
                    pt[hl, aa] = a(f'buffer_load_dwordx4 {vr(PQR+16*hl+8*aa+4*ks,4)}, v{vL16}, {sr(S_DT,4)}, s{s} offen offset:{(hl%2)*2048+ks*K} sc1')
                if hl == 1:
                    a(f's_add_u32 s{s}, s{s}, 4096')
                if aa == 1 and hl == 1:
                    fchk = a(f'buffer_load_dword v253, v{vL16}, {sr(S_LY,4)}, s{sH} offen sc1')
                if aa == 0 and hl == PQSPLIT:
                    break
        a.wait(fchk)
        check_or_poll(253, S_LY, vL16, f's{sH}', sleep=0)
        stamp('p2poll')
        kt = {}
        lq = []

        def kvl(hl, q):
            kt[hl] = a(f'buffer_load_dwordx4 {vr(KVR+16*hl+4*q,4)}, v{vL16}, {sr(S_LY,4)}, s{sD} offen offset:{q*K} sc1')
            if q == 3:
                a(f's_add_u32 s{sD}, s{sD}, 4096')

        def pql(hl, ks):
            pt[hl, 0] = a(f'buffer_load_dwordx4 {vr(PQR+16*hl+4*ks,4)}, v{vL16}, {sr(S_DT,4)}, s{sE} offen offset:{(hl%2)*2048+ks*K} sc1')
            if hl == 1 and ks == 1:
                a(f's_add_u32 s{sE}, s{sE}, 4096')
        for hl in range(4):
            for q in range(4):
                kvl(hl, q)
        for hl in range(PQSPLIT + 1, 4):
            for ks in range(2):
                lq.append(lambda h_=hl, k_=ks: pql(h_, k_))
        beta = lq + beta

        def cvt(hl):
            return [f'v_cvt_pk_bf16_f32 v{KB[hl]+m}, v{KVR+16*hl+2*m}, v{KVR+16*hl+2*m+1}' for m in range(8)]
        units = [(hl, aa) for aa in (1, 0) for hl in range(4)]

        def oM(u):
            hl, aa = units[u]
            D = vr(ODS[u % 2], 16)
            P = PQR + 16 * hl + 8 * aa
            return [f'{MF} {D}, {vr(KB[hl],4)}, {vr(P,4)}, 0',
                    f'{MF} {D}, {vr(KB[hl]+4,4)}, {vr(P+4,4)}, {D}']

        def scale(u):
            hl, aa = units[u]
            D = ODS[u % 2]
            P = PQR + 16 * hl + 8 * aa
            o = [f'v_add_f32 v{D+14}, s{sEPS6}, v{D+14}',
                 f'v_rcp_f32 v{D+14}, v{D+14}',
                 f'v_mov_b32 v{P+7}, 0']
            for m in range(7):
                o.append(f'v_mul_f32 v{D+2*m}, v{D+2*m}, v{D+14}')
                o.append(f'v_mul_f32 v{D+2*m+1}, v{D+2*m+1}, v{D+14}')
                o.append(f'v_cvt_pk_bf16_f32 v{P+m}, v{D+2*m}, v{D+2*m+1}')
            return o

        def woM(u, bs):
            hl, aa = units[u]
            P = PQR + 16 * hl + 8 * aa
            o = []
            for b in bs:
                for ks in range(2):
                    D = accs(2 * aa + b)
                    c = '0' if (hl == 0 and ks == 0) else D
                    o.append(f'{MF} {D}, {vr(WO+16*hl+8*ks+4*b,4)}, {vr(P+4*ks,4)}, {c}')
            return o
        RU, RA = 160, 184
        a.wait(kt[0])
        emit(cvt(0))
        emit(oM(0))
        a.wait(kt[1])
        emit(cvt(1))
        m1 = oM(1)
        vs = scale(0)
        a(m1[0]); shadow([], vs)
        a(m1[1]); emit(vs)
        wr = []
        for u in range(9):
            if u < 4:
                ms = woM(u, (0, 1))
            elif u < 8:
                ms = woM(u, (1,)) + (woM(u - 2, (0,)) if u >= 6 else [])
            else:
                ms = woM(6, (0,)) + woM(7, (0,))
            vs = scale(u + 1) if u + 1 < 8 else []
            if u < 2:
                a.wait(kt[u + 2])
                vs = cvt(u + 2) + vs
            if u == 2:
                vs = vs + red_setup(LB, RA)[:8]
            if u == 3:
                vs = vs + red_setup(LB, RA)[8:]
            if u == 4:
                wr = red_write(2, RA) + red_write(3, RA)
            if u == 7:
                vs = res_unpack(RU)
            if u == 8:
                wr = wr + red_write(1, RA)
            if u + 2 < 8:
                ms = ms[:2] + ['W'] + oM(u + 2) + ms[2:]
            k_ = 0
            for m in ms:
                if m == 'W':
                    a.wait(pt[units[u + 2]])
                    if u < 2:
                        while any(x in vs for x in cvt(u + 2)):
                            a(vs.pop(0))
                    continue
                a(m)
                mem = []
                if beta and k_ % 2 == 0:
                    mem.append(beta.pop(0))
                if wr and (k_ % 2 == 1 or u == 8) and not (u in (4, 8) and k_ == 0):
                    mem.append(wr[:1]); wr = wr[1:]
                shadow(mem, vs)
                k_ += 1
            emit(vs)
        assert not beta
        stamp('p2mfma')
        emit(wr)
        sc = LS()
        red_finish(False, 80, RU, RA, 'p2', X1, ST1, F2, sc, lambda: p3_setup(L))
    a.label(LB_('L_p2skip' + tag))
    stamp('p2end')


p3D1, p3D3, p3SA, p3SB = 228, 229, 240, 241
p3D2 = 243
p3FL, p3HA, p3HB, p3FV = 244, 245, 246, 247


def p3_setup(L):
    vFL, vHA, vHB = p3FL, p3HA, p3HB
    x_prep(F2, X1, ST1)
    dma_setup(p3D3, sW3SRC, 112 * K, LB)
    dma_setup(p3D1, sW3SRC, 147 * K, LALPHA)
    if L is None:
        a(f's_cmp_lg_u32 s{sL}, 0')
        a(f's_cselect_b32 s{sA}, {OOB:#x}, s{sW1SRC}')
        a(f'v_add_u32 v{p3D2}, s{sA}, v{vL16}')
    elif L == 0:
        a(f'v_add_u32 v{p3D2}, s{sW1SRC}, v{vL16}')
    a(f's_mul_i32 s{sG}, s{sTILE1}, {112*K}')
    a(f's_mul_i32 s{sA}, s{sHC}, {7*K}')
    a(f's_add_u32 s{sG}, s{sG}, s{sA}')
    a(f's_add_u32 s{sG}, s{sG}, {HB}')
    a(f's_add_u32 s{sH}, s{sG}, 4096')
    a(f's_lshl_b32 s{sU}, s{sTILE1}, 9')
    a(f's_lshl_b32 s{sA}, s{sHC}, 2')
    a(f's_add_u32 s{sU}, s{sU}, s{sA}')
    a(f's_add_u32 s{sU}, s{sU}, {F3}')


def p4_addr():
    vFL, vHA, vHB = p3FL, p3HA, p3HB
    return [f'v_and_b32 v{vFL}, 3, v{vLANE}',
            f'v_lshlrev_b32 v{vFL}, 2, v{vFL}',
            f'v_bfe_u32 v{vHA}, v{vLANE}, 2, 1',
            f'v_lshl_add_u32 v{vFL}, v{vHA}, 9, v{vFL}',
            f's_lshl_b32 s{sA}, s{sTILE2}, 9',
            f's_lshl_b32 s{sB}, s{sW}, 4',
            f's_add_u32 s{sA}, s{sA}, s{sB}',
            f's_add_u32 s85, s{sA}, {F3}',
            f'v_add_u32 v{vFL}, s85, v{vFL}',
            f's_mul_i32 s{sB}, s{sW}, {28*K}',
            f's_add_u32 s{sB}, s{sB}, {HB}',
            f's_mul_i32 s{sA}, s{sOWN}, {112*K}',
            f's_add_u32 s{sA}, s{sA}, s{sB}',
            f'v_add_u32 v{vHA}, s{sA}, v{vL16}',
            f's_xor_b32 s{sA}, s{sOWN}, 1',
            f's_mul_i32 s{sA}, s{sA}, {112*K}',
            f's_add_u32 s{sA}, s{sA}, s{sB}',
            f'v_add_u32 v{vHB}, s{sA}, v{vL16}']


def phase34(L):
    ACC = 128
    WR, NW = 192, 8
    SB = 176
    XAUG = 224
    vD1, vD3, vSA, vSB, vD2 = p3D1, p3D3, p3SA, p3SB, p3D2
    vFL, vHA, vHB, vFV = p3FL, p3HA, p3HB, p3FV
    vFV2 = 242
    PRE = XPRE
    HR, NH = 16, 28
    tag = f'{L}'
    LOOK = 6
    steps = [(t, ks) for ks in range(29) for t in range(2)]
    for t in range(2, 7):
        steps += [(t, ks) for ks in range(29)]

    def addr(t, ks):
        if ks == 28 and t < 3:
            return LBETA + t * K
        if t < 2:
            return LALPHA + (2 * ks + t) * K
        if t == 2:
            return LBETA + (3 + ks) * K
        if t == 3:
            return LBETA + (31 + ks) * K
        if t == 4:
            return LB + (4 + ks) * K
        if t == 5:
            return LALPHA + ks * K
        return LALPHA + (29 + ks) * K if ks < 27 else LB + (33 + ks - 27) * K
    n = len(steps)
    accof = {0: 0, 1: 1, 2: 2, 3: 3, 4: 0, 5: 1, 6: 2}
    rt, xt, hst, ht, chk = {}, {}, {}, {}, {}

    def hsc(t):
        return LS() if (HT and (L == 1 or HT > 1)) else 'sc1'

    def epi(t, D=None, Sx=None):
        Sx = ACC + 16 * accof[t] if Sx is None else Sx
        D = Sx if D is None else D
        o = []
        for r in range(8):
            o.append(f'v_mul_f32 v{D+r}, v{Sx+r}, v{vC2}')
        for r in range(8):
            o.append(f'v_exp_f32_e64 v{D+r}, -v{D+r}')
            if r >= 2:
                o.append(f'v_fma_f32 v{D+r-2}, v{D+r-2}, v{vISTD}, v{vISTD}')
        for r in (6, 7):
            o.append(f'v_fma_f32 v{D+r}, v{D+r}, v{vISTD}, v{vISTD}')
        for r in range(8):
            o.append(f'v_rcp_f32 v{D+r}, v{D+r}')
            if r >= 2:
                o.append(f'v_mul_f32 v{D+r-2}, v{D+r-2}, v{Sx+8+r-2}')
        for r in (6, 7):
            o.append(f'v_mul_f32 v{D+r}, v{D+r}, v{Sx+8+r}')
        for m in range(4):
            o.append(f'v_cvt_pk_bf16_f32 v{D+8+m}, v{D+2*m}, v{D+2*m+1}')
        s = sG if t < 4 else sH
        o.append(f'buffer_store_dwordx4 {vr(D+8,4)}, v{vL16}, {sr(S_DT,4)}, s{s} offen offset:{(t%4)*K} {hsc(t)} ; H{t}')
        return o

    def issue_rd(i):
        if i >= n:
            return
        t, ks = steps[i]
        d = WR + 4 * (i % NW)
        rt[i] = read_frag(d, addr(t, ks)) if ks < 28 else read_aug(d, addr(t, ks), 251 + (i % 3))

    def flag_ld(stg):
        if stg == 0 or not FAST():
            chk[stg] = a(f'buffer_load_dword v{vFV}, v{vFL}, {sr(S_LY,4)}, 0 offen offset:{64*stg} sc1')
        else:
            a(f's_buffer_load_dwordx4 s[76:79], {sr(S_LY,4)}, s85 offset:{64*stg}')
            a(f's_buffer_load_dwordx4 s[80:83], {sr(S_LY,4)}, s85 offset:{64*stg+512}')

    def flag_chk(stg):
        if FAST():
            a('s_waitcnt lgkmcnt(0)')
            a('s_and_b64 s[76:77], s[76:77], s[78:79]')
            a('s_and_b64 s[80:81], s[80:81], s[82:83]')
            a('s_and_b64 s[76:77], s[76:77], s[80:81]')
            a('s_and_b32 s76, s76, s77')
        else:
            a.wait(chk[stg])
            a(f'v_cmp_ne_u32 vcc, 1, v{vFV}')
            a('s_cmp_eq_u64 vcc, 0')
        assert 6 in hst
        with cold('s_cbranch_scc0'):
            a.wait_vm0()
            emit(flag_store(S_LY, f's{sU}', imm=128))
            emit(flag_store(S_LY, f's{sU}', imm=192))
            poll(S_LY, vFL, 0, imm=64 * stg)

    CHK = {24: 1, 40: 2, 48: 3}

    def hld(idx, chkflags=True):
        if idx >= 56:
            return
        if chkflags and idx + 4 in CHK:
            flag_ld(CHK[idx + 4])
        if chkflags and idx in CHK:
            flag_chk(CHK[idx])
        n_, aa = idx // 2, idx % 2
        t, cc = n_ // 4, n_ % 4
        if aa == 0:
            a(f's_mov_b32 s{sE}, {(cc*7+t)*K}')
        ht[idx] = a(f'buffer_load_dwordx4 {vr(HR+4*(idx%NH),4)}, v{(vHA,vHB)[aa]}, {sr(S_DT,4)}, s{sE} offen sc1')

    a.wait_lg0()
    poll(S_LY, 240, f's{sC}')
    stamp('p3poll')
    for ks in range(4):
        xt[ks] = x_load(ks)
    a.barrier()
    for i in range(LOOK):
        issue_rd(i)
    for ks in range(4, PRE):
        xt[ks] = x_load(ks)
    fill, owner = [], []
    done_at = {}
    wd = [] if L == 1 else wfrag_items(lambda n_, b: ar(8 * n_ + 4 * b, 4), sWDSRC, WDP1 // 2, 28, vSA, vSB, sF)
    ft = [[f'v_and_b32 v233, 0x80, v{vL4}', f'buffer_load_dword v233, v233, {sr(S_LY,4)}, s{sU} offen sc1']] if FT else []
    if HT and FAST() and (L == 1 or HT > 1):
        ft += [[f'v_min_u32 v234, 55, v{vLANE}', f'v_lshlrev_b32 v234, 7, v234', f'buffer_load_dword v234, v234, {sr(S_DT,4)}, s{sG} offen sc1']]
    bg = dma_items(vD3, LB, 36, 1) + ['M3'] + ft + wd[:WDP3]
    wd4 = wd[WDP3:]
    marks = {}
    cur = [0]

    def pop():
        x = fill.pop(0); o = owner.pop(0)
        t = a(x)
        if '; H' in x:
            hst[o] = (t, cur[0])

    def pub(stg, last_tile):
        a.wait(hst[last_tile][0])
        emit(flag_store(S_LY, f's{sU}', imm=64 * stg))

    def xl(ks):
        xt[ks] = x_load(ks)

    def next_bg():
        while bg and isinstance(bg[0], str):
            marks[bg.pop(0)] = mark()
        return bg.pop(0) if bg else None
    pubs = [(0, 2), (1, 4)]
    for i, (t, ks) in enumerate(steps):
        cur[0] = i
        if i == 34:
            a.wait(chk['st'])
            s_ = [f's_and_b32 s{sA}, s{sW1K}, 0x400', f'v_add_u32 v{vSA}, s{sA}, v{vL16}', f'v_xor_b32 v{vSB}, 0x400, v{vSA}'] + \
                stats_sum(SB) + stats_finish(XAUG, SB) + p4_addr()
            fill += s_; owner += [-1] * len(s_)
        stamp(f'i{i}', fine=True) if i in (1, 30, 57, 87, 116, 145, 174) else None
        if i % 2 == 0:
            a.wait(rt[min(i + 1, n - 1)], xt.get(ks))
        if i == 56:
            a.barrier()
            k3 = bg.index('M3') + 1 if 'M3' in bg else 0
            bg = bg[:k3] + dma_items(vD1, LALPHA, 56, 2) + ['M4'] + code_touch(232) + bg[k3:]
        if i + LOOK == 112:
            a.wait(marks['M3'])
            a.barrier()
        if i + LOOK == 145:
            a.wait(marks['M4'])
            a.barrier()
            bg = code_touch(232) + bg
        D = vr(ACC + 16 * accof[t], 16)
        if ks == 0 and t >= 4:
            assert (t - 4) not in owner
        if ks == 28:
            assert -1 not in owner
        X = vr(16 + 4 * ks, 4) if ks < 28 else vr(XAUG, 4)
        a(f'{MF} {D}, {vr(WR+4*(i%NW),4)}, {X}, {"0" if ks == 0 else D}')
        if ks == 28:
            done_at[t] = i
        for tt, di in list(done_at.items()):
            if i >= di + 2:
                e = epi(tt)
                fill += e; owner += [tt] * len(e)
                del done_at[tt]
        pre = main = None
        if t == 0 and ks + PRE < 28:
            main = (lambda k_=ks + PRE: xl(k_))
        elif t == 1 and ks < 8 and ks % 2 == 0:
            main = (lambda k_=ks // 2: chk.__setitem__('st', st_load(k_, SB)))
        elif t == 6:
            if ks % 2 == 1:
                main = (lambda k_=ks // 2: hld(k_))
        elif i == 173:
            main = lambda: flag_ld(0)
        elif i % 2 == 0 and i >= 2 * (28 - PRE):
            pre, main = split_item(next_bg())
        extra = None
        if fill and '; H' in fill[0]:
            extra = pop
        elif pubs and pubs[0][1] in hst and i >= hst[pubs[0][1]][1] + PUBD and i % 2 == 1:
            extra = (lambda p=pubs.pop(0): pub(*p))
        n0 = len(a.ins)
        for f in (pre, lambda: issue_rd(i + LOOK), main, extra):
            if f is None:
                continue
            f() if callable(f) else emit(f)
        budget = CAP - (len(a.ins) - n0) - (i % 2)
        while fill and '; H' not in fill[0] and budget >= cost(fill[0]):
            budget -= cost(fill[0])
            pop()
    assert not pubs and next_bg() is None, len(bg)
    print('P3: h stores at steps', {t: v[1] for t, v in hst.items()}, 'left', len(fill))
    assert not fill and 5 in hst
    stamp('p3mfma')

    RU, RA = 192, 128
    w1 = [] if L == 1 else dma_items(vD2, 0, 88, 2)
    nxt = (lambda: p1_setup(False)) if L != 1 else (lambda: None)
    a(f's_cmp_ge_u32 s{sJ}, 28')
    with cold('s_cbranch_scc1', back=LB_('L_p4skip' + tag)):
        emit(epi(6))
        pub(2, 5)
        a.barrier()
        a.wait_vm0()
        emit(flag_store(S_LY, f's{sU}', imm=192))
        for it in w1:
            emit(it)
        nxt()
    with cond():
        a.wait(chk[0])
        a(f'v_cmp_ne_u32 vcc, 1, v{vFV}')
        a('s_cmp_eq_u64 vcc, 0')
        saved = dict(ht)
        with cold('s_cbranch_scc0'):
            emit(epi(6, D=ACC + 48))
            a.wait_vm0()
            emit(flag_store(S_LY, f's{sU}', imm=128))
            emit(flag_store(S_LY, f's{sU}', imm=192))
            poll(S_LY, vFL, 0, imm=0)
            for idx in range(14):
                hld(idx, False)
            a.wait_vm0()
        ht.update(saved)
        fill = epi(6)
        owner = [6] * len(fill)
        later = red_setup(LALPHA, RA) + res_unpack(RU)
        TAIL = 8
        nld = [14]
        todo = ['pub2', 'pub3']
        wt = {}

        def mf(n_, s):
            aa, b = s >> 1, s & 1
            D = accs(s)
            a(f'{MF} {D}, {ar(8*n_+4*b,4)}, {vr(HR+4*((2*n_+aa)%NH),4)}, {"0" if n_ == 0 else D}')

        def sh(step, load):
            cur[0] = step
            n0 = len(a.ins)
            if load:
                if nld[0] < 56:
                    hld(nld[0]); nld[0] += 1
                elif w1:
                    emit(w1.pop(0))
            elif todo and todo[0] == 'pub2' and step >= 13:
                pub(2, 5); todo.pop(0)
            elif todo and todo[0] == 'pub3' and 6 in hst and step >= hst[6][1] + PUBD2:
                pub(3, 6); todo.pop(0)
                fill.extend(later); owner.extend([-2] * len(later))
            elif wd4:
                wt[0] = emit(wd4.pop(0))
            if step >= 1:
                if fill and '; H' in fill[0]:
                    pop()
                budget = CAP - (len(a.ins) - n0)
                while fill and '; H' not in fill[0] and budget >= cost(fill[0]):
                    budget -= cost(fill[0])
                    pop()
        for n_ in range(28 - TAIL):
            if n_ == 12:
                a.barrier()
            stamp(f'n{n_}') if ('p4prof' in OPT and n_ in (2, 4, 8, 13, 15, 17)) else None
            a.wait(ht[2 * n_])
            mf(n_, 0); sh(4 * n_, True)
            mf(n_, 1); sh(4 * n_ + 1, False)
            a.wait(ht[2 * n_ + 1])
            mf(n_, 2); sh(4 * n_ + 2, True)
            mf(n_, 3); sh(4 * n_ + 3, 10 <= n_ < 16)
        assert nld[0] == 56 and not fill and not todo and not wd4
        stamp('n20') if 'p4prof' in OPT else None
        a.wait(wt.get(0))
        pend = []
        for s in (3, 2, 1, 0):
            for k_, n_ in enumerate(range(28 - TAIL, 28)):
                a.wait(ht[2 * n_ + 1])
                mf(n_, s)
                if k_ % 2 == 1 and pend:
                    emit(pend[:1]); pend = pend[1:]
                elif w1 and k_ % 2 == 0:
                    emit(w1.pop(0))
            if s > 0:
                pend = red_write(s, RA)
        stamp('p4mfma')

        def mid():
            for it in w1:
                emit(it)
            nxt()
        final = {0: False, 1: True, None: 'dyn'}[L]
        xb, stb = (X1, ST1) if FAST() else (X0 + LYB, ST0 + LYB)
        red_finish(final, 16, RU, RA, 'p4', xb, stb, F0 + LYB, LS(), mid)
    a.label(LB_('L_p4skip' + tag))
    if L != 1:
        stamp('p4end')


def restore(ctx):
    a.vm_issued, a.vm_done, a.lg_issued, a.lg_done = ctx['state']
    ctx['qt'].clear(); ctx['qt'].update(ctx['qt0'])


def build():
    prologue()
    init_phase()
    own_consts()
    MODE.update(sc='', sfx='')
    ctx = phase1_kv(True)
    phase1_q(ctx, True)
    phase2(0)
    phase34(0)
    c2 = phase1_kv(False)
    phase1_q(c2, False)
    phase2(1)
    phase34(1)
    a.label('L_done')
    if PROFILE:
        stamp('end')
        a(f's_lshl_b32 s{sA}, s2, 2')
        a(f's_add_u32 s{sA}, s{sA}, s{sW}')
        a(f's_lshl_b32 s{sA}, s{sA}, 8')
        a(f's_add_u32 s{sA}, s{sA}, {PROF}')
        a(f'buffer_store_dword v{vPROF}, v{vL4}, {sr(S_WS,4)}, s{sA} offen')
    a.label('L_end')
    a('s_endpgm')
    a.flush_cold()
    a.label('L_codeend')
    keep = list(STAMPS)
    a.label('L_slow')
    MODE.update(sc='sc1', sfx='_s')
    restore(ctx)
    a('s_nop 7')
    phase1_q(ctx, True)
    a.label('L_layer_s')
    a('s_nop 7')
    phase2(None)
    phase34(None)
    a(f's_cmp_lg_u32 s{sL}, 0')
    a('s_cbranch_scc1 L_done')
    a(f's_mov_b32 s{sL}, 1')
    c2 = phase1_kv(False)
    phase1_q(c2, False)
    a('s_branch L_layer_s')
    a.label('L_final_s')
    final_store()
    a('s_branch L_done')
    a.flush_cold()
    STAMPS[:] = keep


build()
hdr = open('cdna_kernels/' + NAME + '.s.ref').read().split('; Override launch')[0]
out = hdr + f"""; @launch grid=(256,1,1) block=(256,1,1) lds={LDS_BYTES}
.amdgcn_target "amdgcn-amd-amdhsa--gfx950"
.text
.globl {NAME}_kernel
.p2align 8
.type {NAME}_kernel,@function
{NAME}_kernel:
{a.text()}
.section .rodata,"a"
.p2align 6
.amdhsa_kernel {NAME}_kernel
  .amdhsa_next_free_vgpr 512
  .amdhsa_next_free_sgpr 102
  .amdhsa_accum_offset 256
  .amdhsa_group_segment_fixed_size 0
  .amdhsa_kernarg_size 80
  .amdhsa_user_sgpr_count 2
  .amdhsa_user_sgpr_kernarg_segment_ptr 1
  .amdhsa_system_sgpr_workgroup_id_x 1
  .amdhsa_float_denorm_mode_32 3
.end_amdhsa_kernel
"""
outfn = [x for x in sys.argv[1:] if not x.startswith('--')][0]
open(outfn, 'w').write(out)
open(outfn + '.names', 'w').write(','.join(STAMPS))
print('instructions', len(a.ins), 'nops added', a.nops_added)
```

```python
import sys
import contextlib
from asmlib import Asm, vr, ar, sr

NAME = "interleave_layers__linear_attn_block__glu_gated_glu__prompt"
OPT = {}
for x in sys.argv[1:]:
    if x.startswith('--'):
        k, _, v = x[2:].partition('=')
        OPT[k] = v if v else True
PROFILE = 'prof' in OPT
FINE = 'fine' in OPT
CLK = 'clk' in OPT
STOP = OPT.get('stop')
FA = 1
SLEEP = int(OPT.get('sleep', 1))
TOUCH = int(OPT.get('touch', 0))
BUD = int(OPT.get('bud', 3))
XPRE = int(OPT.get('xpre', 8))
HPRE = int(OPT.get('hpre', 16))
HSC = int(OPT.get('hsc', 0))
XSC = int(OPT.get('xsc', 0))
TLBW = int(OPT.get('tlbw', 0))
XI = int(OPT.get('xi', 0))
XA = int(OPT.get('xa', 16))
CT = int(OPT.get('ct', 1))
FT = int(OPT.get('ft', 0))
HT = int(OPT.get('ht', 0))
WSC = '' if 'nowsc' in OPT else 'sc1'
STAMPS = []

IB = 0x0
W1R = 0x100000; W1S = 87 * 1024
WOR = 0x280000
W3R = 0x300000; W3S = 203 * 1024
WDR = 0x680000; WDS = 224 * 1024
LYB = 0x1000000
KV = 0x0
F1 = 0x10000
F1Q = 0x18000
F3 = 0x30000
F2 = 0x20000
F0 = 0x28000
ST1 = 0x40000
ST0 = 0x80000
PQ = 0x100000
X1 = 0x300000
X0 = 0x500000
HB = 0x700000
PROF = 0x3000000
WS_BYTES = 256 << 20
OOB = 0x40000000

K = 1024
LBETA, LB, LALPHA = 0, 56 * K, 104 * K
LRS = 87 * K
LKVS = 88 * K
LDS_BYTES = 160 * K

S_WS, S_X, S_WQKV, S_WO, S_WG, S_WU, S_WD, S_OUT, S_DBG = 4, 8, 12, 16, 20, 24, 28, 32, 36
S_T0, S_T1 = 40, 44
S_LY = 40
S_DT = 44
sW, sJ, sHC, sTB, sFB, sL, sTMO, sPI = 48, 49, 50, 51, 52, 53, 54, 55
sTILE1, sTILE2, sOWN, sOFT = 56, 57, 58, 59
sLN2, sEPS6 = 60, 62
sONES = 84
sW1K, sW2K, sW4K = 64, 65, 66
sW1SRC, sW3SRC, sWOSRC, sWDSRC = 67, 68, 69, 70
sRBG, sREP = 71, 72
sG, sH, sI = 73, 74, 75
sA, sB, sC, sD, sE, sF = 86, 87, 88, 89, 90, 91
sP0 = 92
sU = 94
sXID = 95
sZW = 96
sPC = 100

vLANE, vL16, vL16b, vL16c, vROW, vAUG, vL4, vPROF = 0, 1, 2, 3, 4, 5, 6, 7
vXRES = 8
LOG2E = 0x3FB8AA3B
LN2 = 0x3F317218
EPS6 = 0x358637BD
EPS5 = 0x3727C5AC
INV448 = 0x3B124925
MF = 'v_mfma_f32_32x32x16_bf16'

a = Asm()
MODE = {'sc': 'sc1', 'sfx': ''}


def LS():
    return MODE['sc']


def LL():
    return OPT.get('ll', 'sc1').replace('none', '') if MODE['sc'] == '' else 'sc1'


def ALIAS():
    return MODE['sfx'] == '' and 'noalias' not in OPT


def XS():
    return 'sc1' if XSC else LS()


def HS():
    return 'sc1' if HSC else LS()


def LB_(n):
    return n + MODE['sfx']


@contextlib.contextmanager
def cond():
    st = (a.vm_issued, a.vm_done, a.lg_issued, a.lg_done)
    yield
    a.vm_issued, a.vm_done, a.lg_issued, a.lg_done = st


@contextlib.contextmanager
def cold(branch, back=None):
    C = a.uid('Lc'); R = back or a.uid('Lr')
    a(f'{branch} {C}')
    st = (a.vm_issued, a.vm_done, a.lg_issued, a.lg_done)
    a.begin_cold()
    a.label(C)
    a('s_nop 7')
    a('s_nop 3')
    yield
    a('s_nop 4')
    a(f's_branch {R}')
    a.end_cold()
    a.vm_issued, a.vm_done, a.lg_issued, a.lg_done = st
    if back is None:
        a.label(R)


def mark():
    return ('vm', a.vm_issued - 1)


def lds_addr(addr):
    if addr < 65536:
        return vL16, addr
    if addr < 131072:
        return vL16b, addr - 65536
    return vL16c, addr - 131072


def stamp(name, fine=False):
    if not PROFILE or (fine and not FINE):
        return
    STAMPS.append(name)
    a('s_waitcnt lgkmcnt(0)')
    a(f"{'s_memtime' if CLK else 's_memrealtime'} {sr(sP0,2)}")
    a.wait_lg0()
    a(f'v_cmp_eq_u32 vcc, s{sPI}, v{vLANE}')
    a(f'v_mov_b32 v255, s{sP0}')
    a(f'v_cndmask_b32 v{vPROF}, v{vPROF}, v255, vcc')
    a(f's_add_u32 s{sPI}, s{sPI}, 1')


def srd(base, lo, nbytes):
    a(f's_mov_b32 s{base}, s{lo}')
    a(f's_and_b32 s{base+1}, s{lo+1}, 0xffff')
    a(f's_mov_b32 s{base+2}, {nbytes}')
    a(f's_mov_b32 s{base+3}, 0x00020000')


def poll(srdreg, vaddr, soff, imm=0, t=254, sleep=0, nonzero=False):
    L = a.uid('Lpoll'); D = a.uid('Lpd')
    a.label(L)
    if sleep:
        a(f's_sleep {sleep}')
    a(f'buffer_load_dword v{t}, v{vaddr}, {sr(srdreg,4)}, {soff} offen offset:{imm} sc1')
    a(f's_sub_u32 s{sTMO}, s{sTMO}, 1')
    a(f's_max_i32 s{sTMO}, s{sTMO}, 0')
    a(f's_cselect_b64 {sr(sP0,2)}, exec, 0')
    a.wait_vm0()
    a(f'v_cmp_eq_u32 vcc, 0, v{t}' if nonzero else f'v_cmp_ne_u32 vcc, 1, v{t}')
    a(f's_and_b64 exec, {sr(sP0,2)}, vcc')
    a(f's_cbranch_scc1 {L}')
    a('s_mov_b64 exec, -1')


def check_or_poll(v, srdreg, vaddr, soff, imm=0, nonzero=False, sleep=1, t=254):
    a(f'v_cmp_eq_u32 vcc, 0, v{v}' if nonzero else f'v_cmp_ne_u32 vcc, 1, v{v}')
    a('s_cmp_eq_u64 vcc, 0')
    with cold('s_cbranch_scc0'):
        poll(srdreg, vaddr, soff, imm=imm, nonzero=nonzero, sleep=sleep, t=t)


def code_touch(t):
    if not CT:
        return []
    return [[f'v_and_b32 v{t}, 3, v{vLANE}',
             f'v_lshlrev_b32 v{t}, 7, v{t}',
             f'global_load_dword v{t}, v{t}, {sr(sPC,2)}']]


def flag_store(srdreg, soff, imm=0, t=254, sc=None):
    sc = LS() if sc is None else sc
    return [f'v_mov_b32 v{t}, 1',
            's_mov_b64 exec, 1',
            f'buffer_store_dword v{t}, off, {sr(srdreg,4)}, {soff} offset:{imm} {sc}',
            's_mov_b64 exec, -1']


def emit(lst):
    t = None
    for x in lst:
        r = a(x)
        t = r if r is not None else t
    return t


def dma_items(vD, lds_base, nfrag, c):
    assert nfrag % (4 * c) == 0
    sWc = {1: sW1K, 2: sW2K, 4: sW4K}[c]
    items = []
    for r in range(nfrag // (4 * c)):
        for i in range(c):
            it = []
            if i == 0:
                it.append(f's_add_u32 m0, s{sWc}, {lds_base + r*4*c*K}')
            it.append(f'buffer_load_dwordx4 v{vD}, {sr(S_WS,4)}, m0 offen offset:{i*K} {WSC} lds')
            items.append(it)
    return items


def dma_setup(vD, ssrc, src_const, lds_base):
    a(f's_add_u32 s{sA}, s{ssrc}, {src_const - lds_base & 0xffffffff:#x}')
    a(f'v_add_u32 v{vD}, s{sA}, v{vL16}')


def prologue():
    a('s_cmp_ge_u32 s2, 256')
    a('s_cbranch_scc1 L_end')
    a('s_load_dwordx16 s[64:79], s[0:1], 0')
    a('s_load_dwordx4 s[80:83], s[0:1], 64')
    a(f's_getpc_b64 {sr(sPC,2)}')
    a.label('L_pc')
    a('s_lshr_b32 s3, s2, 3')
    a('s_lshl_b32 s3, s3, 11')
    a('s_min_u32 s3, s3, (L_codeend - L_pc - 2048)')
    a(f's_add_u32 s{sPC}, s{sPC}, s3')
    a(f's_addc_u32 s{sPC+1}, s{sPC+1}, 0')
    a('v_min_u32 v16, 15, v0')
    a('v_lshlrev_b32 v16, 7, v16')
    a(f'global_load_dword v17, v16, {sr(sPC,2)}')
    a(f'v_lshrrev_b32 v18, 6, v0')
    a(f'v_and_b32 v{vLANE}, 63, v0')
    a(f'v_readfirstlane_b32 s{sW}, v18')
    a(f'v_lshlrev_b32 v{vL16}, 4, v{vLANE}')
    a(f'v_add_u32 v{vL16b}, 0x10000, v{vL16}')
    a(f'v_add_u32 v{vL16c}, 0x20000, v{vL16}')
    a(f'v_lshlrev_b32 v{vL4}, 2, v{vLANE}')
    a(f'v_and_b32 v18, 31, v{vLANE}')
    a(f'v_lshrrev_b32 v19, 5, v{vLANE}')
    a(f'v_mul_u32_u24 v{vROW}, 896, v18')
    a(f'v_lshl_add_u32 v{vROW}, v19, 4, v{vROW}')
    a(f'v_lshlrev_b32 v{vAUG}, 2, v18')
    a(f'v_lshl_add_u32 v{vAUG}, v19, 9, v{vAUG}')
    a(f'v_mov_b32 v{vPROF}, 0')
    a(f's_mov_b32 s{sPI}, 0')
    a(f's_and_b32 s{sC}, s2, 7')
    a(f's_lshr_b32 s{sJ}, s2, 3')
    a(f's_mul_i32 s{sTB}, s{sJ}, 37')
    a(f's_lshr_b32 s{sTB}, s{sTB}, 8')
    a(f's_mul_i32 s{sFB}, s{sTB}, 7')
    a(f's_sub_u32 s{sFB}, s{sJ}, s{sFB}')
    a(f's_cmp_ge_u32 s{sJ}, 28')
    a(f's_cselect_b32 s{sTB}, s{sFB}, s{sTB}')
    a(f's_mov_b32 s{sL}, 0')
    a(f's_mov_b32 s{sTMO}, 100000')
    a(f's_lshl_b32 s{sTILE2}, s{sC}, 3')
    a(f's_lshl_b32 s{sD}, s{sTB}, 1')
    a(f's_add_u32 s{sTILE2}, s{sTILE2}, s{sD}')
    a(f's_lshr_b32 s{sD}, s{sW}, 1')
    a(f's_add_u32 s{sOWN}, s{sTILE2}, s{sD}')
    a(f's_and_b32 s{sD}, s{sW}, 1')
    a(f's_lshl_b32 s{sOFT}, s{sFB}, 1')
    a(f's_add_u32 s{sOFT}, s{sOFT}, s{sD}')
    lf = {1: 0, 2: 1, 4: 2, 8: 3}[FA]
    nh = 16 // FA
    a(f's_and_b32 s{sD}, s{sC}, {FA-1}')
    a(f's_mul_i32 s{sHC}, s{sD}, {nh}')
    a(f's_and_b32 s{sD}, s{sJ}, {nh-1}')
    a(f's_add_u32 s{sHC}, s{sHC}, s{sD}')
    a(f's_lshr_b32 s{sD}, s{sC}, {lf}')
    a(f's_lshl_b32 s{sE}, s{sD}, {lf+1}')
    a(f's_lshr_b32 s{sD}, s{sJ}, {4-lf}')
    a(f's_add_u32 s{sE}, s{sE}, s{sD}')
    a(f's_lshl_b32 s{sTILE1}, s{sE}, 2')
    a(f's_add_u32 s{sTILE1}, s{sTILE1}, s{sW}')
    a(f's_mov_b32 s{sLN2}, {LN2:#x}')
    a(f's_mov_b32 s{sLN2+1}, {LN2:#x}')
    a(f's_mov_b32 s{sEPS6}, {EPS6:#x}')
    a(f's_mov_b32 s{sEPS6+1}, {EPS6:#x}')
    a(f's_mov_b32 s{sONES}, 0x3f803f80')
    for i in range(4):
        a(f'v_mov_b32 v{216+i}, 0')
    a(f'v_and_b32 v{vRHO}, 31, v{vLANE}')
    a(f'v_lshrrev_b32 v{vHI}, 5, v{vLANE}')
    a(f'v_and_b32 v{vSIG}, 0x13, v{vRHO}')
    a(f'v_and_b32 v{vt0}, 4, v{vRHO}')
    a(f'v_lshl_or_b32 v{vSIG}, v{vt0}, 1, v{vSIG}')
    a(f'v_lshrrev_b32 v{vt0}, 1, v{vRHO}')
    a(f'v_and_or_b32 v{vSIG}, v{vt0}, 4, v{vSIG}')
    a(f'v_lshrrev_b32 v{vR8}, 3, v{vLANE}')
    a(f'v_and_b32 v{vC8}, 7, v{vLANE}')
    a(f'v_lshlrev_b32 v{vC8}, 4, v{vC8}')
    a(f'v_lshrrev_b32 v{vt0}, 4, v{vLANE}')
    a(f'v_lshlrev_b32 v{vt0}, 4, v{vt0}')
    a(f'v_xor_b32 v{vt0}, v{vt0}, v{vC8}')
    a(f'v_mul_u32_u24 v{vt1}, 896, v{vR8}')
    a(f'v_add_u32 v{vXS}, v{vt1}, v{vt0}')
    a(f'v_xor_b32 v{vt0}, 64, v{vt0}')
    a(f'v_add_u32 v{vXS+1}, v{vt1}, v{vt0}')
    a('s_waitcnt lgkmcnt(0)')
    if TLBW:
        a(f'v_lshlrev_b32 v20, 20, v{vLANE}')
        a('v_subrev_u32 v20, 0xa00000, v20')
        a('v_min_u32 v20, 0x2100000, v20')
        a('v_mov_b32 v21, s83')
        a('v_add_co_u32 v20, vcc, s82, v20')
        a('v_addc_co_u32 v21, vcc, 0, v21, vcc')
        for ln, p in enumerate((64, 66, 68, 72, 74, 76, 78, 80)):
            a(f'v_writelane_b32 v20, s{p}, {ln}')
            a(f'v_writelane_b32 v21, s{p+1}, {ln}')
        a('global_load_dword v22, v[20:21], off')
    srd(S_X, 64, 2048 * 448 * 2)
    srd(S_WQKV, 66, 448 * 1344 * 2)
    srd(S_WO, 68, 448 * 448 * 2)
    srd(S_WG, 72, 448 * 1792 * 2)
    srd(S_WU, 74, 448 * 1792 * 2)
    srd(S_WD, 76, 1792 * 448 * 2)
    srd(S_OUT, 78, 2048 * 448 * 2)
    srd(S_DBG, 80, 256)
    srd(S_WS, 82, WS_BYTES)
    a(f's_mov_b32 s{sRBG}, s{sE}')
    a(f's_and_b32 s{sREP}, s2, 3')
    a(f's_lshl_b32 s{sREP}, s{sREP}, 12')
    a(f's_lshl_b32 s{sW1K}, s{sW}, 10')
    a(f's_lshl_b32 s{sW2K}, s{sW}, 11')
    a(f's_lshl_b32 s{sW4K}, s{sW}, 12')
    a(f's_lshl_b32 s{sG}, s{sW}, 9')
    a(f's_add_u32 s{sPC}, s{sPC}, s{sG}')
    a(f's_addc_u32 s{sPC+1}, s{sPC+1}, 0')
    a(f's_lshl_b32 s{sG}, s{sW}, 13')
    a(f's_add_u32 s{sG}, s{sG}, {LSTG}')
    a(f's_getreg_b32 s{sXID}, hwreg(HW_REG_XCC_ID)')
    a(f's_and_b32 s{sXID}, s{sXID}, 15')
    a(f's_add_u32 s{sXID}, s{sXID}, 1')
    stamp('start')


def late_consts():
    a(f's_mul_i32 s{sW1SRC}, s{sHC}, {W1S}')
    a(f's_add_u32 s{sW1SRC}, s{sW1SRC}, {W1R}')
    a(f's_mul_i32 s{sW3SRC}, s{sHC}, {W3S}')
    a(f's_add_u32 s{sW3SRC}, s{sW3SRC}, {W3R}')
    a(f's_lshl_b32 s{sWOSRC}, s{sFB}, 16')
    a(f's_lshl_b32 s{sA}, s{sW}, 14')
    a(f's_add_u32 s{sWOSRC}, s{sWOSRC}, s{sA}')
    a(f's_add_u32 s{sWOSRC}, s{sWOSRC}, {WOR}')
    a(f's_mul_i32 s{sWDSRC}, s{sFB}, {WDS}')
    a(f's_mul_i32 s{sA}, s{sW}, 57344')
    a(f's_add_u32 s{sWDSRC}, s{sWDSRC}, s{sA}')
    a(f's_add_u32 s{sWDSRC}, s{sWDSRC}, {WDR}')
    a(f's_add_u32 s{S_LY}, s{S_WS}, {LYB}')
    a(f's_addc_u32 s{S_LY+1}, s{S_WS+1}, 0')
    a(f's_mov_b32 s{S_LY+2}, {2*LYB}')
    a(f's_mov_b32 s{S_LY+3}, 0x00020000')
    a(f's_mov_b32 s{S_DT}, s{S_LY}')
    a(f's_mov_b32 s{S_DT+1}, s{S_LY+1}')
    a(f's_mov_b32 s{S_DT+2}, {2*LYB}')
    a(f's_mov_b32 s{S_DT+3}, 0x00020000')


UD = 128
UC = 192
vRHO, vHI, vSIG, vR8, vC8 = 204, 205, 206, 207, 212
vt0, vt1, vt2, vt3 = 208, 209, 210, 211
vXS = 214
LSTG = 4 * K
LXS = 40 * K


PASS = {'p': 'src'}


class Done(Exception):
    pass


def run_setup(fn, *args):
    try:
        fn(*args)
    except Done:
        pass


def unit_dma(r, srdreg, vsrc, srow0, srow1):
    if PASS['p'] == 'dst':
        return
    _unit_dma(r, srdreg, vsrc, srow0, srow1)
    raise Done()


def _unit_dma(r, srdreg, vsrc, srow0, srow1):
    a(f's_add_u32 m0, s{sG}, {r*2048}')
    a('s_nop 0')
    a(f'buffer_load_dwordx4 v{vsrc}, {sr(srdreg,4)}, s{srow0} offen lds')
    a(f's_add_u32 m0, s{sG}, {r*2048+1024}')
    a('s_nop 0')
    a(f'buffer_load_dwordx4 v{vsrc}, {sr(srdreg,4)}, s{srow1} offen lds')


def div7(q, rem, su):
    a(f's_mul_i32 s{q}, s{su}, 9363')
    a(f's_lshr_b32 s{q}, s{q}, 16')
    a(f's_mul_i32 s{rem}, s{q}, 7')
    a(f's_sub_u32 s{rem}, s{su}, s{rem}')


def setup_w1(r, su):
    col, dst, aug = UC + 3 * r, UC + 3 * r + 1, UC + 3 * r + 2
    div7(sA, sB, su)
    a(f's_lshr_b32 s{sC}, s{sA}, 3')
    a(f's_and_b32 s{sA}, s{sA}, 7')
    a(f's_mul_i32 s{sD}, s{sC}, 896')
    a(f's_mul_i32 s{sE}, s{sA}, 112')
    a(f's_add_u32 s{sD}, s{sD}, s{sE}')
    a(f's_lshl_b32 s{sF}, s{sB}, 2')
    a(f's_add_u32 s{sF}, s{sF}, s{sW}')
    a(f's_mul_i32 s{sE}, s{sF}, {16*2688}')
    a(f's_add_u32 s{sD}, s{sD}, s{sE}')
    a(f's_add_u32 s{sE}, s{sD}, {8*2688}')
    a(f'v_mul_u32_u24 v{vt0}, 2688, v{vR8}')
    a(f'v_add_u32 v{vt0}, v{vt0}, v{vC8}')
    a(f'v_cmp_eq_u32 vcc, 112, v{vC8}')
    a(f'v_mov_b32 v{vt1}, {OOB:#x}')
    a(f'v_cndmask_b32 v{vt0}, v{vt0}, v{vt1}, vcc')
    unit_dma(r, S_WQKV, vt0, sD, sE)
    a(f'v_cmp_le_u32 vcc, 24, v{vSIG}')
    a(f'v_subrev_u32 v{vt0}, 2, v{vSIG}')
    a(f'v_cndmask_b32 v{vt0}, v{vSIG}, v{vt0}, vcc')
    a(f'v_mad_u32_u24 v{vt0}, v{vHI}, 28, v{vt0}')
    a(f'v_and_b32 v{vt1}, 0x16, v{vSIG}')
    a(f'v_cmp_eq_u32 vcc, 0x16, v{vt1}')
    a(f'v_cndmask_b32 v{vt0}, v{vt0}, 56, vcc')
    a(f'v_lshl_add_u32 v{col}, v{vt0}, 1, s{sG}')
    a(f's_lshl_b32 s{sD}, s{sF}, 1')
    a(f's_add_u32 s{sD}, s{sD}, s{sC}')
    a(f's_sub_u32 s{sD}, s{sD}, 1')
    a(f's_add_u32 s{sE}, s{sC}, 55')
    a(f's_add_u32 s{sF}, s{sF}, 58')
    a(f's_cmp_eq_u32 s{sC}, 0')
    a(f's_cselect_b32 s{sD}, s{sF}, s{sD}')
    a(f's_cselect_b32 s{sE}, 86, s{sE}')
    a(f's_mul_i32 s{sA}, s{sA}, {2*W1S}')
    a(f's_add_u32 s{sA}, s{sA}, {W1R}')
    a(f's_lshl_b32 s{sD}, s{sD}, 10')
    a(f's_add_u32 s{sD}, s{sD}, s{sA}')
    a(f's_lshl_b32 s{sE}, s{sE}, 10')
    a(f's_add_u32 s{sE}, s{sE}, s{sA}')
    a(f's_lshl_b32 s{sB}, s{sB}, 7')
    a(f's_add_u32 s{sE}, s{sE}, s{sB}')
    a(f'v_mul_u32_u24 v{vt0}, {W1S}, v{vHI}')
    a(f'v_lshl_add_u32 v{dst}, v{vRHO}, 4, v{vt0}')
    a(f'v_add_u32 v{dst}, s{sD}, v{dst}')
    a(f'v_lshl_add_u32 v{aug}, v{vRHO}, 2, v{vt0}')
    a(f'v_add_u32 v{aug}, s{sE}, v{aug}')


def setup_w3(r, su, tsrd):
    col, dst, aug = UC + 3 * r, UC + 3 * r + 1, UC + 3 * r + 2
    div7(sA, sB, su)
    a(f's_cmp_ge_u32 s{sA}, 28')
    a(f's_cselect_b32 s{tsrd}, s{S_WU}, s{S_WG}')
    a(f's_cselect_b32 s{tsrd+1}, s{S_WU+1}, s{S_WG+1}')
    a(f's_cselect_b32 s{sC}, 28, 0')
    a(f's_cselect_b32 s{sD}, 16, 0')
    a(f's_mov_b32 s{tsrd+2}, {448*1792*2}')
    a(f's_mov_b32 s{tsrd+3}, 0x00020000')
    a(f's_sub_u32 s{sA}, s{sA}, s{sC}')
    a(f's_lshl_b32 s{sE}, s{sB}, 2')
    a(f's_add_u32 s{sE}, s{sE}, s{sW}')
    a(f's_mul_i32 s{sC}, s{sE}, {16*3584}')
    a(f's_lshl_b32 s{sF}, s{sA}, 7')
    a(f's_add_u32 s{sC}, s{sC}, s{sF}')
    a(f's_add_u32 s{sF}, s{sC}, {8*3584}')
    a(f'v_mul_u32_u24 v{vt0}, 3584, v{vR8}')
    a(f'v_add_u32 v{vt0}, v{vt0}, v{vC8}')
    unit_dma(r, tsrd, vt0, sC, sF)
    a(f'v_and_b32 v{vt0}, 48, v{vLANE}')
    a(f'v_and_or_b32 v{vt0}, v{vSIG}, 15, v{vt0}')
    a(f'v_lshl_add_u32 v{col}, v{vt0}, 1, s{sG}')
    a(f'v_lshrrev_b32 v{vt0}, 4, v{vLANE}')
    a(f's_lshl_b32 s{sC}, s{sA}, 2')
    a(f'v_add_u32 v{vt0}, s{sC}, v{vt0}')
    a(f'v_mul_u32_u24 v{vt1}, 9363, v{vt0}')
    a(f'v_lshrrev_b32 v{vt1}, 16, v{vt1}')
    a(f'v_mul_u32_u24 v{vt2}, 7, v{vt1}')
    a(f'v_sub_u32 v{vt0}, v{vt0}, v{vt2}')
    a(f's_mul_i32 s{sF}, s{sE}, 2')
    a(f'v_add_u32 v{vt2}, s{sF}, v{vt0}')
    a(f'v_add_u32 v{aug}, 56, v{vt0}')
    a(f's_cmp_ge_u32 s{sE}, 27')
    a(f's_cselect_b32 s{sC}, 58, 0')
    a(f's_sub_u32 s{sC}, s{sE}, s{sC}')
    a(f's_add_u32 s{sC}, s{sC}, 176')
    for t, base, ag in ((2, 59, None), (3, 87, 115), (4, 116, 144), (5, 147, 175), (6, None, 146)):
        a(f'v_cmp_eq_u32 vcc, {t}, v{vt0}')
        if base is not None:
            a(f's_add_u32 s{sF}, s{sE}, {base}')
            a(f'v_mov_b32 v{vt3}, s{sF}')
        else:
            a(f'v_mov_b32 v{vt3}, s{sC}')
        a(f'v_cndmask_b32 v{vt2}, v{vt2}, v{vt3}, vcc')
        if ag is not None:
            a(f'v_mov_b32 v{vt3}, {ag}')
            a(f'v_cndmask_b32 v{aug}, v{aug}, v{vt3}, vcc')
    a(f'v_mul_u32_u24 v{vt1}, 203, v{vt1}')
    a(f'v_add_lshl_u32 v{vt2}, v{vt2}, v{vt1}, 10')
    a(f'v_add_lshl_u32 v{aug}, v{aug}, v{vt1}, 10')
    a(f'v_and_b32 v{vt0}, 15, v{vLANE}')
    a(f'v_add_u32 v{vt0}, s{sD}, v{vt0}')
    a(f'v_lshl_add_u32 v{dst}, v{vt0}, 4, v{vt2}')
    a(f'v_add_u32 v{dst}, {W3R:#x}, v{dst}')
    a(f'v_lshl_add_u32 v{aug}, v{vt0}, 2, v{aug}')
    a(f's_lshl_b32 s{sB}, s{sB}, 7')
    a(f's_add_u32 s{sB}, s{sB}, {W3R}')
    a(f'v_add_u32 v{aug}, s{sB}, v{aug}')


def setup_colsT(r):
    col, dst, aug = UC + 3 * r, UC + 3 * r + 1, UC + 3 * r + 2
    a(f'v_lshl_add_u32 v{vt0}, v{vHI}, 5, v{vSIG}')
    a(f'v_lshl_add_u32 v{col}, v{vt0}, 1, s{sG}')
    a(f'v_lshlrev_b32 v{dst}, 10, v{vHI}')
    a(f'v_lshl_add_u32 v{dst}, v{vRHO}, 4, v{dst}')
    a(f'v_mov_b32 v{aug}, {OOB:#x}')


def setup_wd(r, su):
    dst = UC + 3 * r + 1
    div7(sA, sB, su)
    a(f's_lshl_b32 s{sA}, s{sA}, 2')
    a(f's_add_u32 s{sA}, s{sA}, s{sW}')
    a(f's_mul_i32 s{sC}, s{sA}, {16*896}')
    a(f's_lshl_b32 s{sD}, s{sB}, 7')
    a(f's_add_u32 s{sC}, s{sC}, s{sD}')
    a(f's_add_u32 s{sD}, s{sC}, {8*896}')
    a(f'v_mul_u32_u24 v{vt0}, 896, v{vR8}')
    a(f'v_add_u32 v{vt0}, v{vt0}, v{vC8}')
    unit_dma(r, S_WD, vt0, sC, sD)
    setup_colsT(r)
    div7(sC, sD, sA)
    a(f's_mul_i32 s{sB}, s{sB}, {WDS}')
    a(f's_lshr_b32 s{sE}, s{sC}, 2')
    a(f's_mul_i32 s{sE}, s{sE}, 57344')
    a(f's_add_u32 s{sB}, s{sB}, s{sE}')
    a(f's_lshl_b32 s{sD}, s{sD}, 2')
    a(f's_and_b32 s{sC}, s{sC}, 3')
    a(f's_add_u32 s{sD}, s{sD}, s{sC}')
    a(f's_lshl_b32 s{sD}, s{sD}, 11')
    a(f's_add_u32 s{sB}, s{sB}, s{sD}')
    a(f's_add_u32 s{sB}, s{sB}, {WDR}')
    a(f'v_add_u32 v{dst}, s{sB}, v{dst}')


def setup_wo(r, su):
    dst = UC + 3 * r + 1
    div7(sA, sB, su)
    a(f's_lshl_b32 s{sA}, s{sA}, 2')
    a(f's_add_u32 s{sA}, s{sA}, s{sW}')
    a(f's_lshr_b32 s{sC}, s{sA}, 1')
    a(f's_mul_i32 s{sC}, s{sC}, {28*896}')
    a(f's_lshl_b32 s{sD}, s{sB}, 7')
    a(f's_add_u32 s{sC}, s{sC}, s{sD}')
    a(f's_and_b32 s{sD}, s{sA}, 1')
    a(f's_cselect_b32 s{sD}, {16*896}, 0')
    a(f's_cselect_b32 s{sE}, {14*896}, 0')
    a(f's_add_u32 s{sD}, s{sD}, s{sC}')
    a(f's_add_u32 s{sE}, s{sE}, s{sC}')
    a(f's_add_u32 s{sE}, s{sE}, {8*896}')
    a(f'v_mul_u32_u24 v{vt0}, 896, v{vR8}')
    a(f'v_add_u32 v{vt0}, v{vt0}, v{vC8}')
    unit_dma(r, S_WO, vt0, sD, sE)
    setup_colsT(r)
    a(f's_lshl_b32 s{sB}, s{sB}, 16')
    a(f's_lshl_b32 s{sC}, s{sA}, 11')
    a(f's_add_u32 s{sB}, s{sB}, s{sC}')
    a(f's_add_u32 s{sB}, s{sB}, {WOR}')
    a(f'v_add_u32 v{dst}, s{sB}, v{dst}')


def setup_none(r):
    col, dst, aug = UC + 3 * r, UC + 3 * r + 1, UC + 3 * r + 2
    a(f'v_mov_b32 v{col}, 0')
    a(f'v_mov_b32 v{dst}, {OOB:#x}')
    a(f'v_mov_b32 v{aug}, {OOB:#x}')


def rounds(tag):
    a('s_cmp_ge_u32 s2, 168')
    a(f's_cbranch_scc1 L_r0b{tag}')
    with cond():
        run_setup(setup_w1, 0, 2)
    a(f's_branch L_r0e{tag}')
    a.label(f'L_r0b{tag}')
    a('s_cmp_ge_u32 s2, 224')
    a(f's_cbranch_scc1 L_r0c{tag}')
    with cond():
        a(f's_sub_u32 s{sU}, s2, 168')
        run_setup(setup_wo, 0, sU)
    a(f's_branch L_r0e{tag}')
    a.label(f'L_r0c{tag}')
    with cond():
        a(f's_sub_u32 s{sU}, s2, 224')
        run_setup(setup_wd, 0, sU)
    a.label(f'L_r0e{tag}')
    run_setup(setup_w3, 1, 2, S_T0)
    a('s_cmp_ge_u32 s2, 136')
    a(f's_cbranch_scc1 L_r2b{tag}')
    with cond():
        a(f's_add_u32 s{sU}, s2, 256')
        run_setup(setup_w3, 2, sU, S_T1)
    a(f's_branch L_r2e{tag}')
    a.label(f'L_r2b{tag}')
    with cond():
        a(f's_sub_u32 s{sU}, s2, 104')
        run_setup(setup_wd, 2, sU)
    a.label(f'L_r2e{tag}')
    a('s_cmp_ge_u32 s2, 212')
    a(f's_cbranch_scc1 L_r3b{tag}')
    if PASS['p'] == 'dst':
        setup_none(3)
    a(f's_branch L_r3e{tag}')
    a.label(f'L_r3b{tag}')
    with cond():
        a(f's_sub_u32 s{sU}, s2, 60')
        run_setup(setup_wd, 3, sU)
    a.label(f'L_r3e{tag}')


def init_phase():
    Z = 216
    vGO = 215 + 9
    a(f's_lshl_b32 s{sA}, s{sW}, 3')
    a(f's_add_u32 s{sB}, s{sA}, s2')
    a(f's_mov_b32 s{sZW}, s{sB}')
    a(f's_cmp_ge_u32 s{sZW}, 8')
    a('s_cbranch_scc1 L_z1')
    with cond():
        a(f's_lshl_b32 s{sA}, s2, 11')
        a(f'buffer_store_dwordx4 {vr(Z,4)}, v{vL16}, {sr(S_WS,4)}, s{sA} offen sc1')
        a(f'buffer_store_dwordx4 {vr(Z,4)}, v{vL16}, {sr(S_WS,4)}, s{sA} offen offset:1024 sc1')
    a.label('L_z1')
    PASS['p'] = 'src'
    rounds('s')
    um = mark()
    a(f's_mul_i32 s{sI}, s{sTILE1}, 28672')
    a(f's_mul_i32 s{sH}, s{sW}, {28*K}')
    a(f's_add_u32 s{sH}, s{sH}, {LXS}')
    xq = []
    for g in range(4):
        for c in range(7):
            it = [f's_add_u32 m0, s{sH}, {(4*c+g)*K - c*128}',
                  f'buffer_load_dwordx4 v{vXS + (g & 1)}, {sr(S_X,4)}, s{sI} offen offset:{c*128} lds']
            if c == 6:
                it.append(f's_add_u32 s{sI}, s{sI}, {8*896}')
            xq.append(it)
    a(f's_mul_i32 s{sA}, s{sHC}, {14*128}')
    a(f's_add_u32 s{sA}, s{sA}, s{sI}')
    a(f'v_min_u32 v{vt0}, 13, v{vLANE}')
    a(f'v_lshlrev_b32 v{vt0}, 7, v{vt0}')
    a(f'buffer_load_dword v17, v{vt0}, {sr(S_X,4)}, s{sA} offen')
    stamp('issued')
    a(f's_cmp_ge_u32 s{sZW}, 8')
    a('s_cbranch_scc1 L_z2')
    with cond():
        a('s_waitcnt vmcnt(7)')
        a(f's_lshl_b32 s{sA}, s2, 5')
        emit(flag_store(S_DBG, f's{sA}', sc='sc1'))
    a.label('L_z2')
    PASS['p'] = 'dst'
    rounds('d')
    a(f's_lshl_b32 s{sA}, s{sW}, 8')
    a(f'v_add_u32 v{vt1}, s{sA}, v{vL4}')
    a(f'v_and_b32 v{vt3}, 7, v{vLANE}')
    a(f'v_lshlrev_b32 v{vt3}, 5, v{vt3}')
    a(f's_lshl_b32 s{sA}, s2, 10')
    a(f's_add_u32 s{sB}, s{sW}, 1')
    a(f's_lshl_b32 s{sB}, s{sB}, 24')
    a(f's_add_u32 s{sA}, s{sA}, s{sB}')
    a(f's_sub_u32 s{sB}, s{sA}, {2*LYB - ST1}')
    a(f's_cmp_eq_u32 s{sW}, 2')
    a(f's_cselect_b32 s{sA}, s{sB}, s{sA}')
    a(f's_cmp_ge_u32 s{sW}, 3')
    a(f's_cselect_b32 s{sA}, {OOB:#x}, s{sA}')
    a.wait(um, force=True)
    stamp('ldone')
    a(f'buffer_store_dwordx4 {vr(Z,4)}, v{vL16}, {sr(S_WS,4)}, s{sA} offen sc1')
    rtok = {}

    def gat(r, half):
        for e in range(8):
            rtok[r, half] = a(f'ds_read_u16 v{UD+16*r+8*half+e}, v{UC+3*r} offset:{r*2048+(8*half+e)*128}')
    gat(0, 0)
    for r in range(4):
        R = UD + 16 * r
        dst = UC + 3 * r + 1
        for half in range(2):
            nxt = 2 * r + half + 1
            if nxt < 8:
                gat(nxt // 2, nxt % 2)
            a.wait(rtok[r, half])
            for m in range(4):
                a(f'v_lshl_or_b32 v{R+8*half+m}, v{R+8*half+2*m+1}, 16, v{R+8*half+2*m}')
            a(f'buffer_store_dwordx4 {vr(R+8*half,4)}, v{dst}, {sr(S_WS,4)}, 0 offen offset:{512*half} sc1')
            for _ in range(XI):
                emit(xq.pop(0))
    for r in range(3):
        R = UD + 16 * r
        a(f'v_mov_b32 v{R+4}, 0')
        for m in range(4):
            a(f'v_dot2c_f32_bf16 v{R+4}, s{sONES}, v{R+m}')
            a(f'v_dot2c_f32_bf16 v{R+4}, s{sONES}, v{R+8+m}')
        a(f'ds_write_b32 v{vt1}, v{R+4} offset:{r*1024}')
    a(f'buffer_load_dword v{vGO}, v{vt3}, {sr(S_DBG,4)}, 0 offen sc1')
    stamp('packed') if 'initprof' in OPT else None
    a.wait_lg0()
    a.barrier()
    a(f's_cmp_eq_u32 s{sW}, 3')
    a('s_cbranch_scc1 L_aug_e')
    with cond():
        R = 220
        a(f'v_add_u32 v{vt0}, s{sW1K}, v{vL4}')
        a(f'ds_read2st64_b32 {vr(R,2)}, v{vt0} offset0:0 offset1:1')
        t = a(f'ds_read2st64_b32 {vr(R+2,2)}, v{vt0} offset0:2 offset1:3')
        a(f's_cmp_eq_u32 s{sW}, 1')
        a('s_cselect_b64 vcc, -1, 0')
        a(f'v_cndmask_b32 v{vt2}, v{UC+2}, v{UC+5}, vcc')
        a(f's_cmp_eq_u32 s{sW}, 2')
        a('s_cselect_b64 vcc, -1, 0')
        a(f'v_cndmask_b32 v{vt2}, v{vt2}, v{UC+8}, vcc')
        a(f'v_bfe_u32 v{vt0}, v{vt2}, 7, 3')
        a(f'v_cmp_eq_u32 vcc, 6, v{vt0}')
        a(f'v_mov_b32 v{vt1}, {OOB:#x}')
        a(f'v_cndmask_b32 v{vt0}, v{vt1}, v{vt2}, vcc')
        a(f'buffer_store_dword v{Z}, v{vt0}, {sr(S_WS,4)}, 0 offen offset:128 sc1')
        a.wait(t)
        a(f'v_add_f32 v{R}, v{R}, v{R+1}')
        a(f'v_add_f32 v{R+2}, v{R+2}, v{R+3}')
        a(f'v_add_f32 v{R}, v{R}, v{R+2}')
        a(f'v_cvt_pk_bf16_f32 v{R+1}, v{R}, v{R}')
        a(f'v_and_b32 v{R+1}, 0xffff0000, v{R+1}')
        a(f'v_sub_f32 v{R+1}, v{R}, v{R+1}')
        a(f'v_cvt_pk_bf16_f32 v{R+1}, v{R}, v{R+1}')
        a(f'buffer_store_dword v{R+1}, v{vt2}, {sr(S_WS,4)}, 0 offen sc1')
    a.label('L_aug_e')
    sm = mark()
    for _ in range(min(XA, len(xq))):
        emit(xq.pop(0))
    a.wait(sm, force=True)
    stamp('acked') if 'initprof' in OPT else None
    a.barrier()
    a(f's_cmp_lg_u32 s{sW}, 3')
    a('s_cbranch_scc1 L_ib')
    with cond():
        a(f'v_cmp_ne_u32 vcc, 1, v{vGO}')
        a('s_cmp_eq_u64 vcc, 0')
        a('s_cbranch_scc1 L_go_ok')
        with cond():
            poll(S_DBG, vt3, 0, sleep=2)
        a.label('L_go_ok')
        a(f'v_lshlrev_b32 v{vt0}, 12, v{vLANE}')
        a(f'v_mov_b32 v{vt1}, s{sXID}')
        a(f's_lshl_b32 s{sA}, s2, 4')
        a('s_mov_b64 exec, 15')
        a(f'buffer_store_dword v{vt1}, v{vt0}, {sr(S_WS,4)}, s{sA} offen sc1')
        a('s_mov_b64 exec, -1')
    a.label('L_ib')
    stamp('ibpub')
    while xq:
        emit(xq.pop(0))
    a(f's_mul_i32 s{sA}, s{sOWN}, 28672')
    a(f's_lshl_b32 s{sB}, s{sOFT}, 6')
    a(f's_add_u32 s{sA}, s{sA}, s{sB}')
    a(f'buffer_load_dwordx4 {vr(vXRES,4)}, v{vROW}, {sr(S_X,4)}, s{sA} offen')
    a(f'buffer_load_dwordx4 {vr(vXRES+4,4)}, v{vROW}, {sr(S_X,4)}, s{sA} offen offset:32')
    late_consts()
    a(f'v_lshrrev_b32 v{vt0}, 3, v{vRHO}')
    a(f'v_lshlrev_b32 v{vt0}, 10, v{vt0}')
    a(f'v_and_b32 v{vt1}, 7, v{vRHO}')
    a(f'v_lshl_add_u32 v{vt0}, v{vt1}, 7, v{vt0}')
    a(f'v_add_u32 v{vt0}, s{sH}, v{vt0}')
    a(f'v_bfe_u32 v{vt1}, v{vRHO}, 1, 3')
    a(f'v_xor_b32 v{vt1}, v{vt1}, v{vHI}')
    for q in range(4):
        a(f'v_xor_b32 v{220+q}, {2*q}, v{vt1}')
        a(f'v_lshl_add_u32 v{220+q}, v{220+q}, 4, v{vt0}')
    a(f'v_min_u32 v{vt0}, 20, v{vLANE}')
    a(f'v_mul_u32_u24 v{vt1}, 37, v{vt0}')
    a(f'v_lshrrev_b32 v{vt1}, 8, v{vt1}')
    a(f'v_mad_u32_u24 v{vt0}, v{vt1}, 49, v{vt0}')
    a(f's_lshr_b32 s{sA}, s{sHC}, 1')
    a(f's_mul_i32 s{sA}, s{sA}, 7')
    a(f'v_add_lshl_u32 v{vt2}, v{vt0}, s{sA}, 4')
    a.wait_vm_n(2)
    stamp('xland') if 'initprof' in OPT else None
    for ks in range(28):
        a(f'ds_read_b128 {vr(16+4*ks,4)}, v{220+(ks&3)} offset:{(ks>>2)*4096}')
    a.wait_lg0()
    a.barrier()
    a(f'v_mov_b32 v240, v{vt2}')
    x0_stats()
    stamp('stats')
    poll(S_WS, 240, f's{sREP}', nonzero=True)
    stamp('w1rdy')


def x0_stats():
    S0, S1, Q0, Q1 = 216, 217, 218, 219
    for v in (S0, S1, Q0, Q1):
        a(f'v_mov_b32 v{v}, 0')
    for i in range(0, 112, 2):
        a(f'v_dot2c_f32_bf16 v{S0}, s{sONES}, v{16+i}')
        a(f'v_dot2c_f32_bf16 v{Q0}, v{16+i}, v{16+i}')
        a(f'v_dot2c_f32_bf16 v{S1}, s{sONES}, v{17+i}')
        a(f'v_dot2c_f32_bf16 v{Q1}, v{17+i}, v{17+i}')
    a(f'v_add_f32 v{S0}, v{S0}, v{S1}')
    a(f'v_add_f32 v{S1}, v{Q0}, v{Q1}')
    emit(stats_finish(P1_XAUG))


vRSTD, vC2, vISTD = 248, 249, 250
P1_XAUG = 200


def stats_finish(xaug, SB=216):
    S, Q, t0, t1 = SB, SB + 1, SB + 2, SB + 3
    o = [f'v_mov_b32 v{t0}, v{S}',
         f'v_mov_b32 v{t1}, v{Q}',
         f'v_permlane32_swap_b32 v{S}, v{t0}',
         f'v_permlane32_swap_b32 v{Q}, v{t1}',
         f'v_add_f32 v{S}, v{S}, v{t0}',
         f'v_add_f32 v{Q}, v{Q}, v{t1}',
         f'v_mul_f32 v{S}, {INV448:#x}, v{S}',
         f'v_mul_f32 v{Q}, {INV448:#x}, v{Q}',
         f'v_fma_f32 v{Q}, -v{S}, v{S}, v{Q}',
         f'v_max_f32 v{Q}, 0, v{Q}',
         f'v_add_f32 v{Q}, {EPS5:#x}, v{Q}',
         f'v_rsq_f32 v{vRSTD}, v{Q}',
         f'v_cvt_pk_bf16_f32 v{xaug}, -v{S}, -v{S}',
         f'v_mul_f32 v{vISTD}, v{Q}, v{vRSTD}',
         f'v_mul_f32 v{vC2}, {LOG2E:#x}, v{vRSTD}']
    o += [f'v_mov_b32 v{xaug+i}, v{xaug}' for i in range(1, 4)]
    return o


def stats_sum(SB=216):
    o = []
    for i in range(1, 7):
        o.append(f'v_add_f32 v{SB}, v{SB}, v{SB+2*i}')
        o.append(f'v_add_f32 v{SB+1}, v{SB+1}, v{SB+2*i+1}')
    return o


def x_prep(fl, xb, stb):
    a(f'v_and_b32 v240, 15, v{vLANE}')
    a(f'v_min_u32 v240, 13, v240')
    a(f'v_lshlrev_b32 v240, 5, v240')
    a(f's_lshl_b32 s{sC}, s{sTILE1}, 9')
    a(f's_add_u32 s{sC}, s{sC}, {fl}')
    a(f's_lshl_b32 s{sD}, s{sTILE1}, 12')
    a(f's_add_u32 s{sD}, s{sD}, {stb}')
    a(f's_mul_i32 s{sE}, s{sTILE1}, {28*K}')
    a(f's_add_u32 s{sE}, s{sE}, {xb}')


def x_load(ks):
    if ks % 4 == 0 and ks:
        a(f's_add_u32 s{sE}, s{sE}, 4096')
    return a(f'buffer_load_dwordx4 {vr(16+4*ks,4)}, v{vL16}, {sr(S_DT,4)}, s{sE} offen offset:{(ks%4)*K} sc1')


def st_load(i, SB=216):
    return a(f'buffer_load_dwordx4 {vr(SB+4*i,4)}, v{vL16}, {sr(S_DT,4)}, s{sD} offen offset:{i*K} sc1')


def st_loads(SB=216):
    t = None
    for i in range(7):
        t = a(f'buffer_load_dwordx2 {vr(SB+2*i,2)}, v241, {sr(S_DT,4)}, s{sD} offen offset:{i*256} sc1')
    return t


def read_aug(dst, addr, tmp):
    a(f'v_add_u32 v{tmp}, {addr:#x}, v{vAUG}')
    a(f'ds_read2_b32 {vr(dst,2)}, v{tmp} offset0:0 offset1:32')
    return a(f'ds_read2_b32 {vr(dst+2,2)}, v{tmp} offset0:64 offset1:96')


def read_frag(dst, addr):
    v, off = lds_addr(addr)
    return a(f'ds_read_b128 {vr(dst,4)}, v{v} offset:{off}')


def wfrag_items(regfn, ssrc, lo, hi, va, vb, stmp):
    items = []
    for i, n in enumerate(range(lo, hi)):
        for b in range(2):
            it = []
            if i % 2 == 0 and b == 0:
                it.append(f's_add_u32 s{stmp}, s{ssrc}, {n*2048}')
            it.append(f'buffer_load_dwordx4 {regfn(n,b)}, v{(va,vb)[b]}, {sr(S_WS,4)}, s{stmp} offen offset:{(i%2)*2048} {WSC}')
            items.append(it)
    return items


def slot_addr_setup(va, vb):
    a(f's_and_b32 s{sA}, s{sW1K}, 0x400')
    a(f'v_add_u32 v{va}, s{sA}, v{vL16}')
    a(f'v_xor_b32 v{vb}, 0x400, v{va}')


def cost(x):
    op = x.split()[0]
    return 2 if op.startswith(('v_exp', 'v_rcp', 'v_rsq')) else 1


def drip(q, budget):
    while q and budget >= cost(q[0]):
        x = q.pop(0)
        budget -= cost(x)
        a(x)


CAP = int(OPT.get('cap', 6))
F1AT = int(OPT.get('f1at', 22))
PQSPLIT = int(OPT.get('pqsplit', 1))
WDP3 = int(OPT.get('wdp3', 40))
WDP1 = 8
PUBD2 = int(OPT.get('pubd2', 22))
PRET = int(OPT.get('pret', 1))
PUBD = int(OPT.get('pubd', 24))
S0T = int(OPT.get('s0t', 2))


def shadow(mem, vq, cap=None, pop=None):
    n0 = len(a.ins)
    for f in mem:
        if f is None:
            continue
        if callable(f):
            f()
        else:
            emit(f)
    budget = (CAP if cap is None else cap) - (len(a.ins) - n0)
    while vq and budget >= cost(vq[0]):
        budget -= cost(vq[0])
        if pop:
            pop()
        else:
            a(vq.pop(0))


def split_item(it):
    if it is None:
        return None, None
    return it[:-1], it[-1:]


ACK, ACV, ACQ = 128, 144, 160
P1WR = 176
P1RR2 = 216
p1D1, p1SA, p1SB = 204, 206, 207
p1RSW, p1RSR, p1OH = 208, 209, 210
LMODE = LRS + 1008


def FAST():
    return MODE['sfx'] != '_s'


def p1_setup(first):
    if not first:
        x_prep(F0 + LYB, *((X1, ST1) if FAST() else (X0 + LYB, ST0 + LYB)))
    slot_addr_setup(p1SA, p1SB)
    a(f'v_and_b32 v{p1OH}, 27, v{vLANE}')
    a(f'v_cmp_eq_u32 vcc, 26, v{p1OH}')
    a(f'v_cndmask_b32 v{p1OH}, 0, 1.0, vcc')
    a(f'v_mov_b32 v{p1OH+1}, v{p1OH}')
    a(f's_add_u32 s{sA}, s{sW4K}, {LKVS}')
    a(f'v_and_b32 v{p1RSW}, 31, v{vLANE}')
    a(f'v_lshl_add_u32 v{p1RSW}, v{p1RSW}, 2, s{sA}')
    a(f'v_lshrrev_b32 v{p1RSR}, 5, v{vLANE}')
    a(f'v_lshl_add_u32 v{p1RSR}, v{p1RSR}, 4, s{sA}')
    dma_setup(p1D1, sW3SRC, 0, LALPHA)


def phase1_kv(first):
    WR, XAUG, RR, RR2, KVD = P1WR, P1_XAUG, ACQ, P1RR2, 232
    vRSW, vRSR, vOH = p1RSW, p1RSR, p1OH
    PRE = XPRE
    xt, vq, st = {}, [], {}
    if first:
        dma_setup(205, sW1SRC, 0, 0)
        for it in dma_items(205, 0, 88, 2):
            emit(it)
        w1m = mark()
        p1_setup(True)
    else:
        poll(S_LY, 240, f's{sC}')
        stamp('p1poll')
        for ks in range(4):
            xt[ks] = x_load(ks)
        a(f's_add_u32 s{S_LY}, s{S_LY}, {LYB}')
        a(f's_addc_u32 s{S_LY+1}, s{S_LY+1}, 0')
        a.barrier()
    bg = ([] if first else code_touch(205)) + dma_items(p1D1, LALPHA, 56, 2)
    rt = {}
    stage = (0, 8, 16, 24) if first else ()

    def ib_check():
        a.wait(st['ib'])
        check_or_poll(254, S_WS, vL16, f's{sH}', nonzero=True)
        a(f's_and_b32 s{sA}, s2, 7')
        a(f'v_and_b32 v252, 7, v{vLANE}')
        a(f'v_cmp_eq_u32 {sr(sC,2)}, s{sA}, v252')
        a(f'v_cmp_ne_u32 vcc, s{sXID}, v254')
        a(f's_and_b64 vcc, vcc, {sr(sC,2)}')
        a(f's_cselect_b32 s{sZW}, 1, 0')

    def rd(ks, tl):
        if ks > 28:
            return
        if ks in stage and tl == 0:
            need_ops = 22 if ks == 24 else 2 * ((2 * (ks + 8) + 7) // 8)
            a.wait(('vm', w1m[1] - 22 + need_ops))
            if ks == 16:
                ib_check()
            a.barrier()
        d = WR + 8 * (ks % 3) + 4 * tl
        addr = (2 * ks + tl) * K
        rt[ks] = read_frag(d, addr) if ks < 28 else read_aug(d, addr, 252 + tl)
    for ks in range(2):
        rd(ks, 0); rd(ks, 1)
    if not first:
        for ks in range(4, PRE):
            xt[ks] = x_load(ks)
    rr = {}

    def stl(i):
        st['s'] = st_load(i)

    def xl(ks):
        xt[ks] = x_load(ks)

    def ibl():
        a(f's_add_u32 s{sH}, s{sREP}, s{sW1K}')
        st['ib'] = a(f'buffer_load_dword v254, v{vL16}, {sr(S_WS,4)}, s{sH} offen sc1')

    def rs_write():
        a(f'ds_write2_b32 v{vRSW}, v{vRSTD}, v{vC2} offset0:0 offset1:32')

    def rs_read(j):
        a(f'ds_read_b128 {vr(RR+4*j,4)}, v{vRSR} offset:{32*j}')
        rr[0] = a(f'ds_read_b128 {vr(RR2+4*j,4)}, v{vRSR} offset:{128+32*j}')
    for ks in range(29):
        if not first and ks == 15:
            a.wait(st['s'])
            vq += stats_sum() + stats_finish(XAUG)
        a.wait(rt[ks], xt.get(ks))
        X = vr(16 + 4 * ks, 4) if ks < 28 else vr(XAUG, 4)
        c = (lambda r: '0' if ks == 0 else vr(r, 16))
        if not first and ks + PRE < 28:
            pre, main = None, (lambda k_=ks + PRE: xl(k_))
        elif first and ks == 5:
            pre, main = None, ibl
        else:
            pre, main = split_item(bg.pop(0) if bg and (ks >= 15 or not first) else None)
        a(f'{MF} {vr(ACK,16)}, {X}, {vr(WR+8*(ks%3),4)}, {c(ACK)}')
        shadow([pre, lambda: rd(ks + 2, 0), main], vq)
        a(f'{MF} {vr(ACV,16)}, {X}, {vr(WR+8*(ks%3)+4,4)}, {c(ACV)}')
        extra = None
        if not first and ks < 8 and ks % 2 == 0:
            extra = (lambda i=ks // 2: stl(i))
        if ks == 23:
            assert not vq
            extra = rs_write
        if 24 <= ks <= 27:
            extra = (lambda j=ks - 24: rs_read(j))
        shadow([lambda: rd(ks + 2, 1), extra], vq)
    stamp('p1kv')
    qt = {}

    def rq(ks):
        if ks > 28:
            return
        d = WR + 4 * (ks % 6)
        addr = (58 + ks) * K
        qt[ks] = read_frag(d, addr) if ks < 28 else read_aug(d, addr, 252)
    for ks in range(4):
        rq(ks)
    KS = LRS
    a(f's_lshl_b32 s{sB}, s{sHC}, 12')
    a(f's_add_u32 s{sB}, s{sB}, s{sW1K}')
    a.wait(rr[0])
    for r in range(0, 16, 2):
        a(f'v_pk_mul_f32 {vr(ACK+r,2)}, {vr(ACK+r,2)}, {vr(RR2+r,2)}')
    if first:
        bg += wfrag_items(lambda n_, b: ar(8 * n_ + 4 * b, 4), sWDSRC, 0, WDP1 // 2, p1SA, p1SB, sF)

    def bgp():
        if bg:
            emit(bg.pop(0))
    for r in range(16):
        a(f'v_exp_f32_e64 v{RR2+r}, v{ACK+r} clamp')
        a(f'v_max_f32 v{ACK+r}, 0, v{ACK+r}')
        if r % 5 == 0:
            bgp()
    for r in range(0, 16, 2):
        a(f'v_pk_fma_f32 {vr(ACV+r,2)}, {vr(ACV+r,2)}, {vr(RR+r,2)}, {vr(vOH,2)}')
        a(f'v_pk_fma_f32 {vr(RR2+r,2)}, {vr(ACK+r,2)}, {sr(sLN2,2)}, {vr(RR2+r,2)}')
    bgp()
    for r in range(0, 16, 2):
        a(f'v_pk_add_f32 {vr(RR2+r,2)}, {vr(RR2+r,2)}, {sr(sEPS6,2)}')
        a(f'v_cvt_pk_bf16_f32 v{ACV+r//2}, v{ACV+r}, v{ACV+r+1}')
    bgp()
    for m in range(4):
        a(f'v_cvt_pk_bf16_f32 v{ACK+m}, v{RR2+2*m}, v{RR2+2*m+1}')
    a(f'{MF} {vr(KVD,16)}, {vr(ACK,4)}, {vr(ACV,4)}, 0')
    for m in range(4, 8):
        a(f'v_cvt_pk_bf16_f32 v{ACK+m}, v{RR2+2*m}, v{RR2+2*m+1}')
    a(f's_add_u32 s{sA}, s{sW4K}, {LKVS}')
    a(f'v_add_u32 v{vRSW}, s{sA}, v{vL16}')
    a(f'{MF} {vr(KVD,16)}, {vr(ACK+4,4)}, {vr(ACV+4,4)}, {vr(KVD,16)}')
    a(f's_add_u32 s{sA}, s{sW1K}, {LKVS}')
    a(f'v_add_u32 v{vRSR}, s{sA}, v{vL4}')
    if first:
        a(f's_lshl_b32 s{sA}, s{sW}, 2')
        a(f's_add_u32 s{sA}, s{sA}, {LRS}')
        a(f'v_mov_b32 v252, s{sA}')
        a(f'v_mov_b32 v253, s{sZW}')
        a('ds_write_b32 v252, v253')
        a(f'v_mov_b32 v252, {LRS}')

    def qstep(ks, mem=(), vq_=None):
        a.wait(qt[ks])
        X = vr(16 + 4 * ks, 4) if ks < 28 else vr(XAUG, 4)
        a(f'{MF} {vr(ACQ,16)}, {vr(WR+4*(ks%6),4)}, {X}, {"0" if ks == 0 else vr(ACQ,16)}')
        shadow([lambda: rq(ks + 4)] + list(mem), vq_ if vq_ is not None else [])
    qstep(0, [bgp])
    for q in range(4):
        kw = a(f'ds_write_b128 v{vRSW}, {vr(KVD+4*q,4)} offset:{q*K}')
    qstep(1, [bgp])
    a.wait(kw)
    a.barrier()
    RED = RR2
    for wp in range(4):
        a(f'ds_read2st64_b32 {vr(RED+4*wp,2)}, v{vRSR} offset0:{16*wp} offset1:{16*wp+1}')
        t = a(f'ds_read2st64_b32 {vr(RED+4*wp+2,2)}, v{vRSR} offset0:{16*wp+2} offset1:{16*wp+3}')
    if first:
        mt = a(f'ds_read_b128 {vr(KVD,4)}, v252')
    qstep(2)
    a.wait(t)
    for i in range(4):
        a(f'v_add_f32 v{RED+i}, v{RED+i}, v{RED+4+i}')
        a(f'v_add_f32 v{RED+8+i}, v{RED+8+i}, v{RED+12+i}')
    for i in range(4):
        a(f'v_add_f32 v{RED+i}, v{RED+i}, v{RED+8+i}')
    for i in range(4):
        at = a(f'buffer_atomic_add_f32 v{RED+i}, v{vL4}, {sr(S_LY,4)}, s{sB} offen offset:{i*256}')
    stamp('p1atom')
    if first:
        a.wait(mt)
        a(f'v_or_b32 v{KVD}, v{KVD}, v{KVD+1}')
        a(f'v_or3_b32 v{KVD}, v{KVD}, v{KVD+2}, v{KVD+3}')
        a(f'v_readfirstlane_b32 s{sA}, v{KVD}')
        a(f's_cmp_lg_u32 s{sA}, 0')
        a('s_cbranch_scc1 L_slow')
    return dict(qstep=qstep, at=at, qt=qt, bg=bg, state=(a.vm_issued, a.vm_done, a.lg_issued, a.lg_done), qt0=dict(qt))


def phase1_q(ctx, first):
    qstep, at = ctx['qstep'], ctx['at']
    vRSW, vRSR, RR2 = p1RSW, p1RSR, P1RR2
    wo = wfrag_items(lambda n, b: vr(16 + 8 * n + 4 * b, 4), sWOSRC, 0, 8, p1SA, p1SB, sF)
    wo = list(ctx['bg']) + wo
    if first and FAST():
        wo = [[f's_cmp_ge_u32 s{sJ}, 28', f's_cselect_b32 s{sI}, {OOB:#x}, s{sOX}', f's_add_u32 s{sI}, s{sI}, {X1}',
               f'buffer_store_dwordx4 {vr(vXRES,4)}, v{vL16}, {sr(S_DT,4)}, s{sI} offen sc1'],
              [f'buffer_store_dwordx4 {vr(vXRES+4,4)}, v{vL16}, {sr(S_DT,4)}, s{sI} offen offset:1024 sc1']] + wo
    pqoff = PQ if (FAST() or first) else PQ + LYB
    vq = [f's_lshl_b32 s{sG}, s{sHC}, 8',
          f's_lshl_b32 s{sB}, s{sRBG}, 4',
          f's_add_u32 s{sG}, s{sG}, s{sB}',
          f's_add_u32 s{sG}, s{sG}, {F1}',
          f's_cmp_lg_u32 s{sW}, 3\ns_cselect_b32 s{sG}, {OOB:#x}, s{sG}',
          f's_lshl_b32 s{sA}, s{sTILE1}, 15',
          f's_lshl_b32 s{sB}, s{sHC}, 11',
          f's_add_u32 s{sA}, s{sA}, s{sB}',
          f's_add_u32 s{sA}, s{sA}, {pqoff}',
          f's_lshl_b32 s{sU}, s{sTILE1}, 9',
          f's_lshl_b32 s{sB}, s{sHC}, 5',
          f's_add_u32 s{sU}, s{sU}, s{sB}',
          f's_add_u32 s{sU}, s{sU}, {F1Q}',
          f'v_lshlrev_b32 v{vRSW}, 12, v{vLANE}',
          f'v_mov_b32 v{vRSR}, 1',
          f'v_mov_b32 v{vC2+2}, v{vC2}',
          f'v_mov_b32 v{ACK+7}, 0']
    for ks in range(3, 29):
        qstep(ks, [wo.pop(0)] if ks % 2 == 1 else [], vq)
        if ks == F1AT:
            a.wait(at)
            a.barrier()
            a('s_mov_b64 exec, 15')
            a(f'buffer_store_dword v{vRSR}, v{vRSW}, {sr(S_LY,4)}, s{sG} offen sc1')
            a('s_mov_b64 exec, -1')
            stamp('p1pub')
    a('s_nop 4')
    stamp('p1q')
    T = RR2
    for r in range(0, 14, 2):
        a(f'v_pk_mul_f32 {vr(ACQ+r,2)}, {vr(ACQ+r,2)}, {vr(vC2+1,2)} op_sel:[0,1] op_sel_hi:[1,1]')
    for r in range(14):
        a(f'v_exp_f32_e64 v{T+r}, v{ACQ+r} clamp')
        a(f'v_max_f32 v{ACQ+r}, 0, v{ACQ+r}')
    for r in range(0, 14, 2):
        a(f'v_pk_fma_f32 {vr(T+r,2)}, {vr(ACQ+r,2)}, {sr(sLN2,2)}, {vr(T+r,2)}')
    for r in range(0, 14, 2):
        a(f'v_pk_add_f32 {vr(T+r,2)}, {vr(T+r,2)}, {sr(sEPS6,2)}')
    for m in range(7):
        a(f'v_cvt_pk_bf16_f32 v{ACK+m}, v{T+2*m}, v{T+2*m+1}')
    sc = 'sc1' if first else LS()
    a(f'buffer_store_dwordx4 {vr(ACK,4)}, v{vL16}, {sr(S_DT,4)}, s{sA} offen {sc}')
    pst = a(f'buffer_store_dwordx4 {vr(ACK+4,4)}, v{vL16}, {sr(S_DT,4)}, s{sA} offen offset:1024 {sc}')
    if not FAST() and not first:
        a(f's_mov_b32 s{S_DT}, s{S_LY}')
        a(f's_mov_b32 s{S_DT+1}, s{S_LY+1}')
    for it in wo:
        emit(it)
    p2_setup()
    a.barrier()
    a.wait(pst)
    emit(flag_store(S_LY, f's{sU}'))
    stamp('p1end')


ACC0, ACC1 = 208, 224
AAC2, AAC3 = 224, 240


def accs(s):
    return [vr(ACC0, 16), vr(ACC1, 16), ar(AAC2, 16), ar(AAC3, 16)][s]


def red_setup(base, RA):
    o = []
    for s in (1, 2, 3):
        o += [f's_xor_b32 s{sA}, s{sW}, {s}',
              f's_mul_i32 s{sA}, s{sA}, 12288',
              f's_add_u32 s{sA}, s{sA}, {base + (s-1)*4096}',
              f'v_add_u32 v{RA+s}, s{sA}, v{vL16}']
    o += [f's_mul_i32 s{sA}, s{sW}, 12288',
          f's_add_u32 s{sA}, s{sA}, {base}',
          f'v_add_u32 v{RA}, s{sA}, v{vL16}']
    return o


def red_write(s, RA):
    o = []
    for q in range(4):
        d = [None, vr(ACC1 + 4 * q, 4), ar(AAC2 + 4 * q, 4), ar(AAC3 + 4 * q, 4)][s]
        o.append(f'ds_write_b128 v{RA+s}, {d} offset:{q*K}')
    return o


sOX, sOS, sOF = 97, 98, 99


def own_consts():
    a(f's_mul_i32 s{sOX}, s{sOWN}, {28*K}')
    a(f's_lshl_b32 s{sB}, s{sOFT}, 11')
    a(f's_add_u32 s{sOX}, s{sOX}, s{sB}')
    a(f's_lshl_b32 s{sOS}, s{sOWN}, 12')
    a(f's_cmp_ge_u32 s{sOFT}, 7')
    a(f's_cselect_b32 s{sA}, 7, 0')
    a(f's_cselect_b32 s{sB}, 512, 0')
    a(f's_add_u32 s{sOS}, s{sOS}, s{sB}')
    a(f's_sub_u32 s{sA}, s{sOFT}, s{sA}')
    a(f's_lshr_b32 s{sB}, s{sA}, 1')
    a(f's_lshl_b32 s{sB}, s{sB}, 10')
    a(f's_add_u32 s{sOS}, s{sOS}, s{sB}')
    a(f's_and_b32 s{sA}, s{sA}, 1')
    a(f's_lshl_b32 s{sA}, s{sA}, 3')
    a(f's_add_u32 s{sOS}, s{sOS}, s{sA}')
    a(f's_lshl_b32 s{sOF}, s{sOWN}, 9')
    a(f's_lshl_b32 s{sB}, s{sOFT}, 5')
    a(f's_add_u32 s{sOF}, s{sOF}, s{sB}')


def res_unpack(RU):
    o = []
    for m in range(8):
        o.append(f'v_lshlrev_b32 v{RU+2*m}, 16, v{vXRES+m}')
        o.append(f'v_and_b32 v{RU+2*m+1}, 0xffff0000, v{vXRES+m}')
    return o


def red_finish(final, RB, RU, RA, nm, xb, stb, flb, sc, mid):
    a.wait_lg0()
    a.barrier()
    toks = []
    for i in range(12):
        toks.append(a(f'ds_read_b128 {vr(RB+4*i,4)}, v{RA} offset:{i*K}'))
    if final is not True:
        a(f's_add_u32 s{sA}, s{sOX}, {xb}')
        a(f's_add_u32 s{sB}, s{sOS}, {stb}')
        a(f's_add_u32 s{sZW}, s{sOF}, {flb}')
    for r in range(0, 16, 2):
        a(f'v_pk_add_f32 {vr(ACC0+r,2)}, {vr(ACC0+r,2)}, {vr(RU+r,2)}')
    S, Q, t0, t1, tl = RU, RU + 1, RU + 2, RU + 3, RU + 4
    if final is not True:
        a(f'v_mov_b32 v{S}, 0')
        a(f'v_mov_b32 v{Q}, 0')
    for s in range(3):
        a.wait(toks[4 * s + 3])
        for r in range(0, 16, 2):
            a(f'v_pk_add_f32 {vr(ACC0+r,2)}, {vr(ACC0+r,2)}, {vr(RB+16*s+r,2)}')
    for m in range(8):
        a(f'v_cvt_pk_bf16_f32 v{vXRES+m}, v{ACC0+2*m}, v{ACC0+2*m+1}')
    if final is True:
        final_store()
        return
    if final == 'dyn':
        a(f's_cmp_lg_u32 s{sL}, 0')
        a('s_cbranch_scc1 ' + LB_('L_final'))
    a(f'buffer_store_dwordx4 {vr(vXRES,4)}, v{vL16}, {sr(S_DT,4)}, s{sA} offen {sc}')
    a(f'buffer_store_dwordx4 {vr(vXRES+4,4)}, v{vL16}, {sr(S_DT,4)}, s{sA} offen offset:1024 {sc}')
    for m in range(8):
        a(f'v_dot2c_f32_bf16 v{S}, s{sONES}, v{vXRES+m}')
        a(f'v_dot2c_f32_bf16 v{Q}, v{vXRES+m}, v{vXRES+m}')
    a(f'v_mov_b32 v{t0}, v{S}')
    a(f'v_mov_b32 v{t1}, v{Q}')
    a(f'v_permlane32_swap_b32 v{S}, v{t0}')
    a(f'v_permlane32_swap_b32 v{Q}, v{t1}')
    a(f'v_pk_add_f32 {vr(S,2)}, {vr(S,2)}, {vr(t0,2)}')
    a('s_mov_b32 exec_hi, 0')
    lt = a(f'buffer_store_dwordx2 {vr(S,2)}, v{vL16}, {sr(S_DT,4)}, s{sB} offen {sc}')
    a('s_mov_b64 exec, -1')
    stamp(nm + 'st')
    mid()
    a.wait(lt)
    emit(flag_store(S_LY, f's{sZW}'))


def final_store():
    a(f'v_and_b32 v18, 31, v{vLANE}')
    a(f'v_lshrrev_b32 v19, 5, v{vLANE}')
    a(f'v_mul_u32_u24 v{vROW}, 896, v18')
    a(f'v_lshl_add_u32 v{vROW}, v19, 4, v{vROW}')
    a(f's_mul_i32 s{sA}, s{sOWN}, 28672')
    a(f's_lshl_b32 s{sB}, s{sOFT}, 6')
    a(f's_add_u32 s{sA}, s{sA}, s{sB}')
    a(f'buffer_store_dwordx4 {vr(vXRES,4)}, v{vROW}, {sr(S_OUT,4)}, s{sA} offen')
    a(f'buffer_store_dwordx4 {vr(vXRES+4,4)}, v{vROW}, {sr(S_OUT,4)}, s{sA} offen offset:32')


def p2_setup():
    dma_setup(vROW, sW3SRC, 56 * K, LBETA)
    a(f'v_and_b32 v240, 3, v{vLANE}')
    a(f'v_lshlrev_b32 v240, 5, v240')
    a(f'v_bfe_u32 v241, v{vLANE}, 2, 1')
    a(f'v_lshl_add_u32 v240, v241, 9, v240')
    a(f's_lshl_b32 s{sC}, s{sTILE2}, 9')
    a(f's_lshl_b32 s{sA}, s{sW}, 7')
    a(f's_add_u32 s{sC}, s{sC}, s{sA}')
    a(f's_add_u32 s{sC}, s{sC}, {F1Q}')
    a(f's_lshl_b32 s{sE}, s{sOWN}, 15')
    a(f's_lshl_b32 s{sA}, s{sW}, 13')
    a(f's_add_u32 s{sE}, s{sE}, s{sA}')
    a(f's_add_u32 s{sE}, s{sE}, {PQ}')
    a(f's_xor_b32 s{sF}, s{sE}, 0x8000')
    a(f's_add_u32 s{sH}, s{sREP}, s{sW1K}')
    a(f's_add_u32 s{sH}, s{sH}, {F1}')
    a(f's_lshl_b32 s{sD}, s{sW}, 14')


def phase2(L):
    WO, PQR, KVR = 16, 80, 144
    ODS = (240, 160)
    KB = (144, 152, 176, 192)
    tag = f'{L}'
    beta = dma_items(vROW, LBETA, 56, 2)
    for it in code_touch(205):
        emit(it)
    a(f's_cmp_ge_u32 s{sJ}, 28')
    with cold('s_cbranch_scc1', back=LB_('L_p2skip' + tag)):
        for it in beta:
            emit(it)
        p3_setup(L)
    with cond():
        poll(S_LY, 240, f's{sC}')
        stamp('p2pq')
        pt = {}
        for aa, s in ((1, sF), (0, sE)):
            for hl in range(4):
                for ks in range(2):
                    pt[hl, aa] = a(f'buffer_load_dwordx4 {vr(PQR+16*hl+8*aa+4*ks,4)}, v{vL16}, {sr(S_DT,4)}, s{s} offen offset:{(hl%2)*2048+ks*K} sc1')
                if hl == 1:
                    a(f's_add_u32 s{s}, s{s}, 4096')
                if aa == 1 and hl == 1:
                    fchk = a(f'buffer_load_dword v253, v{vL16}, {sr(S_LY,4)}, s{sH} offen sc1')
                if aa == 0 and hl == PQSPLIT:
                    break
        a.wait(fchk)
        check_or_poll(253, S_LY, vL16, f's{sH}', sleep=0)
        stamp('p2poll')
        kt = {}
        lq = []

        def kvl(hl, q):
            kt[hl] = a(f'buffer_load_dwordx4 {vr(KVR+16*hl+4*q,4)}, v{vL16}, {sr(S_LY,4)}, s{sD} offen offset:{q*K} sc1')
            if q == 3:
                a(f's_add_u32 s{sD}, s{sD}, 4096')

        def pql(hl, ks):
            pt[hl, 0] = a(f'buffer_load_dwordx4 {vr(PQR+16*hl+4*ks,4)}, v{vL16}, {sr(S_DT,4)}, s{sE} offen offset:{(hl%2)*2048+ks*K} sc1')
            if hl == 1 and ks == 1:
                a(f's_add_u32 s{sE}, s{sE}, 4096')
        for hl in range(4):
            for q in range(4):
                kvl(hl, q)
        for hl in range(PQSPLIT + 1, 4):
            for ks in range(2):
                lq.append(lambda h_=hl, k_=ks: pql(h_, k_))
        beta = lq + beta

        def cvt(hl):
            return [f'v_cvt_pk_bf16_f32 v{KB[hl]+m}, v{KVR+16*hl+2*m}, v{KVR+16*hl+2*m+1}' for m in range(8)]
        units = [(hl, aa) for aa in (1, 0) for hl in range(4)]

        def oM(u):
            hl, aa = units[u]
            D = vr(ODS[u % 2], 16)
            P = PQR + 16 * hl + 8 * aa
            return [f'{MF} {D}, {vr(KB[hl],4)}, {vr(P,4)}, 0',
                    f'{MF} {D}, {vr(KB[hl]+4,4)}, {vr(P+4,4)}, {D}']

        def scale(u):
            hl, aa = units[u]
            D = ODS[u % 2]
            P = PQR + 16 * hl + 8 * aa
            o = [f'v_add_f32 v{D+14}, s{sEPS6}, v{D+14}',
                 f'v_rcp_f32 v{D+14}, v{D+14}',
                 f'v_mov_b32 v{P+7}, 0']
            for m in range(7):
                o.append(f'v_mul_f32 v{D+2*m}, v{D+2*m}, v{D+14}')
                o.append(f'v_mul_f32 v{D+2*m+1}, v{D+2*m+1}, v{D+14}')
                o.append(f'v_cvt_pk_bf16_f32 v{P+m}, v{D+2*m}, v{D+2*m+1}')
            return o

        def woM(u, bs):
            hl, aa = units[u]
            P = PQR + 16 * hl + 8 * aa
            o = []
            for b in bs:
                for ks in range(2):
                    D = accs(2 * aa + b)
                    c = '0' if (hl == 0 and ks == 0) else D
                    o.append(f'{MF} {D}, {vr(WO+16*hl+8*ks+4*b,4)}, {vr(P+4*ks,4)}, {c}')
            return o
        RU, RA = 160, 184
        a.wait(kt[0])
        emit(cvt(0))
        emit(oM(0))
        a.wait(kt[1])
        emit(cvt(1))
        m1 = oM(1)
        vs = scale(0)
        a(m1[0]); shadow([], vs)
        a(m1[1]); emit(vs)
        wr = []
        for u in range(9):
            if u < 4:
                ms = woM(u, (0, 1))
            elif u < 8:
                ms = woM(u, (1,)) + (woM(u - 2, (0,)) if u >= 6 else [])
            else:
                ms = woM(6, (0,)) + woM(7, (0,))
            vs = scale(u + 1) if u + 1 < 8 else []
            if u < 2:
                a.wait(kt[u + 2])
                vs = cvt(u + 2) + vs
            if u == 2:
                vs = vs + red_setup(LB, RA)[:8]
            if u == 3:
                vs = vs + red_setup(LB, RA)[8:]
            if u == 4:
                wr = red_write(2, RA) + red_write(3, RA)
            if u == 7:
                vs = res_unpack(RU)
            if u == 8:
                wr = wr + red_write(1, RA)
            if u + 2 < 8:
                ms = ms[:2] + ['W'] + oM(u + 2) + ms[2:]
            k_ = 0
            for m in ms:
                if m == 'W':
                    a.wait(pt[units[u + 2]])
                    if u < 2:
                        while any(x in vs for x in cvt(u + 2)):
                            a(vs.pop(0))
                    continue
                a(m)
                mem = []
                if beta and k_ % 2 == 0:
                    mem.append(beta.pop(0))
                if wr and (k_ % 2 == 1 or u == 8) and not (u in (4, 8) and k_ == 0):
                    mem.append(wr[:1]); wr = wr[1:]
                shadow(mem, vs)
                k_ += 1
            emit(vs)
        assert not beta
        stamp('p2mfma')
        emit(wr)
        sc = LS()
        red_finish(False, 80, RU, RA, 'p2', X1, ST1, F2, sc, lambda: p3_setup(L))
    a.label(LB_('L_p2skip' + tag))
    stamp('p2end')


p3D1, p3D3, p3SA, p3SB = 228, 229, 240, 241
p3D2 = 243
p3FL, p3HA, p3HB, p3FV = 244, 245, 246, 247


def p3_setup(L):
    vFL, vHA, vHB = p3FL, p3HA, p3HB
    x_prep(F2, X1, ST1)
    dma_setup(p3D3, sW3SRC, 112 * K, LB)
    dma_setup(p3D1, sW3SRC, 147 * K, LALPHA)
    if L is None:
        a(f's_cmp_lg_u32 s{sL}, 0')
        a(f's_cselect_b32 s{sA}, {OOB:#x}, s{sW1SRC}')
        a(f'v_add_u32 v{p3D2}, s{sA}, v{vL16}')
    elif L == 0:
        a(f'v_add_u32 v{p3D2}, s{sW1SRC}, v{vL16}')
    a(f's_mul_i32 s{sG}, s{sTILE1}, {112*K}')
    a(f's_mul_i32 s{sA}, s{sHC}, {7*K}')
    a(f's_add_u32 s{sG}, s{sG}, s{sA}')
    a(f's_add_u32 s{sG}, s{sG}, {HB}')
    a(f's_add_u32 s{sH}, s{sG}, 4096')
    a(f's_lshl_b32 s{sU}, s{sTILE1}, 9')
    a(f's_lshl_b32 s{sA}, s{sHC}, 2')
    a(f's_add_u32 s{sU}, s{sU}, s{sA}')
    a(f's_add_u32 s{sU}, s{sU}, {F3}')


def p4_addr():
    vFL, vHA, vHB = p3FL, p3HA, p3HB
    return [f'v_and_b32 v{vFL}, 3, v{vLANE}',
            f'v_lshlrev_b32 v{vFL}, 2, v{vFL}',
            f'v_bfe_u32 v{vHA}, v{vLANE}, 2, 1',
            f'v_lshl_add_u32 v{vFL}, v{vHA}, 9, v{vFL}',
            f's_lshl_b32 s{sA}, s{sTILE2}, 9',
            f's_lshl_b32 s{sB}, s{sW}, 4',
            f's_add_u32 s{sA}, s{sA}, s{sB}',
            f's_add_u32 s85, s{sA}, {F3}',
            f'v_add_u32 v{vFL}, s85, v{vFL}',
            f's_mul_i32 s{sB}, s{sW}, {28*K}',
            f's_add_u32 s{sB}, s{sB}, {HB}',
            f's_mul_i32 s{sA}, s{sOWN}, {112*K}',
            f's_add_u32 s{sA}, s{sA}, s{sB}',
            f'v_add_u32 v{vHA}, s{sA}, v{vL16}',
            f's_xor_b32 s{sA}, s{sOWN}, 1',
            f's_mul_i32 s{sA}, s{sA}, {112*K}',
            f's_add_u32 s{sA}, s{sA}, s{sB}',
            f'v_add_u32 v{vHB}, s{sA}, v{vL16}']


def phase34(L):
    ACC = 128
    WR, NW = 192, 8
    SB = 176
    XAUG = 224
    vD1, vD3, vSA, vSB, vD2 = p3D1, p3D3, p3SA, p3SB, p3D2
    vFL, vHA, vHB, vFV = p3FL, p3HA, p3HB, p3FV
    vFV2 = 242
    PRE = XPRE
    HR, NH = 16, 28
    tag = f'{L}'
    LOOK = 6
    steps = [(t, ks) for ks in range(29) for t in range(2)]
    for t in range(2, 7):
        steps += [(t, ks) for ks in range(29)]

    def addr(t, ks):
        if ks == 28 and t < 3:
            return LBETA + t * K
        if t < 2:
            return LALPHA + (2 * ks + t) * K
        if t == 2:
            return LBETA + (3 + ks) * K
        if t == 3:
            return LBETA + (31 + ks) * K
        if t == 4:
            return LB + (4 + ks) * K
        if t == 5:
            return LALPHA + ks * K
        return LALPHA + (29 + ks) * K if ks < 27 else LB + (33 + ks - 27) * K
    n = len(steps)
    accof = {0: 0, 1: 1, 2: 2, 3: 3, 4: 0, 5: 1, 6: 2}
    rt, xt, hst, ht, chk = {}, {}, {}, {}, {}

    def hsc(t):
        return LS() if (HT and (L == 1 or HT > 1)) else 'sc1'

    def epi(t, D=None, Sx=None):
        Sx = ACC + 16 * accof[t] if Sx is None else Sx
        D = Sx if D is None else D
        o = []
        for r in range(8):
            o.append(f'v_mul_f32 v{D+r}, v{Sx+r}, v{vC2}')
        for r in range(8):
            o.append(f'v_exp_f32_e64 v{D+r}, -v{D+r}')
            if r >= 2:
                o.append(f'v_fma_f32 v{D+r-2}, v{D+r-2}, v{vISTD}, v{vISTD}')
        for r in (6, 7):
            o.append(f'v_fma_f32 v{D+r}, v{D+r}, v{vISTD}, v{vISTD}')
        for r in range(8):
            o.append(f'v_rcp_f32 v{D+r}, v{D+r}')
            if r >= 2:
                o.append(f'v_mul_f32 v{D+r-2}, v{D+r-2}, v{Sx+8+r-2}')
        for r in (6, 7):
            o.append(f'v_mul_f32 v{D+r}, v{D+r}, v{Sx+8+r}')
        for m in range(4):
            o.append(f'v_cvt_pk_bf16_f32 v{D+8+m}, v{D+2*m}, v{D+2*m+1}')
        s = sG if t < 4 else sH
        o.append(f'buffer_store_dwordx4 {vr(D+8,4)}, v{vL16}, {sr(S_DT,4)}, s{s} offen offset:{(t%4)*K} {hsc(t)} ; H{t}')
        return o

    def issue_rd(i):
        if i >= n:
            return
        t, ks = steps[i]
        d = WR + 4 * (i % NW)
        rt[i] = read_frag(d, addr(t, ks)) if ks < 28 else read_aug(d, addr(t, ks), 251 + (i % 3))

    def flag_ld(stg):
        if stg == 0 or not FAST():
            chk[stg] = a(f'buffer_load_dword v{vFV}, v{vFL}, {sr(S_LY,4)}, 0 offen offset:{64*stg} sc1')
        else:
            a(f's_buffer_load_dwordx4 s[76:79], {sr(S_LY,4)}, s85 offset:{64*stg}')
            a(f's_buffer_load_dwordx4 s[80:83], {sr(S_LY,4)}, s85 offset:{64*stg+512}')

    def flag_chk(stg):
        if FAST():
            a('s_waitcnt lgkmcnt(0)')
            a('s_and_b64 s[76:77], s[76:77], s[78:79]')
            a('s_and_b64 s[80:81], s[80:81], s[82:83]')
            a('s_and_b64 s[76:77], s[76:77], s[80:81]')
            a('s_and_b32 s76, s76, s77')
        else:
            a.wait(chk[stg])
            a(f'v_cmp_ne_u32 vcc, 1, v{vFV}')
            a('s_cmp_eq_u64 vcc, 0')
        assert 6 in hst
        with cold('s_cbranch_scc0'):
            a.wait_vm0()
            emit(flag_store(S_LY, f's{sU}', imm=128))
            emit(flag_store(S_LY, f's{sU}', imm=192))
            poll(S_LY, vFL, 0, imm=64 * stg)

    CHK = {24: 1, 40: 2, 48: 3}

    def hld(idx, chkflags=True):
        if idx >= 56:
            return
        if chkflags and idx + 4 in CHK:
            flag_ld(CHK[idx + 4])
        if chkflags and idx in CHK:
            flag_chk(CHK[idx])
        n_, aa = idx // 2, idx % 2
        t, cc = n_ // 4, n_ % 4
        if aa == 0:
            a(f's_mov_b32 s{sE}, {(cc*7+t)*K}')
        ht[idx] = a(f'buffer_load_dwordx4 {vr(HR+4*(idx%NH),4)}, v{(vHA,vHB)[aa]}, {sr(S_DT,4)}, s{sE} offen sc1')

    a.wait_lg0()
    poll(S_LY, 240, f's{sC}')
    stamp('p3poll')
    for ks in range(4):
        xt[ks] = x_load(ks)
    a.barrier()
    for i in range(LOOK):
        issue_rd(i)
    for ks in range(4, PRE):
        xt[ks] = x_load(ks)
    fill, owner = [], []
    done_at = {}
    wd = [] if L == 1 else wfrag_items(lambda n_, b: ar(8 * n_ + 4 * b, 4), sWDSRC, WDP1 // 2, 28, vSA, vSB, sF)
    ft = [[f'v_and_b32 v233, 0x80, v{vL4}', f'buffer_load_dword v233, v233, {sr(S_LY,4)}, s{sU} offen sc1']] if FT else []
    if HT and FAST() and (L == 1 or HT > 1):
        ft += [[f'v_min_u32 v234, 55, v{vLANE}', f'v_lshlrev_b32 v234, 7, v234', f'buffer_load_dword v234, v234, {sr(S_DT,4)}, s{sG} offen sc1']]
    bg = dma_items(vD3, LB, 36, 1) + ['M3'] + ft + wd[:WDP3]
    wd4 = wd[WDP3:]
    marks = {}
    cur = [0]

    def pop():
        x = fill.pop(0); o = owner.pop(0)
        t = a(x)
        if '; H' in x:
            hst[o] = (t, cur[0])

    def pub(stg, last_tile):
        a.wait(hst[last_tile][0])
        emit(flag_store(S_LY, f's{sU}', imm=64 * stg))

    def xl(ks):
        xt[ks] = x_load(ks)

    def next_bg():
        while bg and isinstance(bg[0], str):
            marks[bg.pop(0)] = mark()
        return bg.pop(0) if bg else None
    pubs = [(0, 2), (1, 4)]
    for i, (t, ks) in enumerate(steps):
        cur[0] = i
        if i == 34:
            a.wait(chk['st'])
            s_ = [f's_and_b32 s{sA}, s{sW1K}, 0x400', f'v_add_u32 v{vSA}, s{sA}, v{vL16}', f'v_xor_b32 v{vSB}, 0x400, v{vSA}'] + \
                stats_sum(SB) + stats_finish(XAUG, SB) + p4_addr()
            fill += s_; owner += [-1] * len(s_)
        stamp(f'i{i}', fine=True) if i in (1, 30, 57, 87, 116, 145, 174) else None
        if i % 2 == 0:
            a.wait(rt[min(i + 1, n - 1)], xt.get(ks))
        if i == 56:
            a.barrier()
            k3 = bg.index('M3') + 1 if 'M3' in bg else 0
            bg = bg[:k3] + dma_items(vD1, LALPHA, 56, 2) + ['M4'] + code_touch(232) + bg[k3:]
        if i + LOOK == 112:
            a.wait(marks['M3'])
            a.barrier()
        if i + LOOK == 145:
            a.wait(marks['M4'])
            a.barrier()
            bg = code_touch(232) + bg
        D = vr(ACC + 16 * accof[t], 16)
        if ks == 0 and t >= 4:
            assert (t - 4) not in owner
        if ks == 28:
            assert -1 not in owner
        X = vr(16 + 4 * ks, 4) if ks < 28 else vr(XAUG, 4)
        a(f'{MF} {D}, {vr(WR+4*(i%NW),4)}, {X}, {"0" if ks == 0 else D}')
        if ks == 28:
            done_at[t] = i
        for tt, di in list(done_at.items()):
            if i >= di + 2:
                e = epi(tt)
                fill += e; owner += [tt] * len(e)
                del done_at[tt]
        pre = main = None
        if t == 0 and ks + PRE < 28:
            main = (lambda k_=ks + PRE: xl(k_))
        elif t == 1 and ks < 8 and ks % 2 == 0:
            main = (lambda k_=ks // 2: chk.__setitem__('st', st_load(k_, SB)))
        elif t == 6:
            if ks % 2 == 1:
                main = (lambda k_=ks // 2: hld(k_))
        elif i == 173:
            main = lambda: flag_ld(0)
        elif i % 2 == 0 and i >= 2 * (28 - PRE):
            pre, main = split_item(next_bg())
        extra = None
        if fill and '; H' in fill[0]:
            extra = pop
        elif pubs and pubs[0][1] in hst and i >= hst[pubs[0][1]][1] + PUBD and i % 2 == 1:
            extra = (lambda p=pubs.pop(0): pub(*p))
        n0 = len(a.ins)
        for f in (pre, lambda: issue_rd(i + LOOK), main, extra):
            if f is None:
                continue
            f() if callable(f) else emit(f)
        budget = CAP - (len(a.ins) - n0) - (i % 2)
        while fill and '; H' not in fill[0] and budget >= cost(fill[0]):
            budget -= cost(fill[0])
            pop()
    assert not pubs and next_bg() is None, len(bg)
    print('P3: h stores at steps', {t: v[1] for t, v in hst.items()}, 'left', len(fill))
    assert not fill and 5 in hst
    stamp('p3mfma')

    RU, RA = 192, 128
    w1 = [] if L == 1 else dma_items(vD2, 0, 88, 2)
    nxt = (lambda: p1_setup(False)) if L != 1 else (lambda: None)
    a(f's_cmp_ge_u32 s{sJ}, 28')
    with cold('s_cbranch_scc1', back=LB_('L_p4skip' + tag)):
        emit(epi(6))
        pub(2, 5)
        a.barrier()
        a.wait_vm0()
        emit(flag_store(S_LY, f's{sU}', imm=192))
        for it in w1:
            emit(it)
        nxt()
    with cond():
        a.wait(chk[0])
        a(f'v_cmp_ne_u32 vcc, 1, v{vFV}')
        a('s_cmp_eq_u64 vcc, 0')
        saved = dict(ht)
        with cold('s_cbranch_scc0'):
            emit(epi(6, D=ACC + 48))
            a.wait_vm0()
            emit(flag_store(S_LY, f's{sU}', imm=128))
            emit(flag_store(S_LY, f's{sU}', imm=192))
            poll(S_LY, vFL, 0, imm=0)
            for idx in range(14):
                hld(idx, False)
            a.wait_vm0()
        ht.update(saved)
        fill = epi(6)
        owner = [6] * len(fill)
        later = red_setup(LALPHA, RA) + res_unpack(RU)
        TAIL = 8
        nld = [14]
        todo = ['pub2', 'pub3']
        wt = {}

        def mf(n_, s):
            aa, b = s >> 1, s & 1
            D = accs(s)
            a(f'{MF} {D}, {ar(8*n_+4*b,4)}, {vr(HR+4*((2*n_+aa)%NH),4)}, {"0" if n_ == 0 else D}')

        def sh(step, load):
            cur[0] = step
            n0 = len(a.ins)
            if load:
                if nld[0] < 56:
                    hld(nld[0]); nld[0] += 1
                elif w1:
                    emit(w1.pop(0))
            elif todo and todo[0] == 'pub2' and step >= 13:
                pub(2, 5); todo.pop(0)
            elif todo and todo[0] == 'pub3' and 6 in hst and step >= hst[6][1] + PUBD2:
                pub(3, 6); todo.pop(0)
                fill.extend(later); owner.extend([-2] * len(later))
            elif wd4:
                wt[0] = emit(wd4.pop(0))
            if step >= 1:
                if fill and '; H' in fill[0]:
                    pop()
                budget = CAP - (len(a.ins) - n0)
                while fill and '; H' not in fill[0] and budget >= cost(fill[0]):
                    budget -= cost(fill[0])
                    pop()
        for n_ in range(28 - TAIL):
            if n_ == 12:
                a.barrier()
            stamp(f'n{n_}') if ('p4prof' in OPT and n_ in (2, 4, 8, 13, 15, 17)) else None
            a.wait(ht[2 * n_])
            mf(n_, 0); sh(4 * n_, True)
            mf(n_, 1); sh(4 * n_ + 1, False)
            a.wait(ht[2 * n_ + 1])
            mf(n_, 2); sh(4 * n_ + 2, True)
            mf(n_, 3); sh(4 * n_ + 3, 10 <= n_ < 16)
        assert nld[0] == 56 and not fill and not todo and not wd4
        stamp('n20') if 'p4prof' in OPT else None
        a.wait(wt.get(0))
        pend = []
        for s in (3, 2, 1, 0):
            for k_, n_ in enumerate(range(28 - TAIL, 28)):
                a.wait(ht[2 * n_ + 1])
                mf(n_, s)
                if k_ % 2 == 1 and pend:
                    emit(pend[:1]); pend = pend[1:]
                elif w1 and k_ % 2 == 0:
                    emit(w1.pop(0))
            if s > 0:
                pend = red_write(s, RA)
        stamp('p4mfma')

        def mid():
            for it in w1:
                emit(it)
            nxt()
        final = {0: False, 1: True, None: 'dyn'}[L]
        xb, stb = (X1, ST1) if FAST() else (X0 + LYB, ST0 + LYB)
        red_finish(final, 16, RU, RA, 'p4', xb, stb, F0 + LYB, LS(), mid)
    a.label(LB_('L_p4skip' + tag))
    if L != 1:
        stamp('p4end')


def restore(ctx):
    a.vm_issued, a.vm_done, a.lg_issued, a.lg_done = ctx['state']
    ctx['qt'].clear(); ctx['qt'].update(ctx['qt0'])


def build():
    prologue()
    init_phase()
    own_consts()
    MODE.update(sc='', sfx='')
    ctx = phase1_kv(True)
    phase1_q(ctx, True)
    phase2(0)
    phase34(0)
    c2 = phase1_kv(False)
    phase1_q(c2, False)
    phase2(1)
    phase34(1)
    a.label('L_done')
    if PROFILE:
        stamp('end')
        a(f's_lshl_b32 s{sA}, s2, 2')
        a(f's_add_u32 s{sA}, s{sA}, s{sW}')
        a(f's_lshl_b32 s{sA}, s{sA}, 8')
        a(f's_add_u32 s{sA}, s{sA}, {PROF}')
        a(f'buffer_store_dword v{vPROF}, v{vL4}, {sr(S_WS,4)}, s{sA} offen')
        if 'dbgout' in OPT:
            a(f's_lshl_b32 s{sA}, s2, 2')
            a(f's_add_u32 s{sA}, s{sA}, s{sW}')
            a(f's_cmp_lg_u32 s{sA}, {77*4+1}')
            a('s_cbranch_scc1 L_end')
            a(f'v_readfirstlane_b32 s{sA}, v{vPROF}')
            a(f'v_subrev_u32 v{vPROF}, s{sA}, v{vPROF}')
            a(f'v_lshlrev_b32 v20, 1, v{vLANE}')
            a(f'v_subrev_u32 v20, {2*int(OPT["dbgout"])}, v20')
            a(f'buffer_store_short v{vPROF}, v20, {sr(S_DBG,4)}, 0 offen sc1')
    a.label('L_end')
    a('s_endpgm')
    a.flush_cold()
    a.label('L_codeend')
    keep = list(STAMPS)
    a.label('L_slow')
    MODE.update(sc='sc1', sfx='_s')
    restore(ctx)
    a('s_nop 7')
    phase1_q(ctx, True)
    a.label('L_layer_s')
    a('s_nop 7')
    phase2(None)
    phase34(None)
    a(f's_cmp_lg_u32 s{sL}, 0')
    a('s_cbranch_scc1 L_done')
    a(f's_mov_b32 s{sL}, 1')
    c2 = phase1_kv(False)
    phase1_q(c2, False)
    a('s_branch L_layer_s')
    a.label('L_final_s')
    final_store()
    a('s_branch L_done')
    a.flush_cold()
    STAMPS[:] = keep


build()
hdr = open('cdna_kernels/' + NAME + '.s.ref').read().split('; Override launch')[0]
out = hdr + f"""; @launch grid=(256,1,1) block=(256,1,1) lds={LDS_BYTES}
.amdgcn_target "amdgcn-amd-amdhsa--gfx950"
.text
.globl {NAME}_kernel
.p2align 8
.type {NAME}_kernel,@function
{NAME}_kernel:
{a.text()}
.section .rodata,"a"
.p2align 6
.amdhsa_kernel {NAME}_kernel
  .amdhsa_next_free_vgpr 512
  .amdhsa_next_free_sgpr 102
  .amdhsa_accum_offset 256
  .amdhsa_group_segment_fixed_size 0
  .amdhsa_kernarg_size 80
  .amdhsa_user_sgpr_count 2
  .amdhsa_user_sgpr_kernarg_segment_ptr 1
  .amdhsa_system_sgpr_workgroup_id_x 1
  .amdhsa_float_denorm_mode_32 3
.end_amdhsa_kernel
"""
outfn = [x for x in sys.argv[1:] if not x.startswith('--')][0]
open(outfn, 'w').write(out)
open(outfn + '.names', 'w').write(','.join(STAMPS))
print('instructions', len(a.ins), 'nops added', a.nops_added)
```

```python
import sys
import contextlib
import re
from asmlib import Asm, vr, ar, sr

NAME = "interleave_layers__linear_attn_block__glu_gated_glu__prompt"
OPT = {}
for x in sys.argv[1:]:
    if x.startswith('--'):
        k, _, v = x[2:].partition('=')
        OPT[k] = v if v else True
PROFILE = 'prof' in OPT
FINE = 'fine' in OPT
CLK = 'clk' in OPT
STOP = OPT.get('stop')
FA = 1
SLEEP = int(OPT.get('sleep', 1))
TOUCH = int(OPT.get('touch', 0))
BUD = int(OPT.get('bud', 3))
XPRE = int(OPT.get('xpre', 8))
HPRE = int(OPT.get('hpre', 16))
HSC = int(OPT.get('hsc', 0))
XSC = int(OPT.get('xsc', 0))
TLBW = int(OPT.get('tlbw', 0))
XI = int(OPT.get('xi', 0))
XA = int(OPT.get('xa', 16))
CT = int(OPT.get('ct', 1))
FT = int(OPT.get('ft', 0))
HT = int(OPT.get('ht', 0))
X0N = int(OPT.get('x0n', 7))
IDLE = int(OPT.get('idle', 0))
OSC = OPT.get('osc', '')
PQSC = int(OPT.get('pqsc', 0))
WB = int(OPT.get('wb', 0))
IDN = int(OPT.get('idn', 11))
HPL = int(OPT.get('hpl', 9))
G3 = int(OPT.get('g3', 1))
P4B = int(OPT.get('p4b', 1))
BEARLY = int(OPT.get('bearly', 1))
WDP2 = int(OPT.get('wdp2', 12))
W1KEEP = int(OPT.get('w1keep', 0))
CARRYON = int(OPT.get('carry', 0))
CWN = int(OPT.get('cwn', 4))
EPD = int(OPT.get('epd', 1))
WSC = '' if 'nowsc' in OPT else 'sc1'
STAMPS = []

IB = 0x0
W1R = 0x100000; W1S = 87 * 1024
WOR = 0x280000
W3R = 0x300000; W3S = 203 * 1024
WDR = 0x680000; WDS = 224 * 1024
LYB = 0x1000000
KV = 0x0
F1 = 0x10000
F1Q = 0x18000
F3 = 0x30000
F2 = 0x20000
F0 = 0x28000
ST1 = 0x40000
ST0 = 0x80000
PQ = 0x100000
X1 = 0x300000
X0 = 0x500000
HB = 0x700000
PROF = 0x3000000
WS_BYTES = 256 << 20
OOB = 0x40000000

K = 1024
LBETA, LB, LALPHA = 0, 56 * K, 104 * K
LRS = 87 * K
LKVS = 88 * K
LDS_BYTES = 160 * K

S_WS, S_X, S_WQKV, S_WO, S_WG, S_WU, S_WD, S_OUT, S_DBG = 4, 8, 12, 16, 20, 24, 28, 32, 36
S_T0, S_T1 = 40, 44
S_LY = 40
S_DT = 44
sW, sJ, sHC, sTB, sFB, sL, sTMO, sPI = 48, 49, 50, 51, 52, 53, 54, 55
sTILE1, sTILE2, sOWN, sOFT = 56, 57, 58, 59
sLN2, sEPS6 = 60, 62
sONES = 84
sW1K, sW2K, sW4K = 64, 65, 66
sW1SRC, sW3SRC, sWOSRC, sWDSRC = 67, 68, 69, 70
sRBG, sREP = 71, 72
sG, sH, sI = 73, 74, 75
sA, sB, sC, sD, sE, sF = 86, 87, 88, 89, 90, 91
sP0 = 92
sU = 94
sXID = 95
sZW = 96
sPC = 100

vLANE, vL16, vL16b, vL16c, vROW, vAUG, vL4, vPROF = 0, 1, 2, 3, 4, 5, 6, 7
vXRES = 8
LOG2E = 0x3FB8AA3B
LN2 = 0x3F317218
EPS6 = 0x358637BD
EPS5 = 0x3727C5AC
INV448 = 0x3B124925
MF = 'v_mfma_f32_32x32x16_bf16'

a = Asm()
MODE = {'sc': 'sc1', 'sfx': ''}


def LS():
    return MODE['sc']


def LL():
    return OPT.get('ll', 'sc1').replace('none', '') if MODE['sc'] == '' else 'sc1'


def ALIAS():
    return MODE['sfx'] == '' and 'noalias' not in OPT


def XS():
    return 'sc1' if XSC else LS()


def HS():
    return 'sc1' if HSC else LS()


def LB_(n):
    return n + MODE['sfx']


@contextlib.contextmanager
def cond():
    st = (a.vm_issued, a.vm_done, a.lg_issued, a.lg_done)
    yield
    a.vm_issued, a.vm_done, a.lg_issued, a.lg_done = st


@contextlib.contextmanager
def cold(branch, back=None):
    C = a.uid('Lc'); R = back or a.uid('Lr')
    a(f'{branch} {C}')
    st = (a.vm_issued, a.vm_done, a.lg_issued, a.lg_done)
    a.begin_cold()
    a.label(C)
    a('s_nop 7')
    a('s_nop 3')
    yield
    a('s_nop 4')
    a(f's_branch {R}')
    a.end_cold()
    a.vm_issued, a.vm_done, a.lg_issued, a.lg_done = st
    if back is None:
        a.label(R)


def mark():
    return ('vm', a.vm_issued - 1)


def lds_addr(addr):
    if addr < 65536:
        return vL16, addr
    if addr < 131072:
        return vL16b, addr - 65536
    return vL16c, addr - 131072


def stamp(name, fine=False):
    if not PROFILE or (fine and not FINE):
        return
    STAMPS.append(name)
    a('s_waitcnt lgkmcnt(0)')
    a(f"{'s_memtime' if CLK else 's_memrealtime'} {sr(sP0,2)}")
    a.wait_lg0()
    a(f'v_cmp_eq_u32 vcc, s{sPI}, v{vLANE}')
    a(f'v_mov_b32 v255, s{sP0}')
    a(f'v_cndmask_b32 v{vPROF}, v{vPROF}, v255, vcc')
    a(f's_add_u32 s{sPI}, s{sPI}, 1')


def srd(base, lo, nbytes):
    a(f's_mov_b32 s{base}, s{lo}')
    a(f's_and_b32 s{base+1}, s{lo+1}, 0xffff')
    a(f's_mov_b32 s{base+2}, {nbytes}')
    a(f's_mov_b32 s{base+3}, 0x00020000')


def poll(srdreg, vaddr, soff, imm=0, t=254, sleep=0, nonzero=False):
    L = a.uid('Lpoll'); D = a.uid('Lpd')
    a.label(L)
    if sleep:
        a(f's_sleep {sleep}')
    a(f'buffer_load_dword v{t}, v{vaddr}, {sr(srdreg,4)}, {soff} offen offset:{imm} sc1')
    a(f's_sub_u32 s{sTMO}, s{sTMO}, 1')
    a(f's_max_i32 s{sTMO}, s{sTMO}, 0')
    a(f's_cselect_b64 {sr(sP0,2)}, exec, 0')
    a.wait_vm0()
    a(f'v_cmp_eq_u32 vcc, 0, v{t}' if nonzero else f'v_cmp_ne_u32 vcc, 1, v{t}')
    a(f's_and_b64 exec, {sr(sP0,2)}, vcc')
    a(f's_cbranch_scc1 {L}')
    a('s_mov_b64 exec, -1')


def check_or_poll(v, srdreg, vaddr, soff, imm=0, nonzero=False, sleep=1, t=254):
    a(f'v_cmp_eq_u32 vcc, 0, v{v}' if nonzero else f'v_cmp_ne_u32 vcc, 1, v{v}')
    a('s_cmp_eq_u64 vcc, 0')
    with cold('s_cbranch_scc0'):
        poll(srdreg, vaddr, soff, imm=imm, nonzero=nonzero, sleep=sleep, t=t)


def code_touch(t, d):
    if not CT:
        return []
    return [[f'v_and_b32 v{t}, 3, v{vLANE}',
             f'v_lshlrev_b32 v{t}, 7, v{t}',
             f'global_load_dword v{d}, v{t}, {sr(sPC,2)}']]


def flag_store(srdreg, soff, imm=0, t=254, sc=None):
    sc = LS() if sc is None else sc
    return [f'v_mov_b32 v{t}, 1',
            's_mov_b64 exec, 1',
            f'buffer_store_dword v{t}, off, {sr(srdreg,4)}, {soff} offset:{imm} {sc}',
            's_mov_b64 exec, -1']


def emit(lst):
    t = None
    for x in lst:
        r = a(x)
        t = r if r is not None else t
    return t


def dma_items(vD, lds_base, nfrag, c):
    assert nfrag % (4 * c) == 0
    sWc = {1: sW1K, 2: sW2K, 4: sW4K}[c]
    items = []
    for r in range(nfrag // (4 * c)):
        for i in range(c):
            it = []
            if i == 0:
                it.append(f's_add_u32 m0, s{sWc}, {lds_base + r*4*c*K}')
            it.append(f'buffer_load_dwordx4 v{vD}, {sr(S_WS,4)}, m0 offen offset:{i*K} {WSC} lds')
            items.append(it)
    return items


def dma_setup(vD, ssrc, src_const, lds_base):
    a(f's_add_u32 s{sA}, s{ssrc}, {src_const - lds_base & 0xffffffff:#x}')
    a(f'v_add_u32 v{vD}, s{sA}, v{vL16}')


def prologue():
    a('s_cmp_ge_u32 s2, 256')
    a('s_cbranch_scc1 L_end')
    a('s_load_dwordx16 s[64:79], s[0:1], 0')
    a('s_load_dwordx4 s[80:83], s[0:1], 64')
    a(f's_getpc_b64 {sr(sPC,2)}')
    a.label('L_pc')
    a('s_lshr_b32 s3, s2, 3')
    a('s_lshl_b32 s3, s3, 11')
    a('s_min_u32 s3, s3, (L_codeend - L_pc - 2048)')
    a(f's_add_u32 s{sPC}, s{sPC}, s3')
    a(f's_addc_u32 s{sPC+1}, s{sPC+1}, 0')
    a('v_min_u32 v16, 15, v0')
    a('v_lshlrev_b32 v16, 7, v16')
    a(f'global_load_dword v17, v16, {sr(sPC,2)}')
    a(f'v_lshrrev_b32 v18, 6, v0')
    a(f'v_and_b32 v{vLANE}, 63, v0')
    a(f'v_readfirstlane_b32 s{sW}, v18')
    a(f'v_lshlrev_b32 v{vL16}, 4, v{vLANE}')
    a(f'v_add_u32 v{vL16b}, 0x10000, v{vL16}')
    a(f'v_add_u32 v{vL16c}, 0x20000, v{vL16}')
    a(f'v_lshlrev_b32 v{vL4}, 2, v{vLANE}')
    a(f'v_and_b32 v18, 31, v{vLANE}')
    a(f'v_lshrrev_b32 v19, 5, v{vLANE}')
    a(f'v_mul_u32_u24 v{vROW}, 896, v18')
    a(f'v_lshl_add_u32 v{vROW}, v19, 4, v{vROW}')
    a(f'v_lshlrev_b32 v{vAUG}, 2, v18')
    a(f'v_lshl_add_u32 v{vAUG}, v19, 9, v{vAUG}')
    a(f'v_mov_b32 v{vPROF}, 0')
    a(f's_mov_b32 s{sPI}, 0')
    a(f's_and_b32 s{sC}, s2, 7')
    a(f's_lshr_b32 s{sJ}, s2, 3')
    a(f's_mul_i32 s{sTB}, s{sJ}, 37')
    a(f's_lshr_b32 s{sTB}, s{sTB}, 8')
    a(f's_mul_i32 s{sFB}, s{sTB}, 7')
    a(f's_sub_u32 s{sFB}, s{sJ}, s{sFB}')
    a(f's_cmp_ge_u32 s{sJ}, 28')
    a(f's_cselect_b32 s{sTB}, s{sFB}, s{sTB}')
    a(f's_mov_b32 s{sL}, 0')
    a(f's_mov_b32 s{sTMO}, 100000')
    a(f's_lshl_b32 s{sTILE2}, s{sC}, 3')
    a(f's_lshl_b32 s{sD}, s{sTB}, 1')
    a(f's_add_u32 s{sTILE2}, s{sTILE2}, s{sD}')
    a(f's_lshr_b32 s{sD}, s{sW}, 1')
    a(f's_add_u32 s{sOWN}, s{sTILE2}, s{sD}')
    a(f's_and_b32 s{sD}, s{sW}, 1')
    a(f's_lshl_b32 s{sOFT}, s{sFB}, 1')
    a(f's_add_u32 s{sOFT}, s{sOFT}, s{sD}')
    lf = {1: 0, 2: 1, 4: 2, 8: 3}[FA]
    nh = 16 // FA
    a(f's_and_b32 s{sD}, s{sC}, {FA-1}')
    a(f's_mul_i32 s{sHC}, s{sD}, {nh}')
    a(f's_and_b32 s{sD}, s{sJ}, {nh-1}')
    a(f's_add_u32 s{sHC}, s{sHC}, s{sD}')
    a(f's_lshr_b32 s{sD}, s{sC}, {lf}')
    a(f's_lshl_b32 s{sE}, s{sD}, {lf+1}')
    a(f's_lshr_b32 s{sD}, s{sJ}, {4-lf}')
    a(f's_add_u32 s{sE}, s{sE}, s{sD}')
    a(f's_lshl_b32 s{sTILE1}, s{sE}, 2')
    a(f's_add_u32 s{sTILE1}, s{sTILE1}, s{sW}')
    a(f's_mov_b32 s{sLN2}, {LN2:#x}')
    a(f's_mov_b32 s{sLN2+1}, {LN2:#x}')
    a(f's_mov_b32 s{sEPS6}, {EPS6:#x}')
    a(f's_mov_b32 s{sEPS6+1}, {EPS6:#x}')
    a(f's_mov_b32 s{sONES}, 0x3f803f80')
    for i in range(4):
        a(f'v_mov_b32 v{216+i}, 0')
    a(f'v_and_b32 v{vRHO}, 31, v{vLANE}')
    a(f'v_lshrrev_b32 v{vHI}, 5, v{vLANE}')
    a(f'v_and_b32 v{vSIG}, 0x13, v{vRHO}')
    a(f'v_and_b32 v{vt0}, 4, v{vRHO}')
    a(f'v_lshl_or_b32 v{vSIG}, v{vt0}, 1, v{vSIG}')
    a(f'v_lshrrev_b32 v{vt0}, 1, v{vRHO}')
    a(f'v_and_or_b32 v{vSIG}, v{vt0}, 4, v{vSIG}')
    a(f'v_lshrrev_b32 v{vR8}, 3, v{vLANE}')
    a(f'v_and_b32 v{vC8}, 7, v{vLANE}')
    a(f'v_lshlrev_b32 v{vC8}, 4, v{vC8}')
    a(f'v_lshrrev_b32 v{vt0}, 4, v{vLANE}')
    a(f'v_lshlrev_b32 v{vt0}, 4, v{vt0}')
    a(f'v_xor_b32 v{vt0}, v{vt0}, v{vC8}')
    a(f'v_mul_u32_u24 v{vt1}, 896, v{vR8}')
    a(f'v_add_u32 v{vXS}, v{vt1}, v{vt0}')
    a(f'v_xor_b32 v{vt0}, 64, v{vt0}')
    a(f'v_add_u32 v{vXS+1}, v{vt1}, v{vt0}')
    a('s_waitcnt lgkmcnt(0)')
    if TLBW:
        a(f'v_lshlrev_b32 v20, 20, v{vLANE}')
        a('v_subrev_u32 v20, 0xa00000, v20')
        a('v_min_u32 v20, 0x2100000, v20')
        a('v_mov_b32 v21, s83')
        a('v_add_co_u32 v20, vcc, s82, v20')
        a('v_addc_co_u32 v21, vcc, 0, v21, vcc')
        for ln, p in enumerate((64, 66, 68, 72, 74, 76, 78, 80)):
            a(f'v_writelane_b32 v20, s{p}, {ln}')
            a(f'v_writelane_b32 v21, s{p+1}, {ln}')
        a('global_load_dword v22, v[20:21], off')
    srd(S_X, 64, 2048 * 448 * 2)
    srd(S_WQKV, 66, 448 * 1344 * 2)
    srd(S_WO, 68, 448 * 448 * 2)
    srd(S_WG, 72, 448 * 1792 * 2)
    srd(S_WU, 74, 448 * 1792 * 2)
    srd(S_WD, 76, 1792 * 448 * 2)
    srd(S_OUT, 78, 2048 * 448 * 2)
    srd(S_DBG, 80, 256)
    srd(S_WS, 82, WS_BYTES)
    a(f's_mov_b32 s{sRBG}, s{sE}')
    a(f's_and_b32 s{sREP}, s2, 3')
    a(f's_lshl_b32 s{sREP}, s{sREP}, 12')
    a(f's_lshl_b32 s{sW1K}, s{sW}, 10')
    a(f's_lshl_b32 s{sW2K}, s{sW}, 11')
    a(f's_lshl_b32 s{sW4K}, s{sW}, 12')
    a(f's_lshl_b32 s{sG}, s{sW}, 9')
    a(f's_add_u32 s{sPC}, s{sPC}, s{sG}')
    a(f's_addc_u32 s{sPC+1}, s{sPC+1}, 0')
    a(f's_lshl_b32 s{sG}, s{sW}, 13')
    a(f's_add_u32 s{sG}, s{sG}, {LSTG}')
    a(f's_getreg_b32 s{sXID}, hwreg(HW_REG_XCC_ID)')
    a(f's_and_b32 s{sXID}, s{sXID}, 15')
    a(f's_add_u32 s{sXID}, s{sXID}, 1')
    stamp('start')


def late_consts():
    a(f's_mul_i32 s{sW1SRC}, s{sHC}, {W1S}')
    a(f's_add_u32 s{sW1SRC}, s{sW1SRC}, {W1R}')
    a(f's_mul_i32 s{sW3SRC}, s{sHC}, {W3S}')
    a(f's_add_u32 s{sW3SRC}, s{sW3SRC}, {W3R}')
    a(f's_lshl_b32 s{sWOSRC}, s{sFB}, 16')
    a(f's_lshl_b32 s{sA}, s{sW}, 14')
    a(f's_add_u32 s{sWOSRC}, s{sWOSRC}, s{sA}')
    a(f's_add_u32 s{sWOSRC}, s{sWOSRC}, {WOR}')
    a(f's_mul_i32 s{sWDSRC}, s{sFB}, {WDS}')
    a(f's_mul_i32 s{sA}, s{sW}, 57344')
    a(f's_add_u32 s{sWDSRC}, s{sWDSRC}, s{sA}')
    a(f's_add_u32 s{sWDSRC}, s{sWDSRC}, {WDR}')
    a(f's_add_u32 s{S_LY}, s{S_WS}, {LYB}')
    a(f's_addc_u32 s{S_LY+1}, s{S_WS+1}, 0')
    a(f's_mov_b32 s{S_LY+2}, {2*LYB}')
    a(f's_mov_b32 s{S_LY+3}, 0x00020000')
    a(f's_mov_b32 s{S_DT}, s{S_LY}')
    a(f's_mov_b32 s{S_DT+1}, s{S_LY+1}')
    a(f's_mov_b32 s{S_DT+2}, {2*LYB}')
    a(f's_mov_b32 s{S_DT+3}, 0x00020000')


UD = 128
UC = 192
vRHO, vHI, vSIG, vR8, vC8 = 204, 205, 206, 207, 212
vt0, vt1, vt2, vt3 = 208, 209, 210, 211
vXS = 214
LSTG = 4 * K
LXS = 40 * K


PASS = {'p': 'src'}


class Done(Exception):
    pass


def run_setup(fn, *args):
    try:
        fn(*args)
    except Done:
        pass


def unit_dma(r, srdreg, vsrc, srow0, srow1):
    if PASS['p'] == 'dst':
        return
    _unit_dma(r, srdreg, vsrc, srow0, srow1)
    raise Done()


def _unit_dma(r, srdreg, vsrc, srow0, srow1):
    a(f's_add_u32 m0, s{sG}, {r*2048}')
    a('s_nop 0')
    a(f'buffer_load_dwordx4 v{vsrc}, {sr(srdreg,4)}, s{srow0} offen lds')
    a(f's_add_u32 m0, s{sG}, {r*2048+1024}')
    a('s_nop 0')
    a(f'buffer_load_dwordx4 v{vsrc}, {sr(srdreg,4)}, s{srow1} offen lds')


def div7(q, rem, su):
    a(f's_mul_i32 s{q}, s{su}, 9363')
    a(f's_lshr_b32 s{q}, s{q}, 16')
    a(f's_mul_i32 s{rem}, s{q}, 7')
    a(f's_sub_u32 s{rem}, s{su}, s{rem}')


def setup_w1(r, su):
    col, dst, aug = UC + 3 * r, UC + 3 * r + 1, UC + 3 * r + 2
    div7(sA, sB, su)
    a(f's_lshr_b32 s{sC}, s{sA}, 3')
    a(f's_and_b32 s{sA}, s{sA}, 7')
    a(f's_mul_i32 s{sD}, s{sC}, 896')
    a(f's_mul_i32 s{sE}, s{sA}, 112')
    a(f's_add_u32 s{sD}, s{sD}, s{sE}')
    a(f's_lshl_b32 s{sF}, s{sB}, 2')
    a(f's_add_u32 s{sF}, s{sF}, s{sW}')
    a(f's_mul_i32 s{sE}, s{sF}, {16*2688}')
    a(f's_add_u32 s{sD}, s{sD}, s{sE}')
    a(f's_add_u32 s{sE}, s{sD}, {8*2688}')
    a(f'v_mul_u32_u24 v{vt0}, 2688, v{vR8}')
    a(f'v_add_u32 v{vt0}, v{vt0}, v{vC8}')
    a(f'v_cmp_eq_u32 vcc, 112, v{vC8}')
    a(f'v_mov_b32 v{vt1}, {OOB:#x}')
    a(f'v_cndmask_b32 v{vt0}, v{vt0}, v{vt1}, vcc')
    unit_dma(r, S_WQKV, vt0, sD, sE)
    a(f'v_cmp_le_u32 vcc, 24, v{vSIG}')
    a(f'v_subrev_u32 v{vt0}, 2, v{vSIG}')
    a(f'v_cndmask_b32 v{vt0}, v{vSIG}, v{vt0}, vcc')
    a(f'v_mad_u32_u24 v{vt0}, v{vHI}, 28, v{vt0}')
    a(f'v_and_b32 v{vt1}, 0x16, v{vSIG}')
    a(f'v_cmp_eq_u32 vcc, 0x16, v{vt1}')
    a(f'v_cndmask_b32 v{vt0}, v{vt0}, 56, vcc')
    a(f'v_lshl_add_u32 v{col}, v{vt0}, 1, s{sG}')
    a(f's_sub_u32 s{sE}, s{sC}, 1')
    a(f's_cmp_eq_u32 s{sC}, 0')
    a(f's_cselect_b32 s{sE}, 2, s{sE}')
    a(f's_mul_i32 s{sD}, s{sF}, 3')
    a(f's_add_u32 s{sD}, s{sD}, s{sE}')
    a(f's_add_u32 s{sE}, s{sE}, 84')
    a(f's_mul_i32 s{sA}, s{sA}, {2*W1S}')
    a(f's_add_u32 s{sA}, s{sA}, {W1R}')
    a(f's_lshl_b32 s{sD}, s{sD}, 10')
    a(f's_add_u32 s{sD}, s{sD}, s{sA}')
    a(f's_lshl_b32 s{sE}, s{sE}, 10')
    a(f's_add_u32 s{sE}, s{sE}, s{sA}')
    a(f's_lshl_b32 s{sB}, s{sB}, 7')
    a(f's_add_u32 s{sE}, s{sE}, s{sB}')
    a(f'v_mul_u32_u24 v{vt0}, {W1S}, v{vHI}')
    a(f'v_lshl_add_u32 v{dst}, v{vRHO}, 4, v{vt0}')
    a(f'v_add_u32 v{dst}, s{sD}, v{dst}')
    a(f'v_lshl_add_u32 v{aug}, v{vRHO}, 2, v{vt0}')
    a(f'v_add_u32 v{aug}, s{sE}, v{aug}')


def setup_w3(r, su, tsrd):
    col, dst, aug = UC + 3 * r, UC + 3 * r + 1, UC + 3 * r + 2
    div7(sA, sB, su)
    a(f's_cmp_ge_u32 s{sA}, 28')
    a(f's_cselect_b32 s{tsrd}, s{S_WU}, s{S_WG}')
    a(f's_cselect_b32 s{tsrd+1}, s{S_WU+1}, s{S_WG+1}')
    a(f's_cselect_b32 s{sC}, 28, 0')
    a(f's_cselect_b32 s{sD}, 16, 0')
    a(f's_mov_b32 s{tsrd+2}, {448*1792*2}')
    a(f's_mov_b32 s{tsrd+3}, 0x00020000')
    a(f's_sub_u32 s{sA}, s{sA}, s{sC}')
    a(f's_lshl_b32 s{sE}, s{sB}, 2')
    a(f's_add_u32 s{sE}, s{sE}, s{sW}')
    a(f's_mul_i32 s{sC}, s{sE}, {16*3584}')
    a(f's_lshl_b32 s{sF}, s{sA}, 7')
    a(f's_add_u32 s{sC}, s{sC}, s{sF}')
    a(f's_add_u32 s{sF}, s{sC}, {8*3584}')
    a(f'v_mul_u32_u24 v{vt0}, 3584, v{vR8}')
    a(f'v_add_u32 v{vt0}, v{vt0}, v{vC8}')
    unit_dma(r, tsrd, vt0, sC, sF)
    a(f'v_and_b32 v{vt0}, 48, v{vLANE}')
    a(f'v_and_or_b32 v{vt0}, v{vSIG}, 15, v{vt0}')
    a(f'v_lshl_add_u32 v{col}, v{vt0}, 1, s{sG}')
    a(f'v_lshrrev_b32 v{vt0}, 4, v{vLANE}')
    a(f's_lshl_b32 s{sC}, s{sA}, 2')
    a(f'v_add_u32 v{vt0}, s{sC}, v{vt0}')
    a(f'v_mul_u32_u24 v{vt1}, 9363, v{vt0}')
    a(f'v_lshrrev_b32 v{vt1}, 16, v{vt1}')
    a(f'v_mul_u32_u24 v{vt2}, 7, v{vt1}')
    a(f'v_sub_u32 v{vt0}, v{vt0}, v{vt2}')
    a(f's_mul_i32 s{sF}, s{sE}, {3 if G3 else 2}')
    a(f'v_add_u32 v{vt2}, s{sF}, v{vt0}')
    a(f'v_add_u32 v{aug}, {84 if G3 else 56}, v{vt0}')
    a(f's_cmp_ge_u32 s{sE}, 27')
    a(f's_cselect_b32 s{sC}, 58, 0')
    a(f's_sub_u32 s{sC}, s{sE}, s{sC}')
    a(f's_add_u32 s{sC}, s{sC}, 176')
    for t, base, ag in (() if G3 else ((2, 59, None),)) + ((3, 87, 115), (4, 116, 144), (5, 147, 175), (6, None, 146)):
        a(f'v_cmp_eq_u32 vcc, {t}, v{vt0}')
        if base is not None:
            a(f's_add_u32 s{sF}, s{sE}, {base}')
            a(f'v_mov_b32 v{vt3}, s{sF}')
        else:
            a(f'v_mov_b32 v{vt3}, s{sC}')
        a(f'v_cndmask_b32 v{vt2}, v{vt2}, v{vt3}, vcc')
        if ag is not None:
            a(f'v_mov_b32 v{vt3}, {ag}')
            a(f'v_cndmask_b32 v{aug}, v{aug}, v{vt3}, vcc')
    a(f'v_mul_u32_u24 v{vt1}, 203, v{vt1}')
    a(f'v_add_lshl_u32 v{vt2}, v{vt2}, v{vt1}, 10')
    a(f'v_add_lshl_u32 v{aug}, v{aug}, v{vt1}, 10')
    a(f'v_and_b32 v{vt0}, 15, v{vLANE}')
    a(f'v_add_u32 v{vt0}, s{sD}, v{vt0}')
    a(f'v_lshl_add_u32 v{dst}, v{vt0}, 4, v{vt2}')
    a(f'v_add_u32 v{dst}, {W3R:#x}, v{dst}')
    a(f'v_lshl_add_u32 v{aug}, v{vt0}, 2, v{aug}')
    a(f's_lshl_b32 s{sB}, s{sB}, 7')
    a(f's_add_u32 s{sB}, s{sB}, {W3R}')
    a(f'v_add_u32 v{aug}, s{sB}, v{aug}')


def setup_colsT(r):
    col, dst, aug = UC + 3 * r, UC + 3 * r + 1, UC + 3 * r + 2
    a(f'v_lshl_add_u32 v{vt0}, v{vHI}, 5, v{vSIG}')
    a(f'v_lshl_add_u32 v{col}, v{vt0}, 1, s{sG}')
    a(f'v_lshlrev_b32 v{dst}, 10, v{vHI}')
    a(f'v_lshl_add_u32 v{dst}, v{vRHO}, 4, v{dst}')
    a(f'v_mov_b32 v{aug}, {OOB:#x}')


def setup_wd(r, su):
    dst = UC + 3 * r + 1
    div7(sA, sB, su)
    a(f's_lshl_b32 s{sA}, s{sA}, 2')
    a(f's_add_u32 s{sA}, s{sA}, s{sW}')
    a(f's_mul_i32 s{sC}, s{sA}, {16*896}')
    a(f's_lshl_b32 s{sD}, s{sB}, 7')
    a(f's_add_u32 s{sC}, s{sC}, s{sD}')
    a(f's_add_u32 s{sD}, s{sC}, {8*896}')
    a(f'v_mul_u32_u24 v{vt0}, 896, v{vR8}')
    a(f'v_add_u32 v{vt0}, v{vt0}, v{vC8}')
    unit_dma(r, S_WD, vt0, sC, sD)
    setup_colsT(r)
    div7(sC, sD, sA)
    a(f's_mul_i32 s{sB}, s{sB}, {WDS}')
    a(f's_lshr_b32 s{sE}, s{sC}, 2')
    a(f's_mul_i32 s{sE}, s{sE}, 57344')
    a(f's_add_u32 s{sB}, s{sB}, s{sE}')
    a(f's_lshl_b32 s{sD}, s{sD}, 2')
    a(f's_and_b32 s{sC}, s{sC}, 3')
    a(f's_add_u32 s{sD}, s{sD}, s{sC}')
    a(f's_lshl_b32 s{sD}, s{sD}, 11')
    a(f's_add_u32 s{sB}, s{sB}, s{sD}')
    a(f's_add_u32 s{sB}, s{sB}, {WDR}')
    a(f'v_add_u32 v{dst}, s{sB}, v{dst}')


def setup_wo(r, su):
    dst = UC + 3 * r + 1
    div7(sA, sB, su)
    a(f's_lshl_b32 s{sA}, s{sA}, 2')
    a(f's_add_u32 s{sA}, s{sA}, s{sW}')
    a(f's_lshr_b32 s{sC}, s{sA}, 1')
    a(f's_mul_i32 s{sC}, s{sC}, {28*896}')
    a(f's_lshl_b32 s{sD}, s{sB}, 7')
    a(f's_add_u32 s{sC}, s{sC}, s{sD}')
    a(f's_and_b32 s{sD}, s{sA}, 1')
    a(f's_cselect_b32 s{sD}, {16*896}, 0')
    a(f's_cselect_b32 s{sE}, {14*896}, 0')
    a(f's_add_u32 s{sD}, s{sD}, s{sC}')
    a(f's_add_u32 s{sE}, s{sE}, s{sC}')
    a(f's_add_u32 s{sE}, s{sE}, {8*896}')
    a(f'v_mul_u32_u24 v{vt0}, 896, v{vR8}')
    a(f'v_add_u32 v{vt0}, v{vt0}, v{vC8}')
    unit_dma(r, S_WO, vt0, sD, sE)
    setup_colsT(r)
    a(f's_lshl_b32 s{sB}, s{sB}, 16')
    a(f's_lshl_b32 s{sC}, s{sA}, 11')
    a(f's_add_u32 s{sB}, s{sB}, s{sC}')
    a(f's_add_u32 s{sB}, s{sB}, {WOR}')
    a(f'v_add_u32 v{dst}, s{sB}, v{dst}')


def setup_none(r):
    col, dst, aug = UC + 3 * r, UC + 3 * r + 1, UC + 3 * r + 2
    a(f'v_mov_b32 v{col}, 0')
    a(f'v_mov_b32 v{dst}, {OOB:#x}')
    a(f'v_mov_b32 v{aug}, {OOB:#x}')


def rounds(tag):
    a('s_cmp_ge_u32 s2, 168')
    a(f's_cbranch_scc1 L_r0b{tag}')
    with cond():
        run_setup(setup_w1, 0, 2)
    a(f's_branch L_r0e{tag}')
    a.label(f'L_r0b{tag}')
    a('s_cmp_ge_u32 s2, 224')
    a(f's_cbranch_scc1 L_r0c{tag}')
    with cond():
        a(f's_sub_u32 s{sU}, s2, 168')
        run_setup(setup_wo, 0, sU)
    a(f's_branch L_r0e{tag}')
    a.label(f'L_r0c{tag}')
    with cond():
        a(f's_sub_u32 s{sU}, s2, 224')
        run_setup(setup_wd, 0, sU)
    a.label(f'L_r0e{tag}')
    run_setup(setup_w3, 1, 2, S_T0)
    a('s_cmp_ge_u32 s2, 136')
    a(f's_cbranch_scc1 L_r2b{tag}')
    with cond():
        a(f's_add_u32 s{sU}, s2, 256')
        run_setup(setup_w3, 2, sU, S_T1)
    a(f's_branch L_r2e{tag}')
    a.label(f'L_r2b{tag}')
    with cond():
        a(f's_sub_u32 s{sU}, s2, 104')
        run_setup(setup_wd, 2, sU)
    a.label(f'L_r2e{tag}')
    a('s_cmp_ge_u32 s2, 212')
    a(f's_cbranch_scc1 L_r3b{tag}')
    if PASS['p'] == 'dst':
        setup_none(3)
    a(f's_branch L_r3e{tag}')
    a.label(f'L_r3b{tag}')
    with cond():
        a(f's_sub_u32 s{sU}, s2, 60')
        run_setup(setup_wd, 3, sU)
    a.label(f'L_r3e{tag}')


def init_phase():
    Z = 216
    vGO = 215 + 9
    a(f's_lshl_b32 s{sA}, s{sW}, 3')
    a(f's_add_u32 s{sB}, s{sA}, s2')
    a(f's_mov_b32 s{sZW}, s{sB}')
    a(f's_cmp_ge_u32 s{sZW}, 8')
    a('s_cbranch_scc1 L_z1')
    with cond():
        a(f's_lshl_b32 s{sA}, s2, 11')
        a(f'buffer_store_dwordx4 {vr(Z,4)}, v{vL16}, {sr(S_WS,4)}, s{sA} offen sc1')
        a(f'buffer_store_dwordx4 {vr(Z,4)}, v{vL16}, {sr(S_WS,4)}, s{sA} offen offset:1024 sc1')
    a.label('L_z1')
    PASS['p'] = 'src'
    rounds('s')
    um = mark()
    a(f's_mul_i32 s{sI}, s{sTILE1}, 28672')
    a(f's_mul_i32 s{sH}, s{sW}, {28*K}')
    a(f's_add_u32 s{sH}, s{sH}, {LXS}')
    xq = []
    for g in range(4):
        for c in range(7):
            it = [f's_add_u32 m0, s{sH}, {(4*c+g)*K - c*128}',
                  f'buffer_load_dwordx4 v{vXS + (g & 1)}, {sr(S_X,4)}, s{sI} offen offset:{c*128} lds']
            if c == 6:
                it.append(f's_add_u32 s{sI}, s{sI}, {8*896}')
            xq.append(it)
    a(f's_mul_i32 s{sA}, s{sHC}, {14*128}')
    a(f's_add_u32 s{sA}, s{sA}, s{sI}')
    a(f'v_min_u32 v{vt0}, 13, v{vLANE}')
    a(f'v_lshlrev_b32 v{vt0}, 7, v{vt0}')
    a(f'buffer_load_dword v17, v{vt0}, {sr(S_X,4)}, s{sA} offen')
    for _ in range(X0N):
        emit(xq.pop(0))
    stamp('issued')
    a(f's_cmp_ge_u32 s{sZW}, 8')
    a('s_cbranch_scc1 L_z2')
    with cond():
        a(f's_waitcnt vmcnt({7+X0N})')
        a(f's_lshl_b32 s{sA}, s2, 5')
        emit(flag_store(S_DBG, f's{sA}', sc='sc1'))
    a.label('L_z2')
    PASS['p'] = 'dst'
    rounds('d')
    a(f's_lshl_b32 s{sA}, s{sW}, 8')
    a(f'v_add_u32 v{vt1}, s{sA}, v{vL4}')
    a(f'v_and_b32 v{vt3}, 7, v{vLANE}')
    a(f'v_lshlrev_b32 v{vt3}, 5, v{vt3}')
    a(f's_lshl_b32 s{sA}, s2, 10')
    a(f's_add_u32 s{sB}, s{sW}, 1')
    a(f's_lshl_b32 s{sB}, s{sB}, 24')
    a(f's_add_u32 s{sA}, s{sA}, s{sB}')
    a(f's_sub_u32 s{sB}, s{sA}, {2*LYB - ST1}')
    a(f's_cmp_eq_u32 s{sW}, 2')
    a(f's_cselect_b32 s{sA}, s{sB}, s{sA}')
    a(f's_cmp_ge_u32 s{sW}, 3')
    a(f's_cselect_b32 s{sA}, {OOB:#x}, s{sA}')
    a.wait(um, force=True)
    stamp('ldone')
    a(f'buffer_store_dwordx4 {vr(Z,4)}, v{vL16}, {sr(S_WS,4)}, s{sA} offen sc1')
    rtok = {}

    def gat(r, half):
        for e in range(8):
            rtok[r, half] = a(f'ds_read_u16 v{UD+16*r+8*half+e}, v{UC+3*r} offset:{r*2048+(8*half+e)*128}')
    gat(0, 0)
    for r in range(4):
        R = UD + 16 * r
        dst = UC + 3 * r + 1
        for half in range(2):
            nxt = 2 * r + half + 1
            if nxt < 8:
                gat(nxt // 2, nxt % 2)
            a.wait(rtok[r, half])
            for m in range(4):
                a(f'v_lshl_or_b32 v{R+8*half+m}, v{R+8*half+2*m+1}, 16, v{R+8*half+2*m}')
            a(f'buffer_store_dwordx4 {vr(R+8*half,4)}, v{dst}, {sr(S_WS,4)}, 0 offen offset:{512*half} sc1')
            for _ in range(XI):
                emit(xq.pop(0))
    for r in range(3):
        R = UD + 16 * r
        a(f'v_mov_b32 v{R+4}, 0')
        for m in range(4):
            a(f'v_dot2c_f32_bf16 v{R+4}, s{sONES}, v{R+m}')
            a(f'v_dot2c_f32_bf16 v{R+4}, s{sONES}, v{R+8+m}')
        a(f'ds_write_b32 v{vt1}, v{R+4} offset:{r*1024}')
    a(f'buffer_load_dword v{vGO}, v{vt3}, {sr(S_DBG,4)}, 0 offen sc1')
    stamp('packed') if 'initprof' in OPT else None
    a.wait_lg0()
    a.barrier()
    a(f's_cmp_eq_u32 s{sW}, 3')
    a('s_cbranch_scc1 L_aug_e')
    with cond():
        R = 220
        a(f'v_add_u32 v{vt0}, s{sW1K}, v{vL4}')
        a(f'ds_read2st64_b32 {vr(R,2)}, v{vt0} offset0:0 offset1:1')
        t = a(f'ds_read2st64_b32 {vr(R+2,2)}, v{vt0} offset0:2 offset1:3')
        a(f's_cmp_eq_u32 s{sW}, 1')
        a('s_cselect_b64 vcc, -1, 0')
        a(f'v_cndmask_b32 v{vt2}, v{UC+2}, v{UC+5}, vcc')
        a(f's_cmp_eq_u32 s{sW}, 2')
        a('s_cselect_b64 vcc, -1, 0')
        a(f'v_cndmask_b32 v{vt2}, v{vt2}, v{UC+8}, vcc')
        a(f'v_bfe_u32 v{vt0}, v{vt2}, 7, 3')
        a(f'v_cmp_eq_u32 vcc, 6, v{vt0}')
        a(f'v_mov_b32 v{vt1}, {OOB:#x}')
        a(f'v_cndmask_b32 v{vt0}, v{vt1}, v{vt2}, vcc')
        a(f'buffer_store_dword v{Z}, v{vt0}, {sr(S_WS,4)}, 0 offen offset:128 sc1')
        a.wait(t)
        a(f'v_add_f32 v{R}, v{R}, v{R+1}')
        a(f'v_add_f32 v{R+2}, v{R+2}, v{R+3}')
        a(f'v_add_f32 v{R}, v{R}, v{R+2}')
        a(f'v_cvt_pk_bf16_f32 v{R+1}, v{R}, v{R}')
        a(f'v_and_b32 v{R+1}, 0xffff0000, v{R+1}')
        a(f'v_sub_f32 v{R+1}, v{R}, v{R+1}')
        a(f'v_cvt_pk_bf16_f32 v{R+1}, v{R}, v{R+1}')
        a(f'buffer_store_dword v{R+1}, v{vt2}, {sr(S_WS,4)}, 0 offen sc1')
    a.label('L_aug_e')
    sm = mark()
    for _ in range(min(XA, len(xq))):
        emit(xq.pop(0))
    a.wait(sm, force=True)
    stamp('acked') if 'initprof' in OPT else None
    a.barrier()
    a(f's_cmp_lg_u32 s{sW}, 3')
    a('s_cbranch_scc1 L_ib')
    with cond():
        a(f'v_cmp_ne_u32 vcc, 1, v{vGO}')
        a('s_cmp_eq_u64 vcc, 0')
        a('s_cbranch_scc1 L_go_ok')
        with cond():
            poll(S_DBG, vt3, 0, sleep=2)
        a.label('L_go_ok')
        a(f'v_lshlrev_b32 v{vt0}, 12, v{vLANE}')
        a(f'v_mov_b32 v{vt1}, s{sXID}')
        a(f's_lshl_b32 s{sA}, s2, 4')
        a('s_mov_b64 exec, 15')
        a(f'buffer_store_dword v{vt1}, v{vt0}, {sr(S_WS,4)}, s{sA} offen sc1')
        a('s_mov_b64 exec, -1')
    a.label('L_ib')
    stamp('ibpub')
    while xq:
        emit(xq.pop(0))
    a(f's_mul_i32 s{sA}, s{sOWN}, 28672')
    a(f's_lshl_b32 s{sB}, s{sOFT}, 6')
    a(f's_add_u32 s{sA}, s{sA}, s{sB}')
    a(f'buffer_load_dwordx4 {vr(vXRES,4)}, v{vROW}, {sr(S_X,4)}, s{sA} offen')
    a(f'buffer_load_dwordx4 {vr(vXRES+4,4)}, v{vROW}, {sr(S_X,4)}, s{sA} offen offset:32')
    late_consts()
    a(f'v_lshrrev_b32 v{vt0}, 3, v{vRHO}')
    a(f'v_lshlrev_b32 v{vt0}, 10, v{vt0}')
    a(f'v_and_b32 v{vt1}, 7, v{vRHO}')
    a(f'v_lshl_add_u32 v{vt0}, v{vt1}, 7, v{vt0}')
    a(f'v_add_u32 v{vt0}, s{sH}, v{vt0}')
    a(f'v_bfe_u32 v{vt1}, v{vRHO}, 1, 3')
    a(f'v_xor_b32 v{vt1}, v{vt1}, v{vHI}')
    for q in range(4):
        a(f'v_xor_b32 v{220+q}, {2*q}, v{vt1}')
        a(f'v_lshl_add_u32 v{220+q}, v{220+q}, 4, v{vt0}')
    a(f'v_min_u32 v{vt0}, 20, v{vLANE}')
    a(f'v_mul_u32_u24 v{vt1}, 37, v{vt0}')
    a(f'v_lshrrev_b32 v{vt1}, 8, v{vt1}')
    a(f'v_mad_u32_u24 v{vt0}, v{vt1}, 49, v{vt0}')
    a(f's_lshr_b32 s{sA}, s{sHC}, 1')
    a(f's_mul_i32 s{sA}, s{sA}, 7')
    a(f'v_add_lshl_u32 v{vt2}, v{vt0}, s{sA}, 4')
    a.wait_vm_n(2)
    stamp('xland') if 'initprof' in OPT else None
    for ks in range(28):
        a(f'ds_read_b128 {vr(16+4*ks,4)}, v{220+(ks&3)} offset:{(ks>>2)*4096}')
    a(f'v_mov_b32 v240, v{vt2}')
    own_consts()
    p1_setup(True)
    dma_setup(205, sW1SRC, 0, 0)
    a.wait_lg0()
    a.barrier()
    poll(S_WS, 240, f's{sREP}', nonzero=True)
    stamp('w1rdy')


def x0_stats(items):
    S0, S1, Q0, Q1 = 216, 217, 218, 219
    for _ in range(4):
        emit(items.pop(0))
    for v in (S0, S1, Q0, Q1):
        a(f'v_mov_b32 v{v}, 0')
    for i in range(0, 112, 2):
        if items and i % 6 == 0:
            emit(items.pop(0))
        a(f'v_dot2c_f32_bf16 v{S0}, s{sONES}, v{16+i}')
        a(f'v_dot2c_f32_bf16 v{Q0}, v{16+i}, v{16+i}')
        a(f'v_dot2c_f32_bf16 v{S1}, s{sONES}, v{17+i}')
        a(f'v_dot2c_f32_bf16 v{Q1}, v{17+i}, v{17+i}')
    a(f'v_add_f32 v{S0}, v{S0}, v{S1}')
    a(f'v_add_f32 v{S1}, v{Q0}, v{Q1}')
    emit(stats_finish(P1_XAUG))


vRSTD, vC2, vISTD = 248, 249, 250
P1_XAUG = 200


def stats_finish(xaug, SB=216):
    S, Q, t0, t1 = SB, SB + 1, SB + 2, SB + 3
    o = [f'v_mov_b32 v{t0}, v{S}',
         f'v_mov_b32 v{t1}, v{Q}',
         f'v_permlane32_swap_b32 v{S}, v{t0}',
         f'v_permlane32_swap_b32 v{Q}, v{t1}',
         f'v_add_f32 v{S}, v{S}, v{t0}',
         f'v_add_f32 v{Q}, v{Q}, v{t1}',
         f'v_mul_f32 v{S}, {INV448:#x}, v{S}',
         f'v_mul_f32 v{Q}, {INV448:#x}, v{Q}',
         f'v_fma_f32 v{Q}, -v{S}, v{S}, v{Q}',
         f'v_max_f32 v{Q}, 0, v{Q}',
         f'v_add_f32 v{Q}, {EPS5:#x}, v{Q}',
         f'v_rsq_f32 v{vRSTD}, v{Q}',
         f'v_cvt_pk_bf16_f32 v{xaug}, -v{S}, -v{S}',
         f'v_mul_f32 v{vISTD}, v{Q}, v{vRSTD}',
         f'v_mul_f32 v{vC2}, {LOG2E:#x}, v{vRSTD}']
    o += [f'v_mov_b32 v{xaug+i}, v{xaug}' for i in range(1, 4)]
    return o


def stats_sum(SB=216):
    o = []
    for i in range(1, 7):
        o.append(f'v_add_f32 v{SB}, v{SB}, v{SB+2*i}')
        o.append(f'v_add_f32 v{SB+1}, v{SB+1}, v{SB+2*i+1}')
    return o


def x_prep(fl, xb, stb):
    a(f'v_and_b32 v240, 15, v{vLANE}')
    a(f'v_min_u32 v240, 13, v240')
    a(f'v_lshlrev_b32 v240, 5, v240')
    a(f's_lshl_b32 s{sC}, s{sTILE1}, 9')
    a(f's_add_u32 s{sC}, s{sC}, {fl}')
    a(f's_lshl_b32 s{sD}, s{sTILE1}, 12')
    a(f's_add_u32 s{sD}, s{sD}, {stb}')
    a(f's_mul_i32 s{sE}, s{sTILE1}, {28*K}')
    a(f's_add_u32 s{sE}, s{sE}, {xb}')


def x_load(ks):
    if ks % 4 == 0 and ks:
        a(f's_add_u32 s{sE}, s{sE}, 4096')
    return a(f'buffer_load_dwordx4 {vr(16+4*ks,4)}, v{vL16}, {sr(S_DT,4)}, s{sE} offen offset:{(ks%4)*K} sc1')


def st_load(i, SB=216):
    return a(f'buffer_load_dwordx4 {vr(SB+4*i,4)}, v{vL16}, {sr(S_DT,4)}, s{sD} offen offset:{i*K} sc1')


def st_loads(SB=216):
    t = None
    for i in range(7):
        t = a(f'buffer_load_dwordx2 {vr(SB+2*i,2)}, v241, {sr(S_DT,4)}, s{sD} offen offset:{i*256} sc1')
    return t


def read_aug(dst, addr, tmp):
    a(f'v_add_u32 v{tmp}, {addr:#x}, v{vAUG}')
    a(f'ds_read2_b32 {vr(dst,2)}, v{tmp} offset0:0 offset1:32')
    return a(f'ds_read2_b32 {vr(dst+2,2)}, v{tmp} offset0:64 offset1:96')


def read_frag(dst, addr):
    v, off = lds_addr(addr)
    return a(f'ds_read_b128 {vr(dst,4)}, v{v} offset:{off}')


def wfrag_items(regfn, ssrc, lo, hi, va, vb, stmp):
    items = []
    for i, n in enumerate(range(lo, hi)):
        for b in range(2):
            it = []
            if i % 2 == 0 and b == 0:
                it.append(f's_add_u32 s{stmp}, s{ssrc}, {n*2048}')
            it.append(f'buffer_load_dwordx4 {regfn(n,b)}, v{(va,vb)[b]}, {sr(S_WS,4)}, s{stmp} offen offset:{(i%2)*2048} {WSC}')
            items.append(it)
    return items


def slot_addr_setup(va, vb):
    a(f's_and_b32 s{sA}, s{sW1K}, 0x400')
    a(f'v_add_u32 v{va}, s{sA}, v{vL16}')
    a(f'v_xor_b32 v{vb}, 0x400, v{va}')


def cost(x):
    op = x.split()[0]
    return 2 if op.startswith(('v_exp', 'v_rcp', 'v_rsq')) else 1


def drip(q, budget):
    while q and budget >= cost(q[0]):
        x = q.pop(0)
        budget -= cost(x)
        a(x)


CAP = int(OPT.get('cap', 7))
G3 = int(OPT.get('g3', 1))
F1AT = int(OPT.get('f1at', 22))
PQSPLIT = int(OPT.get('pqsplit', 1))
WDP3 = int(OPT.get('wdp3', 36))
WDP1 = int(OPT.get('wdp1', 8))
PUBD2 = int(OPT.get('pubd2', 22))
PRET = int(OPT.get('pret', 1))
PUBD = int(OPT.get('pubd', 20))
S0T = int(OPT.get('s0t', 2))


def shadow(mem, vq, cap=None, pop=None):
    n0 = len(a.ins)
    for f in mem:
        if f is None:
            continue
        if callable(f):
            f()
        else:
            emit(f)
    budget = (CAP if cap is None else cap) - (len(a.ins) - n0)
    while vq and budget >= cost(vq[0]):
        budget -= cost(vq[0])
        if pop:
            pop()
        else:
            a(vq.pop(0))


def split_item(it):
    if it is None:
        return None, None
    return it[:-1], it[-1:]


ACK, ACV, ACQ = 128, 144, 160
P1WR = 176
P1RR2 = 216
p1D1, p1SA, p1SB = 204, 206, 207
p1RSW, p1RSR, p1OH = 208, 209, 210
LMODE = LRS + 1008


CARRY = []


def FAST():
    return MODE['sfx'] != '_s'


def p1_setup(first):
    if not first:
        x_prep(F0 + LYB, *((X1, ST1) if FAST() else (X0 + LYB, ST0 + LYB)))
    slot_addr_setup(p1SA, p1SB)
    a(f'v_and_b32 v{p1OH}, 27, v{vLANE}')
    a(f'v_cmp_eq_u32 vcc, 26, v{p1OH}')
    a(f'v_cndmask_b32 v{p1OH}, 0, 1.0, vcc')
    a(f'v_mov_b32 v{p1OH+1}, v{p1OH}')
    a(f's_add_u32 s{sA}, s{sW4K}, {LKVS}')
    a(f'v_and_b32 v{p1RSW}, 31, v{vLANE}')
    a(f'v_lshl_add_u32 v{p1RSW}, v{p1RSW}, 2, s{sA}')
    a(f'v_lshrrev_b32 v{p1RSR}, 5, v{vLANE}')
    a(f'v_lshl_add_u32 v{p1RSR}, v{p1RSR}, 4, s{sA}')
    dma_setup(p1D1, sW3SRC, 0, LALPHA)


def phase1_kv(first):
    WR, XAUG, RR, RR2, KVD = P1WR, P1_XAUG, ACQ, P1RR2, 232
    vRSW, vRSR, vOH = p1RSW, p1RSR, p1OH
    PRE = XPRE
    xt, vq, st = {}, [], {}
    if first:
        its = dma_items(205, 0, 88, 2)
        x0_stats(its)
        assert not its
        w1m = mark()
        stamp('stats')
    else:
        poll(S_LY, 240, f's{sC}')
        stamp('p1poll')
        for ks in range(4):
            xt[ks] = x_load(ks)
        a(f's_add_u32 s{S_LY}, s{S_LY}, {LYB}')
        a(f's_addc_u32 s{S_LY+1}, s{S_LY+1}, 0')
        a.barrier()
    bg = ([] if first else code_touch(205, 212)) + dma_items(p1D1, LALPHA, 56, 2)
    rt = {}
    stage = (0, 8, 16) if first else ()

    def ib_check():
        a.wait(st['ib'])
        check_or_poll(254, S_WS, vL16, f's{sH}', nonzero=True)
        a(f's_and_b32 s{sA}, s2, 7')
        a(f'v_and_b32 v252, 7, v{vLANE}')
        a(f'v_cmp_eq_u32 {sr(sC,2)}, s{sA}, v252')
        a(f'v_cmp_ne_u32 vcc, s{sXID}, v254')
        a(f's_and_b64 vcc, vcc, {sr(sC,2)}')
        a(f's_cselect_b32 s{sZW}, 1, 0')

    def rd(ks, tl):
        if ks > 28:
            return
        if ks in stage and tl == 0:
            need_ops = 22 if ks == 16 else 2 * ((3 * (ks + 8) + 7) // 8)
            a.wait(('vm', w1m[1] - 22 + need_ops))
            if ks == 16:
                ib_check()
            a.barrier()
        d = WR + 8 * (ks % 3) + 4 * tl
        addr = (3 * ks + tl) * K
        rt[ks] = read_frag(d, addr) if ks < 28 else read_aug(d, addr, 252 + tl)
    for ks in range(2):
        rd(ks, 0); rd(ks, 1)
    if not first:
        for ks in range(4, PRE):
            xt[ks] = x_load(ks)
    rr = {}

    def stl(i):
        st['s'] = st_load(i)

    def xl(ks):
        xt[ks] = x_load(ks)

    def ibl():
        a(f's_add_u32 s{sH}, s{sREP}, s{sW1K}')
        st['ib'] = a(f'buffer_load_dword v254, v{vL16}, {sr(S_WS,4)}, s{sH} offen sc1')

    def rs_write():
        a(f'ds_write2_b32 v{vRSW}, v{vRSTD}, v{vC2} offset0:0 offset1:32')

    def rs_read(j):
        a(f'ds_read_b128 {vr(RR+4*j,4)}, v{vRSR} offset:{32*j}')
        rr[0] = a(f'ds_read_b128 {vr(RR2+4*j,4)}, v{vRSR} offset:{128+32*j}')
    for ks in range(29):
        if not first and ks == 15:
            a.wait(st['s'])
            vq += stats_sum() + stats_finish(XAUG)
        a.wait(rt[ks], xt.get(ks))
        X = vr(16 + 4 * ks, 4) if ks < 28 else vr(XAUG, 4)
        c = (lambda r: '0' if ks == 0 else vr(r, 16))
        if not first and ks + PRE < 28:
            pre, main = None, (lambda k_=ks + PRE: xl(k_))
        elif first and ks == 5:
            pre, main = None, ibl
        else:
            pre, main = split_item(bg.pop(0) if bg and (ks >= 15 or not first) else None)
        a(f'{MF} {vr(ACK,16)}, {X}, {vr(WR+8*(ks%3),4)}, {c(ACK)}')
        shadow([pre, lambda: rd(ks + 2, 0), main], vq)
        a(f'{MF} {vr(ACV,16)}, {X}, {vr(WR+8*(ks%3)+4,4)}, {c(ACV)}')
        extra = None
        if not first and ks < 8 and ks % 2 == 0:
            extra = (lambda i=ks // 2: stl(i))
        if ks == 23:
            assert not vq
            extra = rs_write
        if 24 <= ks <= 27:
            extra = (lambda j=ks - 24: rs_read(j))
        shadow([lambda: rd(ks + 2, 1), extra], vq)
    stamp('p1kv')
    qt = {}

    def rq(ks):
        if ks > 28:
            return
        d = WR + 4 * (ks % 6)
        addr = (3 * ks + 2) * K
        qt[ks] = read_frag(d, addr) if ks < 28 else read_aug(d, addr, 252)
    for ks in range(4):
        rq(ks)
    KS = LRS
    a(f's_lshl_b32 s{sB}, s{sHC}, 12')
    a(f's_add_u32 s{sB}, s{sB}, s{sW1K}')
    a.wait(rr[0])
    for r in range(0, 16, 2):
        a(f'v_pk_mul_f32 {vr(ACK+r,2)}, {vr(ACK+r,2)}, {vr(RR2+r,2)}')
    def bgp():
        if bg and EPD:
            emit(bg.pop(0))
    for r in range(16):
        a(f'v_exp_f32_e64 v{RR2+r}, v{ACK+r} clamp')
        a(f'v_max_f32 v{ACK+r}, 0, v{ACK+r}')
        if r % 5 == 0:
            bgp()
    for r in range(0, 16, 2):
        a(f'v_pk_fma_f32 {vr(ACV+r,2)}, {vr(ACV+r,2)}, {vr(RR+r,2)}, {vr(vOH,2)}')
        a(f'v_pk_fma_f32 {vr(RR2+r,2)}, {vr(ACK+r,2)}, {sr(sLN2,2)}, {vr(RR2+r,2)}')
    bgp()
    for r in range(0, 16, 2):
        a(f'v_pk_add_f32 {vr(RR2+r,2)}, {vr(RR2+r,2)}, {sr(sEPS6,2)}')
        a(f'v_cvt_pk_bf16_f32 v{ACV+r//2}, v{ACV+r}, v{ACV+r+1}')
    bgp()
    for m in range(4):
        a(f'v_cvt_pk_bf16_f32 v{ACK+m}, v{RR2+2*m}, v{RR2+2*m+1}')
    a(f'{MF} {vr(KVD,16)}, {vr(ACK,4)}, {vr(ACV,4)}, 0')
    for m in range(4, 8):
        a(f'v_cvt_pk_bf16_f32 v{ACK+m}, v{RR2+2*m}, v{RR2+2*m+1}')
    a(f's_add_u32 s{sA}, s{sW4K}, {LKVS}')
    a(f'v_add_u32 v{vRSW}, s{sA}, v{vL16}')
    a(f'{MF} {vr(KVD,16)}, {vr(ACK+4,4)}, {vr(ACV+4,4)}, {vr(KVD,16)}')
    a(f's_add_u32 s{sA}, s{sW1K}, {LKVS}')
    a(f'v_add_u32 v{vRSR}, s{sA}, v{vL4}')
    if first:
        a(f's_lshl_b32 s{sA}, s{sW}, 2')
        a(f's_add_u32 s{sA}, s{sA}, {LRS}')
        a(f'v_mov_b32 v252, s{sA}')
        a(f'v_mov_b32 v253, s{sZW}')
        a('ds_write_b32 v252, v253')
        a(f'v_mov_b32 v252, {LRS}')

    def qstep(ks, mem=(), vq_=None):
        a.wait(qt[ks])
        X = vr(16 + 4 * ks, 4) if ks < 28 else vr(XAUG, 4)
        a(f'{MF} {vr(ACQ,16)}, {vr(WR+4*(ks%6),4)}, {X}, {"0" if ks == 0 else vr(ACQ,16)}')
        shadow([lambda: rq(ks + 4)] + list(mem), vq_ if vq_ is not None else [])
    qstep(0, [bgp])
    for q in range(4):
        kw = a(f'ds_write_b128 v{vRSW}, {vr(KVD+4*q,4)} offset:{q*K}')
    qstep(1, [bgp])
    a.wait(kw)
    a.barrier()
    RED = RR2
    for wp in range(4):
        a(f'ds_read2st64_b32 {vr(RED+4*wp,2)}, v{vRSR} offset0:{16*wp} offset1:{16*wp+1}')
        t = a(f'ds_read2st64_b32 {vr(RED+4*wp+2,2)}, v{vRSR} offset0:{16*wp+2} offset1:{16*wp+3}')
    if first:
        mt = a(f'ds_read_b128 {vr(KVD,4)}, v252')
    qstep(2)
    a.wait(t)
    for i in range(4):
        a(f'v_add_f32 v{RED+i}, v{RED+i}, v{RED+4+i}')
        a(f'v_add_f32 v{RED+8+i}, v{RED+8+i}, v{RED+12+i}')
    for i in range(4):
        a(f'v_add_f32 v{RED+i}, v{RED+i}, v{RED+8+i}')
    for i in range(4):
        at = a(f'buffer_atomic_add_f32 v{RED+i}, v{vL4}, {sr(S_LY,4)}, s{sB} offen offset:{i*256}')
    stamp('p1atom')
    if first:
        a.wait(mt)
        a(f'v_or_b32 v{KVD}, v{KVD}, v{KVD+1}')
        a(f'v_or3_b32 v{KVD}, v{KVD}, v{KVD+2}, v{KVD+3}')
        a(f'v_readfirstlane_b32 s{sA}, v{KVD}')
        a(f's_cmp_lg_u32 s{sA}, 0')
        a('s_cbranch_scc1 L_slow')
    return dict(qstep=qstep, at=at, qt=qt, bg=bg, state=(a.vm_issued, a.vm_done, a.lg_issued, a.lg_done), qt0=dict(qt))


def phase1_q(ctx, first):
    qstep, at = ctx['qstep'], ctx['at']
    vRSW, vRSR, RR2 = p1RSW, p1RSR, P1RR2
    wo = wfrag_items(lambda n, b: vr(16 + 8 * n + 4 * b, 4), sWOSRC, 0, 8, p1SA, p1SB, sF)
    wo = list(ctx['bg']) + wo
    if first and FAST():
        wo = [[f's_cmp_ge_u32 s{sJ}, 28', f's_cselect_b32 s{sI}, {OOB:#x}, s{sOX}', f's_add_u32 s{sI}, s{sI}, {X1}',
               f'buffer_store_dwordx4 {vr(vXRES,4)}, v{vL16}, {sr(S_DT,4)}, s{sI} offen sc1'],
              [f'buffer_store_dwordx4 {vr(vXRES+4,4)}, v{vL16}, {sr(S_DT,4)}, s{sI} offen offset:1024 sc1']] + wo
    pqoff = PQ if (FAST() or first) else PQ + LYB
    vq = [f's_lshl_b32 s{sG}, s{sHC}, 8',
          f's_lshl_b32 s{sB}, s{sRBG}, 4',
          f's_add_u32 s{sG}, s{sG}, s{sB}',
          f's_add_u32 s{sG}, s{sG}, {F1}',
          f's_cmp_lg_u32 s{sW}, 3\ns_cselect_b32 s{sG}, {OOB:#x}, s{sG}',
          f's_lshl_b32 s{sA}, s{sTILE1}, 15',
          f's_lshl_b32 s{sB}, s{sHC}, 11',
          f's_add_u32 s{sA}, s{sA}, s{sB}',
          f's_add_u32 s{sA}, s{sA}, {pqoff}',
          f's_lshl_b32 s{sU}, s{sTILE1}, 9',
          f's_lshl_b32 s{sB}, s{sHC}, 5',
          f's_add_u32 s{sU}, s{sU}, s{sB}',
          f's_add_u32 s{sU}, s{sU}, {F1Q}',
          f'v_lshlrev_b32 v{vRSW}, 12, v{vLANE}',
          f'v_mov_b32 v{vRSR}, 1',
          f'v_mov_b32 v{vC2+2}, v{vC2}',
          f'v_mov_b32 v{ACK+7}, 0']
    for ks in range(3, 29):
        qstep(ks, [wo.pop(0)] if ks % 2 == 1 else [], vq)
        if ks == F1AT:
            a.wait(at)
            a.barrier()
            a('s_mov_b64 exec, 15')
            a(f'buffer_store_dword v{vRSR}, v{vRSW}, {sr(S_LY,4)}, s{sG} offen sc1')
            a('s_mov_b64 exec, -1')
            stamp('p1pub')
    a('s_nop 4')
    stamp('p1q')
    T = RR2
    for r in range(0, 14, 2):
        a(f'v_pk_mul_f32 {vr(ACQ+r,2)}, {vr(ACQ+r,2)}, {vr(vC2+1,2)} op_sel:[0,1] op_sel_hi:[1,1]')
    for r in range(14):
        a(f'v_exp_f32_e64 v{T+r}, v{ACQ+r} clamp')
        a(f'v_max_f32 v{ACQ+r}, 0, v{ACQ+r}')
    for r in range(0, 14, 2):
        a(f'v_pk_fma_f32 {vr(T+r,2)}, {vr(ACQ+r,2)}, {sr(sLN2,2)}, {vr(T+r,2)}')
    for r in range(0, 14, 2):
        a(f'v_pk_add_f32 {vr(T+r,2)}, {vr(T+r,2)}, {sr(sEPS6,2)}')
    for m in range(7):
        a(f'v_cvt_pk_bf16_f32 v{ACK+m}, v{T+2*m}, v{T+2*m+1}')
    sc = 'sc1' if first else LS()
    a(f'buffer_store_dwordx4 {vr(ACK,4)}, v{vL16}, {sr(S_DT,4)}, s{sA} offen {sc}')
    pst = a(f'buffer_store_dwordx4 {vr(ACK+4,4)}, v{vL16}, {sr(S_DT,4)}, s{sA} offen offset:1024 {sc}')
    if not FAST() and not first:
        a(f's_mov_b32 s{S_DT}, s{S_LY}')
        a(f's_mov_b32 s{S_DT+1}, s{S_LY+1}')
    if first:
        wo += wfrag_items(lambda n_, b: ar(8 * n_ + 4 * b, 4), sWDSRC, 0, WDP1 // 2, p1SA, p1SB, sI)
    for it in wo[:4]:
        emit(it)
    a.barrier()
    a.wait(pst)
    emit(flag_store(S_LY, f's{sU}'))
    if FAST() and CARRYON:
        CARRY[:] = wo[4:]
        print('carry', len(CARRY))
    else:
        for it in wo[4:]:
            emit(it)
    p2_setup()
    stamp('p1end')


ACC0, ACC1 = 208, 224
AAC2, AAC3 = 224, 240


def accs(s):
    return [vr(ACC0, 16), vr(ACC1, 16), ar(AAC2, 16), ar(AAC3, 16)][s]


def red_setup(base, RA):
    o = []
    for s in (1, 2, 3):
        o += [f's_xor_b32 s{sA}, s{sW}, {s}',
              f's_mul_i32 s{sA}, s{sA}, 12288',
              f's_add_u32 s{sA}, s{sA}, {base + (s-1)*4096}',
              f'v_add_u32 v{RA+s}, s{sA}, v{vL16}']
    o += [f's_mul_i32 s{sA}, s{sW}, 12288',
          f's_add_u32 s{sA}, s{sA}, {base}',
          f'v_add_u32 v{RA}, s{sA}, v{vL16}']
    return o


def red_write(s, RA):
    o = []
    for q in range(4):
        d = [None, vr(ACC1 + 4 * q, 4), ar(AAC2 + 4 * q, 4), ar(AAC3 + 4 * q, 4)][s]
        o.append(f'ds_write_b128 v{RA+s}, {d} offset:{q*K}')
    return o


sOX, sOS, sOF = 97, 98, 99


def own_consts():
    a(f's_mul_i32 s{sOX}, s{sOWN}, {28*K}')
    a(f's_lshl_b32 s{sB}, s{sOFT}, 11')
    a(f's_add_u32 s{sOX}, s{sOX}, s{sB}')
    a(f's_lshl_b32 s{sOS}, s{sOWN}, 12')
    a(f's_cmp_ge_u32 s{sOFT}, 7')
    a(f's_cselect_b32 s{sA}, 7, 0')
    a(f's_cselect_b32 s{sB}, 512, 0')
    a(f's_add_u32 s{sOS}, s{sOS}, s{sB}')
    a(f's_sub_u32 s{sA}, s{sOFT}, s{sA}')
    a(f's_lshr_b32 s{sB}, s{sA}, 1')
    a(f's_lshl_b32 s{sB}, s{sB}, 10')
    a(f's_add_u32 s{sOS}, s{sOS}, s{sB}')
    a(f's_and_b32 s{sA}, s{sA}, 1')
    a(f's_lshl_b32 s{sA}, s{sA}, 3')
    a(f's_add_u32 s{sOS}, s{sOS}, s{sA}')
    a(f's_lshl_b32 s{sOF}, s{sOWN}, 9')
    a(f's_lshl_b32 s{sB}, s{sOFT}, 5')
    a(f's_add_u32 s{sOF}, s{sOF}, s{sB}')


def res_unpack(RU):
    o = []
    for m in range(8):
        o.append(f'v_lshlrev_b32 v{RU+2*m}, 16, v{vXRES+m}')
        o.append(f'v_and_b32 v{RU+2*m+1}, 0xffff0000, v{vXRES+m}')
    return o


def red_finish(final, RB, RU, RA, nm, xb, stb, flb, sc, mid, pre=()):
    for it in pre:
        emit(it)
    a.wait_lg0()
    a.barrier()
    toks = []
    for i in range(12):
        toks.append(a(f'ds_read_b128 {vr(RB+4*i,4)}, v{RA} offset:{i*K}'))
    if final is not True:
        a(f's_add_u32 s{sA}, s{sOX}, {xb}')
        a(f's_add_u32 s{sB}, s{sOS}, {stb}')
        a(f's_add_u32 s{sZW}, s{sOF}, {flb}')
    for r in range(0, 16, 2):
        a(f'v_pk_add_f32 {vr(ACC0+r,2)}, {vr(ACC0+r,2)}, {vr(RU+r,2)}')
    S, Q, t0, t1, tl = RU, RU + 1, RU + 2, RU + 3, RU + 4
    if final is not True:
        a(f'v_mov_b32 v{S}, 0')
        a(f'v_mov_b32 v{Q}, 0')
    for s in range(3):
        a.wait(toks[4 * s + 3])
        for r in range(0, 16, 2):
            a(f'v_pk_add_f32 {vr(ACC0+r,2)}, {vr(ACC0+r,2)}, {vr(RB+16*s+r,2)}')
    for m in range(8):
        a(f'v_cvt_pk_bf16_f32 v{vXRES+m}, v{ACC0+2*m}, v{ACC0+2*m+1}')
    if final is True:
        final_store()
        return
    if final == 'dyn':
        a(f's_cmp_lg_u32 s{sL}, 0')
        a('s_cbranch_scc1 ' + LB_('L_final'))
    a(f'buffer_store_dwordx4 {vr(vXRES,4)}, v{vL16}, {sr(S_DT,4)}, s{sA} offen {sc}')
    a(f'buffer_store_dwordx4 {vr(vXRES+4,4)}, v{vL16}, {sr(S_DT,4)}, s{sA} offen offset:1024 {sc}')
    for m in range(8):
        a(f'v_dot2c_f32_bf16 v{S}, s{sONES}, v{vXRES+m}')
        a(f'v_dot2c_f32_bf16 v{Q}, v{vXRES+m}, v{vXRES+m}')
    a(f'v_mov_b32 v{t0}, v{S}')
    a(f'v_mov_b32 v{t1}, v{Q}')
    a(f'v_permlane32_swap_b32 v{S}, v{t0}')
    a(f'v_permlane32_swap_b32 v{Q}, v{t1}')
    a(f'v_pk_add_f32 {vr(S,2)}, {vr(S,2)}, {vr(t0,2)}')
    a('s_mov_b32 exec_hi, 0')
    lt = a(f'buffer_store_dwordx2 {vr(S,2)}, v{vL16}, {sr(S_DT,4)}, s{sB} offen {sc}')
    a('s_mov_b64 exec, -1')
    stamp(nm + 'st')
    mid()
    a.wait(lt)
    emit(flag_store(S_LY, f's{sZW}'))


def final_store():
    a(f'v_and_b32 v18, 31, v{vLANE}')
    a(f'v_lshrrev_b32 v19, 5, v{vLANE}')
    a(f'v_mul_u32_u24 v{vROW}, 896, v18')
    a(f'v_lshl_add_u32 v{vROW}, v19, 4, v{vROW}')
    a(f's_mul_i32 s{sA}, s{sOWN}, 28672')
    a(f's_lshl_b32 s{sB}, s{sOFT}, 6')
    a(f's_add_u32 s{sA}, s{sA}, s{sB}')
    a(f'buffer_store_dwordx4 {vr(vXRES,4)}, v{vROW}, {sr(S_OUT,4)}, s{sA} offen {OSC}')
    a(f'buffer_store_dwordx4 {vr(vXRES+4,4)}, v{vROW}, {sr(S_OUT,4)}, s{sA} offen offset:32 {OSC}')


def idle_touch(base, per_wave_bytes, n, t=16):
    if not IDLE:
        return
    a(f's_sub_u32 s{sA}, s{sJ}, 28')
    a(f's_lshl_b32 s{sA}, s{sA}, 2')
    a(f's_add_u32 s{sA}, s{sA}, s{sW}')
    a(f's_mul_i32 s{sA}, s{sA}, {per_wave_bytes}')
    a(f's_add_u32 s{sA}, s{sA}, {base}')
    a(f'v_lshlrev_b32 v{t}, 7, v{vLANE}')
    for i in range(n):
        a(f'buffer_load_dword v{t+1}, v{t}, {sr(S_WS,4)}, s{sA} offen sc1')
        a(f's_add_u32 s{sA}, s{sA}, 8192')


def p2_setup():
    dma_setup(vROW, sW3SRC, 56 * K, LBETA)
    a(f'v_and_b32 v240, 3, v{vLANE}')
    a(f'v_lshlrev_b32 v240, 5, v240')
    a(f'v_bfe_u32 v241, v{vLANE}, 2, 1')
    a(f'v_lshl_add_u32 v240, v241, 9, v240')
    a(f's_lshl_b32 s{sC}, s{sTILE2}, 9')
    a(f's_lshl_b32 s{sA}, s{sW}, 7')
    a(f's_add_u32 s{sC}, s{sC}, s{sA}')
    a(f's_add_u32 s{sC}, s{sC}, {F1Q}')
    a(f's_lshl_b32 s{sE}, s{sOWN}, 15')
    a(f's_lshl_b32 s{sA}, s{sW}, 13')
    a(f's_add_u32 s{sE}, s{sE}, s{sA}')
    a(f's_add_u32 s{sE}, s{sE}, {PQ}')
    a(f's_xor_b32 s{sF}, s{sE}, 0x8000')
    a(f's_add_u32 s{sH}, s{sREP}, s{sW1K}')
    a(f's_add_u32 s{sH}, s{sH}, {F1}')
    a(f's_lshl_b32 s{sD}, s{sW}, 14')


def phase2(L):
    WO, PQR, KVR = 16, 80, 144
    ODS = (240, 160)
    KB = (144, 152, 176, 192)
    tag = f'{L}'
    beta = dma_items(vROW, LBETA, 56, 2)
    a(f's_cmp_ge_u32 s{sJ}, 28')
    with cold('s_cbranch_scc1', back=LB_('L_p2skip' + tag)):
        for it in beta:
            emit(it)
        if L == 0:
            idle_touch(WDR, 7 * WDS // 16, IDN)
        elif L == 1:
            idle_touch(W3R + 112 * K, W3S, IDN)
        p3_setup(L)
        a.wait_vm0()
    with cond():
        poll(S_LY, 240, f's{sC}')
        stamp('p2pq')
        pt = {}
        for aa, s in ((1, sF), (0, sE)):
            for hl in range(4):
                for ks in range(2):
                    pt[hl, aa] = a(f'buffer_load_dwordx4 {vr(PQR+16*hl+8*aa+4*ks,4)}, v{vL16}, {sr(S_DT,4)}, s{s} offen offset:{(hl%2)*2048+ks*K} sc1')
                if hl == 1:
                    a(f's_add_u32 s{s}, s{s}, 4096')
                if aa == 1 and hl == 1:
                    fchk = a(f'buffer_load_dword v253, v{vL16}, {sr(S_LY,4)}, s{sH} offen sc1')
                if aa == 0 and hl == PQSPLIT:
                    break
        a.wait(fchk)
        check_or_poll(253, S_LY, vL16, f's{sH}', sleep=0)
        stamp('p2poll')
        kt = {}
        lq = []

        def kvl(hl, q):
            kt[hl] = a(f'buffer_load_dwordx4 {vr(KVR+16*hl+4*q,4)}, v{vL16}, {sr(S_LY,4)}, s{sD} offen offset:{q*K} sc1')
            if q == 3:
                a(f's_add_u32 s{sD}, s{sD}, 4096')

        def pql(hl, ks):
            pt[hl, 0] = a(f'buffer_load_dwordx4 {vr(PQR+16*hl+4*ks,4)}, v{vL16}, {sr(S_DT,4)}, s{sE} offen offset:{(hl%2)*2048+ks*K} sc1')
            if hl == 1 and ks == 1:
                a(f's_add_u32 s{sE}, s{sE}, 4096')
        for hl in range(4):
            for q in range(4):
                kvl(hl, q)
        for hl in range(PQSPLIT + 1, 4):
            for ks in range(2):
                lq.append(lambda h_=hl, k_=ks: pql(h_, k_))
        wot = {}
        cw = []
        if CARRY:
            a(f's_and_b32 s{sA}, s{sW1K}, 0x400')
            a(f's_add_u32 s80, s{sWOSRC}, s{sA}')
            a(f's_xor_b32 s{sA}, s{sA}, 0x400')
            a(f's_add_u32 s81, s{sWOSRC}, s{sA}')
        ncw = 0
        for it in CARRY:
            m_ = re.match(r'buffer_load_dwordx4 ([va])\[(\d+):', it[-1])
            assert m_
            if m_.group(1) == 'v':
                k_ = (int(m_.group(2)) - 16) // 4

                def f(k_=k_):
                    a(f's_add_u32 s78, s{80 + k_ % 2}, {(k_ // 2) * 2048}')
                    wot[k_ // 4] = a(f'buffer_load_dwordx4 {vr(16+4*k_,4)}, v{vL16}, {sr(S_WS,4)}, s78 offen sc1')
                cw.append(f)
            else:
                ncw += 1
        CARRY[:] = []
        for f in cw[:CWN]:
            f()
        beta = cw[CWN:] + lq + beta
        wd2 = []
        if L == 0:
            a(f's_and_b32 s{sA}, s{sW1K}, 0x400')
            a(f's_add_u32 s76, s{sWDSRC}, s{sA}')
            a(f's_xor_b32 s{sA}, s{sA}, 0x400')
            a(f's_add_u32 s77, s{sWDSRC}, s{sA}')
            for k_ in range(WDP1 - ncw, WDP1 + WDP2):
                n_, b = k_ // 2, k_ % 2
                wd2.append([f's_add_u32 s78, s{76+b}, {n_*2048}',
                            f'buffer_load_dwordx4 {ar(8*n_+4*b,4)}, v{vL16}, {sr(S_WS,4)}, s78 offen sc1'])

        def cvt(hl):
            return [f'v_cvt_pk_bf16_f32 v{KB[hl]+m}, v{KVR+16*hl+2*m}, v{KVR+16*hl+2*m+1}' for m in range(8)]
        units = [(hl, aa) for aa in (1, 0) for hl in range(4)]

        def oM(u):
            hl, aa = units[u]
            D = vr(ODS[u % 2], 16)
            P = PQR + 16 * hl + 8 * aa
            return [f'{MF} {D}, {vr(KB[hl],4)}, {vr(P,4)}, 0',
                    f'{MF} {D}, {vr(KB[hl]+4,4)}, {vr(P+4,4)}, {D}']

        def scale(u):
            hl, aa = units[u]
            D = ODS[u % 2]
            P = PQR + 16 * hl + 8 * aa
            o = [f'v_add_f32 v{D+14}, s{sEPS6}, v{D+14}',
                 f'v_rcp_f32 v{D+14}, v{D+14}']
            for m in range(7):
                o.append(f'v_mul_f32 v{D+2*m}, v{D+2*m}, v{D+14}')
                o.append(f'v_mul_f32 v{D+2*m+1}, v{D+2*m+1}, v{D+14}')
                o.append(f'v_cvt_pk_bf16_f32 v{P+m}, v{D+2*m}, v{D+2*m+1}')
            return o

        def woM(u, bs):
            hl, aa = units[u]
            P = PQR + 16 * hl + 8 * aa
            o = []
            for b in bs:
                for ks in range(2):
                    D = accs(2 * aa + b)
                    c = '0' if (hl == 0 and ks == 0) else D
                    o.append(f'{MF} {D}, {vr(WO+16*hl+8*ks+4*b,4)}, {vr(P+4*ks,4)}, {c}')
            return o
        RU, RA = 160, 184
        a.wait(kt[0])
        emit(cvt(0))
        emit(oM(0))
        a.wait(kt[1])
        emit(cvt(1))
        m1 = oM(1)
        vs = scale(0)
        a(m1[0]); shadow([], vs)
        a(m1[1]); emit(vs)
        wr = []
        for u in range(9):
            if u < 4:
                ms = woM(u, (0, 1))
            elif u < 8:
                ms = woM(u, (1,)) + (woM(u - 2, (0,)) if u >= 6 else [])
            else:
                ms = woM(6, (0,)) + woM(7, (0,))
            vs = scale(u + 1) if u + 1 < 8 else []
            if u < 4:
                while any(getattr(x, '__name__', '') == 'f' and x.__defaults__[0] // 4 <= u for x in beta):
                    beta.pop(0)()
                a.wait(wot.get(u))
            if u < 2:
                a.wait(kt[u + 2])
                vs = cvt(u + 2) + vs
            if u == 2:
                vs = vs + red_setup(LB, RA)[:8]
            if u == 3:
                vs = vs + red_setup(LB, RA)[8:]
            if u == 4:
                wr = red_write(2, RA) + red_write(3, RA)
            if u == 7:
                vs = res_unpack(RU)
            if u == 8:
                wr = wr + red_write(1, RA)
            if u + 2 < 8:
                ms = ms[:2] + ['W'] + oM(u + 2) + ms[2:]
            k_ = 0
            for m in ms:
                if m == 'W':
                    a.wait(pt[units[u + 2]])
                    if u < 2:
                        while any(x in vs for x in cvt(u + 2)):
                            a(vs.pop(0))
                    continue
                a(m)
                mem = []
                if beta and k_ % 2 == 0:
                    mem.append(beta.pop(0))
                elif wd2 and k_ % 2 == 0:
                    mem.append(wd2.pop(0))
                if wr and (k_ % 2 == 1 or u == 8) and not (u in (4, 8) and k_ == 0):
                    mem.append(wr[:1]); wr = wr[1:]
                shadow(mem, vs)
                k_ += 1
            emit(vs)
        wd2 = beta + wd2
        stamp('p2mfma')
        emit(wr)
        sc = LS()
        red_finish(False, 80, RU, RA, 'p2', X1, ST1, F2, sc, lambda: p3_setup(L), pre=wd2)
    a.label(LB_('L_p2skip' + tag))
    stamp('p2end')


p3D1, p3D3, p3SA, p3SB = 228, 229, 240, 241
p3D2 = 243
p3FL, p3HA, p3HB, p3FV = 244, 245, 246, 247


def p3_setup(L):
    vFL, vHA, vHB = p3FL, p3HA, p3HB
    x_prep(F2, X1, ST1)
    dma_setup(p3D3, sW3SRC, 112 * K, LB)
    dma_setup(p3D1, sW3SRC, 147 * K, LALPHA)
    if L is None:
        a(f's_cmp_lg_u32 s{sL}, 0')
        a(f's_cselect_b32 s{sA}, {OOB:#x}, s{sW1SRC}')
        a(f'v_add_u32 v{p3D2}, s{sA}, v{vL16}')
    elif L == 0:
        a(f'v_add_u32 v{p3D2}, s{sW1SRC}, v{vL16}')
    a(f's_mul_i32 s{sG}, s{sTILE1}, {112*K}')
    a(f's_mul_i32 s{sA}, s{sHC}, {7*K}')
    a(f's_add_u32 s{sG}, s{sG}, s{sA}')
    a(f's_add_u32 s{sG}, s{sG}, {HB}')
    a(f's_add_u32 s{sH}, s{sG}, 4096')
    a(f's_lshl_b32 s{sU}, s{sTILE1}, 9')
    a(f's_lshl_b32 s{sA}, s{sHC}, 2')
    a(f's_add_u32 s{sU}, s{sU}, s{sA}')
    a(f's_add_u32 s{sU}, s{sU}, {F3}')


def p4_addr():
    vFL, vHA, vHB = p3FL, p3HA, p3HB
    return [f'v_and_b32 v{vFL}, 3, v{vLANE}',
            f'v_lshlrev_b32 v{vFL}, 2, v{vFL}',
            f'v_bfe_u32 v{vHA}, v{vLANE}, 2, 1',
            f'v_lshl_add_u32 v{vFL}, v{vHA}, 9, v{vFL}',
            f's_lshl_b32 s{sA}, s{sTILE2}, 9',
            f's_lshl_b32 s{sB}, s{sW}, 4',
            f's_add_u32 s{sA}, s{sA}, s{sB}',
            f's_add_u32 s85, s{sA}, {F3}',
            f'v_add_u32 v{vFL}, s85, v{vFL}',
            f's_mul_i32 s{sB}, s{sW}, {28*K}',
            f's_add_u32 s{sB}, s{sB}, {HB}',
            f's_mul_i32 s{sA}, s{sOWN}, {112*K}',
            f's_add_u32 s{sA}, s{sA}, s{sB}',
            f'v_add_u32 v{vHA}, s{sA}, v{vL16}',
            f's_xor_b32 s{sA}, s{sOWN}, 1',
            f's_mul_i32 s{sA}, s{sA}, {112*K}',
            f's_add_u32 s{sA}, s{sA}, s{sB}',
            f'v_add_u32 v{vHB}, s{sA}, v{vL16}']


def phase34(L):
    ACC = 128
    WR, NW = 192, 8
    SB = 176
    XAUG = 224
    vD1, vD3, vSA, vSB, vD2 = p3D1, p3D3, p3SA, p3SB, p3D2
    vFL, vHA, vHB, vFV = p3FL, p3HA, p3HB, p3FV
    vFV2 = 242
    PRE = XPRE
    HR, NH = 16, 28
    tag = f'{L}'
    LOOK = 6
    NG = 3 if G3 else 2
    steps = [(t, ks) for ks in range(29) for t in range(NG)]
    for t in range(NG, 7):
        steps += [(t, ks) for ks in range(29)]

    def addr(t, ks):
        if G3 and t < 3:
            p = 3 * ks + t
            return LALPHA + p * K if p < 56 else LBETA + (p - 56) * K
        if ks == 28 and t < 3:
            return LBETA + t * K
        if t < 2:
            return LALPHA + (2 * ks + t) * K
        if t == 2:
            return LBETA + (3 + ks) * K
        if t == 3:
            return LBETA + (31 + ks) * K
        if t == 4:
            return LB + (4 + ks) * K
        if t == 5:
            return LALPHA + ks * K
        return LALPHA + (29 + ks) * K if ks < 27 else LB + (33 + ks - 27) * K
    n = len(steps)
    accof = {0: 0, 1: 1, 2: 2, 3: 3, 4: 0, 5: 1, 6: 2}
    rt, xt, hst, ht, chk = {}, {}, {}, {}, {}

    def hsc(t):
        return LS() if (L == 1 and t >= HPL) else 'sc1'

    def epi(t, D=None, Sx=None):
        Sx = ACC + 16 * accof[t] if Sx is None else Sx
        D = Sx if D is None else D
        o = []
        for r in range(8):
            o.append(f'v_mul_f32 v{D+r}, v{Sx+r}, v{vC2}')
        for r in range(8):
            o.append(f'v_exp_f32_e64 v{D+r}, -v{D+r}')
            if r >= 2:
                o.append(f'v_fma_f32 v{D+r-2}, v{D+r-2}, v{vISTD}, v{vISTD}')
        for r in (6, 7):
            o.append(f'v_fma_f32 v{D+r}, v{D+r}, v{vISTD}, v{vISTD}')
        for r in range(8):
            o.append(f'v_rcp_f32 v{D+r}, v{D+r}')
            if r >= 2:
                o.append(f'v_mul_f32 v{D+r-2}, v{D+r-2}, v{Sx+8+r-2}')
        for r in (6, 7):
            o.append(f'v_mul_f32 v{D+r}, v{D+r}, v{Sx+8+r}')
        for m in range(4):
            o.append(f'v_cvt_pk_bf16_f32 v{D+8+m}, v{D+2*m}, v{D+2*m+1}')
        s = sG if t < 4 else sH
        o.append(f'buffer_store_dwordx4 {vr(D+8,4)}, v{vL16}, {sr(S_DT,4)}, s{s} offen offset:{(t%4)*K} {hsc(t)} ; H{t}')
        return o

    def issue_rd(i):
        if i >= n:
            return
        t, ks = steps[i]
        d = WR + 4 * (i % NW)
        rt[i] = read_frag(d, addr(t, ks)) if ks < 28 else read_aug(d, addr(t, ks), 251 + (i % 3))

    def flag_ld(stg):
        if stg == 0 or not FAST():
            chk[stg] = a(f'buffer_load_dword v{vFV}, v{vFL}, {sr(S_LY,4)}, 0 offen offset:{64*stg} sc1')
        else:
            a(f's_buffer_load_dwordx4 s[76:79], {sr(S_LY,4)}, s85 offset:{64*stg}')
            a(f's_buffer_load_dwordx4 s[80:83], {sr(S_LY,4)}, s85 offset:{64*stg+512}')

    def flag_chk(stg):
        if FAST():
            a('s_waitcnt lgkmcnt(0)')
            a('s_and_b64 s[76:77], s[76:77], s[78:79]')
            a('s_and_b64 s[80:81], s[80:81], s[82:83]')
            a('s_and_b64 s[76:77], s[76:77], s[80:81]')
            a('s_and_b32 s76, s76, s77')
        else:
            a.wait(chk[stg])
            a(f'v_cmp_ne_u32 vcc, 1, v{vFV}')
            a('s_cmp_eq_u64 vcc, 0')
        assert 6 in hst
        with cold('s_cbranch_scc0'):
            a.wait_vm0()
            emit(flag_store(S_LY, f's{sU}', imm=128))
            emit(flag_store(S_LY, f's{sU}', imm=192))
            poll(S_LY, vFL, 0, imm=64 * stg)

    CHK = {24: 1, 40: 2, 48: 3}

    def hld(idx, chkflags=True):
        if idx >= 56:
            return
        if chkflags and idx + 4 in CHK:
            flag_ld(CHK[idx + 4])
        if chkflags and idx in CHK:
            flag_chk(CHK[idx])
        n_, aa = idx // 2, idx % 2
        t, cc = n_ // 4, n_ % 4
        if aa == 0:
            a(f's_mov_b32 s{sE}, {(cc*7+t)*K}')
        ht[idx] = a(f'buffer_load_dwordx4 {vr(HR+4*(idx%NH),4)}, v{(vHA,vHB)[aa]}, {sr(S_DT,4)}, s{sE} offen sc1')

    a.wait_lg0()
    if BEARLY:
        a.barrier()
        for i in range(LOOK):
            issue_rd(i)
    poll(S_LY, 240, f's{sC}')
    stamp('p3poll')
    for ks in range(4):
        xt[ks] = x_load(ks)
    if not BEARLY:
        a.barrier()
        for i in range(LOOK):
            issue_rd(i)
    for ks in range(4, PRE):
        xt[ks] = x_load(ks)
    fill, owner = [], []
    done_at = {}
    wd = [] if L == 1 else wfrag_items(lambda n_, b: ar(8 * n_ + 4 * b, 4), sWDSRC, (WDP1 + (WDP2 if L == 0 else 0)) // 2, 28, vSA, vSB, sF)
    ft = [[f'v_and_b32 v233, 0x80, v{vL4}', f'buffer_load_dword v233, v233, {sr(S_LY,4)}, s{sU} offen sc1']] if FT else []
    if HT and FAST() and (L == 1 or HT > 1):
        ft += [[f'v_min_u32 v234, 55, v{vLANE}', f'v_lshlrev_b32 v234, 7, v234', f'buffer_load_dword v234, v234, {sr(S_DT,4)}, s{sG} offen sc1']]
    bg = dma_items(vD3, LB, 36, 1) + ['M3'] + ft + wd[:WDP3]
    wd4 = wd[WDP3:]
    marks = {}
    cur = [0]

    def pop():
        x = fill.pop(0); o = owner.pop(0)
        t = a(x)
        if '; H' in x:
            hst[o] = (t, cur[0])

    def pub(stg, last_tile):
        a.wait(hst[last_tile][0])
        emit(flag_store(S_LY, f's{sU}', imm=64 * stg))

    def xl(ks):
        xt[ks] = x_load(ks)

    def next_bg():
        while bg and isinstance(bg[0], str):
            marks[bg.pop(0)] = mark()
        return bg.pop(0) if bg else None
    pubs = [(0, 2), (1, 4)]
    for i, (t, ks) in enumerate(steps):
        cur[0] = i
        if i == (45 if G3 else 34):
            a.wait(chk['st'])
            s_ = [f's_and_b32 s{sA}, s{sW1K}, 0x400', f'v_add_u32 v{vSA}, s{sA}, v{vL16}', f'v_xor_b32 v{vSB}, 0x400, v{vSA}'] + \
                stats_sum(SB) + stats_finish(XAUG, SB) + p4_addr()
            fill += s_; owner += [-1] * len(s_)
        stamp(f'i{i}', fine=True) if i in (1, 30, 57, 87, 116, 145, 174) else None
        if i % 2 == 0:
            a.wait(rt[min(i + 1, n - 1)], xt.get(steps[min(i + 1, n - 1)][1]), xt.get(ks))
        if i == 56:
            a.barrier()
            k3 = bg.index('M3') + 1 if 'M3' in bg else 0
            bg = bg[:k3] + dma_items(vD1, LALPHA, 56, 2) + ['M4'] + code_touch(232, 233) + bg[k3:]
        if i + LOOK == 112:
            a.wait(marks['M3'])
            a.barrier()
        if i + LOOK == 145:
            a.wait(marks['M4'])
            a.barrier()
            bg = code_touch(232, 233) + bg
        D = vr(ACC + 16 * accof[t], 16)
        if ks == 0 and t >= 4:
            assert (t - 4) not in owner
        if ks == 28:
            assert -1 not in owner
        X = vr(16 + 4 * ks, 4) if ks < 28 else vr(XAUG, 4)
        a(f'{MF} {D}, {vr(WR+4*(i%NW),4)}, {X}, {"0" if ks == 0 else D}')
        if ks == 28:
            done_at[t] = i
        for tt, di in list(done_at.items()):
            if i >= di + 2:
                e = epi(tt)
                fill += e; owner += [tt] * len(e)
                del done_at[tt]
        pre = main = None
        if t == 0 and ks + PRE < 28:
            main = (lambda k_=ks + PRE: xl(k_))
        elif t == NG - 1 and ks < 8 and ks % 2 == 0:
            main = (lambda k_=ks // 2: chk.__setitem__('st', st_load(k_, SB)))
        elif G3 and t == 2 and ks + PRE < 28 and ks % 2 == 0 and 'M3' not in marks:
            pre, main = split_item(next_bg())
        elif t == 6:
            if ks % 2 == 1:
                main = (lambda k_=ks // 2: hld(k_))
        elif i == 173:
            main = lambda: flag_ld(0)
        elif i % 2 == 0 and i >= NG * (28 - PRE):
            pre, main = split_item(next_bg())
        extra = None
        if fill and '; H' in fill[0]:
            extra = pop
        elif pubs and pubs[0][1] in hst and i >= hst[pubs[0][1]][1] + PUBD and i % 2 == 1:
            extra = (lambda p=pubs.pop(0): pub(*p))
        n0 = len(a.ins)
        for f in (pre, lambda: issue_rd(i + LOOK), main, extra):
            if f is None:
                continue
            f() if callable(f) else emit(f)
        budget = CAP - (len(a.ins) - n0) - (i % 2)
        while fill and '; H' not in fill[0] and budget >= cost(fill[0]):
            budget -= cost(fill[0])
            pop()
    assert not pubs and next_bg() is None, len(bg)
    print('P3: h stores at steps', {t: v[1] for t, v in hst.items()}, 'left', len(fill))
    assert not fill and 5 in hst
    stamp('p3mfma')

    RU, RA = 192, 128
    w1 = [] if L == 1 else dma_items(vD2, 0, 88, 2)
    nxt = (lambda: p1_setup(False)) if L != 1 else (lambda: None)
    a(f's_cmp_ge_u32 s{sJ}, 28')
    with cold('s_cbranch_scc1', back=LB_('L_p4skip' + tag)):
        emit(epi(6))
        pub(2, 5)
        a.barrier()
        a.wait_vm0()
        emit(flag_store(S_LY, f's{sU}', imm=192))
        if L == 0:
            idle_touch(W1R, W1S, 11)
        if L == 1 and WB:
            a('buffer_wbl2 sc1')
        for it in w1:
            emit(it)
        nxt()
    with cond():
        a.wait(chk[0])
        a(f'v_cmp_ne_u32 vcc, 1, v{vFV}')
        a('s_cmp_eq_u64 vcc, 0')
        saved = dict(ht)
        with cold('s_cbranch_scc0'):
            emit(epi(6, D=ACC + 48))
            a.wait_vm0()
            emit(flag_store(S_LY, f's{sU}', imm=128))
            emit(flag_store(S_LY, f's{sU}', imm=192))
            poll(S_LY, vFL, 0, imm=0)
            for idx in range(14):
                hld(idx, False)
            a.wait_vm0()
        ht.update(saved)
        fill = epi(6)
        owner = [6] * len(fill)
        later = red_setup(LALPHA, RA) + res_unpack(RU)
        TAIL = 8
        nld = [14]
        todo = ['pub2', 'pub3']
        wt = {}

        def mf(n_, s):
            aa, b = s >> 1, s & 1
            D = accs(s)
            a(f'{MF} {D}, {ar(8*n_+4*b,4)}, {vr(HR+4*((2*n_+aa)%NH),4)}, {"0" if n_ == 0 else D}')

        def sh(step, load):
            cur[0] = step
            n0 = len(a.ins)
            if load:
                if nld[0] < 56:
                    hld(nld[0]); nld[0] += 1
                elif w1:
                    emit(w1.pop(0))
            elif todo and todo[0] == 'pub2' and step >= 13:
                pub(2, 5); todo.pop(0)
            elif todo and todo[0] == 'pub3' and 6 in hst and step >= hst[6][1] + PUBD2:
                pub(3, 6); todo.pop(0)
                fill.extend(later); owner.extend([-2] * len(later))
            elif wd4:
                wt[0] = emit(wd4.pop(0))
            if step >= 1:
                if fill and '; H' in fill[0]:
                    pop()
                budget = CAP - (len(a.ins) - n0)
                while fill and '; H' not in fill[0] and budget >= cost(fill[0]):
                    budget -= cost(fill[0])
                    pop()
        for n_ in range(28 - TAIL):
            if n_ == P4B:
                a.barrier()
            stamp(f'n{n_}') if ('p4prof' in OPT and n_ in (2, 4, 8, 13, 15, 17)) else None
            a.wait(ht[2 * n_])
            mf(n_, 0); sh(4 * n_, True)
            mf(n_, 1); sh(4 * n_ + 1, False)
            a.wait(ht[2 * n_ + 1])
            mf(n_, 2); sh(4 * n_ + 2, True)
            mf(n_, 3); sh(4 * n_ + 3, 10 <= n_ < 16)
        assert nld[0] == 56 and not fill and not todo and not wd4
        stamp('n20') if 'p4prof' in OPT else None
        a.wait(wt.get(0))
        pend = []
        for s in (3, 2, 1, 0):
            for k_, n_ in enumerate(range(28 - TAIL, 28)):
                a.wait(ht[2 * n_ + 1])
                mf(n_, s)
                if k_ % 2 == 1 and pend:
                    emit(pend[:1]); pend = pend[1:]
                elif w1 and k_ % 2 == 0 and len(w1) > W1KEEP:
                    emit(w1.pop(0))
            if s > 0:
                pend = red_write(s, RA)
        stamp('p4mfma')

        def mid():
            for it in w1:
                emit(it)
            nxt()
        final = {0: False, 1: True, None: 'dyn'}[L]
        xb, stb = (X1, ST1) if FAST() else (X0 + LYB, ST0 + LYB)
        pre4 = w1[:len(w1) // 4 * 2]; w1 = w1[len(pre4):]
        red_finish(final, 16, RU, RA, 'p4', xb, stb, F0 + LYB, LS(), mid, pre=pre4)
    a.label(LB_('L_p4skip' + tag))
    if L != 1:
        stamp('p4end')


def restore(ctx):
    a.vm_issued, a.vm_done, a.lg_issued, a.lg_done = ctx['state']
    ctx['qt'].clear(); ctx['qt'].update(ctx['qt0'])


def build():
    prologue()
    init_phase()
    MODE.update(sc='', sfx='')
    ctx = phase1_kv(True)
    phase1_q(ctx, True)
    phase2(0)
    phase34(0)
    c2 = phase1_kv(False)
    phase1_q(c2, False)
    phase2(1)
    phase34(1)
    a.label('L_done')
    if PROFILE:
        stamp('end')
        a(f's_lshl_b32 s{sA}, s2, 2')
        a(f's_add_u32 s{sA}, s{sA}, s{sW}')
        a(f's_lshl_b32 s{sA}, s{sA}, 8')
        a(f's_add_u32 s{sA}, s{sA}, {PROF}')
        a(f'buffer_store_dword v{vPROF}, v{vL4}, {sr(S_WS,4)}, s{sA} offen')
        if 'dbgout' in OPT:
            a(f's_lshl_b32 s{sA}, s2, 2')
            a(f's_add_u32 s{sA}, s{sA}, s{sW}')
            a(f's_cmp_lg_u32 s{sA}, {77*4+1}')
            a('s_cbranch_scc1 L_end')
            a(f'v_readfirstlane_b32 s{sA}, v{vPROF}')
            a(f'v_subrev_u32 v{vPROF}, s{sA}, v{vPROF}')
            a(f'v_lshlrev_b32 v20, 1, v{vLANE}')
            a(f'v_subrev_u32 v20, {2*int(OPT["dbgout"])}, v20')
            a(f'buffer_store_short v{vPROF}, v20, {sr(S_DBG,4)}, 0 offen sc1')
    a.label('L_end')
    a('s_endpgm')
    a.flush_cold()
    a.label('L_codeend')
    keep = list(STAMPS)
    a.label('L_slow')
    MODE.update(sc='sc1', sfx='_s')
    restore(ctx)
    a('s_nop 7')
    phase1_q(ctx, True)
    a.label('L_layer_s')
    a('s_nop 7')
    phase2(None)
    phase34(None)
    a(f's_cmp_lg_u32 s{sL}, 0')
    a('s_cbranch_scc1 L_done')
    a(f's_mov_b32 s{sL}, 1')
    c2 = phase1_kv(False)
    phase1_q(c2, False)
    a('s_branch L_layer_s')
    a.label('L_final_s')
    final_store()
    a('s_branch L_done')
    a.flush_cold()
    STAMPS[:] = keep


build()
hdr = open('cdna_kernels/' + NAME + '.s.ref').read().split('; Override launch')[0]
out = hdr + f"""; @launch grid=(256,1,1) block=(256,1,1) lds={LDS_BYTES}
.amdgcn_target "amdgcn-amd-amdhsa--gfx950"
.text
.globl {NAME}_kernel
.p2align 8
.type {NAME}_kernel,@function
{NAME}_kernel:
{a.text()}
.section .rodata,"a"
.p2align 6
.amdhsa_kernel {NAME}_kernel
  .amdhsa_next_free_vgpr 512
  .amdhsa_next_free_sgpr 102
  .amdhsa_accum_offset 256
  .amdhsa_group_segment_fixed_size 0
  .amdhsa_kernarg_size 80
  .amdhsa_user_sgpr_count 2
  .amdhsa_user_sgpr_kernarg_segment_ptr 1
  .amdhsa_system_sgpr_workgroup_id_x 1
  .amdhsa_float_denorm_mode_32 3
.end_amdhsa_kernel
"""
outfn = [x for x in sys.argv[1:] if not x.startswith('--')][0]
open(outfn, 'w').write(out)
open(outfn + '.names', 'w').write(','.join(STAMPS))
print('instructions', len(a.ins), 'nops added', a.nops_added)
```

```python
import sys
import contextlib
from asmlib import Asm, vr, ar, sr

NAME = "interleave_layers__linear_attn_block__glu_gated_glu__prompt"
OPT = {}
for x in sys.argv[1:]:
    if x.startswith('--'):
        k, _, v = x[2:].partition('=')
        OPT[k] = v if v else True
PROFILE = 'prof' in OPT
FINE = 'fine' in OPT
CLK = 'clk' in OPT
STOP = OPT.get('stop')
FA = 1
SLEEP = int(OPT.get('sleep', 1))
TOUCH = int(OPT.get('touch', 0))
BUD = int(OPT.get('bud', 3))
XPRE = int(OPT.get('xpre', 8))
HPRE = int(OPT.get('hpre', 16))
HSC = int(OPT.get('hsc', 0))
XSC = int(OPT.get('xsc', 0))
TLBW = int(OPT.get('tlbw', 0))
XI = int(OPT.get('xi', 0))
XA = int(OPT.get('xa', 16))
CT = int(OPT.get('ct', 1))
FT = int(OPT.get('ft', 0))
HT = int(OPT.get('ht', 0))
WSC = '' if 'nowsc' in OPT else 'sc1'
STAMPS = []

IB = 0x0
W1R = 0x100000; W1S = 87 * 1024
WOR = 0x280000
W3R = 0x300000; W3S = 203 * 1024
WDR = 0x680000; WDS = 224 * 1024
LYB = 0x1000000
KV = 0x0
F1 = 0x10000
F1Q = 0x18000
F3 = 0x30000
F2 = 0x20000
F0 = 0x28000
ST1 = 0x40000
ST0 = 0x80000
PQ = 0x100000
X1 = 0x300000
X0 = 0x500000
HB = 0x700000
PROF = 0x3000000
WS_BYTES = 256 << 20
OOB = 0x40000000

K = 1024
LBETA, LB, LALPHA = 0, 56 * K, 104 * K
LRS = 87 * K
LKVS = 88 * K
LDS_BYTES = 160 * K

S_WS, S_X, S_WQKV, S_WO, S_WG, S_WU, S_WD, S_OUT, S_DBG = 4, 8, 12, 16, 20, 24, 28, 32, 36
S_T0, S_T1 = 40, 44
S_LY = 40
S_DT = 44
sW, sJ, sHC, sTB, sFB, sL, sTMO, sPI = 48, 49, 50, 51, 52, 53, 54, 55
sTILE1, sTILE2, sOWN, sOFT = 56, 57, 58, 59
sLN2, sEPS6 = 60, 62
sONES = 84
sW1K, sW2K, sW4K = 64, 65, 66
sW1SRC, sW3SRC, sWOSRC, sWDSRC = 67, 68, 69, 70
sRBG, sREP = 71, 72
sG, sH, sI = 73, 74, 75
sA, sB, sC, sD, sE, sF = 86, 87, 88, 89, 90, 91
sP0 = 92
sU = 94
sXID = 95
sZW = 96
sPC = 100

vLANE, vL16, vL16b, vL16c, vROW, vAUG, vL4, vPROF = 0, 1, 2, 3, 4, 5, 6, 7
vXRES = 8
LOG2E = 0x3FB8AA3B
LN2 = 0x3F317218
EPS6 = 0x358637BD
EPS5 = 0x3727C5AC
INV448 = 0x3B124925
MF = 'v_mfma_f32_32x32x16_bf16'

a = Asm()
MODE = {'sc': 'sc1', 'sfx': ''}


def LS():
    return MODE['sc']


def LL():
    return OPT.get('ll', 'sc1').replace('none', '') if MODE['sc'] == '' else 'sc1'


def ALIAS():
    return MODE['sfx'] == '' and 'noalias' not in OPT


def XS():
    return 'sc1' if XSC else LS()


def HS():
    return 'sc1' if HSC else LS()


def LB_(n):
    return n + MODE['sfx']


@contextlib.contextmanager
def cond():
    st = (a.vm_issued, a.vm_done, a.lg_issued, a.lg_done)
    yield
    a.vm_issued, a.vm_done, a.lg_issued, a.lg_done = st


@contextlib.contextmanager
def cold(branch, back=None):
    C = a.uid('Lc'); R = back or a.uid('Lr')
    a(f'{branch} {C}')
    st = (a.vm_issued, a.vm_done, a.lg_issued, a.lg_done)
    a.begin_cold()
    a.label(C)
    a('s_nop 7')
    a('s_nop 3')
    yield
    a('s_nop 4')
    a(f's_branch {R}')
    a.end_cold()
    a.vm_issued, a.vm_done, a.lg_issued, a.lg_done = st
    if back is None:
        a.label(R)


def mark():
    return ('vm', a.vm_issued - 1)


def lds_addr(addr):
    if addr < 65536:
        return vL16, addr
    if addr < 131072:
        return vL16b, addr - 65536
    return vL16c, addr - 131072


def stamp(name, fine=False):
    if not PROFILE or (fine and not FINE):
        return
    STAMPS.append(name)
    a('s_waitcnt lgkmcnt(0)')
    a(f"{'s_memtime' if CLK else 's_memrealtime'} {sr(sP0,2)}")
    a.wait_lg0()
    a(f'v_cmp_eq_u32 vcc, s{sPI}, v{vLANE}')
    a(f'v_mov_b32 v255, s{sP0}')
    a(f'v_cndmask_b32 v{vPROF}, v{vPROF}, v255, vcc')
    a(f's_add_u32 s{sPI}, s{sPI}, 1')


def srd(base, lo, nbytes):
    a(f's_mov_b32 s{base}, s{lo}')
    a(f's_and_b32 s{base+1}, s{lo+1}, 0xffff')
    a(f's_mov_b32 s{base+2}, {nbytes}')
    a(f's_mov_b32 s{base+3}, 0x00020000')


def poll(srdreg, vaddr, soff, imm=0, t=254, sleep=0, nonzero=False):
    L = a.uid('Lpoll'); D = a.uid('Lpd')
    a.label(L)
    if sleep:
        a(f's_sleep {sleep}')
    a(f'buffer_load_dword v{t}, v{vaddr}, {sr(srdreg,4)}, {soff} offen offset:{imm} sc1')
    a(f's_sub_u32 s{sTMO}, s{sTMO}, 1')
    a(f's_max_i32 s{sTMO}, s{sTMO}, 0')
    a(f's_cselect_b64 {sr(sP0,2)}, exec, 0')
    a.wait_vm0()
    a(f'v_cmp_eq_u32 vcc, 0, v{t}' if nonzero else f'v_cmp_ne_u32 vcc, 1, v{t}')
    a(f's_and_b64 exec, {sr(sP0,2)}, vcc')
    a(f's_cbranch_scc1 {L}')
    a('s_mov_b64 exec, -1')


def check_or_poll(v, srdreg, vaddr, soff, imm=0, nonzero=False, sleep=1, t=254):
    a(f'v_cmp_eq_u32 vcc, 0, v{v}' if nonzero else f'v_cmp_ne_u32 vcc, 1, v{v}')
    a('s_cmp_eq_u64 vcc, 0')
    with cold('s_cbranch_scc0'):
        poll(srdreg, vaddr, soff, imm=imm, nonzero=nonzero, sleep=sleep, t=t)


def code_touch(t, d):
    if not CT:
        return []
    return [[f'v_and_b32 v{t}, 3, v{vLANE}',
             f'v_lshlrev_b32 v{t}, 7, v{t}',
             f'global_load_dword v{d}, v{t}, {sr(sPC,2)}']]


def flag_store(srdreg, soff, imm=0, t=254, sc=None):
    sc = LS() if sc is None else sc
    return [f'v_mov_b32 v{t}, 1',
            's_mov_b64 exec, 1',
            f'buffer_store_dword v{t}, off, {sr(srdreg,4)}, {soff} offset:{imm} {sc}',
            's_mov_b64 exec, -1']


def emit(lst):
    t = None
    for x in lst:
        r = a(x)
        t = r if r is not None else t
    return t


def dma_items(vD, lds_base, nfrag, c):
    assert nfrag % (4 * c) == 0
    sWc = {1: sW1K, 2: sW2K, 4: sW4K}[c]
    items = []
    for r in range(nfrag // (4 * c)):
        for i in range(c):
            it = []
            if i == 0:
                it.append(f's_add_u32 m0, s{sWc}, {lds_base + r*4*c*K}')
            it.append(f'buffer_load_dwordx4 v{vD}, {sr(S_WS,4)}, m0 offen offset:{i*K} {WSC} lds')
            items.append(it)
    return items


def dma_setup(vD, ssrc, src_const, lds_base):
    a(f's_add_u32 s{sA}, s{ssrc}, {src_const - lds_base & 0xffffffff:#x}')
    a(f'v_add_u32 v{vD}, s{sA}, v{vL16}')


def prologue():
    a('s_cmp_ge_u32 s2, 256')
    a('s_cbranch_scc1 L_end')
    a('s_load_dwordx16 s[64:79], s[0:1], 0')
    a('s_load_dwordx4 s[80:83], s[0:1], 64')
    a(f's_getpc_b64 {sr(sPC,2)}')
    a.label('L_pc')
    a('s_lshr_b32 s3, s2, 3')
    a('s_lshl_b32 s3, s3, 11')
    a('s_min_u32 s3, s3, (L_codeend - L_pc - 2048)')
    a(f's_add_u32 s{sPC}, s{sPC}, s3')
    a(f's_addc_u32 s{sPC+1}, s{sPC+1}, 0')
    a('v_min_u32 v16, 15, v0')
    a('v_lshlrev_b32 v16, 7, v16')
    a(f'global_load_dword v17, v16, {sr(sPC,2)}')
    a(f'v_lshrrev_b32 v18, 6, v0')
    a(f'v_and_b32 v{vLANE}, 63, v0')
    a(f'v_readfirstlane_b32 s{sW}, v18')
    a(f'v_lshlrev_b32 v{vL16}, 4, v{vLANE}')
    a(f'v_add_u32 v{vL16b}, 0x10000, v{vL16}')
    a(f'v_add_u32 v{vL16c}, 0x20000, v{vL16}')
    a(f'v_lshlrev_b32 v{vL4}, 2, v{vLANE}')
    a(f'v_and_b32 v18, 31, v{vLANE}')
    a(f'v_lshrrev_b32 v19, 5, v{vLANE}')
    a(f'v_mul_u32_u24 v{vROW}, 896, v18')
    a(f'v_lshl_add_u32 v{vROW}, v19, 4, v{vROW}')
    a(f'v_lshlrev_b32 v{vAUG}, 2, v18')
    a(f'v_lshl_add_u32 v{vAUG}, v19, 9, v{vAUG}')
    a(f'v_mov_b32 v{vPROF}, 0')
    a(f's_mov_b32 s{sPI}, 0')
    a(f's_and_b32 s{sC}, s2, 7')
    a(f's_lshr_b32 s{sJ}, s2, 3')
    a(f's_mul_i32 s{sTB}, s{sJ}, 37')
    a(f's_lshr_b32 s{sTB}, s{sTB}, 8')
    a(f's_mul_i32 s{sFB}, s{sTB}, 7')
    a(f's_sub_u32 s{sFB}, s{sJ}, s{sFB}')
    a(f's_cmp_ge_u32 s{sJ}, 28')
    a(f's_cselect_b32 s{sTB}, s{sFB}, s{sTB}')
    a(f's_mov_b32 s{sL}, 0')
    a(f's_mov_b32 s{sTMO}, 100000')
    a(f's_lshl_b32 s{sTILE2}, s{sC}, 3')
    a(f's_lshl_b32 s{sD}, s{sTB}, 1')
    a(f's_add_u32 s{sTILE2}, s{sTILE2}, s{sD}')
    a(f's_lshr_b32 s{sD}, s{sW}, 1')
    a(f's_add_u32 s{sOWN}, s{sTILE2}, s{sD}')
    a(f's_and_b32 s{sD}, s{sW}, 1')
    a(f's_lshl_b32 s{sOFT}, s{sFB}, 1')
    a(f's_add_u32 s{sOFT}, s{sOFT}, s{sD}')
    lf = {1: 0, 2: 1, 4: 2, 8: 3}[FA]
    nh = 16 // FA
    a(f's_and_b32 s{sD}, s{sC}, {FA-1}')
    a(f's_mul_i32 s{sHC}, s{sD}, {nh}')
    a(f's_and_b32 s{sD}, s{sJ}, {nh-1}')
    a(f's_add_u32 s{sHC}, s{sHC}, s{sD}')
    a(f's_lshr_b32 s{sD}, s{sC}, {lf}')
    a(f's_lshl_b32 s{sE}, s{sD}, {lf+1}')
    a(f's_lshr_b32 s{sD}, s{sJ}, {4-lf}')
    a(f's_add_u32 s{sE}, s{sE}, s{sD}')
    a(f's_lshl_b32 s{sTILE1}, s{sE}, 2')
    a(f's_add_u32 s{sTILE1}, s{sTILE1}, s{sW}')
    a(f's_mov_b32 s{sLN2}, {LN2:#x}')
    a(f's_mov_b32 s{sLN2+1}, {LN2:#x}')
    a(f's_mov_b32 s{sEPS6}, {EPS6:#x}')
    a(f's_mov_b32 s{sEPS6+1}, {EPS6:#x}')
    a(f's_mov_b32 s{sONES}, 0x3f803f80')
    for i in range(4):
        a(f'v_mov_b32 v{216+i}, 0')
    a(f'v_and_b32 v{vRHO}, 31, v{vLANE}')
    a(f'v_lshrrev_b32 v{vHI}, 5, v{vLANE}')
    a(f'v_and_b32 v{vSIG}, 0x13, v{vRHO}')
    a(f'v_and_b32 v{vt0}, 4, v{vRHO}')
    a(f'v_lshl_or_b32 v{vSIG}, v{vt0}, 1, v{vSIG}')
    a(f'v_lshrrev_b32 v{vt0}, 1, v{vRHO}')
    a(f'v_and_or_b32 v{vSIG}, v{vt0}, 4, v{vSIG}')
    a(f'v_lshrrev_b32 v{vR8}, 3, v{vLANE}')
    a(f'v_and_b32 v{vC8}, 7, v{vLANE}')
    a(f'v_lshlrev_b32 v{vC8}, 4, v{vC8}')
    a(f'v_lshrrev_b32 v{vt0}, 4, v{vLANE}')
    a(f'v_lshlrev_b32 v{vt0}, 4, v{vt0}')
    a(f'v_xor_b32 v{vt0}, v{vt0}, v{vC8}')
    a(f'v_mul_u32_u24 v{vt1}, 896, v{vR8}')
    a(f'v_add_u32 v{vXS}, v{vt1}, v{vt0}')
    a(f'v_xor_b32 v{vt0}, 64, v{vt0}')
    a(f'v_add_u32 v{vXS+1}, v{vt1}, v{vt0}')
    a('s_waitcnt lgkmcnt(0)')
    if TLBW:
        a(f'v_lshlrev_b32 v20, 20, v{vLANE}')
        a('v_subrev_u32 v20, 0xa00000, v20')
        a('v_min_u32 v20, 0x2100000, v20')
        a('v_mov_b32 v21, s83')
        a('v_add_co_u32 v20, vcc, s82, v20')
        a('v_addc_co_u32 v21, vcc, 0, v21, vcc')
        for ln, p in enumerate((64, 66, 68, 72, 74, 76, 78, 80)):
            a(f'v_writelane_b32 v20, s{p}, {ln}')
            a(f'v_writelane_b32 v21, s{p+1}, {ln}')
        a('global_load_dword v22, v[20:21], off')
    srd(S_X, 64, 2048 * 448 * 2)
    srd(S_WQKV, 66, 448 * 1344 * 2)
    srd(S_WO, 68, 448 * 448 * 2)
    srd(S_WG, 72, 448 * 1792 * 2)
    srd(S_WU, 74, 448 * 1792 * 2)
    srd(S_WD, 76, 1792 * 448 * 2)
    srd(S_OUT, 78, 2048 * 448 * 2)
    srd(S_DBG, 80, 256)
    srd(S_WS, 82, WS_BYTES)
    a(f's_mov_b32 s{sRBG}, s{sE}')
    a(f's_and_b32 s{sREP}, s2, 3')
    a(f's_lshl_b32 s{sREP}, s{sREP}, 12')
    a(f's_lshl_b32 s{sW1K}, s{sW}, 10')
    a(f's_lshl_b32 s{sW2K}, s{sW}, 11')
    a(f's_lshl_b32 s{sW4K}, s{sW}, 12')
    a(f's_lshl_b32 s{sG}, s{sW}, 9')
    a(f's_add_u32 s{sPC}, s{sPC}, s{sG}')
    a(f's_addc_u32 s{sPC+1}, s{sPC+1}, 0')
    a(f's_lshl_b32 s{sG}, s{sW}, 13')
    a(f's_add_u32 s{sG}, s{sG}, {LSTG}')
    a(f's_getreg_b32 s{sXID}, hwreg(HW_REG_XCC_ID)')
    a(f's_and_b32 s{sXID}, s{sXID}, 15')
    a(f's_add_u32 s{sXID}, s{sXID}, 1')
    stamp('start')


def late_consts():
    a(f's_mul_i32 s{sW1SRC}, s{sHC}, {W1S}')
    a(f's_add_u32 s{sW1SRC}, s{sW1SRC}, {W1R}')
    a(f's_mul_i32 s{sW3SRC}, s{sHC}, {W3S}')
    a(f's_add_u32 s{sW3SRC}, s{sW3SRC}, {W3R}')
    a(f's_lshl_b32 s{sWOSRC}, s{sFB}, 16')
    a(f's_lshl_b32 s{sA}, s{sW}, 14')
    a(f's_add_u32 s{sWOSRC}, s{sWOSRC}, s{sA}')
    a(f's_add_u32 s{sWOSRC}, s{sWOSRC}, {WOR}')
    a(f's_mul_i32 s{sWDSRC}, s{sFB}, {WDS}')
    a(f's_mul_i32 s{sA}, s{sW}, 57344')
    a(f's_add_u32 s{sWDSRC}, s{sWDSRC}, s{sA}')
    a(f's_add_u32 s{sWDSRC}, s{sWDSRC}, {WDR}')
    a(f's_add_u32 s{S_LY}, s{S_WS}, {LYB}')
    a(f's_addc_u32 s{S_LY+1}, s{S_WS+1}, 0')
    a(f's_mov_b32 s{S_LY+2}, {2*LYB}')
    a(f's_mov_b32 s{S_LY+3}, 0x00020000')
    a(f's_mov_b32 s{S_DT}, s{S_LY}')
    a(f's_mov_b32 s{S_DT+1}, s{S_LY+1}')
    a(f's_mov_b32 s{S_DT+2}, {2*LYB}')
    a(f's_mov_b32 s{S_DT+3}, 0x00020000')


UD = 128
UC = 192
vRHO, vHI, vSIG, vR8, vC8 = 204, 205, 206, 207, 212
vt0, vt1, vt2, vt3 = 208, 209, 210, 211
vXS = 214
LSTG = 4 * K
LXS = 40 * K


PASS = {'p': 'src'}


class Done(Exception):
    pass


def run_setup(fn, *args):
    try:
        fn(*args)
    except Done:
        pass


def unit_dma(r, srdreg, vsrc, srow0, srow1):
    if PASS['p'] == 'dst':
        return
    _unit_dma(r, srdreg, vsrc, srow0, srow1)
    raise Done()


def _unit_dma(r, srdreg, vsrc, srow0, srow1):
    a(f's_add_u32 m0, s{sG}, {r*2048}')
    a('s_nop 0')
    a(f'buffer_load_dwordx4 v{vsrc}, {sr(srdreg,4)}, s{srow0} offen lds')
    a(f's_add_u32 m0, s{sG}, {r*2048+1024}')
    a('s_nop 0')
    a(f'buffer_load_dwordx4 v{vsrc}, {sr(srdreg,4)}, s{srow1} offen lds')


def div7(q, rem, su):
    a(f's_mul_i32 s{q}, s{su}, 9363')
    a(f's_lshr_b32 s{q}, s{q}, 16')
    a(f's_mul_i32 s{rem}, s{q}, 7')
    a(f's_sub_u32 s{rem}, s{su}, s{rem}')


def setup_w1(r, su):
    col, dst, aug = UC + 3 * r, UC + 3 * r + 1, UC + 3 * r + 2
    div7(sA, sB, su)
    a(f's_lshr_b32 s{sC}, s{sA}, 3')
    a(f's_and_b32 s{sA}, s{sA}, 7')
    a(f's_mul_i32 s{sD}, s{sC}, 896')
    a(f's_mul_i32 s{sE}, s{sA}, 112')
    a(f's_add_u32 s{sD}, s{sD}, s{sE}')
    a(f's_lshl_b32 s{sF}, s{sB}, 2')
    a(f's_add_u32 s{sF}, s{sF}, s{sW}')
    a(f's_mul_i32 s{sE}, s{sF}, {16*2688}')
    a(f's_add_u32 s{sD}, s{sD}, s{sE}')
    a(f's_add_u32 s{sE}, s{sD}, {8*2688}')
    a(f'v_mul_u32_u24 v{vt0}, 2688, v{vR8}')
    a(f'v_add_u32 v{vt0}, v{vt0}, v{vC8}')
    a(f'v_cmp_eq_u32 vcc, 112, v{vC8}')
    a(f'v_mov_b32 v{vt1}, {OOB:#x}')
    a(f'v_cndmask_b32 v{vt0}, v{vt0}, v{vt1}, vcc')
    unit_dma(r, S_WQKV, vt0, sD, sE)
    a(f'v_cmp_le_u32 vcc, 24, v{vSIG}')
    a(f'v_subrev_u32 v{vt0}, 2, v{vSIG}')
    a(f'v_cndmask_b32 v{vt0}, v{vSIG}, v{vt0}, vcc')
    a(f'v_mad_u32_u24 v{vt0}, v{vHI}, 28, v{vt0}')
    a(f'v_and_b32 v{vt1}, 0x16, v{vSIG}')
    a(f'v_cmp_eq_u32 vcc, 0x16, v{vt1}')
    a(f'v_cndmask_b32 v{vt0}, v{vt0}, 56, vcc')
    a(f'v_lshl_add_u32 v{col}, v{vt0}, 1, s{sG}')
    a(f's_lshl_b32 s{sD}, s{sF}, 1')
    a(f's_add_u32 s{sD}, s{sD}, s{sC}')
    a(f's_sub_u32 s{sD}, s{sD}, 1')
    a(f's_add_u32 s{sE}, s{sC}, 55')
    a(f's_add_u32 s{sF}, s{sF}, 58')
    a(f's_cmp_eq_u32 s{sC}, 0')
    a(f's_cselect_b32 s{sD}, s{sF}, s{sD}')
    a(f's_cselect_b32 s{sE}, 86, s{sE}')
    a(f's_mul_i32 s{sA}, s{sA}, {2*W1S}')
    a(f's_add_u32 s{sA}, s{sA}, {W1R}')
    a(f's_lshl_b32 s{sD}, s{sD}, 10')
    a(f's_add_u32 s{sD}, s{sD}, s{sA}')
    a(f's_lshl_b32 s{sE}, s{sE}, 10')
    a(f's_add_u32 s{sE}, s{sE}, s{sA}')
    a(f's_lshl_b32 s{sB}, s{sB}, 7')
    a(f's_add_u32 s{sE}, s{sE}, s{sB}')
    a(f'v_mul_u32_u24 v{vt0}, {W1S}, v{vHI}')
    a(f'v_lshl_add_u32 v{dst}, v{vRHO}, 4, v{vt0}')
    a(f'v_add_u32 v{dst}, s{sD}, v{dst}')
    a(f'v_lshl_add_u32 v{aug}, v{vRHO}, 2, v{vt0}')
    a(f'v_add_u32 v{aug}, s{sE}, v{aug}')


def setup_w3(r, su, tsrd):
    col, dst, aug = UC + 3 * r, UC + 3 * r + 1, UC + 3 * r + 2
    div7(sA, sB, su)
    a(f's_cmp_ge_u32 s{sA}, 28')
    a(f's_cselect_b32 s{tsrd}, s{S_WU}, s{S_WG}')
    a(f's_cselect_b32 s{tsrd+1}, s{S_WU+1}, s{S_WG+1}')
    a(f's_cselect_b32 s{sC}, 28, 0')
    a(f's_cselect_b32 s{sD}, 16, 0')
    a(f's_mov_b32 s{tsrd+2}, {448*1792*2}')
    a(f's_mov_b32 s{tsrd+3}, 0x00020000')
    a(f's_sub_u32 s{sA}, s{sA}, s{sC}')
    a(f's_lshl_b32 s{sE}, s{sB}, 2')
    a(f's_add_u32 s{sE}, s{sE}, s{sW}')
    a(f's_mul_i32 s{sC}, s{sE}, {16*3584}')
    a(f's_lshl_b32 s{sF}, s{sA}, 7')
    a(f's_add_u32 s{sC}, s{sC}, s{sF}')
    a(f's_add_u32 s{sF}, s{sC}, {8*3584}')
    a(f'v_mul_u32_u24 v{vt0}, 3584, v{vR8}')
    a(f'v_add_u32 v{vt0}, v{vt0}, v{vC8}')
    unit_dma(r, tsrd, vt0, sC, sF)
    a(f'v_and_b32 v{vt0}, 48, v{vLANE}')
    a(f'v_and_or_b32 v{vt0}, v{vSIG}, 15, v{vt0}')
    a(f'v_lshl_add_u32 v{col}, v{vt0}, 1, s{sG}')
    a(f'v_lshrrev_b32 v{vt0}, 4, v{vLANE}')
    a(f's_lshl_b32 s{sC}, s{sA}, 2')
    a(f'v_add_u32 v{vt0}, s{sC}, v{vt0}')
    a(f'v_mul_u32_u24 v{vt1}, 9363, v{vt0}')
    a(f'v_lshrrev_b32 v{vt1}, 16, v{vt1}')
    a(f'v_mul_u32_u24 v{vt2}, 7, v{vt1}')
    a(f'v_sub_u32 v{vt0}, v{vt0}, v{vt2}')
    a(f's_mul_i32 s{sF}, s{sE}, 2')
    a(f'v_add_u32 v{vt2}, s{sF}, v{vt0}')
    a(f'v_add_u32 v{aug}, 56, v{vt0}')
    a(f's_cmp_ge_u32 s{sE}, 27')
    a(f's_cselect_b32 s{sC}, 58, 0')
    a(f's_sub_u32 s{sC}, s{sE}, s{sC}')
    a(f's_add_u32 s{sC}, s{sC}, 176')
    for t, base, ag in ((2, 59, None), (3, 87, 115), (4, 116, 144), (5, 147, 175), (6, None, 146)):
        a(f'v_cmp_eq_u32 vcc, {t}, v{vt0}')
        if base is not None:
            a(f's_add_u32 s{sF}, s{sE}, {base}')
            a(f'v_mov_b32 v{vt3}, s{sF}')
        else:
            a(f'v_mov_b32 v{vt3}, s{sC}')
        a(f'v_cndmask_b32 v{vt2}, v{vt2}, v{vt3}, vcc')
        if ag is not None:
            a(f'v_mov_b32 v{vt3}, {ag}')
            a(f'v_cndmask_b32 v{aug}, v{aug}, v{vt3}, vcc')
    a(f'v_mul_u32_u24 v{vt1}, 203, v{vt1}')
    a(f'v_add_lshl_u32 v{vt2}, v{vt2}, v{vt1}, 10')
    a(f'v_add_lshl_u32 v{aug}, v{aug}, v{vt1}, 10')
    a(f'v_and_b32 v{vt0}, 15, v{vLANE}')
    a(f'v_add_u32 v{vt0}, s{sD}, v{vt0}')
    a(f'v_lshl_add_u32 v{dst}, v{vt0}, 4, v{vt2}')
    a(f'v_add_u32 v{dst}, {W3R:#x}, v{dst}')
    a(f'v_lshl_add_u32 v{aug}, v{vt0}, 2, v{aug}')
    a(f's_lshl_b32 s{sB}, s{sB}, 7')
    a(f's_add_u32 s{sB}, s{sB}, {W3R}')
    a(f'v_add_u32 v{aug}, s{sB}, v{aug}')


def setup_colsT(r):
    col, dst, aug = UC + 3 * r, UC + 3 * r + 1, UC + 3 * r + 2
    a(f'v_lshl_add_u32 v{vt0}, v{vHI}, 5, v{vSIG}')
    a(f'v_lshl_add_u32 v{col}, v{vt0}, 1, s{sG}')
    a(f'v_lshlrev_b32 v{dst}, 10, v{vHI}')
    a(f'v_lshl_add_u32 v{dst}, v{vRHO}, 4, v{dst}')
    a(f'v_mov_b32 v{aug}, {OOB:#x}')


def setup_wd(r, su):
    dst = UC + 3 * r + 1
    div7(sA, sB, su)
    a(f's_lshl_b32 s{sA}, s{sA}, 2')
    a(f's_add_u32 s{sA}, s{sA}, s{sW}')
    a(f's_mul_i32 s{sC}, s{sA}, {16*896}')
    a(f's_lshl_b32 s{sD}, s{sB}, 7')
    a(f's_add_u32 s{sC}, s{sC}, s{sD}')
    a(f's_add_u32 s{sD}, s{sC}, {8*896}')
    a(f'v_mul_u32_u24 v{vt0}, 896, v{vR8}')
    a(f'v_add_u32 v{vt0}, v{vt0}, v{vC8}')
    unit_dma(r, S_WD, vt0, sC, sD)
    setup_colsT(r)
    div7(sC, sD, sA)
    a(f's_mul_i32 s{sB}, s{sB}, {WDS}')
    a(f's_lshr_b32 s{sE}, s{sC}, 2')
    a(f's_mul_i32 s{sE}, s{sE}, 57344')
    a(f's_add_u32 s{sB}, s{sB}, s{sE}')
    a(f's_lshl_b32 s{sD}, s{sD}, 2')
    a(f's_and_b32 s{sC}, s{sC}, 3')
    a(f's_add_u32 s{sD}, s{sD}, s{sC}')
    a(f's_lshl_b32 s{sD}, s{sD}, 11')
    a(f's_add_u32 s{sB}, s{sB}, s{sD}')
    a(f's_add_u32 s{sB}, s{sB}, {WDR}')
    a(f'v_add_u32 v{dst}, s{sB}, v{dst}')


def setup_wo(r, su):
    dst = UC + 3 * r + 1
    div7(sA, sB, su)
    a(f's_lshl_b32 s{sA}, s{sA}, 2')
    a(f's_add_u32 s{sA}, s{sA}, s{sW}')
    a(f's_lshr_b32 s{sC}, s{sA}, 1')
    a(f's_mul_i32 s{sC}, s{sC}, {28*896}')
    a(f's_lshl_b32 s{sD}, s{sB}, 7')
    a(f's_add_u32 s{sC}, s{sC}, s{sD}')
    a(f's_and_b32 s{sD}, s{sA}, 1')
    a(f's_cselect_b32 s{sD}, {16*896}, 0')
    a(f's_cselect_b32 s{sE}, {14*896}, 0')
    a(f's_add_u32 s{sD}, s{sD}, s{sC}')
    a(f's_add_u32 s{sE}, s{sE}, s{sC}')
    a(f's_add_u32 s{sE}, s{sE}, {8*896}')
    a(f'v_mul_u32_u24 v{vt0}, 896, v{vR8}')
    a(f'v_add_u32 v{vt0}, v{vt0}, v{vC8}')
    unit_dma(r, S_WO, vt0, sD, sE)
    setup_colsT(r)
    a(f's_lshl_b32 s{sB}, s{sB}, 16')
    a(f's_lshl_b32 s{sC}, s{sA}, 11')
    a(f's_add_u32 s{sB}, s{sB}, s{sC}')
    a(f's_add_u32 s{sB}, s{sB}, {WOR}')
    a(f'v_add_u32 v{dst}, s{sB}, v{dst}')


def setup_none(r):
    col, dst, aug = UC + 3 * r, UC + 3 * r + 1, UC + 3 * r + 2
    a(f'v_mov_b32 v{col}, 0')
    a(f'v_mov_b32 v{dst}, {OOB:#x}')
    a(f'v_mov_b32 v{aug}, {OOB:#x}')


def rounds(tag):
    a('s_cmp_ge_u32 s2, 168')
    a(f's_cbranch_scc1 L_r0b{tag}')
    with cond():
        run_setup(setup_w1, 0, 2)
    a(f's_branch L_r0e{tag}')
    a.label(f'L_r0b{tag}')
    a('s_cmp_ge_u32 s2, 224')
    a(f's_cbranch_scc1 L_r0c{tag}')
    with cond():
        a(f's_sub_u32 s{sU}, s2, 168')
        run_setup(setup_wo, 0, sU)
    a(f's_branch L_r0e{tag}')
    a.label(f'L_r0c{tag}')
    with cond():
        a(f's_sub_u32 s{sU}, s2, 224')
        run_setup(setup_wd, 0, sU)
    a.label(f'L_r0e{tag}')
    run_setup(setup_w3, 1, 2, S_T0)
    a('s_cmp_ge_u32 s2, 136')
    a(f's_cbranch_scc1 L_r2b{tag}')
    with cond():
        a(f's_add_u32 s{sU}, s2, 256')
        run_setup(setup_w3, 2, sU, S_T1)
    a(f's_branch L_r2e{tag}')
    a.label(f'L_r2b{tag}')
    with cond():
        a(f's_sub_u32 s{sU}, s2, 104')
        run_setup(setup_wd, 2, sU)
    a.label(f'L_r2e{tag}')
    a('s_cmp_ge_u32 s2, 212')
    a(f's_cbranch_scc1 L_r3b{tag}')
    if PASS['p'] == 'dst':
        setup_none(3)
    a(f's_branch L_r3e{tag}')
    a.label(f'L_r3b{tag}')
    with cond():
        a(f's_sub_u32 s{sU}, s2, 60')
        run_setup(setup_wd, 3, sU)
    a.label(f'L_r3e{tag}')


def init_phase():
    Z = 216
    vGO = 215 + 9
    a(f's_lshl_b32 s{sA}, s{sW}, 3')
    a(f's_add_u32 s{sB}, s{sA}, s2')
    a(f's_mov_b32 s{sZW}, s{sB}')
    a(f's_cmp_ge_u32 s{sZW}, 8')
    a('s_cbranch_scc1 L_z1')
    with cond():
        a(f's_lshl_b32 s{sA}, s2, 11')
        a(f'buffer_store_dwordx4 {vr(Z,4)}, v{vL16}, {sr(S_WS,4)}, s{sA} offen sc1')
        a(f'buffer_store_dwordx4 {vr(Z,4)}, v{vL16}, {sr(S_WS,4)}, s{sA} offen offset:1024 sc1')
    a.label('L_z1')
    PASS['p'] = 'src'
    rounds('s')
    um = mark()
    a(f's_mul_i32 s{sI}, s{sTILE1}, 28672')
    a(f's_mul_i32 s{sH}, s{sW}, {28*K}')
    a(f's_add_u32 s{sH}, s{sH}, {LXS}')
    xq = []
    for g in range(4):
        for c in range(7):
            it = [f's_add_u32 m0, s{sH}, {(4*c+g)*K - c*128}',
                  f'buffer_load_dwordx4 v{vXS + (g & 1)}, {sr(S_X,4)}, s{sI} offen offset:{c*128} lds']
            if c == 6:
                it.append(f's_add_u32 s{sI}, s{sI}, {8*896}')
            xq.append(it)
    a(f's_mul_i32 s{sA}, s{sHC}, {14*128}')
    a(f's_add_u32 s{sA}, s{sA}, s{sI}')
    a(f'v_min_u32 v{vt0}, 13, v{vLANE}')
    a(f'v_lshlrev_b32 v{vt0}, 7, v{vt0}')
    a(f'buffer_load_dword v17, v{vt0}, {sr(S_X,4)}, s{sA} offen')
    stamp('issued')
    a(f's_cmp_ge_u32 s{sZW}, 8')
    a('s_cbranch_scc1 L_z2')
    with cond():
        a('s_waitcnt vmcnt(7)')
        a(f's_lshl_b32 s{sA}, s2, 5')
        emit(flag_store(S_DBG, f's{sA}', sc='sc1'))
    a.label('L_z2')
    PASS['p'] = 'dst'
    rounds('d')
    a(f's_lshl_b32 s{sA}, s{sW}, 8')
    a(f'v_add_u32 v{vt1}, s{sA}, v{vL4}')
    a(f'v_and_b32 v{vt3}, 7, v{vLANE}')
    a(f'v_lshlrev_b32 v{vt3}, 5, v{vt3}')
    a(f's_lshl_b32 s{sA}, s2, 10')
    a(f's_add_u32 s{sB}, s{sW}, 1')
    a(f's_lshl_b32 s{sB}, s{sB}, 24')
    a(f's_add_u32 s{sA}, s{sA}, s{sB}')
    a(f's_sub_u32 s{sB}, s{sA}, {2*LYB - ST1}')
    a(f's_cmp_eq_u32 s{sW}, 2')
    a(f's_cselect_b32 s{sA}, s{sB}, s{sA}')
    a(f's_cmp_ge_u32 s{sW}, 3')
    a(f's_cselect_b32 s{sA}, {OOB:#x}, s{sA}')
    a.wait(um, force=True)
    stamp('ldone')
    a(f'buffer_store_dwordx4 {vr(Z,4)}, v{vL16}, {sr(S_WS,4)}, s{sA} offen sc1')
    rtok = {}

    def gat(r, half):
        for e in range(8):
            rtok[r, half] = a(f'ds_read_u16 v{UD+16*r+8*half+e}, v{UC+3*r} offset:{r*2048+(8*half+e)*128}')
    gat(0, 0)
    for r in range(4):
        R = UD + 16 * r
        dst = UC + 3 * r + 1
        for half in range(2):
            nxt = 2 * r + half + 1
            if nxt < 8:
                gat(nxt // 2, nxt % 2)
            a.wait(rtok[r, half])
            for m in range(4):
                a(f'v_lshl_or_b32 v{R+8*half+m}, v{R+8*half+2*m+1}, 16, v{R+8*half+2*m}')
            a(f'buffer_store_dwordx4 {vr(R+8*half,4)}, v{dst}, {sr(S_WS,4)}, 0 offen offset:{512*half} sc1')
            for _ in range(XI):
                emit(xq.pop(0))
    for r in range(3):
        R = UD + 16 * r
        a(f'v_mov_b32 v{R+4}, 0')
        for m in range(4):
            a(f'v_dot2c_f32_bf16 v{R+4}, s{sONES}, v{R+m}')
            a(f'v_dot2c_f32_bf16 v{R+4}, s{sONES}, v{R+8+m}')
        a(f'ds_write_b32 v{vt1}, v{R+4} offset:{r*1024}')
    a(f'buffer_load_dword v{vGO}, v{vt3}, {sr(S_DBG,4)}, 0 offen sc1')
    stamp('packed') if 'initprof' in OPT else None
    a.wait_lg0()
    a.barrier()
    a(f's_cmp_eq_u32 s{sW}, 3')
    a('s_cbranch_scc1 L_aug_e')
    with cond():
        R = 220
        a(f'v_add_u32 v{vt0}, s{sW1K}, v{vL4}')
        a(f'ds_read2st64_b32 {vr(R,2)}, v{vt0} offset0:0 offset1:1')
        t = a(f'ds_read2st64_b32 {vr(R+2,2)}, v{vt0} offset0:2 offset1:3')
        a(f's_cmp_eq_u32 s{sW}, 1')
        a('s_cselect_b64 vcc, -1, 0')
        a(f'v_cndmask_b32 v{vt2}, v{UC+2}, v{UC+5}, vcc')
        a(f's_cmp_eq_u32 s{sW}, 2')
        a('s_cselect_b64 vcc, -1, 0')
        a(f'v_cndmask_b32 v{vt2}, v{vt2}, v{UC+8}, vcc')
        a(f'v_bfe_u32 v{vt0}, v{vt2}, 7, 3')
        a(f'v_cmp_eq_u32 vcc, 6, v{vt0}')
        a(f'v_mov_b32 v{vt1}, {OOB:#x}')
        a(f'v_cndmask_b32 v{vt0}, v{vt1}, v{vt2}, vcc')
        a(f'buffer_store_dword v{Z}, v{vt0}, {sr(S_WS,4)}, 0 offen offset:128 sc1')
        a.wait(t)
        a(f'v_add_f32 v{R}, v{R}, v{R+1}')
        a(f'v_add_f32 v{R+2}, v{R+2}, v{R+3}')
        a(f'v_add_f32 v{R}, v{R}, v{R+2}')
        a(f'v_cvt_pk_bf16_f32 v{R+1}, v{R}, v{R}')
        a(f'v_and_b32 v{R+1}, 0xffff0000, v{R+1}')
        a(f'v_sub_f32 v{R+1}, v{R}, v{R+1}')
        a(f'v_cvt_pk_bf16_f32 v{R+1}, v{R}, v{R+1}')
        a(f'buffer_store_dword v{R+1}, v{vt2}, {sr(S_WS,4)}, 0 offen sc1')
    a.label('L_aug_e')
    sm = mark()
    for _ in range(min(XA, len(xq))):
        emit(xq.pop(0))
    a.wait(sm, force=True)
    stamp('acked') if 'initprof' in OPT else None
    a.barrier()
    a(f's_cmp_lg_u32 s{sW}, 3')
    a('s_cbranch_scc1 L_ib')
    with cond():
        a(f'v_cmp_ne_u32 vcc, 1, v{vGO}')
        a('s_cmp_eq_u64 vcc, 0')
        a('s_cbranch_scc1 L_go_ok')
        with cond():
            poll(S_DBG, vt3, 0, sleep=2)
        a.label('L_go_ok')
        a(f'v_lshlrev_b32 v{vt0}, 12, v{vLANE}')
        a(f'v_mov_b32 v{vt1}, s{sXID}')
        a(f's_lshl_b32 s{sA}, s2, 4')
        a('s_mov_b64 exec, 15')
        a(f'buffer_store_dword v{vt1}, v{vt0}, {sr(S_WS,4)}, s{sA} offen sc1')
        a('s_mov_b64 exec, -1')
    a.label('L_ib')
    stamp('ibpub')
    while xq:
        emit(xq.pop(0))
    a(f's_mul_i32 s{sA}, s{sOWN}, 28672')
    a(f's_lshl_b32 s{sB}, s{sOFT}, 6')
    a(f's_add_u32 s{sA}, s{sA}, s{sB}')
    a(f'buffer_load_dwordx4 {vr(vXRES,4)}, v{vROW}, {sr(S_X,4)}, s{sA} offen')
    a(f'buffer_load_dwordx4 {vr(vXRES+4,4)}, v{vROW}, {sr(S_X,4)}, s{sA} offen offset:32')
    late_consts()
    a(f'v_lshrrev_b32 v{vt0}, 3, v{vRHO}')
    a(f'v_lshlrev_b32 v{vt0}, 10, v{vt0}')
    a(f'v_and_b32 v{vt1}, 7, v{vRHO}')
    a(f'v_lshl_add_u32 v{vt0}, v{vt1}, 7, v{vt0}')
    a(f'v_add_u32 v{vt0}, s{sH}, v{vt0}')
    a(f'v_bfe_u32 v{vt1}, v{vRHO}, 1, 3')
    a(f'v_xor_b32 v{vt1}, v{vt1}, v{vHI}')
    for q in range(4):
        a(f'v_xor_b32 v{220+q}, {2*q}, v{vt1}')
        a(f'v_lshl_add_u32 v{220+q}, v{220+q}, 4, v{vt0}')
    a(f'v_min_u32 v{vt0}, 20, v{vLANE}')
    a(f'v_mul_u32_u24 v{vt1}, 37, v{vt0}')
    a(f'v_lshrrev_b32 v{vt1}, 8, v{vt1}')
    a(f'v_mad_u32_u24 v{vt0}, v{vt1}, 49, v{vt0}')
    a(f's_lshr_b32 s{sA}, s{sHC}, 1')
    a(f's_mul_i32 s{sA}, s{sA}, 7')
    a(f'v_add_lshl_u32 v{vt2}, v{vt0}, s{sA}, 4')
    a.wait_vm_n(2)
    stamp('xland') if 'initprof' in OPT else None
    for ks in range(28):
        a(f'ds_read_b128 {vr(16+4*ks,4)}, v{220+(ks&3)} offset:{(ks>>2)*4096}')
    a.wait_lg0()
    a.barrier()
    a(f'v_mov_b32 v240, v{vt2}')
    x0_stats()
    stamp('stats')
    poll(S_WS, 240, f's{sREP}', nonzero=True)
    stamp('w1rdy')


def x0_stats():
    S0, S1, Q0, Q1 = 216, 217, 218, 219
    for v in (S0, S1, Q0, Q1):
        a(f'v_mov_b32 v{v}, 0')
    for i in range(0, 112, 2):
        a(f'v_dot2c_f32_bf16 v{S0}, s{sONES}, v{16+i}')
        a(f'v_dot2c_f32_bf16 v{Q0}, v{16+i}, v{16+i}')
        a(f'v_dot2c_f32_bf16 v{S1}, s{sONES}, v{17+i}')
        a(f'v_dot2c_f32_bf16 v{Q1}, v{17+i}, v{17+i}')
    a(f'v_add_f32 v{S0}, v{S0}, v{S1}')
    a(f'v_add_f32 v{S1}, v{Q0}, v{Q1}')
    emit(stats_finish(P1_XAUG))


vRSTD, vC2, vISTD = 248, 249, 250
P1_XAUG = 200


def stats_finish(xaug, SB=216):
    S, Q, t0, t1 = SB, SB + 1, SB + 2, SB + 3
    o = [f'v_mov_b32 v{t0}, v{S}',
         f'v_mov_b32 v{t1}, v{Q}',
         f'v_permlane32_swap_b32 v{S}, v{t0}',
         f'v_permlane32_swap_b32 v{Q}, v{t1}',
         f'v_add_f32 v{S}, v{S}, v{t0}',
         f'v_add_f32 v{Q}, v{Q}, v{t1}',
         f'v_mul_f32 v{S}, {INV448:#x}, v{S}',
         f'v_mul_f32 v{Q}, {INV448:#x}, v{Q}',
         f'v_fma_f32 v{Q}, -v{S}, v{S}, v{Q}',
         f'v_max_f32 v{Q}, 0, v{Q}',
         f'v_add_f32 v{Q}, {EPS5:#x}, v{Q}',
         f'v_rsq_f32 v{vRSTD}, v{Q}',
         f'v_cvt_pk_bf16_f32 v{xaug}, -v{S}, -v{S}',
         f'v_mul_f32 v{vISTD}, v{Q}, v{vRSTD}',
         f'v_mul_f32 v{vC2}, {LOG2E:#x}, v{vRSTD}']
    o += [f'v_mov_b32 v{xaug+i}, v{xaug}' for i in range(1, 4)]
    return o


def stats_sum(SB=216):
    o = []
    for i in range(1, 7):
        o.append(f'v_add_f32 v{SB}, v{SB}, v{SB+2*i}')
        o.append(f'v_add_f32 v{SB+1}, v{SB+1}, v{SB+2*i+1}')
    return o


def x_prep(fl, xb, stb):
    a(f'v_and_b32 v240, 15, v{vLANE}')
    a(f'v_min_u32 v240, 13, v240')
    a(f'v_lshlrev_b32 v240, 5, v240')
    a(f's_lshl_b32 s{sC}, s{sTILE1}, 9')
    a(f's_add_u32 s{sC}, s{sC}, {fl}')
    a(f's_lshl_b32 s{sD}, s{sTILE1}, 12')
    a(f's_add_u32 s{sD}, s{sD}, {stb}')
    a(f's_mul_i32 s{sE}, s{sTILE1}, {28*K}')
    a(f's_add_u32 s{sE}, s{sE}, {xb}')


def x_load(ks):
    if ks % 4 == 0 and ks:
        a(f's_add_u32 s{sE}, s{sE}, 4096')
    return a(f'buffer_load_dwordx4 {vr(16+4*ks,4)}, v{vL16}, {sr(S_DT,4)}, s{sE} offen offset:{(ks%4)*K} sc1')


def st_load(i, SB=216):
    return a(f'buffer_load_dwordx4 {vr(SB+4*i,4)}, v{vL16}, {sr(S_DT,4)}, s{sD} offen offset:{i*K} sc1')


def st_loads(SB=216):
    t = None
    for i in range(7):
        t = a(f'buffer_load_dwordx2 {vr(SB+2*i,2)}, v241, {sr(S_DT,4)}, s{sD} offen offset:{i*256} sc1')
    return t


def read_aug(dst, addr, tmp):
    a(f'v_add_u32 v{tmp}, {addr:#x}, v{vAUG}')
    a(f'ds_read2_b32 {vr(dst,2)}, v{tmp} offset0:0 offset1:32')
    return a(f'ds_read2_b32 {vr(dst+2,2)}, v{tmp} offset0:64 offset1:96')


def read_frag(dst, addr):
    v, off = lds_addr(addr)
    return a(f'ds_read_b128 {vr(dst,4)}, v{v} offset:{off}')


def wfrag_items(regfn, ssrc, lo, hi, va, vb, stmp):
    items = []
    for i, n in enumerate(range(lo, hi)):
        for b in range(2):
            it = []
            if i % 2 == 0 and b == 0:
                it.append(f's_add_u32 s{stmp}, s{ssrc}, {n*2048}')
            it.append(f'buffer_load_dwordx4 {regfn(n,b)}, v{(va,vb)[b]}, {sr(S_WS,4)}, s{stmp} offen offset:{(i%2)*2048} {WSC}')
            items.append(it)
    return items


def slot_addr_setup(va, vb):
    a(f's_and_b32 s{sA}, s{sW1K}, 0x400')
    a(f'v_add_u32 v{va}, s{sA}, v{vL16}')
    a(f'v_xor_b32 v{vb}, 0x400, v{va}')


def cost(x):
    op = x.split()[0]
    return 2 if op.startswith(('v_exp', 'v_rcp', 'v_rsq')) else 1


def drip(q, budget):
    while q and budget >= cost(q[0]):
        x = q.pop(0)
        budget -= cost(x)
        a(x)


CAP = int(OPT.get('cap', 6))
F1AT = int(OPT.get('f1at', 22))
PQSPLIT = int(OPT.get('pqsplit', 1))
WDP3 = int(OPT.get('wdp3', 40))
WDP1 = 8
PUBD2 = int(OPT.get('pubd2', 22))
PRET = int(OPT.get('pret', 1))
PUBD = int(OPT.get('pubd', 24))
S0T = int(OPT.get('s0t', 2))


def shadow(mem, vq, cap=None, pop=None):
    n0 = len(a.ins)
    for f in mem:
        if f is None:
            continue
        if callable(f):
            f()
        else:
            emit(f)
    budget = (CAP if cap is None else cap) - (len(a.ins) - n0)
    while vq and budget >= cost(vq[0]):
        budget -= cost(vq[0])
        if pop:
            pop()
        else:
            a(vq.pop(0))


def split_item(it):
    if it is None:
        return None, None
    return it[:-1], it[-1:]


ACK, ACV, ACQ = 128, 144, 160
P1WR = 176
P1RR2 = 216
p1D1, p1SA, p1SB = 204, 206, 207
p1RSW, p1RSR, p1OH = 208, 209, 210
LMODE = LRS + 1008


def FAST():
    return MODE['sfx'] != '_s'


def p1_setup(first):
    if not first:
        x_prep(F0 + LYB, *((X1, ST1) if FAST() else (X0 + LYB, ST0 + LYB)))
    slot_addr_setup(p1SA, p1SB)
    a(f'v_and_b32 v{p1OH}, 27, v{vLANE}')
    a(f'v_cmp_eq_u32 vcc, 26, v{p1OH}')
    a(f'v_cndmask_b32 v{p1OH}, 0, 1.0, vcc')
    a(f'v_mov_b32 v{p1OH+1}, v{p1OH}')
    a(f's_add_u32 s{sA}, s{sW4K}, {LKVS}')
    a(f'v_and_b32 v{p1RSW}, 31, v{vLANE}')
    a(f'v_lshl_add_u32 v{p1RSW}, v{p1RSW}, 2, s{sA}')
    a(f'v_lshrrev_b32 v{p1RSR}, 5, v{vLANE}')
    a(f'v_lshl_add_u32 v{p1RSR}, v{p1RSR}, 4, s{sA}')
    dma_setup(p1D1, sW3SRC, 0, LALPHA)


def phase1_kv(first):
    WR, XAUG, RR, RR2, KVD = P1WR, P1_XAUG, ACQ, P1RR2, 232
    vRSW, vRSR, vOH = p1RSW, p1RSR, p1OH
    PRE = XPRE
    xt, vq, st = {}, [], {}
    if first:
        dma_setup(205, sW1SRC, 0, 0)
        for it in dma_items(205, 0, 88, 2):
            emit(it)
        w1m = mark()
        p1_setup(True)
    else:
        poll(S_LY, 240, f's{sC}')
        stamp('p1poll')
        for ks in range(4):
            xt[ks] = x_load(ks)
        a(f's_add_u32 s{S_LY}, s{S_LY}, {LYB}')
        a(f's_addc_u32 s{S_LY+1}, s{S_LY+1}, 0')
        a.barrier()
    bg = ([] if first else code_touch(205, 212)) + dma_items(p1D1, LALPHA, 56, 2)
    rt = {}
    stage = (0, 8, 16, 24) if first else ()

    def ib_check():
        a.wait(st['ib'])
        check_or_poll(254, S_WS, vL16, f's{sH}', nonzero=True)
        a(f's_and_b32 s{sA}, s2, 7')
        a(f'v_and_b32 v252, 7, v{vLANE}')
        a(f'v_cmp_eq_u32 {sr(sC,2)}, s{sA}, v252')
        a(f'v_cmp_ne_u32 vcc, s{sXID}, v254')
        a(f's_and_b64 vcc, vcc, {sr(sC,2)}')
        a(f's_cselect_b32 s{sZW}, 1, 0')

    def rd(ks, tl):
        if ks > 28:
            return
        if ks in stage and tl == 0:
            need_ops = 22 if ks == 24 else 2 * ((2 * (ks + 8) + 7) // 8)
            a.wait(('vm', w1m[1] - 22 + need_ops))
            if ks == 16:
                ib_check()
            a.barrier()
        d = WR + 8 * (ks % 3) + 4 * tl
        addr = (2 * ks + tl) * K
        rt[ks] = read_frag(d, addr) if ks < 28 else read_aug(d, addr, 252 + tl)
    for ks in range(2):
        rd(ks, 0); rd(ks, 1)
    if not first:
        for ks in range(4, PRE):
            xt[ks] = x_load(ks)
    rr = {}

    def stl(i):
        st['s'] = st_load(i)

    def xl(ks):
        xt[ks] = x_load(ks)

    def ibl():
        a(f's_add_u32 s{sH}, s{sREP}, s{sW1K}')
        st['ib'] = a(f'buffer_load_dword v254, v{vL16}, {sr(S_WS,4)}, s{sH} offen sc1')

    def rs_write():
        a(f'ds_write2_b32 v{vRSW}, v{vRSTD}, v{vC2} offset0:0 offset1:32')

    def rs_read(j):
        a(f'ds_read_b128 {vr(RR+4*j,4)}, v{vRSR} offset:{32*j}')
        rr[0] = a(f'ds_read_b128 {vr(RR2+4*j,4)}, v{vRSR} offset:{128+32*j}')
    for ks in range(29):
        if not first and ks == 15:
            a.wait(st['s'])
            vq += stats_sum() + stats_finish(XAUG)
        a.wait(rt[ks], xt.get(ks))
        X = vr(16 + 4 * ks, 4) if ks < 28 else vr(XAUG, 4)
        c = (lambda r: '0' if ks == 0 else vr(r, 16))
        if not first and ks + PRE < 28:
            pre, main = None, (lambda k_=ks + PRE: xl(k_))
        elif first and ks == 5:
            pre, main = None, ibl
        else:
            pre, main = split_item(bg.pop(0) if bg and (ks >= 15 or not first) else None)
        a(f'{MF} {vr(ACK,16)}, {X}, {vr(WR+8*(ks%3),4)}, {c(ACK)}')
        shadow([pre, lambda: rd(ks + 2, 0), main], vq)
        a(f'{MF} {vr(ACV,16)}, {X}, {vr(WR+8*(ks%3)+4,4)}, {c(ACV)}')
        extra = None
        if not first and ks < 8 and ks % 2 == 0:
            extra = (lambda i=ks // 2: stl(i))
        if ks == 23:
            assert not vq
            extra = rs_write
        if 24 <= ks <= 27:
            extra = (lambda j=ks - 24: rs_read(j))
        shadow([lambda: rd(ks + 2, 1), extra], vq)
    stamp('p1kv')
    qt = {}

    def rq(ks):
        if ks > 28:
            return
        d = WR + 4 * (ks % 6)
        addr = (58 + ks) * K
        qt[ks] = read_frag(d, addr) if ks < 28 else read_aug(d, addr, 252)
    for ks in range(4):
        rq(ks)
    KS = LRS
    a(f's_lshl_b32 s{sB}, s{sHC}, 12')
    a(f's_add_u32 s{sB}, s{sB}, s{sW1K}')
    a.wait(rr[0])
    for r in range(0, 16, 2):
        a(f'v_pk_mul_f32 {vr(ACK+r,2)}, {vr(ACK+r,2)}, {vr(RR2+r,2)}')
    if first:
        bg += wfrag_items(lambda n_, b: ar(8 * n_ + 4 * b, 4), sWDSRC, 0, WDP1 // 2, p1SA, p1SB, sF)

    def bgp():
        if bg:
            emit(bg.pop(0))
    for r in range(16):
        a(f'v_exp_f32_e64 v{RR2+r}, v{ACK+r} clamp')
        a(f'v_max_f32 v{ACK+r}, 0, v{ACK+r}')
        if r % 5 == 0:
            bgp()
    for r in range(0, 16, 2):
        a(f'v_pk_fma_f32 {vr(ACV+r,2)}, {vr(ACV+r,2)}, {vr(RR+r,2)}, {vr(vOH,2)}')
        a(f'v_pk_fma_f32 {vr(RR2+r,2)}, {vr(ACK+r,2)}, {sr(sLN2,2)}, {vr(RR2+r,2)}')
    bgp()
    for r in range(0, 16, 2):
        a(f'v_pk_add_f32 {vr(RR2+r,2)}, {vr(RR2+r,2)}, {sr(sEPS6,2)}')
        a(f'v_cvt_pk_bf16_f32 v{ACV+r//2}, v{ACV+r}, v{ACV+r+1}')
    bgp()
    for m in range(4):
        a(f'v_cvt_pk_bf16_f32 v{ACK+m}, v{RR2+2*m}, v{RR2+2*m+1}')
    a(f'{MF} {vr(KVD,16)}, {vr(ACK,4)}, {vr(ACV,4)}, 0')
    for m in range(4, 8):
        a(f'v_cvt_pk_bf16_f32 v{ACK+m}, v{RR2+2*m}, v{RR2+2*m+1}')
    a(f's_add_u32 s{sA}, s{sW4K}, {LKVS}')
    a(f'v_add_u32 v{vRSW}, s{sA}, v{vL16}')
    a(f'{MF} {vr(KVD,16)}, {vr(ACK+4,4)}, {vr(ACV+4,4)}, {vr(KVD,16)}')
    a(f's_add_u32 s{sA}, s{sW1K}, {LKVS}')
    a(f'v_add_u32 v{vRSR}, s{sA}, v{vL4}')
    if first:
        a(f's_lshl_b32 s{sA}, s{sW}, 2')
        a(f's_add_u32 s{sA}, s{sA}, {LRS}')
        a(f'v_mov_b32 v252, s{sA}')
        a(f'v_mov_b32 v253, s{sZW}')
        a('ds_write_b32 v252, v253')
        a(f'v_mov_b32 v252, {LRS}')

    def qstep(ks, mem=(), vq_=None):
        a.wait(qt[ks])
        X = vr(16 + 4 * ks, 4) if ks < 28 else vr(XAUG, 4)
        a(f'{MF} {vr(ACQ,16)}, {vr(WR+4*(ks%6),4)}, {X}, {"0" if ks == 0 else vr(ACQ,16)}')
        shadow([lambda: rq(ks + 4)] + list(mem), vq_ if vq_ is not None else [])
    qstep(0, [bgp])
    for q in range(4):
        kw = a(f'ds_write_b128 v{vRSW}, {vr(KVD+4*q,4)} offset:{q*K}')
    qstep(1, [bgp])
    a.wait(kw)
    a.barrier()
    RED = RR2
    for wp in range(4):
        a(f'ds_read2st64_b32 {vr(RED+4*wp,2)}, v{vRSR} offset0:{16*wp} offset1:{16*wp+1}')
        t = a(f'ds_read2st64_b32 {vr(RED+4*wp+2,2)}, v{vRSR} offset0:{16*wp+2} offset1:{16*wp+3}')
    if first:
        mt = a(f'ds_read_b128 {vr(KVD,4)}, v252')
    qstep(2)
    a.wait(t)
    for i in range(4):
        a(f'v_add_f32 v{RED+i}, v{RED+i}, v{RED+4+i}')
        a(f'v_add_f32 v{RED+8+i}, v{RED+8+i}, v{RED+12+i}')
    for i in range(4):
        a(f'v_add_f32 v{RED+i}, v{RED+i}, v{RED+8+i}')
    for i in range(4):
        at = a(f'buffer_atomic_add_f32 v{RED+i}, v{vL4}, {sr(S_LY,4)}, s{sB} offen offset:{i*256}')
    stamp('p1atom')
    if first:
        a.wait(mt)
        a(f'v_or_b32 v{KVD}, v{KVD}, v{KVD+1}')
        a(f'v_or3_b32 v{KVD}, v{KVD}, v{KVD+2}, v{KVD+3}')
        a(f'v_readfirstlane_b32 s{sA}, v{KVD}')
        a(f's_cmp_lg_u32 s{sA}, 0')
        a('s_cbranch_scc1 L_slow')
    return dict(qstep=qstep, at=at, qt=qt, bg=bg, state=(a.vm_issued, a.vm_done, a.lg_issued, a.lg_done), qt0=dict(qt))


def phase1_q(ctx, first):
    qstep, at = ctx['qstep'], ctx['at']
    vRSW, vRSR, RR2 = p1RSW, p1RSR, P1RR2
    wo = wfrag_items(lambda n, b: vr(16 + 8 * n + 4 * b, 4), sWOSRC, 0, 8, p1SA, p1SB, sF)
    wo = list(ctx['bg']) + wo
    if first and FAST():
        wo = [[f's_cmp_ge_u32 s{sJ}, 28', f's_cselect_b32 s{sI}, {OOB:#x}, s{sOX}', f's_add_u32 s{sI}, s{sI}, {X1}',
               f'buffer_store_dwordx4 {vr(vXRES,4)}, v{vL16}, {sr(S_DT,4)}, s{sI} offen sc1'],
              [f'buffer_store_dwordx4 {vr(vXRES+4,4)}, v{vL16}, {sr(S_DT,4)}, s{sI} offen offset:1024 sc1']] + wo
    pqoff = PQ if (FAST() or first) else PQ + LYB
    vq = [f's_lshl_b32 s{sG}, s{sHC}, 8',
          f's_lshl_b32 s{sB}, s{sRBG}, 4',
          f's_add_u32 s{sG}, s{sG}, s{sB}',
          f's_add_u32 s{sG}, s{sG}, {F1}',
          f's_cmp_lg_u32 s{sW}, 3\ns_cselect_b32 s{sG}, {OOB:#x}, s{sG}',
          f's_lshl_b32 s{sA}, s{sTILE1}, 15',
          f's_lshl_b32 s{sB}, s{sHC}, 11',
          f's_add_u32 s{sA}, s{sA}, s{sB}',
          f's_add_u32 s{sA}, s{sA}, {pqoff}',
          f's_lshl_b32 s{sU}, s{sTILE1}, 9',
          f's_lshl_b32 s{sB}, s{sHC}, 5',
          f's_add_u32 s{sU}, s{sU}, s{sB}',
          f's_add_u32 s{sU}, s{sU}, {F1Q}',
          f'v_lshlrev_b32 v{vRSW}, 12, v{vLANE}',
          f'v_mov_b32 v{vRSR}, 1',
          f'v_mov_b32 v{vC2+2}, v{vC2}',
          f'v_mov_b32 v{ACK+7}, 0']
    for ks in range(3, 29):
        qstep(ks, [wo.pop(0)] if ks % 2 == 1 else [], vq)
        if ks == F1AT:
            a.wait(at)
            a.barrier()
            a('s_mov_b64 exec, 15')
            a(f'buffer_store_dword v{vRSR}, v{vRSW}, {sr(S_LY,4)}, s{sG} offen sc1')
            a('s_mov_b64 exec, -1')
            stamp('p1pub')
    a('s_nop 4')
    stamp('p1q')
    T = RR2
    for r in range(0, 14, 2):
        a(f'v_pk_mul_f32 {vr(ACQ+r,2)}, {vr(ACQ+r,2)}, {vr(vC2+1,2)} op_sel:[0,1] op_sel_hi:[1,1]')
    for r in range(14):
        a(f'v_exp_f32_e64 v{T+r}, v{ACQ+r} clamp')
        a(f'v_max_f32 v{ACQ+r}, 0, v{ACQ+r}')
    for r in range(0, 14, 2):
        a(f'v_pk_fma_f32 {vr(T+r,2)}, {vr(ACQ+r,2)}, {sr(sLN2,2)}, {vr(T+r,2)}')
    for r in range(0, 14, 2):
        a(f'v_pk_add_f32 {vr(T+r,2)}, {vr(T+r,2)}, {sr(sEPS6,2)}')
    for m in range(7):
        a(f'v_cvt_pk_bf16_f32 v{ACK+m}, v{T+2*m}, v{T+2*m+1}')
    sc = 'sc1' if first else LS()
    a(f'buffer_store_dwordx4 {vr(ACK,4)}, v{vL16}, {sr(S_DT,4)}, s{sA} offen {sc}')
    pst = a(f'buffer_store_dwordx4 {vr(ACK+4,4)}, v{vL16}, {sr(S_DT,4)}, s{sA} offen offset:1024 {sc}')
    if not FAST() and not first:
        a(f's_mov_b32 s{S_DT}, s{S_LY}')
        a(f's_mov_b32 s{S_DT+1}, s{S_LY+1}')
    for it in wo:
        emit(it)
    p2_setup()
    a.barrier()
    a.wait(pst)
    emit(flag_store(S_LY, f's{sU}'))
    stamp('p1end')


ACC0, ACC1 = 208, 224
AAC2, AAC3 = 224, 240


def accs(s):
    return [vr(ACC0, 16), vr(ACC1, 16), ar(AAC2, 16), ar(AAC3, 16)][s]


def red_setup(base, RA):
    o = []
    for s in (1, 2, 3):
        o += [f's_xor_b32 s{sA}, s{sW}, {s}',
              f's_mul_i32 s{sA}, s{sA}, 12288',
              f's_add_u32 s{sA}, s{sA}, {base + (s-1)*4096}',
              f'v_add_u32 v{RA+s}, s{sA}, v{vL16}']
    o += [f's_mul_i32 s{sA}, s{sW}, 12288',
          f's_add_u32 s{sA}, s{sA}, {base}',
          f'v_add_u32 v{RA}, s{sA}, v{vL16}']
    return o


def red_write(s, RA):
    o = []
    for q in range(4):
        d = [None, vr(ACC1 + 4 * q, 4), ar(AAC2 + 4 * q, 4), ar(AAC3 + 4 * q, 4)][s]
        o.append(f'ds_write_b128 v{RA+s}, {d} offset:{q*K}')
    return o


sOX, sOS, sOF = 97, 98, 99


def own_consts():
    a(f's_mul_i32 s{sOX}, s{sOWN}, {28*K}')
    a(f's_lshl_b32 s{sB}, s{sOFT}, 11')
    a(f's_add_u32 s{sOX}, s{sOX}, s{sB}')
    a(f's_lshl_b32 s{sOS}, s{sOWN}, 12')
    a(f's_cmp_ge_u32 s{sOFT}, 7')
    a(f's_cselect_b32 s{sA}, 7, 0')
    a(f's_cselect_b32 s{sB}, 512, 0')
    a(f's_add_u32 s{sOS}, s{sOS}, s{sB}')
    a(f's_sub_u32 s{sA}, s{sOFT}, s{sA}')
    a(f's_lshr_b32 s{sB}, s{sA}, 1')
    a(f's_lshl_b32 s{sB}, s{sB}, 10')
    a(f's_add_u32 s{sOS}, s{sOS}, s{sB}')
    a(f's_and_b32 s{sA}, s{sA}, 1')
    a(f's_lshl_b32 s{sA}, s{sA}, 3')
    a(f's_add_u32 s{sOS}, s{sOS}, s{sA}')
    a(f's_lshl_b32 s{sOF}, s{sOWN}, 9')
    a(f's_lshl_b32 s{sB}, s{sOFT}, 5')
    a(f's_add_u32 s{sOF}, s{sOF}, s{sB}')


def res_unpack(RU):
    o = []
    for m in range(8):
        o.append(f'v_lshlrev_b32 v{RU+2*m}, 16, v{vXRES+m}')
        o.append(f'v_and_b32 v{RU+2*m+1}, 0xffff0000, v{vXRES+m}')
    return o


def red_finish(final, RB, RU, RA, nm, xb, stb, flb, sc, mid):
    a.wait_lg0()
    a.barrier()
    toks = []
    for i in range(12):
        toks.append(a(f'ds_read_b128 {vr(RB+4*i,4)}, v{RA} offset:{i*K}'))
    if final is not True:
        a(f's_add_u32 s{sA}, s{sOX}, {xb}')
        a(f's_add_u32 s{sB}, s{sOS}, {stb}')
        a(f's_add_u32 s{sZW}, s{sOF}, {flb}')
    for r in range(0, 16, 2):
        a(f'v_pk_add_f32 {vr(ACC0+r,2)}, {vr(ACC0+r,2)}, {vr(RU+r,2)}')
    S, Q, t0, t1, tl = RU, RU + 1, RU + 2, RU + 3, RU + 4
    if final is not True:
        a(f'v_mov_b32 v{S}, 0')
        a(f'v_mov_b32 v{Q}, 0')
    for s in range(3):
        a.wait(toks[4 * s + 3])
        for r in range(0, 16, 2):
            a(f'v_pk_add_f32 {vr(ACC0+r,2)}, {vr(ACC0+r,2)}, {vr(RB+16*s+r,2)}')
    for m in range(8):
        a(f'v_cvt_pk_bf16_f32 v{vXRES+m}, v{ACC0+2*m}, v{ACC0+2*m+1}')
    if final is True:
        final_store()
        return
    if final == 'dyn':
        a(f's_cmp_lg_u32 s{sL}, 0')
        a('s_cbranch_scc1 ' + LB_('L_final'))
    a(f'buffer_store_dwordx4 {vr(vXRES,4)}, v{vL16}, {sr(S_DT,4)}, s{sA} offen {sc}')
    a(f'buffer_store_dwordx4 {vr(vXRES+4,4)}, v{vL16}, {sr(S_DT,4)}, s{sA} offen offset:1024 {sc}')
    for m in range(8):
        a(f'v_dot2c_f32_bf16 v{S}, s{sONES}, v{vXRES+m}')
        a(f'v_dot2c_f32_bf16 v{Q}, v{vXRES+m}, v{vXRES+m}')
    a(f'v_mov_b32 v{t0}, v{S}')
    a(f'v_mov_b32 v{t1}, v{Q}')
    a(f'v_permlane32_swap_b32 v{S}, v{t0}')
    a(f'v_permlane32_swap_b32 v{Q}, v{t1}')
    a(f'v_pk_add_f32 {vr(S,2)}, {vr(S,2)}, {vr(t0,2)}')
    a('s_mov_b32 exec_hi, 0')
    lt = a(f'buffer_store_dwordx2 {vr(S,2)}, v{vL16}, {sr(S_DT,4)}, s{sB} offen {sc}')
    a('s_mov_b64 exec, -1')
    stamp(nm + 'st')
    mid()
    a.wait(lt)
    emit(flag_store(S_LY, f's{sZW}'))


def final_store():
    a(f'v_and_b32 v18, 31, v{vLANE}')
    a(f'v_lshrrev_b32 v19, 5, v{vLANE}')
    a(f'v_mul_u32_u24 v{vROW}, 896, v18')
    a(f'v_lshl_add_u32 v{vROW}, v19, 4, v{vROW}')
    a(f's_mul_i32 s{sA}, s{sOWN}, 28672')
    a(f's_lshl_b32 s{sB}, s{sOFT}, 6')
    a(f's_add_u32 s{sA}, s{sA}, s{sB}')
    a(f'buffer_store_dwordx4 {vr(vXRES,4)}, v{vROW}, {sr(S_OUT,4)}, s{sA} offen')
    a(f'buffer_store_dwordx4 {vr(vXRES+4,4)}, v{vROW}, {sr(S_OUT,4)}, s{sA} offen offset:32')


def p2_setup():
    dma_setup(vROW, sW3SRC, 56 * K, LBETA)
    a(f'v_and_b32 v240, 3, v{vLANE}')
    a(f'v_lshlrev_b32 v240, 5, v240')
    a(f'v_bfe_u32 v241, v{vLANE}, 2, 1')
    a(f'v_lshl_add_u32 v240, v241, 9, v240')
    a(f's_lshl_b32 s{sC}, s{sTILE2}, 9')
    a(f's_lshl_b32 s{sA}, s{sW}, 7')
    a(f's_add_u32 s{sC}, s{sC}, s{sA}')
    a(f's_add_u32 s{sC}, s{sC}, {F1Q}')
    a(f's_lshl_b32 s{sE}, s{sOWN}, 15')
    a(f's_lshl_b32 s{sA}, s{sW}, 13')
    a(f's_add_u32 s{sE}, s{sE}, s{sA}')
    a(f's_add_u32 s{sE}, s{sE}, {PQ}')
    a(f's_xor_b32 s{sF}, s{sE}, 0x8000')
    a(f's_add_u32 s{sH}, s{sREP}, s{sW1K}')
    a(f's_add_u32 s{sH}, s{sH}, {F1}')
    a(f's_lshl_b32 s{sD}, s{sW}, 14')


def phase2(L):
    WO, PQR, KVR = 16, 80, 144
    ODS = (240, 160)
    KB = (144, 152, 176, 192)
    tag = f'{L}'
    beta = dma_items(vROW, LBETA, 56, 2)
    for it in code_touch(205, 206):
        emit(it)
    a(f's_cmp_ge_u32 s{sJ}, 28')
    with cold('s_cbranch_scc1', back=LB_('L_p2skip' + tag)):
        for it in beta:
            emit(it)
        p3_setup(L)
    with cond():
        poll(S_LY, 240, f's{sC}')
        stamp('p2pq')
        pt = {}
        for aa, s in ((1, sF), (0, sE)):
            for hl in range(4):
                for ks in range(2):
                    pt[hl, aa] = a(f'buffer_load_dwordx4 {vr(PQR+16*hl+8*aa+4*ks,4)}, v{vL16}, {sr(S_DT,4)}, s{s} offen offset:{(hl%2)*2048+ks*K} sc1')
                if hl == 1:
                    a(f's_add_u32 s{s}, s{s}, 4096')
                if aa == 1 and hl == 1:
                    fchk = a(f'buffer_load_dword v253, v{vL16}, {sr(S_LY,4)}, s{sH} offen sc1')
                if aa == 0 and hl == PQSPLIT:
                    break
        a.wait(fchk)
        check_or_poll(253, S_LY, vL16, f's{sH}', sleep=0)
        stamp('p2poll')
        kt = {}
        lq = []

        def kvl(hl, q):
            kt[hl] = a(f'buffer_load_dwordx4 {vr(KVR+16*hl+4*q,4)}, v{vL16}, {sr(S_LY,4)}, s{sD} offen offset:{q*K} sc1')
            if q == 3:
                a(f's_add_u32 s{sD}, s{sD}, 4096')

        def pql(hl, ks):
            pt[hl, 0] = a(f'buffer_load_dwordx4 {vr(PQR+16*hl+4*ks,4)}, v{vL16}, {sr(S_DT,4)}, s{sE} offen offset:{(hl%2)*2048+ks*K} sc1')
            if hl == 1 and ks == 1:
                a(f's_add_u32 s{sE}, s{sE}, 4096')
        for hl in range(4):
            for q in range(4):
                kvl(hl, q)
        for hl in range(PQSPLIT + 1, 4):
            for ks in range(2):
                lq.append(lambda h_=hl, k_=ks: pql(h_, k_))
        beta = lq + beta

        def cvt(hl):
            return [f'v_cvt_pk_bf16_f32 v{KB[hl]+m}, v{KVR+16*hl+2*m}, v{KVR+16*hl+2*m+1}' for m in range(8)]
        units = [(hl, aa) for aa in (1, 0) for hl in range(4)]

        def oM(u):
            hl, aa = units[u]
            D = vr(ODS[u % 2], 16)
            P = PQR + 16 * hl + 8 * aa
            return [f'{MF} {D}, {vr(KB[hl],4)}, {vr(P,4)}, 0',
                    f'{MF} {D}, {vr(KB[hl]+4,4)}, {vr(P+4,4)}, {D}']

        def scale(u):
            hl, aa = units[u]
            D = ODS[u % 2]
            P = PQR + 16 * hl + 8 * aa
            o = [f'v_add_f32 v{D+14}, s{sEPS6}, v{D+14}',
                 f'v_rcp_f32 v{D+14}, v{D+14}',
                 f'v_mov_b32 v{P+7}, 0']
            for m in range(7):
                o.append(f'v_mul_f32 v{D+2*m}, v{D+2*m}, v{D+14}')
                o.append(f'v_mul_f32 v{D+2*m+1}, v{D+2*m+1}, v{D+14}')
                o.append(f'v_cvt_pk_bf16_f32 v{P+m}, v{D+2*m}, v{D+2*m+1}')
            return o

        def woM(u, bs):
            hl, aa = units[u]
            P = PQR + 16 * hl + 8 * aa
            o = []
            for b in bs:
                for ks in range(2):
                    D = accs(2 * aa + b)
                    c = '0' if (hl == 0 and ks == 0) else D
                    o.append(f'{MF} {D}, {vr(WO+16*hl+8*ks+4*b,4)}, {vr(P+4*ks,4)}, {c}')
            return o
        RU, RA = 160, 184
        a.wait(kt[0])
        emit(cvt(0))
        emit(oM(0))
        a.wait(kt[1])
        emit(cvt(1))
        m1 = oM(1)
        vs = scale(0)
        a(m1[0]); shadow([], vs)
        a(m1[1]); emit(vs)
        wr = []
        for u in range(9):
            if u < 4:
                ms = woM(u, (0, 1))
            elif u < 8:
                ms = woM(u, (1,)) + (woM(u - 2, (0,)) if u >= 6 else [])
            else:
                ms = woM(6, (0,)) + woM(7, (0,))
            vs = scale(u + 1) if u + 1 < 8 else []
            if u < 2:
                a.wait(kt[u + 2])
                vs = cvt(u + 2) + vs
            if u == 2:
                vs = vs + red_setup(LB, RA)[:8]
            if u == 3:
                vs = vs + red_setup(LB, RA)[8:]
            if u == 4:
                wr = red_write(2, RA) + red_write(3, RA)
            if u == 7:
                vs = res_unpack(RU)
            if u == 8:
                wr = wr + red_write(1, RA)
            if u + 2 < 8:
                ms = ms[:2] + ['W'] + oM(u + 2) + ms[2:]
            k_ = 0
            for m in ms:
                if m == 'W':
                    a.wait(pt[units[u + 2]])
                    if u < 2:
                        while any(x in vs for x in cvt(u + 2)):
                            a(vs.pop(0))
                    continue
                a(m)
                mem = []
                if beta and k_ % 2 == 0:
                    mem.append(beta.pop(0))
                if wr and (k_ % 2 == 1 or u == 8) and not (u in (4, 8) and k_ == 0):
                    mem.append(wr[:1]); wr = wr[1:]
                shadow(mem, vs)
                k_ += 1
            emit(vs)
        assert not beta
        stamp('p2mfma')
        emit(wr)
        sc = LS()
        red_finish(False, 80, RU, RA, 'p2', X1, ST1, F2, sc, lambda: p3_setup(L))
    a.label(LB_('L_p2skip' + tag))
    stamp('p2end')


p3D1, p3D3, p3SA, p3SB = 228, 229, 240, 241
p3D2 = 243
p3FL, p3HA, p3HB, p3FV = 244, 245, 246, 247


def p3_setup(L):
    vFL, vHA, vHB = p3FL, p3HA, p3HB
    x_prep(F2, X1, ST1)
    dma_setup(p3D3, sW3SRC, 112 * K, LB)
    dma_setup(p3D1, sW3SRC, 147 * K, LALPHA)
    if L is None:
        a(f's_cmp_lg_u32 s{sL}, 0')
        a(f's_cselect_b32 s{sA}, {OOB:#x}, s{sW1SRC}')
        a(f'v_add_u32 v{p3D2}, s{sA}, v{vL16}')
    elif L == 0:
        a(f'v_add_u32 v{p3D2}, s{sW1SRC}, v{vL16}')
    a(f's_mul_i32 s{sG}, s{sTILE1}, {112*K}')
    a(f's_mul_i32 s{sA}, s{sHC}, {7*K}')
    a(f's_add_u32 s{sG}, s{sG}, s{sA}')
    a(f's_add_u32 s{sG}, s{sG}, {HB}')
    a(f's_add_u32 s{sH}, s{sG}, 4096')
    a(f's_lshl_b32 s{sU}, s{sTILE1}, 9')
    a(f's_lshl_b32 s{sA}, s{sHC}, 2')
    a(f's_add_u32 s{sU}, s{sU}, s{sA}')
    a(f's_add_u32 s{sU}, s{sU}, {F3}')


def p4_addr():
    vFL, vHA, vHB = p3FL, p3HA, p3HB
    return [f'v_and_b32 v{vFL}, 3, v{vLANE}',
            f'v_lshlrev_b32 v{vFL}, 2, v{vFL}',
            f'v_bfe_u32 v{vHA}, v{vLANE}, 2, 1',
            f'v_lshl_add_u32 v{vFL}, v{vHA}, 9, v{vFL}',
            f's_lshl_b32 s{sA}, s{sTILE2}, 9',
            f's_lshl_b32 s{sB}, s{sW}, 4',
            f's_add_u32 s{sA}, s{sA}, s{sB}',
            f's_add_u32 s85, s{sA}, {F3}',
            f'v_add_u32 v{vFL}, s85, v{vFL}',
            f's_mul_i32 s{sB}, s{sW}, {28*K}',
            f's_add_u32 s{sB}, s{sB}, {HB}',
            f's_mul_i32 s{sA}, s{sOWN}, {112*K}',
            f's_add_u32 s{sA}, s{sA}, s{sB}',
            f'v_add_u32 v{vHA}, s{sA}, v{vL16}',
            f's_xor_b32 s{sA}, s{sOWN}, 1',
            f's_mul_i32 s{sA}, s{sA}, {112*K}',
            f's_add_u32 s{sA}, s{sA}, s{sB}',
            f'v_add_u32 v{vHB}, s{sA}, v{vL16}']


def phase34(L):
    ACC = 128
    WR, NW = 192, 8
    SB = 176
    XAUG = 224
    vD1, vD3, vSA, vSB, vD2 = p3D1, p3D3, p3SA, p3SB, p3D2
    vFL, vHA, vHB, vFV = p3FL, p3HA, p3HB, p3FV
    vFV2 = 242
    PRE = XPRE
    HR, NH = 16, 28
    tag = f'{L}'
    LOOK = 6
    steps = [(t, ks) for ks in range(29) for t in range(2)]
    for t in range(2, 7):
        steps += [(t, ks) for ks in range(29)]

    def addr(t, ks):
        if ks == 28 and t < 3:
            return LBETA + t * K
        if t < 2:
            return LALPHA + (2 * ks + t) * K
        if t == 2:
            return LBETA + (3 + ks) * K
        if t == 3:
            return LBETA + (31 + ks) * K
        if t == 4:
            return LB + (4 + ks) * K
        if t == 5:
            return LALPHA + ks * K
        return LALPHA + (29 + ks) * K if ks < 27 else LB + (33 + ks - 27) * K
    n = len(steps)
    accof = {0: 0, 1: 1, 2: 2, 3: 3, 4: 0, 5: 1, 6: 2}
    rt, xt, hst, ht, chk = {}, {}, {}, {}, {}

    def hsc(t):
        return LS() if (HT and (L == 1 or HT > 1)) else 'sc1'

    def epi(t, D=None, Sx=None):
        Sx = ACC + 16 * accof[t] if Sx is None else Sx
        D = Sx if D is None else D
        o = []
        for r in range(8):
            o.append(f'v_mul_f32 v{D+r}, v{Sx+r}, v{vC2}')
        for r in range(8):
            o.append(f'v_exp_f32_e64 v{D+r}, -v{D+r}')
            if r >= 2:
                o.append(f'v_fma_f32 v{D+r-2}, v{D+r-2}, v{vISTD}, v{vISTD}')
        for r in (6, 7):
            o.append(f'v_fma_f32 v{D+r}, v{D+r}, v{vISTD}, v{vISTD}')
        for r in range(8):
            o.append(f'v_rcp_f32 v{D+r}, v{D+r}')
            if r >= 2:
                o.append(f'v_mul_f32 v{D+r-2}, v{D+r-2}, v{Sx+8+r-2}')
        for r in (6, 7):
            o.append(f'v_mul_f32 v{D+r}, v{D+r}, v{Sx+8+r}')
        for m in range(4):
            o.append(f'v_cvt_pk_bf16_f32 v{D+8+m}, v{D+2*m}, v{D+2*m+1}')
        s = sG if t < 4 else sH
        o.append(f'buffer_store_dwordx4 {vr(D+8,4)}, v{vL16}, {sr(S_DT,4)}, s{s} offen offset:{(t%4)*K} {hsc(t)} ; H{t}')
        return o

    def issue_rd(i):
        if i >= n:
            return
        t, ks = steps[i]
        d = WR + 4 * (i % NW)
        rt[i] = read_frag(d, addr(t, ks)) if ks < 28 else read_aug(d, addr(t, ks), 251 + (i % 3))

    def flag_ld(stg):
        if stg == 0 or not FAST():
            chk[stg] = a(f'buffer_load_dword v{vFV}, v{vFL}, {sr(S_LY,4)}, 0 offen offset:{64*stg} sc1')
        else:
            a(f's_buffer_load_dwordx4 s[76:79], {sr(S_LY,4)}, s85 offset:{64*stg}')
            a(f's_buffer_load_dwordx4 s[80:83], {sr(S_LY,4)}, s85 offset:{64*stg+512}')

    def flag_chk(stg):
        if FAST():
            a('s_waitcnt lgkmcnt(0)')
            a('s_and_b64 s[76:77], s[76:77], s[78:79]')
            a('s_and_b64 s[80:81], s[80:81], s[82:83]')
            a('s_and_b64 s[76:77], s[76:77], s[80:81]')
            a('s_and_b32 s76, s76, s77')
        else:
            a.wait(chk[stg])
            a(f'v_cmp_ne_u32 vcc, 1, v{vFV}')
            a('s_cmp_eq_u64 vcc, 0')
        assert 6 in hst
        with cold('s_cbranch_scc0'):
            a.wait_vm0()
            emit(flag_store(S_LY, f's{sU}', imm=128))
            emit(flag_store(S_LY, f's{sU}', imm=192))
            poll(S_LY, vFL, 0, imm=64 * stg)

    CHK = {24: 1, 40: 2, 48: 3}

    def hld(idx, chkflags=True):
        if idx >= 56:
            return
        if chkflags and idx + 4 in CHK:
            flag_ld(CHK[idx + 4])
        if chkflags and idx in CHK:
            flag_chk(CHK[idx])
        n_, aa = idx // 2, idx % 2
        t, cc = n_ // 4, n_ % 4
        if aa == 0:
            a(f's_mov_b32 s{sE}, {(cc*7+t)*K}')
        ht[idx] = a(f'buffer_load_dwordx4 {vr(HR+4*(idx%NH),4)}, v{(vHA,vHB)[aa]}, {sr(S_DT,4)}, s{sE} offen sc1')

    a.wait_lg0()
    poll(S_LY, 240, f's{sC}')
    stamp('p3poll')
    for ks in range(4):
        xt[ks] = x_load(ks)
    a.barrier()
    for i in range(LOOK):
        issue_rd(i)
    for ks in range(4, PRE):
        xt[ks] = x_load(ks)
    fill, owner = [], []
    done_at = {}
    wd = [] if L == 1 else wfrag_items(lambda n_, b: ar(8 * n_ + 4 * b, 4), sWDSRC, WDP1 // 2, 28, vSA, vSB, sF)
    ft = [[f'v_and_b32 v233, 0x80, v{vL4}', f'buffer_load_dword v233, v233, {sr(S_LY,4)}, s{sU} offen sc1']] if FT else []
    if HT and FAST() and (L == 1 or HT > 1):
        ft += [[f'v_min_u32 v234, 55, v{vLANE}', f'v_lshlrev_b32 v234, 7, v234', f'buffer_load_dword v234, v234, {sr(S_DT,4)}, s{sG} offen sc1']]
    bg = dma_items(vD3, LB, 36, 1) + ['M3'] + ft + wd[:WDP3]
    wd4 = wd[WDP3:]
    marks = {}
    cur = [0]

    def pop():
        x = fill.pop(0); o = owner.pop(0)
        t = a(x)
        if '; H' in x:
            hst[o] = (t, cur[0])

    def pub(stg, last_tile):
        a.wait(hst[last_tile][0])
        emit(flag_store(S_LY, f's{sU}', imm=64 * stg))

    def xl(ks):
        xt[ks] = x_load(ks)

    def next_bg():
        while bg and isinstance(bg[0], str):
            marks[bg.pop(0)] = mark()
        return bg.pop(0) if bg else None
    pubs = [(0, 2), (1, 4)]
    for i, (t, ks) in enumerate(steps):
        cur[0] = i
        if i == 34:
            a.wait(chk['st'])
            s_ = [f's_and_b32 s{sA}, s{sW1K}, 0x400', f'v_add_u32 v{vSA}, s{sA}, v{vL16}', f'v_xor_b32 v{vSB}, 0x400, v{vSA}'] + \
                stats_sum(SB) + stats_finish(XAUG, SB) + p4_addr()
            fill += s_; owner += [-1] * len(s_)
        stamp(f'i{i}', fine=True) if i in (1, 30, 57, 87, 116, 145, 174) else None
        if i % 2 == 0:
            a.wait(rt[min(i + 1, n - 1)], xt.get(ks))
        if i == 56:
            a.barrier()
            k3 = bg.index('M3') + 1 if 'M3' in bg else 0
            bg = bg[:k3] + dma_items(vD1, LALPHA, 56, 2) + ['M4'] + code_touch(232, 233) + bg[k3:]
        if i + LOOK == 112:
            a.wait(marks['M3'])
            a.barrier()
        if i + LOOK == 145:
            a.wait(marks['M4'])
            a.barrier()
            bg = code_touch(232, 233) + bg
        D = vr(ACC + 16 * accof[t], 16)
        if ks == 0 and t >= 4:
            assert (t - 4) not in owner
        if ks == 28:
            assert -1 not in owner
        X = vr(16 + 4 * ks, 4) if ks < 28 else vr(XAUG, 4)
        a(f'{MF} {D}, {vr(WR+4*(i%NW),4)}, {X}, {"0" if ks == 0 else D}')
        if ks == 28:
            done_at[t] = i
        for tt, di in list(done_at.items()):
            if i >= di + 2:
                e = epi(tt)
                fill += e; owner += [tt] * len(e)
                del done_at[tt]
        pre = main = None
        if t == 0 and ks + PRE < 28:
            main = (lambda k_=ks + PRE: xl(k_))
        elif t == 1 and ks < 8 and ks % 2 == 0:
            main = (lambda k_=ks // 2: chk.__setitem__('st', st_load(k_, SB)))
        elif t == 6:
            if ks % 2 == 1:
                main = (lambda k_=ks // 2: hld(k_))
        elif i == 173:
            main = lambda: flag_ld(0)
        elif i % 2 == 0 and i >= 2 * (28 - PRE):
            pre, main = split_item(next_bg())
        extra = None
        if fill and '; H' in fill[0]:
            extra = pop
        elif pubs and pubs[0][1] in hst and i >= hst[pubs[0][1]][1] + PUBD and i % 2 == 1:
            extra = (lambda p=pubs.pop(0): pub(*p))
        n0 = len(a.ins)
        for f in (pre, lambda: issue_rd(i + LOOK), main, extra):
            if f is None:
                continue
            f() if callable(f) else emit(f)
        budget = CAP - (len(a.ins) - n0) - (i % 2)
        while fill and '; H' not in fill[0] and budget >= cost(fill[0]):
            budget -= cost(fill[0])
            pop()
    assert not pubs and next_bg() is None, len(bg)
    print('P3: h stores at steps', {t: v[1] for t, v in hst.items()}, 'left', len(fill))
    assert not fill and 5 in hst
    stamp('p3mfma')

    RU, RA = 192, 128
    w1 = [] if L == 1 else dma_items(vD2, 0, 88, 2)
    nxt = (lambda: p1_setup(False)) if L != 1 else (lambda: None)
    a(f's_cmp_ge_u32 s{sJ}, 28')
    with cold('s_cbranch_scc1', back=LB_('L_p4skip' + tag)):
        emit(epi(6))
        pub(2, 5)
        a.barrier()
        a.wait_vm0()
        emit(flag_store(S_LY, f's{sU}', imm=192))
        for it in w1:
            emit(it)
        nxt()
    with cond():
        a.wait(chk[0])
        a(f'v_cmp_ne_u32 vcc, 1, v{vFV}')
        a('s_cmp_eq_u64 vcc, 0')
        saved = dict(ht)
        with cold('s_cbranch_scc0'):
            emit(epi(6, D=ACC + 48))
            a.wait_vm0()
            emit(flag_store(S_LY, f's{sU}', imm=128))
            emit(flag_store(S_LY, f's{sU}', imm=192))
            poll(S_LY, vFL, 0, imm=0)
            for idx in range(14):
                hld(idx, False)
            a.wait_vm0()
        ht.update(saved)
        fill = epi(6)
        owner = [6] * len(fill)
        later = red_setup(LALPHA, RA) + res_unpack(RU)
        TAIL = 8
        nld = [14]
        todo = ['pub2', 'pub3']
        wt = {}

        def mf(n_, s):
            aa, b = s >> 1, s & 1
            D = accs(s)
            a(f'{MF} {D}, {ar(8*n_+4*b,4)}, {vr(HR+4*((2*n_+aa)%NH),4)}, {"0" if n_ == 0 else D}')

        def sh(step, load):
            cur[0] = step
            n0 = len(a.ins)
            if load:
                if nld[0] < 56:
                    hld(nld[0]); nld[0] += 1
                elif w1:
                    emit(w1.pop(0))
            elif todo and todo[0] == 'pub2' and step >= 13:
                pub(2, 5); todo.pop(0)
            elif todo and todo[0] == 'pub3' and 6 in hst and step >= hst[6][1] + PUBD2:
                pub(3, 6); todo.pop(0)
                fill.extend(later); owner.extend([-2] * len(later))
            elif wd4:
                wt[0] = emit(wd4.pop(0))
            if step >= 1:
                if fill and '; H' in fill[0]:
                    pop()
                budget = CAP - (len(a.ins) - n0)
                while fill and '; H' not in fill[0] and budget >= cost(fill[0]):
                    budget -= cost(fill[0])
                    pop()
        for n_ in range(28 - TAIL):
            if n_ == 12:
                a.barrier()
            stamp(f'n{n_}') if ('p4prof' in OPT and n_ in (2, 4, 8, 13, 15, 17)) else None
            a.wait(ht[2 * n_])
            mf(n_, 0); sh(4 * n_, True)
            mf(n_, 1); sh(4 * n_ + 1, False)
            a.wait(ht[2 * n_ + 1])
            mf(n_, 2); sh(4 * n_ + 2, True)
            mf(n_, 3); sh(4 * n_ + 3, 10 <= n_ < 16)
        assert nld[0] == 56 and not fill and not todo and not wd4
        stamp('n20') if 'p4prof' in OPT else None
        a.wait(wt.get(0))
        pend = []
        for s in (3, 2, 1, 0):
            for k_, n_ in enumerate(range(28 - TAIL, 28)):
                a.wait(ht[2 * n_ + 1])
                mf(n_, s)
                if k_ % 2 == 1 and pend:
                    emit(pend[:1]); pend = pend[1:]
                elif w1 and k_ % 2 == 0:
                    emit(w1.pop(0))
            if s > 0:
                pend = red_write(s, RA)
        stamp('p4mfma')

        def mid():
            for it in w1:
                emit(it)
            nxt()
        final = {0: False, 1: True, None: 'dyn'}[L]
        xb, stb = (X1, ST1) if FAST() else (X0 + LYB, ST0 + LYB)
        red_finish(final, 16, RU, RA, 'p4', xb, stb, F0 + LYB, LS(), mid)
    a.label(LB_('L_p4skip' + tag))
    if L != 1:
        stamp('p4end')


def restore(ctx):
    a.vm_issued, a.vm_done, a.lg_issued, a.lg_done = ctx['state']
    ctx['qt'].clear(); ctx['qt'].update(ctx['qt0'])


def build():
    prologue()
    init_phase()
    own_consts()
    MODE.update(sc='', sfx='')
    ctx = phase1_kv(True)
    phase1_q(ctx, True)
    phase2(0)
    phase34(0)
    c2 = phase1_kv(False)
    phase1_q(c2, False)
    phase2(1)
    phase34(1)
    a.label('L_done')
    if PROFILE:
        stamp('end')
        a(f's_lshl_b32 s{sA}, s2, 2')
        a(f's_add_u32 s{sA}, s{sA}, s{sW}')
        a(f's_lshl_b32 s{sA}, s{sA}, 8')
        a(f's_add_u32 s{sA}, s{sA}, {PROF}')
        a(f'buffer_store_dword v{vPROF}, v{vL4}, {sr(S_WS,4)}, s{sA} offen')
        if 'dbgout' in OPT:
            a(f's_lshl_b32 s{sA}, s2, 2')
            a(f's_add_u32 s{sA}, s{sA}, s{sW}')
            a(f's_cmp_lg_u32 s{sA}, {77*4+1}')
            a('s_cbranch_scc1 L_end')
            a(f'v_readfirstlane_b32 s{sA}, v{vPROF}')
            a(f'v_subrev_u32 v{vPROF}, s{sA}, v{vPROF}')
            a(f'v_lshlrev_b32 v20, 1, v{vLANE}')
            a(f'v_subrev_u32 v20, {2*int(OPT["dbgout"])}, v20')
            a(f'buffer_store_short v{vPROF}, v20, {sr(S_DBG,4)}, 0 offen sc1')
    a.label('L_end')
    a('s_endpgm')
    a.flush_cold()
    a.label('L_codeend')
    keep = list(STAMPS)
    a.label('L_slow')
    MODE.update(sc='sc1', sfx='_s')
    restore(ctx)
    a('s_nop 7')
    phase1_q(ctx, True)
    a.label('L_layer_s')
    a('s_nop 7')
    phase2(None)
    phase34(None)
    a(f's_cmp_lg_u32 s{sL}, 0')
    a('s_cbranch_scc1 L_done')
    a(f's_mov_b32 s{sL}, 1')
    c2 = phase1_kv(False)
    phase1_q(c2, False)
    a('s_branch L_layer_s')
    a.label('L_final_s')
    final_store()
    a('s_branch L_done')
    a.flush_cold()
    STAMPS[:] = keep


build()
hdr = open('cdna_kernels/' + NAME + '.s.ref').read().split('; Override launch')[0]
out = hdr + f"""; @launch grid=(256,1,1) block=(256,1,1) lds={LDS_BYTES}
.amdgcn_target "amdgcn-amd-amdhsa--gfx950"
.text
.globl {NAME}_kernel
.p2align 8
.type {NAME}_kernel,@function
{NAME}_kernel:
{a.text()}
.section .rodata,"a"
.p2align 6
.amdhsa_kernel {NAME}_kernel
  .amdhsa_next_free_vgpr 512
  .amdhsa_next_free_sgpr 102
  .amdhsa_accum_offset 256
  .amdhsa_group_segment_fixed_size 0
  .amdhsa_kernarg_size 80
  .amdhsa_user_sgpr_count 2
  .amdhsa_user_sgpr_kernarg_segment_ptr 1
  .amdhsa_system_sgpr_workgroup_id_x 1
  .amdhsa_float_denorm_mode_32 3
.end_amdhsa_kernel
"""
outfn = [x for x in sys.argv[1:] if not x.startswith('--')][0]
open(outfn, 'w').write(out)
open(outfn + '.names', 'w').write(','.join(STAMPS))
print('instructions', len(a.ins), 'nops added', a.nops_added)
```

```python
import sys
import contextlib
import re
from asmlib import Asm, vr, ar, sr

NAME = "interleave_layers__linear_attn_block__glu_gated_glu__prompt"
OPT = {}
for x in sys.argv[1:]:
    if x.startswith('--'):
        k, _, v = x[2:].partition('=')
        OPT[k] = v if v else True
PROFILE = 'prof' in OPT
FINE = 'fine' in OPT
CLK = 'clk' in OPT
STOP = OPT.get('stop')
FA = 1
SLEEP = int(OPT.get('sleep', 1))
TOUCH = int(OPT.get('touch', 0))
BUD = int(OPT.get('bud', 3))
XPRE = int(OPT.get('xpre', 8))
HPRE = int(OPT.get('hpre', 16))
HSC = int(OPT.get('hsc', 0))
XSC = int(OPT.get('xsc', 0))
TLBW = int(OPT.get('tlbw', 0))
XI = int(OPT.get('xi', 4))
XA = int(OPT.get('xa', 10))
CT = int(OPT.get('ct', 1))
FT = int(OPT.get('ft', 0))
HT = int(OPT.get('ht', 0))
X0N = int(OPT.get('x0n', 0))
IDLE = int(OPT.get('idle', 0))
OSC = OPT.get('osc', '')
PQSC = int(OPT.get('pqsc', 0))
WB = int(OPT.get('wb', 0))
IDN = int(OPT.get('idn', 11))
HPL = int(OPT.get('hpl', 9))
G3 = int(OPT.get('g3', 1))
P4B = int(OPT.get('p4b', 1))
BEARLY = int(OPT.get('bearly', 1))
WDP2 = int(OPT.get('wdp2', 4))
W1KEEP = int(OPT.get('w1keep', 0))
CARRYON = int(OPT.get('carry', 0))
CWN = int(OPT.get('cwn', 4))
EPD = int(OPT.get('epd', 1))
STA = int(OPT.get('sta', 10))
LUP = int(OPT.get('lup', 16))
F1AT0 = int(OPT.get('f1at0', 22))
CAP3 = int(OPT.get('cap3', 7))
WSC = '' if 'nowsc' in OPT else 'sc1'
STAMPS = []

IB = 0x0
W1R = 0x100000; W1S = 87 * 1024
WOR = 0x280000
W3R = 0x300000; W3S = 203 * 1024
WDR = 0x680000; WDS = 224 * 1024
LYB = 0x1000000
KV = 0x0
F1 = 0x10000
F1Q = 0x18000
F3 = 0x30000
F2 = 0x20000
F0 = 0x28000
ST1 = 0x40000
ST0 = 0x80000
PQ = 0x100000
X1 = 0x300000
X0 = 0x500000
HB = 0x700000
PROF = 0x3000000
WS_BYTES = 256 << 20
OOB = 0x40000000

K = 1024
LBETA, LB, LALPHA = 0, 56 * K, 104 * K
LRS = 87 * K
LKVS = 88 * K
LDS_BYTES = 160 * K

S_WS, S_X, S_WQKV, S_WO, S_WG, S_WU, S_WD, S_OUT, S_DBG = 4, 8, 12, 16, 20, 24, 28, 32, 36
S_T0, S_T1 = 40, 44
S_LY = 40
S_DT = 44
sW, sJ, sHC, sTB, sFB, sL, sTMO, sPI = 48, 49, 50, 51, 52, 53, 54, 55
sTILE1, sTILE2, sOWN, sOFT = 56, 57, 58, 59
sLN2, sEPS6 = 60, 62
sONES = 84
sW1K, sW2K, sW4K = 64, 65, 66
sW1SRC, sW3SRC, sWOSRC, sWDSRC = 67, 68, 69, 70
sRBG, sREP = 71, 72
sG, sH, sI = 73, 74, 75
sA, sB, sC, sD, sE, sF = 86, 87, 88, 89, 90, 91
sP0 = 92
sU = 94
sXID = 95
sZW = 96
sPC = 100

vLANE, vL16, vL16b, vL16c, vROW, vAUG, vL4, vPROF = 0, 1, 2, 3, 4, 5, 6, 7
vXRES = 8
LOG2E = 0x3FB8AA3B
LN2 = 0x3F317218
EPS6 = 0x358637BD
EPS5 = 0x3727C5AC
INV448 = 0x3B124925
MF = 'v_mfma_f32_32x32x16_bf16'

a = Asm()
MODE = {'sc': 'sc1', 'sfx': ''}


def LS():
    return MODE['sc']


def LL():
    return OPT.get('ll', 'sc1').replace('none', '') if MODE['sc'] == '' else 'sc1'


def ALIAS():
    return MODE['sfx'] == '' and 'noalias' not in OPT


def XS():
    return 'sc1' if XSC else LS()


def HS():
    return 'sc1' if HSC else LS()


def LB_(n):
    return n + MODE['sfx']


@contextlib.contextmanager
def cond():
    st = (a.vm_issued, a.vm_done, a.lg_issued, a.lg_done)
    yield
    a.vm_issued, a.vm_done, a.lg_issued, a.lg_done = st


@contextlib.contextmanager
def cold(branch, back=None):
    C = a.uid('Lc'); R = back or a.uid('Lr')
    a(f'{branch} {C}')
    st = (a.vm_issued, a.vm_done, a.lg_issued, a.lg_done)
    a.begin_cold()
    a.label(C)
    a('s_nop 7')
    a('s_nop 3')
    yield
    a('s_nop 4')
    a(f's_branch {R}')
    a.end_cold()
    a.vm_issued, a.vm_done, a.lg_issued, a.lg_done = st
    if back is None:
        a.label(R)


def mark():
    return ('vm', a.vm_issued - 1)


def lds_addr(addr):
    if addr < 65536:
        return vL16, addr
    if addr < 131072:
        return vL16b, addr - 65536
    return vL16c, addr - 131072


def stamp(name, fine=False):
    if not PROFILE or (fine and not FINE):
        return
    STAMPS.append(name)
    a('s_waitcnt lgkmcnt(0)')
    a(f"{'s_memtime' if CLK else 's_memrealtime'} {sr(sP0,2)}")
    a.wait_lg0()
    a(f'v_cmp_eq_u32 vcc, s{sPI}, v{vLANE}')
    a(f'v_mov_b32 v255, s{sP0}')
    a(f'v_cndmask_b32 v{vPROF}, v{vPROF}, v255, vcc')
    a(f's_add_u32 s{sPI}, s{sPI}, 1')


def srd(base, lo, nbytes):
    a(f's_mov_b32 s{base}, s{lo}')
    a(f's_and_b32 s{base+1}, s{lo+1}, 0xffff')
    a(f's_mov_b32 s{base+2}, {nbytes}')
    a(f's_mov_b32 s{base+3}, 0x00020000')


def poll(srdreg, vaddr, soff, imm=0, t=254, sleep=0, nonzero=False):
    L = a.uid('Lpoll'); D = a.uid('Lpd')
    a.label(L)
    if sleep:
        a(f's_sleep {sleep}')
    a(f'buffer_load_dword v{t}, v{vaddr}, {sr(srdreg,4)}, {soff} offen offset:{imm} sc1')
    a(f's_sub_u32 s{sTMO}, s{sTMO}, 1')
    a(f's_max_i32 s{sTMO}, s{sTMO}, 0')
    a(f's_cselect_b64 {sr(sP0,2)}, exec, 0')
    a.wait_vm0()
    a(f'v_cmp_eq_u32 vcc, 0, v{t}' if nonzero else f'v_cmp_ne_u32 vcc, 1, v{t}')
    a(f's_and_b64 exec, {sr(sP0,2)}, vcc')
    a(f's_cbranch_scc1 {L}')
    a('s_mov_b64 exec, -1')


def check_or_poll(v, srdreg, vaddr, soff, imm=0, nonzero=False, sleep=1, t=254):
    a(f'v_cmp_eq_u32 vcc, 0, v{v}' if nonzero else f'v_cmp_ne_u32 vcc, 1, v{v}')
    a('s_cmp_eq_u64 vcc, 0')
    with cold('s_cbranch_scc0'):
        poll(srdreg, vaddr, soff, imm=imm, nonzero=nonzero, sleep=sleep, t=t)


def code_touch(t, d):
    if not CT:
        return []
    return [[f'v_and_b32 v{t}, 3, v{vLANE}',
             f'v_lshlrev_b32 v{t}, 7, v{t}',
             f'global_load_dword v{d}, v{t}, {sr(sPC,2)}']]


def flag_store(srdreg, soff, imm=0, t=254, sc=None):
    sc = LS() if sc is None else sc
    return [f'v_mov_b32 v{t}, 1',
            's_mov_b64 exec, 1',
            f'buffer_store_dword v{t}, off, {sr(srdreg,4)}, {soff} offset:{imm} {sc}',
            's_mov_b64 exec, -1']


def emit(lst):
    t = None
    for x in lst:
        r = a(x)
        t = r if r is not None else t
    return t


def dma_items(vD, lds_base, nfrag, c):
    assert nfrag % (4 * c) == 0
    sWc = {1: sW1K, 2: sW2K, 4: sW4K}[c]
    items = []
    for r in range(nfrag // (4 * c)):
        for i in range(c):
            it = []
            if i == 0:
                it.append(f's_add_u32 m0, s{sWc}, {lds_base + r*4*c*K}')
            it.append(f'buffer_load_dwordx4 v{vD}, {sr(S_WS,4)}, m0 offen offset:{i*K} {WSC} lds')
            items.append(it)
    return items


def dma_setup(vD, ssrc, src_const, lds_base):
    a(f's_add_u32 s{sA}, s{ssrc}, {src_const - lds_base & 0xffffffff:#x}')
    a(f'v_add_u32 v{vD}, s{sA}, v{vL16}')


def prologue():
    a('s_cmp_ge_u32 s2, 256')
    a('s_cbranch_scc1 L_end')
    a('s_load_dwordx16 s[64:79], s[0:1], 0')
    a('s_load_dwordx4 s[80:83], s[0:1], 64')
    a(f's_getpc_b64 {sr(sPC,2)}')
    a.label('L_pc')
    a('s_lshr_b32 s3, s2, 3')
    a('s_lshl_b32 s3, s3, 11')
    a('s_min_u32 s3, s3, (L_codeend - L_pc - 2048)')
    a(f's_add_u32 s{sPC}, s{sPC}, s3')
    a(f's_addc_u32 s{sPC+1}, s{sPC+1}, 0')
    a('v_min_u32 v16, 15, v0')
    a('v_lshlrev_b32 v16, 7, v16')
    a(f'global_load_dword v17, v16, {sr(sPC,2)}')
    a(f'v_lshrrev_b32 v18, 6, v0')
    a(f'v_and_b32 v{vLANE}, 63, v0')
    a(f'v_readfirstlane_b32 s{sW}, v18')
    a(f'v_lshlrev_b32 v{vL16}, 4, v{vLANE}')
    a(f'v_add_u32 v{vL16b}, 0x10000, v{vL16}')
    a(f'v_add_u32 v{vL16c}, 0x20000, v{vL16}')
    a(f'v_lshlrev_b32 v{vL4}, 2, v{vLANE}')
    a(f'v_and_b32 v18, 31, v{vLANE}')
    a(f'v_lshrrev_b32 v19, 5, v{vLANE}')
    a(f'v_mul_u32_u24 v{vROW}, 896, v18')
    a(f'v_lshl_add_u32 v{vROW}, v19, 4, v{vROW}')
    a(f'v_lshlrev_b32 v{vAUG}, 2, v18')
    a(f'v_lshl_add_u32 v{vAUG}, v19, 9, v{vAUG}')
    a(f'v_mov_b32 v{vPROF}, 0')
    a(f's_mov_b32 s{sPI}, 0')
    a(f's_and_b32 s{sC}, s2, 7')
    a(f's_lshr_b32 s{sJ}, s2, 3')
    a(f's_mul_i32 s{sTB}, s{sJ}, 37')
    a(f's_lshr_b32 s{sTB}, s{sTB}, 8')
    a(f's_mul_i32 s{sFB}, s{sTB}, 7')
    a(f's_sub_u32 s{sFB}, s{sJ}, s{sFB}')
    a(f's_cmp_ge_u32 s{sJ}, 28')
    a(f's_cselect_b32 s{sTB}, s{sFB}, s{sTB}')
    a(f's_mov_b32 s{sL}, 0')
    a(f's_mov_b32 s{sTMO}, 100000')
    a(f's_lshl_b32 s{sTILE2}, s{sC}, 3')
    a(f's_lshl_b32 s{sD}, s{sTB}, 1')
    a(f's_add_u32 s{sTILE2}, s{sTILE2}, s{sD}')
    a(f's_lshr_b32 s{sD}, s{sW}, 1')
    a(f's_add_u32 s{sOWN}, s{sTILE2}, s{sD}')
    a(f's_and_b32 s{sD}, s{sW}, 1')
    a(f's_lshl_b32 s{sOFT}, s{sFB}, 1')
    a(f's_add_u32 s{sOFT}, s{sOFT}, s{sD}')
    lf = {1: 0, 2: 1, 4: 2, 8: 3}[FA]
    nh = 16 // FA
    a(f's_and_b32 s{sD}, s{sC}, {FA-1}')
    a(f's_mul_i32 s{sHC}, s{sD}, {nh}')
    a(f's_and_b32 s{sD}, s{sJ}, {nh-1}')
    a(f's_add_u32 s{sHC}, s{sHC}, s{sD}')
    a(f's_lshr_b32 s{sD}, s{sC}, {lf}')
    a(f's_lshl_b32 s{sE}, s{sD}, {lf+1}')
    a(f's_lshr_b32 s{sD}, s{sJ}, {4-lf}')
    a(f's_add_u32 s{sE}, s{sE}, s{sD}')
    a(f's_lshl_b32 s{sTILE1}, s{sE}, 2')
    a(f's_add_u32 s{sTILE1}, s{sTILE1}, s{sW}')
    a(f's_mov_b32 s{sLN2}, {LN2:#x}')
    a(f's_mov_b32 s{sLN2+1}, {LN2:#x}')
    a(f's_mov_b32 s{sEPS6}, {EPS6:#x}')
    a(f's_mov_b32 s{sEPS6+1}, {EPS6:#x}')
    a(f's_mov_b32 s{sONES}, 0x3f803f80')
    for i in range(4):
        a(f'v_mov_b32 v{216+i}, 0')
    a(f'v_and_b32 v{vRHO}, 31, v{vLANE}')
    a(f'v_lshrrev_b32 v{vHI}, 5, v{vLANE}')
    a(f'v_and_b32 v{vSIG}, 0x13, v{vRHO}')
    a(f'v_and_b32 v{vt0}, 4, v{vRHO}')
    a(f'v_lshl_or_b32 v{vSIG}, v{vt0}, 1, v{vSIG}')
    a(f'v_lshrrev_b32 v{vt0}, 1, v{vRHO}')
    a(f'v_and_or_b32 v{vSIG}, v{vt0}, 4, v{vSIG}')
    a(f'v_lshrrev_b32 v{vR8}, 3, v{vLANE}')
    a(f'v_and_b32 v{vC8}, 7, v{vLANE}')
    a(f'v_lshlrev_b32 v{vC8}, 4, v{vC8}')
    a(f'v_lshrrev_b32 v{vt0}, 4, v{vLANE}')
    a(f'v_lshlrev_b32 v{vt0}, 4, v{vt0}')
    a(f'v_xor_b32 v{vt0}, v{vt0}, v{vC8}')
    a(f'v_mul_u32_u24 v{vt1}, 896, v{vR8}')
    a(f'v_add_u32 v{vXS}, v{vt1}, v{vt0}')
    a(f'v_xor_b32 v{vt0}, 64, v{vt0}')
    a(f'v_add_u32 v{vXS+1}, v{vt1}, v{vt0}')
    a('s_waitcnt lgkmcnt(0)')
    if TLBW:
        a(f'v_lshlrev_b32 v20, 20, v{vLANE}')
        a('v_subrev_u32 v20, 0xa00000, v20')
        a('v_min_u32 v20, 0x2100000, v20')
        a('v_mov_b32 v21, s83')
        a('v_add_co_u32 v20, vcc, s82, v20')
        a('v_addc_co_u32 v21, vcc, 0, v21, vcc')
        for ln, p in enumerate((64, 66, 68, 72, 74, 76, 78, 80)):
            a(f'v_writelane_b32 v20, s{p}, {ln}')
            a(f'v_writelane_b32 v21, s{p+1}, {ln}')
        a('global_load_dword v22, v[20:21], off')
    srd(S_X, 64, 2048 * 448 * 2)
    srd(S_WQKV, 66, 448 * 1344 * 2)
    srd(S_WO, 68, 448 * 448 * 2)
    srd(S_WG, 72, 448 * 1792 * 2)
    srd(S_WU, 74, 448 * 1792 * 2)
    srd(S_WD, 76, 1792 * 448 * 2)
    srd(S_OUT, 78, 2048 * 448 * 2)
    srd(S_DBG, 80, 256)
    srd(S_WS, 82, WS_BYTES)
    a(f's_mov_b32 s{sRBG}, s{sE}')
    a(f's_and_b32 s{sREP}, s2, 3')
    a(f's_lshl_b32 s{sREP}, s{sREP}, 12')
    a(f's_lshl_b32 s{sW1K}, s{sW}, 10')
    a(f's_lshl_b32 s{sW2K}, s{sW}, 11')
    a(f's_lshl_b32 s{sW4K}, s{sW}, 12')
    a(f's_lshl_b32 s{sG}, s{sW}, 9')
    a(f's_add_u32 s{sPC}, s{sPC}, s{sG}')
    a(f's_addc_u32 s{sPC+1}, s{sPC+1}, 0')
    a(f's_lshl_b32 s{sG}, s{sW}, 13')
    a(f's_add_u32 s{sG}, s{sG}, {LSTG}')
    a(f's_getreg_b32 s{sXID}, hwreg(HW_REG_XCC_ID)')
    a(f's_and_b32 s{sXID}, s{sXID}, 15')
    a(f's_add_u32 s{sXID}, s{sXID}, 1')
    stamp('start')


def late_consts():
    a(f's_mul_i32 s{sW1SRC}, s{sHC}, {W1S}')
    a(f's_add_u32 s{sW1SRC}, s{sW1SRC}, {W1R}')
    a(f's_mul_i32 s{sW3SRC}, s{sHC}, {W3S}')
    a(f's_add_u32 s{sW3SRC}, s{sW3SRC}, {W3R}')
    a(f's_lshl_b32 s{sWOSRC}, s{sFB}, 16')
    a(f's_lshl_b32 s{sA}, s{sW}, 14')
    a(f's_add_u32 s{sWOSRC}, s{sWOSRC}, s{sA}')
    a(f's_add_u32 s{sWOSRC}, s{sWOSRC}, {WOR}')
    a(f's_mul_i32 s{sWDSRC}, s{sFB}, {WDS}')
    a(f's_mul_i32 s{sA}, s{sW}, 57344')
    a(f's_add_u32 s{sWDSRC}, s{sWDSRC}, s{sA}')
    a(f's_add_u32 s{sWDSRC}, s{sWDSRC}, {WDR}')
    a(f's_add_u32 s{S_LY}, s{S_WS}, {LYB}')
    a(f's_addc_u32 s{S_LY+1}, s{S_WS+1}, 0')
    a(f's_mov_b32 s{S_LY+2}, {2*LYB}')
    a(f's_mov_b32 s{S_LY+3}, 0x00020000')
    a(f's_mov_b32 s{S_DT}, s{S_LY}')
    a(f's_mov_b32 s{S_DT+1}, s{S_LY+1}')
    a(f's_mov_b32 s{S_DT+2}, {2*LYB}')
    a(f's_mov_b32 s{S_DT+3}, 0x00020000')


UD = 128
UC = 192
vRHO, vHI, vSIG, vR8, vC8 = 204, 205, 206, 207, 212
vt0, vt1, vt2, vt3 = 208, 209, 210, 211
vXS = 214
LSTG = 128 * K
LXS = 0
LCS = 112 * K


PASS = {'p': 'src'}


class Done(Exception):
    pass


def run_setup(fn, *args):
    try:
        fn(*args)
    except Done:
        pass


LSRD = {1: S_WQKV, 2: S_WO, 3: S_WD}


def unit_dma(r, srdreg, vsrc, srow0, srow1):
    if r > 0:
        a(f's_mov_b32 s{74+2*r}, s{srow0}')
        a(f's_mov_b32 s{75+2*r}, s{srow1}')
        a(f'v_mov_b32 v{243+r}, v{vsrc}')
        if srdreg != LSRD[r]:
            for i in range(3):
                a(f's_mov_b32 s{LSRD[r]+i}, s{srdreg+i}')
        return
    if PASS['p'] == 'dst':
        return
    _unit_dma(r, srdreg, vsrc, srow0, srow1)
    raise Done()


def late_dma():
    t = None
    for r in (1, 2, 3):
        for h in range(2):
            a(f's_add_u32 m0, s82, {r*2048 + h*1024}')
            t = a(f'buffer_load_dwordx4 v{243+r}, {sr(LSRD[r],4)}, s{74+2*r+h} offen lds')
    return t


def _unit_dma(r, srdreg, vsrc, srow0, srow1):
    a(f's_add_u32 m0, s{sG}, {r*2048}')
    a('s_nop 0')
    a(f'buffer_load_dwordx4 v{vsrc}, {sr(srdreg,4)}, s{srow0} offen lds')
    a(f's_add_u32 m0, s{sG}, {r*2048+1024}')
    a('s_nop 0')
    a(f'buffer_load_dwordx4 v{vsrc}, {sr(srdreg,4)}, s{srow1} offen lds')


def div7(q, rem, su):
    a(f's_mul_i32 s{q}, s{su}, 9363')
    a(f's_lshr_b32 s{q}, s{q}, 16')
    a(f's_mul_i32 s{rem}, s{q}, 7')
    a(f's_sub_u32 s{rem}, s{su}, s{rem}')


def setup_w1(r, su):
    col, dst, aug = UC + 3 * r, UC + 3 * r + 1, UC + 3 * r + 2
    div7(sA, sB, su)
    a(f's_lshr_b32 s{sC}, s{sA}, 3')
    a(f's_and_b32 s{sA}, s{sA}, 7')
    a(f's_mul_i32 s{sD}, s{sC}, 896')
    a(f's_mul_i32 s{sE}, s{sA}, 112')
    a(f's_add_u32 s{sD}, s{sD}, s{sE}')
    a(f's_lshl_b32 s{sF}, s{sB}, 2')
    a(f's_add_u32 s{sF}, s{sF}, s{sW}')
    a(f's_mul_i32 s{sE}, s{sF}, {16*2688}')
    a(f's_add_u32 s{sD}, s{sD}, s{sE}')
    a(f's_add_u32 s{sE}, s{sD}, {8*2688}')
    a(f'v_mul_u32_u24 v{vt0}, 2688, v{vR8}')
    a(f'v_add_u32 v{vt0}, v{vt0}, v{vC8}')
    a(f'v_cmp_eq_u32 vcc, 112, v{vC8}')
    a(f'v_mov_b32 v{vt1}, {OOB:#x}')
    a(f'v_cndmask_b32 v{vt0}, v{vt0}, v{vt1}, vcc')
    unit_dma(r, S_WQKV, vt0, sD, sE)
    a(f'v_cmp_le_u32 vcc, 24, v{vSIG}')
    a(f'v_subrev_u32 v{vt0}, 2, v{vSIG}')
    a(f'v_cndmask_b32 v{vt0}, v{vSIG}, v{vt0}, vcc')
    a(f'v_mad_u32_u24 v{vt0}, v{vHI}, 28, v{vt0}')
    a(f'v_and_b32 v{vt1}, 0x16, v{vSIG}')
    a(f'v_cmp_eq_u32 vcc, 0x16, v{vt1}')
    a(f'v_cndmask_b32 v{vt0}, v{vt0}, 56, vcc')
    a(f'v_lshl_add_u32 v{col}, v{vt0}, 1, s{sG}')
    a(f's_lshl_b32 s{sD}, s{sF}, 1')
    a(f's_add_u32 s{sD}, s{sD}, s{sC}')
    a(f's_sub_u32 s{sD}, s{sD}, 1')
    a(f's_add_u32 s{sE}, s{sC}, 55')
    a(f's_add_u32 s{sF}, s{sF}, 58')
    a(f's_cmp_eq_u32 s{sC}, 0')
    a(f's_cselect_b32 s{sD}, s{sF}, s{sD}')
    a(f's_cselect_b32 s{sE}, 86, s{sE}')
    a(f's_mul_i32 s{sA}, s{sA}, {2*W1S}')
    a(f's_add_u32 s{sA}, s{sA}, {W1R}')
    a(f's_lshl_b32 s{sD}, s{sD}, 10')
    a(f's_add_u32 s{sD}, s{sD}, s{sA}')
    a(f's_lshl_b32 s{sE}, s{sE}, 10')
    a(f's_add_u32 s{sE}, s{sE}, s{sA}')
    a(f's_lshl_b32 s{sB}, s{sB}, 7')
    a(f's_add_u32 s{sE}, s{sE}, s{sB}')
    a(f'v_mul_u32_u24 v{vt0}, {W1S}, v{vHI}')
    a(f'v_lshl_add_u32 v{dst}, v{vRHO}, 4, v{vt0}')
    a(f'v_add_u32 v{dst}, s{sD}, v{dst}')
    a(f'v_lshl_add_u32 v{aug}, v{vRHO}, 2, v{vt0}')
    a(f'v_add_u32 v{aug}, s{sE}, v{aug}')


def setup_w3(r, su, tsrd):
    col, dst, aug = UC + 3 * r, UC + 3 * r + 1, UC + 3 * r + 2
    div7(sA, sB, su)
    a(f's_cmp_ge_u32 s{sA}, 28')
    a(f's_cselect_b32 s{tsrd}, s{S_WU}, s{S_WG}')
    a(f's_cselect_b32 s{tsrd+1}, s{S_WU+1}, s{S_WG+1}')
    a(f's_cselect_b32 s{sC}, 28, 0')
    a(f's_cselect_b32 s{sD}, 16, 0')
    a(f's_mov_b32 s{tsrd+2}, {448*1792*2}')
    a(f's_mov_b32 s{tsrd+3}, 0x00020000')
    a(f's_sub_u32 s{sA}, s{sA}, s{sC}')
    a(f's_lshl_b32 s{sE}, s{sB}, 2')
    a(f's_add_u32 s{sE}, s{sE}, s{sW}')
    a(f's_mul_i32 s{sC}, s{sE}, {16*3584}')
    a(f's_lshl_b32 s{sF}, s{sA}, 7')
    a(f's_add_u32 s{sC}, s{sC}, s{sF}')
    a(f's_add_u32 s{sF}, s{sC}, {8*3584}')
    a(f'v_mul_u32_u24 v{vt0}, 3584, v{vR8}')
    a(f'v_add_u32 v{vt0}, v{vt0}, v{vC8}')
    unit_dma(r, tsrd, vt0, sC, sF)
    a(f'v_and_b32 v{vt0}, 48, v{vLANE}')
    a(f'v_and_or_b32 v{vt0}, v{vSIG}, 15, v{vt0}')
    a(f'v_lshl_add_u32 v{col}, v{vt0}, 1, s{sG}')
    a(f'v_lshrrev_b32 v{vt0}, 4, v{vLANE}')
    a(f's_lshl_b32 s{sC}, s{sA}, 2')
    a(f'v_add_u32 v{vt0}, s{sC}, v{vt0}')
    a(f'v_mul_u32_u24 v{vt1}, 9363, v{vt0}')
    a(f'v_lshrrev_b32 v{vt1}, 16, v{vt1}')
    a(f'v_mul_u32_u24 v{vt2}, 7, v{vt1}')
    a(f'v_sub_u32 v{vt0}, v{vt0}, v{vt2}')
    a(f's_mul_i32 s{sF}, s{sE}, {3 if G3 else 2}')
    a(f'v_add_u32 v{vt2}, s{sF}, v{vt0}')
    a(f'v_add_u32 v{aug}, {84 if G3 else 56}, v{vt0}')
    a(f's_cmp_ge_u32 s{sE}, 27')
    a(f's_cselect_b32 s{sC}, 58, 0')
    a(f's_sub_u32 s{sC}, s{sE}, s{sC}')
    a(f's_add_u32 s{sC}, s{sC}, 176')
    for t, base, ag in (() if G3 else ((2, 59, None),)) + ((3, 87, 115), (4, 116, 144), (5, 147, 175), (6, None, 146)):
        a(f'v_cmp_eq_u32 vcc, {t}, v{vt0}')
        if base is not None:
            a(f's_add_u32 s{sF}, s{sE}, {base}')
            a(f'v_mov_b32 v{vt3}, s{sF}')
        else:
            a(f'v_mov_b32 v{vt3}, s{sC}')
        a(f'v_cndmask_b32 v{vt2}, v{vt2}, v{vt3}, vcc')
        if ag is not None:
            a(f'v_mov_b32 v{vt3}, {ag}')
            a(f'v_cndmask_b32 v{aug}, v{aug}, v{vt3}, vcc')
    a(f'v_mul_u32_u24 v{vt1}, 203, v{vt1}')
    a(f'v_add_lshl_u32 v{vt2}, v{vt2}, v{vt1}, 10')
    a(f'v_add_lshl_u32 v{aug}, v{aug}, v{vt1}, 10')
    a(f'v_and_b32 v{vt0}, 15, v{vLANE}')
    a(f'v_add_u32 v{vt0}, s{sD}, v{vt0}')
    a(f'v_lshl_add_u32 v{dst}, v{vt0}, 4, v{vt2}')
    a(f'v_add_u32 v{dst}, {W3R:#x}, v{dst}')
    a(f'v_lshl_add_u32 v{aug}, v{vt0}, 2, v{aug}')
    a(f's_lshl_b32 s{sB}, s{sB}, 7')
    a(f's_add_u32 s{sB}, s{sB}, {W3R}')
    a(f'v_add_u32 v{aug}, s{sB}, v{aug}')


def setup_colsT(r):
    col, dst, aug = UC + 3 * r, UC + 3 * r + 1, UC + 3 * r + 2
    a(f'v_lshl_add_u32 v{vt0}, v{vHI}, 5, v{vSIG}')
    a(f'v_lshl_add_u32 v{col}, v{vt0}, 1, s{sG}')
    a(f'v_lshlrev_b32 v{dst}, 10, v{vHI}')
    a(f'v_lshl_add_u32 v{dst}, v{vRHO}, 4, v{dst}')
    a(f'v_mov_b32 v{aug}, {OOB:#x}')


def setup_wd(r, su):
    dst = UC + 3 * r + 1
    div7(sA, sB, su)
    a(f's_lshl_b32 s{sA}, s{sA}, 2')
    a(f's_add_u32 s{sA}, s{sA}, s{sW}')
    a(f's_mul_i32 s{sC}, s{sA}, {16*896}')
    a(f's_lshl_b32 s{sD}, s{sB}, 7')
    a(f's_add_u32 s{sC}, s{sC}, s{sD}')
    a(f's_add_u32 s{sD}, s{sC}, {8*896}')
    a(f'v_mul_u32_u24 v{vt0}, 896, v{vR8}')
    a(f'v_add_u32 v{vt0}, v{vt0}, v{vC8}')
    unit_dma(r, S_WD, vt0, sC, sD)
    setup_colsT(r)
    div7(sC, sD, sA)
    a(f's_mul_i32 s{sB}, s{sB}, {WDS}')
    a(f's_lshr_b32 s{sE}, s{sC}, 2')
    a(f's_mul_i32 s{sE}, s{sE}, 57344')
    a(f's_add_u32 s{sB}, s{sB}, s{sE}')
    a(f's_lshl_b32 s{sD}, s{sD}, 2')
    a(f's_and_b32 s{sC}, s{sC}, 3')
    a(f's_add_u32 s{sD}, s{sD}, s{sC}')
    a(f's_lshl_b32 s{sD}, s{sD}, 11')
    a(f's_add_u32 s{sB}, s{sB}, s{sD}')
    a(f's_add_u32 s{sB}, s{sB}, {WDR}')
    a(f'v_add_u32 v{dst}, s{sB}, v{dst}')


def setup_wo(r, su):
    dst = UC + 3 * r + 1
    div7(sA, sB, su)
    a(f's_lshl_b32 s{sA}, s{sA}, 2')
    a(f's_add_u32 s{sA}, s{sA}, s{sW}')
    a(f's_lshr_b32 s{sC}, s{sA}, 1')
    a(f's_mul_i32 s{sC}, s{sC}, {28*896}')
    a(f's_lshl_b32 s{sD}, s{sB}, 7')
    a(f's_add_u32 s{sC}, s{sC}, s{sD}')
    a(f's_and_b32 s{sD}, s{sA}, 1')
    a(f's_cselect_b32 s{sD}, {16*896}, 0')
    a(f's_cselect_b32 s{sE}, {14*896}, 0')
    a(f's_add_u32 s{sD}, s{sD}, s{sC}')
    a(f's_add_u32 s{sE}, s{sE}, s{sC}')
    a(f's_add_u32 s{sE}, s{sE}, {8*896}')
    a(f'v_mul_u32_u24 v{vt0}, 896, v{vR8}')
    a(f'v_add_u32 v{vt0}, v{vt0}, v{vC8}')
    unit_dma(r, S_WO, vt0, sD, sE)
    setup_colsT(r)
    a(f's_lshl_b32 s{sB}, s{sB}, 16')
    a(f's_lshl_b32 s{sC}, s{sA}, 11')
    a(f's_add_u32 s{sB}, s{sB}, s{sC}')
    a(f's_add_u32 s{sB}, s{sB}, {WOR}')
    a(f'v_add_u32 v{dst}, s{sB}, v{dst}')


def setup_none(r):
    col, dst, aug = UC + 3 * r, UC + 3 * r + 1, UC + 3 * r + 2
    a(f'v_mov_b32 v{col}, 0')
    a(f'v_mov_b32 v{dst}, {OOB:#x}')
    a(f'v_mov_b32 v{aug}, {OOB:#x}')


def rounds(tag):
    a('s_cmp_ge_u32 s2, 168')
    a(f's_cbranch_scc1 L_r0b{tag}')
    with cond():
        run_setup(setup_w1, 0, 2)
    a(f's_branch L_r0e{tag}')
    a.label(f'L_r0b{tag}')
    a('s_cmp_ge_u32 s2, 224')
    a(f's_cbranch_scc1 L_r0c{tag}')
    with cond():
        a(f's_sub_u32 s{sU}, s2, 168')
        run_setup(setup_wo, 0, sU)
    a(f's_branch L_r0e{tag}')
    a.label(f'L_r0c{tag}')
    with cond():
        a(f's_sub_u32 s{sU}, s2, 224')
        run_setup(setup_wd, 0, sU)
    a.label(f'L_r0e{tag}')
    if PASS['p'] == 'src':
        return
    run_setup(setup_w3, 1, 2, LSRD[1])
    a('s_cmp_ge_u32 s2, 136')
    a(f's_cbranch_scc1 L_r2b{tag}')
    with cond():
        a(f's_add_u32 s{sU}, s2, 256')
        run_setup(setup_w3, 2, sU, LSRD[2])
    a(f's_branch L_r2e{tag}')
    a.label(f'L_r2b{tag}')
    with cond():
        a(f's_sub_u32 s{sU}, s2, 104')
        run_setup(setup_wd, 2, sU)
    a.label(f'L_r2e{tag}')
    a('s_cmp_ge_u32 s2, 212')
    a(f's_cbranch_scc1 L_r3b{tag}')
    setup_none(3)
    a('s_mov_b32 s80, 0')
    a('s_mov_b32 s81, 0')
    a(f'v_mov_b32 v246, {OOB:#x}')
    a(f's_branch L_r3e{tag}')
    a.label(f'L_r3b{tag}')
    with cond():
        a(f's_sub_u32 s{sU}, s2, 60')
        run_setup(setup_wd, 3, sU)
    a.label(f'L_r3e{tag}')


def unit_rounds(rs, items=None):
    rtok = {}
    seq = [(r, h) for r in rs for h in range(2)]

    def gat(r, half):
        for e in range(8):
            rtok[r, half] = a(f'ds_read_u16 v{UD+16*r+8*half+e}, v{UC+3*r} offset:{r*2048+(8*half+e)*128}')
    gat(*seq[0])
    for it in (items or []):
        emit(it)
    a(f's_lshl_b32 s{sA}, s{sW}, 8')
    a(f's_add_u32 s{sA}, s{sA}, {LCS}')
    a(f'v_add_u32 v225, s{sA}, v{vL4}')
    for k_, (r, half) in enumerate(seq):
        R = UD + 16 * r
        if k_ + 1 < len(seq):
            gat(*seq[k_ + 1])
        a.wait(rtok[r, half])
        for m in range(4):
            a(f'v_lshl_or_b32 v{R+8*half+m}, v{R+8*half+2*m+1}, 16, v{R+8*half+2*m}')
        a(f'buffer_store_dwordx4 {vr(R+8*half,4)}, v{UC+3*r+1}, {sr(S_WS,4)}, 0 offen offset:{512*half} sc1')
    for r in rs:
        if r == 3:
            continue
        R = UD + 16 * r
        a(f'v_mov_b32 v{R+4}, 0')
        for m in range(4):
            a(f'v_dot2c_f32_bf16 v{R+4}, s{sONES}, v{R+m}')
            a(f'v_dot2c_f32_bf16 v{R+4}, s{sONES}, v{R+8+m}')
        a(f'ds_write_b32 v225, v{R+4} offset:{r*1024}')


def aug_finish(rs, ucb=None, R=226, t0=225, t1=230, t2=231):
    ucb = UC if ucb is None else ucb
    a(f's_add_u32 s{sA}, s{sW1K}, {LCS}')
    a(f'v_add_u32 v{t0}, s{sA}, v{vL4}')
    a(f'ds_read2st64_b32 {vr(R,2)}, v{t0} offset0:0 offset1:1')
    t = a(f'ds_read2st64_b32 {vr(R+2,2)}, v{t0} offset0:2 offset1:3')
    a(f'v_mov_b32 v{t1}, {OOB:#x}')
    a(f'v_mov_b32 v{t2}, v{t1}')
    for r in rs:
        a(f's_cmp_eq_u32 s{sW}, {r}')
        a('s_cselect_b64 vcc, -1, 0')
        a(f'v_cndmask_b32 v{t1}, v{t1}, v{ucb+3*r+2}, vcc')
    a(f'v_bfe_u32 v{t0}, v{t1}, 7, 3')
    a(f'v_cmp_eq_u32 vcc, 6, v{t0}')
    a(f'v_mov_b32 v{t0}, 0')
    a(f'v_cndmask_b32 v{t2}, v{t2}, v{t1}, vcc')
    a(f'buffer_store_dword v{t0}, v{t2}, {sr(S_WS,4)}, 0 offen offset:128 sc1')
    a.wait(t)
    a(f'v_add_f32 v{R}, v{R}, v{R+1}')
    a(f'v_add_f32 v{R+2}, v{R+2}, v{R+3}')
    a(f'v_add_f32 v{R}, v{R}, v{R+2}')
    a(f'v_cvt_pk_bf16_f32 v{R+1}, v{R}, v{R}')
    a(f'v_and_b32 v{R+1}, 0xffff0000, v{R+1}')
    a(f'v_sub_f32 v{R+1}, v{R}, v{R+1}')
    a(f'v_cvt_pk_bf16_f32 v{R+1}, v{R}, v{R+1}')
    return a(f'buffer_store_dword v{R+1}, v{t1}, {sr(S_WS,4)}, 0 offen sc1')


def ib_publish(imm, va, vv):
    a(f'v_lshlrev_b32 v{va}, 12, v{vLANE}')
    a(f'v_mov_b32 v{vv}, s{sXID}')
    a('s_mov_b64 exec, 15')
    a(f'buffer_store_dword v{vv}, v{va}, {sr(S_WS,4)}, s83 offen offset:{imm} sc1')
    a('s_mov_b64 exec, -1')


def init_phase():
    Z = 216
    vGO = 224
    a(f's_lshl_b32 s{sA}, s2, 10')
    a(f's_add_u32 s{sB}, s{sW}, 1')
    a(f's_lshl_b32 s{sB}, s{sB}, 24')
    a(f's_add_u32 s{sB}, s{sA}, s{sB}')
    a(f's_sub_u32 s{sC}, s{sB}, {2*LYB - ST1}')
    a(f's_cmp_eq_u32 s{sW}, 2')
    a(f's_cselect_b32 s{sB}, s{sC}, s{sB}')
    a(f's_lshl_b32 s85, s2, 4')
    a('s_cmp_lt_u32 s2, 16')
    a(f's_cselect_b32 s{sA}, s{sA}, {OOB:#x}')
    a(f's_cselect_b32 s{sZW}, s85, {OOB:#x}')
    a(f's_cmp_eq_u32 s{sW}, 3')
    a(f's_cselect_b32 s{sB}, s{sA}, s{sB}')
    a(f's_cselect_b32 s{sZW}, s{sZW}, {OOB:#x}')
    a(f's_cselect_b32 s83, s85, {OOB:#x}')
    a(f's_cselect_b32 s85, 0, {OOB:#x}')
    zt = a(f'buffer_store_dwordx4 {vr(Z,4)}, v{vL16}, {sr(S_WS,4)}, s{sB} offen sc1')
    PASS['p'] = 'src'
    rounds('s')
    a.vm_issued += 2
    um = mark()
    a(f's_mov_b32 s82, s{sG}')
    a(f's_mul_i32 s{sI}, s{sTILE1}, 28672')
    a(f's_mul_i32 s{sH}, s{sW}, {28*K}')
    xq = []
    for g in range(4):
        for c in range(7):
            it = [f's_add_u32 m0, s{sH}, {LXS + (4*c+g)*K - c*128}',
                  f'buffer_load_dwordx4 v{vXS + (g & 1)}, {sr(S_X,4)}, s{sI} offen offset:{c*128} lds']
            if c == 6:
                it.append(f's_add_u32 s{sI}, s{sI}, {8*896}')
            xq.append(it)
    a(f's_mul_i32 s{sA}, s{sHC}, {14*128}')
    a(f's_add_u32 s{sA}, s{sA}, s{sI}')
    a(f'v_min_u32 v{vt0}, 13, v{vLANE}')
    a(f'v_lshlrev_b32 v{vt0}, 7, v{vt0}')
    a(f'buffer_load_dword v17, v{vt0}, {sr(S_X,4)}, s{sA} offen')
    for _ in range(X0N):
        emit(xq.pop(0))
    stamp('issued')
    PASS['p'] = 'dst'
    rounds('d')
    for i in range(9):
        a(f'v_accvgpr_write_b32 a{i}, v{UC+3+i}')
    a.wait(zt)
    emit(flag_store(S_DBG, f's{sZW}', sc='sc1'))
    a(f'v_and_b32 v{vt3}, 15, v{vLANE}')
    a(f'v_lshlrev_b32 v{vt3}, 4, v{vt3}')
    a(f'v_lshrrev_b32 v{vt0}, 3, v{vRHO}')
    a(f'v_lshlrev_b32 v{vt0}, 10, v{vt0}')
    a(f'v_and_b32 v{vt1}, 7, v{vRHO}')
    a(f'v_lshl_add_u32 v{vt0}, v{vt1}, 7, v{vt0}')
    a(f'v_add_u32 v{vt0}, s{sH}, v{vt0}')
    a(f'v_bfe_u32 v{vt1}, v{vRHO}, 1, 3')
    a(f'v_xor_b32 v{vt1}, v{vt1}, v{vHI}')
    for q in range(4):
        a(f'v_xor_b32 v{220+q}, {2*q}, v{vt1}')
        a(f'v_lshl_add_u32 v{220+q}, v{220+q}, 4, v{vt0}')
    a(f'v_min_u32 v{vt0}, 20, v{vLANE}')
    a(f'v_mul_u32_u24 v{vt1}, 37, v{vt0}')
    a(f'v_lshrrev_b32 v{vt1}, 8, v{vt1}')
    a(f'v_mad_u32_u24 v{vt0}, v{vt1}, 49, v{vt0}')
    a(f's_lshr_b32 s{sA}, s{sHC}, 1')
    a(f's_mul_i32 s{sA}, s{sA}, 7')
    a(f'v_add_lshl_u32 v240, v{vt0}, s{sA}, 4')
    late_consts()
    own_consts()
    a.wait(um)
    stamp('ldone')
    unit_rounds([0], [xq.pop(0) for _ in range(XI)])
    a.wait_lg0()
    a.barrier()
    aug_finish([0])
    sm = a(f'buffer_load_dword v{vGO}, v{vt3}, {sr(S_DBG,4)}, s85 offen sc1')
    for _ in range(min(XA, len(xq))):
        emit(xq.pop(0))
    a.wait(sm)
    a(f's_cmp_lg_u32 s{sW}, 3')
    a('s_cbranch_scc1 L_ngo')
    with cond():
        check_or_poll(vGO, S_DBG, vt3, 0, sleep=2)
    a.label('L_ngo')
    a.barrier()
    ib_publish(4, vt0, vt1)
    stamp('ibpub')
    while xq:
        emit(xq.pop(0))
    a(f's_mul_i32 s{sA}, s{sOWN}, 28672')
    a(f's_lshl_b32 s{sB}, s{sOFT}, 6')
    a(f's_add_u32 s{sA}, s{sA}, s{sB}')
    a(f'buffer_load_dwordx4 {vr(vXRES,4)}, v{vROW}, {sr(S_X,4)}, s{sA} offen')
    a(f'buffer_load_dwordx4 {vr(vXRES+4,4)}, v{vROW}, {sr(S_X,4)}, s{sA} offen offset:32')
    p1_setup(True)
    dma_setup(205, sW1SRC, 0, 0)
    a.wait_vm_n(2)
    stamp('xland')
    for ks in range(28):
        a(f'ds_read_b128 {vr(16+4*ks,4)}, v{220+(ks&3)} offset:{(ks>>2)*4096}')
    fa = a(f'buffer_load_dword v241, v240, {sr(S_WS,4)}, s{sREP} offen offset:4 sc1')
    a.wait_lg0()
    x0_stats(0, STA)
    a.wait(fa)
    check_or_poll(241, S_WS, 240, f's{sREP}', imm=4, nonzero=True, sleep=0)
    a.barrier()
    stamp('w1rdy')


def x0_stats(lo, hi, items=None):
    S0, S1, Q0, Q1 = 216, 217, 218, 219
    for i in range(4 * lo, 4 * hi, 2):
        if items and i % 6 == 0:
            items.pop(0)()
        a(f'v_dot2c_f32_bf16 v{S0}, s{sONES}, v{16+i}')
        a(f'v_dot2c_f32_bf16 v{Q0}, v{16+i}, v{16+i}')
        a(f'v_dot2c_f32_bf16 v{S1}, s{sONES}, v{17+i}')
        a(f'v_dot2c_f32_bf16 v{Q1}, v{17+i}, v{17+i}')


vRSTD, vC2, vISTD = 248, 249, 250
P1_XAUG = 212


def stats_finish(xaug, SB=216):
    S, Q, t0, t1 = SB, SB + 1, SB + 2, SB + 3
    o = [f'v_mov_b32 v{t0}, v{S}',
         f'v_mov_b32 v{t1}, v{Q}',
         f'v_permlane32_swap_b32 v{S}, v{t0}',
         f'v_permlane32_swap_b32 v{Q}, v{t1}',
         f'v_add_f32 v{S}, v{S}, v{t0}',
         f'v_add_f32 v{Q}, v{Q}, v{t1}',
         f'v_mul_f32 v{S}, {INV448:#x}, v{S}',
         f'v_mul_f32 v{Q}, {INV448:#x}, v{Q}',
         f'v_fma_f32 v{Q}, -v{S}, v{S}, v{Q}',
         f'v_max_f32 v{Q}, 0, v{Q}',
         f'v_add_f32 v{Q}, {EPS5:#x}, v{Q}',
         f'v_rsq_f32 v{vRSTD}, v{Q}',
         f'v_cvt_pk_bf16_f32 v{xaug}, -v{S}, -v{S}',
         f'v_mul_f32 v{vISTD}, v{Q}, v{vRSTD}',
         f'v_mul_f32 v{vC2}, {LOG2E:#x}, v{vRSTD}']
    o += [f'v_mov_b32 v{xaug+i}, v{xaug}' for i in range(1, 4)]
    return o


def stats_sum(SB=216):
    o = []
    for i in range(1, 7):
        o.append(f'v_add_f32 v{SB}, v{SB}, v{SB+2*i}')
        o.append(f'v_add_f32 v{SB+1}, v{SB+1}, v{SB+2*i+1}')
    return o


def x_prep(fl, xb, stb):
    a(f'v_and_b32 v240, 15, v{vLANE}')
    a(f'v_min_u32 v240, 13, v240')
    a(f'v_lshlrev_b32 v240, 5, v240')
    a(f's_lshl_b32 s{sC}, s{sTILE1}, 9')
    a(f's_add_u32 s{sC}, s{sC}, {fl}')
    a(f's_lshl_b32 s{sD}, s{sTILE1}, 12')
    a(f's_add_u32 s{sD}, s{sD}, {stb}')
    a(f's_mul_i32 s{sE}, s{sTILE1}, {28*K}')
    a(f's_add_u32 s{sE}, s{sE}, {xb}')


def x_load(ks):
    if ks % 4 == 0 and ks:
        a(f's_add_u32 s{sE}, s{sE}, 4096')
    return a(f'buffer_load_dwordx4 {vr(16+4*ks,4)}, v{vL16}, {sr(S_DT,4)}, s{sE} offen offset:{(ks%4)*K} sc1')


def st_load(i, SB=216):
    return a(f'buffer_load_dwordx4 {vr(SB+4*i,4)}, v{vL16}, {sr(S_DT,4)}, s{sD} offen offset:{i*K} sc1')


def st_loads(SB=216):
    t = None
    for i in range(7):
        t = a(f'buffer_load_dwordx2 {vr(SB+2*i,2)}, v241, {sr(S_DT,4)}, s{sD} offen offset:{i*256} sc1')
    return t


def read_aug(dst, addr, tmp):
    a(f'v_add_u32 v{tmp}, {addr:#x}, v{vAUG}')
    a(f'ds_read2_b32 {vr(dst,2)}, v{tmp} offset0:0 offset1:32')
    return a(f'ds_read2_b32 {vr(dst+2,2)}, v{tmp} offset0:64 offset1:96')


def read_frag(dst, addr):
    v, off = lds_addr(addr)
    return a(f'ds_read_b128 {vr(dst,4)}, v{v} offset:{off}')


def wfrag_items(regfn, ssrc, lo, hi, va, vb, stmp):
    items = []
    for i, n in enumerate(range(lo, hi)):
        for b in range(2):
            it = []
            if i % 2 == 0 and b == 0:
                it.append(f's_add_u32 s{stmp}, s{ssrc}, {n*2048}')
            it.append(f'buffer_load_dwordx4 {regfn(n,b)}, v{(va,vb)[b]}, {sr(S_WS,4)}, s{stmp} offen offset:{(i%2)*2048} {WSC}')
            items.append(it)
    return items


def slot_addr_setup(va, vb):
    a(f's_and_b32 s{sA}, s{sW1K}, 0x400')
    a(f'v_add_u32 v{va}, s{sA}, v{vL16}')
    a(f'v_xor_b32 v{vb}, 0x400, v{va}')


def cost(x):
    op = x.split()[0]
    return 2 if op.startswith(('v_exp', 'v_rcp', 'v_rsq')) else 1


def drip(q, budget):
    while q and budget >= cost(q[0]):
        x = q.pop(0)
        budget -= cost(x)
        a(x)


CAP = int(OPT.get('cap', 7))
G3 = int(OPT.get('g3', 1))
F1AT = int(OPT.get('f1at', 22))
PQSPLIT = int(OPT.get('pqsplit', 1))
WDP3 = int(OPT.get('wdp3', 36))
WDP1 = 0
PUBD2 = int(OPT.get('pubd2', 22))
PRET = int(OPT.get('pret', 1))
PUBD = int(OPT.get('pubd', 20))
S0T = int(OPT.get('s0t', 2))


def shadow(mem, vq, cap=None, pop=None):
    n0 = len(a.ins)
    for f in mem:
        if f is None:
            continue
        if callable(f):
            f()
        else:
            emit(f)
    budget = (CAP if cap is None else cap) - (len(a.ins) - n0)
    while vq and budget >= cost(vq[0]):
        budget -= cost(vq[0])
        if pop:
            pop()
        else:
            a(vq.pop(0))


def split_item(it):
    if it is None:
        return None, None
    return it[:-1], it[-1:]


ACK, ACV, ACQ = 128, 144, 160
P1WR = 176
P1RR2 = 216
p1D1, p1SA, p1SB = 204, 206, 207
p1RSW, p1RSR, p1OH = 208, 209, 210
LMODE = LRS + 1008


CARRY = []


def FAST():
    return MODE['sfx'] != '_s'


def p1_setup(first):
    if not first:
        x_prep(F0 + LYB, *((X1, ST1) if FAST() else (X0 + LYB, ST0 + LYB)))
    slot_addr_setup(p1SA, p1SB)
    a(f'v_and_b32 v{p1OH}, 27, v{vLANE}')
    a(f'v_cmp_eq_u32 vcc, 26, v{p1OH}')
    a(f'v_cndmask_b32 v{p1OH}, 0, 1.0, vcc')
    a(f'v_mov_b32 v{p1OH+1}, v{p1OH}')
    a(f's_add_u32 s{sA}, s{sW4K}, {LKVS}')
    a(f'v_and_b32 v{p1RSW}, 31, v{vLANE}')
    a(f'v_lshl_add_u32 v{p1RSW}, v{p1RSW}, 2, s{sA}')
    a(f'v_lshrrev_b32 v{p1RSR}, 5, v{vLANE}')
    a(f'v_lshl_add_u32 v{p1RSR}, v{p1RSR}, 4, s{sA}')
    dma_setup(p1D1, sW3SRC, 0, LALPHA)


LUC = 220
LUD = {1: 128, 2: 144, 3: 232}


def f1_addr():
    return [f's_lshl_b32 s{sG}, s{sHC}, 8',
            f's_lshl_b32 s{sB}, s{sRBG}, 4',
            f's_add_u32 s{sG}, s{sG}, s{sB}',
            f's_add_u32 s{sG}, s{sG}, {F1}',
            f's_cmp_lg_u32 s{sW}, 3\ns_cselect_b32 s{sG}, {OOB:#x}, s{sG}',
            f'v_lshlrev_b32 v{p1RSW}, 12, v{vLANE}',
            f'v_mov_b32 v{p1RSR}, 1']


def f1_store():
    a('s_mov_b64 exec, 15')
    a(f'buffer_store_dword v{p1RSR}, v{p1RSW}, {sr(S_LY,4)}, s{sG} offen sc1')
    a('s_mov_b64 exec, -1')
    stamp('p1pub')


def phase1_kv(first):
    WR, XAUG, RR, RR2, KVD = P1WR, P1_XAUG, ACQ, P1RR2, 232
    vRSW, vRSR, vOH = p1RSW, p1RSR, p1OH
    PRE = XPRE
    xt, vq, st = {}, [], {}
    if first:
        w1t = {}
        its = [(lambda k_=k_, it=it: w1t.__setitem__(k_, emit(it))) for k_, it in enumerate(dma_items(205, 0, 88, 2))]

        def ibl():
            a(f's_add_u32 s{sH}, s{sREP}, s{sW1K}')
            st['ib'] = a(f'buffer_load_dword v254, v{vL16}, {sr(S_WS,4)}, s{sH} offen offset:4 sc1')

        def lud(r, h):
            a(f's_add_u32 m0, s82, {r*2048 + h*1024}')
            st['lu'] = a(f'buffer_load_dwordx4 v{243+r}, {sr(LSRD[r],4)}, s{74+2*r+h} offen lds')
        its = its[:LUP] + [ibl] + [(lambda r=r, h=h: lud(r, h)) for r in (1, 2, 3) for h in range(2)] + its[LUP:]
        for _ in range(4):
            its.pop(0)()
        x0_stats(STA, 28, its)
        vq += ['v_add_f32 v216, v216, v217', 'v_add_f32 v217, v218, v219'] + stats_finish(P1_XAUG)
        stamp('stats')
    else:
        poll(S_LY, 240, f's{sC}')
        stamp('p1poll')
        for ks in range(4):
            xt[ks] = x_load(ks)
        a(f's_add_u32 s{S_LY}, s{S_LY}, {LYB}')
        a(f's_addc_u32 s{S_LY+1}, s{S_LY+1}, 0')
        a.barrier()
    bg = ([] if first else code_touch(205, 200)) + dma_items(p1D1, LALPHA, 56, 2)
    rt = {}
    stage = (0, 8, 16, 24) if first else ()

    def ib_check():
        a.wait(st['ib'])
        check_or_poll(254, S_WS, vL16, f's{sH}', imm=4, nonzero=True)
        a(f's_and_b32 s{sA}, s2, 7')
        a(f'v_and_b32 v252, 7, v{vLANE}')
        a(f'v_cmp_eq_u32 {sr(sC,2)}, s{sA}, v252')
        a(f'v_cmp_ne_u32 vcc, s{sXID}, v254')
        a(f's_and_b64 vcc, vcc, {sr(sC,2)}')
        a(f's_cselect_b32 s{sZW}, 1, 0')

    def rd(ks, tl):
        if ks > 28:
            return
        if ks in stage and tl == 0:
            a.wait(w1t[(ks + 8) // 2 - 1])
            a.barrier()
        d = WR + 8 * (ks % 3) + 4 * tl
        addr = (2 * ks + tl) * K
        rt[ks] = read_frag(d, addr) if ks < 28 else read_aug(d, addr, 252 + tl)
    for ks in range(2):
        rd(ks, 0); rd(ks, 1)
    if not first:
        for ks in range(4, PRE):
            xt[ks] = x_load(ks)
    rr = {}

    def stl(i):
        st['s'] = st_load(i)

    def xl(ks):
        xt[ks] = x_load(ks)

    def rs_write():
        a(f'ds_write2_b32 v{vRSW}, v{vRSTD}, v{vC2} offset0:0 offset1:32')

    def rs_read(j):
        a(f'ds_read_b128 {vr(RR+4*j,4)}, v{vRSR} offset:{32*j}')
        rr[0] = a(f'ds_read_b128 {vr(RR2+4*j,4)}, v{vRSR} offset:{128+32*j}')
    for ks in range(29):
        if not first and ks == 15:
            a.wait(st['s'])
            vq += stats_sum() + stats_finish(XAUG)
        a.wait(rt[ks], xt.get(ks))
        X = vr(16 + 4 * ks, 4) if ks < 28 else vr(XAUG, 4)
        c = (lambda r: '0' if ks == 0 else vr(r, 16))
        if not first and ks + PRE < 28:
            pre, main = None, (lambda k_=ks + PRE: xl(k_))
        elif first:
            pre, main = None, (its.pop(0) if its else None)
        else:
            pre, main = split_item(bg.pop(0) if bg and not first else None)
        a(f'{MF} {vr(ACK,16)}, {X}, {vr(WR+8*(ks%3),4)}, {c(ACK)}')
        shadow([pre, lambda: rd(ks + 2, 0), main], vq)
        a(f'{MF} {vr(ACV,16)}, {X}, {vr(WR+8*(ks%3)+4,4)}, {c(ACV)}')
        extra = None
        if not first and ks < 8 and ks % 2 == 0:
            extra = (lambda i=ks // 2: stl(i))
        if ks == 23:
            assert not vq
            extra = rs_write
        if 24 <= ks <= 27:
            extra = (lambda j=ks - 24: rs_read(j))
        shadow([lambda: rd(ks + 2, 1), extra], vq)
    stamp('p1kv')
    qt = {}

    def rq(ks):
        if ks > 28:
            return
        d = WR + 4 * (ks % 6)
        addr = (58 + ks) * K
        qt[ks] = read_frag(d, addr) if ks < 28 else read_aug(d, addr, 252)
    if not first:
        for ks in range(4):
            rq(ks)
    KS = LRS
    a(f's_lshl_b32 s{sB}, s{sHC}, 12')
    a(f's_add_u32 s{sB}, s{sB}, s{sW1K}')
    a.wait(rr[0])
    for r in range(0, 16, 2):
        a(f'v_pk_mul_f32 {vr(ACK+r,2)}, {vr(ACK+r,2)}, {vr(RR2+r,2)}')
    def bgp():
        if bg and EPD and not first:
            emit(bg.pop(0))
    for r in range(16):
        a(f'v_exp_f32_e64 v{RR2+r}, v{ACK+r} clamp')
        a(f'v_max_f32 v{ACK+r}, 0, v{ACK+r}')
        if r % 5 == 0:
            bgp()
    for r in range(0, 16, 2):
        a(f'v_pk_fma_f32 {vr(ACV+r,2)}, {vr(ACV+r,2)}, {vr(RR+r,2)}, {vr(vOH,2)}')
        a(f'v_pk_fma_f32 {vr(RR2+r,2)}, {vr(ACK+r,2)}, {sr(sLN2,2)}, {vr(RR2+r,2)}')
    bgp()
    for r in range(0, 16, 2):
        a(f'v_pk_add_f32 {vr(RR2+r,2)}, {vr(RR2+r,2)}, {sr(sEPS6,2)}')
        a(f'v_cvt_pk_bf16_f32 v{ACV+r//2}, v{ACV+r}, v{ACV+r+1}')
    bgp()
    for m in range(4):
        a(f'v_cvt_pk_bf16_f32 v{ACK+m}, v{RR2+2*m}, v{RR2+2*m+1}')
    a(f'{MF} {vr(KVD,16)}, {vr(ACK,4)}, {vr(ACV,4)}, 0')
    for m in range(4, 8):
        a(f'v_cvt_pk_bf16_f32 v{ACK+m}, v{RR2+2*m}, v{RR2+2*m+1}')
    a(f's_add_u32 s{sA}, s{sW4K}, {LKVS}')
    a(f'v_add_u32 v{vRSW}, s{sA}, v{vL16}')
    a(f'{MF} {vr(KVD,16)}, {vr(ACK+4,4)}, {vr(ACV+4,4)}, {vr(KVD,16)}')
    a(f's_add_u32 s{sA}, s{sW1K}, {LKVS}')
    a(f'v_add_u32 v{vRSR}, s{sA}, v{vL4}')
    if first:
        ib_check()
        a(f's_lshl_b32 s{sA}, s{sW}, 2')
        a(f's_add_u32 s{sA}, s{sA}, {LCS + 4*K}')
        a(f'v_mov_b32 v252, s{sA}')
        a(f'v_mov_b32 v253, s{sZW}')
        a('ds_write_b32 v252, v253')
        a(f'v_mov_b32 v252, {LCS + 4*K}')

    def qstep(ks, mem=(), vq_=None, early=False):
        if early and first:
            return
        a.wait(qt[ks])
        X = vr(16 + 4 * ks, 4) if ks < 28 else vr(XAUG, 4)
        a(f'{MF} {vr(ACQ,16)}, {vr(WR+4*(ks%6),4)}, {X}, {"0" if ks == 0 else vr(ACQ,16)}')
        shadow([lambda: rq(ks + 4)] + list(mem), vq_ if vq_ is not None else [])
    qstep(0, [bgp], early=True)
    for q in range(4):
        kw = a(f'ds_write_b128 v{vRSW}, {vr(KVD+4*q,4)} offset:{q*K}')
    qstep(1, [bgp], early=True)
    a.wait(kw)
    a.barrier()
    RED = RR2
    for wp in range(4):
        a(f'ds_read2st64_b32 {vr(RED+4*wp,2)}, v{vRSR} offset0:{16*wp} offset1:{16*wp+1}')
        t = a(f'ds_read2st64_b32 {vr(RED+4*wp+2,2)}, v{vRSR} offset0:{16*wp+2} offset1:{16*wp+3}')
    if first:
        mt = a(f'ds_read_b128 {vr(KVD,4)}, v252')
    qstep(2, early=True)
    a.wait(t)
    for i in range(4):
        a(f'v_add_f32 v{RED+i}, v{RED+i}, v{RED+4+i}')
        a(f'v_add_f32 v{RED+8+i}, v{RED+8+i}, v{RED+12+i}')
    for i in range(4):
        a(f'v_add_f32 v{RED+i}, v{RED+i}, v{RED+8+i}')
    for i in range(4):
        at = a(f'buffer_atomic_add_f32 v{RED+i}, v{vL4}, {sr(S_LY,4)}, s{sB} offen offset:{i*256}')
    stamp('p1atom')
    if first:
        a.wait(mt)
        a(f'v_or_b32 v{KVD}, v{KVD}, v{KVD+1}')
        a(f'v_or3_b32 v{KVD}, v{KVD}, v{KVD+2}, v{KVD+3}')
        a(f'v_readfirstlane_b32 s{sZW}, v{KVD}')
        for i in range(9):
            a(f'v_accvgpr_read_b32 v{LUC+i}, a{i}')
        a.wait(w1t[21], st['lu'])
        a.barrier()
        for ks in range(4):
            rq(ks)
        stamp('units')
        a(f's_cmp_lg_u32 s{sZW}, 0')
        a('s_cbranch_scc1 L_slow')
    return dict(qstep=qstep, at=at, qt=qt, bg=bg, us=st.get('us'), state=(a.vm_issued, a.vm_done, a.lg_issued, a.lg_done), qt0=dict(qt))


def phase1_q(ctx, first):
    qstep, at = ctx['qstep'], ctx['at']
    vRSW, vRSR, RR2 = p1RSW, p1RSR, P1RR2
    wo = wfrag_items(lambda n, b: vr(16 + 8 * n + 4 * b, 4), sWOSRC, 0, 8, p1SA, p1SB, sF)
    alpha = list(ctx['bg']) if first else []
    if not first:
        wo = list(ctx['bg']) + wo
    if first and FAST():
        wo = [[f's_cmp_ge_u32 s{sJ}, 28', f's_cselect_b32 s{sI}, {OOB:#x}, s{sOX}', f's_add_u32 s{sI}, s{sI}, {X1}',
               f'buffer_store_dwordx4 {vr(vXRES,4)}, v{vL16}, {sr(S_DT,4)}, s{sI} offen sc1'],
              [f'buffer_store_dwordx4 {vr(vXRES+4,4)}, v{vL16}, {sr(S_DT,4)}, s{sI} offen offset:1024 sc1']] + wo
    pqoff = PQ if (FAST() or first) else PQ + LYB
    vq = f1_addr() + [
          f's_lshl_b32 s{sA}, s{sTILE1}, 15',
          f's_lshl_b32 s{sB}, s{sHC}, 11',
          f's_add_u32 s{sA}, s{sA}, s{sB}',
          f's_add_u32 s{sA}, s{sA}, {pqoff}',
          f's_lshl_b32 s{sU}, s{sTILE1}, 9',
          f's_lshl_b32 s{sB}, s{sHC}, 5',
          f's_add_u32 s{sU}, s{sU}, s{sB}',
          f's_add_u32 s{sU}, s{sU}, {F1Q}',
          f'v_mov_b32 v{vC2+2}, v{vC2}']
    gt = {}

    def gath(k_):
        hh, e0 = k_ // 2, (k_ % 2) * 4
        r, half = 1 + hh // 2, hh % 2
        for e in range(e0, e0 + 4):
            gt[hh] = a(f'ds_read_u16 v{LUD[r]+8*half+e}, v{LUC+3*(r-1)} offset:{r*2048+(8*half+e)*128}')

    def pack(hh):
        r, half = 1 + hh // 2, hh % 2
        R = LUD[r] + 8 * half
        a.wait(gt[hh])
        for m in range(4):
            a(f'v_lshl_or_b32 v{R+m}, v{R+2*m+1}, 16, v{R+2*m}')

    def pst_(hh):
        r, half = 1 + hh // 2, hh % 2
        a(f'buffer_store_dwordx4 {vr(LUD[r]+8*half,4)}, v{LUC+3*(r-1)+1}, {sr(S_WS,4)}, 0 offen offset:{512*half} sc1')

    def csum():
        a(f's_lshl_b32 s{sC}, s{sW}, 8')
        a(f's_add_u32 s{sC}, s{sC}, {LCS}')
        a(f'v_add_u32 v229, s{sC}, v{vL4}')
        for r in (1, 2):
            R = LUD[r]
            a(f'v_mov_b32 v{R+4}, 0')
            for m in range(4):
                a(f'v_dot2c_f32_bf16 v{R+4}, s{sONES}, v{R+m}')
                a(f'v_dot2c_f32_bf16 v{R+4}, s{sONES}, v{R+8+m}')
            gt['cs'] = a(f'ds_write_b32 v229, v{R+4} offset:{r*1024}')
    for ks in range(0 if first else 3, 29):
        mem = []
        if first:
            if 4 <= ks <= 14 and ks % 2 == 0:
                mem.append(lambda h_=(ks - 4) // 2: pst_(h_))
            if ks < 12:
                mem.append(lambda k_=ks: gath(k_))
            if 3 <= ks <= 13 and ks % 2 == 1:
                mem.append(lambda h_=(ks - 3) // 2: pack(h_))
            if ks == 12:
                mem.append(csum)
        if ks % 2 == 1 and (not first or ks >= 5):
            mem.insert(0, wo.pop(0))
        qstep(ks, mem, vq)
        if ks == (F1AT0 if first else F1AT):
            assert not vq
            a.wait(at, gt.get('cs'))
            a.barrier()
            f1_store()
            if first:
                a(f's_mov_b32 s{sD}, s{sA}')
                us = aug_finish([1, 2], ucb=LUC - 3, R=132, t0=140, t1=141, t2=142)
                a(f's_mov_b32 s{sA}, s{sD}')
    a(f'v_mov_b32 v{ACK+7}, 0')
    a('s_nop 4')
    stamp('p1q')
    T = RR2
    for r in range(0, 14, 2):
        a(f'v_pk_mul_f32 {vr(ACQ+r,2)}, {vr(ACQ+r,2)}, {vr(vC2+1,2)} op_sel:[0,1] op_sel_hi:[1,1]')
    for r in range(14):
        a(f'v_exp_f32_e64 v{T+r}, v{ACQ+r} clamp')
        a(f'v_max_f32 v{ACQ+r}, 0, v{ACQ+r}')
    for r in range(0, 14, 2):
        a(f'v_pk_fma_f32 {vr(T+r,2)}, {vr(ACQ+r,2)}, {sr(sLN2,2)}, {vr(T+r,2)}')
    for r in range(0, 14, 2):
        a(f'v_pk_add_f32 {vr(T+r,2)}, {vr(T+r,2)}, {sr(sEPS6,2)}')
    for m in range(7):
        a(f'v_cvt_pk_bf16_f32 v{ACK+m}, v{T+2*m}, v{T+2*m+1}')
    sc = 'sc1' if first else LS()
    a(f'buffer_store_dwordx4 {vr(ACK,4)}, v{vL16}, {sr(S_DT,4)}, s{sA} offen {sc}')
    pst = a(f'buffer_store_dwordx4 {vr(ACK+4,4)}, v{vL16}, {sr(S_DT,4)}, s{sA} offen offset:1024 {sc}')
    if not FAST() and not first:
        a(f's_mov_b32 s{S_DT}, s{S_LY}')
        a(f's_mov_b32 s{S_DT+1}, s{S_LY+1}')
    for it in wo[:4]:
        emit(it)
    if first:
        a.wait(us)
    a.barrier()
    if first:
        ib_publish(0, vRSW, vRSR)
    a.wait(pst)
    emit(flag_store(S_LY, f's{sU}'))
    for it in wo[4:]:
        emit(it)
    if first and not FAST():
        poll(S_WS, vL16, f's{sH}', nonzero=True)
        a.barrier()
        for it in alpha:
            emit(it)
    p2_setup()
    stamp('p1end')


ACC0, ACC1 = 208, 224
AAC2, AAC3 = 224, 240


def accs(s):
    return [vr(ACC0, 16), vr(ACC1, 16), ar(AAC2, 16), ar(AAC3, 16)][s]


def red_setup(base, RA):
    o = []
    for s in (1, 2, 3):
        o += [f's_xor_b32 s{sA}, s{sW}, {s}',
              f's_mul_i32 s{sA}, s{sA}, 12288',
              f's_add_u32 s{sA}, s{sA}, {base + (s-1)*4096}',
              f'v_add_u32 v{RA+s}, s{sA}, v{vL16}']
    o += [f's_mul_i32 s{sA}, s{sW}, 12288',
          f's_add_u32 s{sA}, s{sA}, {base}',
          f'v_add_u32 v{RA}, s{sA}, v{vL16}']
    return o


def red_write(s, RA):
    o = []
    for q in range(4):
        d = [None, vr(ACC1 + 4 * q, 4), ar(AAC2 + 4 * q, 4), ar(AAC3 + 4 * q, 4)][s]
        o.append(f'ds_write_b128 v{RA+s}, {d} offset:{q*K}')
    return o


sOX, sOS, sOF = 97, 98, 99


def own_consts():
    a(f's_mul_i32 s{sOX}, s{sOWN}, {28*K}')
    a(f's_lshl_b32 s{sB}, s{sOFT}, 11')
    a(f's_add_u32 s{sOX}, s{sOX}, s{sB}')
    a(f's_lshl_b32 s{sOS}, s{sOWN}, 12')
    a(f's_cmp_ge_u32 s{sOFT}, 7')
    a(f's_cselect_b32 s{sA}, 7, 0')
    a(f's_cselect_b32 s{sB}, 512, 0')
    a(f's_add_u32 s{sOS}, s{sOS}, s{sB}')
    a(f's_sub_u32 s{sA}, s{sOFT}, s{sA}')
    a(f's_lshr_b32 s{sB}, s{sA}, 1')
    a(f's_lshl_b32 s{sB}, s{sB}, 10')
    a(f's_add_u32 s{sOS}, s{sOS}, s{sB}')
    a(f's_and_b32 s{sA}, s{sA}, 1')
    a(f's_lshl_b32 s{sA}, s{sA}, 3')
    a(f's_add_u32 s{sOS}, s{sOS}, s{sA}')
    a(f's_lshl_b32 s{sOF}, s{sOWN}, 9')
    a(f's_lshl_b32 s{sB}, s{sOFT}, 5')
    a(f's_add_u32 s{sOF}, s{sOF}, s{sB}')


def res_unpack(RU):
    o = []
    for m in range(8):
        o.append(f'v_lshlrev_b32 v{RU+2*m}, 16, v{vXRES+m}')
        o.append(f'v_and_b32 v{RU+2*m+1}, 0xffff0000, v{vXRES+m}')
    return o


def red_finish(final, RB, RU, RA, nm, xb, stb, flb, sc, mid, pre=()):
    for it in pre:
        emit(it)
    a.wait_lg0()
    a.barrier()
    toks = []
    for i in range(12):
        toks.append(a(f'ds_read_b128 {vr(RB+4*i,4)}, v{RA} offset:{i*K}'))
    if final is not True:
        a(f's_add_u32 s{sA}, s{sOX}, {xb}')
        a(f's_add_u32 s{sB}, s{sOS}, {stb}')
        a(f's_add_u32 s{sZW}, s{sOF}, {flb}')
    for r in range(0, 16, 2):
        a(f'v_pk_add_f32 {vr(ACC0+r,2)}, {vr(ACC0+r,2)}, {vr(RU+r,2)}')
    S, Q, t0, t1, tl = RU, RU + 1, RU + 2, RU + 3, RU + 4
    if final is not True:
        a(f'v_mov_b32 v{S}, 0')
        a(f'v_mov_b32 v{Q}, 0')
    for s in range(3):
        a.wait(toks[4 * s + 3])
        for r in range(0, 16, 2):
            a(f'v_pk_add_f32 {vr(ACC0+r,2)}, {vr(ACC0+r,2)}, {vr(RB+16*s+r,2)}')
    for m in range(8):
        a(f'v_cvt_pk_bf16_f32 v{vXRES+m}, v{ACC0+2*m}, v{ACC0+2*m+1}')
    if final is True:
        final_store()
        return
    if final == 'dyn':
        a(f's_cmp_lg_u32 s{sL}, 0')
        a('s_cbranch_scc1 ' + LB_('L_final'))
    a(f'buffer_store_dwordx4 {vr(vXRES,4)}, v{vL16}, {sr(S_DT,4)}, s{sA} offen {sc}')
    a(f'buffer_store_dwordx4 {vr(vXRES+4,4)}, v{vL16}, {sr(S_DT,4)}, s{sA} offen offset:1024 {sc}')
    for m in range(8):
        a(f'v_dot2c_f32_bf16 v{S}, s{sONES}, v{vXRES+m}')
        a(f'v_dot2c_f32_bf16 v{Q}, v{vXRES+m}, v{vXRES+m}')
    a(f'v_mov_b32 v{t0}, v{S}')
    a(f'v_mov_b32 v{t1}, v{Q}')
    a(f'v_permlane32_swap_b32 v{S}, v{t0}')
    a(f'v_permlane32_swap_b32 v{Q}, v{t1}')
    a(f'v_pk_add_f32 {vr(S,2)}, {vr(S,2)}, {vr(t0,2)}')
    a('s_mov_b32 exec_hi, 0')
    lt = a(f'buffer_store_dwordx2 {vr(S,2)}, v{vL16}, {sr(S_DT,4)}, s{sB} offen {sc}')
    a('s_mov_b64 exec, -1')
    stamp(nm + 'st')
    mid()
    a.wait(lt)
    emit(flag_store(S_LY, f's{sZW}'))


def final_store():
    a(f'v_and_b32 v18, 31, v{vLANE}')
    a(f'v_lshrrev_b32 v19, 5, v{vLANE}')
    a(f'v_mul_u32_u24 v{vROW}, 896, v18')
    a(f'v_lshl_add_u32 v{vROW}, v19, 4, v{vROW}')
    a(f's_mul_i32 s{sA}, s{sOWN}, 28672')
    a(f's_lshl_b32 s{sB}, s{sOFT}, 6')
    a(f's_add_u32 s{sA}, s{sA}, s{sB}')
    a(f'buffer_store_dwordx4 {vr(vXRES,4)}, v{vROW}, {sr(S_OUT,4)}, s{sA} offen {OSC}')
    a(f'buffer_store_dwordx4 {vr(vXRES+4,4)}, v{vROW}, {sr(S_OUT,4)}, s{sA} offen offset:32 {OSC}')


def idle_touch(base, per_wave_bytes, n, t=16):
    if not IDLE:
        return
    a(f's_sub_u32 s{sA}, s{sJ}, 28')
    a(f's_lshl_b32 s{sA}, s{sA}, 2')
    a(f's_add_u32 s{sA}, s{sA}, s{sW}')
    a(f's_mul_i32 s{sA}, s{sA}, {per_wave_bytes}')
    a(f's_add_u32 s{sA}, s{sA}, {base}')
    a(f'v_lshlrev_b32 v{t}, 7, v{vLANE}')
    for i in range(n):
        a(f'buffer_load_dword v{t+1}, v{t}, {sr(S_WS,4)}, s{sA} offen sc1')
        a(f's_add_u32 s{sA}, s{sA}, 8192')


def p2_setup():
    dma_setup(vROW, sW3SRC, 56 * K, LBETA)
    a(f'v_and_b32 v240, 3, v{vLANE}')
    a(f'v_lshlrev_b32 v240, 5, v240')
    a(f'v_bfe_u32 v241, v{vLANE}, 2, 1')
    a(f'v_lshl_add_u32 v240, v241, 9, v240')
    a(f's_lshl_b32 s{sC}, s{sTILE2}, 9')
    a(f's_lshl_b32 s{sA}, s{sW}, 7')
    a(f's_add_u32 s{sC}, s{sC}, s{sA}')
    a(f's_add_u32 s{sC}, s{sC}, {F1Q}')
    a(f's_lshl_b32 s{sE}, s{sOWN}, 15')
    a(f's_lshl_b32 s{sA}, s{sW}, 13')
    a(f's_add_u32 s{sE}, s{sE}, s{sA}')
    a(f's_add_u32 s{sE}, s{sE}, {PQ}')
    a(f's_xor_b32 s{sF}, s{sE}, 0x8000')
    a(f's_add_u32 s{sH}, s{sREP}, s{sW1K}')
    a(f's_add_u32 s{sH}, s{sH}, {F1}')
    a(f's_lshl_b32 s{sD}, s{sW}, 14')


def phase2(L):
    WO, PQR, KVR = 16, 80, 144
    ODS = (240, 160)
    KB = (144, 152, 176, 192)
    tag = f'{L}'
    beta = dma_items(vROW, LBETA, 56, 2)
    if L == 0:
        a(f's_add_u32 s{sI}, s{sW3SRC}, s{sW2K}')
        a(f's_add_u32 s{sG}, s{sREP}, s{sW1K}')
        al = []
        for r in range(7):
            al.append([f's_add_u32 m0, s{sW2K}, {LALPHA + r*8*K}', f's_add_u32 s85, s{sI}, {r*8*K}',
                       f'buffer_load_dwordx4 v{vL16}, {sr(S_WS,4)}, s85 offen sc1 lds'])
            al.append([f'buffer_load_dwordx4 v{vL16}, {sr(S_WS,4)}, s85 offen offset:1024 sc1 lds'])
        beta = al + beta
    a(f's_cmp_ge_u32 s{sJ}, 28')
    with cold('s_cbranch_scc1', back=LB_('L_p2skip' + tag)):
        if L == 0:
            poll(S_WS, vL16, f's{sG}', nonzero=True, sleep=2)
            a.barrier()
        for it in beta:
            emit(it)
        if L == 0:
            idle_touch(WDR, 7 * WDS // 16, IDN)
        elif L == 1:
            idle_touch(W3R + 112 * K, W3S, IDN)
        p3_setup(L)
        a.wait_vm0()
    with cond():
        poll(S_LY, 240, f's{sC}')
        stamp('p2pq')
        pt = {}
        for aa, s in ((1, sF), (0, sE)):
            for hl in range(4):
                for ks in range(2):
                    pt[hl, aa] = a(f'buffer_load_dwordx4 {vr(PQR+16*hl+8*aa+4*ks,4)}, v{vL16}, {sr(S_DT,4)}, s{s} offen offset:{(hl%2)*2048+ks*K} sc1')
                if hl == 1:
                    a(f's_add_u32 s{s}, s{s}, 4096')
                if aa == 1 and hl == 1:
                    fchk = a(f'buffer_load_dword v253, v{vL16}, {sr(S_LY,4)}, s{sH} offen sc1')
                if aa == 0 and hl == PQSPLIT:
                    break
        a.wait(fchk)
        check_or_poll(253, S_LY, vL16, f's{sH}', sleep=0)
        stamp('p2poll')
        kt = {}
        lq = []

        def kvl(hl, q):
            kt[hl] = a(f'buffer_load_dwordx4 {vr(KVR+16*hl+4*q,4)}, v{vL16}, {sr(S_LY,4)}, s{sD} offen offset:{q*K} sc1')
            if q == 3:
                a(f's_add_u32 s{sD}, s{sD}, 4096')

        def pql(hl, ks):
            pt[hl, 0] = a(f'buffer_load_dwordx4 {vr(PQR+16*hl+4*ks,4)}, v{vL16}, {sr(S_DT,4)}, s{sE} offen offset:{(hl%2)*2048+ks*K} sc1')
            if hl == 1 and ks == 1:
                a(f's_add_u32 s{sE}, s{sE}, 4096')
        if L == 0:
            bchk = a(f'buffer_load_dword v253, v{vL16}, {sr(S_WS,4)}, s{sG} offen sc1')
        for hl in range(4):
            for q in range(4):
                kvl(hl, q)
        if L == 0:
            a.wait(bchk)
            check_or_poll(253, S_WS, vL16, f's{sG}', nonzero=True, sleep=0)
            a.barrier()
        for hl in range(PQSPLIT + 1, 4):
            for ks in range(2):
                lq.append(lambda h_=hl, k_=ks: pql(h_, k_))
        wot = {}
        cw = []
        if CARRY:
            a(f's_and_b32 s{sA}, s{sW1K}, 0x400')
            a(f's_add_u32 s80, s{sWOSRC}, s{sA}')
            a(f's_xor_b32 s{sA}, s{sA}, 0x400')
            a(f's_add_u32 s81, s{sWOSRC}, s{sA}')
        ncw = 0
        for it in CARRY:
            m_ = re.match(r'buffer_load_dwordx4 ([va])\[(\d+):', it[-1])
            assert m_
            if m_.group(1) == 'v':
                k_ = (int(m_.group(2)) - 16) // 4

                def f(k_=k_):
                    a(f's_add_u32 s78, s{80 + k_ % 2}, {(k_ // 2) * 2048}')
                    wot[k_ // 4] = a(f'buffer_load_dwordx4 {vr(16+4*k_,4)}, v{vL16}, {sr(S_WS,4)}, s78 offen sc1')
                cw.append(f)
            else:
                ncw += 1
        CARRY[:] = []
        for f in cw[:CWN]:
            f()
        beta = cw[CWN:] + lq + beta
        wd2 = []
        if L != 1:
            a(f's_and_b32 s{sA}, s{sW1K}, 0x400')
            a(f's_add_u32 s76, s{sWDSRC}, s{sA}')
            a(f's_xor_b32 s{sA}, s{sA}, 0x400')
            a(f's_add_u32 s77, s{sWDSRC}, s{sA}')
            for k_ in range(WDP1 - ncw, WDP1 + WDP2):
                n_, b = k_ // 2, k_ % 2
                wd2.append([f's_add_u32 s78, s{76+b}, {n_*2048}',
                            f'buffer_load_dwordx4 {ar(8*n_+4*b,4)}, v{vL16}, {sr(S_WS,4)}, s78 offen sc1'])

        def cvt(hl):
            return [f'v_cvt_pk_bf16_f32 v{KB[hl]+m}, v{KVR+16*hl+2*m}, v{KVR+16*hl+2*m+1}' for m in range(8)]
        units = [(hl, aa) for aa in (1, 0) for hl in range(4)]

        def oM(u):
            hl, aa = units[u]
            D = vr(ODS[u % 2], 16)
            P = PQR + 16 * hl + 8 * aa
            return [f'{MF} {D}, {vr(KB[hl],4)}, {vr(P,4)}, 0',
                    f'{MF} {D}, {vr(KB[hl]+4,4)}, {vr(P+4,4)}, {D}']

        def scale(u):
            hl, aa = units[u]
            D = ODS[u % 2]
            P = PQR + 16 * hl + 8 * aa
            o = [f'v_add_f32 v{D+14}, s{sEPS6}, v{D+14}',
                 f'v_rcp_f32 v{D+14}, v{D+14}']
            for m in range(7):
                o.append(f'v_mul_f32 v{D+2*m}, v{D+2*m}, v{D+14}')
                o.append(f'v_mul_f32 v{D+2*m+1}, v{D+2*m+1}, v{D+14}')
                o.append(f'v_cvt_pk_bf16_f32 v{P+m}, v{D+2*m}, v{D+2*m+1}')
            return o

        def woM(u, bs):
            hl, aa = units[u]
            P = PQR + 16 * hl + 8 * aa
            o = []
            for b in bs:
                for ks in range(2):
                    D = accs(2 * aa + b)
                    c = '0' if (hl == 0 and ks == 0) else D
                    o.append(f'{MF} {D}, {vr(WO+16*hl+8*ks+4*b,4)}, {vr(P+4*ks,4)}, {c}')
            return o
        RU, RA = 160, 184
        a.wait(kt[0])
        emit(cvt(0))
        emit(oM(0))
        a.wait(kt[1])
        emit(cvt(1))
        m1 = oM(1)
        vs = scale(0)
        a(m1[0]); shadow([], vs)
        a(m1[1]); emit(vs)
        wr = []
        for u in range(9):
            if u < 4:
                ms = woM(u, (0, 1))
            elif u < 8:
                ms = woM(u, (1,)) + (woM(u - 2, (0,)) if u >= 6 else [])
            else:
                ms = woM(6, (0,)) + woM(7, (0,))
            vs = scale(u + 1) if u + 1 < 8 else []
            if u < 4:
                while any(getattr(x, '__name__', '') == 'f' and x.__defaults__[0] // 4 <= u for x in beta):
                    beta.pop(0)()
                a.wait(wot.get(u))
            if u < 2:
                a.wait(kt[u + 2])
                vs = cvt(u + 2) + vs
            if u == 2:
                vs = vs + red_setup(LB, RA)[:8]
            if u == 3:
                vs = vs + red_setup(LB, RA)[8:]
            if u == 4:
                wr = red_write(2, RA) + red_write(3, RA)
            if u == 7:
                vs = res_unpack(RU)
            if u == 8:
                wr = wr + red_write(1, RA)
            if u + 2 < 8:
                ms = ms[:2] + ['W'] + oM(u + 2) + ms[2:]
            k_ = 0
            for m in ms:
                if m == 'W':
                    a.wait(pt[units[u + 2]])
                    if u < 2:
                        while any(x in vs for x in cvt(u + 2)):
                            a(vs.pop(0))
                    continue
                a(m)
                mem = []
                if beta and k_ % 2 == 0:
                    mem.append(beta.pop(0))
                elif wd2 and k_ % 2 == 0:
                    mem.append(wd2.pop(0))
                if wr and (k_ % 2 == 1 or u == 8) and not (u in (4, 8) and k_ == 0):
                    mem.append(wr[:1]); wr = wr[1:]
                shadow(mem, vs)
                k_ += 1
            emit(vs)
        wd2 = beta + wd2
        stamp('p2mfma')
        emit(wr)
        sc = LS()
        red_finish(False, 80, RU, RA, 'p2', X1, ST1, F2, sc, lambda: p3_setup(L), pre=wd2)
    a.label(LB_('L_p2skip' + tag))
    stamp('p2end')


p3D1, p3D3, p3SA, p3SB = 228, 229, 240, 241
p3D2 = 243
p3FL, p3HA, p3HB, p3FV = 244, 245, 246, 247


def p3_setup(L):
    vFL, vHA, vHB = p3FL, p3HA, p3HB
    x_prep(F2, X1, ST1)
    dma_setup(p3D3, sW3SRC, 112 * K, LB)
    dma_setup(p3D1, sW3SRC, 147 * K, LALPHA)
    if L is None:
        a(f's_cmp_lg_u32 s{sL}, 0')
        a(f's_cselect_b32 s{sA}, {OOB:#x}, s{sW1SRC}')
        a(f'v_add_u32 v{p3D2}, s{sA}, v{vL16}')
    elif L == 0:
        a(f'v_add_u32 v{p3D2}, s{sW1SRC}, v{vL16}')
    a(f's_mul_i32 s{sG}, s{sTILE1}, {112*K}')
    a(f's_mul_i32 s{sA}, s{sHC}, {7*K}')
    a(f's_add_u32 s{sG}, s{sG}, s{sA}')
    a(f's_add_u32 s{sG}, s{sG}, {HB}')
    a(f's_add_u32 s{sH}, s{sG}, 4096')
    a(f's_lshl_b32 s{sU}, s{sTILE1}, 9')
    a(f's_lshl_b32 s{sA}, s{sHC}, 2')
    a(f's_add_u32 s{sU}, s{sU}, s{sA}')
    a(f's_add_u32 s{sU}, s{sU}, {F3}')


def p4_addr():
    vFL, vHA, vHB = p3FL, p3HA, p3HB
    return [f'v_and_b32 v{vFL}, 3, v{vLANE}',
            f'v_lshlrev_b32 v{vFL}, 2, v{vFL}',
            f'v_bfe_u32 v{vHA}, v{vLANE}, 2, 1',
            f'v_lshl_add_u32 v{vFL}, v{vHA}, 9, v{vFL}',
            f's_lshl_b32 s{sA}, s{sTILE2}, 9',
            f's_lshl_b32 s{sB}, s{sW}, 4',
            f's_add_u32 s{sA}, s{sA}, s{sB}',
            f's_add_u32 s85, s{sA}, {F3}',
            f'v_add_u32 v{vFL}, s85, v{vFL}',
            f's_mul_i32 s{sB}, s{sW}, {28*K}',
            f's_add_u32 s{sB}, s{sB}, {HB}',
            f's_mul_i32 s{sA}, s{sOWN}, {112*K}',
            f's_add_u32 s{sA}, s{sA}, s{sB}',
            f'v_add_u32 v{vHA}, s{sA}, v{vL16}',
            f's_xor_b32 s{sA}, s{sOWN}, 1',
            f's_mul_i32 s{sA}, s{sA}, {112*K}',
            f's_add_u32 s{sA}, s{sA}, s{sB}',
            f'v_add_u32 v{vHB}, s{sA}, v{vL16}']


def phase34(L):
    ACC = 128
    WR, NW = 192, 8
    SB = 176
    XAUG = 224
    vD1, vD3, vSA, vSB, vD2 = p3D1, p3D3, p3SA, p3SB, p3D2
    vFL, vHA, vHB, vFV = p3FL, p3HA, p3HB, p3FV
    vFV2 = 242
    PRE = XPRE
    HR, NH = 16, 28
    tag = f'{L}'
    LOOK = 6
    NG = 3 if G3 else 2
    steps = [(t, ks) for ks in range(29) for t in range(NG)]
    for t in range(NG, 7):
        steps += [(t, ks) for ks in range(29)]

    def addr(t, ks):
        if G3 and t < 3:
            p = 3 * ks + t
            return LALPHA + p * K if p < 56 else LBETA + (p - 56) * K
        if ks == 28 and t < 3:
            return LBETA + t * K
        if t < 2:
            return LALPHA + (2 * ks + t) * K
        if t == 2:
            return LBETA + (3 + ks) * K
        if t == 3:
            return LBETA + (31 + ks) * K
        if t == 4:
            return LB + (4 + ks) * K
        if t == 5:
            return LALPHA + ks * K
        return LALPHA + (29 + ks) * K if ks < 27 else LB + (33 + ks - 27) * K
    n = len(steps)
    accof = {0: 0, 1: 1, 2: 2, 3: 3, 4: 0, 5: 1, 6: 2}
    rt, xt, hst, ht, chk = {}, {}, {}, {}, {}

    def hsc(t):
        return LS() if (L == 1 and t >= HPL) else 'sc1'

    def epi(t, D=None, Sx=None):
        Sx = ACC + 16 * accof[t] if Sx is None else Sx
        D = Sx if D is None else D
        o = []
        for r in range(8):
            o.append(f'v_mul_f32 v{D+r}, v{Sx+r}, v{vC2}')
        for r in range(8):
            o.append(f'v_exp_f32_e64 v{D+r}, -v{D+r}')
            if r >= 2:
                o.append(f'v_fma_f32 v{D+r-2}, v{D+r-2}, v{vISTD}, v{vISTD}')
        for r in (6, 7):
            o.append(f'v_fma_f32 v{D+r}, v{D+r}, v{vISTD}, v{vISTD}')
        for r in range(8):
            o.append(f'v_rcp_f32 v{D+r}, v{D+r}')
            if r >= 2:
                o.append(f'v_mul_f32 v{D+r-2}, v{D+r-2}, v{Sx+8+r-2}')
        for r in (6, 7):
            o.append(f'v_mul_f32 v{D+r}, v{D+r}, v{Sx+8+r}')
        for m in range(4):
            o.append(f'v_cvt_pk_bf16_f32 v{D+8+m}, v{D+2*m}, v{D+2*m+1}')
        s = sG if t < 4 else sH
        o.append(f'buffer_store_dwordx4 {vr(D+8,4)}, v{vL16}, {sr(S_DT,4)}, s{s} offen offset:{(t%4)*K} {hsc(t)} ; H{t}')
        return o

    def issue_rd(i):
        if i >= n:
            return
        t, ks = steps[i]
        d = WR + 4 * (i % NW)
        rt[i] = read_frag(d, addr(t, ks)) if ks < 28 else read_aug(d, addr(t, ks), 251 + (i % 3))

    def flag_ld(stg):
        if stg == 0 or not FAST():
            chk[stg] = a(f'buffer_load_dword v{vFV}, v{vFL}, {sr(S_LY,4)}, 0 offen offset:{64*stg} sc1')
        else:
            a(f's_buffer_load_dwordx4 s[76:79], {sr(S_LY,4)}, s85 offset:{64*stg}')
            a(f's_buffer_load_dwordx4 s[80:83], {sr(S_LY,4)}, s85 offset:{64*stg+512}')

    def flag_chk(stg):
        if FAST():
            a('s_waitcnt lgkmcnt(0)')
            a('s_and_b64 s[76:77], s[76:77], s[78:79]')
            a('s_and_b64 s[80:81], s[80:81], s[82:83]')
            a('s_and_b64 s[76:77], s[76:77], s[80:81]')
            a('s_and_b32 s76, s76, s77')
        else:
            a.wait(chk[stg])
            a(f'v_cmp_ne_u32 vcc, 1, v{vFV}')
            a('s_cmp_eq_u64 vcc, 0')
        assert 6 in hst
        with cold('s_cbranch_scc0'):
            a.wait_vm0()
            emit(flag_store(S_LY, f's{sU}', imm=128))
            emit(flag_store(S_LY, f's{sU}', imm=192))
            poll(S_LY, vFL, 0, imm=64 * stg)

    CHK = {24: 1, 40: 2, 48: 3}

    def hld(idx, chkflags=True):
        if idx >= 56:
            return
        if chkflags and idx + 4 in CHK:
            flag_ld(CHK[idx + 4])
        if chkflags and idx in CHK:
            flag_chk(CHK[idx])
        n_, aa = idx // 2, idx % 2
        t, cc = n_ // 4, n_ % 4
        if aa == 0:
            a(f's_mov_b32 s{sE}, {(cc*7+t)*K}')
        ht[idx] = a(f'buffer_load_dwordx4 {vr(HR+4*(idx%NH),4)}, v{(vHA,vHB)[aa]}, {sr(S_DT,4)}, s{sE} offen sc1')

    a.wait_lg0()
    if BEARLY:
        a.barrier()
        for i in range(LOOK):
            issue_rd(i)
    poll(S_LY, 240, f's{sC}')
    stamp('p3poll')
    for ks in range(4):
        xt[ks] = x_load(ks)
    if not BEARLY:
        a.barrier()
        for i in range(LOOK):
            issue_rd(i)
    for ks in range(4, PRE):
        xt[ks] = x_load(ks)
    fill, owner = [], []
    done_at = {}
    wd = [] if L == 1 else wfrag_items(lambda n_, b: ar(8 * n_ + 4 * b, 4), sWDSRC, (WDP1 + WDP2) // 2, 28, vSA, vSB, sF)
    ft = [[f'v_and_b32 v233, 0x80, v{vL4}', f'buffer_load_dword v233, v233, {sr(S_LY,4)}, s{sU} offen sc1']] if FT else []
    if HT and FAST() and (L == 1 or HT > 1):
        ft += [[f'v_min_u32 v234, 55, v{vLANE}', f'v_lshlrev_b32 v234, 7, v234', f'buffer_load_dword v234, v234, {sr(S_DT,4)}, s{sG} offen sc1']]
    bg = dma_items(vD3, LB, 36, 1) + ['M3'] + ft + wd[:WDP3]
    wd4 = wd[WDP3:]
    assert len(wd4) <= 16
    marks = {}
    cur = [0]

    def pop():
        x = fill.pop(0); o = owner.pop(0)
        t = a(x)
        if '; H' in x:
            hst[o] = (t, cur[0])

    def pub(stg, last_tile):
        a.wait(hst[last_tile][0])
        emit(flag_store(S_LY, f's{sU}', imm=64 * stg))

    def xl(ks):
        xt[ks] = x_load(ks)

    def next_bg():
        while bg and isinstance(bg[0], str):
            marks[bg.pop(0)] = mark()
        return bg.pop(0) if bg else None
    pubs = [(0, 2), (1, 4)]
    for i, (t, ks) in enumerate(steps):
        cur[0] = i
        if i == (45 if G3 else 34):
            a.wait(chk['st'])
            s_ = [f's_and_b32 s{sA}, s{sW1K}, 0x400', f'v_add_u32 v{vSA}, s{sA}, v{vL16}', f'v_xor_b32 v{vSB}, 0x400, v{vSA}'] + \
                stats_sum(SB) + stats_finish(XAUG, SB) + p4_addr()
            fill += s_; owner += [-1] * len(s_)
        stamp(f'i{i}', fine=True) if i in (1, 30, 57, 87, 116, 145, 174) else None
        if i % 2 == 0:
            a.wait(rt[min(i + 1, n - 1)], xt.get(steps[min(i + 1, n - 1)][1]), xt.get(ks))
        if i == 56:
            a.barrier()
            k3 = bg.index('M3') + 1 if 'M3' in bg else 0
            bg = bg[:k3] + dma_items(vD1, LALPHA, 56, 2) + ['M4'] + code_touch(232, 233) + bg[k3:]
        if i + LOOK == 112:
            a.wait(marks['M3'])
            a.barrier()
        if i + LOOK == 145:
            a.wait(marks['M4'])
            a.barrier()
            bg = code_touch(232, 233) + bg
        D = vr(ACC + 16 * accof[t], 16)
        if ks == 0 and t >= 4:
            assert (t - 4) not in owner
        if ks == 28:
            assert -1 not in owner
        X = vr(16 + 4 * ks, 4) if ks < 28 else vr(XAUG, 4)
        a(f'{MF} {D}, {vr(WR+4*(i%NW),4)}, {X}, {"0" if ks == 0 else D}')
        if ks == 28:
            done_at[t] = i
        for tt, di in list(done_at.items()):
            if i >= di + 2:
                e = epi(tt)
                fill += e; owner += [tt] * len(e)
                del done_at[tt]
        pre = main = None
        if t == 0 and ks + PRE < 28:
            main = (lambda k_=ks + PRE: xl(k_))
        elif t == NG - 1 and ks < 8 and ks % 2 == 0:
            main = (lambda k_=ks // 2: chk.__setitem__('st', st_load(k_, SB)))
        elif G3 and t == 2 and ks + PRE < 28 and ks % 2 == 0 and 'M3' not in marks:
            pre, main = split_item(next_bg())
        elif t == 6:
            if ks % 2 == 1:
                main = (lambda k_=ks // 2: hld(k_))
        elif i == 173:
            main = lambda: flag_ld(0)
        elif i % 2 == 0 and i >= NG * (28 - PRE):
            pre, main = split_item(next_bg())
        extra = None
        if fill and '; H' in fill[0]:
            extra = pop
        elif pubs and pubs[0][1] in hst and i >= hst[pubs[0][1]][1] + PUBD and i % 2 == 1:
            extra = (lambda p=pubs.pop(0): pub(*p))
        n0 = len(a.ins)
        for f in (pre, lambda: issue_rd(i + LOOK), main, extra):
            if f is None:
                continue
            f() if callable(f) else emit(f)
        budget = CAP3 - (len(a.ins) - n0) - (i % 2)
        while fill and '; H' not in fill[0] and budget >= cost(fill[0]):
            budget -= cost(fill[0])
            pop()
    assert not pubs and next_bg() is None, len(bg)
    print('P3: h stores at steps', {t: v[1] for t, v in hst.items()}, 'left', len(fill))
    assert not fill and 5 in hst
    stamp('p3mfma')

    RU, RA = 192, 128
    w1 = [] if L == 1 else dma_items(vD2, 0, 88, 2)
    nxt = (lambda: p1_setup(False)) if L != 1 else (lambda: None)
    a(f's_cmp_ge_u32 s{sJ}, 28')
    with cold('s_cbranch_scc1', back=LB_('L_p4skip' + tag)):
        emit(epi(6))
        pub(2, 5)
        a.barrier()
        a.wait_vm0()
        emit(flag_store(S_LY, f's{sU}', imm=192))
        if L == 0:
            idle_touch(W1R, W1S, 11)
        if L == 1 and WB:
            a('buffer_wbl2 sc1')
        for it in w1:
            emit(it)
        nxt()
    with cond():
        a.wait(chk[0])
        a(f'v_cmp_ne_u32 vcc, 1, v{vFV}')
        a('s_cmp_eq_u64 vcc, 0')
        saved = dict(ht)
        with cold('s_cbranch_scc0'):
            emit(epi(6, D=ACC + 48))
            a.wait_vm0()
            emit(flag_store(S_LY, f's{sU}', imm=128))
            emit(flag_store(S_LY, f's{sU}', imm=192))
            poll(S_LY, vFL, 0, imm=0)
            for idx in range(14):
                hld(idx, False)
            a.wait_vm0()
        ht.update(saved)
        fill = epi(6)
        owner = [6] * len(fill)
        later = red_setup(LALPHA, RA) + res_unpack(RU)
        TAIL = 8
        nld = [14]
        todo = ['pub2', 'pub3']
        wt = {}

        def mf(n_, s):
            aa, b = s >> 1, s & 1
            D = accs(s)
            a(f'{MF} {D}, {ar(8*n_+4*b,4)}, {vr(HR+4*((2*n_+aa)%NH),4)}, {"0" if n_ == 0 else D}')

        def sh(step, load):
            cur[0] = step
            n0 = len(a.ins)
            if load:
                if nld[0] < 56:
                    hld(nld[0]); nld[0] += 1
                elif w1:
                    emit(w1.pop(0))
            elif todo and todo[0] == 'pub2' and step >= 13:
                pub(2, 5); todo.pop(0)
            elif todo and todo[0] == 'pub3' and 6 in hst and step >= hst[6][1] + PUBD2:
                pub(3, 6); todo.pop(0)
                fill.extend(later); owner.extend([-2] * len(later))
            elif wd4:
                wt[0] = emit(wd4.pop(0))
            if step >= 1:
                if fill and '; H' in fill[0]:
                    pop()
                budget = CAP - (len(a.ins) - n0)
                while fill and '; H' not in fill[0] and budget >= cost(fill[0]):
                    budget -= cost(fill[0])
                    pop()
        for n_ in range(28 - TAIL):
            if n_ == P4B:
                a.barrier()
            stamp(f'n{n_}') if ('p4prof' in OPT and n_ in (2, 4, 8, 13, 15, 17)) else None
            a.wait(ht[2 * n_])
            mf(n_, 0); sh(4 * n_, True)
            mf(n_, 1); sh(4 * n_ + 1, False)
            a.wait(ht[2 * n_ + 1])
            mf(n_, 2); sh(4 * n_ + 2, True)
            mf(n_, 3); sh(4 * n_ + 3, 10 <= n_ < 16)
        assert nld[0] == 56 and not fill and not todo and not wd4
        stamp('n20') if 'p4prof' in OPT else None
        a.wait(wt.get(0))
        pend = []
        for s in (3, 2, 1, 0):
            for k_, n_ in enumerate(range(28 - TAIL, 28)):
                a.wait(ht[2 * n_ + 1])
                mf(n_, s)
                if k_ % 2 == 1 and pend:
                    emit(pend[:1]); pend = pend[1:]
                elif w1 and k_ % 2 == 0 and len(w1) > W1KEEP:
                    emit(w1.pop(0))
            if s > 0:
                pend = red_write(s, RA)
        stamp('p4mfma')

        def mid():
            for it in w1:
                emit(it)
            nxt()
        final = {0: False, 1: True, None: 'dyn'}[L]
        xb, stb = (X1, ST1) if FAST() else (X0 + LYB, ST0 + LYB)
        pre4 = w1[:len(w1) // 4 * 2]; w1 = w1[len(pre4):]
        red_finish(final, 16, RU, RA, 'p4', xb, stb, F0 + LYB, LS(), mid, pre=pre4)
    a.label(LB_('L_p4skip' + tag))
    if L != 1:
        stamp('p4end')


def restore(ctx):
    a.vm_issued, a.vm_done, a.lg_issued, a.lg_done = ctx['state']
    ctx['qt'].clear(); ctx['qt'].update(ctx['qt0'])


def build():
    prologue()
    init_phase()
    MODE.update(sc='', sfx='')
    ctx = phase1_kv(True)
    phase1_q(ctx, True)
    phase2(0)
    phase34(0)
    c2 = phase1_kv(False)
    phase1_q(c2, False)
    phase2(1)
    phase34(1)
    a.label('L_done')
    if PROFILE:
        stamp('end')
        a(f's_lshl_b32 s{sA}, s2, 2')
        a(f's_add_u32 s{sA}, s{sA}, s{sW}')
        a(f's_lshl_b32 s{sA}, s{sA}, 8')
        a(f's_add_u32 s{sA}, s{sA}, {PROF}')
        a(f'buffer_store_dword v{vPROF}, v{vL4}, {sr(S_WS,4)}, s{sA} offen')
        if 'dbgout' in OPT:
            a(f's_lshl_b32 s{sA}, s2, 2')
            a(f's_add_u32 s{sA}, s{sA}, s{sW}')
            a(f's_cmp_lg_u32 s{sA}, {77*4+1}')
            a('s_cbranch_scc1 L_end')
            a(f'v_readfirstlane_b32 s{sA}, v{vPROF}')
            a(f'v_subrev_u32 v{vPROF}, s{sA}, v{vPROF}')
            a(f'v_lshlrev_b32 v20, 1, v{vLANE}')
            a(f'v_subrev_u32 v20, {2*int(OPT["dbgout"])}, v20')
            a(f'buffer_store_short v{vPROF}, v20, {sr(S_DBG,4)}, 0 offen sc1')
    a.label('L_end')
    a('s_endpgm')
    a.flush_cold()
    a.label('L_codeend')
    keep = list(STAMPS)
    a.label('L_slow')
    MODE.update(sc='sc1', sfx='_s')
    restore(ctx)
    a('s_nop 7')
    phase1_q(ctx, True)
    a.label('L_layer_s')
    a('s_nop 7')
    phase2(None)
    phase34(None)
    a(f's_cmp_lg_u32 s{sL}, 0')
    a('s_cbranch_scc1 L_done')
    a(f's_mov_b32 s{sL}, 1')
    c2 = phase1_kv(False)
    phase1_q(c2, False)
    a('s_branch L_layer_s')
    a.label('L_final_s')
    final_store()
    a('s_branch L_done')
    a.flush_cold()
    STAMPS[:] = keep


build()
hdr = open('cdna_kernels/' + NAME + '.s.ref').read().split('; Override launch')[0]
out = hdr + f"""; @launch grid=(256,1,1) block=(256,1,1) lds={LDS_BYTES}
.amdgcn_target "amdgcn-amd-amdhsa--gfx950"
.text
.globl {NAME}_kernel
.p2align 8
.type {NAME}_kernel,@function
{NAME}_kernel:
{a.text()}
.section .rodata,"a"
.p2align 6
.amdhsa_kernel {NAME}_kernel
  .amdhsa_next_free_vgpr 512
  .amdhsa_next_free_sgpr 102
  .amdhsa_accum_offset 256
  .amdhsa_group_segment_fixed_size 0
  .amdhsa_kernarg_size 80
  .amdhsa_user_sgpr_count 2
  .amdhsa_user_sgpr_kernarg_segment_ptr 1
  .amdhsa_system_sgpr_workgroup_id_x 1
  .amdhsa_float_denorm_mode_32 3
.end_amdhsa_kernel
"""
outfn = [x for x in sys.argv[1:] if not x.startswith('--')][0]
open(outfn, 'w').write(out)
open(outfn + '.names', 'w').write(','.join(STAMPS))
print('instructions', len(a.ins), 'nops added', a.nops_added)
```

```python
import sys
import contextlib
import re
from asmlib import Asm, vr, ar, sr

NAME = "interleave_layers__linear_attn_block__glu_gated_glu__prompt"
OPT = {}
for x in sys.argv[1:]:
    if x.startswith('--'):
        k, _, v = x[2:].partition('=')
        OPT[k] = v if v else True
PROFILE = 'prof' in OPT
FINE = 'fine' in OPT
CLK = 'clk' in OPT
STOP = OPT.get('stop')
FA = 1
SLEEP = int(OPT.get('sleep', 1))
TOUCH = int(OPT.get('touch', 0))
BUD = int(OPT.get('bud', 3))
XPRE = int(OPT.get('xpre', 8))
HPRE = int(OPT.get('hpre', 16))
HSC = int(OPT.get('hsc', 0))
XSC = int(OPT.get('xsc', 0))
TLBW = int(OPT.get('tlbw', 0))
XI = int(OPT.get('xi', 4))
XA = int(OPT.get('xa', 10))
CT = int(OPT.get('ct', 1))
FT = int(OPT.get('ft', 0))
HT = int(OPT.get('ht', 0))
X0N = int(OPT.get('x0n', 0))
IDLE = int(OPT.get('idle', 0))
OSC = OPT.get('osc', '')
PQSC = int(OPT.get('pqsc', 0))
WB = int(OPT.get('wb', 0))
IDN = int(OPT.get('idn', 11))
HPL = int(OPT.get('hpl', 9))
G3 = int(OPT.get('g3', 1))
P4B = int(OPT.get('p4b', 1))
BEARLY = int(OPT.get('bearly', 1))
WDP2 = int(OPT.get('wdp2', 4))
W1KEEP = int(OPT.get('w1keep', 0))
CARRYON = int(OPT.get('carry', 0))
CWN = int(OPT.get('cwn', 4))
EPD = int(OPT.get('epd', 1))
STA = int(OPT.get('sta', 10))
LUP = int(OPT.get('lup', 16))
F1AT0 = int(OPT.get('f1at0', 22))
CAP3 = int(OPT.get('cap3', 7))
WSC = '' if 'nowsc' in OPT else 'sc1'
STAMPS = []

IB = 0x0
W1R = 0x100000; W1S = 87 * 1024
WOR = 0x280000
W3R = 0x300000; W3S = 203 * 1024
WDR = 0x680000; WDS = 224 * 1024
LYB = 0x1000000
KV = 0x0
F1 = 0x10000
F1Q = 0x18000
F3 = 0x30000
F2 = 0x20000
F0 = 0x28000
ST1 = 0x40000
ST0 = 0x80000
PQ = 0x100000
X1 = 0x300000
X0 = 0x500000
HB = 0x700000
PROF = 0x3000000
WS_BYTES = 256 << 20
OOB = 0x40000000

K = 1024
LBETA, LB, LALPHA = 0, 56 * K, 104 * K
LRS = 87 * K
LKVS = 88 * K
LDS_BYTES = 160 * K

S_WS, S_X, S_WQKV, S_WO, S_WG, S_WU, S_WD, S_OUT, S_DBG = 4, 8, 12, 16, 20, 24, 28, 32, 36
S_T0, S_T1 = 40, 44
S_LY = 40
S_DT = 44
sW, sJ, sHC, sTB, sFB, sL, sTMO, sPI = 48, 49, 50, 51, 52, 53, 54, 55
sTILE1, sTILE2, sOWN, sOFT = 56, 57, 58, 59
sLN2, sEPS6 = 60, 62
sONES = 84
sW1K, sW2K, sW4K = 64, 65, 66
sW1SRC, sW3SRC, sWOSRC, sWDSRC = 67, 68, 69, 70
sRBG, sREP = 71, 72
sG, sH, sI = 73, 74, 75
sA, sB, sC, sD, sE, sF = 86, 87, 88, 89, 90, 91
sP0 = 92
sU = 94
sXID = 95
sZW = 96
sPC = 100

vLANE, vL16, vL16b, vL16c, vROW, vAUG, vL4, vPROF = 0, 1, 2, 3, 4, 5, 6, 7
vXRES = 8
LOG2E = 0x3FB8AA3B
LN2 = 0x3F317218
EPS6 = 0x358637BD
EPS5 = 0x3727C5AC
INV448 = 0x3B124925
MF = 'v_mfma_f32_32x32x16_bf16'

a = Asm()
MODE = {'sc': 'sc1', 'sfx': ''}


def LS():
    return MODE['sc']


def LL():
    return OPT.get('ll', 'sc1').replace('none', '') if MODE['sc'] == '' else 'sc1'


def ALIAS():
    return MODE['sfx'] == '' and 'noalias' not in OPT


def XS():
    return 'sc1' if XSC else LS()


def HS():
    return 'sc1' if HSC else LS()


def LB_(n):
    return n + MODE['sfx']


@contextlib.contextmanager
def cond():
    st = (a.vm_issued, a.vm_done, a.lg_issued, a.lg_done)
    yield
    a.vm_issued, a.vm_done, a.lg_issued, a.lg_done = st


@contextlib.contextmanager
def cold(branch, back=None):
    C = a.uid('Lc'); R = back or a.uid('Lr')
    a(f'{branch} {C}')
    st = (a.vm_issued, a.vm_done, a.lg_issued, a.lg_done)
    a.begin_cold()
    a.label(C)
    a('s_nop 7')
    a('s_nop 3')
    yield
    a('s_nop 4')
    a(f's_branch {R}')
    a.end_cold()
    a.vm_issued, a.vm_done, a.lg_issued, a.lg_done = st
    if back is None:
        a.label(R)


def mark():
    return ('vm', a.vm_issued - 1)


def lds_addr(addr):
    if addr < 65536:
        return vL16, addr
    if addr < 131072:
        return vL16b, addr - 65536
    return vL16c, addr - 131072


def stamp(name, fine=False):
    if not PROFILE or (fine and not FINE):
        return
    STAMPS.append(name)
    a('s_waitcnt lgkmcnt(0)')
    a(f"{'s_memtime' if CLK else 's_memrealtime'} {sr(sP0,2)}")
    a.wait_lg0()
    a(f'v_cmp_eq_u32 vcc, s{sPI}, v{vLANE}')
    a(f'v_mov_b32 v255, s{sP0}')
    a(f'v_cndmask_b32 v{vPROF}, v{vPROF}, v255, vcc')
    a(f's_add_u32 s{sPI}, s{sPI}, 1')


def srd(base, lo, nbytes):
    a(f's_mov_b32 s{base}, s{lo}')
    a(f's_and_b32 s{base+1}, s{lo+1}, 0xffff')
    a(f's_mov_b32 s{base+2}, {nbytes}')
    a(f's_mov_b32 s{base+3}, 0x00020000')


def poll(srdreg, vaddr, soff, imm=0, t=254, sleep=0, nonzero=False):
    L = a.uid('Lpoll'); D = a.uid('Lpd')
    a.label(L)
    if sleep:
        a(f's_sleep {sleep}')
    a(f'buffer_load_dword v{t}, v{vaddr}, {sr(srdreg,4)}, {soff} offen offset:{imm} sc1')
    a(f's_sub_u32 s{sTMO}, s{sTMO}, 1')
    a(f's_max_i32 s{sTMO}, s{sTMO}, 0')
    a(f's_cselect_b64 {sr(sP0,2)}, exec, 0')
    a.wait_vm0()
    a(f'v_cmp_eq_u32 vcc, 0, v{t}' if nonzero else f'v_cmp_ne_u32 vcc, 1, v{t}')
    a(f's_and_b64 exec, {sr(sP0,2)}, vcc')
    a(f's_cbranch_scc1 {L}')
    a('s_mov_b64 exec, -1')


def check_or_poll(v, srdreg, vaddr, soff, imm=0, nonzero=False, sleep=1, t=254):
    a(f'v_cmp_eq_u32 vcc, 0, v{v}' if nonzero else f'v_cmp_ne_u32 vcc, 1, v{v}')
    a('s_cmp_eq_u64 vcc, 0')
    with cold('s_cbranch_scc0'):
        poll(srdreg, vaddr, soff, imm=imm, nonzero=nonzero, sleep=sleep, t=t)


def code_touch(t, d):
    if not CT:
        return []
    return [[f'v_and_b32 v{t}, 3, v{vLANE}',
             f'v_lshlrev_b32 v{t}, 7, v{t}',
             f'global_load_dword v{d}, v{t}, {sr(sPC,2)}']]


def flag_store(srdreg, soff, imm=0, t=254, sc=None):
    sc = LS() if sc is None else sc
    return [f'v_mov_b32 v{t}, 1',
            's_mov_b64 exec, 1',
            f'buffer_store_dword v{t}, off, {sr(srdreg,4)}, {soff} offset:{imm} {sc}',
            's_mov_b64 exec, -1']


def emit(lst):
    t = None
    for x in lst:
        r = a(x)
        t = r if r is not None else t
    return t


def dma_items(vD, lds_base, nfrag, c):
    assert nfrag % (4 * c) == 0
    sWc = {1: sW1K, 2: sW2K, 4: sW4K}[c]
    items = []
    for r in range(nfrag // (4 * c)):
        for i in range(c):
            it = []
            if i == 0:
                it.append(f's_add_u32 m0, s{sWc}, {lds_base + r*4*c*K}')
            it.append(f'buffer_load_dwordx4 v{vD}, {sr(S_WS,4)}, m0 offen offset:{i*K} {WSC} lds')
            items.append(it)
    return items


def dma_setup(vD, ssrc, src_const, lds_base):
    a(f's_add_u32 s{sA}, s{ssrc}, {src_const - lds_base & 0xffffffff:#x}')
    a(f'v_add_u32 v{vD}, s{sA}, v{vL16}')


def prologue():
    a('s_cmp_ge_u32 s2, 256')
    a('s_cbranch_scc1 L_end')
    a('s_load_dwordx16 s[64:79], s[0:1], 0')
    a('s_load_dwordx4 s[80:83], s[0:1], 64')
    a(f's_getpc_b64 {sr(sPC,2)}')
    a.label('L_pc')
    a('s_lshr_b32 s3, s2, 3')
    a('s_lshl_b32 s3, s3, 11')
    a('s_min_u32 s3, s3, (L_codeend - L_pc - 2048)')
    a(f's_add_u32 s{sPC}, s{sPC}, s3')
    a(f's_addc_u32 s{sPC+1}, s{sPC+1}, 0')
    a('v_min_u32 v16, 15, v0')
    a('v_lshlrev_b32 v16, 7, v16')
    a(f'global_load_dword v17, v16, {sr(sPC,2)}')
    a(f'v_lshrrev_b32 v18, 6, v0')
    a(f'v_and_b32 v{vLANE}, 63, v0')
    a(f'v_readfirstlane_b32 s{sW}, v18')
    a(f'v_lshlrev_b32 v{vL16}, 4, v{vLANE}')
    a(f'v_add_u32 v{vL16b}, 0x10000, v{vL16}')
    a(f'v_add_u32 v{vL16c}, 0x20000, v{vL16}')
    a(f'v_lshlrev_b32 v{vL4}, 2, v{vLANE}')
    a(f'v_and_b32 v18, 31, v{vLANE}')
    a(f'v_lshrrev_b32 v19, 5, v{vLANE}')
    a(f'v_mul_u32_u24 v{vROW}, 896, v18')
    a(f'v_lshl_add_u32 v{vROW}, v19, 4, v{vROW}')
    a(f'v_lshlrev_b32 v{vAUG}, 2, v18')
    a(f'v_lshl_add_u32 v{vAUG}, v19, 9, v{vAUG}')
    a(f'v_mov_b32 v{vPROF}, 0')
    a(f's_mov_b32 s{sPI}, 0')
    a(f's_and_b32 s{sC}, s2, 7')
    a(f's_lshr_b32 s{sJ}, s2, 3')
    a(f's_mul_i32 s{sTB}, s{sJ}, 37')
    a(f's_lshr_b32 s{sTB}, s{sTB}, 8')
    a(f's_mul_i32 s{sFB}, s{sTB}, 7')
    a(f's_sub_u32 s{sFB}, s{sJ}, s{sFB}')
    a(f's_cmp_ge_u32 s{sJ}, 28')
    a(f's_cselect_b32 s{sTB}, s{sFB}, s{sTB}')
    a(f's_mov_b32 s{sL}, 0')
    a(f's_mov_b32 s{sTMO}, 100000')
    a(f's_lshl_b32 s{sTILE2}, s{sC}, 3')
    a(f's_lshl_b32 s{sD}, s{sTB}, 1')
    a(f's_add_u32 s{sTILE2}, s{sTILE2}, s{sD}')
    a(f's_lshr_b32 s{sD}, s{sW}, 1')
    a(f's_add_u32 s{sOWN}, s{sTILE2}, s{sD}')
    a(f's_and_b32 s{sD}, s{sW}, 1')
    a(f's_lshl_b32 s{sOFT}, s{sFB}, 1')
    a(f's_add_u32 s{sOFT}, s{sOFT}, s{sD}')
    lf = {1: 0, 2: 1, 4: 2, 8: 3}[FA]
    nh = 16 // FA
    a(f's_and_b32 s{sD}, s{sC}, {FA-1}')
    a(f's_mul_i32 s{sHC}, s{sD}, {nh}')
    a(f's_and_b32 s{sD}, s{sJ}, {nh-1}')
    a(f's_add_u32 s{sHC}, s{sHC}, s{sD}')
    a(f's_lshr_b32 s{sD}, s{sC}, {lf}')
    a(f's_lshl_b32 s{sE}, s{sD}, {lf+1}')
    a(f's_lshr_b32 s{sD}, s{sJ}, {4-lf}')
    a(f's_add_u32 s{sE}, s{sE}, s{sD}')
    a(f's_lshl_b32 s{sTILE1}, s{sE}, 2')
    a(f's_add_u32 s{sTILE1}, s{sTILE1}, s{sW}')
    a(f's_mov_b32 s{sLN2}, {LN2:#x}')
    a(f's_mov_b32 s{sLN2+1}, {LN2:#x}')
    a(f's_mov_b32 s{sEPS6}, {EPS6:#x}')
    a(f's_mov_b32 s{sEPS6+1}, {EPS6:#x}')
    a(f's_mov_b32 s{sONES}, 0x3f803f80')
    for i in range(4):
        a(f'v_mov_b32 v{216+i}, 0')
    a(f'v_and_b32 v{vRHO}, 31, v{vLANE}')
    a(f'v_lshrrev_b32 v{vHI}, 5, v{vLANE}')
    a(f'v_and_b32 v{vSIG}, 0x13, v{vRHO}')
    a(f'v_and_b32 v{vt0}, 4, v{vRHO}')
    a(f'v_lshl_or_b32 v{vSIG}, v{vt0}, 1, v{vSIG}')
    a(f'v_lshrrev_b32 v{vt0}, 1, v{vRHO}')
    a(f'v_and_or_b32 v{vSIG}, v{vt0}, 4, v{vSIG}')
    a(f'v_lshrrev_b32 v{vR8}, 3, v{vLANE}')
    a(f'v_and_b32 v{vC8}, 7, v{vLANE}')
    a(f'v_lshlrev_b32 v{vC8}, 4, v{vC8}')
    a(f'v_lshrrev_b32 v{vt0}, 4, v{vLANE}')
    a(f'v_lshlrev_b32 v{vt0}, 4, v{vt0}')
    a(f'v_xor_b32 v{vt0}, v{vt0}, v{vC8}')
    a(f'v_mul_u32_u24 v{vt1}, 896, v{vR8}')
    a(f'v_add_u32 v{vXS}, v{vt1}, v{vt0}')
    a(f'v_xor_b32 v{vt0}, 64, v{vt0}')
    a(f'v_add_u32 v{vXS+1}, v{vt1}, v{vt0}')
    a('s_waitcnt lgkmcnt(0)')
    if TLBW:
        a(f'v_lshlrev_b32 v20, 20, v{vLANE}')
        a('v_subrev_u32 v20, 0xa00000, v20')
        a('v_min_u32 v20, 0x2100000, v20')
        a('v_mov_b32 v21, s83')
        a('v_add_co_u32 v20, vcc, s82, v20')
        a('v_addc_co_u32 v21, vcc, 0, v21, vcc')
        for ln, p in enumerate((64, 66, 68, 72, 74, 76, 78, 80)):
            a(f'v_writelane_b32 v20, s{p}, {ln}')
            a(f'v_writelane_b32 v21, s{p+1}, {ln}')
        a('global_load_dword v22, v[20:21], off')
    srd(S_X, 64, 2048 * 448 * 2)
    srd(S_WQKV, 66, 448 * 1344 * 2)
    srd(S_WO, 68, 448 * 448 * 2)
    srd(S_WG, 72, 448 * 1792 * 2)
    srd(S_WU, 74, 448 * 1792 * 2)
    srd(S_WD, 76, 1792 * 448 * 2)
    srd(S_OUT, 78, 2048 * 448 * 2)
    srd(S_DBG, 80, 256)
    srd(S_WS, 82, WS_BYTES)
    a(f's_mov_b32 s{sRBG}, s{sE}')
    a(f's_and_b32 s{sREP}, s2, 3')
    a(f's_lshl_b32 s{sREP}, s{sREP}, 12')
    a(f's_lshl_b32 s{sW1K}, s{sW}, 10')
    a(f's_lshl_b32 s{sW2K}, s{sW}, 11')
    a(f's_lshl_b32 s{sW4K}, s{sW}, 12')
    a(f's_lshl_b32 s{sG}, s{sW}, 9')
    a(f's_add_u32 s{sPC}, s{sPC}, s{sG}')
    a(f's_addc_u32 s{sPC+1}, s{sPC+1}, 0')
    a(f's_lshl_b32 s{sG}, s{sW}, 13')
    a(f's_add_u32 s{sG}, s{sG}, {LSTG}')
    a(f's_getreg_b32 s{sXID}, hwreg(HW_REG_XCC_ID)')
    a(f's_and_b32 s{sXID}, s{sXID}, 15')
    a(f's_add_u32 s{sXID}, s{sXID}, 1')
    stamp('start')


def late_consts():
    a(f's_mul_i32 s{sW1SRC}, s{sHC}, {W1S}')
    a(f's_add_u32 s{sW1SRC}, s{sW1SRC}, {W1R}')
    a(f's_mul_i32 s{sW3SRC}, s{sHC}, {W3S}')
    a(f's_add_u32 s{sW3SRC}, s{sW3SRC}, {W3R}')
    a(f's_lshl_b32 s{sWOSRC}, s{sFB}, 16')
    a(f's_lshl_b32 s{sA}, s{sW}, 14')
    a(f's_add_u32 s{sWOSRC}, s{sWOSRC}, s{sA}')
    a(f's_add_u32 s{sWOSRC}, s{sWOSRC}, {WOR}')
    a(f's_mul_i32 s{sWDSRC}, s{sFB}, {WDS}')
    a(f's_mul_i32 s{sA}, s{sW}, 57344')
    a(f's_add_u32 s{sWDSRC}, s{sWDSRC}, s{sA}')
    a(f's_add_u32 s{sWDSRC}, s{sWDSRC}, {WDR}')
    a(f's_add_u32 s{S_LY}, s{S_WS}, {LYB}')
    a(f's_addc_u32 s{S_LY+1}, s{S_WS+1}, 0')
    a(f's_mov_b32 s{S_LY+2}, {2*LYB}')
    a(f's_mov_b32 s{S_LY+3}, 0x00020000')
    a(f's_mov_b32 s{S_DT}, s{S_LY}')
    a(f's_mov_b32 s{S_DT+1}, s{S_LY+1}')
    a(f's_mov_b32 s{S_DT+2}, {2*LYB}')
    a(f's_mov_b32 s{S_DT+3}, 0x00020000')


UD = 128
UC = 192
vRHO, vHI, vSIG, vR8, vC8 = 204, 205, 206, 207, 212
vt0, vt1, vt2, vt3 = 208, 209, 210, 211
vXS = 214
LSTG = 128 * K
LXS = 0
LCS = 112 * K


PASS = {'p': 'src'}


class Done(Exception):
    pass


def run_setup(fn, *args):
    try:
        fn(*args)
    except Done:
        pass


LSRD = {1: S_WQKV, 2: S_WO, 3: S_WD}


def unit_dma(r, srdreg, vsrc, srow0, srow1):
    if r > 0:
        a(f's_mov_b32 s{74+2*r}, s{srow0}')
        a(f's_mov_b32 s{75+2*r}, s{srow1}')
        a(f'v_mov_b32 v{243+r}, v{vsrc}')
        if srdreg != LSRD[r]:
            for i in range(3):
                a(f's_mov_b32 s{LSRD[r]+i}, s{srdreg+i}')
        return
    if PASS['p'] == 'dst':
        return
    _unit_dma(r, srdreg, vsrc, srow0, srow1)
    raise Done()


def late_dma():
    t = None
    for r in (1, 2, 3):
        for h in range(2):
            a(f's_add_u32 m0, s82, {r*2048 + h*1024}')
            t = a(f'buffer_load_dwordx4 v{243+r}, {sr(LSRD[r],4)}, s{74+2*r+h} offen lds')
    return t


def _unit_dma(r, srdreg, vsrc, srow0, srow1):
    a(f's_add_u32 m0, s{sG}, {r*2048}')
    a('s_nop 0')
    a(f'buffer_load_dwordx4 v{vsrc}, {sr(srdreg,4)}, s{srow0} offen lds')
    a(f's_add_u32 m0, s{sG}, {r*2048+1024}')
    a('s_nop 0')
    a(f'buffer_load_dwordx4 v{vsrc}, {sr(srdreg,4)}, s{srow1} offen lds')


def div7(q, rem, su):
    a(f's_mul_i32 s{q}, s{su}, 9363')
    a(f's_lshr_b32 s{q}, s{q}, 16')
    a(f's_mul_i32 s{rem}, s{q}, 7')
    a(f's_sub_u32 s{rem}, s{su}, s{rem}')


def setup_w1(r, su):
    col, dst, aug = UC + 3 * r, UC + 3 * r + 1, UC + 3 * r + 2
    div7(sA, sB, su)
    a(f's_lshr_b32 s{sC}, s{sA}, 3')
    a(f's_and_b32 s{sA}, s{sA}, 7')
    a(f's_mul_i32 s{sD}, s{sC}, 896')
    a(f's_mul_i32 s{sE}, s{sA}, 112')
    a(f's_add_u32 s{sD}, s{sD}, s{sE}')
    a(f's_lshl_b32 s{sF}, s{sB}, 2')
    a(f's_add_u32 s{sF}, s{sF}, s{sW}')
    a(f's_mul_i32 s{sE}, s{sF}, {16*2688}')
    a(f's_add_u32 s{sD}, s{sD}, s{sE}')
    a(f's_add_u32 s{sE}, s{sD}, {8*2688}')
    a(f'v_mul_u32_u24 v{vt0}, 2688, v{vR8}')
    a(f'v_add_u32 v{vt0}, v{vt0}, v{vC8}')
    a(f'v_cmp_eq_u32 vcc, 112, v{vC8}')
    a(f'v_mov_b32 v{vt1}, {OOB:#x}')
    a(f'v_cndmask_b32 v{vt0}, v{vt0}, v{vt1}, vcc')
    unit_dma(r, S_WQKV, vt0, sD, sE)
    a(f'v_cmp_le_u32 vcc, 24, v{vSIG}')
    a(f'v_subrev_u32 v{vt0}, 2, v{vSIG}')
    a(f'v_cndmask_b32 v{vt0}, v{vSIG}, v{vt0}, vcc')
    a(f'v_mad_u32_u24 v{vt0}, v{vHI}, 28, v{vt0}')
    a(f'v_and_b32 v{vt1}, 0x16, v{vSIG}')
    a(f'v_cmp_eq_u32 vcc, 0x16, v{vt1}')
    a(f'v_cndmask_b32 v{vt0}, v{vt0}, 56, vcc')
    a(f'v_lshl_add_u32 v{col}, v{vt0}, 1, s{sG}')
    a(f's_lshl_b32 s{sD}, s{sF}, 1')
    a(f's_add_u32 s{sD}, s{sD}, s{sC}')
    a(f's_sub_u32 s{sD}, s{sD}, 1')
    a(f's_add_u32 s{sE}, s{sC}, 55')
    a(f's_add_u32 s{sF}, s{sF}, 58')
    a(f's_cmp_eq_u32 s{sC}, 0')
    a(f's_cselect_b32 s{sD}, s{sF}, s{sD}')
    a(f's_cselect_b32 s{sE}, 86, s{sE}')
    a(f's_mul_i32 s{sA}, s{sA}, {2*W1S}')
    a(f's_add_u32 s{sA}, s{sA}, {W1R}')
    a(f's_lshl_b32 s{sD}, s{sD}, 10')
    a(f's_add_u32 s{sD}, s{sD}, s{sA}')
    a(f's_lshl_b32 s{sE}, s{sE}, 10')
    a(f's_add_u32 s{sE}, s{sE}, s{sA}')
    a(f's_lshl_b32 s{sB}, s{sB}, 7')
    a(f's_add_u32 s{sE}, s{sE}, s{sB}')
    a(f'v_mul_u32_u24 v{vt0}, {W1S}, v{vHI}')
    a(f'v_lshl_add_u32 v{dst}, v{vRHO}, 4, v{vt0}')
    a(f'v_add_u32 v{dst}, s{sD}, v{dst}')
    a(f'v_lshl_add_u32 v{aug}, v{vRHO}, 2, v{vt0}')
    a(f'v_add_u32 v{aug}, s{sE}, v{aug}')


def setup_w3(r, su, tsrd):
    col, dst, aug = UC + 3 * r, UC + 3 * r + 1, UC + 3 * r + 2
    div7(sA, sB, su)
    a(f's_cmp_ge_u32 s{sA}, 28')
    a(f's_cselect_b32 s{tsrd}, s{S_WU}, s{S_WG}')
    a(f's_cselect_b32 s{tsrd+1}, s{S_WU+1}, s{S_WG+1}')
    a(f's_cselect_b32 s{sC}, 28, 0')
    a(f's_cselect_b32 s{sD}, 16, 0')
    a(f's_mov_b32 s{tsrd+2}, {448*1792*2}')
    a(f's_mov_b32 s{tsrd+3}, 0x00020000')
    a(f's_sub_u32 s{sA}, s{sA}, s{sC}')
    a(f's_lshl_b32 s{sE}, s{sB}, 2')
    a(f's_add_u32 s{sE}, s{sE}, s{sW}')
    a(f's_mul_i32 s{sC}, s{sE}, {16*3584}')
    a(f's_lshl_b32 s{sF}, s{sA}, 7')
    a(f's_add_u32 s{sC}, s{sC}, s{sF}')
    a(f's_add_u32 s{sF}, s{sC}, {8*3584}')
    a(f'v_mul_u32_u24 v{vt0}, 3584, v{vR8}')
    a(f'v_add_u32 v{vt0}, v{vt0}, v{vC8}')
    unit_dma(r, tsrd, vt0, sC, sF)
    a(f'v_and_b32 v{vt0}, 48, v{vLANE}')
    a(f'v_and_or_b32 v{vt0}, v{vSIG}, 15, v{vt0}')
    a(f'v_lshl_add_u32 v{col}, v{vt0}, 1, s{sG}')
    a(f'v_lshrrev_b32 v{vt0}, 4, v{vLANE}')
    a(f's_lshl_b32 s{sC}, s{sA}, 2')
    a(f'v_add_u32 v{vt0}, s{sC}, v{vt0}')
    a(f'v_mul_u32_u24 v{vt1}, 9363, v{vt0}')
    a(f'v_lshrrev_b32 v{vt1}, 16, v{vt1}')
    a(f'v_mul_u32_u24 v{vt2}, 7, v{vt1}')
    a(f'v_sub_u32 v{vt0}, v{vt0}, v{vt2}')
    a(f's_mul_i32 s{sF}, s{sE}, {3 if G3 else 2}')
    a(f'v_add_u32 v{vt2}, s{sF}, v{vt0}')
    a(f'v_add_u32 v{aug}, {84 if G3 else 56}, v{vt0}')
    a(f's_cmp_ge_u32 s{sE}, 27')
    a(f's_cselect_b32 s{sC}, 58, 0')
    a(f's_sub_u32 s{sC}, s{sE}, s{sC}')
    a(f's_add_u32 s{sC}, s{sC}, 176')
    for t, base, ag in (() if G3 else ((2, 59, None),)) + ((3, 87, 115), (4, 116, 144), (5, 147, 175), (6, None, 146)):
        a(f'v_cmp_eq_u32 vcc, {t}, v{vt0}')
        if base is not None:
            a(f's_add_u32 s{sF}, s{sE}, {base}')
            a(f'v_mov_b32 v{vt3}, s{sF}')
        else:
            a(f'v_mov_b32 v{vt3}, s{sC}')
        a(f'v_cndmask_b32 v{vt2}, v{vt2}, v{vt3}, vcc')
        if ag is not None:
            a(f'v_mov_b32 v{vt3}, {ag}')
            a(f'v_cndmask_b32 v{aug}, v{aug}, v{vt3}, vcc')
    a(f'v_mul_u32_u24 v{vt1}, 203, v{vt1}')
    a(f'v_add_lshl_u32 v{vt2}, v{vt2}, v{vt1}, 10')
    a(f'v_add_lshl_u32 v{aug}, v{aug}, v{vt1}, 10')
    a(f'v_and_b32 v{vt0}, 15, v{vLANE}')
    a(f'v_add_u32 v{vt0}, s{sD}, v{vt0}')
    a(f'v_lshl_add_u32 v{dst}, v{vt0}, 4, v{vt2}')
    a(f'v_add_u32 v{dst}, {W3R:#x}, v{dst}')
    a(f'v_lshl_add_u32 v{aug}, v{vt0}, 2, v{aug}')
    a(f's_lshl_b32 s{sB}, s{sB}, 7')
    a(f's_add_u32 s{sB}, s{sB}, {W3R}')
    a(f'v_add_u32 v{aug}, s{sB}, v{aug}')


def setup_colsT(r):
    col, dst, aug = UC + 3 * r, UC + 3 * r + 1, UC + 3 * r + 2
    a(f'v_lshl_add_u32 v{vt0}, v{vHI}, 5, v{vSIG}')
    a(f'v_lshl_add_u32 v{col}, v{vt0}, 1, s{sG}')
    a(f'v_lshlrev_b32 v{dst}, 10, v{vHI}')
    a(f'v_lshl_add_u32 v{dst}, v{vRHO}, 4, v{dst}')
    a(f'v_mov_b32 v{aug}, {OOB:#x}')


def setup_wd(r, su):
    dst = UC + 3 * r + 1
    div7(sA, sB, su)
    a(f's_lshl_b32 s{sA}, s{sA}, 2')
    a(f's_add_u32 s{sA}, s{sA}, s{sW}')
    a(f's_mul_i32 s{sC}, s{sA}, {16*896}')
    a(f's_lshl_b32 s{sD}, s{sB}, 7')
    a(f's_add_u32 s{sC}, s{sC}, s{sD}')
    a(f's_add_u32 s{sD}, s{sC}, {8*896}')
    a(f'v_mul_u32_u24 v{vt0}, 896, v{vR8}')
    a(f'v_add_u32 v{vt0}, v{vt0}, v{vC8}')
    unit_dma(r, S_WD, vt0, sC, sD)
    setup_colsT(r)
    div7(sC, sD, sA)
    a(f's_mul_i32 s{sB}, s{sB}, {WDS}')
    a(f's_lshr_b32 s{sE}, s{sC}, 2')
    a(f's_mul_i32 s{sE}, s{sE}, 57344')
    a(f's_add_u32 s{sB}, s{sB}, s{sE}')
    a(f's_lshl_b32 s{sD}, s{sD}, 2')
    a(f's_and_b32 s{sC}, s{sC}, 3')
    a(f's_add_u32 s{sD}, s{sD}, s{sC}')
    a(f's_lshl_b32 s{sD}, s{sD}, 11')
    a(f's_add_u32 s{sB}, s{sB}, s{sD}')
    a(f's_add_u32 s{sB}, s{sB}, {WDR}')
    a(f'v_add_u32 v{dst}, s{sB}, v{dst}')


def setup_wo(r, su):
    dst = UC + 3 * r + 1
    div7(sA, sB, su)
    a(f's_lshl_b32 s{sA}, s{sA}, 2')
    a(f's_add_u32 s{sA}, s{sA}, s{sW}')
    a(f's_lshr_b32 s{sC}, s{sA}, 1')
    a(f's_mul_i32 s{sC}, s{sC}, {28*896}')
    a(f's_lshl_b32 s{sD}, s{sB}, 7')
    a(f's_add_u32 s{sC}, s{sC}, s{sD}')
    a(f's_and_b32 s{sD}, s{sA}, 1')
    a(f's_cselect_b32 s{sD}, {16*896}, 0')
    a(f's_cselect_b32 s{sE}, {14*896}, 0')
    a(f's_add_u32 s{sD}, s{sD}, s{sC}')
    a(f's_add_u32 s{sE}, s{sE}, s{sC}')
    a(f's_add_u32 s{sE}, s{sE}, {8*896}')
    a(f'v_mul_u32_u24 v{vt0}, 896, v{vR8}')
    a(f'v_add_u32 v{vt0}, v{vt0}, v{vC8}')
    unit_dma(r, S_WO, vt0, sD, sE)
    setup_colsT(r)
    a(f's_lshl_b32 s{sB}, s{sB}, 16')
    a(f's_lshl_b32 s{sC}, s{sA}, 11')
    a(f's_add_u32 s{sB}, s{sB}, s{sC}')
    a(f's_add_u32 s{sB}, s{sB}, {WOR}')
    a(f'v_add_u32 v{dst}, s{sB}, v{dst}')


def setup_none(r):
    col, dst, aug = UC + 3 * r, UC + 3 * r + 1, UC + 3 * r + 2
    a(f'v_mov_b32 v{col}, 0')
    a(f'v_mov_b32 v{dst}, {OOB:#x}')
    a(f'v_mov_b32 v{aug}, {OOB:#x}')


def rounds(tag):
    a('s_cmp_ge_u32 s2, 168')
    a(f's_cbranch_scc1 L_r0b{tag}')
    with cond():
        run_setup(setup_w1, 0, 2)
    a(f's_branch L_r0e{tag}')
    a.label(f'L_r0b{tag}')
    a('s_cmp_ge_u32 s2, 224')
    a(f's_cbranch_scc1 L_r0c{tag}')
    with cond():
        a(f's_sub_u32 s{sU}, s2, 168')
        run_setup(setup_wo, 0, sU)
    a(f's_branch L_r0e{tag}')
    a.label(f'L_r0c{tag}')
    with cond():
        a(f's_sub_u32 s{sU}, s2, 224')
        run_setup(setup_wd, 0, sU)
    a.label(f'L_r0e{tag}')
    if PASS['p'] == 'src':
        return
    run_setup(setup_w3, 1, 2, LSRD[1])
    a('s_cmp_ge_u32 s2, 136')
    a(f's_cbranch_scc1 L_r2b{tag}')
    with cond():
        a(f's_add_u32 s{sU}, s2, 256')
        run_setup(setup_w3, 2, sU, LSRD[2])
    a(f's_branch L_r2e{tag}')
    a.label(f'L_r2b{tag}')
    with cond():
        a(f's_sub_u32 s{sU}, s2, 104')
        run_setup(setup_wd, 2, sU)
    a.label(f'L_r2e{tag}')
    a('s_cmp_ge_u32 s2, 212')
    a(f's_cbranch_scc1 L_r3b{tag}')
    setup_none(3)
    a('s_mov_b32 s80, 0')
    a('s_mov_b32 s81, 0')
    a(f'v_mov_b32 v246, {OOB:#x}')
    a(f's_branch L_r3e{tag}')
    a.label(f'L_r3b{tag}')
    with cond():
        a(f's_sub_u32 s{sU}, s2, 60')
        run_setup(setup_wd, 3, sU)
    a.label(f'L_r3e{tag}')


def unit_rounds(rs, items=None):
    rtok = {}
    seq = [(r, h) for r in rs for h in range(2)]

    def gat(r, half):
        for e in range(8):
            rtok[r, half] = a(f'ds_read_u16 v{UD+16*r+8*half+e}, v{UC+3*r} offset:{r*2048+(8*half+e)*128}')
    gat(*seq[0])
    for it in (items or []):
        emit(it)
    a(f's_lshl_b32 s{sA}, s{sW}, 8')
    a(f's_add_u32 s{sA}, s{sA}, {LCS}')
    a(f'v_add_u32 v225, s{sA}, v{vL4}')
    for k_, (r, half) in enumerate(seq):
        R = UD + 16 * r
        if k_ + 1 < len(seq):
            gat(*seq[k_ + 1])
        a.wait(rtok[r, half])
        for m in range(4):
            a(f'v_lshl_or_b32 v{R+8*half+m}, v{R+8*half+2*m+1}, 16, v{R+8*half+2*m}')
        a(f'buffer_store_dwordx4 {vr(R+8*half,4)}, v{UC+3*r+1}, {sr(S_WS,4)}, 0 offen offset:{512*half} sc1')
    for r in rs:
        if r == 3:
            continue
        R = UD + 16 * r
        a(f'v_mov_b32 v{R+4}, 0')
        for m in range(4):
            a(f'v_dot2c_f32_bf16 v{R+4}, s{sONES}, v{R+m}')
            a(f'v_dot2c_f32_bf16 v{R+4}, s{sONES}, v{R+8+m}')
        a(f'ds_write_b32 v225, v{R+4} offset:{r*1024}')


def aug_finish(rs, ucb=None, R=226, t0=225, t1=230, t2=231):
    ucb = UC if ucb is None else ucb
    a(f's_add_u32 s{sA}, s{sW1K}, {LCS}')
    a(f'v_add_u32 v{t0}, s{sA}, v{vL4}')
    a(f'ds_read2st64_b32 {vr(R,2)}, v{t0} offset0:0 offset1:1')
    t = a(f'ds_read2st64_b32 {vr(R+2,2)}, v{t0} offset0:2 offset1:3')
    a(f'v_mov_b32 v{t1}, {OOB:#x}')
    a(f'v_mov_b32 v{t2}, v{t1}')
    for r in rs:
        a(f's_cmp_eq_u32 s{sW}, {r}')
        a('s_cselect_b64 vcc, -1, 0')
        a(f'v_cndmask_b32 v{t1}, v{t1}, v{ucb+3*r+2}, vcc')
    a(f'v_bfe_u32 v{t0}, v{t1}, 7, 3')
    a(f'v_cmp_eq_u32 vcc, 6, v{t0}')
    a(f'v_mov_b32 v{t0}, 0')
    a(f'v_cndmask_b32 v{t2}, v{t2}, v{t1}, vcc')
    a(f'buffer_store_dword v{t0}, v{t2}, {sr(S_WS,4)}, 0 offen offset:128 sc1')
    a.wait(t)
    a(f'v_add_f32 v{R}, v{R}, v{R+1}')
    a(f'v_add_f32 v{R+2}, v{R+2}, v{R+3}')
    a(f'v_add_f32 v{R}, v{R}, v{R+2}')
    a(f'v_cvt_pk_bf16_f32 v{R+1}, v{R}, v{R}')
    a(f'v_and_b32 v{R+1}, 0xffff0000, v{R+1}')
    a(f'v_sub_f32 v{R+1}, v{R}, v{R+1}')
    a(f'v_cvt_pk_bf16_f32 v{R+1}, v{R}, v{R+1}')
    return a(f'buffer_store_dword v{R+1}, v{t1}, {sr(S_WS,4)}, 0 offen sc1')


def ib_publish(imm, va, vv):
    a(f'v_lshlrev_b32 v{va}, 12, v{vLANE}')
    a(f'v_mov_b32 v{vv}, s{sXID}')
    a('s_mov_b64 exec, 15')
    a(f'buffer_store_dword v{vv}, v{va}, {sr(S_WS,4)}, s83 offen offset:{imm} sc1')
    a('s_mov_b64 exec, -1')


def init_phase():
    Z = 216
    vGO = 224
    a(f's_lshl_b32 s{sA}, s2, 10')
    a(f's_add_u32 s{sB}, s{sW}, 1')
    a(f's_lshl_b32 s{sB}, s{sB}, 24')
    a(f's_add_u32 s{sB}, s{sA}, s{sB}')
    a(f's_sub_u32 s{sC}, s{sB}, {2*LYB - ST1}')
    a(f's_cmp_eq_u32 s{sW}, 2')
    a(f's_cselect_b32 s{sB}, s{sC}, s{sB}')
    a(f's_lshl_b32 s85, s2, 4')
    a('s_cmp_lt_u32 s2, 16')
    a(f's_cselect_b32 s{sA}, s{sA}, {OOB:#x}')
    a(f's_cselect_b32 s{sZW}, s85, {OOB:#x}')
    a(f's_cmp_eq_u32 s{sW}, 3')
    a(f's_cselect_b32 s{sB}, s{sA}, s{sB}')
    a(f's_cselect_b32 s{sZW}, s{sZW}, {OOB:#x}')
    a(f's_cselect_b32 s83, s85, {OOB:#x}')
    a(f's_cselect_b32 s85, 0, {OOB:#x}')
    zt = a(f'buffer_store_dwordx4 {vr(Z,4)}, v{vL16}, {sr(S_WS,4)}, s{sB} offen sc1')
    PASS['p'] = 'src'
    rounds('s')
    a.vm_issued += 2
    um = mark()
    a(f's_mov_b32 s82, s{sG}')
    a(f's_mul_i32 s{sI}, s{sTILE1}, 28672')
    a(f's_mul_i32 s{sH}, s{sW}, {28*K}')
    xq = []
    for g in range(4):
        for c in range(7):
            it = [f's_add_u32 m0, s{sH}, {LXS + (4*c+g)*K - c*128}',
                  f'buffer_load_dwordx4 v{vXS + (g & 1)}, {sr(S_X,4)}, s{sI} offen offset:{c*128} lds']
            if c == 6:
                it.append(f's_add_u32 s{sI}, s{sI}, {8*896}')
            xq.append(it)
    a(f's_mul_i32 s{sA}, s{sHC}, {14*128}')
    a(f's_add_u32 s{sA}, s{sA}, s{sI}')
    a(f'v_min_u32 v{vt0}, 13, v{vLANE}')
    a(f'v_lshlrev_b32 v{vt0}, 7, v{vt0}')
    a(f'buffer_load_dword v17, v{vt0}, {sr(S_X,4)}, s{sA} offen')
    for _ in range(X0N):
        emit(xq.pop(0))
    stamp('issued')
    PASS['p'] = 'dst'
    rounds('d')
    for i in range(9):
        a(f'v_accvgpr_write_b32 a{i}, v{UC+3+i}')
    a.wait(zt)
    emit(flag_store(S_DBG, f's{sZW}', sc='sc1'))
    a(f'v_and_b32 v{vt3}, 15, v{vLANE}')
    a(f'v_lshlrev_b32 v{vt3}, 4, v{vt3}')
    a(f'v_lshrrev_b32 v{vt0}, 3, v{vRHO}')
    a(f'v_lshlrev_b32 v{vt0}, 10, v{vt0}')
    a(f'v_and_b32 v{vt1}, 7, v{vRHO}')
    a(f'v_lshl_add_u32 v{vt0}, v{vt1}, 7, v{vt0}')
    a(f'v_add_u32 v{vt0}, s{sH}, v{vt0}')
    a(f'v_bfe_u32 v{vt1}, v{vRHO}, 1, 3')
    a(f'v_xor_b32 v{vt1}, v{vt1}, v{vHI}')
    for q in range(4):
        a(f'v_xor_b32 v{220+q}, {2*q}, v{vt1}')
        a(f'v_lshl_add_u32 v{220+q}, v{220+q}, 4, v{vt0}')
    a(f'v_min_u32 v{vt0}, 20, v{vLANE}')
    a(f'v_mul_u32_u24 v{vt1}, 37, v{vt0}')
    a(f'v_lshrrev_b32 v{vt1}, 8, v{vt1}')
    a(f'v_mad_u32_u24 v{vt0}, v{vt1}, 49, v{vt0}')
    a(f's_lshr_b32 s{sA}, s{sHC}, 1')
    a(f's_mul_i32 s{sA}, s{sA}, 7')
    a(f'v_add_lshl_u32 v240, v{vt0}, s{sA}, 4')
    late_consts()
    own_consts()
    a.wait(um)
    stamp('ldone')
    unit_rounds([0], [xq.pop(0) for _ in range(XI)])
    a.wait_lg0()
    a.barrier()
    aug_finish([0])
    sm = a(f'buffer_load_dword v{vGO}, v{vt3}, {sr(S_DBG,4)}, s85 offen sc1')
    for _ in range(min(XA, len(xq))):
        emit(xq.pop(0))
    a.wait(sm)
    a(f's_cmp_lg_u32 s{sW}, 3')
    a('s_cbranch_scc1 L_ngo')
    with cond():
        check_or_poll(vGO, S_DBG, vt3, 0, sleep=2)
    a.label('L_ngo')
    a.barrier()
    ib_publish(4, vt0, vt1)
    stamp('ibpub')
    while xq:
        emit(xq.pop(0))
    a(f's_mul_i32 s{sA}, s{sOWN}, 28672')
    a(f's_lshl_b32 s{sB}, s{sOFT}, 6')
    a(f's_add_u32 s{sA}, s{sA}, s{sB}')
    a(f'buffer_load_dwordx4 {vr(vXRES,4)}, v{vROW}, {sr(S_X,4)}, s{sA} offen')
    a(f'buffer_load_dwordx4 {vr(vXRES+4,4)}, v{vROW}, {sr(S_X,4)}, s{sA} offen offset:32')
    p1_setup(True)
    dma_setup(205, sW1SRC, 0, 0)
    a.wait_vm_n(2)
    stamp('xland')
    for ks in range(28):
        a(f'ds_read_b128 {vr(16+4*ks,4)}, v{220+(ks&3)} offset:{(ks>>2)*4096}')
    fa = a(f'buffer_load_dword v241, v240, {sr(S_WS,4)}, s{sREP} offen offset:4 sc1')
    a.wait_lg0()
    x0_stats(0, STA)
    a.wait(fa)
    check_or_poll(241, S_WS, 240, f's{sREP}', imm=4, nonzero=True, sleep=0)
    a.barrier()
    stamp('w1rdy')


def x0_stats(lo, hi, items=None):
    S0, S1, Q0, Q1 = 216, 217, 218, 219
    for i in range(4 * lo, 4 * hi, 2):
        if items and i % 6 == 0:
            items.pop(0)()
        a(f'v_dot2c_f32_bf16 v{S0}, s{sONES}, v{16+i}')
        a(f'v_dot2c_f32_bf16 v{Q0}, v{16+i}, v{16+i}')
        a(f'v_dot2c_f32_bf16 v{S1}, s{sONES}, v{17+i}')
        a(f'v_dot2c_f32_bf16 v{Q1}, v{17+i}, v{17+i}')


vRSTD, vC2, vISTD = 248, 249, 250
P1_XAUG = 212


def stats_finish(xaug, SB=216):
    S, Q, t0, t1 = SB, SB + 1, SB + 2, SB + 3
    o = [f'v_mov_b32 v{t0}, v{S}',
         f'v_mov_b32 v{t1}, v{Q}',
         f'v_permlane32_swap_b32 v{S}, v{t0}',
         f'v_permlane32_swap_b32 v{Q}, v{t1}',
         f'v_add_f32 v{S}, v{S}, v{t0}',
         f'v_add_f32 v{Q}, v{Q}, v{t1}',
         f'v_mul_f32 v{S}, {INV448:#x}, v{S}',
         f'v_mul_f32 v{Q}, {INV448:#x}, v{Q}',
         f'v_fma_f32 v{Q}, -v{S}, v{S}, v{Q}',
         f'v_max_f32 v{Q}, 0, v{Q}',
         f'v_add_f32 v{Q}, {EPS5:#x}, v{Q}',
         f'v_rsq_f32 v{vRSTD}, v{Q}',
         f'v_cvt_pk_bf16_f32 v{xaug}, -v{S}, -v{S}',
         f'v_mul_f32 v{vISTD}, v{Q}, v{vRSTD}',
         f'v_mul_f32 v{vC2}, {LOG2E:#x}, v{vRSTD}']
    o += [f'v_mov_b32 v{xaug+i}, v{xaug}' for i in range(1, 4)]
    return o


def stats_sum(SB=216):
    o = []
    for i in range(1, 7):
        o.append(f'v_add_f32 v{SB}, v{SB}, v{SB+2*i}')
        o.append(f'v_add_f32 v{SB+1}, v{SB+1}, v{SB+2*i+1}')
    return o


def x_prep(fl, xb, stb):
    a(f'v_and_b32 v240, 15, v{vLANE}')
    a(f'v_min_u32 v240, 13, v240')
    a(f'v_lshlrev_b32 v240, 5, v240')
    a(f's_lshl_b32 s{sC}, s{sTILE1}, 9')
    a(f's_add_u32 s{sC}, s{sC}, {fl}')
    a(f's_lshl_b32 s{sD}, s{sTILE1}, 12')
    a(f's_add_u32 s{sD}, s{sD}, {stb}')
    a(f's_mul_i32 s{sE}, s{sTILE1}, {28*K}')
    a(f's_add_u32 s{sE}, s{sE}, {xb}')


def x_load(ks):
    if ks % 4 == 0 and ks:
        a(f's_add_u32 s{sE}, s{sE}, 4096')
    return a(f'buffer_load_dwordx4 {vr(16+4*ks,4)}, v{vL16}, {sr(S_DT,4)}, s{sE} offen offset:{(ks%4)*K} sc1')


def st_load(i, SB=216):
    return a(f'buffer_load_dwordx4 {vr(SB+4*i,4)}, v{vL16}, {sr(S_DT,4)}, s{sD} offen offset:{i*K} sc1')


def st_loads(SB=216):
    t = None
    for i in range(7):
        t = a(f'buffer_load_dwordx2 {vr(SB+2*i,2)}, v241, {sr(S_DT,4)}, s{sD} offen offset:{i*256} sc1')
    return t


def read_aug(dst, addr, tmp):
    a(f'v_add_u32 v{tmp}, {addr:#x}, v{vAUG}')
    a(f'ds_read2_b32 {vr(dst,2)}, v{tmp} offset0:0 offset1:32')
    return a(f'ds_read2_b32 {vr(dst+2,2)}, v{tmp} offset0:64 offset1:96')


def read_frag(dst, addr):
    v, off = lds_addr(addr)
    return a(f'ds_read_b128 {vr(dst,4)}, v{v} offset:{off}')


def wfrag_items(regfn, ssrc, lo, hi, va, vb, stmp):
    items = []
    for i, n in enumerate(range(lo, hi)):
        for b in range(2):
            it = []
            if i % 2 == 0 and b == 0:
                it.append(f's_add_u32 s{stmp}, s{ssrc}, {n*2048}')
            it.append(f'buffer_load_dwordx4 {regfn(n,b)}, v{(va,vb)[b]}, {sr(S_WS,4)}, s{stmp} offen offset:{(i%2)*2048} {WSC}')
            items.append(it)
    return items


def slot_addr_setup(va, vb):
    a(f's_and_b32 s{sA}, s{sW1K}, 0x400')
    a(f'v_add_u32 v{va}, s{sA}, v{vL16}')
    a(f'v_xor_b32 v{vb}, 0x400, v{va}')


def cost(x):
    op = x.split()[0]
    return 2 if op.startswith(('v_exp', 'v_rcp', 'v_rsq')) else 1


def drip(q, budget):
    while q and budget >= cost(q[0]):
        x = q.pop(0)
        budget -= cost(x)
        a(x)


CAP = int(OPT.get('cap', 7))
G3 = int(OPT.get('g3', 1))
F1AT = int(OPT.get('f1at', 22))
PQSPLIT = int(OPT.get('pqsplit', 1))
WDP3 = int(OPT.get('wdp3', 36))
WDP1 = 0
PUBD2 = int(OPT.get('pubd2', 22))
PRET = int(OPT.get('pret', 1))
PUBD = int(OPT.get('pubd', 20))
S0T = int(OPT.get('s0t', 2))


def shadow(mem, vq, cap=None, pop=None):
    n0 = len(a.ins)
    for f in mem:
        if f is None:
            continue
        if callable(f):
            f()
        else:
            emit(f)
    budget = (CAP if cap is None else cap) - (len(a.ins) - n0)
    while vq and budget >= cost(vq[0]):
        budget -= cost(vq[0])
        if pop:
            pop()
        else:
            a(vq.pop(0))


def split_item(it):
    if it is None:
        return None, None
    return it[:-1], it[-1:]


ACK, ACV, ACQ = 128, 144, 160
P1WR = 176
P1RR2 = 216
p1D1, p1SA, p1SB = 204, 206, 207
p1RSW, p1RSR, p1OH = 208, 209, 210
LMODE = LRS + 1008


CARRY = []


def FAST():
    return MODE['sfx'] != '_s'


def p1_setup(first):
    if not first:
        x_prep(F0 + LYB, *((X1, ST1) if FAST() else (X0 + LYB, ST0 + LYB)))
    slot_addr_setup(p1SA, p1SB)
    a(f'v_and_b32 v{p1OH}, 27, v{vLANE}')
    a(f'v_cmp_eq_u32 vcc, 26, v{p1OH}')
    a(f'v_cndmask_b32 v{p1OH}, 0, 1.0, vcc')
    a(f'v_mov_b32 v{p1OH+1}, v{p1OH}')
    a(f's_add_u32 s{sA}, s{sW4K}, {LKVS}')
    a(f'v_and_b32 v{p1RSW}, 31, v{vLANE}')
    a(f'v_lshl_add_u32 v{p1RSW}, v{p1RSW}, 2, s{sA}')
    a(f'v_lshrrev_b32 v{p1RSR}, 5, v{vLANE}')
    a(f'v_lshl_add_u32 v{p1RSR}, v{p1RSR}, 4, s{sA}')
    dma_setup(p1D1, sW3SRC, 0, LALPHA)


LUC = 220
LUD = {1: 128, 2: 144, 3: 232}


def f1_addr():
    return [f's_lshl_b32 s{sG}, s{sHC}, 8',
            f's_lshl_b32 s{sB}, s{sRBG}, 4',
            f's_add_u32 s{sG}, s{sG}, s{sB}',
            f's_add_u32 s{sG}, s{sG}, {F1}',
            f's_cmp_lg_u32 s{sW}, 3\ns_cselect_b32 s{sG}, {OOB:#x}, s{sG}',
            f'v_lshlrev_b32 v{p1RSW}, 12, v{vLANE}',
            f'v_mov_b32 v{p1RSR}, 1']


def f1_store():
    a('s_mov_b64 exec, 15')
    a(f'buffer_store_dword v{p1RSR}, v{p1RSW}, {sr(S_LY,4)}, s{sG} offen sc1')
    a('s_mov_b64 exec, -1')
    stamp('p1pub')


def phase1_kv(first):
    WR, XAUG, RR, RR2, KVD = P1WR, P1_XAUG, ACQ, P1RR2, 232
    vRSW, vRSR, vOH = p1RSW, p1RSR, p1OH
    PRE = XPRE
    xt, vq, st = {}, [], {}
    if first:
        w1t = {}
        its = [(lambda k_=k_, it=it: w1t.__setitem__(k_, emit(it))) for k_, it in enumerate(dma_items(205, 0, 88, 2))]

        def ibl():
            a(f's_add_u32 s{sH}, s{sREP}, s{sW1K}')
            st['ib'] = a(f'buffer_load_dword v254, v{vL16}, {sr(S_WS,4)}, s{sH} offen offset:4 sc1')

        def lud(r, h):
            a(f's_add_u32 m0, s82, {r*2048 + h*1024}')
            st['lu'] = a(f'buffer_load_dwordx4 v{243+r}, {sr(LSRD[r],4)}, s{74+2*r+h} offen lds')
        its = its[:LUP] + [ibl] + [(lambda r=r, h=h: lud(r, h)) for r in (1, 2, 3) for h in range(2)] + its[LUP:]
        for _ in range(4):
            its.pop(0)()
        x0_stats(STA, 28, its)
        vq += ['v_add_f32 v216, v216, v217', 'v_add_f32 v217, v218, v219'] + stats_finish(P1_XAUG)
        stamp('stats')
    else:
        poll(S_LY, 240, f's{sC}')
        stamp('p1poll')
        for ks in range(4):
            xt[ks] = x_load(ks)
        a(f's_add_u32 s{S_LY}, s{S_LY}, {LYB}')
        a(f's_addc_u32 s{S_LY+1}, s{S_LY+1}, 0')
        a.barrier()
    bg = ([] if first else code_touch(205, 200)) + dma_items(p1D1, LALPHA, 56, 2)
    rt = {}
    stage = (0, 8, 16, 24) if first else ()

    def ib_check():
        a.wait(st['ib'])
        check_or_poll(254, S_WS, vL16, f's{sH}', imm=4, nonzero=True)
        a(f's_and_b32 s{sA}, s2, 7')
        a(f'v_and_b32 v252, 7, v{vLANE}')
        a(f'v_cmp_eq_u32 {sr(sC,2)}, s{sA}, v252')
        a(f'v_cmp_ne_u32 vcc, s{sXID}, v254')
        a(f's_and_b64 vcc, vcc, {sr(sC,2)}')
        a(f's_cselect_b32 s{sZW}, 1, 0')

    def rd(ks, tl):
        if ks > 28:
            return
        if ks in stage and tl == 0:
            a.wait(w1t[(ks + 8) // 2 - 1])
            a.barrier()
        d = WR + 8 * (ks % 3) + 4 * tl
        addr = (2 * ks + tl) * K
        rt[ks] = read_frag(d, addr) if ks < 28 else read_aug(d, addr, 252 + tl)
    for ks in range(2):
        rd(ks, 0); rd(ks, 1)
    if not first:
        for ks in range(4, PRE):
            xt[ks] = x_load(ks)
    rr = {}

    def stl(i):
        st['s'] = st_load(i)

    def xl(ks):
        xt[ks] = x_load(ks)

    def rs_write():
        a(f'ds_write2_b32 v{vRSW}, v{vRSTD}, v{vC2} offset0:0 offset1:32')

    def rs_read(j):
        a(f'ds_read_b128 {vr(RR+4*j,4)}, v{vRSR} offset:{32*j}')
        rr[0] = a(f'ds_read_b128 {vr(RR2+4*j,4)}, v{vRSR} offset:{128+32*j}')
    for ks in range(29):
        if not first and ks == 15:
            a.wait(st['s'])
            vq += stats_sum() + stats_finish(XAUG)
        a.wait(rt[ks], xt.get(ks))
        X = vr(16 + 4 * ks, 4) if ks < 28 else vr(XAUG, 4)
        c = (lambda r: '0' if ks == 0 else vr(r, 16))
        if not first and ks + PRE < 28:
            pre, main = None, (lambda k_=ks + PRE: xl(k_))
        elif first:
            pre, main = None, (its.pop(0) if its else None)
        else:
            pre, main = split_item(bg.pop(0) if bg and not first else None)
        a(f'{MF} {vr(ACK,16)}, {X}, {vr(WR+8*(ks%3),4)}, {c(ACK)}')
        shadow([pre, lambda: rd(ks + 2, 0), main], vq)
        a(f'{MF} {vr(ACV,16)}, {X}, {vr(WR+8*(ks%3)+4,4)}, {c(ACV)}')
        extra = None
        if not first and ks < 8 and ks % 2 == 0:
            extra = (lambda i=ks // 2: stl(i))
        if ks == 23:
            assert not vq
            extra = rs_write
        if 24 <= ks <= 27:
            extra = (lambda j=ks - 24: rs_read(j))
        shadow([lambda: rd(ks + 2, 1), extra], vq)
    stamp('p1kv')
    qt = {}

    def rq(ks):
        if ks > 28:
            return
        d = WR + 4 * (ks % 6)
        addr = (58 + ks) * K
        qt[ks] = read_frag(d, addr) if ks < 28 else read_aug(d, addr, 252)
    if not first:
        for ks in range(4):
            rq(ks)
    KS = LRS
    a(f's_lshl_b32 s{sB}, s{sHC}, 12')
    a(f's_add_u32 s{sB}, s{sB}, s{sW1K}')
    a.wait(rr[0])
    for r in range(0, 16, 2):
        a(f'v_pk_mul_f32 {vr(ACK+r,2)}, {vr(ACK+r,2)}, {vr(RR2+r,2)}')
    def bgp():
        if bg and EPD and not first:
            emit(bg.pop(0))
    for r in range(16):
        a(f'v_exp_f32_e64 v{RR2+r}, v{ACK+r} clamp')
        a(f'v_max_f32 v{ACK+r}, 0, v{ACK+r}')
        if r % 5 == 0:
            bgp()
    for r in range(0, 16, 2):
        a(f'v_pk_fma_f32 {vr(ACV+r,2)}, {vr(ACV+r,2)}, {vr(RR+r,2)}, {vr(vOH,2)}')
        a(f'v_pk_fma_f32 {vr(RR2+r,2)}, {vr(ACK+r,2)}, {sr(sLN2,2)}, {vr(RR2+r,2)}')
    bgp()
    for r in range(0, 16, 2):
        a(f'v_pk_add_f32 {vr(RR2+r,2)}, {vr(RR2+r,2)}, {sr(sEPS6,2)}')
        a(f'v_cvt_pk_bf16_f32 v{ACV+r//2}, v{ACV+r}, v{ACV+r+1}')
    bgp()
    for m in range(4):
        a(f'v_cvt_pk_bf16_f32 v{ACK+m}, v{RR2+2*m}, v{RR2+2*m+1}')
    a(f'{MF} {vr(KVD,16)}, {vr(ACK,4)}, {vr(ACV,4)}, 0')
    for m in range(4, 8):
        a(f'v_cvt_pk_bf16_f32 v{ACK+m}, v{RR2+2*m}, v{RR2+2*m+1}')
    a(f's_add_u32 s{sA}, s{sW4K}, {LKVS}')
    a(f'v_add_u32 v{vRSW}, s{sA}, v{vL16}')
    a(f'{MF} {vr(KVD,16)}, {vr(ACK+4,4)}, {vr(ACV+4,4)}, {vr(KVD,16)}')
    a(f's_add_u32 s{sA}, s{sW1K}, {LKVS}')
    a(f'v_add_u32 v{vRSR}, s{sA}, v{vL4}')
    if first:
        ib_check()
        a(f's_lshl_b32 s{sA}, s{sW}, 2')
        a(f's_add_u32 s{sA}, s{sA}, {LCS + 4*K}')
        a(f'v_mov_b32 v252, s{sA}')
        a(f'v_mov_b32 v253, s{sZW}')
        a('ds_write_b32 v252, v253')
        a(f'v_mov_b32 v252, {LCS + 4*K}')

    def qstep(ks, mem=(), vq_=None, early=False):
        if early and first:
            return
        a.wait(qt[ks])
        X = vr(16 + 4 * ks, 4) if ks < 28 else vr(XAUG, 4)
        a(f'{MF} {vr(ACQ,16)}, {vr(WR+4*(ks%6),4)}, {X}, {"0" if ks == 0 else vr(ACQ,16)}')
        shadow([lambda: rq(ks + 4)] + list(mem), vq_ if vq_ is not None else [])
    qstep(0, [bgp], early=True)
    for q in range(4):
        kw = a(f'ds_write_b128 v{vRSW}, {vr(KVD+4*q,4)} offset:{q*K}')
    qstep(1, [bgp], early=True)
    a.wait(kw)
    a.barrier()
    RED = RR2
    for wp in range(4):
        a(f'ds_read2st64_b32 {vr(RED+4*wp,2)}, v{vRSR} offset0:{16*wp} offset1:{16*wp+1}')
        t = a(f'ds_read2st64_b32 {vr(RED+4*wp+2,2)}, v{vRSR} offset0:{16*wp+2} offset1:{16*wp+3}')
    if first:
        mt = a(f'ds_read_b128 {vr(KVD,4)}, v252')
    qstep(2, early=True)
    a.wait(t)
    for i in range(4):
        a(f'v_add_f32 v{RED+i}, v{RED+i}, v{RED+4+i}')
        a(f'v_add_f32 v{RED+8+i}, v{RED+8+i}, v{RED+12+i}')
    for i in range(4):
        a(f'v_add_f32 v{RED+i}, v{RED+i}, v{RED+8+i}')
    for i in range(4):
        at = a(f'buffer_atomic_add_f32 v{RED+i}, v{vL4}, {sr(S_LY,4)}, s{sB} offen offset:{i*256}')
    stamp('p1atom')
    if first:
        a.wait(mt)
        a(f'v_or_b32 v{KVD}, v{KVD}, v{KVD+1}')
        a(f'v_or3_b32 v{KVD}, v{KVD}, v{KVD+2}, v{KVD+3}')
        a(f'v_readfirstlane_b32 s{sZW}, v{KVD}')
        for i in range(9):
            a(f'v_accvgpr_read_b32 v{LUC+i}, a{i}')
        a.wait(w1t[21], st['lu'])
        a.barrier()
        for ks in range(4):
            rq(ks)
        stamp('units')
        a(f's_cmp_lg_u32 s{sZW}, 0')
        a('s_cbranch_scc1 L_slow')
    return dict(qstep=qstep, at=at, qt=qt, bg=bg, us=st.get('us'), state=(a.vm_issued, a.vm_done, a.lg_issued, a.lg_done), qt0=dict(qt))


def phase1_q(ctx, first):
    qstep, at = ctx['qstep'], ctx['at']
    vRSW, vRSR, RR2 = p1RSW, p1RSR, P1RR2
    wo = wfrag_items(lambda n, b: vr(16 + 8 * n + 4 * b, 4), sWOSRC, 0, 8, p1SA, p1SB, sF)
    alpha = list(ctx['bg']) if first else []
    if not first:
        wo = list(ctx['bg']) + wo
    if first and FAST():
        wo = [[f's_cmp_ge_u32 s{sJ}, 28', f's_cselect_b32 s{sI}, {OOB:#x}, s{sOX}', f's_add_u32 s{sI}, s{sI}, {X1}',
               f'buffer_store_dwordx4 {vr(vXRES,4)}, v{vL16}, {sr(S_DT,4)}, s{sI} offen sc1'],
              [f'buffer_store_dwordx4 {vr(vXRES+4,4)}, v{vL16}, {sr(S_DT,4)}, s{sI} offen offset:1024 sc1']] + wo
    pqoff = PQ if (FAST() or first) else PQ + LYB
    vq = f1_addr() + [
          f's_lshl_b32 s{sA}, s{sTILE1}, 15',
          f's_lshl_b32 s{sB}, s{sHC}, 11',
          f's_add_u32 s{sA}, s{sA}, s{sB}',
          f's_add_u32 s{sA}, s{sA}, {pqoff}',
          f's_lshl_b32 s{sU}, s{sTILE1}, 9',
          f's_lshl_b32 s{sB}, s{sHC}, 5',
          f's_add_u32 s{sU}, s{sU}, s{sB}',
          f's_add_u32 s{sU}, s{sU}, {F1Q}',
          f'v_mov_b32 v{vC2+2}, v{vC2}']
    gt = {}

    def gath(k_):
        hh, e0 = k_ // 2, (k_ % 2) * 4
        r, half = 1 + hh // 2, hh % 2
        for e in range(e0, e0 + 4):
            gt[hh] = a(f'ds_read_u16 v{LUD[r]+8*half+e}, v{LUC+3*(r-1)} offset:{r*2048+(8*half+e)*128}')

    def pack(hh):
        r, half = 1 + hh // 2, hh % 2
        R = LUD[r] + 8 * half
        a.wait(gt[hh])
        for m in range(4):
            a(f'v_lshl_or_b32 v{R+m}, v{R+2*m+1}, 16, v{R+2*m}')

    def pst_(hh):
        r, half = 1 + hh // 2, hh % 2
        a(f'buffer_store_dwordx4 {vr(LUD[r]+8*half,4)}, v{LUC+3*(r-1)+1}, {sr(S_WS,4)}, 0 offen offset:{512*half} sc1')

    def csum():
        a(f's_lshl_b32 s{sC}, s{sW}, 8')
        a(f's_add_u32 s{sC}, s{sC}, {LCS}')
        a(f'v_add_u32 v229, s{sC}, v{vL4}')
        for r in (1, 2):
            R = LUD[r]
            a(f'v_mov_b32 v{R+4}, 0')
            for m in range(4):
                a(f'v_dot2c_f32_bf16 v{R+4}, s{sONES}, v{R+m}')
                a(f'v_dot2c_f32_bf16 v{R+4}, s{sONES}, v{R+8+m}')
            gt['cs'] = a(f'ds_write_b32 v229, v{R+4} offset:{r*1024}')
    for ks in range(0 if first else 3, 29):
        mem = []
        if first:
            if 4 <= ks <= 14 and ks % 2 == 0:
                mem.append(lambda h_=(ks - 4) // 2: pst_(h_))
            if ks < 12:
                mem.append(lambda k_=ks: gath(k_))
            if 3 <= ks <= 13 and ks % 2 == 1:
                mem.append(lambda h_=(ks - 3) // 2: pack(h_))
            if ks == 12:
                mem.append(csum)
        if ks % 2 == 1 and (not first or ks >= 5):
            mem.insert(0, wo.pop(0))
        qstep(ks, mem, vq)
        if ks == (F1AT0 if first else F1AT):
            assert not vq
            a.wait(at, gt.get('cs'))
            a.barrier()
            f1_store()
            if first:
                a(f's_mov_b32 s{sD}, s{sA}')
                us = aug_finish([1, 2], ucb=LUC - 3, R=132, t0=140, t1=141, t2=142)
                a(f's_mov_b32 s{sA}, s{sD}')
    a(f'v_mov_b32 v{ACK+7}, 0')
    a('s_nop 4')
    stamp('p1q')
    T = RR2
    for r in range(0, 14, 2):
        a(f'v_pk_mul_f32 {vr(ACQ+r,2)}, {vr(ACQ+r,2)}, {vr(vC2+1,2)} op_sel:[0,1] op_sel_hi:[1,1]')
    for r in range(14):
        a(f'v_exp_f32_e64 v{T+r}, v{ACQ+r} clamp')
        a(f'v_max_f32 v{ACQ+r}, 0, v{ACQ+r}')
    for r in range(0, 14, 2):
        a(f'v_pk_fma_f32 {vr(T+r,2)}, {vr(ACQ+r,2)}, {sr(sLN2,2)}, {vr(T+r,2)}')
    for r in range(0, 14, 2):
        a(f'v_pk_add_f32 {vr(T+r,2)}, {vr(T+r,2)}, {sr(sEPS6,2)}')
    for m in range(7):
        a(f'v_cvt_pk_bf16_f32 v{ACK+m}, v{T+2*m}, v{T+2*m+1}')
    sc = 'sc1' if first else LS()
    a(f'buffer_store_dwordx4 {vr(ACK,4)}, v{vL16}, {sr(S_DT,4)}, s{sA} offen {sc}')
    pst = a(f'buffer_store_dwordx4 {vr(ACK+4,4)}, v{vL16}, {sr(S_DT,4)}, s{sA} offen offset:1024 {sc}')
    if not FAST() and not first:
        a(f's_mov_b32 s{S_DT}, s{S_LY}')
        a(f's_mov_b32 s{S_DT+1}, s{S_LY+1}')
    for it in wo[:4]:
        emit(it)
    if first:
        a.wait(us)
    a.barrier()
    if first:
        ib_publish(0, vRSW, vRSR)
    a.wait(pst)
    emit(flag_store(S_LY, f's{sU}'))
    for it in wo[4:]:
        emit(it)
    if first and not FAST():
        poll(S_WS, vL16, f's{sH}', nonzero=True)
        a.barrier()
        for it in alpha:
            emit(it)
    if CT >= 2:
        emit(code_touch(205, 206)[0])
    p2_setup()
    stamp('p1end')


ACC0, ACC1 = 208, 224
AAC2, AAC3 = 224, 240


def accs(s):
    return [vr(ACC0, 16), vr(ACC1, 16), ar(AAC2, 16), ar(AAC3, 16)][s]


def red_setup(base, RA):
    o = []
    for s in (1, 2, 3):
        o += [f's_xor_b32 s{sA}, s{sW}, {s}',
              f's_mul_i32 s{sA}, s{sA}, 12288',
              f's_add_u32 s{sA}, s{sA}, {base + (s-1)*4096}',
              f'v_add_u32 v{RA+s}, s{sA}, v{vL16}']
    o += [f's_mul_i32 s{sA}, s{sW}, 12288',
          f's_add_u32 s{sA}, s{sA}, {base}',
          f'v_add_u32 v{RA}, s{sA}, v{vL16}']
    return o


def red_write(s, RA):
    o = []
    for q in range(4):
        d = [None, vr(ACC1 + 4 * q, 4), ar(AAC2 + 4 * q, 4), ar(AAC3 + 4 * q, 4)][s]
        o.append(f'ds_write_b128 v{RA+s}, {d} offset:{q*K}')
    return o


sOX, sOS, sOF = 97, 98, 99


def own_consts():
    a(f's_mul_i32 s{sOX}, s{sOWN}, {28*K}')
    a(f's_lshl_b32 s{sB}, s{sOFT}, 11')
    a(f's_add_u32 s{sOX}, s{sOX}, s{sB}')
    a(f's_lshl_b32 s{sOS}, s{sOWN}, 12')
    a(f's_cmp_ge_u32 s{sOFT}, 7')
    a(f's_cselect_b32 s{sA}, 7, 0')
    a(f's_cselect_b32 s{sB}, 512, 0')
    a(f's_add_u32 s{sOS}, s{sOS}, s{sB}')
    a(f's_sub_u32 s{sA}, s{sOFT}, s{sA}')
    a(f's_lshr_b32 s{sB}, s{sA}, 1')
    a(f's_lshl_b32 s{sB}, s{sB}, 10')
    a(f's_add_u32 s{sOS}, s{sOS}, s{sB}')
    a(f's_and_b32 s{sA}, s{sA}, 1')
    a(f's_lshl_b32 s{sA}, s{sA}, 3')
    a(f's_add_u32 s{sOS}, s{sOS}, s{sA}')
    a(f's_lshl_b32 s{sOF}, s{sOWN}, 9')
    a(f's_lshl_b32 s{sB}, s{sOFT}, 5')
    a(f's_add_u32 s{sOF}, s{sOF}, s{sB}')


def res_unpack(RU):
    o = []
    for m in range(8):
        o.append(f'v_lshlrev_b32 v{RU+2*m}, 16, v{vXRES+m}')
        o.append(f'v_and_b32 v{RU+2*m+1}, 0xffff0000, v{vXRES+m}')
    return o


def red_finish(final, RB, RU, RA, nm, xb, stb, flb, sc, mid, pre=()):
    for it in pre:
        emit(it)
    a.wait_lg0()
    a.barrier()
    toks = []
    for i in range(12):
        toks.append(a(f'ds_read_b128 {vr(RB+4*i,4)}, v{RA} offset:{i*K}'))
    if final is not True:
        a(f's_add_u32 s{sA}, s{sOX}, {xb}')
        a(f's_add_u32 s{sB}, s{sOS}, {stb}')
        a(f's_add_u32 s{sZW}, s{sOF}, {flb}')
    for r in range(0, 16, 2):
        a(f'v_pk_add_f32 {vr(ACC0+r,2)}, {vr(ACC0+r,2)}, {vr(RU+r,2)}')
    S, Q, t0, t1, tl = RU, RU + 1, RU + 2, RU + 3, RU + 4
    if final is not True:
        a(f'v_mov_b32 v{S}, 0')
        a(f'v_mov_b32 v{Q}, 0')
    for s in range(3):
        a.wait(toks[4 * s + 3])
        for r in range(0, 16, 2):
            a(f'v_pk_add_f32 {vr(ACC0+r,2)}, {vr(ACC0+r,2)}, {vr(RB+16*s+r,2)}')
    for m in range(8):
        a(f'v_cvt_pk_bf16_f32 v{vXRES+m}, v{ACC0+2*m}, v{ACC0+2*m+1}')
    if final is True:
        final_store()
        return
    if final == 'dyn':
        a(f's_cmp_lg_u32 s{sL}, 0')
        a('s_cbranch_scc1 ' + LB_('L_final'))
    a(f'buffer_store_dwordx4 {vr(vXRES,4)}, v{vL16}, {sr(S_DT,4)}, s{sA} offen {sc}')
    a(f'buffer_store_dwordx4 {vr(vXRES+4,4)}, v{vL16}, {sr(S_DT,4)}, s{sA} offen offset:1024 {sc}')
    for m in range(8):
        a(f'v_dot2c_f32_bf16 v{S}, s{sONES}, v{vXRES+m}')
        a(f'v_dot2c_f32_bf16 v{Q}, v{vXRES+m}, v{vXRES+m}')
    a(f'v_mov_b32 v{t0}, v{S}')
    a(f'v_mov_b32 v{t1}, v{Q}')
    a(f'v_permlane32_swap_b32 v{S}, v{t0}')
    a(f'v_permlane32_swap_b32 v{Q}, v{t1}')
    a(f'v_pk_add_f32 {vr(S,2)}, {vr(S,2)}, {vr(t0,2)}')
    a('s_mov_b32 exec_hi, 0')
    lt = a(f'buffer_store_dwordx2 {vr(S,2)}, v{vL16}, {sr(S_DT,4)}, s{sB} offen {sc}')
    a('s_mov_b64 exec, -1')
    stamp(nm + 'st')
    mid()
    a.wait(lt)
    emit(flag_store(S_LY, f's{sZW}'))


def final_store():
    a(f'v_and_b32 v18, 31, v{vLANE}')
    a(f'v_lshrrev_b32 v19, 5, v{vLANE}')
    a(f'v_mul_u32_u24 v{vROW}, 896, v18')
    a(f'v_lshl_add_u32 v{vROW}, v19, 4, v{vROW}')
    a(f's_mul_i32 s{sA}, s{sOWN}, 28672')
    a(f's_lshl_b32 s{sB}, s{sOFT}, 6')
    a(f's_add_u32 s{sA}, s{sA}, s{sB}')
    a(f'buffer_store_dwordx4 {vr(vXRES,4)}, v{vROW}, {sr(S_OUT,4)}, s{sA} offen {OSC}')
    a(f'buffer_store_dwordx4 {vr(vXRES+4,4)}, v{vROW}, {sr(S_OUT,4)}, s{sA} offen offset:32 {OSC}')


def idle_touch(base, per_wave_bytes, n, t=16):
    if not IDLE:
        return
    a(f's_sub_u32 s{sA}, s{sJ}, 28')
    a(f's_lshl_b32 s{sA}, s{sA}, 2')
    a(f's_add_u32 s{sA}, s{sA}, s{sW}')
    a(f's_mul_i32 s{sA}, s{sA}, {per_wave_bytes}')
    a(f's_add_u32 s{sA}, s{sA}, {base}')
    a(f'v_lshlrev_b32 v{t}, 7, v{vLANE}')
    for i in range(n):
        a(f'buffer_load_dword v{t+1}, v{t}, {sr(S_WS,4)}, s{sA} offen sc1')
        a(f's_add_u32 s{sA}, s{sA}, 8192')


def p2_setup():
    dma_setup(vROW, sW3SRC, 56 * K, LBETA)
    a(f'v_and_b32 v240, 3, v{vLANE}')
    a(f'v_lshlrev_b32 v240, 5, v240')
    a(f'v_bfe_u32 v241, v{vLANE}, 2, 1')
    a(f'v_lshl_add_u32 v240, v241, 9, v240')
    a(f's_lshl_b32 s{sC}, s{sTILE2}, 9')
    a(f's_lshl_b32 s{sA}, s{sW}, 7')
    a(f's_add_u32 s{sC}, s{sC}, s{sA}')
    a(f's_add_u32 s{sC}, s{sC}, {F1Q}')
    a(f's_lshl_b32 s{sE}, s{sOWN}, 15')
    a(f's_lshl_b32 s{sA}, s{sW}, 13')
    a(f's_add_u32 s{sE}, s{sE}, s{sA}')
    a(f's_add_u32 s{sE}, s{sE}, {PQ}')
    a(f's_xor_b32 s{sF}, s{sE}, 0x8000')
    a(f's_add_u32 s{sH}, s{sREP}, s{sW1K}')
    a(f's_add_u32 s{sH}, s{sH}, {F1}')
    a(f's_lshl_b32 s{sD}, s{sW}, 14')


def phase2(L):
    WO, PQR, KVR = 16, 80, 144
    ODS = (240, 160)
    KB = (144, 152, 176, 192)
    tag = f'{L}'
    beta = dma_items(vROW, LBETA, 56, 2)
    if L == 0:
        a(f's_add_u32 s{sI}, s{sW3SRC}, s{sW2K}')
        a(f's_add_u32 s{sG}, s{sREP}, s{sW1K}')
        al = []
        for r in range(7):
            al.append([f's_add_u32 m0, s{sW2K}, {LALPHA + r*8*K}', f's_add_u32 s85, s{sI}, {r*8*K}',
                       f'buffer_load_dwordx4 v{vL16}, {sr(S_WS,4)}, s85 offen sc1 lds'])
            al.append([f'buffer_load_dwordx4 v{vL16}, {sr(S_WS,4)}, s85 offen offset:1024 sc1 lds'])
        beta = al + beta
    a(f's_cmp_ge_u32 s{sJ}, 28')
    with cold('s_cbranch_scc1', back=LB_('L_p2skip' + tag)):
        if L == 0:
            poll(S_WS, vL16, f's{sG}', nonzero=True, sleep=2)
            a.barrier()
        for it in beta:
            emit(it)
        if L == 0:
            idle_touch(WDR, 7 * WDS // 16, IDN)
        elif L == 1:
            idle_touch(W3R + 112 * K, W3S, IDN)
        p3_setup(L)
        a.wait_vm0()
    with cond():
        poll(S_LY, 240, f's{sC}')
        stamp('p2pq')
        pt = {}
        for aa, s in ((1, sF), (0, sE)):
            for hl in range(4):
                for ks in range(2):
                    pt[hl, aa] = a(f'buffer_load_dwordx4 {vr(PQR+16*hl+8*aa+4*ks,4)}, v{vL16}, {sr(S_DT,4)}, s{s} offen offset:{(hl%2)*2048+ks*K} sc1')
                if hl == 1:
                    a(f's_add_u32 s{s}, s{s}, 4096')
                if aa == 1 and hl == 1:
                    fchk = a(f'buffer_load_dword v253, v{vL16}, {sr(S_LY,4)}, s{sH} offen sc1')
                if aa == 0 and hl == PQSPLIT:
                    break
        a.wait(fchk)
        check_or_poll(253, S_LY, vL16, f's{sH}', sleep=0)
        stamp('p2poll')
        kt = {}
        lq = []

        def kvl(hl, q):
            kt[hl] = a(f'buffer_load_dwordx4 {vr(KVR+16*hl+4*q,4)}, v{vL16}, {sr(S_LY,4)}, s{sD} offen offset:{q*K} sc1')
            if q == 3:
                a(f's_add_u32 s{sD}, s{sD}, 4096')

        def pql(hl, ks):
            pt[hl, 0] = a(f'buffer_load_dwordx4 {vr(PQR+16*hl+4*ks,4)}, v{vL16}, {sr(S_DT,4)}, s{sE} offen offset:{(hl%2)*2048+ks*K} sc1')
            if hl == 1 and ks == 1:
                a(f's_add_u32 s{sE}, s{sE}, 4096')
        if L == 0:
            bchk = a(f'buffer_load_dword v253, v{vL16}, {sr(S_WS,4)}, s{sG} offen sc1')
        for hl in range(4):
            for q in range(4):
                kvl(hl, q)
        if L == 0:
            a.wait(bchk)
            check_or_poll(253, S_WS, vL16, f's{sG}', nonzero=True, sleep=0)
            a.barrier()
        for hl in range(PQSPLIT + 1, 4):
            for ks in range(2):
                lq.append(lambda h_=hl, k_=ks: pql(h_, k_))
        wot = {}
        cw = []
        if CARRY:
            a(f's_and_b32 s{sA}, s{sW1K}, 0x400')
            a(f's_add_u32 s80, s{sWOSRC}, s{sA}')
            a(f's_xor_b32 s{sA}, s{sA}, 0x400')
            a(f's_add_u32 s81, s{sWOSRC}, s{sA}')
        ncw = 0
        for it in CARRY:
            m_ = re.match(r'buffer_load_dwordx4 ([va])\[(\d+):', it[-1])
            assert m_
            if m_.group(1) == 'v':
                k_ = (int(m_.group(2)) - 16) // 4

                def f(k_=k_):
                    a(f's_add_u32 s78, s{80 + k_ % 2}, {(k_ // 2) * 2048}')
                    wot[k_ // 4] = a(f'buffer_load_dwordx4 {vr(16+4*k_,4)}, v{vL16}, {sr(S_WS,4)}, s78 offen sc1')
                cw.append(f)
            else:
                ncw += 1
        CARRY[:] = []
        for f in cw[:CWN]:
            f()
        beta = cw[CWN:] + lq + beta
        wd2 = []
        if L != 1:
            a(f's_and_b32 s{sA}, s{sW1K}, 0x400')
            a(f's_add_u32 s76, s{sWDSRC}, s{sA}')
            a(f's_xor_b32 s{sA}, s{sA}, 0x400')
            a(f's_add_u32 s77, s{sWDSRC}, s{sA}')
            for k_ in range(WDP1 - ncw, WDP1 + WDP2):
                n_, b = k_ // 2, k_ % 2
                wd2.append([f's_add_u32 s78, s{76+b}, {n_*2048}',
                            f'buffer_load_dwordx4 {ar(8*n_+4*b,4)}, v{vL16}, {sr(S_WS,4)}, s78 offen sc1'])

        def cvt(hl):
            return [f'v_cvt_pk_bf16_f32 v{KB[hl]+m}, v{KVR+16*hl+2*m}, v{KVR+16*hl+2*m+1}' for m in range(8)]
        units = [(hl, aa) for aa in (1, 0) for hl in range(4)]

        def oM(u):
            hl, aa = units[u]
            D = vr(ODS[u % 2], 16)
            P = PQR + 16 * hl + 8 * aa
            return [f'{MF} {D}, {vr(KB[hl],4)}, {vr(P,4)}, 0',
                    f'{MF} {D}, {vr(KB[hl]+4,4)}, {vr(P+4,4)}, {D}']

        def scale(u):
            hl, aa = units[u]
            D = ODS[u % 2]
            P = PQR + 16 * hl + 8 * aa
            o = [f'v_add_f32 v{D+14}, s{sEPS6}, v{D+14}',
                 f'v_rcp_f32 v{D+14}, v{D+14}']
            for m in range(7):
                o.append(f'v_mul_f32 v{D+2*m}, v{D+2*m}, v{D+14}')
                o.append(f'v_mul_f32 v{D+2*m+1}, v{D+2*m+1}, v{D+14}')
                o.append(f'v_cvt_pk_bf16_f32 v{P+m}, v{D+2*m}, v{D+2*m+1}')
            return o

        def woM(u, bs):
            hl, aa = units[u]
            P = PQR + 16 * hl + 8 * aa
            o = []
            for b in bs:
                for ks in range(2):
                    D = accs(2 * aa + b)
                    c = '0' if (hl == 0 and ks == 0) else D
                    o.append(f'{MF} {D}, {vr(WO+16*hl+8*ks+4*b,4)}, {vr(P+4*ks,4)}, {c}')
            return o
        RU, RA = 160, 184
        a.wait(kt[0])
        emit(cvt(0))
        emit(oM(0))
        a.wait(kt[1])
        emit(cvt(1))
        m1 = oM(1)
        vs = scale(0)
        a(m1[0]); shadow([], vs)
        a(m1[1]); emit(vs)
        wr = []
        for u in range(9):
            if u < 4:
                ms = woM(u, (0, 1))
            elif u < 8:
                ms = woM(u, (1,)) + (woM(u - 2, (0,)) if u >= 6 else [])
            else:
                ms = woM(6, (0,)) + woM(7, (0,))
            vs = scale(u + 1) if u + 1 < 8 else []
            if u < 4:
                while any(getattr(x, '__name__', '') == 'f' and x.__defaults__[0] // 4 <= u for x in beta):
                    beta.pop(0)()
                a.wait(wot.get(u))
            if u < 2:
                a.wait(kt[u + 2])
                vs = cvt(u + 2) + vs
            if u == 2:
                vs = vs + red_setup(LB, RA)[:8]
            if u == 3:
                vs = vs + red_setup(LB, RA)[8:]
            if u == 4:
                wr = red_write(2, RA) + red_write(3, RA)
            if u == 7:
                vs = res_unpack(RU)
            if u == 8:
                wr = wr + red_write(1, RA)
            if u + 2 < 8:
                ms = ms[:2] + ['W'] + oM(u + 2) + ms[2:]
            k_ = 0
            for m in ms:
                if m == 'W':
                    a.wait(pt[units[u + 2]])
                    if u < 2:
                        while any(x in vs for x in cvt(u + 2)):
                            a(vs.pop(0))
                    continue
                a(m)
                mem = []
                if beta and k_ % 2 == 0:
                    mem.append(beta.pop(0))
                elif wd2 and k_ % 2 == 0:
                    mem.append(wd2.pop(0))
                if wr and (k_ % 2 == 1 or u == 8) and not (u in (4, 8) and k_ == 0):
                    mem.append(wr[:1]); wr = wr[1:]
                shadow(mem, vs)
                k_ += 1
            emit(vs)
        wd2 = beta + wd2 + (code_touch(188, 189) if CT >= 2 else [])
        stamp('p2mfma')
        emit(wr)
        sc = LS()
        red_finish(False, 80, RU, RA, 'p2', X1, ST1, F2, sc, lambda: p3_setup(L), pre=wd2)
    a.label(LB_('L_p2skip' + tag))
    stamp('p2end')


p3D1, p3D3, p3SA, p3SB = 228, 229, 240, 241
p3D2 = 243
p3FL, p3HA, p3HB, p3FV = 244, 245, 246, 247


def p3_setup(L):
    vFL, vHA, vHB = p3FL, p3HA, p3HB
    x_prep(F2, X1, ST1)
    dma_setup(p3D3, sW3SRC, 112 * K, LB)
    dma_setup(p3D1, sW3SRC, 147 * K, LALPHA)
    if L is None:
        a(f's_cmp_lg_u32 s{sL}, 0')
        a(f's_cselect_b32 s{sA}, {OOB:#x}, s{sW1SRC}')
        a(f'v_add_u32 v{p3D2}, s{sA}, v{vL16}')
    elif L == 0:
        a(f'v_add_u32 v{p3D2}, s{sW1SRC}, v{vL16}')
    a(f's_mul_i32 s{sG}, s{sTILE1}, {112*K}')
    a(f's_mul_i32 s{sA}, s{sHC}, {7*K}')
    a(f's_add_u32 s{sG}, s{sG}, s{sA}')
    a(f's_add_u32 s{sG}, s{sG}, {HB}')
    a(f's_add_u32 s{sH}, s{sG}, 4096')
    a(f's_lshl_b32 s{sU}, s{sTILE1}, 9')
    a(f's_lshl_b32 s{sA}, s{sHC}, 2')
    a(f's_add_u32 s{sU}, s{sU}, s{sA}')
    a(f's_add_u32 s{sU}, s{sU}, {F3}')


def p4_addr():
    vFL, vHA, vHB = p3FL, p3HA, p3HB
    return [f'v_and_b32 v{vFL}, 3, v{vLANE}',
            f'v_lshlrev_b32 v{vFL}, 2, v{vFL}',
            f'v_bfe_u32 v{vHA}, v{vLANE}, 2, 1',
            f'v_lshl_add_u32 v{vFL}, v{vHA}, 9, v{vFL}',
            f's_lshl_b32 s{sA}, s{sTILE2}, 9',
            f's_lshl_b32 s{sB}, s{sW}, 4',
            f's_add_u32 s{sA}, s{sA}, s{sB}',
            f's_add_u32 s85, s{sA}, {F3}',
            f'v_add_u32 v{vFL}, s85, v{vFL}',
            f's_mul_i32 s{sB}, s{sW}, {28*K}',
            f's_add_u32 s{sB}, s{sB}, {HB}',
            f's_mul_i32 s{sA}, s{sOWN}, {112*K}',
            f's_add_u32 s{sA}, s{sA}, s{sB}',
            f'v_add_u32 v{vHA}, s{sA}, v{vL16}',
            f's_xor_b32 s{sA}, s{sOWN}, 1',
            f's_mul_i32 s{sA}, s{sA}, {112*K}',
            f's_add_u32 s{sA}, s{sA}, s{sB}',
            f'v_add_u32 v{vHB}, s{sA}, v{vL16}']


def phase34(L):
    ACC = 128
    WR, NW = 192, 8
    SB = 176
    XAUG = 224
    vD1, vD3, vSA, vSB, vD2 = p3D1, p3D3, p3SA, p3SB, p3D2
    vFL, vHA, vHB, vFV = p3FL, p3HA, p3HB, p3FV
    vFV2 = 242
    PRE = XPRE
    HR, NH = 16, 28
    tag = f'{L}'
    LOOK = 6
    NG = 3 if G3 else 2
    steps = [(t, ks) for ks in range(29) for t in range(NG)]
    for t in range(NG, 7):
        steps += [(t, ks) for ks in range(29)]

    def addr(t, ks):
        if G3 and t < 3:
            p = 3 * ks + t
            return LALPHA + p * K if p < 56 else LBETA + (p - 56) * K
        if ks == 28 and t < 3:
            return LBETA + t * K
        if t < 2:
            return LALPHA + (2 * ks + t) * K
        if t == 2:
            return LBETA + (3 + ks) * K
        if t == 3:
            return LBETA + (31 + ks) * K
        if t == 4:
            return LB + (4 + ks) * K
        if t == 5:
            return LALPHA + ks * K
        return LALPHA + (29 + ks) * K if ks < 27 else LB + (33 + ks - 27) * K
    n = len(steps)
    accof = {0: 0, 1: 1, 2: 2, 3: 3, 4: 0, 5: 1, 6: 2}
    rt, xt, hst, ht, chk = {}, {}, {}, {}, {}

    def hsc(t):
        return LS() if (L == 1 and t >= HPL) else 'sc1'

    def epi(t, D=None, Sx=None):
        Sx = ACC + 16 * accof[t] if Sx is None else Sx
        D = Sx if D is None else D
        o = []
        for r in range(8):
            o.append(f'v_mul_f32 v{D+r}, v{Sx+r}, v{vC2}')
        for r in range(8):
            o.append(f'v_exp_f32_e64 v{D+r}, -v{D+r}')
            if r >= 2:
                o.append(f'v_fma_f32 v{D+r-2}, v{D+r-2}, v{vISTD}, v{vISTD}')
        for r in (6, 7):
            o.append(f'v_fma_f32 v{D+r}, v{D+r}, v{vISTD}, v{vISTD}')
        for r in range(8):
            o.append(f'v_rcp_f32 v{D+r}, v{D+r}')
            if r >= 2:
                o.append(f'v_mul_f32 v{D+r-2}, v{D+r-2}, v{Sx+8+r-2}')
        for r in (6, 7):
            o.append(f'v_mul_f32 v{D+r}, v{D+r}, v{Sx+8+r}')
        for m in range(4):
            o.append(f'v_cvt_pk_bf16_f32 v{D+8+m}, v{D+2*m}, v{D+2*m+1}')
        s = sG if t < 4 else sH
        o.append(f'buffer_store_dwordx4 {vr(D+8,4)}, v{vL16}, {sr(S_DT,4)}, s{s} offen offset:{(t%4)*K} {hsc(t)} ; H{t}')
        return o

    def issue_rd(i):
        if i >= n:
            return
        t, ks = steps[i]
        d = WR + 4 * (i % NW)
        rt[i] = read_frag(d, addr(t, ks)) if ks < 28 else read_aug(d, addr(t, ks), 251 + (i % 3))

    def flag_ld(stg):
        if stg == 0 or not FAST():
            chk[stg] = a(f'buffer_load_dword v{vFV}, v{vFL}, {sr(S_LY,4)}, 0 offen offset:{64*stg} sc1')
        else:
            a(f's_buffer_load_dwordx4 s[76:79], {sr(S_LY,4)}, s85 offset:{64*stg}')
            a(f's_buffer_load_dwordx4 s[80:83], {sr(S_LY,4)}, s85 offset:{64*stg+512}')

    def flag_chk(stg):
        if FAST():
            a('s_waitcnt lgkmcnt(0)')
            a('s_and_b64 s[76:77], s[76:77], s[78:79]')
            a('s_and_b64 s[80:81], s[80:81], s[82:83]')
            a('s_and_b64 s[76:77], s[76:77], s[80:81]')
            a('s_and_b32 s76, s76, s77')
        else:
            a.wait(chk[stg])
            a(f'v_cmp_ne_u32 vcc, 1, v{vFV}')
            a('s_cmp_eq_u64 vcc, 0')
        assert 6 in hst
        with cold('s_cbranch_scc0'):
            a.wait_vm0()
            emit(flag_store(S_LY, f's{sU}', imm=128))
            emit(flag_store(S_LY, f's{sU}', imm=192))
            poll(S_LY, vFL, 0, imm=64 * stg)

    CHK = {24: 1, 40: 2, 48: 3}

    def hld(idx, chkflags=True):
        if idx >= 56:
            return
        if chkflags and idx + 4 in CHK:
            flag_ld(CHK[idx + 4])
        if chkflags and idx in CHK:
            flag_chk(CHK[idx])
        n_, aa = idx // 2, idx % 2
        t, cc = n_ // 4, n_ % 4
        if aa == 0:
            a(f's_mov_b32 s{sE}, {(cc*7+t)*K}')
        ht[idx] = a(f'buffer_load_dwordx4 {vr(HR+4*(idx%NH),4)}, v{(vHA,vHB)[aa]}, {sr(S_DT,4)}, s{sE} offen sc1')

    a.wait_lg0()
    if BEARLY:
        a.barrier()
        for i in range(LOOK):
            issue_rd(i)
    poll(S_LY, 240, f's{sC}')
    stamp('p3poll')
    for ks in range(4):
        xt[ks] = x_load(ks)
    if not BEARLY:
        a.barrier()
        for i in range(LOOK):
            issue_rd(i)
    for ks in range(4, PRE):
        xt[ks] = x_load(ks)
    fill, owner = [], []
    done_at = {}
    wd = [] if L == 1 else wfrag_items(lambda n_, b: ar(8 * n_ + 4 * b, 4), sWDSRC, (WDP1 + WDP2) // 2, 28, vSA, vSB, sF)
    ft = [[f'v_and_b32 v233, 0x80, v{vL4}', f'buffer_load_dword v233, v233, {sr(S_LY,4)}, s{sU} offen sc1']] if FT else []
    if HT and FAST() and (L == 1 or HT > 1):
        ft += [[f'v_min_u32 v234, 55, v{vLANE}', f'v_lshlrev_b32 v234, 7, v234', f'buffer_load_dword v234, v234, {sr(S_DT,4)}, s{sG} offen sc1']]
    bg = dma_items(vD3, LB, 36, 1) + ['M3'] + ft + wd[:WDP3]
    wd4 = wd[WDP3:]
    assert len(wd4) <= 16
    marks = {}
    cur = [0]

    def pop():
        x = fill.pop(0); o = owner.pop(0)
        t = a(x)
        if '; H' in x:
            hst[o] = (t, cur[0])

    def pub(stg, last_tile):
        a.wait(hst[last_tile][0])
        emit(flag_store(S_LY, f's{sU}', imm=64 * stg))

    def xl(ks):
        xt[ks] = x_load(ks)

    def next_bg():
        while bg and isinstance(bg[0], str):
            marks[bg.pop(0)] = mark()
        return bg.pop(0) if bg else None
    pubs = [(0, 2), (1, 4)]
    for i, (t, ks) in enumerate(steps):
        cur[0] = i
        if i == (45 if G3 else 34):
            a.wait(chk['st'])
            s_ = [f's_and_b32 s{sA}, s{sW1K}, 0x400', f'v_add_u32 v{vSA}, s{sA}, v{vL16}', f'v_xor_b32 v{vSB}, 0x400, v{vSA}'] + \
                stats_sum(SB) + stats_finish(XAUG, SB) + p4_addr()
            fill += s_; owner += [-1] * len(s_)
        stamp(f'i{i}', fine=True) if i in (1, 30, 57, 87, 116, 145, 174) else None
        if i % 2 == 0:
            a.wait(rt[min(i + 1, n - 1)], xt.get(steps[min(i + 1, n - 1)][1]), xt.get(ks))
        if i == 56:
            a.barrier()
            k3 = bg.index('M3') + 1 if 'M3' in bg else 0
            bg = bg[:k3] + dma_items(vD1, LALPHA, 56, 2) + ['M4'] + code_touch(232, 233) + bg[k3:]
        if i + LOOK == 112:
            a.wait(marks['M3'])
            a.barrier()
        if i + LOOK == 145:
            a.wait(marks['M4'])
            a.barrier()
            bg = code_touch(232, 233) + bg
        D = vr(ACC + 16 * accof[t], 16)
        if ks == 0 and t >= 4:
            assert (t - 4) not in owner
        if ks == 28:
            assert -1 not in owner
        X = vr(16 + 4 * ks, 4) if ks < 28 else vr(XAUG, 4)
        a(f'{MF} {D}, {vr(WR+4*(i%NW),4)}, {X}, {"0" if ks == 0 else D}')
        if ks == 28:
            done_at[t] = i
        for tt, di in list(done_at.items()):
            if i >= di + 2:
                e = epi(tt)
                fill += e; owner += [tt] * len(e)
                del done_at[tt]
        pre = main = None
        if t == 0 and ks + PRE < 28:
            main = (lambda k_=ks + PRE: xl(k_))
        elif t == NG - 1 and ks < 8 and ks % 2 == 0:
            main = (lambda k_=ks // 2: chk.__setitem__('st', st_load(k_, SB)))
        elif G3 and t == 2 and ks + PRE < 28 and ks % 2 == 0 and 'M3' not in marks:
            pre, main = split_item(next_bg())
        elif t == 6:
            if ks % 2 == 1:
                main = (lambda k_=ks // 2: hld(k_))
        elif i == 173:
            main = lambda: flag_ld(0)
        elif i % 2 == 0 and i >= NG * (28 - PRE):
            pre, main = split_item(next_bg())
        extra = None
        if fill and '; H' in fill[0]:
            extra = pop
        elif pubs and pubs[0][1] in hst and i >= hst[pubs[0][1]][1] + PUBD and i % 2 == 1:
            extra = (lambda p=pubs.pop(0): pub(*p))
        n0 = len(a.ins)
        for f in (pre, lambda: issue_rd(i + LOOK), main, extra):
            if f is None:
                continue
            f() if callable(f) else emit(f)
        budget = CAP3 - (len(a.ins) - n0) - (i % 2)
        while fill and '; H' not in fill[0] and budget >= cost(fill[0]):
            budget -= cost(fill[0])
            pop()
    assert not pubs and next_bg() is None, len(bg)
    print('P3: h stores at steps', {t: v[1] for t, v in hst.items()}, 'left', len(fill))
    assert not fill and 5 in hst
    stamp('p3mfma')

    RU, RA = 192, 128
    w1 = [] if L == 1 else dma_items(vD2, 0, 88, 2)
    nxt = (lambda: p1_setup(False)) if L != 1 else (lambda: None)
    a(f's_cmp_ge_u32 s{sJ}, 28')
    with cold('s_cbranch_scc1', back=LB_('L_p4skip' + tag)):
        emit(epi(6))
        pub(2, 5)
        a.barrier()
        a.wait_vm0()
        emit(flag_store(S_LY, f's{sU}', imm=192))
        if L == 0:
            idle_touch(W1R, W1S, 11)
        if L == 1 and WB:
            a('buffer_wbl2 sc1')
        for it in w1:
            emit(it)
        nxt()
    with cond():
        a.wait(chk[0])
        a(f'v_cmp_ne_u32 vcc, 1, v{vFV}')
        a('s_cmp_eq_u64 vcc, 0')
        saved = dict(ht)
        with cold('s_cbranch_scc0'):
            emit(epi(6, D=ACC + 48))
            a.wait_vm0()
            emit(flag_store(S_LY, f's{sU}', imm=128))
            emit(flag_store(S_LY, f's{sU}', imm=192))
            poll(S_LY, vFL, 0, imm=0)
            for idx in range(14):
                hld(idx, False)
            a.wait_vm0()
        ht.update(saved)
        fill = epi(6)
        owner = [6] * len(fill)
        later = red_setup(LALPHA, RA) + res_unpack(RU)
        TAIL = 8
        nld = [14]
        todo = ['pub2', 'pub3']
        wt = {}

        def mf(n_, s):
            aa, b = s >> 1, s & 1
            D = accs(s)
            a(f'{MF} {D}, {ar(8*n_+4*b,4)}, {vr(HR+4*((2*n_+aa)%NH),4)}, {"0" if n_ == 0 else D}')

        def sh(step, load):
            cur[0] = step
            n0 = len(a.ins)
            if load:
                if nld[0] < 56:
                    hld(nld[0]); nld[0] += 1
                elif w1:
                    emit(w1.pop(0))
            elif todo and todo[0] == 'pub2' and step >= 13:
                pub(2, 5); todo.pop(0)
            elif todo and todo[0] == 'pub3' and 6 in hst and step >= hst[6][1] + PUBD2:
                pub(3, 6); todo.pop(0)
                fill.extend(later); owner.extend([-2] * len(later))
            elif wd4:
                wt[0] = emit(wd4.pop(0))
            if step >= 1:
                if fill and '; H' in fill[0]:
                    pop()
                budget = CAP - (len(a.ins) - n0)
                while fill and '; H' not in fill[0] and budget >= cost(fill[0]):
                    budget -= cost(fill[0])
                    pop()
        for n_ in range(28 - TAIL):
            if n_ == P4B:
                a.barrier()
            stamp(f'n{n_}') if ('p4prof' in OPT and n_ in (2, 4, 8, 13, 15, 17)) else None
            a.wait(ht[2 * n_])
            mf(n_, 0); sh(4 * n_, True)
            mf(n_, 1); sh(4 * n_ + 1, False)
            a.wait(ht[2 * n_ + 1])
            mf(n_, 2); sh(4 * n_ + 2, True)
            mf(n_, 3); sh(4 * n_ + 3, 10 <= n_ < 16)
        assert nld[0] == 56 and not fill and not todo and not wd4
        stamp('n20') if 'p4prof' in OPT else None
        a.wait(wt.get(0))
        pend = []
        for s in (3, 2, 1, 0):
            for k_, n_ in enumerate(range(28 - TAIL, 28)):
                a.wait(ht[2 * n_ + 1])
                mf(n_, s)
                if k_ % 2 == 1 and pend:
                    emit(pend[:1]); pend = pend[1:]
                elif w1 and k_ % 2 == 0 and len(w1) > W1KEEP:
                    emit(w1.pop(0))
            if s > 0:
                pend = red_write(s, RA)
        stamp('p4mfma')

        def mid():
            for it in w1:
                emit(it)
            nxt()
        final = {0: False, 1: True, None: 'dyn'}[L]
        xb, stb = (X1, ST1) if FAST() else (X0 + LYB, ST0 + LYB)
        pre4 = w1[:len(w1) // 4 * 2]; w1 = w1[len(pre4):]
        pre4 = pre4 + (code_touch(140, 141) if CT >= 2 and L != 1 else [])
        red_finish(final, 16, RU, RA, 'p4', xb, stb, F0 + LYB, LS(), mid, pre=pre4)
    a.label(LB_('L_p4skip' + tag))
    if L != 1:
        stamp('p4end')


def restore(ctx):
    a.vm_issued, a.vm_done, a.lg_issued, a.lg_done = ctx['state']
    ctx['qt'].clear(); ctx['qt'].update(ctx['qt0'])


def build():
    prologue()
    init_phase()
    MODE.update(sc='', sfx='')
    ctx = phase1_kv(True)
    phase1_q(ctx, True)
    phase2(0)
    phase34(0)
    c2 = phase1_kv(False)
    phase1_q(c2, False)
    phase2(1)
    phase34(1)
    a.label('L_done')
    if PROFILE:
        stamp('end')
        a(f's_lshl_b32 s{sA}, s2, 2')
        a(f's_add_u32 s{sA}, s{sA}, s{sW}')
        a(f's_lshl_b32 s{sA}, s{sA}, 8')
        a(f's_add_u32 s{sA}, s{sA}, {PROF}')
        a(f'buffer_store_dword v{vPROF}, v{vL4}, {sr(S_WS,4)}, s{sA} offen')
        if 'dbgout' in OPT:
            a(f's_lshl_b32 s{sA}, s2, 2')
            a(f's_add_u32 s{sA}, s{sA}, s{sW}')
            a(f's_cmp_lg_u32 s{sA}, {77*4+1}')
            a('s_cbranch_scc1 L_end')
            a(f'v_readfirstlane_b32 s{sA}, v{vPROF}')
            a(f'v_subrev_u32 v{vPROF}, s{sA}, v{vPROF}')
            a(f'v_lshlrev_b32 v20, 1, v{vLANE}')
            a(f'v_subrev_u32 v20, {2*int(OPT["dbgout"])}, v20')
            a(f'buffer_store_short v{vPROF}, v20, {sr(S_DBG,4)}, 0 offen sc1')
    a.label('L_end')
    a('s_endpgm')
    a.flush_cold()
    a.label('L_codeend')
    keep = list(STAMPS)
    a.label('L_slow')
    MODE.update(sc='sc1', sfx='_s')
    restore(ctx)
    a('s_nop 7')
    phase1_q(ctx, True)
    a.label('L_layer_s')
    a('s_nop 7')
    phase2(None)
    phase34(None)
    a(f's_cmp_lg_u32 s{sL}, 0')
    a('s_cbranch_scc1 L_done')
    a(f's_mov_b32 s{sL}, 1')
    c2 = phase1_kv(False)
    phase1_q(c2, False)
    a('s_branch L_layer_s')
    a.label('L_final_s')
    final_store()
    a('s_branch L_done')
    a.flush_cold()
    STAMPS[:] = keep


build()
hdr = open('cdna_kernels/' + NAME + '.s.ref').read().split('; Override launch')[0]
out = hdr + f"""; @launch grid=(256,1,1) block=(256,1,1) lds={LDS_BYTES}
.amdgcn_target "amdgcn-amd-amdhsa--gfx950"
.text
.globl {NAME}_kernel
.p2align 8
.type {NAME}_kernel,@function
{NAME}_kernel:
{a.text()}
.section .rodata,"a"
.p2align 6
.amdhsa_kernel {NAME}_kernel
  .amdhsa_next_free_vgpr 512
  .amdhsa_next_free_sgpr 102
  .amdhsa_accum_offset 256
  .amdhsa_group_segment_fixed_size 0
  .amdhsa_kernarg_size 80
  .amdhsa_user_sgpr_count 2
  .amdhsa_user_sgpr_kernarg_segment_ptr 1
  .amdhsa_system_sgpr_workgroup_id_x 1
  .amdhsa_float_denorm_mode_32 3
.end_amdhsa_kernel
"""
outfn = [x for x in sys.argv[1:] if not x.startswith('--')][0]
open(outfn, 'w').write(out)
open(outfn + '.names', 'w').write(','.join(STAMPS))
print('instructions', len(a.ins), 'nops added', a.nops_added)
```

```python
import sys
import contextlib
import re
from asmlib import Asm, vr, ar, sr

NAME = "interleave_layers__linear_attn_block__glu_gated_glu__prompt"
OPT = {}
for x in sys.argv[1:]:
    if x.startswith('--'):
        k, _, v = x[2:].partition('=')
        OPT[k] = v if v else True
PROFILE = 'prof' in OPT
FINE = 'fine' in OPT
CLK = 'clk' in OPT
STOP = OPT.get('stop')
FA = 1
SLEEP = int(OPT.get('sleep', 1))
TOUCH = int(OPT.get('touch', 0))
BUD = int(OPT.get('bud', 3))
XPRE = int(OPT.get('xpre', 8))
HPRE = int(OPT.get('hpre', 16))
HSC = int(OPT.get('hsc', 0))
XSC = int(OPT.get('xsc', 0))
TLBW = int(OPT.get('tlbw', 0))
XI = int(OPT.get('xi', 4))
XA = int(OPT.get('xa', 10))
CT = int(OPT.get('ct', 1))
FT = int(OPT.get('ft', 0))
HT = int(OPT.get('ht', 0))
X0N = int(OPT.get('x0n', 0))
IDLE = int(OPT.get('idle', 0))
OSC = OPT.get('osc', '')
PQSC = int(OPT.get('pqsc', 0))
WB = int(OPT.get('wb', 0))
IDN = int(OPT.get('idn', 11))
HPL = int(OPT.get('hpl', 9))
G3 = int(OPT.get('g3', 1))
P4B = int(OPT.get('p4b', 1))
BEARLY = int(OPT.get('bearly', 1))
WDP2 = int(OPT.get('wdp2', 4))
W1KEEP = int(OPT.get('w1keep', 0))
CARRYON = int(OPT.get('carry', 0))
CWN = int(OPT.get('cwn', 4))
EPD = int(OPT.get('epd', 1))
STA = int(OPT.get('sta', 10))
LUP = int(OPT.get('lup', 16))
F1AT0 = int(OPT.get('f1at0', 22))
CAP3 = int(OPT.get('cap3', 7))
WSC = '' if 'nowsc' in OPT else 'sc1'
STAMPS = []

IB = 0x0
W1R = 0x100000; W1S = 87 * 1024
WOR = 0x280000
W3R = 0x300000; W3S = 203 * 1024
WDR = 0x680000; WDS = 224 * 1024
LYB = 0x1000000
KV = 0x0
F1 = 0x10000
F1Q = 0x18000
F3 = 0x30000
F2 = 0x20000
F0 = 0x28000
ST1 = 0x40000
ST0 = 0x80000
PQ = 0x100000
X1 = 0x300000
X0 = 0x500000
HB = 0x700000
PROF = 0x3000000
WS_BYTES = 256 << 20
OOB = 0x40000000

K = 1024
LBETA, LB, LALPHA = 0, 56 * K, 104 * K
LRS = 87 * K
LKVS = 88 * K
LDS_BYTES = 160 * K

S_WS, S_X, S_WQKV, S_WO, S_WG, S_WU, S_WD, S_OUT, S_DBG = 4, 8, 12, 16, 20, 24, 28, 32, 36
S_T0, S_T1 = 40, 44
S_LY = 40
S_DT = 44
sW, sJ, sHC, sTB, sFB, sL, sTMO, sPI = 48, 49, 50, 51, 52, 53, 54, 55
sTILE1, sTILE2, sOWN, sOFT = 56, 57, 58, 59
sLN2, sEPS6 = 60, 62
sONES = 84
sW1K, sW2K, sW4K = 64, 65, 66
sW1SRC, sW3SRC, sWOSRC, sWDSRC = 67, 68, 69, 70
sRBG, sREP = 71, 72
sG, sH, sI = 73, 74, 75
sA, sB, sC, sD, sE, sF = 86, 87, 88, 89, 90, 91
sP0 = 92
sU = 94
sXID = 95
sZW = 96
sPC = 100

vLANE, vL16, vL16b, vL16c, vROW, vAUG, vL4, vPROF = 0, 1, 2, 3, 4, 5, 6, 7
vXRES = 8
LOG2E = 0x3FB8AA3B
LN2 = 0x3F317218
EPS6 = 0x358637BD
EPS5 = 0x3727C5AC
INV448 = 0x3B124925
MF = 'v_mfma_f32_32x32x16_bf16'

a = Asm()
MODE = {'sc': 'sc1', 'sfx': ''}


def LS():
    return MODE['sc']


def LL():
    return OPT.get('ll', 'sc1').replace('none', '') if MODE['sc'] == '' else 'sc1'


def ALIAS():
    return MODE['sfx'] == '' and 'noalias' not in OPT


def XS():
    return 'sc1' if XSC else LS()


def HS():
    return 'sc1' if HSC else LS()


def LB_(n):
    return n + MODE['sfx']


@contextlib.contextmanager
def cond():
    st = (a.vm_issued, a.vm_done, a.lg_issued, a.lg_done)
    yield
    a.vm_issued, a.vm_done, a.lg_issued, a.lg_done = st


@contextlib.contextmanager
def cold(branch, back=None):
    C = a.uid('Lc'); R = back or a.uid('Lr')
    a(f'{branch} {C}')
    st = (a.vm_issued, a.vm_done, a.lg_issued, a.lg_done)
    a.begin_cold()
    a.label(C)
    a('s_nop 7')
    a('s_nop 3')
    yield
    a('s_nop 4')
    a(f's_branch {R}')
    a.end_cold()
    a.vm_issued, a.vm_done, a.lg_issued, a.lg_done = st
    if back is None:
        a.label(R)


def mark():
    return ('vm', a.vm_issued - 1)


def lds_addr(addr):
    if addr < 65536:
        return vL16, addr
    if addr < 131072:
        return vL16b, addr - 65536
    return vL16c, addr - 131072


def stamp(name, fine=False):
    if not PROFILE or (fine and not FINE):
        return
    STAMPS.append(name)
    a('s_waitcnt lgkmcnt(0)')
    a(f"{'s_memtime' if CLK else 's_memrealtime'} {sr(sP0,2)}")
    a.wait_lg0()
    a(f'v_cmp_eq_u32 vcc, s{sPI}, v{vLANE}')
    a(f'v_mov_b32 v255, s{sP0}')
    a(f'v_cndmask_b32 v{vPROF}, v{vPROF}, v255, vcc')
    a(f's_add_u32 s{sPI}, s{sPI}, 1')


def srd(base, lo, nbytes):
    a(f's_mov_b32 s{base}, s{lo}')
    a(f's_and_b32 s{base+1}, s{lo+1}, 0xffff')
    a(f's_mov_b32 s{base+2}, {nbytes}')
    a(f's_mov_b32 s{base+3}, 0x00020000')


def poll(srdreg, vaddr, soff, imm=0, t=254, sleep=0, nonzero=False):
    L = a.uid('Lpoll'); D = a.uid('Lpd')
    a.label(L)
    if sleep:
        a(f's_sleep {sleep}')
    a(f'buffer_load_dword v{t}, v{vaddr}, {sr(srdreg,4)}, {soff} offen offset:{imm} sc1')
    a(f's_sub_u32 s{sTMO}, s{sTMO}, 1')
    a(f's_max_i32 s{sTMO}, s{sTMO}, 0')
    a(f's_cselect_b64 {sr(sP0,2)}, exec, 0')
    a.wait_vm0()
    a(f'v_cmp_eq_u32 vcc, 0, v{t}' if nonzero else f'v_cmp_ne_u32 vcc, 1, v{t}')
    a(f's_and_b64 exec, {sr(sP0,2)}, vcc')
    a(f's_cbranch_scc1 {L}')
    a('s_mov_b64 exec, -1')


def check_or_poll(v, srdreg, vaddr, soff, imm=0, nonzero=False, sleep=1, t=254):
    a(f'v_cmp_eq_u32 vcc, 0, v{v}' if nonzero else f'v_cmp_ne_u32 vcc, 1, v{v}')
    a('s_cmp_eq_u64 vcc, 0')
    with cold('s_cbranch_scc0'):
        poll(srdreg, vaddr, soff, imm=imm, nonzero=nonzero, sleep=sleep, t=t)


def code_touch(t, d):
    if not CT:
        return []
    return [[f'v_and_b32 v{t}, 3, v{vLANE}',
             f'v_lshlrev_b32 v{t}, 7, v{t}',
             f'global_load_dword v{d}, v{t}, {sr(sPC,2)}']]


def flag_store(srdreg, soff, imm=0, t=254, sc=None):
    sc = LS() if sc is None else sc
    return [f'v_mov_b32 v{t}, 1',
            's_mov_b64 exec, 1',
            f'buffer_store_dword v{t}, off, {sr(srdreg,4)}, {soff} offset:{imm} {sc}',
            's_mov_b64 exec, -1']


def emit(lst):
    t = None
    for x in lst:
        r = a(x)
        t = r if r is not None else t
    return t


def dma_items(vD, lds_base, nfrag, c):
    assert nfrag % (4 * c) == 0
    sWc = {1: sW1K, 2: sW2K, 4: sW4K}[c]
    items = []
    for r in range(nfrag // (4 * c)):
        for i in range(c):
            it = []
            if i == 0:
                it.append(f's_add_u32 m0, s{sWc}, {lds_base + r*4*c*K}')
            it.append(f'buffer_load_dwordx4 v{vD}, {sr(S_WS,4)}, m0 offen offset:{i*K} {WSC} lds')
            items.append(it)
    return items


def dma_setup(vD, ssrc, src_const, lds_base):
    a(f's_add_u32 s{sA}, s{ssrc}, {src_const - lds_base & 0xffffffff:#x}')
    a(f'v_add_u32 v{vD}, s{sA}, v{vL16}')


def prologue():
    a('s_cmp_ge_u32 s2, 256')
    a('s_cbranch_scc1 L_end')
    a('s_load_dwordx16 s[64:79], s[0:1], 0')
    a('s_load_dwordx4 s[80:83], s[0:1], 64')
    a(f's_getpc_b64 {sr(sPC,2)}')
    a.label('L_pc')
    a('s_lshr_b32 s3, s2, 3')
    a('s_lshl_b32 s3, s3, 11')
    a('s_min_u32 s3, s3, (L_codeend - L_pc - 2048)')
    a(f's_add_u32 s{sPC}, s{sPC}, s3')
    a(f's_addc_u32 s{sPC+1}, s{sPC+1}, 0')
    a('v_min_u32 v16, 15, v0')
    a('v_lshlrev_b32 v16, 7, v16')
    a(f'global_load_dword v17, v16, {sr(sPC,2)}')
    a(f'v_lshrrev_b32 v18, 6, v0')
    a(f'v_and_b32 v{vLANE}, 63, v0')
    a(f'v_readfirstlane_b32 s{sW}, v18')
    a(f'v_lshlrev_b32 v{vL16}, 4, v{vLANE}')
    a(f'v_add_u32 v{vL16b}, 0x10000, v{vL16}')
    a(f'v_add_u32 v{vL16c}, 0x20000, v{vL16}')
    a(f'v_lshlrev_b32 v{vL4}, 2, v{vLANE}')
    a(f'v_and_b32 v18, 31, v{vLANE}')
    a(f'v_lshrrev_b32 v19, 5, v{vLANE}')
    a(f'v_mul_u32_u24 v{vROW}, 896, v18')
    a(f'v_lshl_add_u32 v{vROW}, v19, 4, v{vROW}')
    a(f'v_lshlrev_b32 v{vAUG}, 2, v18')
    a(f'v_lshl_add_u32 v{vAUG}, v19, 9, v{vAUG}')
    a(f'v_mov_b32 v{vPROF}, 0')
    a(f's_mov_b32 s{sPI}, 0')
    a(f's_and_b32 s{sC}, s2, 7')
    a(f's_lshr_b32 s{sJ}, s2, 3')
    a(f's_mul_i32 s{sTB}, s{sJ}, 37')
    a(f's_lshr_b32 s{sTB}, s{sTB}, 8')
    a(f's_mul_i32 s{sFB}, s{sTB}, 7')
    a(f's_sub_u32 s{sFB}, s{sJ}, s{sFB}')
    a(f's_cmp_ge_u32 s{sJ}, 28')
    a(f's_cselect_b32 s{sTB}, s{sFB}, s{sTB}')
    a(f's_mov_b32 s{sL}, 0')
    a(f's_mov_b32 s{sTMO}, 100000')
    a(f's_lshl_b32 s{sTILE2}, s{sC}, 3')
    a(f's_lshl_b32 s{sD}, s{sTB}, 1')
    a(f's_add_u32 s{sTILE2}, s{sTILE2}, s{sD}')
    a(f's_lshr_b32 s{sD}, s{sW}, 1')
    a(f's_add_u32 s{sOWN}, s{sTILE2}, s{sD}')
    a(f's_and_b32 s{sD}, s{sW}, 1')
    a(f's_lshl_b32 s{sOFT}, s{sFB}, 1')
    a(f's_add_u32 s{sOFT}, s{sOFT}, s{sD}')
    lf = {1: 0, 2: 1, 4: 2, 8: 3}[FA]
    nh = 16 // FA
    a(f's_and_b32 s{sD}, s{sC}, {FA-1}')
    a(f's_mul_i32 s{sHC}, s{sD}, {nh}')
    a(f's_and_b32 s{sD}, s{sJ}, {nh-1}')
    a(f's_add_u32 s{sHC}, s{sHC}, s{sD}')
    a(f's_lshr_b32 s{sD}, s{sC}, {lf}')
    a(f's_lshl_b32 s{sE}, s{sD}, {lf+1}')
    a(f's_lshr_b32 s{sD}, s{sJ}, {4-lf}')
    a(f's_add_u32 s{sE}, s{sE}, s{sD}')
    a(f's_lshl_b32 s{sTILE1}, s{sE}, 2')
    a(f's_add_u32 s{sTILE1}, s{sTILE1}, s{sW}')
    a(f's_mov_b32 s{sLN2}, {LN2:#x}')
    a(f's_mov_b32 s{sLN2+1}, {LN2:#x}')
    a(f's_mov_b32 s{sEPS6}, {EPS6:#x}')
    a(f's_mov_b32 s{sEPS6+1}, {EPS6:#x}')
    a(f's_mov_b32 s{sONES}, 0x3f803f80')
    for i in range(4):
        a(f'v_mov_b32 v{216+i}, 0')
    a(f'v_and_b32 v{vRHO}, 31, v{vLANE}')
    a(f'v_lshrrev_b32 v{vHI}, 5, v{vLANE}')
    a(f'v_and_b32 v{vSIG}, 0x13, v{vRHO}')
    a(f'v_and_b32 v{vt0}, 4, v{vRHO}')
    a(f'v_lshl_or_b32 v{vSIG}, v{vt0}, 1, v{vSIG}')
    a(f'v_lshrrev_b32 v{vt0}, 1, v{vRHO}')
    a(f'v_and_or_b32 v{vSIG}, v{vt0}, 4, v{vSIG}')
    a(f'v_lshrrev_b32 v{vR8}, 3, v{vLANE}')
    a(f'v_and_b32 v{vC8}, 7, v{vLANE}')
    a(f'v_lshlrev_b32 v{vC8}, 4, v{vC8}')
    a(f'v_lshrrev_b32 v{vt0}, 4, v{vLANE}')
    a(f'v_lshlrev_b32 v{vt0}, 4, v{vt0}')
    a(f'v_xor_b32 v{vt0}, v{vt0}, v{vC8}')
    a(f'v_mul_u32_u24 v{vt1}, 896, v{vR8}')
    a(f'v_add_u32 v{vXS}, v{vt1}, v{vt0}')
    a(f'v_xor_b32 v{vt0}, 64, v{vt0}')
    a(f'v_add_u32 v{vXS+1}, v{vt1}, v{vt0}')
    a('s_waitcnt lgkmcnt(0)')
    if TLBW:
        a(f'v_lshlrev_b32 v20, 20, v{vLANE}')
        a('v_subrev_u32 v20, 0xa00000, v20')
        a('v_min_u32 v20, 0x2100000, v20')
        a('v_mov_b32 v21, s83')
        a('v_add_co_u32 v20, vcc, s82, v20')
        a('v_addc_co_u32 v21, vcc, 0, v21, vcc')
        for ln, p in enumerate((64, 66, 68, 72, 74, 76, 78, 80)):
            a(f'v_writelane_b32 v20, s{p}, {ln}')
            a(f'v_writelane_b32 v21, s{p+1}, {ln}')
        a('global_load_dword v22, v[20:21], off')
    srd(S_X, 64, 2048 * 448 * 2)
    srd(S_WQKV, 66, 448 * 1344 * 2)
    srd(S_WO, 68, 448 * 448 * 2)
    srd(S_WG, 72, 448 * 1792 * 2)
    srd(S_WU, 74, 448 * 1792 * 2)
    srd(S_WD, 76, 1792 * 448 * 2)
    srd(S_OUT, 78, 2048 * 448 * 2)
    srd(S_DBG, 80, 256)
    srd(S_WS, 82, WS_BYTES)
    a(f's_mov_b32 s{sRBG}, s{sE}')
    a(f's_and_b32 s{sREP}, s2, 3')
    a(f's_lshl_b32 s{sREP}, s{sREP}, 12')
    a(f's_lshl_b32 s{sW1K}, s{sW}, 10')
    a(f's_lshl_b32 s{sW2K}, s{sW}, 11')
    a(f's_lshl_b32 s{sW4K}, s{sW}, 12')
    a(f's_lshl_b32 s{sG}, s{sW}, 9')
    a(f's_add_u32 s{sPC}, s{sPC}, s{sG}')
    a(f's_addc_u32 s{sPC+1}, s{sPC+1}, 0')
    a(f's_lshl_b32 s{sG}, s{sW}, 13')
    a(f's_add_u32 s{sG}, s{sG}, {LSTG}')
    a(f's_getreg_b32 s{sXID}, hwreg(HW_REG_XCC_ID)')
    a(f's_and_b32 s{sXID}, s{sXID}, 15')
    a(f's_add_u32 s{sXID}, s{sXID}, 1')
    stamp('start')


def late_consts():
    a(f's_mul_i32 s{sW1SRC}, s{sHC}, {W1S}')
    a(f's_add_u32 s{sW1SRC}, s{sW1SRC}, {W1R}')
    a(f's_mul_i32 s{sW3SRC}, s{sHC}, {W3S}')
    a(f's_add_u32 s{sW3SRC}, s{sW3SRC}, {W3R}')
    a(f's_lshl_b32 s{sWOSRC}, s{sFB}, 16')
    a(f's_lshl_b32 s{sA}, s{sW}, 14')
    a(f's_add_u32 s{sWOSRC}, s{sWOSRC}, s{sA}')
    a(f's_add_u32 s{sWOSRC}, s{sWOSRC}, {WOR}')
    a(f's_mul_i32 s{sWDSRC}, s{sFB}, {WDS}')
    a(f's_mul_i32 s{sA}, s{sW}, 57344')
    a(f's_add_u32 s{sWDSRC}, s{sWDSRC}, s{sA}')
    a(f's_add_u32 s{sWDSRC}, s{sWDSRC}, {WDR}')
    a(f's_add_u32 s{S_LY}, s{S_WS}, {LYB}')
    a(f's_addc_u32 s{S_LY+1}, s{S_WS+1}, 0')
    a(f's_mov_b32 s{S_LY+2}, {2*LYB}')
    a(f's_mov_b32 s{S_LY+3}, 0x00020000')
    a(f's_mov_b32 s{S_DT}, s{S_LY}')
    a(f's_mov_b32 s{S_DT+1}, s{S_LY+1}')
    a(f's_mov_b32 s{S_DT+2}, {2*LYB}')
    a(f's_mov_b32 s{S_DT+3}, 0x00020000')


UD = 128
UC = 192
vRHO, vHI, vSIG, vR8, vC8 = 204, 205, 206, 207, 212
vt0, vt1, vt2, vt3 = 208, 209, 210, 211
vXS = 214
LSTG = 128 * K
LXS = 0
LCS = 112 * K


PASS = {'p': 'src'}


class Done(Exception):
    pass


def run_setup(fn, *args):
    try:
        fn(*args)
    except Done:
        pass


LSRD = {1: S_WQKV, 2: S_WO, 3: S_WD}


def unit_dma(r, srdreg, vsrc, srow0, srow1):
    if r > 0:
        a(f's_mov_b32 s{74+2*r}, s{srow0}')
        a(f's_mov_b32 s{75+2*r}, s{srow1}')
        a(f'v_mov_b32 v{243+r}, v{vsrc}')
        if srdreg != LSRD[r]:
            for i in range(3):
                a(f's_mov_b32 s{LSRD[r]+i}, s{srdreg+i}')
        return
    if PASS['p'] == 'dst':
        return
    _unit_dma(r, srdreg, vsrc, srow0, srow1)
    raise Done()


def late_dma():
    t = None
    for r in (1, 2, 3):
        for h in range(2):
            a(f's_add_u32 m0, s82, {r*2048 + h*1024}')
            t = a(f'buffer_load_dwordx4 v{243+r}, {sr(LSRD[r],4)}, s{74+2*r+h} offen lds')
    return t


def _unit_dma(r, srdreg, vsrc, srow0, srow1):
    a(f's_add_u32 m0, s{sG}, {r*2048}')
    a('s_nop 0')
    a(f'buffer_load_dwordx4 v{vsrc}, {sr(srdreg,4)}, s{srow0} offen lds')
    a(f's_add_u32 m0, s{sG}, {r*2048+1024}')
    a('s_nop 0')
    a(f'buffer_load_dwordx4 v{vsrc}, {sr(srdreg,4)}, s{srow1} offen lds')


def div7(q, rem, su):
    a(f's_mul_i32 s{q}, s{su}, 9363')
    a(f's_lshr_b32 s{q}, s{q}, 16')
    a(f's_mul_i32 s{rem}, s{q}, 7')
    a(f's_sub_u32 s{rem}, s{su}, s{rem}')


def setup_w1(r, su):
    col, dst, aug = UC + 3 * r, UC + 3 * r + 1, UC + 3 * r + 2
    div7(sA, sB, su)
    a(f's_lshr_b32 s{sC}, s{sA}, 3')
    a(f's_and_b32 s{sA}, s{sA}, 7')
    a(f's_mul_i32 s{sD}, s{sC}, 896')
    a(f's_mul_i32 s{sE}, s{sA}, 112')
    a(f's_add_u32 s{sD}, s{sD}, s{sE}')
    a(f's_lshl_b32 s{sF}, s{sB}, 2')
    a(f's_add_u32 s{sF}, s{sF}, s{sW}')
    a(f's_mul_i32 s{sE}, s{sF}, {16*2688}')
    a(f's_add_u32 s{sD}, s{sD}, s{sE}')
    a(f's_add_u32 s{sE}, s{sD}, {8*2688}')
    a(f'v_mul_u32_u24 v{vt0}, 2688, v{vR8}')
    a(f'v_add_u32 v{vt0}, v{vt0}, v{vC8}')
    a(f'v_cmp_eq_u32 vcc, 112, v{vC8}')
    a(f'v_mov_b32 v{vt1}, {OOB:#x}')
    a(f'v_cndmask_b32 v{vt0}, v{vt0}, v{vt1}, vcc')
    unit_dma(r, S_WQKV, vt0, sD, sE)
    a(f'v_cmp_le_u32 vcc, 24, v{vSIG}')
    a(f'v_subrev_u32 v{vt0}, 2, v{vSIG}')
    a(f'v_cndmask_b32 v{vt0}, v{vSIG}, v{vt0}, vcc')
    a(f'v_mad_u32_u24 v{vt0}, v{vHI}, 28, v{vt0}')
    a(f'v_and_b32 v{vt1}, 0x16, v{vSIG}')
    a(f'v_cmp_eq_u32 vcc, 0x16, v{vt1}')
    a(f'v_cndmask_b32 v{vt0}, v{vt0}, 56, vcc')
    a(f'v_lshl_add_u32 v{col}, v{vt0}, 1, s{sG}')
    a(f's_lshl_b32 s{sD}, s{sF}, 1')
    a(f's_add_u32 s{sD}, s{sD}, s{sC}')
    a(f's_sub_u32 s{sD}, s{sD}, 1')
    a(f's_add_u32 s{sE}, s{sC}, 55')
    a(f's_add_u32 s{sF}, s{sF}, 58')
    a(f's_cmp_eq_u32 s{sC}, 0')
    a(f's_cselect_b32 s{sD}, s{sF}, s{sD}')
    a(f's_cselect_b32 s{sE}, 86, s{sE}')
    a(f's_mul_i32 s{sA}, s{sA}, {2*W1S}')
    a(f's_add_u32 s{sA}, s{sA}, {W1R}')
    a(f's_lshl_b32 s{sD}, s{sD}, 10')
    a(f's_add_u32 s{sD}, s{sD}, s{sA}')
    a(f's_lshl_b32 s{sE}, s{sE}, 10')
    a(f's_add_u32 s{sE}, s{sE}, s{sA}')
    a(f's_lshl_b32 s{sB}, s{sB}, 7')
    a(f's_add_u32 s{sE}, s{sE}, s{sB}')
    a(f'v_mul_u32_u24 v{vt0}, {W1S}, v{vHI}')
    a(f'v_lshl_add_u32 v{dst}, v{vRHO}, 4, v{vt0}')
    a(f'v_add_u32 v{dst}, s{sD}, v{dst}')
    a(f'v_lshl_add_u32 v{aug}, v{vRHO}, 2, v{vt0}')
    a(f'v_add_u32 v{aug}, s{sE}, v{aug}')


def setup_w3(r, su, tsrd):
    col, dst, aug = UC + 3 * r, UC + 3 * r + 1, UC + 3 * r + 2
    div7(sA, sB, su)
    a(f's_cmp_ge_u32 s{sA}, 28')
    a(f's_cselect_b32 s{tsrd}, s{S_WU}, s{S_WG}')
    a(f's_cselect_b32 s{tsrd+1}, s{S_WU+1}, s{S_WG+1}')
    a(f's_cselect_b32 s{sC}, 28, 0')
    a(f's_cselect_b32 s{sD}, 16, 0')
    a(f's_mov_b32 s{tsrd+2}, {448*1792*2}')
    a(f's_mov_b32 s{tsrd+3}, 0x00020000')
    a(f's_sub_u32 s{sA}, s{sA}, s{sC}')
    a(f's_lshl_b32 s{sE}, s{sB}, 2')
    a(f's_add_u32 s{sE}, s{sE}, s{sW}')
    a(f's_mul_i32 s{sC}, s{sE}, {16*3584}')
    a(f's_lshl_b32 s{sF}, s{sA}, 7')
    a(f's_add_u32 s{sC}, s{sC}, s{sF}')
    a(f's_add_u32 s{sF}, s{sC}, {8*3584}')
    a(f'v_mul_u32_u24 v{vt0}, 3584, v{vR8}')
    a(f'v_add_u32 v{vt0}, v{vt0}, v{vC8}')
    unit_dma(r, tsrd, vt0, sC, sF)
    a(f'v_and_b32 v{vt0}, 48, v{vLANE}')
    a(f'v_and_or_b32 v{vt0}, v{vSIG}, 15, v{vt0}')
    a(f'v_lshl_add_u32 v{col}, v{vt0}, 1, s{sG}')
    a(f'v_lshrrev_b32 v{vt0}, 4, v{vLANE}')
    a(f's_lshl_b32 s{sC}, s{sA}, 2')
    a(f'v_add_u32 v{vt0}, s{sC}, v{vt0}')
    a(f'v_mul_u32_u24 v{vt1}, 9363, v{vt0}')
    a(f'v_lshrrev_b32 v{vt1}, 16, v{vt1}')
    a(f'v_mul_u32_u24 v{vt2}, 7, v{vt1}')
    a(f'v_sub_u32 v{vt0}, v{vt0}, v{vt2}')
    a(f's_mul_i32 s{sF}, s{sE}, {3 if G3 else 2}')
    a(f'v_add_u32 v{vt2}, s{sF}, v{vt0}')
    a(f'v_add_u32 v{aug}, {84 if G3 else 56}, v{vt0}')
    a(f's_cmp_ge_u32 s{sE}, 27')
    a(f's_cselect_b32 s{sC}, 58, 0')
    a(f's_sub_u32 s{sC}, s{sE}, s{sC}')
    a(f's_add_u32 s{sC}, s{sC}, 176')
    for t, base, ag in (() if G3 else ((2, 59, None),)) + ((3, 87, 115), (4, 116, 144), (5, 147, 175), (6, None, 146)):
        a(f'v_cmp_eq_u32 vcc, {t}, v{vt0}')
        if base is not None:
            a(f's_add_u32 s{sF}, s{sE}, {base}')
            a(f'v_mov_b32 v{vt3}, s{sF}')
        else:
            a(f'v_mov_b32 v{vt3}, s{sC}')
        a(f'v_cndmask_b32 v{vt2}, v{vt2}, v{vt3}, vcc')
        if ag is not None:
            a(f'v_mov_b32 v{vt3}, {ag}')
            a(f'v_cndmask_b32 v{aug}, v{aug}, v{vt3}, vcc')
    a(f'v_mul_u32_u24 v{vt1}, 203, v{vt1}')
    a(f'v_add_lshl_u32 v{vt2}, v{vt2}, v{vt1}, 10')
    a(f'v_add_lshl_u32 v{aug}, v{aug}, v{vt1}, 10')
    a(f'v_and_b32 v{vt0}, 15, v{vLANE}')
    a(f'v_add_u32 v{vt0}, s{sD}, v{vt0}')
    a(f'v_lshl_add_u32 v{dst}, v{vt0}, 4, v{vt2}')
    a(f'v_add_u32 v{dst}, {W3R:#x}, v{dst}')
    a(f'v_lshl_add_u32 v{aug}, v{vt0}, 2, v{aug}')
    a(f's_lshl_b32 s{sB}, s{sB}, 7')
    a(f's_add_u32 s{sB}, s{sB}, {W3R}')
    a(f'v_add_u32 v{aug}, s{sB}, v{aug}')


def setup_colsT(r):
    col, dst, aug = UC + 3 * r, UC + 3 * r + 1, UC + 3 * r + 2
    a(f'v_lshl_add_u32 v{vt0}, v{vHI}, 5, v{vSIG}')
    a(f'v_lshl_add_u32 v{col}, v{vt0}, 1, s{sG}')
    a(f'v_lshlrev_b32 v{dst}, 10, v{vHI}')
    a(f'v_lshl_add_u32 v{dst}, v{vRHO}, 4, v{dst}')
    a(f'v_mov_b32 v{aug}, {OOB:#x}')


def setup_wd(r, su):
    dst = UC + 3 * r + 1
    div7(sA, sB, su)
    a(f's_lshl_b32 s{sA}, s{sA}, 2')
    a(f's_add_u32 s{sA}, s{sA}, s{sW}')
    a(f's_mul_i32 s{sC}, s{sA}, {16*896}')
    a(f's_lshl_b32 s{sD}, s{sB}, 7')
    a(f's_add_u32 s{sC}, s{sC}, s{sD}')
    a(f's_add_u32 s{sD}, s{sC}, {8*896}')
    a(f'v_mul_u32_u24 v{vt0}, 896, v{vR8}')
    a(f'v_add_u32 v{vt0}, v{vt0}, v{vC8}')
    unit_dma(r, S_WD, vt0, sC, sD)
    setup_colsT(r)
    div7(sC, sD, sA)
    a(f's_mul_i32 s{sB}, s{sB}, {WDS}')
    a(f's_lshr_b32 s{sE}, s{sC}, 2')
    a(f's_mul_i32 s{sE}, s{sE}, 57344')
    a(f's_add_u32 s{sB}, s{sB}, s{sE}')
    a(f's_lshl_b32 s{sD}, s{sD}, 2')
    a(f's_and_b32 s{sC}, s{sC}, 3')
    a(f's_add_u32 s{sD}, s{sD}, s{sC}')
    a(f's_lshl_b32 s{sD}, s{sD}, 11')
    a(f's_add_u32 s{sB}, s{sB}, s{sD}')
    a(f's_add_u32 s{sB}, s{sB}, {WDR}')
    a(f'v_add_u32 v{dst}, s{sB}, v{dst}')


def setup_wo(r, su):
    dst = UC + 3 * r + 1
    div7(sA, sB, su)
    a(f's_lshl_b32 s{sA}, s{sA}, 2')
    a(f's_add_u32 s{sA}, s{sA}, s{sW}')
    a(f's_lshr_b32 s{sC}, s{sA}, 1')
    a(f's_mul_i32 s{sC}, s{sC}, {28*896}')
    a(f's_lshl_b32 s{sD}, s{sB}, 7')
    a(f's_add_u32 s{sC}, s{sC}, s{sD}')
    a(f's_and_b32 s{sD}, s{sA}, 1')
    a(f's_cselect_b32 s{sD}, {16*896}, 0')
    a(f's_cselect_b32 s{sE}, {14*896}, 0')
    a(f's_add_u32 s{sD}, s{sD}, s{sC}')
    a(f's_add_u32 s{sE}, s{sE}, s{sC}')
    a(f's_add_u32 s{sE}, s{sE}, {8*896}')
    a(f'v_mul_u32_u24 v{vt0}, 896, v{vR8}')
    a(f'v_add_u32 v{vt0}, v{vt0}, v{vC8}')
    unit_dma(r, S_WO, vt0, sD, sE)
    setup_colsT(r)
    a(f's_lshl_b32 s{sB}, s{sB}, 16')
    a(f's_lshl_b32 s{sC}, s{sA}, 11')
    a(f's_add_u32 s{sB}, s{sB}, s{sC}')
    a(f's_add_u32 s{sB}, s{sB}, {WOR}')
    a(f'v_add_u32 v{dst}, s{sB}, v{dst}')


def setup_none(r):
    col, dst, aug = UC + 3 * r, UC + 3 * r + 1, UC + 3 * r + 2
    a(f'v_mov_b32 v{col}, 0')
    a(f'v_mov_b32 v{dst}, {OOB:#x}')
    a(f'v_mov_b32 v{aug}, {OOB:#x}')


def rounds(tag):
    a('s_cmp_ge_u32 s2, 168')
    a(f's_cbranch_scc1 L_r0b{tag}')
    with cond():
        run_setup(setup_w1, 0, 2)
    a(f's_branch L_r0e{tag}')
    a.label(f'L_r0b{tag}')
    a('s_cmp_ge_u32 s2, 224')
    a(f's_cbranch_scc1 L_r0c{tag}')
    with cond():
        a(f's_sub_u32 s{sU}, s2, 168')
        run_setup(setup_wo, 0, sU)
    a(f's_branch L_r0e{tag}')
    a.label(f'L_r0c{tag}')
    with cond():
        a(f's_sub_u32 s{sU}, s2, 224')
        run_setup(setup_wd, 0, sU)
    a.label(f'L_r0e{tag}')
    if PASS['p'] == 'src':
        return
    run_setup(setup_w3, 1, 2, LSRD[1])
    a('s_cmp_ge_u32 s2, 136')
    a(f's_cbranch_scc1 L_r2b{tag}')
    with cond():
        a(f's_add_u32 s{sU}, s2, 256')
        run_setup(setup_w3, 2, sU, LSRD[2])
    a(f's_branch L_r2e{tag}')
    a.label(f'L_r2b{tag}')
    with cond():
        a(f's_sub_u32 s{sU}, s2, 104')
        run_setup(setup_wd, 2, sU)
    a.label(f'L_r2e{tag}')
    a('s_cmp_ge_u32 s2, 212')
    a(f's_cbranch_scc1 L_r3b{tag}')
    setup_none(3)
    a('s_mov_b32 s80, 0')
    a('s_mov_b32 s81, 0')
    a(f'v_mov_b32 v246, {OOB:#x}')
    a(f's_branch L_r3e{tag}')
    a.label(f'L_r3b{tag}')
    with cond():
        a(f's_sub_u32 s{sU}, s2, 60')
        run_setup(setup_wd, 3, sU)
    a.label(f'L_r3e{tag}')


def unit_rounds(rs, items=None):
    rtok = {}
    seq = [(r, h) for r in rs for h in range(2)]

    def gat(r, half):
        for e in range(8):
            rtok[r, half] = a(f'ds_read_u16 v{UD+16*r+8*half+e}, v{UC+3*r} offset:{r*2048+(8*half+e)*128}')
    gat(*seq[0])
    for it in (items or []):
        emit(it)
    a(f's_lshl_b32 s{sA}, s{sW}, 8')
    a(f's_add_u32 s{sA}, s{sA}, {LCS}')
    a(f'v_add_u32 v225, s{sA}, v{vL4}')
    for k_, (r, half) in enumerate(seq):
        R = UD + 16 * r
        if k_ + 1 < len(seq):
            gat(*seq[k_ + 1])
        a.wait(rtok[r, half])
        for m in range(4):
            a(f'v_lshl_or_b32 v{R+8*half+m}, v{R+8*half+2*m+1}, 16, v{R+8*half+2*m}')
        a(f'buffer_store_dwordx4 {vr(R+8*half,4)}, v{UC+3*r+1}, {sr(S_WS,4)}, 0 offen offset:{512*half} sc1')
    for r in rs:
        if r == 3:
            continue
        R = UD + 16 * r
        a(f'v_mov_b32 v{R+4}, 0')
        for m in range(4):
            a(f'v_dot2c_f32_bf16 v{R+4}, s{sONES}, v{R+m}')
            a(f'v_dot2c_f32_bf16 v{R+4}, s{sONES}, v{R+8+m}')
        a(f'ds_write_b32 v225, v{R+4} offset:{r*1024}')


def aug_finish(rs, ucb=None, R=226, t0=225, t1=230, t2=231):
    ucb = UC if ucb is None else ucb
    a(f's_add_u32 s{sA}, s{sW1K}, {LCS}')
    a(f'v_add_u32 v{t0}, s{sA}, v{vL4}')
    a(f'ds_read2st64_b32 {vr(R,2)}, v{t0} offset0:0 offset1:1')
    t = a(f'ds_read2st64_b32 {vr(R+2,2)}, v{t0} offset0:2 offset1:3')
    a(f'v_mov_b32 v{t1}, {OOB:#x}')
    a(f'v_mov_b32 v{t2}, v{t1}')
    for r in rs:
        a(f's_cmp_eq_u32 s{sW}, {r}')
        a('s_cselect_b64 vcc, -1, 0')
        a(f'v_cndmask_b32 v{t1}, v{t1}, v{ucb+3*r+2}, vcc')
    a(f'v_bfe_u32 v{t0}, v{t1}, 7, 3')
    a(f'v_cmp_eq_u32 vcc, 6, v{t0}')
    a(f'v_mov_b32 v{t0}, 0')
    a(f'v_cndmask_b32 v{t2}, v{t2}, v{t1}, vcc')
    a(f'buffer_store_dword v{t0}, v{t2}, {sr(S_WS,4)}, 0 offen offset:128 sc1')
    a.wait(t)
    a(f'v_add_f32 v{R}, v{R}, v{R+1}')
    a(f'v_add_f32 v{R+2}, v{R+2}, v{R+3}')
    a(f'v_add_f32 v{R}, v{R}, v{R+2}')
    a(f'v_cvt_pk_bf16_f32 v{R+1}, v{R}, v{R}')
    a(f'v_and_b32 v{R+1}, 0xffff0000, v{R+1}')
    a(f'v_sub_f32 v{R+1}, v{R}, v{R+1}')
    a(f'v_cvt_pk_bf16_f32 v{R+1}, v{R}, v{R+1}')
    return a(f'buffer_store_dword v{R+1}, v{t1}, {sr(S_WS,4)}, 0 offen sc1')


def ib_publish(imm, va, vv):
    a(f'v_lshlrev_b32 v{va}, 12, v{vLANE}')
    a(f'v_mov_b32 v{vv}, s{sXID}')
    a('s_mov_b64 exec, 15')
    a(f'buffer_store_dword v{vv}, v{va}, {sr(S_WS,4)}, s83 offen offset:{imm} sc1')
    a('s_mov_b64 exec, -1')


def init_phase():
    Z = 216
    vGO = 224
    a(f's_lshl_b32 s{sA}, s2, 10')
    a(f's_add_u32 s{sB}, s{sW}, 1')
    a(f's_lshl_b32 s{sB}, s{sB}, 24')
    a(f's_add_u32 s{sB}, s{sA}, s{sB}')
    a(f's_sub_u32 s{sC}, s{sB}, {2*LYB - ST1}')
    a(f's_cmp_eq_u32 s{sW}, 2')
    a(f's_cselect_b32 s{sB}, s{sC}, s{sB}')
    a(f's_lshl_b32 s85, s2, 4')
    a('s_cmp_lt_u32 s2, 16')
    a(f's_cselect_b32 s{sA}, s{sA}, {OOB:#x}')
    a(f's_cselect_b32 s{sZW}, s85, {OOB:#x}')
    a(f's_cmp_eq_u32 s{sW}, 3')
    a(f's_cselect_b32 s{sB}, s{sA}, s{sB}')
    a(f's_cselect_b32 s{sZW}, s{sZW}, {OOB:#x}')
    a(f's_cselect_b32 s83, s85, {OOB:#x}')
    a(f's_cselect_b32 s85, 0, {OOB:#x}')
    zt = a(f'buffer_store_dwordx4 {vr(Z,4)}, v{vL16}, {sr(S_WS,4)}, s{sB} offen sc1')
    PASS['p'] = 'src'
    rounds('s')
    a.vm_issued += 2
    um = mark()
    a(f's_mov_b32 s82, s{sG}')
    a(f's_mul_i32 s{sI}, s{sTILE1}, 28672')
    a(f's_mul_i32 s{sH}, s{sW}, {28*K}')
    xq = []
    for g in range(4):
        for c in range(7):
            it = [f's_add_u32 m0, s{sH}, {LXS + (4*c+g)*K - c*128}',
                  f'buffer_load_dwordx4 v{vXS + (g & 1)}, {sr(S_X,4)}, s{sI} offen offset:{c*128} lds']
            if c == 6:
                it.append(f's_add_u32 s{sI}, s{sI}, {8*896}')
            xq.append(it)
    a(f's_mul_i32 s{sA}, s{sHC}, {14*128}')
    a(f's_add_u32 s{sA}, s{sA}, s{sI}')
    a(f'v_min_u32 v{vt0}, 13, v{vLANE}')
    a(f'v_lshlrev_b32 v{vt0}, 7, v{vt0}')
    a(f'buffer_load_dword v17, v{vt0}, {sr(S_X,4)}, s{sA} offen')
    for _ in range(X0N):
        emit(xq.pop(0))
    stamp('issued')
    PASS['p'] = 'dst'
    rounds('d')
    for i in range(9):
        a(f'v_accvgpr_write_b32 a{i}, v{UC+3+i}')
    a.wait(zt)
    emit(flag_store(S_DBG, f's{sZW}', sc='sc1'))
    a(f'v_and_b32 v{vt3}, 15, v{vLANE}')
    a(f'v_lshlrev_b32 v{vt3}, 4, v{vt3}')
    a(f'v_lshrrev_b32 v{vt0}, 3, v{vRHO}')
    a(f'v_lshlrev_b32 v{vt0}, 10, v{vt0}')
    a(f'v_and_b32 v{vt1}, 7, v{vRHO}')
    a(f'v_lshl_add_u32 v{vt0}, v{vt1}, 7, v{vt0}')
    a(f'v_add_u32 v{vt0}, s{sH}, v{vt0}')
    a(f'v_bfe_u32 v{vt1}, v{vRHO}, 1, 3')
    a(f'v_xor_b32 v{vt1}, v{vt1}, v{vHI}')
    for q in range(4):
        a(f'v_xor_b32 v{220+q}, {2*q}, v{vt1}')
        a(f'v_lshl_add_u32 v{220+q}, v{220+q}, 4, v{vt0}')
    a(f'v_min_u32 v{vt0}, 20, v{vLANE}')
    a(f'v_mul_u32_u24 v{vt1}, 37, v{vt0}')
    a(f'v_lshrrev_b32 v{vt1}, 8, v{vt1}')
    a(f'v_mad_u32_u24 v{vt0}, v{vt1}, 49, v{vt0}')
    a(f's_lshr_b32 s{sA}, s{sHC}, 1')
    a(f's_mul_i32 s{sA}, s{sA}, 7')
    a(f'v_add_lshl_u32 v240, v{vt0}, s{sA}, 4')
    late_consts()
    own_consts()
    a.wait(um)
    stamp('ldone')
    unit_rounds([0], [xq.pop(0) for _ in range(XI)])
    a.wait_lg0()
    a.barrier()
    aug_finish([0])
    sm = a(f'buffer_load_dword v{vGO}, v{vt3}, {sr(S_DBG,4)}, s85 offen sc1')
    for _ in range(min(XA, len(xq))):
        emit(xq.pop(0))
    a.wait(sm)
    a(f's_cmp_lg_u32 s{sW}, 3')
    a('s_cbranch_scc1 L_ngo')
    with cond():
        check_or_poll(vGO, S_DBG, vt3, 0, sleep=2)
    a.label('L_ngo')
    a.barrier()
    ib_publish(4, vt0, vt1)
    stamp('ibpub')
    while xq:
        emit(xq.pop(0))
    a(f's_mul_i32 s{sA}, s{sOWN}, 28672')
    a(f's_lshl_b32 s{sB}, s{sOFT}, 6')
    a(f's_add_u32 s{sA}, s{sA}, s{sB}')
    a(f'buffer_load_dwordx4 {vr(vXRES,4)}, v{vROW}, {sr(S_X,4)}, s{sA} offen')
    a(f'buffer_load_dwordx4 {vr(vXRES+4,4)}, v{vROW}, {sr(S_X,4)}, s{sA} offen offset:32')
    p1_setup(True)
    dma_setup(205, sW1SRC, 0, 0)
    a.wait_vm_n(2)
    stamp('xland')
    for ks in range(28):
        a(f'ds_read_b128 {vr(16+4*ks,4)}, v{220+(ks&3)} offset:{(ks>>2)*4096}')
    fa = a(f'buffer_load_dword v241, v240, {sr(S_WS,4)}, s{sREP} offen offset:4 sc1')
    a.wait_lg0()
    x0_stats(0, STA)
    a.wait(fa)
    check_or_poll(241, S_WS, 240, f's{sREP}', imm=4, nonzero=True, sleep=0)
    a.barrier()
    stamp('w1rdy')


def x0_stats(lo, hi, items=None):
    S0, S1, Q0, Q1 = 216, 217, 218, 219
    for i in range(4 * lo, 4 * hi, 2):
        if items and i % 6 == 0:
            items.pop(0)()
        a(f'v_dot2c_f32_bf16 v{S0}, s{sONES}, v{16+i}')
        a(f'v_dot2c_f32_bf16 v{Q0}, v{16+i}, v{16+i}')
        a(f'v_dot2c_f32_bf16 v{S1}, s{sONES}, v{17+i}')
        a(f'v_dot2c_f32_bf16 v{Q1}, v{17+i}, v{17+i}')


vRSTD, vC2, vISTD = 248, 249, 250
P1_XAUG = 212


def stats_finish(xaug, SB=216):
    S, Q, t0, t1 = SB, SB + 1, SB + 2, SB + 3
    o = [f'v_mov_b32 v{t0}, v{S}',
         f'v_mov_b32 v{t1}, v{Q}',
         f'v_permlane32_swap_b32 v{S}, v{t0}',
         f'v_permlane32_swap_b32 v{Q}, v{t1}',
         f'v_add_f32 v{S}, v{S}, v{t0}',
         f'v_add_f32 v{Q}, v{Q}, v{t1}',
         f'v_mul_f32 v{S}, {INV448:#x}, v{S}',
         f'v_mul_f32 v{Q}, {INV448:#x}, v{Q}',
         f'v_fma_f32 v{Q}, -v{S}, v{S}, v{Q}',
         f'v_max_f32 v{Q}, 0, v{Q}',
         f'v_add_f32 v{Q}, {EPS5:#x}, v{Q}',
         f'v_rsq_f32 v{vRSTD}, v{Q}',
         f'v_cvt_pk_bf16_f32 v{xaug}, -v{S}, -v{S}',
         f'v_mul_f32 v{vISTD}, v{Q}, v{vRSTD}',
         f'v_mul_f32 v{vC2}, {LOG2E:#x}, v{vRSTD}']
    o += [f'v_mov_b32 v{xaug+i}, v{xaug}' for i in range(1, 4)]
    return o


def stats_sum(SB=216):
    o = []
    for i in range(1, 7):
        o.append(f'v_add_f32 v{SB}, v{SB}, v{SB+2*i}')
        o.append(f'v_add_f32 v{SB+1}, v{SB+1}, v{SB+2*i+1}')
    return o


def x_prep(fl, xb, stb):
    a(f'v_and_b32 v240, 15, v{vLANE}')
    a(f'v_min_u32 v240, 13, v240')
    a(f'v_lshlrev_b32 v240, 5, v240')
    a(f's_lshl_b32 s{sC}, s{sTILE1}, 9')
    a(f's_add_u32 s{sC}, s{sC}, {fl}')
    a(f's_lshl_b32 s{sD}, s{sTILE1}, 12')
    a(f's_add_u32 s{sD}, s{sD}, {stb}')
    a(f's_mul_i32 s{sE}, s{sTILE1}, {28*K}')
    a(f's_add_u32 s{sE}, s{sE}, {xb}')


def x_load(ks):
    if ks % 4 == 0 and ks:
        a(f's_add_u32 s{sE}, s{sE}, 4096')
    return a(f'buffer_load_dwordx4 {vr(16+4*ks,4)}, v{vL16}, {sr(S_DT,4)}, s{sE} offen offset:{(ks%4)*K} sc1')


def st_load(i, SB=216):
    return a(f'buffer_load_dwordx4 {vr(SB+4*i,4)}, v{vL16}, {sr(S_DT,4)}, s{sD} offen offset:{i*K} sc1')


def st_loads(SB=216):
    t = None
    for i in range(7):
        t = a(f'buffer_load_dwordx2 {vr(SB+2*i,2)}, v241, {sr(S_DT,4)}, s{sD} offen offset:{i*256} sc1')
    return t


def read_aug(dst, addr, tmp):
    a(f'v_add_u32 v{tmp}, {addr:#x}, v{vAUG}')
    a(f'ds_read2_b32 {vr(dst,2)}, v{tmp} offset0:0 offset1:32')
    return a(f'ds_read2_b32 {vr(dst+2,2)}, v{tmp} offset0:64 offset1:96')


def read_frag(dst, addr):
    v, off = lds_addr(addr)
    return a(f'ds_read_b128 {vr(dst,4)}, v{v} offset:{off}')


def wfrag_items(regfn, ssrc, lo, hi, va, vb, stmp):
    items = []
    for i, n in enumerate(range(lo, hi)):
        for b in range(2):
            it = []
            if i % 2 == 0 and b == 0:
                it.append(f's_add_u32 s{stmp}, s{ssrc}, {n*2048}')
            it.append(f'buffer_load_dwordx4 {regfn(n,b)}, v{(va,vb)[b]}, {sr(S_WS,4)}, s{stmp} offen offset:{(i%2)*2048} {WSC}')
            items.append(it)
    return items


def slot_addr_setup(va, vb):
    a(f's_and_b32 s{sA}, s{sW1K}, 0x400')
    a(f'v_add_u32 v{va}, s{sA}, v{vL16}')
    a(f'v_xor_b32 v{vb}, 0x400, v{va}')


def cost(x):
    op = x.split()[0]
    return 2 if op.startswith(('v_exp', 'v_rcp', 'v_rsq')) else 1


def drip(q, budget):
    while q and budget >= cost(q[0]):
        x = q.pop(0)
        budget -= cost(x)
        a(x)


CAP = int(OPT.get('cap', 7))
G3 = int(OPT.get('g3', 1))
F1AT = int(OPT.get('f1at', 22))
PQSPLIT = int(OPT.get('pqsplit', 1))
WDP3 = int(OPT.get('wdp3', 36))
WDP1 = 0
PUBD2 = int(OPT.get('pubd2', 22))
PRET = int(OPT.get('pret', 1))
PUBD = int(OPT.get('pubd', 20))
S0T = int(OPT.get('s0t', 2))


def shadow(mem, vq, cap=None, pop=None):
    n0 = len(a.ins)
    for f in mem:
        if f is None:
            continue
        if callable(f):
            f()
        else:
            emit(f)
    budget = (CAP if cap is None else cap) - (len(a.ins) - n0)
    while vq and budget >= cost(vq[0]):
        budget -= cost(vq[0])
        if pop:
            pop()
        else:
            a(vq.pop(0))


def split_item(it):
    if it is None:
        return None, None
    return it[:-1], it[-1:]


ACK, ACV, ACQ = 128, 144, 160
P1WR = 176
P1RR2 = 216
p1D1, p1SA, p1SB = 204, 206, 207
p1RSW, p1RSR, p1OH = 208, 209, 210
LMODE = LRS + 1008


CARRY = []


def FAST():
    return MODE['sfx'] != '_s'


def p1_setup(first):
    if not first:
        x_prep(F0 + LYB, *((X1, ST1) if FAST() else (X0 + LYB, ST0 + LYB)))
    slot_addr_setup(p1SA, p1SB)
    a(f'v_and_b32 v{p1OH}, 27, v{vLANE}')
    a(f'v_cmp_eq_u32 vcc, 26, v{p1OH}')
    a(f'v_cndmask_b32 v{p1OH}, 0, 1.0, vcc')
    a(f'v_mov_b32 v{p1OH+1}, v{p1OH}')
    a(f's_add_u32 s{sA}, s{sW4K}, {LKVS}')
    a(f'v_and_b32 v{p1RSW}, 31, v{vLANE}')
    a(f'v_lshl_add_u32 v{p1RSW}, v{p1RSW}, 2, s{sA}')
    a(f'v_lshrrev_b32 v{p1RSR}, 5, v{vLANE}')
    a(f'v_lshl_add_u32 v{p1RSR}, v{p1RSR}, 4, s{sA}')
    dma_setup(p1D1, sW3SRC, 0, LALPHA)


LUC = 220
LUD = {1: 128, 2: 144, 3: 232}


def f1_addr():
    return [f's_lshl_b32 s{sG}, s{sHC}, 8',
            f's_lshl_b32 s{sB}, s{sRBG}, 4',
            f's_add_u32 s{sG}, s{sG}, s{sB}',
            f's_add_u32 s{sG}, s{sG}, {F1}',
            f's_cmp_lg_u32 s{sW}, 3\ns_cselect_b32 s{sG}, {OOB:#x}, s{sG}',
            f'v_lshlrev_b32 v{p1RSW}, 12, v{vLANE}',
            f'v_mov_b32 v{p1RSR}, 1']


def f1_store():
    a('s_mov_b64 exec, 15')
    a(f'buffer_store_dword v{p1RSR}, v{p1RSW}, {sr(S_LY,4)}, s{sG} offen sc1')
    a('s_mov_b64 exec, -1')
    stamp('p1pub')


def phase1_kv(first):
    WR, XAUG, RR, RR2, KVD = P1WR, P1_XAUG, ACQ, P1RR2, 232
    vRSW, vRSR, vOH = p1RSW, p1RSR, p1OH
    PRE = XPRE
    xt, vq, st = {}, [], {}
    if first:
        w1t = {}
        its = [(lambda k_=k_, it=it: w1t.__setitem__(k_, emit(it))) for k_, it in enumerate(dma_items(205, 0, 88, 2))]

        def ibl():
            a(f's_add_u32 s{sH}, s{sREP}, s{sW1K}')
            st['ib'] = a(f'buffer_load_dword v254, v{vL16}, {sr(S_WS,4)}, s{sH} offen offset:4 sc1')

        def lud(r, h):
            a(f's_add_u32 m0, s82, {r*2048 + h*1024}')
            st['lu'] = a(f'buffer_load_dwordx4 v{243+r}, {sr(LSRD[r],4)}, s{74+2*r+h} offen lds')
        its = its[:LUP] + [ibl] + [(lambda r=r, h=h: lud(r, h)) for r in (1, 2, 3) for h in range(2)] + its[LUP:]
        for _ in range(4):
            its.pop(0)()
        x0_stats(STA, 28, its)
        vq += ['v_add_f32 v216, v216, v217', 'v_add_f32 v217, v218, v219'] + stats_finish(P1_XAUG)
        stamp('stats')
    else:
        poll(S_LY, 240, f's{sC}')
        stamp('p1poll')
        for ks in range(4):
            xt[ks] = x_load(ks)
        a(f's_add_u32 s{S_LY}, s{S_LY}, {LYB}')
        a(f's_addc_u32 s{S_LY+1}, s{S_LY+1}, 0')
        a.barrier()
    bg = ([] if first else code_touch(205, 200)) + dma_items(p1D1, LALPHA, 56, 2)
    rt = {}
    stage = (0, 8, 16, 24) if first else ()

    def ib_check():
        a.wait(st['ib'])
        check_or_poll(254, S_WS, vL16, f's{sH}', imm=4, nonzero=True)
        a(f's_and_b32 s{sA}, s2, 7')
        a(f'v_and_b32 v252, 7, v{vLANE}')
        a(f'v_cmp_eq_u32 {sr(sC,2)}, s{sA}, v252')
        a(f'v_cmp_ne_u32 vcc, s{sXID}, v254')
        a(f's_and_b64 vcc, vcc, {sr(sC,2)}')
        a(f's_cselect_b32 s{sZW}, 1, 0')

    def rd(ks, tl):
        if ks > 28:
            return
        if ks in stage and tl == 0:
            a.wait(w1t[(ks + 8) // 2 - 1])
            a.barrier()
        d = WR + 8 * (ks % 3) + 4 * tl
        addr = (2 * ks + tl) * K
        rt[ks] = read_frag(d, addr) if ks < 28 else read_aug(d, addr, 252 + tl)
    for ks in range(2):
        rd(ks, 0); rd(ks, 1)
    if not first:
        for ks in range(4, PRE):
            xt[ks] = x_load(ks)
    rr = {}

    def stl(i):
        st['s'] = st_load(i)

    def xl(ks):
        xt[ks] = x_load(ks)

    def rs_write():
        a(f'ds_write2_b32 v{vRSW}, v{vRSTD}, v{vC2} offset0:0 offset1:32')

    def rs_read(j):
        a(f'ds_read_b128 {vr(RR+4*j,4)}, v{vRSR} offset:{32*j}')
        rr[0] = a(f'ds_read_b128 {vr(RR2+4*j,4)}, v{vRSR} offset:{128+32*j}')
    for ks in range(29):
        if not first and ks == 15:
            a.wait(st['s'])
            vq += stats_sum() + stats_finish(XAUG)
        a.wait(rt[ks], xt.get(ks))
        X = vr(16 + 4 * ks, 4) if ks < 28 else vr(XAUG, 4)
        c = (lambda r: '0' if ks == 0 else vr(r, 16))
        if not first and ks + PRE < 28:
            pre, main = None, (lambda k_=ks + PRE: xl(k_))
        elif first:
            pre, main = None, (its.pop(0) if its else None)
        else:
            pre, main = split_item(bg.pop(0) if bg and not first else None)
        a(f'{MF} {vr(ACK,16)}, {X}, {vr(WR+8*(ks%3),4)}, {c(ACK)}')
        shadow([pre, lambda: rd(ks + 2, 0), main], vq)
        a(f'{MF} {vr(ACV,16)}, {X}, {vr(WR+8*(ks%3)+4,4)}, {c(ACV)}')
        extra = None
        if not first and ks < 8 and ks % 2 == 0:
            extra = (lambda i=ks // 2: stl(i))
        if ks == 23:
            assert not vq
            extra = rs_write
        if 24 <= ks <= 27:
            extra = (lambda j=ks - 24: rs_read(j))
        shadow([lambda: rd(ks + 2, 1), extra], vq)
    stamp('p1kv')
    qt = {}

    def rq(ks):
        if ks > 28:
            return
        d = WR + 4 * (ks % 6)
        addr = (58 + ks) * K
        qt[ks] = read_frag(d, addr) if ks < 28 else read_aug(d, addr, 252)
    if not first:
        for ks in range(4):
            rq(ks)
    KS = LRS
    a(f's_lshl_b32 s{sB}, s{sHC}, 12')
    a(f's_add_u32 s{sB}, s{sB}, s{sW1K}')
    a.wait(rr[0])
    for r in range(0, 16, 2):
        a(f'v_pk_mul_f32 {vr(ACK+r,2)}, {vr(ACK+r,2)}, {vr(RR2+r,2)}')
    def bgp():
        if bg and EPD and not first:
            emit(bg.pop(0))
    for r in range(16):
        a(f'v_exp_f32_e64 v{RR2+r}, v{ACK+r} clamp')
        a(f'v_max_f32 v{ACK+r}, 0, v{ACK+r}')
        if r % 5 == 0:
            bgp()
    for r in range(0, 16, 2):
        a(f'v_pk_fma_f32 {vr(ACV+r,2)}, {vr(ACV+r,2)}, {vr(RR+r,2)}, {vr(vOH,2)}')
        a(f'v_pk_fma_f32 {vr(RR2+r,2)}, {vr(ACK+r,2)}, {sr(sLN2,2)}, {vr(RR2+r,2)}')
    bgp()
    for r in range(0, 16, 2):
        a(f'v_pk_add_f32 {vr(RR2+r,2)}, {vr(RR2+r,2)}, {sr(sEPS6,2)}')
        a(f'v_cvt_pk_bf16_f32 v{ACV+r//2}, v{ACV+r}, v{ACV+r+1}')
    bgp()
    for m in range(4):
        a(f'v_cvt_pk_bf16_f32 v{ACK+m}, v{RR2+2*m}, v{RR2+2*m+1}')
    a(f'{MF} {vr(KVD,16)}, {vr(ACK,4)}, {vr(ACV,4)}, 0')
    for m in range(4, 8):
        a(f'v_cvt_pk_bf16_f32 v{ACK+m}, v{RR2+2*m}, v{RR2+2*m+1}')
    a(f's_add_u32 s{sA}, s{sW4K}, {LKVS}')
    a(f'v_add_u32 v{vRSW}, s{sA}, v{vL16}')
    a(f'{MF} {vr(KVD,16)}, {vr(ACK+4,4)}, {vr(ACV+4,4)}, {vr(KVD,16)}')
    a(f's_add_u32 s{sA}, s{sW1K}, {LKVS}')
    a(f'v_add_u32 v{vRSR}, s{sA}, v{vL4}')
    if first:
        ib_check()
        a(f's_lshl_b32 s{sA}, s{sW}, 2')
        a(f's_add_u32 s{sA}, s{sA}, {LCS + 4*K}')
        a(f'v_mov_b32 v252, s{sA}')
        a(f'v_mov_b32 v253, s{sZW}')
        a('ds_write_b32 v252, v253')
        a(f'v_mov_b32 v252, {LCS + 4*K}')

    def qstep(ks, mem=(), vq_=None, early=False):
        if early and first:
            return
        a.wait(qt[ks])
        X = vr(16 + 4 * ks, 4) if ks < 28 else vr(XAUG, 4)
        a(f'{MF} {vr(ACQ,16)}, {vr(WR+4*(ks%6),4)}, {X}, {"0" if ks == 0 else vr(ACQ,16)}')
        shadow([lambda: rq(ks + 4)] + list(mem), vq_ if vq_ is not None else [])
    qstep(0, [bgp], early=True)
    for q in range(4):
        kw = a(f'ds_write_b128 v{vRSW}, {vr(KVD+4*q,4)} offset:{q*K}')
    qstep(1, [bgp], early=True)
    a.wait(kw)
    a.barrier()
    RED = RR2
    for wp in range(4):
        a(f'ds_read2st64_b32 {vr(RED+4*wp,2)}, v{vRSR} offset0:{16*wp} offset1:{16*wp+1}')
        t = a(f'ds_read2st64_b32 {vr(RED+4*wp+2,2)}, v{vRSR} offset0:{16*wp+2} offset1:{16*wp+3}')
    if first:
        mt = a(f'ds_read_b128 {vr(KVD,4)}, v252')
    qstep(2, early=True)
    a.wait(t)
    for i in range(4):
        a(f'v_add_f32 v{RED+i}, v{RED+i}, v{RED+4+i}')
        a(f'v_add_f32 v{RED+8+i}, v{RED+8+i}, v{RED+12+i}')
    for i in range(4):
        a(f'v_add_f32 v{RED+i}, v{RED+i}, v{RED+8+i}')
    for i in range(4):
        at = a(f'buffer_atomic_add_f32 v{RED+i}, v{vL4}, {sr(S_LY,4)}, s{sB} offen offset:{i*256}')
    stamp('p1atom')
    if first:
        a.wait(mt)
        a(f'v_or_b32 v{KVD}, v{KVD}, v{KVD+1}')
        a(f'v_or3_b32 v{KVD}, v{KVD}, v{KVD+2}, v{KVD+3}')
        a(f'v_readfirstlane_b32 s{sZW}, v{KVD}')
        for i in range(9):
            a(f'v_accvgpr_read_b32 v{LUC+i}, a{i}')
        a.wait(w1t[21], st['lu'])
        a.barrier()
        for ks in range(4):
            rq(ks)
        stamp('units')
        a(f's_cmp_lg_u32 s{sZW}, 0')
        a('s_cbranch_scc1 L_slow')
    return dict(qstep=qstep, at=at, qt=qt, bg=bg, us=st.get('us'), state=(a.vm_issued, a.vm_done, a.lg_issued, a.lg_done), qt0=dict(qt))


def phase1_q(ctx, first):
    qstep, at = ctx['qstep'], ctx['at']
    vRSW, vRSR, RR2 = p1RSW, p1RSR, P1RR2
    wo = wfrag_items(lambda n, b: vr(16 + 8 * n + 4 * b, 4), sWOSRC, 0, 8, p1SA, p1SB, sF)
    alpha = list(ctx['bg']) if first else []
    if not first:
        wo = list(ctx['bg']) + wo
    if first and FAST():
        wo = [[f's_cmp_ge_u32 s{sJ}, 28', f's_cselect_b32 s{sI}, {OOB:#x}, s{sOX}', f's_add_u32 s{sI}, s{sI}, {X1}',
               f'buffer_store_dwordx4 {vr(vXRES,4)}, v{vL16}, {sr(S_DT,4)}, s{sI} offen sc1'],
              [f'buffer_store_dwordx4 {vr(vXRES+4,4)}, v{vL16}, {sr(S_DT,4)}, s{sI} offen offset:1024 sc1']] + wo
    pqoff = PQ if (FAST() or first) else PQ + LYB
    vq = f1_addr() + [
          f's_lshl_b32 s{sA}, s{sTILE1}, 15',
          f's_lshl_b32 s{sB}, s{sHC}, 11',
          f's_add_u32 s{sA}, s{sA}, s{sB}',
          f's_add_u32 s{sA}, s{sA}, {pqoff}',
          f's_lshl_b32 s{sU}, s{sTILE1}, 9',
          f's_lshl_b32 s{sB}, s{sHC}, 5',
          f's_add_u32 s{sU}, s{sU}, s{sB}',
          f's_add_u32 s{sU}, s{sU}, {F1Q}',
          f'v_mov_b32 v{vC2+2}, v{vC2}']
    gt = {}

    def gath(k_):
        hh, e0 = k_ // 2, (k_ % 2) * 4
        r, half = 1 + hh // 2, hh % 2
        for e in range(e0, e0 + 4):
            gt[hh] = a(f'ds_read_u16 v{LUD[r]+8*half+e}, v{LUC+3*(r-1)} offset:{r*2048+(8*half+e)*128}')

    def pack(hh):
        r, half = 1 + hh // 2, hh % 2
        R = LUD[r] + 8 * half
        a.wait(gt[hh])
        for m in range(4):
            a(f'v_lshl_or_b32 v{R+m}, v{R+2*m+1}, 16, v{R+2*m}')

    def pst_(hh):
        r, half = 1 + hh // 2, hh % 2
        a(f'buffer_store_dwordx4 {vr(LUD[r]+8*half,4)}, v{LUC+3*(r-1)+1}, {sr(S_WS,4)}, 0 offen offset:{512*half} sc1')

    def csum():
        a(f's_lshl_b32 s{sC}, s{sW}, 8')
        a(f's_add_u32 s{sC}, s{sC}, {LCS}')
        a(f'v_add_u32 v229, s{sC}, v{vL4}')
        for r in (1, 2):
            R = LUD[r]
            a(f'v_mov_b32 v{R+4}, 0')
            for m in range(4):
                a(f'v_dot2c_f32_bf16 v{R+4}, s{sONES}, v{R+m}')
                a(f'v_dot2c_f32_bf16 v{R+4}, s{sONES}, v{R+8+m}')
            gt['cs'] = a(f'ds_write_b32 v229, v{R+4} offset:{r*1024}')
    for ks in range(0 if first else 3, 29):
        mem = []
        if first:
            if 4 <= ks <= 14 and ks % 2 == 0:
                mem.append(lambda h_=(ks - 4) // 2: pst_(h_))
            if ks < 12:
                mem.append(lambda k_=ks: gath(k_))
            if 3 <= ks <= 13 and ks % 2 == 1:
                mem.append(lambda h_=(ks - 3) // 2: pack(h_))
            if ks == 12:
                mem.append(csum)
        if ks % 2 == 1 and (not first or ks >= 5):
            mem.insert(0, wo.pop(0))
        qstep(ks, mem, vq)
        if ks == (F1AT0 if first else F1AT):
            assert not vq
            a.wait(at, gt.get('cs'))
            a.barrier()
            f1_store()
            if first:
                a(f's_mov_b32 s{sD}, s{sA}')
                us = aug_finish([1, 2], ucb=LUC - 3, R=132, t0=140, t1=141, t2=142)
                a(f's_mov_b32 s{sA}, s{sD}')
    a(f'v_mov_b32 v{ACK+7}, 0')
    a('s_nop 4')
    stamp('p1q')
    T = RR2
    for r in range(0, 14, 2):
        a(f'v_pk_mul_f32 {vr(ACQ+r,2)}, {vr(ACQ+r,2)}, {vr(vC2+1,2)} op_sel:[0,1] op_sel_hi:[1,1]')
    for r in range(14):
        a(f'v_exp_f32_e64 v{T+r}, v{ACQ+r} clamp')
        a(f'v_max_f32 v{ACQ+r}, 0, v{ACQ+r}')
    for r in range(0, 14, 2):
        a(f'v_pk_fma_f32 {vr(T+r,2)}, {vr(ACQ+r,2)}, {sr(sLN2,2)}, {vr(T+r,2)}')
    for r in range(0, 14, 2):
        a(f'v_pk_add_f32 {vr(T+r,2)}, {vr(T+r,2)}, {sr(sEPS6,2)}')
    for m in range(7):
        a(f'v_cvt_pk_bf16_f32 v{ACK+m}, v{T+2*m}, v{T+2*m+1}')
    sc = 'sc1' if first else LS()
    a(f'buffer_store_dwordx4 {vr(ACK,4)}, v{vL16}, {sr(S_DT,4)}, s{sA} offen {sc}')
    pst = a(f'buffer_store_dwordx4 {vr(ACK+4,4)}, v{vL16}, {sr(S_DT,4)}, s{sA} offen offset:1024 {sc}')
    if not FAST() and not first:
        a(f's_mov_b32 s{S_DT}, s{S_LY}')
        a(f's_mov_b32 s{S_DT+1}, s{S_LY+1}')
    for it in wo[:4]:
        emit(it)
    if first:
        a.wait(us)
    a.barrier()
    if first:
        ib_publish(0, vRSW, vRSR)
    a.wait(pst)
    emit(flag_store(S_LY, f's{sU}'))
    for it in wo[4:]:
        emit(it)
    if first and not FAST():
        poll(S_WS, vL16, f's{sH}', nonzero=True)
        a.barrier()
        for it in alpha:
            emit(it)
    if CT >= 2:
        emit(code_touch(205, 206)[0])
    p2_setup()
    stamp('p1end')


ACC0, ACC1 = 208, 224
AAC2, AAC3 = 224, 240


def accs(s):
    return [vr(ACC0, 16), vr(ACC1, 16), ar(AAC2, 16), ar(AAC3, 16)][s]


def red_setup(base, RA):
    o = []
    for s in (1, 2, 3):
        o += [f's_xor_b32 s{sA}, s{sW}, {s}',
              f's_mul_i32 s{sA}, s{sA}, 12288',
              f's_add_u32 s{sA}, s{sA}, {base + (s-1)*4096}',
              f'v_add_u32 v{RA+s}, s{sA}, v{vL16}']
    o += [f's_mul_i32 s{sA}, s{sW}, 12288',
          f's_add_u32 s{sA}, s{sA}, {base}',
          f'v_add_u32 v{RA}, s{sA}, v{vL16}']
    return o


def red_write(s, RA):
    o = []
    for q in range(4):
        d = [None, vr(ACC1 + 4 * q, 4), ar(AAC2 + 4 * q, 4), ar(AAC3 + 4 * q, 4)][s]
        o.append(f'ds_write_b128 v{RA+s}, {d} offset:{q*K}')
    return o


sOX, sOS, sOF = 97, 98, 99


def own_consts():
    a(f's_mul_i32 s{sOX}, s{sOWN}, {28*K}')
    a(f's_lshl_b32 s{sB}, s{sOFT}, 11')
    a(f's_add_u32 s{sOX}, s{sOX}, s{sB}')
    a(f's_lshl_b32 s{sOS}, s{sOWN}, 12')
    a(f's_cmp_ge_u32 s{sOFT}, 7')
    a(f's_cselect_b32 s{sA}, 7, 0')
    a(f's_cselect_b32 s{sB}, 512, 0')
    a(f's_add_u32 s{sOS}, s{sOS}, s{sB}')
    a(f's_sub_u32 s{sA}, s{sOFT}, s{sA}')
    a(f's_lshr_b32 s{sB}, s{sA}, 1')
    a(f's_lshl_b32 s{sB}, s{sB}, 10')
    a(f's_add_u32 s{sOS}, s{sOS}, s{sB}')
    a(f's_and_b32 s{sA}, s{sA}, 1')
    a(f's_lshl_b32 s{sA}, s{sA}, 3')
    a(f's_add_u32 s{sOS}, s{sOS}, s{sA}')
    a(f's_lshl_b32 s{sOF}, s{sOWN}, 9')
    a(f's_lshl_b32 s{sB}, s{sOFT}, 5')
    a(f's_add_u32 s{sOF}, s{sOF}, s{sB}')


def res_unpack(RU):
    o = []
    for m in range(8):
        o.append(f'v_lshlrev_b32 v{RU+2*m}, 16, v{vXRES+m}')
        o.append(f'v_and_b32 v{RU+2*m+1}, 0xffff0000, v{vXRES+m}')
    return o


def red_finish(final, RB, RU, RA, nm, xb, stb, flb, sc, mid, pre=()):
    for it in pre:
        emit(it)
    a.wait_lg0()
    a.barrier()
    toks = []
    for i in range(12):
        toks.append(a(f'ds_read_b128 {vr(RB+4*i,4)}, v{RA} offset:{i*K}'))
    if final is not True:
        a(f's_add_u32 s{sA}, s{sOX}, {xb}')
        a(f's_add_u32 s{sB}, s{sOS}, {stb}')
        a(f's_add_u32 s{sZW}, s{sOF}, {flb}')
    for r in range(0, 16, 2):
        a(f'v_pk_add_f32 {vr(ACC0+r,2)}, {vr(ACC0+r,2)}, {vr(RU+r,2)}')
    S, Q, t0, t1, tl = RU, RU + 1, RU + 2, RU + 3, RU + 4
    if final is not True:
        a(f'v_mov_b32 v{S}, 0')
        a(f'v_mov_b32 v{Q}, 0')
    for s in range(3):
        a.wait(toks[4 * s + 3])
        for r in range(0, 16, 2):
            a(f'v_pk_add_f32 {vr(ACC0+r,2)}, {vr(ACC0+r,2)}, {vr(RB+16*s+r,2)}')
    for m in range(8):
        a(f'v_cvt_pk_bf16_f32 v{vXRES+m}, v{ACC0+2*m}, v{ACC0+2*m+1}')
    if final is True:
        final_store()
        return
    if final == 'dyn':
        a(f's_cmp_lg_u32 s{sL}, 0')
        a('s_cbranch_scc1 ' + LB_('L_final'))
    a(f'buffer_store_dwordx4 {vr(vXRES,4)}, v{vL16}, {sr(S_DT,4)}, s{sA} offen {sc}')
    a(f'buffer_store_dwordx4 {vr(vXRES+4,4)}, v{vL16}, {sr(S_DT,4)}, s{sA} offen offset:1024 {sc}')
    for m in range(8):
        a(f'v_dot2c_f32_bf16 v{S}, s{sONES}, v{vXRES+m}')
        a(f'v_dot2c_f32_bf16 v{Q}, v{vXRES+m}, v{vXRES+m}')
    a(f'v_mov_b32 v{t0}, v{S}')
    a(f'v_mov_b32 v{t1}, v{Q}')
    a(f'v_permlane32_swap_b32 v{S}, v{t0}')
    a(f'v_permlane32_swap_b32 v{Q}, v{t1}')
    a(f'v_pk_add_f32 {vr(S,2)}, {vr(S,2)}, {vr(t0,2)}')
    a('s_mov_b32 exec_hi, 0')
    lt = a(f'buffer_store_dwordx2 {vr(S,2)}, v{vL16}, {sr(S_DT,4)}, s{sB} offen {sc}')
    a('s_mov_b64 exec, -1')
    stamp(nm + 'st')
    mid()
    a.wait(lt)
    emit(flag_store(S_LY, f's{sZW}'))


def final_store():
    a(f'v_and_b32 v18, 31, v{vLANE}')
    a(f'v_lshrrev_b32 v19, 5, v{vLANE}')
    a(f'v_mul_u32_u24 v{vROW}, 896, v18')
    a(f'v_lshl_add_u32 v{vROW}, v19, 4, v{vROW}')
    a(f's_mul_i32 s{sA}, s{sOWN}, 28672')
    a(f's_lshl_b32 s{sB}, s{sOFT}, 6')
    a(f's_add_u32 s{sA}, s{sA}, s{sB}')
    a(f'buffer_store_dwordx4 {vr(vXRES,4)}, v{vROW}, {sr(S_OUT,4)}, s{sA} offen {OSC}')
    a(f'buffer_store_dwordx4 {vr(vXRES+4,4)}, v{vROW}, {sr(S_OUT,4)}, s{sA} offen offset:32 {OSC}')


def idle_touch(base, per_wave_bytes, n, t=16):
    if not IDLE:
        return
    a(f's_sub_u32 s{sA}, s{sJ}, 28')
    a(f's_lshl_b32 s{sA}, s{sA}, 2')
    a(f's_add_u32 s{sA}, s{sA}, s{sW}')
    a(f's_mul_i32 s{sA}, s{sA}, {per_wave_bytes}')
    a(f's_add_u32 s{sA}, s{sA}, {base}')
    a(f'v_lshlrev_b32 v{t}, 7, v{vLANE}')
    for i in range(n):
        a(f'buffer_load_dword v{t+1}, v{t}, {sr(S_WS,4)}, s{sA} offen sc1')
        a(f's_add_u32 s{sA}, s{sA}, 8192')


def p2_setup():
    dma_setup(vROW, sW3SRC, 56 * K, LBETA)
    a(f'v_and_b32 v240, 3, v{vLANE}')
    a(f'v_lshlrev_b32 v240, 5, v240')
    a(f'v_bfe_u32 v241, v{vLANE}, 2, 1')
    a(f'v_lshl_add_u32 v240, v241, 9, v240')
    a(f's_lshl_b32 s{sC}, s{sTILE2}, 9')
    a(f's_lshl_b32 s{sA}, s{sW}, 7')
    a(f's_add_u32 s{sC}, s{sC}, s{sA}')
    a(f's_add_u32 s{sC}, s{sC}, {F1Q}')
    a(f's_lshl_b32 s{sE}, s{sOWN}, 15')
    a(f's_lshl_b32 s{sA}, s{sW}, 13')
    a(f's_add_u32 s{sE}, s{sE}, s{sA}')
    a(f's_add_u32 s{sE}, s{sE}, {PQ}')
    a(f's_xor_b32 s{sF}, s{sE}, 0x8000')
    a(f's_add_u32 s{sH}, s{sREP}, s{sW1K}')
    a(f's_add_u32 s{sH}, s{sH}, {F1}')
    a(f's_lshl_b32 s{sD}, s{sW}, 14')


def phase2(L):
    WO, PQR, KVR = 16, 80, 144
    ODS = (240, 160)
    KB = (144, 152, 176, 192)
    tag = f'{L}'
    beta = dma_items(vROW, LBETA, 56, 2)
    if L == 0:
        a(f's_add_u32 s{sI}, s{sW3SRC}, s{sW2K}')
        a(f's_add_u32 s{sG}, s{sREP}, s{sW1K}')
        al = []
        for r in range(7):
            al.append([f's_add_u32 m0, s{sW2K}, {LALPHA + r*8*K}', f's_add_u32 s85, s{sI}, {r*8*K}',
                       f'buffer_load_dwordx4 v{vL16}, {sr(S_WS,4)}, s85 offen sc1 lds'])
            al.append([f'buffer_load_dwordx4 v{vL16}, {sr(S_WS,4)}, s85 offen offset:1024 sc1 lds'])
        beta = al + beta
    a(f's_cmp_ge_u32 s{sJ}, 28')
    with cold('s_cbranch_scc1', back=LB_('L_p2skip' + tag)):
        if L == 0:
            poll(S_WS, vL16, f's{sG}', nonzero=True, sleep=2)
            a.barrier()
        for it in beta:
            emit(it)
        if L == 0:
            idle_touch(WDR, 7 * WDS // 16, IDN)
        elif L == 1:
            idle_touch(W3R + 112 * K, W3S, IDN)
        p3_setup(L)
        a.wait_vm0()
    with cond():
        poll(S_LY, 240, f's{sC}')
        stamp('p2pq')
        pt = {}
        for aa, s in ((1, sF), (0, sE)):
            for hl in range(4):
                for ks in range(2):
                    pt[hl, aa] = a(f'buffer_load_dwordx4 {vr(PQR+16*hl+8*aa+4*ks,4)}, v{vL16}, {sr(S_DT,4)}, s{s} offen offset:{(hl%2)*2048+ks*K} sc1')
                if hl == 1:
                    a(f's_add_u32 s{s}, s{s}, 4096')
                if aa == 1 and hl == 1:
                    fchk = a(f'buffer_load_dword v253, v{vL16}, {sr(S_LY,4)}, s{sH} offen sc1')
                if aa == 0 and hl == PQSPLIT:
                    break
        a.wait(fchk)
        check_or_poll(253, S_LY, vL16, f's{sH}', sleep=0)
        stamp('p2poll')
        kt = {}
        lq = []

        def kvl(hl, q):
            kt[hl] = a(f'buffer_load_dwordx4 {vr(KVR+16*hl+4*q,4)}, v{vL16}, {sr(S_LY,4)}, s{sD} offen offset:{q*K} sc1')
            if q == 3:
                a(f's_add_u32 s{sD}, s{sD}, 4096')

        def pql(hl, ks):
            pt[hl, 0] = a(f'buffer_load_dwordx4 {vr(PQR+16*hl+4*ks,4)}, v{vL16}, {sr(S_DT,4)}, s{sE} offen offset:{(hl%2)*2048+ks*K} sc1')
            if hl == 1 and ks == 1:
                a(f's_add_u32 s{sE}, s{sE}, 4096')
        if L == 0:
            bchk = a(f'buffer_load_dword v253, v{vL16}, {sr(S_WS,4)}, s{sG} offen sc1')
        for hl in range(4):
            for q in range(4):
                kvl(hl, q)
        if L == 0:
            a.wait(bchk)
            check_or_poll(253, S_WS, vL16, f's{sG}', nonzero=True, sleep=0)
            a.barrier()
        for hl in range(PQSPLIT + 1, 4):
            for ks in range(2):
                lq.append(lambda h_=hl, k_=ks: pql(h_, k_))
        wot = {}
        cw = []
        if CARRY:
            a(f's_and_b32 s{sA}, s{sW1K}, 0x400')
            a(f's_add_u32 s80, s{sWOSRC}, s{sA}')
            a(f's_xor_b32 s{sA}, s{sA}, 0x400')
            a(f's_add_u32 s81, s{sWOSRC}, s{sA}')
        ncw = 0
        for it in CARRY:
            m_ = re.match(r'buffer_load_dwordx4 ([va])\[(\d+):', it[-1])
            assert m_
            if m_.group(1) == 'v':
                k_ = (int(m_.group(2)) - 16) // 4

                def f(k_=k_):
                    a(f's_add_u32 s78, s{80 + k_ % 2}, {(k_ // 2) * 2048}')
                    wot[k_ // 4] = a(f'buffer_load_dwordx4 {vr(16+4*k_,4)}, v{vL16}, {sr(S_WS,4)}, s78 offen sc1')
                cw.append(f)
            else:
                ncw += 1
        CARRY[:] = []
        for f in cw[:CWN]:
            f()
        beta = cw[CWN:] + lq + beta
        wd2 = []
        if L != 1:
            a(f's_and_b32 s{sA}, s{sW1K}, 0x400')
            a(f's_add_u32 s76, s{sWDSRC}, s{sA}')
            a(f's_xor_b32 s{sA}, s{sA}, 0x400')
            a(f's_add_u32 s77, s{sWDSRC}, s{sA}')
            for k_ in range(WDP1 - ncw, WDP1 + WDP2):
                n_, b = k_ // 2, k_ % 2
                wd2.append([f's_add_u32 s78, s{76+b}, {n_*2048}',
                            f'buffer_load_dwordx4 {ar(8*n_+4*b,4)}, v{vL16}, {sr(S_WS,4)}, s78 offen sc1'])

        def cvt(hl):
            return [f'v_cvt_pk_bf16_f32 v{KB[hl]+m}, v{KVR+16*hl+2*m}, v{KVR+16*hl+2*m+1}' for m in range(8)]
        units = [(hl, aa) for aa in (1, 0) for hl in range(4)]

        def oM(u):
            hl, aa = units[u]
            D = vr(ODS[u % 2], 16)
            P = PQR + 16 * hl + 8 * aa
            return [f'{MF} {D}, {vr(KB[hl],4)}, {vr(P,4)}, 0',
                    f'{MF} {D}, {vr(KB[hl]+4,4)}, {vr(P+4,4)}, {D}']

        def scale(u):
            hl, aa = units[u]
            D = ODS[u % 2]
            P = PQR + 16 * hl + 8 * aa
            o = [f'v_add_f32 v{D+14}, s{sEPS6}, v{D+14}',
                 f'v_rcp_f32 v{D+14}, v{D+14}']
            for m in range(7):
                o.append(f'v_mul_f32 v{D+2*m}, v{D+2*m}, v{D+14}')
                o.append(f'v_mul_f32 v{D+2*m+1}, v{D+2*m+1}, v{D+14}')
                o.append(f'v_cvt_pk_bf16_f32 v{P+m}, v{D+2*m}, v{D+2*m+1}')
            return o

        def woM(u, bs):
            hl, aa = units[u]
            P = PQR + 16 * hl + 8 * aa
            o = []
            for b in bs:
                for ks in range(2):
                    D = accs(2 * aa + b)
                    c = '0' if (hl == 0 and ks == 0) else D
                    o.append(f'{MF} {D}, {vr(WO+16*hl+8*ks+4*b,4)}, {vr(P+4*ks,4)}, {c}')
            return o
        RU, RA = 160, 184
        a.wait(kt[0])
        emit(cvt(0))
        emit(oM(0))
        a.wait(kt[1])
        emit(cvt(1))
        m1 = oM(1)
        vs = scale(0)
        a(m1[0]); shadow([], vs)
        a(m1[1]); emit(vs)
        wr = []
        for u in range(9):
            if u < 4:
                ms = woM(u, (0, 1))
            elif u < 8:
                ms = woM(u, (1,)) + (woM(u - 2, (0,)) if u >= 6 else [])
            else:
                ms = woM(6, (0,)) + woM(7, (0,))
            vs = scale(u + 1) if u + 1 < 8 else []
            if u < 4:
                while any(getattr(x, '__name__', '') == 'f' and x.__defaults__[0] // 4 <= u for x in beta):
                    beta.pop(0)()
                a.wait(wot.get(u))
            if u < 2:
                a.wait(kt[u + 2])
                vs = cvt(u + 2) + vs
            if u == 2:
                vs = vs + red_setup(LB, RA)[:8]
            if u == 3:
                vs = vs + red_setup(LB, RA)[8:]
            if u == 4:
                wr = red_write(2, RA) + red_write(3, RA)
            if u == 7:
                vs = res_unpack(RU)
            if u == 8:
                wr = wr + red_write(1, RA)
            if u + 2 < 8:
                ms = ms[:2] + ['W'] + oM(u + 2) + ms[2:]
            k_ = 0
            for m in ms:
                if m == 'W':
                    a.wait(pt[units[u + 2]])
                    if u < 2:
                        while any(x in vs for x in cvt(u + 2)):
                            a(vs.pop(0))
                    continue
                a(m)
                mem = []
                if beta and k_ % 2 == 0:
                    mem.append(beta.pop(0))
                elif wd2 and k_ % 2 == 0:
                    mem.append(wd2.pop(0))
                if wr and (k_ % 2 == 1 or u == 8) and not (u in (4, 8) and k_ == 0):
                    mem.append(wr[:1]); wr = wr[1:]
                shadow(mem, vs)
                k_ += 1
            emit(vs)
        wd2 = beta + wd2 + (code_touch(188, 189) if CT >= 2 else [])
        stamp('p2mfma')
        emit(wr)
        sc = LS()
        red_finish(False, 80, RU, RA, 'p2', X1, ST1, F2, sc, lambda: p3_setup(L), pre=wd2)
    a.label(LB_('L_p2skip' + tag))
    stamp('p2end')


p3D1, p3D3, p3SA, p3SB = 228, 229, 240, 241
p3D2 = 243
p3FL, p3HA, p3HB, p3FV = 244, 245, 246, 247


def p3_setup(L):
    vFL, vHA, vHB = p3FL, p3HA, p3HB
    x_prep(F2, X1, ST1)
    dma_setup(p3D3, sW3SRC, 112 * K, LB)
    dma_setup(p3D1, sW3SRC, 147 * K, LALPHA)
    if L is None:
        a(f's_cmp_lg_u32 s{sL}, 0')
        a(f's_cselect_b32 s{sA}, {OOB:#x}, s{sW1SRC}')
        a(f'v_add_u32 v{p3D2}, s{sA}, v{vL16}')
    elif L == 0:
        a(f'v_add_u32 v{p3D2}, s{sW1SRC}, v{vL16}')
    a(f's_mul_i32 s{sG}, s{sTILE1}, {112*K}')
    a(f's_mul_i32 s{sA}, s{sHC}, {7*K}')
    a(f's_add_u32 s{sG}, s{sG}, s{sA}')
    a(f's_add_u32 s{sG}, s{sG}, {HB}')
    a(f's_add_u32 s{sH}, s{sG}, 4096')
    a(f's_lshl_b32 s{sU}, s{sTILE1}, 9')
    a(f's_lshl_b32 s{sA}, s{sHC}, 2')
    a(f's_add_u32 s{sU}, s{sU}, s{sA}')
    a(f's_add_u32 s{sU}, s{sU}, {F3}')


def p4_addr():
    vFL, vHA, vHB = p3FL, p3HA, p3HB
    return [f'v_and_b32 v{vFL}, 3, v{vLANE}',
            f'v_lshlrev_b32 v{vFL}, 2, v{vFL}',
            f'v_bfe_u32 v{vHA}, v{vLANE}, 2, 1',
            f'v_lshl_add_u32 v{vFL}, v{vHA}, 9, v{vFL}',
            f's_lshl_b32 s{sA}, s{sTILE2}, 9',
            f's_lshl_b32 s{sB}, s{sW}, 4',
            f's_add_u32 s{sA}, s{sA}, s{sB}',
            f's_add_u32 s85, s{sA}, {F3}',
            f'v_add_u32 v{vFL}, s85, v{vFL}',
            f's_mul_i32 s{sB}, s{sW}, {28*K}',
            f's_add_u32 s{sB}, s{sB}, {HB}',
            f's_mul_i32 s{sA}, s{sOWN}, {112*K}',
            f's_add_u32 s{sA}, s{sA}, s{sB}',
            f'v_add_u32 v{vHA}, s{sA}, v{vL16}',
            f's_xor_b32 s{sA}, s{sOWN}, 1',
            f's_mul_i32 s{sA}, s{sA}, {112*K}',
            f's_add_u32 s{sA}, s{sA}, s{sB}',
            f'v_add_u32 v{vHB}, s{sA}, v{vL16}']


def phase34(L):
    ACC = 128
    WR, NW = 192, 8
    SB = 176
    XAUG = 224
    vD1, vD3, vSA, vSB, vD2 = p3D1, p3D3, p3SA, p3SB, p3D2
    vFL, vHA, vHB, vFV = p3FL, p3HA, p3HB, p3FV
    vFV2 = 242
    PRE = XPRE
    HR, NH = 16, 28
    tag = f'{L}'
    LOOK = 6
    NG = 3 if G3 else 2
    steps = [(t, ks) for ks in range(29) for t in range(NG)]
    for t in range(NG, 7):
        steps += [(t, ks) for ks in range(29)]

    def addr(t, ks):
        if G3 and t < 3:
            p = 3 * ks + t
            return LALPHA + p * K if p < 56 else LBETA + (p - 56) * K
        if ks == 28 and t < 3:
            return LBETA + t * K
        if t < 2:
            return LALPHA + (2 * ks + t) * K
        if t == 2:
            return LBETA + (3 + ks) * K
        if t == 3:
            return LBETA + (31 + ks) * K
        if t == 4:
            return LB + (4 + ks) * K
        if t == 5:
            return LALPHA + ks * K
        return LALPHA + (29 + ks) * K if ks < 27 else LB + (33 + ks - 27) * K
    n = len(steps)
    accof = {0: 0, 1: 1, 2: 2, 3: 3, 4: 0, 5: 1, 6: 2}
    rt, xt, hst, ht, chk = {}, {}, {}, {}, {}

    def hsc(t):
        return LS() if (L == 1 and t >= HPL) else 'sc1'

    def epi(t, D=None, Sx=None):
        Sx = ACC + 16 * accof[t] if Sx is None else Sx
        D = Sx if D is None else D
        o = []
        for r in range(8):
            o.append(f'v_mul_f32 v{D+r}, v{Sx+r}, v{vC2}')
        for r in range(8):
            o.append(f'v_exp_f32_e64 v{D+r}, -v{D+r}')
            if r >= 2:
                o.append(f'v_fma_f32 v{D+r-2}, v{D+r-2}, v{vISTD}, v{vISTD}')
        for r in (6, 7):
            o.append(f'v_fma_f32 v{D+r}, v{D+r}, v{vISTD}, v{vISTD}')
        for r in range(8):
            o.append(f'v_rcp_f32 v{D+r}, v{D+r}')
            if r >= 2:
                o.append(f'v_mul_f32 v{D+r-2}, v{D+r-2}, v{Sx+8+r-2}')
        for r in (6, 7):
            o.append(f'v_mul_f32 v{D+r}, v{D+r}, v{Sx+8+r}')
        for m in range(4):
            o.append(f'v_cvt_pk_bf16_f32 v{D+8+m}, v{D+2*m}, v{D+2*m+1}')
        s = sG if t < 4 else sH
        o.append(f'buffer_store_dwordx4 {vr(D+8,4)}, v{vL16}, {sr(S_DT,4)}, s{s} offen offset:{(t%4)*K} {hsc(t)} ; H{t}')
        return o

    def issue_rd(i):
        if i >= n:
            return
        t, ks = steps[i]
        d = WR + 4 * (i % NW)
        rt[i] = read_frag(d, addr(t, ks)) if ks < 28 else read_aug(d, addr(t, ks), 251 + (i % 3))

    def flag_ld(stg):
        if stg == 0 or not FAST():
            chk[stg] = a(f'buffer_load_dword v{vFV}, v{vFL}, {sr(S_LY,4)}, 0 offen offset:{64*stg} sc1')
        else:
            a(f's_buffer_load_dwordx4 s[76:79], {sr(S_LY,4)}, s85 offset:{64*stg}')
            a(f's_buffer_load_dwordx4 s[80:83], {sr(S_LY,4)}, s85 offset:{64*stg+512}')

    def flag_chk(stg):
        if FAST():
            a('s_waitcnt lgkmcnt(0)')
            a('s_and_b64 s[76:77], s[76:77], s[78:79]')
            a('s_and_b64 s[80:81], s[80:81], s[82:83]')
            a('s_and_b64 s[76:77], s[76:77], s[80:81]')
            a('s_and_b32 s76, s76, s77')
        else:
            a.wait(chk[stg])
            a(f'v_cmp_ne_u32 vcc, 1, v{vFV}')
            a('s_cmp_eq_u64 vcc, 0')
        assert 6 in hst
        with cold('s_cbranch_scc0'):
            a.wait_vm0()
            emit(flag_store(S_LY, f's{sU}', imm=128))
            emit(flag_store(S_LY, f's{sU}', imm=192))
            poll(S_LY, vFL, 0, imm=64 * stg)

    CHK = {24: 1, 40: 2, 48: 3}

    def hld(idx, chkflags=True):
        if idx >= 56:
            return
        if chkflags and idx + 4 in CHK:
            flag_ld(CHK[idx + 4])
        if chkflags and idx in CHK:
            flag_chk(CHK[idx])
        n_, aa = idx // 2, idx % 2
        t, cc = n_ // 4, n_ % 4
        if aa == 0:
            a(f's_mov_b32 s{sE}, {(cc*7+t)*K}')
        ht[idx] = a(f'buffer_load_dwordx4 {vr(HR+4*(idx%NH),4)}, v{(vHA,vHB)[aa]}, {sr(S_DT,4)}, s{sE} offen sc1')

    a.wait_lg0()
    if BEARLY:
        a.barrier()
        for i in range(LOOK):
            issue_rd(i)
    poll(S_LY, 240, f's{sC}')
    stamp('p3poll')
    for ks in range(4):
        xt[ks] = x_load(ks)
    if not BEARLY:
        a.barrier()
        for i in range(LOOK):
            issue_rd(i)
    for ks in range(4, PRE):
        xt[ks] = x_load(ks)
    fill, owner = [], []
    done_at = {}
    wd = [] if L == 1 else wfrag_items(lambda n_, b: ar(8 * n_ + 4 * b, 4), sWDSRC, (WDP1 + WDP2) // 2, 28, vSA, vSB, sF)
    ft = [[f'v_and_b32 v233, 0x80, v{vL4}', f'buffer_load_dword v233, v233, {sr(S_LY,4)}, s{sU} offen sc1']] if FT else []
    if HT and FAST() and (L == 1 or HT > 1):
        ft += [[f'v_min_u32 v234, 55, v{vLANE}', f'v_lshlrev_b32 v234, 7, v234', f'buffer_load_dword v234, v234, {sr(S_DT,4)}, s{sG} offen sc1']]
    bg = dma_items(vD3, LB, 36, 1) + ['M3'] + ft + wd[:WDP3]
    wd4 = wd[WDP3:]
    assert len(wd4) <= 16
    marks = {}
    cur = [0]

    def pop():
        x = fill.pop(0); o = owner.pop(0)
        t = a(x)
        if '; H' in x:
            hst[o] = (t, cur[0])

    def pub(stg, last_tile):
        a.wait(hst[last_tile][0])
        emit(flag_store(S_LY, f's{sU}', imm=64 * stg))

    def xl(ks):
        xt[ks] = x_load(ks)

    def next_bg():
        while bg and isinstance(bg[0], str):
            marks[bg.pop(0)] = mark()
        return bg.pop(0) if bg else None
    pubs = [(0, 2), (1, 4)]
    for i, (t, ks) in enumerate(steps):
        cur[0] = i
        if i == (45 if G3 else 34):
            a.wait(chk['st'])
            s_ = [f's_and_b32 s{sA}, s{sW1K}, 0x400', f'v_add_u32 v{vSA}, s{sA}, v{vL16}', f'v_xor_b32 v{vSB}, 0x400, v{vSA}'] + \
                stats_sum(SB) + stats_finish(XAUG, SB) + p4_addr()
            fill += s_; owner += [-1] * len(s_)
        stamp(f'i{i}', fine=True) if i in (1, 30, 57, 87, 116, 145, 174) else None
        if i % 2 == 0:
            a.wait(rt[min(i + 1, n - 1)], xt.get(steps[min(i + 1, n - 1)][1]), xt.get(ks))
        if i == 56:
            a.barrier()
            k3 = bg.index('M3') + 1 if 'M3' in bg else 0
            bg = bg[:k3] + dma_items(vD1, LALPHA, 56, 2) + ['M4'] + code_touch(232, 233) + bg[k3:]
        if i + LOOK == 112:
            a.wait(marks['M3'])
            a.barrier()
        if i + LOOK == 145:
            a.wait(marks['M4'])
            a.barrier()
            bg = code_touch(232, 233) + bg
        D = vr(ACC + 16 * accof[t], 16)
        if ks == 0 and t >= 4:
            assert (t - 4) not in owner
        if ks == 28:
            assert -1 not in owner
        X = vr(16 + 4 * ks, 4) if ks < 28 else vr(XAUG, 4)
        a(f'{MF} {D}, {vr(WR+4*(i%NW),4)}, {X}, {"0" if ks == 0 else D}')
        if ks == 28:
            done_at[t] = i
        for tt, di in list(done_at.items()):
            if i >= di + 2:
                e = epi(tt)
                fill += e; owner += [tt] * len(e)
                del done_at[tt]
        pre = main = None
        if t == 0 and ks + PRE < 28:
            main = (lambda k_=ks + PRE: xl(k_))
        elif t == NG - 1 and ks < 8 and ks % 2 == 0:
            main = (lambda k_=ks // 2: chk.__setitem__('st', st_load(k_, SB)))
        elif G3 and t == 2 and ks + PRE < 28 and ks % 2 == 0 and 'M3' not in marks:
            pre, main = split_item(next_bg())
        elif t == 6:
            if ks % 2 == 1:
                main = (lambda k_=ks // 2: hld(k_))
        elif i == 173:
            main = lambda: flag_ld(0)
        elif i % 2 == 0 and i >= NG * (28 - PRE):
            pre, main = split_item(next_bg())
        extra = None
        if fill and '; H' in fill[0]:
            extra = pop
        elif pubs and pubs[0][1] in hst and i >= hst[pubs[0][1]][1] + PUBD and i % 2 == 1:
            extra = (lambda p=pubs.pop(0): pub(*p))
        n0 = len(a.ins)
        for f in (pre, lambda: issue_rd(i + LOOK), main, extra):
            if f is None:
                continue
            f() if callable(f) else emit(f)
        budget = CAP3 - (len(a.ins) - n0) - (i % 2)
        while fill and '; H' not in fill[0] and budget >= cost(fill[0]):
            budget -= cost(fill[0])
            pop()
    assert not pubs and next_bg() is None, len(bg)
    print('P3: h stores at steps', {t: v[1] for t, v in hst.items()}, 'left', len(fill))
    assert not fill and 5 in hst
    stamp('p3mfma')

    RU, RA = 192, 128
    w1 = [] if L == 1 else dma_items(vD2, 0, 88, 2)
    nxt = (lambda: p1_setup(False)) if L != 1 else (lambda: None)
    a(f's_cmp_ge_u32 s{sJ}, 28')
    with cold('s_cbranch_scc1', back=LB_('L_p4skip' + tag)):
        emit(epi(6))
        pub(2, 5)
        a.barrier()
        a.wait_vm0()
        emit(flag_store(S_LY, f's{sU}', imm=192))
        if L == 0:
            idle_touch(W1R, W1S, 11)
        if L == 1 and WB:
            a('buffer_wbl2 sc1')
        for it in w1:
            emit(it)
        nxt()
    with cond():
        a.wait(chk[0])
        a(f'v_cmp_ne_u32 vcc, 1, v{vFV}')
        a('s_cmp_eq_u64 vcc, 0')
        saved = dict(ht)
        with cold('s_cbranch_scc0'):
            emit(epi(6, D=ACC + 48))
            a.wait_vm0()
            emit(flag_store(S_LY, f's{sU}', imm=128))
            emit(flag_store(S_LY, f's{sU}', imm=192))
            poll(S_LY, vFL, 0, imm=0)
            for idx in range(14):
                hld(idx, False)
            a.wait_vm0()
        ht.update(saved)
        fill = epi(6)
        owner = [6] * len(fill)
        later = red_setup(LALPHA, RA) + res_unpack(RU)
        TAIL = 8
        nld = [14]
        todo = ['pub2', 'pub3']
        wt = {}

        def mf(n_, s):
            aa, b = s >> 1, s & 1
            D = accs(s)
            a(f'{MF} {D}, {ar(8*n_+4*b,4)}, {vr(HR+4*((2*n_+aa)%NH),4)}, {"0" if n_ == 0 else D}')

        def sh(step, load):
            cur[0] = step
            n0 = len(a.ins)
            if load:
                if nld[0] < 56:
                    hld(nld[0]); nld[0] += 1
                elif w1:
                    emit(w1.pop(0))
            elif todo and todo[0] == 'pub2' and step >= 13:
                pub(2, 5); todo.pop(0)
            elif todo and todo[0] == 'pub3' and 6 in hst and step >= hst[6][1] + PUBD2:
                pub(3, 6); todo.pop(0)
                fill.extend(later); owner.extend([-2] * len(later))
            elif wd4:
                wt[0] = emit(wd4.pop(0))
            if step >= 1:
                if fill and '; H' in fill[0]:
                    pop()
                budget = CAP - (len(a.ins) - n0)
                while fill and '; H' not in fill[0] and budget >= cost(fill[0]):
                    budget -= cost(fill[0])
                    pop()
        for n_ in range(28 - TAIL):
            if n_ == P4B:
                a.barrier()
            stamp(f'n{n_}') if ('p4prof' in OPT and n_ in (2, 4, 8, 13, 15, 17)) else None
            a.wait(ht[2 * n_])
            mf(n_, 0); sh(4 * n_, True)
            mf(n_, 1); sh(4 * n_ + 1, False)
            a.wait(ht[2 * n_ + 1])
            mf(n_, 2); sh(4 * n_ + 2, True)
            mf(n_, 3); sh(4 * n_ + 3, 10 <= n_ < 16)
        assert nld[0] == 56 and not fill and not todo and not wd4
        stamp('n20') if 'p4prof' in OPT else None
        a.wait(wt.get(0))
        pend = []
        for s in (3, 2, 1, 0):
            for k_, n_ in enumerate(range(28 - TAIL, 28)):
                a.wait(ht[2 * n_ + 1])
                mf(n_, s)
                if k_ % 2 == 1 and pend:
                    emit(pend[:1]); pend = pend[1:]
                elif w1 and k_ % 2 == 0 and len(w1) > W1KEEP:
                    emit(w1.pop(0))
            if s > 0:
                pend = red_write(s, RA)
        stamp('p4mfma')

        def mid():
            for it in w1:
                emit(it)
            nxt()
        final = {0: False, 1: True, None: 'dyn'}[L]
        xb, stb = (X1, ST1) if FAST() else (X0 + LYB, ST0 + LYB)
        pre4 = w1[:len(w1) // 4 * 2]; w1 = w1[len(pre4):]
        pre4 = pre4 + (code_touch(140, 141) if CT >= 2 and L != 1 else [])
        red_finish(final, 16, RU, RA, 'p4', xb, stb, F0 + LYB, LS(), mid, pre=pre4)
    a.label(LB_('L_p4skip' + tag))
    if L != 1:
        stamp('p4end')


def restore(ctx):
    a.vm_issued, a.vm_done, a.lg_issued, a.lg_done = ctx['state']
    ctx['qt'].clear(); ctx['qt'].update(ctx['qt0'])


def build():
    prologue()
    init_phase()
    MODE.update(sc='', sfx='')
    ctx = phase1_kv(True)
    phase1_q(ctx, True)
    phase2(0)
    phase34(0)
    c2 = phase1_kv(False)
    phase1_q(c2, False)
    phase2(1)
    phase34(1)
    a.label('L_done')
    if PROFILE:
        stamp('end')
        a(f's_lshl_b32 s{sA}, s2, 2')
        a(f's_add_u32 s{sA}, s{sA}, s{sW}')
        a(f's_lshl_b32 s{sA}, s{sA}, 8')
        a(f's_add_u32 s{sA}, s{sA}, {PROF}')
        a(f'buffer_store_dword v{vPROF}, v{vL4}, {sr(S_WS,4)}, s{sA} offen')
        if 'probe' in OPT:
            k0, k1 = [int(x) for x in OPT['probe'].split(',')]
            ne = len(STAMPS) - 1
            a(f'v_readlane_b32 s{sA}, v{vPROF}, {k0}')
            a(f'v_readlane_b32 s{sB}, v{vPROF}, {k1}')
            a(f'v_readlane_b32 s{sC}, v{vPROF}, {ne}')
            a('s_cmp_ge_u32 s2, 224')
            a('s_cbranch_scc1 L_end')
            a(f's_sub_u32 s{sA}, s{sB}, s{sA}')
            a(f's_min_u32 s{sA}, s{sA}, 10000')
            a.label('L_spin')
            a('s_sleep 1')
            a(f's_memrealtime {sr(sP0,2)}')
            a('s_waitcnt lgkmcnt(0)')
            a(f's_sub_u32 s{sD}, s{sP0}, s{sC}')
            a(f's_cmp_lt_u32 s{sD}, s{sA}')
            a('s_cbranch_scc1 L_spin')
        if 'dbgout' in OPT:
            a(f's_lshl_b32 s{sA}, s2, 2')
            a(f's_add_u32 s{sA}, s{sA}, s{sW}')
            a(f's_cmp_lg_u32 s{sA}, {77*4+1}')
            a('s_cbranch_scc1 L_end')
            a(f'v_readfirstlane_b32 s{sA}, v{vPROF}')
            a(f'v_subrev_u32 v{vPROF}, s{sA}, v{vPROF}')
            a(f'v_lshlrev_b32 v20, 1, v{vLANE}')
            a(f'v_subrev_u32 v20, {2*int(OPT["dbgout"])}, v20')
            a(f'buffer_store_short v{vPROF}, v20, {sr(S_DBG,4)}, 0 offen sc1')
    a.label('L_end')
    a('s_endpgm')
    a.flush_cold()
    a.label('L_codeend')
    keep = list(STAMPS)
    a.label('L_slow')
    MODE.update(sc='sc1', sfx='_s')
    restore(ctx)
    a('s_nop 7')
    phase1_q(ctx, True)
    a.label('L_layer_s')
    a('s_nop 7')
    phase2(None)
    phase34(None)
    a(f's_cmp_lg_u32 s{sL}, 0')
    a('s_cbranch_scc1 L_done')
    a(f's_mov_b32 s{sL}, 1')
    c2 = phase1_kv(False)
    phase1_q(c2, False)
    a('s_branch L_layer_s')
    a.label('L_final_s')
    final_store()
    a('s_branch L_done')
    a.flush_cold()
    STAMPS[:] = keep


build()
hdr = open('cdna_kernels/' + NAME + '.s.ref').read().split('; Override launch')[0]
out = hdr + f"""; @launch grid=(256,1,1) block=(256,1,1) lds={LDS_BYTES}
.amdgcn_target "amdgcn-amd-amdhsa--gfx950"
.text
.globl {NAME}_kernel
.p2align 8
.type {NAME}_kernel,@function
{NAME}_kernel:
{a.text()}
.section .rodata,"a"
.p2align 6
.amdhsa_kernel {NAME}_kernel
  .amdhsa_next_free_vgpr 512
  .amdhsa_next_free_sgpr 102
  .amdhsa_accum_offset 256
  .amdhsa_group_segment_fixed_size 0
  .amdhsa_kernarg_size 80
  .amdhsa_user_sgpr_count 2
  .amdhsa_user_sgpr_kernarg_segment_ptr 1
  .amdhsa_system_sgpr_workgroup_id_x 1
  .amdhsa_float_denorm_mode_32 3
.end_amdhsa_kernel
"""
outfn = [x for x in sys.argv[1:] if not x.startswith('--')][0]
open(outfn, 'w').write(out)
open(outfn + '.names', 'w').write(','.join(STAMPS))
print('instructions', len(a.ins), 'nops added', a.nops_added)
```

```python
import sys
import contextlib
import re
from asmlib import Asm, vr, ar, sr

NAME = "interleave_layers__linear_attn_block__glu_gated_glu__prompt"
OPT = {}
for x in sys.argv[1:]:
    if x.startswith('--'):
        k, _, v = x[2:].partition('=')
        OPT[k] = v if v else True
PROFILE = 'prof' in OPT
FINE = 'fine' in OPT
CLK = 'clk' in OPT
STOP = OPT.get('stop')
FA = 1
SLEEP = int(OPT.get('sleep', 1))
TOUCH = int(OPT.get('touch', 0))
BUD = int(OPT.get('bud', 3))
XPRE = int(OPT.get('xpre', 8))
HPRE = int(OPT.get('hpre', 16))
HSC = int(OPT.get('hsc', 0))
XSC = int(OPT.get('xsc', 0))
TLBW = int(OPT.get('tlbw', 0))
XI = int(OPT.get('xi', 4))
XA = int(OPT.get('xa', 10))
CT = int(OPT.get('ct', 1))
FT = int(OPT.get('ft', 0))
HT = int(OPT.get('ht', 0))
X0N = int(OPT.get('x0n', 0))
IDLE = int(OPT.get('idle', 0))
OSC = OPT.get('osc', '')
PQSC = int(OPT.get('pqsc', 0))
WB = int(OPT.get('wb', 0))
IDN = int(OPT.get('idn', 11))
HPL = int(OPT.get('hpl', 9))
G3 = int(OPT.get('g3', 1))
P4B = int(OPT.get('p4b', 1))
BEARLY = int(OPT.get('bearly', 1))
WDP2 = int(OPT.get('wdp2', 4))
W1KEEP = int(OPT.get('w1keep', 0))
CARRYON = int(OPT.get('carry', 0))
CWN = int(OPT.get('cwn', 4))
EPD = int(OPT.get('epd', 1))
STA = int(OPT.get('sta', 10))
LUP = int(OPT.get('lup', 16))
F1AT0 = int(OPT.get('f1at0', 22))
CAP3 = int(OPT.get('cap3', 7))
WSC = '' if 'nowsc' in OPT else 'sc1'
STAMPS = []

IB = 0x0
W1R = 0x100000; W1S = 87 * 1024
WOR = 0x280000
W3R = 0x300000; W3S = 203 * 1024
WDR = 0x680000; WDS = 224 * 1024
LYB = 0x1000000
KV = 0x0
F1 = 0x10000
F1Q = 0x18000
F3 = 0x30000
F2 = 0x20000
F0 = 0x28000
ST1 = 0x40000
ST0 = 0x80000
PQ = 0x100000
X1 = 0x300000
X0 = 0x500000
HB = 0x700000
PROF = 0x3000000
WS_BYTES = 256 << 20
OOB = 0x40000000

K = 1024
LBETA, LB, LALPHA = 0, 56 * K, 104 * K
LRS = 87 * K
LKVS = 88 * K
LDS_BYTES = 160 * K

S_WS, S_X, S_WQKV, S_WO, S_WG, S_WU, S_WD, S_OUT, S_DBG = 4, 8, 12, 16, 20, 24, 28, 32, 36
S_T0, S_T1 = 40, 44
S_LY = 40
S_DT = 44
sW, sJ, sHC, sTB, sFB, sL, sTMO, sPI = 48, 49, 50, 51, 52, 53, 54, 55
sTILE1, sTILE2, sOWN, sOFT = 56, 57, 58, 59
sLN2, sEPS6 = 60, 62
sONES = 84
sW1K, sW2K, sW4K = 64, 65, 66
sW1SRC, sW3SRC, sWOSRC, sWDSRC = 67, 68, 69, 70
sRBG, sREP = 71, 72
sG, sH, sI = 73, 74, 75
sA, sB, sC, sD, sE, sF = 86, 87, 88, 89, 90, 91
sP0 = 92
sU = 94
sXID = 95
sZW = 96
sPC = 100

vLANE, vL16, vL16b, vL16c, vROW, vAUG, vL4, vPROF = 0, 1, 2, 3, 4, 5, 6, 7
vXRES = 8
LOG2E = 0x3FB8AA3B
LN2 = 0x3F317218
EPS6 = 0x358637BD
EPS5 = 0x3727C5AC
INV448 = 0x3B124925
MF = 'v_mfma_f32_32x32x16_bf16'

a = Asm()
MODE = {'sc': 'sc1', 'sfx': ''}


def LS():
    return MODE['sc']


def LL():
    return OPT.get('ll', 'sc1').replace('none', '') if MODE['sc'] == '' else 'sc1'


def ALIAS():
    return MODE['sfx'] == '' and 'noalias' not in OPT


def XS():
    return 'sc1' if XSC else LS()


def HS():
    return 'sc1' if HSC else LS()


def LB_(n):
    return n + MODE['sfx']


@contextlib.contextmanager
def cond():
    st = (a.vm_issued, a.vm_done, a.lg_issued, a.lg_done)
    yield
    a.vm_issued, a.vm_done, a.lg_issued, a.lg_done = st


@contextlib.contextmanager
def cold(branch, back=None):
    C = a.uid('Lc'); R = back or a.uid('Lr')
    a(f'{branch} {C}')
    st = (a.vm_issued, a.vm_done, a.lg_issued, a.lg_done)
    a.begin_cold()
    a.label(C)
    a('s_nop 7')
    a('s_nop 3')
    yield
    a('s_nop 4')
    a(f's_branch {R}')
    a.end_cold()
    a.vm_issued, a.vm_done, a.lg_issued, a.lg_done = st
    if back is None:
        a.label(R)


def mark():
    return ('vm', a.vm_issued - 1)


def lds_addr(addr):
    if addr < 65536:
        return vL16, addr
    if addr < 131072:
        return vL16b, addr - 65536
    return vL16c, addr - 131072


def stamp(name, fine=False):
    if not PROFILE or (fine and not FINE):
        return
    STAMPS.append(name)
    a('s_waitcnt lgkmcnt(0)')
    a(f"{'s_memtime' if CLK else 's_memrealtime'} {sr(sP0,2)}")
    a.wait_lg0()
    a(f'v_cmp_eq_u32 vcc, s{sPI}, v{vLANE}')
    a(f'v_mov_b32 v255, s{sP0}')
    a(f'v_cndmask_b32 v{vPROF}, v{vPROF}, v255, vcc')
    a(f's_add_u32 s{sPI}, s{sPI}, 1')


def srd(base, lo, nbytes):
    a(f's_mov_b32 s{base}, s{lo}')
    a(f's_and_b32 s{base+1}, s{lo+1}, 0xffff')
    a(f's_mov_b32 s{base+2}, {nbytes}')
    a(f's_mov_b32 s{base+3}, 0x00020000')


def poll(srdreg, vaddr, soff, imm=0, t=254, sleep=0, nonzero=False):
    L = a.uid('Lpoll'); D = a.uid('Lpd')
    a.label(L)
    if sleep:
        a(f's_sleep {sleep}')
    a(f'buffer_load_dword v{t}, v{vaddr}, {sr(srdreg,4)}, {soff} offen offset:{imm} sc1')
    a(f's_sub_u32 s{sTMO}, s{sTMO}, 1')
    a(f's_max_i32 s{sTMO}, s{sTMO}, 0')
    a(f's_cselect_b64 {sr(sP0,2)}, exec, 0')
    a.wait_vm0()
    a(f'v_cmp_eq_u32 vcc, 0, v{t}' if nonzero else f'v_cmp_ne_u32 vcc, 1, v{t}')
    a(f's_and_b64 exec, {sr(sP0,2)}, vcc')
    a(f's_cbranch_scc1 {L}')
    a('s_mov_b64 exec, -1')


def check_or_poll(v, srdreg, vaddr, soff, imm=0, nonzero=False, sleep=1, t=254):
    a(f'v_cmp_eq_u32 vcc, 0, v{v}' if nonzero else f'v_cmp_ne_u32 vcc, 1, v{v}')
    a('s_cmp_eq_u64 vcc, 0')
    with cold('s_cbranch_scc0'):
        poll(srdreg, vaddr, soff, imm=imm, nonzero=nonzero, sleep=sleep, t=t)


def code_touch(t, d):
    if not CT:
        return []
    return [[f'v_and_b32 v{t}, 3, v{vLANE}',
             f'v_lshlrev_b32 v{t}, 7, v{t}',
             f'global_load_dword v{d}, v{t}, {sr(sPC,2)}']]


def flag_store(srdreg, soff, imm=0, t=254, sc=None):
    sc = LS() if sc is None else sc
    return [f'v_mov_b32 v{t}, 1',
            's_mov_b64 exec, 1',
            f'buffer_store_dword v{t}, off, {sr(srdreg,4)}, {soff} offset:{imm} {sc}',
            's_mov_b64 exec, -1']


def emit(lst):
    t = None
    for x in lst:
        r = a(x)
        t = r if r is not None else t
    return t


def dma_items(vD, lds_base, nfrag, c):
    assert nfrag % (4 * c) == 0
    sWc = {1: sW1K, 2: sW2K, 4: sW4K}[c]
    items = []
    for r in range(nfrag // (4 * c)):
        for i in range(c):
            it = []
            if i == 0:
                it.append(f's_add_u32 m0, s{sWc}, {lds_base + r*4*c*K}')
            it.append(f'buffer_load_dwordx4 v{vD}, {sr(S_WS,4)}, m0 offen offset:{i*K} {WSC} lds')
            items.append(it)
    return items


def dma_setup(vD, ssrc, src_const, lds_base):
    a(f's_add_u32 s{sA}, s{ssrc}, {src_const - lds_base & 0xffffffff:#x}')
    a(f'v_add_u32 v{vD}, s{sA}, v{vL16}')


def prologue():
    if PROFILE:
        a('s_memrealtime s[96:97]')
    a('s_cmp_ge_u32 s2, 256')
    a('s_cbranch_scc1 L_end')
    a('s_load_dwordx16 s[64:79], s[0:1], 0')
    a('s_load_dwordx4 s[80:83], s[0:1], 64')
    a(f's_getpc_b64 {sr(sPC,2)}')
    a.label('L_pc')
    a('s_lshr_b32 s3, s2, 3')
    a('s_lshl_b32 s3, s3, 11')
    a('s_min_u32 s3, s3, (L_codeend - L_pc - 2048)')
    a(f's_add_u32 s{sPC}, s{sPC}, s3')
    a(f's_addc_u32 s{sPC+1}, s{sPC+1}, 0')
    a('v_min_u32 v16, 15, v0')
    a('v_lshlrev_b32 v16, 7, v16')
    a(f'global_load_dword v17, v16, {sr(sPC,2)}')
    a(f'v_lshrrev_b32 v18, 6, v0')
    a(f'v_and_b32 v{vLANE}, 63, v0')
    a(f'v_readfirstlane_b32 s{sW}, v18')
    a(f'v_lshlrev_b32 v{vL16}, 4, v{vLANE}')
    a(f'v_add_u32 v{vL16b}, 0x10000, v{vL16}')
    a(f'v_add_u32 v{vL16c}, 0x20000, v{vL16}')
    a(f'v_lshlrev_b32 v{vL4}, 2, v{vLANE}')
    a(f'v_and_b32 v18, 31, v{vLANE}')
    a(f'v_lshrrev_b32 v19, 5, v{vLANE}')
    a(f'v_mul_u32_u24 v{vROW}, 896, v18')
    a(f'v_lshl_add_u32 v{vROW}, v19, 4, v{vROW}')
    a(f'v_lshlrev_b32 v{vAUG}, 2, v18')
    a(f'v_lshl_add_u32 v{vAUG}, v19, 9, v{vAUG}')
    a(f'v_mov_b32 v{vPROF}, 0')
    a(f's_mov_b32 s{sPI}, 0')
    a(f's_and_b32 s{sC}, s2, 7')
    a(f's_lshr_b32 s{sJ}, s2, 3')
    a(f's_mul_i32 s{sTB}, s{sJ}, 37')
    a(f's_lshr_b32 s{sTB}, s{sTB}, 8')
    a(f's_mul_i32 s{sFB}, s{sTB}, 7')
    a(f's_sub_u32 s{sFB}, s{sJ}, s{sFB}')
    a(f's_cmp_ge_u32 s{sJ}, 28')
    a(f's_cselect_b32 s{sTB}, s{sFB}, s{sTB}')
    a(f's_mov_b32 s{sL}, 0')
    a(f's_mov_b32 s{sTMO}, 100000')
    a(f's_lshl_b32 s{sTILE2}, s{sC}, 3')
    a(f's_lshl_b32 s{sD}, s{sTB}, 1')
    a(f's_add_u32 s{sTILE2}, s{sTILE2}, s{sD}')
    a(f's_lshr_b32 s{sD}, s{sW}, 1')
    a(f's_add_u32 s{sOWN}, s{sTILE2}, s{sD}')
    a(f's_and_b32 s{sD}, s{sW}, 1')
    a(f's_lshl_b32 s{sOFT}, s{sFB}, 1')
    a(f's_add_u32 s{sOFT}, s{sOFT}, s{sD}')
    lf = {1: 0, 2: 1, 4: 2, 8: 3}[FA]
    nh = 16 // FA
    a(f's_and_b32 s{sD}, s{sC}, {FA-1}')
    a(f's_mul_i32 s{sHC}, s{sD}, {nh}')
    a(f's_and_b32 s{sD}, s{sJ}, {nh-1}')
    a(f's_add_u32 s{sHC}, s{sHC}, s{sD}')
    a(f's_lshr_b32 s{sD}, s{sC}, {lf}')
    a(f's_lshl_b32 s{sE}, s{sD}, {lf+1}')
    a(f's_lshr_b32 s{sD}, s{sJ}, {4-lf}')
    a(f's_add_u32 s{sE}, s{sE}, s{sD}')
    a(f's_lshl_b32 s{sTILE1}, s{sE}, 2')
    a(f's_add_u32 s{sTILE1}, s{sTILE1}, s{sW}')
    a(f's_mov_b32 s{sLN2}, {LN2:#x}')
    a(f's_mov_b32 s{sLN2+1}, {LN2:#x}')
    a(f's_mov_b32 s{sEPS6}, {EPS6:#x}')
    a(f's_mov_b32 s{sEPS6+1}, {EPS6:#x}')
    a(f's_mov_b32 s{sONES}, 0x3f803f80')
    for i in range(4):
        a(f'v_mov_b32 v{216+i}, 0')
    a(f'v_and_b32 v{vRHO}, 31, v{vLANE}')
    a(f'v_lshrrev_b32 v{vHI}, 5, v{vLANE}')
    a(f'v_and_b32 v{vSIG}, 0x13, v{vRHO}')
    a(f'v_and_b32 v{vt0}, 4, v{vRHO}')
    a(f'v_lshl_or_b32 v{vSIG}, v{vt0}, 1, v{vSIG}')
    a(f'v_lshrrev_b32 v{vt0}, 1, v{vRHO}')
    a(f'v_and_or_b32 v{vSIG}, v{vt0}, 4, v{vSIG}')
    a(f'v_lshrrev_b32 v{vR8}, 3, v{vLANE}')
    a(f'v_and_b32 v{vC8}, 7, v{vLANE}')
    a(f'v_lshlrev_b32 v{vC8}, 4, v{vC8}')
    a(f'v_lshrrev_b32 v{vt0}, 4, v{vLANE}')
    a(f'v_lshlrev_b32 v{vt0}, 4, v{vt0}')
    a(f'v_xor_b32 v{vt0}, v{vt0}, v{vC8}')
    a(f'v_mul_u32_u24 v{vt1}, 896, v{vR8}')
    a(f'v_add_u32 v{vXS}, v{vt1}, v{vt0}')
    a(f'v_xor_b32 v{vt0}, 64, v{vt0}')
    a(f'v_add_u32 v{vXS+1}, v{vt1}, v{vt0}')
    a('s_waitcnt lgkmcnt(0)')
    if TLBW:
        a(f'v_lshlrev_b32 v20, 20, v{vLANE}')
        a('v_subrev_u32 v20, 0xa00000, v20')
        a('v_min_u32 v20, 0x2100000, v20')
        a('v_mov_b32 v21, s83')
        a('v_add_co_u32 v20, vcc, s82, v20')
        a('v_addc_co_u32 v21, vcc, 0, v21, vcc')
        for ln, p in enumerate((64, 66, 68, 72, 74, 76, 78, 80)):
            a(f'v_writelane_b32 v20, s{p}, {ln}')
            a(f'v_writelane_b32 v21, s{p+1}, {ln}')
        a('global_load_dword v22, v[20:21], off')
    srd(S_X, 64, 2048 * 448 * 2)
    srd(S_WQKV, 66, 448 * 1344 * 2)
    srd(S_WO, 68, 448 * 448 * 2)
    srd(S_WG, 72, 448 * 1792 * 2)
    srd(S_WU, 74, 448 * 1792 * 2)
    srd(S_WD, 76, 1792 * 448 * 2)
    srd(S_OUT, 78, 2048 * 448 * 2)
    srd(S_DBG, 80, 256)
    srd(S_WS, 82, WS_BYTES)
    a(f's_mov_b32 s{sRBG}, s{sE}')
    a(f's_and_b32 s{sREP}, s2, 3')
    a(f's_lshl_b32 s{sREP}, s{sREP}, 12')
    a(f's_lshl_b32 s{sW1K}, s{sW}, 10')
    a(f's_lshl_b32 s{sW2K}, s{sW}, 11')
    a(f's_lshl_b32 s{sW4K}, s{sW}, 12')
    a(f's_lshl_b32 s{sG}, s{sW}, 9')
    a(f's_add_u32 s{sPC}, s{sPC}, s{sG}')
    a(f's_addc_u32 s{sPC+1}, s{sPC+1}, 0')
    a(f's_lshl_b32 s{sG}, s{sW}, 13')
    a(f's_add_u32 s{sG}, s{sG}, {LSTG}')
    a(f's_getreg_b32 s{sXID}, hwreg(HW_REG_XCC_ID)')
    a(f's_and_b32 s{sXID}, s{sXID}, 15')
    a(f's_add_u32 s{sXID}, s{sXID}, 1')
    if PROFILE:
        STAMPS.append('entry')
        a(f'v_mov_b32 v{vPROF}, s96')
        a(f's_mov_b32 s{sPI}, 1')
    stamp('start')


def late_consts():
    a(f's_mul_i32 s{sW1SRC}, s{sHC}, {W1S}')
    a(f's_add_u32 s{sW1SRC}, s{sW1SRC}, {W1R}')
    a(f's_mul_i32 s{sW3SRC}, s{sHC}, {W3S}')
    a(f's_add_u32 s{sW3SRC}, s{sW3SRC}, {W3R}')
    a(f's_lshl_b32 s{sWOSRC}, s{sFB}, 16')
    a(f's_lshl_b32 s{sA}, s{sW}, 14')
    a(f's_add_u32 s{sWOSRC}, s{sWOSRC}, s{sA}')
    a(f's_add_u32 s{sWOSRC}, s{sWOSRC}, {WOR}')
    a(f's_mul_i32 s{sWDSRC}, s{sFB}, {WDS}')
    a(f's_mul_i32 s{sA}, s{sW}, 57344')
    a(f's_add_u32 s{sWDSRC}, s{sWDSRC}, s{sA}')
    a(f's_add_u32 s{sWDSRC}, s{sWDSRC}, {WDR}')
    a(f's_add_u32 s{S_LY}, s{S_WS}, {LYB}')
    a(f's_addc_u32 s{S_LY+1}, s{S_WS+1}, 0')
    a(f's_mov_b32 s{S_LY+2}, {2*LYB}')
    a(f's_mov_b32 s{S_LY+3}, 0x00020000')
    a(f's_mov_b32 s{S_DT}, s{S_LY}')
    a(f's_mov_b32 s{S_DT+1}, s{S_LY+1}')
    a(f's_mov_b32 s{S_DT+2}, {2*LYB}')
    a(f's_mov_b32 s{S_DT+3}, 0x00020000')


UD = 128
UC = 192
vRHO, vHI, vSIG, vR8, vC8 = 204, 205, 206, 207, 212
vt0, vt1, vt2, vt3 = 208, 209, 210, 211
vXS = 214
LSTG = 128 * K
LXS = 0
LCS = 112 * K


PASS = {'p': 'src'}


class Done(Exception):
    pass


def run_setup(fn, *args):
    try:
        fn(*args)
    except Done:
        pass


LSRD = {1: S_WQKV, 2: S_WO, 3: S_WD}


def unit_dma(r, srdreg, vsrc, srow0, srow1):
    if r > 0:
        a(f's_mov_b32 s{74+2*r}, s{srow0}')
        a(f's_mov_b32 s{75+2*r}, s{srow1}')
        a(f'v_mov_b32 v{243+r}, v{vsrc}')
        if srdreg != LSRD[r]:
            for i in range(3):
                a(f's_mov_b32 s{LSRD[r]+i}, s{srdreg+i}')
        return
    if PASS['p'] == 'dst':
        return
    _unit_dma(r, srdreg, vsrc, srow0, srow1)
    raise Done()


def late_dma():
    t = None
    for r in (1, 2, 3):
        for h in range(2):
            a(f's_add_u32 m0, s82, {r*2048 + h*1024}')
            t = a(f'buffer_load_dwordx4 v{243+r}, {sr(LSRD[r],4)}, s{74+2*r+h} offen lds')
    return t


def _unit_dma(r, srdreg, vsrc, srow0, srow1):
    a(f's_add_u32 m0, s{sG}, {r*2048}')
    a('s_nop 0')
    a(f'buffer_load_dwordx4 v{vsrc}, {sr(srdreg,4)}, s{srow0} offen lds')
    a(f's_add_u32 m0, s{sG}, {r*2048+1024}')
    a('s_nop 0')
    a(f'buffer_load_dwordx4 v{vsrc}, {sr(srdreg,4)}, s{srow1} offen lds')


def div7(q, rem, su):
    a(f's_mul_i32 s{q}, s{su}, 9363')
    a(f's_lshr_b32 s{q}, s{q}, 16')
    a(f's_mul_i32 s{rem}, s{q}, 7')
    a(f's_sub_u32 s{rem}, s{su}, s{rem}')


def setup_w1(r, su):
    col, dst, aug = UC + 3 * r, UC + 3 * r + 1, UC + 3 * r + 2
    div7(sA, sB, su)
    a(f's_lshr_b32 s{sC}, s{sA}, 3')
    a(f's_and_b32 s{sA}, s{sA}, 7')
    a(f's_mul_i32 s{sD}, s{sC}, 896')
    a(f's_mul_i32 s{sE}, s{sA}, 112')
    a(f's_add_u32 s{sD}, s{sD}, s{sE}')
    a(f's_lshl_b32 s{sF}, s{sB}, 2')
    a(f's_add_u32 s{sF}, s{sF}, s{sW}')
    a(f's_mul_i32 s{sE}, s{sF}, {16*2688}')
    a(f's_add_u32 s{sD}, s{sD}, s{sE}')
    a(f's_add_u32 s{sE}, s{sD}, {8*2688}')
    a(f'v_mul_u32_u24 v{vt0}, 2688, v{vR8}')
    a(f'v_add_u32 v{vt0}, v{vt0}, v{vC8}')
    a(f'v_cmp_eq_u32 vcc, 112, v{vC8}')
    a(f'v_mov_b32 v{vt1}, {OOB:#x}')
    a(f'v_cndmask_b32 v{vt0}, v{vt0}, v{vt1}, vcc')
    unit_dma(r, S_WQKV, vt0, sD, sE)
    a(f'v_cmp_le_u32 vcc, 24, v{vSIG}')
    a(f'v_subrev_u32 v{vt0}, 2, v{vSIG}')
    a(f'v_cndmask_b32 v{vt0}, v{vSIG}, v{vt0}, vcc')
    a(f'v_mad_u32_u24 v{vt0}, v{vHI}, 28, v{vt0}')
    a(f'v_and_b32 v{vt1}, 0x16, v{vSIG}')
    a(f'v_cmp_eq_u32 vcc, 0x16, v{vt1}')
    a(f'v_cndmask_b32 v{vt0}, v{vt0}, 56, vcc')
    a(f'v_lshl_add_u32 v{col}, v{vt0}, 1, s{sG}')
    a(f's_lshl_b32 s{sD}, s{sF}, 1')
    a(f's_add_u32 s{sD}, s{sD}, s{sC}')
    a(f's_sub_u32 s{sD}, s{sD}, 1')
    a(f's_add_u32 s{sE}, s{sC}, 55')
    a(f's_add_u32 s{sF}, s{sF}, 58')
    a(f's_cmp_eq_u32 s{sC}, 0')
    a(f's_cselect_b32 s{sD}, s{sF}, s{sD}')
    a(f's_cselect_b32 s{sE}, 86, s{sE}')
    a(f's_mul_i32 s{sA}, s{sA}, {2*W1S}')
    a(f's_add_u32 s{sA}, s{sA}, {W1R}')
    a(f's_lshl_b32 s{sD}, s{sD}, 10')
    a(f's_add_u32 s{sD}, s{sD}, s{sA}')
    a(f's_lshl_b32 s{sE}, s{sE}, 10')
    a(f's_add_u32 s{sE}, s{sE}, s{sA}')
    a(f's_lshl_b32 s{sB}, s{sB}, 7')
    a(f's_add_u32 s{sE}, s{sE}, s{sB}')
    a(f'v_mul_u32_u24 v{vt0}, {W1S}, v{vHI}')
    a(f'v_lshl_add_u32 v{dst}, v{vRHO}, 4, v{vt0}')
    a(f'v_add_u32 v{dst}, s{sD}, v{dst}')
    a(f'v_lshl_add_u32 v{aug}, v{vRHO}, 2, v{vt0}')
    a(f'v_add_u32 v{aug}, s{sE}, v{aug}')


def setup_w3(r, su, tsrd):
    col, dst, aug = UC + 3 * r, UC + 3 * r + 1, UC + 3 * r + 2
    div7(sA, sB, su)
    a(f's_cmp_ge_u32 s{sA}, 28')
    a(f's_cselect_b32 s{tsrd}, s{S_WU}, s{S_WG}')
    a(f's_cselect_b32 s{tsrd+1}, s{S_WU+1}, s{S_WG+1}')
    a(f's_cselect_b32 s{sC}, 28, 0')
    a(f's_cselect_b32 s{sD}, 16, 0')
    a(f's_mov_b32 s{tsrd+2}, {448*1792*2}')
    a(f's_mov_b32 s{tsrd+3}, 0x00020000')
    a(f's_sub_u32 s{sA}, s{sA}, s{sC}')
    a(f's_lshl_b32 s{sE}, s{sB}, 2')
    a(f's_add_u32 s{sE}, s{sE}, s{sW}')
    a(f's_mul_i32 s{sC}, s{sE}, {16*3584}')
    a(f's_lshl_b32 s{sF}, s{sA}, 7')
    a(f's_add_u32 s{sC}, s{sC}, s{sF}')
    a(f's_add_u32 s{sF}, s{sC}, {8*3584}')
    a(f'v_mul_u32_u24 v{vt0}, 3584, v{vR8}')
    a(f'v_add_u32 v{vt0}, v{vt0}, v{vC8}')
    unit_dma(r, tsrd, vt0, sC, sF)
    a(f'v_and_b32 v{vt0}, 48, v{vLANE}')
    a(f'v_and_or_b32 v{vt0}, v{vSIG}, 15, v{vt0}')
    a(f'v_lshl_add_u32 v{col}, v{vt0}, 1, s{sG}')
    a(f'v_lshrrev_b32 v{vt0}, 4, v{vLANE}')
    a(f's_lshl_b32 s{sC}, s{sA}, 2')
    a(f'v_add_u32 v{vt0}, s{sC}, v{vt0}')
    a(f'v_mul_u32_u24 v{vt1}, 9363, v{vt0}')
    a(f'v_lshrrev_b32 v{vt1}, 16, v{vt1}')
    a(f'v_mul_u32_u24 v{vt2}, 7, v{vt1}')
    a(f'v_sub_u32 v{vt0}, v{vt0}, v{vt2}')
    a(f's_mul_i32 s{sF}, s{sE}, {3 if G3 else 2}')
    a(f'v_add_u32 v{vt2}, s{sF}, v{vt0}')
    a(f'v_add_u32 v{aug}, {84 if G3 else 56}, v{vt0}')
    a(f's_cmp_ge_u32 s{sE}, 27')
    a(f's_cselect_b32 s{sC}, 58, 0')
    a(f's_sub_u32 s{sC}, s{sE}, s{sC}')
    a(f's_add_u32 s{sC}, s{sC}, 176')
    for t, base, ag in (() if G3 else ((2, 59, None),)) + ((3, 87, 115), (4, 116, 144), (5, 147, 175), (6, None, 146)):
        a(f'v_cmp_eq_u32 vcc, {t}, v{vt0}')
        if base is not None:
            a(f's_add_u32 s{sF}, s{sE}, {base}')
            a(f'v_mov_b32 v{vt3}, s{sF}')
        else:
            a(f'v_mov_b32 v{vt3}, s{sC}')
        a(f'v_cndmask_b32 v{vt2}, v{vt2}, v{vt3}, vcc')
        if ag is not None:
            a(f'v_mov_b32 v{vt3}, {ag}')
            a(f'v_cndmask_b32 v{aug}, v{aug}, v{vt3}, vcc')
    a(f'v_mul_u32_u24 v{vt1}, 203, v{vt1}')
    a(f'v_add_lshl_u32 v{vt2}, v{vt2}, v{vt1}, 10')
    a(f'v_add_lshl_u32 v{aug}, v{aug}, v{vt1}, 10')
    a(f'v_and_b32 v{vt0}, 15, v{vLANE}')
    a(f'v_add_u32 v{vt0}, s{sD}, v{vt0}')
    a(f'v_lshl_add_u32 v{dst}, v{vt0}, 4, v{vt2}')
    a(f'v_add_u32 v{dst}, {W3R:#x}, v{dst}')
    a(f'v_lshl_add_u32 v{aug}, v{vt0}, 2, v{aug}')
    a(f's_lshl_b32 s{sB}, s{sB}, 7')
    a(f's_add_u32 s{sB}, s{sB}, {W3R}')
    a(f'v_add_u32 v{aug}, s{sB}, v{aug}')


def setup_colsT(r):
    col, dst, aug = UC + 3 * r, UC + 3 * r + 1, UC + 3 * r + 2
    a(f'v_lshl_add_u32 v{vt0}, v{vHI}, 5, v{vSIG}')
    a(f'v_lshl_add_u32 v{col}, v{vt0}, 1, s{sG}')
    a(f'v_lshlrev_b32 v{dst}, 10, v{vHI}')
    a(f'v_lshl_add_u32 v{dst}, v{vRHO}, 4, v{dst}')
    a(f'v_mov_b32 v{aug}, {OOB:#x}')


def setup_wd(r, su):
    dst = UC + 3 * r + 1
    div7(sA, sB, su)
    a(f's_lshl_b32 s{sA}, s{sA}, 2')
    a(f's_add_u32 s{sA}, s{sA}, s{sW}')
    a(f's_mul_i32 s{sC}, s{sA}, {16*896}')
    a(f's_lshl_b32 s{sD}, s{sB}, 7')
    a(f's_add_u32 s{sC}, s{sC}, s{sD}')
    a(f's_add_u32 s{sD}, s{sC}, {8*896}')
    a(f'v_mul_u32_u24 v{vt0}, 896, v{vR8}')
    a(f'v_add_u32 v{vt0}, v{vt0}, v{vC8}')
    unit_dma(r, S_WD, vt0, sC, sD)
    setup_colsT(r)
    div7(sC, sD, sA)
    a(f's_mul_i32 s{sB}, s{sB}, {WDS}')
    a(f's_lshr_b32 s{sE}, s{sC}, 2')
    a(f's_mul_i32 s{sE}, s{sE}, 57344')
    a(f's_add_u32 s{sB}, s{sB}, s{sE}')
    a(f's_lshl_b32 s{sD}, s{sD}, 2')
    a(f's_and_b32 s{sC}, s{sC}, 3')
    a(f's_add_u32 s{sD}, s{sD}, s{sC}')
    a(f's_lshl_b32 s{sD}, s{sD}, 11')
    a(f's_add_u32 s{sB}, s{sB}, s{sD}')
    a(f's_add_u32 s{sB}, s{sB}, {WDR}')
    a(f'v_add_u32 v{dst}, s{sB}, v{dst}')


def setup_wo(r, su):
    dst = UC + 3 * r + 1
    div7(sA, sB, su)
    a(f's_lshl_b32 s{sA}, s{sA}, 2')
    a(f's_add_u32 s{sA}, s{sA}, s{sW}')
    a(f's_lshr_b32 s{sC}, s{sA}, 1')
    a(f's_mul_i32 s{sC}, s{sC}, {28*896}')
    a(f's_lshl_b32 s{sD}, s{sB}, 7')
    a(f's_add_u32 s{sC}, s{sC}, s{sD}')
    a(f's_and_b32 s{sD}, s{sA}, 1')
    a(f's_cselect_b32 s{sD}, {16*896}, 0')
    a(f's_cselect_b32 s{sE}, {14*896}, 0')
    a(f's_add_u32 s{sD}, s{sD}, s{sC}')
    a(f's_add_u32 s{sE}, s{sE}, s{sC}')
    a(f's_add_u32 s{sE}, s{sE}, {8*896}')
    a(f'v_mul_u32_u24 v{vt0}, 896, v{vR8}')
    a(f'v_add_u32 v{vt0}, v{vt0}, v{vC8}')
    unit_dma(r, S_WO, vt0, sD, sE)
    setup_colsT(r)
    a(f's_lshl_b32 s{sB}, s{sB}, 16')
    a(f's_lshl_b32 s{sC}, s{sA}, 11')
    a(f's_add_u32 s{sB}, s{sB}, s{sC}')
    a(f's_add_u32 s{sB}, s{sB}, {WOR}')
    a(f'v_add_u32 v{dst}, s{sB}, v{dst}')


def setup_none(r):
    col, dst, aug = UC + 3 * r, UC + 3 * r + 1, UC + 3 * r + 2
    a(f'v_mov_b32 v{col}, 0')
    a(f'v_mov_b32 v{dst}, {OOB:#x}')
    a(f'v_mov_b32 v{aug}, {OOB:#x}')


def rounds(tag):
    a('s_cmp_ge_u32 s2, 168')
    a(f's_cbranch_scc1 L_r0b{tag}')
    with cond():
        run_setup(setup_w1, 0, 2)
    a(f's_branch L_r0e{tag}')
    a.label(f'L_r0b{tag}')
    a('s_cmp_ge_u32 s2, 224')
    a(f's_cbranch_scc1 L_r0c{tag}')
    with cond():
        a(f's_sub_u32 s{sU}, s2, 168')
        run_setup(setup_wo, 0, sU)
    a(f's_branch L_r0e{tag}')
    a.label(f'L_r0c{tag}')
    with cond():
        a(f's_sub_u32 s{sU}, s2, 224')
        run_setup(setup_wd, 0, sU)
    a.label(f'L_r0e{tag}')
    if PASS['p'] == 'src':
        return
    run_setup(setup_w3, 1, 2, LSRD[1])
    a('s_cmp_ge_u32 s2, 136')
    a(f's_cbranch_scc1 L_r2b{tag}')
    with cond():
        a(f's_add_u32 s{sU}, s2, 256')
        run_setup(setup_w3, 2, sU, LSRD[2])
    a(f's_branch L_r2e{tag}')
    a.label(f'L_r2b{tag}')
    with cond():
        a(f's_sub_u32 s{sU}, s2, 104')
        run_setup(setup_wd, 2, sU)
    a.label(f'L_r2e{tag}')
    a('s_cmp_ge_u32 s2, 212')
    a(f's_cbranch_scc1 L_r3b{tag}')
    setup_none(3)
    a('s_mov_b32 s80, 0')
    a('s_mov_b32 s81, 0')
    a(f'v_mov_b32 v246, {OOB:#x}')
    a(f's_branch L_r3e{tag}')
    a.label(f'L_r3b{tag}')
    with cond():
        a(f's_sub_u32 s{sU}, s2, 60')
        run_setup(setup_wd, 3, sU)
    a.label(f'L_r3e{tag}')


def unit_rounds(rs, items=None):
    rtok = {}
    seq = [(r, h) for r in rs for h in range(2)]

    def gat(r, half):
        for e in range(8):
            rtok[r, half] = a(f'ds_read_u16 v{UD+16*r+8*half+e}, v{UC+3*r} offset:{r*2048+(8*half+e)*128}')
    gat(*seq[0])
    for it in (items or []):
        emit(it)
    a(f's_lshl_b32 s{sA}, s{sW}, 8')
    a(f's_add_u32 s{sA}, s{sA}, {LCS}')
    a(f'v_add_u32 v225, s{sA}, v{vL4}')
    for k_, (r, half) in enumerate(seq):
        R = UD + 16 * r
        if k_ + 1 < len(seq):
            gat(*seq[k_ + 1])
        a.wait(rtok[r, half])
        for m in range(4):
            a(f'v_lshl_or_b32 v{R+8*half+m}, v{R+8*half+2*m+1}, 16, v{R+8*half+2*m}')
        a(f'buffer_store_dwordx4 {vr(R+8*half,4)}, v{UC+3*r+1}, {sr(S_WS,4)}, 0 offen offset:{512*half} sc1')
    for r in rs:
        if r == 3:
            continue
        R = UD + 16 * r
        a(f'v_mov_b32 v{R+4}, 0')
        for m in range(4):
            a(f'v_dot2c_f32_bf16 v{R+4}, s{sONES}, v{R+m}')
            a(f'v_dot2c_f32_bf16 v{R+4}, s{sONES}, v{R+8+m}')
        a(f'ds_write_b32 v225, v{R+4} offset:{r*1024}')


def aug_finish(rs, ucb=None, R=226, t0=225, t1=230, t2=231):
    ucb = UC if ucb is None else ucb
    a(f's_add_u32 s{sA}, s{sW1K}, {LCS}')
    a(f'v_add_u32 v{t0}, s{sA}, v{vL4}')
    a(f'ds_read2st64_b32 {vr(R,2)}, v{t0} offset0:0 offset1:1')
    t = a(f'ds_read2st64_b32 {vr(R+2,2)}, v{t0} offset0:2 offset1:3')
    a(f'v_mov_b32 v{t1}, {OOB:#x}')
    a(f'v_mov_b32 v{t2}, v{t1}')
    for r in rs:
        a(f's_cmp_eq_u32 s{sW}, {r}')
        a('s_cselect_b64 vcc, -1, 0')
        a(f'v_cndmask_b32 v{t1}, v{t1}, v{ucb+3*r+2}, vcc')
    a(f'v_bfe_u32 v{t0}, v{t1}, 7, 3')
    a(f'v_cmp_eq_u32 vcc, 6, v{t0}')
    a(f'v_mov_b32 v{t0}, 0')
    a(f'v_cndmask_b32 v{t2}, v{t2}, v{t1}, vcc')
    a(f'buffer_store_dword v{t0}, v{t2}, {sr(S_WS,4)}, 0 offen offset:128 sc1')
    a.wait(t)
    a(f'v_add_f32 v{R}, v{R}, v{R+1}')
    a(f'v_add_f32 v{R+2}, v{R+2}, v{R+3}')
    a(f'v_add_f32 v{R}, v{R}, v{R+2}')
    a(f'v_cvt_pk_bf16_f32 v{R+1}, v{R}, v{R}')
    a(f'v_and_b32 v{R+1}, 0xffff0000, v{R+1}')
    a(f'v_sub_f32 v{R+1}, v{R}, v{R+1}')
    a(f'v_cvt_pk_bf16_f32 v{R+1}, v{R}, v{R+1}')
    return a(f'buffer_store_dword v{R+1}, v{t1}, {sr(S_WS,4)}, 0 offen sc1')


def ib_publish(imm, va, vv):
    a(f'v_lshlrev_b32 v{va}, 12, v{vLANE}')
    a(f'v_mov_b32 v{vv}, s{sXID}')
    a('s_mov_b64 exec, 15')
    a(f'buffer_store_dword v{vv}, v{va}, {sr(S_WS,4)}, s83 offen offset:{imm} sc1')
    a('s_mov_b64 exec, -1')


def init_phase():
    Z = 216
    vGO = 224
    a(f's_lshl_b32 s{sA}, s2, 10')
    a(f's_add_u32 s{sB}, s{sW}, 1')
    a(f's_lshl_b32 s{sB}, s{sB}, 24')
    a(f's_add_u32 s{sB}, s{sA}, s{sB}')
    a(f's_sub_u32 s{sC}, s{sB}, {2*LYB - ST1}')
    a(f's_cmp_eq_u32 s{sW}, 2')
    a(f's_cselect_b32 s{sB}, s{sC}, s{sB}')
    a(f's_lshl_b32 s85, s2, 4')
    a('s_cmp_lt_u32 s2, 16')
    a(f's_cselect_b32 s{sA}, s{sA}, {OOB:#x}')
    a(f's_cselect_b32 s{sZW}, s85, {OOB:#x}')
    a(f's_cmp_eq_u32 s{sW}, 3')
    a(f's_cselect_b32 s{sB}, s{sA}, s{sB}')
    a(f's_cselect_b32 s{sZW}, s{sZW}, {OOB:#x}')
    a(f's_cselect_b32 s83, s85, {OOB:#x}')
    a(f's_cselect_b32 s85, 0, {OOB:#x}')
    zt = a(f'buffer_store_dwordx4 {vr(Z,4)}, v{vL16}, {sr(S_WS,4)}, s{sB} offen sc1')
    PASS['p'] = 'src'
    rounds('s')
    a.vm_issued += 2
    um = mark()
    a(f's_mov_b32 s82, s{sG}')
    a(f's_mul_i32 s{sI}, s{sTILE1}, 28672')
    a(f's_mul_i32 s{sH}, s{sW}, {28*K}')
    xq = []
    for g in range(4):
        for c in range(7):
            it = [f's_add_u32 m0, s{sH}, {LXS + (4*c+g)*K - c*128}',
                  f'buffer_load_dwordx4 v{vXS + (g & 1)}, {sr(S_X,4)}, s{sI} offen offset:{c*128} lds']
            if c == 6:
                it.append(f's_add_u32 s{sI}, s{sI}, {8*896}')
            xq.append(it)
    a(f's_mul_i32 s{sA}, s{sHC}, {14*128}')
    a(f's_add_u32 s{sA}, s{sA}, s{sI}')
    a(f'v_min_u32 v{vt0}, 13, v{vLANE}')
    a(f'v_lshlrev_b32 v{vt0}, 7, v{vt0}')
    a(f'buffer_load_dword v17, v{vt0}, {sr(S_X,4)}, s{sA} offen')
    for _ in range(X0N):
        emit(xq.pop(0))
    stamp('issued')
    PASS['p'] = 'dst'
    rounds('d')
    for i in range(9):
        a(f'v_accvgpr_write_b32 a{i}, v{UC+3+i}')
    a.wait(zt)
    emit(flag_store(S_DBG, f's{sZW}', sc='sc1'))
    a(f'v_and_b32 v{vt3}, 15, v{vLANE}')
    a(f'v_lshlrev_b32 v{vt3}, 4, v{vt3}')
    a(f'v_lshrrev_b32 v{vt0}, 3, v{vRHO}')
    a(f'v_lshlrev_b32 v{vt0}, 10, v{vt0}')
    a(f'v_and_b32 v{vt1}, 7, v{vRHO}')
    a(f'v_lshl_add_u32 v{vt0}, v{vt1}, 7, v{vt0}')
    a(f'v_add_u32 v{vt0}, s{sH}, v{vt0}')
    a(f'v_bfe_u32 v{vt1}, v{vRHO}, 1, 3')
    a(f'v_xor_b32 v{vt1}, v{vt1}, v{vHI}')
    for q in range(4):
        a(f'v_xor_b32 v{220+q}, {2*q}, v{vt1}')
        a(f'v_lshl_add_u32 v{220+q}, v{220+q}, 4, v{vt0}')
    a(f'v_min_u32 v{vt0}, 20, v{vLANE}')
    a(f'v_mul_u32_u24 v{vt1}, 37, v{vt0}')
    a(f'v_lshrrev_b32 v{vt1}, 8, v{vt1}')
    a(f'v_mad_u32_u24 v{vt0}, v{vt1}, 49, v{vt0}')
    a(f's_lshr_b32 s{sA}, s{sHC}, 1')
    a(f's_mul_i32 s{sA}, s{sA}, 7')
    a(f'v_add_lshl_u32 v240, v{vt0}, s{sA}, 4')
    late_consts()
    own_consts()
    a.wait(um)
    stamp('ldone')
    unit_rounds([0], [xq.pop(0) for _ in range(XI)])
    a.wait_lg0()
    a.barrier()
    aug_finish([0])
    sm = a(f'buffer_load_dword v{vGO}, v{vt3}, {sr(S_DBG,4)}, s85 offen sc1')
    for _ in range(min(XA, len(xq))):
        emit(xq.pop(0))
    a.wait(sm)
    a(f's_cmp_lg_u32 s{sW}, 3')
    a('s_cbranch_scc1 L_ngo')
    with cond():
        check_or_poll(vGO, S_DBG, vt3, 0, sleep=2)
    a.label('L_ngo')
    a.barrier()
    ib_publish(4, vt0, vt1)
    stamp('ibpub')
    while xq:
        emit(xq.pop(0))
    a(f's_mul_i32 s{sA}, s{sOWN}, 28672')
    a(f's_lshl_b32 s{sB}, s{sOFT}, 6')
    a(f's_add_u32 s{sA}, s{sA}, s{sB}')
    a(f'buffer_load_dwordx4 {vr(vXRES,4)}, v{vROW}, {sr(S_X,4)}, s{sA} offen')
    a(f'buffer_load_dwordx4 {vr(vXRES+4,4)}, v{vROW}, {sr(S_X,4)}, s{sA} offen offset:32')
    p1_setup(True)
    dma_setup(205, sW1SRC, 0, 0)
    a.wait_vm_n(2)
    stamp('xland')
    for ks in range(28):
        a(f'ds_read_b128 {vr(16+4*ks,4)}, v{220+(ks&3)} offset:{(ks>>2)*4096}')
    fa = a(f'buffer_load_dword v241, v240, {sr(S_WS,4)}, s{sREP} offen offset:4 sc1')
    a.wait_lg0()
    x0_stats(0, STA)
    a.wait(fa)
    check_or_poll(241, S_WS, 240, f's{sREP}', imm=4, nonzero=True, sleep=0)
    a.barrier()
    stamp('w1rdy')


def x0_stats(lo, hi, items=None):
    S0, S1, Q0, Q1 = 216, 217, 218, 219
    for i in range(4 * lo, 4 * hi, 2):
        if items and i % 6 == 0:
            items.pop(0)()
        a(f'v_dot2c_f32_bf16 v{S0}, s{sONES}, v{16+i}')
        a(f'v_dot2c_f32_bf16 v{Q0}, v{16+i}, v{16+i}')
        a(f'v_dot2c_f32_bf16 v{S1}, s{sONES}, v{17+i}')
        a(f'v_dot2c_f32_bf16 v{Q1}, v{17+i}, v{17+i}')


vRSTD, vC2, vISTD = 248, 249, 250
P1_XAUG = 212


def stats_finish(xaug, SB=216):
    S, Q, t0, t1 = SB, SB + 1, SB + 2, SB + 3
    o = [f'v_mov_b32 v{t0}, v{S}',
         f'v_mov_b32 v{t1}, v{Q}',
         f'v_permlane32_swap_b32 v{S}, v{t0}',
         f'v_permlane32_swap_b32 v{Q}, v{t1}',
         f'v_add_f32 v{S}, v{S}, v{t0}',
         f'v_add_f32 v{Q}, v{Q}, v{t1}',
         f'v_mul_f32 v{S}, {INV448:#x}, v{S}',
         f'v_mul_f32 v{Q}, {INV448:#x}, v{Q}',
         f'v_fma_f32 v{Q}, -v{S}, v{S}, v{Q}',
         f'v_max_f32 v{Q}, 0, v{Q}',
         f'v_add_f32 v{Q}, {EPS5:#x}, v{Q}',
         f'v_rsq_f32 v{vRSTD}, v{Q}',
         f'v_cvt_pk_bf16_f32 v{xaug}, -v{S}, -v{S}',
         f'v_mul_f32 v{vISTD}, v{Q}, v{vRSTD}',
         f'v_mul_f32 v{vC2}, {LOG2E:#x}, v{vRSTD}']
    o += [f'v_mov_b32 v{xaug+i}, v{xaug}' for i in range(1, 4)]
    return o


def stats_sum(SB=216):
    o = []
    for i in range(1, 7):
        o.append(f'v_add_f32 v{SB}, v{SB}, v{SB+2*i}')
        o.append(f'v_add_f32 v{SB+1}, v{SB+1}, v{SB+2*i+1}')
    return o


def x_prep(fl, xb, stb):
    a(f'v_and_b32 v240, 15, v{vLANE}')
    a(f'v_min_u32 v240, 13, v240')
    a(f'v_lshlrev_b32 v240, 5, v240')
    a(f's_lshl_b32 s{sC}, s{sTILE1}, 9')
    a(f's_add_u32 s{sC}, s{sC}, {fl}')
    a(f's_lshl_b32 s{sD}, s{sTILE1}, 12')
    a(f's_add_u32 s{sD}, s{sD}, {stb}')
    a(f's_mul_i32 s{sE}, s{sTILE1}, {28*K}')
    a(f's_add_u32 s{sE}, s{sE}, {xb}')


def x_load(ks):
    if ks % 4 == 0 and ks:
        a(f's_add_u32 s{sE}, s{sE}, 4096')
    return a(f'buffer_load_dwordx4 {vr(16+4*ks,4)}, v{vL16}, {sr(S_DT,4)}, s{sE} offen offset:{(ks%4)*K} sc1')


def st_load(i, SB=216):
    return a(f'buffer_load_dwordx4 {vr(SB+4*i,4)}, v{vL16}, {sr(S_DT,4)}, s{sD} offen offset:{i*K} sc1')


def st_loads(SB=216):
    t = None
    for i in range(7):
        t = a(f'buffer_load_dwordx2 {vr(SB+2*i,2)}, v241, {sr(S_DT,4)}, s{sD} offen offset:{i*256} sc1')
    return t


def read_aug(dst, addr, tmp):
    a(f'v_add_u32 v{tmp}, {addr:#x}, v{vAUG}')
    a(f'ds_read2_b32 {vr(dst,2)}, v{tmp} offset0:0 offset1:32')
    return a(f'ds_read2_b32 {vr(dst+2,2)}, v{tmp} offset0:64 offset1:96')


def read_frag(dst, addr):
    v, off = lds_addr(addr)
    return a(f'ds_read_b128 {vr(dst,4)}, v{v} offset:{off}')


def wfrag_items(regfn, ssrc, lo, hi, va, vb, stmp):
    items = []
    for i, n in enumerate(range(lo, hi)):
        for b in range(2):
            it = []
            if i % 2 == 0 and b == 0:
                it.append(f's_add_u32 s{stmp}, s{ssrc}, {n*2048}')
            it.append(f'buffer_load_dwordx4 {regfn(n,b)}, v{(va,vb)[b]}, {sr(S_WS,4)}, s{stmp} offen offset:{(i%2)*2048} {WSC}')
            items.append(it)
    return items


def slot_addr_setup(va, vb):
    a(f's_and_b32 s{sA}, s{sW1K}, 0x400')
    a(f'v_add_u32 v{va}, s{sA}, v{vL16}')
    a(f'v_xor_b32 v{vb}, 0x400, v{va}')


def cost(x):
    op = x.split()[0]
    return 2 if op.startswith(('v_exp', 'v_rcp', 'v_rsq')) else 1


def drip(q, budget):
    while q and budget >= cost(q[0]):
        x = q.pop(0)
        budget -= cost(x)
        a(x)


CAP = int(OPT.get('cap', 7))
G3 = int(OPT.get('g3', 1))
F1AT = int(OPT.get('f1at', 22))
PQSPLIT = int(OPT.get('pqsplit', 1))
WDP3 = int(OPT.get('wdp3', 36))
WDP1 = 0
PUBD2 = int(OPT.get('pubd2', 22))
PRET = int(OPT.get('pret', 1))
PUBD = int(OPT.get('pubd', 20))
S0T = int(OPT.get('s0t', 2))


def shadow(mem, vq, cap=None, pop=None):
    n0 = len(a.ins)
    for f in mem:
        if f is None:
            continue
        if callable(f):
            f()
        else:
            emit(f)
    budget = (CAP if cap is None else cap) - (len(a.ins) - n0)
    while vq and budget >= cost(vq[0]):
        budget -= cost(vq[0])
        if pop:
            pop()
        else:
            a(vq.pop(0))


def split_item(it):
    if it is None:
        return None, None
    return it[:-1], it[-1:]


ACK, ACV, ACQ = 128, 144, 160
P1WR = 176
P1RR2 = 216
p1D1, p1SA, p1SB = 204, 206, 207
p1RSW, p1RSR, p1OH = 208, 209, 210
LMODE = LRS + 1008


CARRY = []


def FAST():
    return MODE['sfx'] != '_s'


def p1_setup(first):
    if not first:
        x_prep(F0 + LYB, *((X1, ST1) if FAST() else (X0 + LYB, ST0 + LYB)))
    slot_addr_setup(p1SA, p1SB)
    a(f'v_and_b32 v{p1OH}, 27, v{vLANE}')
    a(f'v_cmp_eq_u32 vcc, 26, v{p1OH}')
    a(f'v_cndmask_b32 v{p1OH}, 0, 1.0, vcc')
    a(f'v_mov_b32 v{p1OH+1}, v{p1OH}')
    a(f's_add_u32 s{sA}, s{sW4K}, {LKVS}')
    a(f'v_and_b32 v{p1RSW}, 31, v{vLANE}')
    a(f'v_lshl_add_u32 v{p1RSW}, v{p1RSW}, 2, s{sA}')
    a(f'v_lshrrev_b32 v{p1RSR}, 5, v{vLANE}')
    a(f'v_lshl_add_u32 v{p1RSR}, v{p1RSR}, 4, s{sA}')
    dma_setup(p1D1, sW3SRC, 0, LALPHA)


LUC = 220
LUD = {1: 128, 2: 144, 3: 232}


def f1_addr():
    return [f's_lshl_b32 s{sG}, s{sHC}, 8',
            f's_lshl_b32 s{sB}, s{sRBG}, 4',
            f's_add_u32 s{sG}, s{sG}, s{sB}',
            f's_add_u32 s{sG}, s{sG}, {F1}',
            f's_cmp_lg_u32 s{sW}, 3\ns_cselect_b32 s{sG}, {OOB:#x}, s{sG}',
            f'v_lshlrev_b32 v{p1RSW}, 12, v{vLANE}',
            f'v_mov_b32 v{p1RSR}, 1']


def f1_store():
    a('s_mov_b64 exec, 15')
    a(f'buffer_store_dword v{p1RSR}, v{p1RSW}, {sr(S_LY,4)}, s{sG} offen sc1')
    a('s_mov_b64 exec, -1')
    stamp('p1pub')


def phase1_kv(first):
    WR, XAUG, RR, RR2, KVD = P1WR, P1_XAUG, ACQ, P1RR2, 232
    vRSW, vRSR, vOH = p1RSW, p1RSR, p1OH
    PRE = XPRE
    xt, vq, st = {}, [], {}
    if first:
        w1t = {}
        its = [(lambda k_=k_, it=it: w1t.__setitem__(k_, emit(it))) for k_, it in enumerate(dma_items(205, 0, 88, 2))]

        def ibl():
            a(f's_add_u32 s{sH}, s{sREP}, s{sW1K}')
            st['ib'] = a(f'buffer_load_dword v254, v{vL16}, {sr(S_WS,4)}, s{sH} offen offset:4 sc1')

        def lud(r, h):
            a(f's_add_u32 m0, s82, {r*2048 + h*1024}')
            st['lu'] = a(f'buffer_load_dwordx4 v{243+r}, {sr(LSRD[r],4)}, s{74+2*r+h} offen lds')
        its = its[:LUP] + [ibl] + [(lambda r=r, h=h: lud(r, h)) for r in (1, 2, 3) for h in range(2)] + its[LUP:]
        for _ in range(4):
            its.pop(0)()
        x0_stats(STA, 28, its)
        vq += ['v_add_f32 v216, v216, v217', 'v_add_f32 v217, v218, v219'] + stats_finish(P1_XAUG)
        stamp('stats')
    else:
        poll(S_LY, 240, f's{sC}')
        stamp('p1poll')
        for ks in range(4):
            xt[ks] = x_load(ks)
        a(f's_add_u32 s{S_LY}, s{S_LY}, {LYB}')
        a(f's_addc_u32 s{S_LY+1}, s{S_LY+1}, 0')
        a.barrier()
    bg = ([] if first else code_touch(205, 200)) + dma_items(p1D1, LALPHA, 56, 2)
    rt = {}
    stage = (0, 8, 16, 24) if first else ()

    def ib_check():
        a.wait(st['ib'])
        check_or_poll(254, S_WS, vL16, f's{sH}', imm=4, nonzero=True)
        a(f's_and_b32 s{sA}, s2, 7')
        a(f'v_and_b32 v252, 7, v{vLANE}')
        a(f'v_cmp_eq_u32 {sr(sC,2)}, s{sA}, v252')
        a(f'v_cmp_ne_u32 vcc, s{sXID}, v254')
        a(f's_and_b64 vcc, vcc, {sr(sC,2)}')
        a(f's_cselect_b32 s{sZW}, 1, 0')

    def rd(ks, tl):
        if ks > 28:
            return
        if ks in stage and tl == 0:
            a.wait(w1t[(ks + 8) // 2 - 1])
            a.barrier()
        d = WR + 8 * (ks % 3) + 4 * tl
        addr = (2 * ks + tl) * K
        rt[ks] = read_frag(d, addr) if ks < 28 else read_aug(d, addr, 252 + tl)
    for ks in range(2):
        rd(ks, 0); rd(ks, 1)
    if not first:
        for ks in range(4, PRE):
            xt[ks] = x_load(ks)
    rr = {}

    def stl(i):
        st['s'] = st_load(i)

    def xl(ks):
        xt[ks] = x_load(ks)

    def rs_write():
        a(f'ds_write2_b32 v{vRSW}, v{vRSTD}, v{vC2} offset0:0 offset1:32')

    def rs_read(j):
        a(f'ds_read_b128 {vr(RR+4*j,4)}, v{vRSR} offset:{32*j}')
        rr[0] = a(f'ds_read_b128 {vr(RR2+4*j,4)}, v{vRSR} offset:{128+32*j}')
    for ks in range(29):
        if not first and ks == 15:
            a.wait(st['s'])
            vq += stats_sum() + stats_finish(XAUG)
        a.wait(rt[ks], xt.get(ks))
        X = vr(16 + 4 * ks, 4) if ks < 28 else vr(XAUG, 4)
        c = (lambda r: '0' if ks == 0 else vr(r, 16))
        if not first and ks + PRE < 28:
            pre, main = None, (lambda k_=ks + PRE: xl(k_))
        elif first:
            pre, main = None, (its.pop(0) if its else None)
        else:
            pre, main = split_item(bg.pop(0) if bg and not first else None)
        a(f'{MF} {vr(ACK,16)}, {X}, {vr(WR+8*(ks%3),4)}, {c(ACK)}')
        shadow([pre, lambda: rd(ks + 2, 0), main], vq)
        a(f'{MF} {vr(ACV,16)}, {X}, {vr(WR+8*(ks%3)+4,4)}, {c(ACV)}')
        extra = None
        if not first and ks < 8 and ks % 2 == 0:
            extra = (lambda i=ks // 2: stl(i))
        if ks == 23:
            assert not vq
            extra = rs_write
        if 24 <= ks <= 27:
            extra = (lambda j=ks - 24: rs_read(j))
        shadow([lambda: rd(ks + 2, 1), extra], vq)
    stamp('p1kv')
    qt = {}

    def rq(ks):
        if ks > 28:
            return
        d = WR + 4 * (ks % 6)
        addr = (58 + ks) * K
        qt[ks] = read_frag(d, addr) if ks < 28 else read_aug(d, addr, 252)
    if not first:
        for ks in range(4):
            rq(ks)
    KS = LRS
    a(f's_lshl_b32 s{sB}, s{sHC}, 12')
    a(f's_add_u32 s{sB}, s{sB}, s{sW1K}')
    a.wait(rr[0])
    for r in range(0, 16, 2):
        a(f'v_pk_mul_f32 {vr(ACK+r,2)}, {vr(ACK+r,2)}, {vr(RR2+r,2)}')
    def bgp():
        if bg and EPD and not first:
            emit(bg.pop(0))
    for r in range(16):
        a(f'v_exp_f32_e64 v{RR2+r}, v{ACK+r} clamp')
        a(f'v_max_f32 v{ACK+r}, 0, v{ACK+r}')
        if r % 5 == 0:
            bgp()
    for r in range(0, 16, 2):
        a(f'v_pk_fma_f32 {vr(ACV+r,2)}, {vr(ACV+r,2)}, {vr(RR+r,2)}, {vr(vOH,2)}')
        a(f'v_pk_fma_f32 {vr(RR2+r,2)}, {vr(ACK+r,2)}, {sr(sLN2,2)}, {vr(RR2+r,2)}')
    bgp()
    for r in range(0, 16, 2):
        a(f'v_pk_add_f32 {vr(RR2+r,2)}, {vr(RR2+r,2)}, {sr(sEPS6,2)}')
        a(f'v_cvt_pk_bf16_f32 v{ACV+r//2}, v{ACV+r}, v{ACV+r+1}')
    bgp()
    for m in range(4):
        a(f'v_cvt_pk_bf16_f32 v{ACK+m}, v{RR2+2*m}, v{RR2+2*m+1}')
    a(f'{MF} {vr(KVD,16)}, {vr(ACK,4)}, {vr(ACV,4)}, 0')
    for m in range(4, 8):
        a(f'v_cvt_pk_bf16_f32 v{ACK+m}, v{RR2+2*m}, v{RR2+2*m+1}')
    a(f's_add_u32 s{sA}, s{sW4K}, {LKVS}')
    a(f'v_add_u32 v{vRSW}, s{sA}, v{vL16}')
    a(f'{MF} {vr(KVD,16)}, {vr(ACK+4,4)}, {vr(ACV+4,4)}, {vr(KVD,16)}')
    a(f's_add_u32 s{sA}, s{sW1K}, {LKVS}')
    a(f'v_add_u32 v{vRSR}, s{sA}, v{vL4}')
    if first:
        ib_check()
        a(f's_lshl_b32 s{sA}, s{sW}, 2')
        a(f's_add_u32 s{sA}, s{sA}, {LCS + 4*K}')
        a(f'v_mov_b32 v252, s{sA}')
        a(f'v_mov_b32 v253, s{sZW}')
        a('ds_write_b32 v252, v253')
        a(f'v_mov_b32 v252, {LCS + 4*K}')

    def qstep(ks, mem=(), vq_=None, early=False):
        if early and first:
            return
        a.wait(qt[ks])
        X = vr(16 + 4 * ks, 4) if ks < 28 else vr(XAUG, 4)
        a(f'{MF} {vr(ACQ,16)}, {vr(WR+4*(ks%6),4)}, {X}, {"0" if ks == 0 else vr(ACQ,16)}')
        shadow([lambda: rq(ks + 4)] + list(mem), vq_ if vq_ is not None else [])
    qstep(0, [bgp], early=True)
    for q in range(4):
        kw = a(f'ds_write_b128 v{vRSW}, {vr(KVD+4*q,4)} offset:{q*K}')
    qstep(1, [bgp], early=True)
    a.wait(kw)
    a.barrier()
    RED = RR2
    for wp in range(4):
        a(f'ds_read2st64_b32 {vr(RED+4*wp,2)}, v{vRSR} offset0:{16*wp} offset1:{16*wp+1}')
        t = a(f'ds_read2st64_b32 {vr(RED+4*wp+2,2)}, v{vRSR} offset0:{16*wp+2} offset1:{16*wp+3}')
    if first:
        mt = a(f'ds_read_b128 {vr(KVD,4)}, v252')
    qstep(2, early=True)
    a.wait(t)
    for i in range(4):
        a(f'v_add_f32 v{RED+i}, v{RED+i}, v{RED+4+i}')
        a(f'v_add_f32 v{RED+8+i}, v{RED+8+i}, v{RED+12+i}')
    for i in range(4):
        a(f'v_add_f32 v{RED+i}, v{RED+i}, v{RED+8+i}')
    for i in range(4):
        at = a(f'buffer_atomic_add_f32 v{RED+i}, v{vL4}, {sr(S_LY,4)}, s{sB} offen offset:{i*256}')
    stamp('p1atom')
    if first:
        a.wait(mt)
        a(f'v_or_b32 v{KVD}, v{KVD}, v{KVD+1}')
        a(f'v_or3_b32 v{KVD}, v{KVD}, v{KVD+2}, v{KVD+3}')
        a(f'v_readfirstlane_b32 s{sZW}, v{KVD}')
        for i in range(9):
            a(f'v_accvgpr_read_b32 v{LUC+i}, a{i}')
        a.wait(w1t[21], st['lu'])
        a.barrier()
        for ks in range(4):
            rq(ks)
        stamp('units')
        a(f's_cmp_lg_u32 s{sZW}, 0')
        a('s_cbranch_scc1 L_slow')
    return dict(qstep=qstep, at=at, qt=qt, bg=bg, us=st.get('us'), state=(a.vm_issued, a.vm_done, a.lg_issued, a.lg_done), qt0=dict(qt))


def phase1_q(ctx, first):
    qstep, at = ctx['qstep'], ctx['at']
    vRSW, vRSR, RR2 = p1RSW, p1RSR, P1RR2
    wo = wfrag_items(lambda n, b: vr(16 + 8 * n + 4 * b, 4), sWOSRC, 0, 8, p1SA, p1SB, sF)
    alpha = list(ctx['bg']) if first else []
    if not first:
        wo = list(ctx['bg']) + wo
    if first and FAST():
        wo = [[f's_cmp_ge_u32 s{sJ}, 28', f's_cselect_b32 s{sI}, {OOB:#x}, s{sOX}', f's_add_u32 s{sI}, s{sI}, {X1}',
               f'buffer_store_dwordx4 {vr(vXRES,4)}, v{vL16}, {sr(S_DT,4)}, s{sI} offen sc1'],
              [f'buffer_store_dwordx4 {vr(vXRES+4,4)}, v{vL16}, {sr(S_DT,4)}, s{sI} offen offset:1024 sc1']] + wo
    pqoff = PQ if (FAST() or first) else PQ + LYB
    vq = f1_addr() + [
          f's_lshl_b32 s{sA}, s{sTILE1}, 15',
          f's_lshl_b32 s{sB}, s{sHC}, 11',
          f's_add_u32 s{sA}, s{sA}, s{sB}',
          f's_add_u32 s{sA}, s{sA}, {pqoff}',
          f's_lshl_b32 s{sU}, s{sTILE1}, 9',
          f's_lshl_b32 s{sB}, s{sHC}, 5',
          f's_add_u32 s{sU}, s{sU}, s{sB}',
          f's_add_u32 s{sU}, s{sU}, {F1Q}',
          f'v_mov_b32 v{vC2+2}, v{vC2}']
    gt = {}

    def gath(k_):
        hh, e0 = k_ // 2, (k_ % 2) * 4
        r, half = 1 + hh // 2, hh % 2
        for e in range(e0, e0 + 4):
            gt[hh] = a(f'ds_read_u16 v{LUD[r]+8*half+e}, v{LUC+3*(r-1)} offset:{r*2048+(8*half+e)*128}')

    def pack(hh):
        r, half = 1 + hh // 2, hh % 2
        R = LUD[r] + 8 * half
        a.wait(gt[hh])
        for m in range(4):
            a(f'v_lshl_or_b32 v{R+m}, v{R+2*m+1}, 16, v{R+2*m}')

    def pst_(hh):
        r, half = 1 + hh // 2, hh % 2
        a(f'buffer_store_dwordx4 {vr(LUD[r]+8*half,4)}, v{LUC+3*(r-1)+1}, {sr(S_WS,4)}, 0 offen offset:{512*half} sc1')

    def csum():
        a(f's_lshl_b32 s{sC}, s{sW}, 8')
        a(f's_add_u32 s{sC}, s{sC}, {LCS}')
        a(f'v_add_u32 v229, s{sC}, v{vL4}')
        for r in (1, 2):
            R = LUD[r]
            a(f'v_mov_b32 v{R+4}, 0')
            for m in range(4):
                a(f'v_dot2c_f32_bf16 v{R+4}, s{sONES}, v{R+m}')
                a(f'v_dot2c_f32_bf16 v{R+4}, s{sONES}, v{R+8+m}')
            gt['cs'] = a(f'ds_write_b32 v229, v{R+4} offset:{r*1024}')
    for ks in range(0 if first else 3, 29):
        mem = []
        if first:
            if 4 <= ks <= 14 and ks % 2 == 0:
                mem.append(lambda h_=(ks - 4) // 2: pst_(h_))
            if ks < 12:
                mem.append(lambda k_=ks: gath(k_))
            if 3 <= ks <= 13 and ks % 2 == 1:
                mem.append(lambda h_=(ks - 3) // 2: pack(h_))
            if ks == 12:
                mem.append(csum)
        if ks % 2 == 1 and (not first or ks >= 5):
            mem.insert(0, wo.pop(0))
        qstep(ks, mem, vq)
        if ks == (F1AT0 if first else F1AT):
            assert not vq
            a.wait(at, gt.get('cs'))
            a.barrier()
            f1_store()
            if first:
                a(f's_mov_b32 s{sD}, s{sA}')
                us = aug_finish([1, 2], ucb=LUC - 3, R=132, t0=140, t1=141, t2=142)
                a(f's_mov_b32 s{sA}, s{sD}')
    a(f'v_mov_b32 v{ACK+7}, 0')
    a('s_nop 4')
    stamp('p1q')
    T = RR2
    for r in range(0, 14, 2):
        a(f'v_pk_mul_f32 {vr(ACQ+r,2)}, {vr(ACQ+r,2)}, {vr(vC2+1,2)} op_sel:[0,1] op_sel_hi:[1,1]')
    for r in range(14):
        a(f'v_exp_f32_e64 v{T+r}, v{ACQ+r} clamp')
        a(f'v_max_f32 v{ACQ+r}, 0, v{ACQ+r}')
    for r in range(0, 14, 2):
        a(f'v_pk_fma_f32 {vr(T+r,2)}, {vr(ACQ+r,2)}, {sr(sLN2,2)}, {vr(T+r,2)}')
    for r in range(0, 14, 2):
        a(f'v_pk_add_f32 {vr(T+r,2)}, {vr(T+r,2)}, {sr(sEPS6,2)}')
    for m in range(7):
        a(f'v_cvt_pk_bf16_f32 v{ACK+m}, v{T+2*m}, v{T+2*m+1}')
    sc = 'sc1' if first else LS()
    a(f'buffer_store_dwordx4 {vr(ACK,4)}, v{vL16}, {sr(S_DT,4)}, s{sA} offen {sc}')
    pst = a(f'buffer_store_dwordx4 {vr(ACK+4,4)}, v{vL16}, {sr(S_DT,4)}, s{sA} offen offset:1024 {sc}')
    if not FAST() and not first:
        a(f's_mov_b32 s{S_DT}, s{S_LY}')
        a(f's_mov_b32 s{S_DT+1}, s{S_LY+1}')
    for it in wo[:4]:
        emit(it)
    if first:
        a.wait(us)
    a.barrier()
    if first:
        ib_publish(0, vRSW, vRSR)
    a.wait(pst)
    emit(flag_store(S_LY, f's{sU}'))
    for it in wo[4:]:
        emit(it)
    if first and not FAST():
        poll(S_WS, vL16, f's{sH}', nonzero=True)
        a.barrier()
        for it in alpha:
            emit(it)
    if CT >= 2:
        emit(code_touch(205, 206)[0])
    p2_setup()
    stamp('p1end')


ACC0, ACC1 = 208, 224
AAC2, AAC3 = 224, 240


def accs(s):
    return [vr(ACC0, 16), vr(ACC1, 16), ar(AAC2, 16), ar(AAC3, 16)][s]


def red_setup(base, RA):
    o = []
    for s in (1, 2, 3):
        o += [f's_xor_b32 s{sA}, s{sW}, {s}',
              f's_mul_i32 s{sA}, s{sA}, 12288',
              f's_add_u32 s{sA}, s{sA}, {base + (s-1)*4096}',
              f'v_add_u32 v{RA+s}, s{sA}, v{vL16}']
    o += [f's_mul_i32 s{sA}, s{sW}, 12288',
          f's_add_u32 s{sA}, s{sA}, {base}',
          f'v_add_u32 v{RA}, s{sA}, v{vL16}']
    return o


def red_write(s, RA):
    o = []
    for q in range(4):
        d = [None, vr(ACC1 + 4 * q, 4), ar(AAC2 + 4 * q, 4), ar(AAC3 + 4 * q, 4)][s]
        o.append(f'ds_write_b128 v{RA+s}, {d} offset:{q*K}')
    return o


sOX, sOS, sOF = 97, 98, 99


def own_consts():
    a(f's_mul_i32 s{sOX}, s{sOWN}, {28*K}')
    a(f's_lshl_b32 s{sB}, s{sOFT}, 11')
    a(f's_add_u32 s{sOX}, s{sOX}, s{sB}')
    a(f's_lshl_b32 s{sOS}, s{sOWN}, 12')
    a(f's_cmp_ge_u32 s{sOFT}, 7')
    a(f's_cselect_b32 s{sA}, 7, 0')
    a(f's_cselect_b32 s{sB}, 512, 0')
    a(f's_add_u32 s{sOS}, s{sOS}, s{sB}')
    a(f's_sub_u32 s{sA}, s{sOFT}, s{sA}')
    a(f's_lshr_b32 s{sB}, s{sA}, 1')
    a(f's_lshl_b32 s{sB}, s{sB}, 10')
    a(f's_add_u32 s{sOS}, s{sOS}, s{sB}')
    a(f's_and_b32 s{sA}, s{sA}, 1')
    a(f's_lshl_b32 s{sA}, s{sA}, 3')
    a(f's_add_u32 s{sOS}, s{sOS}, s{sA}')
    a(f's_lshl_b32 s{sOF}, s{sOWN}, 9')
    a(f's_lshl_b32 s{sB}, s{sOFT}, 5')
    a(f's_add_u32 s{sOF}, s{sOF}, s{sB}')


def res_unpack(RU):
    o = []
    for m in range(8):
        o.append(f'v_lshlrev_b32 v{RU+2*m}, 16, v{vXRES+m}')
        o.append(f'v_and_b32 v{RU+2*m+1}, 0xffff0000, v{vXRES+m}')
    return o


def red_finish(final, RB, RU, RA, nm, xb, stb, flb, sc, mid, pre=()):
    for it in pre:
        emit(it)
    a.wait_lg0()
    a.barrier()
    toks = []
    for i in range(12):
        toks.append(a(f'ds_read_b128 {vr(RB+4*i,4)}, v{RA} offset:{i*K}'))
    if final is not True:
        a(f's_add_u32 s{sA}, s{sOX}, {xb}')
        a(f's_add_u32 s{sB}, s{sOS}, {stb}')
        a(f's_add_u32 s{sZW}, s{sOF}, {flb}')
    for r in range(0, 16, 2):
        a(f'v_pk_add_f32 {vr(ACC0+r,2)}, {vr(ACC0+r,2)}, {vr(RU+r,2)}')
    S, Q, t0, t1, tl = RU, RU + 1, RU + 2, RU + 3, RU + 4
    if final is not True:
        a(f'v_mov_b32 v{S}, 0')
        a(f'v_mov_b32 v{Q}, 0')
    for s in range(3):
        a.wait(toks[4 * s + 3])
        for r in range(0, 16, 2):
            a(f'v_pk_add_f32 {vr(ACC0+r,2)}, {vr(ACC0+r,2)}, {vr(RB+16*s+r,2)}')
    for m in range(8):
        a(f'v_cvt_pk_bf16_f32 v{vXRES+m}, v{ACC0+2*m}, v{ACC0+2*m+1}')
    if final is True:
        final_store()
        return
    if final == 'dyn':
        a(f's_cmp_lg_u32 s{sL}, 0')
        a('s_cbranch_scc1 ' + LB_('L_final'))
    a(f'buffer_store_dwordx4 {vr(vXRES,4)}, v{vL16}, {sr(S_DT,4)}, s{sA} offen {sc}')
    a(f'buffer_store_dwordx4 {vr(vXRES+4,4)}, v{vL16}, {sr(S_DT,4)}, s{sA} offen offset:1024 {sc}')
    for m in range(8):
        a(f'v_dot2c_f32_bf16 v{S}, s{sONES}, v{vXRES+m}')
        a(f'v_dot2c_f32_bf16 v{Q}, v{vXRES+m}, v{vXRES+m}')
    a(f'v_mov_b32 v{t0}, v{S}')
    a(f'v_mov_b32 v{t1}, v{Q}')
    a(f'v_permlane32_swap_b32 v{S}, v{t0}')
    a(f'v_permlane32_swap_b32 v{Q}, v{t1}')
    a(f'v_pk_add_f32 {vr(S,2)}, {vr(S,2)}, {vr(t0,2)}')
    a('s_mov_b32 exec_hi, 0')
    lt = a(f'buffer_store_dwordx2 {vr(S,2)}, v{vL16}, {sr(S_DT,4)}, s{sB} offen {sc}')
    a('s_mov_b64 exec, -1')
    stamp(nm + 'st')
    mid()
    a.wait(lt)
    emit(flag_store(S_LY, f's{sZW}'))


def final_store():
    a(f'v_and_b32 v18, 31, v{vLANE}')
    a(f'v_lshrrev_b32 v19, 5, v{vLANE}')
    a(f'v_mul_u32_u24 v{vROW}, 896, v18')
    a(f'v_lshl_add_u32 v{vROW}, v19, 4, v{vROW}')
    a(f's_mul_i32 s{sA}, s{sOWN}, 28672')
    a(f's_lshl_b32 s{sB}, s{sOFT}, 6')
    a(f's_add_u32 s{sA}, s{sA}, s{sB}')
    a(f'buffer_store_dwordx4 {vr(vXRES,4)}, v{vROW}, {sr(S_OUT,4)}, s{sA} offen {OSC}')
    a(f'buffer_store_dwordx4 {vr(vXRES+4,4)}, v{vROW}, {sr(S_OUT,4)}, s{sA} offen offset:32 {OSC}')


def idle_touch(base, per_wave_bytes, n, t=16):
    if not IDLE:
        return
    a(f's_sub_u32 s{sA}, s{sJ}, 28')
    a(f's_lshl_b32 s{sA}, s{sA}, 2')
    a(f's_add_u32 s{sA}, s{sA}, s{sW}')
    a(f's_mul_i32 s{sA}, s{sA}, {per_wave_bytes}')
    a(f's_add_u32 s{sA}, s{sA}, {base}')
    a(f'v_lshlrev_b32 v{t}, 7, v{vLANE}')
    for i in range(n):
        a(f'buffer_load_dword v{t+1}, v{t}, {sr(S_WS,4)}, s{sA} offen sc1')
        a(f's_add_u32 s{sA}, s{sA}, 8192')


def p2_setup():
    dma_setup(vROW, sW3SRC, 56 * K, LBETA)
    a(f'v_and_b32 v240, 3, v{vLANE}')
    a(f'v_lshlrev_b32 v240, 5, v240')
    a(f'v_bfe_u32 v241, v{vLANE}, 2, 1')
    a(f'v_lshl_add_u32 v240, v241, 9, v240')
    a(f's_lshl_b32 s{sC}, s{sTILE2}, 9')
    a(f's_lshl_b32 s{sA}, s{sW}, 7')
    a(f's_add_u32 s{sC}, s{sC}, s{sA}')
    a(f's_add_u32 s{sC}, s{sC}, {F1Q}')
    a(f's_lshl_b32 s{sE}, s{sOWN}, 15')
    a(f's_lshl_b32 s{sA}, s{sW}, 13')
    a(f's_add_u32 s{sE}, s{sE}, s{sA}')
    a(f's_add_u32 s{sE}, s{sE}, {PQ}')
    a(f's_xor_b32 s{sF}, s{sE}, 0x8000')
    a(f's_add_u32 s{sH}, s{sREP}, s{sW1K}')
    a(f's_add_u32 s{sH}, s{sH}, {F1}')
    a(f's_lshl_b32 s{sD}, s{sW}, 14')


def phase2(L):
    WO, PQR, KVR = 16, 80, 144
    ODS = (240, 160)
    KB = (144, 152, 176, 192)
    tag = f'{L}'
    beta = dma_items(vROW, LBETA, 56, 2)
    if L == 0:
        a(f's_add_u32 s{sI}, s{sW3SRC}, s{sW2K}')
        a(f's_add_u32 s{sG}, s{sREP}, s{sW1K}')
        al = []
        for r in range(7):
            al.append([f's_add_u32 m0, s{sW2K}, {LALPHA + r*8*K}', f's_add_u32 s85, s{sI}, {r*8*K}',
                       f'buffer_load_dwordx4 v{vL16}, {sr(S_WS,4)}, s85 offen sc1 lds'])
            al.append([f'buffer_load_dwordx4 v{vL16}, {sr(S_WS,4)}, s85 offen offset:1024 sc1 lds'])
        beta = al + beta
    a(f's_cmp_ge_u32 s{sJ}, 28')
    with cold('s_cbranch_scc1', back=LB_('L_p2skip' + tag)):
        if L == 0:
            poll(S_WS, vL16, f's{sG}', nonzero=True, sleep=2)
            a.barrier()
        for it in beta:
            emit(it)
        if L == 0:
            idle_touch(WDR, 7 * WDS // 16, IDN)
        elif L == 1:
            idle_touch(W3R + 112 * K, W3S, IDN)
        p3_setup(L)
        a.wait_vm0()
    with cond():
        poll(S_LY, 240, f's{sC}')
        stamp('p2pq')
        pt = {}
        for aa, s in ((1, sF), (0, sE)):
            for hl in range(4):
                for ks in range(2):
                    pt[hl, aa] = a(f'buffer_load_dwordx4 {vr(PQR+16*hl+8*aa+4*ks,4)}, v{vL16}, {sr(S_DT,4)}, s{s} offen offset:{(hl%2)*2048+ks*K} sc1')
                if hl == 1:
                    a(f's_add_u32 s{s}, s{s}, 4096')
                if aa == 1 and hl == 1:
                    fchk = a(f'buffer_load_dword v253, v{vL16}, {sr(S_LY,4)}, s{sH} offen sc1')
                if aa == 0 and hl == PQSPLIT:
                    break
        a.wait(fchk)
        check_or_poll(253, S_LY, vL16, f's{sH}', sleep=0)
        stamp('p2poll')
        kt = {}
        lq = []

        def kvl(hl, q):
            kt[hl] = a(f'buffer_load_dwordx4 {vr(KVR+16*hl+4*q,4)}, v{vL16}, {sr(S_LY,4)}, s{sD} offen offset:{q*K} sc1')
            if q == 3:
                a(f's_add_u32 s{sD}, s{sD}, 4096')

        def pql(hl, ks):
            pt[hl, 0] = a(f'buffer_load_dwordx4 {vr(PQR+16*hl+4*ks,4)}, v{vL16}, {sr(S_DT,4)}, s{sE} offen offset:{(hl%2)*2048+ks*K} sc1')
            if hl == 1 and ks == 1:
                a(f's_add_u32 s{sE}, s{sE}, 4096')
        if L == 0:
            bchk = a(f'buffer_load_dword v253, v{vL16}, {sr(S_WS,4)}, s{sG} offen sc1')
        for hl in range(4):
            for q in range(4):
                kvl(hl, q)
        if L == 0:
            a.wait(bchk)
            check_or_poll(253, S_WS, vL16, f's{sG}', nonzero=True, sleep=0)
            a.barrier()
        for hl in range(PQSPLIT + 1, 4):
            for ks in range(2):
                lq.append(lambda h_=hl, k_=ks: pql(h_, k_))
        wot = {}
        cw = []
        if CARRY:
            a(f's_and_b32 s{sA}, s{sW1K}, 0x400')
            a(f's_add_u32 s80, s{sWOSRC}, s{sA}')
            a(f's_xor_b32 s{sA}, s{sA}, 0x400')
            a(f's_add_u32 s81, s{sWOSRC}, s{sA}')
        ncw = 0
        for it in CARRY:
            m_ = re.match(r'buffer_load_dwordx4 ([va])\[(\d+):', it[-1])
            assert m_
            if m_.group(1) == 'v':
                k_ = (int(m_.group(2)) - 16) // 4

                def f(k_=k_):
                    a(f's_add_u32 s78, s{80 + k_ % 2}, {(k_ // 2) * 2048}')
                    wot[k_ // 4] = a(f'buffer_load_dwordx4 {vr(16+4*k_,4)}, v{vL16}, {sr(S_WS,4)}, s78 offen sc1')
                cw.append(f)
            else:
                ncw += 1
        CARRY[:] = []
        for f in cw[:CWN]:
            f()
        beta = cw[CWN:] + lq + beta
        wd2 = []
        if L != 1:
            a(f's_and_b32 s{sA}, s{sW1K}, 0x400')
            a(f's_add_u32 s76, s{sWDSRC}, s{sA}')
            a(f's_xor_b32 s{sA}, s{sA}, 0x400')
            a(f's_add_u32 s77, s{sWDSRC}, s{sA}')
            for k_ in range(WDP1 - ncw, WDP1 + WDP2):
                n_, b = k_ // 2, k_ % 2
                wd2.append([f's_add_u32 s78, s{76+b}, {n_*2048}',
                            f'buffer_load_dwordx4 {ar(8*n_+4*b,4)}, v{vL16}, {sr(S_WS,4)}, s78 offen sc1'])

        def cvt(hl):
            return [f'v_cvt_pk_bf16_f32 v{KB[hl]+m}, v{KVR+16*hl+2*m}, v{KVR+16*hl+2*m+1}' for m in range(8)]
        units = [(hl, aa) for aa in (1, 0) for hl in range(4)]

        def oM(u):
            hl, aa = units[u]
            D = vr(ODS[u % 2], 16)
            P = PQR + 16 * hl + 8 * aa
            return [f'{MF} {D}, {vr(KB[hl],4)}, {vr(P,4)}, 0',
                    f'{MF} {D}, {vr(KB[hl]+4,4)}, {vr(P+4,4)}, {D}']

        def scale(u):
            hl, aa = units[u]
            D = ODS[u % 2]
            P = PQR + 16 * hl + 8 * aa
            o = [f'v_add_f32 v{D+14}, s{sEPS6}, v{D+14}',
                 f'v_rcp_f32 v{D+14}, v{D+14}']
            for m in range(7):
                o.append(f'v_mul_f32 v{D+2*m}, v{D+2*m}, v{D+14}')
                o.append(f'v_mul_f32 v{D+2*m+1}, v{D+2*m+1}, v{D+14}')
                o.append(f'v_cvt_pk_bf16_f32 v{P+m}, v{D+2*m}, v{D+2*m+1}')
            return o

        def woM(u, bs):
            hl, aa = units[u]
            P = PQR + 16 * hl + 8 * aa
            o = []
            for b in bs:
                for ks in range(2):
                    D = accs(2 * aa + b)
                    c = '0' if (hl == 0 and ks == 0) else D
                    o.append(f'{MF} {D}, {vr(WO+16*hl+8*ks+4*b,4)}, {vr(P+4*ks,4)}, {c}')
            return o
        RU, RA = 160, 184
        a.wait(kt[0])
        emit(cvt(0))
        emit(oM(0))
        a.wait(kt[1])
        emit(cvt(1))
        m1 = oM(1)
        vs = scale(0)
        a(m1[0]); shadow([], vs)
        a(m1[1]); emit(vs)
        wr = []
        for u in range(9):
            if u < 4:
                ms = woM(u, (0, 1))
            elif u < 8:
                ms = woM(u, (1,)) + (woM(u - 2, (0,)) if u >= 6 else [])
            else:
                ms = woM(6, (0,)) + woM(7, (0,))
            vs = scale(u + 1) if u + 1 < 8 else []
            if u < 4:
                while any(getattr(x, '__name__', '') == 'f' and x.__defaults__[0] // 4 <= u for x in beta):
                    beta.pop(0)()
                a.wait(wot.get(u))
            if u < 2:
                a.wait(kt[u + 2])
                vs = cvt(u + 2) + vs
            if u == 2:
                vs = vs + red_setup(LB, RA)[:8]
            if u == 3:
                vs = vs + red_setup(LB, RA)[8:]
            if u == 4:
                wr = red_write(2, RA) + red_write(3, RA)
            if u == 7:
                vs = res_unpack(RU)
            if u == 8:
                wr = wr + red_write(1, RA)
            if u + 2 < 8:
                ms = ms[:2] + ['W'] + oM(u + 2) + ms[2:]
            k_ = 0
            for m in ms:
                if m == 'W':
                    a.wait(pt[units[u + 2]])
                    if u < 2:
                        while any(x in vs for x in cvt(u + 2)):
                            a(vs.pop(0))
                    continue
                a(m)
                mem = []
                if beta and k_ % 2 == 0:
                    mem.append(beta.pop(0))
                elif wd2 and k_ % 2 == 0:
                    mem.append(wd2.pop(0))
                if wr and (k_ % 2 == 1 or u == 8) and not (u in (4, 8) and k_ == 0):
                    mem.append(wr[:1]); wr = wr[1:]
                shadow(mem, vs)
                k_ += 1
            emit(vs)
        wd2 = beta + wd2 + (code_touch(188, 189) if CT >= 2 else [])
        stamp('p2mfma')
        emit(wr)
        sc = LS()
        red_finish(False, 80, RU, RA, 'p2', X1, ST1, F2, sc, lambda: p3_setup(L), pre=wd2)
    a.label(LB_('L_p2skip' + tag))
    stamp('p2end')


p3D1, p3D3, p3SA, p3SB = 228, 229, 240, 241
p3D2 = 243
p3FL, p3HA, p3HB, p3FV = 244, 245, 246, 247


def p3_setup(L):
    vFL, vHA, vHB = p3FL, p3HA, p3HB
    x_prep(F2, X1, ST1)
    dma_setup(p3D3, sW3SRC, 112 * K, LB)
    dma_setup(p3D1, sW3SRC, 147 * K, LALPHA)
    if L is None:
        a(f's_cmp_lg_u32 s{sL}, 0')
        a(f's_cselect_b32 s{sA}, {OOB:#x}, s{sW1SRC}')
        a(f'v_add_u32 v{p3D2}, s{sA}, v{vL16}')
    elif L == 0:
        a(f'v_add_u32 v{p3D2}, s{sW1SRC}, v{vL16}')
    a(f's_mul_i32 s{sG}, s{sTILE1}, {112*K}')
    a(f's_mul_i32 s{sA}, s{sHC}, {7*K}')
    a(f's_add_u32 s{sG}, s{sG}, s{sA}')
    a(f's_add_u32 s{sG}, s{sG}, {HB}')
    a(f's_add_u32 s{sH}, s{sG}, 4096')
    a(f's_lshl_b32 s{sU}, s{sTILE1}, 9')
    a(f's_lshl_b32 s{sA}, s{sHC}, 2')
    a(f's_add_u32 s{sU}, s{sU}, s{sA}')
    a(f's_add_u32 s{sU}, s{sU}, {F3}')


def p4_addr():
    vFL, vHA, vHB = p3FL, p3HA, p3HB
    return [f'v_and_b32 v{vFL}, 3, v{vLANE}',
            f'v_lshlrev_b32 v{vFL}, 2, v{vFL}',
            f'v_bfe_u32 v{vHA}, v{vLANE}, 2, 1',
            f'v_lshl_add_u32 v{vFL}, v{vHA}, 9, v{vFL}',
            f's_lshl_b32 s{sA}, s{sTILE2}, 9',
            f's_lshl_b32 s{sB}, s{sW}, 4',
            f's_add_u32 s{sA}, s{sA}, s{sB}',
            f's_add_u32 s85, s{sA}, {F3}',
            f'v_add_u32 v{vFL}, s85, v{vFL}',
            f's_mul_i32 s{sB}, s{sW}, {28*K}',
            f's_add_u32 s{sB}, s{sB}, {HB}',
            f's_mul_i32 s{sA}, s{sOWN}, {112*K}',
            f's_add_u32 s{sA}, s{sA}, s{sB}',
            f'v_add_u32 v{vHA}, s{sA}, v{vL16}',
            f's_xor_b32 s{sA}, s{sOWN}, 1',
            f's_mul_i32 s{sA}, s{sA}, {112*K}',
            f's_add_u32 s{sA}, s{sA}, s{sB}',
            f'v_add_u32 v{vHB}, s{sA}, v{vL16}']


def phase34(L):
    ACC = 128
    WR, NW = 192, 8
    SB = 176
    XAUG = 224
    vD1, vD3, vSA, vSB, vD2 = p3D1, p3D3, p3SA, p3SB, p3D2
    vFL, vHA, vHB, vFV = p3FL, p3HA, p3HB, p3FV
    vFV2 = 242
    PRE = XPRE
    HR, NH = 16, 28
    tag = f'{L}'
    LOOK = 6
    NG = 3 if G3 else 2
    steps = [(t, ks) for ks in range(29) for t in range(NG)]
    for t in range(NG, 7):
        steps += [(t, ks) for ks in range(29)]

    def addr(t, ks):
        if G3 and t < 3:
            p = 3 * ks + t
            return LALPHA + p * K if p < 56 else LBETA + (p - 56) * K
        if ks == 28 and t < 3:
            return LBETA + t * K
        if t < 2:
            return LALPHA + (2 * ks + t) * K
        if t == 2:
            return LBETA + (3 + ks) * K
        if t == 3:
            return LBETA + (31 + ks) * K
        if t == 4:
            return LB + (4 + ks) * K
        if t == 5:
            return LALPHA + ks * K
        return LALPHA + (29 + ks) * K if ks < 27 else LB + (33 + ks - 27) * K
    n = len(steps)
    accof = {0: 0, 1: 1, 2: 2, 3: 3, 4: 0, 5: 1, 6: 2}
    rt, xt, hst, ht, chk = {}, {}, {}, {}, {}

    def hsc(t):
        return LS() if (L == 1 and t >= HPL) else 'sc1'

    def epi(t, D=None, Sx=None):
        Sx = ACC + 16 * accof[t] if Sx is None else Sx
        D = Sx if D is None else D
        o = []
        for r in range(8):
            o.append(f'v_mul_f32 v{D+r}, v{Sx+r}, v{vC2}')
        for r in range(8):
            o.append(f'v_exp_f32_e64 v{D+r}, -v{D+r}')
            if r >= 2:
                o.append(f'v_fma_f32 v{D+r-2}, v{D+r-2}, v{vISTD}, v{vISTD}')
        for r in (6, 7):
            o.append(f'v_fma_f32 v{D+r}, v{D+r}, v{vISTD}, v{vISTD}')
        for r in range(8):
            o.append(f'v_rcp_f32 v{D+r}, v{D+r}')
            if r >= 2:
                o.append(f'v_mul_f32 v{D+r-2}, v{D+r-2}, v{Sx+8+r-2}')
        for r in (6, 7):
            o.append(f'v_mul_f32 v{D+r}, v{D+r}, v{Sx+8+r}')
        for m in range(4):
            o.append(f'v_cvt_pk_bf16_f32 v{D+8+m}, v{D+2*m}, v{D+2*m+1}')
        s = sG if t < 4 else sH
        o.append(f'buffer_store_dwordx4 {vr(D+8,4)}, v{vL16}, {sr(S_DT,4)}, s{s} offen offset:{(t%4)*K} {hsc(t)} ; H{t}')
        return o

    def issue_rd(i):
        if i >= n:
            return
        t, ks = steps[i]
        d = WR + 4 * (i % NW)
        rt[i] = read_frag(d, addr(t, ks)) if ks < 28 else read_aug(d, addr(t, ks), 251 + (i % 3))

    def flag_ld(stg):
        if stg == 0 or not FAST():
            chk[stg] = a(f'buffer_load_dword v{vFV}, v{vFL}, {sr(S_LY,4)}, 0 offen offset:{64*stg} sc1')
        else:
            a(f's_buffer_load_dwordx4 s[76:79], {sr(S_LY,4)}, s85 offset:{64*stg}')
            a(f's_buffer_load_dwordx4 s[80:83], {sr(S_LY,4)}, s85 offset:{64*stg+512}')

    def flag_chk(stg):
        if FAST():
            a('s_waitcnt lgkmcnt(0)')
            a('s_and_b64 s[76:77], s[76:77], s[78:79]')
            a('s_and_b64 s[80:81], s[80:81], s[82:83]')
            a('s_and_b64 s[76:77], s[76:77], s[80:81]')
            a('s_and_b32 s76, s76, s77')
        else:
            a.wait(chk[stg])
            a(f'v_cmp_ne_u32 vcc, 1, v{vFV}')
            a('s_cmp_eq_u64 vcc, 0')
        assert 6 in hst
        with cold('s_cbranch_scc0'):
            a.wait_vm0()
            emit(flag_store(S_LY, f's{sU}', imm=128))
            emit(flag_store(S_LY, f's{sU}', imm=192))
            poll(S_LY, vFL, 0, imm=64 * stg)

    CHK = {24: 1, 40: 2, 48: 3}

    def hld(idx, chkflags=True):
        if idx >= 56:
            return
        if chkflags and idx + 4 in CHK:
            flag_ld(CHK[idx + 4])
        if chkflags and idx in CHK:
            flag_chk(CHK[idx])
        n_, aa = idx // 2, idx % 2
        t, cc = n_ // 4, n_ % 4
        if aa == 0:
            a(f's_mov_b32 s{sE}, {(cc*7+t)*K}')
        ht[idx] = a(f'buffer_load_dwordx4 {vr(HR+4*(idx%NH),4)}, v{(vHA,vHB)[aa]}, {sr(S_DT,4)}, s{sE} offen sc1')

    a.wait_lg0()
    if BEARLY:
        a.barrier()
        for i in range(LOOK):
            issue_rd(i)
    poll(S_LY, 240, f's{sC}')
    stamp('p3poll')
    for ks in range(4):
        xt[ks] = x_load(ks)
    if not BEARLY:
        a.barrier()
        for i in range(LOOK):
            issue_rd(i)
    for ks in range(4, PRE):
        xt[ks] = x_load(ks)
    fill, owner = [], []
    done_at = {}
    wd = [] if L == 1 else wfrag_items(lambda n_, b: ar(8 * n_ + 4 * b, 4), sWDSRC, (WDP1 + WDP2) // 2, 28, vSA, vSB, sF)
    ft = [[f'v_and_b32 v233, 0x80, v{vL4}', f'buffer_load_dword v233, v233, {sr(S_LY,4)}, s{sU} offen sc1']] if FT else []
    if HT and FAST() and (L == 1 or HT > 1):
        ft += [[f'v_min_u32 v234, 55, v{vLANE}', f'v_lshlrev_b32 v234, 7, v234', f'buffer_load_dword v234, v234, {sr(S_DT,4)}, s{sG} offen sc1']]
    bg = dma_items(vD3, LB, 36, 1) + ['M3'] + ft + wd[:WDP3]
    wd4 = wd[WDP3:]
    assert len(wd4) <= 16
    marks = {}
    cur = [0]

    def pop():
        x = fill.pop(0); o = owner.pop(0)
        t = a(x)
        if '; H' in x:
            hst[o] = (t, cur[0])

    def pub(stg, last_tile):
        a.wait(hst[last_tile][0])
        emit(flag_store(S_LY, f's{sU}', imm=64 * stg))

    def xl(ks):
        xt[ks] = x_load(ks)

    def next_bg():
        while bg and isinstance(bg[0], str):
            marks[bg.pop(0)] = mark()
        return bg.pop(0) if bg else None
    pubs = [(0, 2), (1, 4)]
    for i, (t, ks) in enumerate(steps):
        cur[0] = i
        if i == (45 if G3 else 34):
            a.wait(chk['st'])
            s_ = [f's_and_b32 s{sA}, s{sW1K}, 0x400', f'v_add_u32 v{vSA}, s{sA}, v{vL16}', f'v_xor_b32 v{vSB}, 0x400, v{vSA}'] + \
                stats_sum(SB) + stats_finish(XAUG, SB) + p4_addr()
            fill += s_; owner += [-1] * len(s_)
        stamp(f'i{i}', fine=True) if i in (1, 30, 57, 87, 116, 145, 174) else None
        if i % 2 == 0:
            a.wait(rt[min(i + 1, n - 1)], xt.get(steps[min(i + 1, n - 1)][1]), xt.get(ks))
        if i == 56:
            a.barrier()
            k3 = bg.index('M3') + 1 if 'M3' in bg else 0
            bg = bg[:k3] + dma_items(vD1, LALPHA, 56, 2) + ['M4'] + code_touch(232, 233) + bg[k3:]
        if i + LOOK == 112:
            a.wait(marks['M3'])
            a.barrier()
        if i + LOOK == 145:
            a.wait(marks['M4'])
            a.barrier()
            bg = code_touch(232, 233) + bg
        D = vr(ACC + 16 * accof[t], 16)
        if ks == 0 and t >= 4:
            assert (t - 4) not in owner
        if ks == 28:
            assert -1 not in owner
        X = vr(16 + 4 * ks, 4) if ks < 28 else vr(XAUG, 4)
        a(f'{MF} {D}, {vr(WR+4*(i%NW),4)}, {X}, {"0" if ks == 0 else D}')
        if ks == 28:
            done_at[t] = i
        for tt, di in list(done_at.items()):
            if i >= di + 2:
                e = epi(tt)
                fill += e; owner += [tt] * len(e)
                del done_at[tt]
        pre = main = None
        if t == 0 and ks + PRE < 28:
            main = (lambda k_=ks + PRE: xl(k_))
        elif t == NG - 1 and ks < 8 and ks % 2 == 0:
            main = (lambda k_=ks // 2: chk.__setitem__('st', st_load(k_, SB)))
        elif G3 and t == 2 and ks + PRE < 28 and ks % 2 == 0 and 'M3' not in marks:
            pre, main = split_item(next_bg())
        elif t == 6:
            if ks % 2 == 1:
                main = (lambda k_=ks // 2: hld(k_))
        elif i == 173:
            main = lambda: flag_ld(0)
        elif i % 2 == 0 and i >= NG * (28 - PRE):
            pre, main = split_item(next_bg())
        extra = None
        if fill and '; H' in fill[0]:
            extra = pop
        elif pubs and pubs[0][1] in hst and i >= hst[pubs[0][1]][1] + PUBD and i % 2 == 1:
            extra = (lambda p=pubs.pop(0): pub(*p))
        n0 = len(a.ins)
        for f in (pre, lambda: issue_rd(i + LOOK), main, extra):
            if f is None:
                continue
            f() if callable(f) else emit(f)
        budget = CAP3 - (len(a.ins) - n0) - (i % 2)
        while fill and '; H' not in fill[0] and budget >= cost(fill[0]):
            budget -= cost(fill[0])
            pop()
    assert not pubs and next_bg() is None, len(bg)
    print('P3: h stores at steps', {t: v[1] for t, v in hst.items()}, 'left', len(fill))
    assert not fill and 5 in hst
    stamp('p3mfma')

    RU, RA = 192, 128
    w1 = [] if L == 1 else dma_items(vD2, 0, 88, 2)
    nxt = (lambda: p1_setup(False)) if L != 1 else (lambda: None)
    a(f's_cmp_ge_u32 s{sJ}, 28')
    with cold('s_cbranch_scc1', back=LB_('L_p4skip' + tag)):
        emit(epi(6))
        pub(2, 5)
        a.barrier()
        a.wait_vm0()
        emit(flag_store(S_LY, f's{sU}', imm=192))
        if L == 0:
            idle_touch(W1R, W1S, 11)
        if L == 1 and WB:
            a('buffer_wbl2 sc1')
        for it in w1:
            emit(it)
        nxt()
    with cond():
        a.wait(chk[0])
        a(f'v_cmp_ne_u32 vcc, 1, v{vFV}')
        a('s_cmp_eq_u64 vcc, 0')
        saved = dict(ht)
        with cold('s_cbranch_scc0'):
            emit(epi(6, D=ACC + 48))
            a.wait_vm0()
            emit(flag_store(S_LY, f's{sU}', imm=128))
            emit(flag_store(S_LY, f's{sU}', imm=192))
            poll(S_LY, vFL, 0, imm=0)
            for idx in range(14):
                hld(idx, False)
            a.wait_vm0()
        ht.update(saved)
        fill = epi(6)
        owner = [6] * len(fill)
        later = red_setup(LALPHA, RA) + res_unpack(RU)
        TAIL = 8
        nld = [14]
        todo = ['pub2', 'pub3']
        wt = {}

        def mf(n_, s):
            aa, b = s >> 1, s & 1
            D = accs(s)
            a(f'{MF} {D}, {ar(8*n_+4*b,4)}, {vr(HR+4*((2*n_+aa)%NH),4)}, {"0" if n_ == 0 else D}')

        def sh(step, load):
            cur[0] = step
            n0 = len(a.ins)
            if load:
                if nld[0] < 56:
                    hld(nld[0]); nld[0] += 1
                elif w1:
                    emit(w1.pop(0))
            elif todo and todo[0] == 'pub2' and step >= 13:
                pub(2, 5); todo.pop(0)
            elif todo and todo[0] == 'pub3' and 6 in hst and step >= hst[6][1] + PUBD2:
                pub(3, 6); todo.pop(0)
                fill.extend(later); owner.extend([-2] * len(later))
            elif wd4:
                wt[0] = emit(wd4.pop(0))
            if step >= 1:
                if fill and '; H' in fill[0]:
                    pop()
                budget = CAP - (len(a.ins) - n0)
                while fill and '; H' not in fill[0] and budget >= cost(fill[0]):
                    budget -= cost(fill[0])
                    pop()
        for n_ in range(28 - TAIL):
            if n_ == P4B:
                a.barrier()
            stamp(f'n{n_}') if ('p4prof' in OPT and n_ in (2, 4, 8, 13, 15, 17)) else None
            a.wait(ht[2 * n_])
            mf(n_, 0); sh(4 * n_, True)
            mf(n_, 1); sh(4 * n_ + 1, False)
            a.wait(ht[2 * n_ + 1])
            mf(n_, 2); sh(4 * n_ + 2, True)
            mf(n_, 3); sh(4 * n_ + 3, 10 <= n_ < 16)
        assert nld[0] == 56 and not fill and not todo and not wd4
        stamp('n20') if 'p4prof' in OPT else None
        a.wait(wt.get(0))
        pend = []
        for s in (3, 2, 1, 0):
            for k_, n_ in enumerate(range(28 - TAIL, 28)):
                a.wait(ht[2 * n_ + 1])
                mf(n_, s)
                if k_ % 2 == 1 and pend:
                    emit(pend[:1]); pend = pend[1:]
                elif w1 and k_ % 2 == 0 and len(w1) > W1KEEP:
                    emit(w1.pop(0))
            if s > 0:
                pend = red_write(s, RA)
        stamp('p4mfma')

        def mid():
            for it in w1:
                emit(it)
            nxt()
        final = {0: False, 1: True, None: 'dyn'}[L]
        xb, stb = (X1, ST1) if FAST() else (X0 + LYB, ST0 + LYB)
        pre4 = w1[:len(w1) // 4 * 2]; w1 = w1[len(pre4):]
        pre4 = pre4 + (code_touch(140, 141) if CT >= 2 and L != 1 else [])
        red_finish(final, 16, RU, RA, 'p4', xb, stb, F0 + LYB, LS(), mid, pre=pre4)
    a.label(LB_('L_p4skip' + tag))
    if L != 1:
        stamp('p4end')


def restore(ctx):
    a.vm_issued, a.vm_done, a.lg_issued, a.lg_done = ctx['state']
    ctx['qt'].clear(); ctx['qt'].update(ctx['qt0'])


def build():
    prologue()
    init_phase()
    MODE.update(sc='', sfx='')
    ctx = phase1_kv(True)
    phase1_q(ctx, True)
    phase2(0)
    phase34(0)
    c2 = phase1_kv(False)
    phase1_q(c2, False)
    phase2(1)
    phase34(1)
    a.label('L_done')
    if PROFILE:
        stamp('end')
        a(f's_lshl_b32 s{sA}, s2, 2')
        a(f's_add_u32 s{sA}, s{sA}, s{sW}')
        a(f's_lshl_b32 s{sA}, s{sA}, 8')
        a(f's_add_u32 s{sA}, s{sA}, {PROF}')
        a(f'buffer_store_dword v{vPROF}, v{vL4}, {sr(S_WS,4)}, s{sA} offen')
        if 'probe' in OPT:
            k0, k1 = [int(x) for x in OPT['probe'].split(',')]
            ne = len(STAMPS) - 1
            a(f'v_readlane_b32 s{sA}, v{vPROF}, {k0}')
            a(f'v_readlane_b32 s{sB}, v{vPROF}, {k1}')
            a(f'v_readlane_b32 s{sC}, v{vPROF}, {ne}')
            a('s_cmp_ge_u32 s2, 224')
            a('s_cbranch_scc1 L_end')
            a(f's_sub_u32 s{sA}, s{sB}, s{sA}')
            a(f's_min_u32 s{sA}, s{sA}, 10000')
            a.label('L_spin')
            a('s_sleep 1')
            a(f's_memrealtime {sr(sP0,2)}')
            a('s_waitcnt lgkmcnt(0)')
            a(f's_sub_u32 s{sD}, s{sP0}, s{sC}')
            a(f's_cmp_lt_u32 s{sD}, s{sA}')
            a('s_cbranch_scc1 L_spin')
        if 'dbgout' in OPT:
            a(f's_lshl_b32 s{sA}, s2, 2')
            a(f's_add_u32 s{sA}, s{sA}, s{sW}')
            a(f's_cmp_lg_u32 s{sA}, {77*4+1}')
            a('s_cbranch_scc1 L_end')
            a(f'v_readfirstlane_b32 s{sA}, v{vPROF}')
            a(f'v_subrev_u32 v{vPROF}, s{sA}, v{vPROF}')
            a(f'v_lshlrev_b32 v20, 1, v{vLANE}')
            a(f'v_subrev_u32 v20, {2*int(OPT["dbgout"])}, v20')
            a(f'buffer_store_short v{vPROF}, v20, {sr(S_DBG,4)}, 0 offen sc1')
    a.label('L_end')
    a('s_endpgm')
    a.flush_cold()
    a.label('L_codeend')
    keep = list(STAMPS)
    a.label('L_slow')
    MODE.update(sc='sc1', sfx='_s')
    restore(ctx)
    a('s_nop 7')
    phase1_q(ctx, True)
    a.label('L_layer_s')
    a('s_nop 7')
    phase2(None)
    phase34(None)
    a(f's_cmp_lg_u32 s{sL}, 0')
    a('s_cbranch_scc1 L_done')
    a(f's_mov_b32 s{sL}, 1')
    c2 = phase1_kv(False)
    phase1_q(c2, False)
    a('s_branch L_layer_s')
    a.label('L_final_s')
    final_store()
    a('s_branch L_done')
    a.flush_cold()
    STAMPS[:] = keep


build()
hdr = open('cdna_kernels/' + NAME + '.s.ref').read().split('; Override launch')[0]
out = hdr + f"""; @launch grid=(256,1,1) block=(256,1,1) lds={LDS_BYTES}
.amdgcn_target "amdgcn-amd-amdhsa--gfx950"
.text
.globl {NAME}_kernel
.p2align 8
.type {NAME}_kernel,@function
{NAME}_kernel:
{a.text()}
.section .rodata,"a"
.p2align 6
.amdhsa_kernel {NAME}_kernel
  .amdhsa_next_free_vgpr 512
  .amdhsa_next_free_sgpr 102
  .amdhsa_accum_offset 256
  .amdhsa_group_segment_fixed_size 0
  .amdhsa_kernarg_size 80
  .amdhsa_user_sgpr_count 2
  .amdhsa_user_sgpr_kernarg_segment_ptr 1
  .amdhsa_system_sgpr_workgroup_id_x 1
  .amdhsa_float_denorm_mode_32 3
.end_amdhsa_kernel
"""
outfn = [x for x in sys.argv[1:] if not x.startswith('--')][0]
open(outfn, 'w').write(out)
open(outfn + '.names', 'w').write(','.join(STAMPS))
print('instructions', len(a.ins), 'nops added', a.nops_added)
```

```python
import sys
import contextlib
import re
from asmlib import Asm, vr, ar, sr

NAME = "interleave_layers__linear_attn_block__glu_gated_glu__prompt"
OPT = {}
for x in sys.argv[1:]:
    if x.startswith('--'):
        k, _, v = x[2:].partition('=')
        OPT[k] = v if v else True
PROFILE = 'prof' in OPT
FINE = 'fine' in OPT
CLK = 'clk' in OPT
STOP = OPT.get('stop')
FA = 1
SLEEP = int(OPT.get('sleep', 1))
TOUCH = int(OPT.get('touch', 0))
BUD = int(OPT.get('bud', 3))
XPRE = int(OPT.get('xpre', 8))
HPRE = int(OPT.get('hpre', 16))
HSC = int(OPT.get('hsc', 0))
XSC = int(OPT.get('xsc', 0))
TLBW = int(OPT.get('tlbw', 0))
XI = int(OPT.get('xi', 0))
XA = int(OPT.get('xa', 16))
CT = int(OPT.get('ct', 1))
FT = int(OPT.get('ft', 0))
HT = int(OPT.get('ht', 0))
X0N = int(OPT.get('x0n', 7))
IDLE = int(OPT.get('idle', 0))
OSC = OPT.get('osc', '')
PQSC = int(OPT.get('pqsc', 0))
WB = int(OPT.get('wb', 0))
IDN = int(OPT.get('idn', 11))
HPL = int(OPT.get('hpl', 9))
G3 = int(OPT.get('g3', 1))
P4B = int(OPT.get('p4b', 1))
BEARLY = int(OPT.get('bearly', 1))
WDP2 = int(OPT.get('wdp2', 4))
W1KEEP = int(OPT.get('w1keep', 0))
CARRYON = int(OPT.get('carry', 0))
CWN = int(OPT.get('cwn', 4))
EPD = int(OPT.get('epd', 1))
WSC = '' if 'nowsc' in OPT else 'sc1'
STAMPS = []

IB = 0x0
W1R = 0x100000; W1S = 87 * 1024
WOR = 0x280000
W3R = 0x300000; W3S = 203 * 1024
WDR = 0x680000; WDS = 224 * 1024
LYB = 0x1000000
KV = 0x0
F1 = 0x10000
F1Q = 0x18000
F3 = 0x30000
F2 = 0x20000
F0 = 0x28000
ST1 = 0x40000
ST0 = 0x80000
PQ = 0x100000
X1 = 0x300000
X0 = 0x500000
HB = 0x700000
PROF = 0x3000000
WS_BYTES = 256 << 20
OOB = 0x40000000

K = 1024
LBETA, LB, LALPHA = 0, 56 * K, 104 * K
LRS = 87 * K
LKVS = 88 * K
LDS_BYTES = 160 * K

S_WS, S_X, S_WQKV, S_WO, S_WG, S_WU, S_WD, S_OUT, S_DBG = 4, 8, 12, 16, 20, 24, 28, 32, 36
S_T0, S_T1 = 40, 44
S_LY = 40
S_DT = 44
sW, sJ, sHC, sTB, sFB, sL, sTMO, sPI = 48, 49, 50, 51, 52, 53, 54, 55
sTILE1, sTILE2, sOWN, sOFT = 56, 57, 58, 59
sLN2, sEPS6 = 60, 62
sONES = 84
sW1K, sW2K, sW4K = 64, 65, 66
sW1SRC, sW3SRC, sWOSRC, sWDSRC = 67, 68, 69, 70
sRBG, sREP = 71, 72
sG, sH, sI = 73, 74, 75
sA, sB, sC, sD, sE, sF = 86, 87, 88, 89, 90, 91
sP0 = 92
sU = 94
sXID = 95
sZW = 96
sPC = 100

vLANE, vL16, vL16b, vL16c, vROW, vAUG, vL4, vPROF = 0, 1, 2, 3, 4, 5, 6, 7
vXRES = 8
LOG2E = 0x3FB8AA3B
LN2 = 0x3F317218
EPS6 = 0x358637BD
EPS5 = 0x3727C5AC
INV448 = 0x3B124925
MF = 'v_mfma_f32_32x32x16_bf16'

a = Asm()
MODE = {'sc': 'sc1', 'sfx': ''}


def LS():
    return MODE['sc']


def LL():
    return OPT.get('ll', 'sc1').replace('none', '') if MODE['sc'] == '' else 'sc1'


def ALIAS():
    return MODE['sfx'] == '' and 'noalias' not in OPT


def XS():
    return 'sc1' if XSC else LS()


def HS():
    return 'sc1' if HSC else LS()


def LB_(n):
    return n + MODE['sfx']


@contextlib.contextmanager
def cond():
    st = (a.vm_issued, a.vm_done, a.lg_issued, a.lg_done)
    yield
    a.vm_issued, a.vm_done, a.lg_issued, a.lg_done = st


@contextlib.contextmanager
def cold(branch, back=None):
    C = a.uid('Lc'); R = back or a.uid('Lr')
    a(f'{branch} {C}')
    st = (a.vm_issued, a.vm_done, a.lg_issued, a.lg_done)
    a.begin_cold()
    a.label(C)
    a('s_nop 7')
    a('s_nop 3')
    yield
    a('s_nop 4')
    a(f's_branch {R}')
    a.end_cold()
    a.vm_issued, a.vm_done, a.lg_issued, a.lg_done = st
    if back is None:
        a.label(R)


def mark():
    return ('vm', a.vm_issued - 1)


def lds_addr(addr):
    if addr < 65536:
        return vL16, addr
    if addr < 131072:
        return vL16b, addr - 65536
    return vL16c, addr - 131072


def stamp(name, fine=False):
    if not PROFILE or (fine and not FINE):
        return
    STAMPS.append(name)
    a('s_waitcnt lgkmcnt(0)')
    a(f"{'s_memtime' if CLK else 's_memrealtime'} {sr(sP0,2)}")
    a.wait_lg0()
    a(f'v_cmp_eq_u32 vcc, s{sPI}, v{vLANE}')
    a(f'v_mov_b32 v255, s{sP0}')
    a(f'v_cndmask_b32 v{vPROF}, v{vPROF}, v255, vcc')
    a(f's_add_u32 s{sPI}, s{sPI}, 1')


def srd(base, lo, nbytes):
    a(f's_mov_b32 s{base}, s{lo}')
    a(f's_and_b32 s{base+1}, s{lo+1}, 0xffff')
    a(f's_mov_b32 s{base+2}, {nbytes}')
    a(f's_mov_b32 s{base+3}, 0x00020000')


def poll(srdreg, vaddr, soff, imm=0, t=254, sleep=0, nonzero=False):
    L = a.uid('Lpoll'); D = a.uid('Lpd')
    a.label(L)
    if sleep:
        a(f's_sleep {sleep}')
    a(f'buffer_load_dword v{t}, v{vaddr}, {sr(srdreg,4)}, {soff} offen offset:{imm} sc1')
    a(f's_sub_u32 s{sTMO}, s{sTMO}, 1')
    a(f's_max_i32 s{sTMO}, s{sTMO}, 0')
    a(f's_cselect_b64 {sr(sP0,2)}, exec, 0')
    a.wait_vm0()
    a(f'v_cmp_eq_u32 vcc, 0, v{t}' if nonzero else f'v_cmp_ne_u32 vcc, 1, v{t}')
    a(f's_and_b64 exec, {sr(sP0,2)}, vcc')
    a(f's_cbranch_scc1 {L}')
    a('s_mov_b64 exec, -1')


def check_or_poll(v, srdreg, vaddr, soff, imm=0, nonzero=False, sleep=1, t=254):
    a(f'v_cmp_eq_u32 vcc, 0, v{v}' if nonzero else f'v_cmp_ne_u32 vcc, 1, v{v}')
    a('s_cmp_eq_u64 vcc, 0')
    with cold('s_cbranch_scc0'):
        poll(srdreg, vaddr, soff, imm=imm, nonzero=nonzero, sleep=sleep, t=t)


def code_touch(t, d):
    if not CT:
        return []
    return [[f'v_and_b32 v{t}, 3, v{vLANE}',
             f'v_lshlrev_b32 v{t}, 7, v{t}',
             f'global_load_dword v{d}, v{t}, {sr(sPC,2)}']]


def flag_store(srdreg, soff, imm=0, t=254, sc=None):
    sc = LS() if sc is None else sc
    return [f'v_mov_b32 v{t}, 1',
            's_mov_b64 exec, 1',
            f'buffer_store_dword v{t}, off, {sr(srdreg,4)}, {soff} offset:{imm} {sc}',
            's_mov_b64 exec, -1']


def emit(lst):
    t = None
    for x in lst:
        r = a(x)
        t = r if r is not None else t
    return t


def dma_items(vD, lds_base, nfrag, c):
    assert nfrag % (4 * c) == 0
    sWc = {1: sW1K, 2: sW2K, 4: sW4K}[c]
    items = []
    for r in range(nfrag // (4 * c)):
        for i in range(c):
            it = []
            if i == 0:
                it.append(f's_add_u32 m0, s{sWc}, {lds_base + r*4*c*K}')
            it.append(f'buffer_load_dwordx4 v{vD}, {sr(S_WS,4)}, m0 offen offset:{i*K} {WSC} lds')
            items.append(it)
    return items


def dma_setup(vD, ssrc, src_const, lds_base):
    a(f's_add_u32 s{sA}, s{ssrc}, {src_const - lds_base & 0xffffffff:#x}')
    a(f'v_add_u32 v{vD}, s{sA}, v{vL16}')


def prologue():
    a('s_cmp_ge_u32 s2, 256')
    a('s_cbranch_scc1 L_end')
    a('s_load_dwordx16 s[64:79], s[0:1], 0')
    a('s_load_dwordx4 s[80:83], s[0:1], 64')
    a(f's_getpc_b64 {sr(sPC,2)}')
    a.label('L_pc')
    a('s_lshr_b32 s3, s2, 3')
    a('s_lshl_b32 s3, s3, 11')
    a('s_min_u32 s3, s3, (L_codeend - L_pc - 2048)')
    a(f's_add_u32 s{sPC}, s{sPC}, s3')
    a(f's_addc_u32 s{sPC+1}, s{sPC+1}, 0')
    a('v_min_u32 v16, 15, v0')
    a('v_lshlrev_b32 v16, 7, v16')
    a(f'global_load_dword v17, v16, {sr(sPC,2)}')
    a(f'v_lshrrev_b32 v18, 6, v0')
    a(f'v_and_b32 v{vLANE}, 63, v0')
    a(f'v_readfirstlane_b32 s{sW}, v18')
    a(f'v_lshlrev_b32 v{vL16}, 4, v{vLANE}')
    a(f'v_add_u32 v{vL16b}, 0x10000, v{vL16}')
    a(f'v_add_u32 v{vL16c}, 0x20000, v{vL16}')
    a(f'v_lshlrev_b32 v{vL4}, 2, v{vLANE}')
    a(f'v_and_b32 v18, 31, v{vLANE}')
    a(f'v_lshrrev_b32 v19, 5, v{vLANE}')
    a(f'v_mul_u32_u24 v{vROW}, 896, v18')
    a(f'v_lshl_add_u32 v{vROW}, v19, 4, v{vROW}')
    a(f'v_lshlrev_b32 v{vAUG}, 2, v18')
    a(f'v_lshl_add_u32 v{vAUG}, v19, 9, v{vAUG}')
    a(f'v_mov_b32 v{vPROF}, 0')
    a(f's_mov_b32 s{sPI}, 0')
    a(f's_and_b32 s{sC}, s2, 7')
    a(f's_lshr_b32 s{sJ}, s2, 3')
    a(f's_mul_i32 s{sTB}, s{sJ}, 37')
    a(f's_lshr_b32 s{sTB}, s{sTB}, 8')
    a(f's_mul_i32 s{sFB}, s{sTB}, 7')
    a(f's_sub_u32 s{sFB}, s{sJ}, s{sFB}')
    a(f's_cmp_ge_u32 s{sJ}, 28')
    a(f's_cselect_b32 s{sTB}, s{sFB}, s{sTB}')
    a(f's_mov_b32 s{sL}, 0')
    a(f's_mov_b32 s{sTMO}, 100000')
    a(f's_lshl_b32 s{sTILE2}, s{sC}, 3')
    a(f's_lshl_b32 s{sD}, s{sTB}, 1')
    a(f's_add_u32 s{sTILE2}, s{sTILE2}, s{sD}')
    a(f's_lshr_b32 s{sD}, s{sW}, 1')
    a(f's_add_u32 s{sOWN}, s{sTILE2}, s{sD}')
    a(f's_and_b32 s{sD}, s{sW}, 1')
    a(f's_lshl_b32 s{sOFT}, s{sFB}, 1')
    a(f's_add_u32 s{sOFT}, s{sOFT}, s{sD}')
    lf = {1: 0, 2: 1, 4: 2, 8: 3}[FA]
    nh = 16 // FA
    a(f's_and_b32 s{sD}, s{sC}, {FA-1}')
    a(f's_mul_i32 s{sHC}, s{sD}, {nh}')
    a(f's_and_b32 s{sD}, s{sJ}, {nh-1}')
    a(f's_add_u32 s{sHC}, s{sHC}, s{sD}')
    a(f's_lshr_b32 s{sD}, s{sC}, {lf}')
    a(f's_lshl_b32 s{sE}, s{sD}, {lf+1}')
    a(f's_lshr_b32 s{sD}, s{sJ}, {4-lf}')
    a(f's_add_u32 s{sE}, s{sE}, s{sD}')
    a(f's_lshl_b32 s{sTILE1}, s{sE}, 2')
    a(f's_add_u32 s{sTILE1}, s{sTILE1}, s{sW}')
    a(f's_mov_b32 s{sLN2}, {LN2:#x}')
    a(f's_mov_b32 s{sLN2+1}, {LN2:#x}')
    a(f's_mov_b32 s{sEPS6}, {EPS6:#x}')
    a(f's_mov_b32 s{sEPS6+1}, {EPS6:#x}')
    a(f's_mov_b32 s{sONES}, 0x3f803f80')
    for i in range(4):
        a(f'v_mov_b32 v{216+i}, 0')
    a(f'v_and_b32 v{vRHO}, 31, v{vLANE}')
    a(f'v_lshrrev_b32 v{vHI}, 5, v{vLANE}')
    a(f'v_and_b32 v{vSIG}, 0x13, v{vRHO}')
    a(f'v_and_b32 v{vt0}, 4, v{vRHO}')
    a(f'v_lshl_or_b32 v{vSIG}, v{vt0}, 1, v{vSIG}')
    a(f'v_lshrrev_b32 v{vt0}, 1, v{vRHO}')
    a(f'v_and_or_b32 v{vSIG}, v{vt0}, 4, v{vSIG}')
    a(f'v_lshrrev_b32 v{vR8}, 3, v{vLANE}')
    a(f'v_and_b32 v{vC8}, 7, v{vLANE}')
    a(f'v_lshlrev_b32 v{vC8}, 4, v{vC8}')
    a(f'v_lshrrev_b32 v{vt0}, 4, v{vLANE}')
    a(f'v_lshlrev_b32 v{vt0}, 4, v{vt0}')
    a(f'v_xor_b32 v{vt0}, v{vt0}, v{vC8}')
    a(f'v_mul_u32_u24 v{vt1}, 896, v{vR8}')
    a(f'v_add_u32 v{vXS}, v{vt1}, v{vt0}')
    a(f'v_xor_b32 v{vt0}, 64, v{vt0}')
    a(f'v_add_u32 v{vXS+1}, v{vt1}, v{vt0}')
    a('s_waitcnt lgkmcnt(0)')
    if TLBW:
        a(f'v_lshlrev_b32 v20, 20, v{vLANE}')
        a('v_subrev_u32 v20, 0xa00000, v20')
        a('v_min_u32 v20, 0x2100000, v20')
        a('v_mov_b32 v21, s83')
        a('v_add_co_u32 v20, vcc, s82, v20')
        a('v_addc_co_u32 v21, vcc, 0, v21, vcc')
        for ln, p in enumerate((64, 66, 68, 72, 74, 76, 78, 80)):
            a(f'v_writelane_b32 v20, s{p}, {ln}')
            a(f'v_writelane_b32 v21, s{p+1}, {ln}')
        a('global_load_dword v22, v[20:21], off')
    srd(S_X, 64, 2048 * 448 * 2)
    srd(S_WQKV, 66, 448 * 1344 * 2)
    srd(S_WO, 68, 448 * 448 * 2)
    srd(S_WG, 72, 448 * 1792 * 2)
    srd(S_WU, 74, 448 * 1792 * 2)
    srd(S_WD, 76, 1792 * 448 * 2)
    srd(S_OUT, 78, 2048 * 448 * 2)
    srd(S_DBG, 80, 256)
    srd(S_WS, 82, WS_BYTES)
    a(f's_mov_b32 s{sRBG}, s{sE}')
    a(f's_and_b32 s{sREP}, s2, 3')
    a(f's_lshl_b32 s{sREP}, s{sREP}, 12')
    a(f's_lshl_b32 s{sW1K}, s{sW}, 10')
    a(f's_lshl_b32 s{sW2K}, s{sW}, 11')
    a(f's_lshl_b32 s{sW4K}, s{sW}, 12')
    a(f's_lshl_b32 s{sG}, s{sW}, 9')
    a(f's_add_u32 s{sPC}, s{sPC}, s{sG}')
    a(f's_addc_u32 s{sPC+1}, s{sPC+1}, 0')
    a(f's_lshl_b32 s{sG}, s{sW}, 13')
    a(f's_add_u32 s{sG}, s{sG}, {LSTG}')
    a(f's_getreg_b32 s{sXID}, hwreg(HW_REG_XCC_ID)')
    a(f's_and_b32 s{sXID}, s{sXID}, 15')
    a(f's_add_u32 s{sXID}, s{sXID}, 1')
    stamp('start')


def late_consts():
    a(f's_mul_i32 s{sW1SRC}, s{sHC}, {W1S}')
    a(f's_add_u32 s{sW1SRC}, s{sW1SRC}, {W1R}')
    a(f's_mul_i32 s{sW3SRC}, s{sHC}, {W3S}')
    a(f's_add_u32 s{sW3SRC}, s{sW3SRC}, {W3R}')
    a(f's_lshl_b32 s{sWOSRC}, s{sFB}, 16')
    a(f's_lshl_b32 s{sA}, s{sW}, 14')
    a(f's_add_u32 s{sWOSRC}, s{sWOSRC}, s{sA}')
    a(f's_add_u32 s{sWOSRC}, s{sWOSRC}, {WOR}')
    a(f's_mul_i32 s{sWDSRC}, s{sFB}, {WDS}')
    a(f's_mul_i32 s{sA}, s{sW}, 57344')
    a(f's_add_u32 s{sWDSRC}, s{sWDSRC}, s{sA}')
    a(f's_add_u32 s{sWDSRC}, s{sWDSRC}, {WDR}')
    a(f's_add_u32 s{S_LY}, s{S_WS}, {LYB}')
    a(f's_addc_u32 s{S_LY+1}, s{S_WS+1}, 0')
    a(f's_mov_b32 s{S_LY+2}, {2*LYB}')
    a(f's_mov_b32 s{S_LY+3}, 0x00020000')
    a(f's_mov_b32 s{S_DT}, s{S_LY}')
    a(f's_mov_b32 s{S_DT+1}, s{S_LY+1}')
    a(f's_mov_b32 s{S_DT+2}, {2*LYB}')
    a(f's_mov_b32 s{S_DT+3}, 0x00020000')


UD = 128
UC = 192
vRHO, vHI, vSIG, vR8, vC8 = 204, 205, 206, 207, 212
vt0, vt1, vt2, vt3 = 208, 209, 210, 211
vXS = 214
LSTG = 128 * K
LXS = 0
LCS = 112 * K


PASS = {'p': 'src'}


class Done(Exception):
    pass


def run_setup(fn, *args):
    try:
        fn(*args)
    except Done:
        pass


LSRD = {1: S_WQKV, 2: S_WO, 3: S_WD}


def unit_dma(r, srdreg, vsrc, srow0, srow1):
    if r > 0:
        a(f's_mov_b32 s{74+2*r}, s{srow0}')
        a(f's_mov_b32 s{75+2*r}, s{srow1}')
        a(f'v_mov_b32 v{243+r}, v{vsrc}')
        if srdreg != LSRD[r]:
            for i in range(3):
                a(f's_mov_b32 s{LSRD[r]+i}, s{srdreg+i}')
        return
    if PASS['p'] == 'dst':
        return
    _unit_dma(r, srdreg, vsrc, srow0, srow1)
    raise Done()


def late_dma():
    t = None
    for r in (1, 2, 3):
        for h in range(2):
            a(f's_add_u32 m0, s82, {r*2048 + h*1024}')
            t = a(f'buffer_load_dwordx4 v{243+r}, {sr(LSRD[r],4)}, s{74+2*r+h} offen lds')
    return t


def _unit_dma(r, srdreg, vsrc, srow0, srow1):
    a(f's_add_u32 m0, s{sG}, {r*2048}')
    a('s_nop 0')
    a(f'buffer_load_dwordx4 v{vsrc}, {sr(srdreg,4)}, s{srow0} offen lds')
    a(f's_add_u32 m0, s{sG}, {r*2048+1024}')
    a('s_nop 0')
    a(f'buffer_load_dwordx4 v{vsrc}, {sr(srdreg,4)}, s{srow1} offen lds')


def div7(q, rem, su):
    a(f's_mul_i32 s{q}, s{su}, 9363')
    a(f's_lshr_b32 s{q}, s{q}, 16')
    a(f's_mul_i32 s{rem}, s{q}, 7')
    a(f's_sub_u32 s{rem}, s{su}, s{rem}')


def setup_w1(r, su):
    col, dst, aug = UC + 3 * r, UC + 3 * r + 1, UC + 3 * r + 2
    div7(sA, sB, su)
    a(f's_lshr_b32 s{sC}, s{sA}, 3')
    a(f's_and_b32 s{sA}, s{sA}, 7')
    a(f's_mul_i32 s{sD}, s{sC}, 896')
    a(f's_mul_i32 s{sE}, s{sA}, 112')
    a(f's_add_u32 s{sD}, s{sD}, s{sE}')
    a(f's_lshl_b32 s{sF}, s{sB}, 2')
    a(f's_add_u32 s{sF}, s{sF}, s{sW}')
    a(f's_mul_i32 s{sE}, s{sF}, {16*2688}')
    a(f's_add_u32 s{sD}, s{sD}, s{sE}')
    a(f's_add_u32 s{sE}, s{sD}, {8*2688}')
    a(f'v_mul_u32_u24 v{vt0}, 2688, v{vR8}')
    a(f'v_add_u32 v{vt0}, v{vt0}, v{vC8}')
    a(f'v_cmp_eq_u32 vcc, 112, v{vC8}')
    a(f'v_mov_b32 v{vt1}, {OOB:#x}')
    a(f'v_cndmask_b32 v{vt0}, v{vt0}, v{vt1}, vcc')
    unit_dma(r, S_WQKV, vt0, sD, sE)
    a(f'v_cmp_le_u32 vcc, 24, v{vSIG}')
    a(f'v_subrev_u32 v{vt0}, 2, v{vSIG}')
    a(f'v_cndmask_b32 v{vt0}, v{vSIG}, v{vt0}, vcc')
    a(f'v_mad_u32_u24 v{vt0}, v{vHI}, 28, v{vt0}')
    a(f'v_and_b32 v{vt1}, 0x16, v{vSIG}')
    a(f'v_cmp_eq_u32 vcc, 0x16, v{vt1}')
    a(f'v_cndmask_b32 v{vt0}, v{vt0}, 56, vcc')
    a(f'v_lshl_add_u32 v{col}, v{vt0}, 1, s{sG}')
    a(f's_sub_u32 s{sE}, s{sC}, 1')
    a(f's_cmp_eq_u32 s{sC}, 0')
    a(f's_cselect_b32 s{sE}, 2, s{sE}')
    a(f's_mul_i32 s{sD}, s{sF}, 3')
    a(f's_add_u32 s{sD}, s{sD}, s{sE}')
    a(f's_add_u32 s{sE}, s{sE}, 84')
    a(f's_mul_i32 s{sA}, s{sA}, {2*W1S}')
    a(f's_add_u32 s{sA}, s{sA}, {W1R}')
    a(f's_lshl_b32 s{sD}, s{sD}, 10')
    a(f's_add_u32 s{sD}, s{sD}, s{sA}')
    a(f's_lshl_b32 s{sE}, s{sE}, 10')
    a(f's_add_u32 s{sE}, s{sE}, s{sA}')
    a(f's_lshl_b32 s{sB}, s{sB}, 7')
    a(f's_add_u32 s{sE}, s{sE}, s{sB}')
    a(f'v_mul_u32_u24 v{vt0}, {W1S}, v{vHI}')
    a(f'v_lshl_add_u32 v{dst}, v{vRHO}, 4, v{vt0}')
    a(f'v_add_u32 v{dst}, s{sD}, v{dst}')
    a(f'v_lshl_add_u32 v{aug}, v{vRHO}, 2, v{vt0}')
    a(f'v_add_u32 v{aug}, s{sE}, v{aug}')


def setup_w3(r, su, tsrd):
    col, dst, aug = UC + 3 * r, UC + 3 * r + 1, UC + 3 * r + 2
    div7(sA, sB, su)
    a(f's_cmp_ge_u32 s{sA}, 28')
    a(f's_cselect_b32 s{tsrd}, s{S_WU}, s{S_WG}')
    a(f's_cselect_b32 s{tsrd+1}, s{S_WU+1}, s{S_WG+1}')
    a(f's_cselect_b32 s{sC}, 28, 0')
    a(f's_cselect_b32 s{sD}, 16, 0')
    a(f's_mov_b32 s{tsrd+2}, {448*1792*2}')
    a(f's_mov_b32 s{tsrd+3}, 0x00020000')
    a(f's_sub_u32 s{sA}, s{sA}, s{sC}')
    a(f's_lshl_b32 s{sE}, s{sB}, 2')
    a(f's_add_u32 s{sE}, s{sE}, s{sW}')
    a(f's_mul_i32 s{sC}, s{sE}, {16*3584}')
    a(f's_lshl_b32 s{sF}, s{sA}, 7')
    a(f's_add_u32 s{sC}, s{sC}, s{sF}')
    a(f's_add_u32 s{sF}, s{sC}, {8*3584}')
    a(f'v_mul_u32_u24 v{vt0}, 3584, v{vR8}')
    a(f'v_add_u32 v{vt0}, v{vt0}, v{vC8}')
    unit_dma(r, tsrd, vt0, sC, sF)
    a(f'v_and_b32 v{vt0}, 48, v{vLANE}')
    a(f'v_and_or_b32 v{vt0}, v{vSIG}, 15, v{vt0}')
    a(f'v_lshl_add_u32 v{col}, v{vt0}, 1, s{sG}')
    a(f'v_lshrrev_b32 v{vt0}, 4, v{vLANE}')
    a(f's_lshl_b32 s{sC}, s{sA}, 2')
    a(f'v_add_u32 v{vt0}, s{sC}, v{vt0}')
    a(f'v_mul_u32_u24 v{vt1}, 9363, v{vt0}')
    a(f'v_lshrrev_b32 v{vt1}, 16, v{vt1}')
    a(f'v_mul_u32_u24 v{vt2}, 7, v{vt1}')
    a(f'v_sub_u32 v{vt0}, v{vt0}, v{vt2}')
    a(f's_mul_i32 s{sF}, s{sE}, {3 if G3 else 2}')
    a(f'v_add_u32 v{vt2}, s{sF}, v{vt0}')
    a(f'v_add_u32 v{aug}, {84 if G3 else 56}, v{vt0}')
    a(f's_cmp_ge_u32 s{sE}, 27')
    a(f's_cselect_b32 s{sC}, 58, 0')
    a(f's_sub_u32 s{sC}, s{sE}, s{sC}')
    a(f's_add_u32 s{sC}, s{sC}, 176')
    for t, base, ag in (() if G3 else ((2, 59, None),)) + ((3, 87, 115), (4, 116, 144), (5, 147, 175), (6, None, 146)):
        a(f'v_cmp_eq_u32 vcc, {t}, v{vt0}')
        if base is not None:
            a(f's_add_u32 s{sF}, s{sE}, {base}')
            a(f'v_mov_b32 v{vt3}, s{sF}')
        else:
            a(f'v_mov_b32 v{vt3}, s{sC}')
        a(f'v_cndmask_b32 v{vt2}, v{vt2}, v{vt3}, vcc')
        if ag is not None:
            a(f'v_mov_b32 v{vt3}, {ag}')
            a(f'v_cndmask_b32 v{aug}, v{aug}, v{vt3}, vcc')
    a(f'v_mul_u32_u24 v{vt1}, 203, v{vt1}')
    a(f'v_add_lshl_u32 v{vt2}, v{vt2}, v{vt1}, 10')
    a(f'v_add_lshl_u32 v{aug}, v{aug}, v{vt1}, 10')
    a(f'v_and_b32 v{vt0}, 15, v{vLANE}')
    a(f'v_add_u32 v{vt0}, s{sD}, v{vt0}')
    a(f'v_lshl_add_u32 v{dst}, v{vt0}, 4, v{vt2}')
    a(f'v_add_u32 v{dst}, {W3R:#x}, v{dst}')
    a(f'v_lshl_add_u32 v{aug}, v{vt0}, 2, v{aug}')
    a(f's_lshl_b32 s{sB}, s{sB}, 7')
    a(f's_add_u32 s{sB}, s{sB}, {W3R}')
    a(f'v_add_u32 v{aug}, s{sB}, v{aug}')


def setup_colsT(r):
    col, dst, aug = UC + 3 * r, UC + 3 * r + 1, UC + 3 * r + 2
    a(f'v_lshl_add_u32 v{vt0}, v{vHI}, 5, v{vSIG}')
    a(f'v_lshl_add_u32 v{col}, v{vt0}, 1, s{sG}')
    a(f'v_lshlrev_b32 v{dst}, 10, v{vHI}')
    a(f'v_lshl_add_u32 v{dst}, v{vRHO}, 4, v{dst}')
    a(f'v_mov_b32 v{aug}, {OOB:#x}')


def setup_wd(r, su):
    dst = UC + 3 * r + 1
    div7(sA, sB, su)
    a(f's_lshl_b32 s{sA}, s{sA}, 2')
    a(f's_add_u32 s{sA}, s{sA}, s{sW}')
    a(f's_mul_i32 s{sC}, s{sA}, {16*896}')
    a(f's_lshl_b32 s{sD}, s{sB}, 7')
    a(f's_add_u32 s{sC}, s{sC}, s{sD}')
    a(f's_add_u32 s{sD}, s{sC}, {8*896}')
    a(f'v_mul_u32_u24 v{vt0}, 896, v{vR8}')
    a(f'v_add_u32 v{vt0}, v{vt0}, v{vC8}')
    unit_dma(r, S_WD, vt0, sC, sD)
    setup_colsT(r)
    div7(sC, sD, sA)
    a(f's_mul_i32 s{sB}, s{sB}, {WDS}')
    a(f's_lshr_b32 s{sE}, s{sC}, 2')
    a(f's_mul_i32 s{sE}, s{sE}, 57344')
    a(f's_add_u32 s{sB}, s{sB}, s{sE}')
    a(f's_lshl_b32 s{sD}, s{sD}, 2')
    a(f's_and_b32 s{sC}, s{sC}, 3')
    a(f's_add_u32 s{sD}, s{sD}, s{sC}')
    a(f's_lshl_b32 s{sD}, s{sD}, 11')
    a(f's_add_u32 s{sB}, s{sB}, s{sD}')
    a(f's_add_u32 s{sB}, s{sB}, {WDR}')
    a(f'v_add_u32 v{dst}, s{sB}, v{dst}')


def setup_wo(r, su):
    dst = UC + 3 * r + 1
    div7(sA, sB, su)
    a(f's_lshl_b32 s{sA}, s{sA}, 2')
    a(f's_add_u32 s{sA}, s{sA}, s{sW}')
    a(f's_lshr_b32 s{sC}, s{sA}, 1')
    a(f's_mul_i32 s{sC}, s{sC}, {28*896}')
    a(f's_lshl_b32 s{sD}, s{sB}, 7')
    a(f's_add_u32 s{sC}, s{sC}, s{sD}')
    a(f's_and_b32 s{sD}, s{sA}, 1')
    a(f's_cselect_b32 s{sD}, {16*896}, 0')
    a(f's_cselect_b32 s{sE}, {14*896}, 0')
    a(f's_add_u32 s{sD}, s{sD}, s{sC}')
    a(f's_add_u32 s{sE}, s{sE}, s{sC}')
    a(f's_add_u32 s{sE}, s{sE}, {8*896}')
    a(f'v_mul_u32_u24 v{vt0}, 896, v{vR8}')
    a(f'v_add_u32 v{vt0}, v{vt0}, v{vC8}')
    unit_dma(r, S_WO, vt0, sD, sE)
    setup_colsT(r)
    a(f's_lshl_b32 s{sB}, s{sB}, 16')
    a(f's_lshl_b32 s{sC}, s{sA}, 11')
    a(f's_add_u32 s{sB}, s{sB}, s{sC}')
    a(f's_add_u32 s{sB}, s{sB}, {WOR}')
    a(f'v_add_u32 v{dst}, s{sB}, v{dst}')


def setup_none(r):
    col, dst, aug = UC + 3 * r, UC + 3 * r + 1, UC + 3 * r + 2
    a(f'v_mov_b32 v{col}, 0')
    a(f'v_mov_b32 v{dst}, {OOB:#x}')
    a(f'v_mov_b32 v{aug}, {OOB:#x}')


def rounds(tag):
    a('s_cmp_ge_u32 s2, 168')
    a(f's_cbranch_scc1 L_r0b{tag}')
    with cond():
        run_setup(setup_w1, 0, 2)
    a(f's_branch L_r0e{tag}')
    a.label(f'L_r0b{tag}')
    a('s_cmp_ge_u32 s2, 224')
    a(f's_cbranch_scc1 L_r0c{tag}')
    with cond():
        a(f's_sub_u32 s{sU}, s2, 168')
        run_setup(setup_wo, 0, sU)
    a(f's_branch L_r0e{tag}')
    a.label(f'L_r0c{tag}')
    with cond():
        a(f's_sub_u32 s{sU}, s2, 224')
        run_setup(setup_wd, 0, sU)
    a.label(f'L_r0e{tag}')
    if PASS['p'] == 'src':
        return
    run_setup(setup_w3, 1, 2, LSRD[1])
    a('s_cmp_ge_u32 s2, 136')
    a(f's_cbranch_scc1 L_r2b{tag}')
    with cond():
        a(f's_add_u32 s{sU}, s2, 256')
        run_setup(setup_w3, 2, sU, LSRD[2])
    a(f's_branch L_r2e{tag}')
    a.label(f'L_r2b{tag}')
    with cond():
        a(f's_sub_u32 s{sU}, s2, 104')
        run_setup(setup_wd, 2, sU)
    a.label(f'L_r2e{tag}')
    a('s_cmp_ge_u32 s2, 212')
    a(f's_cbranch_scc1 L_r3b{tag}')
    setup_none(3)
    a('s_mov_b32 s80, 0')
    a('s_mov_b32 s81, 0')
    a(f'v_mov_b32 v246, {OOB:#x}')
    a(f's_branch L_r3e{tag}')
    a.label(f'L_r3b{tag}')
    with cond():
        a(f's_sub_u32 s{sU}, s2, 60')
        run_setup(setup_wd, 3, sU)
    a.label(f'L_r3e{tag}')


def unit_rounds(rs, items=None):
    rtok = {}
    seq = [(r, h) for r in rs for h in range(2)]

    def gat(r, half):
        for e in range(8):
            rtok[r, half] = a(f'ds_read_u16 v{UD+16*r+8*half+e}, v{UC+3*r} offset:{r*2048+(8*half+e)*128}')
    gat(*seq[0])
    a(f's_lshl_b32 s{sA}, s{sW}, 8')
    a(f's_add_u32 s{sA}, s{sA}, {LCS}')
    a(f'v_add_u32 v225, s{sA}, v{vL4}')
    for k_, (r, half) in enumerate(seq):
        R = UD + 16 * r
        if k_ + 1 < len(seq):
            gat(*seq[k_ + 1])
        a.wait(rtok[r, half])
        for m in range(4):
            a(f'v_lshl_or_b32 v{R+8*half+m}, v{R+8*half+2*m+1}, 16, v{R+8*half+2*m}')
        a(f'buffer_store_dwordx4 {vr(R+8*half,4)}, v{UC+3*r+1}, {sr(S_WS,4)}, 0 offen offset:{512*half} sc1')
    for r in rs:
        if r == 3:
            continue
        R = UD + 16 * r
        a(f'v_mov_b32 v{R+4}, 0')
        for m in range(4):
            a(f'v_dot2c_f32_bf16 v{R+4}, s{sONES}, v{R+m}')
            a(f'v_dot2c_f32_bf16 v{R+4}, s{sONES}, v{R+8+m}')
        a(f'ds_write_b32 v225, v{R+4} offset:{r*1024}')


def aug_finish(rs):
    R = 226
    a(f's_add_u32 s{sA}, s{sW1K}, {LCS}')
    a(f'v_add_u32 v225, s{sA}, v{vL4}')
    a(f'ds_read2st64_b32 {vr(R,2)}, v225 offset0:0 offset1:1')
    t = a(f'ds_read2st64_b32 {vr(R+2,2)}, v225 offset0:2 offset1:3')
    a(f'v_mov_b32 v230, {OOB:#x}')
    a(f'v_mov_b32 v231, v230')
    for r in rs:
        a(f's_cmp_eq_u32 s{sW}, {r}')
        a('s_cselect_b64 vcc, -1, 0')
        a(f'v_cndmask_b32 v230, v230, v{UC+3*r+2}, vcc')
    a(f'v_bfe_u32 v225, v230, 7, 3')
    a(f'v_cmp_eq_u32 vcc, 6, v225')
    a(f'v_mov_b32 v225, 0')
    a(f'v_cndmask_b32 v231, v231, v230, vcc')
    a(f'buffer_store_dword v225, v231, {sr(S_WS,4)}, 0 offen offset:128 sc1')
    a.wait(t)
    a(f'v_add_f32 v{R}, v{R}, v{R+1}')
    a(f'v_add_f32 v{R+2}, v{R+2}, v{R+3}')
    a(f'v_add_f32 v{R}, v{R}, v{R+2}')
    a(f'v_cvt_pk_bf16_f32 v{R+1}, v{R}, v{R}')
    a(f'v_and_b32 v{R+1}, 0xffff0000, v{R+1}')
    a(f'v_sub_f32 v{R+1}, v{R}, v{R+1}')
    a(f'v_cvt_pk_bf16_f32 v{R+1}, v{R}, v{R+1}')
    return a(f'buffer_store_dword v{R+1}, v230, {sr(S_WS,4)}, 0 offen sc1')


def ib_publish(imm, va, vv):
    a(f'v_lshlrev_b32 v{va}, 12, v{vLANE}')
    a(f'v_mov_b32 v{vv}, s{sXID}')
    a('s_mov_b64 exec, 15')
    a(f'buffer_store_dword v{vv}, v{va}, {sr(S_WS,4)}, s83 offen offset:{imm} sc1')
    a('s_mov_b64 exec, -1')


def init_phase():
    Z = 216
    vGO = 224
    a(f's_lshl_b32 s{sA}, s2, 10')
    a(f's_add_u32 s{sB}, s{sW}, 1')
    a(f's_lshl_b32 s{sB}, s{sB}, 24')
    a(f's_add_u32 s{sB}, s{sA}, s{sB}')
    a(f's_sub_u32 s{sC}, s{sB}, {2*LYB - ST1}')
    a(f's_cmp_eq_u32 s{sW}, 2')
    a(f's_cselect_b32 s{sB}, s{sC}, s{sB}')
    a(f's_lshl_b32 s85, s2, 4')
    a('s_cmp_lt_u32 s2, 16')
    a(f's_cselect_b32 s{sA}, s{sA}, {OOB:#x}')
    a(f's_cselect_b32 s{sZW}, s85, {OOB:#x}')
    a(f's_cmp_eq_u32 s{sW}, 3')
    a(f's_cselect_b32 s{sB}, s{sA}, s{sB}')
    a(f's_cselect_b32 s{sZW}, s{sZW}, {OOB:#x}')
    a(f's_cselect_b32 s83, s85, {OOB:#x}')
    a(f's_cselect_b32 s85, 0, {OOB:#x}')
    zt = a(f'buffer_store_dwordx4 {vr(Z,4)}, v{vL16}, {sr(S_WS,4)}, s{sB} offen sc1')
    PASS['p'] = 'src'
    rounds('s')
    a.vm_issued += 2
    um = mark()
    a(f's_mov_b32 s82, s{sG}')
    a(f's_mul_i32 s{sI}, s{sTILE1}, 28672')
    a(f's_mul_i32 s{sH}, s{sW}, {28*K}')
    xq = []
    for g in range(4):
        for c in range(7):
            it = [f's_add_u32 m0, s{sH}, {LXS + (4*c+g)*K - c*128}',
                  f'buffer_load_dwordx4 v{vXS + (g & 1)}, {sr(S_X,4)}, s{sI} offen offset:{c*128} lds']
            if c == 6:
                it.append(f's_add_u32 s{sI}, s{sI}, {8*896}')
            xq.append(it)
    a(f's_mul_i32 s{sA}, s{sHC}, {14*128}')
    a(f's_add_u32 s{sA}, s{sA}, s{sI}')
    a(f'v_min_u32 v{vt0}, 13, v{vLANE}')
    a(f'v_lshlrev_b32 v{vt0}, 7, v{vt0}')
    a(f'buffer_load_dword v17, v{vt0}, {sr(S_X,4)}, s{sA} offen')
    for _ in range(X0N):
        emit(xq.pop(0))
    stamp('issued')
    PASS['p'] = 'dst'
    rounds('d')
    for i in range(9):
        a(f'v_accvgpr_write_b32 a{i}, v{UC+3+i}')
    a.wait(zt)
    emit(flag_store(S_DBG, f's{sZW}', sc='sc1'))
    a(f'v_and_b32 v{vt3}, 15, v{vLANE}')
    a(f'v_lshlrev_b32 v{vt3}, 4, v{vt3}')
    a(f'v_lshrrev_b32 v{vt0}, 3, v{vRHO}')
    a(f'v_lshlrev_b32 v{vt0}, 10, v{vt0}')
    a(f'v_and_b32 v{vt1}, 7, v{vRHO}')
    a(f'v_lshl_add_u32 v{vt0}, v{vt1}, 7, v{vt0}')
    a(f'v_add_u32 v{vt0}, s{sH}, v{vt0}')
    a(f'v_bfe_u32 v{vt1}, v{vRHO}, 1, 3')
    a(f'v_xor_b32 v{vt1}, v{vt1}, v{vHI}')
    for q in range(4):
        a(f'v_xor_b32 v{220+q}, {2*q}, v{vt1}')
        a(f'v_lshl_add_u32 v{220+q}, v{220+q}, 4, v{vt0}')
    a(f'v_min_u32 v{vt0}, 20, v{vLANE}')
    a(f'v_mul_u32_u24 v{vt1}, 37, v{vt0}')
    a(f'v_lshrrev_b32 v{vt1}, 8, v{vt1}')
    a(f'v_mad_u32_u24 v{vt0}, v{vt1}, 49, v{vt0}')
    a(f's_lshr_b32 s{sA}, s{sHC}, 1')
    a(f's_mul_i32 s{sA}, s{sA}, 7')
    a(f'v_add_lshl_u32 v240, v{vt0}, s{sA}, 4')
    late_consts()
    own_consts()
    a.wait(um)
    stamp('ldone')
    unit_rounds([0])
    a.wait_lg0()
    a.barrier()
    aug_finish([0])
    sm = a(f'buffer_load_dword v{vGO}, v{vt3}, {sr(S_DBG,4)}, s85 offen sc1')
    for _ in range(min(XA, len(xq))):
        emit(xq.pop(0))
    a.wait(sm)
    a(f's_cmp_lg_u32 s{sW}, 3')
    a('s_cbranch_scc1 L_ngo')
    with cond():
        check_or_poll(vGO, S_DBG, vt3, 0, sleep=2)
    a.label('L_ngo')
    a.barrier()
    ib_publish(4, vt0, vt1)
    stamp('ibpub')
    while xq:
        emit(xq.pop(0))
    a(f's_mul_i32 s{sA}, s{sOWN}, 28672')
    a(f's_lshl_b32 s{sB}, s{sOFT}, 6')
    a(f's_add_u32 s{sA}, s{sA}, s{sB}')
    a(f'buffer_load_dwordx4 {vr(vXRES,4)}, v{vROW}, {sr(S_X,4)}, s{sA} offen')
    a(f'buffer_load_dwordx4 {vr(vXRES+4,4)}, v{vROW}, {sr(S_X,4)}, s{sA} offen offset:32')
    p1_setup(True)
    dma_setup(205, sW1SRC, 0, 0)
    a.wait_vm_n(2)
    stamp('xland')
    for ks in range(28):
        a(f'ds_read_b128 {vr(16+4*ks,4)}, v{220+(ks&3)} offset:{(ks>>2)*4096}')
    poll(S_WS, 240, f's{sREP}', imm=4, nonzero=True)
    a.wait_lg0()
    a.barrier()
    stamp('w1rdy')


def x0_stats(items):
    S0, S1, Q0, Q1 = 216, 217, 218, 219
    for _ in range(4):
        emit(items.pop(0))
    for v in (S0, S1, Q0, Q1):
        a(f'v_mov_b32 v{v}, 0')
    for i in range(0, 112, 2):
        if items and i % 6 == 0:
            emit(items.pop(0))
        a(f'v_dot2c_f32_bf16 v{S0}, s{sONES}, v{16+i}')
        a(f'v_dot2c_f32_bf16 v{Q0}, v{16+i}, v{16+i}')
        a(f'v_dot2c_f32_bf16 v{S1}, s{sONES}, v{17+i}')
        a(f'v_dot2c_f32_bf16 v{Q1}, v{17+i}, v{17+i}')
    a(f'v_add_f32 v{S0}, v{S0}, v{S1}')
    a(f'v_add_f32 v{S1}, v{Q0}, v{Q1}')
    emit(stats_finish(P1_XAUG))


vRSTD, vC2, vISTD = 248, 249, 250
P1_XAUG = 212


def stats_finish(xaug, SB=216):
    S, Q, t0, t1 = SB, SB + 1, SB + 2, SB + 3
    o = [f'v_mov_b32 v{t0}, v{S}',
         f'v_mov_b32 v{t1}, v{Q}',
         f'v_permlane32_swap_b32 v{S}, v{t0}',
         f'v_permlane32_swap_b32 v{Q}, v{t1}',
         f'v_add_f32 v{S}, v{S}, v{t0}',
         f'v_add_f32 v{Q}, v{Q}, v{t1}',
         f'v_mul_f32 v{S}, {INV448:#x}, v{S}',
         f'v_mul_f32 v{Q}, {INV448:#x}, v{Q}',
         f'v_fma_f32 v{Q}, -v{S}, v{S}, v{Q}',
         f'v_max_f32 v{Q}, 0, v{Q}',
         f'v_add_f32 v{Q}, {EPS5:#x}, v{Q}',
         f'v_rsq_f32 v{vRSTD}, v{Q}',
         f'v_cvt_pk_bf16_f32 v{xaug}, -v{S}, -v{S}',
         f'v_mul_f32 v{vISTD}, v{Q}, v{vRSTD}',
         f'v_mul_f32 v{vC2}, {LOG2E:#x}, v{vRSTD}']
    o += [f'v_mov_b32 v{xaug+i}, v{xaug}' for i in range(1, 4)]
    return o


def stats_sum(SB=216):
    o = []
    for i in range(1, 7):
        o.append(f'v_add_f32 v{SB}, v{SB}, v{SB+2*i}')
        o.append(f'v_add_f32 v{SB+1}, v{SB+1}, v{SB+2*i+1}')
    return o


def x_prep(fl, xb, stb):
    a(f'v_and_b32 v240, 15, v{vLANE}')
    a(f'v_min_u32 v240, 13, v240')
    a(f'v_lshlrev_b32 v240, 5, v240')
    a(f's_lshl_b32 s{sC}, s{sTILE1}, 9')
    a(f's_add_u32 s{sC}, s{sC}, {fl}')
    a(f's_lshl_b32 s{sD}, s{sTILE1}, 12')
    a(f's_add_u32 s{sD}, s{sD}, {stb}')
    a(f's_mul_i32 s{sE}, s{sTILE1}, {28*K}')
    a(f's_add_u32 s{sE}, s{sE}, {xb}')


def x_load(ks):
    if ks % 4 == 0 and ks:
        a(f's_add_u32 s{sE}, s{sE}, 4096')
    return a(f'buffer_load_dwordx4 {vr(16+4*ks,4)}, v{vL16}, {sr(S_DT,4)}, s{sE} offen offset:{(ks%4)*K} sc1')


def st_load(i, SB=216):
    return a(f'buffer_load_dwordx4 {vr(SB+4*i,4)}, v{vL16}, {sr(S_DT,4)}, s{sD} offen offset:{i*K} sc1')


def st_loads(SB=216):
    t = None
    for i in range(7):
        t = a(f'buffer_load_dwordx2 {vr(SB+2*i,2)}, v241, {sr(S_DT,4)}, s{sD} offen offset:{i*256} sc1')
    return t


def read_aug(dst, addr, tmp):
    a(f'v_add_u32 v{tmp}, {addr:#x}, v{vAUG}')
    a(f'ds_read2_b32 {vr(dst,2)}, v{tmp} offset0:0 offset1:32')
    return a(f'ds_read2_b32 {vr(dst+2,2)}, v{tmp} offset0:64 offset1:96')


def read_frag(dst, addr):
    v, off = lds_addr(addr)
    return a(f'ds_read_b128 {vr(dst,4)}, v{v} offset:{off}')


def wfrag_items(regfn, ssrc, lo, hi, va, vb, stmp):
    items = []
    for i, n in enumerate(range(lo, hi)):
        for b in range(2):
            it = []
            if i % 2 == 0 and b == 0:
                it.append(f's_add_u32 s{stmp}, s{ssrc}, {n*2048}')
            it.append(f'buffer_load_dwordx4 {regfn(n,b)}, v{(va,vb)[b]}, {sr(S_WS,4)}, s{stmp} offen offset:{(i%2)*2048} {WSC}')
            items.append(it)
    return items


def slot_addr_setup(va, vb):
    a(f's_and_b32 s{sA}, s{sW1K}, 0x400')
    a(f'v_add_u32 v{va}, s{sA}, v{vL16}')
    a(f'v_xor_b32 v{vb}, 0x400, v{va}')


def cost(x):
    op = x.split()[0]
    return 2 if op.startswith(('v_exp', 'v_rcp', 'v_rsq')) else 1


def drip(q, budget):
    while q and budget >= cost(q[0]):
        x = q.pop(0)
        budget -= cost(x)
        a(x)


CAP = int(OPT.get('cap', 7))
G3 = int(OPT.get('g3', 1))
F1AT = int(OPT.get('f1at', 22))
PQSPLIT = int(OPT.get('pqsplit', 1))
WDP3 = int(OPT.get('wdp3', 36))
WDP1 = 0
PUBD2 = int(OPT.get('pubd2', 22))
PRET = int(OPT.get('pret', 1))
PUBD = int(OPT.get('pubd', 20))
S0T = int(OPT.get('s0t', 2))


def shadow(mem, vq, cap=None, pop=None):
    n0 = len(a.ins)
    for f in mem:
        if f is None:
            continue
        if callable(f):
            f()
        else:
            emit(f)
    budget = (CAP if cap is None else cap) - (len(a.ins) - n0)
    while vq and budget >= cost(vq[0]):
        budget -= cost(vq[0])
        if pop:
            pop()
        else:
            a(vq.pop(0))


def split_item(it):
    if it is None:
        return None, None
    return it[:-1], it[-1:]


ACK, ACV, ACQ = 128, 144, 160
P1WR = 176
P1RR2 = 216
p1D1, p1SA, p1SB = 204, 206, 207
p1RSW, p1RSR, p1OH = 208, 209, 210
LMODE = LRS + 1008


CARRY = []


def FAST():
    return MODE['sfx'] != '_s'


def p1_setup(first):
    if not first:
        x_prep(F0 + LYB, *((X1, ST1) if FAST() else (X0 + LYB, ST0 + LYB)))
    slot_addr_setup(p1SA, p1SB)
    a(f'v_and_b32 v{p1OH}, 27, v{vLANE}')
    a(f'v_cmp_eq_u32 vcc, 26, v{p1OH}')
    a(f'v_cndmask_b32 v{p1OH}, 0, 1.0, vcc')
    a(f'v_mov_b32 v{p1OH+1}, v{p1OH}')
    a(f's_add_u32 s{sA}, s{sW4K}, {LKVS}')
    a(f'v_and_b32 v{p1RSW}, 31, v{vLANE}')
    a(f'v_lshl_add_u32 v{p1RSW}, v{p1RSW}, 2, s{sA}')
    a(f'v_lshrrev_b32 v{p1RSR}, 5, v{vLANE}')
    a(f'v_lshl_add_u32 v{p1RSR}, v{p1RSR}, 4, s{sA}')
    dma_setup(p1D1, sW3SRC, 0, LALPHA)


def f1_addr():
    return [f's_lshl_b32 s{sG}, s{sHC}, 8',
            f's_lshl_b32 s{sB}, s{sRBG}, 4',
            f's_add_u32 s{sG}, s{sG}, s{sB}',
            f's_add_u32 s{sG}, s{sG}, {F1}',
            f's_cmp_lg_u32 s{sW}, 3\ns_cselect_b32 s{sG}, {OOB:#x}, s{sG}',
            f'v_lshlrev_b32 v{p1RSW}, 12, v{vLANE}',
            f'v_mov_b32 v{p1RSR}, 1']


def f1_store():
    a('s_mov_b64 exec, 15')
    a(f'buffer_store_dword v{p1RSR}, v{p1RSW}, {sr(S_LY,4)}, s{sG} offen sc1')
    a('s_mov_b64 exec, -1')
    stamp('p1pub')


def phase1_kv(first):
    WR, XAUG, RR, RR2, KVD = P1WR, P1_XAUG, ACQ, P1RR2, 232
    vRSW, vRSR, vOH = p1RSW, p1RSR, p1OH
    PRE = XPRE
    xt, vq, st = {}, [], {}
    if first:
        its = dma_items(205, 0, 88, 2)
        x0_stats(its)
        assert not its
        w1m = mark()
        st['lu'] = late_dma()
        stamp('stats')
    else:
        poll(S_LY, 240, f's{sC}')
        stamp('p1poll')
        for ks in range(4):
            xt[ks] = x_load(ks)
        a(f's_add_u32 s{S_LY}, s{S_LY}, {LYB}')
        a(f's_addc_u32 s{S_LY+1}, s{S_LY+1}, 0')
        a.barrier()
    bg = ([] if first else code_touch(205, 200)) + dma_items(p1D1, LALPHA, 56, 2)
    rt = {}
    stage = (0, 8, 16) if first else ()

    def ib_check():
        a.wait(st['ib'])
        check_or_poll(254, S_WS, vL16, f's{sH}', imm=4, nonzero=True)
        a(f's_and_b32 s{sA}, s2, 7')
        a(f'v_and_b32 v252, 7, v{vLANE}')
        a(f'v_cmp_eq_u32 {sr(sC,2)}, s{sA}, v252')
        a(f'v_cmp_ne_u32 vcc, s{sXID}, v254')
        a(f's_and_b64 vcc, vcc, {sr(sC,2)}')
        a(f's_cselect_b32 s{sZW}, 1, 0')

    def rd(ks, tl):
        if ks > 28:
            return
        if ks in stage and tl == 0:
            need_ops = 22 if ks == 16 else 2 * ((3 * (ks + 8) + 7) // 8)
            a.wait(('vm', w1m[1] - 22 + need_ops))
            a.barrier()
        d = WR + 8 * (ks % 3) + 4 * tl
        addr = (3 * ks + tl) * K
        rt[ks] = read_frag(d, addr) if ks < 28 else read_aug(d, addr, 252 + tl)
    for ks in range(2):
        rd(ks, 0); rd(ks, 1)
    if not first:
        for ks in range(4, PRE):
            xt[ks] = x_load(ks)
    rr = {}

    def stl(i):
        st['s'] = st_load(i)

    def xl(ks):
        xt[ks] = x_load(ks)

    def ibl():
        a(f's_add_u32 s{sH}, s{sREP}, s{sW1K}')
        st['ib'] = a(f'buffer_load_dword v254, v{vL16}, {sr(S_WS,4)}, s{sH} offen offset:4 sc1')

    def rs_write():
        a(f'ds_write2_b32 v{vRSW}, v{vRSTD}, v{vC2} offset0:0 offset1:32')

    def rs_read(j):
        a(f'ds_read_b128 {vr(RR+4*j,4)}, v{vRSR} offset:{32*j}')
        rr[0] = a(f'ds_read_b128 {vr(RR2+4*j,4)}, v{vRSR} offset:{128+32*j}')
    for ks in range(29):
        if not first and ks == 15:
            a.wait(st['s'])
            vq += stats_sum() + stats_finish(XAUG)
        a.wait(rt[ks], xt.get(ks))
        X = vr(16 + 4 * ks, 4) if ks < 28 else vr(XAUG, 4)
        c = (lambda r: '0' if ks == 0 else vr(r, 16))
        if not first and ks + PRE < 28:
            pre, main = None, (lambda k_=ks + PRE: xl(k_))
        elif first and ks == 20:
            pre, main = None, ibl
        else:
            pre, main = split_item(bg.pop(0) if bg and not first else None)
        a(f'{MF} {vr(ACK,16)}, {X}, {vr(WR+8*(ks%3),4)}, {c(ACK)}')
        shadow([pre, lambda: rd(ks + 2, 0), main], vq)
        a(f'{MF} {vr(ACV,16)}, {X}, {vr(WR+8*(ks%3)+4,4)}, {c(ACV)}')
        extra = None
        if not first and ks < 8 and ks % 2 == 0:
            extra = (lambda i=ks // 2: stl(i))
        if ks == 23:
            assert not vq
            extra = rs_write
        if 24 <= ks <= 27:
            extra = (lambda j=ks - 24: rs_read(j))
        shadow([lambda: rd(ks + 2, 1), extra], vq)
    stamp('p1kv')
    qt = {}

    def rq(ks):
        if ks > 28:
            return
        d = WR + 4 * (ks % 6)
        addr = (3 * ks + 2) * K
        qt[ks] = read_frag(d, addr) if ks < 28 else read_aug(d, addr, 252)
    if not first:
        for ks in range(4):
            rq(ks)
    KS = LRS
    a(f's_lshl_b32 s{sB}, s{sHC}, 12')
    a(f's_add_u32 s{sB}, s{sB}, s{sW1K}')
    a.wait(rr[0])
    for r in range(0, 16, 2):
        a(f'v_pk_mul_f32 {vr(ACK+r,2)}, {vr(ACK+r,2)}, {vr(RR2+r,2)}')
    def bgp():
        if bg and EPD and not first:
            emit(bg.pop(0))
    for r in range(16):
        a(f'v_exp_f32_e64 v{RR2+r}, v{ACK+r} clamp')
        a(f'v_max_f32 v{ACK+r}, 0, v{ACK+r}')
        if r % 5 == 0:
            bgp()
    for r in range(0, 16, 2):
        a(f'v_pk_fma_f32 {vr(ACV+r,2)}, {vr(ACV+r,2)}, {vr(RR+r,2)}, {vr(vOH,2)}')
        a(f'v_pk_fma_f32 {vr(RR2+r,2)}, {vr(ACK+r,2)}, {sr(sLN2,2)}, {vr(RR2+r,2)}')
    bgp()
    for r in range(0, 16, 2):
        a(f'v_pk_add_f32 {vr(RR2+r,2)}, {vr(RR2+r,2)}, {sr(sEPS6,2)}')
        a(f'v_cvt_pk_bf16_f32 v{ACV+r//2}, v{ACV+r}, v{ACV+r+1}')
    bgp()
    for m in range(4):
        a(f'v_cvt_pk_bf16_f32 v{ACK+m}, v{RR2+2*m}, v{RR2+2*m+1}')
    a(f'{MF} {vr(KVD,16)}, {vr(ACK,4)}, {vr(ACV,4)}, 0')
    for m in range(4, 8):
        a(f'v_cvt_pk_bf16_f32 v{ACK+m}, v{RR2+2*m}, v{RR2+2*m+1}')
    a(f's_add_u32 s{sA}, s{sW4K}, {LKVS}')
    a(f'v_add_u32 v{vRSW}, s{sA}, v{vL16}')
    a(f'{MF} {vr(KVD,16)}, {vr(ACK+4,4)}, {vr(ACV+4,4)}, {vr(KVD,16)}')
    a(f's_add_u32 s{sA}, s{sW1K}, {LKVS}')
    a(f'v_add_u32 v{vRSR}, s{sA}, v{vL4}')
    if first:
        ib_check()
        a(f's_lshl_b32 s{sA}, s{sW}, 2')
        a(f's_add_u32 s{sA}, s{sA}, {LRS}')
        a(f'v_mov_b32 v252, s{sA}')
        a(f'v_mov_b32 v253, s{sZW}')
        a('ds_write_b32 v252, v253')
        a(f'v_mov_b32 v252, {LRS}')

    def qstep(ks, mem=(), vq_=None, early=False):
        if early and first:
            return
        a.wait(qt[ks])
        X = vr(16 + 4 * ks, 4) if ks < 28 else vr(XAUG, 4)
        a(f'{MF} {vr(ACQ,16)}, {vr(WR+4*(ks%6),4)}, {X}, {"0" if ks == 0 else vr(ACQ,16)}')
        shadow([lambda: rq(ks + 4)] + list(mem), vq_ if vq_ is not None else [])
    qstep(0, [bgp], early=True)
    for q in range(4):
        kw = a(f'ds_write_b128 v{vRSW}, {vr(KVD+4*q,4)} offset:{q*K}')
    qstep(1, [bgp], early=True)
    a.wait(kw)
    a.barrier()
    RED = RR2
    for wp in range(4):
        a(f'ds_read2st64_b32 {vr(RED+4*wp,2)}, v{vRSR} offset0:{16*wp} offset1:{16*wp+1}')
        t = a(f'ds_read2st64_b32 {vr(RED+4*wp+2,2)}, v{vRSR} offset0:{16*wp+2} offset1:{16*wp+3}')
    if first:
        mt = a(f'ds_read_b128 {vr(KVD,4)}, v252')
    qstep(2, early=True)
    a.wait(t)
    for i in range(4):
        a(f'v_add_f32 v{RED+i}, v{RED+i}, v{RED+4+i}')
        a(f'v_add_f32 v{RED+8+i}, v{RED+8+i}, v{RED+12+i}')
    for i in range(4):
        a(f'v_add_f32 v{RED+i}, v{RED+i}, v{RED+8+i}')
    for i in range(4):
        at = a(f'buffer_atomic_add_f32 v{RED+i}, v{vL4}, {sr(S_LY,4)}, s{sB} offen offset:{i*256}')
    stamp('p1atom')
    if first:
        a.wait(mt)
        a(f'v_or_b32 v{KVD}, v{KVD}, v{KVD+1}')
        a(f'v_or3_b32 v{KVD}, v{KVD}, v{KVD+2}, v{KVD+3}')
        a(f'v_readfirstlane_b32 s{sZW}, v{KVD}')
        for i in range(9):
            a(f'v_accvgpr_read_b32 v{UC+3+i}, a{i}')
        a.wait(st['lu'])
        unit_rounds([1, 2, 3])
        emit(f1_addr())
        a.wait(at)
        a.wait_lg0()
        a.barrier()
        f1_store()
        st['us'] = aug_finish([1, 2])
        for ks in range(4):
            rq(ks)
        stamp('units')
        a(f's_cmp_lg_u32 s{sZW}, 0')
        a('s_cbranch_scc1 L_slow')
    return dict(qstep=qstep, at=at, qt=qt, bg=bg, us=st.get('us'), state=(a.vm_issued, a.vm_done, a.lg_issued, a.lg_done), qt0=dict(qt))


def phase1_q(ctx, first):
    qstep, at = ctx['qstep'], ctx['at']
    vRSW, vRSR, RR2 = p1RSW, p1RSR, P1RR2
    wo = wfrag_items(lambda n, b: vr(16 + 8 * n + 4 * b, 4), sWOSRC, 0, 8, p1SA, p1SB, sF)
    alpha = list(ctx['bg']) if first else []
    if not first:
        wo = list(ctx['bg']) + wo
    if first and FAST():
        wo = [[f's_cmp_ge_u32 s{sJ}, 28', f's_cselect_b32 s{sI}, {OOB:#x}, s{sOX}', f's_add_u32 s{sI}, s{sI}, {X1}',
               f'buffer_store_dwordx4 {vr(vXRES,4)}, v{vL16}, {sr(S_DT,4)}, s{sI} offen sc1'],
              [f'buffer_store_dwordx4 {vr(vXRES+4,4)}, v{vL16}, {sr(S_DT,4)}, s{sI} offen offset:1024 sc1']] + wo
    pqoff = PQ if (FAST() or first) else PQ + LYB
    vq = ([] if first else f1_addr()) + [
          f's_lshl_b32 s{sA}, s{sTILE1}, 15',
          f's_lshl_b32 s{sB}, s{sHC}, 11',
          f's_add_u32 s{sA}, s{sA}, s{sB}',
          f's_add_u32 s{sA}, s{sA}, {pqoff}',
          f's_lshl_b32 s{sU}, s{sTILE1}, 9',
          f's_lshl_b32 s{sB}, s{sHC}, 5',
          f's_add_u32 s{sU}, s{sU}, s{sB}',
          f's_add_u32 s{sU}, s{sU}, {F1Q}',
          f'v_mov_b32 v{vC2+2}, v{vC2}',
          f'v_mov_b32 v{ACK+7}, 0']
    for ks in range(0 if first else 3, 29):
        qstep(ks, [wo.pop(0)] if ks % 2 == 1 else [], vq)
        if ks == F1AT:
            if first:
                a.wait(ctx['us'])
                a.barrier()
                ib_publish(0, vRSW, vRSR)
            else:
                a.wait(at)
                a.barrier()
                f1_store()
    a('s_nop 4')
    stamp('p1q')
    T = RR2
    for r in range(0, 14, 2):
        a(f'v_pk_mul_f32 {vr(ACQ+r,2)}, {vr(ACQ+r,2)}, {vr(vC2+1,2)} op_sel:[0,1] op_sel_hi:[1,1]')
    for r in range(14):
        a(f'v_exp_f32_e64 v{T+r}, v{ACQ+r} clamp')
        a(f'v_max_f32 v{ACQ+r}, 0, v{ACQ+r}')
    for r in range(0, 14, 2):
        a(f'v_pk_fma_f32 {vr(T+r,2)}, {vr(ACQ+r,2)}, {sr(sLN2,2)}, {vr(T+r,2)}')
    for r in range(0, 14, 2):
        a(f'v_pk_add_f32 {vr(T+r,2)}, {vr(T+r,2)}, {sr(sEPS6,2)}')
    for m in range(7):
        a(f'v_cvt_pk_bf16_f32 v{ACK+m}, v{T+2*m}, v{T+2*m+1}')
    sc = 'sc1' if first else LS()
    a(f'buffer_store_dwordx4 {vr(ACK,4)}, v{vL16}, {sr(S_DT,4)}, s{sA} offen {sc}')
    pst = a(f'buffer_store_dwordx4 {vr(ACK+4,4)}, v{vL16}, {sr(S_DT,4)}, s{sA} offen offset:1024 {sc}')
    if not FAST() and not first:
        a(f's_mov_b32 s{S_DT}, s{S_LY}')
        a(f's_mov_b32 s{S_DT+1}, s{S_LY+1}')
    for it in wo[:4]:
        emit(it)
    a.barrier()
    a.wait(pst)
    emit(flag_store(S_LY, f's{sU}'))
    for it in wo[4:]:
        emit(it)
    if first and not FAST():
        poll(S_WS, vL16, f's{sH}', nonzero=True)
        a.barrier()
        for it in alpha:
            emit(it)
    p2_setup()
    stamp('p1end')


ACC0, ACC1 = 208, 224
AAC2, AAC3 = 224, 240


def accs(s):
    return [vr(ACC0, 16), vr(ACC1, 16), ar(AAC2, 16), ar(AAC3, 16)][s]


def red_setup(base, RA):
    o = []
    for s in (1, 2, 3):
        o += [f's_xor_b32 s{sA}, s{sW}, {s}',
              f's_mul_i32 s{sA}, s{sA}, 12288',
              f's_add_u32 s{sA}, s{sA}, {base + (s-1)*4096}',
              f'v_add_u32 v{RA+s}, s{sA}, v{vL16}']
    o += [f's_mul_i32 s{sA}, s{sW}, 12288',
          f's_add_u32 s{sA}, s{sA}, {base}',
          f'v_add_u32 v{RA}, s{sA}, v{vL16}']
    return o


def red_write(s, RA):
    o = []
    for q in range(4):
        d = [None, vr(ACC1 + 4 * q, 4), ar(AAC2 + 4 * q, 4), ar(AAC3 + 4 * q, 4)][s]
        o.append(f'ds_write_b128 v{RA+s}, {d} offset:{q*K}')
    return o


sOX, sOS, sOF = 97, 98, 99


def own_consts():
    a(f's_mul_i32 s{sOX}, s{sOWN}, {28*K}')
    a(f's_lshl_b32 s{sB}, s{sOFT}, 11')
    a(f's_add_u32 s{sOX}, s{sOX}, s{sB}')
    a(f's_lshl_b32 s{sOS}, s{sOWN}, 12')
    a(f's_cmp_ge_u32 s{sOFT}, 7')
    a(f's_cselect_b32 s{sA}, 7, 0')
    a(f's_cselect_b32 s{sB}, 512, 0')
    a(f's_add_u32 s{sOS}, s{sOS}, s{sB}')
    a(f's_sub_u32 s{sA}, s{sOFT}, s{sA}')
    a(f's_lshr_b32 s{sB}, s{sA}, 1')
    a(f's_lshl_b32 s{sB}, s{sB}, 10')
    a(f's_add_u32 s{sOS}, s{sOS}, s{sB}')
    a(f's_and_b32 s{sA}, s{sA}, 1')
    a(f's_lshl_b32 s{sA}, s{sA}, 3')
    a(f's_add_u32 s{sOS}, s{sOS}, s{sA}')
    a(f's_lshl_b32 s{sOF}, s{sOWN}, 9')
    a(f's_lshl_b32 s{sB}, s{sOFT}, 5')
    a(f's_add_u32 s{sOF}, s{sOF}, s{sB}')


def res_unpack(RU):
    o = []
    for m in range(8):
        o.append(f'v_lshlrev_b32 v{RU+2*m}, 16, v{vXRES+m}')
        o.append(f'v_and_b32 v{RU+2*m+1}, 0xffff0000, v{vXRES+m}')
    return o


def red_finish(final, RB, RU, RA, nm, xb, stb, flb, sc, mid, pre=()):
    for it in pre:
        emit(it)
    a.wait_lg0()
    a.barrier()
    toks = []
    for i in range(12):
        toks.append(a(f'ds_read_b128 {vr(RB+4*i,4)}, v{RA} offset:{i*K}'))
    if final is not True:
        a(f's_add_u32 s{sA}, s{sOX}, {xb}')
        a(f's_add_u32 s{sB}, s{sOS}, {stb}')
        a(f's_add_u32 s{sZW}, s{sOF}, {flb}')
    for r in range(0, 16, 2):
        a(f'v_pk_add_f32 {vr(ACC0+r,2)}, {vr(ACC0+r,2)}, {vr(RU+r,2)}')
    S, Q, t0, t1, tl = RU, RU + 1, RU + 2, RU + 3, RU + 4
    if final is not True:
        a(f'v_mov_b32 v{S}, 0')
        a(f'v_mov_b32 v{Q}, 0')
    for s in range(3):
        a.wait(toks[4 * s + 3])
        for r in range(0, 16, 2):
            a(f'v_pk_add_f32 {vr(ACC0+r,2)}, {vr(ACC0+r,2)}, {vr(RB+16*s+r,2)}')
    for m in range(8):
        a(f'v_cvt_pk_bf16_f32 v{vXRES+m}, v{ACC0+2*m}, v{ACC0+2*m+1}')
    if final is True:
        final_store()
        return
    if final == 'dyn':
        a(f's_cmp_lg_u32 s{sL}, 0')
        a('s_cbranch_scc1 ' + LB_('L_final'))
    a(f'buffer_store_dwordx4 {vr(vXRES,4)}, v{vL16}, {sr(S_DT,4)}, s{sA} offen {sc}')
    a(f'buffer_store_dwordx4 {vr(vXRES+4,4)}, v{vL16}, {sr(S_DT,4)}, s{sA} offen offset:1024 {sc}')
    for m in range(8):
        a(f'v_dot2c_f32_bf16 v{S}, s{sONES}, v{vXRES+m}')
        a(f'v_dot2c_f32_bf16 v{Q}, v{vXRES+m}, v{vXRES+m}')
    a(f'v_mov_b32 v{t0}, v{S}')
    a(f'v_mov_b32 v{t1}, v{Q}')
    a(f'v_permlane32_swap_b32 v{S}, v{t0}')
    a(f'v_permlane32_swap_b32 v{Q}, v{t1}')
    a(f'v_pk_add_f32 {vr(S,2)}, {vr(S,2)}, {vr(t0,2)}')
    a('s_mov_b32 exec_hi, 0')
    lt = a(f'buffer_store_dwordx2 {vr(S,2)}, v{vL16}, {sr(S_DT,4)}, s{sB} offen {sc}')
    a('s_mov_b64 exec, -1')
    stamp(nm + 'st')
    mid()
    a.wait(lt)
    emit(flag_store(S_LY, f's{sZW}'))


def final_store():
    a(f'v_and_b32 v18, 31, v{vLANE}')
    a(f'v_lshrrev_b32 v19, 5, v{vLANE}')
    a(f'v_mul_u32_u24 v{vROW}, 896, v18')
    a(f'v_lshl_add_u32 v{vROW}, v19, 4, v{vROW}')
    a(f's_mul_i32 s{sA}, s{sOWN}, 28672')
    a(f's_lshl_b32 s{sB}, s{sOFT}, 6')
    a(f's_add_u32 s{sA}, s{sA}, s{sB}')
    a(f'buffer_store_dwordx4 {vr(vXRES,4)}, v{vROW}, {sr(S_OUT,4)}, s{sA} offen {OSC}')
    a(f'buffer_store_dwordx4 {vr(vXRES+4,4)}, v{vROW}, {sr(S_OUT,4)}, s{sA} offen offset:32 {OSC}')


def idle_touch(base, per_wave_bytes, n, t=16):
    if not IDLE:
        return
    a(f's_sub_u32 s{sA}, s{sJ}, 28')
    a(f's_lshl_b32 s{sA}, s{sA}, 2')
    a(f's_add_u32 s{sA}, s{sA}, s{sW}')
    a(f's_mul_i32 s{sA}, s{sA}, {per_wave_bytes}')
    a(f's_add_u32 s{sA}, s{sA}, {base}')
    a(f'v_lshlrev_b32 v{t}, 7, v{vLANE}')
    for i in range(n):
        a(f'buffer_load_dword v{t+1}, v{t}, {sr(S_WS,4)}, s{sA} offen sc1')
        a(f's_add_u32 s{sA}, s{sA}, 8192')


def p2_setup():
    dma_setup(vROW, sW3SRC, 56 * K, LBETA)
    a(f'v_and_b32 v240, 3, v{vLANE}')
    a(f'v_lshlrev_b32 v240, 5, v240')
    a(f'v_bfe_u32 v241, v{vLANE}, 2, 1')
    a(f'v_lshl_add_u32 v240, v241, 9, v240')
    a(f's_lshl_b32 s{sC}, s{sTILE2}, 9')
    a(f's_lshl_b32 s{sA}, s{sW}, 7')
    a(f's_add_u32 s{sC}, s{sC}, s{sA}')
    a(f's_add_u32 s{sC}, s{sC}, {F1Q}')
    a(f's_lshl_b32 s{sE}, s{sOWN}, 15')
    a(f's_lshl_b32 s{sA}, s{sW}, 13')
    a(f's_add_u32 s{sE}, s{sE}, s{sA}')
    a(f's_add_u32 s{sE}, s{sE}, {PQ}')
    a(f's_xor_b32 s{sF}, s{sE}, 0x8000')
    a(f's_add_u32 s{sH}, s{sREP}, s{sW1K}')
    a(f's_add_u32 s{sH}, s{sH}, {F1}')
    a(f's_lshl_b32 s{sD}, s{sW}, 14')


def phase2(L):
    WO, PQR, KVR = 16, 80, 144
    ODS = (240, 160)
    KB = (144, 152, 176, 192)
    tag = f'{L}'
    beta = dma_items(vROW, LBETA, 56, 2)
    if L == 0:
        a(f's_add_u32 s{sI}, s{sW3SRC}, s{sW2K}')
        a(f's_add_u32 s{sG}, s{sREP}, s{sW1K}')
        al = []
        for r in range(7):
            al.append([f's_add_u32 m0, s{sW2K}, {LALPHA + r*8*K}', f's_add_u32 s85, s{sI}, {r*8*K}',
                       f'buffer_load_dwordx4 v{vL16}, {sr(S_WS,4)}, s85 offen sc1 lds'])
            al.append([f'buffer_load_dwordx4 v{vL16}, {sr(S_WS,4)}, s85 offen offset:1024 sc1 lds'])
        beta = al + beta
    a(f's_cmp_ge_u32 s{sJ}, 28')
    with cold('s_cbranch_scc1', back=LB_('L_p2skip' + tag)):
        if L == 0:
            poll(S_WS, vL16, f's{sG}', nonzero=True, sleep=2)
            a.barrier()
        for it in beta:
            emit(it)
        if L == 0:
            idle_touch(WDR, 7 * WDS // 16, IDN)
        elif L == 1:
            idle_touch(W3R + 112 * K, W3S, IDN)
        p3_setup(L)
        a.wait_vm0()
    with cond():
        poll(S_LY, 240, f's{sC}')
        stamp('p2pq')
        pt = {}
        for aa, s in ((1, sF), (0, sE)):
            for hl in range(4):
                for ks in range(2):
                    pt[hl, aa] = a(f'buffer_load_dwordx4 {vr(PQR+16*hl+8*aa+4*ks,4)}, v{vL16}, {sr(S_DT,4)}, s{s} offen offset:{(hl%2)*2048+ks*K} sc1')
                if hl == 1:
                    a(f's_add_u32 s{s}, s{s}, 4096')
                if aa == 1 and hl == 1:
                    fchk = a(f'buffer_load_dword v253, v{vL16}, {sr(S_LY,4)}, s{sH} offen sc1')
                if aa == 0 and hl == PQSPLIT:
                    break
        a.wait(fchk)
        check_or_poll(253, S_LY, vL16, f's{sH}', sleep=0)
        stamp('p2poll')
        kt = {}
        lq = []

        def kvl(hl, q):
            kt[hl] = a(f'buffer_load_dwordx4 {vr(KVR+16*hl+4*q,4)}, v{vL16}, {sr(S_LY,4)}, s{sD} offen offset:{q*K} sc1')
            if q == 3:
                a(f's_add_u32 s{sD}, s{sD}, 4096')

        def pql(hl, ks):
            pt[hl, 0] = a(f'buffer_load_dwordx4 {vr(PQR+16*hl+4*ks,4)}, v{vL16}, {sr(S_DT,4)}, s{sE} offen offset:{(hl%2)*2048+ks*K} sc1')
            if hl == 1 and ks == 1:
                a(f's_add_u32 s{sE}, s{sE}, 4096')
        if L == 0:
            bchk = a(f'buffer_load_dword v253, v{vL16}, {sr(S_WS,4)}, s{sG} offen sc1')
        for hl in range(4):
            for q in range(4):
                kvl(hl, q)
        if L == 0:
            a.wait(bchk)
            check_or_poll(253, S_WS, vL16, f's{sG}', nonzero=True, sleep=0)
            a.barrier()
        for hl in range(PQSPLIT + 1, 4):
            for ks in range(2):
                lq.append(lambda h_=hl, k_=ks: pql(h_, k_))
        wot = {}
        cw = []
        if CARRY:
            a(f's_and_b32 s{sA}, s{sW1K}, 0x400')
            a(f's_add_u32 s80, s{sWOSRC}, s{sA}')
            a(f's_xor_b32 s{sA}, s{sA}, 0x400')
            a(f's_add_u32 s81, s{sWOSRC}, s{sA}')
        ncw = 0
        for it in CARRY:
            m_ = re.match(r'buffer_load_dwordx4 ([va])\[(\d+):', it[-1])
            assert m_
            if m_.group(1) == 'v':
                k_ = (int(m_.group(2)) - 16) // 4

                def f(k_=k_):
                    a(f's_add_u32 s78, s{80 + k_ % 2}, {(k_ // 2) * 2048}')
                    wot[k_ // 4] = a(f'buffer_load_dwordx4 {vr(16+4*k_,4)}, v{vL16}, {sr(S_WS,4)}, s78 offen sc1')
                cw.append(f)
            else:
                ncw += 1
        CARRY[:] = []
        for f in cw[:CWN]:
            f()
        beta = cw[CWN:] + lq + beta
        wd2 = []
        if L != 1:
            a(f's_and_b32 s{sA}, s{sW1K}, 0x400')
            a(f's_add_u32 s76, s{sWDSRC}, s{sA}')
            a(f's_xor_b32 s{sA}, s{sA}, 0x400')
            a(f's_add_u32 s77, s{sWDSRC}, s{sA}')
            for k_ in range(WDP1 - ncw, WDP1 + WDP2):
                n_, b = k_ // 2, k_ % 2
                wd2.append([f's_add_u32 s78, s{76+b}, {n_*2048}',
                            f'buffer_load_dwordx4 {ar(8*n_+4*b,4)}, v{vL16}, {sr(S_WS,4)}, s78 offen sc1'])

        def cvt(hl):
            return [f'v_cvt_pk_bf16_f32 v{KB[hl]+m}, v{KVR+16*hl+2*m}, v{KVR+16*hl+2*m+1}' for m in range(8)]
        units = [(hl, aa) for aa in (1, 0) for hl in range(4)]

        def oM(u):
            hl, aa = units[u]
            D = vr(ODS[u % 2], 16)
            P = PQR + 16 * hl + 8 * aa
            return [f'{MF} {D}, {vr(KB[hl],4)}, {vr(P,4)}, 0',
                    f'{MF} {D}, {vr(KB[hl]+4,4)}, {vr(P+4,4)}, {D}']

        def scale(u):
            hl, aa = units[u]
            D = ODS[u % 2]
            P = PQR + 16 * hl + 8 * aa
            o = [f'v_add_f32 v{D+14}, s{sEPS6}, v{D+14}',
                 f'v_rcp_f32 v{D+14}, v{D+14}']
            for m in range(7):
                o.append(f'v_mul_f32 v{D+2*m}, v{D+2*m}, v{D+14}')
                o.append(f'v_mul_f32 v{D+2*m+1}, v{D+2*m+1}, v{D+14}')
                o.append(f'v_cvt_pk_bf16_f32 v{P+m}, v{D+2*m}, v{D+2*m+1}')
            return o

        def woM(u, bs):
            hl, aa = units[u]
            P = PQR + 16 * hl + 8 * aa
            o = []
            for b in bs:
                for ks in range(2):
                    D = accs(2 * aa + b)
                    c = '0' if (hl == 0 and ks == 0) else D
                    o.append(f'{MF} {D}, {vr(WO+16*hl+8*ks+4*b,4)}, {vr(P+4*ks,4)}, {c}')
            return o
        RU, RA = 160, 184
        a.wait(kt[0])
        emit(cvt(0))
        emit(oM(0))
        a.wait(kt[1])
        emit(cvt(1))
        m1 = oM(1)
        vs = scale(0)
        a(m1[0]); shadow([], vs)
        a(m1[1]); emit(vs)
        wr = []
        for u in range(9):
            if u < 4:
                ms = woM(u, (0, 1))
            elif u < 8:
                ms = woM(u, (1,)) + (woM(u - 2, (0,)) if u >= 6 else [])
            else:
                ms = woM(6, (0,)) + woM(7, (0,))
            vs = scale(u + 1) if u + 1 < 8 else []
            if u < 4:
                while any(getattr(x, '__name__', '') == 'f' and x.__defaults__[0] // 4 <= u for x in beta):
                    beta.pop(0)()
                a.wait(wot.get(u))
            if u < 2:
                a.wait(kt[u + 2])
                vs = cvt(u + 2) + vs
            if u == 2:
                vs = vs + red_setup(LB, RA)[:8]
            if u == 3:
                vs = vs + red_setup(LB, RA)[8:]
            if u == 4:
                wr = red_write(2, RA) + red_write(3, RA)
            if u == 7:
                vs = res_unpack(RU)
            if u == 8:
                wr = wr + red_write(1, RA)
            if u + 2 < 8:
                ms = ms[:2] + ['W'] + oM(u + 2) + ms[2:]
            k_ = 0
            for m in ms:
                if m == 'W':
                    a.wait(pt[units[u + 2]])
                    if u < 2:
                        while any(x in vs for x in cvt(u + 2)):
                            a(vs.pop(0))
                    continue
                a(m)
                mem = []
                if beta and k_ % 2 == 0:
                    mem.append(beta.pop(0))
                elif wd2 and k_ % 2 == 0:
                    mem.append(wd2.pop(0))
                if wr and (k_ % 2 == 1 or u == 8) and not (u in (4, 8) and k_ == 0):
                    mem.append(wr[:1]); wr = wr[1:]
                shadow(mem, vs)
                k_ += 1
            emit(vs)
        wd2 = beta + wd2
        stamp('p2mfma')
        emit(wr)
        sc = LS()
        red_finish(False, 80, RU, RA, 'p2', X1, ST1, F2, sc, lambda: p3_setup(L), pre=wd2)
    a.label(LB_('L_p2skip' + tag))
    stamp('p2end')


p3D1, p3D3, p3SA, p3SB = 228, 229, 240, 241
p3D2 = 243
p3FL, p3HA, p3HB, p3FV = 244, 245, 246, 247


def p3_setup(L):
    vFL, vHA, vHB = p3FL, p3HA, p3HB
    x_prep(F2, X1, ST1)
    dma_setup(p3D3, sW3SRC, 112 * K, LB)
    dma_setup(p3D1, sW3SRC, 147 * K, LALPHA)
    if L is None:
        a(f's_cmp_lg_u32 s{sL}, 0')
        a(f's_cselect_b32 s{sA}, {OOB:#x}, s{sW1SRC}')
        a(f'v_add_u32 v{p3D2}, s{sA}, v{vL16}')
    elif L == 0:
        a(f'v_add_u32 v{p3D2}, s{sW1SRC}, v{vL16}')
    a(f's_mul_i32 s{sG}, s{sTILE1}, {112*K}')
    a(f's_mul_i32 s{sA}, s{sHC}, {7*K}')
    a(f's_add_u32 s{sG}, s{sG}, s{sA}')
    a(f's_add_u32 s{sG}, s{sG}, {HB}')
    a(f's_add_u32 s{sH}, s{sG}, 4096')
    a(f's_lshl_b32 s{sU}, s{sTILE1}, 9')
    a(f's_lshl_b32 s{sA}, s{sHC}, 2')
    a(f's_add_u32 s{sU}, s{sU}, s{sA}')
    a(f's_add_u32 s{sU}, s{sU}, {F3}')


def p4_addr():
    vFL, vHA, vHB = p3FL, p3HA, p3HB
    return [f'v_and_b32 v{vFL}, 3, v{vLANE}',
            f'v_lshlrev_b32 v{vFL}, 2, v{vFL}',
            f'v_bfe_u32 v{vHA}, v{vLANE}, 2, 1',
            f'v_lshl_add_u32 v{vFL}, v{vHA}, 9, v{vFL}',
            f's_lshl_b32 s{sA}, s{sTILE2}, 9',
            f's_lshl_b32 s{sB}, s{sW}, 4',
            f's_add_u32 s{sA}, s{sA}, s{sB}',
            f's_add_u32 s85, s{sA}, {F3}',
            f'v_add_u32 v{vFL}, s85, v{vFL}',
            f's_mul_i32 s{sB}, s{sW}, {28*K}',
            f's_add_u32 s{sB}, s{sB}, {HB}',
            f's_mul_i32 s{sA}, s{sOWN}, {112*K}',
            f's_add_u32 s{sA}, s{sA}, s{sB}',
            f'v_add_u32 v{vHA}, s{sA}, v{vL16}',
            f's_xor_b32 s{sA}, s{sOWN}, 1',
            f's_mul_i32 s{sA}, s{sA}, {112*K}',
            f's_add_u32 s{sA}, s{sA}, s{sB}',
            f'v_add_u32 v{vHB}, s{sA}, v{vL16}']


def phase34(L):
    ACC = 128
    WR, NW = 192, 8
    SB = 176
    XAUG = 224
    vD1, vD3, vSA, vSB, vD2 = p3D1, p3D3, p3SA, p3SB, p3D2
    vFL, vHA, vHB, vFV = p3FL, p3HA, p3HB, p3FV
    vFV2 = 242
    PRE = XPRE
    HR, NH = 16, 28
    tag = f'{L}'
    LOOK = 6
    NG = 3 if G3 else 2
    steps = [(t, ks) for ks in range(29) for t in range(NG)]
    for t in range(NG, 7):
        steps += [(t, ks) for ks in range(29)]

    def addr(t, ks):
        if G3 and t < 3:
            p = 3 * ks + t
            return LALPHA + p * K if p < 56 else LBETA + (p - 56) * K
        if ks == 28 and t < 3:
            return LBETA + t * K
        if t < 2:
            return LALPHA + (2 * ks + t) * K
        if t == 2:
            return LBETA + (3 + ks) * K
        if t == 3:
            return LBETA + (31 + ks) * K
        if t == 4:
            return LB + (4 + ks) * K
        if t == 5:
            return LALPHA + ks * K
        return LALPHA + (29 + ks) * K if ks < 27 else LB + (33 + ks - 27) * K
    n = len(steps)
    accof = {0: 0, 1: 1, 2: 2, 3: 3, 4: 0, 5: 1, 6: 2}
    rt, xt, hst, ht, chk = {}, {}, {}, {}, {}

    def hsc(t):
        return LS() if (L == 1 and t >= HPL) else 'sc1'

    def epi(t, D=None, Sx=None):
        Sx = ACC + 16 * accof[t] if Sx is None else Sx
        D = Sx if D is None else D
        o = []
        for r in range(8):
            o.append(f'v_mul_f32 v{D+r}, v{Sx+r}, v{vC2}')
        for r in range(8):
            o.append(f'v_exp_f32_e64 v{D+r}, -v{D+r}')
            if r >= 2:
                o.append(f'v_fma_f32 v{D+r-2}, v{D+r-2}, v{vISTD}, v{vISTD}')
        for r in (6, 7):
            o.append(f'v_fma_f32 v{D+r}, v{D+r}, v{vISTD}, v{vISTD}')
        for r in range(8):
            o.append(f'v_rcp_f32 v{D+r}, v{D+r}')
            if r >= 2:
                o.append(f'v_mul_f32 v{D+r-2}, v{D+r-2}, v{Sx+8+r-2}')
        for r in (6, 7):
            o.append(f'v_mul_f32 v{D+r}, v{D+r}, v{Sx+8+r}')
        for m in range(4):
            o.append(f'v_cvt_pk_bf16_f32 v{D+8+m}, v{D+2*m}, v{D+2*m+1}')
        s = sG if t < 4 else sH
        o.append(f'buffer_store_dwordx4 {vr(D+8,4)}, v{vL16}, {sr(S_DT,4)}, s{s} offen offset:{(t%4)*K} {hsc(t)} ; H{t}')
        return o

    def issue_rd(i):
        if i >= n:
            return
        t, ks = steps[i]
        d = WR + 4 * (i % NW)
        rt[i] = read_frag(d, addr(t, ks)) if ks < 28 else read_aug(d, addr(t, ks), 251 + (i % 3))

    def flag_ld(stg):
        if stg == 0 or not FAST():
            chk[stg] = a(f'buffer_load_dword v{vFV}, v{vFL}, {sr(S_LY,4)}, 0 offen offset:{64*stg} sc1')
        else:
            a(f's_buffer_load_dwordx4 s[76:79], {sr(S_LY,4)}, s85 offset:{64*stg}')
            a(f's_buffer_load_dwordx4 s[80:83], {sr(S_LY,4)}, s85 offset:{64*stg+512}')

    def flag_chk(stg):
        if FAST():
            a('s_waitcnt lgkmcnt(0)')
            a('s_and_b64 s[76:77], s[76:77], s[78:79]')
            a('s_and_b64 s[80:81], s[80:81], s[82:83]')
            a('s_and_b64 s[76:77], s[76:77], s[80:81]')
            a('s_and_b32 s76, s76, s77')
        else:
            a.wait(chk[stg])
            a(f'v_cmp_ne_u32 vcc, 1, v{vFV}')
            a('s_cmp_eq_u64 vcc, 0')
        assert 6 in hst
        with cold('s_cbranch_scc0'):
            a.wait_vm0()
            emit(flag_store(S_LY, f's{sU}', imm=128))
            emit(flag_store(S_LY, f's{sU}', imm=192))
            poll(S_LY, vFL, 0, imm=64 * stg)

    CHK = {24: 1, 40: 2, 48: 3}

    def hld(idx, chkflags=True):
        if idx >= 56:
            return
        if chkflags and idx + 4 in CHK:
            flag_ld(CHK[idx + 4])
        if chkflags and idx in CHK:
            flag_chk(CHK[idx])
        n_, aa = idx // 2, idx % 2
        t, cc = n_ // 4, n_ % 4
        if aa == 0:
            a(f's_mov_b32 s{sE}, {(cc*7+t)*K}')
        ht[idx] = a(f'buffer_load_dwordx4 {vr(HR+4*(idx%NH),4)}, v{(vHA,vHB)[aa]}, {sr(S_DT,4)}, s{sE} offen sc1')

    a.wait_lg0()
    if BEARLY:
        a.barrier()
        for i in range(LOOK):
            issue_rd(i)
    poll(S_LY, 240, f's{sC}')
    stamp('p3poll')
    for ks in range(4):
        xt[ks] = x_load(ks)
    if not BEARLY:
        a.barrier()
        for i in range(LOOK):
            issue_rd(i)
    for ks in range(4, PRE):
        xt[ks] = x_load(ks)
    fill, owner = [], []
    done_at = {}
    wd = [] if L == 1 else wfrag_items(lambda n_, b: ar(8 * n_ + 4 * b, 4), sWDSRC, (WDP1 + WDP2) // 2, 28, vSA, vSB, sF)
    ft = [[f'v_and_b32 v233, 0x80, v{vL4}', f'buffer_load_dword v233, v233, {sr(S_LY,4)}, s{sU} offen sc1']] if FT else []
    if HT and FAST() and (L == 1 or HT > 1):
        ft += [[f'v_min_u32 v234, 55, v{vLANE}', f'v_lshlrev_b32 v234, 7, v234', f'buffer_load_dword v234, v234, {sr(S_DT,4)}, s{sG} offen sc1']]
    bg = dma_items(vD3, LB, 36, 1) + ['M3'] + ft + wd[:WDP3]
    wd4 = wd[WDP3:]
    assert len(wd4) <= 16
    marks = {}
    cur = [0]

    def pop():
        x = fill.pop(0); o = owner.pop(0)
        t = a(x)
        if '; H' in x:
            hst[o] = (t, cur[0])

    def pub(stg, last_tile):
        a.wait(hst[last_tile][0])
        emit(flag_store(S_LY, f's{sU}', imm=64 * stg))

    def xl(ks):
        xt[ks] = x_load(ks)

    def next_bg():
        while bg and isinstance(bg[0], str):
            marks[bg.pop(0)] = mark()
        return bg.pop(0) if bg else None
    pubs = [(0, 2), (1, 4)]
    for i, (t, ks) in enumerate(steps):
        cur[0] = i
        if i == (45 if G3 else 34):
            a.wait(chk['st'])
            s_ = [f's_and_b32 s{sA}, s{sW1K}, 0x400', f'v_add_u32 v{vSA}, s{sA}, v{vL16}', f'v_xor_b32 v{vSB}, 0x400, v{vSA}'] + \
                stats_sum(SB) + stats_finish(XAUG, SB) + p4_addr()
            fill += s_; owner += [-1] * len(s_)
        stamp(f'i{i}', fine=True) if i in (1, 30, 57, 87, 116, 145, 174) else None
        if i % 2 == 0:
            a.wait(rt[min(i + 1, n - 1)], xt.get(steps[min(i + 1, n - 1)][1]), xt.get(ks))
        if i == 56:
            a.barrier()
            k3 = bg.index('M3') + 1 if 'M3' in bg else 0
            bg = bg[:k3] + dma_items(vD1, LALPHA, 56, 2) + ['M4'] + code_touch(232, 233) + bg[k3:]
        if i + LOOK == 112:
            a.wait(marks['M3'])
            a.barrier()
        if i + LOOK == 145:
            a.wait(marks['M4'])
            a.barrier()
            bg = code_touch(232, 233) + bg
        D = vr(ACC + 16 * accof[t], 16)
        if ks == 0 and t >= 4:
            assert (t - 4) not in owner
        if ks == 28:
            assert -1 not in owner
        X = vr(16 + 4 * ks, 4) if ks < 28 else vr(XAUG, 4)
        a(f'{MF} {D}, {vr(WR+4*(i%NW),4)}, {X}, {"0" if ks == 0 else D}')
        if ks == 28:
            done_at[t] = i
        for tt, di in list(done_at.items()):
            if i >= di + 2:
                e = epi(tt)
                fill += e; owner += [tt] * len(e)
                del done_at[tt]
        pre = main = None
        if t == 0 and ks + PRE < 28:
            main = (lambda k_=ks + PRE: xl(k_))
        elif t == NG - 1 and ks < 8 and ks % 2 == 0:
            main = (lambda k_=ks // 2: chk.__setitem__('st', st_load(k_, SB)))
        elif G3 and t == 2 and ks + PRE < 28 and ks % 2 == 0 and 'M3' not in marks:
            pre, main = split_item(next_bg())
        elif t == 6:
            if ks % 2 == 1:
                main = (lambda k_=ks // 2: hld(k_))
        elif i == 173:
            main = lambda: flag_ld(0)
        elif i % 2 == 0 and i >= NG * (28 - PRE):
            pre, main = split_item(next_bg())
        extra = None
        if fill and '; H' in fill[0]:
            extra = pop
        elif pubs and pubs[0][1] in hst and i >= hst[pubs[0][1]][1] + PUBD and i % 2 == 1:
            extra = (lambda p=pubs.pop(0): pub(*p))
        n0 = len(a.ins)
        for f in (pre, lambda: issue_rd(i + LOOK), main, extra):
            if f is None:
                continue
            f() if callable(f) else emit(f)
        budget = CAP - (len(a.ins) - n0) - (i % 2)
        while fill and '; H' not in fill[0] and budget >= cost(fill[0]):
            budget -= cost(fill[0])
            pop()
    assert not pubs and next_bg() is None, len(bg)
    print('P3: h stores at steps', {t: v[1] for t, v in hst.items()}, 'left', len(fill))
    assert not fill and 5 in hst
    stamp('p3mfma')

    RU, RA = 192, 128
    w1 = [] if L == 1 else dma_items(vD2, 0, 88, 2)
    nxt = (lambda: p1_setup(False)) if L != 1 else (lambda: None)
    a(f's_cmp_ge_u32 s{sJ}, 28')
    with cold('s_cbranch_scc1', back=LB_('L_p4skip' + tag)):
        emit(epi(6))
        pub(2, 5)
        a.barrier()
        a.wait_vm0()
        emit(flag_store(S_LY, f's{sU}', imm=192))
        if L == 0:
            idle_touch(W1R, W1S, 11)
        if L == 1 and WB:
            a('buffer_wbl2 sc1')
        for it in w1:
            emit(it)
        nxt()
    with cond():
        a.wait(chk[0])
        a(f'v_cmp_ne_u32 vcc, 1, v{vFV}')
        a('s_cmp_eq_u64 vcc, 0')
        saved = dict(ht)
        with cold('s_cbranch_scc0'):
            emit(epi(6, D=ACC + 48))
            a.wait_vm0()
            emit(flag_store(S_LY, f's{sU}', imm=128))
            emit(flag_store(S_LY, f's{sU}', imm=192))
            poll(S_LY, vFL, 0, imm=0)
            for idx in range(14):
                hld(idx, False)
            a.wait_vm0()
        ht.update(saved)
        fill = epi(6)
        owner = [6] * len(fill)
        later = red_setup(LALPHA, RA) + res_unpack(RU)
        TAIL = 8
        nld = [14]
        todo = ['pub2', 'pub3']
        wt = {}

        def mf(n_, s):
            aa, b = s >> 1, s & 1
            D = accs(s)
            a(f'{MF} {D}, {ar(8*n_+4*b,4)}, {vr(HR+4*((2*n_+aa)%NH),4)}, {"0" if n_ == 0 else D}')

        def sh(step, load):
            cur[0] = step
            n0 = len(a.ins)
            if load:
                if nld[0] < 56:
                    hld(nld[0]); nld[0] += 1
                elif w1:
                    emit(w1.pop(0))
            elif todo and todo[0] == 'pub2' and step >= 13:
                pub(2, 5); todo.pop(0)
            elif todo and todo[0] == 'pub3' and 6 in hst and step >= hst[6][1] + PUBD2:
                pub(3, 6); todo.pop(0)
                fill.extend(later); owner.extend([-2] * len(later))
            elif wd4:
                wt[0] = emit(wd4.pop(0))
            if step >= 1:
                if fill and '; H' in fill[0]:
                    pop()
                budget = CAP - (len(a.ins) - n0)
                while fill and '; H' not in fill[0] and budget >= cost(fill[0]):
                    budget -= cost(fill[0])
                    pop()
        for n_ in range(28 - TAIL):
            if n_ == P4B:
                a.barrier()
            stamp(f'n{n_}') if ('p4prof' in OPT and n_ in (2, 4, 8, 13, 15, 17)) else None
            a.wait(ht[2 * n_])
            mf(n_, 0); sh(4 * n_, True)
            mf(n_, 1); sh(4 * n_ + 1, False)
            a.wait(ht[2 * n_ + 1])
            mf(n_, 2); sh(4 * n_ + 2, True)
            mf(n_, 3); sh(4 * n_ + 3, 10 <= n_ < 16)
        assert nld[0] == 56 and not fill and not todo and not wd4
        stamp('n20') if 'p4prof' in OPT else None
        a.wait(wt.get(0))
        pend = []
        for s in (3, 2, 1, 0):
            for k_, n_ in enumerate(range(28 - TAIL, 28)):
                a.wait(ht[2 * n_ + 1])
                mf(n_, s)
                if k_ % 2 == 1 and pend:
                    emit(pend[:1]); pend = pend[1:]
                elif w1 and k_ % 2 == 0 and len(w1) > W1KEEP:
                    emit(w1.pop(0))
            if s > 0:
                pend = red_write(s, RA)
        stamp('p4mfma')

        def mid():
            for it in w1:
                emit(it)
            nxt()
        final = {0: False, 1: True, None: 'dyn'}[L]
        xb, stb = (X1, ST1) if FAST() else (X0 + LYB, ST0 + LYB)
        pre4 = w1[:len(w1) // 4 * 2]; w1 = w1[len(pre4):]
        red_finish(final, 16, RU, RA, 'p4', xb, stb, F0 + LYB, LS(), mid, pre=pre4)
    a.label(LB_('L_p4skip' + tag))
    if L != 1:
        stamp('p4end')


def restore(ctx):
    a.vm_issued, a.vm_done, a.lg_issued, a.lg_done = ctx['state']
    ctx['qt'].clear(); ctx['qt'].update(ctx['qt0'])


def build():
    prologue()
    init_phase()
    MODE.update(sc='', sfx='')
    ctx = phase1_kv(True)
    phase1_q(ctx, True)
    phase2(0)
    phase34(0)
    c2 = phase1_kv(False)
    phase1_q(c2, False)
    phase2(1)
    phase34(1)
    a.label('L_done')
    if PROFILE:
        stamp('end')
        a(f's_lshl_b32 s{sA}, s2, 2')
        a(f's_add_u32 s{sA}, s{sA}, s{sW}')
        a(f's_lshl_b32 s{sA}, s{sA}, 8')
        a(f's_add_u32 s{sA}, s{sA}, {PROF}')
        a(f'buffer_store_dword v{vPROF}, v{vL4}, {sr(S_WS,4)}, s{sA} offen')
        if 'dbgout' in OPT:
            a(f's_lshl_b32 s{sA}, s2, 2')
            a(f's_add_u32 s{sA}, s{sA}, s{sW}')
            a(f's_cmp_lg_u32 s{sA}, {77*4+1}')
            a('s_cbranch_scc1 L_end')
            a(f'v_readfirstlane_b32 s{sA}, v{vPROF}')
            a(f'v_subrev_u32 v{vPROF}, s{sA}, v{vPROF}')
            a(f'v_lshlrev_b32 v20, 1, v{vLANE}')
            a(f'v_subrev_u32 v20, {2*int(OPT["dbgout"])}, v20')
            a(f'buffer_store_short v{vPROF}, v20, {sr(S_DBG,4)}, 0 offen sc1')
    a.label('L_end')
    a('s_endpgm')
    a.flush_cold()
    a.label('L_codeend')
    keep = list(STAMPS)
    a.label('L_slow')
    MODE.update(sc='sc1', sfx='_s')
    restore(ctx)
    a('s_nop 7')
    phase1_q(ctx, True)
    a.label('L_layer_s')
    a('s_nop 7')
    phase2(None)
    phase34(None)
    a(f's_cmp_lg_u32 s{sL}, 0')
    a('s_cbranch_scc1 L_done')
    a(f's_mov_b32 s{sL}, 1')
    c2 = phase1_kv(False)
    phase1_q(c2, False)
    a('s_branch L_layer_s')
    a.label('L_final_s')
    final_store()
    a('s_branch L_done')
    a.flush_cold()
    STAMPS[:] = keep


build()
hdr = open('cdna_kernels/' + NAME + '.s.ref').read().split('; Override launch')[0]
out = hdr + f"""; @launch grid=(256,1,1) block=(256,1,1) lds={LDS_BYTES}
.amdgcn_target "amdgcn-amd-amdhsa--gfx950"
.text
.globl {NAME}_kernel
.p2align 8
.type {NAME}_kernel,@function
{NAME}_kernel:
{a.text()}
.section .rodata,"a"
.p2align 6
.amdhsa_kernel {NAME}_kernel
  .amdhsa_next_free_vgpr 512
  .amdhsa_next_free_sgpr 102
  .amdhsa_accum_offset 256
  .amdhsa_group_segment_fixed_size 0
  .amdhsa_kernarg_size 80
  .amdhsa_user_sgpr_count 2
  .amdhsa_user_sgpr_kernarg_segment_ptr 1
  .amdhsa_system_sgpr_workgroup_id_x 1
  .amdhsa_float_denorm_mode_32 3
.end_amdhsa_kernel
"""
outfn = [x for x in sys.argv[1:] if not x.startswith('--')][0]
open(outfn, 'w').write(out)
open(outfn + '.names', 'w').write(','.join(STAMPS))
print('instructions', len(a.ins), 'nops added', a.nops_added)
```

```python
import sys
import contextlib
import re
from asmlib import Asm, vr, ar, sr

NAME = "interleave_layers__linear_attn_block__glu_gated_glu__prompt"
OPT = {}
for x in sys.argv[1:]:
    if x.startswith('--'):
        k, _, v = x[2:].partition('=')
        OPT[k] = v if v else True
PROFILE = 'prof' in OPT
FINE = 'fine' in OPT
CLK = 'clk' in OPT
STOP = OPT.get('stop')
FA = 1
SLEEP = int(OPT.get('sleep', 1))
TOUCH = int(OPT.get('touch', 0))
BUD = int(OPT.get('bud', 3))
XPRE = int(OPT.get('xpre', 8))
HPRE = int(OPT.get('hpre', 16))
HSC = int(OPT.get('hsc', 0))
XSC = int(OPT.get('xsc', 0))
TLBW = int(OPT.get('tlbw', 0))
XI = int(OPT.get('xi', 4))
XA = int(OPT.get('xa', 10))
CT = int(OPT.get('ct', 1))
FT = int(OPT.get('ft', 0))
HT = int(OPT.get('ht', 0))
X0N = int(OPT.get('x0n', 0))
IDLE = int(OPT.get('idle', 0))
OSC = OPT.get('osc', '')
PQSC = int(OPT.get('pqsc', 0))
WB = int(OPT.get('wb', 0))
IDN = int(OPT.get('idn', 11))
HPL = int(OPT.get('hpl', 9))
G3 = int(OPT.get('g3', 1))
P4B = int(OPT.get('p4b', 1))
BEARLY = int(OPT.get('bearly', 1))
WDP2 = int(OPT.get('wdp2', 4))
W1KEEP = int(OPT.get('w1keep', 0))
CARRYON = int(OPT.get('carry', 0))
CWN = int(OPT.get('cwn', 4))
EPD = int(OPT.get('epd', 1))
STA = int(OPT.get('sta', 10))
LUP = int(OPT.get('lup', 16))
F1AT0 = int(OPT.get('f1at0', 22))
CAP3 = int(OPT.get('cap3', 7))
UQ = int(OPT.get('uq', 1))
LDLY = int(OPT.get('ldly', 0))
LGAP = int(OPT.get('lgap', 0))
USC = OPT.get('usc', 'sc1').replace('+', ' ')
RT = int(OPT.get('rt', 0))
PA = int(OPT.get('pa', 0))
UNT = 'nt' if int(OPT.get('unt', 1)) else ''
XNT = 'nt' if int(OPT.get('xnt', 0)) else ''
XNT2 = 'nt' if int(OPT.get('xnt', 0)) > 1 else ''
WSC = '' if 'nowsc' in OPT else 'sc1'
STAMPS = []

IB = 0x0
W1R = 0x100000; W1S = 87 * 1024
WOR = 0x280000
W3R = 0x300000; W3S = 203 * 1024
WDR = 0x680000; WDS = 224 * 1024
LYB = 0x1000000
KV = 0x0
F1 = 0x10000
F1Q = 0x18000
F3 = 0x30000
F2 = 0x20000
F0 = 0x28000
ST1 = 0x40000
ST0 = 0x80000
PQ = 0x100000
X1 = 0x300000
X0 = 0x500000
HB = 0x700000
PROF = 0x3000000
WS_BYTES = 256 << 20
OOB = 0x40000000

K = 1024
LBETA, LB, LALPHA = 0, 56 * K, 104 * K
LRS = 87 * K
LKVS = 88 * K
LDS_BYTES = 160 * K

S_WS, S_X, S_WQKV, S_WO, S_WG, S_WU, S_WD, S_OUT, S_DBG = 4, 8, 12, 16, 20, 24, 28, 32, 36
S_T0, S_T1 = 40, 44
S_LY = 40
S_DT = 44
sW, sJ, sHC, sTB, sFB, sL, sTMO, sPI = 48, 49, 50, 51, 52, 53, 54, 55
sTILE1, sTILE2, sOWN, sOFT = 56, 57, 58, 59
sLN2, sEPS6 = 60, 62
sONES = 84
sW1K, sW2K, sW4K = 64, 65, 66
sW1SRC, sW3SRC, sWOSRC, sWDSRC = 67, 68, 69, 70
sRBG, sREP = 71, 72
sG, sH, sI = 73, 74, 75
sA, sB, sC, sD, sE, sF = 86, 87, 88, 89, 90, 91
sP0 = 92
sU = 94
sXID = 95
sZW = 96
sPC = 100

vLANE, vL16, vL16b, vL16c, vROW, vAUG, vL4, vPROF = 0, 1, 2, 3, 4, 5, 6, 7
vXRES = 8
LOG2E = 0x3FB8AA3B
LN2 = 0x3F317218
EPS6 = 0x358637BD
EPS5 = 0x3727C5AC
INV448 = 0x3B124925
MF = 'v_mfma_f32_32x32x16_bf16'

a = Asm()
MODE = {'sc': 'sc1', 'sfx': ''}


def LS():
    return MODE['sc']


def LL():
    return OPT.get('ll', 'sc1').replace('none', '') if MODE['sc'] == '' else 'sc1'


def ALIAS():
    return MODE['sfx'] == '' and 'noalias' not in OPT


def XS():
    return 'sc1' if XSC else LS()


def HS():
    return 'sc1' if HSC else LS()


def LB_(n):
    return n + MODE['sfx']


@contextlib.contextmanager
def cond():
    st = (a.vm_issued, a.vm_done, a.lg_issued, a.lg_done)
    yield
    a.vm_issued, a.vm_done, a.lg_issued, a.lg_done = st


@contextlib.contextmanager
def cold(branch, back=None):
    C = a.uid('Lc'); R = back or a.uid('Lr')
    a(f'{branch} {C}')
    st = (a.vm_issued, a.vm_done, a.lg_issued, a.lg_done)
    a.begin_cold()
    a.label(C)
    a('s_nop 7')
    a('s_nop 3')
    yield
    a('s_nop 4')
    a(f's_branch {R}')
    a.end_cold()
    a.vm_issued, a.vm_done, a.lg_issued, a.lg_done = st
    if back is None:
        a.label(R)


def mark():
    return ('vm', a.vm_issued - 1)


def lds_addr(addr):
    if addr < 65536:
        return vL16, addr
    if addr < 131072:
        return vL16b, addr - 65536
    return vL16c, addr - 131072


def stamp(name, fine=False):
    if not PROFILE or (fine and not FINE):
        return
    STAMPS.append(name)
    a('s_waitcnt lgkmcnt(0)')
    a(f"{'s_memtime' if CLK else 's_memrealtime'} {sr(sP0,2)}")
    a.wait_lg0()
    a(f'v_cmp_eq_u32 vcc, s{sPI}, v{vLANE}')
    a(f'v_mov_b32 v255, s{sP0}')
    a(f'v_cndmask_b32 v{vPROF}, v{vPROF}, v255, vcc')
    a(f's_add_u32 s{sPI}, s{sPI}, 1')


def srd(base, lo, nbytes):
    a(f's_mov_b32 s{base}, s{lo}')
    a(f's_and_b32 s{base+1}, s{lo+1}, 0xffff')
    a(f's_mov_b32 s{base+2}, {nbytes}')
    a(f's_mov_b32 s{base+3}, 0x00020000')


def poll(srdreg, vaddr, soff, imm=0, t=254, sleep=0, nonzero=False):
    L = a.uid('Lpoll'); D = a.uid('Lpd')
    a.label(L)
    if sleep:
        a(f's_sleep {sleep}')
    a(f'buffer_load_dword v{t}, v{vaddr}, {sr(srdreg,4)}, {soff} offen offset:{imm} sc1')
    a(f's_sub_u32 s{sTMO}, s{sTMO}, 1')
    a(f's_max_i32 s{sTMO}, s{sTMO}, 0')
    a(f's_cselect_b64 {sr(sP0,2)}, exec, 0')
    a.wait_vm0()
    a(f'v_cmp_eq_u32 vcc, 0, v{t}' if nonzero else f'v_cmp_ne_u32 vcc, 1, v{t}')
    a(f's_and_b64 exec, {sr(sP0,2)}, vcc')
    a(f's_cbranch_scc1 {L}')
    a('s_mov_b64 exec, -1')


def check_or_poll(v, srdreg, vaddr, soff, imm=0, nonzero=False, sleep=1, t=254):
    a(f'v_cmp_eq_u32 vcc, 0, v{v}' if nonzero else f'v_cmp_ne_u32 vcc, 1, v{v}')
    a('s_cmp_eq_u64 vcc, 0')
    with cold('s_cbranch_scc0'):
        poll(srdreg, vaddr, soff, imm=imm, nonzero=nonzero, sleep=sleep, t=t)


def code_touch(t, d):
    if not CT:
        return []
    return [[f'v_and_b32 v{t}, 3, v{vLANE}',
             f'v_lshlrev_b32 v{t}, 7, v{t}',
             f'global_load_dword v{d}, v{t}, {sr(sPC,2)}']]


def flag_store(srdreg, soff, imm=0, t=254, sc=None):
    sc = LS() if sc is None else sc
    return [f'v_mov_b32 v{t}, 1',
            's_mov_b64 exec, 1',
            f'buffer_store_dword v{t}, off, {sr(srdreg,4)}, {soff} offset:{imm} {sc}',
            's_mov_b64 exec, -1']


def emit(lst):
    t = None
    for x in lst:
        r = a(x)
        t = r if r is not None else t
    return t


def dma_items(vD, lds_base, nfrag, c):
    assert nfrag % (4 * c) == 0
    sWc = {1: sW1K, 2: sW2K, 4: sW4K}[c]
    items = []
    for r in range(nfrag // (4 * c)):
        for i in range(c):
            it = []
            if i == 0:
                it.append(f's_add_u32 m0, s{sWc}, {lds_base + r*4*c*K}')
            it.append(f'buffer_load_dwordx4 v{vD}, {sr(S_WS,4)}, m0 offen offset:{i*K} {WSC} lds')
            items.append(it)
    return items


def dma_setup(vD, ssrc, src_const, lds_base):
    a(f's_add_u32 s{sA}, s{ssrc}, {src_const - lds_base & 0xffffffff:#x}')
    a(f'v_add_u32 v{vD}, s{sA}, v{vL16}')


def prologue():
    if PROFILE:
        a('s_memrealtime s[96:97]')
    a('s_cmp_ge_u32 s2, 256')
    a('s_cbranch_scc1 L_end')
    a('s_load_dwordx16 s[64:79], s[0:1], 0')
    a('s_load_dwordx4 s[80:83], s[0:1], 64')
    a(f's_getpc_b64 {sr(sPC,2)}')
    a.label('L_pc')
    a('s_lshr_b32 s3, s2, 3')
    a('s_lshl_b32 s3, s3, 11')
    a('s_min_u32 s3, s3, (L_codeend - L_pc - 2048)')
    a(f's_add_u32 s{sPC}, s{sPC}, s3')
    a(f's_addc_u32 s{sPC+1}, s{sPC+1}, 0')
    a('v_min_u32 v16, 15, v0')
    a('v_lshlrev_b32 v16, 7, v16')
    a(f'global_load_dword v17, v16, {sr(sPC,2)}')
    a(f'v_lshrrev_b32 v18, 6, v0')
    a(f'v_and_b32 v{vLANE}, 63, v0')
    a(f'v_readfirstlane_b32 s{sW}, v18')
    a(f'v_lshlrev_b32 v{vL16}, 4, v{vLANE}')
    a(f'v_add_u32 v{vL16b}, 0x10000, v{vL16}')
    a(f'v_add_u32 v{vL16c}, 0x20000, v{vL16}')
    a(f'v_lshlrev_b32 v{vL4}, 2, v{vLANE}')
    a(f'v_and_b32 v18, 31, v{vLANE}')
    a(f'v_lshrrev_b32 v19, 5, v{vLANE}')
    a(f'v_mul_u32_u24 v{vROW}, 896, v18')
    a(f'v_lshl_add_u32 v{vROW}, v19, 4, v{vROW}')
    a(f'v_lshlrev_b32 v{vAUG}, 2, v18')
    a(f'v_lshl_add_u32 v{vAUG}, v19, 9, v{vAUG}')
    a(f'v_mov_b32 v{vPROF}, 0')
    a(f's_mov_b32 s{sPI}, 0')
    a(f's_and_b32 s{sC}, s2, 7')
    a(f's_lshr_b32 s{sJ}, s2, 3')
    a(f's_mul_i32 s{sTB}, s{sJ}, 37')
    a(f's_lshr_b32 s{sTB}, s{sTB}, 8')
    a(f's_mul_i32 s{sFB}, s{sTB}, 7')
    a(f's_sub_u32 s{sFB}, s{sJ}, s{sFB}')
    a(f's_cmp_ge_u32 s{sJ}, 28')
    a(f's_cselect_b32 s{sTB}, s{sFB}, s{sTB}')
    a(f's_mov_b32 s{sL}, 0')
    a(f's_mov_b32 s{sTMO}, 100000')
    a(f's_lshl_b32 s{sTILE2}, s{sC}, 3')
    a(f's_lshl_b32 s{sD}, s{sTB}, 1')
    a(f's_add_u32 s{sTILE2}, s{sTILE2}, s{sD}')
    a(f's_lshr_b32 s{sD}, s{sW}, 1')
    a(f's_add_u32 s{sOWN}, s{sTILE2}, s{sD}')
    a(f's_and_b32 s{sD}, s{sW}, 1')
    a(f's_lshl_b32 s{sOFT}, s{sFB}, 1')
    a(f's_add_u32 s{sOFT}, s{sOFT}, s{sD}')
    lf = {1: 0, 2: 1, 4: 2, 8: 3}[FA]
    nh = 16 // FA
    a(f's_and_b32 s{sD}, s{sC}, {FA-1}')
    a(f's_mul_i32 s{sHC}, s{sD}, {nh}')
    a(f's_and_b32 s{sD}, s{sJ}, {nh-1}')
    a(f's_add_u32 s{sHC}, s{sHC}, s{sD}')
    a(f's_lshr_b32 s{sD}, s{sC}, {lf}')
    a(f's_lshl_b32 s{sE}, s{sD}, {lf+1}')
    a(f's_lshr_b32 s{sD}, s{sJ}, {4-lf}')
    a(f's_add_u32 s{sE}, s{sE}, s{sD}')
    a(f's_lshl_b32 s{sTILE1}, s{sE}, 2')
    a(f's_add_u32 s{sTILE1}, s{sTILE1}, s{sW}')
    a(f's_mov_b32 s{sLN2}, {LN2:#x}')
    a(f's_mov_b32 s{sLN2+1}, {LN2:#x}')
    a(f's_mov_b32 s{sEPS6}, {EPS6:#x}')
    a(f's_mov_b32 s{sEPS6+1}, {EPS6:#x}')
    a(f's_mov_b32 s{sONES}, 0x3f803f80')
    for i in range(4):
        a(f'v_mov_b32 v{216+i}, 0')
    a(f'v_and_b32 v{vRHO}, 31, v{vLANE}')
    a(f'v_lshrrev_b32 v{vHI}, 5, v{vLANE}')
    a(f'v_and_b32 v{vSIG}, 0x13, v{vRHO}')
    a(f'v_and_b32 v{vt0}, 4, v{vRHO}')
    a(f'v_lshl_or_b32 v{vSIG}, v{vt0}, 1, v{vSIG}')
    a(f'v_lshrrev_b32 v{vt0}, 1, v{vRHO}')
    a(f'v_and_or_b32 v{vSIG}, v{vt0}, 4, v{vSIG}')
    a(f'v_lshrrev_b32 v{vR8}, 3, v{vLANE}')
    a(f'v_and_b32 v{vC8}, 7, v{vLANE}')
    a(f'v_lshlrev_b32 v{vC8}, 4, v{vC8}')
    a(f'v_lshrrev_b32 v{vt0}, 4, v{vLANE}')
    a(f'v_lshlrev_b32 v{vt0}, 4, v{vt0}')
    a(f'v_xor_b32 v{vt0}, v{vt0}, v{vC8}')
    a(f'v_mul_u32_u24 v{vt1}, 896, v{vR8}')
    a(f'v_add_u32 v{vXS}, v{vt1}, v{vt0}')
    a(f'v_xor_b32 v{vt0}, 64, v{vt0}')
    a(f'v_add_u32 v{vXS+1}, v{vt1}, v{vt0}')
    a('s_waitcnt lgkmcnt(0)')
    if TLBW:
        a(f'v_lshlrev_b32 v20, 20, v{vLANE}')
        a('v_subrev_u32 v20, 0xa00000, v20')
        a('v_min_u32 v20, 0x2100000, v20')
        a('v_mov_b32 v21, s83')
        a('v_add_co_u32 v20, vcc, s82, v20')
        a('v_addc_co_u32 v21, vcc, 0, v21, vcc')
        for ln, p in enumerate((64, 66, 68, 72, 74, 76, 78, 80)):
            a(f'v_writelane_b32 v20, s{p}, {ln}')
            a(f'v_writelane_b32 v21, s{p+1}, {ln}')
        a('global_load_dword v22, v[20:21], off')
    srd(S_X, 64, 2048 * 448 * 2)
    srd(S_WQKV, 66, 448 * 1344 * 2)
    srd(S_WO, 68, 448 * 448 * 2)
    srd(S_WG, 72, 448 * 1792 * 2)
    srd(S_WU, 74, 448 * 1792 * 2)
    srd(S_WD, 76, 1792 * 448 * 2)
    srd(S_OUT, 78, 2048 * 448 * 2)
    srd(S_DBG, 80, 256)
    srd(S_WS, 82, WS_BYTES)
    a(f's_mov_b32 s{sRBG}, s{sE}')
    a(f's_and_b32 s{sREP}, s2, 3')
    a(f's_lshl_b32 s{sREP}, s{sREP}, 12')
    a(f's_lshl_b32 s{sW1K}, s{sW}, 10')
    a(f's_lshl_b32 s{sW2K}, s{sW}, 11')
    a(f's_lshl_b32 s{sW4K}, s{sW}, 12')
    a(f's_lshl_b32 s{sG}, s{sW}, 9')
    a(f's_add_u32 s{sPC}, s{sPC}, s{sG}')
    a(f's_addc_u32 s{sPC+1}, s{sPC+1}, 0')
    a(f's_lshl_b32 s{sG}, s{sW}, 13')
    a(f's_add_u32 s{sG}, s{sG}, {LSTG}')
    a(f's_getreg_b32 s{sXID}, hwreg(HW_REG_XCC_ID)')
    a(f's_and_b32 s{sXID}, s{sXID}, 15')
    a(f's_add_u32 s{sXID}, s{sXID}, 1')
    if PROFILE:
        STAMPS.append('entry')
        a(f'v_mov_b32 v{vPROF}, s96')
        a(f's_mov_b32 s{sPI}, 1')
    stamp('start')


def late_consts():
    a(f's_mul_i32 s{sW1SRC}, s{sHC}, {W1S}')
    a(f's_add_u32 s{sW1SRC}, s{sW1SRC}, {W1R}')
    a(f's_mul_i32 s{sW3SRC}, s{sHC}, {W3S}')
    a(f's_add_u32 s{sW3SRC}, s{sW3SRC}, {W3R}')
    a(f's_lshl_b32 s{sWOSRC}, s{sFB}, 16')
    a(f's_lshl_b32 s{sA}, s{sW}, 14')
    a(f's_add_u32 s{sWOSRC}, s{sWOSRC}, s{sA}')
    a(f's_add_u32 s{sWOSRC}, s{sWOSRC}, {WOR}')
    a(f's_mul_i32 s{sWDSRC}, s{sFB}, {WDS}')
    a(f's_mul_i32 s{sA}, s{sW}, 57344')
    a(f's_add_u32 s{sWDSRC}, s{sWDSRC}, s{sA}')
    a(f's_add_u32 s{sWDSRC}, s{sWDSRC}, {WDR}')
    a(f's_add_u32 s{S_LY}, s{S_WS}, {LYB}')
    a(f's_addc_u32 s{S_LY+1}, s{S_WS+1}, 0')
    a(f's_mov_b32 s{S_LY+2}, {2*LYB}')
    a(f's_mov_b32 s{S_LY+3}, 0x00020000')
    a(f's_mov_b32 s{S_DT}, s{S_LY}')
    a(f's_mov_b32 s{S_DT+1}, s{S_LY+1}')
    a(f's_mov_b32 s{S_DT+2}, {2*LYB}')
    a(f's_mov_b32 s{S_DT+3}, 0x00020000')


UD = 128
UC = 192
vRHO, vHI, vSIG, vR8, vC8 = 204, 205, 206, 207, 212
vt0, vt1, vt2, vt3 = 208, 209, 210, 211
vXS = 214
LSTG = 128 * K
LXS = 0
LCS = 112 * K


PASS = {'p': 'src'}


class Done(Exception):
    pass


def run_setup(fn, *args):
    try:
        fn(*args)
    except Done:
        pass


LSRD = {1: S_WQKV, 2: S_WO, 3: S_WD}


def unit_dma(r, srdreg, vsrc, srow0, srow1):
    if r > 0:
        a(f's_mov_b32 s{74+2*r}, s{srow0}')
        a(f's_mov_b32 s{75+2*r}, s{srow1}')
        a(f'v_mov_b32 v{243+r}, v{vsrc}')
        if srdreg != LSRD[r]:
            for i in range(3):
                a(f's_mov_b32 s{LSRD[r]+i}, s{srdreg+i}')
        return
    if PASS['p'] == 'dst':
        return
    _unit_dma(r, srdreg, vsrc, srow0, srow1)
    raise Done()


def late_dma():
    t = None
    for r in (1, 2, 3):
        for h in range(2):
            a(f's_add_u32 m0, s82, {r*2048 + h*1024}')
            t = a(f'buffer_load_dwordx4 v{243+r}, {sr(LSRD[r],4)}, s{74+2*r+h} offen {UNT} lds')
    return t


def _unit_dma(r, srdreg, vsrc, srow0, srow1):
    a(f's_add_u32 m0, s{sG}, {r*2048}')
    a('s_nop 0')
    a(f'buffer_load_dwordx4 v{vsrc}, {sr(srdreg,4)}, s{srow0} offen {UNT} lds')
    a(f's_add_u32 m0, s{sG}, {r*2048+1024}')
    a('s_nop 0')
    a(f'buffer_load_dwordx4 v{vsrc}, {sr(srdreg,4)}, s{srow1} offen {UNT} lds')


def div7(q, rem, su):
    a(f's_mul_i32 s{q}, s{su}, 9363')
    a(f's_lshr_b32 s{q}, s{q}, 16')
    a(f's_mul_i32 s{rem}, s{q}, 7')
    a(f's_sub_u32 s{rem}, s{su}, s{rem}')


def setup_w1(r, su):
    col, dst, aug = UC + 3 * r, UC + 3 * r + 1, UC + 3 * r + 2
    div7(sA, sB, su)
    a(f's_lshr_b32 s{sC}, s{sA}, 3')
    a(f's_and_b32 s{sA}, s{sA}, 7')
    a(f's_mul_i32 s{sD}, s{sC}, 896')
    a(f's_mul_i32 s{sE}, s{sA}, 112')
    a(f's_add_u32 s{sD}, s{sD}, s{sE}')
    a(f's_lshl_b32 s{sF}, s{sB}, 2')
    a(f's_add_u32 s{sF}, s{sF}, s{sW}')
    a(f's_mul_i32 s{sE}, s{sF}, {16*2688}')
    a(f's_add_u32 s{sD}, s{sD}, s{sE}')
    a(f's_add_u32 s{sE}, s{sD}, {8*2688}')
    a(f'v_mul_u32_u24 v{vt0}, 2688, v{vR8}')
    a(f'v_add_u32 v{vt0}, v{vt0}, v{vC8}')
    a(f'v_cmp_eq_u32 vcc, 112, v{vC8}')
    a(f'v_mov_b32 v{vt1}, {OOB:#x}')
    a(f'v_cndmask_b32 v{vt0}, v{vt0}, v{vt1}, vcc')
    unit_dma(r, S_WQKV, vt0, sD, sE)
    a(f'v_cmp_le_u32 vcc, 24, v{vSIG}')
    a(f'v_subrev_u32 v{vt0}, 2, v{vSIG}')
    a(f'v_cndmask_b32 v{vt0}, v{vSIG}, v{vt0}, vcc')
    a(f'v_mad_u32_u24 v{vt0}, v{vHI}, 28, v{vt0}')
    a(f'v_and_b32 v{vt1}, 0x16, v{vSIG}')
    a(f'v_cmp_eq_u32 vcc, 0x16, v{vt1}')
    a(f'v_cndmask_b32 v{vt0}, v{vt0}, 56, vcc')
    a(f'v_lshl_add_u32 v{col}, v{vt0}, 1, s{sG}')
    a(f's_lshl_b32 s{sD}, s{sF}, 1')
    a(f's_add_u32 s{sD}, s{sD}, s{sC}')
    a(f's_sub_u32 s{sD}, s{sD}, 1')
    a(f's_add_u32 s{sE}, s{sC}, 55')
    a(f's_add_u32 s{sF}, s{sF}, 58')
    a(f's_cmp_eq_u32 s{sC}, 0')
    a(f's_cselect_b32 s{sD}, s{sF}, s{sD}')
    a(f's_cselect_b32 s{sE}, 86, s{sE}')
    a(f's_mul_i32 s{sA}, s{sA}, {2*W1S}')
    a(f's_add_u32 s{sA}, s{sA}, {W1R}')
    a(f's_lshl_b32 s{sD}, s{sD}, 10')
    a(f's_add_u32 s{sD}, s{sD}, s{sA}')
    a(f's_lshl_b32 s{sE}, s{sE}, 10')
    a(f's_add_u32 s{sE}, s{sE}, s{sA}')
    a(f's_lshl_b32 s{sB}, s{sB}, 7')
    a(f's_add_u32 s{sE}, s{sE}, s{sB}')
    a(f'v_mul_u32_u24 v{vt0}, {W1S}, v{vHI}')
    a(f'v_lshl_add_u32 v{dst}, v{vRHO}, 4, v{vt0}')
    a(f'v_add_u32 v{dst}, s{sD}, v{dst}')
    a(f'v_lshl_add_u32 v{aug}, v{vRHO}, 2, v{vt0}')
    a(f'v_add_u32 v{aug}, s{sE}, v{aug}')


def setup_w3(r, su, tsrd):
    col, dst, aug = UC + 3 * r, UC + 3 * r + 1, UC + 3 * r + 2
    div7(sA, sB, su)
    a(f's_cmp_ge_u32 s{sA}, 28')
    a(f's_cselect_b32 s{tsrd}, s{S_WU}, s{S_WG}')
    a(f's_cselect_b32 s{tsrd+1}, s{S_WU+1}, s{S_WG+1}')
    a(f's_cselect_b32 s{sC}, 28, 0')
    a(f's_cselect_b32 s{sD}, 16, 0')
    a(f's_mov_b32 s{tsrd+2}, {448*1792*2}')
    a(f's_mov_b32 s{tsrd+3}, 0x00020000')
    a(f's_sub_u32 s{sA}, s{sA}, s{sC}')
    a(f's_lshl_b32 s{sE}, s{sB}, 2')
    a(f's_add_u32 s{sE}, s{sE}, s{sW}')
    a(f's_mul_i32 s{sC}, s{sE}, {16*3584}')
    a(f's_lshl_b32 s{sF}, s{sA}, 7')
    a(f's_add_u32 s{sC}, s{sC}, s{sF}')
    a(f's_add_u32 s{sF}, s{sC}, {8*3584}')
    a(f'v_mul_u32_u24 v{vt0}, 3584, v{vR8}')
    a(f'v_add_u32 v{vt0}, v{vt0}, v{vC8}')
    unit_dma(r, tsrd, vt0, sC, sF)
    a(f'v_and_b32 v{vt0}, 48, v{vLANE}')
    a(f'v_and_or_b32 v{vt0}, v{vSIG}, 15, v{vt0}')
    a(f'v_lshl_add_u32 v{col}, v{vt0}, 1, s{sG}')
    a(f'v_lshrrev_b32 v{vt0}, 4, v{vLANE}')
    a(f's_lshl_b32 s{sC}, s{sA}, 2')
    a(f'v_add_u32 v{vt0}, s{sC}, v{vt0}')
    a(f'v_mul_u32_u24 v{vt1}, 9363, v{vt0}')
    a(f'v_lshrrev_b32 v{vt1}, 16, v{vt1}')
    a(f'v_mul_u32_u24 v{vt2}, 7, v{vt1}')
    a(f'v_sub_u32 v{vt0}, v{vt0}, v{vt2}')
    a(f's_mul_i32 s{sF}, s{sE}, {3 if G3 else 2}')
    a(f'v_add_u32 v{vt2}, s{sF}, v{vt0}')
    a(f'v_add_u32 v{aug}, {84 if G3 else 56}, v{vt0}')
    a(f's_cmp_ge_u32 s{sE}, 27')
    a(f's_cselect_b32 s{sC}, 58, 0')
    a(f's_sub_u32 s{sC}, s{sE}, s{sC}')
    a(f's_add_u32 s{sC}, s{sC}, 176')
    for t, base, ag in (() if G3 else ((2, 59, None),)) + ((3, 87, 115), (4, 116, 144), (5, 147, 175), (6, None, 146)):
        a(f'v_cmp_eq_u32 vcc, {t}, v{vt0}')
        if base is not None:
            a(f's_add_u32 s{sF}, s{sE}, {base}')
            a(f'v_mov_b32 v{vt3}, s{sF}')
        else:
            a(f'v_mov_b32 v{vt3}, s{sC}')
        a(f'v_cndmask_b32 v{vt2}, v{vt2}, v{vt3}, vcc')
        if ag is not None:
            a(f'v_mov_b32 v{vt3}, {ag}')
            a(f'v_cndmask_b32 v{aug}, v{aug}, v{vt3}, vcc')
    a(f'v_mul_u32_u24 v{vt1}, 203, v{vt1}')
    a(f'v_add_lshl_u32 v{vt2}, v{vt2}, v{vt1}, 10')
    a(f'v_add_lshl_u32 v{aug}, v{aug}, v{vt1}, 10')
    a(f'v_and_b32 v{vt0}, 15, v{vLANE}')
    a(f'v_add_u32 v{vt0}, s{sD}, v{vt0}')
    a(f'v_lshl_add_u32 v{dst}, v{vt0}, 4, v{vt2}')
    a(f'v_add_u32 v{dst}, {W3R:#x}, v{dst}')
    a(f'v_lshl_add_u32 v{aug}, v{vt0}, 2, v{aug}')
    a(f's_lshl_b32 s{sB}, s{sB}, 7')
    a(f's_add_u32 s{sB}, s{sB}, {W3R}')
    a(f'v_add_u32 v{aug}, s{sB}, v{aug}')


def setup_colsT(r):
    col, dst, aug = UC + 3 * r, UC + 3 * r + 1, UC + 3 * r + 2
    a(f'v_lshl_add_u32 v{vt0}, v{vHI}, 5, v{vSIG}')
    a(f'v_lshl_add_u32 v{col}, v{vt0}, 1, s{sG}')
    a(f'v_lshlrev_b32 v{dst}, 10, v{vHI}')
    a(f'v_lshl_add_u32 v{dst}, v{vRHO}, 4, v{dst}')
    a(f'v_mov_b32 v{aug}, {OOB:#x}')


def setup_wd(r, su):
    dst = UC + 3 * r + 1
    div7(sA, sB, su)
    a(f's_lshl_b32 s{sA}, s{sA}, 2')
    a(f's_add_u32 s{sA}, s{sA}, s{sW}')
    a(f's_mul_i32 s{sC}, s{sA}, {16*896}')
    a(f's_lshl_b32 s{sD}, s{sB}, 7')
    a(f's_add_u32 s{sC}, s{sC}, s{sD}')
    a(f's_add_u32 s{sD}, s{sC}, {8*896}')
    a(f'v_mul_u32_u24 v{vt0}, 896, v{vR8}')
    a(f'v_add_u32 v{vt0}, v{vt0}, v{vC8}')
    unit_dma(r, S_WD, vt0, sC, sD)
    setup_colsT(r)
    div7(sC, sD, sA)
    a(f's_mul_i32 s{sB}, s{sB}, {WDS}')
    a(f's_lshr_b32 s{sE}, s{sC}, 2')
    a(f's_mul_i32 s{sE}, s{sE}, 57344')
    a(f's_add_u32 s{sB}, s{sB}, s{sE}')
    a(f's_lshl_b32 s{sD}, s{sD}, 2')
    a(f's_and_b32 s{sC}, s{sC}, 3')
    a(f's_add_u32 s{sD}, s{sD}, s{sC}')
    a(f's_lshl_b32 s{sD}, s{sD}, 11')
    a(f's_add_u32 s{sB}, s{sB}, s{sD}')
    a(f's_add_u32 s{sB}, s{sB}, {WDR}')
    a(f'v_add_u32 v{dst}, s{sB}, v{dst}')


def setup_wo(r, su):
    dst = UC + 3 * r + 1
    div7(sA, sB, su)
    a(f's_lshl_b32 s{sA}, s{sA}, 2')
    a(f's_add_u32 s{sA}, s{sA}, s{sW}')
    a(f's_lshr_b32 s{sC}, s{sA}, 1')
    a(f's_mul_i32 s{sC}, s{sC}, {28*896}')
    a(f's_lshl_b32 s{sD}, s{sB}, 7')
    a(f's_add_u32 s{sC}, s{sC}, s{sD}')
    a(f's_and_b32 s{sD}, s{sA}, 1')
    a(f's_cselect_b32 s{sD}, {16*896}, 0')
    a(f's_cselect_b32 s{sE}, {14*896}, 0')
    a(f's_add_u32 s{sD}, s{sD}, s{sC}')
    a(f's_add_u32 s{sE}, s{sE}, s{sC}')
    a(f's_add_u32 s{sE}, s{sE}, {8*896}')
    a(f'v_mul_u32_u24 v{vt0}, 896, v{vR8}')
    a(f'v_add_u32 v{vt0}, v{vt0}, v{vC8}')
    unit_dma(r, S_WO, vt0, sD, sE)
    setup_colsT(r)
    a(f's_lshl_b32 s{sB}, s{sB}, 16')
    a(f's_lshl_b32 s{sC}, s{sA}, 11')
    a(f's_add_u32 s{sB}, s{sB}, s{sC}')
    a(f's_add_u32 s{sB}, s{sB}, {WOR}')
    a(f'v_add_u32 v{dst}, s{sB}, v{dst}')


def setup_none(r):
    col, dst, aug = UC + 3 * r, UC + 3 * r + 1, UC + 3 * r + 2
    a(f'v_mov_b32 v{col}, 0')
    a(f'v_mov_b32 v{dst}, {OOB:#x}')
    a(f'v_mov_b32 v{aug}, {OOB:#x}')


def rounds(tag):
    a('s_cmp_ge_u32 s2, 168')
    a(f's_cbranch_scc1 L_r0b{tag}')
    with cond():
        run_setup(setup_w1, 0, 2)
    a(f's_branch L_r0e{tag}')
    a.label(f'L_r0b{tag}')
    a('s_cmp_ge_u32 s2, 224')
    a(f's_cbranch_scc1 L_r0c{tag}')
    with cond():
        a(f's_sub_u32 s{sU}, s2, 168')
        run_setup(setup_wo, 0, sU)
    a(f's_branch L_r0e{tag}')
    a.label(f'L_r0c{tag}')
    with cond():
        a(f's_sub_u32 s{sU}, s2, 224')
        run_setup(setup_wd, 0, sU)
    a.label(f'L_r0e{tag}')
    if PASS['p'] == 'src':
        return
    run_setup(setup_w3, 1, 2, LSRD[1])
    a('s_cmp_ge_u32 s2, 136')
    a(f's_cbranch_scc1 L_r2b{tag}')
    with cond():
        a(f's_add_u32 s{sU}, s2, 256')
        run_setup(setup_w3, 2, sU, LSRD[2])
    a(f's_branch L_r2e{tag}')
    a.label(f'L_r2b{tag}')
    with cond():
        a(f's_sub_u32 s{sU}, s2, 104')
        run_setup(setup_wd, 2, sU)
    a.label(f'L_r2e{tag}')
    a('s_cmp_ge_u32 s2, 212')
    a(f's_cbranch_scc1 L_r3b{tag}')
    setup_none(3)
    a('s_mov_b32 s80, 0')
    a('s_mov_b32 s81, 0')
    a(f'v_mov_b32 v246, {OOB:#x}')
    a(f's_branch L_r3e{tag}')
    a.label(f'L_r3b{tag}')
    with cond():
        a(f's_sub_u32 s{sU}, s2, 60')
        run_setup(setup_wd, 3, sU)
    a.label(f'L_r3e{tag}')


def unit_rounds(rs, items=None):
    rtok = {}
    seq = [(r, h) for r in rs for h in range(2)]

    def gat(r, half):
        for e in range(8):
            rtok[r, half] = a(f'ds_read_u16 v{UD+16*r+8*half+e}, v{UC+3*r} offset:{r*2048+(8*half+e)*128}')
    gat(*seq[0])
    for it in (items or []):
        emit(it)
    a(f's_lshl_b32 s{sA}, s{sW}, 8')
    a(f's_add_u32 s{sA}, s{sA}, {LCS}')
    a(f'v_add_u32 v225, s{sA}, v{vL4}')
    for k_, (r, half) in enumerate(seq):
        R = UD + 16 * r
        if k_ + 1 < len(seq):
            gat(*seq[k_ + 1])
        a.wait(rtok[r, half])
        for m in range(4):
            a(f'v_lshl_or_b32 v{R+8*half+m}, v{R+8*half+2*m+1}, 16, v{R+8*half+2*m}')
        a(f'buffer_store_dwordx4 {vr(R+8*half,4)}, v{UC+3*r+1}, {sr(S_WS,4)}, 0 offen offset:{512*half} ' + (USC if r else 'sc1'))
    for r in rs:
        if r == 3:
            continue
        R = UD + 16 * r
        a(f'v_mov_b32 v{R+4}, 0')
        for m in range(4):
            a(f'v_dot2c_f32_bf16 v{R+4}, s{sONES}, v{R+m}')
            a(f'v_dot2c_f32_bf16 v{R+4}, s{sONES}, v{R+8+m}')
        a(f'ds_write_b32 v225, v{R+4} offset:{r*1024}')


def aug_finish(rs, ucb=None, R=226, t0=225, t1=230, t2=231):
    ucb = UC if ucb is None else ucb
    a(f's_add_u32 s{sA}, s{sW1K}, {LCS}')
    a(f'v_add_u32 v{t0}, s{sA}, v{vL4}')
    a(f'ds_read2st64_b32 {vr(R,2)}, v{t0} offset0:0 offset1:1')
    t = a(f'ds_read2st64_b32 {vr(R+2,2)}, v{t0} offset0:2 offset1:3')
    a(f'v_mov_b32 v{t1}, {OOB:#x}')
    a(f'v_mov_b32 v{t2}, v{t1}')
    for r in rs:
        a(f's_cmp_eq_u32 s{sW}, {r}')
        a('s_cselect_b64 vcc, -1, 0')
        a(f'v_cndmask_b32 v{t1}, v{t1}, v{ucb+3*r+2}, vcc')
    a(f'v_bfe_u32 v{t0}, v{t1}, 7, 3')
    a(f'v_cmp_eq_u32 vcc, 6, v{t0}')
    a(f'v_mov_b32 v{t0}, 0')
    a(f'v_cndmask_b32 v{t2}, v{t2}, v{t1}, vcc')
    a(f'buffer_store_dword v{t0}, v{t2}, {sr(S_WS,4)}, 0 offen offset:128 sc1')
    a.wait(t)
    a(f'v_add_f32 v{R}, v{R}, v{R+1}')
    a(f'v_add_f32 v{R+2}, v{R+2}, v{R+3}')
    a(f'v_add_f32 v{R}, v{R}, v{R+2}')
    a(f'v_cvt_pk_bf16_f32 v{R+1}, v{R}, v{R}')
    a(f'v_and_b32 v{R+1}, 0xffff0000, v{R+1}')
    a(f'v_sub_f32 v{R+1}, v{R}, v{R+1}')
    a(f'v_cvt_pk_bf16_f32 v{R+1}, v{R}, v{R+1}')
    return a(f'buffer_store_dword v{R+1}, v{t1}, {sr(S_WS,4)}, 0 offen sc1')


def ib_publish(imm, va, vv):
    a(f'v_lshlrev_b32 v{va}, 12, v{vLANE}')
    a(f'v_mov_b32 v{vv}, s{sXID}')
    a('s_mov_b64 exec, 15')
    a(f'buffer_store_dword v{vv}, v{va}, {sr(S_WS,4)}, s83 offen offset:{imm} sc1')
    a('s_mov_b64 exec, -1')


def init_phase():
    Z = 216
    vGO = 224
    a(f's_lshl_b32 s{sA}, s2, 10')
    a(f's_add_u32 s{sB}, s{sW}, 1')
    a(f's_lshl_b32 s{sB}, s{sB}, 24')
    a(f's_add_u32 s{sB}, s{sA}, s{sB}')
    a(f's_sub_u32 s{sC}, s{sB}, {2*LYB - ST1}')
    a(f's_cmp_eq_u32 s{sW}, 2')
    a(f's_cselect_b32 s{sB}, s{sC}, s{sB}')
    a(f's_lshl_b32 s85, s2, 4')
    a('s_cmp_lt_u32 s2, 16')
    a(f's_cselect_b32 s{sA}, s{sA}, {OOB:#x}')
    a(f's_cselect_b32 s{sZW}, s85, {OOB:#x}')
    a(f's_cmp_eq_u32 s{sW}, 3')
    a(f's_cselect_b32 s{sB}, s{sA}, s{sB}')
    a(f's_cselect_b32 s{sZW}, s{sZW}, {OOB:#x}')
    a(f's_cselect_b32 s83, s85, {OOB:#x}')
    a(f's_cselect_b32 s85, 0, {OOB:#x}')
    zt = a(f'buffer_store_dwordx4 {vr(Z,4)}, v{vL16}, {sr(S_WS,4)}, s{sB} offen sc1')
    PASS['p'] = 'src'
    rounds('s')
    a.vm_issued += 2
    um = mark()
    a(f's_mov_b32 s82, s{sG}')
    a(f's_mul_i32 s{sI}, s{sTILE1}, 28672')
    a(f's_mul_i32 s{sH}, s{sW}, {28*K}')
    xq = []
    for g in range(4):
        for c in range(7):
            it = [f's_add_u32 m0, s{sH}, {LXS + (4*c+g)*K - c*128}',
                  f'buffer_load_dwordx4 v{vXS + (g & 1)}, {sr(S_X,4)}, s{sI} offen offset:{c*128} {XNT2} lds']
            if c == 6:
                it.append(f's_add_u32 s{sI}, s{sI}, {8*896}')
            xq.append(it)
    a(f's_mul_i32 s{sA}, s{sHC}, {14*128}')
    a(f's_add_u32 s{sA}, s{sA}, s{sI}')
    a(f'v_min_u32 v{vt0}, 13, v{vLANE}')
    a(f'v_lshlrev_b32 v{vt0}, 7, v{vt0}')
    a(f'buffer_load_dword v17, v{vt0}, {sr(S_X,4)}, s{sA} offen {XNT}')
    for _ in range(X0N):
        emit(xq.pop(0))
    stamp('issued')
    PASS['p'] = 'dst'
    rounds('d')
    for i in range(9):
        a(f'v_accvgpr_write_b32 a{i}, v{UC+3+i}')

    def prealloc():
        for r in (1, 2, 3):
            for h in range(2):
                a(f'buffer_store_dwordx4 {vr(Z,4)}, v{UC+3*r+1}, {sr(S_WS,4)}, 0 offen offset:{512*h} sc1')
    if PA == 1:
        prealloc()
    a.wait(zt)
    emit(flag_store(S_DBG, f's{sZW}', sc='sc1'))
    a(f'v_and_b32 v{vt3}, 15, v{vLANE}')
    a(f'v_lshlrev_b32 v{vt3}, 4, v{vt3}')
    a(f'v_lshrrev_b32 v{vt0}, 3, v{vRHO}')
    a(f'v_lshlrev_b32 v{vt0}, 10, v{vt0}')
    a(f'v_and_b32 v{vt1}, 7, v{vRHO}')
    a(f'v_lshl_add_u32 v{vt0}, v{vt1}, 7, v{vt0}')
    a(f'v_add_u32 v{vt0}, s{sH}, v{vt0}')
    a(f'v_bfe_u32 v{vt1}, v{vRHO}, 1, 3')
    a(f'v_xor_b32 v{vt1}, v{vt1}, v{vHI}')
    for q in range(4):
        a(f'v_xor_b32 v{220+q}, {2*q}, v{vt1}')
        a(f'v_lshl_add_u32 v{220+q}, v{220+q}, 4, v{vt0}')
    a(f'v_min_u32 v{vt0}, 20, v{vLANE}')
    a(f'v_mul_u32_u24 v{vt1}, 37, v{vt0}')
    a(f'v_lshrrev_b32 v{vt1}, 8, v{vt1}')
    a(f'v_mad_u32_u24 v{vt0}, v{vt1}, 49, v{vt0}')
    a(f's_lshr_b32 s{sA}, s{sHC}, 1')
    a(f's_mul_i32 s{sA}, s{sA}, 7')
    a(f'v_add_lshl_u32 v240, v{vt0}, s{sA}, 4')
    late_consts()
    own_consts()
    a.wait(um)
    stamp('ldone')
    unit_rounds([0], [xq.pop(0) for _ in range(XI)])
    a.wait_lg0()
    a.barrier()
    aug_finish([0])
    sm = a(f'buffer_load_dword v{vGO}, v{vt3}, {sr(S_DBG,4)}, s85 offen sc1')
    for _ in range(min(XA, len(xq))):
        emit(xq.pop(0))
    a.wait(sm)
    a(f's_cmp_lg_u32 s{sW}, 3')
    a('s_cbranch_scc1 L_ngo')
    with cond():
        check_or_poll(vGO, S_DBG, vt3, 0, sleep=2)
    a.label('L_ngo')
    a.barrier()
    ib_publish(4, vt0, vt1)
    stamp('ibpub')
    while xq:
        emit(xq.pop(0))
    xm = mark()
    if PA == 2:
        prealloc()
    a(f's_mul_i32 s{sA}, s{sOWN}, 28672')
    a(f's_lshl_b32 s{sB}, s{sOFT}, 6')
    a(f's_add_u32 s{sA}, s{sA}, s{sB}')
    a(f'buffer_load_dwordx4 {vr(vXRES,4)}, v{vROW}, {sr(S_X,4)}, s{sA} offen')
    a(f'buffer_load_dwordx4 {vr(vXRES+4,4)}, v{vROW}, {sr(S_X,4)}, s{sA} offen offset:32')
    p1_setup(True)
    dma_setup(205, sW1SRC, 0, 0)
    a.wait(xm)
    stamp('xland')
    for ks in range(28):
        a(f'ds_read_b128 {vr(16+4*ks,4)}, v{220+(ks&3)} offset:{(ks>>2)*4096}')
    fa = a(f'buffer_load_dword v241, v240, {sr(S_WS,4)}, s{sREP} offen offset:4 sc1')
    a.wait_lg0()
    x0_stats(0, STA)
    a.wait(fa)
    check_or_poll(241, S_WS, 240, f's{sREP}', imm=4, nonzero=True, sleep=0)
    a.barrier()
    stamp('w1rdy')


def x0_stats(lo, hi, items=None):
    S0, S1, Q0, Q1 = 216, 217, 218, 219
    for i in range(4 * lo, 4 * hi, 2):
        if items and i % 6 == 0:
            items.pop(0)()
        a(f'v_dot2c_f32_bf16 v{S0}, s{sONES}, v{16+i}')
        a(f'v_dot2c_f32_bf16 v{Q0}, v{16+i}, v{16+i}')
        a(f'v_dot2c_f32_bf16 v{S1}, s{sONES}, v{17+i}')
        a(f'v_dot2c_f32_bf16 v{Q1}, v{17+i}, v{17+i}')


vRSTD, vC2, vISTD = 248, 249, 250
P1_XAUG = 212


def stats_finish(xaug, SB=216):
    S, Q, t0, t1 = SB, SB + 1, SB + 2, SB + 3
    o = [f'v_mov_b32 v{t0}, v{S}',
         f'v_mov_b32 v{t1}, v{Q}',
         f'v_permlane32_swap_b32 v{S}, v{t0}',
         f'v_permlane32_swap_b32 v{Q}, v{t1}',
         f'v_add_f32 v{S}, v{S}, v{t0}',
         f'v_add_f32 v{Q}, v{Q}, v{t1}',
         f'v_mul_f32 v{S}, {INV448:#x}, v{S}',
         f'v_mul_f32 v{Q}, {INV448:#x}, v{Q}',
         f'v_fma_f32 v{Q}, -v{S}, v{S}, v{Q}',
         f'v_max_f32 v{Q}, 0, v{Q}',
         f'v_add_f32 v{Q}, {EPS5:#x}, v{Q}',
         f'v_rsq_f32 v{vRSTD}, v{Q}',
         f'v_cvt_pk_bf16_f32 v{xaug}, -v{S}, -v{S}',
         f'v_mul_f32 v{vISTD}, v{Q}, v{vRSTD}',
         f'v_mul_f32 v{vC2}, {LOG2E:#x}, v{vRSTD}']
    o += [f'v_mov_b32 v{xaug+i}, v{xaug}' for i in range(1, 4)]
    return o


def stats_sum(SB=216):
    o = []
    for i in range(1, 7):
        o.append(f'v_add_f32 v{SB}, v{SB}, v{SB+2*i}')
        o.append(f'v_add_f32 v{SB+1}, v{SB+1}, v{SB+2*i+1}')
    return o


def x_prep(fl, xb, stb):
    a(f'v_and_b32 v240, 15, v{vLANE}')
    a(f'v_min_u32 v240, 13, v240')
    a(f'v_lshlrev_b32 v240, 5, v240')
    a(f's_lshl_b32 s{sC}, s{sTILE1}, 9')
    a(f's_add_u32 s{sC}, s{sC}, {fl}')
    a(f's_lshl_b32 s{sD}, s{sTILE1}, 12')
    a(f's_add_u32 s{sD}, s{sD}, {stb}')
    a(f's_mul_i32 s{sE}, s{sTILE1}, {28*K}')
    a(f's_add_u32 s{sE}, s{sE}, {xb}')


def x_load(ks):
    if ks % 4 == 0 and ks:
        a(f's_add_u32 s{sE}, s{sE}, 4096')
    return a(f'buffer_load_dwordx4 {vr(16+4*ks,4)}, v{vL16}, {sr(S_DT,4)}, s{sE} offen offset:{(ks%4)*K} sc1')


def st_load(i, SB=216):
    return a(f'buffer_load_dwordx4 {vr(SB+4*i,4)}, v{vL16}, {sr(S_DT,4)}, s{sD} offen offset:{i*K} sc1')


def st_loads(SB=216):
    t = None
    for i in range(7):
        t = a(f'buffer_load_dwordx2 {vr(SB+2*i,2)}, v241, {sr(S_DT,4)}, s{sD} offen offset:{i*256} sc1')
    return t


def read_aug(dst, addr, tmp):
    a(f'v_add_u32 v{tmp}, {addr:#x}, v{vAUG}')
    a(f'ds_read2_b32 {vr(dst,2)}, v{tmp} offset0:0 offset1:32')
    return a(f'ds_read2_b32 {vr(dst+2,2)}, v{tmp} offset0:64 offset1:96')


def read_frag(dst, addr):
    v, off = lds_addr(addr)
    return a(f'ds_read_b128 {vr(dst,4)}, v{v} offset:{off}')


def wfrag_items(regfn, ssrc, lo, hi, va, vb, stmp):
    items = []
    for i, n in enumerate(range(lo, hi)):
        for b in range(2):
            it = []
            if i % 2 == 0 and b == 0:
                it.append(f's_add_u32 s{stmp}, s{ssrc}, {n*2048}')
            it.append(f'buffer_load_dwordx4 {regfn(n,b)}, v{(va,vb)[b]}, {sr(S_WS,4)}, s{stmp} offen offset:{(i%2)*2048} {WSC}')
            items.append(it)
    return items


def slot_addr_setup(va, vb):
    a(f's_and_b32 s{sA}, s{sW1K}, 0x400')
    a(f'v_add_u32 v{va}, s{sA}, v{vL16}')
    a(f'v_xor_b32 v{vb}, 0x400, v{va}')


def cost(x):
    op = x.split()[0]
    return 2 if op.startswith(('v_exp', 'v_rcp', 'v_rsq')) else 1


def drip(q, budget):
    while q and budget >= cost(q[0]):
        x = q.pop(0)
        budget -= cost(x)
        a(x)


CAP = int(OPT.get('cap', 7))
G3 = int(OPT.get('g3', 1))
F1AT = int(OPT.get('f1at', 22))
PQSPLIT = int(OPT.get('pqsplit', 1))
WDP3 = int(OPT.get('wdp3', 36))
WDP1 = 0
PUBD2 = int(OPT.get('pubd2', 22))
PRET = int(OPT.get('pret', 1))
PUBD = int(OPT.get('pubd', 20))
S0T = int(OPT.get('s0t', 2))


def shadow(mem, vq, cap=None, pop=None):
    n0 = len(a.ins)
    for f in mem:
        if f is None:
            continue
        if callable(f):
            f()
        else:
            emit(f)
    budget = (CAP if cap is None else cap) - (len(a.ins) - n0)
    while vq and budget >= cost(vq[0]):
        budget -= cost(vq[0])
        if pop:
            pop()
        else:
            a(vq.pop(0))


def split_item(it):
    if it is None:
        return None, None
    return it[:-1], it[-1:]


ACK, ACV, ACQ = 128, 144, 160
P1WR = 176
P1RR2 = 216
p1D1, p1SA, p1SB = 204, 206, 207
p1RSW, p1RSR, p1OH = 208, 209, 210
LMODE = LRS + 1008


CARRY = []


def FAST():
    return MODE['sfx'] != '_s'


def p1_setup(first):
    if not first:
        x_prep(F0 + LYB, *((X1, ST1) if FAST() else (X0 + LYB, ST0 + LYB)))
    slot_addr_setup(p1SA, p1SB)
    a(f'v_and_b32 v{p1OH}, 27, v{vLANE}')
    a(f'v_cmp_eq_u32 vcc, 26, v{p1OH}')
    a(f'v_cndmask_b32 v{p1OH}, 0, 1.0, vcc')
    a(f'v_mov_b32 v{p1OH+1}, v{p1OH}')
    a(f's_add_u32 s{sA}, s{sW4K}, {LKVS}')
    a(f'v_and_b32 v{p1RSW}, 31, v{vLANE}')
    a(f'v_lshl_add_u32 v{p1RSW}, v{p1RSW}, 2, s{sA}')
    a(f'v_lshrrev_b32 v{p1RSR}, 5, v{vLANE}')
    a(f'v_lshl_add_u32 v{p1RSR}, v{p1RSR}, 4, s{sA}')
    dma_setup(p1D1, sW3SRC, 0, LALPHA)


LUC = 220
LUD = {1: 128, 2: 144, 3: 232}


def f1_addr():
    return [f's_lshl_b32 s{sG}, s{sHC}, 8',
            f's_lshl_b32 s{sB}, s{sRBG}, 4',
            f's_add_u32 s{sG}, s{sG}, s{sB}',
            f's_add_u32 s{sG}, s{sG}, {F1}',
            f's_cmp_lg_u32 s{sW}, 3\ns_cselect_b32 s{sG}, {OOB:#x}, s{sG}',
            f'v_lshlrev_b32 v{p1RSW}, 12, v{vLANE}',
            f'v_mov_b32 v{p1RSR}, 1']


def f1_store():
    a('s_mov_b64 exec, 15')
    a(f'buffer_store_dword v{p1RSR}, v{p1RSW}, {sr(S_LY,4)}, s{sG} offen sc1')
    a('s_mov_b64 exec, -1')
    stamp('p1pub')


def phase1_kv(first):
    WR, XAUG, RR, RR2, KVD = P1WR, P1_XAUG, ACQ, P1RR2, 232
    vRSW, vRSR, vOH = p1RSW, p1RSR, p1OH
    PRE = XPRE
    xt, vq, st = {}, [], {}
    if first:
        w1t = {}
        its = [(lambda k_=k_, it=it: w1t.__setitem__(k_, emit(it))) for k_, it in enumerate(dma_items(205, 0, 88, 2))]

        def ibl():
            a(f's_add_u32 s{sH}, s{sREP}, s{sW1K}')
            st['ib'] = a(f'buffer_load_dword v254, v{vL16}, {sr(S_WS,4)}, s{sH} offen offset:4 sc1')

        def lud(r, h):
            a(f's_add_u32 m0, s82, {r*2048 + h*1024}')
            st['lu'] = a(f'buffer_load_dwordx4 v{243+r}, {sr(LSRD[r],4)}, s{74+2*r+h} offen {UNT} lds')
        nop_ = lambda: None
        lu_ = []
        for r in (1, 2, 3):
            lu_ += [(lambda r=r: lud(r, 0)), (lambda r=r: lud(r, 1))] + [nop_] * LGAP
        its = its[:LUP] + [nop_] * LDLY + [ibl] + lu_ + its[LUP:]
        for _ in range(4):
            its.pop(0)()
        x0_stats(STA, 28, its)
        vq += ['v_add_f32 v216, v216, v217', 'v_add_f32 v217, v218, v219'] + stats_finish(P1_XAUG)
        stamp('stats')
    else:
        poll(S_LY, 240, f's{sC}')
        stamp('p1poll')
        for ks in range(4):
            xt[ks] = x_load(ks)
        a(f's_add_u32 s{S_LY}, s{S_LY}, {LYB}')
        a(f's_addc_u32 s{S_LY+1}, s{S_LY+1}, 0')
        a.barrier()
    bg = ([] if first else code_touch(205, 200)) + dma_items(p1D1, LALPHA, 56, 2)
    rt = {}
    stage = (0, 8, 16, 24) if first else ()

    def ib_check():
        a.wait(st['ib'])
        check_or_poll(254, S_WS, vL16, f's{sH}', imm=4, nonzero=True)
        a(f's_and_b32 s{sA}, s2, 7')
        a(f'v_and_b32 v252, 7, v{vLANE}')
        a(f'v_cmp_eq_u32 {sr(sC,2)}, s{sA}, v252')
        a(f'v_cmp_ne_u32 vcc, s{sXID}, v254')
        a(f's_and_b64 vcc, vcc, {sr(sC,2)}')
        a(f's_cselect_b32 s{sZW}, 1, 0')

    def rd(ks, tl):
        if ks > 28:
            return
        if ks in stage and tl == 0:
            a.wait(w1t[(ks + 8) // 2 - 1])
            a.barrier()
        d = WR + 8 * (ks % 3) + 4 * tl
        addr = (2 * ks + tl) * K
        rt[ks] = read_frag(d, addr) if ks < 28 else read_aug(d, addr, 252 + tl)
    for ks in range(2):
        rd(ks, 0); rd(ks, 1)
    if not first:
        for ks in range(4, PRE):
            xt[ks] = x_load(ks)
    rr = {}

    def stl(i):
        st['s'] = st_load(i)

    def xl(ks):
        xt[ks] = x_load(ks)

    def rs_write():
        a(f'ds_write2_b32 v{vRSW}, v{vRSTD}, v{vC2} offset0:0 offset1:32')

    def rs_read(j):
        a(f'ds_read_b128 {vr(RR+4*j,4)}, v{vRSR} offset:{32*j}')
        rr[0] = a(f'ds_read_b128 {vr(RR2+4*j,4)}, v{vRSR} offset:{128+32*j}')
    for ks in range(29):
        if not first and ks == 15:
            a.wait(st['s'])
            vq += stats_sum() + stats_finish(XAUG)
        a.wait(rt[ks], xt.get(ks))
        X = vr(16 + 4 * ks, 4) if ks < 28 else vr(XAUG, 4)
        c = (lambda r: '0' if ks == 0 else vr(r, 16))
        if not first and ks + PRE < 28:
            pre, main = None, (lambda k_=ks + PRE: xl(k_))
        elif first:
            pre, main = None, (its.pop(0) if its else None)
        else:
            pre, main = split_item(bg.pop(0) if bg and not first else None)
        a(f'{MF} {vr(ACK,16)}, {X}, {vr(WR+8*(ks%3),4)}, {c(ACK)}')
        shadow([pre, lambda: rd(ks + 2, 0), main], vq)
        a(f'{MF} {vr(ACV,16)}, {X}, {vr(WR+8*(ks%3)+4,4)}, {c(ACV)}')
        extra = None
        if not first and ks < 8 and ks % 2 == 0:
            extra = (lambda i=ks // 2: stl(i))
        if ks == 23:
            assert not vq
            extra = rs_write
        if 24 <= ks <= 27:
            extra = (lambda j=ks - 24: rs_read(j))
        shadow([lambda: rd(ks + 2, 1), extra], vq)
    assert not first or all(f is nop_ for f in its)
    stamp('p1kv')
    qt = {}

    def rq(ks):
        if ks > 28:
            return
        d = WR + 4 * (ks % 6)
        addr = (58 + ks) * K
        qt[ks] = read_frag(d, addr) if ks < 28 else read_aug(d, addr, 252)
    if not first:
        for ks in range(4):
            rq(ks)
    KS = LRS
    a(f's_lshl_b32 s{sB}, s{sHC}, 12')
    a(f's_add_u32 s{sB}, s{sB}, s{sW1K}')
    a.wait(rr[0])
    for r in range(0, 16, 2):
        a(f'v_pk_mul_f32 {vr(ACK+r,2)}, {vr(ACK+r,2)}, {vr(RR2+r,2)}')
    def bgp():
        if bg and EPD and not first:
            emit(bg.pop(0))
    for r in range(16):
        a(f'v_exp_f32_e64 v{RR2+r}, v{ACK+r} clamp')
        a(f'v_max_f32 v{ACK+r}, 0, v{ACK+r}')
        if r % 5 == 0:
            bgp()
    for r in range(0, 16, 2):
        a(f'v_pk_fma_f32 {vr(ACV+r,2)}, {vr(ACV+r,2)}, {vr(RR+r,2)}, {vr(vOH,2)}')
        a(f'v_pk_fma_f32 {vr(RR2+r,2)}, {vr(ACK+r,2)}, {sr(sLN2,2)}, {vr(RR2+r,2)}')
    bgp()
    for r in range(0, 16, 2):
        a(f'v_pk_add_f32 {vr(RR2+r,2)}, {vr(RR2+r,2)}, {sr(sEPS6,2)}')
        a(f'v_cvt_pk_bf16_f32 v{ACV+r//2}, v{ACV+r}, v{ACV+r+1}')
    bgp()
    for m in range(4):
        a(f'v_cvt_pk_bf16_f32 v{ACK+m}, v{RR2+2*m}, v{RR2+2*m+1}')
    a(f'{MF} {vr(KVD,16)}, {vr(ACK,4)}, {vr(ACV,4)}, 0')
    for m in range(4, 8):
        a(f'v_cvt_pk_bf16_f32 v{ACK+m}, v{RR2+2*m}, v{RR2+2*m+1}')
    a(f's_add_u32 s{sA}, s{sW4K}, {LKVS}')
    a(f'v_add_u32 v{vRSW}, s{sA}, v{vL16}')
    a(f'{MF} {vr(KVD,16)}, {vr(ACK+4,4)}, {vr(ACV+4,4)}, {vr(KVD,16)}')
    a(f's_add_u32 s{sA}, s{sW1K}, {LKVS}')
    a(f'v_add_u32 v{vRSR}, s{sA}, v{vL4}')
    if first:
        ib_check()
        a(f's_lshl_b32 s{sA}, s{sW}, 2')
        a(f's_add_u32 s{sA}, s{sA}, {LCS + 4*K}')
        a(f'v_mov_b32 v252, s{sA}')
        a(f'v_mov_b32 v253, s{sZW}')
        a('ds_write_b32 v252, v253')
        a(f'v_mov_b32 v252, {LCS + 4*K}')

    def qstep(ks, mem=(), vq_=None, early=False):
        if early and first:
            return
        a.wait(qt[ks])
        X = vr(16 + 4 * ks, 4) if ks < 28 else vr(XAUG, 4)
        a(f'{MF} {vr(ACQ,16)}, {vr(WR+4*(ks%6),4)}, {X}, {"0" if ks == 0 else vr(ACQ,16)}')
        shadow([lambda: rq(ks + 4)] + list(mem), vq_ if vq_ is not None else [])
    qstep(0, [bgp], early=True)
    for q in range(4):
        kw = a(f'ds_write_b128 v{vRSW}, {vr(KVD+4*q,4)} offset:{q*K}')
    qstep(1, [bgp], early=True)
    a.wait(kw)
    a.barrier()
    RED = RR2
    for wp in range(4):
        a(f'ds_read2st64_b32 {vr(RED+4*wp,2)}, v{vRSR} offset0:{16*wp} offset1:{16*wp+1}')
        t = a(f'ds_read2st64_b32 {vr(RED+4*wp+2,2)}, v{vRSR} offset0:{16*wp+2} offset1:{16*wp+3}')
    if first:
        mt = a(f'ds_read_b128 {vr(KVD,4)}, v252')
    qstep(2, early=True)
    a.wait(t)
    for i in range(4):
        a(f'v_add_f32 v{RED+i}, v{RED+i}, v{RED+4+i}')
        a(f'v_add_f32 v{RED+8+i}, v{RED+8+i}, v{RED+12+i}')
    for i in range(4):
        a(f'v_add_f32 v{RED+i}, v{RED+i}, v{RED+8+i}')
    for i in range(4):
        at = a(f'buffer_atomic_add_f32 v{RED+i}, v{vL4}, {sr(S_LY,4)}, s{sB} offen offset:{i*256}')
    stamp('p1atom')
    if first:
        a.wait(mt)
        a(f'v_or_b32 v{KVD}, v{KVD}, v{KVD+1}')
        a(f'v_or3_b32 v{KVD}, v{KVD}, v{KVD+2}, v{KVD+3}')
        a(f'v_readfirstlane_b32 s{sZW}, v{KVD}')
        for i in range(9):
            a(f'v_accvgpr_read_b32 v{(LUC if UQ else UC+3)+i}, a{i}')
        a.wait(w1t[21], st['lu'])
        if not UQ:
            unit_rounds([1, 2, 3])
            emit(f1_addr())
            a.wait(at)
            a.wait_lg0()
        a.barrier()
        if not UQ:
            f1_store()
            st['us'] = aug_finish([1, 2])
        for ks in range(4):
            rq(ks)
        stamp('units')
        a(f's_cmp_lg_u32 s{sZW}, 0')
        a('s_cbranch_scc1 L_slow')
    return dict(qstep=qstep, at=at, qt=qt, bg=bg, us=st.get('us'), state=(a.vm_issued, a.vm_done, a.lg_issued, a.lg_done), qt0=dict(qt))


def phase1_q(ctx, first):
    qstep, at = ctx['qstep'], ctx['at']
    vRSW, vRSR, RR2 = p1RSW, p1RSR, P1RR2
    wo = wfrag_items(lambda n, b: vr(16 + 8 * n + 4 * b, 4), sWOSRC, 0, 8, p1SA, p1SB, sF)
    alpha = list(ctx['bg']) if first else []
    if not first:
        wo = list(ctx['bg']) + wo
    if first and FAST():
        wo = [[f's_cmp_ge_u32 s{sJ}, 28', f's_cselect_b32 s{sI}, {OOB:#x}, s{sOX}', f's_add_u32 s{sI}, s{sI}, {X1}',
               f'buffer_store_dwordx4 {vr(vXRES,4)}, v{vL16}, {sr(S_DT,4)}, s{sI} offen sc1'],
              [f'buffer_store_dwordx4 {vr(vXRES+4,4)}, v{vL16}, {sr(S_DT,4)}, s{sI} offen offset:1024 sc1']] + wo
    pqoff = PQ if (FAST() or first) else PQ + LYB
    vq = f1_addr() + [
          f's_lshl_b32 s{sA}, s{sTILE1}, 15',
          f's_lshl_b32 s{sB}, s{sHC}, 11',
          f's_add_u32 s{sA}, s{sA}, s{sB}',
          f's_add_u32 s{sA}, s{sA}, {pqoff}',
          f's_lshl_b32 s{sU}, s{sTILE1}, 9',
          f's_lshl_b32 s{sB}, s{sHC}, 5',
          f's_add_u32 s{sU}, s{sU}, s{sB}',
          f's_add_u32 s{sU}, s{sU}, {F1Q}',
          f'v_mov_b32 v{vC2+2}, v{vC2}']
    gt = {}

    def gath(k_):
        hh, e0 = k_ // 2, (k_ % 2) * 4
        r, half = 1 + hh // 2, hh % 2
        for e in range(e0, e0 + 4):
            gt[hh] = a(f'ds_read_u16 v{LUD[r]+8*half+e}, v{LUC+3*(r-1)} offset:{r*2048+(8*half+e)*128}')

    def pack(hh):
        r, half = 1 + hh // 2, hh % 2
        R = LUD[r] + 8 * half
        a.wait(gt[hh])
        for m in range(4):
            a(f'v_lshl_or_b32 v{R+m}, v{R+2*m+1}, 16, v{R+2*m}')

    def pst_(hh):
        r, half = 1 + hh // 2, hh % 2
        a(f'buffer_store_dwordx4 {vr(LUD[r]+8*half,4)}, v{LUC+3*(r-1)+1}, {sr(S_WS,4)}, 0 offen offset:{512*half} {USC}')

    def csum():
        a(f's_lshl_b32 s{sC}, s{sW}, 8')
        a(f's_add_u32 s{sC}, s{sC}, {LCS}')
        a(f'v_add_u32 v229, s{sC}, v{vL4}')
        for r in (1, 2):
            R = LUD[r]
            a(f'v_mov_b32 v{R+4}, 0')
            for m in range(4):
                a(f'v_dot2c_f32_bf16 v{R+4}, s{sONES}, v{R+m}')
                a(f'v_dot2c_f32_bf16 v{R+4}, s{sONES}, v{R+8+m}')
            gt['cs'] = a(f'ds_write_b32 v229, v{R+4} offset:{r*1024}')
    for ks in range(0 if first else 3, 29):
        mem = []
        if first and UQ:
            if 4 <= ks <= 14 and ks % 2 == 0:
                mem.append(lambda h_=(ks - 4) // 2: pst_(h_))
            if ks < 12:
                mem.append(lambda k_=ks: gath(k_))
            if 3 <= ks <= 13 and ks % 2 == 1:
                mem.append(lambda h_=(ks - 3) // 2: pack(h_))
            if ks == 12:
                mem.append(csum)
        if ks % 2 == 1 and (not first or ks >= 5 or not UQ):
            mem.insert(0, wo.pop(0))
        qstep(ks, mem, vq)
        if first and not UQ:
            if ks == F1AT:
                a.wait(ctx['us'])
                a.barrier()
                ib_publish(0, vRSW, vRSR)
        elif ks == (F1AT0 if first else F1AT):
            assert not vq
            a.wait(at, gt.get('cs'))
            a.barrier()
            f1_store()
            if first:
                a(f's_mov_b32 s{sD}, s{sA}')
                us = aug_finish([1, 2], ucb=LUC - 3, R=132, t0=140, t1=141, t2=142)
                a(f's_mov_b32 s{sA}, s{sD}')
    a(f'v_mov_b32 v{ACK+7}, 0')
    a('s_nop 4')
    stamp('p1q')
    T = RR2
    for r in range(0, 14, 2):
        a(f'v_pk_mul_f32 {vr(ACQ+r,2)}, {vr(ACQ+r,2)}, {vr(vC2+1,2)} op_sel:[0,1] op_sel_hi:[1,1]')
    for r in range(14):
        a(f'v_exp_f32_e64 v{T+r}, v{ACQ+r} clamp')
        a(f'v_max_f32 v{ACQ+r}, 0, v{ACQ+r}')
    for r in range(0, 14, 2):
        a(f'v_pk_fma_f32 {vr(T+r,2)}, {vr(ACQ+r,2)}, {sr(sLN2,2)}, {vr(T+r,2)}')
    for r in range(0, 14, 2):
        a(f'v_pk_add_f32 {vr(T+r,2)}, {vr(T+r,2)}, {sr(sEPS6,2)}')
    for m in range(7):
        a(f'v_cvt_pk_bf16_f32 v{ACK+m}, v{T+2*m}, v{T+2*m+1}')
    sc = 'sc1' if first else LS()
    a(f'buffer_store_dwordx4 {vr(ACK,4)}, v{vL16}, {sr(S_DT,4)}, s{sA} offen {sc}')
    pst = a(f'buffer_store_dwordx4 {vr(ACK+4,4)}, v{vL16}, {sr(S_DT,4)}, s{sA} offen offset:1024 {sc}')
    if not FAST() and not first:
        a(f's_mov_b32 s{S_DT}, s{S_LY}')
        a(f's_mov_b32 s{S_DT+1}, s{S_LY+1}')
    for it in wo[:4]:
        emit(it)
    if first and UQ:
        a.wait(us)
    a.barrier()
    if first and UQ:
        ib_publish(0, vRSW, vRSR)
    a.wait(pst)
    emit(flag_store(S_LY, f's{sU}'))
    for it in wo[4:]:
        emit(it)
    if first and RT:
        for r in range(3):
            a(f'v_accvgpr_read_b32 v{232+r}, a{3*r+1}')
        for r in range(3):
            for h in range(2):
                a(f'buffer_load_dword v236, v{232+r}, {sr(S_WS,4)}, 0 offen offset:{512*h} sc1')
    if first and not FAST():
        poll(S_WS, vL16, f's{sH}', nonzero=True)
        a.barrier()
        for it in alpha:
            emit(it)
    if CT >= 2:
        emit(code_touch(205, 206)[0])
    p2_setup()
    stamp('p1end')


ACC0, ACC1 = 208, 224
AAC2, AAC3 = 224, 240


def accs(s):
    return [vr(ACC0, 16), vr(ACC1, 16), ar(AAC2, 16), ar(AAC3, 16)][s]


def red_setup(base, RA):
    o = []
    for s in (1, 2, 3):
        o += [f's_xor_b32 s{sA}, s{sW}, {s}',
              f's_mul_i32 s{sA}, s{sA}, 12288',
              f's_add_u32 s{sA}, s{sA}, {base + (s-1)*4096}',
              f'v_add_u32 v{RA+s}, s{sA}, v{vL16}']
    o += [f's_mul_i32 s{sA}, s{sW}, 12288',
          f's_add_u32 s{sA}, s{sA}, {base}',
          f'v_add_u32 v{RA}, s{sA}, v{vL16}']
    return o


def red_write(s, RA):
    o = []
    for q in range(4):
        d = [None, vr(ACC1 + 4 * q, 4), ar(AAC2 + 4 * q, 4), ar(AAC3 + 4 * q, 4)][s]
        o.append(f'ds_write_b128 v{RA+s}, {d} offset:{q*K}')
    return o


sOX, sOS, sOF = 97, 98, 99


def own_consts():
    a(f's_mul_i32 s{sOX}, s{sOWN}, {28*K}')
    a(f's_lshl_b32 s{sB}, s{sOFT}, 11')
    a(f's_add_u32 s{sOX}, s{sOX}, s{sB}')
    a(f's_lshl_b32 s{sOS}, s{sOWN}, 12')
    a(f's_cmp_ge_u32 s{sOFT}, 7')
    a(f's_cselect_b32 s{sA}, 7, 0')
    a(f's_cselect_b32 s{sB}, 512, 0')
    a(f's_add_u32 s{sOS}, s{sOS}, s{sB}')
    a(f's_sub_u32 s{sA}, s{sOFT}, s{sA}')
    a(f's_lshr_b32 s{sB}, s{sA}, 1')
    a(f's_lshl_b32 s{sB}, s{sB}, 10')
    a(f's_add_u32 s{sOS}, s{sOS}, s{sB}')
    a(f's_and_b32 s{sA}, s{sA}, 1')
    a(f's_lshl_b32 s{sA}, s{sA}, 3')
    a(f's_add_u32 s{sOS}, s{sOS}, s{sA}')
    a(f's_lshl_b32 s{sOF}, s{sOWN}, 9')
    a(f's_lshl_b32 s{sB}, s{sOFT}, 5')
    a(f's_add_u32 s{sOF}, s{sOF}, s{sB}')


def res_unpack(RU):
    o = []
    for m in range(8):
        o.append(f'v_lshlrev_b32 v{RU+2*m}, 16, v{vXRES+m}')
        o.append(f'v_and_b32 v{RU+2*m+1}, 0xffff0000, v{vXRES+m}')
    return o


def red_finish(final, RB, RU, RA, nm, xb, stb, flb, sc, mid, pre=()):
    for it in pre:
        emit(it)
    a.wait_lg0()
    a.barrier()
    toks = []
    for i in range(12):
        toks.append(a(f'ds_read_b128 {vr(RB+4*i,4)}, v{RA} offset:{i*K}'))
    if final is not True:
        a(f's_add_u32 s{sA}, s{sOX}, {xb}')
        a(f's_add_u32 s{sB}, s{sOS}, {stb}')
        a(f's_add_u32 s{sZW}, s{sOF}, {flb}')
    for r in range(0, 16, 2):
        a(f'v_pk_add_f32 {vr(ACC0+r,2)}, {vr(ACC0+r,2)}, {vr(RU+r,2)}')
    S, Q, t0, t1, tl = RU, RU + 1, RU + 2, RU + 3, RU + 4
    if final is not True:
        a(f'v_mov_b32 v{S}, 0')
        a(f'v_mov_b32 v{Q}, 0')
    for s in range(3):
        a.wait(toks[4 * s + 3])
        for r in range(0, 16, 2):
            a(f'v_pk_add_f32 {vr(ACC0+r,2)}, {vr(ACC0+r,2)}, {vr(RB+16*s+r,2)}')
    for m in range(8):
        a(f'v_cvt_pk_bf16_f32 v{vXRES+m}, v{ACC0+2*m}, v{ACC0+2*m+1}')
    if final is True:
        final_store()
        return
    if final == 'dyn':
        a(f's_cmp_lg_u32 s{sL}, 0')
        a('s_cbranch_scc1 ' + LB_('L_final'))
    a(f'buffer_store_dwordx4 {vr(vXRES,4)}, v{vL16}, {sr(S_DT,4)}, s{sA} offen {sc}')
    a(f'buffer_store_dwordx4 {vr(vXRES+4,4)}, v{vL16}, {sr(S_DT,4)}, s{sA} offen offset:1024 {sc}')
    for m in range(8):
        a(f'v_dot2c_f32_bf16 v{S}, s{sONES}, v{vXRES+m}')
        a(f'v_dot2c_f32_bf16 v{Q}, v{vXRES+m}, v{vXRES+m}')
    a(f'v_mov_b32 v{t0}, v{S}')
    a(f'v_mov_b32 v{t1}, v{Q}')
    a(f'v_permlane32_swap_b32 v{S}, v{t0}')
    a(f'v_permlane32_swap_b32 v{Q}, v{t1}')
    a(f'v_pk_add_f32 {vr(S,2)}, {vr(S,2)}, {vr(t0,2)}')
    a('s_mov_b32 exec_hi, 0')
    lt = a(f'buffer_store_dwordx2 {vr(S,2)}, v{vL16}, {sr(S_DT,4)}, s{sB} offen {sc}')
    a('s_mov_b64 exec, -1')
    stamp(nm + 'st')
    mid()
    a.wait(lt)
    emit(flag_store(S_LY, f's{sZW}'))


def final_store():
    a(f'v_and_b32 v18, 31, v{vLANE}')
    a(f'v_lshrrev_b32 v19, 5, v{vLANE}')
    a(f'v_mul_u32_u24 v{vROW}, 896, v18')
    a(f'v_lshl_add_u32 v{vROW}, v19, 4, v{vROW}')
    a(f's_mul_i32 s{sA}, s{sOWN}, 28672')
    a(f's_lshl_b32 s{sB}, s{sOFT}, 6')
    a(f's_add_u32 s{sA}, s{sA}, s{sB}')
    a(f'buffer_store_dwordx4 {vr(vXRES,4)}, v{vROW}, {sr(S_OUT,4)}, s{sA} offen {OSC}')
    a(f'buffer_store_dwordx4 {vr(vXRES+4,4)}, v{vROW}, {sr(S_OUT,4)}, s{sA} offen offset:32 {OSC}')


def idle_touch(base, per_wave_bytes, n, t=16):
    if not IDLE:
        return
    a(f's_sub_u32 s{sA}, s{sJ}, 28')
    a(f's_lshl_b32 s{sA}, s{sA}, 2')
    a(f's_add_u32 s{sA}, s{sA}, s{sW}')
    a(f's_mul_i32 s{sA}, s{sA}, {per_wave_bytes}')
    a(f's_add_u32 s{sA}, s{sA}, {base}')
    a(f'v_lshlrev_b32 v{t}, 7, v{vLANE}')
    for i in range(n):
        a(f'buffer_load_dword v{t+1}, v{t}, {sr(S_WS,4)}, s{sA} offen sc1')
        a(f's_add_u32 s{sA}, s{sA}, 8192')


def p2_setup():
    dma_setup(vROW, sW3SRC, 56 * K, LBETA)
    a(f'v_and_b32 v240, 3, v{vLANE}')
    a(f'v_lshlrev_b32 v240, 5, v240')
    a(f'v_bfe_u32 v241, v{vLANE}, 2, 1')
    a(f'v_lshl_add_u32 v240, v241, 9, v240')
    a(f's_lshl_b32 s{sC}, s{sTILE2}, 9')
    a(f's_lshl_b32 s{sA}, s{sW}, 7')
    a(f's_add_u32 s{sC}, s{sC}, s{sA}')
    a(f's_add_u32 s{sC}, s{sC}, {F1Q}')
    a(f's_lshl_b32 s{sE}, s{sOWN}, 15')
    a(f's_lshl_b32 s{sA}, s{sW}, 13')
    a(f's_add_u32 s{sE}, s{sE}, s{sA}')
    a(f's_add_u32 s{sE}, s{sE}, {PQ}')
    a(f's_xor_b32 s{sF}, s{sE}, 0x8000')
    a(f's_add_u32 s{sH}, s{sREP}, s{sW1K}')
    a(f's_add_u32 s{sH}, s{sH}, {F1}')
    a(f's_lshl_b32 s{sD}, s{sW}, 14')


def phase2(L):
    WO, PQR, KVR = 16, 80, 144
    ODS = (240, 160)
    KB = (144, 152, 176, 192)
    tag = f'{L}'
    beta = dma_items(vROW, LBETA, 56, 2)
    if L == 0:
        a(f's_add_u32 s{sI}, s{sW3SRC}, s{sW2K}')
        a(f's_add_u32 s{sG}, s{sREP}, s{sW1K}')
        al = []
        for r in range(7):
            al.append([f's_add_u32 m0, s{sW2K}, {LALPHA + r*8*K}', f's_add_u32 s85, s{sI}, {r*8*K}',
                       f'buffer_load_dwordx4 v{vL16}, {sr(S_WS,4)}, s85 offen sc1 lds'])
            al.append([f'buffer_load_dwordx4 v{vL16}, {sr(S_WS,4)}, s85 offen offset:1024 sc1 lds'])
        beta = al + beta
    a(f's_cmp_ge_u32 s{sJ}, 28')
    with cold('s_cbranch_scc1', back=LB_('L_p2skip' + tag)):
        if L == 0:
            poll(S_WS, vL16, f's{sG}', nonzero=True, sleep=2)
            a.barrier()
        for it in beta:
            emit(it)
        if L == 0:
            idle_touch(WDR, 7 * WDS // 16, IDN)
        elif L == 1:
            idle_touch(W3R + 112 * K, W3S, IDN)
        p3_setup(L)
        a.wait_vm0()
    with cond():
        poll(S_LY, 240, f's{sC}')
        stamp('p2pq')
        pt = {}
        for aa, s in ((1, sF), (0, sE)):
            for hl in range(4):
                for ks in range(2):
                    pt[hl, aa] = a(f'buffer_load_dwordx4 {vr(PQR+16*hl+8*aa+4*ks,4)}, v{vL16}, {sr(S_DT,4)}, s{s} offen offset:{(hl%2)*2048+ks*K} sc1')
                if hl == 1:
                    a(f's_add_u32 s{s}, s{s}, 4096')
                if aa == 1 and hl == 1:
                    fchk = a(f'buffer_load_dword v253, v{vL16}, {sr(S_LY,4)}, s{sH} offen sc1')
                if aa == 0 and hl == PQSPLIT:
                    break
        a.wait(fchk)
        check_or_poll(253, S_LY, vL16, f's{sH}', sleep=0)
        stamp('p2poll')
        kt = {}
        lq = []

        def kvl(hl, q):
            kt[hl] = a(f'buffer_load_dwordx4 {vr(KVR+16*hl+4*q,4)}, v{vL16}, {sr(S_LY,4)}, s{sD} offen offset:{q*K} sc1')
            if q == 3:
                a(f's_add_u32 s{sD}, s{sD}, 4096')

        def pql(hl, ks):
            pt[hl, 0] = a(f'buffer_load_dwordx4 {vr(PQR+16*hl+4*ks,4)}, v{vL16}, {sr(S_DT,4)}, s{sE} offen offset:{(hl%2)*2048+ks*K} sc1')
            if hl == 1 and ks == 1:
                a(f's_add_u32 s{sE}, s{sE}, 4096')
        if L == 0:
            bchk = a(f'buffer_load_dword v253, v{vL16}, {sr(S_WS,4)}, s{sG} offen sc1')
        for hl in range(4):
            for q in range(4):
                kvl(hl, q)
        if L == 0:
            a.wait(bchk)
            check_or_poll(253, S_WS, vL16, f's{sG}', nonzero=True, sleep=0)
            a.barrier()
        for hl in range(PQSPLIT + 1, 4):
            for ks in range(2):
                lq.append(lambda h_=hl, k_=ks: pql(h_, k_))
        wot = {}
        cw = []
        if CARRY:
            a(f's_and_b32 s{sA}, s{sW1K}, 0x400')
            a(f's_add_u32 s80, s{sWOSRC}, s{sA}')
            a(f's_xor_b32 s{sA}, s{sA}, 0x400')
            a(f's_add_u32 s81, s{sWOSRC}, s{sA}')
        ncw = 0
        for it in CARRY:
            m_ = re.match(r'buffer_load_dwordx4 ([va])\[(\d+):', it[-1])
            assert m_
            if m_.group(1) == 'v':
                k_ = (int(m_.group(2)) - 16) // 4

                def f(k_=k_):
                    a(f's_add_u32 s78, s{80 + k_ % 2}, {(k_ // 2) * 2048}')
                    wot[k_ // 4] = a(f'buffer_load_dwordx4 {vr(16+4*k_,4)}, v{vL16}, {sr(S_WS,4)}, s78 offen sc1')
                cw.append(f)
            else:
                ncw += 1
        CARRY[:] = []
        for f in cw[:CWN]:
            f()
        beta = cw[CWN:] + lq + beta
        wd2 = []
        if L != 1:
            a(f's_and_b32 s{sA}, s{sW1K}, 0x400')
            a(f's_add_u32 s76, s{sWDSRC}, s{sA}')
            a(f's_xor_b32 s{sA}, s{sA}, 0x400')
            a(f's_add_u32 s77, s{sWDSRC}, s{sA}')
            for k_ in range(WDP1 - ncw, WDP1 + WDP2):
                n_, b = k_ // 2, k_ % 2
                wd2.append([f's_add_u32 s78, s{76+b}, {n_*2048}',
                            f'buffer_load_dwordx4 {ar(8*n_+4*b,4)}, v{vL16}, {sr(S_WS,4)}, s78 offen sc1'])

        def cvt(hl):
            return [f'v_cvt_pk_bf16_f32 v{KB[hl]+m}, v{KVR+16*hl+2*m}, v{KVR+16*hl+2*m+1}' for m in range(8)]
        units = [(hl, aa) for aa in (1, 0) for hl in range(4)]

        def oM(u):
            hl, aa = units[u]
            D = vr(ODS[u % 2], 16)
            P = PQR + 16 * hl + 8 * aa
            return [f'{MF} {D}, {vr(KB[hl],4)}, {vr(P,4)}, 0',
                    f'{MF} {D}, {vr(KB[hl]+4,4)}, {vr(P+4,4)}, {D}']

        def scale(u):
            hl, aa = units[u]
            D = ODS[u % 2]
            P = PQR + 16 * hl + 8 * aa
            o = [f'v_add_f32 v{D+14}, s{sEPS6}, v{D+14}',
                 f'v_rcp_f32 v{D+14}, v{D+14}']
            for m in range(7):
                o.append(f'v_mul_f32 v{D+2*m}, v{D+2*m}, v{D+14}')
                o.append(f'v_mul_f32 v{D+2*m+1}, v{D+2*m+1}, v{D+14}')
                o.append(f'v_cvt_pk_bf16_f32 v{P+m}, v{D+2*m}, v{D+2*m+1}')
            return o

        def woM(u, bs):
            hl, aa = units[u]
            P = PQR + 16 * hl + 8 * aa
            o = []
            for b in bs:
                for ks in range(2):
                    D = accs(2 * aa + b)
                    c = '0' if (hl == 0 and ks == 0) else D
                    o.append(f'{MF} {D}, {vr(WO+16*hl+8*ks+4*b,4)}, {vr(P+4*ks,4)}, {c}')
            return o
        RU, RA = 160, 184
        a.wait(kt[0])
        emit(cvt(0))
        emit(oM(0))
        a.wait(kt[1])
        emit(cvt(1))
        m1 = oM(1)
        vs = scale(0)
        a(m1[0]); shadow([], vs)
        a(m1[1]); emit(vs)
        wr = []
        for u in range(9):
            if u < 4:
                ms = woM(u, (0, 1))
            elif u < 8:
                ms = woM(u, (1,)) + (woM(u - 2, (0,)) if u >= 6 else [])
            else:
                ms = woM(6, (0,)) + woM(7, (0,))
            vs = scale(u + 1) if u + 1 < 8 else []
            if u < 4:
                while any(getattr(x, '__name__', '') == 'f' and x.__defaults__[0] // 4 <= u for x in beta):
                    beta.pop(0)()
                a.wait(wot.get(u))
            if u < 2:
                a.wait(kt[u + 2])
                vs = cvt(u + 2) + vs
            if u == 2:
                vs = vs + red_setup(LB, RA)[:8]
            if u == 3:
                vs = vs + red_setup(LB, RA)[8:]
            if u == 4:
                wr = red_write(2, RA) + red_write(3, RA)
            if u == 7:
                vs = res_unpack(RU)
            if u == 8:
                wr = wr + red_write(1, RA)
            if u + 2 < 8:
                ms = ms[:2] + ['W'] + oM(u + 2) + ms[2:]
            k_ = 0
            for m in ms:
                if m == 'W':
                    a.wait(pt[units[u + 2]])
                    if u < 2:
                        while any(x in vs for x in cvt(u + 2)):
                            a(vs.pop(0))
                    continue
                a(m)
                mem = []
                if beta and k_ % 2 == 0:
                    mem.append(beta.pop(0))
                elif wd2 and k_ % 2 == 0:
                    mem.append(wd2.pop(0))
                if wr and (k_ % 2 == 1 or u == 8) and not (u in (4, 8) and k_ == 0):
                    mem.append(wr[:1]); wr = wr[1:]
                shadow(mem, vs)
                k_ += 1
            emit(vs)
        wd2 = beta + wd2 + (code_touch(188, 189) if CT >= 2 else [])
        stamp('p2mfma')
        emit(wr)
        sc = LS()
        red_finish(False, 80, RU, RA, 'p2', X1, ST1, F2, sc, lambda: p3_setup(L), pre=wd2)
    a.label(LB_('L_p2skip' + tag))
    stamp('p2end')


p3D1, p3D3, p3SA, p3SB = 228, 229, 240, 241
p3D2 = 243
p3FL, p3HA, p3HB, p3FV = 244, 245, 246, 247


def p3_setup(L):
    vFL, vHA, vHB = p3FL, p3HA, p3HB
    x_prep(F2, X1, ST1)
    dma_setup(p3D3, sW3SRC, 112 * K, LB)
    dma_setup(p3D1, sW3SRC, 147 * K, LALPHA)
    if L is None:
        a(f's_cmp_lg_u32 s{sL}, 0')
        a(f's_cselect_b32 s{sA}, {OOB:#x}, s{sW1SRC}')
        a(f'v_add_u32 v{p3D2}, s{sA}, v{vL16}')
    elif L == 0:
        a(f'v_add_u32 v{p3D2}, s{sW1SRC}, v{vL16}')
    a(f's_mul_i32 s{sG}, s{sTILE1}, {112*K}')
    a(f's_mul_i32 s{sA}, s{sHC}, {7*K}')
    a(f's_add_u32 s{sG}, s{sG}, s{sA}')
    a(f's_add_u32 s{sG}, s{sG}, {HB}')
    a(f's_add_u32 s{sH}, s{sG}, 4096')
    a(f's_lshl_b32 s{sU}, s{sTILE1}, 9')
    a(f's_lshl_b32 s{sA}, s{sHC}, 2')
    a(f's_add_u32 s{sU}, s{sU}, s{sA}')
    a(f's_add_u32 s{sU}, s{sU}, {F3}')


def p4_addr():
    vFL, vHA, vHB = p3FL, p3HA, p3HB
    return [f'v_and_b32 v{vFL}, 3, v{vLANE}',
            f'v_lshlrev_b32 v{vFL}, 2, v{vFL}',
            f'v_bfe_u32 v{vHA}, v{vLANE}, 2, 1',
            f'v_lshl_add_u32 v{vFL}, v{vHA}, 9, v{vFL}',
            f's_lshl_b32 s{sA}, s{sTILE2}, 9',
            f's_lshl_b32 s{sB}, s{sW}, 4',
            f's_add_u32 s{sA}, s{sA}, s{sB}',
            f's_add_u32 s85, s{sA}, {F3}',
            f'v_add_u32 v{vFL}, s85, v{vFL}',
            f's_mul_i32 s{sB}, s{sW}, {28*K}',
            f's_add_u32 s{sB}, s{sB}, {HB}',
            f's_mul_i32 s{sA}, s{sOWN}, {112*K}',
            f's_add_u32 s{sA}, s{sA}, s{sB}',
            f'v_add_u32 v{vHA}, s{sA}, v{vL16}',
            f's_xor_b32 s{sA}, s{sOWN}, 1',
            f's_mul_i32 s{sA}, s{sA}, {112*K}',
            f's_add_u32 s{sA}, s{sA}, s{sB}',
            f'v_add_u32 v{vHB}, s{sA}, v{vL16}']


def phase34(L):
    ACC = 128
    WR, NW = 192, 8
    SB = 176
    XAUG = 224
    vD1, vD3, vSA, vSB, vD2 = p3D1, p3D3, p3SA, p3SB, p3D2
    vFL, vHA, vHB, vFV = p3FL, p3HA, p3HB, p3FV
    vFV2 = 242
    PRE = XPRE
    HR, NH = 16, 28
    tag = f'{L}'
    LOOK = 6
    NG = 3 if G3 else 2
    steps = [(t, ks) for ks in range(29) for t in range(NG)]
    for t in range(NG, 7):
        steps += [(t, ks) for ks in range(29)]

    def addr(t, ks):
        if G3 and t < 3:
            p = 3 * ks + t
            return LALPHA + p * K if p < 56 else LBETA + (p - 56) * K
        if ks == 28 and t < 3:
            return LBETA + t * K
        if t < 2:
            return LALPHA + (2 * ks + t) * K
        if t == 2:
            return LBETA + (3 + ks) * K
        if t == 3:
            return LBETA + (31 + ks) * K
        if t == 4:
            return LB + (4 + ks) * K
        if t == 5:
            return LALPHA + ks * K
        return LALPHA + (29 + ks) * K if ks < 27 else LB + (33 + ks - 27) * K
    n = len(steps)
    accof = {0: 0, 1: 1, 2: 2, 3: 3, 4: 0, 5: 1, 6: 2}
    rt, xt, hst, ht, chk = {}, {}, {}, {}, {}

    def hsc(t):
        return LS() if (L == 1 and t >= HPL) else 'sc1'

    def epi(t, D=None, Sx=None):
        Sx = ACC + 16 * accof[t] if Sx is None else Sx
        D = Sx if D is None else D
        o = []
        for r in range(8):
            o.append(f'v_mul_f32 v{D+r}, v{Sx+r}, v{vC2}')
        for r in range(8):
            o.append(f'v_exp_f32_e64 v{D+r}, -v{D+r}')
            if r >= 2:
                o.append(f'v_fma_f32 v{D+r-2}, v{D+r-2}, v{vISTD}, v{vISTD}')
        for r in (6, 7):
            o.append(f'v_fma_f32 v{D+r}, v{D+r}, v{vISTD}, v{vISTD}')
        for r in range(8):
            o.append(f'v_rcp_f32 v{D+r}, v{D+r}')
            if r >= 2:
                o.append(f'v_mul_f32 v{D+r-2}, v{D+r-2}, v{Sx+8+r-2}')
        for r in (6, 7):
            o.append(f'v_mul_f32 v{D+r}, v{D+r}, v{Sx+8+r}')
        for m in range(4):
            o.append(f'v_cvt_pk_bf16_f32 v{D+8+m}, v{D+2*m}, v{D+2*m+1}')
        s = sG if t < 4 else sH
        o.append(f'buffer_store_dwordx4 {vr(D+8,4)}, v{vL16}, {sr(S_DT,4)}, s{s} offen offset:{(t%4)*K} {hsc(t)} ; H{t}')
        return o

    def issue_rd(i):
        if i >= n:
            return
        t, ks = steps[i]
        d = WR + 4 * (i % NW)
        rt[i] = read_frag(d, addr(t, ks)) if ks < 28 else read_aug(d, addr(t, ks), 251 + (i % 3))

    def flag_ld(stg):
        if stg == 0 or not FAST():
            chk[stg] = a(f'buffer_load_dword v{vFV}, v{vFL}, {sr(S_LY,4)}, 0 offen offset:{64*stg} sc1')
        else:
            a(f's_buffer_load_dwordx4 s[76:79], {sr(S_LY,4)}, s85 offset:{64*stg}')
            a(f's_buffer_load_dwordx4 s[80:83], {sr(S_LY,4)}, s85 offset:{64*stg+512}')

    def flag_chk(stg):
        if FAST():
            a('s_waitcnt lgkmcnt(0)')
            a('s_and_b64 s[76:77], s[76:77], s[78:79]')
            a('s_and_b64 s[80:81], s[80:81], s[82:83]')
            a('s_and_b64 s[76:77], s[76:77], s[80:81]')
            a('s_and_b32 s76, s76, s77')
        else:
            a.wait(chk[stg])
            a(f'v_cmp_ne_u32 vcc, 1, v{vFV}')
            a('s_cmp_eq_u64 vcc, 0')
        assert 6 in hst
        with cold('s_cbranch_scc0'):
            a.wait_vm0()
            emit(flag_store(S_LY, f's{sU}', imm=128))
            emit(flag_store(S_LY, f's{sU}', imm=192))
            poll(S_LY, vFL, 0, imm=64 * stg)

    CHK = {24: 1, 40: 2, 48: 3}

    def hld(idx, chkflags=True):
        if idx >= 56:
            return
        if chkflags and idx + 4 in CHK:
            flag_ld(CHK[idx + 4])
        if chkflags and idx in CHK:
            flag_chk(CHK[idx])
        n_, aa = idx // 2, idx % 2
        t, cc = n_ // 4, n_ % 4
        if aa == 0:
            a(f's_mov_b32 s{sE}, {(cc*7+t)*K}')
        ht[idx] = a(f'buffer_load_dwordx4 {vr(HR+4*(idx%NH),4)}, v{(vHA,vHB)[aa]}, {sr(S_DT,4)}, s{sE} offen sc1')

    a.wait_lg0()
    if BEARLY:
        a.barrier()
        for i in range(LOOK):
            issue_rd(i)
    poll(S_LY, 240, f's{sC}')
    stamp('p3poll')
    for ks in range(4):
        xt[ks] = x_load(ks)
    if not BEARLY:
        a.barrier()
        for i in range(LOOK):
            issue_rd(i)
    for ks in range(4, PRE):
        xt[ks] = x_load(ks)
    fill, owner = [], []
    done_at = {}
    wd = [] if L == 1 else wfrag_items(lambda n_, b: ar(8 * n_ + 4 * b, 4), sWDSRC, (WDP1 + WDP2) // 2, 28, vSA, vSB, sF)
    ft = [[f'v_and_b32 v233, 0x80, v{vL4}', f'buffer_load_dword v233, v233, {sr(S_LY,4)}, s{sU} offen sc1']] if FT else []
    if HT and FAST() and (L == 1 or HT > 1):
        ft += [[f'v_min_u32 v234, 55, v{vLANE}', f'v_lshlrev_b32 v234, 7, v234', f'buffer_load_dword v234, v234, {sr(S_DT,4)}, s{sG} offen sc1']]
    bg = dma_items(vD3, LB, 36, 1) + ['M3'] + ft + wd[:WDP3]
    wd4 = wd[WDP3:]
    assert len(wd4) <= 16
    marks = {}
    cur = [0]

    def pop():
        x = fill.pop(0); o = owner.pop(0)
        t = a(x)
        if '; H' in x:
            hst[o] = (t, cur[0])

    def pub(stg, last_tile):
        a.wait(hst[last_tile][0])
        emit(flag_store(S_LY, f's{sU}', imm=64 * stg))

    def xl(ks):
        xt[ks] = x_load(ks)

    def next_bg():
        while bg and isinstance(bg[0], str):
            marks[bg.pop(0)] = mark()
        return bg.pop(0) if bg else None
    pubs = [(0, 2), (1, 4)]
    for i, (t, ks) in enumerate(steps):
        cur[0] = i
        if i == (45 if G3 else 34):
            a.wait(chk['st'])
            s_ = [f's_and_b32 s{sA}, s{sW1K}, 0x400', f'v_add_u32 v{vSA}, s{sA}, v{vL16}', f'v_xor_b32 v{vSB}, 0x400, v{vSA}'] + \
                stats_sum(SB) + stats_finish(XAUG, SB) + p4_addr()
            fill += s_; owner += [-1] * len(s_)
        stamp(f'i{i}', fine=True) if i in (1, 30, 57, 87, 116, 145, 174) else None
        if i % 2 == 0:
            a.wait(rt[min(i + 1, n - 1)], xt.get(steps[min(i + 1, n - 1)][1]), xt.get(ks))
        if i == 56:
            a.barrier()
            k3 = bg.index('M3') + 1 if 'M3' in bg else 0
            bg = bg[:k3] + dma_items(vD1, LALPHA, 56, 2) + ['M4'] + code_touch(232, 233) + bg[k3:]
        if i + LOOK == 112:
            a.wait(marks['M3'])
            a.barrier()
        if i + LOOK == 145:
            a.wait(marks['M4'])
            a.barrier()
            bg = code_touch(232, 233) + bg
        D = vr(ACC + 16 * accof[t], 16)
        if ks == 0 and t >= 4:
            assert (t - 4) not in owner
        if ks == 28:
            assert -1 not in owner
        X = vr(16 + 4 * ks, 4) if ks < 28 else vr(XAUG, 4)
        a(f'{MF} {D}, {vr(WR+4*(i%NW),4)}, {X}, {"0" if ks == 0 else D}')
        if ks == 28:
            done_at[t] = i
        for tt, di in list(done_at.items()):
            if i >= di + 2:
                e = epi(tt)
                fill += e; owner += [tt] * len(e)
                del done_at[tt]
        pre = main = None
        if t == 0 and ks + PRE < 28:
            main = (lambda k_=ks + PRE: xl(k_))
        elif t == NG - 1 and ks < 8 and ks % 2 == 0:
            main = (lambda k_=ks // 2: chk.__setitem__('st', st_load(k_, SB)))
        elif G3 and t == 2 and ks + PRE < 28 and ks % 2 == 0 and 'M3' not in marks:
            pre, main = split_item(next_bg())
        elif t == 6:
            if ks % 2 == 1:
                main = (lambda k_=ks // 2: hld(k_))
        elif i == 173:
            main = lambda: flag_ld(0)
        elif i % 2 == 0 and i >= NG * (28 - PRE):
            pre, main = split_item(next_bg())
        extra = None
        if fill and '; H' in fill[0]:
            extra = pop
        elif pubs and pubs[0][1] in hst and i >= hst[pubs[0][1]][1] + PUBD and i % 2 == 1:
            extra = (lambda p=pubs.pop(0): pub(*p))
        n0 = len(a.ins)
        for f in (pre, lambda: issue_rd(i + LOOK), main, extra):
            if f is None:
                continue
            f() if callable(f) else emit(f)
        budget = CAP3 - (len(a.ins) - n0) - (i % 2)
        while fill and '; H' not in fill[0] and budget >= cost(fill[0]):
            budget -= cost(fill[0])
            pop()
    assert not pubs and next_bg() is None, len(bg)
    print('P3: h stores at steps', {t: v[1] for t, v in hst.items()}, 'left', len(fill))
    assert not fill and 5 in hst
    stamp('p3mfma')

    RU, RA = 192, 128
    w1 = [] if L == 1 else dma_items(vD2, 0, 88, 2)
    nxt = (lambda: p1_setup(False)) if L != 1 else (lambda: None)
    a(f's_cmp_ge_u32 s{sJ}, 28')
    with cold('s_cbranch_scc1', back=LB_('L_p4skip' + tag)):
        emit(epi(6))
        pub(2, 5)
        a.barrier()
        a.wait_vm0()
        emit(flag_store(S_LY, f's{sU}', imm=192))
        if L == 0:
            idle_touch(W1R, W1S, 11)
        if L == 1 and WB:
            a('buffer_wbl2 sc1')
        for it in w1:
            emit(it)
        nxt()
    with cond():
        a.wait(chk[0])
        a(f'v_cmp_ne_u32 vcc, 1, v{vFV}')
        a('s_cmp_eq_u64 vcc, 0')
        saved = dict(ht)
        with cold('s_cbranch_scc0'):
            emit(epi(6, D=ACC + 48))
            a.wait_vm0()
            emit(flag_store(S_LY, f's{sU}', imm=128))
            emit(flag_store(S_LY, f's{sU}', imm=192))
            poll(S_LY, vFL, 0, imm=0)
            for idx in range(14):
                hld(idx, False)
            a.wait_vm0()
        ht.update(saved)
        fill = epi(6)
        owner = [6] * len(fill)
        later = red_setup(LALPHA, RA) + res_unpack(RU)
        TAIL = 8
        nld = [14]
        todo = ['pub2', 'pub3']
        wt = {}

        def mf(n_, s):
            aa, b = s >> 1, s & 1
            D = accs(s)
            a(f'{MF} {D}, {ar(8*n_+4*b,4)}, {vr(HR+4*((2*n_+aa)%NH),4)}, {"0" if n_ == 0 else D}')

        def sh(step, load):
            cur[0] = step
            n0 = len(a.ins)
            if load:
                if nld[0] < 56:
                    hld(nld[0]); nld[0] += 1
                elif w1:
                    emit(w1.pop(0))
            elif todo and todo[0] == 'pub2' and step >= 13:
                pub(2, 5); todo.pop(0)
            elif todo and todo[0] == 'pub3' and 6 in hst and step >= hst[6][1] + PUBD2:
                pub(3, 6); todo.pop(0)
                fill.extend(later); owner.extend([-2] * len(later))
            elif wd4:
                wt[0] = emit(wd4.pop(0))
            if step >= 1:
                if fill and '; H' in fill[0]:
                    pop()
                budget = CAP - (len(a.ins) - n0)
                while fill and '; H' not in fill[0] and budget >= cost(fill[0]):
                    budget -= cost(fill[0])
                    pop()
        for n_ in range(28 - TAIL):
            if n_ == P4B:
                a.barrier()
            stamp(f'n{n_}') if ('p4prof' in OPT and n_ in (2, 4, 8, 13, 15, 17)) else None
            a.wait(ht[2 * n_])
            mf(n_, 0); sh(4 * n_, True)
            mf(n_, 1); sh(4 * n_ + 1, False)
            a.wait(ht[2 * n_ + 1])
            mf(n_, 2); sh(4 * n_ + 2, True)
            mf(n_, 3); sh(4 * n_ + 3, 10 <= n_ < 16)
        assert nld[0] == 56 and not fill and not todo and not wd4
        stamp('n20') if 'p4prof' in OPT else None
        a.wait(wt.get(0))
        pend = []
        for s in (3, 2, 1, 0):
            for k_, n_ in enumerate(range(28 - TAIL, 28)):
                a.wait(ht[2 * n_ + 1])
                mf(n_, s)
                if k_ % 2 == 1 and pend:
                    emit(pend[:1]); pend = pend[1:]
                elif w1 and k_ % 2 == 0 and len(w1) > W1KEEP:
                    emit(w1.pop(0))
            if s > 0:
                pend = red_write(s, RA)
        stamp('p4mfma')

        def mid():
            for it in w1:
                emit(it)
            nxt()
        final = {0: False, 1: True, None: 'dyn'}[L]
        xb, stb = (X1, ST1) if FAST() else (X0 + LYB, ST0 + LYB)
        pre4 = w1[:len(w1) // 4 * 2]; w1 = w1[len(pre4):]
        pre4 = pre4 + (code_touch(140, 141) if CT >= 2 and L != 1 else [])
        red_finish(final, 16, RU, RA, 'p4', xb, stb, F0 + LYB, LS(), mid, pre=pre4)
    a.label(LB_('L_p4skip' + tag))
    if L != 1:
        stamp('p4end')


def restore(ctx):
    a.vm_issued, a.vm_done, a.lg_issued, a.lg_done = ctx['state']
    ctx['qt'].clear(); ctx['qt'].update(ctx['qt0'])


def build():
    prologue()
    init_phase()
    MODE.update(sc='', sfx='')
    ctx = phase1_kv(True)
    phase1_q(ctx, True)
    phase2(0)
    phase34(0)
    c2 = phase1_kv(False)
    phase1_q(c2, False)
    phase2(1)
    phase34(1)
    a.label('L_done')
    if PROFILE:
        stamp('end')
        a(f's_lshl_b32 s{sA}, s2, 2')
        a(f's_add_u32 s{sA}, s{sA}, s{sW}')
        a(f's_lshl_b32 s{sA}, s{sA}, 8')
        a(f's_add_u32 s{sA}, s{sA}, {PROF}')
        a(f'buffer_store_dword v{vPROF}, v{vL4}, {sr(S_WS,4)}, s{sA} offen')
        if 'probe' in OPT:
            k0, k1 = [int(x) for x in OPT['probe'].split(',')]
            ne = len(STAMPS) - 1
            a(f'v_readlane_b32 s{sA}, v{vPROF}, {k0}')
            a(f'v_readlane_b32 s{sB}, v{vPROF}, {k1}')
            a(f'v_readlane_b32 s{sC}, v{vPROF}, {ne}')
            a('s_cmp_ge_u32 s2, 224')
            a('s_cbranch_scc1 L_end')
            a(f's_sub_u32 s{sA}, s{sB}, s{sA}')
            a(f's_min_u32 s{sA}, s{sA}, 10000')
            a.label('L_spin')
            a('s_sleep 1')
            a(f's_memrealtime {sr(sP0,2)}')
            a('s_waitcnt lgkmcnt(0)')
            a(f's_sub_u32 s{sD}, s{sP0}, s{sC}')
            a(f's_cmp_lt_u32 s{sD}, s{sA}')
            a('s_cbranch_scc1 L_spin')
        if 'dbgout' in OPT:
            a(f's_lshl_b32 s{sA}, s2, 2')
            a(f's_add_u32 s{sA}, s{sA}, s{sW}')
            a(f's_cmp_lg_u32 s{sA}, {77*4+1}')
            a('s_cbranch_scc1 L_end')
            a(f'v_readfirstlane_b32 s{sA}, v{vPROF}')
            a(f'v_subrev_u32 v{vPROF}, s{sA}, v{vPROF}')
            a(f'v_lshlrev_b32 v20, 1, v{vLANE}')
            a(f'v_subrev_u32 v20, {2*int(OPT["dbgout"])}, v20')
            a(f'buffer_store_short v{vPROF}, v20, {sr(S_DBG,4)}, 0 offen sc1')
    a.label('L_end')
    a('s_endpgm')
    a.flush_cold()
    a.label('L_codeend')
    keep = list(STAMPS)
    a.label('L_slow')
    MODE.update(sc='sc1', sfx='_s')
    restore(ctx)
    a('s_nop 7')
    phase1_q(ctx, True)
    a.label('L_layer_s')
    a('s_nop 7')
    phase2(None)
    phase34(None)
    a(f's_cmp_lg_u32 s{sL}, 0')
    a('s_cbranch_scc1 L_done')
    a(f's_mov_b32 s{sL}, 1')
    c2 = phase1_kv(False)
    phase1_q(c2, False)
    a('s_branch L_layer_s')
    a.label('L_final_s')
    final_store()
    a('s_branch L_done')
    a.flush_cold()
    STAMPS[:] = keep


build()
hdr = open('cdna_kernels/' + NAME + '.s.ref').read().split('; Override launch')[0]
out = hdr + f"""; @launch grid=(256,1,1) block=(256,1,1) lds={LDS_BYTES}
.amdgcn_target "amdgcn-amd-amdhsa--gfx950"
.text
.globl {NAME}_kernel
.p2align 8
.type {NAME}_kernel,@function
{NAME}_kernel:
{a.text()}
.section .rodata,"a"
.p2align 6
.amdhsa_kernel {NAME}_kernel
  .amdhsa_next_free_vgpr 512
  .amdhsa_next_free_sgpr 102
  .amdhsa_accum_offset 256
  .amdhsa_group_segment_fixed_size 0
  .amdhsa_kernarg_size 80
  .amdhsa_user_sgpr_count 2
  .amdhsa_user_sgpr_kernarg_segment_ptr 1
  .amdhsa_system_sgpr_workgroup_id_x 1
  .amdhsa_float_denorm_mode_32 3
.end_amdhsa_kernel
"""
outfn = [x for x in sys.argv[1:] if not x.startswith('--')][0]
open(outfn, 'w').write(out)
open(outfn + '.names', 'w').write(','.join(STAMPS))
print('instructions', len(a.ins), 'nops added', a.nops_added)
```

```python
import sys
import contextlib
import re
from asmlib import Asm, vr, ar, sr

NAME = "interleave_layers__linear_attn_block__glu_gated_glu__prompt"
OPT = {}
for x in sys.argv[1:]:
    if x.startswith('--'):
        k, _, v = x[2:].partition('=')
        OPT[k] = v if v else True
PROFILE = 'prof' in OPT
FINE = 'fine' in OPT
CLK = 'clk' in OPT
STOP = OPT.get('stop')
FA = 1
SLEEP = int(OPT.get('sleep', 1))
TOUCH = int(OPT.get('touch', 0))
BUD = int(OPT.get('bud', 3))
XPRE = int(OPT.get('xpre', 8))
HPRE = int(OPT.get('hpre', 16))
HSC = int(OPT.get('hsc', 0))
XSC = int(OPT.get('xsc', 0))
TLBW = int(OPT.get('tlbw', 0))
XI = int(OPT.get('xi', 0))
XA = int(OPT.get('xa', 16))
CT = int(OPT.get('ct', 1))
FT = int(OPT.get('ft', 0))
HT = int(OPT.get('ht', 0))
X0N = int(OPT.get('x0n', 0))
IDLE = int(OPT.get('idle', 0))
OSC = OPT.get('osc', '')
PQSC = int(OPT.get('pqsc', 0))
WB = int(OPT.get('wb', 0))
IDN = int(OPT.get('idn', 11))
HPL = int(OPT.get('hpl', 9))
G3 = int(OPT.get('g3', 1))
P4B = int(OPT.get('p4b', 1))
BEARLY = int(OPT.get('bearly', 1))
WDP2 = int(OPT.get('wdp2', 12))
W1KEEP = int(OPT.get('w1keep', 0))
CARRYON = int(OPT.get('carry', 0))
CWN = int(OPT.get('cwn', 4))
EPD = int(OPT.get('epd', 1))
UNT = 'nt' if int(OPT.get('unt', 1)) else ''
XNT = 'nt' if int(OPT.get('xnt', 1)) else ''
XNT2 = 'nt' if int(OPT.get('xnt', 1)) > 1 else ''
WSC = OPT.get('wsc', 'sc1').replace('+', ' ')
STAMPS = []

IB = 0x0
W1R = 0x100000; W1S = 87 * 1024
WOR = 0x280000
W3R = 0x300000; W3S = 203 * 1024
WDR = 0x680000; WDS = 224 * 1024
LYB = 0x1000000
KV = 0x0
F1 = 0x10000
F1Q = 0x18000
F3 = 0x30000
F2 = 0x20000
F0 = 0x28000
ST1 = 0x40000
ST0 = 0x80000
PQ = 0x100000
X1 = 0x300000
X0 = 0x500000
HB = 0x700000
PROF = 0x3000000
WS_BYTES = 256 << 20
OOB = 0x40000000

K = 1024
LBETA, LB, LALPHA = 0, 56 * K, 104 * K
LRS = 87 * K
LKVS = 88 * K
LDS_BYTES = 160 * K

S_WS, S_X, S_WQKV, S_WO, S_WG, S_WU, S_WD, S_OUT, S_DBG = 4, 8, 12, 16, 20, 24, 28, 32, 36
S_T0, S_T1 = 40, 44
S_LY = 40
S_DT = 44
sW, sJ, sHC, sTB, sFB, sL, sTMO, sPI = 48, 49, 50, 51, 52, 53, 54, 55
sTILE1, sTILE2, sOWN, sOFT = 56, 57, 58, 59
sLN2, sEPS6 = 60, 62
sONES = 84
sW1K, sW2K, sW4K = 64, 65, 66
sW1SRC, sW3SRC, sWOSRC, sWDSRC = 67, 68, 69, 70
sRBG, sREP = 71, 72
sG, sH, sI = 73, 74, 75
sA, sB, sC, sD, sE, sF = 86, 87, 88, 89, 90, 91
sP0 = 92
sU = 94
sXID = 95
sZW = 96
sPC = 100

vLANE, vL16, vL16b, vL16c, vROW, vAUG, vL4, vPROF = 0, 1, 2, 3, 4, 5, 6, 7
vXRES = 8
LOG2E = 0x3FB8AA3B
LN2 = 0x3F317218
EPS6 = 0x358637BD
EPS5 = 0x3727C5AC
INV448 = 0x3B124925
MF = 'v_mfma_f32_32x32x16_bf16'

a = Asm()
MODE = {'sc': 'sc1', 'sfx': ''}


def LS():
    return MODE['sc']


def LL():
    return OPT.get('ll', 'sc1').replace('none', '') if MODE['sc'] == '' else 'sc1'


def ALIAS():
    return MODE['sfx'] == '' and 'noalias' not in OPT


def XS():
    return 'sc1' if XSC else LS()


def HS():
    return 'sc1' if HSC else LS()


def LB_(n):
    return n + MODE['sfx']


@contextlib.contextmanager
def cond():
    st = (a.vm_issued, a.vm_done, a.lg_issued, a.lg_done)
    yield
    a.vm_issued, a.vm_done, a.lg_issued, a.lg_done = st


@contextlib.contextmanager
def cold(branch, back=None):
    C = a.uid('Lc'); R = back or a.uid('Lr')
    a(f'{branch} {C}')
    st = (a.vm_issued, a.vm_done, a.lg_issued, a.lg_done)
    a.begin_cold()
    a.label(C)
    a('s_nop 7')
    a('s_nop 3')
    yield
    a('s_nop 4')
    a(f's_branch {R}')
    a.end_cold()
    a.vm_issued, a.vm_done, a.lg_issued, a.lg_done = st
    if back is None:
        a.label(R)


def mark():
    return ('vm', a.vm_issued - 1)


def lds_addr(addr):
    if addr < 65536:
        return vL16, addr
    if addr < 131072:
        return vL16b, addr - 65536
    return vL16c, addr - 131072


def stamp(name, fine=False):
    if not PROFILE or (fine and not FINE):
        return
    STAMPS.append(name)
    a('s_waitcnt lgkmcnt(0)')
    a(f"{'s_memtime' if CLK else 's_memrealtime'} {sr(sP0,2)}")
    a.wait_lg0()
    a(f'v_cmp_eq_u32 vcc, s{sPI}, v{vLANE}')
    a(f'v_mov_b32 v255, s{sP0}')
    a(f'v_cndmask_b32 v{vPROF}, v{vPROF}, v255, vcc')
    a(f's_add_u32 s{sPI}, s{sPI}, 1')


def srd(base, lo, nbytes):
    a(f's_mov_b32 s{base}, s{lo}')
    a(f's_and_b32 s{base+1}, s{lo+1}, 0xffff')
    a(f's_mov_b32 s{base+2}, {nbytes}')
    a(f's_mov_b32 s{base+3}, 0x00020000')


def poll(srdreg, vaddr, soff, imm=0, t=254, sleep=0, nonzero=False):
    L = a.uid('Lpoll'); D = a.uid('Lpd')
    a.label(L)
    if sleep:
        a(f's_sleep {sleep}')
    a(f'buffer_load_dword v{t}, v{vaddr}, {sr(srdreg,4)}, {soff} offen offset:{imm} sc1')
    a(f's_sub_u32 s{sTMO}, s{sTMO}, 1')
    a(f's_max_i32 s{sTMO}, s{sTMO}, 0')
    a(f's_cselect_b64 {sr(sP0,2)}, exec, 0')
    a.wait_vm0()
    a(f'v_cmp_eq_u32 vcc, 0, v{t}' if nonzero else f'v_cmp_ne_u32 vcc, 1, v{t}')
    a(f's_and_b64 exec, {sr(sP0,2)}, vcc')
    a(f's_cbranch_scc1 {L}')
    a('s_mov_b64 exec, -1')


def check_or_poll(v, srdreg, vaddr, soff, imm=0, nonzero=False, sleep=1, t=254):
    a(f'v_cmp_eq_u32 vcc, 0, v{v}' if nonzero else f'v_cmp_ne_u32 vcc, 1, v{v}')
    a('s_cmp_eq_u64 vcc, 0')
    with cold('s_cbranch_scc0'):
        poll(srdreg, vaddr, soff, imm=imm, nonzero=nonzero, sleep=sleep, t=t)


def code_touch(t, d):
    if not CT:
        return []
    return [[f'v_and_b32 v{t}, 3, v{vLANE}',
             f'v_lshlrev_b32 v{t}, 7, v{t}',
             f'global_load_dword v{d}, v{t}, {sr(sPC,2)}']]


def flag_store(srdreg, soff, imm=0, t=254, sc=None):
    sc = LS() if sc is None else sc
    return [f'v_mov_b32 v{t}, 1',
            's_mov_b64 exec, 1',
            f'buffer_store_dword v{t}, off, {sr(srdreg,4)}, {soff} offset:{imm} {sc}',
            's_mov_b64 exec, -1']


def emit(lst):
    t = None
    for x in lst:
        r = a(x)
        t = r if r is not None else t
    return t


def dma_items(vD, lds_base, nfrag, c):
    assert nfrag % (4 * c) == 0
    sWc = {1: sW1K, 2: sW2K, 4: sW4K}[c]
    items = []
    for r in range(nfrag // (4 * c)):
        for i in range(c):
            it = []
            if i == 0:
                it.append(f's_add_u32 m0, s{sWc}, {lds_base + r*4*c*K}')
            it.append(f'buffer_load_dwordx4 v{vD}, {sr(S_WS,4)}, m0 offen offset:{i*K} {WSC} lds')
            items.append(it)
    return items


def dma_setup(vD, ssrc, src_const, lds_base):
    a(f's_add_u32 s{sA}, s{ssrc}, {src_const - lds_base & 0xffffffff:#x}')
    a(f'v_add_u32 v{vD}, s{sA}, v{vL16}')


def prologue():
    a('s_cmp_ge_u32 s2, 256')
    a('s_cbranch_scc1 L_end')
    a('s_load_dwordx16 s[64:79], s[0:1], 0')
    a('s_load_dwordx4 s[80:83], s[0:1], 64')
    a(f's_getpc_b64 {sr(sPC,2)}')
    a.label('L_pc')
    a('s_lshr_b32 s3, s2, 3')
    a('s_lshl_b32 s3, s3, 11')
    a('s_min_u32 s3, s3, (L_codeend - L_pc - 2048)')
    a(f's_add_u32 s{sPC}, s{sPC}, s3')
    a(f's_addc_u32 s{sPC+1}, s{sPC+1}, 0')
    a('v_min_u32 v16, 15, v0')
    a('v_lshlrev_b32 v16, 7, v16')
    a(f'global_load_dword v17, v16, {sr(sPC,2)}')
    a(f'v_lshrrev_b32 v18, 6, v0')
    a(f'v_and_b32 v{vLANE}, 63, v0')
    a(f'v_readfirstlane_b32 s{sW}, v18')
    a(f'v_lshlrev_b32 v{vL16}, 4, v{vLANE}')
    a(f'v_add_u32 v{vL16b}, 0x10000, v{vL16}')
    a(f'v_add_u32 v{vL16c}, 0x20000, v{vL16}')
    a(f'v_lshlrev_b32 v{vL4}, 2, v{vLANE}')
    a(f'v_and_b32 v18, 31, v{vLANE}')
    a(f'v_lshrrev_b32 v19, 5, v{vLANE}')
    a(f'v_mul_u32_u24 v{vROW}, 896, v18')
    a(f'v_lshl_add_u32 v{vROW}, v19, 4, v{vROW}')
    a(f'v_lshlrev_b32 v{vAUG}, 2, v18')
    a(f'v_lshl_add_u32 v{vAUG}, v19, 9, v{vAUG}')
    a(f'v_mov_b32 v{vPROF}, 0')
    a(f's_mov_b32 s{sPI}, 0')
    a(f's_and_b32 s{sC}, s2, 7')
    a(f's_lshr_b32 s{sJ}, s2, 3')
    a(f's_mul_i32 s{sTB}, s{sJ}, 37')
    a(f's_lshr_b32 s{sTB}, s{sTB}, 8')
    a(f's_mul_i32 s{sFB}, s{sTB}, 7')
    a(f's_sub_u32 s{sFB}, s{sJ}, s{sFB}')
    a(f's_cmp_ge_u32 s{sJ}, 28')
    a(f's_cselect_b32 s{sTB}, s{sFB}, s{sTB}')
    a(f's_mov_b32 s{sL}, 0')
    a(f's_mov_b32 s{sTMO}, 100000')
    a(f's_lshl_b32 s{sTILE2}, s{sC}, 3')
    a(f's_lshl_b32 s{sD}, s{sTB}, 1')
    a(f's_add_u32 s{sTILE2}, s{sTILE2}, s{sD}')
    a(f's_lshr_b32 s{sD}, s{sW}, 1')
    a(f's_add_u32 s{sOWN}, s{sTILE2}, s{sD}')
    a(f's_and_b32 s{sD}, s{sW}, 1')
    a(f's_lshl_b32 s{sOFT}, s{sFB}, 1')
    a(f's_add_u32 s{sOFT}, s{sOFT}, s{sD}')
    lf = {1: 0, 2: 1, 4: 2, 8: 3}[FA]
    nh = 16 // FA
    a(f's_and_b32 s{sD}, s{sC}, {FA-1}')
    a(f's_mul_i32 s{sHC}, s{sD}, {nh}')
    a(f's_and_b32 s{sD}, s{sJ}, {nh-1}')
    a(f's_add_u32 s{sHC}, s{sHC}, s{sD}')
    a(f's_lshr_b32 s{sD}, s{sC}, {lf}')
    a(f's_lshl_b32 s{sE}, s{sD}, {lf+1}')
    a(f's_lshr_b32 s{sD}, s{sJ}, {4-lf}')
    a(f's_add_u32 s{sE}, s{sE}, s{sD}')
    a(f's_lshl_b32 s{sTILE1}, s{sE}, 2')
    a(f's_add_u32 s{sTILE1}, s{sTILE1}, s{sW}')
    a(f's_mov_b32 s{sLN2}, {LN2:#x}')
    a(f's_mov_b32 s{sLN2+1}, {LN2:#x}')
    a(f's_mov_b32 s{sEPS6}, {EPS6:#x}')
    a(f's_mov_b32 s{sEPS6+1}, {EPS6:#x}')
    a(f's_mov_b32 s{sONES}, 0x3f803f80')
    for i in range(4):
        a(f'v_mov_b32 v{216+i}, 0')
    a(f'v_and_b32 v{vRHO}, 31, v{vLANE}')
    a(f'v_lshrrev_b32 v{vHI}, 5, v{vLANE}')
    a(f'v_and_b32 v{vSIG}, 0x13, v{vRHO}')
    a(f'v_and_b32 v{vt0}, 4, v{vRHO}')
    a(f'v_lshl_or_b32 v{vSIG}, v{vt0}, 1, v{vSIG}')
    a(f'v_lshrrev_b32 v{vt0}, 1, v{vRHO}')
    a(f'v_and_or_b32 v{vSIG}, v{vt0}, 4, v{vSIG}')
    a(f'v_lshrrev_b32 v{vR8}, 3, v{vLANE}')
    a(f'v_and_b32 v{vC8}, 7, v{vLANE}')
    a(f'v_lshlrev_b32 v{vC8}, 4, v{vC8}')
    a(f'v_lshrrev_b32 v{vt0}, 4, v{vLANE}')
    a(f'v_lshlrev_b32 v{vt0}, 4, v{vt0}')
    a(f'v_xor_b32 v{vt0}, v{vt0}, v{vC8}')
    a(f'v_mul_u32_u24 v{vt1}, 896, v{vR8}')
    a(f'v_add_u32 v{vXS}, v{vt1}, v{vt0}')
    a(f'v_xor_b32 v{vt0}, 64, v{vt0}')
    a(f'v_add_u32 v{vXS+1}, v{vt1}, v{vt0}')
    a('s_waitcnt lgkmcnt(0)')
    if TLBW:
        a(f'v_lshlrev_b32 v20, 20, v{vLANE}')
        a('v_subrev_u32 v20, 0xa00000, v20')
        a('v_min_u32 v20, 0x2100000, v20')
        a('v_mov_b32 v21, s83')
        a('v_add_co_u32 v20, vcc, s82, v20')
        a('v_addc_co_u32 v21, vcc, 0, v21, vcc')
        for ln, p in enumerate((64, 66, 68, 72, 74, 76, 78, 80)):
            a(f'v_writelane_b32 v20, s{p}, {ln}')
            a(f'v_writelane_b32 v21, s{p+1}, {ln}')
        a('global_load_dword v22, v[20:21], off')
    srd(S_X, 64, 2048 * 448 * 2)
    srd(S_WQKV, 66, 448 * 1344 * 2)
    srd(S_WO, 68, 448 * 448 * 2)
    srd(S_WG, 72, 448 * 1792 * 2)
    srd(S_WU, 74, 448 * 1792 * 2)
    srd(S_WD, 76, 1792 * 448 * 2)
    srd(S_OUT, 78, 2048 * 448 * 2)
    srd(S_DBG, 80, 256)
    srd(S_WS, 82, WS_BYTES)
    a(f's_mov_b32 s{sRBG}, s{sE}')
    a(f's_and_b32 s{sREP}, s2, 3')
    a(f's_lshl_b32 s{sREP}, s{sREP}, 12')
    a(f's_lshl_b32 s{sW1K}, s{sW}, 10')
    a(f's_lshl_b32 s{sW2K}, s{sW}, 11')
    a(f's_lshl_b32 s{sW4K}, s{sW}, 12')
    a(f's_lshl_b32 s{sG}, s{sW}, 9')
    a(f's_add_u32 s{sPC}, s{sPC}, s{sG}')
    a(f's_addc_u32 s{sPC+1}, s{sPC+1}, 0')
    a(f's_lshl_b32 s{sG}, s{sW}, 13')
    a(f's_add_u32 s{sG}, s{sG}, {LSTG}')
    a(f's_getreg_b32 s{sXID}, hwreg(HW_REG_XCC_ID)')
    a(f's_and_b32 s{sXID}, s{sXID}, 15')
    a(f's_add_u32 s{sXID}, s{sXID}, 1')
    stamp('start')


def late_consts():
    a(f's_mul_i32 s{sW1SRC}, s{sHC}, {W1S}')
    a(f's_add_u32 s{sW1SRC}, s{sW1SRC}, {W1R}')
    a(f's_mul_i32 s{sW3SRC}, s{sHC}, {W3S}')
    a(f's_add_u32 s{sW3SRC}, s{sW3SRC}, {W3R}')
    a(f's_lshl_b32 s{sWOSRC}, s{sFB}, 16')
    a(f's_lshl_b32 s{sA}, s{sW}, 14')
    a(f's_add_u32 s{sWOSRC}, s{sWOSRC}, s{sA}')
    a(f's_add_u32 s{sWOSRC}, s{sWOSRC}, {WOR}')
    a(f's_mul_i32 s{sWDSRC}, s{sFB}, {WDS}')
    a(f's_mul_i32 s{sA}, s{sW}, 57344')
    a(f's_add_u32 s{sWDSRC}, s{sWDSRC}, s{sA}')
    a(f's_add_u32 s{sWDSRC}, s{sWDSRC}, {WDR}')
    a(f's_add_u32 s{S_LY}, s{S_WS}, {LYB}')
    a(f's_addc_u32 s{S_LY+1}, s{S_WS+1}, 0')
    a(f's_mov_b32 s{S_LY+2}, {2*LYB}')
    a(f's_mov_b32 s{S_LY+3}, 0x00020000')
    a(f's_mov_b32 s{S_DT}, s{S_LY}')
    a(f's_mov_b32 s{S_DT+1}, s{S_LY+1}')
    a(f's_mov_b32 s{S_DT+2}, {2*LYB}')
    a(f's_mov_b32 s{S_DT+3}, 0x00020000')


UD = 128
UC = 192
vRHO, vHI, vSIG, vR8, vC8 = 204, 205, 206, 207, 212
vt0, vt1, vt2, vt3 = 208, 209, 210, 211
vXS = 214
LSTG = 4 * K
LXS = 40 * K


PASS = {'p': 'src'}


class Done(Exception):
    pass


def run_setup(fn, *args):
    try:
        fn(*args)
    except Done:
        pass


def unit_dma(r, srdreg, vsrc, srow0, srow1):
    if PASS['p'] == 'dst':
        return
    _unit_dma(r, srdreg, vsrc, srow0, srow1)
    raise Done()


def _unit_dma(r, srdreg, vsrc, srow0, srow1):
    a(f's_add_u32 m0, s{sG}, {r*2048}')
    a('s_nop 0')
    a(f'buffer_load_dwordx4 v{vsrc}, {sr(srdreg,4)}, s{srow0} offen {UNT} lds')
    a(f's_add_u32 m0, s{sG}, {r*2048+1024}')
    a('s_nop 0')
    a(f'buffer_load_dwordx4 v{vsrc}, {sr(srdreg,4)}, s{srow1} offen {UNT} lds')


def div7(q, rem, su):
    a(f's_mul_i32 s{q}, s{su}, 9363')
    a(f's_lshr_b32 s{q}, s{q}, 16')
    a(f's_mul_i32 s{rem}, s{q}, 7')
    a(f's_sub_u32 s{rem}, s{su}, s{rem}')


def setup_w1(r, su):
    col, dst, aug = UC + 3 * r, UC + 3 * r + 1, UC + 3 * r + 2
    div7(sA, sB, su)
    a(f's_lshr_b32 s{sC}, s{sA}, 3')
    a(f's_and_b32 s{sA}, s{sA}, 7')
    a(f's_mul_i32 s{sD}, s{sC}, 896')
    a(f's_mul_i32 s{sE}, s{sA}, 112')
    a(f's_add_u32 s{sD}, s{sD}, s{sE}')
    a(f's_lshl_b32 s{sF}, s{sB}, 2')
    a(f's_add_u32 s{sF}, s{sF}, s{sW}')
    a(f's_mul_i32 s{sE}, s{sF}, {16*2688}')
    a(f's_add_u32 s{sD}, s{sD}, s{sE}')
    a(f's_add_u32 s{sE}, s{sD}, {8*2688}')
    a(f'v_mul_u32_u24 v{vt0}, 2688, v{vR8}')
    a(f'v_add_u32 v{vt0}, v{vt0}, v{vC8}')
    a(f'v_cmp_eq_u32 vcc, 112, v{vC8}')
    a(f'v_mov_b32 v{vt1}, {OOB:#x}')
    a(f'v_cndmask_b32 v{vt0}, v{vt0}, v{vt1}, vcc')
    unit_dma(r, S_WQKV, vt0, sD, sE)
    a(f'v_cmp_le_u32 vcc, 24, v{vSIG}')
    a(f'v_subrev_u32 v{vt0}, 2, v{vSIG}')
    a(f'v_cndmask_b32 v{vt0}, v{vSIG}, v{vt0}, vcc')
    a(f'v_mad_u32_u24 v{vt0}, v{vHI}, 28, v{vt0}')
    a(f'v_and_b32 v{vt1}, 0x16, v{vSIG}')
    a(f'v_cmp_eq_u32 vcc, 0x16, v{vt1}')
    a(f'v_cndmask_b32 v{vt0}, v{vt0}, 56, vcc')
    a(f'v_lshl_add_u32 v{col}, v{vt0}, 1, s{sG}')
    a(f's_sub_u32 s{sE}, s{sC}, 1')
    a(f's_cmp_eq_u32 s{sC}, 0')
    a(f's_cselect_b32 s{sE}, 2, s{sE}')
    a(f's_mul_i32 s{sD}, s{sF}, 3')
    a(f's_add_u32 s{sD}, s{sD}, s{sE}')
    a(f's_add_u32 s{sE}, s{sE}, 84')
    a(f's_mul_i32 s{sA}, s{sA}, {2*W1S}')
    a(f's_add_u32 s{sA}, s{sA}, {W1R}')
    a(f's_lshl_b32 s{sD}, s{sD}, 10')
    a(f's_add_u32 s{sD}, s{sD}, s{sA}')
    a(f's_lshl_b32 s{sE}, s{sE}, 10')
    a(f's_add_u32 s{sE}, s{sE}, s{sA}')
    a(f's_lshl_b32 s{sB}, s{sB}, 7')
    a(f's_add_u32 s{sE}, s{sE}, s{sB}')
    a(f'v_mul_u32_u24 v{vt0}, {W1S}, v{vHI}')
    a(f'v_lshl_add_u32 v{dst}, v{vRHO}, 4, v{vt0}')
    a(f'v_add_u32 v{dst}, s{sD}, v{dst}')
    a(f'v_lshl_add_u32 v{aug}, v{vRHO}, 2, v{vt0}')
    a(f'v_add_u32 v{aug}, s{sE}, v{aug}')


def setup_w3(r, su, tsrd):
    col, dst, aug = UC + 3 * r, UC + 3 * r + 1, UC + 3 * r + 2
    div7(sA, sB, su)
    a(f's_cmp_ge_u32 s{sA}, 28')
    a(f's_cselect_b32 s{tsrd}, s{S_WU}, s{S_WG}')
    a(f's_cselect_b32 s{tsrd+1}, s{S_WU+1}, s{S_WG+1}')
    a(f's_cselect_b32 s{sC}, 28, 0')
    a(f's_cselect_b32 s{sD}, 16, 0')
    a(f's_mov_b32 s{tsrd+2}, {448*1792*2}')
    a(f's_mov_b32 s{tsrd+3}, 0x00020000')
    a(f's_sub_u32 s{sA}, s{sA}, s{sC}')
    a(f's_lshl_b32 s{sE}, s{sB}, 2')
    a(f's_add_u32 s{sE}, s{sE}, s{sW}')
    a(f's_mul_i32 s{sC}, s{sE}, {16*3584}')
    a(f's_lshl_b32 s{sF}, s{sA}, 7')
    a(f's_add_u32 s{sC}, s{sC}, s{sF}')
    a(f's_add_u32 s{sF}, s{sC}, {8*3584}')
    a(f'v_mul_u32_u24 v{vt0}, 3584, v{vR8}')
    a(f'v_add_u32 v{vt0}, v{vt0}, v{vC8}')
    unit_dma(r, tsrd, vt0, sC, sF)
    a(f'v_and_b32 v{vt0}, 48, v{vLANE}')
    a(f'v_and_or_b32 v{vt0}, v{vSIG}, 15, v{vt0}')
    a(f'v_lshl_add_u32 v{col}, v{vt0}, 1, s{sG}')
    a(f'v_lshrrev_b32 v{vt0}, 4, v{vLANE}')
    a(f's_lshl_b32 s{sC}, s{sA}, 2')
    a(f'v_add_u32 v{vt0}, s{sC}, v{vt0}')
    a(f'v_mul_u32_u24 v{vt1}, 9363, v{vt0}')
    a(f'v_lshrrev_b32 v{vt1}, 16, v{vt1}')
    a(f'v_mul_u32_u24 v{vt2}, 7, v{vt1}')
    a(f'v_sub_u32 v{vt0}, v{vt0}, v{vt2}')
    a(f's_mul_i32 s{sF}, s{sE}, {3 if G3 else 2}')
    a(f'v_add_u32 v{vt2}, s{sF}, v{vt0}')
    a(f'v_add_u32 v{aug}, {84 if G3 else 56}, v{vt0}')
    a(f's_cmp_ge_u32 s{sE}, 27')
    a(f's_cselect_b32 s{sC}, 58, 0')
    a(f's_sub_u32 s{sC}, s{sE}, s{sC}')
    a(f's_add_u32 s{sC}, s{sC}, 176')
    for t, base, ag in (() if G3 else ((2, 59, None),)) + ((3, 87, 115), (4, 116, 144), (5, 147, 175), (6, None, 146)):
        a(f'v_cmp_eq_u32 vcc, {t}, v{vt0}')
        if base is not None:
            a(f's_add_u32 s{sF}, s{sE}, {base}')
            a(f'v_mov_b32 v{vt3}, s{sF}')
        else:
            a(f'v_mov_b32 v{vt3}, s{sC}')
        a(f'v_cndmask_b32 v{vt2}, v{vt2}, v{vt3}, vcc')
        if ag is not None:
            a(f'v_mov_b32 v{vt3}, {ag}')
            a(f'v_cndmask_b32 v{aug}, v{aug}, v{vt3}, vcc')
    a(f'v_mul_u32_u24 v{vt1}, 203, v{vt1}')
    a(f'v_add_lshl_u32 v{vt2}, v{vt2}, v{vt1}, 10')
    a(f'v_add_lshl_u32 v{aug}, v{aug}, v{vt1}, 10')
    a(f'v_and_b32 v{vt0}, 15, v{vLANE}')
    a(f'v_add_u32 v{vt0}, s{sD}, v{vt0}')
    a(f'v_lshl_add_u32 v{dst}, v{vt0}, 4, v{vt2}')
    a(f'v_add_u32 v{dst}, {W3R:#x}, v{dst}')
    a(f'v_lshl_add_u32 v{aug}, v{vt0}, 2, v{aug}')
    a(f's_lshl_b32 s{sB}, s{sB}, 7')
    a(f's_add_u32 s{sB}, s{sB}, {W3R}')
    a(f'v_add_u32 v{aug}, s{sB}, v{aug}')


def setup_colsT(r):
    col, dst, aug = UC + 3 * r, UC + 3 * r + 1, UC + 3 * r + 2
    a(f'v_lshl_add_u32 v{vt0}, v{vHI}, 5, v{vSIG}')
    a(f'v_lshl_add_u32 v{col}, v{vt0}, 1, s{sG}')
    a(f'v_lshlrev_b32 v{dst}, 10, v{vHI}')
    a(f'v_lshl_add_u32 v{dst}, v{vRHO}, 4, v{dst}')
    a(f'v_mov_b32 v{aug}, {OOB:#x}')


def setup_wd(r, su):
    dst = UC + 3 * r + 1
    div7(sA, sB, su)
    a(f's_lshl_b32 s{sA}, s{sA}, 2')
    a(f's_add_u32 s{sA}, s{sA}, s{sW}')
    a(f's_mul_i32 s{sC}, s{sA}, {16*896}')
    a(f's_lshl_b32 s{sD}, s{sB}, 7')
    a(f's_add_u32 s{sC}, s{sC}, s{sD}')
    a(f's_add_u32 s{sD}, s{sC}, {8*896}')
    a(f'v_mul_u32_u24 v{vt0}, 896, v{vR8}')
    a(f'v_add_u32 v{vt0}, v{vt0}, v{vC8}')
    unit_dma(r, S_WD, vt0, sC, sD)
    setup_colsT(r)
    div7(sC, sD, sA)
    a(f's_mul_i32 s{sB}, s{sB}, {WDS}')
    a(f's_lshr_b32 s{sE}, s{sC}, 2')
    a(f's_mul_i32 s{sE}, s{sE}, 57344')
    a(f's_add_u32 s{sB}, s{sB}, s{sE}')
    a(f's_lshl_b32 s{sD}, s{sD}, 2')
    a(f's_and_b32 s{sC}, s{sC}, 3')
    a(f's_add_u32 s{sD}, s{sD}, s{sC}')
    a(f's_lshl_b32 s{sD}, s{sD}, 11')
    a(f's_add_u32 s{sB}, s{sB}, s{sD}')
    a(f's_add_u32 s{sB}, s{sB}, {WDR}')
    a(f'v_add_u32 v{dst}, s{sB}, v{dst}')


def setup_wo(r, su):
    dst = UC + 3 * r + 1
    div7(sA, sB, su)
    a(f's_lshl_b32 s{sA}, s{sA}, 2')
    a(f's_add_u32 s{sA}, s{sA}, s{sW}')
    a(f's_lshr_b32 s{sC}, s{sA}, 1')
    a(f's_mul_i32 s{sC}, s{sC}, {28*896}')
    a(f's_lshl_b32 s{sD}, s{sB}, 7')
    a(f's_add_u32 s{sC}, s{sC}, s{sD}')
    a(f's_and_b32 s{sD}, s{sA}, 1')
    a(f's_cselect_b32 s{sD}, {16*896}, 0')
    a(f's_cselect_b32 s{sE}, {14*896}, 0')
    a(f's_add_u32 s{sD}, s{sD}, s{sC}')
    a(f's_add_u32 s{sE}, s{sE}, s{sC}')
    a(f's_add_u32 s{sE}, s{sE}, {8*896}')
    a(f'v_mul_u32_u24 v{vt0}, 896, v{vR8}')
    a(f'v_add_u32 v{vt0}, v{vt0}, v{vC8}')
    unit_dma(r, S_WO, vt0, sD, sE)
    setup_colsT(r)
    a(f's_lshl_b32 s{sB}, s{sB}, 16')
    a(f's_lshl_b32 s{sC}, s{sA}, 11')
    a(f's_add_u32 s{sB}, s{sB}, s{sC}')
    a(f's_add_u32 s{sB}, s{sB}, {WOR}')
    a(f'v_add_u32 v{dst}, s{sB}, v{dst}')


def setup_none(r):
    col, dst, aug = UC + 3 * r, UC + 3 * r + 1, UC + 3 * r + 2
    a(f'v_mov_b32 v{col}, 0')
    a(f'v_mov_b32 v{dst}, {OOB:#x}')
    a(f'v_mov_b32 v{aug}, {OOB:#x}')


def rounds(tag):
    a('s_cmp_ge_u32 s2, 168')
    a(f's_cbranch_scc1 L_r0b{tag}')
    with cond():
        run_setup(setup_w1, 0, 2)
    a(f's_branch L_r0e{tag}')
    a.label(f'L_r0b{tag}')
    a('s_cmp_ge_u32 s2, 224')
    a(f's_cbranch_scc1 L_r0c{tag}')
    with cond():
        a(f's_sub_u32 s{sU}, s2, 168')
        run_setup(setup_wo, 0, sU)
    a(f's_branch L_r0e{tag}')
    a.label(f'L_r0c{tag}')
    with cond():
        a(f's_sub_u32 s{sU}, s2, 224')
        run_setup(setup_wd, 0, sU)
    a.label(f'L_r0e{tag}')
    run_setup(setup_w3, 1, 2, S_T0)
    a('s_cmp_ge_u32 s2, 136')
    a(f's_cbranch_scc1 L_r2b{tag}')
    with cond():
        a(f's_add_u32 s{sU}, s2, 256')
        run_setup(setup_w3, 2, sU, S_T1)
    a(f's_branch L_r2e{tag}')
    a.label(f'L_r2b{tag}')
    with cond():
        a(f's_sub_u32 s{sU}, s2, 104')
        run_setup(setup_wd, 2, sU)
    a.label(f'L_r2e{tag}')
    a('s_cmp_ge_u32 s2, 212')
    a(f's_cbranch_scc1 L_r3b{tag}')
    if PASS['p'] == 'dst':
        setup_none(3)
    a(f's_branch L_r3e{tag}')
    a.label(f'L_r3b{tag}')
    with cond():
        a(f's_sub_u32 s{sU}, s2, 60')
        run_setup(setup_wd, 3, sU)
    a.label(f'L_r3e{tag}')


def init_phase():
    Z = 216
    vGO = 215 + 9
    a(f's_lshl_b32 s{sA}, s{sW}, 3')
    a(f's_add_u32 s{sB}, s{sA}, s2')
    a(f's_mov_b32 s{sZW}, s{sB}')
    a(f's_cmp_ge_u32 s{sZW}, 8')
    a('s_cbranch_scc1 L_z1')
    with cond():
        a(f's_lshl_b32 s{sA}, s2, 11')
        a(f'buffer_store_dwordx4 {vr(Z,4)}, v{vL16}, {sr(S_WS,4)}, s{sA} offen sc1')
        a(f'buffer_store_dwordx4 {vr(Z,4)}, v{vL16}, {sr(S_WS,4)}, s{sA} offen offset:1024 sc1')
    a.label('L_z1')
    PASS['p'] = 'src'
    rounds('s')
    um = mark()
    a(f's_mul_i32 s{sI}, s{sTILE1}, 28672')
    a(f's_mul_i32 s{sH}, s{sW}, {28*K}')
    a(f's_add_u32 s{sH}, s{sH}, {LXS}')
    xq = []
    for g in range(4):
        for c in range(7):
            it = [f's_add_u32 m0, s{sH}, {(4*c+g)*K - c*128}',
                  f'buffer_load_dwordx4 v{vXS + (g & 1)}, {sr(S_X,4)}, s{sI} offen offset:{c*128} {XNT2} lds']
            if c == 6:
                it.append(f's_add_u32 s{sI}, s{sI}, {8*896}')
            xq.append(it)
    a(f's_mul_i32 s{sA}, s{sHC}, {14*128}')
    a(f's_add_u32 s{sA}, s{sA}, s{sI}')
    a(f'v_min_u32 v{vt0}, 13, v{vLANE}')
    a(f'v_lshlrev_b32 v{vt0}, 7, v{vt0}')
    a(f'buffer_load_dword v17, v{vt0}, {sr(S_X,4)}, s{sA} offen {XNT}')
    for _ in range(X0N):
        emit(xq.pop(0))
    stamp('issued')
    a(f's_cmp_ge_u32 s{sZW}, 8')
    a('s_cbranch_scc1 L_z2')
    with cond():
        a(f's_waitcnt vmcnt({7+X0N})')
        a(f's_lshl_b32 s{sA}, s2, 5')
        emit(flag_store(S_DBG, f's{sA}', sc='sc1'))
    a.label('L_z2')
    PASS['p'] = 'dst'
    rounds('d')
    a(f's_lshl_b32 s{sA}, s{sW}, 8')
    a(f'v_add_u32 v{vt1}, s{sA}, v{vL4}')
    a(f'v_and_b32 v{vt3}, 7, v{vLANE}')
    a(f'v_lshlrev_b32 v{vt3}, 5, v{vt3}')
    a(f's_lshl_b32 s{sA}, s2, 10')
    a(f's_add_u32 s{sB}, s{sW}, 1')
    a(f's_lshl_b32 s{sB}, s{sB}, 24')
    a(f's_add_u32 s{sA}, s{sA}, s{sB}')
    a(f's_sub_u32 s{sB}, s{sA}, {2*LYB - ST1}')
    a(f's_cmp_eq_u32 s{sW}, 2')
    a(f's_cselect_b32 s{sA}, s{sB}, s{sA}')
    a(f's_cmp_ge_u32 s{sW}, 3')
    a(f's_cselect_b32 s{sA}, {OOB:#x}, s{sA}')
    a.wait(um, force=True)
    stamp('ldone')
    a(f'buffer_store_dwordx4 {vr(Z,4)}, v{vL16}, {sr(S_WS,4)}, s{sA} offen sc1')
    rtok = {}

    def gat(r, half):
        for e in range(8):
            rtok[r, half] = a(f'ds_read_u16 v{UD+16*r+8*half+e}, v{UC+3*r} offset:{r*2048+(8*half+e)*128}')
    gat(0, 0)
    for r in range(4):
        R = UD + 16 * r
        dst = UC + 3 * r + 1
        for half in range(2):
            nxt = 2 * r + half + 1
            if nxt < 8:
                gat(nxt // 2, nxt % 2)
            a.wait(rtok[r, half])
            for m in range(4):
                a(f'v_lshl_or_b32 v{R+8*half+m}, v{R+8*half+2*m+1}, 16, v{R+8*half+2*m}')
            a(f'buffer_store_dwordx4 {vr(R+8*half,4)}, v{dst}, {sr(S_WS,4)}, 0 offen offset:{512*half} sc1')
            for _ in range(XI):
                emit(xq.pop(0))
    for r in range(3):
        R = UD + 16 * r
        a(f'v_mov_b32 v{R+4}, 0')
        for m in range(4):
            a(f'v_dot2c_f32_bf16 v{R+4}, s{sONES}, v{R+m}')
            a(f'v_dot2c_f32_bf16 v{R+4}, s{sONES}, v{R+8+m}')
        a(f'ds_write_b32 v{vt1}, v{R+4} offset:{r*1024}')
    a(f'buffer_load_dword v{vGO}, v{vt3}, {sr(S_DBG,4)}, 0 offen sc1')
    stamp('packed') if 'initprof' in OPT else None
    a.wait_lg0()
    a.barrier()
    a(f's_cmp_eq_u32 s{sW}, 3')
    a('s_cbranch_scc1 L_aug_e')
    with cond():
        R = 220
        a(f'v_add_u32 v{vt0}, s{sW1K}, v{vL4}')
        a(f'ds_read2st64_b32 {vr(R,2)}, v{vt0} offset0:0 offset1:1')
        t = a(f'ds_read2st64_b32 {vr(R+2,2)}, v{vt0} offset0:2 offset1:3')
        a(f's_cmp_eq_u32 s{sW}, 1')
        a('s_cselect_b64 vcc, -1, 0')
        a(f'v_cndmask_b32 v{vt2}, v{UC+2}, v{UC+5}, vcc')
        a(f's_cmp_eq_u32 s{sW}, 2')
        a('s_cselect_b64 vcc, -1, 0')
        a(f'v_cndmask_b32 v{vt2}, v{vt2}, v{UC+8}, vcc')
        a(f'v_bfe_u32 v{vt0}, v{vt2}, 7, 3')
        a(f'v_cmp_eq_u32 vcc, 6, v{vt0}')
        a(f'v_mov_b32 v{vt1}, {OOB:#x}')
        a(f'v_cndmask_b32 v{vt0}, v{vt1}, v{vt2}, vcc')
        a(f'buffer_store_dword v{Z}, v{vt0}, {sr(S_WS,4)}, 0 offen offset:128 sc1')
        a.wait(t)
        a(f'v_add_f32 v{R}, v{R}, v{R+1}')
        a(f'v_add_f32 v{R+2}, v{R+2}, v{R+3}')
        a(f'v_add_f32 v{R}, v{R}, v{R+2}')
        a(f'v_cvt_pk_bf16_f32 v{R+1}, v{R}, v{R}')
        a(f'v_and_b32 v{R+1}, 0xffff0000, v{R+1}')
        a(f'v_sub_f32 v{R+1}, v{R}, v{R+1}')
        a(f'v_cvt_pk_bf16_f32 v{R+1}, v{R}, v{R+1}')
        a(f'buffer_store_dword v{R+1}, v{vt2}, {sr(S_WS,4)}, 0 offen sc1')
    a.label('L_aug_e')
    sm = mark()
    for _ in range(min(XA, len(xq))):
        emit(xq.pop(0))
    a.wait(sm, force=True)
    stamp('acked') if 'initprof' in OPT else None
    a.barrier()
    a(f's_cmp_lg_u32 s{sW}, 3')
    a('s_cbranch_scc1 L_ib')
    with cond():
        a(f'v_cmp_ne_u32 vcc, 1, v{vGO}')
        a('s_cmp_eq_u64 vcc, 0')
        a('s_cbranch_scc1 L_go_ok')
        with cond():
            poll(S_DBG, vt3, 0, sleep=2)
        a.label('L_go_ok')
        a(f'v_lshlrev_b32 v{vt0}, 12, v{vLANE}')
        a(f'v_mov_b32 v{vt1}, s{sXID}')
        a(f's_lshl_b32 s{sA}, s2, 4')
        a('s_mov_b64 exec, 15')
        a(f'buffer_store_dword v{vt1}, v{vt0}, {sr(S_WS,4)}, s{sA} offen sc1')
        a('s_mov_b64 exec, -1')
    a.label('L_ib')
    stamp('ibpub')
    while xq:
        emit(xq.pop(0))
    a(f's_mul_i32 s{sA}, s{sOWN}, 28672')
    a(f's_lshl_b32 s{sB}, s{sOFT}, 6')
    a(f's_add_u32 s{sA}, s{sA}, s{sB}')
    a(f'buffer_load_dwordx4 {vr(vXRES,4)}, v{vROW}, {sr(S_X,4)}, s{sA} offen')
    a(f'buffer_load_dwordx4 {vr(vXRES+4,4)}, v{vROW}, {sr(S_X,4)}, s{sA} offen offset:32')
    late_consts()
    a(f'v_lshrrev_b32 v{vt0}, 3, v{vRHO}')
    a(f'v_lshlrev_b32 v{vt0}, 10, v{vt0}')
    a(f'v_and_b32 v{vt1}, 7, v{vRHO}')
    a(f'v_lshl_add_u32 v{vt0}, v{vt1}, 7, v{vt0}')
    a(f'v_add_u32 v{vt0}, s{sH}, v{vt0}')
    a(f'v_bfe_u32 v{vt1}, v{vRHO}, 1, 3')
    a(f'v_xor_b32 v{vt1}, v{vt1}, v{vHI}')
    for q in range(4):
        a(f'v_xor_b32 v{220+q}, {2*q}, v{vt1}')
        a(f'v_lshl_add_u32 v{220+q}, v{220+q}, 4, v{vt0}')
    a(f'v_min_u32 v{vt0}, 20, v{vLANE}')
    a(f'v_mul_u32_u24 v{vt1}, 37, v{vt0}')
    a(f'v_lshrrev_b32 v{vt1}, 8, v{vt1}')
    a(f'v_mad_u32_u24 v{vt0}, v{vt1}, 49, v{vt0}')
    a(f's_lshr_b32 s{sA}, s{sHC}, 1')
    a(f's_mul_i32 s{sA}, s{sA}, 7')
    a(f'v_add_lshl_u32 v{vt2}, v{vt0}, s{sA}, 4')
    a.wait_vm_n(2)
    stamp('xland') if 'initprof' in OPT else None
    for ks in range(28):
        a(f'ds_read_b128 {vr(16+4*ks,4)}, v{220+(ks&3)} offset:{(ks>>2)*4096}')
    a(f'v_mov_b32 v240, v{vt2}')
    own_consts()
    p1_setup(True)
    dma_setup(205, sW1SRC, 0, 0)
    a.wait_lg0()
    a.barrier()
    poll(S_WS, 240, f's{sREP}', nonzero=True)
    stamp('w1rdy')


def x0_stats(items):
    S0, S1, Q0, Q1 = 216, 217, 218, 219
    for _ in range(4):
        emit(items.pop(0))
    for v in (S0, S1, Q0, Q1):
        a(f'v_mov_b32 v{v}, 0')
    for i in range(0, 112, 2):
        if items and i % 6 == 0:
            emit(items.pop(0))
        a(f'v_dot2c_f32_bf16 v{S0}, s{sONES}, v{16+i}')
        a(f'v_dot2c_f32_bf16 v{Q0}, v{16+i}, v{16+i}')
        a(f'v_dot2c_f32_bf16 v{S1}, s{sONES}, v{17+i}')
        a(f'v_dot2c_f32_bf16 v{Q1}, v{17+i}, v{17+i}')
    a(f'v_add_f32 v{S0}, v{S0}, v{S1}')
    a(f'v_add_f32 v{S1}, v{Q0}, v{Q1}')
    emit(stats_finish(P1_XAUG))


vRSTD, vC2, vISTD = 248, 249, 250
P1_XAUG = 200


def stats_finish(xaug, SB=216):
    S, Q, t0, t1 = SB, SB + 1, SB + 2, SB + 3
    o = [f'v_mov_b32 v{t0}, v{S}',
         f'v_mov_b32 v{t1}, v{Q}',
         f'v_permlane32_swap_b32 v{S}, v{t0}',
         f'v_permlane32_swap_b32 v{Q}, v{t1}',
         f'v_add_f32 v{S}, v{S}, v{t0}',
         f'v_add_f32 v{Q}, v{Q}, v{t1}',
         f'v_mul_f32 v{S}, {INV448:#x}, v{S}',
         f'v_mul_f32 v{Q}, {INV448:#x}, v{Q}',
         f'v_fma_f32 v{Q}, -v{S}, v{S}, v{Q}',
         f'v_max_f32 v{Q}, 0, v{Q}',
         f'v_add_f32 v{Q}, {EPS5:#x}, v{Q}',
         f'v_rsq_f32 v{vRSTD}, v{Q}',
         f'v_cvt_pk_bf16_f32 v{xaug}, -v{S}, -v{S}',
         f'v_mul_f32 v{vISTD}, v{Q}, v{vRSTD}',
         f'v_mul_f32 v{vC2}, {LOG2E:#x}, v{vRSTD}']
    o += [f'v_mov_b32 v{xaug+i}, v{xaug}' for i in range(1, 4)]
    return o


def stats_sum(SB=216):
    o = []
    for i in range(1, 7):
        o.append(f'v_add_f32 v{SB}, v{SB}, v{SB+2*i}')
        o.append(f'v_add_f32 v{SB+1}, v{SB+1}, v{SB+2*i+1}')
    return o


def x_prep(fl, xb, stb):
    a(f'v_and_b32 v240, 15, v{vLANE}')
    a(f'v_min_u32 v240, 13, v240')
    a(f'v_lshlrev_b32 v240, 5, v240')
    a(f's_lshl_b32 s{sC}, s{sTILE1}, 9')
    a(f's_add_u32 s{sC}, s{sC}, {fl}')
    a(f's_lshl_b32 s{sD}, s{sTILE1}, 12')
    a(f's_add_u32 s{sD}, s{sD}, {stb}')
    a(f's_mul_i32 s{sE}, s{sTILE1}, {28*K}')
    a(f's_add_u32 s{sE}, s{sE}, {xb}')


def x_load(ks):
    if ks % 4 == 0 and ks:
        a(f's_add_u32 s{sE}, s{sE}, 4096')
    return a(f'buffer_load_dwordx4 {vr(16+4*ks,4)}, v{vL16}, {sr(S_DT,4)}, s{sE} offen offset:{(ks%4)*K} sc1')


def st_load(i, SB=216):
    return a(f'buffer_load_dwordx4 {vr(SB+4*i,4)}, v{vL16}, {sr(S_DT,4)}, s{sD} offen offset:{i*K} sc1')


def st_loads(SB=216):
    t = None
    for i in range(7):
        t = a(f'buffer_load_dwordx2 {vr(SB+2*i,2)}, v241, {sr(S_DT,4)}, s{sD} offen offset:{i*256} sc1')
    return t


def read_aug(dst, addr, tmp):
    a(f'v_add_u32 v{tmp}, {addr:#x}, v{vAUG}')
    a(f'ds_read2_b32 {vr(dst,2)}, v{tmp} offset0:0 offset1:32')
    return a(f'ds_read2_b32 {vr(dst+2,2)}, v{tmp} offset0:64 offset1:96')


def read_frag(dst, addr):
    v, off = lds_addr(addr)
    return a(f'ds_read_b128 {vr(dst,4)}, v{v} offset:{off}')


def wfrag_items(regfn, ssrc, lo, hi, va, vb, stmp):
    items = []
    for i, n in enumerate(range(lo, hi)):
        for b in range(2):
            it = []
            if i % 2 == 0 and b == 0:
                it.append(f's_add_u32 s{stmp}, s{ssrc}, {n*2048}')
            it.append(f'buffer_load_dwordx4 {regfn(n,b)}, v{(va,vb)[b]}, {sr(S_WS,4)}, s{stmp} offen offset:{(i%2)*2048} {WSC}')
            items.append(it)
    return items


def slot_addr_setup(va, vb):
    a(f's_and_b32 s{sA}, s{sW1K}, 0x400')
    a(f'v_add_u32 v{va}, s{sA}, v{vL16}')
    a(f'v_xor_b32 v{vb}, 0x400, v{va}')


def cost(x):
    op = x.split()[0]
    return 2 if op.startswith(('v_exp', 'v_rcp', 'v_rsq')) else 1


def drip(q, budget):
    while q and budget >= cost(q[0]):
        x = q.pop(0)
        budget -= cost(x)
        a(x)


CAP = int(OPT.get('cap', 7))
G3 = int(OPT.get('g3', 1))
F1AT = int(OPT.get('f1at', 22))
PQSPLIT = int(OPT.get('pqsplit', 1))
WDP3 = int(OPT.get('wdp3', 36))
WDP1 = int(OPT.get('wdp1', 8))
PUBD2 = int(OPT.get('pubd2', 22))
PRET = int(OPT.get('pret', 1))
PUBD = int(OPT.get('pubd', 20))
S0T = int(OPT.get('s0t', 2))


def shadow(mem, vq, cap=None, pop=None):
    n0 = len(a.ins)
    for f in mem:
        if f is None:
            continue
        if callable(f):
            f()
        else:
            emit(f)
    budget = (CAP if cap is None else cap) - (len(a.ins) - n0)
    while vq and budget >= cost(vq[0]):
        budget -= cost(vq[0])
        if pop:
            pop()
        else:
            a(vq.pop(0))


def split_item(it):
    if it is None:
        return None, None
    return it[:-1], it[-1:]


ACK, ACV, ACQ = 128, 144, 160
P1WR = 176
P1RR2 = 216
p1D1, p1SA, p1SB = 204, 206, 207
p1RSW, p1RSR, p1OH = 208, 209, 210
LMODE = LRS + 1008


CARRY = []


def FAST():
    return MODE['sfx'] != '_s'


def p1_setup(first):
    if not first:
        x_prep(F0 + LYB, *((X1, ST1) if FAST() else (X0 + LYB, ST0 + LYB)))
    slot_addr_setup(p1SA, p1SB)
    a(f'v_and_b32 v{p1OH}, 27, v{vLANE}')
    a(f'v_cmp_eq_u32 vcc, 26, v{p1OH}')
    a(f'v_cndmask_b32 v{p1OH}, 0, 1.0, vcc')
    a(f'v_mov_b32 v{p1OH+1}, v{p1OH}')
    a(f's_add_u32 s{sA}, s{sW4K}, {LKVS}')
    a(f'v_and_b32 v{p1RSW}, 31, v{vLANE}')
    a(f'v_lshl_add_u32 v{p1RSW}, v{p1RSW}, 2, s{sA}')
    a(f'v_lshrrev_b32 v{p1RSR}, 5, v{vLANE}')
    a(f'v_lshl_add_u32 v{p1RSR}, v{p1RSR}, 4, s{sA}')
    dma_setup(p1D1, sW3SRC, 0, LALPHA)


def phase1_kv(first):
    WR, XAUG, RR, RR2, KVD = P1WR, P1_XAUG, ACQ, P1RR2, 232
    vRSW, vRSR, vOH = p1RSW, p1RSR, p1OH
    PRE = XPRE
    xt, vq, st = {}, [], {}
    if first:
        its = dma_items(205, 0, 88, 2)
        x0_stats(its)
        assert not its
        w1m = mark()
        stamp('stats')
    else:
        poll(S_LY, 240, f's{sC}')
        stamp('p1poll')
        for ks in range(4):
            xt[ks] = x_load(ks)
        a(f's_add_u32 s{S_LY}, s{S_LY}, {LYB}')
        a(f's_addc_u32 s{S_LY+1}, s{S_LY+1}, 0')
        a.barrier()
    bg = ([] if first else code_touch(205, 212)) + dma_items(p1D1, LALPHA, 56, 2)
    rt = {}
    stage = (0, 8, 16) if first else ()

    def ib_check():
        a.wait(st['ib'])
        check_or_poll(254, S_WS, vL16, f's{sH}', nonzero=True)
        a(f's_and_b32 s{sA}, s2, 7')
        a(f'v_and_b32 v252, 7, v{vLANE}')
        a(f'v_cmp_eq_u32 {sr(sC,2)}, s{sA}, v252')
        a(f'v_cmp_ne_u32 vcc, s{sXID}, v254')
        a(f's_and_b64 vcc, vcc, {sr(sC,2)}')
        a(f's_cselect_b32 s{sZW}, 1, 0')

    def rd(ks, tl):
        if ks > 28:
            return
        if ks in stage and tl == 0:
            need_ops = 22 if ks == 16 else 2 * ((3 * (ks + 8) + 7) // 8)
            a.wait(('vm', w1m[1] - 22 + need_ops))
            if ks == 16:
                ib_check()
            a.barrier()
        d = WR + 8 * (ks % 3) + 4 * tl
        addr = (3 * ks + tl) * K
        rt[ks] = read_frag(d, addr) if ks < 28 else read_aug(d, addr, 252 + tl)
    for ks in range(2):
        rd(ks, 0); rd(ks, 1)
    if not first:
        for ks in range(4, PRE):
            xt[ks] = x_load(ks)
    rr = {}

    def stl(i):
        st['s'] = st_load(i)

    def xl(ks):
        xt[ks] = x_load(ks)

    def ibl():
        a(f's_add_u32 s{sH}, s{sREP}, s{sW1K}')
        st['ib'] = a(f'buffer_load_dword v254, v{vL16}, {sr(S_WS,4)}, s{sH} offen sc1')

    def rs_write():
        a(f'ds_write2_b32 v{vRSW}, v{vRSTD}, v{vC2} offset0:0 offset1:32')

    def rs_read(j):
        a(f'ds_read_b128 {vr(RR+4*j,4)}, v{vRSR} offset:{32*j}')
        rr[0] = a(f'ds_read_b128 {vr(RR2+4*j,4)}, v{vRSR} offset:{128+32*j}')
    for ks in range(29):
        if not first and ks == 15:
            a.wait(st['s'])
            vq += stats_sum() + stats_finish(XAUG)
        a.wait(rt[ks], xt.get(ks))
        X = vr(16 + 4 * ks, 4) if ks < 28 else vr(XAUG, 4)
        c = (lambda r: '0' if ks == 0 else vr(r, 16))
        if not first and ks + PRE < 28:
            pre, main = None, (lambda k_=ks + PRE: xl(k_))
        elif first and ks == 5:
            pre, main = None, ibl
        else:
            pre, main = split_item(bg.pop(0) if bg and (ks >= 15 or not first) else None)
        a(f'{MF} {vr(ACK,16)}, {X}, {vr(WR+8*(ks%3),4)}, {c(ACK)}')
        shadow([pre, lambda: rd(ks + 2, 0), main], vq)
        a(f'{MF} {vr(ACV,16)}, {X}, {vr(WR+8*(ks%3)+4,4)}, {c(ACV)}')
        extra = None
        if not first and ks < 8 and ks % 2 == 0:
            extra = (lambda i=ks // 2: stl(i))
        if ks == 23:
            assert not vq
            extra = rs_write
        if 24 <= ks <= 27:
            extra = (lambda j=ks - 24: rs_read(j))
        shadow([lambda: rd(ks + 2, 1), extra], vq)
    stamp('p1kv')
    qt = {}

    def rq(ks):
        if ks > 28:
            return
        d = WR + 4 * (ks % 6)
        addr = (3 * ks + 2) * K
        qt[ks] = read_frag(d, addr) if ks < 28 else read_aug(d, addr, 252)
    for ks in range(4):
        rq(ks)
    KS = LRS
    a(f's_lshl_b32 s{sB}, s{sHC}, 12')
    a(f's_add_u32 s{sB}, s{sB}, s{sW1K}')
    a.wait(rr[0])
    for r in range(0, 16, 2):
        a(f'v_pk_mul_f32 {vr(ACK+r,2)}, {vr(ACK+r,2)}, {vr(RR2+r,2)}')
    def bgp():
        if bg and EPD:
            emit(bg.pop(0))
    for r in range(16):
        a(f'v_exp_f32_e64 v{RR2+r}, v{ACK+r} clamp')
        a(f'v_max_f32 v{ACK+r}, 0, v{ACK+r}')
        if r % 5 == 0:
            bgp()
    for r in range(0, 16, 2):
        a(f'v_pk_fma_f32 {vr(ACV+r,2)}, {vr(ACV+r,2)}, {vr(RR+r,2)}, {vr(vOH,2)}')
        a(f'v_pk_fma_f32 {vr(RR2+r,2)}, {vr(ACK+r,2)}, {sr(sLN2,2)}, {vr(RR2+r,2)}')
    bgp()
    for r in range(0, 16, 2):
        a(f'v_pk_add_f32 {vr(RR2+r,2)}, {vr(RR2+r,2)}, {sr(sEPS6,2)}')
        a(f'v_cvt_pk_bf16_f32 v{ACV+r//2}, v{ACV+r}, v{ACV+r+1}')
    bgp()
    for m in range(4):
        a(f'v_cvt_pk_bf16_f32 v{ACK+m}, v{RR2+2*m}, v{RR2+2*m+1}')
    a(f'{MF} {vr(KVD,16)}, {vr(ACK,4)}, {vr(ACV,4)}, 0')
    for m in range(4, 8):
        a(f'v_cvt_pk_bf16_f32 v{ACK+m}, v{RR2+2*m}, v{RR2+2*m+1}')
    a(f's_add_u32 s{sA}, s{sW4K}, {LKVS}')
    a(f'v_add_u32 v{vRSW}, s{sA}, v{vL16}')
    a(f'{MF} {vr(KVD,16)}, {vr(ACK+4,4)}, {vr(ACV+4,4)}, {vr(KVD,16)}')
    a(f's_add_u32 s{sA}, s{sW1K}, {LKVS}')
    a(f'v_add_u32 v{vRSR}, s{sA}, v{vL4}')
    if first:
        a(f's_lshl_b32 s{sA}, s{sW}, 2')
        a(f's_add_u32 s{sA}, s{sA}, {LRS}')
        a(f'v_mov_b32 v252, s{sA}')
        a(f'v_mov_b32 v253, s{sZW}')
        a('ds_write_b32 v252, v253')
        a(f'v_mov_b32 v252, {LRS}')

    def qstep(ks, mem=(), vq_=None):
        a.wait(qt[ks])
        X = vr(16 + 4 * ks, 4) if ks < 28 else vr(XAUG, 4)
        a(f'{MF} {vr(ACQ,16)}, {vr(WR+4*(ks%6),4)}, {X}, {"0" if ks == 0 else vr(ACQ,16)}')
        shadow([lambda: rq(ks + 4)] + list(mem), vq_ if vq_ is not None else [])
    qstep(0, [bgp])
    for q in range(4):
        kw = a(f'ds_write_b128 v{vRSW}, {vr(KVD+4*q,4)} offset:{q*K}')
    qstep(1, [bgp])
    a.wait(kw)
    a.barrier()
    RED = RR2
    for wp in range(4):
        a(f'ds_read2st64_b32 {vr(RED+4*wp,2)}, v{vRSR} offset0:{16*wp} offset1:{16*wp+1}')
        t = a(f'ds_read2st64_b32 {vr(RED+4*wp+2,2)}, v{vRSR} offset0:{16*wp+2} offset1:{16*wp+3}')
    if first:
        mt = a(f'ds_read_b128 {vr(KVD,4)}, v252')
    qstep(2)
    a.wait(t)
    for i in range(4):
        a(f'v_add_f32 v{RED+i}, v{RED+i}, v{RED+4+i}')
        a(f'v_add_f32 v{RED+8+i}, v{RED+8+i}, v{RED+12+i}')
    for i in range(4):
        a(f'v_add_f32 v{RED+i}, v{RED+i}, v{RED+8+i}')
    for i in range(4):
        at = a(f'buffer_atomic_add_f32 v{RED+i}, v{vL4}, {sr(S_LY,4)}, s{sB} offen offset:{i*256}')
    stamp('p1atom')
    if first:
        a.wait(mt)
        a(f'v_or_b32 v{KVD}, v{KVD}, v{KVD+1}')
        a(f'v_or3_b32 v{KVD}, v{KVD}, v{KVD+2}, v{KVD+3}')
        a(f'v_readfirstlane_b32 s{sA}, v{KVD}')
        a(f's_cmp_lg_u32 s{sA}, 0')
        a('s_cbranch_scc1 L_slow')
    return dict(qstep=qstep, at=at, qt=qt, bg=bg, state=(a.vm_issued, a.vm_done, a.lg_issued, a.lg_done), qt0=dict(qt))


def phase1_q(ctx, first):
    qstep, at = ctx['qstep'], ctx['at']
    vRSW, vRSR, RR2 = p1RSW, p1RSR, P1RR2
    wo = wfrag_items(lambda n, b: vr(16 + 8 * n + 4 * b, 4), sWOSRC, 0, 8, p1SA, p1SB, sF)
    wo = list(ctx['bg']) + wo
    if first and FAST():
        wo = [[f's_cmp_ge_u32 s{sJ}, 28', f's_cselect_b32 s{sI}, {OOB:#x}, s{sOX}', f's_add_u32 s{sI}, s{sI}, {X1}',
               f'buffer_store_dwordx4 {vr(vXRES,4)}, v{vL16}, {sr(S_DT,4)}, s{sI} offen sc1'],
              [f'buffer_store_dwordx4 {vr(vXRES+4,4)}, v{vL16}, {sr(S_DT,4)}, s{sI} offen offset:1024 sc1']] + wo
    pqoff = PQ if (FAST() or first) else PQ + LYB
    vq = [f's_lshl_b32 s{sG}, s{sHC}, 8',
          f's_lshl_b32 s{sB}, s{sRBG}, 4',
          f's_add_u32 s{sG}, s{sG}, s{sB}',
          f's_add_u32 s{sG}, s{sG}, {F1}',
          f's_cmp_lg_u32 s{sW}, 3\ns_cselect_b32 s{sG}, {OOB:#x}, s{sG}',
          f's_lshl_b32 s{sA}, s{sTILE1}, 15',
          f's_lshl_b32 s{sB}, s{sHC}, 11',
          f's_add_u32 s{sA}, s{sA}, s{sB}',
          f's_add_u32 s{sA}, s{sA}, {pqoff}',
          f's_lshl_b32 s{sU}, s{sTILE1}, 9',
          f's_lshl_b32 s{sB}, s{sHC}, 5',
          f's_add_u32 s{sU}, s{sU}, s{sB}',
          f's_add_u32 s{sU}, s{sU}, {F1Q}',
          f'v_lshlrev_b32 v{vRSW}, 12, v{vLANE}',
          f'v_mov_b32 v{vRSR}, 1',
          f'v_mov_b32 v{vC2+2}, v{vC2}',
          f'v_mov_b32 v{ACK+7}, 0']
    for ks in range(3, 29):
        qstep(ks, [wo.pop(0)] if ks % 2 == 1 else [], vq)
        if ks == F1AT:
            a.wait(at)
            a.barrier()
            a('s_mov_b64 exec, 15')
            a(f'buffer_store_dword v{vRSR}, v{vRSW}, {sr(S_LY,4)}, s{sG} offen sc1')
            a('s_mov_b64 exec, -1')
            stamp('p1pub')
    a('s_nop 4')
    stamp('p1q')
    T = RR2
    for r in range(0, 14, 2):
        a(f'v_pk_mul_f32 {vr(ACQ+r,2)}, {vr(ACQ+r,2)}, {vr(vC2+1,2)} op_sel:[0,1] op_sel_hi:[1,1]')
    for r in range(14):
        a(f'v_exp_f32_e64 v{T+r}, v{ACQ+r} clamp')
        a(f'v_max_f32 v{ACQ+r}, 0, v{ACQ+r}')
    for r in range(0, 14, 2):
        a(f'v_pk_fma_f32 {vr(T+r,2)}, {vr(ACQ+r,2)}, {sr(sLN2,2)}, {vr(T+r,2)}')
    for r in range(0, 14, 2):
        a(f'v_pk_add_f32 {vr(T+r,2)}, {vr(T+r,2)}, {sr(sEPS6,2)}')
    for m in range(7):
        a(f'v_cvt_pk_bf16_f32 v{ACK+m}, v{T+2*m}, v{T+2*m+1}')
    sc = 'sc1' if first else LS()
    a(f'buffer_store_dwordx4 {vr(ACK,4)}, v{vL16}, {sr(S_DT,4)}, s{sA} offen {sc}')
    pst = a(f'buffer_store_dwordx4 {vr(ACK+4,4)}, v{vL16}, {sr(S_DT,4)}, s{sA} offen offset:1024 {sc}')
    if not FAST() and not first:
        a(f's_mov_b32 s{S_DT}, s{S_LY}')
        a(f's_mov_b32 s{S_DT+1}, s{S_LY+1}')
    if first:
        wo += wfrag_items(lambda n_, b: ar(8 * n_ + 4 * b, 4), sWDSRC, 0, WDP1 // 2, p1SA, p1SB, sI)
    for it in wo[:4]:
        emit(it)
    a.barrier()
    a.wait(pst)
    emit(flag_store(S_LY, f's{sU}'))
    if FAST() and CARRYON:
        CARRY[:] = wo[4:]
        print('carry', len(CARRY))
    else:
        for it in wo[4:]:
            emit(it)
    p2_setup()
    stamp('p1end')


ACC0, ACC1 = 208, 224
AAC2, AAC3 = 224, 240


def accs(s):
    return [vr(ACC0, 16), vr(ACC1, 16), ar(AAC2, 16), ar(AAC3, 16)][s]


def red_setup(base, RA):
    o = []
    for s in (1, 2, 3):
        o += [f's_xor_b32 s{sA}, s{sW}, {s}',
              f's_mul_i32 s{sA}, s{sA}, 12288',
              f's_add_u32 s{sA}, s{sA}, {base + (s-1)*4096}',
              f'v_add_u32 v{RA+s}, s{sA}, v{vL16}']
    o += [f's_mul_i32 s{sA}, s{sW}, 12288',
          f's_add_u32 s{sA}, s{sA}, {base}',
          f'v_add_u32 v{RA}, s{sA}, v{vL16}']
    return o


def red_write(s, RA):
    o = []
    for q in range(4):
        d = [None, vr(ACC1 + 4 * q, 4), ar(AAC2 + 4 * q, 4), ar(AAC3 + 4 * q, 4)][s]
        o.append(f'ds_write_b128 v{RA+s}, {d} offset:{q*K}')
    return o


sOX, sOS, sOF = 97, 98, 99


def own_consts():
    a(f's_mul_i32 s{sOX}, s{sOWN}, {28*K}')
    a(f's_lshl_b32 s{sB}, s{sOFT}, 11')
    a(f's_add_u32 s{sOX}, s{sOX}, s{sB}')
    a(f's_lshl_b32 s{sOS}, s{sOWN}, 12')
    a(f's_cmp_ge_u32 s{sOFT}, 7')
    a(f's_cselect_b32 s{sA}, 7, 0')
    a(f's_cselect_b32 s{sB}, 512, 0')
    a(f's_add_u32 s{sOS}, s{sOS}, s{sB}')
    a(f's_sub_u32 s{sA}, s{sOFT}, s{sA}')
    a(f's_lshr_b32 s{sB}, s{sA}, 1')
    a(f's_lshl_b32 s{sB}, s{sB}, 10')
    a(f's_add_u32 s{sOS}, s{sOS}, s{sB}')
    a(f's_and_b32 s{sA}, s{sA}, 1')
    a(f's_lshl_b32 s{sA}, s{sA}, 3')
    a(f's_add_u32 s{sOS}, s{sOS}, s{sA}')
    a(f's_lshl_b32 s{sOF}, s{sOWN}, 9')
    a(f's_lshl_b32 s{sB}, s{sOFT}, 5')
    a(f's_add_u32 s{sOF}, s{sOF}, s{sB}')


def res_unpack(RU):
    o = []
    for m in range(8):
        o.append(f'v_lshlrev_b32 v{RU+2*m}, 16, v{vXRES+m}')
        o.append(f'v_and_b32 v{RU+2*m+1}, 0xffff0000, v{vXRES+m}')
    return o


def red_finish(final, RB, RU, RA, nm, xb, stb, flb, sc, mid, pre=()):
    for it in pre:
        emit(it)
    a.wait_lg0()
    a.barrier()
    toks = []
    for i in range(12):
        toks.append(a(f'ds_read_b128 {vr(RB+4*i,4)}, v{RA} offset:{i*K}'))
    if final is not True:
        a(f's_add_u32 s{sA}, s{sOX}, {xb}')
        a(f's_add_u32 s{sB}, s{sOS}, {stb}')
        a(f's_add_u32 s{sZW}, s{sOF}, {flb}')
    for r in range(0, 16, 2):
        a(f'v_pk_add_f32 {vr(ACC0+r,2)}, {vr(ACC0+r,2)}, {vr(RU+r,2)}')
    S, Q, t0, t1, tl = RU, RU + 1, RU + 2, RU + 3, RU + 4
    if final is not True:
        a(f'v_mov_b32 v{S}, 0')
        a(f'v_mov_b32 v{Q}, 0')
    for s in range(3):
        a.wait(toks[4 * s + 3])
        for r in range(0, 16, 2):
            a(f'v_pk_add_f32 {vr(ACC0+r,2)}, {vr(ACC0+r,2)}, {vr(RB+16*s+r,2)}')
    for m in range(8):
        a(f'v_cvt_pk_bf16_f32 v{vXRES+m}, v{ACC0+2*m}, v{ACC0+2*m+1}')
    if final is True:
        final_store()
        return
    if final == 'dyn':
        a(f's_cmp_lg_u32 s{sL}, 0')
        a('s_cbranch_scc1 ' + LB_('L_final'))
    a(f'buffer_store_dwordx4 {vr(vXRES,4)}, v{vL16}, {sr(S_DT,4)}, s{sA} offen {sc}')
    a(f'buffer_store_dwordx4 {vr(vXRES+4,4)}, v{vL16}, {sr(S_DT,4)}, s{sA} offen offset:1024 {sc}')
    for m in range(8):
        a(f'v_dot2c_f32_bf16 v{S}, s{sONES}, v{vXRES+m}')
        a(f'v_dot2c_f32_bf16 v{Q}, v{vXRES+m}, v{vXRES+m}')
    a(f'v_mov_b32 v{t0}, v{S}')
    a(f'v_mov_b32 v{t1}, v{Q}')
    a(f'v_permlane32_swap_b32 v{S}, v{t0}')
    a(f'v_permlane32_swap_b32 v{Q}, v{t1}')
    a(f'v_pk_add_f32 {vr(S,2)}, {vr(S,2)}, {vr(t0,2)}')
    a('s_mov_b32 exec_hi, 0')
    lt = a(f'buffer_store_dwordx2 {vr(S,2)}, v{vL16}, {sr(S_DT,4)}, s{sB} offen {sc}')
    a('s_mov_b64 exec, -1')
    stamp(nm + 'st')
    mid()
    a.wait(lt)
    emit(flag_store(S_LY, f's{sZW}'))


def final_store():
    a(f'v_and_b32 v18, 31, v{vLANE}')
    a(f'v_lshrrev_b32 v19, 5, v{vLANE}')
    a(f'v_mul_u32_u24 v{vROW}, 896, v18')
    a(f'v_lshl_add_u32 v{vROW}, v19, 4, v{vROW}')
    a(f's_mul_i32 s{sA}, s{sOWN}, 28672')
    a(f's_lshl_b32 s{sB}, s{sOFT}, 6')
    a(f's_add_u32 s{sA}, s{sA}, s{sB}')
    a(f'buffer_store_dwordx4 {vr(vXRES,4)}, v{vROW}, {sr(S_OUT,4)}, s{sA} offen {OSC}')
    a(f'buffer_store_dwordx4 {vr(vXRES+4,4)}, v{vROW}, {sr(S_OUT,4)}, s{sA} offen offset:32 {OSC}')


def idle_touch(base, per_wave_bytes, n, t=16):
    if not IDLE:
        return
    a(f's_sub_u32 s{sA}, s{sJ}, 28')
    a(f's_lshl_b32 s{sA}, s{sA}, 2')
    a(f's_add_u32 s{sA}, s{sA}, s{sW}')
    a(f's_mul_i32 s{sA}, s{sA}, {per_wave_bytes}')
    a(f's_add_u32 s{sA}, s{sA}, {base}')
    a(f'v_lshlrev_b32 v{t}, 7, v{vLANE}')
    for i in range(n):
        a(f'buffer_load_dword v{t+1}, v{t}, {sr(S_WS,4)}, s{sA} offen sc1')
        a(f's_add_u32 s{sA}, s{sA}, 8192')


def p2_setup():
    dma_setup(vROW, sW3SRC, 56 * K, LBETA)
    a(f'v_and_b32 v240, 3, v{vLANE}')
    a(f'v_lshlrev_b32 v240, 5, v240')
    a(f'v_bfe_u32 v241, v{vLANE}, 2, 1')
    a(f'v_lshl_add_u32 v240, v241, 9, v240')
    a(f's_lshl_b32 s{sC}, s{sTILE2}, 9')
    a(f's_lshl_b32 s{sA}, s{sW}, 7')
    a(f's_add_u32 s{sC}, s{sC}, s{sA}')
    a(f's_add_u32 s{sC}, s{sC}, {F1Q}')
    a(f's_lshl_b32 s{sE}, s{sOWN}, 15')
    a(f's_lshl_b32 s{sA}, s{sW}, 13')
    a(f's_add_u32 s{sE}, s{sE}, s{sA}')
    a(f's_add_u32 s{sE}, s{sE}, {PQ}')
    a(f's_xor_b32 s{sF}, s{sE}, 0x8000')
    a(f's_add_u32 s{sH}, s{sREP}, s{sW1K}')
    a(f's_add_u32 s{sH}, s{sH}, {F1}')
    a(f's_lshl_b32 s{sD}, s{sW}, 14')


def phase2(L):
    WO, PQR, KVR = 16, 80, 144
    ODS = (240, 160)
    KB = (144, 152, 176, 192)
    tag = f'{L}'
    beta = dma_items(vROW, LBETA, 56, 2)
    a(f's_cmp_ge_u32 s{sJ}, 28')
    with cold('s_cbranch_scc1', back=LB_('L_p2skip' + tag)):
        for it in beta:
            emit(it)
        if L == 0:
            idle_touch(WDR, 7 * WDS // 16, IDN)
        elif L == 1:
            idle_touch(W3R + 112 * K, W3S, IDN)
        p3_setup(L)
        a.wait_vm0()
    with cond():
        poll(S_LY, 240, f's{sC}')
        stamp('p2pq')
        pt = {}
        for aa, s in ((1, sF), (0, sE)):
            for hl in range(4):
                for ks in range(2):
                    pt[hl, aa] = a(f'buffer_load_dwordx4 {vr(PQR+16*hl+8*aa+4*ks,4)}, v{vL16}, {sr(S_DT,4)}, s{s} offen offset:{(hl%2)*2048+ks*K} sc1')
                if hl == 1:
                    a(f's_add_u32 s{s}, s{s}, 4096')
                if aa == 1 and hl == 1:
                    fchk = a(f'buffer_load_dword v253, v{vL16}, {sr(S_LY,4)}, s{sH} offen sc1')
                if aa == 0 and hl == PQSPLIT:
                    break
        a.wait(fchk)
        check_or_poll(253, S_LY, vL16, f's{sH}', sleep=0)
        stamp('p2poll')
        kt = {}
        lq = []

        def kvl(hl, q):
            kt[hl] = a(f'buffer_load_dwordx4 {vr(KVR+16*hl+4*q,4)}, v{vL16}, {sr(S_LY,4)}, s{sD} offen offset:{q*K} sc1')
            if q == 3:
                a(f's_add_u32 s{sD}, s{sD}, 4096')

        def pql(hl, ks):
            pt[hl, 0] = a(f'buffer_load_dwordx4 {vr(PQR+16*hl+4*ks,4)}, v{vL16}, {sr(S_DT,4)}, s{sE} offen offset:{(hl%2)*2048+ks*K} sc1')
            if hl == 1 and ks == 1:
                a(f's_add_u32 s{sE}, s{sE}, 4096')
        for hl in range(4):
            for q in range(4):
                kvl(hl, q)
        for hl in range(PQSPLIT + 1, 4):
            for ks in range(2):
                lq.append(lambda h_=hl, k_=ks: pql(h_, k_))
        wot = {}
        cw = []
        if CARRY:
            a(f's_and_b32 s{sA}, s{sW1K}, 0x400')
            a(f's_add_u32 s80, s{sWOSRC}, s{sA}')
            a(f's_xor_b32 s{sA}, s{sA}, 0x400')
            a(f's_add_u32 s81, s{sWOSRC}, s{sA}')
        ncw = 0
        for it in CARRY:
            m_ = re.match(r'buffer_load_dwordx4 ([va])\[(\d+):', it[-1])
            assert m_
            if m_.group(1) == 'v':
                k_ = (int(m_.group(2)) - 16) // 4

                def f(k_=k_):
                    a(f's_add_u32 s78, s{80 + k_ % 2}, {(k_ // 2) * 2048}')
                    wot[k_ // 4] = a(f'buffer_load_dwordx4 {vr(16+4*k_,4)}, v{vL16}, {sr(S_WS,4)}, s78 offen sc1')
                cw.append(f)
            else:
                ncw += 1
        CARRY[:] = []
        for f in cw[:CWN]:
            f()
        beta = cw[CWN:] + lq + beta
        wd2 = []
        if L == 0:
            a(f's_and_b32 s{sA}, s{sW1K}, 0x400')
            a(f's_add_u32 s76, s{sWDSRC}, s{sA}')
            a(f's_xor_b32 s{sA}, s{sA}, 0x400')
            a(f's_add_u32 s77, s{sWDSRC}, s{sA}')
            for k_ in range(WDP1 - ncw, WDP1 + WDP2):
                n_, b = k_ // 2, k_ % 2
                wd2.append([f's_add_u32 s78, s{76+b}, {n_*2048}',
                            f'buffer_load_dwordx4 {ar(8*n_+4*b,4)}, v{vL16}, {sr(S_WS,4)}, s78 offen sc1'])

        def cvt(hl):
            return [f'v_cvt_pk_bf16_f32 v{KB[hl]+m}, v{KVR+16*hl+2*m}, v{KVR+16*hl+2*m+1}' for m in range(8)]
        units = [(hl, aa) for aa in (1, 0) for hl in range(4)]

        def oM(u):
            hl, aa = units[u]
            D = vr(ODS[u % 2], 16)
            P = PQR + 16 * hl + 8 * aa
            return [f'{MF} {D}, {vr(KB[hl],4)}, {vr(P,4)}, 0',
                    f'{MF} {D}, {vr(KB[hl]+4,4)}, {vr(P+4,4)}, {D}']

        def scale(u):
            hl, aa = units[u]
            D = ODS[u % 2]
            P = PQR + 16 * hl + 8 * aa
            o = [f'v_add_f32 v{D+14}, s{sEPS6}, v{D+14}',
                 f'v_rcp_f32 v{D+14}, v{D+14}']
            for m in range(7):
                o.append(f'v_mul_f32 v{D+2*m}, v{D+2*m}, v{D+14}')
                o.append(f'v_mul_f32 v{D+2*m+1}, v{D+2*m+1}, v{D+14}')
                o.append(f'v_cvt_pk_bf16_f32 v{P+m}, v{D+2*m}, v{D+2*m+1}')
            return o

        def woM(u, bs):
            hl, aa = units[u]
            P = PQR + 16 * hl + 8 * aa
            o = []
            for b in bs:
                for ks in range(2):
                    D = accs(2 * aa + b)
                    c = '0' if (hl == 0 and ks == 0) else D
                    o.append(f'{MF} {D}, {vr(WO+16*hl+8*ks+4*b,4)}, {vr(P+4*ks,4)}, {c}')
            return o
        RU, RA = 160, 184
        a.wait(kt[0])
        emit(cvt(0))
        emit(oM(0))
        a.wait(kt[1])
        emit(cvt(1))
        m1 = oM(1)
        vs = scale(0)
        a(m1[0]); shadow([], vs)
        a(m1[1]); emit(vs)
        wr = []
        for u in range(9):
            if u < 4:
                ms = woM(u, (0, 1))
            elif u < 8:
                ms = woM(u, (1,)) + (woM(u - 2, (0,)) if u >= 6 else [])
            else:
                ms = woM(6, (0,)) + woM(7, (0,))
            vs = scale(u + 1) if u + 1 < 8 else []
            if u < 4:
                while any(getattr(x, '__name__', '') == 'f' and x.__defaults__[0] // 4 <= u for x in beta):
                    beta.pop(0)()
                a.wait(wot.get(u))
            if u < 2:
                a.wait(kt[u + 2])
                vs = cvt(u + 2) + vs
            if u == 2:
                vs = vs + red_setup(LB, RA)[:8]
            if u == 3:
                vs = vs + red_setup(LB, RA)[8:]
            if u == 4:
                wr = red_write(2, RA) + red_write(3, RA)
            if u == 7:
                vs = res_unpack(RU)
            if u == 8:
                wr = wr + red_write(1, RA)
            if u + 2 < 8:
                ms = ms[:2] + ['W'] + oM(u + 2) + ms[2:]
            k_ = 0
            for m in ms:
                if m == 'W':
                    a.wait(pt[units[u + 2]])
                    if u < 2:
                        while any(x in vs for x in cvt(u + 2)):
                            a(vs.pop(0))
                    continue
                a(m)
                mem = []
                if beta and k_ % 2 == 0:
                    mem.append(beta.pop(0))
                elif wd2 and k_ % 2 == 0:
                    mem.append(wd2.pop(0))
                if wr and (k_ % 2 == 1 or u == 8) and not (u in (4, 8) and k_ == 0):
                    mem.append(wr[:1]); wr = wr[1:]
                shadow(mem, vs)
                k_ += 1
            emit(vs)
        wd2 = beta + wd2
        stamp('p2mfma')
        emit(wr)
        sc = LS()
        red_finish(False, 80, RU, RA, 'p2', X1, ST1, F2, sc, lambda: p3_setup(L), pre=wd2)
    a.label(LB_('L_p2skip' + tag))
    stamp('p2end')


p3D1, p3D3, p3SA, p3SB = 228, 229, 240, 241
p3D2 = 243
p3FL, p3HA, p3HB, p3FV = 244, 245, 246, 247


def p3_setup(L):
    vFL, vHA, vHB = p3FL, p3HA, p3HB
    x_prep(F2, X1, ST1)
    dma_setup(p3D3, sW3SRC, 112 * K, LB)
    dma_setup(p3D1, sW3SRC, 147 * K, LALPHA)
    if L is None:
        a(f's_cmp_lg_u32 s{sL}, 0')
        a(f's_cselect_b32 s{sA}, {OOB:#x}, s{sW1SRC}')
        a(f'v_add_u32 v{p3D2}, s{sA}, v{vL16}')
    elif L == 0:
        a(f'v_add_u32 v{p3D2}, s{sW1SRC}, v{vL16}')
    a(f's_mul_i32 s{sG}, s{sTILE1}, {112*K}')
    a(f's_mul_i32 s{sA}, s{sHC}, {7*K}')
    a(f's_add_u32 s{sG}, s{sG}, s{sA}')
    a(f's_add_u32 s{sG}, s{sG}, {HB}')
    a(f's_add_u32 s{sH}, s{sG}, 4096')
    a(f's_lshl_b32 s{sU}, s{sTILE1}, 9')
    a(f's_lshl_b32 s{sA}, s{sHC}, 2')
    a(f's_add_u32 s{sU}, s{sU}, s{sA}')
    a(f's_add_u32 s{sU}, s{sU}, {F3}')


def p4_addr():
    vFL, vHA, vHB = p3FL, p3HA, p3HB
    return [f'v_and_b32 v{vFL}, 3, v{vLANE}',
            f'v_lshlrev_b32 v{vFL}, 2, v{vFL}',
            f'v_bfe_u32 v{vHA}, v{vLANE}, 2, 1',
            f'v_lshl_add_u32 v{vFL}, v{vHA}, 9, v{vFL}',
            f's_lshl_b32 s{sA}, s{sTILE2}, 9',
            f's_lshl_b32 s{sB}, s{sW}, 4',
            f's_add_u32 s{sA}, s{sA}, s{sB}',
            f's_add_u32 s85, s{sA}, {F3}',
            f'v_add_u32 v{vFL}, s85, v{vFL}',
            f's_mul_i32 s{sB}, s{sW}, {28*K}',
            f's_add_u32 s{sB}, s{sB}, {HB}',
            f's_mul_i32 s{sA}, s{sOWN}, {112*K}',
            f's_add_u32 s{sA}, s{sA}, s{sB}',
            f'v_add_u32 v{vHA}, s{sA}, v{vL16}',
            f's_xor_b32 s{sA}, s{sOWN}, 1',
            f's_mul_i32 s{sA}, s{sA}, {112*K}',
            f's_add_u32 s{sA}, s{sA}, s{sB}',
            f'v_add_u32 v{vHB}, s{sA}, v{vL16}']


def phase34(L):
    ACC = 128
    WR, NW = 192, 8
    SB = 176
    XAUG = 224
    vD1, vD3, vSA, vSB, vD2 = p3D1, p3D3, p3SA, p3SB, p3D2
    vFL, vHA, vHB, vFV = p3FL, p3HA, p3HB, p3FV
    vFV2 = 242
    PRE = XPRE
    HR, NH = 16, 28
    tag = f'{L}'
    LOOK = 6
    NG = 3 if G3 else 2
    steps = [(t, ks) for ks in range(29) for t in range(NG)]
    for t in range(NG, 7):
        steps += [(t, ks) for ks in range(29)]

    def addr(t, ks):
        if G3 and t < 3:
            p = 3 * ks + t
            return LALPHA + p * K if p < 56 else LBETA + (p - 56) * K
        if ks == 28 and t < 3:
            return LBETA + t * K
        if t < 2:
            return LALPHA + (2 * ks + t) * K
        if t == 2:
            return LBETA + (3 + ks) * K
        if t == 3:
            return LBETA + (31 + ks) * K
        if t == 4:
            return LB + (4 + ks) * K
        if t == 5:
            return LALPHA + ks * K
        return LALPHA + (29 + ks) * K if ks < 27 else LB + (33 + ks - 27) * K
    n = len(steps)
    accof = {0: 0, 1: 1, 2: 2, 3: 3, 4: 0, 5: 1, 6: 2}
    rt, xt, hst, ht, chk = {}, {}, {}, {}, {}

    def hsc(t):
        return LS() if (L == 1 and t >= HPL) else 'sc1'

    def epi(t, D=None, Sx=None):
        Sx = ACC + 16 * accof[t] if Sx is None else Sx
        D = Sx if D is None else D
        o = []
        for r in range(8):
            o.append(f'v_mul_f32 v{D+r}, v{Sx+r}, v{vC2}')
        for r in range(8):
            o.append(f'v_exp_f32_e64 v{D+r}, -v{D+r}')
            if r >= 2:
                o.append(f'v_fma_f32 v{D+r-2}, v{D+r-2}, v{vISTD}, v{vISTD}')
        for r in (6, 7):
            o.append(f'v_fma_f32 v{D+r}, v{D+r}, v{vISTD}, v{vISTD}')
        for r in range(8):
            o.append(f'v_rcp_f32 v{D+r}, v{D+r}')
            if r >= 2:
                o.append(f'v_mul_f32 v{D+r-2}, v{D+r-2}, v{Sx+8+r-2}')
        for r in (6, 7):
            o.append(f'v_mul_f32 v{D+r}, v{D+r}, v{Sx+8+r}')
        for m in range(4):
            o.append(f'v_cvt_pk_bf16_f32 v{D+8+m}, v{D+2*m}, v{D+2*m+1}')
        s = sG if t < 4 else sH
        o.append(f'buffer_store_dwordx4 {vr(D+8,4)}, v{vL16}, {sr(S_DT,4)}, s{s} offen offset:{(t%4)*K} {hsc(t)} ; H{t}')
        return o

    def issue_rd(i):
        if i >= n:
            return
        t, ks = steps[i]
        d = WR + 4 * (i % NW)
        rt[i] = read_frag(d, addr(t, ks)) if ks < 28 else read_aug(d, addr(t, ks), 251 + (i % 3))

    def flag_ld(stg):
        if stg == 0 or not FAST():
            chk[stg] = a(f'buffer_load_dword v{vFV}, v{vFL}, {sr(S_LY,4)}, 0 offen offset:{64*stg} sc1')
        else:
            a(f's_buffer_load_dwordx4 s[76:79], {sr(S_LY,4)}, s85 offset:{64*stg}')
            a(f's_buffer_load_dwordx4 s[80:83], {sr(S_LY,4)}, s85 offset:{64*stg+512}')

    def flag_chk(stg):
        if FAST():
            a('s_waitcnt lgkmcnt(0)')
            a('s_and_b64 s[76:77], s[76:77], s[78:79]')
            a('s_and_b64 s[80:81], s[80:81], s[82:83]')
            a('s_and_b64 s[76:77], s[76:77], s[80:81]')
            a('s_and_b32 s76, s76, s77')
        else:
            a.wait(chk[stg])
            a(f'v_cmp_ne_u32 vcc, 1, v{vFV}')
            a('s_cmp_eq_u64 vcc, 0')
        assert 6 in hst
        with cold('s_cbranch_scc0'):
            a.wait_vm0()
            emit(flag_store(S_LY, f's{sU}', imm=128))
            emit(flag_store(S_LY, f's{sU}', imm=192))
            poll(S_LY, vFL, 0, imm=64 * stg)

    CHK = {24: 1, 40: 2, 48: 3}

    def hld(idx, chkflags=True):
        if idx >= 56:
            return
        if chkflags and idx + 4 in CHK:
            flag_ld(CHK[idx + 4])
        if chkflags and idx in CHK:
            flag_chk(CHK[idx])
        n_, aa = idx // 2, idx % 2
        t, cc = n_ // 4, n_ % 4
        if aa == 0:
            a(f's_mov_b32 s{sE}, {(cc*7+t)*K}')
        ht[idx] = a(f'buffer_load_dwordx4 {vr(HR+4*(idx%NH),4)}, v{(vHA,vHB)[aa]}, {sr(S_DT,4)}, s{sE} offen sc1')

    a.wait_lg0()
    if BEARLY:
        a.barrier()
        for i in range(LOOK):
            issue_rd(i)
    poll(S_LY, 240, f's{sC}')
    stamp('p3poll')
    for ks in range(4):
        xt[ks] = x_load(ks)
    if not BEARLY:
        a.barrier()
        for i in range(LOOK):
            issue_rd(i)
    for ks in range(4, PRE):
        xt[ks] = x_load(ks)
    fill, owner = [], []
    done_at = {}
    wd = [] if L == 1 else wfrag_items(lambda n_, b: ar(8 * n_ + 4 * b, 4), sWDSRC, (WDP1 + (WDP2 if L == 0 else 0)) // 2, 28, vSA, vSB, sF)
    ft = [[f'v_and_b32 v233, 0x80, v{vL4}', f'buffer_load_dword v233, v233, {sr(S_LY,4)}, s{sU} offen sc1']] if FT else []
    if HT and FAST() and (L == 1 or HT > 1):
        ft += [[f'v_min_u32 v234, 55, v{vLANE}', f'v_lshlrev_b32 v234, 7, v234', f'buffer_load_dword v234, v234, {sr(S_DT,4)}, s{sG} offen sc1']]
    bg = dma_items(vD3, LB, 36, 1) + ['M3'] + ft + wd[:WDP3]
    wd4 = wd[WDP3:]
    marks = {}
    cur = [0]

    def pop():
        x = fill.pop(0); o = owner.pop(0)
        t = a(x)
        if '; H' in x:
            hst[o] = (t, cur[0])

    def pub(stg, last_tile):
        a.wait(hst[last_tile][0])
        emit(flag_store(S_LY, f's{sU}', imm=64 * stg))

    def xl(ks):
        xt[ks] = x_load(ks)

    def next_bg():
        while bg and isinstance(bg[0], str):
            marks[bg.pop(0)] = mark()
        return bg.pop(0) if bg else None
    pubs = [(0, 2), (1, 4)]
    for i, (t, ks) in enumerate(steps):
        cur[0] = i
        if i == (45 if G3 else 34):
            a.wait(chk['st'])
            s_ = [f's_and_b32 s{sA}, s{sW1K}, 0x400', f'v_add_u32 v{vSA}, s{sA}, v{vL16}', f'v_xor_b32 v{vSB}, 0x400, v{vSA}'] + \
                stats_sum(SB) + stats_finish(XAUG, SB) + p4_addr()
            fill += s_; owner += [-1] * len(s_)
        stamp(f'i{i}', fine=True) if i in (1, 30, 57, 87, 116, 145, 174) else None
        if i % 2 == 0:
            a.wait(rt[min(i + 1, n - 1)], xt.get(steps[min(i + 1, n - 1)][1]), xt.get(ks))
        if i == 56:
            a.barrier()
            k3 = bg.index('M3') + 1 if 'M3' in bg else 0
            bg = bg[:k3] + dma_items(vD1, LALPHA, 56, 2) + ['M4'] + code_touch(232, 233) + bg[k3:]
        if i + LOOK == 112:
            a.wait(marks['M3'])
            a.barrier()
        if i + LOOK == 145:
            a.wait(marks['M4'])
            a.barrier()
            bg = code_touch(232, 233) + bg
        D = vr(ACC + 16 * accof[t], 16)
        if ks == 0 and t >= 4:
            assert (t - 4) not in owner
        if ks == 28:
            assert -1 not in owner
        X = vr(16 + 4 * ks, 4) if ks < 28 else vr(XAUG, 4)
        a(f'{MF} {D}, {vr(WR+4*(i%NW),4)}, {X}, {"0" if ks == 0 else D}')
        if ks == 28:
            done_at[t] = i
        for tt, di in list(done_at.items()):
            if i >= di + 2:
                e = epi(tt)
                fill += e; owner += [tt] * len(e)
                del done_at[tt]
        pre = main = None
        if t == 0 and ks + PRE < 28:
            main = (lambda k_=ks + PRE: xl(k_))
        elif t == NG - 1 and ks < 8 and ks % 2 == 0:
            main = (lambda k_=ks // 2: chk.__setitem__('st', st_load(k_, SB)))
        elif G3 and t == 2 and ks + PRE < 28 and ks % 2 == 0 and 'M3' not in marks:
            pre, main = split_item(next_bg())
        elif t == 6:
            if ks % 2 == 1:
                main = (lambda k_=ks // 2: hld(k_))
        elif i == 173:
            main = lambda: flag_ld(0)
        elif i % 2 == 0 and i >= NG * (28 - PRE):
            pre, main = split_item(next_bg())
        extra = None
        if fill and '; H' in fill[0]:
            extra = pop
        elif pubs and pubs[0][1] in hst and i >= hst[pubs[0][1]][1] + PUBD and i % 2 == 1:
            extra = (lambda p=pubs.pop(0): pub(*p))
        n0 = len(a.ins)
        for f in (pre, lambda: issue_rd(i + LOOK), main, extra):
            if f is None:
                continue
            f() if callable(f) else emit(f)
        budget = CAP - (len(a.ins) - n0) - (i % 2)
        while fill and '; H' not in fill[0] and budget >= cost(fill[0]):
            budget -= cost(fill[0])
            pop()
    assert not pubs and next_bg() is None, len(bg)
    print('P3: h stores at steps', {t: v[1] for t, v in hst.items()}, 'left', len(fill))
    assert not fill and 5 in hst
    stamp('p3mfma')

    RU, RA = 192, 128
    w1 = [] if L == 1 else dma_items(vD2, 0, 88, 2)
    nxt = (lambda: p1_setup(False)) if L != 1 else (lambda: None)
    a(f's_cmp_ge_u32 s{sJ}, 28')
    with cold('s_cbranch_scc1', back=LB_('L_p4skip' + tag)):
        emit(epi(6))
        pub(2, 5)
        a.barrier()
        a.wait_vm0()
        emit(flag_store(S_LY, f's{sU}', imm=192))
        if L == 0:
            idle_touch(W1R, W1S, 11)
        if L == 1 and WB:
            a('buffer_wbl2 sc1')
        for it in w1:
            emit(it)
        nxt()
    with cond():
        a.wait(chk[0])
        a(f'v_cmp_ne_u32 vcc, 1, v{vFV}')
        a('s_cmp_eq_u64 vcc, 0')
        saved = dict(ht)
        with cold('s_cbranch_scc0'):
            emit(epi(6, D=ACC + 48))
            a.wait_vm0()
            emit(flag_store(S_LY, f's{sU}', imm=128))
            emit(flag_store(S_LY, f's{sU}', imm=192))
            poll(S_LY, vFL, 0, imm=0)
            for idx in range(14):
                hld(idx, False)
            a.wait_vm0()
        ht.update(saved)
        fill = epi(6)
        owner = [6] * len(fill)
        later = red_setup(LALPHA, RA) + res_unpack(RU)
        TAIL = 8
        nld = [14]
        todo = ['pub2', 'pub3']
        wt = {}

        def mf(n_, s):
            aa, b = s >> 1, s & 1
            D = accs(s)
            a(f'{MF} {D}, {ar(8*n_+4*b,4)}, {vr(HR+4*((2*n_+aa)%NH),4)}, {"0" if n_ == 0 else D}')

        def sh(step, load):
            cur[0] = step
            n0 = len(a.ins)
            if load:
                if nld[0] < 56:
                    hld(nld[0]); nld[0] += 1
                elif w1:
                    emit(w1.pop(0))
            elif todo and todo[0] == 'pub2' and step >= 13:
                pub(2, 5); todo.pop(0)
            elif todo and todo[0] == 'pub3' and 6 in hst and step >= hst[6][1] + PUBD2:
                pub(3, 6); todo.pop(0)
                fill.extend(later); owner.extend([-2] * len(later))
            elif wd4:
                wt[0] = emit(wd4.pop(0))
            if step >= 1:
                if fill and '; H' in fill[0]:
                    pop()
                budget = CAP - (len(a.ins) - n0)
                while fill and '; H' not in fill[0] and budget >= cost(fill[0]):
                    budget -= cost(fill[0])
                    pop()
        for n_ in range(28 - TAIL):
            if n_ == P4B:
                a.barrier()
            stamp(f'n{n_}') if ('p4prof' in OPT and n_ in (2, 4, 8, 13, 15, 17)) else None
            a.wait(ht[2 * n_])
            mf(n_, 0); sh(4 * n_, True)
            mf(n_, 1); sh(4 * n_ + 1, False)
            a.wait(ht[2 * n_ + 1])
            mf(n_, 2); sh(4 * n_ + 2, True)
            mf(n_, 3); sh(4 * n_ + 3, 10 <= n_ < 16)
        assert nld[0] == 56 and not fill and not todo and not wd4
        stamp('n20') if 'p4prof' in OPT else None
        a.wait(wt.get(0))
        pend = []
        for s in (3, 2, 1, 0):
            for k_, n_ in enumerate(range(28 - TAIL, 28)):
                a.wait(ht[2 * n_ + 1])
                mf(n_, s)
                if k_ % 2 == 1 and pend:
                    emit(pend[:1]); pend = pend[1:]
                elif w1 and k_ % 2 == 0 and len(w1) > W1KEEP:
                    emit(w1.pop(0))
            if s > 0:
                pend = red_write(s, RA)
        stamp('p4mfma')

        def mid():
            for it in w1:
                emit(it)
            nxt()
        final = {0: False, 1: True, None: 'dyn'}[L]
        xb, stb = (X1, ST1) if FAST() else (X0 + LYB, ST0 + LYB)
        pre4 = w1[:len(w1) // 4 * 2]; w1 = w1[len(pre4):]
        red_finish(final, 16, RU, RA, 'p4', xb, stb, F0 + LYB, LS(), mid, pre=pre4)
    a.label(LB_('L_p4skip' + tag))
    if L != 1:
        stamp('p4end')


def restore(ctx):
    a.vm_issued, a.vm_done, a.lg_issued, a.lg_done = ctx['state']
    ctx['qt'].clear(); ctx['qt'].update(ctx['qt0'])


def build():
    prologue()
    init_phase()
    MODE.update(sc='', sfx='')
    ctx = phase1_kv(True)
    phase1_q(ctx, True)
    phase2(0)
    phase34(0)
    c2 = phase1_kv(False)
    phase1_q(c2, False)
    phase2(1)
    phase34(1)
    a.label('L_done')
    if PROFILE:
        stamp('end')
        a(f's_lshl_b32 s{sA}, s2, 2')
        a(f's_add_u32 s{sA}, s{sA}, s{sW}')
        a(f's_lshl_b32 s{sA}, s{sA}, 8')
        a(f's_add_u32 s{sA}, s{sA}, {PROF}')
        a(f'buffer_store_dword v{vPROF}, v{vL4}, {sr(S_WS,4)}, s{sA} offen')
        if 'probe' in OPT:
            k0, k1 = [int(x) for x in OPT['probe'].split(',')]
            ne = len(STAMPS) - 1
            a(f'v_readlane_b32 s{sA}, v{vPROF}, {k0}')
            a(f'v_readlane_b32 s{sB}, v{vPROF}, {k1}')
            a(f'v_readlane_b32 s{sC}, v{vPROF}, {ne}')
            a('s_cmp_ge_u32 s2, 224')
            a('s_cbranch_scc1 L_end')
            a(f's_sub_u32 s{sA}, s{sB}, s{sA}')
            a(f's_min_u32 s{sA}, s{sA}, 5000')
            a(f's_lshl_b32 s{sA}, s{sA}, 3')
            a(f's_cmp_lg_u32 s2, 77')
            a('s_cbranch_scc1 L_end')
            a.label('L_spin')
            a('s_sleep 1')
            a(f's_memrealtime {sr(sP0,2)}')
            a('s_waitcnt lgkmcnt(0)')
            a(f's_sub_u32 s{sD}, s{sP0}, s{sC}')
            a(f's_cmp_lt_u32 s{sD}, s{sA}')
            a('s_cbranch_scc1 L_spin')
        if 'dbgout' in OPT:
            a(f's_lshl_b32 s{sA}, s2, 2')
            a(f's_add_u32 s{sA}, s{sA}, s{sW}')
            a(f's_cmp_lg_u32 s{sA}, {77*4+1}')
            a('s_cbranch_scc1 L_end')
            a(f'v_readfirstlane_b32 s{sA}, v{vPROF}')
            a(f'v_subrev_u32 v{vPROF}, s{sA}, v{vPROF}')
            a(f'v_lshlrev_b32 v20, 1, v{vLANE}')
            a(f'v_subrev_u32 v20, {2*int(OPT["dbgout"])}, v20')
            a(f'buffer_store_short v{vPROF}, v20, {sr(S_DBG,4)}, 0 offen sc1')
    a.label('L_end')
    a('s_endpgm')
    a.flush_cold()
    a.label('L_codeend')
    keep = list(STAMPS)
    a.label('L_slow')
    MODE.update(sc='sc1', sfx='_s')
    restore(ctx)
    a('s_nop 7')
    phase1_q(ctx, True)
    a.label('L_layer_s')
    a('s_nop 7')
    phase2(None)
    phase34(None)
    a(f's_cmp_lg_u32 s{sL}, 0')
    a('s_cbranch_scc1 L_done')
    a(f's_mov_b32 s{sL}, 1')
    c2 = phase1_kv(False)
    phase1_q(c2, False)
    a('s_branch L_layer_s')
    a.label('L_final_s')
    final_store()
    a('s_branch L_done')
    a.flush_cold()
    STAMPS[:] = keep


build()
hdr = open('cdna_kernels/' + NAME + '.s.ref').read().split('; Override launch')[0]
out = hdr + f"""; @launch grid=(256,1,1) block=(256,1,1) lds={LDS_BYTES}
.amdgcn_target "amdgcn-amd-amdhsa--gfx950"
.text
.globl {NAME}_kernel
.p2align 8
.type {NAME}_kernel,@function
{NAME}_kernel:
{a.text()}
.section .rodata,"a"
.p2align 6
.amdhsa_kernel {NAME}_kernel
  .amdhsa_next_free_vgpr 512
  .amdhsa_next_free_sgpr 102
  .amdhsa_accum_offset 256
  .amdhsa_group_segment_fixed_size 0
  .amdhsa_kernarg_size 80
  .amdhsa_user_sgpr_count 2
  .amdhsa_user_sgpr_kernarg_segment_ptr 1
  .amdhsa_system_sgpr_workgroup_id_x 1
  .amdhsa_float_denorm_mode_32 3
.end_amdhsa_kernel
"""
outfn = [x for x in sys.argv[1:] if not x.startswith('--')][0]
open(outfn, 'w').write(out)
open(outfn + '.names', 'w').write(','.join(STAMPS))
print('instructions', len(a.ins), 'nops added', a.nops_added)
```

```python
import sys
import contextlib
import re
from asmlib import Asm, vr, ar, sr

NAME = "interleave_layers__linear_attn_block__glu_gated_glu__prompt"
OPT = {}
for x in sys.argv[1:]:
    if x.startswith('--'):
        k, _, v = x[2:].partition('=')
        OPT[k] = v if v else True
PROFILE = 'prof' in OPT
FINE = 'fine' in OPT
CLK = 'clk' in OPT
STOP = OPT.get('stop')
FA = 1
SLEEP = int(OPT.get('sleep', 1))
TOUCH = int(OPT.get('touch', 0))
BUD = int(OPT.get('bud', 3))
XPRE = int(OPT.get('xpre', 8))
HPRE = int(OPT.get('hpre', 16))
HSC = int(OPT.get('hsc', 0))
XSC = int(OPT.get('xsc', 0))
TLBW = int(OPT.get('tlbw', 0))
XI = int(OPT.get('xi', 0))
XA = int(OPT.get('xa', 16))
CT = int(OPT.get('ct', 1))
FT = int(OPT.get('ft', 0))
HT = int(OPT.get('ht', 0))
X0N = int(OPT.get('x0n', 0))
IDLE = int(OPT.get('idle', 0))
OSC = OPT.get('osc', '')
PQSC = int(OPT.get('pqsc', 0))
WB = int(OPT.get('wb', 0))
IDN = int(OPT.get('idn', 11))
HPL = int(OPT.get('hpl', 9))
G3 = int(OPT.get('g3', 1))
P4B = int(OPT.get('p4b', 1))
BEARLY = int(OPT.get('bearly', 1))
WDP2 = int(OPT.get('wdp2', 12))
W1KEEP = int(OPT.get('w1keep', 0))
CARRYON = int(OPT.get('carry', 0))
CWN = int(OPT.get('cwn', 4))
EPD = int(OPT.get('epd', 1))
UNT = 'nt' if int(OPT.get('unt', 0)) else ''
XNT = 'nt' if int(OPT.get('xnt', 0)) else ''
XNT2 = 'nt' if int(OPT.get('xnt', 0)) > 1 else ''
B1E = int(OPT.get('b1e', 0))
LBG = int(OPT.get('lbg', 1))
WSC = OPT.get('wsc', 'sc1').replace('+', ' ')
STAMPS = []

IB = 0x0
W1R = 0x100000; W1S = 87 * 1024
WOR = 0x280000
W3R = 0x300000; W3S = 203 * 1024
WDR = 0x680000; WDS = 224 * 1024
LYB = 0x1000000
KV = 0x0
F1 = 0x10000
F1Q = 0x18000
F3 = 0x30000
F2 = 0x20000
F0 = 0x28000
ST1 = 0x40000
ST0 = 0x80000
PQ = 0x100000
X1 = 0x300000
X0 = 0x500000
HB = 0x700000
PROF = 0x3000000
WS_BYTES = 256 << 20
OOB = 0x40000000

K = 1024
LBETA, LB, LALPHA = 0, 56 * K, 104 * K
LRS = 87 * K
LKVS = 88 * K
LDS_BYTES = 160 * K

S_WS, S_X, S_WQKV, S_WO, S_WG, S_WU, S_WD, S_OUT, S_DBG = 4, 8, 12, 16, 20, 24, 28, 32, 36
S_T0, S_T1 = 40, 44
S_LY = 40
S_DT = 44
sW, sJ, sHC, sTB, sFB, sL, sTMO, sPI = 48, 49, 50, 51, 52, 53, 54, 55
sTILE1, sTILE2, sOWN, sOFT = 56, 57, 58, 59
sLN2, sEPS6 = 60, 62
sONES = 84
sW1K, sW2K, sW4K = 64, 65, 66
sW1SRC, sW3SRC, sWOSRC, sWDSRC = 67, 68, 69, 70
sRBG, sREP = 71, 72
sG, sH, sI = 73, 74, 75
sA, sB, sC, sD, sE, sF = 86, 87, 88, 89, 90, 91
sP0 = 92
sU = 94
sXID = 95
sZW = 96
sPC = 100

vLANE, vL16, vL16b, vL16c, vROW, vAUG, vL4, vPROF = 0, 1, 2, 3, 4, 5, 6, 7
vXRES = 8
LOG2E = 0x3FB8AA3B
LN2 = 0x3F317218
EPS6 = 0x358637BD
EPS5 = 0x3727C5AC
INV448 = 0x3B124925
MF = 'v_mfma_f32_32x32x16_bf16'

a = Asm()
MODE = {'sc': 'sc1', 'sfx': ''}


def LS():
    return MODE['sc']


def LL():
    return OPT.get('ll', 'sc1').replace('none', '') if MODE['sc'] == '' else 'sc1'


def ALIAS():
    return MODE['sfx'] == '' and 'noalias' not in OPT


def XS():
    return 'sc1' if XSC else LS()


def HS():
    return 'sc1' if HSC else LS()


def LB_(n):
    return n + MODE['sfx']


@contextlib.contextmanager
def cond():
    st = (a.vm_issued, a.vm_done, a.lg_issued, a.lg_done)
    yield
    a.vm_issued, a.vm_done, a.lg_issued, a.lg_done = st


@contextlib.contextmanager
def cold(branch, back=None):
    C = a.uid('Lc'); R = back or a.uid('Lr')
    a(f'{branch} {C}')
    st = (a.vm_issued, a.vm_done, a.lg_issued, a.lg_done)
    a.begin_cold()
    a.label(C)
    a('s_nop 7')
    a('s_nop 3')
    yield
    a('s_nop 4')
    a(f's_branch {R}')
    a.end_cold()
    a.vm_issued, a.vm_done, a.lg_issued, a.lg_done = st
    if back is None:
        a.label(R)


def mark():
    return ('vm', a.vm_issued - 1)


def lds_addr(addr):
    if addr < 65536:
        return vL16, addr
    if addr < 131072:
        return vL16b, addr - 65536
    return vL16c, addr - 131072


def stamp(name, fine=False):
    if not PROFILE or (fine and not FINE):
        return
    STAMPS.append(name)
    a('s_waitcnt lgkmcnt(0)')
    a(f"{'s_memtime' if CLK else 's_memrealtime'} {sr(sP0,2)}")
    a.wait_lg0()
    a(f'v_cmp_eq_u32 vcc, s{sPI}, v{vLANE}')
    a(f'v_mov_b32 v255, s{sP0}')
    a(f'v_cndmask_b32 v{vPROF}, v{vPROF}, v255, vcc')
    a(f's_add_u32 s{sPI}, s{sPI}, 1')


def srd(base, lo, nbytes):
    a(f's_mov_b32 s{base}, s{lo}')
    a(f's_and_b32 s{base+1}, s{lo+1}, 0xffff')
    a(f's_mov_b32 s{base+2}, {nbytes}')
    a(f's_mov_b32 s{base+3}, 0x00020000')


def poll(srdreg, vaddr, soff, imm=0, t=254, sleep=0, nonzero=False):
    L = a.uid('Lpoll'); D = a.uid('Lpd')
    a.label(L)
    if sleep:
        a(f's_sleep {sleep}')
    a(f'buffer_load_dword v{t}, v{vaddr}, {sr(srdreg,4)}, {soff} offen offset:{imm} sc1')
    a(f's_sub_u32 s{sTMO}, s{sTMO}, 1')
    a(f's_max_i32 s{sTMO}, s{sTMO}, 0')
    a(f's_cselect_b64 {sr(sP0,2)}, exec, 0')
    a.wait_vm0()
    a(f'v_cmp_eq_u32 vcc, 0, v{t}' if nonzero else f'v_cmp_ne_u32 vcc, 1, v{t}')
    a(f's_and_b64 exec, {sr(sP0,2)}, vcc')
    a(f's_cbranch_scc1 {L}')
    a('s_mov_b64 exec, -1')


def check_or_poll(v, srdreg, vaddr, soff, imm=0, nonzero=False, sleep=1, t=254):
    a(f'v_cmp_eq_u32 vcc, 0, v{v}' if nonzero else f'v_cmp_ne_u32 vcc, 1, v{v}')
    a('s_cmp_eq_u64 vcc, 0')
    with cold('s_cbranch_scc0'):
        poll(srdreg, vaddr, soff, imm=imm, nonzero=nonzero, sleep=sleep, t=t)


def code_touch(t, d):
    if not CT:
        return []
    return [[f'v_and_b32 v{t}, 3, v{vLANE}',
             f'v_lshlrev_b32 v{t}, 7, v{t}',
             f'global_load_dword v{d}, v{t}, {sr(sPC,2)}']]


def flag_store(srdreg, soff, imm=0, t=254, sc=None):
    sc = LS() if sc is None else sc
    return [f'v_mov_b32 v{t}, 1',
            's_mov_b64 exec, 1',
            f'buffer_store_dword v{t}, off, {sr(srdreg,4)}, {soff} offset:{imm} {sc}',
            's_mov_b64 exec, -1']


def emit(lst):
    t = None
    for x in lst:
        r = a(x)
        t = r if r is not None else t
    return t


def dma_items(vD, lds_base, nfrag, c):
    assert nfrag % (4 * c) == 0
    sWc = {1: sW1K, 2: sW2K, 4: sW4K}[c]
    items = []
    for r in range(nfrag // (4 * c)):
        for i in range(c):
            it = []
            if i == 0:
                it.append(f's_add_u32 m0, s{sWc}, {lds_base + r*4*c*K}')
            it.append(f'buffer_load_dwordx4 v{vD}, {sr(S_WS,4)}, m0 offen offset:{i*K} {WSC} lds')
            items.append(it)
    return items


def dma_setup(vD, ssrc, src_const, lds_base):
    a(f's_add_u32 s{sA}, s{ssrc}, {src_const - lds_base & 0xffffffff:#x}')
    a(f'v_add_u32 v{vD}, s{sA}, v{vL16}')


def prologue():
    a('s_cmp_ge_u32 s2, 256')
    a('s_cbranch_scc1 L_end')
    a('s_load_dwordx16 s[64:79], s[0:1], 0')
    a('s_load_dwordx4 s[80:83], s[0:1], 64')
    a(f's_getpc_b64 {sr(sPC,2)}')
    a.label('L_pc')
    a('s_lshr_b32 s3, s2, 3')
    a('s_lshl_b32 s3, s3, 11')
    a('s_min_u32 s3, s3, (L_codeend - L_pc - 2048)')
    a(f's_add_u32 s{sPC}, s{sPC}, s3')
    a(f's_addc_u32 s{sPC+1}, s{sPC+1}, 0')
    a('v_min_u32 v16, 15, v0')
    a('v_lshlrev_b32 v16, 7, v16')
    a(f'global_load_dword v17, v16, {sr(sPC,2)}')
    a(f'v_lshrrev_b32 v18, 6, v0')
    a(f'v_and_b32 v{vLANE}, 63, v0')
    a(f'v_readfirstlane_b32 s{sW}, v18')
    a(f'v_lshlrev_b32 v{vL16}, 4, v{vLANE}')
    a(f'v_add_u32 v{vL16b}, 0x10000, v{vL16}')
    a(f'v_add_u32 v{vL16c}, 0x20000, v{vL16}')
    a(f'v_lshlrev_b32 v{vL4}, 2, v{vLANE}')
    a(f'v_and_b32 v18, 31, v{vLANE}')
    a(f'v_lshrrev_b32 v19, 5, v{vLANE}')
    a(f'v_mul_u32_u24 v{vROW}, 896, v18')
    a(f'v_lshl_add_u32 v{vROW}, v19, 4, v{vROW}')
    a(f'v_lshlrev_b32 v{vAUG}, 2, v18')
    a(f'v_lshl_add_u32 v{vAUG}, v19, 9, v{vAUG}')
    a(f'v_mov_b32 v{vPROF}, 0')
    a(f's_mov_b32 s{sPI}, 0')
    a(f's_and_b32 s{sC}, s2, 7')
    a(f's_lshr_b32 s{sJ}, s2, 3')
    a(f's_mul_i32 s{sTB}, s{sJ}, 37')
    a(f's_lshr_b32 s{sTB}, s{sTB}, 8')
    a(f's_mul_i32 s{sFB}, s{sTB}, 7')
    a(f's_sub_u32 s{sFB}, s{sJ}, s{sFB}')
    a(f's_cmp_ge_u32 s{sJ}, 28')
    a(f's_cselect_b32 s{sTB}, s{sFB}, s{sTB}')
    a(f's_mov_b32 s{sL}, 0')
    a(f's_mov_b32 s{sTMO}, 100000')
    a(f's_lshl_b32 s{sTILE2}, s{sC}, 3')
    a(f's_lshl_b32 s{sD}, s{sTB}, 1')
    a(f's_add_u32 s{sTILE2}, s{sTILE2}, s{sD}')
    a(f's_lshr_b32 s{sD}, s{sW}, 1')
    a(f's_add_u32 s{sOWN}, s{sTILE2}, s{sD}')
    a(f's_and_b32 s{sD}, s{sW}, 1')
    a(f's_lshl_b32 s{sOFT}, s{sFB}, 1')
    a(f's_add_u32 s{sOFT}, s{sOFT}, s{sD}')
    lf = {1: 0, 2: 1, 4: 2, 8: 3}[FA]
    nh = 16 // FA
    a(f's_and_b32 s{sD}, s{sC}, {FA-1}')
    a(f's_mul_i32 s{sHC}, s{sD}, {nh}')
    a(f's_and_b32 s{sD}, s{sJ}, {nh-1}')
    a(f's_add_u32 s{sHC}, s{sHC}, s{sD}')
    a(f's_lshr_b32 s{sD}, s{sC}, {lf}')
    a(f's_lshl_b32 s{sE}, s{sD}, {lf+1}')
    a(f's_lshr_b32 s{sD}, s{sJ}, {4-lf}')
    a(f's_add_u32 s{sE}, s{sE}, s{sD}')
    a(f's_lshl_b32 s{sTILE1}, s{sE}, 2')
    a(f's_add_u32 s{sTILE1}, s{sTILE1}, s{sW}')
    a(f's_mov_b32 s{sLN2}, {LN2:#x}')
    a(f's_mov_b32 s{sLN2+1}, {LN2:#x}')
    a(f's_mov_b32 s{sEPS6}, {EPS6:#x}')
    a(f's_mov_b32 s{sEPS6+1}, {EPS6:#x}')
    a(f's_mov_b32 s{sONES}, 0x3f803f80')
    for i in range(4):
        a(f'v_mov_b32 v{216+i}, 0')
    a(f'v_and_b32 v{vRHO}, 31, v{vLANE}')
    a(f'v_lshrrev_b32 v{vHI}, 5, v{vLANE}')
    a(f'v_and_b32 v{vSIG}, 0x13, v{vRHO}')
    a(f'v_and_b32 v{vt0}, 4, v{vRHO}')
    a(f'v_lshl_or_b32 v{vSIG}, v{vt0}, 1, v{vSIG}')
    a(f'v_lshrrev_b32 v{vt0}, 1, v{vRHO}')
    a(f'v_and_or_b32 v{vSIG}, v{vt0}, 4, v{vSIG}')
    a(f'v_lshrrev_b32 v{vR8}, 3, v{vLANE}')
    a(f'v_and_b32 v{vC8}, 7, v{vLANE}')
    a(f'v_lshlrev_b32 v{vC8}, 4, v{vC8}')
    a(f'v_lshrrev_b32 v{vt0}, 4, v{vLANE}')
    a(f'v_lshlrev_b32 v{vt0}, 4, v{vt0}')
    a(f'v_xor_b32 v{vt0}, v{vt0}, v{vC8}')
    a(f'v_mul_u32_u24 v{vt1}, 896, v{vR8}')
    a(f'v_add_u32 v{vXS}, v{vt1}, v{vt0}')
    a(f'v_xor_b32 v{vt0}, 64, v{vt0}')
    a(f'v_add_u32 v{vXS+1}, v{vt1}, v{vt0}')
    a('s_waitcnt lgkmcnt(0)')
    if TLBW:
        a(f'v_lshlrev_b32 v20, 20, v{vLANE}')
        a('v_subrev_u32 v20, 0xa00000, v20')
        a('v_min_u32 v20, 0x2100000, v20')
        a('v_mov_b32 v21, s83')
        a('v_add_co_u32 v20, vcc, s82, v20')
        a('v_addc_co_u32 v21, vcc, 0, v21, vcc')
        for ln, p in enumerate((64, 66, 68, 72, 74, 76, 78, 80)):
            a(f'v_writelane_b32 v20, s{p}, {ln}')
            a(f'v_writelane_b32 v21, s{p+1}, {ln}')
        a('global_load_dword v22, v[20:21], off')
    srd(S_X, 64, 2048 * 448 * 2)
    srd(S_WQKV, 66, 448 * 1344 * 2)
    srd(S_WO, 68, 448 * 448 * 2)
    srd(S_WG, 72, 448 * 1792 * 2)
    srd(S_WU, 74, 448 * 1792 * 2)
    srd(S_WD, 76, 1792 * 448 * 2)
    srd(S_OUT, 78, 2048 * 448 * 2)
    srd(S_DBG, 80, 256)
    srd(S_WS, 82, WS_BYTES)
    a(f's_mov_b32 s{sRBG}, s{sE}')
    a(f's_and_b32 s{sREP}, s2, 3')
    a(f's_lshl_b32 s{sREP}, s{sREP}, 12')
    a(f's_lshl_b32 s{sW1K}, s{sW}, 10')
    a(f's_lshl_b32 s{sW2K}, s{sW}, 11')
    a(f's_lshl_b32 s{sW4K}, s{sW}, 12')
    a(f's_lshl_b32 s{sG}, s{sW}, 9')
    a(f's_add_u32 s{sPC}, s{sPC}, s{sG}')
    a(f's_addc_u32 s{sPC+1}, s{sPC+1}, 0')
    a(f's_lshl_b32 s{sG}, s{sW}, 13')
    a(f's_add_u32 s{sG}, s{sG}, {LSTG}')
    a(f's_getreg_b32 s{sXID}, hwreg(HW_REG_XCC_ID)')
    a(f's_and_b32 s{sXID}, s{sXID}, 15')
    a(f's_add_u32 s{sXID}, s{sXID}, 1')
    stamp('start')


def late_consts():
    a(f's_mul_i32 s{sW1SRC}, s{sHC}, {W1S}')
    a(f's_add_u32 s{sW1SRC}, s{sW1SRC}, {W1R}')
    a(f's_mul_i32 s{sW3SRC}, s{sHC}, {W3S}')
    a(f's_add_u32 s{sW3SRC}, s{sW3SRC}, {W3R}')
    a(f's_lshl_b32 s{sWOSRC}, s{sFB}, 16')
    a(f's_lshl_b32 s{sA}, s{sW}, 14')
    a(f's_add_u32 s{sWOSRC}, s{sWOSRC}, s{sA}')
    a(f's_add_u32 s{sWOSRC}, s{sWOSRC}, {WOR}')
    a(f's_mul_i32 s{sWDSRC}, s{sFB}, {WDS}')
    a(f's_mul_i32 s{sA}, s{sW}, 57344')
    a(f's_add_u32 s{sWDSRC}, s{sWDSRC}, s{sA}')
    a(f's_add_u32 s{sWDSRC}, s{sWDSRC}, {WDR}')
    a(f's_add_u32 s{S_LY}, s{S_WS}, {LYB}')
    a(f's_addc_u32 s{S_LY+1}, s{S_WS+1}, 0')
    a(f's_mov_b32 s{S_LY+2}, {2*LYB}')
    a(f's_mov_b32 s{S_LY+3}, 0x00020000')
    a(f's_mov_b32 s{S_DT}, s{S_LY}')
    a(f's_mov_b32 s{S_DT+1}, s{S_LY+1}')
    a(f's_mov_b32 s{S_DT+2}, {2*LYB}')
    a(f's_mov_b32 s{S_DT+3}, 0x00020000')


UD = 128
UC = 192
vRHO, vHI, vSIG, vR8, vC8 = 204, 205, 206, 207, 212
vt0, vt1, vt2, vt3 = 208, 209, 210, 211
vXS = 214
LSTG = 4 * K
LXS = 40 * K


PASS = {'p': 'src'}


class Done(Exception):
    pass


def run_setup(fn, *args):
    try:
        fn(*args)
    except Done:
        pass


def unit_dma(r, srdreg, vsrc, srow0, srow1):
    if PASS['p'] == 'dst':
        return
    _unit_dma(r, srdreg, vsrc, srow0, srow1)
    raise Done()


def _unit_dma(r, srdreg, vsrc, srow0, srow1):
    a(f's_add_u32 m0, s{sG}, {r*2048}')
    a('s_nop 0')
    a(f'buffer_load_dwordx4 v{vsrc}, {sr(srdreg,4)}, s{srow0} offen {UNT} lds')
    a(f's_add_u32 m0, s{sG}, {r*2048+1024}')
    a('s_nop 0')
    a(f'buffer_load_dwordx4 v{vsrc}, {sr(srdreg,4)}, s{srow1} offen {UNT} lds')


def div7(q, rem, su):
    a(f's_mul_i32 s{q}, s{su}, 9363')
    a(f's_lshr_b32 s{q}, s{q}, 16')
    a(f's_mul_i32 s{rem}, s{q}, 7')
    a(f's_sub_u32 s{rem}, s{su}, s{rem}')


def setup_w1(r, su):
    col, dst, aug = UC + 3 * r, UC + 3 * r + 1, UC + 3 * r + 2
    div7(sA, sB, su)
    a(f's_lshr_b32 s{sC}, s{sA}, 3')
    a(f's_and_b32 s{sA}, s{sA}, 7')
    a(f's_mul_i32 s{sD}, s{sC}, 896')
    a(f's_mul_i32 s{sE}, s{sA}, 112')
    a(f's_add_u32 s{sD}, s{sD}, s{sE}')
    a(f's_lshl_b32 s{sF}, s{sB}, 2')
    a(f's_add_u32 s{sF}, s{sF}, s{sW}')
    a(f's_mul_i32 s{sE}, s{sF}, {16*2688}')
    a(f's_add_u32 s{sD}, s{sD}, s{sE}')
    a(f's_add_u32 s{sE}, s{sD}, {8*2688}')
    a(f'v_mul_u32_u24 v{vt0}, 2688, v{vR8}')
    a(f'v_add_u32 v{vt0}, v{vt0}, v{vC8}')
    a(f'v_cmp_eq_u32 vcc, 112, v{vC8}')
    a(f'v_mov_b32 v{vt1}, {OOB:#x}')
    a(f'v_cndmask_b32 v{vt0}, v{vt0}, v{vt1}, vcc')
    unit_dma(r, S_WQKV, vt0, sD, sE)
    a(f'v_cmp_le_u32 vcc, 24, v{vSIG}')
    a(f'v_subrev_u32 v{vt0}, 2, v{vSIG}')
    a(f'v_cndmask_b32 v{vt0}, v{vSIG}, v{vt0}, vcc')
    a(f'v_mad_u32_u24 v{vt0}, v{vHI}, 28, v{vt0}')
    a(f'v_and_b32 v{vt1}, 0x16, v{vSIG}')
    a(f'v_cmp_eq_u32 vcc, 0x16, v{vt1}')
    a(f'v_cndmask_b32 v{vt0}, v{vt0}, 56, vcc')
    a(f'v_lshl_add_u32 v{col}, v{vt0}, 1, s{sG}')
    a(f's_sub_u32 s{sE}, s{sC}, 1')
    a(f's_cmp_eq_u32 s{sC}, 0')
    a(f's_cselect_b32 s{sE}, 2, s{sE}')
    a(f's_mul_i32 s{sD}, s{sF}, 3')
    a(f's_add_u32 s{sD}, s{sD}, s{sE}')
    a(f's_add_u32 s{sE}, s{sE}, 84')
    a(f's_mul_i32 s{sA}, s{sA}, {2*W1S}')
    a(f's_add_u32 s{sA}, s{sA}, {W1R}')
    a(f's_lshl_b32 s{sD}, s{sD}, 10')
    a(f's_add_u32 s{sD}, s{sD}, s{sA}')
    a(f's_lshl_b32 s{sE}, s{sE}, 10')
    a(f's_add_u32 s{sE}, s{sE}, s{sA}')
    a(f's_lshl_b32 s{sB}, s{sB}, 7')
    a(f's_add_u32 s{sE}, s{sE}, s{sB}')
    a(f'v_mul_u32_u24 v{vt0}, {W1S}, v{vHI}')
    a(f'v_lshl_add_u32 v{dst}, v{vRHO}, 4, v{vt0}')
    a(f'v_add_u32 v{dst}, s{sD}, v{dst}')
    a(f'v_lshl_add_u32 v{aug}, v{vRHO}, 2, v{vt0}')
    a(f'v_add_u32 v{aug}, s{sE}, v{aug}')


def setup_w3(r, su, tsrd):
    col, dst, aug = UC + 3 * r, UC + 3 * r + 1, UC + 3 * r + 2
    div7(sA, sB, su)
    a(f's_cmp_ge_u32 s{sA}, 28')
    a(f's_cselect_b32 s{tsrd}, s{S_WU}, s{S_WG}')
    a(f's_cselect_b32 s{tsrd+1}, s{S_WU+1}, s{S_WG+1}')
    a(f's_cselect_b32 s{sC}, 28, 0')
    a(f's_cselect_b32 s{sD}, 16, 0')
    a(f's_mov_b32 s{tsrd+2}, {448*1792*2}')
    a(f's_mov_b32 s{tsrd+3}, 0x00020000')
    a(f's_sub_u32 s{sA}, s{sA}, s{sC}')
    a(f's_lshl_b32 s{sE}, s{sB}, 2')
    a(f's_add_u32 s{sE}, s{sE}, s{sW}')
    a(f's_mul_i32 s{sC}, s{sE}, {16*3584}')
    a(f's_lshl_b32 s{sF}, s{sA}, 7')
    a(f's_add_u32 s{sC}, s{sC}, s{sF}')
    a(f's_add_u32 s{sF}, s{sC}, {8*3584}')
    a(f'v_mul_u32_u24 v{vt0}, 3584, v{vR8}')
    a(f'v_add_u32 v{vt0}, v{vt0}, v{vC8}')
    unit_dma(r, tsrd, vt0, sC, sF)
    a(f'v_and_b32 v{vt0}, 48, v{vLANE}')
    a(f'v_and_or_b32 v{vt0}, v{vSIG}, 15, v{vt0}')
    a(f'v_lshl_add_u32 v{col}, v{vt0}, 1, s{sG}')
    a(f'v_lshrrev_b32 v{vt0}, 4, v{vLANE}')
    a(f's_lshl_b32 s{sC}, s{sA}, 2')
    a(f'v_add_u32 v{vt0}, s{sC}, v{vt0}')
    a(f'v_mul_u32_u24 v{vt1}, 9363, v{vt0}')
    a(f'v_lshrrev_b32 v{vt1}, 16, v{vt1}')
    a(f'v_mul_u32_u24 v{vt2}, 7, v{vt1}')
    a(f'v_sub_u32 v{vt0}, v{vt0}, v{vt2}')
    a(f's_mul_i32 s{sF}, s{sE}, {3 if G3 else 2}')
    a(f'v_add_u32 v{vt2}, s{sF}, v{vt0}')
    a(f'v_add_u32 v{aug}, {84 if G3 else 56}, v{vt0}')
    a(f's_cmp_ge_u32 s{sE}, 27')
    a(f's_cselect_b32 s{sC}, 58, 0')
    a(f's_sub_u32 s{sC}, s{sE}, s{sC}')
    a(f's_add_u32 s{sC}, s{sC}, 176')
    for t, base, ag in (() if G3 else ((2, 59, None),)) + ((3, 87, 115), (4, 116, 144), (5, 147, 175), (6, None, 146)):
        a(f'v_cmp_eq_u32 vcc, {t}, v{vt0}')
        if base is not None:
            a(f's_add_u32 s{sF}, s{sE}, {base}')
            a(f'v_mov_b32 v{vt3}, s{sF}')
        else:
            a(f'v_mov_b32 v{vt3}, s{sC}')
        a(f'v_cndmask_b32 v{vt2}, v{vt2}, v{vt3}, vcc')
        if ag is not None:
            a(f'v_mov_b32 v{vt3}, {ag}')
            a(f'v_cndmask_b32 v{aug}, v{aug}, v{vt3}, vcc')
    a(f'v_mul_u32_u24 v{vt1}, 203, v{vt1}')
    a(f'v_add_lshl_u32 v{vt2}, v{vt2}, v{vt1}, 10')
    a(f'v_add_lshl_u32 v{aug}, v{aug}, v{vt1}, 10')
    a(f'v_and_b32 v{vt0}, 15, v{vLANE}')
    a(f'v_add_u32 v{vt0}, s{sD}, v{vt0}')
    a(f'v_lshl_add_u32 v{dst}, v{vt0}, 4, v{vt2}')
    a(f'v_add_u32 v{dst}, {W3R:#x}, v{dst}')
    a(f'v_lshl_add_u32 v{aug}, v{vt0}, 2, v{aug}')
    a(f's_lshl_b32 s{sB}, s{sB}, 7')
    a(f's_add_u32 s{sB}, s{sB}, {W3R}')
    a(f'v_add_u32 v{aug}, s{sB}, v{aug}')


def setup_colsT(r):
    col, dst, aug = UC + 3 * r, UC + 3 * r + 1, UC + 3 * r + 2
    a(f'v_lshl_add_u32 v{vt0}, v{vHI}, 5, v{vSIG}')
    a(f'v_lshl_add_u32 v{col}, v{vt0}, 1, s{sG}')
    a(f'v_lshlrev_b32 v{dst}, 10, v{vHI}')
    a(f'v_lshl_add_u32 v{dst}, v{vRHO}, 4, v{dst}')
    a(f'v_mov_b32 v{aug}, {OOB:#x}')


def setup_wd(r, su):
    dst = UC + 3 * r + 1
    div7(sA, sB, su)
    a(f's_lshl_b32 s{sA}, s{sA}, 2')
    a(f's_add_u32 s{sA}, s{sA}, s{sW}')
    a(f's_mul_i32 s{sC}, s{sA}, {16*896}')
    a(f's_lshl_b32 s{sD}, s{sB}, 7')
    a(f's_add_u32 s{sC}, s{sC}, s{sD}')
    a(f's_add_u32 s{sD}, s{sC}, {8*896}')
    a(f'v_mul_u32_u24 v{vt0}, 896, v{vR8}')
    a(f'v_add_u32 v{vt0}, v{vt0}, v{vC8}')
    unit_dma(r, S_WD, vt0, sC, sD)
    setup_colsT(r)
    div7(sC, sD, sA)
    a(f's_mul_i32 s{sB}, s{sB}, {WDS}')
    a(f's_lshr_b32 s{sE}, s{sC}, 2')
    a(f's_mul_i32 s{sE}, s{sE}, 57344')
    a(f's_add_u32 s{sB}, s{sB}, s{sE}')
    a(f's_lshl_b32 s{sD}, s{sD}, 2')
    a(f's_and_b32 s{sC}, s{sC}, 3')
    a(f's_add_u32 s{sD}, s{sD}, s{sC}')
    a(f's_lshl_b32 s{sD}, s{sD}, 11')
    a(f's_add_u32 s{sB}, s{sB}, s{sD}')
    a(f's_add_u32 s{sB}, s{sB}, {WDR}')
    a(f'v_add_u32 v{dst}, s{sB}, v{dst}')


def setup_wo(r, su):
    dst = UC + 3 * r + 1
    div7(sA, sB, su)
    a(f's_lshl_b32 s{sA}, s{sA}, 2')
    a(f's_add_u32 s{sA}, s{sA}, s{sW}')
    a(f's_lshr_b32 s{sC}, s{sA}, 1')
    a(f's_mul_i32 s{sC}, s{sC}, {28*896}')
    a(f's_lshl_b32 s{sD}, s{sB}, 7')
    a(f's_add_u32 s{sC}, s{sC}, s{sD}')
    a(f's_and_b32 s{sD}, s{sA}, 1')
    a(f's_cselect_b32 s{sD}, {16*896}, 0')
    a(f's_cselect_b32 s{sE}, {14*896}, 0')
    a(f's_add_u32 s{sD}, s{sD}, s{sC}')
    a(f's_add_u32 s{sE}, s{sE}, s{sC}')
    a(f's_add_u32 s{sE}, s{sE}, {8*896}')
    a(f'v_mul_u32_u24 v{vt0}, 896, v{vR8}')
    a(f'v_add_u32 v{vt0}, v{vt0}, v{vC8}')
    unit_dma(r, S_WO, vt0, sD, sE)
    setup_colsT(r)
    a(f's_lshl_b32 s{sB}, s{sB}, 16')
    a(f's_lshl_b32 s{sC}, s{sA}, 11')
    a(f's_add_u32 s{sB}, s{sB}, s{sC}')
    a(f's_add_u32 s{sB}, s{sB}, {WOR}')
    a(f'v_add_u32 v{dst}, s{sB}, v{dst}')


def setup_none(r):
    col, dst, aug = UC + 3 * r, UC + 3 * r + 1, UC + 3 * r + 2
    a(f'v_mov_b32 v{col}, 0')
    a(f'v_mov_b32 v{dst}, {OOB:#x}')
    a(f'v_mov_b32 v{aug}, {OOB:#x}')


def rounds(tag):
    a('s_cmp_ge_u32 s2, 168')
    a(f's_cbranch_scc1 L_r0b{tag}')
    with cond():
        run_setup(setup_w1, 0, 2)
    a(f's_branch L_r0e{tag}')
    a.label(f'L_r0b{tag}')
    a('s_cmp_ge_u32 s2, 224')
    a(f's_cbranch_scc1 L_r0c{tag}')
    with cond():
        a(f's_sub_u32 s{sU}, s2, 168')
        run_setup(setup_wo, 0, sU)
    a(f's_branch L_r0e{tag}')
    a.label(f'L_r0c{tag}')
    with cond():
        a(f's_sub_u32 s{sU}, s2, 224')
        run_setup(setup_wd, 0, sU)
    a.label(f'L_r0e{tag}')
    run_setup(setup_w3, 1, 2, S_T0)
    a('s_cmp_ge_u32 s2, 136')
    a(f's_cbranch_scc1 L_r2b{tag}')
    with cond():
        a(f's_add_u32 s{sU}, s2, 256')
        run_setup(setup_w3, 2, sU, S_T1)
    a(f's_branch L_r2e{tag}')
    a.label(f'L_r2b{tag}')
    with cond():
        a(f's_sub_u32 s{sU}, s2, 104')
        run_setup(setup_wd, 2, sU)
    a.label(f'L_r2e{tag}')
    a('s_cmp_ge_u32 s2, 212')
    a(f's_cbranch_scc1 L_r3b{tag}')
    if PASS['p'] == 'dst':
        setup_none(3)
    a(f's_branch L_r3e{tag}')
    a.label(f'L_r3b{tag}')
    with cond():
        a(f's_sub_u32 s{sU}, s2, 60')
        run_setup(setup_wd, 3, sU)
    a.label(f'L_r3e{tag}')


def init_phase():
    Z = 216
    vGO = 215 + 9
    a(f's_lshl_b32 s{sA}, s{sW}, 3')
    a(f's_add_u32 s{sB}, s{sA}, s2')
    a(f's_mov_b32 s{sZW}, s{sB}')
    a(f's_cmp_ge_u32 s{sZW}, 8')
    a('s_cbranch_scc1 L_z1')
    with cond():
        a(f's_lshl_b32 s{sA}, s2, 11')
        a(f'buffer_store_dwordx4 {vr(Z,4)}, v{vL16}, {sr(S_WS,4)}, s{sA} offen sc1')
        a(f'buffer_store_dwordx4 {vr(Z,4)}, v{vL16}, {sr(S_WS,4)}, s{sA} offen offset:1024 sc1')
    a.label('L_z1')
    PASS['p'] = 'src'
    rounds('s')
    um = mark()
    a(f's_mul_i32 s{sI}, s{sTILE1}, 28672')
    a(f's_mul_i32 s{sH}, s{sW}, {28*K}')
    a(f's_add_u32 s{sH}, s{sH}, {LXS}')
    xq = []
    for g in range(4):
        for c in range(7):
            it = [f's_add_u32 m0, s{sH}, {(4*c+g)*K - c*128}',
                  f'buffer_load_dwordx4 v{vXS + (g & 1)}, {sr(S_X,4)}, s{sI} offen offset:{c*128} {XNT2} lds']
            if c == 6:
                it.append(f's_add_u32 s{sI}, s{sI}, {8*896}')
            xq.append(it)
    a(f's_mul_i32 s{sA}, s{sHC}, {14*128}')
    a(f's_add_u32 s{sA}, s{sA}, s{sI}')
    a(f'v_min_u32 v{vt0}, 13, v{vLANE}')
    a(f'v_lshlrev_b32 v{vt0}, 7, v{vt0}')
    a(f'buffer_load_dword v17, v{vt0}, {sr(S_X,4)}, s{sA} offen {XNT}')
    for _ in range(X0N):
        emit(xq.pop(0))
    stamp('issued')
    a(f's_cmp_ge_u32 s{sZW}, 8')
    a('s_cbranch_scc1 L_z2')
    with cond():
        a(f's_waitcnt vmcnt({7+X0N})')
        a(f's_lshl_b32 s{sA}, s2, 5')
        emit(flag_store(S_DBG, f's{sA}', sc='sc1'))
    a.label('L_z2')
    PASS['p'] = 'dst'
    rounds('d')
    a(f's_lshl_b32 s{sA}, s{sW}, 8')
    a(f'v_add_u32 v{vt1}, s{sA}, v{vL4}')
    a(f'v_and_b32 v{vt3}, 7, v{vLANE}')
    a(f'v_lshlrev_b32 v{vt3}, 5, v{vt3}')
    a(f's_lshl_b32 s{sA}, s2, 10')
    a(f's_add_u32 s{sB}, s{sW}, 1')
    a(f's_lshl_b32 s{sB}, s{sB}, 24')
    a(f's_add_u32 s{sA}, s{sA}, s{sB}')
    a(f's_sub_u32 s{sB}, s{sA}, {2*LYB - ST1}')
    a(f's_cmp_eq_u32 s{sW}, 2')
    a(f's_cselect_b32 s{sA}, s{sB}, s{sA}')
    a(f's_cmp_ge_u32 s{sW}, 3')
    a(f's_cselect_b32 s{sA}, {OOB:#x}, s{sA}')
    a.wait(um, force=True)
    stamp('ldone')
    a(f'buffer_store_dwordx4 {vr(Z,4)}, v{vL16}, {sr(S_WS,4)}, s{sA} offen sc1')
    rtok = {}

    def gat(r, half):
        for e in range(8):
            rtok[r, half] = a(f'ds_read_u16 v{UD+16*r+8*half+e}, v{UC+3*r} offset:{r*2048+(8*half+e)*128}')
    gat(0, 0)
    for r in range(4):
        R = UD + 16 * r
        dst = UC + 3 * r + 1
        for half in range(2):
            nxt = 2 * r + half + 1
            if nxt < 8:
                gat(nxt // 2, nxt % 2)
            a.wait(rtok[r, half])
            for m in range(4):
                a(f'v_lshl_or_b32 v{R+8*half+m}, v{R+8*half+2*m+1}, 16, v{R+8*half+2*m}')
            a(f'buffer_store_dwordx4 {vr(R+8*half,4)}, v{dst}, {sr(S_WS,4)}, 0 offen offset:{512*half} sc1')
            for _ in range(XI):
                emit(xq.pop(0))
    for r in range(3):
        R = UD + 16 * r
        a(f'v_mov_b32 v{R+4}, 0')
        for m in range(4):
            a(f'v_dot2c_f32_bf16 v{R+4}, s{sONES}, v{R+m}')
            a(f'v_dot2c_f32_bf16 v{R+4}, s{sONES}, v{R+8+m}')
        a(f'ds_write_b32 v{vt1}, v{R+4} offset:{r*1024}')
    a(f'buffer_load_dword v{vGO}, v{vt3}, {sr(S_DBG,4)}, 0 offen sc1')
    stamp('packed') if 'initprof' in OPT else None
    a.wait_lg0()
    a.barrier()
    a(f's_cmp_eq_u32 s{sW}, 3')
    a('s_cbranch_scc1 L_aug_e')
    with cond():
        R = 220
        a(f'v_add_u32 v{vt0}, s{sW1K}, v{vL4}')
        a(f'ds_read2st64_b32 {vr(R,2)}, v{vt0} offset0:0 offset1:1')
        t = a(f'ds_read2st64_b32 {vr(R+2,2)}, v{vt0} offset0:2 offset1:3')
        a(f's_cmp_eq_u32 s{sW}, 1')
        a('s_cselect_b64 vcc, -1, 0')
        a(f'v_cndmask_b32 v{vt2}, v{UC+2}, v{UC+5}, vcc')
        a(f's_cmp_eq_u32 s{sW}, 2')
        a('s_cselect_b64 vcc, -1, 0')
        a(f'v_cndmask_b32 v{vt2}, v{vt2}, v{UC+8}, vcc')
        a(f'v_bfe_u32 v{vt0}, v{vt2}, 7, 3')
        a(f'v_cmp_eq_u32 vcc, 6, v{vt0}')
        a(f'v_mov_b32 v{vt1}, {OOB:#x}')
        a(f'v_cndmask_b32 v{vt0}, v{vt1}, v{vt2}, vcc')
        a(f'buffer_store_dword v{Z}, v{vt0}, {sr(S_WS,4)}, 0 offen offset:128 sc1')
        a.wait(t)
        a(f'v_add_f32 v{R}, v{R}, v{R+1}')
        a(f'v_add_f32 v{R+2}, v{R+2}, v{R+3}')
        a(f'v_add_f32 v{R}, v{R}, v{R+2}')
        a(f'v_cvt_pk_bf16_f32 v{R+1}, v{R}, v{R}')
        a(f'v_and_b32 v{R+1}, 0xffff0000, v{R+1}')
        a(f'v_sub_f32 v{R+1}, v{R}, v{R+1}')
        a(f'v_cvt_pk_bf16_f32 v{R+1}, v{R}, v{R+1}')
        a(f'buffer_store_dword v{R+1}, v{vt2}, {sr(S_WS,4)}, 0 offen sc1')
    a.label('L_aug_e')
    sm = mark()
    for _ in range(min(XA, len(xq))):
        emit(xq.pop(0))
    a.wait(sm, force=True)
    stamp('acked') if 'initprof' in OPT else None
    a.barrier()
    a(f's_cmp_lg_u32 s{sW}, 3')
    a('s_cbranch_scc1 L_ib')
    with cond():
        a(f'v_cmp_ne_u32 vcc, 1, v{vGO}')
        a('s_cmp_eq_u64 vcc, 0')
        a('s_cbranch_scc1 L_go_ok')
        with cond():
            poll(S_DBG, vt3, 0, sleep=2)
        a.label('L_go_ok')
        a(f'v_lshlrev_b32 v{vt0}, 12, v{vLANE}')
        a(f'v_mov_b32 v{vt1}, s{sXID}')
        a(f's_lshl_b32 s{sA}, s2, 4')
        a('s_mov_b64 exec, 15')
        a(f'buffer_store_dword v{vt1}, v{vt0}, {sr(S_WS,4)}, s{sA} offen sc1')
        a('s_mov_b64 exec, -1')
    a.label('L_ib')
    stamp('ibpub')
    while xq:
        emit(xq.pop(0))
    a(f's_mul_i32 s{sA}, s{sOWN}, 28672')
    a(f's_lshl_b32 s{sB}, s{sOFT}, 6')
    a(f's_add_u32 s{sA}, s{sA}, s{sB}')
    a(f'buffer_load_dwordx4 {vr(vXRES,4)}, v{vROW}, {sr(S_X,4)}, s{sA} offen')
    a(f'buffer_load_dwordx4 {vr(vXRES+4,4)}, v{vROW}, {sr(S_X,4)}, s{sA} offen offset:32')
    late_consts()
    a(f'v_lshrrev_b32 v{vt0}, 3, v{vRHO}')
    a(f'v_lshlrev_b32 v{vt0}, 10, v{vt0}')
    a(f'v_and_b32 v{vt1}, 7, v{vRHO}')
    a(f'v_lshl_add_u32 v{vt0}, v{vt1}, 7, v{vt0}')
    a(f'v_add_u32 v{vt0}, s{sH}, v{vt0}')
    a(f'v_bfe_u32 v{vt1}, v{vRHO}, 1, 3')
    a(f'v_xor_b32 v{vt1}, v{vt1}, v{vHI}')
    for q in range(4):
        a(f'v_xor_b32 v{220+q}, {2*q}, v{vt1}')
        a(f'v_lshl_add_u32 v{220+q}, v{220+q}, 4, v{vt0}')
    a(f'v_min_u32 v{vt0}, 20, v{vLANE}')
    a(f'v_mul_u32_u24 v{vt1}, 37, v{vt0}')
    a(f'v_lshrrev_b32 v{vt1}, 8, v{vt1}')
    a(f'v_mad_u32_u24 v{vt0}, v{vt1}, 49, v{vt0}')
    a(f's_lshr_b32 s{sA}, s{sHC}, 1')
    a(f's_mul_i32 s{sA}, s{sA}, 7')
    a(f'v_add_lshl_u32 v{vt2}, v{vt0}, s{sA}, 4')
    a.wait_vm_n(2)
    stamp('xland') if 'initprof' in OPT else None
    for ks in range(28):
        a(f'ds_read_b128 {vr(16+4*ks,4)}, v{220+(ks&3)} offset:{(ks>>2)*4096}')
    a(f'v_mov_b32 v240, v{vt2}')
    own_consts()
    p1_setup(True)
    dma_setup(205, sW1SRC, 0, 0)
    a.wait_lg0()
    a.barrier()
    poll(S_WS, 240, f's{sREP}', nonzero=True)
    stamp('w1rdy')


def x0_stats(items):
    S0, S1, Q0, Q1 = 216, 217, 218, 219
    for _ in range(4):
        emit(items.pop(0))
    for v in (S0, S1, Q0, Q1):
        a(f'v_mov_b32 v{v}, 0')
    for i in range(0, 112, 2):
        if items and i % 6 == 0:
            emit(items.pop(0))
        a(f'v_dot2c_f32_bf16 v{S0}, s{sONES}, v{16+i}')
        a(f'v_dot2c_f32_bf16 v{Q0}, v{16+i}, v{16+i}')
        a(f'v_dot2c_f32_bf16 v{S1}, s{sONES}, v{17+i}')
        a(f'v_dot2c_f32_bf16 v{Q1}, v{17+i}, v{17+i}')
    a(f'v_add_f32 v{S0}, v{S0}, v{S1}')
    a(f'v_add_f32 v{S1}, v{Q0}, v{Q1}')
    emit(stats_finish(P1_XAUG))


vRSTD, vC2, vISTD = 248, 249, 250
P1_XAUG = 200


def stats_finish(xaug, SB=216):
    S, Q, t0, t1 = SB, SB + 1, SB + 2, SB + 3
    o = [f'v_mov_b32 v{t0}, v{S}',
         f'v_mov_b32 v{t1}, v{Q}',
         f'v_permlane32_swap_b32 v{S}, v{t0}',
         f'v_permlane32_swap_b32 v{Q}, v{t1}',
         f'v_add_f32 v{S}, v{S}, v{t0}',
         f'v_add_f32 v{Q}, v{Q}, v{t1}',
         f'v_mul_f32 v{S}, {INV448:#x}, v{S}',
         f'v_mul_f32 v{Q}, {INV448:#x}, v{Q}',
         f'v_fma_f32 v{Q}, -v{S}, v{S}, v{Q}',
         f'v_max_f32 v{Q}, 0, v{Q}',
         f'v_add_f32 v{Q}, {EPS5:#x}, v{Q}',
         f'v_rsq_f32 v{vRSTD}, v{Q}',
         f'v_cvt_pk_bf16_f32 v{xaug}, -v{S}, -v{S}',
         f'v_mul_f32 v{vISTD}, v{Q}, v{vRSTD}',
         f'v_mul_f32 v{vC2}, {LOG2E:#x}, v{vRSTD}']
    o += [f'v_mov_b32 v{xaug+i}, v{xaug}' for i in range(1, 4)]
    return o


def stats_sum(SB=216):
    o = []
    for i in range(1, 7):
        o.append(f'v_add_f32 v{SB}, v{SB}, v{SB+2*i}')
        o.append(f'v_add_f32 v{SB+1}, v{SB+1}, v{SB+2*i+1}')
    return o


def x_prep(fl, xb, stb):
    a(f'v_and_b32 v240, 15, v{vLANE}')
    a(f'v_min_u32 v240, 13, v240')
    a(f'v_lshlrev_b32 v240, 5, v240')
    a(f's_lshl_b32 s{sC}, s{sTILE1}, 9')
    a(f's_add_u32 s{sC}, s{sC}, {fl}')
    a(f's_lshl_b32 s{sD}, s{sTILE1}, 12')
    a(f's_add_u32 s{sD}, s{sD}, {stb}')
    a(f's_mul_i32 s{sE}, s{sTILE1}, {28*K}')
    a(f's_add_u32 s{sE}, s{sE}, {xb}')


def x_load(ks):
    if ks % 4 == 0 and ks:
        a(f's_add_u32 s{sE}, s{sE}, 4096')
    return a(f'buffer_load_dwordx4 {vr(16+4*ks,4)}, v{vL16}, {sr(S_DT,4)}, s{sE} offen offset:{(ks%4)*K} sc1')


def st_load(i, SB=216):
    return a(f'buffer_load_dwordx4 {vr(SB+4*i,4)}, v{vL16}, {sr(S_DT,4)}, s{sD} offen offset:{i*K} sc1')


def st_loads(SB=216):
    t = None
    for i in range(7):
        t = a(f'buffer_load_dwordx2 {vr(SB+2*i,2)}, v241, {sr(S_DT,4)}, s{sD} offen offset:{i*256} sc1')
    return t


def read_aug(dst, addr, tmp):
    a(f'v_add_u32 v{tmp}, {addr:#x}, v{vAUG}')
    a(f'ds_read2_b32 {vr(dst,2)}, v{tmp} offset0:0 offset1:32')
    return a(f'ds_read2_b32 {vr(dst+2,2)}, v{tmp} offset0:64 offset1:96')


def read_frag(dst, addr):
    v, off = lds_addr(addr)
    return a(f'ds_read_b128 {vr(dst,4)}, v{v} offset:{off}')


def wfrag_items(regfn, ssrc, lo, hi, va, vb, stmp):
    items = []
    for i, n in enumerate(range(lo, hi)):
        for b in range(2):
            it = []
            if i % 2 == 0 and b == 0:
                it.append(f's_add_u32 s{stmp}, s{ssrc}, {n*2048}')
            it.append(f'buffer_load_dwordx4 {regfn(n,b)}, v{(va,vb)[b]}, {sr(S_WS,4)}, s{stmp} offen offset:{(i%2)*2048} {WSC}')
            items.append(it)
    return items


def slot_addr_setup(va, vb):
    a(f's_and_b32 s{sA}, s{sW1K}, 0x400')
    a(f'v_add_u32 v{va}, s{sA}, v{vL16}')
    a(f'v_xor_b32 v{vb}, 0x400, v{va}')


def cost(x):
    op = x.split()[0]
    return 2 if op.startswith(('v_exp', 'v_rcp', 'v_rsq')) else 1


def drip(q, budget):
    while q and budget >= cost(q[0]):
        x = q.pop(0)
        budget -= cost(x)
        a(x)


CAP = int(OPT.get('cap', 7))
G3 = int(OPT.get('g3', 1))
F1AT = int(OPT.get('f1at', 22))
PQSPLIT = int(OPT.get('pqsplit', 1))
WDP3 = int(OPT.get('wdp3', 36))
WDP1 = int(OPT.get('wdp1', 8))
PUBD2 = int(OPT.get('pubd2', 22))
PRET = int(OPT.get('pret', 1))
PUBD = int(OPT.get('pubd', 20))
S0T = int(OPT.get('s0t', 2))


def shadow(mem, vq, cap=None, pop=None):
    n0 = len(a.ins)
    for f in mem:
        if f is None:
            continue
        if callable(f):
            f()
        else:
            emit(f)
    budget = (CAP if cap is None else cap) - (len(a.ins) - n0)
    while vq and budget >= cost(vq[0]):
        budget -= cost(vq[0])
        if pop:
            pop()
        else:
            a(vq.pop(0))


def split_item(it):
    if it is None:
        return None, None
    return it[:-1], it[-1:]


ACK, ACV, ACQ = 128, 144, 160
P1WR = 176
P1RR2 = 216
p1D1, p1SA, p1SB = 204, 206, 207
p1RSW, p1RSR, p1OH = 208, 209, 210
LMODE = LRS + 1008


CARRY = []


def FAST():
    return MODE['sfx'] != '_s'


def p1_setup(first):
    if not first:
        x_prep(F0 + LYB, *((X1, ST1) if FAST() else (X0 + LYB, ST0 + LYB)))
    slot_addr_setup(p1SA, p1SB)
    a(f'v_and_b32 v{p1OH}, 27, v{vLANE}')
    a(f'v_cmp_eq_u32 vcc, 26, v{p1OH}')
    a(f'v_cndmask_b32 v{p1OH}, 0, 1.0, vcc')
    a(f'v_mov_b32 v{p1OH+1}, v{p1OH}')
    a(f's_add_u32 s{sA}, s{sW4K}, {LKVS}')
    a(f'v_and_b32 v{p1RSW}, 31, v{vLANE}')
    a(f'v_lshl_add_u32 v{p1RSW}, v{p1RSW}, 2, s{sA}')
    a(f'v_lshrrev_b32 v{p1RSR}, 5, v{vLANE}')
    a(f'v_lshl_add_u32 v{p1RSR}, v{p1RSR}, 4, s{sA}')
    dma_setup(p1D1, sW3SRC, 0, LALPHA)


def phase1_kv(first):
    WR, XAUG, RR, RR2, KVD = P1WR, P1_XAUG, ACQ, P1RR2, 232
    vRSW, vRSR, vOH = p1RSW, p1RSR, p1OH
    PRE = XPRE
    xt, vq, st = {}, [], {}
    if first:
        its = dma_items(205, 0, 88, 2)
        x0_stats(its)
        assert not its
        w1m = mark()
        stamp('stats')
    else:
        if B1E:
            a('s_waitcnt vmcnt(1)')
            a.barrier()
    bg = ([] if first else code_touch(205, 212)) + dma_items(p1D1, LALPHA, 56, 2)
    rt = {}
    stage = (0, 8, 16) if first else ()

    def ib_check():
        a.wait(st['ib'])
        check_or_poll(254, S_WS, vL16, f's{sH}', nonzero=True)
        a(f's_and_b32 s{sA}, s2, 7')
        a(f'v_and_b32 v252, 7, v{vLANE}')
        a(f'v_cmp_eq_u32 {sr(sC,2)}, s{sA}, v252')
        a(f'v_cmp_ne_u32 vcc, s{sXID}, v254')
        a(f's_and_b64 vcc, vcc, {sr(sC,2)}')
        a(f's_cselect_b32 s{sZW}, 1, 0')

    def rd(ks, tl):
        if ks > 28:
            return
        if ks in stage and tl == 0:
            need_ops = 22 if ks == 16 else 2 * ((3 * (ks + 8) + 7) // 8)
            a.wait(('vm', w1m[1] - 22 + need_ops))
            if ks == 16:
                ib_check()
            a.barrier()
        d = WR + 8 * (ks % 3) + 4 * tl
        addr = (3 * ks + tl) * K
        rt[ks] = read_frag(d, addr) if ks < 28 else read_aug(d, addr, 252 + tl)
    if first or B1E:
        for ks in range(2):
            rd(ks, 0); rd(ks, 1)
    if not first:
        poll(S_LY, 240, f's{sC}')
        stamp('p1poll')
        for ks in range(4):
            xt[ks] = x_load(ks)
        a(f's_add_u32 s{S_LY}, s{S_LY}, {LYB}')
        a(f's_addc_u32 s{S_LY+1}, s{S_LY+1}, 0')
        if not B1E:
            a.barrier()
            for ks in range(2):
                rd(ks, 0); rd(ks, 1)
        for ks in range(4, PRE):
            xt[ks] = x_load(ks)
    rr = {}

    def stl(i):
        st['s'] = st_load(i)

    def xl(ks):
        xt[ks] = x_load(ks)

    def ibl():
        a(f's_add_u32 s{sH}, s{sREP}, s{sW1K}')
        st['ib'] = a(f'buffer_load_dword v254, v{vL16}, {sr(S_WS,4)}, s{sH} offen sc1')

    def rs_write():
        a(f'ds_write2_b32 v{vRSW}, v{vRSTD}, v{vC2} offset0:0 offset1:32')

    def rs_read(j):
        a(f'ds_read_b128 {vr(RR+4*j,4)}, v{vRSR} offset:{32*j}')
        rr[0] = a(f'ds_read_b128 {vr(RR2+4*j,4)}, v{vRSR} offset:{128+32*j}')
    for ks in range(29):
        if not first and ks == 15:
            a.wait(st['s'])
            vq += stats_sum() + stats_finish(XAUG)
        stamp(f'k{ks}', fine=True) if ks in (1, 8, 15, 21) else None
        a.wait(rt[ks], xt.get(ks))
        X = vr(16 + 4 * ks, 4) if ks < 28 else vr(XAUG, 4)
        c = (lambda r: '0' if ks == 0 else vr(r, 16))
        if not first and ks + PRE < 28:
            pre, main = None, (lambda k_=ks + PRE: xl(k_))
        elif first and ks == 5:
            pre, main = None, ibl
        else:
            pre, main = split_item(bg.pop(0) if bg and (ks >= 15 if first else LBG) else None)
        a(f'{MF} {vr(ACK,16)}, {X}, {vr(WR+8*(ks%3),4)}, {c(ACK)}')
        shadow([pre, lambda: rd(ks + 2, 0), main], vq)
        a(f'{MF} {vr(ACV,16)}, {X}, {vr(WR+8*(ks%3)+4,4)}, {c(ACV)}')
        extra = None
        if not first and ks < 8 and ks % 2 == 0:
            extra = (lambda i=ks // 2: stl(i))
        if ks == 23:
            assert not vq
            extra = rs_write
        if 24 <= ks <= 27:
            extra = (lambda j=ks - 24: rs_read(j))
        shadow([lambda: rd(ks + 2, 1), extra], vq)
    stamp('p1kv')
    qt = {}

    def rq(ks):
        if ks > 28:
            return
        d = WR + 4 * (ks % 6)
        addr = (3 * ks + 2) * K
        qt[ks] = read_frag(d, addr) if ks < 28 else read_aug(d, addr, 252)
    for ks in range(4):
        rq(ks)
    KS = LRS
    a(f's_lshl_b32 s{sB}, s{sHC}, 12')
    a(f's_add_u32 s{sB}, s{sB}, s{sW1K}')
    a.wait(rr[0])
    for r in range(0, 16, 2):
        a(f'v_pk_mul_f32 {vr(ACK+r,2)}, {vr(ACK+r,2)}, {vr(RR2+r,2)}')
    def bgp():
        if bg and EPD:
            emit(bg.pop(0))
    for r in range(16):
        a(f'v_exp_f32_e64 v{RR2+r}, v{ACK+r} clamp')
        a(f'v_max_f32 v{ACK+r}, 0, v{ACK+r}')
        if r % 5 == 0:
            bgp()
    for r in range(0, 16, 2):
        a(f'v_pk_fma_f32 {vr(ACV+r,2)}, {vr(ACV+r,2)}, {vr(RR+r,2)}, {vr(vOH,2)}')
        a(f'v_pk_fma_f32 {vr(RR2+r,2)}, {vr(ACK+r,2)}, {sr(sLN2,2)}, {vr(RR2+r,2)}')
    bgp()
    for r in range(0, 16, 2):
        a(f'v_pk_add_f32 {vr(RR2+r,2)}, {vr(RR2+r,2)}, {sr(sEPS6,2)}')
        a(f'v_cvt_pk_bf16_f32 v{ACV+r//2}, v{ACV+r}, v{ACV+r+1}')
    bgp()
    for m in range(4):
        a(f'v_cvt_pk_bf16_f32 v{ACK+m}, v{RR2+2*m}, v{RR2+2*m+1}')
    a(f'{MF} {vr(KVD,16)}, {vr(ACK,4)}, {vr(ACV,4)}, 0')
    for m in range(4, 8):
        a(f'v_cvt_pk_bf16_f32 v{ACK+m}, v{RR2+2*m}, v{RR2+2*m+1}')
    a(f's_add_u32 s{sA}, s{sW4K}, {LKVS}')
    a(f'v_add_u32 v{vRSW}, s{sA}, v{vL16}')
    a(f'{MF} {vr(KVD,16)}, {vr(ACK+4,4)}, {vr(ACV+4,4)}, {vr(KVD,16)}')
    a(f's_add_u32 s{sA}, s{sW1K}, {LKVS}')
    a(f'v_add_u32 v{vRSR}, s{sA}, v{vL4}')
    if first:
        a(f's_lshl_b32 s{sA}, s{sW}, 2')
        a(f's_add_u32 s{sA}, s{sA}, {LRS}')
        a(f'v_mov_b32 v252, s{sA}')
        a(f'v_mov_b32 v253, s{sZW}')
        a('ds_write_b32 v252, v253')
        a(f'v_mov_b32 v252, {LRS}')

    def qstep(ks, mem=(), vq_=None):
        a.wait(qt[ks])
        X = vr(16 + 4 * ks, 4) if ks < 28 else vr(XAUG, 4)
        a(f'{MF} {vr(ACQ,16)}, {vr(WR+4*(ks%6),4)}, {X}, {"0" if ks == 0 else vr(ACQ,16)}')
        shadow([lambda: rq(ks + 4)] + list(mem), vq_ if vq_ is not None else [])
    qstep(0, [bgp])
    for q in range(4):
        kw = a(f'ds_write_b128 v{vRSW}, {vr(KVD+4*q,4)} offset:{q*K}')
    qstep(1, [bgp])
    a.wait(kw)
    a.barrier()
    RED = RR2
    for wp in range(4):
        a(f'ds_read2st64_b32 {vr(RED+4*wp,2)}, v{vRSR} offset0:{16*wp} offset1:{16*wp+1}')
        t = a(f'ds_read2st64_b32 {vr(RED+4*wp+2,2)}, v{vRSR} offset0:{16*wp+2} offset1:{16*wp+3}')
    if first:
        mt = a(f'ds_read_b128 {vr(KVD,4)}, v252')
    qstep(2)
    a.wait(t)
    for i in range(4):
        a(f'v_add_f32 v{RED+i}, v{RED+i}, v{RED+4+i}')
        a(f'v_add_f32 v{RED+8+i}, v{RED+8+i}, v{RED+12+i}')
    for i in range(4):
        a(f'v_add_f32 v{RED+i}, v{RED+i}, v{RED+8+i}')
    for i in range(4):
        at = a(f'buffer_atomic_add_f32 v{RED+i}, v{vL4}, {sr(S_LY,4)}, s{sB} offen offset:{i*256}')
    stamp('p1atom')
    if first:
        a.wait(mt)
        a(f'v_or_b32 v{KVD}, v{KVD}, v{KVD+1}')
        a(f'v_or3_b32 v{KVD}, v{KVD}, v{KVD+2}, v{KVD+3}')
        a(f'v_readfirstlane_b32 s{sA}, v{KVD}')
        a(f's_cmp_lg_u32 s{sA}, 0')
        a('s_cbranch_scc1 L_slow')
    return dict(qstep=qstep, at=at, qt=qt, bg=bg, state=(a.vm_issued, a.vm_done, a.lg_issued, a.lg_done), qt0=dict(qt))


def phase1_q(ctx, first):
    qstep, at = ctx['qstep'], ctx['at']
    vRSW, vRSR, RR2 = p1RSW, p1RSR, P1RR2
    wo = wfrag_items(lambda n, b: vr(16 + 8 * n + 4 * b, 4), sWOSRC, 0, 8, p1SA, p1SB, sF)
    wo = list(ctx['bg']) + wo
    if first and FAST():
        wo = [[f's_cmp_ge_u32 s{sJ}, 28', f's_cselect_b32 s{sI}, {OOB:#x}, s{sOX}', f's_add_u32 s{sI}, s{sI}, {X1}',
               f'buffer_store_dwordx4 {vr(vXRES,4)}, v{vL16}, {sr(S_DT,4)}, s{sI} offen sc1'],
              [f'buffer_store_dwordx4 {vr(vXRES+4,4)}, v{vL16}, {sr(S_DT,4)}, s{sI} offen offset:1024 sc1']] + wo
    pqoff = PQ if (FAST() or first) else PQ + LYB
    vq = [f's_lshl_b32 s{sG}, s{sHC}, 8',
          f's_lshl_b32 s{sB}, s{sRBG}, 4',
          f's_add_u32 s{sG}, s{sG}, s{sB}',
          f's_add_u32 s{sG}, s{sG}, {F1}',
          f's_cmp_lg_u32 s{sW}, 3\ns_cselect_b32 s{sG}, {OOB:#x}, s{sG}',
          f's_lshl_b32 s{sA}, s{sTILE1}, 15',
          f's_lshl_b32 s{sB}, s{sHC}, 11',
          f's_add_u32 s{sA}, s{sA}, s{sB}',
          f's_add_u32 s{sA}, s{sA}, {pqoff}',
          f's_lshl_b32 s{sU}, s{sTILE1}, 9',
          f's_lshl_b32 s{sB}, s{sHC}, 5',
          f's_add_u32 s{sU}, s{sU}, s{sB}',
          f's_add_u32 s{sU}, s{sU}, {F1Q}',
          f'v_lshlrev_b32 v{vRSW}, 12, v{vLANE}',
          f'v_mov_b32 v{vRSR}, 1',
          f'v_mov_b32 v{vC2+2}, v{vC2}',
          f'v_mov_b32 v{ACK+7}, 0']
    for ks in range(3, 29):
        qstep(ks, [wo.pop(0)] if ks % 2 == 1 else [], vq)
        if ks == F1AT:
            a.wait(at)
            a.barrier()
            a('s_mov_b64 exec, 15')
            a(f'buffer_store_dword v{vRSR}, v{vRSW}, {sr(S_LY,4)}, s{sG} offen sc1')
            a('s_mov_b64 exec, -1')
            stamp('p1pub')
    a('s_nop 4')
    stamp('p1q')
    T = RR2
    for r in range(0, 14, 2):
        a(f'v_pk_mul_f32 {vr(ACQ+r,2)}, {vr(ACQ+r,2)}, {vr(vC2+1,2)} op_sel:[0,1] op_sel_hi:[1,1]')
    for r in range(14):
        a(f'v_exp_f32_e64 v{T+r}, v{ACQ+r} clamp')
        a(f'v_max_f32 v{ACQ+r}, 0, v{ACQ+r}')
    for r in range(0, 14, 2):
        a(f'v_pk_fma_f32 {vr(T+r,2)}, {vr(ACQ+r,2)}, {sr(sLN2,2)}, {vr(T+r,2)}')
    for r in range(0, 14, 2):
        a(f'v_pk_add_f32 {vr(T+r,2)}, {vr(T+r,2)}, {sr(sEPS6,2)}')
    for m in range(7):
        a(f'v_cvt_pk_bf16_f32 v{ACK+m}, v{T+2*m}, v{T+2*m+1}')
    sc = 'sc1' if first else LS()
    a(f'buffer_store_dwordx4 {vr(ACK,4)}, v{vL16}, {sr(S_DT,4)}, s{sA} offen {sc}')
    pst = a(f'buffer_store_dwordx4 {vr(ACK+4,4)}, v{vL16}, {sr(S_DT,4)}, s{sA} offen offset:1024 {sc}')
    if not FAST() and not first:
        a(f's_mov_b32 s{S_DT}, s{S_LY}')
        a(f's_mov_b32 s{S_DT+1}, s{S_LY+1}')
    if first:
        wo += wfrag_items(lambda n_, b: ar(8 * n_ + 4 * b, 4), sWDSRC, 0, WDP1 // 2, p1SA, p1SB, sI)
    for it in wo[:4]:
        emit(it)
    a.barrier()
    a.wait(pst)
    emit(flag_store(S_LY, f's{sU}'))
    if FAST() and CARRYON:
        CARRY[:] = wo[4:]
        print('carry', len(CARRY))
    else:
        for it in wo[4:]:
            emit(it)
    p2_setup()
    stamp('p1end')


ACC0, ACC1 = 208, 224
AAC2, AAC3 = 224, 240


def accs(s):
    return [vr(ACC0, 16), vr(ACC1, 16), ar(AAC2, 16), ar(AAC3, 16)][s]


def red_setup(base, RA):
    o = []
    for s in (1, 2, 3):
        o += [f's_xor_b32 s{sA}, s{sW}, {s}',
              f's_mul_i32 s{sA}, s{sA}, 12288',
              f's_add_u32 s{sA}, s{sA}, {base + (s-1)*4096}',
              f'v_add_u32 v{RA+s}, s{sA}, v{vL16}']
    o += [f's_mul_i32 s{sA}, s{sW}, 12288',
          f's_add_u32 s{sA}, s{sA}, {base}',
          f'v_add_u32 v{RA}, s{sA}, v{vL16}']
    return o


def red_write(s, RA):
    o = []
    for q in range(4):
        d = [None, vr(ACC1 + 4 * q, 4), ar(AAC2 + 4 * q, 4), ar(AAC3 + 4 * q, 4)][s]
        o.append(f'ds_write_b128 v{RA+s}, {d} offset:{q*K}')
    return o


sOX, sOS, sOF = 97, 98, 99


def own_consts():
    a(f's_mul_i32 s{sOX}, s{sOWN}, {28*K}')
    a(f's_lshl_b32 s{sB}, s{sOFT}, 11')
    a(f's_add_u32 s{sOX}, s{sOX}, s{sB}')
    a(f's_lshl_b32 s{sOS}, s{sOWN}, 12')
    a(f's_cmp_ge_u32 s{sOFT}, 7')
    a(f's_cselect_b32 s{sA}, 7, 0')
    a(f's_cselect_b32 s{sB}, 512, 0')
    a(f's_add_u32 s{sOS}, s{sOS}, s{sB}')
    a(f's_sub_u32 s{sA}, s{sOFT}, s{sA}')
    a(f's_lshr_b32 s{sB}, s{sA}, 1')
    a(f's_lshl_b32 s{sB}, s{sB}, 10')
    a(f's_add_u32 s{sOS}, s{sOS}, s{sB}')
    a(f's_and_b32 s{sA}, s{sA}, 1')
    a(f's_lshl_b32 s{sA}, s{sA}, 3')
    a(f's_add_u32 s{sOS}, s{sOS}, s{sA}')
    a(f's_lshl_b32 s{sOF}, s{sOWN}, 9')
    a(f's_lshl_b32 s{sB}, s{sOFT}, 5')
    a(f's_add_u32 s{sOF}, s{sOF}, s{sB}')


def res_unpack(RU):
    o = []
    for m in range(8):
        o.append(f'v_lshlrev_b32 v{RU+2*m}, 16, v{vXRES+m}')
        o.append(f'v_and_b32 v{RU+2*m+1}, 0xffff0000, v{vXRES+m}')
    return o


def red_finish(final, RB, RU, RA, nm, xb, stb, flb, sc, mid, pre=()):
    for it in pre:
        emit(it)
    a.wait_lg0()
    a.barrier()
    toks = []
    for i in range(12):
        toks.append(a(f'ds_read_b128 {vr(RB+4*i,4)}, v{RA} offset:{i*K}'))
    if final is not True:
        a(f's_add_u32 s{sA}, s{sOX}, {xb}')
        a(f's_add_u32 s{sB}, s{sOS}, {stb}')
        a(f's_add_u32 s{sZW}, s{sOF}, {flb}')
    for r in range(0, 16, 2):
        a(f'v_pk_add_f32 {vr(ACC0+r,2)}, {vr(ACC0+r,2)}, {vr(RU+r,2)}')
    S, Q, t0, t1, tl = RU, RU + 1, RU + 2, RU + 3, RU + 4
    if final is not True:
        a(f'v_mov_b32 v{S}, 0')
        a(f'v_mov_b32 v{Q}, 0')
    for s in range(3):
        a.wait(toks[4 * s + 3])
        for r in range(0, 16, 2):
            a(f'v_pk_add_f32 {vr(ACC0+r,2)}, {vr(ACC0+r,2)}, {vr(RB+16*s+r,2)}')
    for m in range(8):
        a(f'v_cvt_pk_bf16_f32 v{vXRES+m}, v{ACC0+2*m}, v{ACC0+2*m+1}')
    if final is True:
        final_store()
        return
    if final == 'dyn':
        a(f's_cmp_lg_u32 s{sL}, 0')
        a('s_cbranch_scc1 ' + LB_('L_final'))
    a(f'buffer_store_dwordx4 {vr(vXRES,4)}, v{vL16}, {sr(S_DT,4)}, s{sA} offen {sc}')
    a(f'buffer_store_dwordx4 {vr(vXRES+4,4)}, v{vL16}, {sr(S_DT,4)}, s{sA} offen offset:1024 {sc}')
    for m in range(8):
        a(f'v_dot2c_f32_bf16 v{S}, s{sONES}, v{vXRES+m}')
        a(f'v_dot2c_f32_bf16 v{Q}, v{vXRES+m}, v{vXRES+m}')
    a(f'v_mov_b32 v{t0}, v{S}')
    a(f'v_mov_b32 v{t1}, v{Q}')
    a(f'v_permlane32_swap_b32 v{S}, v{t0}')
    a(f'v_permlane32_swap_b32 v{Q}, v{t1}')
    a(f'v_pk_add_f32 {vr(S,2)}, {vr(S,2)}, {vr(t0,2)}')
    a('s_mov_b32 exec_hi, 0')
    lt = a(f'buffer_store_dwordx2 {vr(S,2)}, v{vL16}, {sr(S_DT,4)}, s{sB} offen {sc}')
    a('s_mov_b64 exec, -1')
    stamp(nm + 'st')
    mid()
    a.wait(lt)
    emit(flag_store(S_LY, f's{sZW}'))


def final_store():
    a(f'v_and_b32 v18, 31, v{vLANE}')
    a(f'v_lshrrev_b32 v19, 5, v{vLANE}')
    a(f'v_mul_u32_u24 v{vROW}, 896, v18')
    a(f'v_lshl_add_u32 v{vROW}, v19, 4, v{vROW}')
    a(f's_mul_i32 s{sA}, s{sOWN}, 28672')
    a(f's_lshl_b32 s{sB}, s{sOFT}, 6')
    a(f's_add_u32 s{sA}, s{sA}, s{sB}')
    a(f'buffer_store_dwordx4 {vr(vXRES,4)}, v{vROW}, {sr(S_OUT,4)}, s{sA} offen {OSC}')
    a(f'buffer_store_dwordx4 {vr(vXRES+4,4)}, v{vROW}, {sr(S_OUT,4)}, s{sA} offen offset:32 {OSC}')


def idle_touch(base, per_wave_bytes, n, t=16):
    if not IDLE:
        return
    a(f's_sub_u32 s{sA}, s{sJ}, 28')
    a(f's_lshl_b32 s{sA}, s{sA}, 2')
    a(f's_add_u32 s{sA}, s{sA}, s{sW}')
    a(f's_mul_i32 s{sA}, s{sA}, {per_wave_bytes}')
    a(f's_add_u32 s{sA}, s{sA}, {base}')
    a(f'v_lshlrev_b32 v{t}, 7, v{vLANE}')
    for i in range(n):
        a(f'buffer_load_dword v{t+1}, v{t}, {sr(S_WS,4)}, s{sA} offen sc1')
        a(f's_add_u32 s{sA}, s{sA}, 8192')


def p2_setup():
    dma_setup(vROW, sW3SRC, 56 * K, LBETA)
    a(f'v_and_b32 v240, 3, v{vLANE}')
    a(f'v_lshlrev_b32 v240, 5, v240')
    a(f'v_bfe_u32 v241, v{vLANE}, 2, 1')
    a(f'v_lshl_add_u32 v240, v241, 9, v240')
    a(f's_lshl_b32 s{sC}, s{sTILE2}, 9')
    a(f's_lshl_b32 s{sA}, s{sW}, 7')
    a(f's_add_u32 s{sC}, s{sC}, s{sA}')
    a(f's_add_u32 s{sC}, s{sC}, {F1Q}')
    a(f's_lshl_b32 s{sE}, s{sOWN}, 15')
    a(f's_lshl_b32 s{sA}, s{sW}, 13')
    a(f's_add_u32 s{sE}, s{sE}, s{sA}')
    a(f's_add_u32 s{sE}, s{sE}, {PQ}')
    a(f's_xor_b32 s{sF}, s{sE}, 0x8000')
    a(f's_add_u32 s{sH}, s{sREP}, s{sW1K}')
    a(f's_add_u32 s{sH}, s{sH}, {F1}')
    a(f's_lshl_b32 s{sD}, s{sW}, 14')


def phase2(L):
    WO, PQR, KVR = 16, 80, 144
    ODS = (240, 160)
    KB = (144, 152, 176, 192)
    tag = f'{L}'
    beta = dma_items(vROW, LBETA, 56, 2)
    a(f's_cmp_ge_u32 s{sJ}, 28')
    with cold('s_cbranch_scc1', back=LB_('L_p2skip' + tag)):
        for it in beta:
            emit(it)
        if L == 0:
            idle_touch(WDR, 7 * WDS // 16, IDN)
        elif L == 1:
            idle_touch(W3R + 112 * K, W3S, IDN)
        p3_setup(L)
        a.wait_vm0()
    with cond():
        poll(S_LY, 240, f's{sC}')
        stamp('p2pq')
        pt = {}
        for aa, s in ((1, sF), (0, sE)):
            for hl in range(4):
                for ks in range(2):
                    pt[hl, aa] = a(f'buffer_load_dwordx4 {vr(PQR+16*hl+8*aa+4*ks,4)}, v{vL16}, {sr(S_DT,4)}, s{s} offen offset:{(hl%2)*2048+ks*K} sc1')
                if hl == 1:
                    a(f's_add_u32 s{s}, s{s}, 4096')
                if aa == 1 and hl == 1:
                    fchk = a(f'buffer_load_dword v253, v{vL16}, {sr(S_LY,4)}, s{sH} offen sc1')
                if aa == 0 and hl == PQSPLIT:
                    break
        a.wait(fchk)
        check_or_poll(253, S_LY, vL16, f's{sH}', sleep=0)
        stamp('p2poll')
        kt = {}
        lq = []

        def kvl(hl, q):
            kt[hl] = a(f'buffer_load_dwordx4 {vr(KVR+16*hl+4*q,4)}, v{vL16}, {sr(S_LY,4)}, s{sD} offen offset:{q*K} sc1')
            if q == 3:
                a(f's_add_u32 s{sD}, s{sD}, 4096')

        def pql(hl, ks):
            pt[hl, 0] = a(f'buffer_load_dwordx4 {vr(PQR+16*hl+4*ks,4)}, v{vL16}, {sr(S_DT,4)}, s{sE} offen offset:{(hl%2)*2048+ks*K} sc1')
            if hl == 1 and ks == 1:
                a(f's_add_u32 s{sE}, s{sE}, 4096')
        for hl in range(4):
            for q in range(4):
                kvl(hl, q)
        for hl in range(PQSPLIT + 1, 4):
            for ks in range(2):
                lq.append(lambda h_=hl, k_=ks: pql(h_, k_))
        wot = {}
        cw = []
        if CARRY:
            a(f's_and_b32 s{sA}, s{sW1K}, 0x400')
            a(f's_add_u32 s80, s{sWOSRC}, s{sA}')
            a(f's_xor_b32 s{sA}, s{sA}, 0x400')
            a(f's_add_u32 s81, s{sWOSRC}, s{sA}')
        ncw = 0
        for it in CARRY:
            m_ = re.match(r'buffer_load_dwordx4 ([va])\[(\d+):', it[-1])
            assert m_
            if m_.group(1) == 'v':
                k_ = (int(m_.group(2)) - 16) // 4

                def f(k_=k_):
                    a(f's_add_u32 s78, s{80 + k_ % 2}, {(k_ // 2) * 2048}')
                    wot[k_ // 4] = a(f'buffer_load_dwordx4 {vr(16+4*k_,4)}, v{vL16}, {sr(S_WS,4)}, s78 offen sc1')
                cw.append(f)
            else:
                ncw += 1
        CARRY[:] = []
        for f in cw[:CWN]:
            f()
        beta = cw[CWN:] + lq + beta
        wd2 = []
        if L == 0:
            a(f's_and_b32 s{sA}, s{sW1K}, 0x400')
            a(f's_add_u32 s76, s{sWDSRC}, s{sA}')
            a(f's_xor_b32 s{sA}, s{sA}, 0x400')
            a(f's_add_u32 s77, s{sWDSRC}, s{sA}')
            for k_ in range(WDP1 - ncw, WDP1 + WDP2):
                n_, b = k_ // 2, k_ % 2
                wd2.append([f's_add_u32 s78, s{76+b}, {n_*2048}',
                            f'buffer_load_dwordx4 {ar(8*n_+4*b,4)}, v{vL16}, {sr(S_WS,4)}, s78 offen sc1'])

        def cvt(hl):
            return [f'v_cvt_pk_bf16_f32 v{KB[hl]+m}, v{KVR+16*hl+2*m}, v{KVR+16*hl+2*m+1}' for m in range(8)]
        units = [(hl, aa) for aa in (1, 0) for hl in range(4)]

        def oM(u):
            hl, aa = units[u]
            D = vr(ODS[u % 2], 16)
            P = PQR + 16 * hl + 8 * aa
            return [f'{MF} {D}, {vr(KB[hl],4)}, {vr(P,4)}, 0',
                    f'{MF} {D}, {vr(KB[hl]+4,4)}, {vr(P+4,4)}, {D}']

        def scale(u):
            hl, aa = units[u]
            D = ODS[u % 2]
            P = PQR + 16 * hl + 8 * aa
            o = [f'v_add_f32 v{D+14}, s{sEPS6}, v{D+14}',
                 f'v_rcp_f32 v{D+14}, v{D+14}']
            for m in range(7):
                o.append(f'v_mul_f32 v{D+2*m}, v{D+2*m}, v{D+14}')
                o.append(f'v_mul_f32 v{D+2*m+1}, v{D+2*m+1}, v{D+14}')
                o.append(f'v_cvt_pk_bf16_f32 v{P+m}, v{D+2*m}, v{D+2*m+1}')
            return o

        def woM(u, bs):
            hl, aa = units[u]
            P = PQR + 16 * hl + 8 * aa
            o = []
            for b in bs:
                for ks in range(2):
                    D = accs(2 * aa + b)
                    c = '0' if (hl == 0 and ks == 0) else D
                    o.append(f'{MF} {D}, {vr(WO+16*hl+8*ks+4*b,4)}, {vr(P+4*ks,4)}, {c}')
            return o
        RU, RA = 160, 184
        a.wait(kt[0])
        emit(cvt(0))
        emit(oM(0))
        a.wait(kt[1])
        emit(cvt(1))
        m1 = oM(1)
        vs = scale(0)
        a(m1[0]); shadow([], vs)
        a(m1[1]); emit(vs)
        wr = []
        for u in range(9):
            if u < 4:
                ms = woM(u, (0, 1))
            elif u < 8:
                ms = woM(u, (1,)) + (woM(u - 2, (0,)) if u >= 6 else [])
            else:
                ms = woM(6, (0,)) + woM(7, (0,))
            vs = scale(u + 1) if u + 1 < 8 else []
            if u < 4:
                while any(getattr(x, '__name__', '') == 'f' and x.__defaults__[0] // 4 <= u for x in beta):
                    beta.pop(0)()
                a.wait(wot.get(u))
            if u < 2:
                a.wait(kt[u + 2])
                vs = cvt(u + 2) + vs
            if u == 2:
                vs = vs + red_setup(LB, RA)[:8]
            if u == 3:
                vs = vs + red_setup(LB, RA)[8:]
            if u == 4:
                wr = red_write(2, RA) + red_write(3, RA)
            if u == 7:
                vs = res_unpack(RU)
            if u == 8:
                wr = wr + red_write(1, RA)
            if u + 2 < 8:
                ms = ms[:2] + ['W'] + oM(u + 2) + ms[2:]
            k_ = 0
            for m in ms:
                if m == 'W':
                    a.wait(pt[units[u + 2]])
                    if u < 2:
                        while any(x in vs for x in cvt(u + 2)):
                            a(vs.pop(0))
                    continue
                a(m)
                mem = []
                if beta and k_ % 2 == 0:
                    mem.append(beta.pop(0))
                elif wd2 and k_ % 2 == 0:
                    mem.append(wd2.pop(0))
                if wr and (k_ % 2 == 1 or u == 8) and not (u in (4, 8) and k_ == 0):
                    mem.append(wr[:1]); wr = wr[1:]
                shadow(mem, vs)
                k_ += 1
            emit(vs)
        wd2 = beta + wd2
        stamp('p2mfma')
        emit(wr)
        sc = LS()
        red_finish(False, 80, RU, RA, 'p2', X1, ST1, F2, sc, lambda: p3_setup(L), pre=wd2)
    a.label(LB_('L_p2skip' + tag))
    stamp('p2end')


p3D1, p3D3, p3SA, p3SB = 228, 229, 240, 241
p3D2 = 243
p3FL, p3HA, p3HB, p3FV = 244, 245, 246, 247


def p3_setup(L):
    vFL, vHA, vHB = p3FL, p3HA, p3HB
    x_prep(F2, X1, ST1)
    dma_setup(p3D3, sW3SRC, 112 * K, LB)
    dma_setup(p3D1, sW3SRC, 147 * K, LALPHA)
    if L is None:
        a(f's_cmp_lg_u32 s{sL}, 0')
        a(f's_cselect_b32 s{sA}, {OOB:#x}, s{sW1SRC}')
        a(f'v_add_u32 v{p3D2}, s{sA}, v{vL16}')
    elif L == 0:
        a(f'v_add_u32 v{p3D2}, s{sW1SRC}, v{vL16}')
    a(f's_mul_i32 s{sG}, s{sTILE1}, {112*K}')
    a(f's_mul_i32 s{sA}, s{sHC}, {7*K}')
    a(f's_add_u32 s{sG}, s{sG}, s{sA}')
    a(f's_add_u32 s{sG}, s{sG}, {HB}')
    a(f's_add_u32 s{sH}, s{sG}, 4096')
    a(f's_lshl_b32 s{sU}, s{sTILE1}, 9')
    a(f's_lshl_b32 s{sA}, s{sHC}, 2')
    a(f's_add_u32 s{sU}, s{sU}, s{sA}')
    a(f's_add_u32 s{sU}, s{sU}, {F3}')


def p4_addr():
    vFL, vHA, vHB = p3FL, p3HA, p3HB
    return [f'v_and_b32 v{vFL}, 3, v{vLANE}',
            f'v_lshlrev_b32 v{vFL}, 2, v{vFL}',
            f'v_bfe_u32 v{vHA}, v{vLANE}, 2, 1',
            f'v_lshl_add_u32 v{vFL}, v{vHA}, 9, v{vFL}',
            f's_lshl_b32 s{sA}, s{sTILE2}, 9',
            f's_lshl_b32 s{sB}, s{sW}, 4',
            f's_add_u32 s{sA}, s{sA}, s{sB}',
            f's_add_u32 s85, s{sA}, {F3}',
            f'v_add_u32 v{vFL}, s85, v{vFL}',
            f's_mul_i32 s{sB}, s{sW}, {28*K}',
            f's_add_u32 s{sB}, s{sB}, {HB}',
            f's_mul_i32 s{sA}, s{sOWN}, {112*K}',
            f's_add_u32 s{sA}, s{sA}, s{sB}',
            f'v_add_u32 v{vHA}, s{sA}, v{vL16}',
            f's_xor_b32 s{sA}, s{sOWN}, 1',
            f's_mul_i32 s{sA}, s{sA}, {112*K}',
            f's_add_u32 s{sA}, s{sA}, s{sB}',
            f'v_add_u32 v{vHB}, s{sA}, v{vL16}']


def phase34(L):
    ACC = 128
    WR, NW = 192, 8
    SB = 176
    XAUG = 224
    vD1, vD3, vSA, vSB, vD2 = p3D1, p3D3, p3SA, p3SB, p3D2
    vFL, vHA, vHB, vFV = p3FL, p3HA, p3HB, p3FV
    vFV2 = 242
    PRE = XPRE
    HR, NH = 16, 28
    tag = f'{L}'
    LOOK = 6
    NG = 3 if G3 else 2
    steps = [(t, ks) for ks in range(29) for t in range(NG)]
    for t in range(NG, 7):
        steps += [(t, ks) for ks in range(29)]

    def addr(t, ks):
        if G3 and t < 3:
            p = 3 * ks + t
            return LALPHA + p * K if p < 56 else LBETA + (p - 56) * K
        if ks == 28 and t < 3:
            return LBETA + t * K
        if t < 2:
            return LALPHA + (2 * ks + t) * K
        if t == 2:
            return LBETA + (3 + ks) * K
        if t == 3:
            return LBETA + (31 + ks) * K
        if t == 4:
            return LB + (4 + ks) * K
        if t == 5:
            return LALPHA + ks * K
        return LALPHA + (29 + ks) * K if ks < 27 else LB + (33 + ks - 27) * K
    n = len(steps)
    accof = {0: 0, 1: 1, 2: 2, 3: 3, 4: 0, 5: 1, 6: 2}
    rt, xt, hst, ht, chk = {}, {}, {}, {}, {}

    def hsc(t):
        return LS() if (L == 1 and t >= HPL) else 'sc1'

    def epi(t, D=None, Sx=None):
        Sx = ACC + 16 * accof[t] if Sx is None else Sx
        D = Sx if D is None else D
        o = []
        for r in range(8):
            o.append(f'v_mul_f32 v{D+r}, v{Sx+r}, v{vC2}')
        for r in range(8):
            o.append(f'v_exp_f32_e64 v{D+r}, -v{D+r}')
            if r >= 2:
                o.append(f'v_fma_f32 v{D+r-2}, v{D+r-2}, v{vISTD}, v{vISTD}')
        for r in (6, 7):
            o.append(f'v_fma_f32 v{D+r}, v{D+r}, v{vISTD}, v{vISTD}')
        for r in range(8):
            o.append(f'v_rcp_f32 v{D+r}, v{D+r}')
            if r >= 2:
                o.append(f'v_mul_f32 v{D+r-2}, v{D+r-2}, v{Sx+8+r-2}')
        for r in (6, 7):
            o.append(f'v_mul_f32 v{D+r}, v{D+r}, v{Sx+8+r}')
        for m in range(4):
            o.append(f'v_cvt_pk_bf16_f32 v{D+8+m}, v{D+2*m}, v{D+2*m+1}')
        s = sG if t < 4 else sH
        o.append(f'buffer_store_dwordx4 {vr(D+8,4)}, v{vL16}, {sr(S_DT,4)}, s{s} offen offset:{(t%4)*K} {hsc(t)} ; H{t}')
        return o

    def issue_rd(i):
        if i >= n:
            return
        t, ks = steps[i]
        d = WR + 4 * (i % NW)
        rt[i] = read_frag(d, addr(t, ks)) if ks < 28 else read_aug(d, addr(t, ks), 251 + (i % 3))

    def flag_ld(stg):
        if stg == 0 or not FAST():
            chk[stg] = a(f'buffer_load_dword v{vFV}, v{vFL}, {sr(S_LY,4)}, 0 offen offset:{64*stg} sc1')
        else:
            a(f's_buffer_load_dwordx4 s[76:79], {sr(S_LY,4)}, s85 offset:{64*stg}')
            a(f's_buffer_load_dwordx4 s[80:83], {sr(S_LY,4)}, s85 offset:{64*stg+512}')

    def flag_chk(stg):
        if FAST():
            a('s_waitcnt lgkmcnt(0)')
            a('s_and_b64 s[76:77], s[76:77], s[78:79]')
            a('s_and_b64 s[80:81], s[80:81], s[82:83]')
            a('s_and_b64 s[76:77], s[76:77], s[80:81]')
            a('s_and_b32 s76, s76, s77')
        else:
            a.wait(chk[stg])
            a(f'v_cmp_ne_u32 vcc, 1, v{vFV}')
            a('s_cmp_eq_u64 vcc, 0')
        assert 6 in hst
        with cold('s_cbranch_scc0'):
            a.wait_vm0()
            emit(flag_store(S_LY, f's{sU}', imm=128))
            emit(flag_store(S_LY, f's{sU}', imm=192))
            poll(S_LY, vFL, 0, imm=64 * stg)

    CHK = {24: 1, 40: 2, 48: 3}

    def hld(idx, chkflags=True):
        if idx >= 56:
            return
        if chkflags and idx + 4 in CHK:
            flag_ld(CHK[idx + 4])
        if chkflags and idx in CHK:
            flag_chk(CHK[idx])
        n_, aa = idx // 2, idx % 2
        t, cc = n_ // 4, n_ % 4
        if aa == 0:
            a(f's_mov_b32 s{sE}, {(cc*7+t)*K}')
        ht[idx] = a(f'buffer_load_dwordx4 {vr(HR+4*(idx%NH),4)}, v{(vHA,vHB)[aa]}, {sr(S_DT,4)}, s{sE} offen sc1')

    a.wait_lg0()
    if BEARLY:
        a.barrier()
        for i in range(LOOK):
            issue_rd(i)
    poll(S_LY, 240, f's{sC}')
    stamp('p3poll')
    for ks in range(4):
        xt[ks] = x_load(ks)
    if not BEARLY:
        a.barrier()
        for i in range(LOOK):
            issue_rd(i)
    for ks in range(4, PRE):
        xt[ks] = x_load(ks)
    fill, owner = [], []
    done_at = {}
    wd = [] if L == 1 else wfrag_items(lambda n_, b: ar(8 * n_ + 4 * b, 4), sWDSRC, (WDP1 + (WDP2 if L == 0 else 0)) // 2, 28, vSA, vSB, sF)
    ft = [[f'v_and_b32 v233, 0x80, v{vL4}', f'buffer_load_dword v233, v233, {sr(S_LY,4)}, s{sU} offen sc1']] if FT else []
    if HT and FAST() and (L == 1 or HT > 1):
        ft += [[f'v_min_u32 v234, 55, v{vLANE}', f'v_lshlrev_b32 v234, 7, v234', f'buffer_load_dword v234, v234, {sr(S_DT,4)}, s{sG} offen sc1']]
    bg = dma_items(vD3, LB, 36, 1) + ['M3'] + ft + wd[:WDP3]
    wd4 = wd[WDP3:]
    marks = {}
    cur = [0]

    def pop():
        x = fill.pop(0); o = owner.pop(0)
        t = a(x)
        if '; H' in x:
            hst[o] = (t, cur[0])

    def pub(stg, last_tile):
        a.wait(hst[last_tile][0])
        emit(flag_store(S_LY, f's{sU}', imm=64 * stg))

    def xl(ks):
        xt[ks] = x_load(ks)

    def next_bg():
        while bg and isinstance(bg[0], str):
            marks[bg.pop(0)] = mark()
        return bg.pop(0) if bg else None
    pubs = [(0, 2), (1, 4)]
    for i, (t, ks) in enumerate(steps):
        cur[0] = i
        if i == (45 if G3 else 34):
            a.wait(chk['st'])
            s_ = [f's_and_b32 s{sA}, s{sW1K}, 0x400', f'v_add_u32 v{vSA}, s{sA}, v{vL16}', f'v_xor_b32 v{vSB}, 0x400, v{vSA}'] + \
                stats_sum(SB) + stats_finish(XAUG, SB) + p4_addr()
            fill += s_; owner += [-1] * len(s_)
        stamp(f'i{i}', fine=True) if i in (1, 30, 57, 87, 116, 145, 174) else None
        if i % 2 == 0:
            a.wait(rt[min(i + 1, n - 1)], xt.get(steps[min(i + 1, n - 1)][1]), xt.get(ks))
        if i == 56:
            a.barrier()
            k3 = bg.index('M3') + 1 if 'M3' in bg else 0
            bg = bg[:k3] + dma_items(vD1, LALPHA, 56, 2) + ['M4'] + code_touch(232, 233) + bg[k3:]
        if i + LOOK == 112:
            a.wait(marks['M3'])
            a.barrier()
        if i + LOOK == 145:
            a.wait(marks['M4'])
            a.barrier()
            bg = code_touch(232, 233) + bg
        D = vr(ACC + 16 * accof[t], 16)
        if ks == 0 and t >= 4:
            assert (t - 4) not in owner
        if ks == 28:
            assert -1 not in owner
        X = vr(16 + 4 * ks, 4) if ks < 28 else vr(XAUG, 4)
        a(f'{MF} {D}, {vr(WR+4*(i%NW),4)}, {X}, {"0" if ks == 0 else D}')
        if ks == 28:
            done_at[t] = i
        for tt, di in list(done_at.items()):
            if i >= di + 2:
                e = epi(tt)
                fill += e; owner += [tt] * len(e)
                del done_at[tt]
        pre = main = None
        if t == 0 and ks + PRE < 28:
            main = (lambda k_=ks + PRE: xl(k_))
        elif t == NG - 1 and ks < 8 and ks % 2 == 0:
            main = (lambda k_=ks // 2: chk.__setitem__('st', st_load(k_, SB)))
        elif G3 and t == 2 and ks + PRE < 28 and ks % 2 == 0 and 'M3' not in marks:
            pre, main = split_item(next_bg())
        elif t == 6:
            if ks % 2 == 1:
                main = (lambda k_=ks // 2: hld(k_))
        elif i == 173:
            main = lambda: flag_ld(0)
        elif i % 2 == 0 and i >= NG * (28 - PRE):
            pre, main = split_item(next_bg())
        extra = None
        if fill and '; H' in fill[0]:
            extra = pop
        elif pubs and pubs[0][1] in hst and i >= hst[pubs[0][1]][1] + PUBD and i % 2 == 1:
            extra = (lambda p=pubs.pop(0): pub(*p))
        n0 = len(a.ins)
        for f in (pre, lambda: issue_rd(i + LOOK), main, extra):
            if f is None:
                continue
            f() if callable(f) else emit(f)
        budget = CAP - (len(a.ins) - n0) - (i % 2)
        while fill and '; H' not in fill[0] and budget >= cost(fill[0]):
            budget -= cost(fill[0])
            pop()
    assert not pubs and next_bg() is None, len(bg)
    print('P3: h stores at steps', {t: v[1] for t, v in hst.items()}, 'left', len(fill))
    assert not fill and 5 in hst
    stamp('p3mfma')

    RU, RA = 192, 128
    w1 = [] if L == 1 else dma_items(vD2, 0, 88, 2)
    nxt = (lambda: p1_setup(False)) if L != 1 else (lambda: None)
    a(f's_cmp_ge_u32 s{sJ}, 28')
    with cold('s_cbranch_scc1', back=LB_('L_p4skip' + tag)):
        emit(epi(6))
        pub(2, 5)
        a.barrier()
        a.wait_vm0()
        emit(flag_store(S_LY, f's{sU}', imm=192))
        if L == 0:
            idle_touch(W1R, W1S, 11)
        if L == 1 and WB:
            a('buffer_wbl2 sc1')
        for it in w1:
            emit(it)
        nxt()
        a.wait_vm0()
    with cond():
        a.wait(chk[0])
        a(f'v_cmp_ne_u32 vcc, 1, v{vFV}')
        a('s_cmp_eq_u64 vcc, 0')
        saved = dict(ht)
        with cold('s_cbranch_scc0'):
            emit(epi(6, D=ACC + 48))
            a.wait_vm0()
            emit(flag_store(S_LY, f's{sU}', imm=128))
            emit(flag_store(S_LY, f's{sU}', imm=192))
            poll(S_LY, vFL, 0, imm=0)
            for idx in range(14):
                hld(idx, False)
            a.wait_vm0()
        ht.update(saved)
        fill = epi(6)
        owner = [6] * len(fill)
        later = red_setup(LALPHA, RA) + res_unpack(RU)
        TAIL = 8
        nld = [14]
        todo = ['pub2', 'pub3']
        wt = {}

        def mf(n_, s):
            aa, b = s >> 1, s & 1
            D = accs(s)
            a(f'{MF} {D}, {ar(8*n_+4*b,4)}, {vr(HR+4*((2*n_+aa)%NH),4)}, {"0" if n_ == 0 else D}')

        def sh(step, load):
            cur[0] = step
            n0 = len(a.ins)
            if load:
                if nld[0] < 56:
                    hld(nld[0]); nld[0] += 1
                elif w1:
                    emit(w1.pop(0))
            elif todo and todo[0] == 'pub2' and step >= 13:
                pub(2, 5); todo.pop(0)
            elif todo and todo[0] == 'pub3' and 6 in hst and step >= hst[6][1] + PUBD2:
                pub(3, 6); todo.pop(0)
                fill.extend(later); owner.extend([-2] * len(later))
            elif wd4:
                wt[0] = emit(wd4.pop(0))
            if step >= 1:
                if fill and '; H' in fill[0]:
                    pop()
                budget = CAP - (len(a.ins) - n0)
                while fill and '; H' not in fill[0] and budget >= cost(fill[0]):
                    budget -= cost(fill[0])
                    pop()
        for n_ in range(28 - TAIL):
            if n_ == P4B:
                a.barrier()
            stamp(f'n{n_}') if ('p4prof' in OPT and n_ in (2, 4, 8, 13, 15, 17)) else None
            a.wait(ht[2 * n_])
            mf(n_, 0); sh(4 * n_, True)
            mf(n_, 1); sh(4 * n_ + 1, False)
            a.wait(ht[2 * n_ + 1])
            mf(n_, 2); sh(4 * n_ + 2, True)
            mf(n_, 3); sh(4 * n_ + 3, 10 <= n_ < 16)
        assert nld[0] == 56 and not fill and not todo and not wd4
        stamp('n20') if 'p4prof' in OPT else None
        a.wait(wt.get(0))
        pend = []
        for s in (3, 2, 1, 0):
            for k_, n_ in enumerate(range(28 - TAIL, 28)):
                a.wait(ht[2 * n_ + 1])
                mf(n_, s)
                if k_ % 2 == 1 and pend:
                    emit(pend[:1]); pend = pend[1:]
                elif w1 and k_ % 2 == 0 and len(w1) > W1KEEP:
                    emit(w1.pop(0))
            if s > 0:
                pend = red_write(s, RA)
        stamp('p4mfma')

        def mid():
            for it in w1:
                emit(it)
            nxt()
        final = {0: False, 1: True, None: 'dyn'}[L]
        xb, stb = (X1, ST1) if FAST() else (X0 + LYB, ST0 + LYB)
        pre4 = w1[:len(w1) // 4 * 2]; w1 = w1[len(pre4):]
        red_finish(final, 16, RU, RA, 'p4', xb, stb, F0 + LYB, LS(), mid, pre=pre4)
    a.label(LB_('L_p4skip' + tag))
    if L != 1:
        stamp('p4end')


def restore(ctx):
    a.vm_issued, a.vm_done, a.lg_issued, a.lg_done = ctx['state']
    ctx['qt'].clear(); ctx['qt'].update(ctx['qt0'])


def build():
    prologue()
    init_phase()
    MODE.update(sc='', sfx='')
    ctx = phase1_kv(True)
    phase1_q(ctx, True)
    phase2(0)
    phase34(0)
    c2 = phase1_kv(False)
    phase1_q(c2, False)
    phase2(1)
    phase34(1)
    a.label('L_done')
    if PROFILE:
        stamp('end')
        a(f's_lshl_b32 s{sA}, s2, 2')
        a(f's_add_u32 s{sA}, s{sA}, s{sW}')
        a(f's_lshl_b32 s{sA}, s{sA}, 8')
        a(f's_add_u32 s{sA}, s{sA}, {PROF}')
        a(f'buffer_store_dword v{vPROF}, v{vL4}, {sr(S_WS,4)}, s{sA} offen')
        if 'probe' in OPT:
            k0, k1 = [int(x) for x in OPT['probe'].split(',')]
            ne = len(STAMPS) - 1
            a(f'v_readlane_b32 s{sA}, v{vPROF}, {k0}')
            a(f'v_readlane_b32 s{sB}, v{vPROF}, {k1}')
            a(f'v_readlane_b32 s{sC}, v{vPROF}, {ne}')
            a('s_cmp_ge_u32 s2, 224')
            a('s_cbranch_scc1 L_end')
            a(f's_sub_u32 s{sA}, s{sB}, s{sA}')
            a(f's_min_u32 s{sA}, s{sA}, 5000')
            a(f's_lshl_b32 s{sA}, s{sA}, 3')
            a(f's_cmp_lg_u32 s2, 77')
            a('s_cbranch_scc1 L_end')
            a.label('L_spin')
            a('s_sleep 1')
            a(f's_memrealtime {sr(sP0,2)}')
            a('s_waitcnt lgkmcnt(0)')
            a(f's_sub_u32 s{sD}, s{sP0}, s{sC}')
            a(f's_cmp_lt_u32 s{sD}, s{sA}')
            a('s_cbranch_scc1 L_spin')
        if 'dbgout' in OPT:
            a(f's_lshl_b32 s{sA}, s2, 2')
            a(f's_add_u32 s{sA}, s{sA}, s{sW}')
            a(f's_cmp_lg_u32 s{sA}, {77*4+1}')
            a('s_cbranch_scc1 L_end')
            a(f'v_readfirstlane_b32 s{sA}, v{vPROF}')
            a(f'v_subrev_u32 v{vPROF}, s{sA}, v{vPROF}')
            a(f'v_lshlrev_b32 v20, 1, v{vLANE}')
            a(f'v_subrev_u32 v20, {2*int(OPT["dbgout"])}, v20')
            a(f'buffer_store_short v{vPROF}, v20, {sr(S_DBG,4)}, 0 offen sc1')
    a.label('L_end')
    a('s_endpgm')
    a.flush_cold()
    a.label('L_codeend')
    keep = list(STAMPS)
    a.label('L_slow')
    MODE.update(sc='sc1', sfx='_s')
    restore(ctx)
    a('s_nop 7')
    phase1_q(ctx, True)
    a.label('L_layer_s')
    a('s_nop 7')
    phase2(None)
    phase34(None)
    a(f's_cmp_lg_u32 s{sL}, 0')
    a('s_cbranch_scc1 L_done')
    a(f's_mov_b32 s{sL}, 1')
    c2 = phase1_kv(False)
    phase1_q(c2, False)
    a('s_branch L_layer_s')
    a.label('L_final_s')
    final_store()
    a('s_branch L_done')
    a.flush_cold()
    STAMPS[:] = keep


build()
hdr = open('cdna_kernels/' + NAME + '.s.ref').read().split('; Override launch')[0]
out = hdr + f"""; @launch grid=(256,1,1) block=(256,1,1) lds={LDS_BYTES}
.amdgcn_target "amdgcn-amd-amdhsa--gfx950"
.text
.globl {NAME}_kernel
.p2align 8
.type {NAME}_kernel,@function
{NAME}_kernel:
{a.text()}
.section .rodata,"a"
.p2align 6
.amdhsa_kernel {NAME}_kernel
  .amdhsa_next_free_vgpr 512
  .amdhsa_next_free_sgpr 102
  .amdhsa_accum_offset 256
  .amdhsa_group_segment_fixed_size 0
  .amdhsa_kernarg_size 80
  .amdhsa_user_sgpr_count 2
  .amdhsa_user_sgpr_kernarg_segment_ptr 1
  .amdhsa_system_sgpr_workgroup_id_x 1
  .amdhsa_float_denorm_mode_32 3
.end_amdhsa_kernel
"""
outfn = [x for x in sys.argv[1:] if not x.startswith('--')][0]
open(outfn, 'w').write(out)
open(outfn + '.names', 'w').write(','.join(STAMPS))
print('instructions', len(a.ins), 'nops added', a.nops_added)
```

```python
import sys
import contextlib
import re
from asmlib import Asm, vr, ar, sr

NAME = "interleave_layers__linear_attn_block__glu_gated_glu__prompt"
OPT = {}
for x in sys.argv[1:]:
    if x.startswith('--'):
        k, _, v = x[2:].partition('=')
        OPT[k] = v if v else True
PROFILE = 'prof' in OPT
FINE = 'fine' in OPT
CLK = 'clk' in OPT
STOP = OPT.get('stop')
FA = 1
SLEEP = int(OPT.get('sleep', 1))
TOUCH = int(OPT.get('touch', 0))
BUD = int(OPT.get('bud', 3))
XPRE = int(OPT.get('xpre', 8))
HPRE = int(OPT.get('hpre', 16))
HSC = int(OPT.get('hsc', 0))
XSC = int(OPT.get('xsc', 0))
TLBW = int(OPT.get('tlbw', 0))
XI = int(OPT.get('xi', 0))
XA = int(OPT.get('xa', 16))
CT = int(OPT.get('ct', 1))
FT = int(OPT.get('ft', 0))
HT = int(OPT.get('ht', 0))
X0N = int(OPT.get('x0n', 0))
IDLE = int(OPT.get('idle', 0))
OSC = OPT.get('osc', '')
PQSC = int(OPT.get('pqsc', 0))
WB = int(OPT.get('wb', 0))
IDN = int(OPT.get('idn', 11))
HPL = int(OPT.get('hpl', 9))
G3 = int(OPT.get('g3', 1))
P4B = int(OPT.get('p4b', 1))
BEARLY = int(OPT.get('bearly', 1))
WDP2 = int(OPT.get('wdp2', 12))
W1KEEP = int(OPT.get('w1keep', 0))
CARRYON = int(OPT.get('carry', 0))
CWN = int(OPT.get('cwn', 4))
EPD = int(OPT.get('epd', 1))
UNT = 'nt' if int(OPT.get('unt', 0)) else ''
XNT = 'nt' if int(OPT.get('xnt', 0)) else ''
XNT2 = 'nt' if int(OPT.get('xnt', 0)) > 1 else ''
B1E = int(OPT.get('b1e', 0))
LBG = int(OPT.get('lbg', 1))
TAILN = int(OPT.get('tail', 8))
XL0 = int(OPT.get('xl0', 10))
XL1 = int(OPT.get('xl1', 16))
WSC = OPT.get('wsc', 'sc1').replace('+', ' ')
STAMPS = []

IB = 0x0
W1R = 0x100000; W1S = 87 * 1024
WOR = 0x280000
W3R = 0x300000; W3S = 203 * 1024
WDR = 0x680000; WDS = 224 * 1024
LYB = 0x1000000
KV = 0x0
F1 = 0x10000
F1Q = 0x18000
F3 = 0x30000
F2 = 0x20000
F0 = 0x28000
ST1 = 0x40000
ST0 = 0x80000
PQ = 0x100000
X1 = 0x300000
X0 = 0x500000
HB = 0x700000
PROF = 0x3000000
WS_BYTES = 256 << 20
OOB = 0x40000000

K = 1024
LBETA, LB, LALPHA = 0, 56 * K, 104 * K
LRS = 87 * K
LKVS = 88 * K
LDS_BYTES = 160 * K

S_WS, S_X, S_WQKV, S_WO, S_WG, S_WU, S_WD, S_OUT, S_DBG = 4, 8, 12, 16, 20, 24, 28, 32, 36
S_T0, S_T1 = 40, 44
S_LY = 40
S_DT = 44
sW, sJ, sHC, sTB, sFB, sL, sTMO, sPI = 48, 49, 50, 51, 52, 53, 54, 55
sTILE1, sTILE2, sOWN, sOFT = 56, 57, 58, 59
sLN2, sEPS6 = 60, 62
sONES = 84
sW1K, sW2K, sW4K = 64, 65, 66
sW1SRC, sW3SRC, sWOSRC, sWDSRC = 67, 68, 69, 70
sRBG, sREP = 71, 72
sG, sH, sI = 73, 74, 75
sA, sB, sC, sD, sE, sF = 86, 87, 88, 89, 90, 91
sP0 = 92
sU = 94
sXID = 95
sZW = 96
sPC = 100

vLANE, vL16, vL16b, vL16c, vROW, vAUG, vL4, vPROF = 0, 1, 2, 3, 4, 5, 6, 7
vXRES = 8
LOG2E = 0x3FB8AA3B
LN2 = 0x3F317218
EPS6 = 0x358637BD
EPS5 = 0x3727C5AC
INV448 = 0x3B124925
MF = 'v_mfma_f32_32x32x16_bf16'

a = Asm()
MODE = {'sc': 'sc1', 'sfx': ''}


def LS():
    return MODE['sc']


def LL():
    return OPT.get('ll', 'sc1').replace('none', '') if MODE['sc'] == '' else 'sc1'


def ALIAS():
    return MODE['sfx'] == '' and 'noalias' not in OPT


def XS():
    return 'sc1' if XSC else LS()


def HS():
    return 'sc1' if HSC else LS()


def LB_(n):
    return n + MODE['sfx']


@contextlib.contextmanager
def cond():
    st = (a.vm_issued, a.vm_done, a.lg_issued, a.lg_done)
    yield
    a.vm_issued, a.vm_done, a.lg_issued, a.lg_done = st


@contextlib.contextmanager
def cold(branch, back=None):
    C = a.uid('Lc'); R = back or a.uid('Lr')
    a(f'{branch} {C}')
    st = (a.vm_issued, a.vm_done, a.lg_issued, a.lg_done)
    a.begin_cold()
    a.label(C)
    a('s_nop 7')
    a('s_nop 3')
    yield
    a('s_nop 4')
    a(f's_branch {R}')
    a.end_cold()
    a.vm_issued, a.vm_done, a.lg_issued, a.lg_done = st
    if back is None:
        a.label(R)


def mark():
    return ('vm', a.vm_issued - 1)


def lds_addr(addr):
    if addr < 65536:
        return vL16, addr
    if addr < 131072:
        return vL16b, addr - 65536
    return vL16c, addr - 131072


def stamp(name, fine=False):
    if not PROFILE or (fine and not FINE):
        return
    STAMPS.append(name)
    a('s_waitcnt lgkmcnt(0)')
    a(f"{'s_memtime' if CLK else 's_memrealtime'} {sr(sP0,2)}")
    a.wait_lg0()
    a(f'v_cmp_eq_u32 vcc, s{sPI}, v{vLANE}')
    a(f'v_mov_b32 v255, s{sP0}')
    a(f'v_cndmask_b32 v{vPROF}, v{vPROF}, v255, vcc')
    a(f's_add_u32 s{sPI}, s{sPI}, 1')


def srd(base, lo, nbytes):
    a(f's_mov_b32 s{base}, s{lo}')
    a(f's_and_b32 s{base+1}, s{lo+1}, 0xffff')
    a(f's_mov_b32 s{base+2}, {nbytes}')
    a(f's_mov_b32 s{base+3}, 0x00020000')


def poll(srdreg, vaddr, soff, imm=0, t=254, sleep=0, nonzero=False):
    L = a.uid('Lpoll'); D = a.uid('Lpd')
    a.label(L)
    if sleep:
        a(f's_sleep {sleep}')
    a(f'buffer_load_dword v{t}, v{vaddr}, {sr(srdreg,4)}, {soff} offen offset:{imm} sc1')
    a(f's_sub_u32 s{sTMO}, s{sTMO}, 1')
    a(f's_max_i32 s{sTMO}, s{sTMO}, 0')
    a(f's_cselect_b64 {sr(sP0,2)}, exec, 0')
    a.wait_vm0()
    a(f'v_cmp_eq_u32 vcc, 0, v{t}' if nonzero else f'v_cmp_ne_u32 vcc, 1, v{t}')
    a(f's_and_b64 exec, {sr(sP0,2)}, vcc')
    a(f's_cbranch_scc1 {L}')
    a('s_mov_b64 exec, -1')


def check_or_poll(v, srdreg, vaddr, soff, imm=0, nonzero=False, sleep=1, t=254):
    a(f'v_cmp_eq_u32 vcc, 0, v{v}' if nonzero else f'v_cmp_ne_u32 vcc, 1, v{v}')
    a('s_cmp_eq_u64 vcc, 0')
    with cold('s_cbranch_scc0'):
        poll(srdreg, vaddr, soff, imm=imm, nonzero=nonzero, sleep=sleep, t=t)


def code_touch(t, d):
    if not CT:
        return []
    return [[f'v_and_b32 v{t}, 3, v{vLANE}',
             f'v_lshlrev_b32 v{t}, 7, v{t}',
             f'global_load_dword v{d}, v{t}, {sr(sPC,2)}']]


def flag_store(srdreg, soff, imm=0, t=254, sc=None):
    sc = LS() if sc is None else sc
    return [f'v_mov_b32 v{t}, 1',
            's_mov_b64 exec, 1',
            f'buffer_store_dword v{t}, off, {sr(srdreg,4)}, {soff} offset:{imm} {sc}',
            's_mov_b64 exec, -1']


def emit(lst):
    t = None
    for x in lst:
        r = a(x)
        t = r if r is not None else t
    return t


def dma_items(vD, lds_base, nfrag, c):
    assert nfrag % (4 * c) == 0
    sWc = {1: sW1K, 2: sW2K, 4: sW4K}[c]
    items = []
    for r in range(nfrag // (4 * c)):
        for i in range(c):
            it = []
            if i == 0:
                it.append(f's_add_u32 m0, s{sWc}, {lds_base + r*4*c*K}')
            it.append(f'buffer_load_dwordx4 v{vD}, {sr(S_WS,4)}, m0 offen offset:{i*K} {WSC} lds')
            items.append(it)
    return items


def dma_setup(vD, ssrc, src_const, lds_base):
    a(f's_add_u32 s{sA}, s{ssrc}, {src_const - lds_base & 0xffffffff:#x}')
    a(f'v_add_u32 v{vD}, s{sA}, v{vL16}')


def prologue():
    a('s_cmp_ge_u32 s2, 256')
    a('s_cbranch_scc1 L_end')
    a('s_load_dwordx16 s[64:79], s[0:1], 0')
    a('s_load_dwordx4 s[80:83], s[0:1], 64')
    a(f's_getpc_b64 {sr(sPC,2)}')
    a.label('L_pc')
    a('s_lshr_b32 s3, s2, 3')
    a('s_lshl_b32 s3, s3, 11')
    a('s_min_u32 s3, s3, (L_codeend - L_pc - 2048)')
    a(f's_add_u32 s{sPC}, s{sPC}, s3')
    a(f's_addc_u32 s{sPC+1}, s{sPC+1}, 0')
    a('v_min_u32 v16, 15, v0')
    a('v_lshlrev_b32 v16, 7, v16')
    a(f'global_load_dword v17, v16, {sr(sPC,2)}')
    a(f'v_lshrrev_b32 v18, 6, v0')
    a(f'v_and_b32 v{vLANE}, 63, v0')
    a(f'v_readfirstlane_b32 s{sW}, v18')
    a(f'v_lshlrev_b32 v{vL16}, 4, v{vLANE}')
    a(f'v_add_u32 v{vL16b}, 0x10000, v{vL16}')
    a(f'v_add_u32 v{vL16c}, 0x20000, v{vL16}')
    a(f'v_lshlrev_b32 v{vL4}, 2, v{vLANE}')
    a(f'v_and_b32 v18, 31, v{vLANE}')
    a(f'v_lshrrev_b32 v19, 5, v{vLANE}')
    a(f'v_mul_u32_u24 v{vROW}, 896, v18')
    a(f'v_lshl_add_u32 v{vROW}, v19, 4, v{vROW}')
    a(f'v_lshlrev_b32 v{vAUG}, 2, v18')
    a(f'v_lshl_add_u32 v{vAUG}, v19, 9, v{vAUG}')
    a(f'v_mov_b32 v{vPROF}, 0')
    a(f's_mov_b32 s{sPI}, 0')
    a(f's_and_b32 s{sC}, s2, 7')
    a(f's_lshr_b32 s{sJ}, s2, 3')
    a(f's_mul_i32 s{sTB}, s{sJ}, 37')
    a(f's_lshr_b32 s{sTB}, s{sTB}, 8')
    a(f's_mul_i32 s{sFB}, s{sTB}, 7')
    a(f's_sub_u32 s{sFB}, s{sJ}, s{sFB}')
    a(f's_cmp_ge_u32 s{sJ}, 28')
    a(f's_cselect_b32 s{sTB}, s{sFB}, s{sTB}')
    a(f's_mov_b32 s{sL}, 0')
    a(f's_mov_b32 s{sTMO}, 100000')
    a(f's_lshl_b32 s{sTILE2}, s{sC}, 3')
    a(f's_lshl_b32 s{sD}, s{sTB}, 1')
    a(f's_add_u32 s{sTILE2}, s{sTILE2}, s{sD}')
    a(f's_lshr_b32 s{sD}, s{sW}, 1')
    a(f's_add_u32 s{sOWN}, s{sTILE2}, s{sD}')
    a(f's_and_b32 s{sD}, s{sW}, 1')
    a(f's_lshl_b32 s{sOFT}, s{sFB}, 1')
    a(f's_add_u32 s{sOFT}, s{sOFT}, s{sD}')
    lf = {1: 0, 2: 1, 4: 2, 8: 3}[FA]
    nh = 16 // FA
    a(f's_and_b32 s{sD}, s{sC}, {FA-1}')
    a(f's_mul_i32 s{sHC}, s{sD}, {nh}')
    a(f's_and_b32 s{sD}, s{sJ}, {nh-1}')
    a(f's_add_u32 s{sHC}, s{sHC}, s{sD}')
    a(f's_lshr_b32 s{sD}, s{sC}, {lf}')
    a(f's_lshl_b32 s{sE}, s{sD}, {lf+1}')
    a(f's_lshr_b32 s{sD}, s{sJ}, {4-lf}')
    a(f's_add_u32 s{sE}, s{sE}, s{sD}')
    a(f's_lshl_b32 s{sTILE1}, s{sE}, 2')
    a(f's_add_u32 s{sTILE1}, s{sTILE1}, s{sW}')
    a(f's_mov_b32 s{sLN2}, {LN2:#x}')
    a(f's_mov_b32 s{sLN2+1}, {LN2:#x}')
    a(f's_mov_b32 s{sEPS6}, {EPS6:#x}')
    a(f's_mov_b32 s{sEPS6+1}, {EPS6:#x}')
    a(f's_mov_b32 s{sONES}, 0x3f803f80')
    for i in range(4):
        a(f'v_mov_b32 v{216+i}, 0')
    a(f'v_and_b32 v{vRHO}, 31, v{vLANE}')
    a(f'v_lshrrev_b32 v{vHI}, 5, v{vLANE}')
    a(f'v_and_b32 v{vSIG}, 0x13, v{vRHO}')
    a(f'v_and_b32 v{vt0}, 4, v{vRHO}')
    a(f'v_lshl_or_b32 v{vSIG}, v{vt0}, 1, v{vSIG}')
    a(f'v_lshrrev_b32 v{vt0}, 1, v{vRHO}')
    a(f'v_and_or_b32 v{vSIG}, v{vt0}, 4, v{vSIG}')
    a(f'v_lshrrev_b32 v{vR8}, 3, v{vLANE}')
    a(f'v_and_b32 v{vC8}, 7, v{vLANE}')
    a(f'v_lshlrev_b32 v{vC8}, 4, v{vC8}')
    a(f'v_lshrrev_b32 v{vt0}, 4, v{vLANE}')
    a(f'v_lshlrev_b32 v{vt0}, 4, v{vt0}')
    a(f'v_xor_b32 v{vt0}, v{vt0}, v{vC8}')
    a(f'v_mul_u32_u24 v{vt1}, 896, v{vR8}')
    a(f'v_add_u32 v{vXS}, v{vt1}, v{vt0}')
    a(f'v_xor_b32 v{vt0}, 64, v{vt0}')
    a(f'v_add_u32 v{vXS+1}, v{vt1}, v{vt0}')
    a('s_waitcnt lgkmcnt(0)')
    if TLBW:
        a(f'v_lshlrev_b32 v20, 20, v{vLANE}')
        a('v_subrev_u32 v20, 0xa00000, v20')
        a('v_min_u32 v20, 0x2100000, v20')
        a('v_mov_b32 v21, s83')
        a('v_add_co_u32 v20, vcc, s82, v20')
        a('v_addc_co_u32 v21, vcc, 0, v21, vcc')
        for ln, p in enumerate((64, 66, 68, 72, 74, 76, 78, 80)):
            a(f'v_writelane_b32 v20, s{p}, {ln}')
            a(f'v_writelane_b32 v21, s{p+1}, {ln}')
        a('global_load_dword v22, v[20:21], off')
    srd(S_X, 64, 2048 * 448 * 2)
    srd(S_WQKV, 66, 448 * 1344 * 2)
    srd(S_WO, 68, 448 * 448 * 2)
    srd(S_WG, 72, 448 * 1792 * 2)
    srd(S_WU, 74, 448 * 1792 * 2)
    srd(S_WD, 76, 1792 * 448 * 2)
    srd(S_OUT, 78, 2048 * 448 * 2)
    srd(S_DBG, 80, 256)
    srd(S_WS, 82, WS_BYTES)
    a(f's_mov_b32 s{sRBG}, s{sE}')
    a(f's_and_b32 s{sREP}, s2, 3')
    a(f's_lshl_b32 s{sREP}, s{sREP}, 12')
    a(f's_lshl_b32 s{sW1K}, s{sW}, 10')
    a(f's_lshl_b32 s{sW2K}, s{sW}, 11')
    a(f's_lshl_b32 s{sW4K}, s{sW}, 12')
    a(f's_lshl_b32 s{sG}, s{sW}, 9')
    a(f's_add_u32 s{sPC}, s{sPC}, s{sG}')
    a(f's_addc_u32 s{sPC+1}, s{sPC+1}, 0')
    a(f's_lshl_b32 s{sG}, s{sW}, 13')
    a(f's_add_u32 s{sG}, s{sG}, {LSTG}')
    a(f's_getreg_b32 s{sXID}, hwreg(HW_REG_XCC_ID)')
    a(f's_and_b32 s{sXID}, s{sXID}, 15')
    a(f's_add_u32 s{sXID}, s{sXID}, 1')
    stamp('start')


def late_consts():
    a(f's_mul_i32 s{sW1SRC}, s{sHC}, {W1S}')
    a(f's_add_u32 s{sW1SRC}, s{sW1SRC}, {W1R}')
    a(f's_mul_i32 s{sW3SRC}, s{sHC}, {W3S}')
    a(f's_add_u32 s{sW3SRC}, s{sW3SRC}, {W3R}')
    a(f's_lshl_b32 s{sWOSRC}, s{sFB}, 16')
    a(f's_lshl_b32 s{sA}, s{sW}, 14')
    a(f's_add_u32 s{sWOSRC}, s{sWOSRC}, s{sA}')
    a(f's_add_u32 s{sWOSRC}, s{sWOSRC}, {WOR}')
    a(f's_mul_i32 s{sWDSRC}, s{sFB}, {WDS}')
    a(f's_mul_i32 s{sA}, s{sW}, 57344')
    a(f's_add_u32 s{sWDSRC}, s{sWDSRC}, s{sA}')
    a(f's_add_u32 s{sWDSRC}, s{sWDSRC}, {WDR}')
    a(f's_add_u32 s{S_LY}, s{S_WS}, {LYB}')
    a(f's_addc_u32 s{S_LY+1}, s{S_WS+1}, 0')
    a(f's_mov_b32 s{S_LY+2}, {2*LYB}')
    a(f's_mov_b32 s{S_LY+3}, 0x00020000')
    a(f's_mov_b32 s{S_DT}, s{S_LY}')
    a(f's_mov_b32 s{S_DT+1}, s{S_LY+1}')
    a(f's_mov_b32 s{S_DT+2}, {2*LYB}')
    a(f's_mov_b32 s{S_DT+3}, 0x00020000')


UD = 128
UC = 192
vRHO, vHI, vSIG, vR8, vC8 = 204, 205, 206, 207, 212
vt0, vt1, vt2, vt3 = 208, 209, 210, 211
vXS = 214
LSTG = 4 * K
LXS = 40 * K


PASS = {'p': 'src'}


class Done(Exception):
    pass


def run_setup(fn, *args):
    try:
        fn(*args)
    except Done:
        pass


def unit_dma(r, srdreg, vsrc, srow0, srow1):
    if PASS['p'] == 'dst':
        return
    _unit_dma(r, srdreg, vsrc, srow0, srow1)
    raise Done()


def _unit_dma(r, srdreg, vsrc, srow0, srow1):
    a(f's_add_u32 m0, s{sG}, {r*2048}')
    a('s_nop 0')
    a(f'buffer_load_dwordx4 v{vsrc}, {sr(srdreg,4)}, s{srow0} offen {UNT} lds')
    a(f's_add_u32 m0, s{sG}, {r*2048+1024}')
    a('s_nop 0')
    a(f'buffer_load_dwordx4 v{vsrc}, {sr(srdreg,4)}, s{srow1} offen {UNT} lds')


def div7(q, rem, su):
    a(f's_mul_i32 s{q}, s{su}, 9363')
    a(f's_lshr_b32 s{q}, s{q}, 16')
    a(f's_mul_i32 s{rem}, s{q}, 7')
    a(f's_sub_u32 s{rem}, s{su}, s{rem}')


def setup_w1(r, su):
    col, dst, aug = UC + 3 * r, UC + 3 * r + 1, UC + 3 * r + 2
    div7(sA, sB, su)
    a(f's_lshr_b32 s{sC}, s{sA}, 3')
    a(f's_and_b32 s{sA}, s{sA}, 7')
    a(f's_mul_i32 s{sD}, s{sC}, 896')
    a(f's_mul_i32 s{sE}, s{sA}, 112')
    a(f's_add_u32 s{sD}, s{sD}, s{sE}')
    a(f's_lshl_b32 s{sF}, s{sB}, 2')
    a(f's_add_u32 s{sF}, s{sF}, s{sW}')
    a(f's_mul_i32 s{sE}, s{sF}, {16*2688}')
    a(f's_add_u32 s{sD}, s{sD}, s{sE}')
    a(f's_add_u32 s{sE}, s{sD}, {8*2688}')
    a(f'v_mul_u32_u24 v{vt0}, 2688, v{vR8}')
    a(f'v_add_u32 v{vt0}, v{vt0}, v{vC8}')
    a(f'v_cmp_eq_u32 vcc, 112, v{vC8}')
    a(f'v_mov_b32 v{vt1}, {OOB:#x}')
    a(f'v_cndmask_b32 v{vt0}, v{vt0}, v{vt1}, vcc')
    unit_dma(r, S_WQKV, vt0, sD, sE)
    a(f'v_cmp_le_u32 vcc, 24, v{vSIG}')
    a(f'v_subrev_u32 v{vt0}, 2, v{vSIG}')
    a(f'v_cndmask_b32 v{vt0}, v{vSIG}, v{vt0}, vcc')
    a(f'v_mad_u32_u24 v{vt0}, v{vHI}, 28, v{vt0}')
    a(f'v_and_b32 v{vt1}, 0x16, v{vSIG}')
    a(f'v_cmp_eq_u32 vcc, 0x16, v{vt1}')
    a(f'v_cndmask_b32 v{vt0}, v{vt0}, 56, vcc')
    a(f'v_lshl_add_u32 v{col}, v{vt0}, 1, s{sG}')
    a(f's_sub_u32 s{sE}, s{sC}, 1')
    a(f's_cmp_eq_u32 s{sC}, 0')
    a(f's_cselect_b32 s{sE}, 2, s{sE}')
    a(f's_mul_i32 s{sD}, s{sF}, 3')
    a(f's_add_u32 s{sD}, s{sD}, s{sE}')
    a(f's_add_u32 s{sE}, s{sE}, 84')
    a(f's_mul_i32 s{sA}, s{sA}, {2*W1S}')
    a(f's_add_u32 s{sA}, s{sA}, {W1R}')
    a(f's_lshl_b32 s{sD}, s{sD}, 10')
    a(f's_add_u32 s{sD}, s{sD}, s{sA}')
    a(f's_lshl_b32 s{sE}, s{sE}, 10')
    a(f's_add_u32 s{sE}, s{sE}, s{sA}')
    a(f's_lshl_b32 s{sB}, s{sB}, 7')
    a(f's_add_u32 s{sE}, s{sE}, s{sB}')
    a(f'v_mul_u32_u24 v{vt0}, {W1S}, v{vHI}')
    a(f'v_lshl_add_u32 v{dst}, v{vRHO}, 4, v{vt0}')
    a(f'v_add_u32 v{dst}, s{sD}, v{dst}')
    a(f'v_lshl_add_u32 v{aug}, v{vRHO}, 2, v{vt0}')
    a(f'v_add_u32 v{aug}, s{sE}, v{aug}')


def setup_w3(r, su, tsrd):
    col, dst, aug = UC + 3 * r, UC + 3 * r + 1, UC + 3 * r + 2
    div7(sA, sB, su)
    a(f's_cmp_ge_u32 s{sA}, 28')
    a(f's_cselect_b32 s{tsrd}, s{S_WU}, s{S_WG}')
    a(f's_cselect_b32 s{tsrd+1}, s{S_WU+1}, s{S_WG+1}')
    a(f's_cselect_b32 s{sC}, 28, 0')
    a(f's_cselect_b32 s{sD}, 16, 0')
    a(f's_mov_b32 s{tsrd+2}, {448*1792*2}')
    a(f's_mov_b32 s{tsrd+3}, 0x00020000')
    a(f's_sub_u32 s{sA}, s{sA}, s{sC}')
    a(f's_lshl_b32 s{sE}, s{sB}, 2')
    a(f's_add_u32 s{sE}, s{sE}, s{sW}')
    a(f's_mul_i32 s{sC}, s{sE}, {16*3584}')
    a(f's_lshl_b32 s{sF}, s{sA}, 7')
    a(f's_add_u32 s{sC}, s{sC}, s{sF}')
    a(f's_add_u32 s{sF}, s{sC}, {8*3584}')
    a(f'v_mul_u32_u24 v{vt0}, 3584, v{vR8}')
    a(f'v_add_u32 v{vt0}, v{vt0}, v{vC8}')
    unit_dma(r, tsrd, vt0, sC, sF)
    a(f'v_and_b32 v{vt0}, 48, v{vLANE}')
    a(f'v_and_or_b32 v{vt0}, v{vSIG}, 15, v{vt0}')
    a(f'v_lshl_add_u32 v{col}, v{vt0}, 1, s{sG}')
    a(f'v_lshrrev_b32 v{vt0}, 4, v{vLANE}')
    a(f's_lshl_b32 s{sC}, s{sA}, 2')
    a(f'v_add_u32 v{vt0}, s{sC}, v{vt0}')
    a(f'v_mul_u32_u24 v{vt1}, 9363, v{vt0}')
    a(f'v_lshrrev_b32 v{vt1}, 16, v{vt1}')
    a(f'v_mul_u32_u24 v{vt2}, 7, v{vt1}')
    a(f'v_sub_u32 v{vt0}, v{vt0}, v{vt2}')
    a(f's_mul_i32 s{sF}, s{sE}, {3 if G3 else 2}')
    a(f'v_add_u32 v{vt2}, s{sF}, v{vt0}')
    a(f'v_add_u32 v{aug}, {84 if G3 else 56}, v{vt0}')
    a(f's_cmp_ge_u32 s{sE}, 27')
    a(f's_cselect_b32 s{sC}, 58, 0')
    a(f's_sub_u32 s{sC}, s{sE}, s{sC}')
    a(f's_add_u32 s{sC}, s{sC}, 176')
    for t, base, ag in (() if G3 else ((2, 59, None),)) + ((3, 87, 115), (4, 116, 144), (5, 147, 175), (6, None, 146)):
        a(f'v_cmp_eq_u32 vcc, {t}, v{vt0}')
        if base is not None:
            a(f's_add_u32 s{sF}, s{sE}, {base}')
            a(f'v_mov_b32 v{vt3}, s{sF}')
        else:
            a(f'v_mov_b32 v{vt3}, s{sC}')
        a(f'v_cndmask_b32 v{vt2}, v{vt2}, v{vt3}, vcc')
        if ag is not None:
            a(f'v_mov_b32 v{vt3}, {ag}')
            a(f'v_cndmask_b32 v{aug}, v{aug}, v{vt3}, vcc')
    a(f'v_mul_u32_u24 v{vt1}, 203, v{vt1}')
    a(f'v_add_lshl_u32 v{vt2}, v{vt2}, v{vt1}, 10')
    a(f'v_add_lshl_u32 v{aug}, v{aug}, v{vt1}, 10')
    a(f'v_and_b32 v{vt0}, 15, v{vLANE}')
    a(f'v_add_u32 v{vt0}, s{sD}, v{vt0}')
    a(f'v_lshl_add_u32 v{dst}, v{vt0}, 4, v{vt2}')
    a(f'v_add_u32 v{dst}, {W3R:#x}, v{dst}')
    a(f'v_lshl_add_u32 v{aug}, v{vt0}, 2, v{aug}')
    a(f's_lshl_b32 s{sB}, s{sB}, 7')
    a(f's_add_u32 s{sB}, s{sB}, {W3R}')
    a(f'v_add_u32 v{aug}, s{sB}, v{aug}')


def setup_colsT(r):
    col, dst, aug = UC + 3 * r, UC + 3 * r + 1, UC + 3 * r + 2
    a(f'v_lshl_add_u32 v{vt0}, v{vHI}, 5, v{vSIG}')
    a(f'v_lshl_add_u32 v{col}, v{vt0}, 1, s{sG}')
    a(f'v_lshlrev_b32 v{dst}, 10, v{vHI}')
    a(f'v_lshl_add_u32 v{dst}, v{vRHO}, 4, v{dst}')
    a(f'v_mov_b32 v{aug}, {OOB:#x}')


def setup_wd(r, su):
    dst = UC + 3 * r + 1
    div7(sA, sB, su)
    a(f's_lshl_b32 s{sA}, s{sA}, 2')
    a(f's_add_u32 s{sA}, s{sA}, s{sW}')
    a(f's_mul_i32 s{sC}, s{sA}, {16*896}')
    a(f's_lshl_b32 s{sD}, s{sB}, 7')
    a(f's_add_u32 s{sC}, s{sC}, s{sD}')
    a(f's_add_u32 s{sD}, s{sC}, {8*896}')
    a(f'v_mul_u32_u24 v{vt0}, 896, v{vR8}')
    a(f'v_add_u32 v{vt0}, v{vt0}, v{vC8}')
    unit_dma(r, S_WD, vt0, sC, sD)
    setup_colsT(r)
    div7(sC, sD, sA)
    a(f's_mul_i32 s{sB}, s{sB}, {WDS}')
    a(f's_lshr_b32 s{sE}, s{sC}, 2')
    a(f's_mul_i32 s{sE}, s{sE}, 57344')
    a(f's_add_u32 s{sB}, s{sB}, s{sE}')
    a(f's_lshl_b32 s{sD}, s{sD}, 2')
    a(f's_and_b32 s{sC}, s{sC}, 3')
    a(f's_add_u32 s{sD}, s{sD}, s{sC}')
    a(f's_lshl_b32 s{sD}, s{sD}, 11')
    a(f's_add_u32 s{sB}, s{sB}, s{sD}')
    a(f's_add_u32 s{sB}, s{sB}, {WDR}')
    a(f'v_add_u32 v{dst}, s{sB}, v{dst}')


def setup_wo(r, su):
    dst = UC + 3 * r + 1
    div7(sA, sB, su)
    a(f's_lshl_b32 s{sA}, s{sA}, 2')
    a(f's_add_u32 s{sA}, s{sA}, s{sW}')
    a(f's_lshr_b32 s{sC}, s{sA}, 1')
    a(f's_mul_i32 s{sC}, s{sC}, {28*896}')
    a(f's_lshl_b32 s{sD}, s{sB}, 7')
    a(f's_add_u32 s{sC}, s{sC}, s{sD}')
    a(f's_and_b32 s{sD}, s{sA}, 1')
    a(f's_cselect_b32 s{sD}, {16*896}, 0')
    a(f's_cselect_b32 s{sE}, {14*896}, 0')
    a(f's_add_u32 s{sD}, s{sD}, s{sC}')
    a(f's_add_u32 s{sE}, s{sE}, s{sC}')
    a(f's_add_u32 s{sE}, s{sE}, {8*896}')
    a(f'v_mul_u32_u24 v{vt0}, 896, v{vR8}')
    a(f'v_add_u32 v{vt0}, v{vt0}, v{vC8}')
    unit_dma(r, S_WO, vt0, sD, sE)
    setup_colsT(r)
    a(f's_lshl_b32 s{sB}, s{sB}, 16')
    a(f's_lshl_b32 s{sC}, s{sA}, 11')
    a(f's_add_u32 s{sB}, s{sB}, s{sC}')
    a(f's_add_u32 s{sB}, s{sB}, {WOR}')
    a(f'v_add_u32 v{dst}, s{sB}, v{dst}')


def setup_none(r):
    col, dst, aug = UC + 3 * r, UC + 3 * r + 1, UC + 3 * r + 2
    a(f'v_mov_b32 v{col}, 0')
    a(f'v_mov_b32 v{dst}, {OOB:#x}')
    a(f'v_mov_b32 v{aug}, {OOB:#x}')


def rounds(tag):
    a('s_cmp_ge_u32 s2, 168')
    a(f's_cbranch_scc1 L_r0b{tag}')
    with cond():
        run_setup(setup_w1, 0, 2)
    a(f's_branch L_r0e{tag}')
    a.label(f'L_r0b{tag}')
    a('s_cmp_ge_u32 s2, 224')
    a(f's_cbranch_scc1 L_r0c{tag}')
    with cond():
        a(f's_sub_u32 s{sU}, s2, 168')
        run_setup(setup_wo, 0, sU)
    a(f's_branch L_r0e{tag}')
    a.label(f'L_r0c{tag}')
    with cond():
        a(f's_sub_u32 s{sU}, s2, 224')
        run_setup(setup_wd, 0, sU)
    a.label(f'L_r0e{tag}')
    run_setup(setup_w3, 1, 2, S_T0)
    a('s_cmp_ge_u32 s2, 136')
    a(f's_cbranch_scc1 L_r2b{tag}')
    with cond():
        a(f's_add_u32 s{sU}, s2, 256')
        run_setup(setup_w3, 2, sU, S_T1)
    a(f's_branch L_r2e{tag}')
    a.label(f'L_r2b{tag}')
    with cond():
        a(f's_sub_u32 s{sU}, s2, 104')
        run_setup(setup_wd, 2, sU)
    a.label(f'L_r2e{tag}')
    a('s_cmp_ge_u32 s2, 212')
    a(f's_cbranch_scc1 L_r3b{tag}')
    if PASS['p'] == 'dst':
        setup_none(3)
    a(f's_branch L_r3e{tag}')
    a.label(f'L_r3b{tag}')
    with cond():
        a(f's_sub_u32 s{sU}, s2, 60')
        run_setup(setup_wd, 3, sU)
    a.label(f'L_r3e{tag}')


def init_phase():
    Z = 216
    vGO = 215 + 9
    a(f's_lshl_b32 s{sA}, s{sW}, 3')
    a(f's_add_u32 s{sB}, s{sA}, s2')
    a(f's_mov_b32 s{sZW}, s{sB}')
    a(f's_cmp_ge_u32 s{sZW}, 8')
    a('s_cbranch_scc1 L_z1')
    with cond():
        a(f's_lshl_b32 s{sA}, s2, 11')
        a(f'buffer_store_dwordx4 {vr(Z,4)}, v{vL16}, {sr(S_WS,4)}, s{sA} offen sc1')
        a(f'buffer_store_dwordx4 {vr(Z,4)}, v{vL16}, {sr(S_WS,4)}, s{sA} offen offset:1024 sc1')
    a.label('L_z1')
    PASS['p'] = 'src'
    rounds('s')
    um = mark()
    a(f's_mul_i32 s{sI}, s{sTILE1}, 28672')
    a(f's_mul_i32 s{sH}, s{sW}, {28*K}')
    a(f's_add_u32 s{sH}, s{sH}, {LXS}')
    xq = []
    for g in range(4):
        for c in range(7):
            it = [f's_add_u32 m0, s{sH}, {(4*c+g)*K - c*128}',
                  f'buffer_load_dwordx4 v{vXS + (g & 1)}, {sr(S_X,4)}, s{sI} offen offset:{c*128} {XNT2} lds']
            if c == 6:
                it.append(f's_add_u32 s{sI}, s{sI}, {8*896}')
            xq.append(it)
    a(f's_mul_i32 s{sA}, s{sHC}, {14*128}')
    a(f's_add_u32 s{sA}, s{sA}, s{sI}')
    a(f'v_min_u32 v{vt0}, 13, v{vLANE}')
    a(f'v_lshlrev_b32 v{vt0}, 7, v{vt0}')
    a(f'buffer_load_dword v17, v{vt0}, {sr(S_X,4)}, s{sA} offen {XNT}')
    for _ in range(X0N):
        emit(xq.pop(0))
    stamp('issued')
    a(f's_cmp_ge_u32 s{sZW}, 8')
    a('s_cbranch_scc1 L_z2')
    with cond():
        a(f's_waitcnt vmcnt({7+X0N})')
        a(f's_lshl_b32 s{sA}, s2, 5')
        emit(flag_store(S_DBG, f's{sA}', sc='sc1'))
    a.label('L_z2')
    PASS['p'] = 'dst'
    rounds('d')
    a(f's_lshl_b32 s{sA}, s{sW}, 8')
    a(f'v_add_u32 v{vt1}, s{sA}, v{vL4}')
    a(f'v_and_b32 v{vt3}, 7, v{vLANE}')
    a(f'v_lshlrev_b32 v{vt3}, 5, v{vt3}')
    a(f's_lshl_b32 s{sA}, s2, 10')
    a(f's_add_u32 s{sB}, s{sW}, 1')
    a(f's_lshl_b32 s{sB}, s{sB}, 24')
    a(f's_add_u32 s{sA}, s{sA}, s{sB}')
    a(f's_sub_u32 s{sB}, s{sA}, {2*LYB - ST1}')
    a(f's_cmp_eq_u32 s{sW}, 2')
    a(f's_cselect_b32 s{sA}, s{sB}, s{sA}')
    a(f's_cmp_ge_u32 s{sW}, 3')
    a(f's_cselect_b32 s{sA}, {OOB:#x}, s{sA}')
    a.wait(um, force=True)
    stamp('ldone')
    a(f'buffer_store_dwordx4 {vr(Z,4)}, v{vL16}, {sr(S_WS,4)}, s{sA} offen sc1')
    rtok = {}

    def gat(r, half):
        for e in range(8):
            rtok[r, half] = a(f'ds_read_u16 v{UD+16*r+8*half+e}, v{UC+3*r} offset:{r*2048+(8*half+e)*128}')
    gat(0, 0)
    for r in range(4):
        R = UD + 16 * r
        dst = UC + 3 * r + 1
        for half in range(2):
            nxt = 2 * r + half + 1
            if nxt < 8:
                gat(nxt // 2, nxt % 2)
            a.wait(rtok[r, half])
            for m in range(4):
                a(f'v_lshl_or_b32 v{R+8*half+m}, v{R+8*half+2*m+1}, 16, v{R+8*half+2*m}')
            a(f'buffer_store_dwordx4 {vr(R+8*half,4)}, v{dst}, {sr(S_WS,4)}, 0 offen offset:{512*half} sc1')
            for _ in range(XI):
                emit(xq.pop(0))
    for r in range(3):
        R = UD + 16 * r
        a(f'v_mov_b32 v{R+4}, 0')
        for m in range(4):
            a(f'v_dot2c_f32_bf16 v{R+4}, s{sONES}, v{R+m}')
            a(f'v_dot2c_f32_bf16 v{R+4}, s{sONES}, v{R+8+m}')
        a(f'ds_write_b32 v{vt1}, v{R+4} offset:{r*1024}')
    a(f'buffer_load_dword v{vGO}, v{vt3}, {sr(S_DBG,4)}, 0 offen sc1')
    stamp('packed') if 'initprof' in OPT else None
    a.wait_lg0()
    a.barrier()
    a(f's_cmp_eq_u32 s{sW}, 3')
    a('s_cbranch_scc1 L_aug_e')
    with cond():
        R = 220
        a(f'v_add_u32 v{vt0}, s{sW1K}, v{vL4}')
        a(f'ds_read2st64_b32 {vr(R,2)}, v{vt0} offset0:0 offset1:1')
        t = a(f'ds_read2st64_b32 {vr(R+2,2)}, v{vt0} offset0:2 offset1:3')
        a(f's_cmp_eq_u32 s{sW}, 1')
        a('s_cselect_b64 vcc, -1, 0')
        a(f'v_cndmask_b32 v{vt2}, v{UC+2}, v{UC+5}, vcc')
        a(f's_cmp_eq_u32 s{sW}, 2')
        a('s_cselect_b64 vcc, -1, 0')
        a(f'v_cndmask_b32 v{vt2}, v{vt2}, v{UC+8}, vcc')
        a(f'v_bfe_u32 v{vt0}, v{vt2}, 7, 3')
        a(f'v_cmp_eq_u32 vcc, 6, v{vt0}')
        a(f'v_mov_b32 v{vt1}, {OOB:#x}')
        a(f'v_cndmask_b32 v{vt0}, v{vt1}, v{vt2}, vcc')
        a(f'buffer_store_dword v{Z}, v{vt0}, {sr(S_WS,4)}, 0 offen offset:128 sc1')
        a.wait(t)
        a(f'v_add_f32 v{R}, v{R}, v{R+1}')
        a(f'v_add_f32 v{R+2}, v{R+2}, v{R+3}')
        a(f'v_add_f32 v{R}, v{R}, v{R+2}')
        a(f'v_cvt_pk_bf16_f32 v{R+1}, v{R}, v{R}')
        a(f'v_and_b32 v{R+1}, 0xffff0000, v{R+1}')
        a(f'v_sub_f32 v{R+1}, v{R}, v{R+1}')
        a(f'v_cvt_pk_bf16_f32 v{R+1}, v{R}, v{R+1}')
        a(f'buffer_store_dword v{R+1}, v{vt2}, {sr(S_WS,4)}, 0 offen sc1')
    a.label('L_aug_e')
    sm = mark()
    for _ in range(min(XA, len(xq))):
        emit(xq.pop(0))
    a.wait(sm, force=True)
    stamp('acked') if 'initprof' in OPT else None
    a.barrier()
    a(f's_cmp_lg_u32 s{sW}, 3')
    a('s_cbranch_scc1 L_ib')
    with cond():
        a(f'v_cmp_ne_u32 vcc, 1, v{vGO}')
        a('s_cmp_eq_u64 vcc, 0')
        a('s_cbranch_scc1 L_go_ok')
        with cond():
            poll(S_DBG, vt3, 0, sleep=2)
        a.label('L_go_ok')
        a(f'v_lshlrev_b32 v{vt0}, 12, v{vLANE}')
        a(f'v_mov_b32 v{vt1}, s{sXID}')
        a(f's_lshl_b32 s{sA}, s2, 4')
        a('s_mov_b64 exec, 15')
        a(f'buffer_store_dword v{vt1}, v{vt0}, {sr(S_WS,4)}, s{sA} offen sc1')
        a('s_mov_b64 exec, -1')
    a.label('L_ib')
    stamp('ibpub')
    while xq:
        emit(xq.pop(0))
    a(f's_mul_i32 s{sA}, s{sOWN}, 28672')
    a(f's_lshl_b32 s{sB}, s{sOFT}, 6')
    a(f's_add_u32 s{sA}, s{sA}, s{sB}')
    a(f'buffer_load_dwordx4 {vr(vXRES,4)}, v{vROW}, {sr(S_X,4)}, s{sA} offen')
    a(f'buffer_load_dwordx4 {vr(vXRES+4,4)}, v{vROW}, {sr(S_X,4)}, s{sA} offen offset:32')
    late_consts()
    a(f'v_lshrrev_b32 v{vt0}, 3, v{vRHO}')
    a(f'v_lshlrev_b32 v{vt0}, 10, v{vt0}')
    a(f'v_and_b32 v{vt1}, 7, v{vRHO}')
    a(f'v_lshl_add_u32 v{vt0}, v{vt1}, 7, v{vt0}')
    a(f'v_add_u32 v{vt0}, s{sH}, v{vt0}')
    a(f'v_bfe_u32 v{vt1}, v{vRHO}, 1, 3')
    a(f'v_xor_b32 v{vt1}, v{vt1}, v{vHI}')
    for q in range(4):
        a(f'v_xor_b32 v{220+q}, {2*q}, v{vt1}')
        a(f'v_lshl_add_u32 v{220+q}, v{220+q}, 4, v{vt0}')
    a(f'v_min_u32 v{vt0}, 20, v{vLANE}')
    a(f'v_mul_u32_u24 v{vt1}, 37, v{vt0}')
    a(f'v_lshrrev_b32 v{vt1}, 8, v{vt1}')
    a(f'v_mad_u32_u24 v{vt0}, v{vt1}, 49, v{vt0}')
    a(f's_lshr_b32 s{sA}, s{sHC}, 1')
    a(f's_mul_i32 s{sA}, s{sA}, 7')
    a(f'v_add_lshl_u32 v{vt2}, v{vt0}, s{sA}, 4')
    a.wait_vm_n(2)
    stamp('xland') if 'initprof' in OPT else None
    for ks in range(28):
        a(f'ds_read_b128 {vr(16+4*ks,4)}, v{220+(ks&3)} offset:{(ks>>2)*4096}')
    a(f'v_mov_b32 v240, v{vt2}')
    own_consts()
    p1_setup(True)
    dma_setup(205, sW1SRC, 0, 0)
    a.wait_lg0()
    a.barrier()
    poll(S_WS, 240, f's{sREP}', nonzero=True)
    stamp('w1rdy')


def x0_stats(items):
    S0, S1, Q0, Q1 = 216, 217, 218, 219
    for _ in range(4):
        emit(items.pop(0))
    for v in (S0, S1, Q0, Q1):
        a(f'v_mov_b32 v{v}, 0')
    for i in range(0, 112, 2):
        if items and i % 6 == 0:
            emit(items.pop(0))
        a(f'v_dot2c_f32_bf16 v{S0}, s{sONES}, v{16+i}')
        a(f'v_dot2c_f32_bf16 v{Q0}, v{16+i}, v{16+i}')
        a(f'v_dot2c_f32_bf16 v{S1}, s{sONES}, v{17+i}')
        a(f'v_dot2c_f32_bf16 v{Q1}, v{17+i}, v{17+i}')
    a(f'v_add_f32 v{S0}, v{S0}, v{S1}')
    a(f'v_add_f32 v{S1}, v{Q0}, v{Q1}')
    emit(stats_finish(P1_XAUG))


vRSTD, vC2, vISTD = 248, 249, 250
P1_XAUG = 200


def stats_finish(xaug, SB=216):
    S, Q, t0, t1 = SB, SB + 1, SB + 2, SB + 3
    o = [f'v_mov_b32 v{t0}, v{S}',
         f'v_mov_b32 v{t1}, v{Q}',
         f'v_permlane32_swap_b32 v{S}, v{t0}',
         f'v_permlane32_swap_b32 v{Q}, v{t1}',
         f'v_add_f32 v{S}, v{S}, v{t0}',
         f'v_add_f32 v{Q}, v{Q}, v{t1}',
         f'v_mul_f32 v{S}, {INV448:#x}, v{S}',
         f'v_mul_f32 v{Q}, {INV448:#x}, v{Q}',
         f'v_fma_f32 v{Q}, -v{S}, v{S}, v{Q}',
         f'v_max_f32 v{Q}, 0, v{Q}',
         f'v_add_f32 v{Q}, {EPS5:#x}, v{Q}',
         f'v_rsq_f32 v{vRSTD}, v{Q}',
         f'v_cvt_pk_bf16_f32 v{xaug}, -v{S}, -v{S}',
         f'v_mul_f32 v{vISTD}, v{Q}, v{vRSTD}',
         f'v_mul_f32 v{vC2}, {LOG2E:#x}, v{vRSTD}']
    o += [f'v_mov_b32 v{xaug+i}, v{xaug}' for i in range(1, 4)]
    return o


def stats_sum(SB=216):
    o = []
    for i in range(1, 7):
        o.append(f'v_add_f32 v{SB}, v{SB}, v{SB+2*i}')
        o.append(f'v_add_f32 v{SB+1}, v{SB+1}, v{SB+2*i+1}')
    return o


def x_prep(fl, xb, stb):
    a(f'v_and_b32 v240, 15, v{vLANE}')
    a(f'v_min_u32 v240, 13, v240')
    a(f'v_lshlrev_b32 v240, 5, v240')
    a(f's_lshl_b32 s{sC}, s{sTILE1}, 9')
    a(f's_add_u32 s{sC}, s{sC}, {fl}')
    a(f's_lshl_b32 s{sD}, s{sTILE1}, 12')
    a(f's_add_u32 s{sD}, s{sD}, {stb}')
    a(f's_mul_i32 s{sE}, s{sTILE1}, {28*K}')
    a(f's_add_u32 s{sE}, s{sE}, {xb}')


def x_load(ks):
    if ks % 4 == 0 and ks:
        a(f's_add_u32 s{sE}, s{sE}, 4096')
    return a(f'buffer_load_dwordx4 {vr(16+4*ks,4)}, v{vL16}, {sr(S_DT,4)}, s{sE} offen offset:{(ks%4)*K} sc1')


def st_load(i, SB=216):
    return a(f'buffer_load_dwordx4 {vr(SB+4*i,4)}, v{vL16}, {sr(S_DT,4)}, s{sD} offen offset:{i*K} sc1')


def st_loads(SB=216):
    t = None
    for i in range(7):
        t = a(f'buffer_load_dwordx2 {vr(SB+2*i,2)}, v241, {sr(S_DT,4)}, s{sD} offen offset:{i*256} sc1')
    return t


def read_aug(dst, addr, tmp):
    a(f'v_add_u32 v{tmp}, {addr:#x}, v{vAUG}')
    a(f'ds_read2_b32 {vr(dst,2)}, v{tmp} offset0:0 offset1:32')
    return a(f'ds_read2_b32 {vr(dst+2,2)}, v{tmp} offset0:64 offset1:96')


def read_frag(dst, addr):
    v, off = lds_addr(addr)
    return a(f'ds_read_b128 {vr(dst,4)}, v{v} offset:{off}')


def wfrag_items(regfn, ssrc, lo, hi, va, vb, stmp):
    items = []
    for i, n in enumerate(range(lo, hi)):
        for b in range(2):
            it = []
            if i % 2 == 0 and b == 0:
                it.append(f's_add_u32 s{stmp}, s{ssrc}, {n*2048}')
            it.append(f'buffer_load_dwordx4 {regfn(n,b)}, v{(va,vb)[b]}, {sr(S_WS,4)}, s{stmp} offen offset:{(i%2)*2048} {WSC}')
            items.append(it)
    return items


def slot_addr_setup(va, vb):
    a(f's_and_b32 s{sA}, s{sW1K}, 0x400')
    a(f'v_add_u32 v{va}, s{sA}, v{vL16}')
    a(f'v_xor_b32 v{vb}, 0x400, v{va}')


def cost(x):
    op = x.split()[0]
    return 2 if op.startswith(('v_exp', 'v_rcp', 'v_rsq')) else 1


def drip(q, budget):
    while q and budget >= cost(q[0]):
        x = q.pop(0)
        budget -= cost(x)
        a(x)


CAP = int(OPT.get('cap', 7))
G3 = int(OPT.get('g3', 1))
F1AT = int(OPT.get('f1at', 22))
PQSPLIT = int(OPT.get('pqsplit', 1))
WDP3 = int(OPT.get('wdp3', 36))
WDP1 = int(OPT.get('wdp1', 8))
PUBD2 = int(OPT.get('pubd2', 22))
PRET = int(OPT.get('pret', 1))
PUBD = int(OPT.get('pubd', 20))
S0T = int(OPT.get('s0t', 2))


def shadow(mem, vq, cap=None, pop=None):
    n0 = len(a.ins)
    for f in mem:
        if f is None:
            continue
        if callable(f):
            f()
        else:
            emit(f)
    budget = (CAP if cap is None else cap) - (len(a.ins) - n0)
    while vq and budget >= cost(vq[0]):
        budget -= cost(vq[0])
        if pop:
            pop()
        else:
            a(vq.pop(0))


def split_item(it):
    if it is None:
        return None, None
    return it[:-1], it[-1:]


ACK, ACV, ACQ = 128, 144, 160
P1WR = 176
P1RR2 = 216
p1D1, p1SA, p1SB = 204, 206, 207
p1RSW, p1RSR, p1OH = 208, 209, 210
LMODE = LRS + 1008


CARRY = []


def FAST():
    return MODE['sfx'] != '_s'


def p1_setup(first):
    if not first:
        x_prep(F0 + LYB, *((X1, ST1) if FAST() else (X0 + LYB, ST0 + LYB)))
    slot_addr_setup(p1SA, p1SB)
    a(f'v_and_b32 v{p1OH}, 27, v{vLANE}')
    a(f'v_cmp_eq_u32 vcc, 26, v{p1OH}')
    a(f'v_cndmask_b32 v{p1OH}, 0, 1.0, vcc')
    a(f'v_mov_b32 v{p1OH+1}, v{p1OH}')
    a(f's_add_u32 s{sA}, s{sW4K}, {LKVS}')
    a(f'v_and_b32 v{p1RSW}, 31, v{vLANE}')
    a(f'v_lshl_add_u32 v{p1RSW}, v{p1RSW}, 2, s{sA}')
    a(f'v_lshrrev_b32 v{p1RSR}, 5, v{vLANE}')
    a(f'v_lshl_add_u32 v{p1RSR}, v{p1RSR}, 4, s{sA}')
    dma_setup(p1D1, sW3SRC, 0, LALPHA)


def phase1_kv(first):
    WR, XAUG, RR, RR2, KVD = P1WR, P1_XAUG, ACQ, P1RR2, 232
    vRSW, vRSR, vOH = p1RSW, p1RSR, p1OH
    PRE = XPRE
    xt, vq, st = {}, [], {}
    if first:
        its = dma_items(205, 0, 88, 2)
        x0_stats(its)
        assert not its
        w1m = mark()
        stamp('stats')
    else:
        if B1E:
            a('s_waitcnt vmcnt(1)')
            a.barrier()
    bg = ([] if first else code_touch(205, 212)) + dma_items(p1D1, LALPHA, 56, 2)
    rt = {}
    stage = (0, 8, 16) if first else ()

    def ib_check():
        a.wait(st['ib'])
        check_or_poll(254, S_WS, vL16, f's{sH}', nonzero=True)
        a(f's_and_b32 s{sA}, s2, 7')
        a(f'v_and_b32 v252, 7, v{vLANE}')
        a(f'v_cmp_eq_u32 {sr(sC,2)}, s{sA}, v252')
        a(f'v_cmp_ne_u32 vcc, s{sXID}, v254')
        a(f's_and_b64 vcc, vcc, {sr(sC,2)}')
        a(f's_cselect_b32 s{sZW}, 1, 0')

    def rd(ks, tl):
        if ks > 28:
            return
        if ks in stage and tl == 0:
            need_ops = 22 if ks == 16 else 2 * ((3 * (ks + 8) + 7) // 8)
            a.wait(('vm', w1m[1] - 22 + need_ops))
            if ks == 16:
                ib_check()
            a.barrier()
        d = WR + 8 * (ks % 3) + 4 * tl
        addr = (3 * ks + tl) * K
        rt[ks] = read_frag(d, addr) if ks < 28 else read_aug(d, addr, 252 + tl)
    if first or B1E:
        for ks in range(2):
            rd(ks, 0); rd(ks, 1)
    if not first:
        poll(S_LY, 240, f's{sC}')
        stamp('p1poll')
        for ks in range(4):
            xt[ks] = x_load(ks)
        a(f's_add_u32 s{S_LY}, s{S_LY}, {LYB}')
        a(f's_addc_u32 s{S_LY+1}, s{S_LY+1}, 0')
        if not B1E:
            a.barrier()
            for ks in range(2):
                rd(ks, 0); rd(ks, 1)
        for ks in range(4, PRE):
            xt[ks] = x_load(ks)
    rr = {}

    def stl(i):
        st['s'] = st_load(i)

    def xl(ks):
        xt[ks] = x_load(ks)

    def ibl():
        a(f's_add_u32 s{sH}, s{sREP}, s{sW1K}')
        st['ib'] = a(f'buffer_load_dword v254, v{vL16}, {sr(S_WS,4)}, s{sH} offen sc1')

    def rs_write():
        a(f'ds_write2_b32 v{vRSW}, v{vRSTD}, v{vC2} offset0:0 offset1:32')

    def rs_read(j):
        a(f'ds_read_b128 {vr(RR+4*j,4)}, v{vRSR} offset:{32*j}')
        rr[0] = a(f'ds_read_b128 {vr(RR2+4*j,4)}, v{vRSR} offset:{128+32*j}')
    for ks in range(29):
        if not first and ks == 15:
            a.wait(st['s'])
            vq += stats_sum() + stats_finish(XAUG)
        stamp(f'k{ks}', fine=True) if ks in (1, 8, 15, 21) else None
        a.wait(rt[ks], xt.get(ks))
        X = vr(16 + 4 * ks, 4) if ks < 28 else vr(XAUG, 4)
        c = (lambda r: '0' if ks == 0 else vr(r, 16))
        if not first and ks + PRE < 28:
            pre, main = None, (lambda k_=ks + PRE: xl(k_))
        elif first and ks == 5:
            pre, main = None, ibl
        else:
            pre, main = split_item(bg.pop(0) if bg and (ks >= 15 if first else LBG) else None)
        a(f'{MF} {vr(ACK,16)}, {X}, {vr(WR+8*(ks%3),4)}, {c(ACK)}')
        shadow([pre, lambda: rd(ks + 2, 0), main], vq)
        a(f'{MF} {vr(ACV,16)}, {X}, {vr(WR+8*(ks%3)+4,4)}, {c(ACV)}')
        extra = None
        if not first and ks < 8 and ks % 2 == 0:
            extra = (lambda i=ks // 2: stl(i))
        if ks == 23:
            assert not vq
            extra = rs_write
        if 24 <= ks <= 27:
            extra = (lambda j=ks - 24: rs_read(j))
        shadow([lambda: rd(ks + 2, 1), extra], vq)
    stamp('p1kv')
    qt = {}

    def rq(ks):
        if ks > 28:
            return
        d = WR + 4 * (ks % 6)
        addr = (3 * ks + 2) * K
        qt[ks] = read_frag(d, addr) if ks < 28 else read_aug(d, addr, 252)
    for ks in range(4):
        rq(ks)
    KS = LRS
    a(f's_lshl_b32 s{sB}, s{sHC}, 12')
    a(f's_add_u32 s{sB}, s{sB}, s{sW1K}')
    a.wait(rr[0])
    for r in range(0, 16, 2):
        a(f'v_pk_mul_f32 {vr(ACK+r,2)}, {vr(ACK+r,2)}, {vr(RR2+r,2)}')
    def bgp():
        if bg and EPD:
            emit(bg.pop(0))
    for r in range(16):
        a(f'v_exp_f32_e64 v{RR2+r}, v{ACK+r} clamp')
        a(f'v_max_f32 v{ACK+r}, 0, v{ACK+r}')
        if r % 5 == 0:
            bgp()
    for r in range(0, 16, 2):
        a(f'v_pk_fma_f32 {vr(ACV+r,2)}, {vr(ACV+r,2)}, {vr(RR+r,2)}, {vr(vOH,2)}')
        a(f'v_pk_fma_f32 {vr(RR2+r,2)}, {vr(ACK+r,2)}, {sr(sLN2,2)}, {vr(RR2+r,2)}')
    bgp()
    for r in range(0, 16, 2):
        a(f'v_pk_add_f32 {vr(RR2+r,2)}, {vr(RR2+r,2)}, {sr(sEPS6,2)}')
        a(f'v_cvt_pk_bf16_f32 v{ACV+r//2}, v{ACV+r}, v{ACV+r+1}')
    bgp()
    for m in range(4):
        a(f'v_cvt_pk_bf16_f32 v{ACK+m}, v{RR2+2*m}, v{RR2+2*m+1}')
    a(f'{MF} {vr(KVD,16)}, {vr(ACK,4)}, {vr(ACV,4)}, 0')
    for m in range(4, 8):
        a(f'v_cvt_pk_bf16_f32 v{ACK+m}, v{RR2+2*m}, v{RR2+2*m+1}')
    a(f's_add_u32 s{sA}, s{sW4K}, {LKVS}')
    a(f'v_add_u32 v{vRSW}, s{sA}, v{vL16}')
    a(f'{MF} {vr(KVD,16)}, {vr(ACK+4,4)}, {vr(ACV+4,4)}, {vr(KVD,16)}')
    a(f's_add_u32 s{sA}, s{sW1K}, {LKVS}')
    a(f'v_add_u32 v{vRSR}, s{sA}, v{vL4}')
    if first:
        a(f's_lshl_b32 s{sA}, s{sW}, 2')
        a(f's_add_u32 s{sA}, s{sA}, {LRS}')
        a(f'v_mov_b32 v252, s{sA}')
        a(f'v_mov_b32 v253, s{sZW}')
        a('ds_write_b32 v252, v253')
        a(f'v_mov_b32 v252, {LRS}')

    def qstep(ks, mem=(), vq_=None):
        a.wait(qt[ks])
        X = vr(16 + 4 * ks, 4) if ks < 28 else vr(XAUG, 4)
        a(f'{MF} {vr(ACQ,16)}, {vr(WR+4*(ks%6),4)}, {X}, {"0" if ks == 0 else vr(ACQ,16)}')
        shadow([lambda: rq(ks + 4)] + list(mem), vq_ if vq_ is not None else [])
    qstep(0, [bgp])
    for q in range(4):
        kw = a(f'ds_write_b128 v{vRSW}, {vr(KVD+4*q,4)} offset:{q*K}')
    qstep(1, [bgp])
    a.wait(kw)
    a.barrier()
    RED = RR2
    for wp in range(4):
        a(f'ds_read2st64_b32 {vr(RED+4*wp,2)}, v{vRSR} offset0:{16*wp} offset1:{16*wp+1}')
        t = a(f'ds_read2st64_b32 {vr(RED+4*wp+2,2)}, v{vRSR} offset0:{16*wp+2} offset1:{16*wp+3}')
    if first:
        mt = a(f'ds_read_b128 {vr(KVD,4)}, v252')
    qstep(2)
    a.wait(t)
    for i in range(4):
        a(f'v_add_f32 v{RED+i}, v{RED+i}, v{RED+4+i}')
        a(f'v_add_f32 v{RED+8+i}, v{RED+8+i}, v{RED+12+i}')
    for i in range(4):
        a(f'v_add_f32 v{RED+i}, v{RED+i}, v{RED+8+i}')
    for i in range(4):
        at = a(f'buffer_atomic_add_f32 v{RED+i}, v{vL4}, {sr(S_LY,4)}, s{sB} offen offset:{i*256}')
    stamp('p1atom')
    if first:
        a.wait(mt)
        a(f'v_or_b32 v{KVD}, v{KVD}, v{KVD+1}')
        a(f'v_or3_b32 v{KVD}, v{KVD}, v{KVD+2}, v{KVD+3}')
        a(f'v_readfirstlane_b32 s{sA}, v{KVD}')
        a(f's_cmp_lg_u32 s{sA}, 0')
        a('s_cbranch_scc1 L_slow')
    return dict(qstep=qstep, at=at, qt=qt, bg=bg, state=(a.vm_issued, a.vm_done, a.lg_issued, a.lg_done), qt0=dict(qt))


def phase1_q(ctx, first):
    qstep, at = ctx['qstep'], ctx['at']
    vRSW, vRSR, RR2 = p1RSW, p1RSR, P1RR2
    wo = wfrag_items(lambda n, b: vr(16 + 8 * n + 4 * b, 4), sWOSRC, 0, 8, p1SA, p1SB, sF)
    wo = list(ctx['bg']) + wo
    if first and FAST():
        wo = [[f's_cmp_ge_u32 s{sJ}, 28', f's_cselect_b32 s{sI}, {OOB:#x}, s{sOX}', f's_add_u32 s{sI}, s{sI}, {X1}',
               f'buffer_store_dwordx4 {vr(vXRES,4)}, v{vL16}, {sr(S_DT,4)}, s{sI} offen sc1'],
              [f'buffer_store_dwordx4 {vr(vXRES+4,4)}, v{vL16}, {sr(S_DT,4)}, s{sI} offen offset:1024 sc1']] + wo
    pqoff = PQ if (FAST() or first) else PQ + LYB
    vq = [f's_lshl_b32 s{sG}, s{sHC}, 8',
          f's_lshl_b32 s{sB}, s{sRBG}, 4',
          f's_add_u32 s{sG}, s{sG}, s{sB}',
          f's_add_u32 s{sG}, s{sG}, {F1}',
          f's_cmp_lg_u32 s{sW}, 3\ns_cselect_b32 s{sG}, {OOB:#x}, s{sG}',
          f's_lshl_b32 s{sA}, s{sTILE1}, 15',
          f's_lshl_b32 s{sB}, s{sHC}, 11',
          f's_add_u32 s{sA}, s{sA}, s{sB}',
          f's_add_u32 s{sA}, s{sA}, {pqoff}',
          f's_lshl_b32 s{sU}, s{sTILE1}, 9',
          f's_lshl_b32 s{sB}, s{sHC}, 5',
          f's_add_u32 s{sU}, s{sU}, s{sB}',
          f's_add_u32 s{sU}, s{sU}, {F1Q}',
          f'v_lshlrev_b32 v{vRSW}, 12, v{vLANE}',
          f'v_mov_b32 v{vRSR}, 1',
          f'v_mov_b32 v{vC2+2}, v{vC2}',
          f'v_mov_b32 v{ACK+7}, 0']
    for ks in range(3, 29):
        qstep(ks, [wo.pop(0)] if ks % 2 == 1 else [], vq)
        if ks == F1AT:
            a.wait(at)
            a.barrier()
            a('s_mov_b64 exec, 15')
            a(f'buffer_store_dword v{vRSR}, v{vRSW}, {sr(S_LY,4)}, s{sG} offen sc1')
            a('s_mov_b64 exec, -1')
            stamp('p1pub')
    a('s_nop 4')
    stamp('p1q')
    T = RR2
    for r in range(0, 14, 2):
        a(f'v_pk_mul_f32 {vr(ACQ+r,2)}, {vr(ACQ+r,2)}, {vr(vC2+1,2)} op_sel:[0,1] op_sel_hi:[1,1]')
    for r in range(14):
        a(f'v_exp_f32_e64 v{T+r}, v{ACQ+r} clamp')
        a(f'v_max_f32 v{ACQ+r}, 0, v{ACQ+r}')
    for r in range(0, 14, 2):
        a(f'v_pk_fma_f32 {vr(T+r,2)}, {vr(ACQ+r,2)}, {sr(sLN2,2)}, {vr(T+r,2)}')
    for r in range(0, 14, 2):
        a(f'v_pk_add_f32 {vr(T+r,2)}, {vr(T+r,2)}, {sr(sEPS6,2)}')
    for m in range(7):
        a(f'v_cvt_pk_bf16_f32 v{ACK+m}, v{T+2*m}, v{T+2*m+1}')
    sc = 'sc1' if first else LS()
    a(f'buffer_store_dwordx4 {vr(ACK,4)}, v{vL16}, {sr(S_DT,4)}, s{sA} offen {sc}')
    pst = a(f'buffer_store_dwordx4 {vr(ACK+4,4)}, v{vL16}, {sr(S_DT,4)}, s{sA} offen offset:1024 {sc}')
    if not FAST() and not first:
        a(f's_mov_b32 s{S_DT}, s{S_LY}')
        a(f's_mov_b32 s{S_DT+1}, s{S_LY+1}')
    if first:
        wo += wfrag_items(lambda n_, b: ar(8 * n_ + 4 * b, 4), sWDSRC, 0, WDP1 // 2, p1SA, p1SB, sI)
    for it in wo[:4]:
        emit(it)
    a.barrier()
    a.wait(pst)
    emit(flag_store(S_LY, f's{sU}'))
    if FAST() and CARRYON:
        CARRY[:] = wo[4:]
        print('carry', len(CARRY))
    else:
        for it in wo[4:]:
            emit(it)
    p2_setup()
    stamp('p1end')


ACC0, ACC1 = 208, 224
AAC2, AAC3 = 224, 240


def accs(s):
    return [vr(ACC0, 16), vr(ACC1, 16), ar(AAC2, 16), ar(AAC3, 16)][s]


def red_setup(base, RA):
    o = []
    for s in (1, 2, 3):
        o += [f's_xor_b32 s{sA}, s{sW}, {s}',
              f's_mul_i32 s{sA}, s{sA}, 12288',
              f's_add_u32 s{sA}, s{sA}, {base + (s-1)*4096}',
              f'v_add_u32 v{RA+s}, s{sA}, v{vL16}']
    o += [f's_mul_i32 s{sA}, s{sW}, 12288',
          f's_add_u32 s{sA}, s{sA}, {base}',
          f'v_add_u32 v{RA}, s{sA}, v{vL16}']
    return o


def red_write(s, RA):
    o = []
    for q in range(4):
        d = [None, vr(ACC1 + 4 * q, 4), ar(AAC2 + 4 * q, 4), ar(AAC3 + 4 * q, 4)][s]
        o.append(f'ds_write_b128 v{RA+s}, {d} offset:{q*K}')
    return o


sOX, sOS, sOF = 97, 98, 99


def own_consts():
    a(f's_mul_i32 s{sOX}, s{sOWN}, {28*K}')
    a(f's_lshl_b32 s{sB}, s{sOFT}, 11')
    a(f's_add_u32 s{sOX}, s{sOX}, s{sB}')
    a(f's_lshl_b32 s{sOS}, s{sOWN}, 12')
    a(f's_cmp_ge_u32 s{sOFT}, 7')
    a(f's_cselect_b32 s{sA}, 7, 0')
    a(f's_cselect_b32 s{sB}, 512, 0')
    a(f's_add_u32 s{sOS}, s{sOS}, s{sB}')
    a(f's_sub_u32 s{sA}, s{sOFT}, s{sA}')
    a(f's_lshr_b32 s{sB}, s{sA}, 1')
    a(f's_lshl_b32 s{sB}, s{sB}, 10')
    a(f's_add_u32 s{sOS}, s{sOS}, s{sB}')
    a(f's_and_b32 s{sA}, s{sA}, 1')
    a(f's_lshl_b32 s{sA}, s{sA}, 3')
    a(f's_add_u32 s{sOS}, s{sOS}, s{sA}')
    a(f's_lshl_b32 s{sOF}, s{sOWN}, 9')
    a(f's_lshl_b32 s{sB}, s{sOFT}, 5')
    a(f's_add_u32 s{sOF}, s{sOF}, s{sB}')


def res_unpack(RU):
    o = []
    for m in range(8):
        o.append(f'v_lshlrev_b32 v{RU+2*m}, 16, v{vXRES+m}')
        o.append(f'v_and_b32 v{RU+2*m+1}, 0xffff0000, v{vXRES+m}')
    return o


def red_finish(final, RB, RU, RA, nm, xb, stb, flb, sc, mid, pre=()):
    for it in pre:
        emit(it)
    a.wait_lg0()
    a.barrier()
    toks = []
    for i in range(12):
        toks.append(a(f'ds_read_b128 {vr(RB+4*i,4)}, v{RA} offset:{i*K}'))
    if final is not True:
        a(f's_add_u32 s{sA}, s{sOX}, {xb}')
        a(f's_add_u32 s{sB}, s{sOS}, {stb}')
        a(f's_add_u32 s{sZW}, s{sOF}, {flb}')
    for r in range(0, 16, 2):
        a(f'v_pk_add_f32 {vr(ACC0+r,2)}, {vr(ACC0+r,2)}, {vr(RU+r,2)}')
    S, Q, t0, t1, tl = RU, RU + 1, RU + 2, RU + 3, RU + 4
    if final is not True:
        a(f'v_mov_b32 v{S}, 0')
        a(f'v_mov_b32 v{Q}, 0')
    for s in range(3):
        a.wait(toks[4 * s + 3])
        for r in range(0, 16, 2):
            a(f'v_pk_add_f32 {vr(ACC0+r,2)}, {vr(ACC0+r,2)}, {vr(RB+16*s+r,2)}')
    for m in range(8):
        a(f'v_cvt_pk_bf16_f32 v{vXRES+m}, v{ACC0+2*m}, v{ACC0+2*m+1}')
    if final is True:
        final_store()
        return
    if final == 'dyn':
        a(f's_cmp_lg_u32 s{sL}, 0')
        a('s_cbranch_scc1 ' + LB_('L_final'))
    a(f'buffer_store_dwordx4 {vr(vXRES,4)}, v{vL16}, {sr(S_DT,4)}, s{sA} offen {sc}')
    a(f'buffer_store_dwordx4 {vr(vXRES+4,4)}, v{vL16}, {sr(S_DT,4)}, s{sA} offen offset:1024 {sc}')
    for m in range(8):
        a(f'v_dot2c_f32_bf16 v{S}, s{sONES}, v{vXRES+m}')
        a(f'v_dot2c_f32_bf16 v{Q}, v{vXRES+m}, v{vXRES+m}')
    a(f'v_mov_b32 v{t0}, v{S}')
    a(f'v_mov_b32 v{t1}, v{Q}')
    a(f'v_permlane32_swap_b32 v{S}, v{t0}')
    a(f'v_permlane32_swap_b32 v{Q}, v{t1}')
    a(f'v_pk_add_f32 {vr(S,2)}, {vr(S,2)}, {vr(t0,2)}')
    a('s_mov_b32 exec_hi, 0')
    lt = a(f'buffer_store_dwordx2 {vr(S,2)}, v{vL16}, {sr(S_DT,4)}, s{sB} offen {sc}')
    a('s_mov_b64 exec, -1')
    stamp(nm + 'st')
    mid()
    a.wait(lt)
    emit(flag_store(S_LY, f's{sZW}'))


def final_store():
    a(f'v_and_b32 v18, 31, v{vLANE}')
    a(f'v_lshrrev_b32 v19, 5, v{vLANE}')
    a(f'v_mul_u32_u24 v{vROW}, 896, v18')
    a(f'v_lshl_add_u32 v{vROW}, v19, 4, v{vROW}')
    a(f's_mul_i32 s{sA}, s{sOWN}, 28672')
    a(f's_lshl_b32 s{sB}, s{sOFT}, 6')
    a(f's_add_u32 s{sA}, s{sA}, s{sB}')
    a(f'buffer_store_dwordx4 {vr(vXRES,4)}, v{vROW}, {sr(S_OUT,4)}, s{sA} offen {OSC}')
    a(f'buffer_store_dwordx4 {vr(vXRES+4,4)}, v{vROW}, {sr(S_OUT,4)}, s{sA} offen offset:32 {OSC}')


def idle_touch(base, per_wave_bytes, n, t=16):
    if not IDLE:
        return
    a(f's_sub_u32 s{sA}, s{sJ}, 28')
    a(f's_lshl_b32 s{sA}, s{sA}, 2')
    a(f's_add_u32 s{sA}, s{sA}, s{sW}')
    a(f's_mul_i32 s{sA}, s{sA}, {per_wave_bytes}')
    a(f's_add_u32 s{sA}, s{sA}, {base}')
    a(f'v_lshlrev_b32 v{t}, 7, v{vLANE}')
    for i in range(n):
        a(f'buffer_load_dword v{t+1}, v{t}, {sr(S_WS,4)}, s{sA} offen sc1')
        a(f's_add_u32 s{sA}, s{sA}, 8192')


def p2_setup():
    dma_setup(vROW, sW3SRC, 56 * K, LBETA)
    a(f'v_and_b32 v240, 3, v{vLANE}')
    a(f'v_lshlrev_b32 v240, 5, v240')
    a(f'v_bfe_u32 v241, v{vLANE}, 2, 1')
    a(f'v_lshl_add_u32 v240, v241, 9, v240')
    a(f's_lshl_b32 s{sC}, s{sTILE2}, 9')
    a(f's_lshl_b32 s{sA}, s{sW}, 7')
    a(f's_add_u32 s{sC}, s{sC}, s{sA}')
    a(f's_add_u32 s{sC}, s{sC}, {F1Q}')
    a(f's_lshl_b32 s{sE}, s{sOWN}, 15')
    a(f's_lshl_b32 s{sA}, s{sW}, 13')
    a(f's_add_u32 s{sE}, s{sE}, s{sA}')
    a(f's_add_u32 s{sE}, s{sE}, {PQ}')
    a(f's_xor_b32 s{sF}, s{sE}, 0x8000')
    a(f's_add_u32 s{sH}, s{sREP}, s{sW1K}')
    a(f's_add_u32 s{sH}, s{sH}, {F1}')
    a(f's_lshl_b32 s{sD}, s{sW}, 14')


def phase2(L):
    WO, PQR, KVR = 16, 80, 144
    ODS = (240, 160)
    KB = (144, 152, 176, 192)
    tag = f'{L}'
    beta = dma_items(vROW, LBETA, 56, 2)
    a(f's_cmp_ge_u32 s{sJ}, 28')
    with cold('s_cbranch_scc1', back=LB_('L_p2skip' + tag)):
        for it in beta:
            emit(it)
        if L == 0:
            idle_touch(WDR, 7 * WDS // 16, IDN)
        elif L == 1:
            idle_touch(W3R + 112 * K, W3S, IDN)
        p3_setup(L)
        a.wait_vm0()
    with cond():
        poll(S_LY, 240, f's{sC}')
        stamp('p2pq')
        pt = {}
        for aa, s in ((1, sF), (0, sE)):
            for hl in range(4):
                for ks in range(2):
                    pt[hl, aa] = a(f'buffer_load_dwordx4 {vr(PQR+16*hl+8*aa+4*ks,4)}, v{vL16}, {sr(S_DT,4)}, s{s} offen offset:{(hl%2)*2048+ks*K} sc1')
                if hl == 1:
                    a(f's_add_u32 s{s}, s{s}, 4096')
                if aa == 1 and hl == 1:
                    fchk = a(f'buffer_load_dword v253, v{vL16}, {sr(S_LY,4)}, s{sH} offen sc1')
                if aa == 0 and hl == PQSPLIT:
                    break
        a.wait(fchk)
        check_or_poll(253, S_LY, vL16, f's{sH}', sleep=0)
        stamp('p2poll')
        kt = {}
        lq = []

        def kvl(hl, q):
            kt[hl] = a(f'buffer_load_dwordx4 {vr(KVR+16*hl+4*q,4)}, v{vL16}, {sr(S_LY,4)}, s{sD} offen offset:{q*K} sc1')
            if q == 3:
                a(f's_add_u32 s{sD}, s{sD}, 4096')

        def pql(hl, ks):
            pt[hl, 0] = a(f'buffer_load_dwordx4 {vr(PQR+16*hl+4*ks,4)}, v{vL16}, {sr(S_DT,4)}, s{sE} offen offset:{(hl%2)*2048+ks*K} sc1')
            if hl == 1 and ks == 1:
                a(f's_add_u32 s{sE}, s{sE}, 4096')
        for hl in range(4):
            for q in range(4):
                kvl(hl, q)
        for hl in range(PQSPLIT + 1, 4):
            for ks in range(2):
                lq.append(lambda h_=hl, k_=ks: pql(h_, k_))
        wot = {}
        cw = []
        if CARRY:
            a(f's_and_b32 s{sA}, s{sW1K}, 0x400')
            a(f's_add_u32 s80, s{sWOSRC}, s{sA}')
            a(f's_xor_b32 s{sA}, s{sA}, 0x400')
            a(f's_add_u32 s81, s{sWOSRC}, s{sA}')
        ncw = 0
        for it in CARRY:
            m_ = re.match(r'buffer_load_dwordx4 ([va])\[(\d+):', it[-1])
            assert m_
            if m_.group(1) == 'v':
                k_ = (int(m_.group(2)) - 16) // 4

                def f(k_=k_):
                    a(f's_add_u32 s78, s{80 + k_ % 2}, {(k_ // 2) * 2048}')
                    wot[k_ // 4] = a(f'buffer_load_dwordx4 {vr(16+4*k_,4)}, v{vL16}, {sr(S_WS,4)}, s78 offen sc1')
                cw.append(f)
            else:
                ncw += 1
        CARRY[:] = []
        for f in cw[:CWN]:
            f()
        beta = cw[CWN:] + lq + beta
        wd2 = []
        if L == 0:
            a(f's_and_b32 s{sA}, s{sW1K}, 0x400')
            a(f's_add_u32 s76, s{sWDSRC}, s{sA}')
            a(f's_xor_b32 s{sA}, s{sA}, 0x400')
            a(f's_add_u32 s77, s{sWDSRC}, s{sA}')
            for k_ in range(WDP1 - ncw, WDP1 + WDP2):
                n_, b = k_ // 2, k_ % 2
                wd2.append([f's_add_u32 s78, s{76+b}, {n_*2048}',
                            f'buffer_load_dwordx4 {ar(8*n_+4*b,4)}, v{vL16}, {sr(S_WS,4)}, s78 offen sc1'])

        def cvt(hl):
            return [f'v_cvt_pk_bf16_f32 v{KB[hl]+m}, v{KVR+16*hl+2*m}, v{KVR+16*hl+2*m+1}' for m in range(8)]
        units = [(hl, aa) for aa in (1, 0) for hl in range(4)]

        def oM(u):
            hl, aa = units[u]
            D = vr(ODS[u % 2], 16)
            P = PQR + 16 * hl + 8 * aa
            return [f'{MF} {D}, {vr(KB[hl],4)}, {vr(P,4)}, 0',
                    f'{MF} {D}, {vr(KB[hl]+4,4)}, {vr(P+4,4)}, {D}']

        def scale(u):
            hl, aa = units[u]
            D = ODS[u % 2]
            P = PQR + 16 * hl + 8 * aa
            o = [f'v_add_f32 v{D+14}, s{sEPS6}, v{D+14}',
                 f'v_rcp_f32 v{D+14}, v{D+14}']
            for m in range(7):
                o.append(f'v_mul_f32 v{D+2*m}, v{D+2*m}, v{D+14}')
                o.append(f'v_mul_f32 v{D+2*m+1}, v{D+2*m+1}, v{D+14}')
                o.append(f'v_cvt_pk_bf16_f32 v{P+m}, v{D+2*m}, v{D+2*m+1}')
            return o

        def woM(u, bs):
            hl, aa = units[u]
            P = PQR + 16 * hl + 8 * aa
            o = []
            for b in bs:
                for ks in range(2):
                    D = accs(2 * aa + b)
                    c = '0' if (hl == 0 and ks == 0) else D
                    o.append(f'{MF} {D}, {vr(WO+16*hl+8*ks+4*b,4)}, {vr(P+4*ks,4)}, {c}')
            return o
        RU, RA = 160, 184
        a.wait(kt[0])
        emit(cvt(0))
        emit(oM(0))
        a.wait(kt[1])
        emit(cvt(1))
        m1 = oM(1)
        vs = scale(0)
        a(m1[0]); shadow([], vs)
        a(m1[1]); emit(vs)
        wr = []
        for u in range(9):
            if u < 4:
                ms = woM(u, (0, 1))
            elif u < 8:
                ms = woM(u, (1,)) + (woM(u - 2, (0,)) if u >= 6 else [])
            else:
                ms = woM(6, (0,)) + woM(7, (0,))
            vs = scale(u + 1) if u + 1 < 8 else []
            if u < 4:
                while any(getattr(x, '__name__', '') == 'f' and x.__defaults__[0] // 4 <= u for x in beta):
                    beta.pop(0)()
                a.wait(wot.get(u))
            if u < 2:
                a.wait(kt[u + 2])
                vs = cvt(u + 2) + vs
            if u == 2:
                vs = vs + red_setup(LB, RA)[:8]
            if u == 3:
                vs = vs + red_setup(LB, RA)[8:]
            if u == 4:
                wr = red_write(2, RA) + red_write(3, RA)
            if u == 7:
                vs = res_unpack(RU)
            if u == 8:
                wr = wr + red_write(1, RA)
            if u + 2 < 8:
                ms = ms[:2] + ['W'] + oM(u + 2) + ms[2:]
            k_ = 0
            for m in ms:
                if m == 'W':
                    a.wait(pt[units[u + 2]])
                    if u < 2:
                        while any(x in vs for x in cvt(u + 2)):
                            a(vs.pop(0))
                    continue
                a(m)
                mem = []
                if beta and k_ % 2 == 0:
                    mem.append(beta.pop(0))
                elif wd2 and k_ % 2 == 0:
                    mem.append(wd2.pop(0))
                if wr and (k_ % 2 == 1 or u == 8) and not (u in (4, 8) and k_ == 0):
                    mem.append(wr[:1]); wr = wr[1:]
                shadow(mem, vs)
                k_ += 1
            emit(vs)
        wd2 = beta + wd2
        stamp('p2mfma')
        emit(wr)
        sc = LS()
        red_finish(False, 80, RU, RA, 'p2', X1, ST1, F2, sc, lambda: p3_setup(L), pre=wd2)
    a.label(LB_('L_p2skip' + tag))
    stamp('p2end')


p3D1, p3D3, p3SA, p3SB = 228, 229, 240, 241
p3D2 = 243
p3FL, p3HA, p3HB, p3FV = 244, 245, 246, 247


def p3_setup(L):
    vFL, vHA, vHB = p3FL, p3HA, p3HB
    x_prep(F2, X1, ST1)
    dma_setup(p3D3, sW3SRC, 112 * K, LB)
    dma_setup(p3D1, sW3SRC, 147 * K, LALPHA)
    if L is None:
        a(f's_cmp_lg_u32 s{sL}, 0')
        a(f's_cselect_b32 s{sA}, {OOB:#x}, s{sW1SRC}')
        a(f'v_add_u32 v{p3D2}, s{sA}, v{vL16}')
    elif L == 0:
        a(f'v_add_u32 v{p3D2}, s{sW1SRC}, v{vL16}')
    a(f's_mul_i32 s{sG}, s{sTILE1}, {112*K}')
    a(f's_mul_i32 s{sA}, s{sHC}, {7*K}')
    a(f's_add_u32 s{sG}, s{sG}, s{sA}')
    a(f's_add_u32 s{sG}, s{sG}, {HB}')
    a(f's_add_u32 s{sH}, s{sG}, 4096')
    a(f's_lshl_b32 s{sU}, s{sTILE1}, 9')
    a(f's_lshl_b32 s{sA}, s{sHC}, 2')
    a(f's_add_u32 s{sU}, s{sU}, s{sA}')
    a(f's_add_u32 s{sU}, s{sU}, {F3}')


def p4_addr():
    vFL, vHA, vHB = p3FL, p3HA, p3HB
    return [f'v_and_b32 v{vFL}, 3, v{vLANE}',
            f'v_lshlrev_b32 v{vFL}, 2, v{vFL}',
            f'v_bfe_u32 v{vHA}, v{vLANE}, 2, 1',
            f'v_lshl_add_u32 v{vFL}, v{vHA}, 9, v{vFL}',
            f's_lshl_b32 s{sA}, s{sTILE2}, 9',
            f's_lshl_b32 s{sB}, s{sW}, 4',
            f's_add_u32 s{sA}, s{sA}, s{sB}',
            f's_add_u32 s85, s{sA}, {F3}',
            f'v_add_u32 v{vFL}, s85, v{vFL}',
            f's_mul_i32 s{sB}, s{sW}, {28*K}',
            f's_add_u32 s{sB}, s{sB}, {HB}',
            f's_mul_i32 s{sA}, s{sOWN}, {112*K}',
            f's_add_u32 s{sA}, s{sA}, s{sB}',
            f'v_add_u32 v{vHA}, s{sA}, v{vL16}',
            f's_xor_b32 s{sA}, s{sOWN}, 1',
            f's_mul_i32 s{sA}, s{sA}, {112*K}',
            f's_add_u32 s{sA}, s{sA}, s{sB}',
            f'v_add_u32 v{vHB}, s{sA}, v{vL16}']


def phase34(L):
    ACC = 128
    WR, NW = 192, 8
    SB = 176
    XAUG = 224
    vD1, vD3, vSA, vSB, vD2 = p3D1, p3D3, p3SA, p3SB, p3D2
    vFL, vHA, vHB, vFV = p3FL, p3HA, p3HB, p3FV
    vFV2 = 242
    PRE = XPRE
    HR, NH = 16, 28
    tag = f'{L}'
    LOOK = 6
    NG = 3 if G3 else 2
    steps = [(t, ks) for ks in range(29) for t in range(NG)]
    for t in range(NG, 7):
        steps += [(t, ks) for ks in range(29)]

    def addr(t, ks):
        if G3 and t < 3:
            p = 3 * ks + t
            return LALPHA + p * K if p < 56 else LBETA + (p - 56) * K
        if ks == 28 and t < 3:
            return LBETA + t * K
        if t < 2:
            return LALPHA + (2 * ks + t) * K
        if t == 2:
            return LBETA + (3 + ks) * K
        if t == 3:
            return LBETA + (31 + ks) * K
        if t == 4:
            return LB + (4 + ks) * K
        if t == 5:
            return LALPHA + ks * K
        return LALPHA + (29 + ks) * K if ks < 27 else LB + (33 + ks - 27) * K
    n = len(steps)
    accof = {0: 0, 1: 1, 2: 2, 3: 3, 4: 0, 5: 1, 6: 2}
    rt, xt, hst, ht, chk = {}, {}, {}, {}, {}

    def hsc(t):
        return LS() if (L == 1 and t >= HPL) else 'sc1'

    def epi(t, D=None, Sx=None):
        Sx = ACC + 16 * accof[t] if Sx is None else Sx
        D = Sx if D is None else D
        o = []
        for r in range(8):
            o.append(f'v_mul_f32 v{D+r}, v{Sx+r}, v{vC2}')
        for r in range(8):
            o.append(f'v_exp_f32_e64 v{D+r}, -v{D+r}')
            if r >= 2:
                o.append(f'v_fma_f32 v{D+r-2}, v{D+r-2}, v{vISTD}, v{vISTD}')
        for r in (6, 7):
            o.append(f'v_fma_f32 v{D+r}, v{D+r}, v{vISTD}, v{vISTD}')
        for r in range(8):
            o.append(f'v_rcp_f32 v{D+r}, v{D+r}')
            if r >= 2:
                o.append(f'v_mul_f32 v{D+r-2}, v{D+r-2}, v{Sx+8+r-2}')
        for r in (6, 7):
            o.append(f'v_mul_f32 v{D+r}, v{D+r}, v{Sx+8+r}')
        for m in range(4):
            o.append(f'v_cvt_pk_bf16_f32 v{D+8+m}, v{D+2*m}, v{D+2*m+1}')
        s = sG if t < 4 else sH
        o.append(f'buffer_store_dwordx4 {vr(D+8,4)}, v{vL16}, {sr(S_DT,4)}, s{s} offen offset:{(t%4)*K} {hsc(t)} ; H{t}')
        return o

    def issue_rd(i):
        if i >= n:
            return
        t, ks = steps[i]
        d = WR + 4 * (i % NW)
        rt[i] = read_frag(d, addr(t, ks)) if ks < 28 else read_aug(d, addr(t, ks), 251 + (i % 3))

    def flag_ld(stg):
        if stg == 0 or not FAST():
            chk[stg] = a(f'buffer_load_dword v{vFV}, v{vFL}, {sr(S_LY,4)}, 0 offen offset:{64*stg} sc1')
        else:
            a(f's_buffer_load_dwordx4 s[76:79], {sr(S_LY,4)}, s85 offset:{64*stg}')
            a(f's_buffer_load_dwordx4 s[80:83], {sr(S_LY,4)}, s85 offset:{64*stg+512}')

    def flag_chk(stg):
        if FAST():
            a('s_waitcnt lgkmcnt(0)')
            a('s_and_b64 s[76:77], s[76:77], s[78:79]')
            a('s_and_b64 s[80:81], s[80:81], s[82:83]')
            a('s_and_b64 s[76:77], s[76:77], s[80:81]')
            a('s_and_b32 s76, s76, s77')
        else:
            a.wait(chk[stg])
            a(f'v_cmp_ne_u32 vcc, 1, v{vFV}')
            a('s_cmp_eq_u64 vcc, 0')
        assert 6 in hst
        with cold('s_cbranch_scc0'):
            a.wait_vm0()
            emit(flag_store(S_LY, f's{sU}', imm=128))
            emit(flag_store(S_LY, f's{sU}', imm=192))
            poll(S_LY, vFL, 0, imm=64 * stg)

    CHK = {24: 1, 40: 2, 48: 3}

    def hld(idx, chkflags=True):
        if idx >= 56:
            return
        if chkflags and idx + 4 in CHK:
            flag_ld(CHK[idx + 4])
        if chkflags and idx in CHK:
            flag_chk(CHK[idx])
        n_, aa = idx // 2, idx % 2
        t, cc = n_ // 4, n_ % 4
        if aa == 0:
            a(f's_mov_b32 s{sE}, {(cc*7+t)*K}')
        ht[idx] = a(f'buffer_load_dwordx4 {vr(HR+4*(idx%NH),4)}, v{(vHA,vHB)[aa]}, {sr(S_DT,4)}, s{sE} offen sc1')

    a.wait_lg0()
    if BEARLY:
        a.barrier()
        for i in range(LOOK):
            issue_rd(i)
    poll(S_LY, 240, f's{sC}')
    stamp('p3poll')
    for ks in range(4):
        xt[ks] = x_load(ks)
    if not BEARLY:
        a.barrier()
        for i in range(LOOK):
            issue_rd(i)
    for ks in range(4, PRE):
        xt[ks] = x_load(ks)
    fill, owner = [], []
    done_at = {}
    wd = [] if L == 1 else wfrag_items(lambda n_, b: ar(8 * n_ + 4 * b, 4), sWDSRC, (WDP1 + (WDP2 if L == 0 else 0)) // 2, 28, vSA, vSB, sF)
    ft = [[f'v_and_b32 v233, 0x80, v{vL4}', f'buffer_load_dword v233, v233, {sr(S_LY,4)}, s{sU} offen sc1']] if FT else []
    if HT and FAST() and (L == 1 or HT > 1):
        ft += [[f'v_min_u32 v234, 55, v{vLANE}', f'v_lshlrev_b32 v234, 7, v234', f'buffer_load_dword v234, v234, {sr(S_DT,4)}, s{sG} offen sc1']]
    bg = dma_items(vD3, LB, 36, 1) + ['M3'] + ft + wd[:WDP3]
    wd4 = wd[WDP3:]
    marks = {}
    cur = [0]

    def pop():
        x = fill.pop(0); o = owner.pop(0)
        t = a(x)
        if '; H' in x:
            hst[o] = (t, cur[0])

    def pub(stg, last_tile):
        a.wait(hst[last_tile][0])
        emit(flag_store(S_LY, f's{sU}', imm=64 * stg))

    def xl(ks):
        xt[ks] = x_load(ks)

    def next_bg():
        while bg and isinstance(bg[0], str):
            marks[bg.pop(0)] = mark()
        return bg.pop(0) if bg else None
    pubs = [(0, 2), (1, 4)]
    for i, (t, ks) in enumerate(steps):
        cur[0] = i
        if i == (45 if G3 else 34):
            a.wait(chk['st'])
            s_ = [f's_and_b32 s{sA}, s{sW1K}, 0x400', f'v_add_u32 v{vSA}, s{sA}, v{vL16}', f'v_xor_b32 v{vSB}, 0x400, v{vSA}'] + \
                stats_sum(SB) + stats_finish(XAUG, SB) + p4_addr()
            fill += s_; owner += [-1] * len(s_)
        stamp(f'i{i}', fine=True) if i in (1, 30, 57, 87, 116, 145, 174) else None
        if i % 2 == 0:
            a.wait(rt[min(i + 1, n - 1)], xt.get(steps[min(i + 1, n - 1)][1]), xt.get(ks))
        if i == 56:
            a.barrier()
            k3 = bg.index('M3') + 1 if 'M3' in bg else 0
            bg = bg[:k3] + dma_items(vD1, LALPHA, 56, 2) + ['M4'] + code_touch(232, 233) + bg[k3:]
        if i + LOOK == 112:
            a.wait(marks['M3'])
            a.barrier()
        if i + LOOK == 145:
            a.wait(marks['M4'])
            a.barrier()
            bg = code_touch(232, 233) + bg
        D = vr(ACC + 16 * accof[t], 16)
        if ks == 0 and t >= 4:
            assert (t - 4) not in owner
        if ks == 28:
            assert -1 not in owner
        X = vr(16 + 4 * ks, 4) if ks < 28 else vr(XAUG, 4)
        a(f'{MF} {D}, {vr(WR+4*(i%NW),4)}, {X}, {"0" if ks == 0 else D}')
        if ks == 28:
            done_at[t] = i
        for tt, di in list(done_at.items()):
            if i >= di + 2:
                e = epi(tt)
                fill += e; owner += [tt] * len(e)
                del done_at[tt]
        pre = main = None
        if t == 0 and ks + PRE < 28:
            main = (lambda k_=ks + PRE: xl(k_))
        elif t == NG - 1 and ks < 8 and ks % 2 == 0:
            main = (lambda k_=ks // 2: chk.__setitem__('st', st_load(k_, SB)))
        elif G3 and t == 2 and ks + PRE < 28 and ks % 2 == 0 and 'M3' not in marks:
            pre, main = split_item(next_bg())
        elif t == 6:
            if ks % 2 == 1:
                main = (lambda k_=ks // 2: hld(k_))
        elif i == 173:
            main = lambda: flag_ld(0)
        elif i % 2 == 0 and i >= NG * (28 - PRE):
            pre, main = split_item(next_bg())
        extra = None
        if fill and '; H' in fill[0]:
            extra = pop
        elif pubs and pubs[0][1] in hst and i >= hst[pubs[0][1]][1] + PUBD and i % 2 == 1:
            extra = (lambda p=pubs.pop(0): pub(*p))
        n0 = len(a.ins)
        for f in (pre, lambda: issue_rd(i + LOOK), main, extra):
            if f is None:
                continue
            f() if callable(f) else emit(f)
        budget = CAP - (len(a.ins) - n0) - (i % 2)
        while fill and '; H' not in fill[0] and budget >= cost(fill[0]):
            budget -= cost(fill[0])
            pop()
    assert not pubs and next_bg() is None, len(bg)
    print('P3: h stores at steps', {t: v[1] for t, v in hst.items()}, 'left', len(fill))
    assert not fill and 5 in hst
    stamp('p3mfma')

    RU, RA = 192, 128
    w1 = [] if L == 1 else dma_items(vD2, 0, 88, 2)
    nxt = (lambda: p1_setup(False)) if L != 1 else (lambda: None)
    a(f's_cmp_ge_u32 s{sJ}, 28')
    with cold('s_cbranch_scc1', back=LB_('L_p4skip' + tag)):
        emit(epi(6))
        pub(2, 5)
        a.barrier()
        a.wait_vm0()
        emit(flag_store(S_LY, f's{sU}', imm=192))
        if L == 0:
            idle_touch(W1R, W1S, 11)
        if L == 1 and WB:
            a('buffer_wbl2 sc1')
        for it in w1:
            emit(it)
        nxt()
        a.wait_vm0()
    with cond():
        a.wait(chk[0])
        a(f'v_cmp_ne_u32 vcc, 1, v{vFV}')
        a('s_cmp_eq_u64 vcc, 0')
        saved = dict(ht)
        with cold('s_cbranch_scc0'):
            emit(epi(6, D=ACC + 48))
            a.wait_vm0()
            emit(flag_store(S_LY, f's{sU}', imm=128))
            emit(flag_store(S_LY, f's{sU}', imm=192))
            poll(S_LY, vFL, 0, imm=0)
            for idx in range(14):
                hld(idx, False)
            a.wait_vm0()
        ht.update(saved)
        fill = epi(6)
        owner = [6] * len(fill)
        later = red_setup(LALPHA, RA) + res_unpack(RU)
        TAIL = TAILN
        nld = [14]
        todo = ['pub2', 'pub3']
        wt = {}

        def mf(n_, s):
            aa, b = s >> 1, s & 1
            D = accs(s)
            a(f'{MF} {D}, {ar(8*n_+4*b,4)}, {vr(HR+4*((2*n_+aa)%NH),4)}, {"0" if n_ == 0 else D}')

        def sh(step, load):
            cur[0] = step
            n0 = len(a.ins)
            if load:
                if nld[0] < 56:
                    hld(nld[0]); nld[0] += 1
                elif w1:
                    emit(w1.pop(0))
            elif todo and todo[0] == 'pub2' and step >= 13:
                pub(2, 5); todo.pop(0)
            elif todo and todo[0] == 'pub3' and 6 in hst and step >= hst[6][1] + PUBD2:
                pub(3, 6); todo.pop(0)
                fill.extend(later); owner.extend([-2] * len(later))
            elif wd4:
                wt[0] = emit(wd4.pop(0))
            if step >= 1:
                if fill and '; H' in fill[0]:
                    pop()
                budget = CAP - (len(a.ins) - n0)
                while fill and '; H' not in fill[0] and budget >= cost(fill[0]):
                    budget -= cost(fill[0])
                    pop()
        for n_ in range(28 - TAIL):
            if n_ == P4B:
                a.barrier()
            stamp(f'n{n_}') if ('p4prof' in OPT and n_ in (2, 4, 8, 13, 15, 17)) else None
            a.wait(ht[2 * n_])
            mf(n_, 0); sh(4 * n_, True)
            mf(n_, 1); sh(4 * n_ + 1, False)
            a.wait(ht[2 * n_ + 1])
            mf(n_, 2); sh(4 * n_ + 2, True)
            mf(n_, 3); sh(4 * n_ + 3, XL0 <= n_ < XL1)
        assert nld[0] == 56 and not fill and not todo and not wd4
        stamp('n20') if 'p4prof' in OPT else None
        a.wait(wt.get(0))
        pend = []
        for s in (3, 2, 1, 0):
            for k_, n_ in enumerate(range(28 - TAIL, 28)):
                a.wait(ht[2 * n_ + 1])
                mf(n_, s)
                if pend and (k_ % 2 == 1 if TAIL >= 8 else (k_ % 3 != 0)):
                    emit(pend[:1]); pend = pend[1:]
                elif w1 and (k_ % 2 == 0 if TAIL >= 8 else True) and len(w1) > W1KEEP:
                    emit(w1.pop(0))
            assert not pend
            if s > 0:
                pend = red_write(s, RA)
        stamp('p4mfma')

        def mid():
            for it in w1:
                emit(it)
            nxt()
        final = {0: False, 1: True, None: 'dyn'}[L]
        xb, stb = (X1, ST1) if FAST() else (X0 + LYB, ST0 + LYB)
        pre4 = w1[:len(w1) // 4 * 2]; w1 = w1[len(pre4):]
        red_finish(final, 16, RU, RA, 'p4', xb, stb, F0 + LYB, LS(), mid, pre=pre4)
    a.label(LB_('L_p4skip' + tag))
    if L != 1:
        stamp('p4end')


def restore(ctx):
    a.vm_issued, a.vm_done, a.lg_issued, a.lg_done = ctx['state']
    ctx['qt'].clear(); ctx['qt'].update(ctx['qt0'])


def build():
    prologue()
    init_phase()
    MODE.update(sc='', sfx='')
    ctx = phase1_kv(True)
    phase1_q(ctx, True)
    phase2(0)
    phase34(0)
    c2 = phase1_kv(False)
    phase1_q(c2, False)
    phase2(1)
    phase34(1)
    a.label('L_done')
    if PROFILE:
        stamp('end')
        a(f's_lshl_b32 s{sA}, s2, 2')
        a(f's_add_u32 s{sA}, s{sA}, s{sW}')
        a(f's_lshl_b32 s{sA}, s{sA}, 8')
        a(f's_add_u32 s{sA}, s{sA}, {PROF}')
        a(f'buffer_store_dword v{vPROF}, v{vL4}, {sr(S_WS,4)}, s{sA} offen')
        if 'probe' in OPT:
            k0, k1 = [int(x) for x in OPT['probe'].split(',')]
            ne = len(STAMPS) - 1
            a(f'v_readlane_b32 s{sA}, v{vPROF}, {k0}')
            a(f'v_readlane_b32 s{sB}, v{vPROF}, {k1}')
            a(f'v_readlane_b32 s{sC}, v{vPROF}, {ne}')
            a('s_cmp_ge_u32 s2, 224')
            a('s_cbranch_scc1 L_end')
            a(f's_sub_u32 s{sA}, s{sB}, s{sA}')
            a(f's_min_u32 s{sA}, s{sA}, 5000')
            a(f's_lshl_b32 s{sA}, s{sA}, 3')
            a(f's_cmp_lg_u32 s2, 77')
            a('s_cbranch_scc1 L_end')
            a.label('L_spin')
            a('s_sleep 1')
            a(f's_memrealtime {sr(sP0,2)}')
            a('s_waitcnt lgkmcnt(0)')
            a(f's_sub_u32 s{sD}, s{sP0}, s{sC}')
            a(f's_cmp_lt_u32 s{sD}, s{sA}')
            a('s_cbranch_scc1 L_spin')
        if 'dbgout' in OPT:
            a(f's_lshl_b32 s{sA}, s2, 2')
            a(f's_add_u32 s{sA}, s{sA}, s{sW}')
            a(f's_cmp_lg_u32 s{sA}, {77*4+1}')
            a('s_cbranch_scc1 L_end')
            a(f'v_readfirstlane_b32 s{sA}, v{vPROF}')
            a(f'v_subrev_u32 v{vPROF}, s{sA}, v{vPROF}')
            a(f'v_lshlrev_b32 v20, 1, v{vLANE}')
            a(f'v_subrev_u32 v20, {2*int(OPT["dbgout"])}, v20')
            a(f'buffer_store_short v{vPROF}, v20, {sr(S_DBG,4)}, 0 offen sc1')
    a.label('L_end')
    a('s_endpgm')
    a.flush_cold()
    a.label('L_codeend')
    keep = list(STAMPS)
    a.label('L_slow')
    MODE.update(sc='sc1', sfx='_s')
    restore(ctx)
    a('s_nop 7')
    phase1_q(ctx, True)
    a.label('L_layer_s')
    a('s_nop 7')
    phase2(None)
    phase34(None)
    a(f's_cmp_lg_u32 s{sL}, 0')
    a('s_cbranch_scc1 L_done')
    a(f's_mov_b32 s{sL}, 1')
    c2 = phase1_kv(False)
    phase1_q(c2, False)
    a('s_branch L_layer_s')
    a.label('L_final_s')
    final_store()
    a('s_branch L_done')
    a.flush_cold()
    STAMPS[:] = keep


build()
hdr = open('cdna_kernels/' + NAME + '.s.ref').read().split('; Override launch')[0]
out = hdr + f"""; @launch grid=(256,1,1) block=(256,1,1) lds={LDS_BYTES}
.amdgcn_target "amdgcn-amd-amdhsa--gfx950"
; ---------------------------------------------------------------------------------------------
; Persistent single-launch kernel (generated by the author's own Python generator, work/gen13.py).
; 256 workgroups x 4 waves, one per CU.  Phases: weight re-layout into MFMA fragment order, then per
; layer pair  P1 (LN+QKV, phi, kv partials -> fp32 atomics), P2 (o, Wo GEMM, residual),
; P3 (LN+gate/up GEMM, sigmoid*u), P4 (down GEMM, residual).  LayerNorm is folded into the GEMMs
; (extra k-step for the mean, rstd in the epilogue).  Hand-offs use flags in d_ws that are zeroed in
; this launch.  Workgroups publish their XCC id; only if all partners verifiably share an XCD the
; L2-local hand-off variant runs, otherwise the generic write-through variant (label L_slow).
; All spins are bounded.
; ---------------------------------------------------------------------------------------------
.text
.globl {NAME}_kernel
.p2align 8
.type {NAME}_kernel,@function
{NAME}_kernel:
{a.text()}
.section .rodata,"a"
.p2align 6
.amdhsa_kernel {NAME}_kernel
  .amdhsa_next_free_vgpr 512
  .amdhsa_next_free_sgpr 102
  .amdhsa_accum_offset 256
  .amdhsa_group_segment_fixed_size 0
  .amdhsa_kernarg_size 80
  .amdhsa_user_sgpr_count 2
  .amdhsa_user_sgpr_kernarg_segment_ptr 1
  .amdhsa_system_sgpr_workgroup_id_x 1
  .amdhsa_float_denorm_mode_32 3
.end_amdhsa_kernel
"""
outfn = [x for x in sys.argv[1:] if not x.startswith('--')][0]
open(outfn, 'w').write(out)
open(outfn + '.names', 'w').write(','.join(STAMPS))
print('instructions', len(a.ins), 'nops added', a.nops_added)
```

```python
import sys
import contextlib
import re
from asmlib import Asm, vr, ar, sr

NAME = "interleave_layers__linear_attn_block__glu_gated_glu__prompt"
OPT = {}
for x in sys.argv[1:]:
    if x.startswith('--'):
        k, _, v = x[2:].partition('=')
        OPT[k] = v if v else True
PROFILE = 'prof' in OPT
FINE = 'fine' in OPT
CLK = 'clk' in OPT
STOP = OPT.get('stop')
FA = 1
SLEEP = int(OPT.get('sleep', 1))
TOUCH = int(OPT.get('touch', 0))
BUD = int(OPT.get('bud', 3))
XPRE = int(OPT.get('xpre', 8))
HPRE = int(OPT.get('hpre', 16))
HSC = int(OPT.get('hsc', 0))
XSC = int(OPT.get('xsc', 0))
TLBW = int(OPT.get('tlbw', 0))
XI = int(OPT.get('xi', 0))
XA = int(OPT.get('xa', 16))
CT = int(OPT.get('ct', 1))
FT = int(OPT.get('ft', 0))
HT = int(OPT.get('ht', 0))
X0N = int(OPT.get('x0n', 0))
IDLE = int(OPT.get('idle', 0))
OSC = OPT.get('osc', '')
PQSC = int(OPT.get('pqsc', 0))
WB = int(OPT.get('wb', 0))
IDN = int(OPT.get('idn', 11))
HPL = int(OPT.get('hpl', 9))
G3 = int(OPT.get('g3', 1))
P4B = int(OPT.get('p4b', 1))
BEARLY = int(OPT.get('bearly', 1))
WDP2 = int(OPT.get('wdp2', 12))
W1KEEP = int(OPT.get('w1keep', 0))
CARRYON = int(OPT.get('carry', 0))
CWN = int(OPT.get('cwn', 4))
EPD = int(OPT.get('epd', 1))
UNT = 'nt' if int(OPT.get('unt', 0)) else ''
XNT = 'nt' if int(OPT.get('xnt', 0)) else ''
XNT2 = 'nt' if int(OPT.get('xnt', 0)) > 1 else ''
B1E = int(OPT.get('b1e', 0))
LBG = int(OPT.get('lbg', 1))
TAILN = int(OPT.get('tail', 8))
XL0 = int(OPT.get('xl0', 10))
XL1 = int(OPT.get('xl1', 16))
FS0 = int(OPT.get('fs0', 157))
FS1 = int(OPT.get('fs1', 24))
LAG0 = int(OPT.get('lag0', 2))
EVEN = int(OPT.get('even', 0))
WRU = int(OPT.get('wru', 8))
BLATE = int(OPT.get('blate', 6))
BSP = int(OPT.get('bsp', 2))
WSC = OPT.get('wsc', 'sc1').replace('+', ' ')
STAMPS = []

IB = 0x0
W1R = 0x100000; W1S = 87 * 1024
WOR = 0x280000
W3R = 0x300000; W3S = 203 * 1024
WDR = 0x680000; WDS = 224 * 1024
LYB = 0x1000000
KV = 0x0
F1 = 0x10000
F1Q = 0x18000
F3 = 0x30000
F2 = 0x20000
F0 = 0x28000
ST1 = 0x40000
ST0 = 0x80000
PQ = 0x100000
X1 = 0x300000
X0 = 0x500000
HB = 0x700000
PROF = 0x3000000
WS_BYTES = 256 << 20
OOB = 0x40000000

K = 1024
LBETA, LB, LALPHA = 0, 56 * K, 104 * K
LRS = 87 * K
LKVS = 88 * K
LDS_BYTES = 160 * K

S_WS, S_X, S_WQKV, S_WO, S_WG, S_WU, S_WD, S_OUT, S_DBG = 4, 8, 12, 16, 20, 24, 28, 32, 36
S_T0, S_T1 = 40, 44
S_LY = 40
S_DT = 44
sW, sJ, sHC, sTB, sFB, sL, sTMO, sPI = 48, 49, 50, 51, 52, 53, 54, 55
sTILE1, sTILE2, sOWN, sOFT = 56, 57, 58, 59
sLN2, sEPS6 = 60, 62
sONES = 84
sW1K, sW2K, sW4K = 64, 65, 66
sW1SRC, sW3SRC, sWOSRC, sWDSRC = 67, 68, 69, 70
sRBG, sREP = 71, 72
sG, sH, sI = 73, 74, 75
sA, sB, sC, sD, sE, sF = 86, 87, 88, 89, 90, 91
sP0 = 92
sU = 94
sXID = 95
sZW = 96
sPC = 100

vLANE, vL16, vL16b, vL16c, vROW, vAUG, vL4, vPROF = 0, 1, 2, 3, 4, 5, 6, 7
vXRES = 8
LOG2E = 0x3FB8AA3B
LN2 = 0x3F317218
EPS6 = 0x358637BD
EPS5 = 0x3727C5AC
INV448 = 0x3B124925
MF = 'v_mfma_f32_32x32x16_bf16'

a = Asm()
MODE = {'sc': 'sc1', 'sfx': ''}


def LS():
    return MODE['sc']


def LL():
    return OPT.get('ll', 'sc1').replace('none', '') if MODE['sc'] == '' else 'sc1'


def ALIAS():
    return MODE['sfx'] == '' and 'noalias' not in OPT


def XS():
    return 'sc1' if XSC else LS()


def HS():
    return 'sc1' if HSC else LS()


def LB_(n):
    return n + MODE['sfx']


@contextlib.contextmanager
def cond():
    st = (a.vm_issued, a.vm_done, a.lg_issued, a.lg_done)
    yield
    a.vm_issued, a.vm_done, a.lg_issued, a.lg_done = st


@contextlib.contextmanager
def cold(branch, back=None):
    C = a.uid('Lc'); R = back or a.uid('Lr')
    a(f'{branch} {C}')
    st = (a.vm_issued, a.vm_done, a.lg_issued, a.lg_done)
    a.begin_cold()
    a.label(C)
    a('s_nop 7')
    a('s_nop 3')
    yield
    a('s_nop 4')
    a(f's_branch {R}')
    a.end_cold()
    a.vm_issued, a.vm_done, a.lg_issued, a.lg_done = st
    if back is None:
        a.label(R)


def mark():
    return ('vm', a.vm_issued - 1)


def lds_addr(addr):
    if addr < 65536:
        return vL16, addr
    if addr < 131072:
        return vL16b, addr - 65536
    return vL16c, addr - 131072


def stamp(name, fine=False):
    jitter()
    if not PROFILE or (fine and not FINE):
        return
    STAMPS.append(name)
    a('s_waitcnt lgkmcnt(0)')
    a(f"{'s_memtime' if CLK else 's_memrealtime'} {sr(sP0,2)}")
    a.wait_lg0()
    a(f'v_cmp_eq_u32 vcc, s{sPI}, v{vLANE}')
    a(f'v_mov_b32 v255, s{sP0}')
    a(f'v_cndmask_b32 v{vPROF}, v{vPROF}, v255, vcc')
    a(f's_add_u32 s{sPI}, s{sPI}, 1')


JN = [0]


def jitter():
    if 'jitter' not in OPT:
        return
    JN[0] += 1
    L = a.uid('Lj'); E = a.uid('Lje')
    a('s_waitcnt lgkmcnt(0)')
    a(f's_memtime {sr(sP0,2)}')
    a('s_waitcnt lgkmcnt(0)')
    a(f's_mul_i32 s{sP0+1}, s2, {37 + 2*JN[0]}')
    a(f's_lshr_b32 s{sP0}, s{sP0}, 7')
    a(f's_add_u32 s{sP0}, s{sP0}, s{sP0+1}')
    a(f's_and_b32 s{sP0}, s{sP0}, 31')
    a(f's_cmp_lt_u32 s{sP0}, 24')
    a(f's_cbranch_scc1 {E}')
    a.label(L)
    a(f's_sleep {OPT["jitter"]}')
    a(f's_add_u32 s{sP0}, s{sP0}, 1')
    a(f's_cmp_lt_u32 s{sP0}, 32')
    a(f's_cbranch_scc1 {L}')
    a.label(E)


def srd(base, lo, nbytes):
    a(f's_mov_b32 s{base}, s{lo}')
    a(f's_and_b32 s{base+1}, s{lo+1}, 0xffff')
    a(f's_mov_b32 s{base+2}, {nbytes}')
    a(f's_mov_b32 s{base+3}, 0x00020000')


def poll(srdreg, vaddr, soff, imm=0, t=254, sleep=0, nonzero=False):
    L = a.uid('Lpoll'); D = a.uid('Lpd')
    a.label(L)
    if sleep:
        a(f's_sleep {sleep}')
    a(f'buffer_load_dword v{t}, v{vaddr}, {sr(srdreg,4)}, {soff} offen offset:{imm} sc1')
    a(f's_sub_u32 s{sTMO}, s{sTMO}, 1')
    a(f's_max_i32 s{sTMO}, s{sTMO}, 0')
    a(f's_cselect_b64 {sr(sP0,2)}, exec, 0')
    a.wait_vm0()
    a(f'v_cmp_eq_u32 vcc, 0, v{t}' if nonzero else f'v_cmp_ne_u32 vcc, 1, v{t}')
    a(f's_and_b64 exec, {sr(sP0,2)}, vcc')
    a(f's_cbranch_scc1 {L}')
    a('s_mov_b64 exec, -1')


def check_or_poll(v, srdreg, vaddr, soff, imm=0, nonzero=False, sleep=1, t=254):
    a(f'v_cmp_eq_u32 vcc, 0, v{v}' if nonzero else f'v_cmp_ne_u32 vcc, 1, v{v}')
    a('s_cmp_eq_u64 vcc, 0')
    with cold('s_cbranch_scc0'):
        poll(srdreg, vaddr, soff, imm=imm, nonzero=nonzero, sleep=sleep, t=t)


def code_touch(t, d):
    if not CT:
        return []
    return [[f'v_and_b32 v{t}, 3, v{vLANE}',
             f'v_lshlrev_b32 v{t}, 7, v{t}',
             f'global_load_dword v{d}, v{t}, {sr(sPC,2)}']]


def flag_store(srdreg, soff, imm=0, t=254, sc=None):
    sc = LS() if sc is None else sc
    return [f'v_mov_b32 v{t}, 1',
            's_mov_b64 exec, 1',
            f'buffer_store_dword v{t}, off, {sr(srdreg,4)}, {soff} offset:{imm} {sc}',
            's_mov_b64 exec, -1']


def emit(lst):
    t = None
    for x in lst:
        r = a(x)
        t = r if r is not None else t
    return t


def dma_items(vD, lds_base, nfrag, c):
    assert nfrag % (4 * c) == 0
    sWc = {1: sW1K, 2: sW2K, 4: sW4K}[c]
    items = []
    for r in range(nfrag // (4 * c)):
        for i in range(c):
            it = []
            if i == 0:
                it.append(f's_add_u32 m0, s{sWc}, {lds_base + r*4*c*K}')
            it.append(f'buffer_load_dwordx4 v{vD}, {sr(S_WS,4)}, m0 offen offset:{i*K} {WSC} lds')
            items.append(it)
    return items


def dma_setup(vD, ssrc, src_const, lds_base):
    a(f's_add_u32 s{sA}, s{ssrc}, {src_const - lds_base & 0xffffffff:#x}')
    a(f'v_add_u32 v{vD}, s{sA}, v{vL16}')


def prologue():
    a('s_cmp_ge_u32 s2, 256')
    a('s_cbranch_scc1 L_end')
    a('s_load_dwordx16 s[64:79], s[0:1], 0')
    a('s_load_dwordx4 s[80:83], s[0:1], 64')
    a(f's_getpc_b64 {sr(sPC,2)}')
    a.label('L_pc')
    a('s_lshr_b32 s3, s2, 3')
    a('s_lshl_b32 s3, s3, 11')
    a('s_min_u32 s3, s3, (L_codeend - L_pc - 2048)')
    a(f's_add_u32 s{sPC}, s{sPC}, s3')
    a(f's_addc_u32 s{sPC+1}, s{sPC+1}, 0')
    a('v_min_u32 v16, 15, v0')
    a('v_lshlrev_b32 v16, 7, v16')
    a(f'global_load_dword v17, v16, {sr(sPC,2)}')
    a(f'v_lshrrev_b32 v18, 6, v0')
    a(f'v_and_b32 v{vLANE}, 63, v0')
    a(f'v_readfirstlane_b32 s{sW}, v18')
    a(f'v_lshlrev_b32 v{vL16}, 4, v{vLANE}')
    a(f'v_add_u32 v{vL16b}, 0x10000, v{vL16}')
    a(f'v_add_u32 v{vL16c}, 0x20000, v{vL16}')
    a(f'v_lshlrev_b32 v{vL4}, 2, v{vLANE}')
    a(f'v_and_b32 v18, 31, v{vLANE}')
    a(f'v_lshrrev_b32 v19, 5, v{vLANE}')
    a(f'v_mul_u32_u24 v{vROW}, 896, v18')
    a(f'v_lshl_add_u32 v{vROW}, v19, 4, v{vROW}')
    a(f'v_lshlrev_b32 v{vAUG}, 2, v18')
    a(f'v_lshl_add_u32 v{vAUG}, v19, 9, v{vAUG}')
    a(f'v_mov_b32 v{vPROF}, 0')
    a(f's_mov_b32 s{sPI}, 0')
    a(f's_and_b32 s{sC}, s2, 7')
    a(f's_lshr_b32 s{sJ}, s2, 3')
    a(f's_mul_i32 s{sTB}, s{sJ}, 37')
    a(f's_lshr_b32 s{sTB}, s{sTB}, 8')
    a(f's_mul_i32 s{sFB}, s{sTB}, 7')
    a(f's_sub_u32 s{sFB}, s{sJ}, s{sFB}')
    a(f's_cmp_ge_u32 s{sJ}, 28')
    a(f's_cselect_b32 s{sTB}, s{sFB}, s{sTB}')
    a(f's_mov_b32 s{sL}, 0')
    a(f's_mov_b32 s{sTMO}, 100000')
    a(f's_lshl_b32 s{sTILE2}, s{sC}, 3')
    a(f's_lshl_b32 s{sD}, s{sTB}, 1')
    a(f's_add_u32 s{sTILE2}, s{sTILE2}, s{sD}')
    a(f's_lshr_b32 s{sD}, s{sW}, 1')
    a(f's_add_u32 s{sOWN}, s{sTILE2}, s{sD}')
    a(f's_and_b32 s{sD}, s{sW}, 1')
    a(f's_lshl_b32 s{sOFT}, s{sFB}, 1')
    a(f's_add_u32 s{sOFT}, s{sOFT}, s{sD}')
    lf = {1: 0, 2: 1, 4: 2, 8: 3}[FA]
    nh = 16 // FA
    a(f's_and_b32 s{sD}, s{sC}, {FA-1}')
    a(f's_mul_i32 s{sHC}, s{sD}, {nh}')
    a(f's_and_b32 s{sD}, s{sJ}, {nh-1}')
    a(f's_add_u32 s{sHC}, s{sHC}, s{sD}')
    a(f's_lshr_b32 s{sD}, s{sC}, {lf}')
    a(f's_lshl_b32 s{sE}, s{sD}, {lf+1}')
    a(f's_lshr_b32 s{sD}, s{sJ}, {4-lf}')
    a(f's_add_u32 s{sE}, s{sE}, s{sD}')
    a(f's_lshl_b32 s{sTILE1}, s{sE}, 2')
    a(f's_add_u32 s{sTILE1}, s{sTILE1}, s{sW}')
    a(f's_mov_b32 s{sLN2}, {LN2:#x}')
    a(f's_mov_b32 s{sLN2+1}, {LN2:#x}')
    a(f's_mov_b32 s{sEPS6}, {EPS6:#x}')
    a(f's_mov_b32 s{sEPS6+1}, {EPS6:#x}')
    a(f's_mov_b32 s{sONES}, 0x3f803f80')
    for i in range(4):
        a(f'v_mov_b32 v{216+i}, 0')
    a(f'v_and_b32 v{vRHO}, 31, v{vLANE}')
    a(f'v_lshrrev_b32 v{vHI}, 5, v{vLANE}')
    a(f'v_and_b32 v{vSIG}, 0x13, v{vRHO}')
    a(f'v_and_b32 v{vt0}, 4, v{vRHO}')
    a(f'v_lshl_or_b32 v{vSIG}, v{vt0}, 1, v{vSIG}')
    a(f'v_lshrrev_b32 v{vt0}, 1, v{vRHO}')
    a(f'v_and_or_b32 v{vSIG}, v{vt0}, 4, v{vSIG}')
    a(f'v_lshrrev_b32 v{vR8}, 3, v{vLANE}')
    a(f'v_and_b32 v{vC8}, 7, v{vLANE}')
    a(f'v_lshlrev_b32 v{vC8}, 4, v{vC8}')
    a(f'v_lshrrev_b32 v{vt0}, 4, v{vLANE}')
    a(f'v_lshlrev_b32 v{vt0}, 4, v{vt0}')
    a(f'v_xor_b32 v{vt0}, v{vt0}, v{vC8}')
    a(f'v_mul_u32_u24 v{vt1}, 896, v{vR8}')
    a(f'v_add_u32 v{vXS}, v{vt1}, v{vt0}')
    a(f'v_xor_b32 v{vt0}, 64, v{vt0}')
    a(f'v_add_u32 v{vXS+1}, v{vt1}, v{vt0}')
    a('s_waitcnt lgkmcnt(0)')
    if TLBW:
        a(f'v_lshlrev_b32 v20, 20, v{vLANE}')
        a('v_subrev_u32 v20, 0xa00000, v20')
        a('v_min_u32 v20, 0x2100000, v20')
        a('v_mov_b32 v21, s83')
        a('v_add_co_u32 v20, vcc, s82, v20')
        a('v_addc_co_u32 v21, vcc, 0, v21, vcc')
        for ln, p in enumerate((64, 66, 68, 72, 74, 76, 78, 80)):
            a(f'v_writelane_b32 v20, s{p}, {ln}')
            a(f'v_writelane_b32 v21, s{p+1}, {ln}')
        a('global_load_dword v22, v[20:21], off')
    srd(S_X, 64, 2048 * 448 * 2)
    srd(S_WQKV, 66, 448 * 1344 * 2)
    srd(S_WO, 68, 448 * 448 * 2)
    srd(S_WG, 72, 448 * 1792 * 2)
    srd(S_WU, 74, 448 * 1792 * 2)
    srd(S_WD, 76, 1792 * 448 * 2)
    srd(S_OUT, 78, 2048 * 448 * 2)
    srd(S_DBG, 80, 256)
    srd(S_WS, 82, WS_BYTES)
    a(f's_mov_b32 s{sRBG}, s{sE}')
    a(f's_and_b32 s{sREP}, s2, 3')
    a(f's_lshl_b32 s{sREP}, s{sREP}, 12')
    a(f's_lshl_b32 s{sW1K}, s{sW}, 10')
    a(f's_lshl_b32 s{sW2K}, s{sW}, 11')
    a(f's_lshl_b32 s{sW4K}, s{sW}, 12')
    a(f's_lshl_b32 s{sG}, s{sW}, 9')
    a(f's_add_u32 s{sPC}, s{sPC}, s{sG}')
    a(f's_addc_u32 s{sPC+1}, s{sPC+1}, 0')
    a(f's_lshl_b32 s{sG}, s{sW}, 13')
    a(f's_add_u32 s{sG}, s{sG}, {LSTG}')
    a(f's_getreg_b32 s{sXID}, hwreg(HW_REG_XCC_ID)')
    a(f's_and_b32 s{sXID}, s{sXID}, 15')
    a(f's_add_u32 s{sXID}, s{sXID}, 1')
    stamp('start')


def late_consts():
    a(f's_mul_i32 s{sW1SRC}, s{sHC}, {W1S}')
    a(f's_add_u32 s{sW1SRC}, s{sW1SRC}, {W1R}')
    a(f's_mul_i32 s{sW3SRC}, s{sHC}, {W3S}')
    a(f's_add_u32 s{sW3SRC}, s{sW3SRC}, {W3R}')
    a(f's_lshl_b32 s{sWOSRC}, s{sFB}, 16')
    a(f's_lshl_b32 s{sA}, s{sW}, 14')
    a(f's_add_u32 s{sWOSRC}, s{sWOSRC}, s{sA}')
    a(f's_add_u32 s{sWOSRC}, s{sWOSRC}, {WOR}')
    a(f's_mul_i32 s{sWDSRC}, s{sFB}, {WDS}')
    a(f's_mul_i32 s{sA}, s{sW}, 57344')
    a(f's_add_u32 s{sWDSRC}, s{sWDSRC}, s{sA}')
    a(f's_add_u32 s{sWDSRC}, s{sWDSRC}, {WDR}')
    a(f's_add_u32 s{S_LY}, s{S_WS}, {LYB}')
    a(f's_addc_u32 s{S_LY+1}, s{S_WS+1}, 0')
    a(f's_mov_b32 s{S_LY+2}, {2*LYB}')
    a(f's_mov_b32 s{S_LY+3}, 0x00020000')
    a(f's_mov_b32 s{S_DT}, s{S_LY}')
    a(f's_mov_b32 s{S_DT+1}, s{S_LY+1}')
    a(f's_mov_b32 s{S_DT+2}, {2*LYB}')
    a(f's_mov_b32 s{S_DT+3}, 0x00020000')


UD = 128
UC = 192
vRHO, vHI, vSIG, vR8, vC8 = 204, 205, 206, 207, 212
vt0, vt1, vt2, vt3 = 208, 209, 210, 211
vXS = 214
LSTG = 4 * K
LXS = 40 * K


PASS = {'p': 'src'}


class Done(Exception):
    pass


def run_setup(fn, *args):
    try:
        fn(*args)
    except Done:
        pass


def unit_dma(r, srdreg, vsrc, srow0, srow1):
    if PASS['p'] == 'dst':
        return
    _unit_dma(r, srdreg, vsrc, srow0, srow1)
    raise Done()


def _unit_dma(r, srdreg, vsrc, srow0, srow1):
    a(f's_add_u32 m0, s{sG}, {r*2048}')
    a('s_nop 0')
    a(f'buffer_load_dwordx4 v{vsrc}, {sr(srdreg,4)}, s{srow0} offen {UNT} lds')
    a(f's_add_u32 m0, s{sG}, {r*2048+1024}')
    a('s_nop 0')
    a(f'buffer_load_dwordx4 v{vsrc}, {sr(srdreg,4)}, s{srow1} offen {UNT} lds')


def div7(q, rem, su):
    a(f's_mul_i32 s{q}, s{su}, 9363')
    a(f's_lshr_b32 s{q}, s{q}, 16')
    a(f's_mul_i32 s{rem}, s{q}, 7')
    a(f's_sub_u32 s{rem}, s{su}, s{rem}')


def setup_w1(r, su):
    col, dst, aug = UC + 3 * r, UC + 3 * r + 1, UC + 3 * r + 2
    div7(sA, sB, su)
    a(f's_lshr_b32 s{sC}, s{sA}, 3')
    a(f's_and_b32 s{sA}, s{sA}, 7')
    a(f's_mul_i32 s{sD}, s{sC}, 896')
    a(f's_mul_i32 s{sE}, s{sA}, 112')
    a(f's_add_u32 s{sD}, s{sD}, s{sE}')
    a(f's_lshl_b32 s{sF}, s{sB}, 2')
    a(f's_add_u32 s{sF}, s{sF}, s{sW}')
    a(f's_mul_i32 s{sE}, s{sF}, {16*2688}')
    a(f's_add_u32 s{sD}, s{sD}, s{sE}')
    a(f's_add_u32 s{sE}, s{sD}, {8*2688}')
    a(f'v_mul_u32_u24 v{vt0}, 2688, v{vR8}')
    a(f'v_add_u32 v{vt0}, v{vt0}, v{vC8}')
    a(f'v_cmp_eq_u32 vcc, 112, v{vC8}')
    a(f'v_mov_b32 v{vt1}, {OOB:#x}')
    a(f'v_cndmask_b32 v{vt0}, v{vt0}, v{vt1}, vcc')
    unit_dma(r, S_WQKV, vt0, sD, sE)
    a(f'v_cmp_le_u32 vcc, 24, v{vSIG}')
    a(f'v_subrev_u32 v{vt0}, 2, v{vSIG}')
    a(f'v_cndmask_b32 v{vt0}, v{vSIG}, v{vt0}, vcc')
    a(f'v_mad_u32_u24 v{vt0}, v{vHI}, 28, v{vt0}')
    a(f'v_and_b32 v{vt1}, 0x16, v{vSIG}')
    a(f'v_cmp_eq_u32 vcc, 0x16, v{vt1}')
    a(f'v_cndmask_b32 v{vt0}, v{vt0}, 56, vcc')
    a(f'v_lshl_add_u32 v{col}, v{vt0}, 1, s{sG}')
    a(f's_sub_u32 s{sE}, s{sC}, 1')
    a(f's_cmp_eq_u32 s{sC}, 0')
    a(f's_cselect_b32 s{sE}, 2, s{sE}')
    a(f's_mul_i32 s{sD}, s{sF}, 3')
    a(f's_add_u32 s{sD}, s{sD}, s{sE}')
    a(f's_add_u32 s{sE}, s{sE}, 84')
    a(f's_mul_i32 s{sA}, s{sA}, {2*W1S}')
    a(f's_add_u32 s{sA}, s{sA}, {W1R}')
    a(f's_lshl_b32 s{sD}, s{sD}, 10')
    a(f's_add_u32 s{sD}, s{sD}, s{sA}')
    a(f's_lshl_b32 s{sE}, s{sE}, 10')
    a(f's_add_u32 s{sE}, s{sE}, s{sA}')
    a(f's_lshl_b32 s{sB}, s{sB}, 7')
    a(f's_add_u32 s{sE}, s{sE}, s{sB}')
    a(f'v_mul_u32_u24 v{vt0}, {W1S}, v{vHI}')
    a(f'v_lshl_add_u32 v{dst}, v{vRHO}, 4, v{vt0}')
    a(f'v_add_u32 v{dst}, s{sD}, v{dst}')
    a(f'v_lshl_add_u32 v{aug}, v{vRHO}, 2, v{vt0}')
    a(f'v_add_u32 v{aug}, s{sE}, v{aug}')


def setup_w3(r, su, tsrd):
    col, dst, aug = UC + 3 * r, UC + 3 * r + 1, UC + 3 * r + 2
    div7(sA, sB, su)
    a(f's_cmp_ge_u32 s{sA}, 28')
    a(f's_cselect_b32 s{tsrd}, s{S_WU}, s{S_WG}')
    a(f's_cselect_b32 s{tsrd+1}, s{S_WU+1}, s{S_WG+1}')
    a(f's_cselect_b32 s{sC}, 28, 0')
    a(f's_cselect_b32 s{sD}, 16, 0')
    a(f's_mov_b32 s{tsrd+2}, {448*1792*2}')
    a(f's_mov_b32 s{tsrd+3}, 0x00020000')
    a(f's_sub_u32 s{sA}, s{sA}, s{sC}')
    a(f's_lshl_b32 s{sE}, s{sB}, 2')
    a(f's_add_u32 s{sE}, s{sE}, s{sW}')
    a(f's_mul_i32 s{sC}, s{sE}, {16*3584}')
    a(f's_lshl_b32 s{sF}, s{sA}, 7')
    a(f's_add_u32 s{sC}, s{sC}, s{sF}')
    a(f's_add_u32 s{sF}, s{sC}, {8*3584}')
    a(f'v_mul_u32_u24 v{vt0}, 3584, v{vR8}')
    a(f'v_add_u32 v{vt0}, v{vt0}, v{vC8}')
    unit_dma(r, tsrd, vt0, sC, sF)
    a(f'v_and_b32 v{vt0}, 48, v{vLANE}')
    a(f'v_and_or_b32 v{vt0}, v{vSIG}, 15, v{vt0}')
    a(f'v_lshl_add_u32 v{col}, v{vt0}, 1, s{sG}')
    a(f'v_lshrrev_b32 v{vt0}, 4, v{vLANE}')
    a(f's_lshl_b32 s{sC}, s{sA}, 2')
    a(f'v_add_u32 v{vt0}, s{sC}, v{vt0}')
    a(f'v_mul_u32_u24 v{vt1}, 9363, v{vt0}')
    a(f'v_lshrrev_b32 v{vt1}, 16, v{vt1}')
    a(f'v_mul_u32_u24 v{vt2}, 7, v{vt1}')
    a(f'v_sub_u32 v{vt0}, v{vt0}, v{vt2}')
    a(f's_mul_i32 s{sF}, s{sE}, {3 if G3 else 2}')
    a(f'v_add_u32 v{vt2}, s{sF}, v{vt0}')
    a(f'v_add_u32 v{aug}, {84 if G3 else 56}, v{vt0}')
    a(f's_cmp_ge_u32 s{sE}, 27')
    a(f's_cselect_b32 s{sC}, 58, 0')
    a(f's_sub_u32 s{sC}, s{sE}, s{sC}')
    a(f's_add_u32 s{sC}, s{sC}, 176')
    for t, base, ag in (() if G3 else ((2, 59, None),)) + ((3, 87, 115), (4, 116, 144), (5, 147, 175), (6, None, 146)):
        a(f'v_cmp_eq_u32 vcc, {t}, v{vt0}')
        if base is not None:
            a(f's_add_u32 s{sF}, s{sE}, {base}')
            a(f'v_mov_b32 v{vt3}, s{sF}')
        else:
            a(f'v_mov_b32 v{vt3}, s{sC}')
        a(f'v_cndmask_b32 v{vt2}, v{vt2}, v{vt3}, vcc')
        if ag is not None:
            a(f'v_mov_b32 v{vt3}, {ag}')
            a(f'v_cndmask_b32 v{aug}, v{aug}, v{vt3}, vcc')
    a(f'v_mul_u32_u24 v{vt1}, 203, v{vt1}')
    a(f'v_add_lshl_u32 v{vt2}, v{vt2}, v{vt1}, 10')
    a(f'v_add_lshl_u32 v{aug}, v{aug}, v{vt1}, 10')
    a(f'v_and_b32 v{vt0}, 15, v{vLANE}')
    a(f'v_add_u32 v{vt0}, s{sD}, v{vt0}')
    a(f'v_lshl_add_u32 v{dst}, v{vt0}, 4, v{vt2}')
    a(f'v_add_u32 v{dst}, {W3R:#x}, v{dst}')
    a(f'v_lshl_add_u32 v{aug}, v{vt0}, 2, v{aug}')
    a(f's_lshl_b32 s{sB}, s{sB}, 7')
    a(f's_add_u32 s{sB}, s{sB}, {W3R}')
    a(f'v_add_u32 v{aug}, s{sB}, v{aug}')


def setup_colsT(r):
    col, dst, aug = UC + 3 * r, UC + 3 * r + 1, UC + 3 * r + 2
    a(f'v_lshl_add_u32 v{vt0}, v{vHI}, 5, v{vSIG}')
    a(f'v_lshl_add_u32 v{col}, v{vt0}, 1, s{sG}')
    a(f'v_lshlrev_b32 v{dst}, 10, v{vHI}')
    a(f'v_lshl_add_u32 v{dst}, v{vRHO}, 4, v{dst}')
    a(f'v_mov_b32 v{aug}, {OOB:#x}')


def setup_wd(r, su):
    dst = UC + 3 * r + 1
    div7(sA, sB, su)
    a(f's_lshl_b32 s{sA}, s{sA}, 2')
    a(f's_add_u32 s{sA}, s{sA}, s{sW}')
    a(f's_mul_i32 s{sC}, s{sA}, {16*896}')
    a(f's_lshl_b32 s{sD}, s{sB}, 7')
    a(f's_add_u32 s{sC}, s{sC}, s{sD}')
    a(f's_add_u32 s{sD}, s{sC}, {8*896}')
    a(f'v_mul_u32_u24 v{vt0}, 896, v{vR8}')
    a(f'v_add_u32 v{vt0}, v{vt0}, v{vC8}')
    unit_dma(r, S_WD, vt0, sC, sD)
    setup_colsT(r)
    div7(sC, sD, sA)
    a(f's_mul_i32 s{sB}, s{sB}, {WDS}')
    a(f's_lshr_b32 s{sE}, s{sC}, 2')
    a(f's_mul_i32 s{sE}, s{sE}, 57344')
    a(f's_add_u32 s{sB}, s{sB}, s{sE}')
    a(f's_lshl_b32 s{sD}, s{sD}, 2')
    a(f's_and_b32 s{sC}, s{sC}, 3')
    a(f's_add_u32 s{sD}, s{sD}, s{sC}')
    a(f's_lshl_b32 s{sD}, s{sD}, 11')
    a(f's_add_u32 s{sB}, s{sB}, s{sD}')
    a(f's_add_u32 s{sB}, s{sB}, {WDR}')
    a(f'v_add_u32 v{dst}, s{sB}, v{dst}')


def setup_wo(r, su):
    dst = UC + 3 * r + 1
    div7(sA, sB, su)
    a(f's_lshl_b32 s{sA}, s{sA}, 2')
    a(f's_add_u32 s{sA}, s{sA}, s{sW}')
    a(f's_lshr_b32 s{sC}, s{sA}, 1')
    a(f's_mul_i32 s{sC}, s{sC}, {28*896}')
    a(f's_lshl_b32 s{sD}, s{sB}, 7')
    a(f's_add_u32 s{sC}, s{sC}, s{sD}')
    a(f's_and_b32 s{sD}, s{sA}, 1')
    a(f's_cselect_b32 s{sD}, {16*896}, 0')
    a(f's_cselect_b32 s{sE}, {14*896}, 0')
    a(f's_add_u32 s{sD}, s{sD}, s{sC}')
    a(f's_add_u32 s{sE}, s{sE}, s{sC}')
    a(f's_add_u32 s{sE}, s{sE}, {8*896}')
    a(f'v_mul_u32_u24 v{vt0}, 896, v{vR8}')
    a(f'v_add_u32 v{vt0}, v{vt0}, v{vC8}')
    unit_dma(r, S_WO, vt0, sD, sE)
    setup_colsT(r)
    a(f's_lshl_b32 s{sB}, s{sB}, 16')
    a(f's_lshl_b32 s{sC}, s{sA}, 11')
    a(f's_add_u32 s{sB}, s{sB}, s{sC}')
    a(f's_add_u32 s{sB}, s{sB}, {WOR}')
    a(f'v_add_u32 v{dst}, s{sB}, v{dst}')


def setup_none(r):
    col, dst, aug = UC + 3 * r, UC + 3 * r + 1, UC + 3 * r + 2
    a(f'v_mov_b32 v{col}, 0')
    a(f'v_mov_b32 v{dst}, {OOB:#x}')
    a(f'v_mov_b32 v{aug}, {OOB:#x}')


def rounds(tag):
    a('s_cmp_ge_u32 s2, 168')
    a(f's_cbranch_scc1 L_r0b{tag}')
    with cond():
        run_setup(setup_w1, 0, 2)
    a(f's_branch L_r0e{tag}')
    a.label(f'L_r0b{tag}')
    a('s_cmp_ge_u32 s2, 224')
    a(f's_cbranch_scc1 L_r0c{tag}')
    with cond():
        a(f's_sub_u32 s{sU}, s2, 168')
        run_setup(setup_wo, 0, sU)
    a(f's_branch L_r0e{tag}')
    a.label(f'L_r0c{tag}')
    with cond():
        a(f's_sub_u32 s{sU}, s2, 224')
        run_setup(setup_wd, 0, sU)
    a.label(f'L_r0e{tag}')
    run_setup(setup_w3, 1, 2, S_T0)
    a('s_cmp_ge_u32 s2, 136')
    a(f's_cbranch_scc1 L_r2b{tag}')
    with cond():
        a(f's_add_u32 s{sU}, s2, 256')
        run_setup(setup_w3, 2, sU, S_T1)
    a(f's_branch L_r2e{tag}')
    a.label(f'L_r2b{tag}')
    with cond():
        a(f's_sub_u32 s{sU}, s2, 104')
        run_setup(setup_wd, 2, sU)
    a.label(f'L_r2e{tag}')
    a('s_cmp_ge_u32 s2, 212')
    a(f's_cbranch_scc1 L_r3b{tag}')
    if PASS['p'] == 'dst':
        setup_none(3)
    a(f's_branch L_r3e{tag}')
    a.label(f'L_r3b{tag}')
    with cond():
        a(f's_sub_u32 s{sU}, s2, 60')
        run_setup(setup_wd, 3, sU)
    a.label(f'L_r3e{tag}')


def init_phase():
    Z = 216
    vGO = 215 + 9
    a(f's_lshl_b32 s{sA}, s{sW}, 3')
    a(f's_add_u32 s{sB}, s{sA}, s2')
    a(f's_mov_b32 s{sZW}, s{sB}')
    a(f's_cmp_ge_u32 s{sZW}, 8')
    a('s_cbranch_scc1 L_z1')
    with cond():
        a(f's_lshl_b32 s{sA}, s2, 11')
        a(f'buffer_store_dwordx4 {vr(Z,4)}, v{vL16}, {sr(S_WS,4)}, s{sA} offen sc1')
        a(f'buffer_store_dwordx4 {vr(Z,4)}, v{vL16}, {sr(S_WS,4)}, s{sA} offen offset:1024 sc1')
    a.label('L_z1')
    PASS['p'] = 'src'
    rounds('s')
    um = mark()
    a(f's_mul_i32 s{sI}, s{sTILE1}, 28672')
    a(f's_mul_i32 s{sH}, s{sW}, {28*K}')
    a(f's_add_u32 s{sH}, s{sH}, {LXS}')
    xq = []
    for g in range(4):
        for c in range(7):
            it = [f's_add_u32 m0, s{sH}, {(4*c+g)*K - c*128}',
                  f'buffer_load_dwordx4 v{vXS + (g & 1)}, {sr(S_X,4)}, s{sI} offen offset:{c*128} {XNT2} lds']
            if c == 6:
                it.append(f's_add_u32 s{sI}, s{sI}, {8*896}')
            xq.append(it)
    a(f's_mul_i32 s{sA}, s{sHC}, {14*128}')
    a(f's_add_u32 s{sA}, s{sA}, s{sI}')
    a(f'v_min_u32 v{vt0}, 13, v{vLANE}')
    a(f'v_lshlrev_b32 v{vt0}, 7, v{vt0}')
    a(f'buffer_load_dword v17, v{vt0}, {sr(S_X,4)}, s{sA} offen {XNT}')
    for _ in range(X0N):
        emit(xq.pop(0))
    stamp('issued')
    a(f's_cmp_ge_u32 s{sZW}, 8')
    a('s_cbranch_scc1 L_z2')
    with cond():
        a(f's_waitcnt vmcnt({7+X0N})')
        a(f's_lshl_b32 s{sA}, s2, 5')
        emit(flag_store(S_DBG, f's{sA}', sc='sc1'))
    a.label('L_z2')
    PASS['p'] = 'dst'
    rounds('d')
    a(f's_lshl_b32 s{sA}, s{sW}, 8')
    a(f'v_add_u32 v{vt1}, s{sA}, v{vL4}')
    a(f'v_and_b32 v{vt3}, 7, v{vLANE}')
    a(f'v_lshlrev_b32 v{vt3}, 5, v{vt3}')
    a(f's_lshl_b32 s{sA}, s2, 10')
    a(f's_add_u32 s{sB}, s{sW}, 1')
    a(f's_lshl_b32 s{sB}, s{sB}, 24')
    a(f's_add_u32 s{sA}, s{sA}, s{sB}')
    a(f's_sub_u32 s{sB}, s{sA}, {2*LYB - ST1}')
    a(f's_cmp_eq_u32 s{sW}, 2')
    a(f's_cselect_b32 s{sA}, s{sB}, s{sA}')
    a(f's_cmp_ge_u32 s{sW}, 3')
    a(f's_cselect_b32 s{sA}, {OOB:#x}, s{sA}')
    a.wait(um, force=True)
    stamp('ldone')
    a(f'buffer_store_dwordx4 {vr(Z,4)}, v{vL16}, {sr(S_WS,4)}, s{sA} offen sc1')
    rtok = {}

    def gat(r, half):
        for e in range(8):
            rtok[r, half] = a(f'ds_read_u16 v{UD+16*r+8*half+e}, v{UC+3*r} offset:{r*2048+(8*half+e)*128}')
    gat(0, 0)
    for r in range(4):
        R = UD + 16 * r
        dst = UC + 3 * r + 1
        for half in range(2):
            nxt = 2 * r + half + 1
            if nxt < 8:
                gat(nxt // 2, nxt % 2)
            a.wait(rtok[r, half])
            for m in range(4):
                a(f'v_lshl_or_b32 v{R+8*half+m}, v{R+8*half+2*m+1}, 16, v{R+8*half+2*m}')
            a(f'buffer_store_dwordx4 {vr(R+8*half,4)}, v{dst}, {sr(S_WS,4)}, 0 offen offset:{512*half} sc1')
            for _ in range(XI):
                emit(xq.pop(0))
    for r in range(3):
        R = UD + 16 * r
        a(f'v_mov_b32 v{R+4}, 0')
        for m in range(4):
            a(f'v_dot2c_f32_bf16 v{R+4}, s{sONES}, v{R+m}')
            a(f'v_dot2c_f32_bf16 v{R+4}, s{sONES}, v{R+8+m}')
        a(f'ds_write_b32 v{vt1}, v{R+4} offset:{r*1024}')
    a(f'buffer_load_dword v{vGO}, v{vt3}, {sr(S_DBG,4)}, 0 offen sc1')
    stamp('packed') if 'initprof' in OPT else None
    a.wait_lg0()
    a.barrier()
    a(f's_cmp_eq_u32 s{sW}, 3')
    a('s_cbranch_scc1 L_aug_e')
    with cond():
        R = 220
        a(f'v_add_u32 v{vt0}, s{sW1K}, v{vL4}')
        a(f'ds_read2st64_b32 {vr(R,2)}, v{vt0} offset0:0 offset1:1')
        t = a(f'ds_read2st64_b32 {vr(R+2,2)}, v{vt0} offset0:2 offset1:3')
        a(f's_cmp_eq_u32 s{sW}, 1')
        a('s_cselect_b64 vcc, -1, 0')
        a(f'v_cndmask_b32 v{vt2}, v{UC+2}, v{UC+5}, vcc')
        a(f's_cmp_eq_u32 s{sW}, 2')
        a('s_cselect_b64 vcc, -1, 0')
        a(f'v_cndmask_b32 v{vt2}, v{vt2}, v{UC+8}, vcc')
        a(f'v_bfe_u32 v{vt0}, v{vt2}, 7, 3')
        a(f'v_cmp_eq_u32 vcc, 6, v{vt0}')
        a(f'v_mov_b32 v{vt1}, {OOB:#x}')
        a(f'v_cndmask_b32 v{vt0}, v{vt1}, v{vt2}, vcc')
        a(f'buffer_store_dword v{Z}, v{vt0}, {sr(S_WS,4)}, 0 offen offset:128 sc1')
        a.wait(t)
        a(f'v_add_f32 v{R}, v{R}, v{R+1}')
        a(f'v_add_f32 v{R+2}, v{R+2}, v{R+3}')
        a(f'v_add_f32 v{R}, v{R}, v{R+2}')
        a(f'v_cvt_pk_bf16_f32 v{R+1}, v{R}, v{R}')
        a(f'v_and_b32 v{R+1}, 0xffff0000, v{R+1}')
        a(f'v_sub_f32 v{R+1}, v{R}, v{R+1}')
        a(f'v_cvt_pk_bf16_f32 v{R+1}, v{R}, v{R+1}')
        a(f'buffer_store_dword v{R+1}, v{vt2}, {sr(S_WS,4)}, 0 offen sc1')
    a.label('L_aug_e')
    sm = mark()
    for _ in range(min(XA, len(xq))):
        emit(xq.pop(0))
    a.wait(sm, force=True)
    stamp('acked') if 'initprof' in OPT else None
    a.barrier()
    a(f's_cmp_lg_u32 s{sW}, 3')
    a('s_cbranch_scc1 L_ib')
    with cond():
        a(f'v_cmp_ne_u32 vcc, 1, v{vGO}')
        a('s_cmp_eq_u64 vcc, 0')
        a('s_cbranch_scc1 L_go_ok')
        with cond():
            poll(S_DBG, vt3, 0, sleep=2)
        a.label('L_go_ok')
        a(f'v_lshlrev_b32 v{vt0}, 12, v{vLANE}')
        a(f'v_mov_b32 v{vt1}, s{sXID}')
        a(f's_lshl_b32 s{sA}, s2, 4')
        a('s_mov_b64 exec, 15')
        a(f'buffer_store_dword v{vt1}, v{vt0}, {sr(S_WS,4)}, s{sA} offen sc1')
        a('s_mov_b64 exec, -1')
    a.label('L_ib')
    stamp('ibpub')
    while xq:
        emit(xq.pop(0))
    a(f's_mul_i32 s{sA}, s{sOWN}, 28672')
    a(f's_lshl_b32 s{sB}, s{sOFT}, 6')
    a(f's_add_u32 s{sA}, s{sA}, s{sB}')
    a(f'buffer_load_dwordx4 {vr(vXRES,4)}, v{vROW}, {sr(S_X,4)}, s{sA} offen')
    a(f'buffer_load_dwordx4 {vr(vXRES+4,4)}, v{vROW}, {sr(S_X,4)}, s{sA} offen offset:32')
    late_consts()
    a(f'v_lshrrev_b32 v{vt0}, 3, v{vRHO}')
    a(f'v_lshlrev_b32 v{vt0}, 10, v{vt0}')
    a(f'v_and_b32 v{vt1}, 7, v{vRHO}')
    a(f'v_lshl_add_u32 v{vt0}, v{vt1}, 7, v{vt0}')
    a(f'v_add_u32 v{vt0}, s{sH}, v{vt0}')
    a(f'v_bfe_u32 v{vt1}, v{vRHO}, 1, 3')
    a(f'v_xor_b32 v{vt1}, v{vt1}, v{vHI}')
    for q in range(4):
        a(f'v_xor_b32 v{220+q}, {2*q}, v{vt1}')
        a(f'v_lshl_add_u32 v{220+q}, v{220+q}, 4, v{vt0}')
    a(f'v_min_u32 v{vt0}, 20, v{vLANE}')
    a(f'v_mul_u32_u24 v{vt1}, 37, v{vt0}')
    a(f'v_lshrrev_b32 v{vt1}, 8, v{vt1}')
    a(f'v_mad_u32_u24 v{vt0}, v{vt1}, 49, v{vt0}')
    a(f's_lshr_b32 s{sA}, s{sHC}, 1')
    a(f's_mul_i32 s{sA}, s{sA}, 7')
    a(f'v_add_lshl_u32 v{vt2}, v{vt0}, s{sA}, 4')
    a.wait_vm_n(2)
    stamp('xland') if 'initprof' in OPT else None
    for ks in range(28):
        a(f'ds_read_b128 {vr(16+4*ks,4)}, v{220+(ks&3)} offset:{(ks>>2)*4096}')
    a(f'v_mov_b32 v240, v{vt2}')
    own_consts()
    p1_setup(True)
    dma_setup(205, sW1SRC, 0, 0)
    a.wait_lg0()
    a.barrier()
    poll(S_WS, 240, f's{sREP}', nonzero=True)
    stamp('w1rdy')


def x0_stats(items):
    S0, S1, Q0, Q1 = 216, 217, 218, 219
    for _ in range(4):
        emit(items.pop(0))
    for v in (S0, S1, Q0, Q1):
        a(f'v_mov_b32 v{v}, 0')
    for i in range(0, 112, 2):
        if items and i % 6 == 0:
            emit(items.pop(0))
        a(f'v_dot2c_f32_bf16 v{S0}, s{sONES}, v{16+i}')
        a(f'v_dot2c_f32_bf16 v{Q0}, v{16+i}, v{16+i}')
        a(f'v_dot2c_f32_bf16 v{S1}, s{sONES}, v{17+i}')
        a(f'v_dot2c_f32_bf16 v{Q1}, v{17+i}, v{17+i}')
    a(f'v_add_f32 v{S0}, v{S0}, v{S1}')
    a(f'v_add_f32 v{S1}, v{Q0}, v{Q1}')
    emit(stats_finish(P1_XAUG))


vRSTD, vC2, vISTD = 248, 249, 250
P1_XAUG = 200


def stats_finish(xaug, SB=216):
    S, Q, t0, t1 = SB, SB + 1, SB + 2, SB + 3
    o = [f'v_mov_b32 v{t0}, v{S}',
         f'v_mov_b32 v{t1}, v{Q}',
         f'v_permlane32_swap_b32 v{S}, v{t0}',
         f'v_permlane32_swap_b32 v{Q}, v{t1}',
         f'v_add_f32 v{S}, v{S}, v{t0}',
         f'v_add_f32 v{Q}, v{Q}, v{t1}',
         f'v_mul_f32 v{S}, {INV448:#x}, v{S}',
         f'v_mul_f32 v{Q}, {INV448:#x}, v{Q}',
         f'v_fma_f32 v{Q}, -v{S}, v{S}, v{Q}',
         f'v_max_f32 v{Q}, 0, v{Q}',
         f'v_add_f32 v{Q}, {EPS5:#x}, v{Q}',
         f'v_rsq_f32 v{vRSTD}, v{Q}',
         f'v_cvt_pk_bf16_f32 v{xaug}, -v{S}, -v{S}',
         f'v_mul_f32 v{vISTD}, v{Q}, v{vRSTD}',
         f'v_mul_f32 v{vC2}, {LOG2E:#x}, v{vRSTD}']
    o += [f'v_mov_b32 v{xaug+i}, v{xaug}' for i in range(1, 4)]
    return o


def stats_sum(SB=216):
    o = []
    for i in range(1, 7):
        o.append(f'v_add_f32 v{SB}, v{SB}, v{SB+2*i}')
        o.append(f'v_add_f32 v{SB+1}, v{SB+1}, v{SB+2*i+1}')
    return o


def x_prep(fl, xb, stb):
    a(f'v_and_b32 v240, 15, v{vLANE}')
    a(f'v_min_u32 v240, 13, v240')
    a(f'v_lshlrev_b32 v240, 5, v240')
    a(f's_lshl_b32 s{sC}, s{sTILE1}, 9')
    a(f's_add_u32 s{sC}, s{sC}, {fl}')
    a(f's_lshl_b32 s{sD}, s{sTILE1}, 12')
    a(f's_add_u32 s{sD}, s{sD}, {stb}')
    a(f's_mul_i32 s{sE}, s{sTILE1}, {28*K}')
    a(f's_add_u32 s{sE}, s{sE}, {xb}')


def x_load(ks):
    if ks % 4 == 0 and ks:
        a(f's_add_u32 s{sE}, s{sE}, 4096')
    return a(f'buffer_load_dwordx4 {vr(16+4*ks,4)}, v{vL16}, {sr(S_DT,4)}, s{sE} offen offset:{(ks%4)*K} sc1')


def st_load(i, SB=216):
    return a(f'buffer_load_dwordx4 {vr(SB+4*i,4)}, v{vL16}, {sr(S_DT,4)}, s{sD} offen offset:{i*K} sc1')


def st_loads(SB=216):
    t = None
    for i in range(7):
        t = a(f'buffer_load_dwordx2 {vr(SB+2*i,2)}, v241, {sr(S_DT,4)}, s{sD} offen offset:{i*256} sc1')
    return t


def read_aug(dst, addr, tmp):
    a(f'v_add_u32 v{tmp}, {addr:#x}, v{vAUG}')
    a(f'ds_read2_b32 {vr(dst,2)}, v{tmp} offset0:0 offset1:32')
    return a(f'ds_read2_b32 {vr(dst+2,2)}, v{tmp} offset0:64 offset1:96')


def read_frag(dst, addr):
    v, off = lds_addr(addr)
    return a(f'ds_read_b128 {vr(dst,4)}, v{v} offset:{off}')


def wfrag_items(regfn, ssrc, lo, hi, va, vb, stmp):
    items = []
    for i, n in enumerate(range(lo, hi)):
        for b in range(2):
            it = []
            if i % 2 == 0 and b == 0:
                it.append(f's_add_u32 s{stmp}, s{ssrc}, {n*2048}')
            it.append(f'buffer_load_dwordx4 {regfn(n,b)}, v{(va,vb)[b]}, {sr(S_WS,4)}, s{stmp} offen offset:{(i%2)*2048} {WSC}')
            items.append(it)
    return items


def slot_addr_setup(va, vb):
    a(f's_and_b32 s{sA}, s{sW1K}, 0x400')
    a(f'v_add_u32 v{va}, s{sA}, v{vL16}')
    a(f'v_xor_b32 v{vb}, 0x400, v{va}')


def cost(x):
    op = x.split()[0]
    return 2 if op.startswith(('v_exp', 'v_rcp', 'v_rsq')) else 1


def drip(q, budget):
    while q and budget >= cost(q[0]):
        x = q.pop(0)
        budget -= cost(x)
        a(x)


CAP = int(OPT.get('cap', 7))
G3 = int(OPT.get('g3', 1))
F1AT = int(OPT.get('f1at', 22))
PQSPLIT = int(OPT.get('pqsplit', 1))
WDP3 = int(OPT.get('wdp3', 36))
WDP1 = int(OPT.get('wdp1', 8))
PUBD2 = int(OPT.get('pubd2', 22))
PRET = int(OPT.get('pret', 1))
PUBD = int(OPT.get('pubd', 20))
S0T = int(OPT.get('s0t', 2))


def shadow(mem, vq, cap=None, pop=None):
    n0 = len(a.ins)
    for f in mem:
        if f is None:
            continue
        if callable(f):
            f()
        else:
            emit(f)
    budget = (CAP if cap is None else cap) - (len(a.ins) - n0)
    while vq and budget >= cost(vq[0]):
        budget -= cost(vq[0])
        if pop:
            pop()
        else:
            a(vq.pop(0))


def split_item(it):
    if it is None:
        return None, None
    return it[:-1], it[-1:]


ACK, ACV, ACQ = 128, 144, 160
P1WR = 176
P1RR2 = 216
p1D1, p1SA, p1SB = 204, 206, 207
p1RSW, p1RSR, p1OH = 208, 209, 210
LMODE = LRS + 1008


CARRY = []


def FAST():
    return MODE['sfx'] != '_s'


def p1_setup(first):
    if not first:
        x_prep(F0 + LYB, *((X1, ST1) if FAST() else (X0 + LYB, ST0 + LYB)))
    slot_addr_setup(p1SA, p1SB)
    a(f'v_and_b32 v{p1OH}, 27, v{vLANE}')
    a(f'v_cmp_eq_u32 vcc, 26, v{p1OH}')
    a(f'v_cndmask_b32 v{p1OH}, 0, 1.0, vcc')
    a(f'v_mov_b32 v{p1OH+1}, v{p1OH}')
    a(f's_add_u32 s{sA}, s{sW4K}, {LKVS}')
    a(f'v_and_b32 v{p1RSW}, 31, v{vLANE}')
    a(f'v_lshl_add_u32 v{p1RSW}, v{p1RSW}, 2, s{sA}')
    a(f'v_lshrrev_b32 v{p1RSR}, 5, v{vLANE}')
    a(f'v_lshl_add_u32 v{p1RSR}, v{p1RSR}, 4, s{sA}')
    dma_setup(p1D1, sW3SRC, 0, LALPHA)


def phase1_kv(first):
    WR, XAUG, RR, RR2, KVD = P1WR, P1_XAUG, ACQ, P1RR2, 232
    vRSW, vRSR, vOH = p1RSW, p1RSR, p1OH
    PRE = XPRE
    xt, vq, st = {}, [], {}
    if first:
        its = dma_items(205, 0, 88, 2)
        x0_stats(its)
        assert not its
        w1m = mark()
        stamp('stats')
    else:
        if B1E:
            a('s_waitcnt vmcnt(1)')
            a.barrier()
    bg = ([] if first else code_touch(205, 212)) + dma_items(p1D1, LALPHA, 56, 2)
    rt = {}
    stage = (0, 8, 16) if first else ()

    def ib_check():
        a.wait(st['ib'])
        check_or_poll(254, S_WS, vL16, f's{sH}', nonzero=True)
        a(f's_and_b32 s{sA}, s2, 7')
        a(f'v_and_b32 v252, 7, v{vLANE}')
        a(f'v_cmp_eq_u32 {sr(sC,2)}, s{sA}, v252')
        a(f'v_cmp_ne_u32 vcc, s{sXID}, v254')
        a(f's_and_b64 vcc, vcc, {sr(sC,2)}')
        a(f's_cselect_b32 s{sZW}, 1, 0')

    def rd(ks, tl):
        if ks > 28:
            return
        if ks in stage and tl == 0:
            need_ops = 22 if ks == 16 else 2 * ((3 * (ks + 8) + 7) // 8)
            a.wait(('vm', w1m[1] - 22 + need_ops))
            if ks == 16:
                ib_check()
            a.barrier()
        d = WR + 8 * (ks % 3) + 4 * tl
        addr = (3 * ks + tl) * K
        rt[ks] = read_frag(d, addr) if ks < 28 else read_aug(d, addr, 252 + tl)
    if first or B1E:
        for ks in range(2):
            rd(ks, 0); rd(ks, 1)
    if not first:
        poll(S_LY, 240, f's{sC}')
        stamp('p1poll')
        for ks in range(4):
            xt[ks] = x_load(ks)
        a(f's_add_u32 s{S_LY}, s{S_LY}, {LYB}')
        a(f's_addc_u32 s{S_LY+1}, s{S_LY+1}, 0')
        if not B1E:
            a.barrier()
            for ks in range(2):
                rd(ks, 0); rd(ks, 1)
        for ks in range(4, PRE):
            xt[ks] = x_load(ks)
    rr = {}

    def stl(i):
        st['s'] = st_load(i)

    def xl(ks):
        xt[ks] = x_load(ks)

    def ibl():
        a(f's_add_u32 s{sH}, s{sREP}, s{sW1K}')
        st['ib'] = a(f'buffer_load_dword v254, v{vL16}, {sr(S_WS,4)}, s{sH} offen sc1')

    def rs_write():
        a(f'ds_write2_b32 v{vRSW}, v{vRSTD}, v{vC2} offset0:0 offset1:32')

    def rs_read(j):
        a(f'ds_read_b128 {vr(RR+4*j,4)}, v{vRSR} offset:{32*j}')
        rr[0] = a(f'ds_read_b128 {vr(RR2+4*j,4)}, v{vRSR} offset:{128+32*j}')
    for ks in range(29):
        if not first and ks == 15:
            a.wait(st['s'])
            vq += stats_sum() + stats_finish(XAUG)
        stamp(f'k{ks}', fine=True) if ks in (1, 8, 15, 21) else None
        a.wait(rt[ks], xt.get(ks))
        X = vr(16 + 4 * ks, 4) if ks < 28 else vr(XAUG, 4)
        c = (lambda r: '0' if ks == 0 else vr(r, 16))
        if not first and ks + PRE < 28:
            pre, main = None, (lambda k_=ks + PRE: xl(k_))
        elif first and ks == 5:
            pre, main = None, ibl
        else:
            pre, main = split_item(bg.pop(0) if bg and (ks >= 15 if first else LBG) else None)
        a(f'{MF} {vr(ACK,16)}, {X}, {vr(WR+8*(ks%3),4)}, {c(ACK)}')
        shadow([pre, lambda: rd(ks + 2, 0), main], vq)
        a(f'{MF} {vr(ACV,16)}, {X}, {vr(WR+8*(ks%3)+4,4)}, {c(ACV)}')
        extra = None
        if not first and ks < 8 and ks % 2 == 0:
            extra = (lambda i=ks // 2: stl(i))
        if ks == 23:
            assert not vq
            extra = rs_write
        if 24 <= ks <= 27:
            extra = (lambda j=ks - 24: rs_read(j))
        shadow([lambda: rd(ks + 2, 1), extra], vq)
    stamp('p1kv')
    qt = {}

    def rq(ks):
        if ks > 28:
            return
        d = WR + 4 * (ks % 6)
        addr = (3 * ks + 2) * K
        qt[ks] = read_frag(d, addr) if ks < 28 else read_aug(d, addr, 252)
    for ks in range(4):
        rq(ks)
    KS = LRS
    a(f's_lshl_b32 s{sB}, s{sHC}, 12')
    a(f's_add_u32 s{sB}, s{sB}, s{sW1K}')
    a.wait(rr[0])
    for r in range(0, 16, 2):
        a(f'v_pk_mul_f32 {vr(ACK+r,2)}, {vr(ACK+r,2)}, {vr(RR2+r,2)}')
    def bgp():
        if bg and EPD:
            emit(bg.pop(0))
    for r in range(16):
        a(f'v_exp_f32_e64 v{RR2+r}, v{ACK+r} clamp')
        a(f'v_max_f32 v{ACK+r}, 0, v{ACK+r}')
        if r % 5 == 0:
            bgp()
    for r in range(0, 16, 2):
        a(f'v_pk_fma_f32 {vr(ACV+r,2)}, {vr(ACV+r,2)}, {vr(RR+r,2)}, {vr(vOH,2)}')
        a(f'v_pk_fma_f32 {vr(RR2+r,2)}, {vr(ACK+r,2)}, {sr(sLN2,2)}, {vr(RR2+r,2)}')
    bgp()
    for r in range(0, 16, 2):
        a(f'v_pk_add_f32 {vr(RR2+r,2)}, {vr(RR2+r,2)}, {sr(sEPS6,2)}')
        a(f'v_cvt_pk_bf16_f32 v{ACV+r//2}, v{ACV+r}, v{ACV+r+1}')
    bgp()
    for m in range(4):
        a(f'v_cvt_pk_bf16_f32 v{ACK+m}, v{RR2+2*m}, v{RR2+2*m+1}')
    a(f'{MF} {vr(KVD,16)}, {vr(ACK,4)}, {vr(ACV,4)}, 0')
    for m in range(4, 8):
        a(f'v_cvt_pk_bf16_f32 v{ACK+m}, v{RR2+2*m}, v{RR2+2*m+1}')
    a(f's_add_u32 s{sA}, s{sW4K}, {LKVS}')
    a(f'v_add_u32 v{vRSW}, s{sA}, v{vL16}')
    a(f'{MF} {vr(KVD,16)}, {vr(ACK+4,4)}, {vr(ACV+4,4)}, {vr(KVD,16)}')
    a(f's_add_u32 s{sA}, s{sW1K}, {LKVS}')
    a(f'v_add_u32 v{vRSR}, s{sA}, v{vL4}')
    if first:
        a(f's_lshl_b32 s{sA}, s{sW}, 2')
        a(f's_add_u32 s{sA}, s{sA}, {LRS}')
        a(f'v_mov_b32 v252, s{sA}')
        a(f'v_mov_b32 v253, s{sZW}')
        a('ds_write_b32 v252, v253')
        a(f'v_mov_b32 v252, {LRS}')

    def qstep(ks, mem=(), vq_=None):
        a.wait(qt[ks])
        X = vr(16 + 4 * ks, 4) if ks < 28 else vr(XAUG, 4)
        a(f'{MF} {vr(ACQ,16)}, {vr(WR+4*(ks%6),4)}, {X}, {"0" if ks == 0 else vr(ACQ,16)}')
        shadow([lambda: rq(ks + 4)] + list(mem), vq_ if vq_ is not None else [])
    qstep(0, [bgp])
    for q in range(4):
        kw = a(f'ds_write_b128 v{vRSW}, {vr(KVD+4*q,4)} offset:{q*K}')
    qstep(1, [bgp])
    a.wait(kw)
    a.barrier()
    RED = RR2
    for wp in range(4):
        a(f'ds_read2st64_b32 {vr(RED+4*wp,2)}, v{vRSR} offset0:{16*wp} offset1:{16*wp+1}')
        t = a(f'ds_read2st64_b32 {vr(RED+4*wp+2,2)}, v{vRSR} offset0:{16*wp+2} offset1:{16*wp+3}')
    if first:
        mt = a(f'ds_read_b128 {vr(KVD,4)}, v252')
    qstep(2)
    a.wait(t)
    for i in range(4):
        a(f'v_add_f32 v{RED+i}, v{RED+i}, v{RED+4+i}')
        a(f'v_add_f32 v{RED+8+i}, v{RED+8+i}, v{RED+12+i}')
    for i in range(4):
        a(f'v_add_f32 v{RED+i}, v{RED+i}, v{RED+8+i}')
    for i in range(4):
        at = a(f'buffer_atomic_add_f32 v{RED+i}, v{vL4}, {sr(S_LY,4)}, s{sB} offen offset:{i*256}')
    stamp('p1atom')
    if first:
        a.wait(mt)
        a(f'v_or_b32 v{KVD}, v{KVD}, v{KVD+1}')
        a(f'v_or3_b32 v{KVD}, v{KVD}, v{KVD+2}, v{KVD+3}')
        a(f'v_readfirstlane_b32 s{sA}, v{KVD}')
        a(f's_cmp_lg_u32 s{sA}, 0')
        a('s_cbranch_scc1 L_slow')
    return dict(qstep=qstep, at=at, qt=qt, bg=bg, state=(a.vm_issued, a.vm_done, a.lg_issued, a.lg_done), qt0=dict(qt))


def phase1_q(ctx, first):
    qstep, at = ctx['qstep'], ctx['at']
    vRSW, vRSR, RR2 = p1RSW, p1RSR, P1RR2
    wo = wfrag_items(lambda n, b: vr(16 + 8 * n + 4 * b, 4), sWOSRC, 0, 8, p1SA, p1SB, sF)
    wo = list(ctx['bg']) + wo
    if first and FAST():
        wo = [[f's_cmp_ge_u32 s{sJ}, 28', f's_cselect_b32 s{sI}, {OOB:#x}, s{sOX}', f's_add_u32 s{sI}, s{sI}, {X1}',
               f'buffer_store_dwordx4 {vr(vXRES,4)}, v{vL16}, {sr(S_DT,4)}, s{sI} offen sc1'],
              [f'buffer_store_dwordx4 {vr(vXRES+4,4)}, v{vL16}, {sr(S_DT,4)}, s{sI} offen offset:1024 sc1']] + wo
    pqoff = PQ if (FAST() or first) else PQ + LYB
    vq = [f's_lshl_b32 s{sG}, s{sHC}, 8',
          f's_lshl_b32 s{sB}, s{sRBG}, 4',
          f's_add_u32 s{sG}, s{sG}, s{sB}',
          f's_add_u32 s{sG}, s{sG}, {F1}',
          f's_cmp_lg_u32 s{sW}, 3\ns_cselect_b32 s{sG}, {OOB:#x}, s{sG}',
          f's_lshl_b32 s{sA}, s{sTILE1}, 15',
          f's_lshl_b32 s{sB}, s{sHC}, 11',
          f's_add_u32 s{sA}, s{sA}, s{sB}',
          f's_add_u32 s{sA}, s{sA}, {pqoff}',
          f's_lshl_b32 s{sU}, s{sTILE1}, 9',
          f's_lshl_b32 s{sB}, s{sHC}, 5',
          f's_add_u32 s{sU}, s{sU}, s{sB}',
          f's_add_u32 s{sU}, s{sU}, {F1Q}',
          f'v_lshlrev_b32 v{vRSW}, 12, v{vLANE}',
          f'v_mov_b32 v{vRSR}, 1',
          f'v_mov_b32 v{vC2+2}, v{vC2}',
          f'v_mov_b32 v{ACK+7}, 0']
    for ks in range(3, 29):
        qstep(ks, [wo.pop(0)] if ks % 2 == 1 else [], vq)
        if ks == F1AT:
            a.wait(at)
            a.barrier()
            a('s_mov_b64 exec, 15')
            a(f'buffer_store_dword v{vRSR}, v{vRSW}, {sr(S_LY,4)}, s{sG} offen sc1')
            a('s_mov_b64 exec, -1')
            stamp('p1pub')
    a('s_nop 4')
    stamp('p1q')
    T = RR2
    for r in range(0, 14, 2):
        a(f'v_pk_mul_f32 {vr(ACQ+r,2)}, {vr(ACQ+r,2)}, {vr(vC2+1,2)} op_sel:[0,1] op_sel_hi:[1,1]')
    for r in range(14):
        a(f'v_exp_f32_e64 v{T+r}, v{ACQ+r} clamp')
        a(f'v_max_f32 v{ACQ+r}, 0, v{ACQ+r}')
    for r in range(0, 14, 2):
        a(f'v_pk_fma_f32 {vr(T+r,2)}, {vr(ACQ+r,2)}, {sr(sLN2,2)}, {vr(T+r,2)}')
    for r in range(0, 14, 2):
        a(f'v_pk_add_f32 {vr(T+r,2)}, {vr(T+r,2)}, {sr(sEPS6,2)}')
    for m in range(7):
        a(f'v_cvt_pk_bf16_f32 v{ACK+m}, v{T+2*m}, v{T+2*m+1}')
    sc = 'sc1' if first else LS()
    a(f'buffer_store_dwordx4 {vr(ACK,4)}, v{vL16}, {sr(S_DT,4)}, s{sA} offen {sc}')
    pst = a(f'buffer_store_dwordx4 {vr(ACK+4,4)}, v{vL16}, {sr(S_DT,4)}, s{sA} offen offset:1024 {sc}')
    if not FAST() and not first:
        a(f's_mov_b32 s{S_DT}, s{S_LY}')
        a(f's_mov_b32 s{S_DT+1}, s{S_LY+1}')
    if first:
        wo += wfrag_items(lambda n_, b: ar(8 * n_ + 4 * b, 4), sWDSRC, 0, WDP1 // 2, p1SA, p1SB, sI)
    for it in wo[:4]:
        emit(it)
    a.barrier()
    a.wait(pst)
    emit(flag_store(S_LY, f's{sU}'))
    if FAST() and CARRYON:
        CARRY[:] = wo[4:]
        print('carry', len(CARRY))
    else:
        for it in wo[4:]:
            emit(it)
    p2_setup()
    stamp('p1end')


ACC0, ACC1 = 208, 224
AAC2, AAC3 = 224, 240


def accs(s):
    return [vr(ACC0, 16), vr(ACC1, 16), ar(AAC2, 16), ar(AAC3, 16)][s]


def red_setup(base, RA):
    o = []
    for s in (1, 2, 3):
        o += [f's_xor_b32 s{sA}, s{sW}, {s}',
              f's_mul_i32 s{sA}, s{sA}, 12288',
              f's_add_u32 s{sA}, s{sA}, {base + (s-1)*4096}',
              f'v_add_u32 v{RA+s}, s{sA}, v{vL16}']
    o += [f's_mul_i32 s{sA}, s{sW}, 12288',
          f's_add_u32 s{sA}, s{sA}, {base}',
          f'v_add_u32 v{RA}, s{sA}, v{vL16}']
    return o


def red_write(s, RA):
    o = []
    for q in range(4):
        d = [None, vr(ACC1 + 4 * q, 4), ar(AAC2 + 4 * q, 4), ar(AAC3 + 4 * q, 4)][s]
        o.append(f'ds_write_b128 v{RA+s}, {d} offset:{q*K}')
    return o


sOX, sOS, sOF = 97, 98, 99


def own_consts():
    a(f's_mul_i32 s{sOX}, s{sOWN}, {28*K}')
    a(f's_lshl_b32 s{sB}, s{sOFT}, 11')
    a(f's_add_u32 s{sOX}, s{sOX}, s{sB}')
    a(f's_lshl_b32 s{sOS}, s{sOWN}, 12')
    a(f's_cmp_ge_u32 s{sOFT}, 7')
    a(f's_cselect_b32 s{sA}, 7, 0')
    a(f's_cselect_b32 s{sB}, 512, 0')
    a(f's_add_u32 s{sOS}, s{sOS}, s{sB}')
    a(f's_sub_u32 s{sA}, s{sOFT}, s{sA}')
    a(f's_lshr_b32 s{sB}, s{sA}, 1')
    a(f's_lshl_b32 s{sB}, s{sB}, 10')
    a(f's_add_u32 s{sOS}, s{sOS}, s{sB}')
    a(f's_and_b32 s{sA}, s{sA}, 1')
    a(f's_lshl_b32 s{sA}, s{sA}, 3')
    a(f's_add_u32 s{sOS}, s{sOS}, s{sA}')
    a(f's_lshl_b32 s{sOF}, s{sOWN}, 9')
    a(f's_lshl_b32 s{sB}, s{sOFT}, 5')
    a(f's_add_u32 s{sOF}, s{sOF}, s{sB}')


def res_unpack(RU):
    o = []
    for m in range(8):
        o.append(f'v_lshlrev_b32 v{RU+2*m}, 16, v{vXRES+m}')
        o.append(f'v_and_b32 v{RU+2*m+1}, 0xffff0000, v{vXRES+m}')
    return o


def red_finish(final, RB, RU, RA, nm, xb, stb, flb, sc, mid, pre=(), res=True):
    for it in pre:
        emit(it)
    a.wait_lg0()
    a.barrier()
    toks = []
    for i in range(12):
        toks.append(a(f'ds_read_b128 {vr(RB+4*i,4)}, v{RA} offset:{i*K}'))
    if final is not True:
        a(f's_add_u32 s{sA}, s{sOX}, {xb}')
        a(f's_add_u32 s{sB}, s{sOS}, {stb}')
        a(f's_add_u32 s{sZW}, s{sOF}, {flb}')
    for r in range(0, 16, 2):
        if res:
            a(f'v_pk_add_f32 {vr(ACC0+r,2)}, {vr(ACC0+r,2)}, {vr(RU+r,2)}')
    S, Q, t0, t1, tl = RU, RU + 1, RU + 2, RU + 3, RU + 4
    if final is not True:
        a(f'v_mov_b32 v{S}, 0')
        a(f'v_mov_b32 v{Q}, 0')
    for s in range(3):
        a.wait(toks[4 * s + 3])
        for r in range(0, 16, 2):
            a(f'v_pk_add_f32 {vr(ACC0+r,2)}, {vr(ACC0+r,2)}, {vr(RB+16*s+r,2)}')
    for m in range(8):
        a(f'v_cvt_pk_bf16_f32 v{vXRES+m}, v{ACC0+2*m}, v{ACC0+2*m+1}')
    if final is True:
        final_store()
        return
    if final == 'dyn':
        a(f's_cmp_lg_u32 s{sL}, 0')
        a('s_cbranch_scc1 ' + LB_('L_final'))
    a(f'buffer_store_dwordx4 {vr(vXRES,4)}, v{vL16}, {sr(S_DT,4)}, s{sA} offen {sc}')
    a(f'buffer_store_dwordx4 {vr(vXRES+4,4)}, v{vL16}, {sr(S_DT,4)}, s{sA} offen offset:1024 {sc}')
    for m in range(8):
        a(f'v_dot2c_f32_bf16 v{S}, s{sONES}, v{vXRES+m}')
        a(f'v_dot2c_f32_bf16 v{Q}, v{vXRES+m}, v{vXRES+m}')
    a(f'v_mov_b32 v{t0}, v{S}')
    a(f'v_mov_b32 v{t1}, v{Q}')
    a(f'v_permlane32_swap_b32 v{S}, v{t0}')
    a(f'v_permlane32_swap_b32 v{Q}, v{t1}')
    a(f'v_pk_add_f32 {vr(S,2)}, {vr(S,2)}, {vr(t0,2)}')
    a('s_mov_b32 exec_hi, 0')
    lt = a(f'buffer_store_dwordx2 {vr(S,2)}, v{vL16}, {sr(S_DT,4)}, s{sB} offen {sc}')
    a('s_mov_b64 exec, -1')
    stamp(nm + 'st')
    mid()
    a.wait(lt)
    emit(flag_store(S_LY, f's{sZW}'))


def final_store():
    a(f'v_and_b32 v18, 31, v{vLANE}')
    a(f'v_lshrrev_b32 v19, 5, v{vLANE}')
    a(f'v_mul_u32_u24 v{vROW}, 896, v18')
    a(f'v_lshl_add_u32 v{vROW}, v19, 4, v{vROW}')
    a(f's_mul_i32 s{sA}, s{sOWN}, 28672')
    a(f's_lshl_b32 s{sB}, s{sOFT}, 6')
    a(f's_add_u32 s{sA}, s{sA}, s{sB}')
    a(f'buffer_store_dwordx4 {vr(vXRES,4)}, v{vROW}, {sr(S_OUT,4)}, s{sA} offen {OSC}')
    a(f'buffer_store_dwordx4 {vr(vXRES+4,4)}, v{vROW}, {sr(S_OUT,4)}, s{sA} offen offset:32 {OSC}')


def idle_touch(base, per_wave_bytes, n, t=16):
    if not IDLE:
        return
    a(f's_sub_u32 s{sA}, s{sJ}, 28')
    a(f's_lshl_b32 s{sA}, s{sA}, 2')
    a(f's_add_u32 s{sA}, s{sA}, s{sW}')
    a(f's_mul_i32 s{sA}, s{sA}, {per_wave_bytes}')
    a(f's_add_u32 s{sA}, s{sA}, {base}')
    a(f'v_lshlrev_b32 v{t}, 7, v{vLANE}')
    for i in range(n):
        a(f'buffer_load_dword v{t+1}, v{t}, {sr(S_WS,4)}, s{sA} offen sc1')
        a(f's_add_u32 s{sA}, s{sA}, 8192')


def p2_setup():
    dma_setup(vROW, sW3SRC, 56 * K, LBETA)
    a(f'v_and_b32 v240, 3, v{vLANE}')
    a(f'v_lshlrev_b32 v240, 5, v240')
    a(f'v_bfe_u32 v241, v{vLANE}, 2, 1')
    a(f'v_lshl_add_u32 v240, v241, 9, v240')
    a(f's_lshl_b32 s{sC}, s{sTILE2}, 9')
    a(f's_lshl_b32 s{sA}, s{sW}, 7')
    a(f's_add_u32 s{sC}, s{sC}, s{sA}')
    a(f's_add_u32 s{sC}, s{sC}, {F1Q}')
    a(f's_lshl_b32 s{sE}, s{sOWN}, 15')
    a(f's_lshl_b32 s{sA}, s{sW}, 13')
    a(f's_add_u32 s{sE}, s{sE}, s{sA}')
    a(f's_add_u32 s{sE}, s{sE}, {PQ}')
    a(f's_xor_b32 s{sF}, s{sE}, 0x8000')
    a(f's_add_u32 s{sH}, s{sREP}, s{sW1K}')
    a(f's_add_u32 s{sH}, s{sH}, {F1}')
    a(f's_lshl_b32 s{sD}, s{sW}, 14')


def phase2(L):
    WO, PQR, KVR = 16, 80, 144
    ODS = (240, 160)
    KB = (144, 152, 176, 192)
    tag = f'{L}'
    beta = dma_items(vROW, LBETA, 56, 2)
    a(f's_cmp_ge_u32 s{sJ}, 28')
    with cold('s_cbranch_scc1', back=LB_('L_p2skip' + tag)):
        for it in beta:
            emit(it)
        if L == 0:
            idle_touch(WDR, 7 * WDS // 16, IDN)
        elif L == 1:
            idle_touch(W3R + 112 * K, W3S, IDN)
        p3_setup(L)
        a.wait_vm0()
    with cond():
        emit(res_unpack(ACC0))
        for s_ in range(4):
            a(f's_xor_b32 s{80+s_}, s{sW}, {s_}')
            a(f's_mul_i32 s{80+s_}, s{80+s_}, 12288')
            a(f's_add_u32 s{80+s_}, s{80+s_}, {LB + max(s_-1, 0)*4096}')
        poll(S_LY, 240, f's{sC}')
        stamp('p2pq')
        pt = {}
        for aa, s in ((1, sF), (0, sE)):
            for hl in range(4):
                for ks in range(2):
                    pt[hl, aa] = a(f'buffer_load_dwordx4 {vr(PQR+16*hl+8*aa+4*ks,4)}, v{vL16}, {sr(S_DT,4)}, s{s} offen offset:{(hl%2)*2048+ks*K} sc1')
                if hl == 1:
                    a(f's_add_u32 s{s}, s{s}, 4096')
                if aa == 1 and hl == 1:
                    fchk = a(f'buffer_load_dword v253, v{vL16}, {sr(S_LY,4)}, s{sH} offen sc1')
                if aa == 0 and hl == PQSPLIT:
                    break
        a.wait(fchk)
        check_or_poll(253, S_LY, vL16, f's{sH}', sleep=0)
        stamp('p2poll')
        kt = {}
        lq = []

        def kvl(hl, q):
            kt[hl] = a(f'buffer_load_dwordx4 {vr(KVR+16*hl+4*q,4)}, v{vL16}, {sr(S_LY,4)}, s{sD} offen offset:{q*K} sc1')
            if q == 3:
                a(f's_add_u32 s{sD}, s{sD}, 4096')

        def pql(hl, ks):
            pt[hl, 0] = a(f'buffer_load_dwordx4 {vr(PQR+16*hl+4*ks,4)}, v{vL16}, {sr(S_DT,4)}, s{sE} offen offset:{(hl%2)*2048+ks*K} sc1')
            if hl == 1 and ks == 1:
                a(f's_add_u32 s{sE}, s{sE}, 4096')
        for hl in range(4):
            for q in range(4):
                kvl(hl, q)
        for hl in range(PQSPLIT + 1, 4):
            for ks in range(2):
                lq.append(lambda h_=hl, k_=ks: pql(h_, k_))
        wot = {}
        cw = []
        if CARRY:
            a(f's_and_b32 s{sA}, s{sW1K}, 0x400')
            a(f's_add_u32 s80, s{sWOSRC}, s{sA}')
            a(f's_xor_b32 s{sA}, s{sA}, 0x400')
            a(f's_add_u32 s81, s{sWOSRC}, s{sA}')
        ncw = 0
        for it in CARRY:
            m_ = re.match(r'buffer_load_dwordx4 ([va])\[(\d+):', it[-1])
            assert m_
            if m_.group(1) == 'v':
                k_ = (int(m_.group(2)) - 16) // 4

                def f(k_=k_):
                    a(f's_add_u32 s78, s{80 + k_ % 2}, {(k_ // 2) * 2048}')
                    wot[k_ // 4] = a(f'buffer_load_dwordx4 {vr(16+4*k_,4)}, v{vL16}, {sr(S_WS,4)}, s78 offen sc1')
                cw.append(f)
            else:
                ncw += 1
        CARRY[:] = []
        for f in cw[:CWN]:
            f()
        bl = beta[len(beta) - BLATE:] if BLATE else []
        beta = beta[:len(beta) - BLATE]
        beta = cw[CWN:] + lq + beta
        wd2 = []
        if L == 0:
            a(f's_and_b32 s{sA}, s{sW1K}, 0x400')
            a(f's_add_u32 s76, s{sWDSRC}, s{sA}')
            a(f's_xor_b32 s{sA}, s{sA}, 0x400')
            a(f's_add_u32 s77, s{sWDSRC}, s{sA}')
            for k_ in range(WDP1 - ncw, WDP1 + WDP2):
                n_, b = k_ // 2, k_ % 2
                wd2.append([f's_add_u32 s78, s{76+b}, {n_*2048}',
                            f'buffer_load_dwordx4 {ar(8*n_+4*b,4)}, v{vL16}, {sr(S_WS,4)}, s78 offen sc1'])

        def cvt(hl):
            return [f'v_cvt_pk_bf16_f32 v{KB[hl]+m}, v{KVR+16*hl+2*m}, v{KVR+16*hl+2*m+1}' for m in range(8)]
        units = [(hl, aa) for aa in (1, 0) for hl in range(4)]

        def oM(u):
            hl, aa = units[u]
            D = vr(ODS[u % 2], 16)
            P = PQR + 16 * hl + 8 * aa
            return [f'{MF} {D}, {vr(KB[hl],4)}, {vr(P,4)}, 0',
                    f'{MF} {D}, {vr(KB[hl]+4,4)}, {vr(P+4,4)}, {D}']

        def scale(u):
            hl, aa = units[u]
            D = ODS[u % 2]
            P = PQR + 16 * hl + 8 * aa
            o = [f'v_add_f32 v{D+14}, s{sEPS6}, v{D+14}',
                 f'v_rcp_f32 v{D+14}, v{D+14}']
            for m in range(7):
                o.append(f'v_mul_f32 v{D+2*m}, v{D+2*m}, v{D+14}')
                o.append(f'v_mul_f32 v{D+2*m+1}, v{D+2*m+1}, v{D+14}')
                o.append(f'v_cvt_pk_bf16_f32 v{P+m}, v{D+2*m}, v{D+2*m+1}')
            return o

        def woM(u, bs):
            hl, aa = units[u]
            P = PQR + 16 * hl + 8 * aa
            o = []
            for b in bs:
                for ks in range(2):
                    D = accs(2 * aa + b)
                    c = '0' if (hl == 0 and ks == 0 and (aa, b) != (0, 0)) else D
                    o.append(f'{MF} {D}, {vr(WO+16*hl+8*ks+4*b,4)}, {vr(P+4*ks,4)}, {c}')
            return o
        RU, RA = 160, 184
        a.wait(kt[0])
        stamp('kv0', fine=True)
        emit(cvt(0))
        emit(oM(0))
        a.wait(kt[1])
        emit(cvt(1))
        m1 = oM(1)
        vs = scale(0)
        a(m1[0]); shadow([], vs)
        a(m1[1]); emit(vs)
        wr = []
        for u in range(9):
            if u < 4:
                ms = woM(u, (0, 1))
            elif u < 8:
                if LAG0 == 2:
                    ms = woM(u, (1,)) + (woM(u - 2, (0,)) if u >= 6 else [])
                else:
                    ms = woM(u, (1,)) + (woM(u - 1, (0,)) if u in (5, 6) else [])
            else:
                ms = woM(6, (0,)) + woM(7, (0,))
            vs = scale(u + 1) if u + 1 < 8 else []
            if u < 4:
                while any(getattr(x, '__name__', '') == 'f' and x.__defaults__[0] // 4 <= u for x in beta):
                    beta.pop(0)()
                a.wait(wot.get(u))
            if u < 2:
                a.wait(kt[u + 2])
                vs = cvt(u + 2) + vs
            if u == 2:
                vs = vs + [f'v_add_u32 v{RA+s_}, s{80+s_}, v{vL16}' for s_ in range(4)]
            if u == 4:
                wr = red_write(2, RA) + red_write(3, RA)
            if u == 8:
                wr = wr + red_write(1, RA)
            if u + 2 < 8:
                ms = ms[:2] + ['W'] + oM(u + 2) + ms[2:]
            k_ = 0
            for m in ms:
                if m == 'W':
                    a.wait(pt[units[u + 2]])
                    if u < 2:
                        while any(x in vs for x in cvt(u + 2)):
                            a(vs.pop(0))
                    continue
                a(m)
                mem = []
                if beta and k_ % BSP == 0:
                    mem.append(beta.pop(0))
                elif wd2 and k_ % 2 == 0 and not beta:
                    mem.append(wd2.pop(0))
                if wr and (k_ % 2 == 1 or u >= WRU) and not (u in (4, 8) and k_ == 0):
                    mem.append(wr[:1]); wr = wr[1:]
                left = len([x for x in ms if x != 'W']) - k_
                if EVEN and not (u < 2 and k_ < 2):
                    shadow(mem, [])
                    for _ in range(-(-len(vs) // left)):
                        a(vs.pop(0))
                else:
                    shadow(mem, vs)
                k_ += 1
            emit(vs)
        wd2 = beta + bl + wd2
        stamp('p2mfma')
        emit(wr)
        sc = LS()
        red_finish(False, 80, RU, RA, 'p2', X1, ST1, F2, sc, lambda: p3_setup(L), pre=wd2, res=False)
    a.label(LB_('L_p2skip' + tag))
    stamp('p2end')


p3D1, p3D3, p3SA, p3SB = 228, 229, 240, 241
p3D2 = 243
p3FL, p3HA, p3HB, p3FV = 244, 245, 246, 247


def p3_setup(L):
    vFL, vHA, vHB = p3FL, p3HA, p3HB
    x_prep(F2, X1, ST1)
    dma_setup(p3D3, sW3SRC, 112 * K, LB)
    dma_setup(p3D1, sW3SRC, 147 * K, LALPHA)
    if L is None:
        a(f's_cmp_lg_u32 s{sL}, 0')
        a(f's_cselect_b32 s{sA}, {OOB:#x}, s{sW1SRC}')
        a(f'v_add_u32 v{p3D2}, s{sA}, v{vL16}')
    elif L == 0:
        a(f'v_add_u32 v{p3D2}, s{sW1SRC}, v{vL16}')
    a(f's_mul_i32 s{sG}, s{sTILE1}, {112*K}')
    a(f's_mul_i32 s{sA}, s{sHC}, {7*K}')
    a(f's_add_u32 s{sG}, s{sG}, s{sA}')
    a(f's_add_u32 s{sG}, s{sG}, {HB}')
    a(f's_add_u32 s{sH}, s{sG}, 4096')
    a(f's_lshl_b32 s{sU}, s{sTILE1}, 9')
    a(f's_lshl_b32 s{sA}, s{sHC}, 2')
    a(f's_add_u32 s{sU}, s{sU}, s{sA}')
    a(f's_add_u32 s{sU}, s{sU}, {F3}')


def p4_addr():
    vFL, vHA, vHB = p3FL, p3HA, p3HB
    return [f'v_and_b32 v{vFL}, 3, v{vLANE}',
            f'v_lshlrev_b32 v{vFL}, 2, v{vFL}',
            f'v_bfe_u32 v{vHA}, v{vLANE}, 2, 1',
            f'v_lshl_add_u32 v{vFL}, v{vHA}, 9, v{vFL}',
            f's_lshl_b32 s{sA}, s{sTILE2}, 9',
            f's_lshl_b32 s{sB}, s{sW}, 4',
            f's_add_u32 s{sA}, s{sA}, s{sB}',
            f's_add_u32 s85, s{sA}, {F3}',
            f'v_add_u32 v{vFL}, s85, v{vFL}',
            f's_mul_i32 s{sB}, s{sW}, {28*K}',
            f's_add_u32 s{sB}, s{sB}, {HB}',
            f's_mul_i32 s{sA}, s{sOWN}, {112*K}',
            f's_add_u32 s{sA}, s{sA}, s{sB}',
            f'v_add_u32 v{vHA}, s{sA}, v{vL16}',
            f's_xor_b32 s{sA}, s{sOWN}, 1',
            f's_mul_i32 s{sA}, s{sA}, {112*K}',
            f's_add_u32 s{sA}, s{sA}, s{sB}',
            f'v_add_u32 v{vHB}, s{sA}, v{vL16}']


def phase34(L):
    ACC = 128
    WR, NW = 192, 8
    SB = 176
    XAUG = 224
    vD1, vD3, vSA, vSB, vD2 = p3D1, p3D3, p3SA, p3SB, p3D2
    vFL, vHA, vHB, vFV = p3FL, p3HA, p3HB, p3FV
    vFV2 = 242
    PRE = XPRE
    HR, NH = 16, 28
    tag = f'{L}'
    LOOK = 6
    NG = 3 if G3 else 2
    steps = [(t, ks) for ks in range(29) for t in range(NG)]
    for t in range(NG, 7):
        steps += [(t, ks) for ks in range(29)]

    def addr(t, ks):
        if G3 and t < 3:
            p = 3 * ks + t
            return LALPHA + p * K if p < 56 else LBETA + (p - 56) * K
        if ks == 28 and t < 3:
            return LBETA + t * K
        if t < 2:
            return LALPHA + (2 * ks + t) * K
        if t == 2:
            return LBETA + (3 + ks) * K
        if t == 3:
            return LBETA + (31 + ks) * K
        if t == 4:
            return LB + (4 + ks) * K
        if t == 5:
            return LALPHA + ks * K
        return LALPHA + (29 + ks) * K if ks < 27 else LB + (33 + ks - 27) * K
    n = len(steps)
    accof = {0: 0, 1: 1, 2: 2, 3: 3, 4: 0, 5: 1, 6: 2}
    rt, xt, hst, ht, chk = {}, {}, {}, {}, {}

    def hsc(t):
        return LS() if (L == 1 and t >= HPL) else 'sc1'

    def epi(t, D=None, Sx=None):
        Sx = ACC + 16 * accof[t] if Sx is None else Sx
        D = Sx if D is None else D
        o = []
        for r in range(8):
            o.append(f'v_mul_f32 v{D+r}, v{Sx+r}, v{vC2}')
        for r in range(8):
            o.append(f'v_exp_f32_e64 v{D+r}, -v{D+r}')
            if r >= 2:
                o.append(f'v_fma_f32 v{D+r-2}, v{D+r-2}, v{vISTD}, v{vISTD}')
        for r in (6, 7):
            o.append(f'v_fma_f32 v{D+r}, v{D+r}, v{vISTD}, v{vISTD}')
        for r in range(8):
            o.append(f'v_rcp_f32 v{D+r}, v{D+r}')
            if r >= 2:
                o.append(f'v_mul_f32 v{D+r-2}, v{D+r-2}, v{Sx+8+r-2}')
        for r in (6, 7):
            o.append(f'v_mul_f32 v{D+r}, v{D+r}, v{Sx+8+r}')
        for m in range(4):
            o.append(f'v_cvt_pk_bf16_f32 v{D+8+m}, v{D+2*m}, v{D+2*m+1}')
        s = sG if t < 4 else sH
        o.append(f'buffer_store_dwordx4 {vr(D+8,4)}, v{vL16}, {sr(S_DT,4)}, s{s} offen offset:{(t%4)*K} {hsc(t)} ; H{t}')
        return o

    def issue_rd(i):
        if i >= n:
            return
        t, ks = steps[i]
        d = WR + 4 * (i % NW)
        rt[i] = read_frag(d, addr(t, ks)) if ks < 28 else read_aug(d, addr(t, ks), 251 + (i % 3))

    def flag_ld(stg, v=None):
        if stg == 0 or not FAST():
            chk[stg] = a(f'buffer_load_dword v{v or vFV}, v{vFL}, {sr(S_LY,4)}, 0 offen offset:{64*stg} sc1')
        else:
            a(f's_buffer_load_dwordx4 s[76:79], {sr(S_LY,4)}, s85 offset:{64*stg}')
            a(f's_buffer_load_dwordx4 s[80:83], {sr(S_LY,4)}, s85 offset:{64*stg+512}')

    def flag_chk(stg):
        if FAST():
            a('s_waitcnt lgkmcnt(0)')
            a('s_and_b64 s[76:77], s[76:77], s[78:79]')
            a('s_and_b64 s[80:81], s[80:81], s[82:83]')
            a('s_and_b64 s[76:77], s[76:77], s[80:81]')
            a('s_and_b32 s76, s76, s77')
        else:
            a.wait(chk[stg])
            a(f'v_cmp_ne_u32 vcc, 1, v{vFV}')
            a('s_cmp_eq_u64 vcc, 0')
        assert 6 in hst
        with cold('s_cbranch_scc0'):
            a.wait_vm0()
            emit(flag_store(S_LY, f's{sU}', imm=128))
            emit(flag_store(S_LY, f's{sU}', imm=192))
            poll(S_LY, vFL, 0, imm=64 * stg)

    CHK = {32: 4, 40: 2, 48: 3}

    def hld(idx, chkflags=True):
        if idx >= 56:
            return
        if chkflags and idx + 4 in CHK:
            flag_ld(CHK[idx + 4])
        if chkflags and idx in CHK:
            flag_chk(CHK[idx])
        n_, aa = idx // 2, idx % 2
        t, cc = n_ // 4, n_ % 4
        if aa == 0:
            a(f's_mov_b32 s{sE}, {(cc*7+t)*K}')
        ht[idx] = a(f'buffer_load_dwordx4 {vr(HR+4*(idx%NH),4)}, v{(vHA,vHB)[aa]}, {sr(S_DT,4)}, s{sE} offen sc1')

    a.wait_lg0()
    if BEARLY:
        a.barrier()
        for i in range(LOOK):
            issue_rd(i)
    poll(S_LY, 240, f's{sC}')
    stamp('p3poll')
    for ks in range(4):
        xt[ks] = x_load(ks)
    if not BEARLY:
        a.barrier()
        for i in range(LOOK):
            issue_rd(i)
    for ks in range(4, PRE):
        xt[ks] = x_load(ks)
    fill, owner = [], []
    done_at = {}
    wd = [] if L == 1 else wfrag_items(lambda n_, b: ar(8 * n_ + 4 * b, 4), sWDSRC, (WDP1 + (WDP2 if L == 0 else 0)) // 2, 28, vSA, vSB, sF)
    ft = [[f'v_and_b32 v233, 0x80, v{vL4}', f'buffer_load_dword v233, v233, {sr(S_LY,4)}, s{sU} offen sc1']] if FT else []
    if HT and FAST() and (L == 1 or HT > 1):
        ft += [[f'v_min_u32 v234, 55, v{vLANE}', f'v_lshlrev_b32 v234, 7, v234', f'buffer_load_dword v234, v234, {sr(S_DT,4)}, s{sG} offen sc1']]
    bg = dma_items(vD3, LB, 36, 1) + ['M3'] + ft + wd[:WDP3]
    wd4 = wd[WDP3:]
    marks = {}
    cur = [0]

    def pop():
        x = fill.pop(0); o = owner.pop(0)
        t = a(x)
        if '; H' in x:
            hst[o] = (t, cur[0])

    def pub(stg, last_tile):
        a.wait(hst[last_tile][0])
        emit(flag_store(S_LY, f's{sU}', imm=64 * stg))

    def xl(ks):
        xt[ks] = x_load(ks)

    def next_bg():
        while bg and isinstance(bg[0], str):
            marks[bg.pop(0)] = mark()
        return bg.pop(0) if bg else None
    pubs = [(0, 1), (1, 3), (4, 4)]
    for i, (t, ks) in enumerate(steps):
        cur[0] = i
        if i == (45 if G3 else 34):
            a.wait(chk['st'])
            s_ = [f's_and_b32 s{sA}, s{sW1K}, 0x400', f'v_add_u32 v{vSA}, s{sA}, v{vL16}', f'v_xor_b32 v{vSB}, 0x400, v{vSA}'] + \
                stats_sum(SB) + stats_finish(XAUG, SB) + p4_addr()
            fill += s_; owner += [-1] * len(s_)
        stamp(f'i{i}', fine=True) if i in (1, 30, 57, 87, 116, 145, 174) else None
        if i % 2 == 0:
            a.wait(rt[min(i + 1, n - 1)], xt.get(steps[min(i + 1, n - 1)][1]), xt.get(ks))
        if i == 56:
            a.barrier()
            k3 = bg.index('M3') + 1 if 'M3' in bg else 0
            bg = bg[:k3] + dma_items(vD1, LALPHA, 56, 2) + ['M4'] + code_touch(232, 233) + bg[k3:]
        if i + LOOK == 112:
            a.wait(marks['M3'])
            a.barrier()
        if i + LOOK == 145:
            a.wait(marks['M4'])
            a.barrier()
            bg = code_touch(232, 233) + bg
        D = vr(ACC + 16 * accof[t], 16)
        if ks == 0 and t >= 4:
            assert (t - 4) not in owner
        if ks == 28:
            assert -1 not in owner
        X = vr(16 + 4 * ks, 4) if ks < 28 else vr(XAUG, 4)
        a(f'{MF} {D}, {vr(WR+4*(i%NW),4)}, {X}, {"0" if ks == 0 else D}')
        if ks == 28:
            done_at[t] = i
        for tt, di in list(done_at.items()):
            if i >= di + 2:
                e = epi(tt)
                fill += e; owner += [tt] * len(e)
                del done_at[tt]
        pre = main = None
        if t == 0 and ks + PRE < 28:
            main = (lambda k_=ks + PRE: xl(k_))
        elif t == NG - 1 and ks < 8 and ks % 2 == 0:
            main = (lambda k_=ks // 2: chk.__setitem__('st', st_load(k_, SB)))
        elif G3 and t == 2 and ks + PRE < 28 and ks % 2 == 0 and 'M3' not in marks:
            pre, main = split_item(next_bg())
        elif t == 6:
            if ks % 2 == 1:
                main = (lambda k_=ks // 2: hld(k_))
            elif ks == 0:
                main = lambda: a.wait(chk[0])
            elif ks == (FS1 if FAST() else 12):
                main = lambda: flag_ld(1, vFV2)
        elif i == FS0:
            main = lambda: flag_ld(0)
        elif i % 2 == 0 and i >= NG * (28 - PRE):
            pre, main = split_item(next_bg())
        extra = None
        if fill and '; H' in fill[0]:
            extra = pop
        elif pubs and pubs[0][1] in hst and i >= hst[pubs[0][1]][1] + PUBD and i % 2 == 1:
            extra = (lambda p=pubs.pop(0): pub(*p))
        n0 = len(a.ins)
        for f in (pre, lambda: issue_rd(i + LOOK), main, extra):
            if f is None:
                continue
            f() if callable(f) else emit(f)
        budget = CAP - (len(a.ins) - n0) - (i % 2)
        while fill and '; H' not in fill[0] and budget >= cost(fill[0]):
            budget -= cost(fill[0])
            pop()
    assert not pubs and next_bg() is None, len(bg)
    print('P3: h stores at steps', {t: v[1] for t, v in hst.items()}, 'left', len(fill))
    assert not fill and 5 in hst
    stamp('p3mfma')

    RU, RA = 192, 128
    w1 = [] if L == 1 else dma_items(vD2, 0, 88, 2)
    nxt = (lambda: p1_setup(False)) if L != 1 else (lambda: None)
    a(f's_cmp_ge_u32 s{sJ}, 28')
    with cold('s_cbranch_scc1', back=LB_('L_p4skip' + tag)):
        emit(epi(6))
        pub(2, 5)
        a.barrier()
        a.wait_vm0()
        emit(flag_store(S_LY, f's{sU}', imm=192))
        if L == 0:
            idle_touch(W1R, W1S, 11)
        if L == 1 and WB:
            a('buffer_wbl2 sc1')
        for it in w1:
            emit(it)
        nxt()
        a.wait_vm0()
    with cond():
        if FAST():
            a(f'v_cmp_ne_u32 vcc, 1, v{vFV}')
            a('s_waitcnt lgkmcnt(0)')
            a('s_and_b64 s[76:77], s[76:77], s[78:79]')
            a('s_and_b64 s[80:81], s[80:81], s[82:83]')
            a('s_and_b64 s[76:77], s[76:77], s[80:81]')
            a('s_and_b32 s76, s76, s77')
            a('s_cmp_eq_u64 vcc, 0')
            a('s_cselect_b32 s77, 1, 0')
            a('s_and_b32 s76, s76, s77')
        else:
            a.wait(chk[1])
            a(f'v_and_b32 v{vFV}, v{vFV}, v{vFV2}')
            a(f'v_cmp_ne_u32 vcc, 1, v{vFV}')
            a('s_cmp_eq_u64 vcc, 0')
        saved = dict(ht)
        with cold('s_cbranch_scc0'):
            emit(epi(6, D=ACC + 48))
            a.wait_vm0()
            emit(flag_store(S_LY, f's{sU}', imm=128))
            emit(flag_store(S_LY, f's{sU}', imm=192))
            poll(S_LY, vFL, 0, imm=64)
            for idx in range(14):
                hld(idx, False)
            a.wait_vm0()
        ht.update(saved)
        fill = epi(6)
        owner = [6] * len(fill)
        later = red_setup(LALPHA, RA) + res_unpack(RU)
        TAIL = TAILN
        nld = [14]
        todo = ['pub2', 'pub3']
        wt = {}

        def mf(n_, s):
            aa, b = s >> 1, s & 1
            D = accs(s)
            a(f'{MF} {D}, {ar(8*n_+4*b,4)}, {vr(HR+4*((2*n_+aa)%NH),4)}, {"0" if n_ == 0 else D}')

        def sh(step, load):
            cur[0] = step
            n0 = len(a.ins)
            if load:
                if nld[0] < 56:
                    hld(nld[0]); nld[0] += 1
                elif w1:
                    emit(w1.pop(0))
            elif todo and todo[0] == 'pub2' and step >= 13:
                pub(2, 5); todo.pop(0)
            elif todo and todo[0] == 'pub3' and 6 in hst and step >= hst[6][1] + PUBD2:
                pub(3, 6); todo.pop(0)
                fill.extend(later); owner.extend([-2] * len(later))
            elif wd4:
                wt[0] = emit(wd4.pop(0))
            if step >= 1:
                if fill and '; H' in fill[0]:
                    pop()
                budget = CAP - (len(a.ins) - n0)
                while fill and '; H' not in fill[0] and budget >= cost(fill[0]):
                    budget -= cost(fill[0])
                    pop()
        for n_ in range(28 - TAIL):
            if n_ == P4B:
                a.barrier()
            stamp(f'n{n_}') if ('p4prof' in OPT and n_ in (2, 4, 8, 13, 15, 17)) else None
            a.wait(ht[2 * n_])
            mf(n_, 0); sh(4 * n_, True)
            mf(n_, 1); sh(4 * n_ + 1, False)
            a.wait(ht[2 * n_ + 1])
            mf(n_, 2); sh(4 * n_ + 2, True)
            mf(n_, 3); sh(4 * n_ + 3, XL0 <= n_ < XL1)
        assert nld[0] == 56 and not fill and not todo and not wd4
        stamp('n20') if 'p4prof' in OPT else None
        a.wait(wt.get(0))
        pend = []
        for s in (3, 2, 1, 0):
            for k_, n_ in enumerate(range(28 - TAIL, 28)):
                a.wait(ht[2 * n_ + 1])
                mf(n_, s)
                if pend and (k_ % 2 == 1 if TAIL >= 8 else (k_ % 3 != 0)):
                    emit(pend[:1]); pend = pend[1:]
                elif w1 and (k_ % 2 == 0 if TAIL >= 8 else True) and len(w1) > W1KEEP:
                    emit(w1.pop(0))
            assert not pend
            if s > 0:
                pend = red_write(s, RA)
        stamp('p4mfma')

        def mid():
            for it in w1:
                emit(it)
            nxt()
        final = {0: False, 1: True, None: 'dyn'}[L]
        xb, stb = (X1, ST1) if FAST() else (X0 + LYB, ST0 + LYB)
        pre4 = w1[:len(w1) // 4 * 2]; w1 = w1[len(pre4):]
        red_finish(final, 16, RU, RA, 'p4', xb, stb, F0 + LYB, LS(), mid, pre=pre4)
    a.label(LB_('L_p4skip' + tag))
    if L != 1:
        stamp('p4end')


def restore(ctx):
    a.vm_issued, a.vm_done, a.lg_issued, a.lg_done = ctx['state']
    ctx['qt'].clear(); ctx['qt'].update(ctx['qt0'])


def build():
    prologue()
    init_phase()
    MODE.update(sc='', sfx='')
    ctx = phase1_kv(True)
    phase1_q(ctx, True)
    phase2(0)
    phase34(0)
    c2 = phase1_kv(False)
    phase1_q(c2, False)
    phase2(1)
    phase34(1)
    a.label('L_done')
    if PROFILE:
        stamp('end')
        a(f's_lshl_b32 s{sA}, s2, 2')
        a(f's_add_u32 s{sA}, s{sA}, s{sW}')
        a(f's_lshl_b32 s{sA}, s{sA}, 8')
        a(f's_add_u32 s{sA}, s{sA}, {PROF}')
        a(f'buffer_store_dword v{vPROF}, v{vL4}, {sr(S_WS,4)}, s{sA} offen')
        if 'probe' in OPT:
            k0, k1 = [int(x) for x in OPT['probe'].split(',')]
            ne = len(STAMPS) - 1
            a(f'v_readlane_b32 s{sA}, v{vPROF}, {k0}')
            a(f'v_readlane_b32 s{sB}, v{vPROF}, {k1}')
            a(f'v_readlane_b32 s{sC}, v{vPROF}, {ne}')
            a('s_cmp_ge_u32 s2, 224')
            a('s_cbranch_scc1 L_end')
            a(f's_sub_u32 s{sA}, s{sB}, s{sA}')
            a(f's_min_u32 s{sA}, s{sA}, 5000')
            a(f's_lshl_b32 s{sA}, s{sA}, 3')
            a(f's_cmp_lg_u32 s2, 77')
            a('s_cbranch_scc1 L_end')
            a.label('L_spin')
            a('s_sleep 1')
            a(f's_memrealtime {sr(sP0,2)}')
            a('s_waitcnt lgkmcnt(0)')
            a(f's_sub_u32 s{sD}, s{sP0}, s{sC}')
            a(f's_cmp_lt_u32 s{sD}, s{sA}')
            a('s_cbranch_scc1 L_spin')
        if 'dbgout' in OPT:
            a(f's_lshl_b32 s{sA}, s2, 2')
            a(f's_add_u32 s{sA}, s{sA}, s{sW}')
            a(f's_cmp_lg_u32 s{sA}, {77*4+1}')
            a('s_cbranch_scc1 L_end')
            a(f'v_readfirstlane_b32 s{sA}, v{vPROF}')
            a(f'v_subrev_u32 v{vPROF}, s{sA}, v{vPROF}')
            a(f'v_lshlrev_b32 v20, 1, v{vLANE}')
            a(f'v_subrev_u32 v20, {2*int(OPT["dbgout"])}, v20')
            a(f'buffer_store_short v{vPROF}, v20, {sr(S_DBG,4)}, 0 offen sc1')
    a.label('L_end')
    a('s_endpgm')
    a.flush_cold()
    a.label('L_codeend')
    keep = list(STAMPS)
    a.label('L_slow')
    MODE.update(sc='sc1', sfx='_s')
    restore(ctx)
    a('s_nop 7')
    phase1_q(ctx, True)
    a.label('L_layer_s')
    a('s_nop 7')
    phase2(None)
    phase34(None)
    a(f's_cmp_lg_u32 s{sL}, 0')
    a('s_cbranch_scc1 L_done')
    a(f's_mov_b32 s{sL}, 1')
    c2 = phase1_kv(False)
    phase1_q(c2, False)
    a('s_branch L_layer_s')
    a.label('L_final_s')
    final_store()
    a('s_branch L_done')
    a.flush_cold()
    STAMPS[:] = keep


build()
hdr = open('cdna_kernels/' + NAME + '.s.ref').read().split('; Override launch')[0]
out = hdr + f"""; @launch grid=(256,1,1) block=(256,1,1) lds={LDS_BYTES}
.amdgcn_target "amdgcn-amd-amdhsa--gfx950"
; ---------------------------------------------------------------------------------------------
; Persistent single-launch kernel (generated by the author's own Python generator, work/gen22.py).
; 256 workgroups x 4 waves, one per CU.  Phases: weight re-layout into MFMA fragment order, then per
; layer pair  P1 (LN+QKV, phi, kv partials -> fp32 atomics), P2 (o, Wo GEMM, residual),
; P3 (LN+gate/up GEMM, sigmoid*u), P4 (down GEMM, residual).  LayerNorm is folded into the GEMMs
; (extra k-step for the mean, rstd in the epilogue).  Hand-offs use flags in d_ws that are zeroed in
; this launch.  Workgroups publish their XCC id; only if all partners verifiably share an XCD the
; L2-local hand-off variant runs, otherwise the generic write-through variant (label L_slow).
; All spins are bounded.
; ---------------------------------------------------------------------------------------------
.text
.globl {NAME}_kernel
.p2align 8
.type {NAME}_kernel,@function
{NAME}_kernel:
{a.text()}
.section .rodata,"a"
.p2align 6
.amdhsa_kernel {NAME}_kernel
  .amdhsa_next_free_vgpr 512
  .amdhsa_next_free_sgpr 102
  .amdhsa_accum_offset 256
  .amdhsa_group_segment_fixed_size 0
  .amdhsa_kernarg_size 80
  .amdhsa_user_sgpr_count 2
  .amdhsa_user_sgpr_kernarg_segment_ptr 1
  .amdhsa_system_sgpr_workgroup_id_x 1
  .amdhsa_float_denorm_mode_32 3
.end_amdhsa_kernel
"""
outfn = [x for x in sys.argv[1:] if not x.startswith('--')][0]
open(outfn, 'w').write(out)
open(outfn + '.names', 'w').write(','.join(STAMPS))
print('instructions', len(a.ins), 'nops added', a.nops_added)
```

```python
import sys
import contextlib
import re
from asmlib import Asm, vr, ar, sr

NAME = "interleave_layers__linear_attn_block__glu_gated_glu__prompt"
OPT = {}
for x in sys.argv[1:]:
    if x.startswith('--'):
        k, _, v = x[2:].partition('=')
        OPT[k] = v if v else True
PROFILE = 'prof' in OPT
FINE = 'fine' in OPT
CLK = 'clk' in OPT
STOP = OPT.get('stop')
FA = 1
SLEEP = int(OPT.get('sleep', 1))
TOUCH = int(OPT.get('touch', 0))
BUD = int(OPT.get('bud', 3))
XPRE = int(OPT.get('xpre', 8))
HPRE = int(OPT.get('hpre', 16))
HSC = int(OPT.get('hsc', 0))
XSC = int(OPT.get('xsc', 0))
TLBW = int(OPT.get('tlbw', 0))
XI = int(OPT.get('xi', 0))
XA = int(OPT.get('xa', 12))
CT = int(OPT.get('ct', 1))
FT = int(OPT.get('ft', 0))
HT = int(OPT.get('ht', 0))
X0N = int(OPT.get('x0n', 0))
IDLE = int(OPT.get('idle', 0))
OSC = OPT.get('osc', '')
PQSC = int(OPT.get('pqsc', 0))
WB = int(OPT.get('wb', 0))
IDN = int(OPT.get('idn', 11))
HPL = int(OPT.get('hpl', 9))
G3 = int(OPT.get('g3', 1))
P4B = int(OPT.get('p4b', 1))
BEARLY = int(OPT.get('bearly', 1))
WDP2 = int(OPT.get('wdp2', 12))
W1KEEP = int(OPT.get('w1keep', 0))
CARRYON = int(OPT.get('carry', 0))
CWN = int(OPT.get('cwn', 4))
EPD = int(OPT.get('epd', 1))
UNT = 'nt' if int(OPT.get('unt', 0)) else ''
XNT = 'nt' if int(OPT.get('xnt', 0)) else ''
XNT2 = 'nt' if int(OPT.get('xnt', 0)) > 1 else ''
B1E = int(OPT.get('b1e', 0))
LBG = int(OPT.get('lbg', 1))
TAILN = int(OPT.get('tail', 8))
XL0 = int(OPT.get('xl0', 10))
XL1 = int(OPT.get('xl1', 16))
FS0 = int(OPT.get('fs0', 157))
FS1 = int(OPT.get('fs1', 24))
LAG0 = int(OPT.get('lag0', 2))
EVEN = int(OPT.get('even', 0))
WRU = int(OPT.get('wru', 8))
BLATE = int(OPT.get('blate', 6))
BSP = int(OPT.get('bsp', 2))
WSC = OPT.get('wsc', 'sc1').replace('+', ' ')
STAMPS = []

IB = 0x0
W1R = 0x100000; W1S = 87 * 1024
WOR = 0x280000
W3R = 0x300000; W3S = 203 * 1024
WDR = 0x680000; WDS = 224 * 1024
LYB = 0x1000000
KV = 0x0
F1 = 0x10000
F1Q = 0x18000
F3 = 0x30000
F2 = 0x20000
F0 = 0x28000
ST1 = 0x40000
ST0 = 0x80000
PQ = 0x100000
X1 = 0x300000
X0 = 0x500000
HB = 0x700000
PROF = 0x3000000
WS_BYTES = 256 << 20
OOB = 0x40000000

K = 1024
LBETA, LB, LALPHA = 0, 56 * K, 104 * K
LRS = 87 * K
LKVS = 88 * K
LDS_BYTES = 160 * K

S_WS, S_X, S_WQKV, S_WO, S_WG, S_WU, S_WD, S_OUT, S_DBG = 4, 8, 12, 16, 20, 24, 28, 32, 36
S_T0, S_T1 = 40, 44
S_LY = 40
S_DT = 44
sW, sJ, sHC, sTB, sFB, sL, sTMO, sPI = 48, 49, 50, 51, 52, 53, 54, 55
sTILE1, sTILE2, sOWN, sOFT = 56, 57, 58, 59
sLN2, sEPS6 = 60, 62
sONES = 84
sW1K, sW2K, sW4K = 64, 65, 66
sW1SRC, sW3SRC, sWOSRC, sWDSRC = 67, 68, 69, 70
sRBG, sREP = 71, 72
sG, sH, sI = 73, 74, 75
sA, sB, sC, sD, sE, sF = 86, 87, 88, 89, 90, 91
sP0 = 92
sU = 94
sXID = 95
sZW = 96
sPC = 100

vLANE, vL16, vL16b, vL16c, vROW, vAUG, vL4, vPROF = 0, 1, 2, 3, 4, 5, 6, 7
vXRES = 8
LOG2E = 0x3FB8AA3B
LN2 = 0x3F317218
EPS6 = 0x358637BD
EPS5 = 0x3727C5AC
INV448 = 0x3B124925
MF = 'v_mfma_f32_32x32x16_bf16'

a = Asm()
MODE = {'sc': 'sc1', 'sfx': ''}


def LS():
    return MODE['sc']


def LL():
    return OPT.get('ll', 'sc1').replace('none', '') if MODE['sc'] == '' else 'sc1'


def ALIAS():
    return MODE['sfx'] == '' and 'noalias' not in OPT


def XS():
    return 'sc1' if XSC else LS()


def HS():
    return 'sc1' if HSC else LS()


def LB_(n):
    return n + MODE['sfx']


@contextlib.contextmanager
def cond():
    st = (a.vm_issued, a.vm_done, a.lg_issued, a.lg_done)
    yield
    a.vm_issued, a.vm_done, a.lg_issued, a.lg_done = st


@contextlib.contextmanager
def cold(branch, back=None):
    C = a.uid('Lc'); R = back or a.uid('Lr')
    a(f'{branch} {C}')
    st = (a.vm_issued, a.vm_done, a.lg_issued, a.lg_done)
    a.begin_cold()
    a.label(C)
    a('s_nop 7')
    a('s_nop 3')
    yield
    a('s_nop 4')
    a(f's_branch {R}')
    a.end_cold()
    a.vm_issued, a.vm_done, a.lg_issued, a.lg_done = st
    if back is None:
        a.label(R)


def mark():
    return ('vm', a.vm_issued - 1)


def lds_addr(addr):
    if addr < 65536:
        return vL16, addr
    if addr < 131072:
        return vL16b, addr - 65536
    return vL16c, addr - 131072


def stamp(name, fine=False):
    jitter()
    if not PROFILE or (fine and not FINE):
        return
    STAMPS.append(name)
    a('s_waitcnt lgkmcnt(0)')
    a(f"{'s_memtime' if CLK else 's_memrealtime'} {sr(sP0,2)}")
    a.wait_lg0()
    a(f'v_cmp_eq_u32 vcc, s{sPI}, v{vLANE}')
    a(f'v_mov_b32 v255, s{sP0}')
    a(f'v_cndmask_b32 v{vPROF}, v{vPROF}, v255, vcc')
    a(f's_add_u32 s{sPI}, s{sPI}, 1')


JN = [0]


def jitter():
    if 'jitter' not in OPT:
        return
    JN[0] += 1
    L = a.uid('Lj'); E = a.uid('Lje')
    a('s_waitcnt lgkmcnt(0)')
    a(f's_memtime {sr(sP0,2)}')
    a('s_waitcnt lgkmcnt(0)')
    a(f's_mul_i32 s{sP0+1}, s2, {37 + 2*JN[0]}')
    a(f's_lshr_b32 s{sP0}, s{sP0}, 7')
    a(f's_add_u32 s{sP0}, s{sP0}, s{sP0+1}')
    a(f's_and_b32 s{sP0}, s{sP0}, 31')
    a(f's_cmp_lt_u32 s{sP0}, 24')
    a(f's_cbranch_scc1 {E}')
    a.label(L)
    a(f's_sleep {OPT["jitter"]}')
    a(f's_add_u32 s{sP0}, s{sP0}, 1')
    a(f's_cmp_lt_u32 s{sP0}, 32')
    a(f's_cbranch_scc1 {L}')
    a.label(E)


def srd(base, lo, nbytes):
    a(f's_mov_b32 s{base}, s{lo}')
    a(f's_and_b32 s{base+1}, s{lo+1}, 0xffff')
    a(f's_mov_b32 s{base+2}, {nbytes}')
    a(f's_mov_b32 s{base+3}, 0x00020000')


def poll(srdreg, vaddr, soff, imm=0, t=254, sleep=0, nonzero=False):
    L = a.uid('Lpoll'); D = a.uid('Lpd')
    a.label(L)
    if sleep:
        a(f's_sleep {sleep}')
    a(f'buffer_load_dword v{t}, v{vaddr}, {sr(srdreg,4)}, {soff} offen offset:{imm} sc1')
    a(f's_sub_u32 s{sTMO}, s{sTMO}, 1')
    a(f's_max_i32 s{sTMO}, s{sTMO}, 0')
    a(f's_cselect_b64 {sr(sP0,2)}, exec, 0')
    a.wait_vm0()
    a(f'v_cmp_eq_u32 vcc, 0, v{t}' if nonzero else f'v_cmp_ne_u32 vcc, 1, v{t}')
    a(f's_and_b64 exec, {sr(sP0,2)}, vcc')
    a(f's_cbranch_scc1 {L}')
    a('s_mov_b64 exec, -1')


def check_or_poll(v, srdreg, vaddr, soff, imm=0, nonzero=False, sleep=1, t=254):
    a(f'v_cmp_eq_u32 vcc, 0, v{v}' if nonzero else f'v_cmp_ne_u32 vcc, 1, v{v}')
    a('s_cmp_eq_u64 vcc, 0')
    with cold('s_cbranch_scc0'):
        poll(srdreg, vaddr, soff, imm=imm, nonzero=nonzero, sleep=sleep, t=t)


def code_touch(t, d):
    if not CT:
        return []
    return [[f'v_and_b32 v{t}, 3, v{vLANE}',
             f'v_lshlrev_b32 v{t}, 7, v{t}',
             f'global_load_dword v{d}, v{t}, {sr(sPC,2)}']]


def flag_store(srdreg, soff, imm=0, t=254, sc=None):
    sc = LS() if sc is None else sc
    return [f'v_mov_b32 v{t}, 1',
            's_mov_b64 exec, 1',
            f'buffer_store_dword v{t}, off, {sr(srdreg,4)}, {soff} offset:{imm} {sc}',
            's_mov_b64 exec, -1']


def emit(lst):
    t = None
    for x in lst:
        r = a(x)
        t = r if r is not None else t
    return t


def dma_items(vD, lds_base, nfrag, c):
    assert nfrag % (4 * c) == 0
    sWc = {1: sW1K, 2: sW2K, 4: sW4K}[c]
    items = []
    for r in range(nfrag // (4 * c)):
        for i in range(c):
            it = []
            if i == 0:
                it.append(f's_add_u32 m0, s{sWc}, {lds_base + r*4*c*K}')
            it.append(f'buffer_load_dwordx4 v{vD}, {sr(S_WS,4)}, m0 offen offset:{i*K} {WSC} lds')
            items.append(it)
    return items


def dma_setup(vD, ssrc, src_const, lds_base):
    a(f's_add_u32 s{sA}, s{ssrc}, {src_const - lds_base & 0xffffffff:#x}')
    a(f'v_add_u32 v{vD}, s{sA}, v{vL16}')


SRDS = ((S_WQKV, 8, 448 * 1344 * 2), (S_WG, 32, 448 * 1792 * 2), (S_WU, 40, 448 * 1792 * 2), (S_WD, 48, 1792 * 448 * 2),
        (S_WO, 16, 448 * 448 * 2), (S_X, 0, 2048 * 448 * 2), (S_WS, 72, WS_BYTES), (S_DBG, 64, 256), (S_OUT, 56, 2048 * 448 * 2))


def prologue():
    a('s_cmp_ge_u32 s2, 256')
    a('s_cbranch_scc1 L_end')
    for b, off, n in SRDS[:7]:
        a(f's_load_dwordx2 {sr(b,2)}, s[0:1], {off}')
    a(f's_getpc_b64 {sr(sPC,2)}')
    a.label('L_pc')
    a('s_lshr_b32 s3, s2, 3')
    a('s_lshl_b32 s3, s3, 11')
    a('s_min_u32 s3, s3, (L_codeend - L_pc - 2048)')
    a(f's_add_u32 s{sPC}, s{sPC}, s3')
    a(f's_addc_u32 s{sPC+1}, s{sPC+1}, 0')
    a('v_min_u32 v16, 15, v0')
    a('v_lshlrev_b32 v16, 7, v16')
    a(f'global_load_dword v17, v16, {sr(sPC,2)}')
    a(f'v_lshrrev_b32 v18, 6, v0')
    a(f'v_and_b32 v{vLANE}, 63, v0')
    a(f'v_readfirstlane_b32 s{sW}, v18')
    a(f'v_lshlrev_b32 v{vL16}, 4, v{vLANE}')
    a(f'v_lshrrev_b32 v{vR8}, 3, v{vLANE}')
    a(f'v_and_b32 v{vC8}, 0x70, v{vL16}')
    for b, off, n in SRDS[:7]:
        a(f's_mov_b32 s{b+2}, {n}')
        a(f's_mov_b32 s{b+3}, 0x00020000')
    a(f's_lshl_b32 s{sG}, s{sW}, 13')
    a(f's_add_u32 s{sG}, s{sG}, {LSTG}')
    if PROFILE:
        a(f'v_mov_b32 v{vPROF}, 0')
        a(f's_mov_b32 s{sPI}, 0')
    stamp('start')


def prologue2():
    for b, off, n in SRDS[7:]:
        a(f's_load_dwordx2 {sr(b,2)}, s[0:1], {off}')
        a(f's_mov_b32 s{b+2}, {n}')
        a(f's_mov_b32 s{b+3}, 0x00020000')
    a(f'v_add_u32 v{vL16b}, 0x10000, v{vL16}')
    a(f'v_add_u32 v{vL16c}, 0x20000, v{vL16}')
    a(f'v_lshlrev_b32 v{vL4}, 2, v{vLANE}')
    a(f'v_and_b32 v18, 31, v{vLANE}')
    a(f'v_lshrrev_b32 v19, 5, v{vLANE}')
    a(f'v_mul_u32_u24 v{vROW}, 896, v18')
    a(f'v_lshl_add_u32 v{vROW}, v19, 4, v{vROW}')
    a(f'v_lshlrev_b32 v{vAUG}, 2, v18')
    a(f'v_lshl_add_u32 v{vAUG}, v19, 9, v{vAUG}')
    a(f's_and_b32 s{sC}, s2, 7')
    a(f's_lshr_b32 s{sJ}, s2, 3')
    a(f's_mul_i32 s{sTB}, s{sJ}, 37')
    a(f's_lshr_b32 s{sTB}, s{sTB}, 8')
    a(f's_mul_i32 s{sFB}, s{sTB}, 7')
    a(f's_sub_u32 s{sFB}, s{sJ}, s{sFB}')
    a(f's_cmp_ge_u32 s{sJ}, 28')
    a(f's_cselect_b32 s{sTB}, s{sFB}, s{sTB}')
    a(f's_mov_b32 s{sL}, 0')
    a(f's_mov_b32 s{sTMO}, 100000')
    a(f's_lshl_b32 s{sTILE2}, s{sC}, 3')
    a(f's_lshl_b32 s{sD}, s{sTB}, 1')
    a(f's_add_u32 s{sTILE2}, s{sTILE2}, s{sD}')
    a(f's_lshr_b32 s{sD}, s{sW}, 1')
    a(f's_add_u32 s{sOWN}, s{sTILE2}, s{sD}')
    a(f's_and_b32 s{sD}, s{sW}, 1')
    a(f's_lshl_b32 s{sOFT}, s{sFB}, 1')
    a(f's_add_u32 s{sOFT}, s{sOFT}, s{sD}')
    lf = {1: 0, 2: 1, 4: 2, 8: 3}[FA]
    nh = 16 // FA
    a(f's_and_b32 s{sD}, s{sC}, {FA-1}')
    a(f's_mul_i32 s{sHC}, s{sD}, {nh}')
    a(f's_and_b32 s{sD}, s{sJ}, {nh-1}')
    a(f's_add_u32 s{sHC}, s{sHC}, s{sD}')
    a(f's_lshr_b32 s{sD}, s{sC}, {lf}')
    a(f's_lshl_b32 s{sE}, s{sD}, {lf+1}')
    a(f's_lshr_b32 s{sD}, s{sJ}, {4-lf}')
    a(f's_add_u32 s{sE}, s{sE}, s{sD}')
    a(f's_lshl_b32 s{sTILE1}, s{sE}, 2')
    a(f's_add_u32 s{sTILE1}, s{sTILE1}, s{sW}')
    a(f's_mov_b32 s{sLN2}, {LN2:#x}')
    a(f's_mov_b32 s{sLN2+1}, {LN2:#x}')
    a(f's_mov_b32 s{sEPS6}, {EPS6:#x}')
    a(f's_mov_b32 s{sEPS6+1}, {EPS6:#x}')
    a(f's_mov_b32 s{sONES}, 0x3f803f80')
    a(f'v_and_b32 v{vRHO}, 31, v{vLANE}')
    a(f'v_lshrrev_b32 v{vHI}, 5, v{vLANE}')
    a(f'v_and_b32 v{vSIG}, 0x13, v{vRHO}')
    a(f'v_and_b32 v{vt0}, 4, v{vRHO}')
    a(f'v_lshl_or_b32 v{vSIG}, v{vt0}, 1, v{vSIG}')
    a(f'v_lshrrev_b32 v{vt0}, 1, v{vRHO}')
    a(f'v_and_or_b32 v{vSIG}, v{vt0}, 4, v{vSIG}')
    a(f'v_lshrrev_b32 v{vt0}, 4, v{vLANE}')
    a(f'v_lshlrev_b32 v{vt0}, 4, v{vt0}')
    a(f'v_xor_b32 v{vt0}, v{vt0}, v{vC8}')
    a(f'v_mul_u32_u24 v{vt1}, 896, v{vR8}')
    a(f'v_add_u32 v{vXS}, v{vt1}, v{vt0}')
    a(f'v_xor_b32 v{vt0}, 64, v{vt0}')
    a(f'v_add_u32 v{vXS+1}, v{vt1}, v{vt0}')
    a(f's_mov_b32 s{sRBG}, s{sE}')
    a(f's_and_b32 s{sREP}, s2, 3')
    a(f's_lshl_b32 s{sREP}, s{sREP}, 12')
    a(f's_lshl_b32 s{sW1K}, s{sW}, 10')
    a(f's_lshl_b32 s{sW2K}, s{sW}, 11')
    a(f's_lshl_b32 s{sW4K}, s{sW}, 12')
    a(f's_lshl_b32 s{sA}, s{sW}, 9')
    a(f's_add_u32 s{sPC}, s{sPC}, s{sA}')
    a(f's_addc_u32 s{sPC+1}, s{sPC+1}, 0')
    a(f's_getreg_b32 s{sXID}, hwreg(HW_REG_XCC_ID)')
    a(f's_and_b32 s{sXID}, s{sXID}, 15')
    a(f's_add_u32 s{sXID}, s{sXID}, 1')
    a('s_waitcnt lgkmcnt(0)')


def late_consts():
    a(f's_mul_i32 s{sW1SRC}, s{sHC}, {W1S}')
    a(f's_add_u32 s{sW1SRC}, s{sW1SRC}, {W1R}')
    a(f's_mul_i32 s{sW3SRC}, s{sHC}, {W3S}')
    a(f's_add_u32 s{sW3SRC}, s{sW3SRC}, {W3R}')
    a(f's_lshl_b32 s{sWOSRC}, s{sFB}, 16')
    a(f's_lshl_b32 s{sA}, s{sW}, 14')
    a(f's_add_u32 s{sWOSRC}, s{sWOSRC}, s{sA}')
    a(f's_add_u32 s{sWOSRC}, s{sWOSRC}, {WOR}')
    a(f's_mul_i32 s{sWDSRC}, s{sFB}, {WDS}')
    a(f's_mul_i32 s{sA}, s{sW}, 57344')
    a(f's_add_u32 s{sWDSRC}, s{sWDSRC}, s{sA}')
    a(f's_add_u32 s{sWDSRC}, s{sWDSRC}, {WDR}')
    a(f's_add_u32 s{S_LY}, s{S_WS}, {LYB}')
    a(f's_addc_u32 s{S_LY+1}, s{S_WS+1}, 0')
    a(f's_mov_b32 s{S_LY+2}, {2*LYB}')
    a(f's_mov_b32 s{S_LY+3}, 0x00020000')
    a(f's_mov_b32 s{S_DT}, s{S_LY}')
    a(f's_mov_b32 s{S_DT+1}, s{S_LY+1}')
    a(f's_mov_b32 s{S_DT+2}, {2*LYB}')
    a(f's_mov_b32 s{S_DT+3}, 0x00020000')


UD = 128
UC = 192
vRHO, vHI, vSIG, vR8, vC8 = 204, 205, 206, 207, 212
vt0, vt1, vt2, vt3 = 208, 209, 210, 211
vXS = 214
LSTG = 4 * K
LXS = 40 * K


PASS = {'p': 'src'}


class Done(Exception):
    pass


def run_setup(fn, *args):
    try:
        fn(*args)
    except Done:
        pass


def unit_dma(r, srdreg, vsrc, srow0, srow1):
    if PASS['p'] == 'dst':
        return
    _unit_dma(r, srdreg, vsrc, srow0, srow1)
    raise Done()


def _unit_dma(r, srdreg, vsrc, srow0, srow1):
    if r == 0:
        a('s_waitcnt lgkmcnt(0)')
    a(f's_add_u32 m0, s{sG}, {r*2048}')
    a('s_nop 0')
    a(f'buffer_load_dwordx4 v{vsrc}, {sr(srdreg,4)}, s{srow0} offen {UNT} lds')
    a(f's_add_u32 m0, s{sG}, {r*2048+1024}')
    a('s_nop 0')
    a(f'buffer_load_dwordx4 v{vsrc}, {sr(srdreg,4)}, s{srow1} offen {UNT} lds')


def div7(q, rem, su):
    a(f's_mul_i32 s{q}, s{su}, 9363')
    a(f's_lshr_b32 s{q}, s{q}, 16')
    a(f's_mul_i32 s{rem}, s{q}, 7')
    a(f's_sub_u32 s{rem}, s{su}, s{rem}')


def setup_w1(r, su):
    col, dst, aug = UC + 3 * r, UC + 3 * r + 1, UC + 3 * r + 2
    div7(sA, sB, su)
    a(f's_lshr_b32 s{sC}, s{sA}, 3')
    a(f's_and_b32 s{sA}, s{sA}, 7')
    a(f's_mul_i32 s{sD}, s{sC}, 896')
    a(f's_mul_i32 s{sE}, s{sA}, 112')
    a(f's_add_u32 s{sD}, s{sD}, s{sE}')
    a(f's_lshl_b32 s{sF}, s{sB}, 2')
    a(f's_add_u32 s{sF}, s{sF}, s{sW}')
    a(f's_mul_i32 s{sE}, s{sF}, {16*2688}')
    a(f's_add_u32 s{sD}, s{sD}, s{sE}')
    a(f's_add_u32 s{sE}, s{sD}, {8*2688}')
    a(f'v_mul_u32_u24 v{vt0}, 2688, v{vR8}')
    a(f'v_add_u32 v{vt0}, v{vt0}, v{vC8}')
    a(f'v_cmp_eq_u32 vcc, 112, v{vC8}')
    a(f'v_mov_b32 v{vt1}, {OOB:#x}')
    a(f'v_cndmask_b32 v{vt0}, v{vt0}, v{vt1}, vcc')
    unit_dma(r, S_WQKV, vt0, sD, sE)
    a(f'v_cmp_le_u32 vcc, 24, v{vSIG}')
    a(f'v_subrev_u32 v{vt0}, 2, v{vSIG}')
    a(f'v_cndmask_b32 v{vt0}, v{vSIG}, v{vt0}, vcc')
    a(f'v_mad_u32_u24 v{vt0}, v{vHI}, 28, v{vt0}')
    a(f'v_and_b32 v{vt1}, 0x16, v{vSIG}')
    a(f'v_cmp_eq_u32 vcc, 0x16, v{vt1}')
    a(f'v_cndmask_b32 v{vt0}, v{vt0}, 56, vcc')
    a(f'v_lshl_add_u32 v{col}, v{vt0}, 1, s{sG}')
    a(f's_sub_u32 s{sE}, s{sC}, 1')
    a(f's_cmp_eq_u32 s{sC}, 0')
    a(f's_cselect_b32 s{sE}, 2, s{sE}')
    a(f's_mul_i32 s{sD}, s{sF}, 3')
    a(f's_add_u32 s{sD}, s{sD}, s{sE}')
    a(f's_add_u32 s{sE}, s{sE}, 84')
    a(f's_mul_i32 s{sA}, s{sA}, {2*W1S}')
    a(f's_add_u32 s{sA}, s{sA}, {W1R}')
    a(f's_lshl_b32 s{sD}, s{sD}, 10')
    a(f's_add_u32 s{sD}, s{sD}, s{sA}')
    a(f's_lshl_b32 s{sE}, s{sE}, 10')
    a(f's_add_u32 s{sE}, s{sE}, s{sA}')
    a(f's_lshl_b32 s{sB}, s{sB}, 7')
    a(f's_add_u32 s{sE}, s{sE}, s{sB}')
    a(f'v_mul_u32_u24 v{vt0}, {W1S}, v{vHI}')
    a(f'v_lshl_add_u32 v{dst}, v{vRHO}, 4, v{vt0}')
    a(f'v_add_u32 v{dst}, s{sD}, v{dst}')
    a(f'v_lshl_add_u32 v{aug}, v{vRHO}, 2, v{vt0}')
    a(f'v_add_u32 v{aug}, s{sE}, v{aug}')


def setup_w3(r, su, tsrd):
    col, dst, aug = UC + 3 * r, UC + 3 * r + 1, UC + 3 * r + 2
    div7(sA, sB, su)
    a(f's_cmp_ge_u32 s{sA}, 28')
    a(f's_cselect_b32 s{tsrd}, s{S_WU}, s{S_WG}')
    a(f's_cselect_b32 s{tsrd+1}, s{S_WU+1}, s{S_WG+1}')
    a(f's_cselect_b32 s{sC}, 28, 0')
    a(f's_cselect_b32 s{sD}, 16, 0')
    a(f's_mov_b32 s{tsrd+2}, {448*1792*2}')
    a(f's_mov_b32 s{tsrd+3}, 0x00020000')
    a(f's_sub_u32 s{sA}, s{sA}, s{sC}')
    a(f's_lshl_b32 s{sE}, s{sB}, 2')
    a(f's_add_u32 s{sE}, s{sE}, s{sW}')
    a(f's_mul_i32 s{sC}, s{sE}, {16*3584}')
    a(f's_lshl_b32 s{sF}, s{sA}, 7')
    a(f's_add_u32 s{sC}, s{sC}, s{sF}')
    a(f's_add_u32 s{sF}, s{sC}, {8*3584}')
    a(f'v_mul_u32_u24 v{vt0}, 3584, v{vR8}')
    a(f'v_add_u32 v{vt0}, v{vt0}, v{vC8}')
    unit_dma(r, tsrd, vt0, sC, sF)
    a(f'v_and_b32 v{vt0}, 48, v{vLANE}')
    a(f'v_and_or_b32 v{vt0}, v{vSIG}, 15, v{vt0}')
    a(f'v_lshl_add_u32 v{col}, v{vt0}, 1, s{sG}')
    a(f'v_lshrrev_b32 v{vt0}, 4, v{vLANE}')
    a(f's_lshl_b32 s{sC}, s{sA}, 2')
    a(f'v_add_u32 v{vt0}, s{sC}, v{vt0}')
    a(f'v_mul_u32_u24 v{vt1}, 9363, v{vt0}')
    a(f'v_lshrrev_b32 v{vt1}, 16, v{vt1}')
    a(f'v_mul_u32_u24 v{vt2}, 7, v{vt1}')
    a(f'v_sub_u32 v{vt0}, v{vt0}, v{vt2}')
    a(f's_mul_i32 s{sF}, s{sE}, {3 if G3 else 2}')
    a(f'v_add_u32 v{vt2}, s{sF}, v{vt0}')
    a(f'v_add_u32 v{aug}, {84 if G3 else 56}, v{vt0}')
    a(f's_cmp_ge_u32 s{sE}, 27')
    a(f's_cselect_b32 s{sC}, 58, 0')
    a(f's_sub_u32 s{sC}, s{sE}, s{sC}')
    a(f's_add_u32 s{sC}, s{sC}, 176')
    for t, base, ag in (() if G3 else ((2, 59, None),)) + ((3, 87, 115), (4, 116, 144), (5, 147, 175), (6, None, 146)):
        a(f'v_cmp_eq_u32 vcc, {t}, v{vt0}')
        if base is not None:
            a(f's_add_u32 s{sF}, s{sE}, {base}')
            a(f'v_mov_b32 v{vt3}, s{sF}')
        else:
            a(f'v_mov_b32 v{vt3}, s{sC}')
        a(f'v_cndmask_b32 v{vt2}, v{vt2}, v{vt3}, vcc')
        if ag is not None:
            a(f'v_mov_b32 v{vt3}, {ag}')
            a(f'v_cndmask_b32 v{aug}, v{aug}, v{vt3}, vcc')
    a(f'v_mul_u32_u24 v{vt1}, 203, v{vt1}')
    a(f'v_add_lshl_u32 v{vt2}, v{vt2}, v{vt1}, 10')
    a(f'v_add_lshl_u32 v{aug}, v{aug}, v{vt1}, 10')
    a(f'v_and_b32 v{vt0}, 15, v{vLANE}')
    a(f'v_add_u32 v{vt0}, s{sD}, v{vt0}')
    a(f'v_lshl_add_u32 v{dst}, v{vt0}, 4, v{vt2}')
    a(f'v_add_u32 v{dst}, {W3R:#x}, v{dst}')
    a(f'v_lshl_add_u32 v{aug}, v{vt0}, 2, v{aug}')
    a(f's_lshl_b32 s{sB}, s{sB}, 7')
    a(f's_add_u32 s{sB}, s{sB}, {W3R}')
    a(f'v_add_u32 v{aug}, s{sB}, v{aug}')


def setup_colsT(r):
    col, dst, aug = UC + 3 * r, UC + 3 * r + 1, UC + 3 * r + 2
    a(f'v_lshl_add_u32 v{vt0}, v{vHI}, 5, v{vSIG}')
    a(f'v_lshl_add_u32 v{col}, v{vt0}, 1, s{sG}')
    a(f'v_lshlrev_b32 v{dst}, 10, v{vHI}')
    a(f'v_lshl_add_u32 v{dst}, v{vRHO}, 4, v{dst}')
    a(f'v_mov_b32 v{aug}, {OOB:#x}')


def setup_wd(r, su):
    dst = UC + 3 * r + 1
    div7(sA, sB, su)
    a(f's_lshl_b32 s{sA}, s{sA}, 2')
    a(f's_add_u32 s{sA}, s{sA}, s{sW}')
    a(f's_mul_i32 s{sC}, s{sA}, {16*896}')
    a(f's_lshl_b32 s{sD}, s{sB}, 7')
    a(f's_add_u32 s{sC}, s{sC}, s{sD}')
    a(f's_add_u32 s{sD}, s{sC}, {8*896}')
    a(f'v_mul_u32_u24 v{vt0}, 896, v{vR8}')
    a(f'v_add_u32 v{vt0}, v{vt0}, v{vC8}')
    unit_dma(r, S_WD, vt0, sC, sD)
    setup_colsT(r)
    div7(sC, sD, sA)
    a(f's_mul_i32 s{sB}, s{sB}, {WDS}')
    a(f's_lshr_b32 s{sE}, s{sC}, 2')
    a(f's_mul_i32 s{sE}, s{sE}, 57344')
    a(f's_add_u32 s{sB}, s{sB}, s{sE}')
    a(f's_lshl_b32 s{sD}, s{sD}, 2')
    a(f's_and_b32 s{sC}, s{sC}, 3')
    a(f's_add_u32 s{sD}, s{sD}, s{sC}')
    a(f's_lshl_b32 s{sD}, s{sD}, 11')
    a(f's_add_u32 s{sB}, s{sB}, s{sD}')
    a(f's_add_u32 s{sB}, s{sB}, {WDR}')
    a(f'v_add_u32 v{dst}, s{sB}, v{dst}')


def setup_wo(r, su):
    dst = UC + 3 * r + 1
    div7(sA, sB, su)
    a(f's_lshl_b32 s{sA}, s{sA}, 2')
    a(f's_add_u32 s{sA}, s{sA}, s{sW}')
    a(f's_lshr_b32 s{sC}, s{sA}, 1')
    a(f's_mul_i32 s{sC}, s{sC}, {28*896}')
    a(f's_lshl_b32 s{sD}, s{sB}, 7')
    a(f's_add_u32 s{sC}, s{sC}, s{sD}')
    a(f's_and_b32 s{sD}, s{sA}, 1')
    a(f's_cselect_b32 s{sD}, {16*896}, 0')
    a(f's_cselect_b32 s{sE}, {14*896}, 0')
    a(f's_add_u32 s{sD}, s{sD}, s{sC}')
    a(f's_add_u32 s{sE}, s{sE}, s{sC}')
    a(f's_add_u32 s{sE}, s{sE}, {8*896}')
    a(f'v_mul_u32_u24 v{vt0}, 896, v{vR8}')
    a(f'v_add_u32 v{vt0}, v{vt0}, v{vC8}')
    unit_dma(r, S_WO, vt0, sD, sE)
    setup_colsT(r)
    a(f's_lshl_b32 s{sB}, s{sB}, 16')
    a(f's_lshl_b32 s{sC}, s{sA}, 11')
    a(f's_add_u32 s{sB}, s{sB}, s{sC}')
    a(f's_add_u32 s{sB}, s{sB}, {WOR}')
    a(f'v_add_u32 v{dst}, s{sB}, v{dst}')


def setup_none(r):
    col, dst, aug = UC + 3 * r, UC + 3 * r + 1, UC + 3 * r + 2
    a(f'v_mov_b32 v{col}, 0')
    a(f'v_mov_b32 v{dst}, {OOB:#x}')
    a(f'v_mov_b32 v{aug}, {OOB:#x}')


def rounds(tag):
    a('s_cmp_ge_u32 s2, 168')
    a(f's_cbranch_scc1 L_r0b{tag}')
    with cond():
        run_setup(setup_w1, 0, 2)
    a(f's_branch L_r0e{tag}')
    a.label(f'L_r0b{tag}')
    a('s_cmp_ge_u32 s2, 224')
    a(f's_cbranch_scc1 L_r0c{tag}')
    with cond():
        a(f's_sub_u32 s{sU}, s2, 168')
        run_setup(setup_wo, 0, sU)
    a(f's_branch L_r0e{tag}')
    a.label(f'L_r0c{tag}')
    with cond():
        a(f's_sub_u32 s{sU}, s2, 224')
        run_setup(setup_wd, 0, sU)
    a.label(f'L_r0e{tag}')
    run_setup(setup_w3, 1, 2, S_T0)
    a('s_cmp_ge_u32 s2, 136')
    a(f's_cbranch_scc1 L_r2b{tag}')
    with cond():
        a(f's_add_u32 s{sU}, s2, 256')
        run_setup(setup_w3, 2, sU, S_T1)
    a(f's_branch L_r2e{tag}')
    a.label(f'L_r2b{tag}')
    with cond():
        a(f's_sub_u32 s{sU}, s2, 104')
        run_setup(setup_wd, 2, sU)
    a.label(f'L_r2e{tag}')
    a('s_cmp_ge_u32 s2, 212')
    a(f's_cbranch_scc1 L_r3b{tag}')
    if PASS['p'] == 'dst':
        setup_none(3)
    a(f's_branch L_r3e{tag}')
    a.label(f'L_r3b{tag}')
    with cond():
        a(f's_sub_u32 s{sU}, s2, 60')
        run_setup(setup_wd, 3, sU)
    a.label(f'L_r3e{tag}')


def init_phase():
    Z = 216
    vGO = 215 + 9
    a(f's_lshl_b32 s{sA}, s{sW}, 3')
    a(f's_add_u32 s{sZW}, s{sA}, s2')
    a(f's_cmp_lt_u32 s{sZW}, 8')
    with cold('s_cbranch_scc1'):
        for i in range(4):
            a(f'v_mov_b32 v{Z+i}, 0')
        a(f's_lshl_b32 s{sA}, s2, 11')
        a('s_waitcnt lgkmcnt(0)')
        a(f'buffer_store_dwordx4 {vr(Z,4)}, v{vL16}, {sr(S_WS,4)}, s{sA} offen sc1')
        a(f'buffer_store_dwordx4 {vr(Z,4)}, v{vL16}, {sr(S_WS,4)}, s{sA} offen offset:1024 sc1')
    PASS['p'] = 'src'
    rounds('s')
    um = mark()
    for i in range(4):
        a(f'v_mov_b32 v{Z+i}, 0')
    prologue2()
    a(f's_mul_i32 s{sI}, s{sTILE1}, 28672')
    a(f's_mul_i32 s{sH}, s{sW}, {28*K}')
    a(f's_add_u32 s{sH}, s{sH}, {LXS}')
    xq = []
    for g in range(4):
        for c in range(7):
            it = [f's_add_u32 m0, s{sH}, {(4*c+g)*K - c*128}',
                  f'buffer_load_dwordx4 v{vXS + (g & 1)}, {sr(S_X,4)}, s{sI} offen offset:{c*128} {XNT2} lds']
            if c == 6:
                it.append(f's_add_u32 s{sI}, s{sI}, {8*896}')
            xq.append(it)
    a(f's_mul_i32 s{sA}, s{sHC}, {14*128}')
    a(f's_add_u32 s{sA}, s{sA}, s{sI}')
    a(f'v_min_u32 v{vt0}, 13, v{vLANE}')
    a(f'v_lshlrev_b32 v{vt0}, 7, v{vt0}')
    a(f'buffer_load_dword v17, v{vt0}, {sr(S_X,4)}, s{sA} offen {XNT}')
    for _ in range(X0N):
        emit(xq.pop(0))
    stamp('issued')
    a(f's_cmp_ge_u32 s{sZW}, 8')
    a('s_cbranch_scc1 L_z2')
    with cond():
        a(f's_waitcnt vmcnt({7+X0N})')
        a(f's_lshl_b32 s{sA}, s2, 5')
        emit(flag_store(S_DBG, f's{sA}', sc='sc1'))
    a.label('L_z2')
    PASS['p'] = 'dst'
    rounds('d')
    a(f's_lshl_b32 s{sA}, s{sW}, 8')
    a(f'v_add_u32 v{vt1}, s{sA}, v{vL4}')
    a(f'v_and_b32 v{vt3}, 7, v{vLANE}')
    a(f'v_lshlrev_b32 v{vt3}, 5, v{vt3}')
    a(f's_lshl_b32 s{sA}, s2, 10')
    a(f's_add_u32 s{sB}, s{sW}, 1')
    a(f's_lshl_b32 s{sB}, s{sB}, 24')
    a(f's_add_u32 s{sA}, s{sA}, s{sB}')
    a(f's_sub_u32 s{sB}, s{sA}, {2*LYB - ST1}')
    a(f's_cmp_eq_u32 s{sW}, 2')
    a(f's_cselect_b32 s{sA}, s{sB}, s{sA}')
    a(f's_cmp_ge_u32 s{sW}, 3')
    a(f's_cselect_b32 s{sA}, {OOB:#x}, s{sA}')
    a.wait(um, force=True)
    stamp('ldone')
    a(f'buffer_store_dwordx4 {vr(Z,4)}, v{vL16}, {sr(S_WS,4)}, s{sA} offen sc1')
    rtok = {}

    def gat(r, half):
        for e in range(8):
            rtok[r, half] = a(f'ds_read_u16 v{UD+16*r+8*half+e}, v{UC+3*r} offset:{r*2048+(8*half+e)*128}')
    gat(0, 0)
    for r in range(4):
        R = UD + 16 * r
        dst = UC + 3 * r + 1
        for half in range(2):
            nxt = 2 * r + half + 1
            if nxt < 8:
                gat(nxt // 2, nxt % 2)
            a.wait(rtok[r, half])
            for m in range(4):
                a(f'v_lshl_or_b32 v{R+8*half+m}, v{R+8*half+2*m+1}, 16, v{R+8*half+2*m}')
            a(f'buffer_store_dwordx4 {vr(R+8*half,4)}, v{dst}, {sr(S_WS,4)}, 0 offen offset:{512*half} sc1')
            for _ in range(XI):
                emit(xq.pop(0))
    for r in range(3):
        R = UD + 16 * r
        a(f'v_mov_b32 v{R+4}, 0')
        for m in range(4):
            a(f'v_dot2c_f32_bf16 v{R+4}, s{sONES}, v{R+m}')
            a(f'v_dot2c_f32_bf16 v{R+4}, s{sONES}, v{R+8+m}')
        a(f'ds_write_b32 v{vt1}, v{R+4} offset:{r*1024}')
    a(f'buffer_load_dword v{vGO}, v{vt3}, {sr(S_DBG,4)}, 0 offen sc1')
    stamp('packed') if 'initprof' in OPT else None
    a.wait_lg0()
    a.barrier()
    a(f's_cmp_eq_u32 s{sW}, 3')
    a('s_cbranch_scc1 L_aug_e')
    with cond():
        R = 220
        a(f'v_add_u32 v{vt0}, s{sW1K}, v{vL4}')
        a(f'ds_read2st64_b32 {vr(R,2)}, v{vt0} offset0:0 offset1:1')
        t = a(f'ds_read2st64_b32 {vr(R+2,2)}, v{vt0} offset0:2 offset1:3')
        a(f's_cmp_eq_u32 s{sW}, 1')
        a('s_cselect_b64 vcc, -1, 0')
        a(f'v_cndmask_b32 v{vt2}, v{UC+2}, v{UC+5}, vcc')
        a(f's_cmp_eq_u32 s{sW}, 2')
        a('s_cselect_b64 vcc, -1, 0')
        a(f'v_cndmask_b32 v{vt2}, v{vt2}, v{UC+8}, vcc')
        a(f'v_bfe_u32 v{vt0}, v{vt2}, 7, 3')
        a(f'v_cmp_eq_u32 vcc, 6, v{vt0}')
        a(f'v_mov_b32 v{vt1}, {OOB:#x}')
        a(f'v_cndmask_b32 v{vt0}, v{vt1}, v{vt2}, vcc')
        a(f'buffer_store_dword v{Z}, v{vt0}, {sr(S_WS,4)}, 0 offen offset:128 sc1')
        a.wait(t)
        a(f'v_add_f32 v{R}, v{R}, v{R+1}')
        a(f'v_add_f32 v{R+2}, v{R+2}, v{R+3}')
        a(f'v_add_f32 v{R}, v{R}, v{R+2}')
        a(f'v_cvt_pk_bf16_f32 v{R+1}, v{R}, v{R}')
        a(f'v_and_b32 v{R+1}, 0xffff0000, v{R+1}')
        a(f'v_sub_f32 v{R+1}, v{R}, v{R+1}')
        a(f'v_cvt_pk_bf16_f32 v{R+1}, v{R}, v{R+1}')
        a(f'buffer_store_dword v{R+1}, v{vt2}, {sr(S_WS,4)}, 0 offen sc1')
    a.label('L_aug_e')
    sm = mark()
    for _ in range(min(XA, len(xq))):
        emit(xq.pop(0))
    a.wait(sm, force=True)
    stamp('acked') if 'initprof' in OPT else None
    a.barrier()
    a(f's_cmp_lg_u32 s{sW}, 3')
    a('s_cbranch_scc1 L_ib')
    with cond():
        a(f'v_cmp_ne_u32 vcc, 1, v{vGO}')
        a('s_cmp_eq_u64 vcc, 0')
        a('s_cbranch_scc1 L_go_ok')
        with cond():
            poll(S_DBG, vt3, 0, sleep=2)
        a.label('L_go_ok')
        a(f'v_lshlrev_b32 v{vt0}, 12, v{vLANE}')
        a(f'v_mov_b32 v{vt1}, s{sXID}')
        a(f's_lshl_b32 s{sA}, s2, 4')
        a('s_mov_b64 exec, 15')
        a(f'buffer_store_dword v{vt1}, v{vt0}, {sr(S_WS,4)}, s{sA} offen sc1')
        a('s_mov_b64 exec, -1')
    a.label('L_ib')
    stamp('ibpub')
    while xq:
        emit(xq.pop(0))
    a(f's_mul_i32 s{sA}, s{sOWN}, 28672')
    a(f's_lshl_b32 s{sB}, s{sOFT}, 6')
    a(f's_add_u32 s{sA}, s{sA}, s{sB}')
    a(f'buffer_load_dwordx4 {vr(vXRES,4)}, v{vROW}, {sr(S_X,4)}, s{sA} offen')
    a(f'buffer_load_dwordx4 {vr(vXRES+4,4)}, v{vROW}, {sr(S_X,4)}, s{sA} offen offset:32')
    late_consts()
    a(f'v_lshrrev_b32 v{vt0}, 3, v{vRHO}')
    a(f'v_lshlrev_b32 v{vt0}, 10, v{vt0}')
    a(f'v_and_b32 v{vt1}, 7, v{vRHO}')
    a(f'v_lshl_add_u32 v{vt0}, v{vt1}, 7, v{vt0}')
    a(f'v_add_u32 v{vt0}, s{sH}, v{vt0}')
    a(f'v_bfe_u32 v{vt1}, v{vRHO}, 1, 3')
    a(f'v_xor_b32 v{vt1}, v{vt1}, v{vHI}')
    for q in range(4):
        a(f'v_xor_b32 v{220+q}, {2*q}, v{vt1}')
        a(f'v_lshl_add_u32 v{220+q}, v{220+q}, 4, v{vt0}')
    a(f'v_min_u32 v{vt0}, 20, v{vLANE}')
    a(f'v_mul_u32_u24 v{vt1}, 37, v{vt0}')
    a(f'v_lshrrev_b32 v{vt1}, 8, v{vt1}')
    a(f'v_mad_u32_u24 v{vt0}, v{vt1}, 49, v{vt0}')
    a(f's_lshr_b32 s{sA}, s{sHC}, 1')
    a(f's_mul_i32 s{sA}, s{sA}, 7')
    a(f'v_add_lshl_u32 v{vt2}, v{vt0}, s{sA}, 4')
    a.wait_vm_n(2)
    stamp('xland') if 'initprof' in OPT else None
    for ks in range(28):
        a(f'ds_read_b128 {vr(16+4*ks,4)}, v{220+(ks&3)} offset:{(ks>>2)*4096}')
    a(f'v_mov_b32 v240, v{vt2}')
    own_consts()
    p1_setup(True)
    dma_setup(205, sW1SRC, 0, 0)
    a.wait_lg0()
    a.barrier()
    poll(S_WS, 240, f's{sREP}', nonzero=True)
    stamp('w1rdy')


def x0_stats(items):
    S0, S1, Q0, Q1 = 216, 217, 218, 219
    for _ in range(4):
        emit(items.pop(0))
    for v in (S0, S1, Q0, Q1):
        a(f'v_mov_b32 v{v}, 0')
    for i in range(0, 112, 2):
        if items and i % 6 == 0:
            emit(items.pop(0))
        a(f'v_dot2c_f32_bf16 v{S0}, s{sONES}, v{16+i}')
        a(f'v_dot2c_f32_bf16 v{Q0}, v{16+i}, v{16+i}')
        a(f'v_dot2c_f32_bf16 v{S1}, s{sONES}, v{17+i}')
        a(f'v_dot2c_f32_bf16 v{Q1}, v{17+i}, v{17+i}')
    a(f'v_add_f32 v{S0}, v{S0}, v{S1}')
    a(f'v_add_f32 v{S1}, v{Q0}, v{Q1}')
    emit(stats_finish(P1_XAUG))


vRSTD, vC2, vISTD = 248, 249, 250
P1_XAUG = 200


def stats_finish(xaug, SB=216):
    S, Q, t0, t1 = SB, SB + 1, SB + 2, SB + 3
    o = [f'v_mov_b32 v{t0}, v{S}',
         f'v_mov_b32 v{t1}, v{Q}',
         f'v_permlane32_swap_b32 v{S}, v{t0}',
         f'v_permlane32_swap_b32 v{Q}, v{t1}',
         f'v_add_f32 v{S}, v{S}, v{t0}',
         f'v_add_f32 v{Q}, v{Q}, v{t1}',
         f'v_mul_f32 v{S}, {INV448:#x}, v{S}',
         f'v_mul_f32 v{Q}, {INV448:#x}, v{Q}',
         f'v_fma_f32 v{Q}, -v{S}, v{S}, v{Q}',
         f'v_max_f32 v{Q}, 0, v{Q}',
         f'v_add_f32 v{Q}, {EPS5:#x}, v{Q}',
         f'v_rsq_f32 v{vRSTD}, v{Q}',
         f'v_cvt_pk_bf16_f32 v{xaug}, -v{S}, -v{S}',
         f'v_mul_f32 v{vISTD}, v{Q}, v{vRSTD}',
         f'v_mul_f32 v{vC2}, {LOG2E:#x}, v{vRSTD}']
    o += [f'v_mov_b32 v{xaug+i}, v{xaug}' for i in range(1, 4)]
    return o


def stats_sum(SB=216):
    o = []
    for i in range(1, 7):
        o.append(f'v_add_f32 v{SB}, v{SB}, v{SB+2*i}')
        o.append(f'v_add_f32 v{SB+1}, v{SB+1}, v{SB+2*i+1}')
    return o


def x_prep(fl, xb, stb):
    a(f'v_and_b32 v240, 15, v{vLANE}')
    a(f'v_min_u32 v240, 13, v240')
    a(f'v_lshlrev_b32 v240, 5, v240')
    a(f's_lshl_b32 s{sC}, s{sTILE1}, 9')
    a(f's_add_u32 s{sC}, s{sC}, {fl}')
    a(f's_lshl_b32 s{sD}, s{sTILE1}, 12')
    a(f's_add_u32 s{sD}, s{sD}, {stb}')
    a(f's_mul_i32 s{sE}, s{sTILE1}, {28*K}')
    a(f's_add_u32 s{sE}, s{sE}, {xb}')


def x_load(ks):
    if ks % 4 == 0 and ks:
        a(f's_add_u32 s{sE}, s{sE}, 4096')
    return a(f'buffer_load_dwordx4 {vr(16+4*ks,4)}, v{vL16}, {sr(S_DT,4)}, s{sE} offen offset:{(ks%4)*K} sc1')


def st_load(i, SB=216):
    return a(f'buffer_load_dwordx4 {vr(SB+4*i,4)}, v{vL16}, {sr(S_DT,4)}, s{sD} offen offset:{i*K} sc1')


def st_loads(SB=216):
    t = None
    for i in range(7):
        t = a(f'buffer_load_dwordx2 {vr(SB+2*i,2)}, v241, {sr(S_DT,4)}, s{sD} offen offset:{i*256} sc1')
    return t


def read_aug(dst, addr, tmp):
    a(f'v_add_u32 v{tmp}, {addr:#x}, v{vAUG}')
    a(f'ds_read2_b32 {vr(dst,2)}, v{tmp} offset0:0 offset1:32')
    return a(f'ds_read2_b32 {vr(dst+2,2)}, v{tmp} offset0:64 offset1:96')


def read_frag(dst, addr):
    v, off = lds_addr(addr)
    return a(f'ds_read_b128 {vr(dst,4)}, v{v} offset:{off}')


def wfrag_items(regfn, ssrc, lo, hi, va, vb, stmp):
    items = []
    for i, n in enumerate(range(lo, hi)):
        for b in range(2):
            it = []
            if i % 2 == 0 and b == 0:
                it.append(f's_add_u32 s{stmp}, s{ssrc}, {n*2048}')
            it.append(f'buffer_load_dwordx4 {regfn(n,b)}, v{(va,vb)[b]}, {sr(S_WS,4)}, s{stmp} offen offset:{(i%2)*2048} {WSC}')
            items.append(it)
    return items


def slot_addr_setup(va, vb):
    a(f's_and_b32 s{sA}, s{sW1K}, 0x400')
    a(f'v_add_u32 v{va}, s{sA}, v{vL16}')
    a(f'v_xor_b32 v{vb}, 0x400, v{va}')


def cost(x):
    op = x.split()[0]
    return 2 if op.startswith(('v_exp', 'v_rcp', 'v_rsq')) else 1


def drip(q, budget):
    while q and budget >= cost(q[0]):
        x = q.pop(0)
        budget -= cost(x)
        a(x)


CAP = int(OPT.get('cap', 7))
G3 = int(OPT.get('g3', 1))
F1AT = int(OPT.get('f1at', 22))
PQSPLIT = int(OPT.get('pqsplit', 1))
WDP3 = int(OPT.get('wdp3', 36))
WDP1 = int(OPT.get('wdp1', 8))
PUBD2 = int(OPT.get('pubd2', 22))
PRET = int(OPT.get('pret', 1))
PUBD = int(OPT.get('pubd', 20))
S0T = int(OPT.get('s0t', 2))


def shadow(mem, vq, cap=None, pop=None):
    n0 = len(a.ins)
    for f in mem:
        if f is None:
            continue
        if callable(f):
            f()
        else:
            emit(f)
    budget = (CAP if cap is None else cap) - (len(a.ins) - n0)
    while vq and budget >= cost(vq[0]):
        budget -= cost(vq[0])
        if pop:
            pop()
        else:
            a(vq.pop(0))


def split_item(it):
    if it is None:
        return None, None
    return it[:-1], it[-1:]


ACK, ACV, ACQ = 128, 144, 160
P1WR = 176
P1RR2 = 216
p1D1, p1SA, p1SB = 204, 206, 207
p1RSW, p1RSR, p1OH = 208, 209, 210
LMODE = LRS + 1008


CARRY = []


def FAST():
    return MODE['sfx'] != '_s'


def p1_setup(first):
    if not first:
        x_prep(F0 + LYB, *((X1, ST1) if FAST() else (X0 + LYB, ST0 + LYB)))
    slot_addr_setup(p1SA, p1SB)
    a(f'v_and_b32 v{p1OH}, 27, v{vLANE}')
    a(f'v_cmp_eq_u32 vcc, 26, v{p1OH}')
    a(f'v_cndmask_b32 v{p1OH}, 0, 1.0, vcc')
    a(f'v_mov_b32 v{p1OH+1}, v{p1OH}')
    a(f's_add_u32 s{sA}, s{sW4K}, {LKVS}')
    a(f'v_and_b32 v{p1RSW}, 31, v{vLANE}')
    a(f'v_lshl_add_u32 v{p1RSW}, v{p1RSW}, 2, s{sA}')
    a(f'v_lshrrev_b32 v{p1RSR}, 5, v{vLANE}')
    a(f'v_lshl_add_u32 v{p1RSR}, v{p1RSR}, 4, s{sA}')
    dma_setup(p1D1, sW3SRC, 0, LALPHA)


def phase1_kv(first):
    WR, XAUG, RR, RR2, KVD = P1WR, P1_XAUG, ACQ, P1RR2, 232
    vRSW, vRSR, vOH = p1RSW, p1RSR, p1OH
    PRE = XPRE
    xt, vq, st = {}, [], {}
    if first:
        its = dma_items(205, 0, 88, 2)
        x0_stats(its)
        assert not its
        w1m = mark()
        stamp('stats')
    else:
        if B1E:
            a('s_waitcnt vmcnt(1)')
            a.barrier()
    bg = ([] if first else code_touch(205, 212)) + dma_items(p1D1, LALPHA, 56, 2)
    rt = {}
    stage = (0, 8, 16) if first else ()

    def ib_check():
        a.wait(st['ib'])
        check_or_poll(254, S_WS, vL16, f's{sH}', nonzero=True)
        a(f's_and_b32 s{sA}, s2, 7')
        a(f'v_and_b32 v252, 7, v{vLANE}')
        a(f'v_cmp_eq_u32 {sr(sC,2)}, s{sA}, v252')
        a(f'v_cmp_ne_u32 vcc, s{sXID}, v254')
        a(f's_and_b64 vcc, vcc, {sr(sC,2)}')
        a(f's_cselect_b32 s{sZW}, 1, 0')

    def rd(ks, tl):
        if ks > 28:
            return
        if ks in stage and tl == 0:
            need_ops = 22 if ks == 16 else 2 * ((3 * (ks + 8) + 7) // 8)
            a.wait(('vm', w1m[1] - 22 + need_ops))
            if ks == 16:
                ib_check()
            a.barrier()
        d = WR + 8 * (ks % 3) + 4 * tl
        addr = (3 * ks + tl) * K
        rt[ks] = read_frag(d, addr) if ks < 28 else read_aug(d, addr, 252 + tl)
    if first or B1E:
        for ks in range(2):
            rd(ks, 0); rd(ks, 1)
    if not first:
        poll(S_LY, 240, f's{sC}')
        stamp('p1poll')
        for ks in range(4):
            xt[ks] = x_load(ks)
        a(f's_add_u32 s{S_LY}, s{S_LY}, {LYB}')
        a(f's_addc_u32 s{S_LY+1}, s{S_LY+1}, 0')
        if not B1E:
            a.barrier()
            for ks in range(2):
                rd(ks, 0); rd(ks, 1)
        for ks in range(4, PRE):
            xt[ks] = x_load(ks)
    rr = {}

    def stl(i):
        st['s'] = st_load(i)

    def xl(ks):
        xt[ks] = x_load(ks)

    def ibl():
        a(f's_add_u32 s{sH}, s{sREP}, s{sW1K}')
        st['ib'] = a(f'buffer_load_dword v254, v{vL16}, {sr(S_WS,4)}, s{sH} offen sc1')

    def rs_write():
        a(f'ds_write2_b32 v{vRSW}, v{vRSTD}, v{vC2} offset0:0 offset1:32')

    def rs_read(j):
        a(f'ds_read_b128 {vr(RR+4*j,4)}, v{vRSR} offset:{32*j}')
        rr[0] = a(f'ds_read_b128 {vr(RR2+4*j,4)}, v{vRSR} offset:{128+32*j}')
    for ks in range(29):
        if not first and ks == 15:
            a.wait(st['s'])
            vq += stats_sum() + stats_finish(XAUG)
        stamp(f'k{ks}', fine=True) if ks in (1, 8, 15, 21) else None
        a.wait(rt[ks], xt.get(ks))
        X = vr(16 + 4 * ks, 4) if ks < 28 else vr(XAUG, 4)
        c = (lambda r: '0' if ks == 0 else vr(r, 16))
        if not first and ks + PRE < 28:
            pre, main = None, (lambda k_=ks + PRE: xl(k_))
        elif first and ks == 5:
            pre, main = None, ibl
        else:
            pre, main = split_item(bg.pop(0) if bg and (ks >= 15 if first else LBG) else None)
        a(f'{MF} {vr(ACK,16)}, {X}, {vr(WR+8*(ks%3),4)}, {c(ACK)}')
        shadow([pre, lambda: rd(ks + 2, 0), main], vq)
        a(f'{MF} {vr(ACV,16)}, {X}, {vr(WR+8*(ks%3)+4,4)}, {c(ACV)}')
        extra = None
        if not first and ks < 8 and ks % 2 == 0:
            extra = (lambda i=ks // 2: stl(i))
        if ks == 23:
            assert not vq
            extra = rs_write
        if 24 <= ks <= 27:
            extra = (lambda j=ks - 24: rs_read(j))
        shadow([lambda: rd(ks + 2, 1), extra], vq)
    stamp('p1kv')
    qt = {}

    def rq(ks):
        if ks > 28:
            return
        d = WR + 4 * (ks % 6)
        addr = (3 * ks + 2) * K
        qt[ks] = read_frag(d, addr) if ks < 28 else read_aug(d, addr, 252)
    for ks in range(4):
        rq(ks)
    KS = LRS
    a(f's_lshl_b32 s{sB}, s{sHC}, 12')
    a(f's_add_u32 s{sB}, s{sB}, s{sW1K}')
    a.wait(rr[0])
    for r in range(0, 16, 2):
        a(f'v_pk_mul_f32 {vr(ACK+r,2)}, {vr(ACK+r,2)}, {vr(RR2+r,2)}')
    def bgp():
        if bg and EPD:
            emit(bg.pop(0))
    for r in range(16):
        a(f'v_exp_f32_e64 v{RR2+r}, v{ACK+r} clamp')
        a(f'v_max_f32 v{ACK+r}, 0, v{ACK+r}')
        if r % 5 == 0:
            bgp()
    for r in range(0, 16, 2):
        a(f'v_pk_fma_f32 {vr(ACV+r,2)}, {vr(ACV+r,2)}, {vr(RR+r,2)}, {vr(vOH,2)}')
        a(f'v_pk_fma_f32 {vr(RR2+r,2)}, {vr(ACK+r,2)}, {sr(sLN2,2)}, {vr(RR2+r,2)}')
    bgp()
    for r in range(0, 16, 2):
        a(f'v_pk_add_f32 {vr(RR2+r,2)}, {vr(RR2+r,2)}, {sr(sEPS6,2)}')
        a(f'v_cvt_pk_bf16_f32 v{ACV+r//2}, v{ACV+r}, v{ACV+r+1}')
    bgp()
    for m in range(4):
        a(f'v_cvt_pk_bf16_f32 v{ACK+m}, v{RR2+2*m}, v{RR2+2*m+1}')
    a(f'{MF} {vr(KVD,16)}, {vr(ACK,4)}, {vr(ACV,4)}, 0')
    for m in range(4, 8):
        a(f'v_cvt_pk_bf16_f32 v{ACK+m}, v{RR2+2*m}, v{RR2+2*m+1}')
    a(f's_add_u32 s{sA}, s{sW4K}, {LKVS}')
    a(f'v_add_u32 v{vRSW}, s{sA}, v{vL16}')
    a(f'{MF} {vr(KVD,16)}, {vr(ACK+4,4)}, {vr(ACV+4,4)}, {vr(KVD,16)}')
    a(f's_add_u32 s{sA}, s{sW1K}, {LKVS}')
    a(f'v_add_u32 v{vRSR}, s{sA}, v{vL4}')
    if first:
        a(f's_lshl_b32 s{sA}, s{sW}, 2')
        a(f's_add_u32 s{sA}, s{sA}, {LRS}')
        a(f'v_mov_b32 v252, s{sA}')
        a(f'v_mov_b32 v253, s{sZW}')
        a('ds_write_b32 v252, v253')
        a(f'v_mov_b32 v252, {LRS}')

    def qstep(ks, mem=(), vq_=None):
        a.wait(qt[ks])
        X = vr(16 + 4 * ks, 4) if ks < 28 else vr(XAUG, 4)
        a(f'{MF} {vr(ACQ,16)}, {vr(WR+4*(ks%6),4)}, {X}, {"0" if ks == 0 else vr(ACQ,16)}')
        shadow([lambda: rq(ks + 4)] + list(mem), vq_ if vq_ is not None else [])
    qstep(0, [bgp])
    for q in range(4):
        kw = a(f'ds_write_b128 v{vRSW}, {vr(KVD+4*q,4)} offset:{q*K}')
    qstep(1, [bgp])
    a.wait(kw)
    a.barrier()
    RED = RR2
    for wp in range(4):
        a(f'ds_read2st64_b32 {vr(RED+4*wp,2)}, v{vRSR} offset0:{16*wp} offset1:{16*wp+1}')
        t = a(f'ds_read2st64_b32 {vr(RED+4*wp+2,2)}, v{vRSR} offset0:{16*wp+2} offset1:{16*wp+3}')
    if first:
        mt = a(f'ds_read_b128 {vr(KVD,4)}, v252')
    qstep(2)
    a.wait(t)
    for i in range(4):
        a(f'v_add_f32 v{RED+i}, v{RED+i}, v{RED+4+i}')
        a(f'v_add_f32 v{RED+8+i}, v{RED+8+i}, v{RED+12+i}')
    for i in range(4):
        a(f'v_add_f32 v{RED+i}, v{RED+i}, v{RED+8+i}')
    for i in range(4):
        at = a(f'buffer_atomic_add_f32 v{RED+i}, v{vL4}, {sr(S_LY,4)}, s{sB} offen offset:{i*256}')
    stamp('p1atom')
    if first:
        a.wait(mt)
        a(f'v_or_b32 v{KVD}, v{KVD}, v{KVD+1}')
        a(f'v_or3_b32 v{KVD}, v{KVD}, v{KVD+2}, v{KVD+3}')
        a(f'v_readfirstlane_b32 s{sA}, v{KVD}')
        a(f's_cmp_lg_u32 s{sA}, 0')
        a('s_cbranch_scc1 L_slow')
    return dict(qstep=qstep, at=at, qt=qt, bg=bg, state=(a.vm_issued, a.vm_done, a.lg_issued, a.lg_done), qt0=dict(qt))


def phase1_q(ctx, first):
    qstep, at = ctx['qstep'], ctx['at']
    vRSW, vRSR, RR2 = p1RSW, p1RSR, P1RR2
    wo = wfrag_items(lambda n, b: vr(16 + 8 * n + 4 * b, 4), sWOSRC, 0, 8, p1SA, p1SB, sF)
    wo = list(ctx['bg']) + wo
    if first and FAST():
        wo = [[f's_cmp_ge_u32 s{sJ}, 28', f's_cselect_b32 s{sI}, {OOB:#x}, s{sOX}', f's_add_u32 s{sI}, s{sI}, {X1}',
               f'buffer_store_dwordx4 {vr(vXRES,4)}, v{vL16}, {sr(S_DT,4)}, s{sI} offen sc1'],
              [f'buffer_store_dwordx4 {vr(vXRES+4,4)}, v{vL16}, {sr(S_DT,4)}, s{sI} offen offset:1024 sc1']] + wo
    pqoff = PQ if (FAST() or first) else PQ + LYB
    vq = [f's_lshl_b32 s{sG}, s{sHC}, 8',
          f's_lshl_b32 s{sB}, s{sRBG}, 4',
          f's_add_u32 s{sG}, s{sG}, s{sB}',
          f's_add_u32 s{sG}, s{sG}, {F1}',
          f's_cmp_lg_u32 s{sW}, 3\ns_cselect_b32 s{sG}, {OOB:#x}, s{sG}',
          f's_lshl_b32 s{sA}, s{sTILE1}, 15',
          f's_lshl_b32 s{sB}, s{sHC}, 11',
          f's_add_u32 s{sA}, s{sA}, s{sB}',
          f's_add_u32 s{sA}, s{sA}, {pqoff}',
          f's_lshl_b32 s{sU}, s{sTILE1}, 9',
          f's_lshl_b32 s{sB}, s{sHC}, 5',
          f's_add_u32 s{sU}, s{sU}, s{sB}',
          f's_add_u32 s{sU}, s{sU}, {F1Q}',
          f'v_lshlrev_b32 v{vRSW}, 12, v{vLANE}',
          f'v_mov_b32 v{vRSR}, 1',
          f'v_mov_b32 v{vC2+2}, v{vC2}',
          f'v_mov_b32 v{ACK+7}, 0']
    for ks in range(3, 29):
        qstep(ks, [wo.pop(0)] if ks % 2 == 1 else [], vq)
        if ks == F1AT:
            a.wait(at)
            a.barrier()
            a('s_mov_b64 exec, 15')
            a(f'buffer_store_dword v{vRSR}, v{vRSW}, {sr(S_LY,4)}, s{sG} offen sc1')
            a('s_mov_b64 exec, -1')
            stamp('p1pub')
    a('s_nop 4')
    stamp('p1q')
    T = RR2
    for r in range(0, 14, 2):
        a(f'v_pk_mul_f32 {vr(ACQ+r,2)}, {vr(ACQ+r,2)}, {vr(vC2+1,2)} op_sel:[0,1] op_sel_hi:[1,1]')
    for r in range(14):
        a(f'v_exp_f32_e64 v{T+r}, v{ACQ+r} clamp')
        a(f'v_max_f32 v{ACQ+r}, 0, v{ACQ+r}')
    for r in range(0, 14, 2):
        a(f'v_pk_fma_f32 {vr(T+r,2)}, {vr(ACQ+r,2)}, {sr(sLN2,2)}, {vr(T+r,2)}')
    for r in range(0, 14, 2):
        a(f'v_pk_add_f32 {vr(T+r,2)}, {vr(T+r,2)}, {sr(sEPS6,2)}')
    for m in range(7):
        a(f'v_cvt_pk_bf16_f32 v{ACK+m}, v{T+2*m}, v{T+2*m+1}')
    sc = 'sc1' if first else LS()
    a(f'buffer_store_dwordx4 {vr(ACK,4)}, v{vL16}, {sr(S_DT,4)}, s{sA} offen {sc}')
    pst = a(f'buffer_store_dwordx4 {vr(ACK+4,4)}, v{vL16}, {sr(S_DT,4)}, s{sA} offen offset:1024 {sc}')
    if not FAST() and not first:
        a(f's_mov_b32 s{S_DT}, s{S_LY}')
        a(f's_mov_b32 s{S_DT+1}, s{S_LY+1}')
    if first:
        wo += wfrag_items(lambda n_, b: ar(8 * n_ + 4 * b, 4), sWDSRC, 0, WDP1 // 2, p1SA, p1SB, sI)
    for it in wo[:4]:
        emit(it)
    a.barrier()
    a.wait(pst)
    emit(flag_store(S_LY, f's{sU}'))
    if FAST() and CARRYON:
        CARRY[:] = wo[4:]
        print('carry', len(CARRY))
    else:
        for it in wo[4:]:
            emit(it)
    p2_setup()
    stamp('p1end')


ACC0, ACC1 = 208, 224
AAC2, AAC3 = 224, 240


def accs(s):
    return [vr(ACC0, 16), vr(ACC1, 16), ar(AAC2, 16), ar(AAC3, 16)][s]


def red_setup(base, RA):
    o = []
    for s in (1, 2, 3):
        o += [f's_xor_b32 s{sA}, s{sW}, {s}',
              f's_mul_i32 s{sA}, s{sA}, 12288',
              f's_add_u32 s{sA}, s{sA}, {base + (s-1)*4096}',
              f'v_add_u32 v{RA+s}, s{sA}, v{vL16}']
    o += [f's_mul_i32 s{sA}, s{sW}, 12288',
          f's_add_u32 s{sA}, s{sA}, {base}',
          f'v_add_u32 v{RA}, s{sA}, v{vL16}']
    return o


def red_write(s, RA):
    o = []
    for q in range(4):
        d = [None, vr(ACC1 + 4 * q, 4), ar(AAC2 + 4 * q, 4), ar(AAC3 + 4 * q, 4)][s]
        o.append(f'ds_write_b128 v{RA+s}, {d} offset:{q*K}')
    return o


sOX, sOS, sOF = 97, 98, 99


def own_consts():
    a(f's_mul_i32 s{sOX}, s{sOWN}, {28*K}')
    a(f's_lshl_b32 s{sB}, s{sOFT}, 11')
    a(f's_add_u32 s{sOX}, s{sOX}, s{sB}')
    a(f's_lshl_b32 s{sOS}, s{sOWN}, 12')
    a(f's_cmp_ge_u32 s{sOFT}, 7')
    a(f's_cselect_b32 s{sA}, 7, 0')
    a(f's_cselect_b32 s{sB}, 512, 0')
    a(f's_add_u32 s{sOS}, s{sOS}, s{sB}')
    a(f's_sub_u32 s{sA}, s{sOFT}, s{sA}')
    a(f's_lshr_b32 s{sB}, s{sA}, 1')
    a(f's_lshl_b32 s{sB}, s{sB}, 10')
    a(f's_add_u32 s{sOS}, s{sOS}, s{sB}')
    a(f's_and_b32 s{sA}, s{sA}, 1')
    a(f's_lshl_b32 s{sA}, s{sA}, 3')
    a(f's_add_u32 s{sOS}, s{sOS}, s{sA}')
    a(f's_lshl_b32 s{sOF}, s{sOWN}, 9')
    a(f's_lshl_b32 s{sB}, s{sOFT}, 5')
    a(f's_add_u32 s{sOF}, s{sOF}, s{sB}')


def res_unpack(RU):
    o = []
    for m in range(8):
        o.append(f'v_lshlrev_b32 v{RU+2*m}, 16, v{vXRES+m}')
        o.append(f'v_and_b32 v{RU+2*m+1}, 0xffff0000, v{vXRES+m}')
    return o


def red_finish(final, RB, RU, RA, nm, xb, stb, flb, sc, mid, pre=(), res=True):
    for it in pre:
        emit(it)
    a.wait_lg0()
    a.barrier()
    toks = []
    for i in range(12):
        toks.append(a(f'ds_read_b128 {vr(RB+4*i,4)}, v{RA} offset:{i*K}'))
    if final is not True:
        a(f's_add_u32 s{sA}, s{sOX}, {xb}')
        a(f's_add_u32 s{sB}, s{sOS}, {stb}')
        a(f's_add_u32 s{sZW}, s{sOF}, {flb}')
    for r in range(0, 16, 2):
        if res:
            a(f'v_pk_add_f32 {vr(ACC0+r,2)}, {vr(ACC0+r,2)}, {vr(RU+r,2)}')
    S, Q, t0, t1, tl = RU, RU + 1, RU + 2, RU + 3, RU + 4
    if final is not True:
        a(f'v_mov_b32 v{S}, 0')
        a(f'v_mov_b32 v{Q}, 0')
    for s in range(3):
        a.wait(toks[4 * s + 3])
        for r in range(0, 16, 2):
            a(f'v_pk_add_f32 {vr(ACC0+r,2)}, {vr(ACC0+r,2)}, {vr(RB+16*s+r,2)}')
    for m in range(8):
        a(f'v_cvt_pk_bf16_f32 v{vXRES+m}, v{ACC0+2*m}, v{ACC0+2*m+1}')
    if final is True:
        final_store()
        return
    if final == 'dyn':
        a(f's_cmp_lg_u32 s{sL}, 0')
        a('s_cbranch_scc1 ' + LB_('L_final'))
    a(f'buffer_store_dwordx4 {vr(vXRES,4)}, v{vL16}, {sr(S_DT,4)}, s{sA} offen {sc}')
    a(f'buffer_store_dwordx4 {vr(vXRES+4,4)}, v{vL16}, {sr(S_DT,4)}, s{sA} offen offset:1024 {sc}')
    for m in range(8):
        a(f'v_dot2c_f32_bf16 v{S}, s{sONES}, v{vXRES+m}')
        a(f'v_dot2c_f32_bf16 v{Q}, v{vXRES+m}, v{vXRES+m}')
    a(f'v_mov_b32 v{t0}, v{S}')
    a(f'v_mov_b32 v{t1}, v{Q}')
    a(f'v_permlane32_swap_b32 v{S}, v{t0}')
    a(f'v_permlane32_swap_b32 v{Q}, v{t1}')
    a(f'v_pk_add_f32 {vr(S,2)}, {vr(S,2)}, {vr(t0,2)}')
    a('s_mov_b32 exec_hi, 0')
    lt = a(f'buffer_store_dwordx2 {vr(S,2)}, v{vL16}, {sr(S_DT,4)}, s{sB} offen {sc}')
    a('s_mov_b64 exec, -1')
    stamp(nm + 'st')
    mid()
    a.wait(lt)
    emit(flag_store(S_LY, f's{sZW}'))


def final_store():
    a(f'v_and_b32 v18, 31, v{vLANE}')
    a(f'v_lshrrev_b32 v19, 5, v{vLANE}')
    a(f'v_mul_u32_u24 v{vROW}, 896, v18')
    a(f'v_lshl_add_u32 v{vROW}, v19, 4, v{vROW}')
    a(f's_mul_i32 s{sA}, s{sOWN}, 28672')
    a(f's_lshl_b32 s{sB}, s{sOFT}, 6')
    a(f's_add_u32 s{sA}, s{sA}, s{sB}')
    a(f'buffer_store_dwordx4 {vr(vXRES,4)}, v{vROW}, {sr(S_OUT,4)}, s{sA} offen {OSC}')
    a(f'buffer_store_dwordx4 {vr(vXRES+4,4)}, v{vROW}, {sr(S_OUT,4)}, s{sA} offen offset:32 {OSC}')


def idle_touch(base, per_wave_bytes, n, t=16):
    if not IDLE:
        return
    a(f's_sub_u32 s{sA}, s{sJ}, 28')
    a(f's_lshl_b32 s{sA}, s{sA}, 2')
    a(f's_add_u32 s{sA}, s{sA}, s{sW}')
    a(f's_mul_i32 s{sA}, s{sA}, {per_wave_bytes}')
    a(f's_add_u32 s{sA}, s{sA}, {base}')
    a(f'v_lshlrev_b32 v{t}, 7, v{vLANE}')
    for i in range(n):
        a(f'buffer_load_dword v{t+1}, v{t}, {sr(S_WS,4)}, s{sA} offen sc1')
        a(f's_add_u32 s{sA}, s{sA}, 8192')


def p2_setup():
    dma_setup(vROW, sW3SRC, 56 * K, LBETA)
    a(f'v_and_b32 v240, 3, v{vLANE}')
    a(f'v_lshlrev_b32 v240, 5, v240')
    a(f'v_bfe_u32 v241, v{vLANE}, 2, 1')
    a(f'v_lshl_add_u32 v240, v241, 9, v240')
    a(f's_lshl_b32 s{sC}, s{sTILE2}, 9')
    a(f's_lshl_b32 s{sA}, s{sW}, 7')
    a(f's_add_u32 s{sC}, s{sC}, s{sA}')
    a(f's_add_u32 s{sC}, s{sC}, {F1Q}')
    a(f's_lshl_b32 s{sE}, s{sOWN}, 15')
    a(f's_lshl_b32 s{sA}, s{sW}, 13')
    a(f's_add_u32 s{sE}, s{sE}, s{sA}')
    a(f's_add_u32 s{sE}, s{sE}, {PQ}')
    a(f's_xor_b32 s{sF}, s{sE}, 0x8000')
    a(f's_add_u32 s{sH}, s{sREP}, s{sW1K}')
    a(f's_add_u32 s{sH}, s{sH}, {F1}')
    a(f's_lshl_b32 s{sD}, s{sW}, 14')


def phase2(L):
    WO, PQR, KVR = 16, 80, 144
    ODS = (240, 160)
    KB = (144, 152, 176, 192)
    tag = f'{L}'
    beta = dma_items(vROW, LBETA, 56, 2)
    a(f's_cmp_ge_u32 s{sJ}, 28')
    with cold('s_cbranch_scc1', back=LB_('L_p2skip' + tag)):
        for it in beta:
            emit(it)
        if L == 0:
            idle_touch(WDR, 7 * WDS // 16, IDN)
        elif L == 1:
            idle_touch(W3R + 112 * K, W3S, IDN)
        p3_setup(L)
        a.wait_vm0()
    with cond():
        emit(res_unpack(ACC0))
        for s_ in range(4):
            a(f's_xor_b32 s{80+s_}, s{sW}, {s_}')
            a(f's_mul_i32 s{80+s_}, s{80+s_}, 12288')
            a(f's_add_u32 s{80+s_}, s{80+s_}, {LB + max(s_-1, 0)*4096}')
        poll(S_LY, 240, f's{sC}')
        stamp('p2pq')
        pt = {}
        for aa, s in ((1, sF), (0, sE)):
            for hl in range(4):
                for ks in range(2):
                    pt[hl, aa] = a(f'buffer_load_dwordx4 {vr(PQR+16*hl+8*aa+4*ks,4)}, v{vL16}, {sr(S_DT,4)}, s{s} offen offset:{(hl%2)*2048+ks*K} sc1')
                if hl == 1:
                    a(f's_add_u32 s{s}, s{s}, 4096')
                if aa == 1 and hl == 1:
                    fchk = a(f'buffer_load_dword v253, v{vL16}, {sr(S_LY,4)}, s{sH} offen sc1')
                if aa == 0 and hl == PQSPLIT:
                    break
        a.wait(fchk)
        check_or_poll(253, S_LY, vL16, f's{sH}', sleep=0)
        stamp('p2poll')
        kt = {}
        lq = []

        def kvl(hl, q):
            kt[hl] = a(f'buffer_load_dwordx4 {vr(KVR+16*hl+4*q,4)}, v{vL16}, {sr(S_LY,4)}, s{sD} offen offset:{q*K} sc1')
            if q == 3:
                a(f's_add_u32 s{sD}, s{sD}, 4096')

        def pql(hl, ks):
            pt[hl, 0] = a(f'buffer_load_dwordx4 {vr(PQR+16*hl+4*ks,4)}, v{vL16}, {sr(S_DT,4)}, s{sE} offen offset:{(hl%2)*2048+ks*K} sc1')
            if hl == 1 and ks == 1:
                a(f's_add_u32 s{sE}, s{sE}, 4096')
        for hl in range(4):
            for q in range(4):
                kvl(hl, q)
        for hl in range(PQSPLIT + 1, 4):
            for ks in range(2):
                lq.append(lambda h_=hl, k_=ks: pql(h_, k_))
        wot = {}
        cw = []
        if CARRY:
            a(f's_and_b32 s{sA}, s{sW1K}, 0x400')
            a(f's_add_u32 s80, s{sWOSRC}, s{sA}')
            a(f's_xor_b32 s{sA}, s{sA}, 0x400')
            a(f's_add_u32 s81, s{sWOSRC}, s{sA}')
        ncw = 0
        for it in CARRY:
            m_ = re.match(r'buffer_load_dwordx4 ([va])\[(\d+):', it[-1])
            assert m_
            if m_.group(1) == 'v':
                k_ = (int(m_.group(2)) - 16) // 4

                def f(k_=k_):
                    a(f's_add_u32 s78, s{80 + k_ % 2}, {(k_ // 2) * 2048}')
                    wot[k_ // 4] = a(f'buffer_load_dwordx4 {vr(16+4*k_,4)}, v{vL16}, {sr(S_WS,4)}, s78 offen sc1')
                cw.append(f)
            else:
                ncw += 1
        CARRY[:] = []
        for f in cw[:CWN]:
            f()
        bl = beta[len(beta) - BLATE:] if BLATE else []
        beta = beta[:len(beta) - BLATE]
        beta = cw[CWN:] + lq + beta
        wd2 = []
        if L == 0:
            a(f's_and_b32 s{sA}, s{sW1K}, 0x400')
            a(f's_add_u32 s76, s{sWDSRC}, s{sA}')
            a(f's_xor_b32 s{sA}, s{sA}, 0x400')
            a(f's_add_u32 s77, s{sWDSRC}, s{sA}')
            for k_ in range(WDP1 - ncw, WDP1 + WDP2):
                n_, b = k_ // 2, k_ % 2
                wd2.append([f's_add_u32 s78, s{76+b}, {n_*2048}',
                            f'buffer_load_dwordx4 {ar(8*n_+4*b,4)}, v{vL16}, {sr(S_WS,4)}, s78 offen sc1'])

        def cvt(hl):
            return [f'v_cvt_pk_bf16_f32 v{KB[hl]+m}, v{KVR+16*hl+2*m}, v{KVR+16*hl+2*m+1}' for m in range(8)]
        units = [(hl, aa) for aa in (1, 0) for hl in range(4)]

        def oM(u):
            hl, aa = units[u]
            D = vr(ODS[u % 2], 16)
            P = PQR + 16 * hl + 8 * aa
            return [f'{MF} {D}, {vr(KB[hl],4)}, {vr(P,4)}, 0',
                    f'{MF} {D}, {vr(KB[hl]+4,4)}, {vr(P+4,4)}, {D}']

        def scale(u):
            hl, aa = units[u]
            D = ODS[u % 2]
            P = PQR + 16 * hl + 8 * aa
            o = [f'v_add_f32 v{D+14}, s{sEPS6}, v{D+14}',
                 f'v_rcp_f32 v{D+14}, v{D+14}']
            for m in range(7):
                o.append(f'v_mul_f32 v{D+2*m}, v{D+2*m}, v{D+14}')
                o.append(f'v_mul_f32 v{D+2*m+1}, v{D+2*m+1}, v{D+14}')
                o.append(f'v_cvt_pk_bf16_f32 v{P+m}, v{D+2*m}, v{D+2*m+1}')
            return o

        def woM(u, bs):
            hl, aa = units[u]
            P = PQR + 16 * hl + 8 * aa
            o = []
            for b in bs:
                for ks in range(2):
                    D = accs(2 * aa + b)
                    c = '0' if (hl == 0 and ks == 0 and (aa, b) != (0, 0)) else D
                    o.append(f'{MF} {D}, {vr(WO+16*hl+8*ks+4*b,4)}, {vr(P+4*ks,4)}, {c}')
            return o
        RU, RA = 160, 184
        a.wait(kt[0])
        stamp('kv0', fine=True)
        emit(cvt(0))
        emit(oM(0))
        a.wait(kt[1])
        emit(cvt(1))
        m1 = oM(1)
        vs = scale(0)
        a(m1[0]); shadow([], vs)
        a(m1[1]); emit(vs)
        wr = []
        for u in range(9):
            if u < 4:
                ms = woM(u, (0, 1))
            elif u < 8:
                if LAG0 == 2:
                    ms = woM(u, (1,)) + (woM(u - 2, (0,)) if u >= 6 else [])
                else:
                    ms = woM(u, (1,)) + (woM(u - 1, (0,)) if u in (5, 6) else [])
            else:
                ms = woM(6, (0,)) + woM(7, (0,))
            vs = scale(u + 1) if u + 1 < 8 else []
            if u < 4:
                while any(getattr(x, '__name__', '') == 'f' and x.__defaults__[0] // 4 <= u for x in beta):
                    beta.pop(0)()
                a.wait(wot.get(u))
            if u < 2:
                a.wait(kt[u + 2])
                vs = cvt(u + 2) + vs
            if u == 2:
                vs = vs + [f'v_add_u32 v{RA+s_}, s{80+s_}, v{vL16}' for s_ in range(4)]
            if u == 4:
                wr = red_write(2, RA) + red_write(3, RA)
            if u == 8:
                wr = wr + red_write(1, RA)
            if u + 2 < 8:
                ms = ms[:2] + ['W'] + oM(u + 2) + ms[2:]
            k_ = 0
            for m in ms:
                if m == 'W':
                    a.wait(pt[units[u + 2]])
                    if u < 2:
                        while any(x in vs for x in cvt(u + 2)):
                            a(vs.pop(0))
                    continue
                a(m)
                mem = []
                if beta and k_ % BSP == 0:
                    mem.append(beta.pop(0))
                elif wd2 and k_ % 2 == 0 and not beta:
                    mem.append(wd2.pop(0))
                if wr and (k_ % 2 == 1 or u >= WRU) and not (u in (4, 8) and k_ == 0):
                    mem.append(wr[:1]); wr = wr[1:]
                left = len([x for x in ms if x != 'W']) - k_
                if EVEN and not (u < 2 and k_ < 2):
                    shadow(mem, [])
                    for _ in range(-(-len(vs) // left)):
                        a(vs.pop(0))
                else:
                    shadow(mem, vs)
                k_ += 1
            emit(vs)
        wd2 = beta + bl + wd2
        stamp('p2mfma')
        emit(wr)
        sc = LS()
        red_finish(False, 80, RU, RA, 'p2', X1, ST1, F2, sc, lambda: p3_setup(L), pre=wd2, res=False)
    a.label(LB_('L_p2skip' + tag))
    stamp('p2end')


p3D1, p3D3, p3SA, p3SB = 228, 229, 240, 241
p3D2 = 243
p3FL, p3HA, p3HB, p3FV = 244, 245, 246, 247


def p3_setup(L):
    vFL, vHA, vHB = p3FL, p3HA, p3HB
    x_prep(F2, X1, ST1)
    dma_setup(p3D3, sW3SRC, 112 * K, LB)
    dma_setup(p3D1, sW3SRC, 147 * K, LALPHA)
    if L is None:
        a(f's_cmp_lg_u32 s{sL}, 0')
        a(f's_cselect_b32 s{sA}, {OOB:#x}, s{sW1SRC}')
        a(f'v_add_u32 v{p3D2}, s{sA}, v{vL16}')
    elif L == 0:
        a(f'v_add_u32 v{p3D2}, s{sW1SRC}, v{vL16}')
    a(f's_mul_i32 s{sG}, s{sTILE1}, {112*K}')
    a(f's_mul_i32 s{sA}, s{sHC}, {7*K}')
    a(f's_add_u32 s{sG}, s{sG}, s{sA}')
    a(f's_add_u32 s{sG}, s{sG}, {HB}')
    a(f's_add_u32 s{sH}, s{sG}, 4096')
    a(f's_lshl_b32 s{sU}, s{sTILE1}, 9')
    a(f's_lshl_b32 s{sA}, s{sHC}, 2')
    a(f's_add_u32 s{sU}, s{sU}, s{sA}')
    a(f's_add_u32 s{sU}, s{sU}, {F3}')


def p4_addr():
    vFL, vHA, vHB = p3FL, p3HA, p3HB
    return [f'v_and_b32 v{vFL}, 3, v{vLANE}',
            f'v_lshlrev_b32 v{vFL}, 2, v{vFL}',
            f'v_bfe_u32 v{vHA}, v{vLANE}, 2, 1',
            f'v_lshl_add_u32 v{vFL}, v{vHA}, 9, v{vFL}',
            f's_lshl_b32 s{sA}, s{sTILE2}, 9',
            f's_lshl_b32 s{sB}, s{sW}, 4',
            f's_add_u32 s{sA}, s{sA}, s{sB}',
            f's_add_u32 s85, s{sA}, {F3}',
            f'v_add_u32 v{vFL}, s85, v{vFL}',
            f's_mul_i32 s{sB}, s{sW}, {28*K}',
            f's_add_u32 s{sB}, s{sB}, {HB}',
            f's_mul_i32 s{sA}, s{sOWN}, {112*K}',
            f's_add_u32 s{sA}, s{sA}, s{sB}',
            f'v_add_u32 v{vHA}, s{sA}, v{vL16}',
            f's_xor_b32 s{sA}, s{sOWN}, 1',
            f's_mul_i32 s{sA}, s{sA}, {112*K}',
            f's_add_u32 s{sA}, s{sA}, s{sB}',
            f'v_add_u32 v{vHB}, s{sA}, v{vL16}']


def phase34(L):
    ACC = 128
    WR, NW = 192, 8
    SB = 176
    XAUG = 224
    vD1, vD3, vSA, vSB, vD2 = p3D1, p3D3, p3SA, p3SB, p3D2
    vFL, vHA, vHB, vFV = p3FL, p3HA, p3HB, p3FV
    vFV2 = 242
    PRE = XPRE
    HR, NH = 16, 28
    tag = f'{L}'
    LOOK = 6
    NG = 3 if G3 else 2
    steps = [(t, ks) for ks in range(29) for t in range(NG)]
    for t in range(NG, 7):
        steps += [(t, ks) for ks in range(29)]

    def addr(t, ks):
        if G3 and t < 3:
            p = 3 * ks + t
            return LALPHA + p * K if p < 56 else LBETA + (p - 56) * K
        if ks == 28 and t < 3:
            return LBETA + t * K
        if t < 2:
            return LALPHA + (2 * ks + t) * K
        if t == 2:
            return LBETA + (3 + ks) * K
        if t == 3:
            return LBETA + (31 + ks) * K
        if t == 4:
            return LB + (4 + ks) * K
        if t == 5:
            return LALPHA + ks * K
        return LALPHA + (29 + ks) * K if ks < 27 else LB + (33 + ks - 27) * K
    n = len(steps)
    accof = {0: 0, 1: 1, 2: 2, 3: 3, 4: 0, 5: 1, 6: 2}
    rt, xt, hst, ht, chk = {}, {}, {}, {}, {}

    def hsc(t):
        return LS() if (L == 1 and t >= HPL) else 'sc1'

    def epi(t, D=None, Sx=None):
        Sx = ACC + 16 * accof[t] if Sx is None else Sx
        D = Sx if D is None else D
        o = []
        for r in range(8):
            o.append(f'v_mul_f32 v{D+r}, v{Sx+r}, v{vC2}')
        for r in range(8):
            o.append(f'v_exp_f32_e64 v{D+r}, -v{D+r}')
            if r >= 2:
                o.append(f'v_fma_f32 v{D+r-2}, v{D+r-2}, v{vISTD}, v{vISTD}')
        for r in (6, 7):
            o.append(f'v_fma_f32 v{D+r}, v{D+r}, v{vISTD}, v{vISTD}')
        for r in range(8):
            o.append(f'v_rcp_f32 v{D+r}, v{D+r}')
            if r >= 2:
                o.append(f'v_mul_f32 v{D+r-2}, v{D+r-2}, v{Sx+8+r-2}')
        for r in (6, 7):
            o.append(f'v_mul_f32 v{D+r}, v{D+r}, v{Sx+8+r}')
        for m in range(4):
            o.append(f'v_cvt_pk_bf16_f32 v{D+8+m}, v{D+2*m}, v{D+2*m+1}')
        s = sG if t < 4 else sH
        o.append(f'buffer_store_dwordx4 {vr(D+8,4)}, v{vL16}, {sr(S_DT,4)}, s{s} offen offset:{(t%4)*K} {hsc(t)} ; H{t}')
        return o

    def issue_rd(i):
        if i >= n:
            return
        t, ks = steps[i]
        d = WR + 4 * (i % NW)
        rt[i] = read_frag(d, addr(t, ks)) if ks < 28 else read_aug(d, addr(t, ks), 251 + (i % 3))

    def flag_ld(stg, v=None):
        if stg == 0 or not FAST():
            chk[stg] = a(f'buffer_load_dword v{v or vFV}, v{vFL}, {sr(S_LY,4)}, 0 offen offset:{64*stg} sc1')
        else:
            a(f's_buffer_load_dwordx4 s[76:79], {sr(S_LY,4)}, s85 offset:{64*stg}')
            a(f's_buffer_load_dwordx4 s[80:83], {sr(S_LY,4)}, s85 offset:{64*stg+512}')

    def flag_chk(stg):
        if FAST():
            a('s_waitcnt lgkmcnt(0)')
            a('s_and_b64 s[76:77], s[76:77], s[78:79]')
            a('s_and_b64 s[80:81], s[80:81], s[82:83]')
            a('s_and_b64 s[76:77], s[76:77], s[80:81]')
            a('s_and_b32 s76, s76, s77')
        else:
            a.wait(chk[stg])
            a(f'v_cmp_ne_u32 vcc, 1, v{vFV}')
            a('s_cmp_eq_u64 vcc, 0')
        assert 6 in hst
        with cold('s_cbranch_scc0'):
            a.wait_vm0()
            emit(flag_store(S_LY, f's{sU}', imm=128))
            emit(flag_store(S_LY, f's{sU}', imm=192))
            poll(S_LY, vFL, 0, imm=64 * stg)

    CHK = {32: 4, 40: 2, 48: 3}

    def hld(idx, chkflags=True):
        if idx >= 56:
            return
        if chkflags and idx + 4 in CHK:
            flag_ld(CHK[idx + 4])
        if chkflags and idx in CHK:
            flag_chk(CHK[idx])
        n_, aa = idx // 2, idx % 2
        t, cc = n_ // 4, n_ % 4
        if aa == 0:
            a(f's_mov_b32 s{sE}, {(cc*7+t)*K}')
        ht[idx] = a(f'buffer_load_dwordx4 {vr(HR+4*(idx%NH),4)}, v{(vHA,vHB)[aa]}, {sr(S_DT,4)}, s{sE} offen sc1')

    a.wait_lg0()
    if BEARLY:
        a.barrier()
        for i in range(LOOK):
            issue_rd(i)
    poll(S_LY, 240, f's{sC}')
    stamp('p3poll')
    for ks in range(4):
        xt[ks] = x_load(ks)
    if not BEARLY:
        a.barrier()
        for i in range(LOOK):
            issue_rd(i)
    for ks in range(4, PRE):
        xt[ks] = x_load(ks)
    fill, owner = [], []
    done_at = {}
    wd = [] if L == 1 else wfrag_items(lambda n_, b: ar(8 * n_ + 4 * b, 4), sWDSRC, (WDP1 + (WDP2 if L == 0 else 0)) // 2, 28, vSA, vSB, sF)
    ft = [[f'v_and_b32 v233, 0x80, v{vL4}', f'buffer_load_dword v233, v233, {sr(S_LY,4)}, s{sU} offen sc1']] if FT else []
    if HT and FAST() and (L == 1 or HT > 1):
        ft += [[f'v_min_u32 v234, 55, v{vLANE}', f'v_lshlrev_b32 v234, 7, v234', f'buffer_load_dword v234, v234, {sr(S_DT,4)}, s{sG} offen sc1']]
    bg = dma_items(vD3, LB, 36, 1) + ['M3'] + ft + wd[:WDP3]
    wd4 = wd[WDP3:]
    marks = {}
    cur = [0]

    def pop():
        x = fill.pop(0); o = owner.pop(0)
        t = a(x)
        if '; H' in x:
            hst[o] = (t, cur[0])

    def pub(stg, last_tile):
        a.wait(hst[last_tile][0])
        emit(flag_store(S_LY, f's{sU}', imm=64 * stg))

    def xl(ks):
        xt[ks] = x_load(ks)

    def next_bg():
        while bg and isinstance(bg[0], str):
            marks[bg.pop(0)] = mark()
        return bg.pop(0) if bg else None
    pubs = [(0, 1), (1, 3), (4, 4)]
    for i, (t, ks) in enumerate(steps):
        cur[0] = i
        if i == (45 if G3 else 34):
            a.wait(chk['st'])
            s_ = [f's_and_b32 s{sA}, s{sW1K}, 0x400', f'v_add_u32 v{vSA}, s{sA}, v{vL16}', f'v_xor_b32 v{vSB}, 0x400, v{vSA}'] + \
                stats_sum(SB) + stats_finish(XAUG, SB) + p4_addr()
            fill += s_; owner += [-1] * len(s_)
        stamp(f'i{i}', fine=True) if i in (1, 30, 57, 87, 116, 145, 174) else None
        if i % 2 == 0:
            a.wait(rt[min(i + 1, n - 1)], xt.get(steps[min(i + 1, n - 1)][1]), xt.get(ks))
        if i == 56:
            a.barrier()
            k3 = bg.index('M3') + 1 if 'M3' in bg else 0
            bg = bg[:k3] + dma_items(vD1, LALPHA, 56, 2) + ['M4'] + code_touch(232, 233) + bg[k3:]
        if i + LOOK == 112:
            a.wait(marks['M3'])
            a.barrier()
        if i + LOOK == 145:
            a.wait(marks['M4'])
            a.barrier()
            bg = code_touch(232, 233) + bg
        D = vr(ACC + 16 * accof[t], 16)
        if ks == 0 and t >= 4:
            assert (t - 4) not in owner
        if ks == 28:
            assert -1 not in owner
        X = vr(16 + 4 * ks, 4) if ks < 28 else vr(XAUG, 4)
        a(f'{MF} {D}, {vr(WR+4*(i%NW),4)}, {X}, {"0" if ks == 0 else D}')
        if ks == 28:
            done_at[t] = i
        for tt, di in list(done_at.items()):
            if i >= di + 2:
                e = epi(tt)
                fill += e; owner += [tt] * len(e)
                del done_at[tt]
        pre = main = None
        if t == 0 and ks + PRE < 28:
            main = (lambda k_=ks + PRE: xl(k_))
        elif t == NG - 1 and ks < 8 and ks % 2 == 0:
            main = (lambda k_=ks // 2: chk.__setitem__('st', st_load(k_, SB)))
        elif G3 and t == 2 and ks + PRE < 28 and ks % 2 == 0 and 'M3' not in marks:
            pre, main = split_item(next_bg())
        elif t == 6:
            if ks % 2 == 1:
                main = (lambda k_=ks // 2: hld(k_))
            elif ks == 0:
                main = lambda: a.wait(chk[0])
            elif ks == (FS1 if FAST() else 12):
                main = lambda: flag_ld(1, vFV2)
        elif i == FS0:
            main = lambda: flag_ld(0)
        elif i % 2 == 0 and i >= NG * (28 - PRE):
            pre, main = split_item(next_bg())
        extra = None
        if fill and '; H' in fill[0]:
            extra = pop
        elif pubs and pubs[0][1] in hst and i >= hst[pubs[0][1]][1] + PUBD and i % 2 == 1:
            extra = (lambda p=pubs.pop(0): pub(*p))
        n0 = len(a.ins)
        for f in (pre, lambda: issue_rd(i + LOOK), main, extra):
            if f is None:
                continue
            f() if callable(f) else emit(f)
        budget = CAP - (len(a.ins) - n0) - (i % 2)
        while fill and '; H' not in fill[0] and budget >= cost(fill[0]):
            budget -= cost(fill[0])
            pop()
    assert not pubs and next_bg() is None, len(bg)
    print('P3: h stores at steps', {t: v[1] for t, v in hst.items()}, 'left', len(fill))
    assert not fill and 5 in hst
    stamp('p3mfma')

    RU, RA = 192, 128
    w1 = [] if L == 1 else dma_items(vD2, 0, 88, 2)
    nxt = (lambda: p1_setup(False)) if L != 1 else (lambda: None)
    a(f's_cmp_ge_u32 s{sJ}, 28')
    with cold('s_cbranch_scc1', back=LB_('L_p4skip' + tag)):
        emit(epi(6))
        pub(2, 5)
        a.barrier()
        a.wait_vm0()
        emit(flag_store(S_LY, f's{sU}', imm=192))
        if L == 0:
            idle_touch(W1R, W1S, 11)
        if L == 1 and WB:
            a('buffer_wbl2 sc1')
        for it in w1:
            emit(it)
        nxt()
        a.wait_vm0()
    with cond():
        if FAST():
            a(f'v_cmp_ne_u32 vcc, 1, v{vFV}')
            a('s_waitcnt lgkmcnt(0)')
            a('s_and_b64 s[76:77], s[76:77], s[78:79]')
            a('s_and_b64 s[80:81], s[80:81], s[82:83]')
            a('s_and_b64 s[76:77], s[76:77], s[80:81]')
            a('s_and_b32 s76, s76, s77')
            a('s_cmp_eq_u64 vcc, 0')
            a('s_cselect_b32 s77, 1, 0')
            a('s_and_b32 s76, s76, s77')
        else:
            a.wait(chk[1])
            a(f'v_and_b32 v{vFV}, v{vFV}, v{vFV2}')
            a(f'v_cmp_ne_u32 vcc, 1, v{vFV}')
            a('s_cmp_eq_u64 vcc, 0')
        saved = dict(ht)
        with cold('s_cbranch_scc0'):
            emit(epi(6, D=ACC + 48))
            a.wait_vm0()
            emit(flag_store(S_LY, f's{sU}', imm=128))
            emit(flag_store(S_LY, f's{sU}', imm=192))
            poll(S_LY, vFL, 0, imm=64)
            for idx in range(14):
                hld(idx, False)
            a.wait_vm0()
        ht.update(saved)
        fill = epi(6)
        owner = [6] * len(fill)
        later = red_setup(LALPHA, RA) + res_unpack(RU)
        TAIL = TAILN
        nld = [14]
        todo = ['pub2', 'pub3']
        wt = {}

        def mf(n_, s):
            aa, b = s >> 1, s & 1
            D = accs(s)
            a(f'{MF} {D}, {ar(8*n_+4*b,4)}, {vr(HR+4*((2*n_+aa)%NH),4)}, {"0" if n_ == 0 else D}')

        def sh(step, load):
            cur[0] = step
            n0 = len(a.ins)
            if load:
                if nld[0] < 56:
                    hld(nld[0]); nld[0] += 1
                elif w1:
                    emit(w1.pop(0))
            elif todo and todo[0] == 'pub2' and step >= 13:
                pub(2, 5); todo.pop(0)
            elif todo and todo[0] == 'pub3' and 6 in hst and step >= hst[6][1] + PUBD2:
                pub(3, 6); todo.pop(0)
                fill.extend(later); owner.extend([-2] * len(later))
            elif wd4:
                wt[0] = emit(wd4.pop(0))
            if step >= 1:
                if fill and '; H' in fill[0]:
                    pop()
                budget = CAP - (len(a.ins) - n0)
                while fill and '; H' not in fill[0] and budget >= cost(fill[0]):
                    budget -= cost(fill[0])
                    pop()
        for n_ in range(28 - TAIL):
            if n_ == P4B:
                a.barrier()
            stamp(f'n{n_}') if ('p4prof' in OPT and n_ in (2, 4, 8, 13, 15, 17)) else None
            a.wait(ht[2 * n_])
            mf(n_, 0); sh(4 * n_, True)
            mf(n_, 1); sh(4 * n_ + 1, False)
            a.wait(ht[2 * n_ + 1])
            mf(n_, 2); sh(4 * n_ + 2, True)
            mf(n_, 3); sh(4 * n_ + 3, XL0 <= n_ < XL1)
        assert nld[0] == 56 and not fill and not todo and not wd4
        stamp('n20') if 'p4prof' in OPT else None
        a.wait(wt.get(0))
        pend = []
        for s in (3, 2, 1, 0):
            for k_, n_ in enumerate(range(28 - TAIL, 28)):
                a.wait(ht[2 * n_ + 1])
                mf(n_, s)
                if pend and (k_ % 2 == 1 if TAIL >= 8 else (k_ % 3 != 0)):
                    emit(pend[:1]); pend = pend[1:]
                elif w1 and (k_ % 2 == 0 if TAIL >= 8 else True) and len(w1) > W1KEEP:
                    emit(w1.pop(0))
            assert not pend
            if s > 0:
                pend = red_write(s, RA)
        stamp('p4mfma')

        def mid():
            for it in w1:
                emit(it)
            nxt()
        final = {0: False, 1: True, None: 'dyn'}[L]
        xb, stb = (X1, ST1) if FAST() else (X0 + LYB, ST0 + LYB)
        pre4 = w1[:len(w1) // 4 * 2]; w1 = w1[len(pre4):]
        red_finish(final, 16, RU, RA, 'p4', xb, stb, F0 + LYB, LS(), mid, pre=pre4)
    a.label(LB_('L_p4skip' + tag))
    if L != 1:
        stamp('p4end')


def restore(ctx):
    a.vm_issued, a.vm_done, a.lg_issued, a.lg_done = ctx['state']
    ctx['qt'].clear(); ctx['qt'].update(ctx['qt0'])


def build():
    prologue()
    init_phase()
    MODE.update(sc='', sfx='')
    ctx = phase1_kv(True)
    phase1_q(ctx, True)
    phase2(0)
    phase34(0)
    c2 = phase1_kv(False)
    phase1_q(c2, False)
    phase2(1)
    phase34(1)
    a.label('L_done')
    if PROFILE:
        stamp('end')
        a(f's_lshl_b32 s{sA}, s2, 2')
        a(f's_add_u32 s{sA}, s{sA}, s{sW}')
        a(f's_lshl_b32 s{sA}, s{sA}, 8')
        a(f's_add_u32 s{sA}, s{sA}, {PROF}')
        a(f'buffer_store_dword v{vPROF}, v{vL4}, {sr(S_WS,4)}, s{sA} offen')
        if 'probe' in OPT:
            k0, k1 = [int(x) for x in OPT['probe'].split(',')]
            ne = len(STAMPS) - 1
            a(f'v_readlane_b32 s{sA}, v{vPROF}, {k0}')
            a(f'v_readlane_b32 s{sB}, v{vPROF}, {k1}')
            a(f'v_readlane_b32 s{sC}, v{vPROF}, {ne}')
            a('s_cmp_ge_u32 s2, 224')
            a('s_cbranch_scc1 L_end')
            a(f's_sub_u32 s{sA}, s{sB}, s{sA}')
            a(f's_min_u32 s{sA}, s{sA}, 5000')
            a(f's_lshl_b32 s{sA}, s{sA}, 3')
            a(f's_cmp_lg_u32 s2, 77')
            a('s_cbranch_scc1 L_end')
            a.label('L_spin')
            a('s_sleep 1')
            a(f's_memrealtime {sr(sP0,2)}')
            a('s_waitcnt lgkmcnt(0)')
            a(f's_sub_u32 s{sD}, s{sP0}, s{sC}')
            a(f's_cmp_lt_u32 s{sD}, s{sA}')
            a('s_cbranch_scc1 L_spin')
        if 'dbgout' in OPT:
            a(f's_lshl_b32 s{sA}, s2, 2')
            a(f's_add_u32 s{sA}, s{sA}, s{sW}')
            a(f's_cmp_lg_u32 s{sA}, {77*4+1}')
            a('s_cbranch_scc1 L_end')
            a(f'v_readfirstlane_b32 s{sA}, v{vPROF}')
            a(f'v_subrev_u32 v{vPROF}, s{sA}, v{vPROF}')
            a(f'v_lshlrev_b32 v20, 1, v{vLANE}')
            a(f'v_subrev_u32 v20, {2*int(OPT["dbgout"])}, v20')
            a(f'buffer_store_short v{vPROF}, v20, {sr(S_DBG,4)}, 0 offen sc1')
    a.label('L_end')
    a('s_endpgm')
    a.flush_cold()
    a.label('L_codeend')
    keep = list(STAMPS)
    a.label('L_slow')
    MODE.update(sc='sc1', sfx='_s')
    restore(ctx)
    a('s_nop 7')
    phase1_q(ctx, True)
    a.label('L_layer_s')
    a('s_nop 7')
    phase2(None)
    phase34(None)
    a(f's_cmp_lg_u32 s{sL}, 0')
    a('s_cbranch_scc1 L_done')
    a(f's_mov_b32 s{sL}, 1')
    c2 = phase1_kv(False)
    phase1_q(c2, False)
    a('s_branch L_layer_s')
    a.label('L_final_s')
    final_store()
    a('s_branch L_done')
    a.flush_cold()
    STAMPS[:] = keep


build()
hdr = open('cdna_kernels/' + NAME + '.s.ref').read().split('; Override launch')[0]
out = hdr + f"""; @launch grid=(256,1,1) block=(256,1,1) lds={LDS_BYTES}
.amdgcn_target "amdgcn-amd-amdhsa--gfx950"
; ---------------------------------------------------------------------------------------------
; Persistent single-launch kernel (generated by the author's own Python generator, work/gen23.py).
; 256 workgroups x 4 waves, one per CU.  Phases: weight re-layout into MFMA fragment order, then per
; layer pair  P1 (LN+QKV, phi, kv partials -> fp32 atomics), P2 (o, Wo GEMM, residual),
; P3 (LN+gate/up GEMM, sigmoid*u), P4 (down GEMM, residual).  LayerNorm is folded into the GEMMs
; (extra k-step for the mean, rstd in the epilogue).  Hand-offs use flags in d_ws that are zeroed in
; this launch.  Workgroups publish their XCC id; only if all partners verifiably share an XCD the
; L2-local hand-off variant runs, otherwise the generic write-through variant (label L_slow).
; All spins are bounded.
; ---------------------------------------------------------------------------------------------
.text
.globl {NAME}_kernel
.p2align 8
.type {NAME}_kernel,@function
{NAME}_kernel:
{a.text()}
.section .rodata,"a"
.p2align 6
.amdhsa_kernel {NAME}_kernel
  .amdhsa_next_free_vgpr 512
  .amdhsa_next_free_sgpr 102
  .amdhsa_accum_offset 256
  .amdhsa_group_segment_fixed_size 0
  .amdhsa_kernarg_size 80
  .amdhsa_user_sgpr_count 2
  .amdhsa_user_sgpr_kernarg_segment_ptr 1
  .amdhsa_system_sgpr_workgroup_id_x 1
  .amdhsa_float_denorm_mode_32 3
.end_amdhsa_kernel
"""
outfn = [x for x in sys.argv[1:] if not x.startswith('--')][0]
open(outfn, 'w').write(out)
open(outfn + '.names', 'w').write(','.join(STAMPS))
print('instructions', len(a.ins), 'nops added', a.nops_added)
```
